```python
import torch

def _softmax(x, axis=-1):
    return torch.softmax(x, dim=axis)
def _gelu(x):
    return torch.nn.functional.gelu(x, approximate="tanh")
def _silu(x):
    return torch.nn.functional.silu(x)
def _sigmoid(x):
    return torch.sigmoid(x)
def _layernorm(x, axis=-1, eps=1e-5):
    m = x.mean(dim=axis, keepdim=True)
    v = x.var(dim=axis, keepdim=True, unbiased=False)
    return (x - m) / torch.sqrt(v + eps)
def _scatter_add(tgt, idx, src, axis=0):
    return tgt.clone().index_add_(axis, idx, src)
def _segment_sum(src, seg, n):
    out = torch.zeros((n,) + src.shape[1:], dtype=src.dtype)
    return out.index_add_(0, seg, src)
def _pad(x, pw):
    flat = tuple(v for pair in reversed(pw) for v in pair)
    return torch.nn.functional.pad(x, flat)

kernel_name = 'sequential_preLN__mha_block__dense_activation_silu__prompt'

def setup_inputs():

    _w = (lambda a: (lambda t: t.to(torch.bfloat16) if t.is_floating_point() else t)(torch.as_tensor(a)))
    def _A_setup():
        B, S, D, H = 1, 2048, 640, 32
        return {
            "x": _w((lambda *s: torch.randn(*s, dtype=torch.bfloat16) * 0.05)(B, S, D)),
            "wqkv": _w((lambda *s: torch.randn(*s, dtype=torch.bfloat16) * 0.05)(D, 3 * D)),
            "wo": _w((lambda *s: torch.randn(*s, dtype=torch.bfloat16) * 0.05)(D, D)),
        }
    _A_in = _A_setup()

    def _B_setup():
        B, S, D, F = 1, 2048, 640, 1728
        return {
            "x": _w((lambda *s: torch.randn(*s, dtype=torch.bfloat16) * 0.05)(B, S, D)),
            "w1": _w((lambda *s: torch.randn(*s, dtype=torch.bfloat16) * 1.6)(D, F) * (D ** -0.5)),
            "w2": _w((lambda *s: torch.randn(*s, dtype=torch.bfloat16) * 0.2)(F, D) * (F ** -0.5)),
        }
    _B_in = _B_setup()

    return {
        "A_x": _A_in["x"],
        "A_wqkv": _A_in["wqkv"],
        "A_wo": _A_in["wo"],
        "B_x": _B_in["x"],
        "B_w1": _B_in["w1"],
        "B_w2": _B_in["w2"],
    }

def reference(A_x, A_wqkv, A_wo, B_x, B_w1, B_w2):
    def _A_ref(x, wqkv, wo):
        B, S, D = x.shape
        H = 32
        Dh = D // H
        qkv = (lambda x, *d: x.permute(*d))((x @ wqkv).reshape(B, S, 3, H, Dh), 2, 0, 3, 1, 4)
        q, k, v = qkv[0], qkv[1], qkv[2]
        scores = torch.einsum("bhqd,bhkd->bhqk", q, k) * (Dh ** -0.5)
        p = _softmax(scores, axis=-1)
        o = torch.einsum("bhqk,bhkd->bhqd", p, v)
        return (lambda x, *d: x.permute(*d))(o, 0, 2, 1, 3).reshape(B, S, D) @ wo

    def _B_ref(x, w1, w2):
        h = torch.einsum("bsd,df->bsf", x, w1)
        h = _silu(h)
        out = torch.einsum("bsf,fd->bsd", h, w2)
        return out

    x = A_x
    h = x + _A_ref(_layernorm(x, axis=-1), A_wqkv, A_wo)
    h2 = h + _B_ref(_layernorm(h, axis=-1), B_w1, B_w2)
    return h2
```

```python
import re, struct

def f2u(x):
    return struct.unpack("<I", struct.pack("<f", x))[0]

class Asm:
    def __init__(self):
        self.lines = []
        self.uid = 0
    def __call__(self, s):
        for ln in s.split("\n"):
            ln = ln.strip()
            if ln:
                self.lines.append(ln if ln.endswith(":") else "    " + ln)
    def c(self, s):
        self.lines.append("    ; " + s)
    def label(self, name):
        self.lines.append(name + ":")
    def newlabel(self, base):
        self.uid += 1
        return "L_%s_%d" % (base, self.uid)
    def align(self, p):
        self.lines.append(".p2align %d" % p)
    def text(self):
        return "\n".join(self.lines) + "\n"

def vr(a, n=1):
    return "v%d" % a if n == 1 else "v[%d:%d]" % (a, a + n - 1)
def sr(a, n=1):
    return "s%d" % a if n == 1 else "s[%d:%d]" % (a, a + n - 1)

_REG = re.compile(r"^(-|abs\(|-abs\()?([vsa])(?:(\d+)|\[(\d+):(\d+)\])\)?$")
def regs(op):
    op = op.strip()
    if op in ("vcc", "vcc_lo", "vcc_hi"): return {("s", "vcc")}
    if op in ("exec", "exec_lo", "exec_hi"): return {("s", "exec")}
    if op == "m0": return {("s", "m0")}
    m = _REG.match(op)
    if not m: return set()
    k = m.group(2)
    if m.group(3) is not None: return {(k, int(m.group(3)))}
    return {(k, i) for i in range(int(m.group(4)), int(m.group(5)) + 1)}

TRANS = ("v_exp_f32", "v_log_f32", "v_rcp_f32", "v_rsq_f32", "v_sqrt_f32", "v_sin_f32", "v_cos_f32")
def passes(mn):
    if "4x4x4" in mn: return 2
    if "32x32x4_2b" in mn: return 16
    if "32x32x16" in mn or "32x32x8" in mn: return 8
    if "16x16x32" in mn or "16x16x16" in mn: return 4
    raise ValueError(mn)

class Ins:
    def __init__(self, text, idx):
        self.text = text.strip(); self.idx = idx
        t = self.text.split(";")[0].strip()
        parts = t.split(None, 1)
        self.mn = parts[0]
        rest = parts[1] if len(parts) > 1 else ""
        ops = [o.strip() for o in re.split(r",(?![^\[]*\])", rest)] if rest else []
        if ops:
            last = ops[-1].split()
            self.mods = last[1:]
            ops[-1] = last[0] if last else ""
        else:
            self.mods = []
        self.ops = ops
        mn = self.mn
        self.is_mfma = mn.startswith("v_mfma")
        self.is_valu = mn.startswith("v_") and not self.is_mfma
        self.is_salu = mn.startswith("s_")
        self.is_vmem = mn.startswith("buffer_") or mn.startswith("global_")
        self.is_ds = mn.startswith("ds_")
        self.is_dot = mn.startswith("v_dot")
        self.w = set(); self.r = set()
        R = [regs(o) for o in ops]
        if self.is_mfma:
            self.w = R[0]; self.A = R[1]; self.B = R[2]; self.C = R[3]; self.r = R[1] | R[2] | R[3]
        elif self.is_valu:
            if mn.startswith("v_cmp"):
                self.w = R[0]; self.r = set().union(*R[1:])
                if mn.startswith("v_cmpx"): self.w = self.w | {("s", "exec")}
            elif mn.startswith("v_permlane") and "swap" in mn:
                self.w = R[0] | R[1]; self.r = R[0] | R[1]
            elif mn.startswith(("v_add_co", "v_sub_co", "v_addc_co", "v_subb_co")):
                self.w = R[0] | R[1]; self.r = set().union(*R[2:])
            else:
                self.w = R[0]; self.r = set().union(*R[1:]) if len(R) > 1 else set()
                if mn.startswith(("v_fmac", "v_dot2c", "v_writelane")) or "UNUSED_PRESERVE" in self.text: self.r |= R[0]
        elif self.is_ds:
            if mn.startswith(("ds_read", "ds_bpermute", "ds_permute", "ds_swizzle")):
                self.w = R[0]; self.r = set().union(*R[1:])
            else:
                self.r = set().union(*R)
        elif self.is_vmem:
            lds = "lds" in self.mods
            if mn.startswith(("buffer_inv", "buffer_wbl2")): pass
            elif "load" in mn and not lds and "load_lds" not in mn:
                self.w = R[0]; self.r = set().union(*R[1:])
            else:
                self.r = set().union(*R)
                if lds or "load_lds" in mn: self.r |= {("s", "m0")}
            self.is_store = "store" in mn or "atomic" in mn
        elif self.is_salu:
            if mn.startswith(("s_cmp", "s_cbranch", "s_branch", "s_waitcnt", "s_nop", "s_barrier", "s_setprio", "s_sleep", "s_endpgm", "s_bitcmp")):
                self.r = set().union(*R) if R else set()
            else:
                self.w = R[0] if R else set(); self.r = set().union(*R[1:]) if len(R) > 1 else set()
                if "saveexec" in mn: self.w = self.w | {("s", "exec")}
    def states(self):
        if self.mn == "s_nop": return int(self.ops[0], 0) + 1
        return 1

def V(s): return {x for x in s if x[0] in "va"}
def S(s): return {x for x in s if x[0] == "s"}

def need(p, c):
    n = 0; why = ""
    def up(k, w):
        nonlocal n, why
        if k > n: n, why = k, w
    if p.is_valu and not p.is_dot and c.is_mfma and V(p.w) & c.r: up(2, "valu->mfma")
    if p.is_dot:
        if c.is_dot and c.mn == p.mn:
            srcs = set().union(*[regs(o) for o in c.ops[1:3]])
            if p.w & srcs: up(3, "dot->dot A/B")
        elif V(p.w) & (c.r | c.w): up(3, "dot->other")
    if p.is_mfma:
        k = passes(p.mn); i = {2: 0, 4: 1, 8: 2, 16: 3}[k]
        if c.is_mfma:
            if p.w & (c.A | c.B): up((5, 8, 12, 20)[i], "mfma D->A/B")
            if p.w & c.C:
                if not (p.w == c.C and passes(c.mn) == k): up((4, 6, 10, 18)[i], "mfma D->C overlap")
                elif k == 2: up(2, "mfma 2-pass chain")
            elif p.w & c.w: up((4, 6, 10, 18)[i], "mfma WAW?")
        elif (c.is_valu or c.is_vmem or c.is_ds) and p.w & (c.r | c.w): up((5, 8, 12, 20)[i], "mfma D->valu/mem")
        if c.is_valu and p.C & c.w: up((1, 3, 7, 15)[i], "mfma C WAR valu")
        if (c.is_ds or c.is_vmem) and p.C & c.w: up((1, 3, 7, 15)[i], "mfma C WAR load(?)")
    if p.is_valu:
        if p.mn.startswith(TRANS) and (c.is_valu or c.is_mfma) and not c.mn.startswith(TRANS) and p.w & c.r: up(1, "trans")
        if c.mn.startswith(("v_readlane", "v_readfirstlane")) and V(p.w) & c.r: up(1, "valu->readlane")
        if c.mn.startswith("v_permlane") and V(p.w) & c.r: up(2, "valu->permlane")
        if c.is_valu and "dpp" in c.mn and V(p.w) & c.r: up(2, "valu->dpp")
        if S(p.w):
            if c.is_vmem and S(p.w) & c.r: up(5, "valu sgpr->vmem")
            if c.is_valu and S(p.w) & c.r: up(2, "valu sgpr->valu")
            if c.mn.startswith("v_cndmask") and ("s", "vcc") in p.w and "vcc" in c.text: up(2, "vcc->cndmask")
            if ("s", "exec") in p.w and c.is_mfma: up(4, "valu exec->mfma")
            if c.is_salu and S(p.w) & c.r: up(1, "valu sgpr->salu (pad)")
        if "sdwa" in p.mn and c.is_valu and p.w & (c.r | c.w): up(1, "sdwa")
    if p.is_salu and ("s", "m0") in p.w and c.is_vmem and ("s", "m0") in c.r: up(1, "m0->dma")
    if p.is_vmem and getattr(p, "is_store", False) and ("x4" in p.mn or "x3" in p.mn):
        data = regs(p.ops[0]) if p.mn.startswith("buffer") else regs(p.ops[1])
        if c.is_valu and data & c.w: up(2, "store data WAR")
        elif data & c.w: up(1, "store data WAR")
    return n, why

def check(text, maxdist=21):
    ins = []; labels = {}
    for ln in text.split("\n"):
        t = ln.split(";")[0].strip()
        if not t or t.startswith("."): continue
        if t.endswith(":"):
            labels[t[:-1]] = len(ins); continue
        ins.append(Ins(t, len(ins)))
    def succ(i):
        x = ins[i]
        if x.mn == "s_endpgm": return []
        if x.mn == "s_setpc_b64": return [j + 1 for j, y in enumerate(ins) if y.mn == "s_call_b64"]
        if x.mn == "s_call_b64": return [i + 1, labels[x.ops[1]]]
        if x.mn == "s_branch": return [labels[x.ops[0]]]
        if x.mn.startswith("s_cbranch"): return [i + 1, labels[x.ops[0]]]
        return [i + 1] if i + 1 < len(ins) else []
    errs = []
    for p in ins:
        if not (p.is_valu or p.is_mfma or p.is_salu or p.is_vmem): continue
        if p.is_salu and ("s", "m0") not in p.w: continue
        seen = {}
        stack = [(j, 0) for j in succ(p.idx)]
        while stack:
            j, d = stack.pop()
            if j >= len(ins) or d >= maxdist: continue
            if j in seen and seen[j] <= d: continue
            seen[j] = d
            c = ins[j]
            n, why = need(p, c)
            if n > d: errs.append("HAZARD %s need %d have %d:\n    [%d] %s\n    [%d] %s" % (why, n, d, p.idx, p.text, j, c.text))
            for k in succ(j): stack.append((k, d + c.states()))
    return errs
```

```python
import math
from asmlib import vr, sr, f2u
from tables import *
from gen import *

Qm, Qr, NEG, S0, S1, P, O, Km, Kr, V = 4, 8, 12, 28, 60, 92, 108, 124, 132, 136
AK, AKR, AV, DKM, DLIN = 152, 153, 154, 197, 196
XR = 198
PL = 184
SLOT = 22528
WO_LDS = 3 * SLOT
sH, sQB, sST, sK0, sK1, sK2, sS1, sDS, sKD, sVM, sRET, sWOo, sWOl = 64, 65, 66, 67, 68, 69, 70, 71, 72, 74, 76, 78, 79
sW10, sB2, sM2, sL2, sSD = 73, 82, 83, 84, 85
WS = f"s[{SRD_WS}:{SRD_WS+3}]"
M32 = "v_mfma_f32_32x32x16_bf16"
M2B = "v_mfma_f32_32x32x4_2b_bf16"
M16 = "v_mfma_f32_16x16x32_bf16"

def kv_piece(k, i):
    a = k.a
    if i == 0:
        a(f"s_add_u32 m0, s{sW10}, s{sDS}")
        a(f"s_and_b32 s{sB2}, s{sDS}, s{sM2}")
        k.dma(DKM, SRD_WS, f"s{sK0}", "sc1")
        a(f"s_add_u32 s{sK0}, s{sK0}, 4096")
    elif i == 1:
        a(f"s_add_u32 m0, s{sW10}, s{sDS}")
        a("s_add_u32 m0, m0, 8192")
        a(f"s_add_u32 s{sDS}, s{sDS}, {SLOT}")
        k.dma(DLIN, SRD_WS, f"s{sK1}", "sc1")
        a(f"s_add_u32 s{sK1}, s{sK1}, s{sS1}")
        a(f"s_cmp_eq_u32 s{sDS}, {3*SLOT}")
        a(f"s_cselect_b32 s{sDS}, 0, s{sDS}")
    else:
        a(f"s_add_u32 m0, s{sB2}, s{sL2}")
        a("s_nop 0")
        k.dma(DLIN, SRD_WS, f"s{sK2}", "sc1")
        a(f"s_add_u32 s{sK2}, s{sK2}, 10240")

def wo_piece(k):
    a = k.a
    a(f"s_min_u32 m0, s{sWOl}, {k.DUMMY}")
    a(f"s_add_u32 s{T0}, s{sWOo}, 5120")
    a(f"s_cmp_ge_u32 s{sWOl}, {WO_LDS + 45*1024}")
    a(f"s_cselect_b32 s{T0}, s{T0}, s{sWOo}")
    a(f"s_cmp_ge_u32 s{sWOl}, {WO_LDS + 90*1024}")
    a(f"s_cselect_b32 s{T0}, 0x7f000000, s{T0}")
    k.dma(DLIN, SRD_WS, f"s{T0}", "sc1")
    a(f"s_add_u32 s{sWOl}, s{sWOl}, 8192")
    a(f"s_add_u32 s{sWOo}, s{sWOo}, 8192")

def qkm(a, t, d, c): a(f"{M32} {vr(d+16*t,16)}, {vr(Km+4*t,4)}, {vr(Qm,4)}, {c}")
def qkr(a, d): a(f"{M2B} {vr(d,32)}, {vr(Kr,2)}, {vr(Qr,2)}, {vr(d,32)}")
def pv(a, j): a(f"{M32} {vr(O,16)}, {vr(V+4*j,4)}, {vr(P+4*j,4)}, {vr(O,16)}")

def att_stage(k, young):
    a = k.a
    o = k.o
    barit, barpos = [int(x) for x in o.get("abarY" if young else "abarO", "0.9" if young else "1.4").split(".")]
    plo = int(o.get("plo", 9))
    def exps(b, n0, n):
        for i in range(n0, n0 + n): a(f"v_exp_f32 v{b+i}, v{b+i}")
    def cvts(b, n0, n):
        for i in range(n0, n0 + n): a(f"v_cvt_pk_bf16_f32 v{P+i}, v{b+2*i}, v{b+2*i+1}")
    def rdV(js, it):
        a(f"s_mov_b64 exec, s[{sVM}:{sVM+1}]")
        for j in js: a(f"ds_read_b128 {vr(V+4*j,4)}, v{AV} offset:{12288+(4*it+j)*640}")
        a("s_mov_b64 exec, -1")
    for it in range(4):
        cur, nx = (S0, S1) if it % 2 == 0 else (S1, S0)
        i2 = (it + 2) % 4
        npos = [0]
        def mark():
            g = it * 11 + npos[0] - (barit * 11 + barpos)
            if g == 0:
                a("s_waitcnt vmcnt(0)")
                if not o.get("anobar"): a("s_barrier")
                if o.get("its") == "2": k.stamp_dyn(48, sST)
            if not o.get("anoside"):
                d0 = int(o.get("dY" if young else "dO", 5 if young else 1)); dd = int(o.get("dd", 4))
                if g == d0 - 1:
                    Lb = a.newlabel("sb")
                    a(f"s_bitcmp1_b32 s{sSD}, s{sST}")
                    a(f"s_cbranch_scc0 {Lb}")
                    a(f"s_call_b64 s[{sRET}:{sRET+1}], L_att_side")
                    a.label(Lb)
                for i in range(3):
                    if g == d0 + i * dd: kv_piece(k, i)
                    if g == d0 + (3 + i) * dd: wo_piece(k)
            per = int(o.get("pper", 1))
            if young and it % per == 0 and npos[0] == 0: a("s_setprio 1")
            if young and it % per == per - 1 and npos[0] == plo: a("s_setprio 0")
            npos[0] += 1
        if it == 2:
            a(f"v_add_u32 v{AK}, s{sKD}, v{AK}")
            a(f"v_add_u32 v{AKR}, s{sKD}, v{AKR}")
        mark()
        a("s_waitcnt lgkmcnt(3)")
        qkm(a, 0, nx, vr(NEG, 16)); exps(cur, 0, 4); mark()
        pv(a, 3); exps(cur, 4, 4); rdV([3], it); mark()
        qkm(a, 1, nx, vr(NEG, 16))
        a(f"ds_read_b128 {vr(Km,4)}, v{AK} offset:{2048*i2}")
        cvts(cur, 0, 4); mark()
        exps(cur, 8, 4)
        a(f"ds_read_b128 {vr(Km+4,4)}, v{AK} offset:{2048*i2+1024}")
        mark()
        a("s_waitcnt lgkmcnt(5)")
        pv(a, 0); exps(cur, 12, 4); cvts(cur, 4, 2); mark()
        qkr(a, nx); cvts(cur, 6, 2)
        a(f"ds_read_b64 {vr(Kr,2)}, v{AKR} offset:{8192+1024*i2}")
        exps(cur, 16, 4); mark()
        exps(cur, 20, 4); cvts(cur, 8, 2); mark()
        a("s_waitcnt lgkmcnt(5)")
        pv(a, 1); cvts(cur, 10, 2); exps(cur, 24, 2); mark()
        exps(cur, 26, 3); mark()
        a("s_waitcnt lgkmcnt(4)")
        pv(a, 2); exps(cur, 29, 3); mark()
        cvts(cur, 12, 4)
        if it == 3:
            a(f"v_add_u32 v{AV}, s{sKD}, v{AV}")
            a(f"s_add_u32 s{sST}, s{sST}, 1")
            a(f"s_mul_i32 s{T0}, s{sST}, 0x56")
            a(f"s_lshr_b32 s{T0}, s{T0}, 8")
            a(f"s_mul_i32 s{T0}, s{T0}, 3")
            a(f"s_sub_u32 s{T0}, s{sST}, s{T0}")
            a(f"s_mov_b32 s{sKD}, {SLOT}")
            a(f"s_cmp_eq_u32 s{T0}, 2")
            a(f"s_cselect_b32 s{sKD}, {-2*SLOT & 0xffffffff}, s{sKD}")
        rdV([0, 1, 2], (it + 1) % 4)

def att_side(k):
    a = k.a
    a.label("L_att_side")
    a(f"s_cmp_eq_u32 s{sST}, 3")
    a("s_cbranch_scc1 L_as_3")
    a(f"s_cmp_eq_u32 s{sST}, 6")
    a("s_cbranch_scc1 L_as_6")
    a(f"s_mov_b32 s{T0}, {FL_R}")
    a(f"buffer_load_dwordx4 v[{PL}:{PL+3}], v{DLIN}, {WS}, s{T0} offen sc1")
    a(f"buffer_load_dwordx4 v[{PL+4}:{PL+7}], v{DLIN}, {WS}, s{T0} offen offset:1024 sc1")
    a(f"s_setpc_b64 s[{sRET}:{sRET+1}]")
    a.label("L_as_6")
    for r in (sK0, sK1, sK2): a(f"s_mov_b32 s{r}, 0x7f000000")
    a(f"s_setpc_b64 s[{sRET}:{sRET+1}]")
    a.label("L_as_3")
    N = f"s[{S_NONCE}:{S_NONCE+1}]"
    a(f"v_cmp_ne_u64 vcc, {N}, v[{PL}:{PL+1}]")
    a(f"v_cmp_ne_u64 s[{S_M1}:{S_M1+1}], {N}, v[{PL+2}:{PL+3}]")
    a(f"s_and_b32 s{T1}, s{S_J}, 7")
    a(f"s_or_b64 s[{T4}:{T5}], vcc, s[{S_M1}:{S_M1+1}]")
    a(f"v_cmp_ne_u64 vcc, {N}, v[{PL+4}:{PL+5}]")
    a(f"v_cmp_ne_u64 s[{S_M1}:{S_M1+1}], {N}, v[{PL+6}:{PL+7}]")
    a(f"s_mul_i32 s{sWOo}, s{T1}, {20*5120}")
    a(f"s_add_u32 s{sWOo}, s{sWOo}, s{sW10}")
    a(f"s_add_u32 s{sWOo}, s{sWOo}, {WS_WO}")
    a(f"s_add_u32 s{sWOl}, s{sW10}, {WO_LDS}")
    a(f"s_or_b64 s[{T4}:{T5}], s[{T4}:{T5}], vcc")
    a(f"s_or_b64 s[{T4}:{T5}], s[{T4}:{T5}], s[{S_M1}:{S_M1+1}]")
    a("s_cbranch_scc0 L_as_ret")
    a(f"s_mov_b32 s{T3}, {FL_R}")
    k.poll(256, T3, 8, PL, only_wave0=False)
    a.label("L_as_ret")
    a(f"s_setpc_b64 s[{sRET}:{sRET+1}]")

def resid_x(k):
    a = k.a
    a(f"s_lshr_b32 s{T0}, s{S_J}, 3")
    a(f"s_lshl_b32 s{T1}, s{S_C}, 2")
    a(f"s_add_u32 s{T0}, s{T0}, s{T1}")
    a(f"s_lshl_b32 s{T0}, s{T0}, 2")
    a(f"s_and_b32 s{T1}, s{S_W}, 3")
    a(f"s_add_u32 s{T0}, s{T0}, s{T1}")
    a(f"s_mul_i32 s{T0}, s{T0}, {16*1280}")
    a(f"s_and_b32 s{T1}, s{S_J}, 7")
    a(f"s_mul_i32 s{T1}, s{T1}, 160")
    a(f"s_add_u32 s{T0}, s{T0}, s{T1}")
    a(f"s_lshr_b32 s{T1}, s{S_W}, 2")
    a(f"s_lshl_b32 s{T1}, s{T1}, 6")
    a(f"s_add_u32 s{T1}, s{T1}, s{T0}")
    a(f"v_and_b32 v{PL}, 15, v0")
    a(f"v_mul_u32_u24 v{PL}, 1280, v{PL}")
    a(f"v_lshrrev_b32 v{PL+1}, 4, v0")
    a(f"v_lshl_add_u32 v{PL}, v{PL+1}, 3, v{PL}")
    a(f"buffer_load_dwordx2 v[{XR}:{XR+1}], v{PL}, s[{SRD_X}:{SRD_X+3}], s{T1} offen")
    a(f"buffer_load_dwordx2 v[{XR+2}:{XR+3}], v{PL}, s[{SRD_X}:{SRD_X+3}], s{T1} offen offset:32")
    a(f"buffer_load_dwordx2 v[{XR+4}:{XR+5}], v{PL}, s[{SRD_X}:{SRD_X+3}], s{T0} offen offset:128")

def rowmax(a, b, n, dst, t):
    a(f"v_max3_f32 v{dst}, v{b}, v{b+1}, v{dst}")
    for i in range(2, n, 2): a(f"v_max3_f32 v{dst}, v{b+i}, v{b+i+1}, v{dst}")

def set_neg(a, m, t):
    a(f"v_mov_b32 v{t}, v{m}")
    a("s_nop 1")
    a(f"v_permlane32_swap_b32 v{m}, v{t}")
    a("s_nop 0")
    a(f"v_max_f32 v{m}, v{m}, v{t}")
    for r in range(16): a(f"v_sub_f32 v{NEG+r}, 0, v{m}")

def att_fallback(k):
    a = k.a
    a.label("L_att_fb")
    sI, sA, sB, sC = T0, T1, T2, T3
    def init():
        a(f"s_lshl_b32 s{sA}, s{sH}, 16")
        a(f"s_add_u32 s{sA}, s{sA}, {WS_K}")
        a(f"s_lshr_b32 s{sB}, s{sH}, 1")
        a(f"s_lshl_b32 s{sB}, s{sB}, 15")
        a(f"s_add_u32 s{sB}, s{sB}, {WS_K + 64*32768}")
        a(f"s_mul_i32 s{sC}, s{sH}, 81920")
        a(f"s_add_u32 s{sC}, s{sC}, {WS_V}")
        a(f"s_mov_b32 s{sI}, 0")
    def ldk():
        a(f"buffer_load_dwordx4 {vr(Km,4)}, v{DKM}, {WS}, s{sA} offen sc1")
        a(f"buffer_load_dwordx4 {vr(Km+4,4)}, v{DKM}, {WS}, s{sA} offen offset:512 sc1")
        a(f"buffer_load_dwordx2 {vr(Kr,2)}, v{PL+1}, {WS}, s{sB} offen sc1")
    def step():
        a(f"s_add_u32 s{sA}, s{sA}, 1024")
        a(f"s_add_u32 s{sB}, s{sB}, 1024")
        a(f"s_add_u32 s{sC}, s{sC}, 2560")
        a(f"s_add_u32 s{sI}, s{sI}, 1")
        a(f"s_cmp_lt_u32 s{sI}, 32")
    a(f"s_and_b32 s{T0}, s{sH}, 1")
    a(f"s_lshl_b32 s{T0}, s{T0}, 3")
    a(f"v_add_u32 v{PL+1}, s{T0}, v{DLIN}")
    a(f"v_lshrrev_b32 v{PL+2}, 5, v0")
    a(f"v_mul_u32_u24 v{PL+2}, 20, v{PL+2}")
    a(f"v_and_b32 v{PL+3}, 31, v0")
    a(f"v_add_lshl_u32 v{PL+2}, v{PL+2}, v{PL+3}, 4")
    a(f"v_mov_b32 v{PL}, 0xff800000")
    init()
    a.label("L_fb_max")
    ldk()
    a("s_waitcnt vmcnt(0)")
    qkm(a, 0, S0, "0"); qkm(a, 1, S0, "0")
    a("s_nop 9")
    qkr(a, S0)
    a("s_nop 15"); a("s_nop 3")
    rowmax(a, S0, 32, PL, PL + 4)
    step()
    a("s_cbranch_scc1 L_fb_max")
    set_neg(a, PL, PL + 4)
    for r in range(16): a(f"v_mov_b32 v{O+r}, 0")
    init()
    a.label("L_fb_acc")
    ldk()
    a(f"s_mov_b64 exec, s[{sVM}:{sVM+1}]")
    for j in range(4): a(f"buffer_load_dwordx4 {vr(V+4*j,4)}, v{PL+2}, {WS}, s{sC} offen offset:{640*j} sc1")
    a("s_mov_b64 exec, -1")
    a("s_waitcnt vmcnt(0)")
    qkm(a, 0, S0, vr(NEG, 16)); qkm(a, 1, S0, vr(NEG, 16))
    a("s_nop 9")
    qkr(a, S0)
    a("s_nop 15"); a("s_nop 3")
    for i in range(32): a(f"v_exp_f32 v{S0+i}, v{S0+i}")
    a("s_nop 0")
    for i in range(16): a(f"v_cvt_pk_bf16_f32 v{P+i}, v{S0+2*i}, v{S0+2*i+1}")
    a("s_nop 1")
    for j in range(4): pv(a, j)
    step()
    a("s_cbranch_scc1 L_fb_acc")
    a("s_nop 11")
    a("s_branch L_att_norm")

def phase2(k):
    a = k.a
    a.c("================ phase 2: attention")
    resid_x(k)
    a(f"s_lshl_b32 s{sH}, s{S_C}, 2")
    a(f"s_lshr_b32 s{T0}, s{S_J}, 3")
    a(f"s_add_u32 s{sH}, s{sH}, s{T0}")
    a(f"s_and_b32 s{sQB}, s{S_J}, 7")
    a(f"v_lshlrev_b32 v{DLIN}, 4, v0")
    a("v_lshrrev_b32 v1, 5, v0")
    a("v_and_b32 v2, 31, v0")
    a("v_lshlrev_b32 v3, 15, v1")
    a(f"v_lshl_add_u32 v{DKM}, v2, 4, v3")
    a(f"v_mov_b32 v{AK}, v{DLIN}")
    a(f"s_and_b32 s{T0}, s{sH}, 1")
    a(f"s_lshl_b32 s{T0}, s{T0}, 3")
    a(f"v_add_u32 v{AKR}, s{T0}, v{DLIN}")
    a("v_mul_u32_u24 v3, 20, v1")
    a(f"v_add_lshl_u32 v{AV}, v3, v2, 4")
    a(f"v_lshl_add_u32 v10, v2, 4, s{T0}")
    a(f"s_mov_b32 s{sVM}, 0x000fffff")
    a(f"s_mov_b32 s{sVM+1}, 0x000fffff")
    a(f"s_lshl_b32 s{sK0}, s{sH}, 16")
    a(f"s_lshl_b32 s{T0}, s{S_W}, 9")
    a(f"s_add_u32 s{sK0}, s{sK0}, s{T0}")
    a(f"s_add_u32 s{sK0}, s{sK0}, {WS_K}")
    a(f"s_lshl_b32 s{T0}, s{S_W}, 10")
    a(f"s_mul_i32 s{sK2}, s{sH}, 81920")
    a(f"s_add_u32 s{sK2}, s{sK2}, s{T0}")
    a(f"s_add_u32 s{T1}, s{sK2}, {WS_V - 4096}")
    a(f"s_add_u32 s{sK2}, s{sK2}, {WS_V + 4096}")
    a(f"s_lshr_b32 s{T2}, s{sH}, 1")
    a(f"s_lshl_b32 s{T2}, s{T2}, 15")
    a(f"s_add_u32 s{sK1}, s{T2}, s{T0}")
    a(f"s_add_u32 s{sK1}, s{sK1}, {WS_K + 64*32768}")
    a(f"s_mov_b32 s{sS1}, 10240")
    a(f"s_cmp_lt_u32 s{S_W}, 4")
    a(f"s_cselect_b32 s{sK1}, s{sK1}, s{T1}")
    a(f"s_cselect_b32 s{sS1}, 4096, s{sS1}")
    a(f"s_mov_b32 s{sDS}, 0")
    a(f"s_mov_b32 s{sST}, 0")
    a(f"s_mov_b32 s{sKD}, {SLOT}")
    a(f"s_mov_b32 s{sW10}, s{T0}")
    a(f"s_mov_b32 s{sWOo}, 0")
    a(f"s_mov_b32 s{sWOl}, 0x40000000")
    a(f"s_add_u32 s{sL2}, s{T0}, 16384")
    a(f"s_cmp_lt_u32 s{S_W}, 6")
    a(f"s_cselect_b32 s{sM2}, -1, 0")
    a(f"s_cselect_b32 s{sL2}, s{sL2}, {k.DUMMY}")
    a(f"s_cselect_b32 s{sK2}, s{sK2}, 0x7f000000")
    a(f"s_mov_b32 s{sSD}, 0x4c")
    a(f"s_lshl_b32 s{T0}, s{sQB}, 3")
    a(f"s_add_u32 s{T0}, s{T0}, s{S_W}")
    a(f"s_lshl_b32 s{T0}, s{T0}, 9")
    a(f"s_add_u32 s{T2}, s{T2}, s{T0}")
    a(f"s_add_u32 s80, s{T2}, {WS_Q + 64*32768}")
    a(f"s_lshl_b32 s{T3}, s{sH}, 16")
    a(f"s_add_u32 s{T3}, s{T3}, s{T0}")
    a(f"s_add_u32 s81, s{T3}, {WS_Q}")
    a("v_cmp_eq_u32 vcc, 20, v2")
    a("v_mov_b32 v3, 0x3f803f80")
    a("s_nop 0")
    a("v_cndmask_b32 v3, 0, v3, vcc")
    for r in range(16): a(f"v_mov_b32 v{V+r}, v3")
    for r in range(16): a(f"v_mov_b32 v{O+r}, 0")
    for r in range(12, 16): a(f"v_mov_b32 v{P+r}, 0")
    a(f"s_mov_b32 s{T3}, {FL_1}")
    k.poll(256, T3, 8, PL)
    a("s_barrier")
    k.stamp(8)
    a(f"buffer_load_dwordx4 {vr(Qm,4)}, v{DKM}, {WS}, s81 offen sc1")
    a(f"buffer_load_dwordx2 {vr(Qr,2)}, v10, {WS}, s80 offen sc1")
    for i in range(3): kv_piece(k, i)
    a("s_waitcnt vmcnt(0)")
    for i in range(3): kv_piece(k, i)
    a("s_barrier")
    k.stamp(9)
    a(f"s_lshl_b32 s{T0}, s{S_G}, 3")
    a(f"s_add_u32 s{T0}, s{T0}, {FL_R}")
    k.flag_store(T0, PL)
    def rdk(i):
        a(f"ds_read_b128 {vr(Km,4)}, v{AK} offset:{2048*i}")
        a(f"ds_read_b128 {vr(Km+4,4)}, v{AK} offset:{2048*i+1024}")
        a(f"ds_read_b64 {vr(Kr,2)}, v{AKR} offset:{8192+1024*i}")
    rdk(0)
    a(f"v_mov_b32 v{PL}, 0xff800000")
    a("s_waitcnt lgkmcnt(0)")
    qkm(a, 0, S1, "0"); qkm(a, 1, S1, "0")
    a("s_nop 9")
    qkr(a, S1)
    a("s_nop 15"); a("s_nop 3")
    rowmax(a, S1, 32, PL, PL + 4)
    set_neg(a, PL, PL + 4)
    a("s_nop 1")
    qkm(a, 0, S0, vr(NEG, 16)); qkm(a, 1, S0, vr(NEG, 16))
    a("s_nop 9")
    qkr(a, S0)
    rdk(1)
    a(f"s_mov_b64 exec, s[{sVM}:{sVM+1}]")
    for j in range(3): a(f"ds_read_b128 {vr(V+4*j,4)}, v{AV} offset:{12288+j*640}")
    a("s_mov_b64 exec, -1")
    a("s_nop 10")
    a(f"s_cmp_ge_u32 s{S_W}, 4")
    a("s_cbranch_scc1 L_att_young")
    for young in (0, 1):
        L = "L_att_young" if young else "L_att_old"
        a.align(6)
        a.label(L)
        att_stage(k, young)
        a(f"s_cmp_lt_u32 s{sST}, 8")
        a(f"s_cbranch_scc1 {L}")
        if not young: a("s_branch L_att_done")
    a("s_setprio 0")
    a.label("L_att_done")
    a("s_waitcnt lgkmcnt(3)")
    pv(a, 3)
    k.stamp(10)
    a(f"s_lshl_b32 s{T0}, s{sQB}, 4")
    a(f"s_lshl_b32 s{T1}, s{S_W}, 1")
    a(f"s_add_u32 s{T0}, s{T0}, s{T1}")
    a(f"s_mul_i32 s{T0}, s{T0}, 20480")
    a(f"s_add_u32 s{T0}, s{T0}, {WS_O}")
    a(f"s_lshl_b32 s{T1}, s{sH}, 9")
    a(f"s_add_u32 s80, s{T0}, s{T1}")
    a(f"s_lshr_b32 s{T1}, s{sH}, 1")
    a(f"s_lshl_b32 s{T1}, s{T1}, 8")
    a(f"s_add_u32 s{T0}, s{T0}, s{T1}")
    a(f"s_and_b32 s{T1}, s{sH}, 1")
    a(f"s_lshl_b32 s{T1}, s{T1}, 3")
    a(f"s_add_u32 s{T0}, s{T0}, s{T1}")
    a(f"s_add_u32 s81, s{T0}, {64*256}")
    a("s_waitcnt lgkmcnt(0)")
    a(f"v_add_f32 v1, abs(v{O}), abs(v{O+1})")
    a(f"v_add_f32 v3, abs(v{O+2}), abs(v{O+3})")
    for r in range(4, 12, 2):
        a(f"v_add_f32 v1, abs(v{O+r}), v1")
        a(f"v_add_f32 v3, abs(v{O+r+1}), v3")
    a(f"v_mov_b32 v2, 0x{f2u(2.0**40):08x}")
    a("v_add_f32 v1, v1, v3")
    a("v_mov_b32 v3, 0x203")
    a(f"v_cmp_nle_f32 vcc, v{O+8}, v2")
    a(f"v_cmp_class_f32 s[{S_M1}:{S_M1+1}], v1, v3")
    a("s_and_b32 vcc_lo, vcc_lo, 0")
    a(f"s_or_b64 vcc, vcc, s[{S_M1}:{S_M1+1}]")
    a("s_cbranch_scc1 L_att_fb")
    a.label("L_att_norm")
    a(f"v_mov_b32 v1, v{O+8}")
    a(f"v_mov_b32 v2, v{O+8}")
    a("v_bfe_u32 v3, v0, 4, 1")
    a("v_mul_u32_u24 v3, 20480, v3")
    a("v_permlane32_swap_b32 v1, v2")
    a("s_nop 0")
    a("v_rcp_f32 v2, v2")
    a("v_and_b32 v10, 15, v0")
    a("v_lshl_add_u32 v3, v10, 4, v3")
    a("v_lshrrev_b32 v10, 5, v0")
    a("v_lshl_add_u32 v10, v10, 8, v3")
    for r in range(12): a(f"v_mul_f32 v{O+r}, v2, v{O+r}")
    for r in range(6): a(f"v_cvt_pk_bf16_f32 v{P+r}, v{O+2*r}, v{O+2*r+1}")
    a(f"buffer_store_dwordx4 {vr(P,4)}, v10, {WS}, s80 offen sc1")
    a("s_mov_b64 exec, 0xffffffff")
    a(f"buffer_store_dwordx2 {vr(P+4,2)}, v3, {WS}, s81 offen sc1")
    a("s_mov_b64 exec, -1")
    a("s_branch L_att_end")
    att_side(k)
    att_fallback(k)
    a.label("L_att_end")
    if k.stop == 2:
        a("s_waitcnt vmcnt(0)")
        k.stamp(11)


class VQ:
    def __init__(self, a): self.a = a; self.q = []
    def add(self, tag): self.q.append(tag)
    def wait(self, tag):
        if tag not in self.q: return
        i = len(self.q) - 1 - self.q[::-1].index(tag)
        n = len(self.q) - 1 - i
        self.a(f"s_waitcnt vmcnt({n})")
        self.q = self.q[i + 1:]

def dma_run(k, vq, tag, n_pieces, s_src, s_lds, first=0, flags="sc1"):
    a = k.a
    cnt = (n_pieces - first + 7) // 8
    for i in range(cnt):
        off = (first + 8 * i) * 1024
        a(f"s_add_u32 m0, s{s_lds}, {off}")
        a(f"s_add_u32 s{T0}, s{s_src}, {off}")
        if first + 8 * i + 7 >= n_pieces:
            a(f"s_cmp_ge_u32 s{S_W}, {n_pieces - first - 8*i}")
            a(f"s_cselect_b32 s{T0}, 0x7f000000, s{T0}")
            a(f"s_cselect_b32 m0, {k.DUMMY}, m0")
            a("s_nop 0")
        k.dma(DLIN, SRD_WS, f"s{T0}", flags)
        if vq is not None: vq.add(tag)

AF = 4
WB = 112
ACC = 204
HR = 198
BA = 232
TM = 240
sRG, sKH, sN8, sRB64, sA, sB = 64, 65, 66, 67, 68, 69
CS_LDS = 158 * 1024

def mm_steps(k, vq, steps, nt, addr, nbuf, hook=None):
    a = k.a
    def rd(idx):
        j = steps[idx]; b = WB + (idx % nbuf) * 4 * nt
        for t in range(nt):
            r, off = addr(j, t)
            a(f"ds_read_b128 {vr(b+4*t,4)}, v{r} offset:{off}")
    pre = nbuf - 1
    for idx in range(min(pre, len(steps))):
        if hook: hook("pre", idx)
        rd(idx)
    for idx, j in enumerate(steps):
        b = WB + (idx % nbuf) * 4 * nt
        vq.wait(("A", j))
        ahead = min(pre - 1, len(steps) - 1 - idx)
        a(f"s_waitcnt lgkmcnt({min(15, ahead * nt)})")
        for t in range(nt):
            c = "0" if idx == 0 else vr(ACC + 4 * t, 4)
            a(f"{M16} {vr(ACC+4*t,4)}, {vr(b+4*t,4)}, {vr(AF+4*j,4)}, {c}")
            if t == 0 and idx + pre < len(steps):
                if hook: hook("pre", idx + pre)
                rd(idx + pre)
        if hook: hook("post", idx)

def tile_addrs(k, base_expr_sgpr, dst):
    a = k.a
    a(f"s_lshl_b32 s{T1}, s{sKH}, 11")
    a(f"v_add_u32 v{dst+2}, s{base_expr_sgpr}, v{DLIN}")
    a(f"v_add_u32 v{dst}, s{T1}, v{dst+2}")
    a(f"v_subrev_u32 v{dst+1}, s{T1}, v{dst+2}")

def reduce_halves(k, scr):
    a = k.a
    a(f"s_mul_i32 s{T0}, s{sRG}, 5120")
    a(f"s_add_u32 s{T0}, s{T0}, {scr}")
    a(f"s_lshl_b32 s{T1}, s{sKH}, 11")
    a(f"s_add_u32 s{T2}, s{T0}, s{T1}")
    a(f"v_add_u32 v{TM}, s{T2}, v{DLIN}")
    a(f"s_sub_u32 s{T2}, s{T0}, s{T1}")
    a(f"s_add_u32 s{T2}, s{T2}, 2048")
    a(f"v_add_u32 v{TM+1}, s{T2}, v{DLIN}")
    a("s_nop 2")
    a(f"ds_write_b128 v{TM}, {vr(ACC+8,4)}")
    a(f"ds_write_b128 v{TM}, {vr(ACC+12,4)} offset:1024")
    L = a.newlabel("rh")
    a(f"s_cmp_eq_u32 s{sKH}, 0")
    a(f"s_cbranch_scc1 {L}")
    a(f"ds_write_b128 v{TM}, {vr(ACC+16,4)} offset:2048")
    a.label(L)
    a("s_waitcnt lgkmcnt(0)")
    a("s_barrier")
    for i in range(3): a(f"ds_read_b128 {vr(WB+4*i,4)}, v{TM+1} offset:{1024*i}")
    for i, t in enumerate((0, 1, 4)):
        a(f"s_waitcnt lgkmcnt({2-i})")
        for r in range(4): a(f"v_add_f32 v{ACC+4*t+r}, v{ACC+4*t+r}, v{WB+4*i+r}")

def add_resid(a, src):
    for i, t in enumerate((0, 1, 4)):
        for h in range(2):
            a(f"v_lshlrev_b32 v{TM+2}, 16, v{src+2*i+h}")
            a(f"v_and_b32 v{TM+3}, 0xffff0000, v{src+2*i+h}")
            a(f"v_add_f32 v{ACC+4*t+2*h}, v{ACC+4*t+2*h}, v{TM+2}")
            a(f"v_add_f32 v{ACC+4*t+2*h+1}, v{ACC+4*t+2*h+1}, v{TM+3}")

def row_reduce(a, r, t):
    a(f"v_mov_b32 v{t}, v{r}")
    a(f"v_mov_b32 v{t+1}, v{r+1}")
    a("s_nop 0")
    a(f"v_permlane16_swap_b32 v{r}, v{t}")
    a(f"v_permlane16_swap_b32 v{r+1}, v{t+1}")
    a("s_nop 0")
    a(f"v_add_f32 v{r}, v{r}, v{t}")
    a(f"v_add_f32 v{r+1}, v{r+1}, v{t+1}")
    a(f"v_mov_b32 v{t}, v{r}")
    a(f"v_mov_b32 v{t+1}, v{r+1}")
    a("s_nop 0")
    a(f"v_permlane32_swap_b32 v{r}, v{t}")
    a(f"v_permlane32_swap_b32 v{r+1}, v{t+1}")
    a("s_nop 0")
    a(f"v_add_f32 v{r}, v{r}, v{t}")
    a(f"v_add_f32 v{r+1}, v{r+1}, v{t+1}")

P3_SCR, P3_LAST = 35 * 1024, 56 * 1024
def phase3(k):
    a = k.a
    a.c("================ phase 3: output projection + residual")
    a("s_waitcnt vmcnt(0)")
    a("s_barrier")
    k.stamp(11)
    a(f"s_lshl_b32 s{T0}, s{sQB}, 5")
    a(f"s_add_u32 s{T0}, s{T0}, s{sH}")
    a(f"s_mul_i32 s{T0}, s{T0}, {FSP}")
    a(f"s_add_u32 s{T0}, s{T0}, {FL_2}")
    k.flag_store(T0, TM)
    a(f"s_and_b32 s{sRG}, s{S_W}, 3")
    a(f"s_lshr_b32 s{sKH}, s{S_W}, 2")
    a(f"s_and_b32 s{sN8}, s{S_J}, 7")
    a(f"s_lshl_b32 s{sRB64}, s{S_C}, 2")
    a(f"s_lshr_b32 s{T0}, s{S_J}, 3")
    a(f"s_add_u32 s{sRB64}, s{sRB64}, s{T0}")
    a(f"s_mul_i32 s{sA}, s{sN8}, {20*5120}")
    a(f"s_add_u32 s{sA}, s{sA}, s{sW10}")
    a(f"s_add_u32 s{sA}, s{sA}, {WS_WO + 9*5120}")
    a(f"s_add_u32 s{sB}, s{sW10}, {P3_LAST}")
    dma_run(k, None, None, 5, sA, sB)
    a(f"s_add_u32 s{sA}, s{sA}, {10*5120}")
    a(f"s_add_u32 s{sB}, s{sB}, 5120")
    dma_run(k, None, None, 5, sA, sB)
    a(f"s_and_b32 s{T1}, s{S_J}, 15")
    a(f"s_mul_i32 s80, s{T1}, {20*7168}")
    a(f"s_add_u32 s80, s80, s{sW10}")
    a(f"s_add_u32 s80, s80, {WS_W1}")
    dma_run(k, None, None, 35, 80, sW10)
    a(f"s_cmp_lt_u32 s{S_W}, 6")
    a("s_cbranch_scc1 L_p3_nocs")
    a(f"s_sub_u32 s{T0}, s{S_W}, 6")
    a(f"s_lshl_b32 s{T0}, s{T0}, 6")
    a(f"v_add_u32 v{TM+4}, s{T0}, v0")
    a(f"s_mul_i32 s{T2}, s{T1}, 96")
    a(f"v_add_u32 v{TM+5}, s{T2}, v{TM+4}")
    a(f"s_min_u32 s{T2}, s{T1}, 11")
    a(f"s_lshl_b32 s{T2}, s{T2}, 4")
    a(f"s_add_u32 s{T2}, s{T2}, 1536")
    a(f"v_and_b32 v{TM+6}, 15, v0")
    a(f"v_add_u32 v{TM+6}, s{T2}, v{TM+6}")
    a(f"v_cmp_gt_u32 vcc, 96, v{TM+4}")
    a(f"s_mov_b32 s{T2}, {WS_CS1}")
    a("s_nop 0")
    a(f"v_cndmask_b32 v{TM+5}, v{TM+6}, v{TM+5}, vcc")
    a(f"v_lshlrev_b32 v{TM+5}, 2, v{TM+5}")
    for i in range(20):
        a(f"buffer_load_dword v{AF+60+i}, v{TM+5}, {WS}, s{T2} offen sc1")
        if i < 19: a(f"s_add_u32 s{T2}, s{T2}, {1728*4}")
    a("s_waitcnt vmcnt(0)")
    for w in (10, 5):
        for i in range(w): a(f"v_add_f32 v{AF+60+i}, v{AF+60+i}, v{AF+60+w+i}")
    for i in range(1, 5): a(f"v_add_f32 v{AF+60}, v{AF+60}, v{AF+60+i}")
    a(f"v_lshlrev_b32 v{TM+4}, 2, v{TM+4}")
    a(f"v_add_u32 v{TM+4}, {CS_LDS}, v{TM+4}")
    a(f"ds_write_b32 v{TM+4}, v{AF+60}")
    a.label("L_p3_nocs")
    a(f"s_mul_i32 s{T0}, s{sKH}, {45*1024}")
    a(f"s_add_u32 s{T0}, s{T0}, {WO_LDS}")
    tile_addrs(k, T0, BA)
    a(f"s_mul_i32 s{T0}, s{sKH}, 5120")
    a(f"s_add_u32 s{T0}, s{T0}, {P3_LAST}")
    tile_addrs(k, T0, BA + 3)
    a(f"s_lshl_b32 s{T0}, s{sRB64}, 2")
    a(f"s_add_u32 s81, s{T0}, s{sRG}")
    a(f"s_mul_i32 s{sA}, s81, 20480")
    a(f"s_mul_i32 s{T1}, s{sKH}, 10240")
    a(f"s_add_u32 s{sA}, s{sA}, s{T1}")
    a(f"s_add_u32 s{sA}, s{sA}, {WS_O}")
    a(f"s_mul_i32 s{T3}, s{S_C}, {32*FSP}")
    a(f"s_add_u32 s{T3}, s{T3}, {FL_2}")
    k.poll(32, T3, FSP, TM)
    a("s_waitcnt vmcnt(0) lgkmcnt(0)")
    a("s_barrier")
    k.stamp(12)
    vq = VQ(a)
    for j in range(10):
        if j in (4, 8): a(f"s_add_u32 s{sA}, s{sA}, 4096")
        a(f"buffer_load_dwordx4 {vr(AF+4*j,4)}, v{DLIN}, {WS}, s{sA} offen offset:{1024*(j%4)} sc1")
        vq.add(("A", j))
    def addr(j, t):
        r = (BA if j < 9 else BA + 3) + (0, 0, 1, 1, 2)[t]
        return r, (j * 5120 if j < 9 else 0) + t * 1024
    mm_steps(k, vq, list(range(10)), 5, addr, 3)
    k.stamp(13)
    reduce_halves(k, P3_SCR)
    add_resid(a, XR)
    for i, t in enumerate((0, 1, 4)):
        for h in range(2): a(f"v_cvt_pk_bf16_f32 v{HR+2*i+h}, v{ACC+4*t+2*h}, v{ACC+4*t+2*h+1}")
    a(f"s_mul_i32 s{sA}, s81, 20480")
    a(f"s_add_u32 s{sA}, s{sA}, {WS_H}")
    a(f"s_lshl_b32 s{T0}, s{sN8}, 1")
    a(f"s_add_u32 s{T0}, s{T0}, s{sKH}")
    a(f"s_lshl_b32 s{T0}, s{T0}, 10")
    a(f"s_add_u32 s{T0}, s{T0}, s{sA}")
    a(f"buffer_store_dwordx4 {vr(HR,4)}, v{DLIN}, {WS}, s{T0} offen sc1")
    a(f"v_mov_b32 v{TM+4}, 0")
    a(f"v_mov_b32 v{TM+5}, 0")
    def acc_stats(regs):
        for r in regs:
            a(f"v_lshlrev_b32 v{TM+2}, 16, v{r}")
            a(f"v_and_b32 v{TM+3}, 0xffff0000, v{r}")
            a(f"v_add_f32 v{TM+4}, v{TM+4}, v{TM+2}")
            a(f"v_fmac_f32 v{TM+5}, v{TM+2}, v{TM+2}")
            a(f"v_add_f32 v{TM+4}, v{TM+4}, v{TM+3}")
            a(f"v_fmac_f32 v{TM+5}, v{TM+3}, v{TM+3}")
    acc_stats(range(HR, HR + 4))
    a(f"s_cmp_lg_u32 s{sKH}, 0")
    a("s_cbranch_scc1 L_p3_no4")
    a(f"s_lshr_b32 s{T0}, s{sN8}, 1")
    a(f"s_lshl_b32 s{T0}, s{T0}, 10")
    a(f"s_and_b32 s{T1}, s{sN8}, 1")
    a(f"s_lshl_b32 s{T1}, s{T1}, 3")
    a(f"s_add_u32 s{T0}, s{T0}, s{T1}")
    a(f"s_add_u32 s{T0}, s{T0}, s{sA}")
    a(f"s_add_u32 s{T0}, s{T0}, 16384")
    a(f"buffer_store_dwordx2 {vr(HR+4,2)}, v{DLIN}, {WS}, s{T0} offen sc1")
    acc_stats(range(HR + 4, HR + 6))
    a.label("L_p3_no4")
    row_reduce(a, TM + 4, TM + 6)
    a(f"s_lshl_b32 s{T0}, s{sRB64}, 4")
    a(f"s_lshl_b32 s{T1}, s{sN8}, 1")
    a(f"s_add_u32 s{T0}, s{T0}, s{T1}")
    a(f"s_add_u32 s{T0}, s{T0}, s{sKH}")
    a(f"s_lshl_b32 s{T0}, s{T0}, 9")
    a(f"s_lshl_b32 s{T1}, s{sRG}, 7")
    a(f"s_add_u32 s{T0}, s{T0}, s{T1}")
    a(f"s_add_u32 s{T0}, s{T0}, {WS_ST}")
    a(f"v_lshlrev_b32 v{TM+6}, 3, v0")
    a("s_mov_b64 exec, 0xffff")
    a(f"buffer_store_dwordx2 {vr(TM+4,2)}, v{TM+6}, {WS}, s{T0} offen sc1")
    a("s_mov_b64 exec, -1")
    a("s_waitcnt vmcnt(0)")
    a("s_barrier")
    k.stamp(14)
    a(f"s_lshl_b32 s{T0}, s{sRB64}, 3")
    a(f"s_add_u32 s{T0}, s{T0}, s{sN8}")
    a(f"s_mul_i32 s{T0}, s{T0}, {FSP}")
    a(f"s_add_u32 s{T0}, s{T0}, {FL_3}")
    k.flag_store(T0, TM)

def phase4(k):
    a = k.a
    a.c("================ phase 4: FFN up-projection + SiLU")
    sF, sRB = 70, 71
    dma_run(k, None, None, 140, 80, sW10, first=35)
    a(f"s_and_b32 s{sF}, s{S_J}, 15")
    a(f"s_lshl_b32 s{sRB}, s{S_C}, 1")
    a(f"s_lshr_b32 s{T0}, s{S_J}, 4")
    a(f"s_add_u32 s{sRB}, s{sRB}, s{T0}")
    a(f"v_mov_b32 v{BA}, v{DLIN}")
    a(f"v_add_u32 v{BA+1}, {9*7168}, v{DLIN}")
    a(f"v_add_u32 v{BA+2}, {18*7168}, v{DLIN}")
    a(f"s_lshl_b32 s{T0}, s{sRB}, 3")
    a(f"s_add_u32 s82, s{T0}, s{S_W}")
    a(f"s_mul_i32 s{sA}, s82, 20480")
    a(f"s_add_u32 s{sA}, s{sA}, {WS_H}")
    a(f"s_lshr_b32 s{T0}, s82, 2")
    a(f"s_lshl_b32 s{T0}, s{T0}, 13")
    a(f"s_and_b32 s{T1}, s82, 3")
    a(f"s_lshl_b32 s{T1}, s{T1}, 7")
    a(f"s_add_u32 s{T0}, s{T0}, s{T1}")
    a(f"s_add_u32 s{sB}, s{T0}, {WS_ST}")
    a(f"v_and_b32 v{TM}, 15, v0")
    a(f"v_lshrrev_b32 v{TM+1}, 4, v0")
    a(f"v_lshlrev_b32 v{TM+10}, 11, v{TM+1}")
    a(f"v_lshl_add_u32 v{TM+10}, v{TM}, 3, v{TM+10}")
    a(f"v_lshlrev_b32 v{TM+11}, 4, v{TM+1}")
    a(f"v_add_u32 v{TM+11}, {CS_LDS}, v{TM+11}")
    a(f"s_mul_i32 s{T3}, s{sRB}, {16*FSP}")
    a(f"s_add_u32 s{T3}, s{T3}, {FL_3}")
    k.poll(16, T3, FSP, TM)
    a("s_waitcnt vmcnt(0)")
    a("s_barrier")
    k.stamp(15)
    vq = VQ(a)
    for j in range(20):
        if j and j % 4 == 0: a(f"s_add_u32 s{sA}, s{sA}, 4096")
        a(f"buffer_load_dwordx4 {vr(AF+4*j,4)}, v{DLIN}, {WS}, s{sA} offen offset:{1024*(j%4)} sc1")
        vq.add(("A", j))
    ST = 84 + AF
    for i in range(4):
        a(f"buffer_load_dwordx2 {vr(ST+2*i,2)}, v{TM+10}, {WS}, s{sB} offen offset:{512*i} sc1")
        vq.add("S")
    def addr(j, t): return BA + j // 9, (j % 9) * 7168 + t * 1024
    mm_steps(k, vq, list(range(20)), 7, addr, 3)
    k.stamp(16)
    CS = WB
    for t in range(7): a(f"ds_read_b128 {vr(CS+4*t,4)}, v{TM+11} offset:{64*t}")
    vq.wait("S")
    a(f"v_add_f32 v{ST}, v{ST}, v{ST+2}")
    a(f"v_add_f32 v{ST+1}, v{ST+1}, v{ST+3}")
    a(f"v_add_f32 v{ST+4}, v{ST+4}, v{ST+6}")
    a(f"v_add_f32 v{ST+5}, v{ST+5}, v{ST+7}")
    a(f"v_add_f32 v{ST}, v{ST}, v{ST+4}")
    a(f"v_add_f32 v{ST+1}, v{ST+1}, v{ST+5}")
    row_reduce(a, ST, ST + 2)
    a(f"v_mul_f32 v{ST}, 0x{f2u(1.0/640):08x}, v{ST}")
    a(f"v_mul_f32 v{ST+2}, v{ST}, v{ST}")
    a(f"v_mov_b32 v{ST+3}, 0x{f2u(1.0/640):08x}")
    a(f"v_fma_f32 v{ST+2}, v{ST+1}, v{ST+3}, -v{ST+2}")
    a(f"v_max_f32 v{ST+2}, 0, v{ST+2}")
    a(f"v_add_f32 v{ST+2}, 0x{f2u(1e-5):08x}, v{ST+2}")
    a(f"v_rsq_f32 v{ST+1}, v{ST+2}")
    a(f"s_mul_i32 s{sA}, s82, {54*1024}")
    a(f"s_add_u32 s{sA}, s{sA}, {WS_H1}")
    a(f"v_mul_f32 v{ST}, v{ST}, v{ST+1}")
    a(f"s_mul_i32 s{T0}, s{sF}, 3072")
    a(f"s_add_u32 s{sB}, s{T0}, s{sA}")
    a("s_waitcnt lgkmcnt(0)")
    E = AF; OUT = AF + 32
    def silu(tiles):
        rs = [4 * t + r for t in tiles for r in range(4)]
        for r in rs: a(f"v_mul_f32 v{ACC+r}, v{ST+1}, v{ACC+r}")
        for r in rs: a(f"v_fma_f32 v{ACC+r}, -v{ST}, v{CS+r}, v{ACC+r}")
        for r in rs: a(f"v_mul_f32 v{E+r}, 0x{f2u(-math.log2(math.e)):08x}, v{ACC+r}")
        for r in rs: a(f"v_exp_f32 v{E+r}, v{E+r}")
        for r in rs: a(f"v_add_f32 v{E+r}, 1.0, v{E+r}")
        for r in rs: a(f"v_rcp_f32 v{E+r}, v{E+r}")
        for r in rs: a(f"v_mul_f32 v{ACC+r}, v{ACC+r}, v{E+r}")
        for r in rs[::2]: a(f"v_cvt_pk_bf16_f32 v{OUT+r//2}, v{ACC+r}, v{ACC+r+1}")
    for p in range(3):
        silu((2 * p, 2 * p + 1))
        a(f"buffer_store_dwordx4 {vr(OUT+4*p,4)}, v{DLIN}, {WS}, s{sB} offen offset:{1024*p} sc1")
    a(f"s_cmp_ge_u32 s{sF}, 12")
    a("s_cbranch_scc1 L_p4_no6")
    silu((6,))
    a(f"s_lshr_b32 s{T0}, s{sF}, 1")
    a(f"s_lshl_b32 s{T0}, s{T0}, 10")
    a(f"s_and_b32 s{T1}, s{sF}, 1")
    a(f"s_lshl_b32 s{T1}, s{T1}, 3")
    a(f"s_add_u32 s{T0}, s{T0}, s{T1}")
    a(f"s_add_u32 s{T0}, s{T0}, s{sA}")
    a(f"s_add_u32 s{T0}, s{T0}, {48*1024}")
    a(f"buffer_store_dwordx2 {vr(OUT+12,2)}, v{DLIN}, {WS}, s{T0} offen sc1")
    a.label("L_p4_no6")
    a("s_waitcnt vmcnt(0)")
    a("s_barrier")
    k.stamp(17)
    a(f"s_lshl_b32 s{T0}, s{sRB}, 4")
    a(f"s_add_u32 s{T0}, s{T0}, s{sF}")
    a(f"s_mul_i32 s{T0}, s{T0}, {FSP}")
    a(f"s_add_u32 s{T0}, s{T0}, {FL_4}")
    k.flag_store(T0, TM)

def phase5(k):
    a = k.a
    a.c("================ phase 5: FFN down-projection + residual")
    HALF = 15 * 5120
    sW2, sL = 70, 71
    a(f"s_mul_i32 s{sW2}, s{sN8}, {54*5120}")
    a(f"s_add_u32 s{sW2}, s{sW2}, s{sW10}")
    a(f"s_add_u32 s{sW2}, s{sW2}, {WS_W2}")
    dma_run(k, None, None, 75, sW2, sW10)
    a(f"s_add_u32 s{sA}, s{sW2}, {27*5120}")
    a(f"s_add_u32 s{sL}, s{sW10}, {HALF}")
    dma_run(k, None, None, 75, sA, sL)
    a(f"s_mul_i32 s{T0}, s{sKH}, {HALF}")
    tile_addrs(k, T0, BA)
    for i in range(3): a(f"v_add_u32 v{BA+3+i}, {12*5120}, v{BA+i}")
    a(f"s_mul_i32 s{sB}, s81, {54*1024}")
    a(f"s_mul_i32 s{T1}, s{sKH}, {27*1024}")
    a(f"s_add_u32 s{sB}, s{sB}, s{T1}")
    a(f"s_add_u32 s{sB}, s{sB}, {WS_H1}")
    a(f"s_lshr_b32 s{T3}, s{sRB64}, 1")
    a(f"s_mul_i32 s{T3}, s{T3}, {16*FSP}")
    a(f"s_add_u32 s{T3}, s{T3}, {FL_4}")
    k.poll(16, T3, FSP, TM)
    a("s_waitcnt vmcnt(0)")
    a("s_barrier")
    k.stamp(18)
    vq = VQ(a)
    def lda(js):
        for j in js:
            if j and j % 4 == 0: a(f"s_add_u32 s{sB}, s{sB}, 4096")
            a(f"buffer_load_dwordx4 {vr(AF+4*j,4)}, v{DLIN}, {WS}, s{sB} offen offset:{1024*(j%4)} sc1")
            vq.add(("A", j))
    def refill(j0, slot0, tag):
        for h in range(2):
            a(f"s_add_u32 s{sA}, s{sW2}, {(27*h + j0)*5120}")
            a(f"s_add_u32 s{sL}, s{sW10}, {HALF*h + slot0*5120}")
            dma_run(k, vq, tag, 30, sA, sL)
    lda(range(15))
    slot = lambda j: j if j < 15 else j - 15
    def addr(j, t):
        s = slot(j)
        return BA + (3 if s >= 12 else 0) + (0, 0, 1, 1, 2)[t], (s % 12) * 5120 + t * 1024
    def hook(kind, idx):
        if kind == "post" and idx in (5, 11):
            a("s_barrier")
            refill(15 + (idx - 5), idx - 5, f"R{idx}")
            lda(range(15 + idx - 5, 21 + idx - 5))
        if kind == "pre" and idx in (15, 21):
            vq.wait(f"R{idx-10}")
            a("s_barrier")
    mm_steps(k, vq, list(range(27)), 5, addr, 3, hook)
    k.stamp(19)
    a("s_barrier")
    reduce_halves(k, 0)
    add_resid(a, HR)
    for i, t in enumerate((0, 1, 4)):
        for h in range(2): a(f"v_cvt_pk_bf16_f32 v{AF+2*i+h}, v{ACC+4*t+2*h}, v{ACC+4*t+2*h+1}")
    a(f"s_mul_i32 s{T0}, s81, {16*1280}")
    a(f"s_mul_i32 s{T1}, s{sN8}, 160")
    a(f"s_add_u32 s{T0}, s{T0}, s{T1}")
    a(f"s_lshl_b32 s{T1}, s{sKH}, 6")
    a(f"s_add_u32 s{T1}, s{T1}, s{T0}")
    a(f"v_and_b32 v{TM}, 15, v0")
    a(f"v_mul_u32_u24 v{TM}, 1280, v{TM}")
    a(f"v_lshrrev_b32 v{TM+1}, 4, v0")
    a(f"v_lshl_add_u32 v{TM}, v{TM+1}, 3, v{TM}")
    OUTS = f"s[{SRD_OUT}:{SRD_OUT+3}]"
    a(f"buffer_store_dwordx2 {vr(AF,2)}, v{TM}, {OUTS}, s{T1} offen")
    a(f"buffer_store_dwordx2 {vr(AF+2,2)}, v{TM}, {OUTS}, s{T1} offen offset:32")
    a(f"s_cmp_lg_u32 s{sKH}, 0")
    a("s_cbranch_scc1 L_p5_no4")
    a(f"buffer_store_dwordx2 {vr(AF+4,2)}, v{TM}, {OUTS}, s{T0} offen offset:128")
    a.label("L_p5_no4")
```

```python
import itertools
MB = 1 << 20
KB = 1 << 10
WS_Q   = 0
WS_K   = WS_Q + 80 * 32768
WS_V   = 5 * MB
WS_O   = 8 * MB
WS_H   = 11 * MB
WS_H1  = 14 * MB
WS_WO  = 21 * MB
WS_W1  = 22 * MB
WS_W2  = 25 * MB
WS_CS1 = 28 * MB
WS_ST  = 28 * MB + 512 * KB
WS_RS  = 28 * MB + 768 * KB
WS_CQ  = 28 * MB + 832 * KB
WS_FL  = 29 * MB
WS_SIZE = 30 * MB
FL_1 = WS_FL
FL_R = WS_FL + 4096
FL_2 = WS_FL + 8192
FL_3 = WS_FL + 32768
FL_4 = WS_FL + 65536
FSP = 32

def head_quads(h):
    q = 5 * h
    if h == 19: return ((q + 1, q + 2), (q + 3, q + 4), q)
    if h == 25: return ((q, q + 1), (q + 3, q + 4), q + 2)
    return ((q, q + 1), (q + 2, q + 3), q + 4)

def unit_quads(u):
    if u < 64: return head_quads(u >> 1)[u & 1]
    m = u - 64
    return (head_quads(2 * m)[2], head_quads(2 * m + 1)[2])

def ct_tiles(ct):
    units = [u for u in range(80) if unit_quads(u)[0] // 32 == ct]
    for u in units: assert unit_quads(u)[1] // 32 == ct
    assert len(units) == 16
    def rec(rem):
        if not rem: return []
        first = rem[0]
        for comb in itertools.combinations(rem[1:], 3):
            grp = (first,) + comb
            res = [q % 8 for u in grp for q in unit_quads(u)]
            if len(set(res)) == 8:
                r = rec([u for u in rem if u not in grp])
                if r is not None: return [grp] + r
        return None
    t = rec(units)
    assert t is not None, ct
    return t

def p1_table(ct, nh):
    tiles = ct_tiles(ct)
    qb = []; ub = []
    for i in range(2):
        grp = tiles[2 * nh + i]
        quads = [0] * 8
        for qq in range(2):
            for hf in range(2):
                a, b = unit_quads(grp[qq * 2 + hf])
                quads[4 * qq + hf] = a - 32 * ct
                quads[4 * qq + 2 + hf] = b - 32 * ct
        qb += quads
        ub += list(grp)
    pack = lambda bs: [sum(bs[4 * k + j] << (8 * j) for j in range(4)) for k in range(len(bs) // 4)]
    return pack(qb) + pack(ub)

if __name__ == "__main__":
    for ct in range(5):
        print(ct, ct_tiles(ct))
        for nh in range(2): print("  ", ["%08x" % x for x in p1_table(ct, nh)])
    assert all((F * 3277) >> 16 == F // 20 for F in range(640))
```

```python
import sys, math
from asmlib import Asm, vr, sr, f2u, check
from tables import *

NAME = "sequential_preLN__mha_block__dense_activation_silu__prompt"
LDS_BYTES = 163840
SPIN_MAX = 20000

S_G = 2
SRD_X, SRD_WQ, SRD_WS, SRD_OUT, SRD_DBG, SRD_RL = 4, 8, 12, 16, 20, 24
S_W, S_C, S_J = 28, 29, 30
S_NONCE = 32
S_PTR = 36
T0, T1, T2, T3, T4, T5 = 54, 55, 56, 57, 58, 59
S_M1 = 60
S_SPIN = 62

class K:
    def __init__(self, stop_after=99, opts=None):
        self.a = Asm()
        self.stop = stop_after
        self.o = opts or {}

    def srd(self, d, ptr, nbytes):
        a = self.a
        a(f"s_mov_b32 s{d}, s{ptr}")
        a(f"s_and_b32 s{d+1}, s{ptr+1}, 0xffff")
        a(f"s_mov_b32 s{d+2}, {nbytes}")
        a(f"s_mov_b32 s{d+3}, 0x20000")

    def stamp(self, idx):
        if not self.o.get("stamps"): return
        a = self.a
        a("s_memrealtime s[100:101]")
        a("s_waitcnt lgkmcnt(0)")
        a(f"v_writelane_b32 v255, s100, {idx}")
        if idx < 16:
            a("s_memtime s[100:101]")
            a("s_waitcnt lgkmcnt(0)")
            a(f"v_writelane_b32 v255, s100, {idx+32}")

    def stamp_dyn(self, base, sreg):
        if not self.o.get("its"): return
        a = self.a
        a("s_memtime s[100:101]")
        a("s_mov_b32 s99, m0")
        a(f"s_add_u32 m0, s{sreg}, {base}")
        a("s_waitcnt lgkmcnt(0)")
        a("v_writelane_b32 v255, s100, m0")
        a("s_mov_b32 m0, s99")

    def stamp_flush(self):
        if not self.o.get("stamps"): return
        a = self.a
        a(f"s_lshl_b32 s{T0}, s{S_G}, 3")
        a(f"s_add_u32 s{T0}, s{T0}, s{S_W}")
        a(f"s_lshl_b32 s{T0}, s{T0}, 8")
        a(f"s_add_u32 s{T0}, s{T0}, {WS_SIZE}")
        a("v_lshlrev_b32 v1, 2, v0")
        a(f"buffer_store_dword v255, v1, s[{SRD_WS}:{SRD_WS+3}], s{T0} offen")
        a("s_mov_b64 exec, -1")

    def dma(self, voff, srd, soff, flags=""):
        if self.o.get("nodma"): return
        self.a(f"buffer_load_dwordx4 v{voff}, s[{srd}:{srd+3}], {soff} offen {flags} lds".replace("  ", " "))

    def flag_store(self, s_off, vt):
        a = self.a
        L = a.newlabel("nofl")
        a(f"s_cmp_lg_u32 s{S_W}, 0")
        a(f"s_cbranch_scc1 {L}")
        a(f"v_mov_b32 v{vt}, s{S_NONCE}")
        a(f"v_mov_b32 v{vt+1}, s{S_NONCE+1}")
        a(f"v_mov_b32 v{vt+2}, 0")
        a("s_mov_b64 exec, 1")
        a(f"buffer_store_dwordx2 v[{vt}:{vt+1}], v{vt+2}, s[{SRD_WS}:{SRD_WS+3}], s{s_off} offen sc1")
        a("s_mov_b64 exec, -1")
        a.label(L)

    def poll(self, n, s_off, spacing, vt, only_wave0=True):
        a = self.a
        L = a.newlabel("poll"); Ld = a.newlabel("polld")
        if only_wave0:
            a(f"s_cmp_lg_u32 s{S_W}, 0")
            a(f"s_cbranch_scc1 {Ld}")
        a(f"s_mov_b32 s{S_SPIN}, 0")
        if n == 256:
            assert spacing == 8
            a(f"v_lshlrev_b32 v{vt+8}, 4, v0")
            a.label(L)
            a(f"buffer_load_dwordx4 v[{vt}:{vt+3}], v{vt+8}, s[{SRD_WS}:{SRD_WS+3}], s{s_off} offen sc1")
            a(f"buffer_load_dwordx4 v[{vt+4}:{vt+7}], v{vt+8}, s[{SRD_WS}:{SRD_WS+3}], s{s_off} offen offset:1024 sc1")
            a(f"s_add_u32 s{S_SPIN}, s{S_SPIN}, 1")
            a("s_waitcnt vmcnt(0)")
            a(f"v_cmp_ne_u64 vcc, s[{S_NONCE}:{S_NONCE+1}], v[{vt}:{vt+1}]")
            a(f"v_cmp_ne_u64 s[{S_M1}:{S_M1+1}], s[{S_NONCE}:{S_NONCE+1}], v[{vt+2}:{vt+3}]")
            a("s_nop 0")
            a(f"s_or_b64 s[{T4}:{T5}], vcc, s[{S_M1}:{S_M1+1}]")
            a(f"v_cmp_ne_u64 vcc, s[{S_NONCE}:{S_NONCE+1}], v[{vt+4}:{vt+5}]")
            a(f"v_cmp_ne_u64 s[{S_M1}:{S_M1+1}], s[{S_NONCE}:{S_NONCE+1}], v[{vt+6}:{vt+7}]")
            a("s_nop 0")
            a(f"s_or_b64 s[{T4}:{T5}], s[{T4}:{T5}], vcc")
            a(f"s_or_b64 s[{T4}:{T5}], s[{T4}:{T5}], s[{S_M1}:{S_M1+1}]")
        else:
            a(f"v_and_b32 v{vt+8}, {n-1}, v0")
            a(f"v_mul_u32_u24 v{vt+8}, {spacing}, v{vt+8}")
            a.label(L)
            a(f"buffer_load_dwordx2 v[{vt}:{vt+1}], v{vt+8}, s[{SRD_WS}:{SRD_WS+3}], s{s_off} offen sc1")
            a(f"s_add_u32 s{S_SPIN}, s{S_SPIN}, 1")
            a("s_waitcnt vmcnt(0)")
            a(f"v_cmp_ne_u64 vcc, s[{S_NONCE}:{S_NONCE+1}], v[{vt}:{vt+1}]")
            a("s_nop 0")
            a(f"s_or_b64 s[{T4}:{T5}], vcc, vcc")
        a(f"s_cbranch_scc0 {Ld}")
        a(f"s_cmp_lt_u32 s{S_SPIN}, {SPIN_MAX}")
        a(f"s_cbranch_scc1 {L}")
        a.label(Ld)

    def entry(self):
        a = self.a
        a(f"s_cmp_ge_u32 s{S_G}, 256")
        a("s_cbranch_scc1 L_end")
        a(f"s_load_dwordx16 s[{S_PTR}:{S_PTR+15}], s[0:1], 0")
        a(f"s_load_dwordx2 s[{S_PTR+16}:{S_PTR+17}], s[0:1], 64")
        a(f"s_memrealtime s[{S_NONCE}:{S_NONCE+1}]")
        if self.o.get("stamps"): a("v_mov_b32 v255, 0")
        self.stamp(0)
        a("v_lshrrev_b32 v1, 6, v0")
        a("v_and_b32 v0, 63, v0")
        a(f"v_readfirstlane_b32 s{S_W}, v1")
        a(f"s_and_b32 s{S_C}, s{S_G}, 7")
        a(f"s_lshr_b32 s{S_J}, s{S_G}, 3")

    ACC = 16; XF = 160; WF = 176; XA = 72; WA = 144; DXA, DXB, DW = 78, 79, 80; VXM = 76
    ONES = 82
    CQ = 96
    CQA = 81
    RSA, RS = 84, 128
    STA = 86
    RLV, RLA = 157, 158
    VN = 92
    sRB, sCT, sKC, sXO, sWO, sSLOT, sCNT, sXM, sTG, sNH = 64, 65, 66, 67, 68, 69, 70, 71, 72, 73
    sTAB = 74
    sM0X = 80; sWO2 = 81; sKC0 = 82; sSIDE = 83; sI1 = 71; sI2 = 34; sSM = 35
    sRL = 84
    P1_MISC = 148 * 1024
    RL_SCR = 68 * 1024
    CQ_SCR = 128 * 1024
    DUMMY = 159 * 1024

    def p1_issue(self, pieces=(0, 1, 2, 3)):
        a = self.a
        if 0 in pieces:
            a(f"s_add_u32 m0, s{self.sM0X}, s{self.sSLOT}")
            a(f"s_add_u32 s{self.sKC}, s{self.sKC}, 1")
            self.dma(self.DXA, SRD_X, f"s{self.sXO}")
        if 1 in pieces:
            a(f"s_add_u32 m0, m0, s{self.sI1}")
            a(f"s_add_u32 s{self.sWO2}, s{self.sWO}, 15360")
            self.dma(self.DW, SRD_WQ, f"s{self.sWO}")
        if 2 in pieces:
            a(f"s_sub_u32 m0, m0, s{self.sI2}")
            a(f"s_add_u32 s{self.sWO}, s{self.sWO}, 245760")
            self.dma(self.DXB, SRD_X, f"s{self.sXO}")
        if 3 in pieces:
            a(f"s_add_u32 m0, m0, s{self.sI1}")
            a(f"s_add_u32 s{self.sXO}, s{self.sXO}, 128")
            self.dma(self.DW, SRD_WQ, f"s{self.sWO2}")
            a(f"s_cmp_eq_u32 s{self.sKC}, 10")
            a(f"s_cselect_b32 s{T0}, 1280, 0")
            a(f"s_cselect_b32 s{T1}, 2457600, 0")
            a(f"s_cselect_b32 s{self.sKC}, 0, s{self.sKC}")
            a(f"s_sub_u32 s{self.sXO}, s{self.sXO}, s{T0}")
            a(f"s_sub_u32 s{self.sWO}, s{self.sWO}, s{T1}")
            a(f"s_add_u32 s{self.sSLOT}, s{self.sSLOT}, 32768")
            a(f"s_and_b32 s{self.sSLOT}, s{self.sSLOT}, s{self.sSM}")

    def p1_setup_a(self):
        a = self.a
        a(f"s_lshr_b32 s{T0}, s{S_C}, 1")
        a(f"s_lshl_b32 s{T0}, s{T0}, 2")
        a(f"s_lshr_b32 s{T1}, s{S_J}, 3")
        a(f"s_add_u32 s{self.sRB}, s{T0}, s{T1}")
        a(f"s_and_b32 s{T0}, s{S_C}, 1")
        a(f"s_lshl_b32 s{T0}, s{T0}, 3")
        a(f"s_and_b32 s{T2}, s{S_J}, 7")
        a(f"s_add_u32 s{self.sCT}, s{T0}, s{T2}")
        a(f"s_lshl_b32 s{T1}, s{T1}, 1")
        a(f"s_add_u32 s{self.sKC}, s{T2}, s{T1}")
        a(f"s_bfe_u32 s{T0}, s{S_C}, 0x10001")
        a(f"s_and_b32 s{T1}, s{S_C}, 4")
        a(f"s_lshl_b32 s{T1}, s{T1}, 1")
        a(f"s_add_u32 s{T0}, s{T0}, s{T1}")
        a(f"s_add_u32 s{self.sKC}, s{self.sKC}, s{T0}")
        a(f"s_mul_i32 s{T0}, s{self.sKC}, 26")
        a(f"s_lshr_b32 s{T0}, s{T0}, 8")
        a(f"s_mul_i32 s{T0}, s{T0}, 10")
        a(f"s_sub_u32 s{self.sKC}, s{self.sKC}, s{T0}")
        a(f"s_mov_b32 s{self.sKC0}, s{self.sKC}")
        a(f"s_mul_i32 s{self.sXO}, s{self.sRB}, 163840")
        a(f"s_lshl_b32 s{T0}, s{self.sKC}, 7")
        a(f"s_add_u32 s{self.sXO}, s{self.sXO}, s{T0}")
        a(f"s_mul_i32 s{self.sWO}, s{self.sKC}, 245760")
        a(f"s_lshl_b32 s{T0}, s{self.sCT}, 8")
        a(f"s_add_u32 s{self.sWO}, s{self.sWO}, s{T0}")
        a(f"s_lshl_b32 s{self.sM0X}, s{S_W}, 11")
        a(f"s_mov_b32 s{self.sSLOT}, 0")
        a(f"s_movk_i32 s{self.sI1}, 16384")
        a(f"s_movk_i32 s{self.sI2}, 15360")
        a(f"s_mov_b32 s{self.sSM}, 0x1ffff")
        a("v_lshrrev_b32 v1, 3, v0")
        a("v_lshrrev_b32 v2, 4, v0")
        a("v_and_b32 v3, 7, v0")
        a("v_xor_b32 v3, v3, v2")
        a(f"s_lshl_b32 s{T0}, s{S_W}, 4")
        a(f"v_add_u32 v4, s{T0}, v1")
        a("v_mul_u32_u24 v4, 1280, v4")
        a(f"v_lshl_add_u32 v{self.DXA}, v3, 4, v4")
        a(f"v_xor_b32 v{self.DXB}, 64, v{self.DXA}")
        a(f"v_add_u32 v{self.DXB}, 10240, v{self.DXB}")
        a("v_lshlrev_b32 v3, 2, v2")
        a("v_and_b32 v4, 15, v0")
        a("v_xor_b32 v3, v3, v4")
        a(f"s_lshl_b32 s{T0}, s{S_W}, 3")
        a(f"v_add_u32 v4, s{T0}, v2")
        a("v_mul_u32_u24 v4, 3840, v4")
        a(f"v_lshl_add_u32 v{self.DW}, v3, 4, v4")
        a("s_waitcnt lgkmcnt(0)")
        self.srd(SRD_X, S_PTR + 0, 2048 * 1280)
        self.srd(SRD_WQ, S_PTR + 2, 640 * 3840)
        a(f"s_cmp_eq_u32 s{self.sCT}, 15")
        a("s_cbranch_scc1 L_p1_noissue")
        self.p1_issue()
        self.p1_issue((0,))
        a.label("L_p1_noissue")
        self.stamp(1)
        self.srd(SRD_WS, S_PTR + 16, WS_SIZE + ((1 << 20) if self.o.get("stamps") else 0))
        self.srd(SRD_OUT, S_PTR + 12, 2048 * 1280)
        self.srd(SRD_DBG, S_PTR + 14, 256)
        a(f"s_or_b32 s{T0}, s{S_G}, s{S_W}")
        a("s_cbranch_scc1 L_nonce_done")
        a("v_mov_b32 v3, 0")
        a(f"v_mov_b32 v4, s{S_NONCE}")
        a(f"v_mov_b32 v5, s{S_NONCE+1}")
        a("s_mov_b64 exec, 1")
        a(f"buffer_store_dwordx2 v[4:5], v3, s[{SRD_DBG}:{SRD_DBG+3}], 0 offen sc1")
        a("s_mov_b64 exec, -1")
        a.label("L_nonce_done")

    def relayout_setup(self):
        a = self.a
        R = self.sRL
        u = a.newlabel("u")
        sID, sKS, sCB, sST, sA, sB, sCc, sD = T0, T1, T2, T3, 93, 94, 95, 96
        sBase, sSl, sKsS = 97, 98, 99
        a(f"s_mul_i32 s{sID}, s{S_G}, 5")
        a(f"s_add_u32 s{sID}, s{sID}, s{S_W}")
        a(f"s_sub_u32 s{sID}, s{sID}, 1")
        a(f"s_min_u32 s{sID}, s{sID}, 1279")
        a(f"s_mov_b32 s{sA}, 16")
        a(f"s_mov_b32 s{sB}, 8")
        a(f"s_mov_b32 s{sCc}, 4")
        a(f"s_mov_b32 s{SRD_RL+3}, 0x20000")
        a(f"s_mov_b32 s{R+8}, -1")
        a(f"s_cmp_lt_u32 s{sID}, 200")
        a(f"s_cbranch_scc1 L_rl_wo{u}")
        a(f"s_cmp_lt_u32 s{sID}, 740")
        a(f"s_cbranch_scc1 L_rl_w1{u}")
        a(f"s_sub_u32 s{sID}, s{sID}, 740")
        a(f"s_mul_i32 s{sKS}, s{sID}, 6554")
        a(f"s_lshr_b32 s{sKS}, s{sKS}, 16")
        a(f"s_mul_i32 s{sCB}, s{sKS}, 10")
        a(f"s_sub_u32 s{sCB}, s{sID}, s{sCB}")
        a(f"s_lshl_b32 s{sD}, s{sKS}, 5")
        a(f"s_mov_b32 s{SRD_RL}, s{S_PTR+10}")
        a(f"s_and_b32 s{SRD_RL+1}, s{S_PTR+11}, 0xffff")
        a(f"s_mov_b32 s{SRD_RL+2}, {1728*1280}")
        a(f"s_mov_b32 s{sBase}, {WS_W2}")
        a(f"s_mov_b32 s{sSl}, {54*5120}")
        a(f"s_branch L_rl_n640{u}")
        a.label(f"L_rl_wo{u}")
        a(f"s_mul_i32 s{sKS}, s{sID}, 6554")
        a(f"s_lshr_b32 s{sKS}, s{sKS}, 16")
        a(f"s_mul_i32 s{sCB}, s{sKS}, 10")
        a(f"s_sub_u32 s{sCB}, s{sID}, s{sCB}")
        a(f"s_mul_i32 s{sD}, s{sKS}, 40")
        a(f"s_mul_i32 s{sST}, s{sKS}, 160")
        a(f"s_sub_u32 s{sST}, s{sST}, {160*16-16}")
        a(f"s_cmp_lt_u32 s{sKS}, 16")
        a(f"s_cselect_b32 s{sD}, s{sD}, s{sST}")
        a(f"s_cselect_b32 s{sA}, 8, 20")
        a(f"s_cselect_b32 s{sB}, 20, 0x50")
        a(f"s_cselect_b32 s{sCc}, 4, 40")
        a(f"s_mov_b32 s{SRD_RL}, s{S_PTR+4}")
        a(f"s_and_b32 s{SRD_RL+1}, s{S_PTR+5}, 0xffff")
        a(f"s_mov_b32 s{SRD_RL+2}, {640*1280}")
        a(f"s_mov_b32 s{sBase}, {WS_WO}")
        a(f"s_mov_b32 s{sSl}, {20*5120}")
        a.label(f"L_rl_n640{u}")
        a(f"s_mov_b32 s{sST}, 1280")
        a(f"s_mul_i32 s{sKsS}, s{sKS}, 5120")
        a(f"s_add_u32 s{sBase}, s{sBase}, s{sKsS}")
        for t in range(4):
            a(f"s_lshl_b32 s{T4}, s{sCB}, 2")
            a(f"s_add_u32 s{T4}, s{T4}, {t}")
            a(f"s_mul_i32 s{T5}, s{T4}, 52")
            a(f"s_lshr_b32 s{T5}, s{T5}, 8")
            a(f"s_mul_i32 s{R+4+t}, s{T5}, s{sSl}")
            a(f"s_mul_i32 s{T5}, s{T5}, 5")
            a(f"s_sub_u32 s{T4}, s{T4}, s{T5}")
            a(f"s_lshl_b32 s{T4}, s{T4}, 10")
            a(f"s_add_u32 s{R+4+t}, s{R+4+t}, s{T4}")
            a(f"s_add_u32 s{R+4+t}, s{R+4+t}, s{sBase}")
        a(f"s_branch L_rl_common{u}")
        a.label(f"L_rl_w1{u}")
        a(f"s_sub_u32 s{sID}, s{sID}, 200")
        a(f"s_mul_i32 s{sKS}, s{sID}, 2428")
        a(f"s_lshr_b32 s{sKS}, s{sKS}, 16")
        a(f"s_mul_i32 s{sCB}, s{sKS}, 27")
        a(f"s_sub_u32 s{sCB}, s{sID}, s{sCB}")
        a(f"s_lshr_b32 s{T4}, s{sKS}, 1")
        a(f"s_mul_i32 s{T4}, s{T4}, 0x50")
        a(f"s_and_b32 s{T5}, s{sKS}, 1")
        a(f"s_lshl_b32 s{T5}, s{T5}, 5")
        a(f"s_add_u32 s{sD}, s{T4}, s{T5}")
        a(f"s_mul_i32 s{T4}, s{sKS}, 160")
        a(f"s_sub_u32 s{T4}, s{T4}, {160*16-64}")
        a(f"s_cmp_lt_u32 s{sKS}, 16")
        a(f"s_cselect_b32 s{sD}, s{sD}, s{T4}")
        a(f"s_cselect_b32 s{sA}, 16, 0x50")
        a(f"s_mov_b32 s{SRD_RL}, s{S_PTR+8}")
        a(f"s_and_b32 s{SRD_RL+1}, s{S_PTR+9}, 0xffff")
        a(f"s_mov_b32 s{SRD_RL+2}, {640*3456}")
        a(f"s_mov_b32 s{sST}, 3456")
        a(f"s_mul_i32 s{sKsS}, s{sKS}, 7168")
        a(f"s_add_u32 s{sBase}, s{sKsS}, {WS_W1}")
        a(f"s_mul_i32 s{R+8}, s{sKS}, {1728*4}")
        a(f"s_lshl_b32 s{T4}, s{sCB}, 8")
        a(f"s_add_u32 s{R+8}, s{R+8}, s{T4}")
        a(f"s_add_u32 s{R+8}, s{R+8}, {WS_CS1}")
        for t in range(4):
            a(f"s_lshl_b32 s{T4}, s{sCB}, 2")
            a(f"s_add_u32 s{T4}, s{T4}, {t}")
            a(f"s_mul_i32 s{T5}, s{T4}, 43")
            a(f"s_lshr_b32 s{T5}, s{T5}, 8")
            a(f"s_mul_i32 s{sSl}, s{T5}, 6")
            a(f"s_sub_u32 s{sSl}, s{T4}, s{sSl}")
            a(f"s_sub_u32 s{sKsS}, s{T4}, 96")
            a(f"s_cmp_lt_u32 s{T4}, 96")
            a(f"s_cselect_b32 s{T5}, s{T5}, s{sKsS}")
            a(f"s_cselect_b32 s{sSl}, s{sSl}, 6")
            a(f"s_mul_i32 s{R+4+t}, s{T5}, {20*7168}")
            a(f"s_lshl_b32 s{sSl}, s{sSl}, 10")
            a(f"s_add_u32 s{R+4+t}, s{R+4+t}, s{sSl}")
            a(f"s_add_u32 s{R+4+t}, s{R+4+t}, s{sBase}")
        a.label(f"L_rl_common{u}")
        a(f"s_mul_i32 s{sD}, s{sD}, s{sST}")
        a(f"s_lshl_b32 s{T4}, s{sCB}, 7")
        a(f"s_add_u32 s{R}, s{sD}, s{T4}")
        a(f"s_mul_i32 s{sA}, s{sA}, s{sST}")
        a(f"s_mul_i32 s{sB}, s{sB}, s{sST}")
        a(f"s_add_u32 s{R+1}, s{R}, s{sB}")
        a(f"s_add_u32 s{R+2}, s{R}, s{sA}")
        a(f"s_add_u32 s{R+3}, s{R+2}, s{sB}")
        a("v_lshrrev_b32 v1, 5, v0")
        a(f"v_mul_u32_u24 v1, s{sCc}, v1")
        a("v_bfe_u32 v2, v0, 3, 2")
        a("v_add_u32 v1, v1, v2")
        a(f"v_mul_u32_u24 v1, s{sST}, v1")
        a("v_and_b32 v2, 7, v0")
        a(f"v_lshl_add_u32 v{self.RLV}, v2, 4, v1")
        a("v_lshrrev_b32 v1, 2, v0")
        a("v_lshlrev_b32 v1, 7, v1")
        a("v_and_b32 v2, 3, v0")
        a("v_lshl_add_u32 v1, v2, 3, v1")
        a(f"s_lshl_b32 s{T4}, s{S_W}, 12")
        a(f"s_add_u32 s{T4}, s{T4}, {self.RL_SCR-4096}")
        a(f"v_add_u32 v{self.RLA}, s{T4}, v1")

    def relayout_issue(self):
        a = self.a
        L = a.newlabel("rlsk")
        a(f"s_sub_u32 s{T0}, s{S_W}, 1")
        a(f"s_cmp_ge_u32 s{T0}, 5")
        a(f"s_cbranch_scc1 {L}")
        a(f"s_lshl_b32 s{T0}, s{S_W}, 12")
        a(f"s_add_u32 m0, s{T0}, {self.RL_SCR-4096}")
        for i in range(4):
            if i: a("s_add_u32 m0, m0, 1024")
            a("s_nop 0")
            self.dma(self.RLV, SRD_RL, f"s{self.sRL+i}")
        a.label(L)

    def relayout_finish(self):
        a = self.a
        L = a.newlabel("rlsk"); F = 168; t = 184
        a(f"s_sub_u32 s{T0}, s{S_W}, 1")
        a(f"s_cmp_ge_u32 s{T0}, 5")
        a(f"s_cbranch_scc1 {L}")
        for q in range(4):
            for rd in range(2):
                a(f"ds_read_b64_tr_b16 v[{F+4*q+2*rd}:{F+4*q+2*rd+1}], v{self.RLA} offset:{rd*2048+q*32}")
        a(f"v_lshlrev_b32 v{t}, 4, v0")
        for q in range(4):
            a(f"s_waitcnt lgkmcnt({6-2*q})")
            a(f"buffer_store_dwordx4 v[{F+4*q}:{F+4*q+3}], v{t}, s[{SRD_WS}:{SRD_WS+3}], s{self.sRL+4+q} offen sc1")
        a(f"s_cmp_eq_u32 s{self.sRL+8}, -1")
        a(f"s_cbranch_scc1 {L}")
        for q in range(4): a(f"v_mov_b32 v{t+2+q}, 0")
        a(f"v_mov_b32 v{t+6}, 0x3f803f80")
        for k in range(4):
            for q in range(4): a(f"v_dot2_f32_bf16 v{t+2+q}, v{F+4*q+k}, v{t+6}, v{t+2+q}")
        a(f"v_lshlrev_b32 v{t+1}, 2, v0")
        a("s_nop 1")
        a(f"v_permlane16_swap_b32 v{t+2}, v{t+3}")
        a(f"v_permlane16_swap_b32 v{t+4}, v{t+5}")
        a("s_nop 0")
        a(f"v_add_f32 v{t+2}, v{t+2}, v{t+3}")
        a(f"v_add_f32 v{t+4}, v{t+4}, v{t+5}")
        a("s_nop 1")
        a(f"v_permlane32_swap_b32 v{t+2}, v{t+4}")
        a("s_nop 0")
        a(f"v_add_f32 v{t+2}, v{t+2}, v{t+4}")
        a(f"buffer_store_dword v{t+2}, v{t+1}, s[{SRD_WS}:{SRD_WS+3}], s{self.sRL+8} offen sc1")
        a.label(L)

    def p1_setup_b(self):
        a = self.a
        a(f"s_and_b32 s{self.sTG}, s{S_W}, 3")
        a(f"s_lshr_b32 s{self.sNH}, s{S_W}, 2")
        a(f"s_cmp_ge_u32 s{self.sCT}, 5")
        a(f"s_cselect_b32 s{T0}, 5, 0")
        a(f"s_sub_u32 s{T0}, s{self.sCT}, s{T0}")
        a(f"s_lshl_b32 s{T0}, s{T0}, 1")
        a(f"s_add_u32 s{T0}, s{T0}, s{self.sNH}")
        for idx in range(10):
            a(f"s_cmp_eq_u32 s{T0}, {idx}")
            a(f"s_cbranch_scc1 L_tab{idx}")
        a(f"s_mul_i32 s{T1}, s{self.sNH}, 0x10101010")
        for k in range(4): a(f"s_add_u32 s{self.sTAB+k}, s{T1}, 0x%08x" % (0x03020100 + 0x04040404 * k))
        a(f"s_mov_b32 s{self.sTAB+4}, 0")
        a(f"s_mov_b32 s{self.sTAB+5}, 0")
        a("s_branch L_tabdone")
        for idx in range(10):
            a.label(f"L_tab{idx}")
            for k, d in enumerate(p1_table(idx // 2, idx % 2)): a(f"s_mov_b32 s{self.sTAB+k}, 0x%08x" % d)
            if idx < 9: a("s_branch L_tabdone")
        a.label("L_tabdone")
        a("v_and_b32 v1, 31, v0")
        a(f"s_lshl_b32 s{T0}, s{self.sTG}, 5")
        a(f"v_add_u32 v2, s{T0}, v1")
        a("v_bfe_u32 v3, v2, 1, 3")
        a("v_lshrrev_b32 v4, 5, v0")
        a("v_xor_b32 v3, v3, v4")
        a("v_lshlrev_b32 v3, 4, v3")
        a(f"v_lshl_add_u32 v{self.XA}, v2, 7, v3")
        a(f"s_xor_b32 s{T3}, s{self.sTG}, s{self.sNH}")
        a(f"s_lshl_b32 s{T0}, s{T3}, 5")
        a(f"v_xor_b32 v{self.XA}, s{T0}, v{self.XA}")
        for ks in range(1, 4): a(f"v_xor_b32 v{self.XA+ks}, {ks<<5}, v{self.XA}")
        a("v_bfe_u32 v5, v0, 2, 2")
        a("v_lshl_add_u32 v6, v4, 3, v5")
        a("v_lshlrev_b32 v6, 8, v6")
        a("v_and_b32 v7, 3, v0")
        a("v_lshlrev_b32 v7, 3, v7")
        a("v_and_b32 v8, 16, v0")
        a("v_cmp_ne_u32 vcc, 0, v8")
        for i in range(2):
            a(f"v_mov_b32 v8, s{self.sTAB+2*i}")
            a(f"v_mov_b32 v9, s{self.sTAB+2*i+1}")
            a("v_cndmask_b32 v8, v8, v9, vcc")
            a("v_bfe_u32 v8, v8, v7, 8")
            a("v_lshlrev_b32 v8, 3, v8")
            a("v_lshlrev_b32 v9, 6, v5")
            a("v_xor_b32 v8, v8, v9")
            a(f"v_add_u32 v8, v6, v8")
            a(f"s_lshl_b32 s{T0}, s{T3}, 12")
            a(f"v_add_u32 v{self.WA+4*i}, s{T0}, v8")
            for j in range(1, 4): a(f"v_xor_b32 v{self.WA+4*i+j}, {j<<12}, v{self.WA+4*i}")
        a(f"s_lshl_b32 s{T0}, s{self.sRB}, 2")
        a(f"s_add_u32 s{T0}, s{T0}, s{self.sTG}")
        a(f"s_lshl_b32 s{T1}, s{T0}, 9")
        a(f"s_add_u32 s{T1}, s{T1}, {WS_RS}")
        a(f"v_lshl_add_u32 v{self.RSA}, v1, 4, s{T1}")
        a(f"s_cmp_ge_u32 s{self.sCT}, 10")
        a("s_cbranch_scc1 L_p1_vaddr")
        a(f"s_lshl_b32 s{T0}, s{T0}, 9")
        a(f"s_cmp_ge_u32 s{self.sCT}, 5")
        a(f"s_cselect_b32 s{T1}, {WS_K}, {WS_Q}")
        a(f"s_add_u32 s{T0}, s{T0}, s{T1}")
        a(f"v_lshl_add_u32 v2, v1, 4, s{T0}")
        a("v_lshlrev_b32 v3, 3, v4")
        a("v_add_u32 v5, 16, v3")
        for i in range(2):
            for qq in range(2):
                a(f"v_bfe_u32 v6, s{self.sTAB+4+i}, v{3 if qq == 0 else 5}, 8")
                a(f"v_lshl_add_u32 v{self.STA+2*i+qq}, v6, 15, v2")
        a("s_branch L_p1_addrdone")
        a.label("L_p1_vaddr")
        a(f"s_mul_i32 s{T0}, s{T0}, 1280")
        a(f"s_add_u32 s{T0}, s{T0}, {WS_V}")
        a(f"s_lshl_b32 s{T1}, s{self.sCT}, 7")
        a(f"s_lshl_b32 s{T2}, s{self.sNH}, 6")
        a(f"s_add_u32 s{T1}, s{T1}, s{T2}")
        a(f"s_sub_u32 s{T1}, s{T1}, 1280")
        a(f"v_mov_b32 v{self.STA+2}, 0")
        a(f"v_mov_b32 v{self.STA+3}, 0")
        a("v_mul_u32_u24 v3, 320, v4")
        a(f"v_add_u32 v3, s{T0}, v3")
        a(f"s_mov_b32 s{T2}, 81920")
        for i in range(2):
            a(f"v_add_u32 v5, s{T1}, v1")
            if i: a("v_add_u32 v5, 32, v5")
            a("v_mul_u32_u24 v6, 3277, v5")
            a("v_lshrrev_b32 v6, 16, v6")
            a("v_mul_u32_u24 v7, 20, v6")
            a("v_sub_u32 v5, v5, v7")
            a("v_lshl_add_u32 v5, v5, 4, v3")
            a(f"v_mad_u32_u24 v{self.STA+i}, v6, s{T2}, v5")
        a.label("L_p1_addrdone")
        for r in range(32): a(f"v_mov_b32 v{self.ACC+r}, 0")
        a(f"s_mul_i32 s{T0}, s{self.sCT}, 10240")
        a(f"s_lshl_b32 s{T1}, s{self.sNH}, 9")
        a(f"s_add_u32 s{T0}, s{T0}, s{T1}")
        a(f"s_add_u32 s{T0}, s{T0}, {WS_CQ}")
        a(f"v_lshl_add_u32 v{self.CQA}, v0, 3, s{T0}")
        a(f"s_mov_b32 s{self.sSIDE}, 0x81")
        a(f"v_mov_b32 v{self.VXM}, 0x8000")
        a(f"s_mov_b32 s{self.sCNT}, 0")

    def p1_loop(self, vmode):
        a = self.a
        tag = "v" if vmode else "q"
        a(f"s_cmp_lg_u32 s{self.sNH}, 0")
        a(f"s_cbranch_scc1 L_p1_B{tag}")
        self.p1_loop1(vmode, 0)
        a(f"s_branch L_p1_E{tag}")
        a.label(f"L_p1_B{tag}")
        self.p1_loop1(vmode, 1)
        a.label(f"L_p1_E{tag}")

    def p1_loop1(self, vmode, B):
        a = self.a
        L = a.newlabel("p1loop")
        pos = self.o.get("barB" if B else "barA", "1" if B else "0")
        def reads(ks):
            if self.o.get("nolds"): return
            a(f"ds_read_b128 v[{self.XF+4*ks}:{self.XF+4*ks+3}], v{self.XA+ks}")
            for i in range(2):
                for rd in range(2):
                    d = self.WF + 8 * ks + 4 * i + 2 * rd
                    a(f"ds_read_b64_tr_b16 v[{d}:{d+1}], v{self.WA+4*i+ks} offset:{16384+rd*1024}")
        def xors(ks):
            for r in (self.XA + ks, self.WA + ks, self.WA + 4 + ks): a(f"v_xor_b32 v{r}, v{self.VXM}, v{r}")
            if ks == 3: a(f"v_xor_b32 v{self.VXM}, 0x10000, v{self.VXM}")
        def bar():
            a("s_waitcnt vmcnt(4)")
            if not self.o.get("nobar"): a("s_barrier")
            if self.o.get("its") == "1": self.stamp_dyn(48, self.sCNT)
        def mf(ks, i):
            x = vr(self.XF + 4 * ks, 4); wv = vr(self.WF + 8 * ks + 4 * i, 4); acc = vr(self.ACC + 16 * i, 16)
            if self.o.get("nomfma"): pass
            elif vmode: a(f"v_mfma_f32_32x32x16_bf16 {acc}, {x}, {wv}, {acc}")
            else: a(f"v_mfma_f32_32x32x16_bf16 {acc}, {wv}, {x}, {acc}")
        def comp(ks):
            n = (ks + 2) % 4
            if ks == 2 and pos == "0": bar()
            a("s_waitcnt lgkmcnt(5)")
            mf(ks, 0)
            if ks == 2 and pos == "1": bar()
            if ks == 2 and pos == "2":
                mf(ks, 1); bar(); reads(n)
            else:
                reads(n); mf(ks, 1)
            xors(n)
            self.p1_issue((n,))
            if n == 3:
                Lp = a.newlabel("pre"); Lpb = a.newlabel("preb")
                self._pre = (Lp, Lpb)
                a(f"s_cmp_ge_u32 s{self.sCNT}, 7")
                a(f"s_cbranch_scc1 {Lp}")
                a.label(Lpb)
        a("v_mov_b32 v1, 0")
        a(f"buffer_load_dwordx2 v[{self.VN}:{self.VN+1}], v1, s[{SRD_DBG}:{SRD_DBG+3}], 0 offen sc1")
        self.p1_issue((1, 2, 3))
        self.p1_issue((0, 1))
        a("s_waitcnt vmcnt(7)")
        a("s_barrier")
        self.stamp(3)
        reads(0); reads(1); xors(0); xors(1)
        a("v_mov_b32 v6, 0x3f803f80")
        a("v_mov_b32 v2, 0")
        a("v_mov_b32 v3, 0")
        a(f"s_lshl_b32 s{T0}, s{self.sNH}, 8")
        a(f"s_lshl_b32 s{T1}, s{self.sTG}, 9")
        a(f"s_add_u32 s{T0}, s{T0}, {self.P1_MISC}")
        a(f"s_add_u32 s{T1}, s{T1}, s{T0}")
        a(f"v_lshl_add_u32 v4, v0, 2, s{T1}")
        a(f"v_lshl_add_u32 v95, v0, 2, s{T0}")
        a("s_waitcnt lgkmcnt(5)")
        for k in range(4):
            for i in range(2): a(f"v_dot2_f32_bf16 v{2+i}, v{self.WF+4*i+k}, v6, v{2+i}")
        a("s_nop 2")
        a("v_permlane32_swap_b32 v2, v3")
        a("s_nop 0")
        a("v_add_f32 v2, v2, v3")
        a("ds_write_b32 v4, v2")
        a("s_waitcnt lgkmcnt(0)")
        a.align(6)
        a.label(L)
        comp(0); comp(1); comp(2)
        Lr = a.newlabel("back"); Ls = a.newlabel("side")
        a(f"s_bitcmp1_b32 s{self.sSIDE}, s{self.sCNT}")
        a(f"s_cbranch_scc1 {Ls}")
        a.label(Lr)
        comp(3)
        a(f"s_add_u32 s{self.sCNT}, s{self.sCNT}, 1")
        a(f"s_cmp_lt_u32 s{self.sCNT}, 10")
        a(f"s_cbranch_scc1 {L}")
        Le = a.newlabel("lend"); L8 = a.newlabel("side8")
        a(f"s_branch {Le}")
        a.label(Ls)
        a(f"s_cmp_lg_u32 s{self.sCNT}, 0")
        a(f"s_cbranch_scc1 {L8}")
        self.nonce_get()
        a(f"s_cmp_lg_u32 s{self.sTG}, 0")
        a(f"s_cbranch_scc1 {Lr}")
        for k in range(4): a(f"ds_read_b32 v{2+k}, v95 offset:{512*k}")
        a(f"s_lshl_b32 s{T0}, s{self.sKC0}, 10")
        a("s_waitcnt lgkmcnt(0)")
        a("v_add_f32 v2, v2, v3")
        a("v_add_f32 v4, v4, v5")
        a(f"v_mov_b32 v3, s{S_NONCE}")
        a("v_add_f32 v2, v2, v4")
        a(f"buffer_store_dwordx2 v[2:3], v{self.CQA}, s[{SRD_WS}:{SRD_WS+3}], s{T0} offen sc1")
        a(f"s_branch {Lr}")
        a.label(L8)
        a(f"buffer_load_dwordx4 v[{self.RS}:{self.RS+3}], v{self.RSA}, s[{SRD_WS}:{SRD_WS+3}], 0 offen sc1")
        a(f"s_mov_b32 s{T2}, m0")
        a(f"s_mul_i32 s{T0}, s{self.sCT}, 10240")
        a(f"s_lshl_b32 s{T1}, s{S_W}, 10")
        a(f"s_add_u32 s{T0}, s{T0}, s{T1}")
        a(f"s_add_u32 s{T0}, s{T0}, {WS_CQ}")
        a(f"s_add_u32 m0, s{T1}, {self.CQ_SCR}")
        a("v_lshlrev_b32 v1, 4, v0")
        self.dma(1, SRD_WS, f"s{T0}", "sc1")
        a(f"s_add_u32 s{T0}, s{T0}, 8192")
        a("s_add_u32 m0, m0, 8192")
        a(f"s_cmp_ge_u32 s{S_W}, 2")
        a(f"s_cselect_b32 s{T0}, 0x7f000000, s{T0}")
        self.dma(1, SRD_WS, f"s{T0}", "sc1")
        a(f"s_mov_b32 m0, s{T2}")
        a(f"s_branch {Lr}")
        Lp, Lpb = self._pre
        a.label(Lp)
        a(f"s_mov_b32 s{self.sXO}, 0x7f000000")
        a(f"s_mov_b32 s{self.sWO}, 0x7f000000")
        a(f"s_mov_b32 s{self.sM0X}, {self.DUMMY}")
        a(f"s_mov_b32 s{self.sI1}, 0")
        a(f"s_mov_b32 s{self.sI2}, 0")
        a(f"s_mov_b32 s{self.sSM}, 0")
        a(f"s_mov_b32 s{self.sSLOT}, 0")
        a(f"s_cmp_lg_u32 s{self.sCNT}, 9")
        a(f"s_cbranch_scc1 {Lpb}")
        self.relayout_issue()
        a(f"s_branch {Lpb}")
        a.label(Le)

    def p1_gather(self):
        a = self.a
        a(f"buffer_load_dwordx4 v[{self.RS}:{self.RS+3}], v{self.RSA}, s[{SRD_WS}:{SRD_WS+3}], 0 offen sc1")
        a(f"s_movk_i32 s{T0}, 0x1000")
        a(f"s_movk_i32 s{T1}, 0x2000")
        for k in range(10):
            so = ("0", f"s{T0}", f"s{T1}")[k // 4]
            a(f"buffer_load_dwordx2 v[{self.CQ+2*k}:{self.CQ+2*k+1}], v{self.CQA}, s[{SRD_WS}:{SRD_WS+3}], {so} offen offset:{1024*(k%4)} sc1")

    def p1_epi_common(self):
        a = self.a
        self.stamp(4)
        a(f"s_lshl_b32 s{T2}, s{S_W}, 9")
        a(f"s_add_u32 s{T2}, s{T2}, {self.P1_MISC+4096}")
        a(f"v_lshl_add_u32 v6, v0, 2, s{T2}")
        a("v_and_b32 v5, 31, v0")
        L = a.newlabel("rs"); Ld = a.newlabel("rsd")
        a(f"s_mov_b32 s{S_SPIN}, 0")
        a(f"s_lshl_b32 s{T0}, s{self.sNH}, 9")
        a(f"s_add_u32 s{T0}, s{T0}, {self.CQ_SCR}")
        a(f"v_lshl_add_u32 v1, v0, 3, s{T0}")
        for k in range(10): a(f"ds_read_b64 v[{self.CQ+2*k}:{self.CQ+2*k+1}], v1 offset:{1024*k}")
        a("s_waitcnt lgkmcnt(0)")
        a.label(L)
        a(f"v_xor_b32 v2, s{S_NONCE}, v{self.RS+1}")
        a(f"v_xor_b32 v3, s{S_NONCE}, v{self.RS+3}")
        for k in range(0, 10, 2):
            a(f"v_xor_b32 v4, s{S_NONCE}, v{self.CQ+2*k+1}")
            a(f"v_xor_b32 v7, s{S_NONCE}, v{self.CQ+2*k+3}")
            a("v_or3_b32 v2, v2, v4, v7")
        a("v_or_b32 v2, v2, v3")
        a("v_cmp_ne_u32 vcc, 0, v2")
        a(f"s_add_u32 s{S_SPIN}, s{S_SPIN}, 1")
        a("s_or_b64 vcc, vcc, vcc")
        a(f"s_cbranch_scc0 {Ld}")
        a(f"s_cmp_ge_u32 s{S_SPIN}, {SPIN_MAX}")
        a(f"s_cbranch_scc1 {Ld}")
        self.p1_gather()
        a("s_waitcnt vmcnt(0)")
        a(f"s_branch {L}")
        a.label(Ld)
        Q = self.CQ
        a(f"v_add_f32 v12, v{Q}, v{Q+2}")
        a(f"v_add_f32 v13, v{Q+4}, v{Q+6}")
        a(f"v_add_f32 v14, v{Q+8}, v{Q+10}")
        a(f"v_add_f32 v15, v{Q+12}, v{Q+14}")
        a(f"v_add_f32 v2, v{Q+16}, v{Q+18}")
        a("v_add_f32 v12, v12, v13")
        a("v_add_f32 v14, v14, v15")
        a("v_add_f32 v12, v12, v2")
        a("v_add_f32 v12, v12, v14")

    def rowstats(self):
        a = self.a
        X = 100
        a("v_lshrrev_b32 v1, 3, v0")
        a(f"s_lshl_b32 s{T0}, s{S_W}, 4")
        a(f"s_lshl_b32 s{T1}, s{self.sRB}, 7")
        a(f"s_add_u32 s{T0}, s{T0}, s{T1}")
        a(f"v_add_u32 v1, s{T0}, v1")
        a("v_mul_u32_u24 v2, 1280, v1")
        a("v_and_b32 v3, 7, v0")
        a("v_lshl_add_u32 v2, v3, 4, v2")
        a(f"s_mov_b32 s{T0}, 10240")
        a("v_mov_b32 v3, 0")
        a(f"buffer_load_dwordx2 v[{self.VN}:{self.VN+1}], v3, s[{SRD_DBG}:{SRD_DBG+3}], 0 offen sc1")
        for k in range(10):
            for hh in range(2):
                r = X + 8 * k + 4 * hh
                a(f"buffer_load_dwordx4 v[{r}:{r+3}], v2, s[{SRD_X}:{SRD_X+3}], {'s%d' % T0 if hh else '0'} offen offset:{128*k}")
        for r in range(4, 8): a(f"v_mov_b32 v{r}, 0")
        a("v_mov_b32 v8, 0x3f803f80")
        for k in range(10):
            a(f"s_waitcnt vmcnt({18-2*k})")
            for e in range(4):
                for hh in range(2):
                    r = X + 8 * k + 4 * hh + e
                    a(f"v_dot2_f32_bf16 v{4+hh}, v{r}, v8, v{4+hh}")
                    a(f"v_dot2_f32_bf16 v{6+hh}, v{r}, v{r}, v{6+hh}")
        a("s_nop 2")
        for ctl in ("quad_perm:[1,0,3,2]", "quad_perm:[2,3,0,1]", "row_half_mirror"):
            for r in range(4, 8): a(f"v_add_f32_dpp v{r}, v{r}, v{r} {ctl} row_mask:0xf bank_mask:0xf")
        self.nonce_get()
        a("v_and_b32 v3, 1, v0")
        a("v_cmp_ne_u32 vcc, 0, v3")
        a("v_lshlrev_b32 v3, 3, v3")
        a("v_add_u32 v1, v1, v3")
        a("v_cndmask_b32 v4, v4, v5, vcc")
        a("v_cndmask_b32 v6, v6, v7, vcc")
        a(f"v_mul_f32 v4, 0x%08x, v4" % f2u(1.0 / 640))
        a("v_mul_f32 v5, v4, v4")
        a(f"v_mov_b32 v7, 0x%08x" % f2u(1.0 / 640))
        a("v_fma_f32 v5, v6, v7, -v5")
        a("v_max_f32 v5, 0, v5")
        a(f"v_add_f32 v5, 0x%08x, v5" % f2u(1e-5))
        a("v_rsq_f32 v8, v5")
        a(f"v_mov_b32 v9, s{S_NONCE}")
        a(f"v_mov_b32 v11, s{S_NONCE}")
        a("v_mul_f32 v10, v4, v8")
        a("v_lshlrev_b32 v1, 4, v1")
        a(f"s_mov_b32 s{T0}, {WS_RS}")
        a("s_mov_b32 exec_lo, 0x03030303")
        a("s_mov_b32 exec_hi, 0x03030303")
        a(f"buffer_store_dwordx4 v[8:11], v1, s[{SRD_WS}:{SRD_WS+3}], s{T0} offen sc1")
        a("s_mov_b64 exec, -1")

    def p1_epi_q(self):
        a = self.a
        self.p1_epi_common()
        qs = math.log2(math.e) / math.sqrt(20.0)
        a("ds_write_b32 v6, v12")
        a("v_lshrrev_b32 v1, 5, v0")
        a(f"v_lshl_add_u32 v1, v1, 4, s{T2}")
        C = 48
        for i in range(2):
            for q4 in range(4):
                a(f"ds_read_b128 v[{C+16*i+4*q4}:{C+16*i+4*q4+3}], v1 offset:{i*128+q4*32}")
        a(f"s_cmp_lt_u32 s{self.sCT}, 5")
        a(f"s_cselect_b32 s{T1}, 0x%08x, 1.0" % f2u(qs))
        a(f"v_mul_f32 v2, s{T1}, v{self.RS}")
        a(f"v_mul_f32 v3, s{T1}, v{self.RS+2}")
        for i in range(2):
            for qq in range(2):
                a(f"s_waitcnt lgkmcnt({6-4*i-2*qq})")
                b = 16 * i + 8 * qq
                for r in range(8): a(f"v_mul_f32 v{self.ACC+b+r}, v2, v{self.ACC+b+r}")
                for r in range(8): a(f"v_fma_f32 v{self.ACC+b+r}, -v3, v{C+b+r}, v{self.ACC+b+r}")
                o = 4 + 4 * ((2 * i + qq) % 2)
                for r in range(4): a(f"v_cvt_pk_bf16_f32 v{o+r}, v{self.ACC+b+2*r}, v{self.ACC+b+2*r+1}")
                a(f"buffer_store_dwordx4 v[{o}:{o+3}], v{self.STA+2*i+qq}, s[{SRD_WS}:{SRD_WS+3}], 0 offen sc1")

    def p1_epi_v(self):
        a = self.a
        self.p1_epi_common()
        a("v_mov_b32 v13, v12")
        a(f"v_lshl_add_u32 v6, v5, 2, s{T2}")
        a("v_lshrrev_b32 v1, 5, v0")
        a("v_permlane32_swap_b32 v12, v13")
        a(f"ds_write_b32 v6, v{self.RS}")
        a(f"ds_write_b32 v6, v{self.RS+2} offset:128")
        a(f"v_lshl_add_u32 v6, v1, 4, s{T2}")
        C = 48
        for q4 in range(4):
            a(f"ds_read_b128 v[{C+4*q4}:{C+4*q4+3}], v6 offset:{q4*32}")
            a(f"ds_read_b128 v[{C+16+4*q4}:{C+16+4*q4+3}], v6 offset:{128+q4*32}")
        for grp in range(2):
            a(f"s_waitcnt lgkmcnt({4-4*grp})")
            for i in range(2):
                b = 16 * i + 8 * grp
                for r in range(8): a(f"v_mul_f32 v{self.ACC+b+r}, v{C+8*grp+r}, v{self.ACC+b+r}")
                for r in range(8): a(f"v_fma_f32 v{self.ACC+b+r}, -v{C+16+8*grp+r}, v{12+i}, v{self.ACC+b+r}")
                o = 4 + 4 * i
                for r in range(4): a(f"v_cvt_pk_bf16_f32 v{o+r}, v{self.ACC+b+2*r}, v{self.ACC+b+2*r+1}")
                a(f"buffer_store_dwordx4 v[{o}:{o+3}], v{self.STA+i}, s[{SRD_WS}:{SRD_WS+3}], 0 offen offset:{640*grp} sc1")

    def nonce_get(self):
        a = self.a
        a(f"s_mov_b32 s{S_SPIN}, 0")
        Lc = a.newlabel("nchk"); Lo = a.newlabel("nok")
        a.label(Lc)
        a(f"v_readfirstlane_b32 s{S_NONCE}, v{self.VN}")
        a(f"v_readfirstlane_b32 s{S_NONCE+1}, v{self.VN+1}")
        a(f"s_add_u32 s{S_SPIN}, s{S_SPIN}, 1")
        a(f"s_or_b32 s{T0}, s{S_NONCE}, s{S_NONCE+1}")
        a(f"s_cbranch_scc1 {Lo}")
        a(f"s_cmp_ge_u32 s{S_SPIN}, {SPIN_MAX}")
        a(f"s_cbranch_scc1 {Lo}")
        a("v_mov_b32 v94, 0")
        a(f"buffer_load_dwordx2 v[{self.VN}:{self.VN+1}], v94, s[{SRD_DBG}:{SRD_DBG+3}], 0 offen sc1")
        a("s_waitcnt vmcnt(0)")
        a(f"s_branch {Lc}")
        a.label(Lo)

    def phase1(self):
        a = self.a
        self.p1_setup_a()
        a(f"s_cmp_eq_u32 s{self.sCT}, 15")
        a("s_cbranch_scc0 L_p1_go")
        self.rowstats()
        self.relayout_setup()
        self.relayout_issue()
        a("s_branch L_p1_done")
        a.label("L_p1_go")
        self.p1_setup_b()
        self.relayout_setup()
        self.stamp(2)
        a(f"s_cmp_ge_u32 s{self.sCT}, 10")
        a("s_cbranch_scc1 L_p1_v")
        self.p1_loop(False)
        self.p1_epi_q()
        a("s_branch L_p1_done")
        a.label("L_p1_v")
        self.p1_loop(True)
        self.p1_epi_v()
        a.label("L_p1_done")
        self.stamp(5)
        a("s_waitcnt vmcnt(0)")
        self.stamp(6)
        a("s_barrier")
        a(f"s_lshl_b32 s{T0}, s{S_G}, 3")
        a(f"s_add_u32 s{T0}, s{T0}, {FL_1}")
        self.flag_store(T0, 2)
        self.stamp(7)
        self.relayout_finish()

    def build(self):
        a = self.a
        self.entry()
        self.phase1()
        if self.stop >= 2:
            from phases import phase2, phase3, phase4, phase5
            phase2(self)
            if self.stop >= 3: phase3(self)
            if self.stop >= 4: phase4(self)
            if self.stop >= 5: phase5(self)
        a("s_waitcnt vmcnt(0)")
        self.stamp(31)
        self.stamp_flush()
        a.label("L_end")
        a("s_endpgm")
        body = a.text()
        errs = check(body)
        if errs:
            sys.stderr.write("\n".join(errs[:40]) + "\n%d hazards\n" % len(errs))
            raise SystemExit(1)
        head = f"""; Fused preLN -> MHA -> residual -> preLN -> SiLU FFN -> residual, one persistent launch.
; @launch grid=(256,1,1) block=(512,1,1) lds={LDS_BYTES}
.amdgcn_target "amdgcn-amd-amdhsa--gfx950"
.text
.globl {NAME}_kernel
.p2align 8
.type {NAME}_kernel,@function
{NAME}_kernel:
"""
        tail = f""".section .rodata,"a"
.p2align 6
.amdhsa_kernel {NAME}_kernel
  .amdhsa_next_free_vgpr 256
  .amdhsa_next_free_sgpr 102
  .amdhsa_accum_offset 256
  .amdhsa_group_segment_fixed_size 0
  .amdhsa_kernarg_size 72
  .amdhsa_user_sgpr_count 2
  .amdhsa_user_sgpr_kernarg_segment_ptr 1
  .amdhsa_system_sgpr_workgroup_id_x 1
.end_amdhsa_kernel
"""
        return head + body + tail

if __name__ == "__main__":
    stop = int(sys.argv[2]) if len(sys.argv) > 2 else 99
    opts = dict(kv.split("=") for kv in sys.argv[3:])
    open(sys.argv[1], "w").write(K(stop, opts).build())
    import subprocess
    r = subprocess.run(["clang", "-x", "assembler", "-target", "amdgcn-amd-amdhsa", "-mcpu=gfx950", "-c", sys.argv[1], "-o", "_chk.o"], capture_output=True, text=True)
    if r.returncode: print(r.stderr[:1500]); raise SystemExit(1)
    r = subprocess.run(["llvm-readelf", "-S", "_chk.o"], capture_output=True, text=True)
    print(sys.argv[1], "text bytes:", int([l for l in r.stdout.split("\n") if ".text" in l][0].split()[6], 16))
```

```python
import sys, math
from asmlib import Asm, vr, sr, f2u, check
from tables import *

NAME = "sequential_preLN__mha_block__dense_activation_silu__prompt"
LDS_BYTES = 163840
SPIN_MAX = 20000

S_G = 2
SRD_X, SRD_WQ, SRD_WS, SRD_OUT, SRD_DBG, SRD_RL = 4, 8, 12, 16, 20, 24
S_W, S_C, S_J = 28, 29, 30
S_NONCE = 32
S_PTR = 36
T0, T1, T2, T3, T4, T5 = 54, 55, 56, 57, 58, 59
S_M1 = 60
S_SPIN = 62

class K:
    def __init__(self, stop_after=99, opts=None):
        self.a = Asm()
        self.stop = stop_after
        self.o = opts or {}

    def srd(self, d, ptr, nbytes):
        a = self.a
        a(f"s_mov_b32 s{d}, s{ptr}")
        a(f"s_and_b32 s{d+1}, s{ptr+1}, 0xffff")
        a(f"s_mov_b32 s{d+2}, {nbytes}")
        a(f"s_mov_b32 s{d+3}, 0x20000")

    def stamp(self, idx):
        if not self.o.get("stamps"): return
        a = self.a
        a("s_memrealtime s[100:101]")
        a("s_waitcnt lgkmcnt(0)")
        a(f"v_writelane_b32 v255, s100, {idx}")
        if idx < 16:
            a("s_memtime s[100:101]")
            a("s_waitcnt lgkmcnt(0)")
            a(f"v_writelane_b32 v255, s100, {idx+32}")

    def stamp_dyn(self, base, sreg):
        if not self.o.get("its"): return
        a = self.a
        a("s_memtime s[100:101]")
        a("s_mov_b32 s99, m0")
        a(f"s_add_u32 m0, s{sreg}, {base}")
        a("s_waitcnt lgkmcnt(0)")
        a("v_writelane_b32 v255, s100, m0")
        a("s_mov_b32 m0, s99")

    def stamp_flush(self):
        if not self.o.get("stamps"): return
        a = self.a
        a(f"s_lshl_b32 s{T0}, s{S_G}, 3")
        a(f"s_add_u32 s{T0}, s{T0}, s{S_W}")
        a(f"s_lshl_b32 s{T0}, s{T0}, 8")
        a(f"s_add_u32 s{T0}, s{T0}, {WS_SIZE}")
        a("v_lshlrev_b32 v1, 2, v0")
        a(f"buffer_store_dword v255, v1, s[{SRD_WS}:{SRD_WS+3}], s{T0} offen")
        a("s_mov_b64 exec, -1")

    def dma(self, voff, srd, soff, flags=""):
        if self.o.get("nodma"): return
        self.a(f"buffer_load_dwordx4 v{voff}, s[{srd}:{srd+3}], {soff} offen {flags} lds".replace("  ", " "))

    def flag_store(self, s_off, vt):
        a = self.a
        L = a.newlabel("nofl")
        a(f"s_cmp_lg_u32 s{S_W}, 0")
        a(f"s_cbranch_scc1 {L}")
        a(f"v_mov_b32 v{vt}, s{S_NONCE}")
        a(f"v_mov_b32 v{vt+1}, s{S_NONCE+1}")
        a(f"v_mov_b32 v{vt+2}, 0")
        a("s_mov_b64 exec, 1")
        a(f"buffer_store_dwordx2 v[{vt}:{vt+1}], v{vt+2}, s[{SRD_WS}:{SRD_WS+3}], s{s_off} offen sc1")
        a("s_mov_b64 exec, -1")
        a.label(L)

    def poll(self, n, s_off, spacing, vt, only_wave0=True):
        a = self.a
        L = a.newlabel("poll"); Ld = a.newlabel("polld")
        if only_wave0:
            a(f"s_cmp_lg_u32 s{S_W}, 0")
            a(f"s_cbranch_scc1 {Ld}")
        a(f"s_mov_b32 s{S_SPIN}, 0")
        if n == 256:
            assert spacing == 8
            a(f"v_lshlrev_b32 v{vt+8}, 4, v0")
            a.label(L)
            a(f"buffer_load_dwordx4 v[{vt}:{vt+3}], v{vt+8}, s[{SRD_WS}:{SRD_WS+3}], s{s_off} offen sc1")
            a(f"buffer_load_dwordx4 v[{vt+4}:{vt+7}], v{vt+8}, s[{SRD_WS}:{SRD_WS+3}], s{s_off} offen offset:1024 sc1")
            a(f"s_add_u32 s{S_SPIN}, s{S_SPIN}, 1")
            a("s_waitcnt vmcnt(0)")
            a(f"v_cmp_ne_u64 vcc, s[{S_NONCE}:{S_NONCE+1}], v[{vt}:{vt+1}]")
            a(f"v_cmp_ne_u64 s[{S_M1}:{S_M1+1}], s[{S_NONCE}:{S_NONCE+1}], v[{vt+2}:{vt+3}]")
            a("s_nop 0")
            a(f"s_or_b64 s[{T4}:{T5}], vcc, s[{S_M1}:{S_M1+1}]")
            a(f"v_cmp_ne_u64 vcc, s[{S_NONCE}:{S_NONCE+1}], v[{vt+4}:{vt+5}]")
            a(f"v_cmp_ne_u64 s[{S_M1}:{S_M1+1}], s[{S_NONCE}:{S_NONCE+1}], v[{vt+6}:{vt+7}]")
            a("s_nop 0")
            a(f"s_or_b64 s[{T4}:{T5}], s[{T4}:{T5}], vcc")
            a(f"s_or_b64 s[{T4}:{T5}], s[{T4}:{T5}], s[{S_M1}:{S_M1+1}]")
        else:
            a(f"v_and_b32 v{vt+8}, {n-1}, v0")
            a(f"v_mul_u32_u24 v{vt+8}, {spacing}, v{vt+8}")
            a.label(L)
            a(f"buffer_load_dwordx2 v[{vt}:{vt+1}], v{vt+8}, s[{SRD_WS}:{SRD_WS+3}], s{s_off} offen sc1")
            a(f"s_add_u32 s{S_SPIN}, s{S_SPIN}, 1")
            a("s_waitcnt vmcnt(0)")
            a(f"v_cmp_ne_u64 vcc, s[{S_NONCE}:{S_NONCE+1}], v[{vt}:{vt+1}]")
            a("s_nop 0")
            a(f"s_or_b64 s[{T4}:{T5}], vcc, vcc")
        a(f"s_cbranch_scc0 {Ld}")
        a(f"s_cmp_lt_u32 s{S_SPIN}, {SPIN_MAX}")
        a(f"s_cbranch_scc1 {L}")
        a.label(Ld)

    def entry(self):
        a = self.a
        a(f"s_cmp_ge_u32 s{S_G}, 256")
        a("s_cbranch_scc1 L_end")
        a(f"s_load_dwordx16 s[{S_PTR}:{S_PTR+15}], s[0:1], 0")
        a(f"s_load_dwordx2 s[{S_PTR+16}:{S_PTR+17}], s[0:1], 64")
        a(f"s_memrealtime s[{S_NONCE}:{S_NONCE+1}]")
        if self.o.get("stamps"): a("v_mov_b32 v255, 0")
        self.stamp(0)
        a("v_lshrrev_b32 v1, 6, v0")
        a("v_and_b32 v0, 63, v0")
        a(f"v_readfirstlane_b32 s{S_W}, v1")
        a(f"s_and_b32 s{S_C}, s{S_G}, 7")
        a(f"s_lshr_b32 s{S_J}, s{S_G}, 3")

    ACC = 16; XF = 160; WF = 176; XA = 72; WA = 144; DXA, DXB, DW = 78, 79, 80; VXM = 76
    ONES = 82
    CQ = 96
    CQA = 81
    RSA, RS = 84, 128
    STA = 86
    RLV, RLA = 157, 158
    VN = 92
    sRB, sCT, sKC, sXO, sWO, sSLOT, sCNT, sXM, sTG, sNH = 64, 65, 66, 67, 68, 69, 70, 71, 72, 73
    sTAB = 74
    sM0X = 80; sWO2 = 81; sKC0 = 82; sSIDE = 83; sI1 = 71; sI2 = 34; sSM = 35
    sRL = 84
    P1_MISC = 148 * 1024
    RL_SCR = 68 * 1024
    CQ_SCR = 128 * 1024
    DUMMY = 159 * 1024
    CPF_LINES = 8

    def p1_issue(self, pieces=(0, 1, 2, 3)):
        a = self.a
        if 0 in pieces:
            a(f"s_add_u32 m0, s{self.sM0X}, s{self.sSLOT}")
            a(f"s_add_u32 s{self.sKC}, s{self.sKC}, 1")
            self.dma(self.DXA, SRD_X, f"s{self.sXO}")
        if 1 in pieces:
            a(f"s_add_u32 m0, m0, s{self.sI1}")
            a(f"s_add_u32 s{self.sWO2}, s{self.sWO}, 15360")
            self.dma(self.DW, SRD_WQ, f"s{self.sWO}")
        if 2 in pieces:
            a(f"s_sub_u32 m0, m0, s{self.sI2}")
            a(f"s_add_u32 s{self.sWO}, s{self.sWO}, 245760")
            self.dma(self.DXB, SRD_X, f"s{self.sXO}")
        if 3 in pieces:
            a(f"s_add_u32 m0, m0, s{self.sI1}")
            a(f"s_add_u32 s{self.sXO}, s{self.sXO}, 128")
            self.dma(self.DW, SRD_WQ, f"s{self.sWO2}")
            a(f"s_cmp_eq_u32 s{self.sKC}, 10")
            a(f"s_cselect_b32 s{T0}, 1280, 0")
            a(f"s_cselect_b32 s{T1}, 2457600, 0")
            a(f"s_cselect_b32 s{self.sKC}, 0, s{self.sKC}")
            a(f"s_sub_u32 s{self.sXO}, s{self.sXO}, s{T0}")
            a(f"s_sub_u32 s{self.sWO}, s{self.sWO}, s{T1}")
            a(f"s_add_u32 s{self.sSLOT}, s{self.sSLOT}, 32768")
            a(f"s_and_b32 s{self.sSLOT}, s{self.sSLOT}, s{self.sSM}")

    def p1_setup_a(self):
        a = self.a
        a(f"s_lshr_b32 s{T0}, s{S_C}, 1")
        a(f"s_lshl_b32 s{T0}, s{T0}, 2")
        a(f"s_lshr_b32 s{T1}, s{S_J}, 3")
        a(f"s_add_u32 s{self.sRB}, s{T0}, s{T1}")
        a(f"s_and_b32 s{T0}, s{S_C}, 1")
        a(f"s_lshl_b32 s{T0}, s{T0}, 3")
        a(f"s_and_b32 s{T2}, s{S_J}, 7")
        a(f"s_add_u32 s{self.sCT}, s{T0}, s{T2}")
        a(f"s_lshl_b32 s{T1}, s{T1}, 1")
        a(f"s_add_u32 s{self.sKC}, s{T2}, s{T1}")
        a(f"s_bfe_u32 s{T0}, s{S_C}, 0x10001")
        a(f"s_and_b32 s{T1}, s{S_C}, 4")
        a(f"s_lshl_b32 s{T1}, s{T1}, 1")
        a(f"s_add_u32 s{T0}, s{T0}, s{T1}")
        a(f"s_add_u32 s{self.sKC}, s{self.sKC}, s{T0}")
        a(f"s_mul_i32 s{T0}, s{self.sKC}, 26")
        a(f"s_lshr_b32 s{T0}, s{T0}, 8")
        a(f"s_mul_i32 s{T0}, s{T0}, 10")
        a(f"s_sub_u32 s{self.sKC}, s{self.sKC}, s{T0}")
        a(f"s_mov_b32 s{self.sKC0}, s{self.sKC}")
        a(f"s_mul_i32 s{self.sXO}, s{self.sRB}, 163840")
        a(f"s_lshl_b32 s{T0}, s{self.sKC}, 7")
        a(f"s_add_u32 s{self.sXO}, s{self.sXO}, s{T0}")
        a(f"s_mul_i32 s{self.sWO}, s{self.sKC}, 245760")
        a(f"s_lshl_b32 s{T0}, s{self.sCT}, 8")
        a(f"s_add_u32 s{self.sWO}, s{self.sWO}, s{T0}")
        a(f"s_lshl_b32 s{self.sM0X}, s{S_W}, 11")
        a(f"s_mov_b32 s{self.sSLOT}, 0")
        a(f"s_movk_i32 s{self.sI1}, 16384")
        a(f"s_movk_i32 s{self.sI2}, 15360")
        a(f"s_mov_b32 s{self.sSM}, 0x1ffff")
        a("v_lshrrev_b32 v1, 3, v0")
        a("v_lshrrev_b32 v2, 4, v0")
        a("v_and_b32 v3, 7, v0")
        a("v_xor_b32 v3, v3, v2")
        a(f"s_lshl_b32 s{T0}, s{S_W}, 4")
        a(f"v_add_u32 v4, s{T0}, v1")
        a("v_mul_u32_u24 v4, 1280, v4")
        a(f"v_lshl_add_u32 v{self.DXA}, v3, 4, v4")
        a(f"v_xor_b32 v{self.DXB}, 64, v{self.DXA}")
        a(f"v_add_u32 v{self.DXB}, 10240, v{self.DXB}")
        a("v_lshlrev_b32 v3, 2, v2")
        a("v_and_b32 v4, 15, v0")
        a("v_xor_b32 v3, v3, v4")
        a(f"s_lshl_b32 s{T0}, s{S_W}, 3")
        a(f"v_add_u32 v4, s{T0}, v2")
        a("v_mul_u32_u24 v4, 3840, v4")
        a(f"v_lshl_add_u32 v{self.DW}, v3, 4, v4")
        a("s_waitcnt lgkmcnt(0)")
        self.srd(SRD_X, S_PTR + 0, 2048 * 1280)
        self.srd(SRD_WQ, S_PTR + 2, 640 * 3840)
        a(f"s_cmp_eq_u32 s{self.sCT}, 15")
        a("s_cbranch_scc1 L_p1_noissue")
        self.p1_issue()
        self.p1_issue((0,))
        a.label("L_p1_noissue")
        self.stamp(1)
        self.srd(SRD_WS, S_PTR + 16, WS_SIZE + ((1 << 20) if self.o.get("stamps") else 0))
        self.srd(SRD_OUT, S_PTR + 12, 2048 * 1280)
        self.srd(SRD_DBG, S_PTR + 14, 256)
        if self.o.get("cpf", "1") == "1":
            Lc = a.newlabel("cpf")
            a(f"s_cmp_lg_u32 s{S_W}, 7")
            a(f"s_cbranch_scc1 {Lc}")
            a(f"s_getpc_b64 s[{T4}:{T5}]")
            a.label("L_pc_here")
            a(f"s_mul_i32 s{T0}, s{S_J}, {self.CPF_LINES*128}")
            a(f"s_sub_u32 s{T0}, s{T0}, L_pc_here-{NAME}_kernel")
            a(f"v_min_u32 v3, {self.CPF_LINES-1}, v0")
            a(f"v_lshl_add_u32 v3, v3, 7, s{T0}")
            a("v_ashrrev_i32 v5, 31, v3")
            a(f"v_mov_b32 v6, s{T5}")
            a(f"v_add_co_u32 v4, vcc, s{T4}, v3")
            a("s_nop 1")
            a("v_addc_co_u32 v5, vcc, v5, v6, vcc")
            a("global_load_dword v254, v[4:5], off")
            a.label(Lc)
        a(f"s_or_b32 s{T0}, s{S_G}, s{S_W}")
        a("s_cbranch_scc1 L_nonce_done")
        a("v_mov_b32 v3, 0")
        a(f"v_mov_b32 v4, s{S_NONCE}")
        a(f"v_mov_b32 v5, s{S_NONCE+1}")
        a("s_mov_b64 exec, 1")
        a(f"buffer_store_dwordx2 v[4:5], v3, s[{SRD_DBG}:{SRD_DBG+3}], 0 offen sc1")
        a("s_mov_b64 exec, -1")
        a.label("L_nonce_done")

    def relayout_setup(self):
        a = self.a
        R = self.sRL
        u = a.newlabel("u")
        sID, sKS, sCB, sST, sA, sB, sCc, sD = T0, T1, T2, T3, 93, 94, 95, 96
        sBase, sSl, sKsS = 97, 98, 99
        a(f"s_mul_i32 s{sID}, s{S_G}, 5")
        a(f"s_add_u32 s{sID}, s{sID}, s{S_W}")
        a(f"s_sub_u32 s{sID}, s{sID}, 1")
        a(f"s_min_u32 s{sID}, s{sID}, 1279")
        a(f"s_mov_b32 s{sA}, 16")
        a(f"s_mov_b32 s{sB}, 8")
        a(f"s_mov_b32 s{sCc}, 4")
        a(f"s_mov_b32 s{SRD_RL+3}, 0x20000")
        a(f"s_mov_b32 s{R+8}, -1")
        a(f"s_cmp_lt_u32 s{sID}, 200")
        a(f"s_cbranch_scc1 L_rl_wo{u}")
        a(f"s_cmp_lt_u32 s{sID}, 740")
        a(f"s_cbranch_scc1 L_rl_w1{u}")
        a(f"s_sub_u32 s{sID}, s{sID}, 740")
        a(f"s_mul_i32 s{sKS}, s{sID}, 6554")
        a(f"s_lshr_b32 s{sKS}, s{sKS}, 16")
        a(f"s_mul_i32 s{sCB}, s{sKS}, 10")
        a(f"s_sub_u32 s{sCB}, s{sID}, s{sCB}")
        a(f"s_lshl_b32 s{sD}, s{sKS}, 5")
        a(f"s_mov_b32 s{SRD_RL}, s{S_PTR+10}")
        a(f"s_and_b32 s{SRD_RL+1}, s{S_PTR+11}, 0xffff")
        a(f"s_mov_b32 s{SRD_RL+2}, {1728*1280}")
        a(f"s_mov_b32 s{sBase}, {WS_W2}")
        a(f"s_mov_b32 s{sSl}, {54*5120}")
        a(f"s_branch L_rl_n640{u}")
        a.label(f"L_rl_wo{u}")
        a(f"s_mul_i32 s{sKS}, s{sID}, 6554")
        a(f"s_lshr_b32 s{sKS}, s{sKS}, 16")
        a(f"s_mul_i32 s{sCB}, s{sKS}, 10")
        a(f"s_sub_u32 s{sCB}, s{sID}, s{sCB}")
        a(f"s_mul_i32 s{sD}, s{sKS}, 40")
        a(f"s_mul_i32 s{sST}, s{sKS}, 160")
        a(f"s_sub_u32 s{sST}, s{sST}, {160*16-16}")
        a(f"s_cmp_lt_u32 s{sKS}, 16")
        a(f"s_cselect_b32 s{sD}, s{sD}, s{sST}")
        a(f"s_cselect_b32 s{sA}, 8, 20")
        a(f"s_cselect_b32 s{sB}, 20, 0x50")
        a(f"s_cselect_b32 s{sCc}, 4, 40")
        a(f"s_mov_b32 s{SRD_RL}, s{S_PTR+4}")
        a(f"s_and_b32 s{SRD_RL+1}, s{S_PTR+5}, 0xffff")
        a(f"s_mov_b32 s{SRD_RL+2}, {640*1280}")
        a(f"s_mov_b32 s{sBase}, {WS_WO}")
        a(f"s_mov_b32 s{sSl}, {20*5120}")
        a.label(f"L_rl_n640{u}")
        a(f"s_mov_b32 s{sST}, 1280")
        a(f"s_mul_i32 s{sKsS}, s{sKS}, 5120")
        a(f"s_add_u32 s{sBase}, s{sBase}, s{sKsS}")
        for t in range(4):
            a(f"s_lshl_b32 s{T4}, s{sCB}, 2")
            a(f"s_add_u32 s{T4}, s{T4}, {t}")
            a(f"s_mul_i32 s{T5}, s{T4}, 52")
            a(f"s_lshr_b32 s{T5}, s{T5}, 8")
            a(f"s_mul_i32 s{R+4+t}, s{T5}, s{sSl}")
            a(f"s_mul_i32 s{T5}, s{T5}, 5")
            a(f"s_sub_u32 s{T4}, s{T4}, s{T5}")
            a(f"s_lshl_b32 s{T4}, s{T4}, 10")
            a(f"s_add_u32 s{R+4+t}, s{R+4+t}, s{T4}")
            a(f"s_add_u32 s{R+4+t}, s{R+4+t}, s{sBase}")
        a(f"s_branch L_rl_common{u}")
        a.label(f"L_rl_w1{u}")
        a(f"s_sub_u32 s{sID}, s{sID}, 200")
        a(f"s_mul_i32 s{sKS}, s{sID}, 2428")
        a(f"s_lshr_b32 s{sKS}, s{sKS}, 16")
        a(f"s_mul_i32 s{sCB}, s{sKS}, 27")
        a(f"s_sub_u32 s{sCB}, s{sID}, s{sCB}")
        a(f"s_lshr_b32 s{T4}, s{sKS}, 1")
        a(f"s_mul_i32 s{T4}, s{T4}, 0x50")
        a(f"s_and_b32 s{T5}, s{sKS}, 1")
        a(f"s_lshl_b32 s{T5}, s{T5}, 5")
        a(f"s_add_u32 s{sD}, s{T4}, s{T5}")
        a(f"s_mul_i32 s{T4}, s{sKS}, 160")
        a(f"s_sub_u32 s{T4}, s{T4}, {160*16-64}")
        a(f"s_cmp_lt_u32 s{sKS}, 16")
        a(f"s_cselect_b32 s{sD}, s{sD}, s{T4}")
        a(f"s_cselect_b32 s{sA}, 16, 0x50")
        a(f"s_mov_b32 s{SRD_RL}, s{S_PTR+8}")
        a(f"s_and_b32 s{SRD_RL+1}, s{S_PTR+9}, 0xffff")
        a(f"s_mov_b32 s{SRD_RL+2}, {640*3456}")
        a(f"s_mov_b32 s{sST}, 3456")
        a(f"s_mul_i32 s{sKsS}, s{sKS}, 7168")
        a(f"s_add_u32 s{sBase}, s{sKsS}, {WS_W1}")
        a(f"s_mul_i32 s{R+8}, s{sKS}, {1728*4}")
        a(f"s_lshl_b32 s{T4}, s{sCB}, 8")
        a(f"s_add_u32 s{R+8}, s{R+8}, s{T4}")
        a(f"s_add_u32 s{R+8}, s{R+8}, {WS_CS1}")
        for t in range(4):
            a(f"s_lshl_b32 s{T4}, s{sCB}, 2")
            a(f"s_add_u32 s{T4}, s{T4}, {t}")
            a(f"s_mul_i32 s{T5}, s{T4}, 43")
            a(f"s_lshr_b32 s{T5}, s{T5}, 8")
            a(f"s_mul_i32 s{sSl}, s{T5}, 6")
            a(f"s_sub_u32 s{sSl}, s{T4}, s{sSl}")
            a(f"s_sub_u32 s{sKsS}, s{T4}, 96")
            a(f"s_cmp_lt_u32 s{T4}, 96")
            a(f"s_cselect_b32 s{T5}, s{T5}, s{sKsS}")
            a(f"s_cselect_b32 s{sSl}, s{sSl}, 6")
            a(f"s_mul_i32 s{R+4+t}, s{T5}, {20*7168}")
            a(f"s_lshl_b32 s{sSl}, s{sSl}, 10")
            a(f"s_add_u32 s{R+4+t}, s{R+4+t}, s{sSl}")
            a(f"s_add_u32 s{R+4+t}, s{R+4+t}, s{sBase}")
        a.label(f"L_rl_common{u}")
        a(f"s_mul_i32 s{sD}, s{sD}, s{sST}")
        a(f"s_lshl_b32 s{T4}, s{sCB}, 7")
        a(f"s_add_u32 s{R}, s{sD}, s{T4}")
        a(f"s_mul_i32 s{sA}, s{sA}, s{sST}")
        a(f"s_mul_i32 s{sB}, s{sB}, s{sST}")
        a(f"s_add_u32 s{R+1}, s{R}, s{sB}")
        a(f"s_add_u32 s{R+2}, s{R}, s{sA}")
        a(f"s_add_u32 s{R+3}, s{R+2}, s{sB}")
        a("v_lshrrev_b32 v1, 5, v0")
        a(f"v_mul_u32_u24 v1, s{sCc}, v1")
        a("v_bfe_u32 v2, v0, 3, 2")
        a("v_add_u32 v1, v1, v2")
        a(f"v_mul_u32_u24 v1, s{sST}, v1")
        a("v_and_b32 v2, 7, v0")
        a(f"v_lshl_add_u32 v{self.RLV}, v2, 4, v1")
        a("v_lshrrev_b32 v1, 2, v0")
        a("v_lshlrev_b32 v1, 7, v1")
        a("v_and_b32 v2, 3, v0")
        a("v_lshl_add_u32 v1, v2, 3, v1")
        a(f"s_lshl_b32 s{T4}, s{S_W}, 12")
        a(f"s_add_u32 s{T4}, s{T4}, {self.RL_SCR-4096}")
        a(f"v_add_u32 v{self.RLA}, s{T4}, v1")

    def relayout_issue(self):
        a = self.a
        L = a.newlabel("rlsk")
        a(f"s_sub_u32 s{T0}, s{S_W}, 1")
        a(f"s_cmp_ge_u32 s{T0}, 5")
        a(f"s_cbranch_scc1 {L}")
        a(f"s_lshl_b32 s{T0}, s{S_W}, 12")
        a(f"s_add_u32 m0, s{T0}, {self.RL_SCR-4096}")
        for i in range(4):
            if i: a("s_add_u32 m0, m0, 1024")
            a("s_nop 0")
            self.dma(self.RLV, SRD_RL, f"s{self.sRL+i}")
        a.label(L)

    def relayout_finish(self):
        a = self.a
        L = a.newlabel("rlsk"); F = 168; t = 184
        a(f"s_sub_u32 s{T0}, s{S_W}, 1")
        a(f"s_cmp_ge_u32 s{T0}, 5")
        a(f"s_cbranch_scc1 {L}")
        for q in range(4):
            for rd in range(2):
                a(f"ds_read_b64_tr_b16 v[{F+4*q+2*rd}:{F+4*q+2*rd+1}], v{self.RLA} offset:{rd*2048+q*32}")
        a(f"v_lshlrev_b32 v{t}, 4, v0")
        for q in range(4):
            a(f"s_waitcnt lgkmcnt({6-2*q})")
            a(f"buffer_store_dwordx4 v[{F+4*q}:{F+4*q+3}], v{t}, s[{SRD_WS}:{SRD_WS+3}], s{self.sRL+4+q} offen sc1")
        a(f"s_cmp_eq_u32 s{self.sRL+8}, -1")
        a(f"s_cbranch_scc1 {L}")
        for q in range(4): a(f"v_mov_b32 v{t+2+q}, 0")
        a(f"v_mov_b32 v{t+6}, 0x3f803f80")
        for k in range(4):
            for q in range(4): a(f"v_dot2_f32_bf16 v{t+2+q}, v{F+4*q+k}, v{t+6}, v{t+2+q}")
        a(f"v_lshlrev_b32 v{t+1}, 2, v0")
        a("s_nop 1")
        a(f"v_permlane16_swap_b32 v{t+2}, v{t+3}")
        a(f"v_permlane16_swap_b32 v{t+4}, v{t+5}")
        a("s_nop 0")
        a(f"v_add_f32 v{t+2}, v{t+2}, v{t+3}")
        a(f"v_add_f32 v{t+4}, v{t+4}, v{t+5}")
        a("s_nop 1")
        a(f"v_permlane32_swap_b32 v{t+2}, v{t+4}")
        a("s_nop 0")
        a(f"v_add_f32 v{t+2}, v{t+2}, v{t+4}")
        a(f"buffer_store_dword v{t+2}, v{t+1}, s[{SRD_WS}:{SRD_WS+3}], s{self.sRL+8} offen sc1")
        a.label(L)

    def p1_setup_b(self):
        a = self.a
        a(f"s_and_b32 s{self.sTG}, s{S_W}, 3")
        a(f"s_lshr_b32 s{self.sNH}, s{S_W}, 2")
        a(f"s_cmp_ge_u32 s{self.sCT}, 5")
        a(f"s_cselect_b32 s{T0}, 5, 0")
        a(f"s_sub_u32 s{T0}, s{self.sCT}, s{T0}")
        a(f"s_lshl_b32 s{T0}, s{T0}, 1")
        a(f"s_add_u32 s{T0}, s{T0}, s{self.sNH}")
        for idx in range(10):
            a(f"s_cmp_eq_u32 s{T0}, {idx}")
            a(f"s_cbranch_scc1 L_tab{idx}")
        a(f"s_mul_i32 s{T1}, s{self.sNH}, 0x10101010")
        for k in range(4): a(f"s_add_u32 s{self.sTAB+k}, s{T1}, 0x%08x" % (0x03020100 + 0x04040404 * k))
        a(f"s_mov_b32 s{self.sTAB+4}, 0")
        a(f"s_mov_b32 s{self.sTAB+5}, 0")
        a("s_branch L_tabdone")
        for idx in range(10):
            a.label(f"L_tab{idx}")
            for k, d in enumerate(p1_table(idx // 2, idx % 2)): a(f"s_mov_b32 s{self.sTAB+k}, 0x%08x" % d)
            if idx < 9: a("s_branch L_tabdone")
        a.label("L_tabdone")
        a("v_and_b32 v1, 31, v0")
        a(f"s_lshl_b32 s{T0}, s{self.sTG}, 5")
        a(f"v_add_u32 v2, s{T0}, v1")
        a("v_bfe_u32 v3, v2, 1, 3")
        a("v_lshrrev_b32 v4, 5, v0")
        a("v_xor_b32 v3, v3, v4")
        a("v_lshlrev_b32 v3, 4, v3")
        a(f"v_lshl_add_u32 v{self.XA}, v2, 7, v3")
        a(f"s_xor_b32 s{T3}, s{self.sTG}, s{self.sNH}")
        a(f"s_lshl_b32 s{T0}, s{T3}, 5")
        a(f"v_xor_b32 v{self.XA}, s{T0}, v{self.XA}")
        for ks in range(1, 4): a(f"v_xor_b32 v{self.XA+ks}, {ks<<5}, v{self.XA}")
        a("v_bfe_u32 v5, v0, 2, 2")
        a("v_lshl_add_u32 v6, v4, 3, v5")
        a("v_lshlrev_b32 v6, 8, v6")
        a("v_and_b32 v7, 3, v0")
        a("v_lshlrev_b32 v7, 3, v7")
        a("v_and_b32 v8, 16, v0")
        a("v_cmp_ne_u32 vcc, 0, v8")
        for i in range(2):
            a(f"v_mov_b32 v8, s{self.sTAB+2*i}")
            a(f"v_mov_b32 v9, s{self.sTAB+2*i+1}")
            a("v_cndmask_b32 v8, v8, v9, vcc")
            a("v_bfe_u32 v8, v8, v7, 8")
            a("v_lshlrev_b32 v8, 3, v8")
            a("v_lshlrev_b32 v9, 6, v5")
            a("v_xor_b32 v8, v8, v9")
            a(f"v_add_u32 v8, v6, v8")
            a(f"s_lshl_b32 s{T0}, s{T3}, 12")
            a(f"v_add_u32 v{self.WA+4*i}, s{T0}, v8")
            for j in range(1, 4): a(f"v_xor_b32 v{self.WA+4*i+j}, {j<<12}, v{self.WA+4*i}")
        a(f"s_lshl_b32 s{T0}, s{self.sRB}, 2")
        a(f"s_add_u32 s{T0}, s{T0}, s{self.sTG}")
        a(f"s_lshl_b32 s{T1}, s{T0}, 9")
        a(f"s_add_u32 s{T1}, s{T1}, {WS_RS}")
        a(f"v_lshl_add_u32 v{self.RSA}, v1, 4, s{T1}")
        a(f"s_cmp_ge_u32 s{self.sCT}, 10")
        a("s_cbranch_scc1 L_p1_vaddr")
        a(f"s_lshl_b32 s{T0}, s{T0}, 9")
        a(f"s_cmp_ge_u32 s{self.sCT}, 5")
        a(f"s_cselect_b32 s{T1}, {WS_K}, {WS_Q}")
        a(f"s_add_u32 s{T0}, s{T0}, s{T1}")
        a(f"v_lshl_add_u32 v2, v1, 4, s{T0}")
        a("v_lshlrev_b32 v3, 3, v4")
        a("v_add_u32 v5, 16, v3")
        for i in range(2):
            for qq in range(2):
                a(f"v_bfe_u32 v6, s{self.sTAB+4+i}, v{3 if qq == 0 else 5}, 8")
                a(f"v_lshl_add_u32 v{self.STA+2*i+qq}, v6, 15, v2")
        a("s_branch L_p1_addrdone")
        a.label("L_p1_vaddr")
        a(f"s_mul_i32 s{T0}, s{T0}, 1280")
        a(f"s_add_u32 s{T0}, s{T0}, {WS_V}")
        a(f"s_lshl_b32 s{T1}, s{self.sCT}, 7")
        a(f"s_lshl_b32 s{T2}, s{self.sNH}, 6")
        a(f"s_add_u32 s{T1}, s{T1}, s{T2}")
        a(f"s_sub_u32 s{T1}, s{T1}, 1280")
        a(f"v_mov_b32 v{self.STA+2}, 0")
        a(f"v_mov_b32 v{self.STA+3}, 0")
        a("v_mul_u32_u24 v3, 320, v4")
        a(f"v_add_u32 v3, s{T0}, v3")
        a(f"s_mov_b32 s{T2}, 81920")
        for i in range(2):
            a(f"v_add_u32 v5, s{T1}, v1")
            if i: a("v_add_u32 v5, 32, v5")
            a("v_mul_u32_u24 v6, 3277, v5")
            a("v_lshrrev_b32 v6, 16, v6")
            a("v_mul_u32_u24 v7, 20, v6")
            a("v_sub_u32 v5, v5, v7")
            a("v_lshl_add_u32 v5, v5, 4, v3")
            a(f"v_mad_u32_u24 v{self.STA+i}, v6, s{T2}, v5")
        a.label("L_p1_addrdone")
        for r in range(32): a(f"v_mov_b32 v{self.ACC+r}, 0")
        a(f"s_mul_i32 s{T0}, s{self.sCT}, 10240")
        a(f"s_lshl_b32 s{T1}, s{self.sNH}, 9")
        a(f"s_add_u32 s{T0}, s{T0}, s{T1}")
        a(f"s_add_u32 s{T0}, s{T0}, {WS_CQ}")
        a(f"v_lshl_add_u32 v{self.CQA}, v0, 3, s{T0}")
        a(f"s_mov_b32 s{self.sSIDE}, 0x81")
        a(f"v_mov_b32 v{self.VXM}, 0x8000")
        a(f"s_mov_b32 s{self.sCNT}, 0")

    def p1_loop(self, vmode):
        a = self.a
        tag = "v" if vmode else "q"
        a(f"s_cmp_lg_u32 s{self.sNH}, 0")
        a(f"s_cbranch_scc1 L_p1_B{tag}")
        self.p1_loop1(vmode, 0)
        a(f"s_branch L_p1_E{tag}")
        a.label(f"L_p1_B{tag}")
        self.p1_loop1(vmode, 1)
        a.label(f"L_p1_E{tag}")

    def p1_loop1(self, vmode, B):
        a = self.a
        L = a.newlabel("p1loop")
        pos = self.o.get("barB" if B else "barA", "1" if B else "0")
        def reads(ks):
            if self.o.get("nolds"): return
            a(f"ds_read_b128 v[{self.XF+4*ks}:{self.XF+4*ks+3}], v{self.XA+ks}")
            for i in range(2):
                for rd in range(2):
                    d = self.WF + 8 * ks + 4 * i + 2 * rd
                    a(f"ds_read_b64_tr_b16 v[{d}:{d+1}], v{self.WA+4*i+ks} offset:{16384+rd*1024}")
        def xors(ks):
            for r in (self.XA + ks, self.WA + ks, self.WA + 4 + ks): a(f"v_xor_b32 v{r}, v{self.VXM}, v{r}")
            if ks == 3: a(f"v_xor_b32 v{self.VXM}, 0x10000, v{self.VXM}")
        def bar():
            a("s_waitcnt vmcnt(4)")
            if not self.o.get("nobar"): a("s_barrier")
            if self.o.get("its") == "1": self.stamp_dyn(48, self.sCNT)
        def mf(ks, i):
            x = vr(self.XF + 4 * ks, 4); wv = vr(self.WF + 8 * ks + 4 * i, 4); acc = vr(self.ACC + 16 * i, 16)
            if self.o.get("nomfma"): pass
            elif vmode: a(f"v_mfma_f32_32x32x16_bf16 {acc}, {x}, {wv}, {acc}")
            else: a(f"v_mfma_f32_32x32x16_bf16 {acc}, {wv}, {x}, {acc}")
        def comp(ks):
            n = (ks + 2) % 4
            if ks == 2 and pos == "0": bar()
            a("s_waitcnt lgkmcnt(5)")
            mf(ks, 0)
            if ks == 2 and pos == "1": bar()
            if ks == 2 and pos == "2":
                mf(ks, 1); bar(); reads(n)
            else:
                reads(n); mf(ks, 1)
            xors(n)
            self.p1_issue((n,))
            if n == 3:
                Lp = a.newlabel("pre"); Lpb = a.newlabel("preb")
                self._pre = (Lp, Lpb)
                a(f"s_cmp_ge_u32 s{self.sCNT}, 7")
                a(f"s_cbranch_scc1 {Lp}")
                a.label(Lpb)
        a("v_mov_b32 v1, 0")
        a(f"buffer_load_dwordx2 v[{self.VN}:{self.VN+1}], v1, s[{SRD_DBG}:{SRD_DBG+3}], 0 offen sc1")
        self.p1_issue((1, 2, 3))
        self.p1_issue((0, 1))
        a("s_waitcnt vmcnt(7)")
        a("s_barrier")
        self.stamp(3)
        reads(0); reads(1); xors(0); xors(1)
        a("v_mov_b32 v6, 0x3f803f80")
        a("v_mov_b32 v2, 0")
        a("v_mov_b32 v3, 0")
        a(f"s_lshl_b32 s{T0}, s{self.sNH}, 8")
        a(f"s_lshl_b32 s{T1}, s{self.sTG}, 9")
        a(f"s_add_u32 s{T0}, s{T0}, {self.P1_MISC}")
        a(f"s_add_u32 s{T1}, s{T1}, s{T0}")
        a(f"v_lshl_add_u32 v4, v0, 2, s{T1}")
        a(f"v_lshl_add_u32 v95, v0, 2, s{T0}")
        a("s_waitcnt lgkmcnt(5)")
        for k in range(4):
            for i in range(2): a(f"v_dot2_f32_bf16 v{2+i}, v{self.WF+4*i+k}, v6, v{2+i}")
        a("s_nop 2")
        a("v_permlane32_swap_b32 v2, v3")
        a("s_nop 0")
        a("v_add_f32 v2, v2, v3")
        a("ds_write_b32 v4, v2")
        a("s_waitcnt lgkmcnt(0)")
        a.align(6)
        a.label(L)
        comp(0); comp(1); comp(2)
        Lr = a.newlabel("back"); Ls = a.newlabel("side")
        a(f"s_bitcmp1_b32 s{self.sSIDE}, s{self.sCNT}")
        a(f"s_cbranch_scc1 {Ls}")
        a.label(Lr)
        comp(3)
        a(f"s_add_u32 s{self.sCNT}, s{self.sCNT}, 1")
        a(f"s_cmp_lt_u32 s{self.sCNT}, 10")
        a(f"s_cbranch_scc1 {L}")
        Le = a.newlabel("lend"); L8 = a.newlabel("side8")
        a(f"s_branch {Le}")
        a.label(Ls)
        a(f"s_cmp_lg_u32 s{self.sCNT}, 0")
        a(f"s_cbranch_scc1 {L8}")
        self.nonce_get()
        a(f"s_cmp_lg_u32 s{self.sTG}, 0")
        a(f"s_cbranch_scc1 {Lr}")
        for k in range(4): a(f"ds_read_b32 v{2+k}, v95 offset:{512*k}")
        a(f"s_lshl_b32 s{T0}, s{self.sKC0}, 10")
        a("s_waitcnt lgkmcnt(0)")
        a("v_add_f32 v2, v2, v3")
        a("v_add_f32 v4, v4, v5")
        a(f"v_mov_b32 v3, s{S_NONCE}")
        a("v_add_f32 v2, v2, v4")
        a(f"buffer_store_dwordx2 v[2:3], v{self.CQA}, s[{SRD_WS}:{SRD_WS+3}], s{T0} offen sc1")
        a(f"s_branch {Lr}")
        a.label(L8)
        a(f"buffer_load_dwordx4 v[{self.RS}:{self.RS+3}], v{self.RSA}, s[{SRD_WS}:{SRD_WS+3}], 0 offen sc1")
        a(f"s_mov_b32 s{T2}, m0")
        a(f"s_mul_i32 s{T0}, s{self.sCT}, 10240")
        a(f"s_lshl_b32 s{T1}, s{S_W}, 10")
        a(f"s_add_u32 s{T0}, s{T0}, s{T1}")
        a(f"s_add_u32 s{T0}, s{T0}, {WS_CQ}")
        a(f"s_add_u32 m0, s{T1}, {self.CQ_SCR}")
        a("v_lshlrev_b32 v1, 4, v0")
        self.dma(1, SRD_WS, f"s{T0}", "sc1")
        a(f"s_add_u32 s{T0}, s{T0}, 8192")
        a("s_add_u32 m0, m0, 8192")
        a(f"s_cmp_ge_u32 s{S_W}, 2")
        a(f"s_cselect_b32 s{T0}, 0x7f000000, s{T0}")
        self.dma(1, SRD_WS, f"s{T0}", "sc1")
        a(f"s_mov_b32 m0, s{T2}")
        a(f"s_branch {Lr}")
        Lp, Lpb = self._pre
        a.label(Lp)
        a(f"s_mov_b32 s{self.sXO}, 0x7f000000")
        a(f"s_mov_b32 s{self.sWO}, 0x7f000000")
        a(f"s_mov_b32 s{self.sM0X}, {self.DUMMY}")
        a(f"s_mov_b32 s{self.sI1}, 0")
        a(f"s_mov_b32 s{self.sI2}, 0")
        a(f"s_mov_b32 s{self.sSM}, 0")
        a(f"s_mov_b32 s{self.sSLOT}, 0")
        a(f"s_cmp_lg_u32 s{self.sCNT}, 9")
        a(f"s_cbranch_scc1 {Lpb}")
        self.relayout_issue()
        a(f"s_branch {Lpb}")
        a.label(Le)

    def p1_gather(self):
        a = self.a
        a(f"buffer_load_dwordx4 v[{self.RS}:{self.RS+3}], v{self.RSA}, s[{SRD_WS}:{SRD_WS+3}], 0 offen sc1")
        a(f"s_movk_i32 s{T0}, 0x1000")
        a(f"s_movk_i32 s{T1}, 0x2000")
        for k in range(10):
            so = ("0", f"s{T0}", f"s{T1}")[k // 4]
            a(f"buffer_load_dwordx2 v[{self.CQ+2*k}:{self.CQ+2*k+1}], v{self.CQA}, s[{SRD_WS}:{SRD_WS+3}], {so} offen offset:{1024*(k%4)} sc1")

    def p1_epi_common(self):
        a = self.a
        self.stamp(4)
        a(f"s_lshl_b32 s{T2}, s{S_W}, 9")
        a(f"s_add_u32 s{T2}, s{T2}, {self.P1_MISC+4096}")
        a(f"v_lshl_add_u32 v6, v0, 2, s{T2}")
        a("v_and_b32 v5, 31, v0")
        L = a.newlabel("rs"); Ld = a.newlabel("rsd")
        a(f"s_mov_b32 s{S_SPIN}, 0")
        a(f"s_lshl_b32 s{T0}, s{self.sNH}, 9")
        a(f"s_add_u32 s{T0}, s{T0}, {self.CQ_SCR}")
        a(f"v_lshl_add_u32 v1, v0, 3, s{T0}")
        for k in range(10): a(f"ds_read_b64 v[{self.CQ+2*k}:{self.CQ+2*k+1}], v1 offset:{1024*k}")
        a("s_waitcnt lgkmcnt(0)")
        a.label(L)
        a(f"v_xor_b32 v2, s{S_NONCE}, v{self.RS+1}")
        a(f"v_xor_b32 v3, s{S_NONCE}, v{self.RS+3}")
        for k in range(0, 10, 2):
            a(f"v_xor_b32 v4, s{S_NONCE}, v{self.CQ+2*k+1}")
            a(f"v_xor_b32 v7, s{S_NONCE}, v{self.CQ+2*k+3}")
            a("v_or3_b32 v2, v2, v4, v7")
        a("v_or_b32 v2, v2, v3")
        a("v_cmp_ne_u32 vcc, 0, v2")
        a(f"s_add_u32 s{S_SPIN}, s{S_SPIN}, 1")
        a("s_or_b64 vcc, vcc, vcc")
        a(f"s_cbranch_scc0 {Ld}")
        a(f"s_cmp_ge_u32 s{S_SPIN}, {SPIN_MAX}")
        a(f"s_cbranch_scc1 {Ld}")
        self.p1_gather()
        a("s_waitcnt vmcnt(0)")
        a(f"s_branch {L}")
        a.label(Ld)
        Q = self.CQ
        a(f"v_add_f32 v12, v{Q}, v{Q+2}")
        a(f"v_add_f32 v13, v{Q+4}, v{Q+6}")
        a(f"v_add_f32 v14, v{Q+8}, v{Q+10}")
        a(f"v_add_f32 v15, v{Q+12}, v{Q+14}")
        a(f"v_add_f32 v2, v{Q+16}, v{Q+18}")
        a("v_add_f32 v12, v12, v13")
        a("v_add_f32 v14, v14, v15")
        a("v_add_f32 v12, v12, v2")
        a("v_add_f32 v12, v12, v14")

    def rowstats(self):
        a = self.a
        X = 100
        a("v_lshrrev_b32 v1, 3, v0")
        a(f"s_lshl_b32 s{T0}, s{S_W}, 4")
        a(f"s_lshl_b32 s{T1}, s{self.sRB}, 7")
        a(f"s_add_u32 s{T0}, s{T0}, s{T1}")
        a(f"v_add_u32 v1, s{T0}, v1")
        a("v_mul_u32_u24 v2, 1280, v1")
        a("v_and_b32 v3, 7, v0")
        a("v_lshl_add_u32 v2, v3, 4, v2")
        a(f"s_mov_b32 s{T0}, 10240")
        a("v_mov_b32 v3, 0")
        a(f"buffer_load_dwordx2 v[{self.VN}:{self.VN+1}], v3, s[{SRD_DBG}:{SRD_DBG+3}], 0 offen sc1")
        for k in range(10):
            for hh in range(2):
                r = X + 8 * k + 4 * hh
                a(f"buffer_load_dwordx4 v[{r}:{r+3}], v2, s[{SRD_X}:{SRD_X+3}], {'s%d' % T0 if hh else '0'} offen offset:{128*k}")
        for r in range(4, 8): a(f"v_mov_b32 v{r}, 0")
        a("v_mov_b32 v8, 0x3f803f80")
        for k in range(10):
            a(f"s_waitcnt vmcnt({18-2*k})")
            for e in range(4):
                for hh in range(2):
                    r = X + 8 * k + 4 * hh + e
                    a(f"v_dot2_f32_bf16 v{4+hh}, v{r}, v8, v{4+hh}")
                    a(f"v_dot2_f32_bf16 v{6+hh}, v{r}, v{r}, v{6+hh}")
        a("s_nop 2")
        for ctl in ("quad_perm:[1,0,3,2]", "quad_perm:[2,3,0,1]", "row_half_mirror"):
            for r in range(4, 8): a(f"v_add_f32_dpp v{r}, v{r}, v{r} {ctl} row_mask:0xf bank_mask:0xf")
        self.nonce_get()
        a("v_and_b32 v3, 1, v0")
        a("v_cmp_ne_u32 vcc, 0, v3")
        a("v_lshlrev_b32 v3, 3, v3")
        a("v_add_u32 v1, v1, v3")
        a("v_cndmask_b32 v4, v4, v5, vcc")
        a("v_cndmask_b32 v6, v6, v7, vcc")
        a(f"v_mul_f32 v4, 0x%08x, v4" % f2u(1.0 / 640))
        a("v_mul_f32 v5, v4, v4")
        a(f"v_mov_b32 v7, 0x%08x" % f2u(1.0 / 640))
        a("v_fma_f32 v5, v6, v7, -v5")
        a("v_max_f32 v5, 0, v5")
        a(f"v_add_f32 v5, 0x%08x, v5" % f2u(1e-5))
        a("v_rsq_f32 v8, v5")
        a(f"v_mov_b32 v9, s{S_NONCE}")
        a(f"v_mov_b32 v11, s{S_NONCE}")
        a("v_mul_f32 v10, v4, v8")
        a("v_lshlrev_b32 v1, 4, v1")
        a(f"s_mov_b32 s{T0}, {WS_RS}")
        a("s_mov_b32 exec_lo, 0x03030303")
        a("s_mov_b32 exec_hi, 0x03030303")
        a(f"buffer_store_dwordx4 v[8:11], v1, s[{SRD_WS}:{SRD_WS+3}], s{T0} offen sc1")
        a("s_mov_b64 exec, -1")

    def p1_epi_q(self):
        a = self.a
        self.p1_epi_common()
        qs = math.log2(math.e) / math.sqrt(20.0)
        a("ds_write_b32 v6, v12")
        a("v_lshrrev_b32 v1, 5, v0")
        a(f"v_lshl_add_u32 v1, v1, 4, s{T2}")
        C = 48
        for i in range(2):
            for q4 in range(4):
                a(f"ds_read_b128 v[{C+16*i+4*q4}:{C+16*i+4*q4+3}], v1 offset:{i*128+q4*32}")
        a(f"s_cmp_lt_u32 s{self.sCT}, 5")
        a(f"s_cselect_b32 s{T1}, 0x%08x, 1.0" % f2u(qs))
        a(f"v_mul_f32 v2, s{T1}, v{self.RS}")
        a(f"v_mul_f32 v3, s{T1}, v{self.RS+2}")
        for i in range(2):
            for qq in range(2):
                a(f"s_waitcnt lgkmcnt({6-4*i-2*qq})")
                b = 16 * i + 8 * qq
                for r in range(8): a(f"v_mul_f32 v{self.ACC+b+r}, v2, v{self.ACC+b+r}")
                for r in range(8): a(f"v_fma_f32 v{self.ACC+b+r}, -v3, v{C+b+r}, v{self.ACC+b+r}")
                o = 4 + 4 * ((2 * i + qq) % 2)
                for r in range(4): a(f"v_cvt_pk_bf16_f32 v{o+r}, v{self.ACC+b+2*r}, v{self.ACC+b+2*r+1}")
                a(f"buffer_store_dwordx4 v[{o}:{o+3}], v{self.STA+2*i+qq}, s[{SRD_WS}:{SRD_WS+3}], 0 offen sc1")

    def p1_epi_v(self):
        a = self.a
        self.p1_epi_common()
        a("v_mov_b32 v13, v12")
        a(f"v_lshl_add_u32 v6, v5, 2, s{T2}")
        a("v_lshrrev_b32 v1, 5, v0")
        a("v_permlane32_swap_b32 v12, v13")
        a(f"ds_write_b32 v6, v{self.RS}")
        a(f"ds_write_b32 v6, v{self.RS+2} offset:128")
        a(f"v_lshl_add_u32 v6, v1, 4, s{T2}")
        C = 48
        for q4 in range(4):
            a(f"ds_read_b128 v[{C+4*q4}:{C+4*q4+3}], v6 offset:{q4*32}")
            a(f"ds_read_b128 v[{C+16+4*q4}:{C+16+4*q4+3}], v6 offset:{128+q4*32}")
        for grp in range(2):
            a(f"s_waitcnt lgkmcnt({4-4*grp})")
            for i in range(2):
                b = 16 * i + 8 * grp
                for r in range(8): a(f"v_mul_f32 v{self.ACC+b+r}, v{C+8*grp+r}, v{self.ACC+b+r}")
                for r in range(8): a(f"v_fma_f32 v{self.ACC+b+r}, -v{C+16+8*grp+r}, v{12+i}, v{self.ACC+b+r}")
                o = 4 + 4 * i
                for r in range(4): a(f"v_cvt_pk_bf16_f32 v{o+r}, v{self.ACC+b+2*r}, v{self.ACC+b+2*r+1}")
                a(f"buffer_store_dwordx4 v[{o}:{o+3}], v{self.STA+i}, s[{SRD_WS}:{SRD_WS+3}], 0 offen offset:{640*grp} sc1")

    def nonce_get(self):
        a = self.a
        a(f"s_mov_b32 s{S_SPIN}, 0")
        Lc = a.newlabel("nchk"); Lo = a.newlabel("nok")
        a.label(Lc)
        a(f"v_readfirstlane_b32 s{S_NONCE}, v{self.VN}")
        a(f"v_readfirstlane_b32 s{S_NONCE+1}, v{self.VN+1}")
        a(f"s_add_u32 s{S_SPIN}, s{S_SPIN}, 1")
        a(f"s_or_b32 s{T0}, s{S_NONCE}, s{S_NONCE+1}")
        a(f"s_cbranch_scc1 {Lo}")
        a(f"s_cmp_ge_u32 s{S_SPIN}, {SPIN_MAX}")
        a(f"s_cbranch_scc1 {Lo}")
        a("v_mov_b32 v94, 0")
        a(f"buffer_load_dwordx2 v[{self.VN}:{self.VN+1}], v94, s[{SRD_DBG}:{SRD_DBG+3}], 0 offen sc1")
        a("s_waitcnt vmcnt(0)")
        a(f"s_branch {Lc}")
        a.label(Lo)

    def phase1(self):
        a = self.a
        self.p1_setup_a()
        a(f"s_cmp_eq_u32 s{self.sCT}, 15")
        a("s_cbranch_scc0 L_p1_go")
        self.rowstats()
        self.relayout_setup()
        self.relayout_issue()
        a("s_branch L_p1_done")
        a.label("L_p1_go")
        self.p1_setup_b()
        self.relayout_setup()
        self.stamp(2)
        a(f"s_cmp_ge_u32 s{self.sCT}, 10")
        a("s_cbranch_scc1 L_p1_v")
        self.p1_loop(False)
        self.p1_epi_q()
        a("s_branch L_p1_done")
        a.label("L_p1_v")
        self.p1_loop(True)
        self.p1_epi_v()
        a.label("L_p1_done")
        self.stamp(5)
        a("s_waitcnt vmcnt(0)")
        self.stamp(6)
        a("s_barrier")
        a(f"s_lshl_b32 s{T0}, s{S_G}, 3")
        a(f"s_add_u32 s{T0}, s{T0}, {FL_1}")
        self.flag_store(T0, 2)
        self.stamp(7)
        self.relayout_finish()

    def build(self):
        a = self.a
        self.entry()
        self.phase1()
        if self.stop >= 2:
            from phases import phase2, phase3, phase4, phase5
            phase2(self)
            if self.stop >= 3: phase3(self)
            if self.stop >= 4: phase4(self)
            if self.stop >= 5: phase5(self)
        a("s_waitcnt vmcnt(0)")
        self.stamp(31)
        self.stamp_flush()
        a.label("L_end")
        a("s_endpgm")
        a.lines.append(".fill 256, 4, 0xbf810000")
        body = a.text()
        errs = check(body)
        if errs:
            sys.stderr.write("\n".join(errs[:40]) + "\n%d hazards\n" % len(errs))
            raise SystemExit(1)
        head = f"""; Fused preLN -> MHA -> residual -> preLN -> SiLU FFN -> residual, one persistent launch.
; @launch grid=(256,1,1) block=(512,1,1) lds={LDS_BYTES}
.amdgcn_target "amdgcn-amd-amdhsa--gfx950"
.text
.globl {NAME}_kernel
.p2align 8
.type {NAME}_kernel,@function
{NAME}_kernel:
"""
        tail = f""".section .rodata,"a"
.p2align 6
.amdhsa_kernel {NAME}_kernel
  .amdhsa_next_free_vgpr 256
  .amdhsa_next_free_sgpr 102
  .amdhsa_accum_offset 256
  .amdhsa_group_segment_fixed_size 0
  .amdhsa_kernarg_size 72
  .amdhsa_user_sgpr_count 2
  .amdhsa_user_sgpr_kernarg_segment_ptr 1
  .amdhsa_system_sgpr_workgroup_id_x 1
.end_amdhsa_kernel
"""
        return head + body + tail

if __name__ == "__main__":
    stop = int(sys.argv[2]) if len(sys.argv) > 2 else 99
    opts = dict(kv.split("=") for kv in sys.argv[3:])
    open(sys.argv[1], "w").write(K(stop, opts).build())
    import subprocess
    r = subprocess.run(["clang", "-x", "assembler", "-target", "amdgcn-amd-amdhsa", "-mcpu=gfx950", "-c", sys.argv[1], "-o", "_chk.o"], capture_output=True, text=True)
    if r.returncode: print(r.stderr[:1500]); raise SystemExit(1)
    r = subprocess.run(["llvm-readelf", "-S", "_chk.o"], capture_output=True, text=True)
    print(sys.argv[1], "text bytes:", int([l for l in r.stdout.split("\n") if ".text" in l][0].split()[6], 16))
```

```python
import sys, math
from asmlib import Asm, vr, sr, f2u, check
from tables import *

NAME = "sequential_preLN__mha_block__dense_activation_silu__prompt"
LDS_BYTES = 163840
SPIN_MAX = 20000

S_G = 2
SRD_X, SRD_WQ, SRD_WS, SRD_OUT, SRD_DBG, SRD_RL = 4, 8, 12, 16, 20, 24
S_W, S_C, S_J = 28, 29, 30
S_NONCE = 32
S_PTR = 36
T0, T1, T2, T3, T4, T5 = 54, 55, 56, 57, 58, 59
S_M1 = 60
S_SPIN = 62

class K:
    def __init__(self, stop_after=99, opts=None):
        self.a = Asm()
        self.stop = stop_after
        self.o = opts or {}

    def srd(self, d, ptr, nbytes):
        a = self.a
        a(f"s_mov_b32 s{d}, s{ptr}")
        a(f"s_and_b32 s{d+1}, s{ptr+1}, 0xffff")
        a(f"s_mov_b32 s{d+2}, {nbytes}")
        a(f"s_mov_b32 s{d+3}, 0x20000")

    def stamp(self, idx):
        if not self.o.get("stamps"): return
        a = self.a
        a("s_memrealtime s[100:101]")
        a("s_waitcnt lgkmcnt(0)")
        a(f"v_writelane_b32 v255, s100, {idx}")
        if idx < 16:
            a("s_memtime s[100:101]")
            a("s_waitcnt lgkmcnt(0)")
            a(f"v_writelane_b32 v255, s100, {idx+32}")

    def stamp_dyn(self, base, sreg):
        if not self.o.get("its"): return
        a = self.a
        a("s_memtime s[100:101]")
        a("s_mov_b32 s99, m0")
        a(f"s_add_u32 m0, s{sreg}, {base}")
        a("s_waitcnt lgkmcnt(0)")
        a("v_writelane_b32 v255, s100, m0")
        a("s_mov_b32 m0, s99")

    def stamp_flush(self):
        if not self.o.get("stamps"): return
        a = self.a
        if self.o.get("dbgwg"):
            L = a.newlabel("dbg")
            a(f"s_cmp_lg_u32 s{S_G}, {int(self.o['dbgwg'])}")
            a(f"s_cbranch_scc1 {L}")
            a(f"s_cmp_lg_u32 s{S_W}, 0")
            a(f"s_cbranch_scc1 {L}")
            a(f"v_readlane_b32 s{T1}, v255, 0")
            for n, i in enumerate((3, 4, 7, 8, 9, 10, 12, 13, 15, 16, 18, 19, 31)):
                a(f"v_readlane_b32 s{T0}, v255, {i}")
                a("s_nop 3")
                a(f"s_sub_u32 s{T0}, s{T0}, s{T1}")
                a(f"v_mov_b32 v1, s{T0}")
                a(f"v_mov_b32 v2, {8+4*n}")
                a(f"buffer_store_dword v1, v2, s[{SRD_DBG}:{SRD_DBG+3}], 0 offen")
            a.label(L)
            return
        a(f"s_lshl_b32 s{T0}, s{S_G}, 3")
        a(f"s_add_u32 s{T0}, s{T0}, s{S_W}")
        a(f"s_lshl_b32 s{T0}, s{T0}, 8")
        a(f"s_add_u32 s{T0}, s{T0}, {WS_SIZE}")
        a("v_lshlrev_b32 v1, 2, v0")
        a(f"buffer_store_dword v255, v1, s[{SRD_WS}:{SRD_WS+3}], s{T0} offen")
        a("s_mov_b64 exec, -1")

    def dma(self, voff, srd, soff, flags=""):
        if self.o.get("nodma"): return
        self.a(f"buffer_load_dwordx4 v{voff}, s[{srd}:{srd+3}], {soff} offen {flags} lds".replace("  ", " "))

    def flag_store(self, s_off, vt):
        a = self.a
        L = a.newlabel("nofl")
        a(f"s_cmp_lg_u32 s{S_W}, 0")
        a(f"s_cbranch_scc1 {L}")
        a(f"v_mov_b32 v{vt}, s{S_NONCE}")
        a(f"v_mov_b32 v{vt+1}, s{S_NONCE+1}")
        a(f"v_mov_b32 v{vt+2}, 0")
        a("s_mov_b64 exec, 1")
        a(f"buffer_store_dwordx2 v[{vt}:{vt+1}], v{vt+2}, s[{SRD_WS}:{SRD_WS+3}], s{s_off} offen sc1")
        a("s_mov_b64 exec, -1")
        a.label(L)

    def poll(self, n, s_off, spacing, vt, only_wave0=True):
        a = self.a
        L = a.newlabel("poll"); Ld = a.newlabel("polld")
        if only_wave0:
            a(f"s_cmp_lg_u32 s{S_W}, 0")
            a(f"s_cbranch_scc1 {Ld}")
        a(f"s_mov_b32 s{S_SPIN}, 0")
        if n == 256:
            assert spacing == 8
            a(f"v_lshlrev_b32 v{vt+8}, 4, v0")
            a.label(L)
            a(f"buffer_load_dwordx4 v[{vt}:{vt+3}], v{vt+8}, s[{SRD_WS}:{SRD_WS+3}], s{s_off} offen sc1")
            a(f"buffer_load_dwordx4 v[{vt+4}:{vt+7}], v{vt+8}, s[{SRD_WS}:{SRD_WS+3}], s{s_off} offen offset:1024 sc1")
            a(f"s_add_u32 s{S_SPIN}, s{S_SPIN}, 1")
            a("s_waitcnt vmcnt(0)")
            a(f"v_cmp_ne_u64 vcc, s[{S_NONCE}:{S_NONCE+1}], v[{vt}:{vt+1}]")
            a(f"v_cmp_ne_u64 s[{S_M1}:{S_M1+1}], s[{S_NONCE}:{S_NONCE+1}], v[{vt+2}:{vt+3}]")
            a("s_nop 0")
            a(f"s_or_b64 s[{T4}:{T5}], vcc, s[{S_M1}:{S_M1+1}]")
            a(f"v_cmp_ne_u64 vcc, s[{S_NONCE}:{S_NONCE+1}], v[{vt+4}:{vt+5}]")
            a(f"v_cmp_ne_u64 s[{S_M1}:{S_M1+1}], s[{S_NONCE}:{S_NONCE+1}], v[{vt+6}:{vt+7}]")
            a("s_nop 0")
            a(f"s_or_b64 s[{T4}:{T5}], s[{T4}:{T5}], vcc")
            a(f"s_or_b64 s[{T4}:{T5}], s[{T4}:{T5}], s[{S_M1}:{S_M1+1}]")
        else:
            a(f"v_and_b32 v{vt+8}, {n-1}, v0")
            a(f"v_mul_u32_u24 v{vt+8}, {spacing}, v{vt+8}")
            a.label(L)
            a(f"buffer_load_dwordx2 v[{vt}:{vt+1}], v{vt+8}, s[{SRD_WS}:{SRD_WS+3}], s{s_off} offen sc1")
            a(f"s_add_u32 s{S_SPIN}, s{S_SPIN}, 1")
            a("s_waitcnt vmcnt(0)")
            a(f"v_cmp_ne_u64 vcc, s[{S_NONCE}:{S_NONCE+1}], v[{vt}:{vt+1}]")
            a("s_nop 0")
            a(f"s_or_b64 s[{T4}:{T5}], vcc, vcc")
        a(f"s_cbranch_scc0 {Ld}")
        a(f"s_cmp_lt_u32 s{S_SPIN}, {SPIN_MAX}")
        a(f"s_cbranch_scc1 {L}")
        a.label(Ld)

    def entry(self):
        a = self.a
        a(f"s_cmp_ge_u32 s{S_G}, 256")
        a("s_cbranch_scc1 L_end")
        a(f"s_load_dwordx16 s[{S_PTR}:{S_PTR+15}], s[0:1], 0")
        a(f"s_load_dwordx2 s[{S_PTR+16}:{S_PTR+17}], s[0:1], 64")
        a(f"s_memrealtime s[{S_NONCE}:{S_NONCE+1}]")
        if self.o.get("stamps"): a("v_mov_b32 v255, 0")
        self.stamp(0)
        a("v_lshrrev_b32 v1, 6, v0")
        a("v_and_b32 v0, 63, v0")
        a(f"v_readfirstlane_b32 s{S_W}, v1")
        a(f"s_and_b32 s{S_C}, s{S_G}, 7")
        a(f"s_lshr_b32 s{S_J}, s{S_G}, 3")

    ACC = 16; XF = 160; WF = 176; XA = 72; WA = 144; DXA, DXB, DW = 78, 79, 80; VXM = 76
    ONES = 82
    CQ = 96
    CQA = 81
    RSA, RS = 84, 128
    STA = 86
    RLV, RLA = 157, 158
    VN = 92
    sRB, sCT, sKC, sXO, sWO, sSLOT, sCNT, sXM, sTG, sNH = 64, 65, 66, 67, 68, 69, 70, 71, 72, 73
    sTAB = 74
    sM0X = 80; sWO2 = 81; sKC0 = 82; sSIDE = 83; sI1 = 71; sI2 = 34; sSM = 35
    sRL = 84
    P1_MISC = 148 * 1024
    RL_SCR = 68 * 1024
    CQ_SCR = 128 * 1024
    DUMMY = 159 * 1024
    CPF_LINES = 8

    def p1_issue(self, pieces=(0, 1, 2, 3)):
        a = self.a
        if 0 in pieces:
            a(f"s_add_u32 m0, s{self.sM0X}, s{self.sSLOT}")
            a(f"s_add_u32 s{self.sKC}, s{self.sKC}, 1")
            self.dma(self.DXA, SRD_X, f"s{self.sXO}")
        if 1 in pieces:
            a(f"s_add_u32 m0, m0, s{self.sI1}")
            a(f"s_add_u32 s{self.sWO2}, s{self.sWO}, 15360")
            self.dma(self.DW, SRD_WQ, f"s{self.sWO}")
        if 2 in pieces:
            a(f"s_sub_u32 m0, m0, s{self.sI2}")
            a(f"s_add_u32 s{self.sWO}, s{self.sWO}, 245760")
            self.dma(self.DXB, SRD_X, f"s{self.sXO}")
        if 3 in pieces:
            a(f"s_add_u32 m0, m0, s{self.sI1}")
            a(f"s_add_u32 s{self.sXO}, s{self.sXO}, 128")
            self.dma(self.DW, SRD_WQ, f"s{self.sWO2}")
            a(f"s_cmp_eq_u32 s{self.sKC}, 10")
            a(f"s_cselect_b32 s{T0}, 1280, 0")
            a(f"s_cselect_b32 s{T1}, 2457600, 0")
            a(f"s_cselect_b32 s{self.sKC}, 0, s{self.sKC}")
            a(f"s_sub_u32 s{self.sXO}, s{self.sXO}, s{T0}")
            a(f"s_sub_u32 s{self.sWO}, s{self.sWO}, s{T1}")
            a(f"s_add_u32 s{self.sSLOT}, s{self.sSLOT}, 32768")
            a(f"s_and_b32 s{self.sSLOT}, s{self.sSLOT}, s{self.sSM}")

    def p1_setup_a(self):
        a = self.a
        a(f"s_lshr_b32 s{T0}, s{S_C}, 1")
        a(f"s_lshl_b32 s{T0}, s{T0}, 2")
        a(f"s_lshr_b32 s{T1}, s{S_J}, 3")
        a(f"s_add_u32 s{self.sRB}, s{T0}, s{T1}")
        a(f"s_and_b32 s{T0}, s{S_C}, 1")
        a(f"s_lshl_b32 s{T0}, s{T0}, 3")
        a(f"s_and_b32 s{T2}, s{S_J}, 7")
        a(f"s_add_u32 s{self.sCT}, s{T0}, s{T2}")
        a(f"s_lshl_b32 s{T1}, s{T1}, 1")
        a(f"s_add_u32 s{self.sKC}, s{T2}, s{T1}")
        a(f"s_bfe_u32 s{T0}, s{S_C}, 0x10001")
        a(f"s_and_b32 s{T1}, s{S_C}, 4")
        a(f"s_lshl_b32 s{T1}, s{T1}, 1")
        a(f"s_add_u32 s{T0}, s{T0}, s{T1}")
        a(f"s_add_u32 s{self.sKC}, s{self.sKC}, s{T0}")
        a(f"s_mul_i32 s{T0}, s{self.sKC}, 26")
        a(f"s_lshr_b32 s{T0}, s{T0}, 8")
        a(f"s_mul_i32 s{T0}, s{T0}, 10")
        a(f"s_sub_u32 s{self.sKC}, s{self.sKC}, s{T0}")
        a(f"s_mov_b32 s{self.sKC0}, s{self.sKC}")
        a(f"s_mul_i32 s{self.sXO}, s{self.sRB}, 163840")
        a(f"s_lshl_b32 s{T0}, s{self.sKC}, 7")
        a(f"s_add_u32 s{self.sXO}, s{self.sXO}, s{T0}")
        a(f"s_mul_i32 s{self.sWO}, s{self.sKC}, 245760")
        a(f"s_lshl_b32 s{T0}, s{self.sCT}, 8")
        a(f"s_add_u32 s{self.sWO}, s{self.sWO}, s{T0}")
        a(f"s_lshl_b32 s{self.sM0X}, s{S_W}, 11")
        a(f"s_mov_b32 s{self.sSLOT}, 0")
        a(f"s_movk_i32 s{self.sI1}, 16384")
        a(f"s_movk_i32 s{self.sI2}, 15360")
        a(f"s_mov_b32 s{self.sSM}, 0x1ffff")
        a("v_lshrrev_b32 v1, 3, v0")
        a("v_lshrrev_b32 v2, 4, v0")
        a("v_and_b32 v3, 7, v0")
        a("v_xor_b32 v3, v3, v2")
        a(f"s_lshl_b32 s{T0}, s{S_W}, 4")
        a(f"v_add_u32 v4, s{T0}, v1")
        a("v_mul_u32_u24 v4, 1280, v4")
        a(f"v_lshl_add_u32 v{self.DXA}, v3, 4, v4")
        a(f"v_xor_b32 v{self.DXB}, 64, v{self.DXA}")
        a(f"v_add_u32 v{self.DXB}, 10240, v{self.DXB}")
        a("v_lshlrev_b32 v3, 2, v2")
        a("v_and_b32 v4, 15, v0")
        a("v_xor_b32 v3, v3, v4")
        a(f"s_lshl_b32 s{T0}, s{S_W}, 3")
        a(f"v_add_u32 v4, s{T0}, v2")
        a("v_mul_u32_u24 v4, 3840, v4")
        a(f"v_lshl_add_u32 v{self.DW}, v3, 4, v4")
        a("s_waitcnt lgkmcnt(0)")
        self.srd(SRD_X, S_PTR + 0, 2048 * 1280)
        self.srd(SRD_WQ, S_PTR + 2, 640 * 3840)
        a(f"s_cmp_eq_u32 s{self.sCT}, 15")
        a("s_cbranch_scc1 L_p1_noissue")
        self.p1_issue()
        self.p1_issue((0,))
        a.label("L_p1_noissue")
        self.stamp(1)
        self.srd(SRD_WS, S_PTR + 16, WS_SIZE + ((1 << 20) if self.o.get("stamps") else 0))
        self.srd(SRD_OUT, S_PTR + 12, 2048 * 1280)
        self.srd(SRD_DBG, S_PTR + 14, 256)
        if self.o.get("cpf", "1") == "1":
            Lc = a.newlabel("cpf")
            a(f"s_cmp_lg_u32 s{S_W}, 7")
            a(f"s_cbranch_scc1 {Lc}")
            a(f"s_getpc_b64 s[{T4}:{T5}]")
            a.label("L_pc_here")
            a(f"s_mul_i32 s{T0}, s{S_J}, {self.CPF_LINES*128}")
            a(f"s_sub_u32 s{T0}, s{T0}, L_pc_here-{NAME}_kernel")
            a(f"v_min_u32 v3, {self.CPF_LINES-1}, v0")
            a(f"v_lshl_add_u32 v3, v3, 7, s{T0}")
            a("v_ashrrev_i32 v5, 31, v3")
            a(f"v_mov_b32 v6, s{T5}")
            a(f"v_add_co_u32 v4, vcc, s{T4}, v3")
            a("s_nop 1")
            a("v_addc_co_u32 v5, vcc, v5, v6, vcc")
            a("global_load_dword v254, v[4:5], off")
            a.label(Lc)
        a(f"s_or_b32 s{T0}, s{S_G}, s{S_W}")
        a("s_cbranch_scc1 L_nonce_done")
        a("v_mov_b32 v3, 0")
        a(f"v_mov_b32 v4, s{S_NONCE}")
        a(f"v_mov_b32 v5, s{S_NONCE+1}")
        a("s_mov_b64 exec, 1")
        a(f"buffer_store_dwordx2 v[4:5], v3, s[{SRD_DBG}:{SRD_DBG+3}], 0 offen sc1")
        a("s_mov_b64 exec, -1")
        a.label("L_nonce_done")

    def relayout_setup(self):
        a = self.a
        R = self.sRL
        u = a.newlabel("u")
        sID, sKS, sCB, sST, sA, sB, sCc, sD = T0, T1, T2, T3, 93, 94, 95, 96
        sBase, sSl, sKsS = 97, 98, 99
        a(f"s_mul_i32 s{sID}, s{S_G}, 5")
        a(f"s_add_u32 s{sID}, s{sID}, s{S_W}")
        a(f"s_sub_u32 s{sID}, s{sID}, 1")
        a(f"s_min_u32 s{sID}, s{sID}, 1279")
        a(f"s_mov_b32 s{sA}, 16")
        a(f"s_mov_b32 s{sB}, 8")
        a(f"s_mov_b32 s{sCc}, 4")
        a(f"s_mov_b32 s{SRD_RL+3}, 0x20000")
        a(f"s_mov_b32 s{R+8}, -1")
        a(f"s_cmp_lt_u32 s{sID}, 200")
        a(f"s_cbranch_scc1 L_rl_wo{u}")
        a(f"s_cmp_lt_u32 s{sID}, 740")
        a(f"s_cbranch_scc1 L_rl_w1{u}")
        a(f"s_sub_u32 s{sID}, s{sID}, 740")
        a(f"s_mul_i32 s{sKS}, s{sID}, 6554")
        a(f"s_lshr_b32 s{sKS}, s{sKS}, 16")
        a(f"s_mul_i32 s{sCB}, s{sKS}, 10")
        a(f"s_sub_u32 s{sCB}, s{sID}, s{sCB}")
        a(f"s_lshl_b32 s{sD}, s{sKS}, 5")
        a(f"s_mov_b32 s{SRD_RL}, s{S_PTR+10}")
        a(f"s_and_b32 s{SRD_RL+1}, s{S_PTR+11}, 0xffff")
        a(f"s_mov_b32 s{SRD_RL+2}, {1728*1280}")
        a(f"s_mov_b32 s{sBase}, {WS_W2}")
        a(f"s_mov_b32 s{sSl}, {54*5120}")
        a(f"s_branch L_rl_n640{u}")
        a.label(f"L_rl_wo{u}")
        a(f"s_mul_i32 s{sKS}, s{sID}, 6554")
        a(f"s_lshr_b32 s{sKS}, s{sKS}, 16")
        a(f"s_mul_i32 s{sCB}, s{sKS}, 10")
        a(f"s_sub_u32 s{sCB}, s{sID}, s{sCB}")
        a(f"s_mul_i32 s{sD}, s{sKS}, 40")
        a(f"s_mul_i32 s{sST}, s{sKS}, 160")
        a(f"s_sub_u32 s{sST}, s{sST}, {160*16-16}")
        a(f"s_cmp_lt_u32 s{sKS}, 16")
        a(f"s_cselect_b32 s{sD}, s{sD}, s{sST}")
        a(f"s_cselect_b32 s{sA}, 8, 20")
        a(f"s_cselect_b32 s{sB}, 20, 0x50")
        a(f"s_cselect_b32 s{sCc}, 4, 40")
        a(f"s_mov_b32 s{SRD_RL}, s{S_PTR+4}")
        a(f"s_and_b32 s{SRD_RL+1}, s{S_PTR+5}, 0xffff")
        a(f"s_mov_b32 s{SRD_RL+2}, {640*1280}")
        a(f"s_mov_b32 s{sBase}, {WS_WO}")
        a(f"s_mov_b32 s{sSl}, {20*5120}")
        a.label(f"L_rl_n640{u}")
        a(f"s_mov_b32 s{sST}, 1280")
        a(f"s_mul_i32 s{sKsS}, s{sKS}, 5120")
        a(f"s_add_u32 s{sBase}, s{sBase}, s{sKsS}")
        for t in range(4):
            a(f"s_lshl_b32 s{T4}, s{sCB}, 2")
            a(f"s_add_u32 s{T4}, s{T4}, {t}")
            a(f"s_mul_i32 s{T5}, s{T4}, 52")
            a(f"s_lshr_b32 s{T5}, s{T5}, 8")
            a(f"s_mul_i32 s{R+4+t}, s{T5}, s{sSl}")
            a(f"s_mul_i32 s{T5}, s{T5}, 5")
            a(f"s_sub_u32 s{T4}, s{T4}, s{T5}")
            a(f"s_lshl_b32 s{T4}, s{T4}, 10")
            a(f"s_add_u32 s{R+4+t}, s{R+4+t}, s{T4}")
            a(f"s_add_u32 s{R+4+t}, s{R+4+t}, s{sBase}")
        a(f"s_branch L_rl_common{u}")
        a.label(f"L_rl_w1{u}")
        a(f"s_sub_u32 s{sID}, s{sID}, 200")
        a(f"s_mul_i32 s{sKS}, s{sID}, 2428")
        a(f"s_lshr_b32 s{sKS}, s{sKS}, 16")
        a(f"s_mul_i32 s{sCB}, s{sKS}, 27")
        a(f"s_sub_u32 s{sCB}, s{sID}, s{sCB}")
        a(f"s_lshr_b32 s{T4}, s{sKS}, 1")
        a(f"s_mul_i32 s{T4}, s{T4}, 0x50")
        a(f"s_and_b32 s{T5}, s{sKS}, 1")
        a(f"s_lshl_b32 s{T5}, s{T5}, 5")
        a(f"s_add_u32 s{sD}, s{T4}, s{T5}")
        a(f"s_mul_i32 s{T4}, s{sKS}, 160")
        a(f"s_sub_u32 s{T4}, s{T4}, {160*16-64}")
        a(f"s_cmp_lt_u32 s{sKS}, 16")
        a(f"s_cselect_b32 s{sD}, s{sD}, s{T4}")
        a(f"s_cselect_b32 s{sA}, 16, 0x50")
        a(f"s_mov_b32 s{SRD_RL}, s{S_PTR+8}")
        a(f"s_and_b32 s{SRD_RL+1}, s{S_PTR+9}, 0xffff")
        a(f"s_mov_b32 s{SRD_RL+2}, {640*3456}")
        a(f"s_mov_b32 s{sST}, 3456")
        a(f"s_mul_i32 s{sKsS}, s{sKS}, 7168")
        a(f"s_add_u32 s{sBase}, s{sKsS}, {WS_W1}")
        a(f"s_mul_i32 s{R+8}, s{sKS}, {1728*4}")
        a(f"s_lshl_b32 s{T4}, s{sCB}, 8")
        a(f"s_add_u32 s{R+8}, s{R+8}, s{T4}")
        a(f"s_add_u32 s{R+8}, s{R+8}, {WS_CS1}")
        for t in range(4):
            a(f"s_lshl_b32 s{T4}, s{sCB}, 2")
            a(f"s_add_u32 s{T4}, s{T4}, {t}")
            a(f"s_mul_i32 s{T5}, s{T4}, 43")
            a(f"s_lshr_b32 s{T5}, s{T5}, 8")
            a(f"s_mul_i32 s{sSl}, s{T5}, 6")
            a(f"s_sub_u32 s{sSl}, s{T4}, s{sSl}")
            a(f"s_sub_u32 s{sKsS}, s{T4}, 96")
            a(f"s_cmp_lt_u32 s{T4}, 96")
            a(f"s_cselect_b32 s{T5}, s{T5}, s{sKsS}")
            a(f"s_cselect_b32 s{sSl}, s{sSl}, 6")
            a(f"s_mul_i32 s{R+4+t}, s{T5}, {20*7168}")
            a(f"s_lshl_b32 s{sSl}, s{sSl}, 10")
            a(f"s_add_u32 s{R+4+t}, s{R+4+t}, s{sSl}")
            a(f"s_add_u32 s{R+4+t}, s{R+4+t}, s{sBase}")
        a.label(f"L_rl_common{u}")
        a(f"s_mul_i32 s{sD}, s{sD}, s{sST}")
        a(f"s_lshl_b32 s{T4}, s{sCB}, 7")
        a(f"s_add_u32 s{R}, s{sD}, s{T4}")
        a(f"s_mul_i32 s{sA}, s{sA}, s{sST}")
        a(f"s_mul_i32 s{sB}, s{sB}, s{sST}")
        a(f"s_add_u32 s{R+1}, s{R}, s{sB}")
        a(f"s_add_u32 s{R+2}, s{R}, s{sA}")
        a(f"s_add_u32 s{R+3}, s{R+2}, s{sB}")
        a("v_lshrrev_b32 v1, 5, v0")
        a(f"v_mul_u32_u24 v1, s{sCc}, v1")
        a("v_bfe_u32 v2, v0, 3, 2")
        a("v_add_u32 v1, v1, v2")
        a(f"v_mul_u32_u24 v1, s{sST}, v1")
        a("v_and_b32 v2, 7, v0")
        a(f"v_lshl_add_u32 v{self.RLV}, v2, 4, v1")
        a("v_lshrrev_b32 v1, 2, v0")
        a("v_lshlrev_b32 v1, 7, v1")
        a("v_and_b32 v2, 3, v0")
        a("v_lshl_add_u32 v1, v2, 3, v1")
        a(f"s_lshl_b32 s{T4}, s{S_W}, 12")
        a(f"s_add_u32 s{T4}, s{T4}, {self.RL_SCR-4096}")
        a(f"v_add_u32 v{self.RLA}, s{T4}, v1")

    def relayout_issue(self):
        a = self.a
        L = a.newlabel("rlsk")
        a(f"s_sub_u32 s{T0}, s{S_W}, 1")
        a(f"s_cmp_ge_u32 s{T0}, 5")
        a(f"s_cbranch_scc1 {L}")
        a(f"s_lshl_b32 s{T0}, s{S_W}, 12")
        a(f"s_add_u32 m0, s{T0}, {self.RL_SCR-4096}")
        for i in range(4):
            if i: a("s_add_u32 m0, m0, 1024")
            a("s_nop 0")
            self.dma(self.RLV, SRD_RL, f"s{self.sRL+i}")
        a.label(L)

    def relayout_finish(self):
        a = self.a
        L = a.newlabel("rlsk"); F = 168; t = 184
        a(f"s_sub_u32 s{T0}, s{S_W}, 1")
        a(f"s_cmp_ge_u32 s{T0}, 5")
        a(f"s_cbranch_scc1 {L}")
        for q in range(4):
            for rd in range(2):
                a(f"ds_read_b64_tr_b16 v[{F+4*q+2*rd}:{F+4*q+2*rd+1}], v{self.RLA} offset:{rd*2048+q*32}")
        a(f"v_lshlrev_b32 v{t}, 4, v0")
        for q in range(4):
            a(f"s_waitcnt lgkmcnt({6-2*q})")
            a(f"buffer_store_dwordx4 v[{F+4*q}:{F+4*q+3}], v{t}, s[{SRD_WS}:{SRD_WS+3}], s{self.sRL+4+q} offen sc1")
        a(f"s_cmp_eq_u32 s{self.sRL+8}, -1")
        a(f"s_cbranch_scc1 {L}")
        for q in range(4): a(f"v_mov_b32 v{t+2+q}, 0")
        a(f"v_mov_b32 v{t+6}, 0x3f803f80")
        for k in range(4):
            for q in range(4): a(f"v_dot2_f32_bf16 v{t+2+q}, v{F+4*q+k}, v{t+6}, v{t+2+q}")
        a(f"v_lshlrev_b32 v{t+1}, 2, v0")
        a("s_nop 1")
        a(f"v_permlane16_swap_b32 v{t+2}, v{t+3}")
        a(f"v_permlane16_swap_b32 v{t+4}, v{t+5}")
        a("s_nop 0")
        a(f"v_add_f32 v{t+2}, v{t+2}, v{t+3}")
        a(f"v_add_f32 v{t+4}, v{t+4}, v{t+5}")
        a("s_nop 1")
        a(f"v_permlane32_swap_b32 v{t+2}, v{t+4}")
        a("s_nop 0")
        a(f"v_add_f32 v{t+2}, v{t+2}, v{t+4}")
        a(f"buffer_store_dword v{t+2}, v{t+1}, s[{SRD_WS}:{SRD_WS+3}], s{self.sRL+8} offen sc1")
        a.label(L)

    def p1_setup_b(self):
        a = self.a
        a(f"s_and_b32 s{self.sTG}, s{S_W}, 3")
        a(f"s_lshr_b32 s{self.sNH}, s{S_W}, 2")
        a(f"s_cmp_ge_u32 s{self.sCT}, 5")
        a(f"s_cselect_b32 s{T0}, 5, 0")
        a(f"s_sub_u32 s{T0}, s{self.sCT}, s{T0}")
        a(f"s_lshl_b32 s{T0}, s{T0}, 1")
        a(f"s_add_u32 s{T0}, s{T0}, s{self.sNH}")
        for idx in range(10):
            a(f"s_cmp_eq_u32 s{T0}, {idx}")
            a(f"s_cbranch_scc1 L_tab{idx}")
        a(f"s_mul_i32 s{T1}, s{self.sNH}, 0x10101010")
        for k in range(4): a(f"s_add_u32 s{self.sTAB+k}, s{T1}, 0x%08x" % (0x03020100 + 0x04040404 * k))
        a(f"s_mov_b32 s{self.sTAB+4}, 0")
        a(f"s_mov_b32 s{self.sTAB+5}, 0")
        a("s_branch L_tabdone")
        for idx in range(10):
            a.label(f"L_tab{idx}")
            for k, d in enumerate(p1_table(idx // 2, idx % 2)): a(f"s_mov_b32 s{self.sTAB+k}, 0x%08x" % d)
            if idx < 9: a("s_branch L_tabdone")
        a.label("L_tabdone")
        a("v_and_b32 v1, 31, v0")
        a(f"s_lshl_b32 s{T0}, s{self.sTG}, 5")
        a(f"v_add_u32 v2, s{T0}, v1")
        a("v_bfe_u32 v3, v2, 1, 3")
        a("v_lshrrev_b32 v4, 5, v0")
        a("v_xor_b32 v3, v3, v4")
        a("v_lshlrev_b32 v3, 4, v3")
        a(f"v_lshl_add_u32 v{self.XA}, v2, 7, v3")
        a(f"s_xor_b32 s{T3}, s{self.sTG}, s{self.sNH}")
        a(f"s_lshl_b32 s{T0}, s{T3}, 5")
        a(f"v_xor_b32 v{self.XA}, s{T0}, v{self.XA}")
        for ks in range(1, 4): a(f"v_xor_b32 v{self.XA+ks}, {ks<<5}, v{self.XA}")
        a("v_bfe_u32 v5, v0, 2, 2")
        a("v_lshl_add_u32 v6, v4, 3, v5")
        a("v_lshlrev_b32 v6, 8, v6")
        a("v_and_b32 v7, 3, v0")
        a("v_lshlrev_b32 v7, 3, v7")
        a("v_and_b32 v8, 16, v0")
        a("v_cmp_ne_u32 vcc, 0, v8")
        for i in range(2):
            a(f"v_mov_b32 v8, s{self.sTAB+2*i}")
            a(f"v_mov_b32 v9, s{self.sTAB+2*i+1}")
            a("v_cndmask_b32 v8, v8, v9, vcc")
            a("v_bfe_u32 v8, v8, v7, 8")
            a("v_lshlrev_b32 v8, 3, v8")
            a("v_lshlrev_b32 v9, 6, v5")
            a("v_xor_b32 v8, v8, v9")
            a(f"v_add_u32 v8, v6, v8")
            a(f"s_lshl_b32 s{T0}, s{T3}, 12")
            a(f"v_add_u32 v{self.WA+4*i}, s{T0}, v8")
            for j in range(1, 4): a(f"v_xor_b32 v{self.WA+4*i+j}, {j<<12}, v{self.WA+4*i}")
        a(f"s_lshl_b32 s{T0}, s{self.sRB}, 2")
        a(f"s_add_u32 s{T0}, s{T0}, s{self.sTG}")
        a(f"s_lshl_b32 s{T1}, s{T0}, 9")
        a(f"s_add_u32 s{T1}, s{T1}, {WS_RS}")
        a(f"v_lshl_add_u32 v{self.RSA}, v1, 4, s{T1}")
        a(f"s_cmp_ge_u32 s{self.sCT}, 10")
        a("s_cbranch_scc1 L_p1_vaddr")
        a(f"s_lshl_b32 s{T0}, s{T0}, 9")
        a(f"s_cmp_ge_u32 s{self.sCT}, 5")
        a(f"s_cselect_b32 s{T1}, {WS_K}, {WS_Q}")
        a(f"s_add_u32 s{T0}, s{T0}, s{T1}")
        a(f"v_lshl_add_u32 v2, v1, 4, s{T0}")
        a("v_lshlrev_b32 v3, 3, v4")
        a("v_add_u32 v5, 16, v3")
        for i in range(2):
            for qq in range(2):
                a(f"v_bfe_u32 v6, s{self.sTAB+4+i}, v{3 if qq == 0 else 5}, 8")
                a(f"v_lshl_add_u32 v{self.STA+2*i+qq}, v6, 15, v2")
        a("s_branch L_p1_addrdone")
        a.label("L_p1_vaddr")
        a(f"s_mul_i32 s{T0}, s{T0}, 1280")
        a(f"s_add_u32 s{T0}, s{T0}, {WS_V}")
        a(f"s_lshl_b32 s{T1}, s{self.sCT}, 7")
        a(f"s_lshl_b32 s{T2}, s{self.sNH}, 6")
        a(f"s_add_u32 s{T1}, s{T1}, s{T2}")
        a(f"s_sub_u32 s{T1}, s{T1}, 1280")
        a(f"v_mov_b32 v{self.STA+2}, 0")
        a(f"v_mov_b32 v{self.STA+3}, 0")
        a("v_mul_u32_u24 v3, 320, v4")
        a(f"v_add_u32 v3, s{T0}, v3")
        a(f"s_mov_b32 s{T2}, 81920")
        for i in range(2):
            a(f"v_add_u32 v5, s{T1}, v1")
            if i: a("v_add_u32 v5, 32, v5")
            a("v_mul_u32_u24 v6, 3277, v5")
            a("v_lshrrev_b32 v6, 16, v6")
            a("v_mul_u32_u24 v7, 20, v6")
            a("v_sub_u32 v5, v5, v7")
            a("v_lshl_add_u32 v5, v5, 4, v3")
            a(f"v_mad_u32_u24 v{self.STA+i}, v6, s{T2}, v5")
        a.label("L_p1_addrdone")
        for r in range(32): a(f"v_mov_b32 v{self.ACC+r}, 0")
        a(f"s_mul_i32 s{T0}, s{self.sCT}, 10240")
        a(f"s_lshl_b32 s{T1}, s{self.sNH}, 9")
        a(f"s_add_u32 s{T0}, s{T0}, s{T1}")
        a(f"s_add_u32 s{T0}, s{T0}, {WS_CQ}")
        a(f"v_lshl_add_u32 v{self.CQA}, v0, 3, s{T0}")
        a(f"s_mov_b32 s{self.sSIDE}, 0x81")
        a(f"v_mov_b32 v{self.VXM}, 0x8000")
        a(f"s_mov_b32 s{self.sCNT}, 0")

    def p1_loop(self, vmode):
        a = self.a
        tag = "v" if vmode else "q"
        a(f"s_cmp_lg_u32 s{self.sNH}, 0")
        a(f"s_cbranch_scc1 L_p1_B{tag}")
        self.p1_loop1(vmode, 0)
        a(f"s_branch L_p1_E{tag}")
        a.label(f"L_p1_B{tag}")
        self.p1_loop1(vmode, 1)
        a.label(f"L_p1_E{tag}")

    def p1_loop1(self, vmode, B):
        a = self.a
        L = a.newlabel("p1loop")
        pos = self.o.get("barB" if B else "barA", "1" if B else "0")
        def reads(ks):
            if self.o.get("nolds"): return
            a(f"ds_read_b128 v[{self.XF+4*ks}:{self.XF+4*ks+3}], v{self.XA+ks}")
            for i in range(2):
                for rd in range(2):
                    d = self.WF + 8 * ks + 4 * i + 2 * rd
                    a(f"ds_read_b64_tr_b16 v[{d}:{d+1}], v{self.WA+4*i+ks} offset:{16384+rd*1024}")
        def xors(ks):
            for r in (self.XA + ks, self.WA + ks, self.WA + 4 + ks): a(f"v_xor_b32 v{r}, v{self.VXM}, v{r}")
            if ks == 3: a(f"v_xor_b32 v{self.VXM}, 0x10000, v{self.VXM}")
        def bar():
            a("s_waitcnt vmcnt(4)")
            if not self.o.get("nobar"): a("s_barrier")
            if self.o.get("its") == "1": self.stamp_dyn(48, self.sCNT)
        def mf(ks, i):
            x = vr(self.XF + 4 * ks, 4); wv = vr(self.WF + 8 * ks + 4 * i, 4); acc = vr(self.ACC + 16 * i, 16)
            if self.o.get("nomfma"): pass
            elif vmode: a(f"v_mfma_f32_32x32x16_bf16 {acc}, {x}, {wv}, {acc}")
            else: a(f"v_mfma_f32_32x32x16_bf16 {acc}, {wv}, {x}, {acc}")
        def comp(ks):
            n = (ks + 2) % 4
            if ks == 2 and pos == "0": bar()
            a("s_waitcnt lgkmcnt(5)")
            mf(ks, 0)
            if ks == 2 and pos == "1": bar()
            if ks == 2 and pos == "2":
                mf(ks, 1); bar(); reads(n)
            else:
                reads(n); mf(ks, 1)
            xors(n)
            self.p1_issue((n,))
            if n == 3:
                Lp = a.newlabel("pre"); Lpb = a.newlabel("preb")
                self._pre = (Lp, Lpb)
                a(f"s_cmp_ge_u32 s{self.sCNT}, 7")
                a(f"s_cbranch_scc1 {Lp}")
                a.label(Lpb)
        a("v_mov_b32 v1, 0")
        a(f"buffer_load_dwordx2 v[{self.VN}:{self.VN+1}], v1, s[{SRD_DBG}:{SRD_DBG+3}], 0 offen sc1")
        self.p1_issue((1, 2, 3))
        self.p1_issue((0, 1))
        a("s_waitcnt vmcnt(7)")
        a("s_barrier")
        self.stamp(3)
        reads(0); reads(1); xors(0); xors(1)
        a("v_mov_b32 v6, 0x3f803f80")
        a("v_mov_b32 v2, 0")
        a("v_mov_b32 v3, 0")
        a(f"s_lshl_b32 s{T0}, s{self.sNH}, 8")
        a(f"s_lshl_b32 s{T1}, s{self.sTG}, 9")
        a(f"s_add_u32 s{T0}, s{T0}, {self.P1_MISC}")
        a(f"s_add_u32 s{T1}, s{T1}, s{T0}")
        a(f"v_lshl_add_u32 v4, v0, 2, s{T1}")
        a(f"v_lshl_add_u32 v95, v0, 2, s{T0}")
        a("s_waitcnt lgkmcnt(5)")
        for k in range(4):
            for i in range(2): a(f"v_dot2_f32_bf16 v{2+i}, v{self.WF+4*i+k}, v6, v{2+i}")
        a("s_nop 2")
        a("v_permlane32_swap_b32 v2, v3")
        a("s_nop 0")
        a("v_add_f32 v2, v2, v3")
        a("ds_write_b32 v4, v2")
        a("s_waitcnt lgkmcnt(0)")
        a.align(6)
        a.label(L)
        comp(0); comp(1); comp(2)
        Lr = a.newlabel("back"); Ls = a.newlabel("side")
        a(f"s_bitcmp1_b32 s{self.sSIDE}, s{self.sCNT}")
        a(f"s_cbranch_scc1 {Ls}")
        a.label(Lr)
        comp(3)
        a(f"s_add_u32 s{self.sCNT}, s{self.sCNT}, 1")
        a(f"s_cmp_lt_u32 s{self.sCNT}, 10")
        a(f"s_cbranch_scc1 {L}")
        Le = a.newlabel("lend"); L8 = a.newlabel("side8")
        a(f"s_branch {Le}")
        a.label(Ls)
        a(f"s_cmp_lg_u32 s{self.sCNT}, 0")
        a(f"s_cbranch_scc1 {L8}")
        self.nonce_get()
        a(f"s_cmp_lg_u32 s{self.sTG}, 0")
        a(f"s_cbranch_scc1 {Lr}")
        for k in range(4): a(f"ds_read_b32 v{2+k}, v95 offset:{512*k}")
        a(f"s_lshl_b32 s{T0}, s{self.sKC0}, 10")
        a("s_waitcnt lgkmcnt(0)")
        a("v_add_f32 v2, v2, v3")
        a("v_add_f32 v4, v4, v5")
        a(f"v_mov_b32 v3, s{S_NONCE}")
        a("v_add_f32 v2, v2, v4")
        a(f"buffer_store_dwordx2 v[2:3], v{self.CQA}, s[{SRD_WS}:{SRD_WS+3}], s{T0} offen sc1")
        a(f"s_branch {Lr}")
        a.label(L8)
        a(f"buffer_load_dwordx4 v[{self.RS}:{self.RS+3}], v{self.RSA}, s[{SRD_WS}:{SRD_WS+3}], 0 offen sc1")
        a(f"s_mov_b32 s{T2}, m0")
        a(f"s_mul_i32 s{T0}, s{self.sCT}, 10240")
        a(f"s_lshl_b32 s{T1}, s{S_W}, 10")
        a(f"s_add_u32 s{T0}, s{T0}, s{T1}")
        a(f"s_add_u32 s{T0}, s{T0}, {WS_CQ}")
        a(f"s_add_u32 m0, s{T1}, {self.CQ_SCR}")
        a("v_lshlrev_b32 v1, 4, v0")
        self.dma(1, SRD_WS, f"s{T0}", "sc1")
        a(f"s_add_u32 s{T0}, s{T0}, 8192")
        a("s_add_u32 m0, m0, 8192")
        a(f"s_cmp_ge_u32 s{S_W}, 2")
        a(f"s_cselect_b32 s{T0}, 0x7f000000, s{T0}")
        self.dma(1, SRD_WS, f"s{T0}", "sc1")
        a(f"s_mov_b32 m0, s{T2}")
        a(f"s_branch {Lr}")
        Lp, Lpb = self._pre
        a.label(Lp)
        a(f"s_mov_b32 s{self.sXO}, 0x7f000000")
        a(f"s_mov_b32 s{self.sWO}, 0x7f000000")
        a(f"s_mov_b32 s{self.sM0X}, {self.DUMMY}")
        a(f"s_mov_b32 s{self.sI1}, 0")
        a(f"s_mov_b32 s{self.sI2}, 0")
        a(f"s_mov_b32 s{self.sSM}, 0")
        a(f"s_mov_b32 s{self.sSLOT}, 0")
        a(f"s_cmp_lg_u32 s{self.sCNT}, 9")
        a(f"s_cbranch_scc1 {Lpb}")
        self.relayout_issue()
        a(f"s_branch {Lpb}")
        a.label(Le)

    def p1_gather(self):
        a = self.a
        a(f"buffer_load_dwordx4 v[{self.RS}:{self.RS+3}], v{self.RSA}, s[{SRD_WS}:{SRD_WS+3}], 0 offen sc1")
        a(f"s_movk_i32 s{T0}, 0x1000")
        a(f"s_movk_i32 s{T1}, 0x2000")
        for k in range(10):
            so = ("0", f"s{T0}", f"s{T1}")[k // 4]
            a(f"buffer_load_dwordx2 v[{self.CQ+2*k}:{self.CQ+2*k+1}], v{self.CQA}, s[{SRD_WS}:{SRD_WS+3}], {so} offen offset:{1024*(k%4)} sc1")

    def p1_epi_common(self):
        a = self.a
        self.stamp(4)
        a(f"s_lshl_b32 s{T2}, s{S_W}, 9")
        a(f"s_add_u32 s{T2}, s{T2}, {self.P1_MISC+4096}")
        a(f"v_lshl_add_u32 v6, v0, 2, s{T2}")
        a("v_and_b32 v5, 31, v0")
        L = a.newlabel("rs"); Ld = a.newlabel("rsd")
        a(f"s_mov_b32 s{S_SPIN}, 0")
        a(f"s_lshl_b32 s{T0}, s{self.sNH}, 9")
        a(f"s_add_u32 s{T0}, s{T0}, {self.CQ_SCR}")
        a(f"v_lshl_add_u32 v1, v0, 3, s{T0}")
        for k in range(10): a(f"ds_read_b64 v[{self.CQ+2*k}:{self.CQ+2*k+1}], v1 offset:{1024*k}")
        a("s_waitcnt lgkmcnt(0)")
        a.label(L)
        a(f"v_xor_b32 v2, s{S_NONCE}, v{self.RS+1}")
        a(f"v_xor_b32 v3, s{S_NONCE}, v{self.RS+3}")
        for k in range(0, 10, 2):
            a(f"v_xor_b32 v4, s{S_NONCE}, v{self.CQ+2*k+1}")
            a(f"v_xor_b32 v7, s{S_NONCE}, v{self.CQ+2*k+3}")
            a("v_or3_b32 v2, v2, v4, v7")
        a("v_or_b32 v2, v2, v3")
        a("v_cmp_ne_u32 vcc, 0, v2")
        a(f"s_add_u32 s{S_SPIN}, s{S_SPIN}, 1")
        a("s_or_b64 vcc, vcc, vcc")
        a(f"s_cbranch_scc0 {Ld}")
        a(f"s_cmp_ge_u32 s{S_SPIN}, {SPIN_MAX}")
        a(f"s_cbranch_scc1 {Ld}")
        self.p1_gather()
        a("s_waitcnt vmcnt(0)")
        a(f"s_branch {L}")
        a.label(Ld)
        Q = self.CQ
        a(f"v_add_f32 v12, v{Q}, v{Q+2}")
        a(f"v_add_f32 v13, v{Q+4}, v{Q+6}")
        a(f"v_add_f32 v14, v{Q+8}, v{Q+10}")
        a(f"v_add_f32 v15, v{Q+12}, v{Q+14}")
        a(f"v_add_f32 v2, v{Q+16}, v{Q+18}")
        a("v_add_f32 v12, v12, v13")
        a("v_add_f32 v14, v14, v15")
        a("v_add_f32 v12, v12, v2")
        a("v_add_f32 v12, v12, v14")

    def rowstats(self):
        a = self.a
        X = 100
        a("v_lshrrev_b32 v1, 3, v0")
        a(f"s_lshl_b32 s{T0}, s{S_W}, 4")
        a(f"s_lshl_b32 s{T1}, s{self.sRB}, 7")
        a(f"s_add_u32 s{T0}, s{T0}, s{T1}")
        a(f"v_add_u32 v1, s{T0}, v1")
        a("v_mul_u32_u24 v2, 1280, v1")
        a("v_and_b32 v3, 7, v0")
        a("v_lshl_add_u32 v2, v3, 4, v2")
        a(f"s_mov_b32 s{T0}, 10240")
        a("v_mov_b32 v3, 0")
        a(f"buffer_load_dwordx2 v[{self.VN}:{self.VN+1}], v3, s[{SRD_DBG}:{SRD_DBG+3}], 0 offen sc1")
        for k in range(10):
            for hh in range(2):
                r = X + 8 * k + 4 * hh
                a(f"buffer_load_dwordx4 v[{r}:{r+3}], v2, s[{SRD_X}:{SRD_X+3}], {'s%d' % T0 if hh else '0'} offen offset:{128*k}")
        for r in range(4, 8): a(f"v_mov_b32 v{r}, 0")
        a("v_mov_b32 v8, 0x3f803f80")
        for k in range(10):
            a(f"s_waitcnt vmcnt({18-2*k})")
            for e in range(4):
                for hh in range(2):
                    r = X + 8 * k + 4 * hh + e
                    a(f"v_dot2_f32_bf16 v{4+hh}, v{r}, v8, v{4+hh}")
                    a(f"v_dot2_f32_bf16 v{6+hh}, v{r}, v{r}, v{6+hh}")
        a("s_nop 2")
        for ctl in ("quad_perm:[1,0,3,2]", "quad_perm:[2,3,0,1]", "row_half_mirror"):
            for r in range(4, 8): a(f"v_add_f32_dpp v{r}, v{r}, v{r} {ctl} row_mask:0xf bank_mask:0xf")
        self.nonce_get()
        a("v_and_b32 v3, 1, v0")
        a("v_cmp_ne_u32 vcc, 0, v3")
        a("v_lshlrev_b32 v3, 3, v3")
        a("v_add_u32 v1, v1, v3")
        a("v_cndmask_b32 v4, v4, v5, vcc")
        a("v_cndmask_b32 v6, v6, v7, vcc")
        a(f"v_mul_f32 v4, 0x%08x, v4" % f2u(1.0 / 640))
        a("v_mul_f32 v5, v4, v4")
        a(f"v_mov_b32 v7, 0x%08x" % f2u(1.0 / 640))
        a("v_fma_f32 v5, v6, v7, -v5")
        a("v_max_f32 v5, 0, v5")
        a(f"v_add_f32 v5, 0x%08x, v5" % f2u(1e-5))
        a("v_rsq_f32 v8, v5")
        a(f"v_mov_b32 v9, s{S_NONCE}")
        a(f"v_mov_b32 v11, s{S_NONCE}")
        a("v_mul_f32 v10, v4, v8")
        a("v_lshlrev_b32 v1, 4, v1")
        a(f"s_mov_b32 s{T0}, {WS_RS}")
        a("s_mov_b32 exec_lo, 0x03030303")
        a("s_mov_b32 exec_hi, 0x03030303")
        a(f"buffer_store_dwordx4 v[8:11], v1, s[{SRD_WS}:{SRD_WS+3}], s{T0} offen sc1")
        a("s_mov_b64 exec, -1")

    def p1_epi_q(self):
        a = self.a
        self.p1_epi_common()
        qs = math.log2(math.e) / math.sqrt(20.0)
        a("ds_write_b32 v6, v12")
        a("v_lshrrev_b32 v1, 5, v0")
        a(f"v_lshl_add_u32 v1, v1, 4, s{T2}")
        C = 48
        for i in range(2):
            for q4 in range(4):
                a(f"ds_read_b128 v[{C+16*i+4*q4}:{C+16*i+4*q4+3}], v1 offset:{i*128+q4*32}")
        a(f"s_cmp_lt_u32 s{self.sCT}, 5")
        a(f"s_cselect_b32 s{T1}, 0x%08x, 1.0" % f2u(qs))
        a(f"v_mul_f32 v2, s{T1}, v{self.RS}")
        a(f"v_mul_f32 v3, s{T1}, v{self.RS+2}")
        for i in range(2):
            for qq in range(2):
                a(f"s_waitcnt lgkmcnt({6-4*i-2*qq})")
                b = 16 * i + 8 * qq
                for r in range(8): a(f"v_mul_f32 v{self.ACC+b+r}, v2, v{self.ACC+b+r}")
                for r in range(8): a(f"v_fma_f32 v{self.ACC+b+r}, -v3, v{C+b+r}, v{self.ACC+b+r}")
                o = 4 + 4 * ((2 * i + qq) % 2)
                for r in range(4): a(f"v_cvt_pk_bf16_f32 v{o+r}, v{self.ACC+b+2*r}, v{self.ACC+b+2*r+1}")
                a(f"buffer_store_dwordx4 v[{o}:{o+3}], v{self.STA+2*i+qq}, s[{SRD_WS}:{SRD_WS+3}], 0 offen sc1")

    def p1_epi_v(self):
        a = self.a
        self.p1_epi_common()
        a("v_mov_b32 v13, v12")
        a(f"v_lshl_add_u32 v6, v5, 2, s{T2}")
        a("v_lshrrev_b32 v1, 5, v0")
        a("v_permlane32_swap_b32 v12, v13")
        a(f"ds_write_b32 v6, v{self.RS}")
        a(f"ds_write_b32 v6, v{self.RS+2} offset:128")
        a(f"v_lshl_add_u32 v6, v1, 4, s{T2}")
        C = 48
        for q4 in range(4):
            a(f"ds_read_b128 v[{C+4*q4}:{C+4*q4+3}], v6 offset:{q4*32}")
            a(f"ds_read_b128 v[{C+16+4*q4}:{C+16+4*q4+3}], v6 offset:{128+q4*32}")
        for grp in range(2):
            a(f"s_waitcnt lgkmcnt({4-4*grp})")
            for i in range(2):
                b = 16 * i + 8 * grp
                for r in range(8): a(f"v_mul_f32 v{self.ACC+b+r}, v{C+8*grp+r}, v{self.ACC+b+r}")
                for r in range(8): a(f"v_fma_f32 v{self.ACC+b+r}, -v{C+16+8*grp+r}, v{12+i}, v{self.ACC+b+r}")
                o = 4 + 4 * i
                for r in range(4): a(f"v_cvt_pk_bf16_f32 v{o+r}, v{self.ACC+b+2*r}, v{self.ACC+b+2*r+1}")
                a(f"buffer_store_dwordx4 v[{o}:{o+3}], v{self.STA+i}, s[{SRD_WS}:{SRD_WS+3}], 0 offen offset:{640*grp} sc1")

    def nonce_get(self):
        a = self.a
        a(f"s_mov_b32 s{S_SPIN}, 0")
        Lc = a.newlabel("nchk"); Lo = a.newlabel("nok")
        a.label(Lc)
        a(f"v_readfirstlane_b32 s{S_NONCE}, v{self.VN}")
        a(f"v_readfirstlane_b32 s{S_NONCE+1}, v{self.VN+1}")
        a(f"s_add_u32 s{S_SPIN}, s{S_SPIN}, 1")
        a(f"s_or_b32 s{T0}, s{S_NONCE}, s{S_NONCE+1}")
        a(f"s_cbranch_scc1 {Lo}")
        a(f"s_cmp_ge_u32 s{S_SPIN}, {SPIN_MAX}")
        a(f"s_cbranch_scc1 {Lo}")
        a("v_mov_b32 v94, 0")
        a(f"buffer_load_dwordx2 v[{self.VN}:{self.VN+1}], v94, s[{SRD_DBG}:{SRD_DBG+3}], 0 offen sc1")
        a("s_waitcnt vmcnt(0)")
        a(f"s_branch {Lc}")
        a.label(Lo)

    def phase1(self):
        a = self.a
        self.p1_setup_a()
        a(f"s_cmp_eq_u32 s{self.sCT}, 15")
        a("s_cbranch_scc0 L_p1_go")
        self.rowstats()
        self.relayout_setup()
        self.relayout_issue()
        a("s_branch L_p1_done")
        a.label("L_p1_go")
        self.p1_setup_b()
        self.relayout_setup()
        self.stamp(2)
        a(f"s_cmp_ge_u32 s{self.sCT}, 10")
        a("s_cbranch_scc1 L_p1_v")
        self.p1_loop(False)
        self.p1_epi_q()
        a("s_branch L_p1_done")
        a.label("L_p1_v")
        self.p1_loop(True)
        self.p1_epi_v()
        a.label("L_p1_done")
        self.stamp(5)
        a("s_waitcnt vmcnt(0)")
        self.stamp(6)
        a("s_barrier")
        a(f"s_lshl_b32 s{T0}, s{S_G}, 3")
        a(f"s_add_u32 s{T0}, s{T0}, {FL_1}")
        self.flag_store(T0, 2)
        self.stamp(7)
        self.relayout_finish()

    def build(self):
        a = self.a
        self.entry()
        self.phase1()
        if self.stop >= 2:
            from phases import phase2, phase3, phase4, phase5
            phase2(self)
            if self.stop >= 3: phase3(self)
            if self.stop >= 4: phase4(self)
            if self.stop >= 5: phase5(self)
        a("s_waitcnt vmcnt(0)")
        self.stamp(31)
        self.stamp_flush()
        a.label("L_end")
        a("s_endpgm")
        a.lines.append(".fill 256, 4, 0xbf810000")
        body = a.text()
        errs = check(body)
        if errs:
            sys.stderr.write("\n".join(errs[:40]) + "\n%d hazards\n" % len(errs))
            raise SystemExit(1)
        head = f"""; Fused preLN -> MHA -> residual -> preLN -> SiLU FFN -> residual, one persistent launch.
; @launch grid=(256,1,1) block=(512,1,1) lds={LDS_BYTES}
.amdgcn_target "amdgcn-amd-amdhsa--gfx950"
.text
.globl {NAME}_kernel
.p2align 8
.type {NAME}_kernel,@function
{NAME}_kernel:
"""
        tail = f""".section .rodata,"a"
.p2align 6
.amdhsa_kernel {NAME}_kernel
  .amdhsa_next_free_vgpr 256
  .amdhsa_next_free_sgpr 102
  .amdhsa_accum_offset 256
  .amdhsa_group_segment_fixed_size 0
  .amdhsa_kernarg_size 72
  .amdhsa_user_sgpr_count 2
  .amdhsa_user_sgpr_kernarg_segment_ptr 1
  .amdhsa_system_sgpr_workgroup_id_x 1
.end_amdhsa_kernel
"""
        return head + body + tail

if __name__ == "__main__":
    stop = int(sys.argv[2]) if len(sys.argv) > 2 else 99
    opts = dict(kv.split("=") for kv in sys.argv[3:])
    open(sys.argv[1], "w").write(K(stop, opts).build())
    import subprocess
    r = subprocess.run(["clang", "-x", "assembler", "-target", "amdgcn-amd-amdhsa", "-mcpu=gfx950", "-c", sys.argv[1], "-o", "_chk.o"], capture_output=True, text=True)
    if r.returncode: print(r.stderr[:1500]); raise SystemExit(1)
    r = subprocess.run(["llvm-readelf", "-S", "_chk.o"], capture_output=True, text=True)
    print(sys.argv[1], "text bytes:", int([l for l in r.stdout.split("\n") if ".text" in l][0].split()[6], 16))
```

```python
import math
from asmlib import vr, sr, f2u
from tables import *
from gen import *

Qm, Qr, NEG, S0, S1, P, O, Km, Kr, V = 4, 8, 12, 28, 60, 92, 108, 124, 132, 136
AK, AKR, AV, DKM, DLIN = 152, 153, 154, 197, 196
XR = 198
CSV = 60
PL = 184
SLOT = 22528
WO_LDS = 3 * SLOT
sH, sQB, sST, sK0, sK1, sK2, sS1, sDS, sKD, sVM, sRET, sWOo, sWOl = 64, 65, 66, 67, 68, 69, 70, 71, 72, 74, 76, 78, 79
sW10, sB2, sM2, sL2, sSD = 73, 82, 83, 93, 94
sTA, sTB, sTC, sSM = 95, 96, 97, 98
WS = f"s[{SRD_WS}:{SRD_WS+3}]"
M32 = "v_mfma_f32_32x32x16_bf16"
M2B = "v_mfma_f32_32x32x4_2b_bf16"
M16 = "v_mfma_f32_16x16x32_bf16"

def kv_piece(k, i):
    a = k.a
    if i == 0:
        a(f"s_add_u32 m0, s{sW10}, s{sDS}")
        a(f"s_and_b32 s{sB2}, s{sDS}, s{sM2}")
        k.dma(DKM, SRD_WS, f"s{sK0}", "sc1")
        a(f"s_add_u32 s{sK0}, s{sK0}, 4096")
    elif i == 1:
        a(f"s_add_u32 m0, s{sW10}, s{sDS}")
        a("s_add_u32 m0, m0, 8192")
        a(f"s_add_u32 s{sDS}, s{sDS}, {SLOT}")
        k.dma(DLIN, SRD_WS, f"s{sK1}", "sc1")
        a(f"s_add_u32 s{sK1}, s{sK1}, s{sS1}")
        a(f"s_cmp_eq_u32 s{sDS}, {3*SLOT}")
        a(f"s_cselect_b32 s{sDS}, 0, s{sDS}")
    else:
        a(f"s_add_u32 m0, s{sB2}, s{sL2}")
        a("s_nop 0")
        k.dma(DLIN, SRD_WS, f"s{sK2}", "sc1")
        a(f"s_add_u32 s{sK2}, s{sK2}, 10240")

def wo_piece(k):
    a = k.a
    a(f"s_min_u32 m0, s{sWOl}, {k.DUMMY}")
    a(f"s_add_u32 s{T0}, s{sWOo}, 5120")
    a(f"s_cmp_ge_u32 s{sWOl}, {WO_LDS + 45*1024}")
    a(f"s_cselect_b32 s{T0}, s{T0}, s{sWOo}")
    a(f"s_cmp_ge_u32 s{sWOl}, {WO_LDS + 90*1024}")
    a(f"s_cselect_b32 s{T0}, 0x7f000000, s{T0}")
    k.dma(DLIN, SRD_WS, f"s{T0}", "sc1")
    a(f"s_add_u32 s{sWOl}, s{sWOl}, 8192")
    a(f"s_add_u32 s{sWOo}, s{sWOo}, 8192")

def touch_piece(k):
    a = k.a
    a(f"s_sub_u32 s{sTC}, s{sTC}, 1")
    a(f"buffer_load_dword v{PL+8}, v{DLIN}, {WS}, s{sTA} offen sc1")
    a(f"s_add_u32 s{sTA}, s{sTA}, 1024")
    a(f"s_cmp_eq_u32 s{sTC}, 0")
    a(f"s_cselect_b32 s{sTA}, s{sTB}, s{sTA}")

def qkm(a, t, d, c): a(f"{M32} {vr(d+16*t,16)}, {vr(Km+4*t,4)}, {vr(Qm,4)}, {c}")
def qkr(a, d): a(f"{M2B} {vr(d,32)}, {vr(Kr,2)}, {vr(Qr,2)}, {vr(d,32)}")
def pv(a, j): a(f"{M32} {vr(O,16)}, {vr(V+4*j,4)}, {vr(P+4*j,4)}, {vr(O,16)}")

def att_stage(k, young):
    a = k.a
    o = k.o
    barit, barpos = [int(x) for x in o.get("abarY" if young else "abarO", "0.9" if young else "1.4").split(".")]
    plo = int(o.get("plo", 9))
    def exps(b, n0, n):
        for i in range(n0, n0 + n): a(f"v_exp_f32 v{b+i}, v{b+i}")
    def cvts(b, n0, n):
        for i in range(n0, n0 + n): a(f"v_cvt_pk_bf16_f32 v{P+i}, v{b+2*i}, v{b+2*i+1}")
    def rdV(js, it):
        a(f"s_mov_b64 exec, s[{sVM}:{sVM+1}]")
        for j in js: a(f"ds_read_b128 {vr(V+4*j,4)}, v{AV} offset:{12288+(4*it+j)*640}")
        a("s_mov_b64 exec, -1")
    for it in range(4):
        cur, nx = (S0, S1) if it % 2 == 0 else (S1, S0)
        i2 = (it + 2) % 4
        npos = [0]
        def mark():
            g = it * 11 + npos[0] - (barit * 11 + barpos)
            if g == 0:
                a("s_waitcnt vmcnt(0)")
                if not o.get("anobar"): a("s_barrier")
                if o.get("its") == "2": k.stamp_dyn(54, sST)
            if not o.get("anoside"):
                d0 = int(o.get("dY" if young else "dO", 5 if young else 1)); dd = int(o.get("dd", 4))
                if g == d0 - 1:
                    Lb = a.newlabel("sb")
                    a(f"s_bitcmp1_b32 s{sSM}, s{sST}")
                    a(f"s_cbranch_scc0 {Lb}")
                    a(f"s_call_b64 s[{sRET}:{sRET+1}], L_att_side")
                    a.label(Lb)
                if not o.get("notouch") and (g - d0 - 2) % 44 in (0, 8, 16, 24): touch_piece(k)
                for i in range(3):
                    if g == d0 + i * dd: kv_piece(k, i)
                    if g == d0 + (3 + i) * dd: wo_piece(k)
            per = int(o.get("pper", 1))
            if young and it % per == 0 and npos[0] == 0: a("s_setprio 1")
            if young and it % per == per - 1 and npos[0] == plo: a("s_setprio 0")
            npos[0] += 1
        if it == 2:
            a(f"v_add_u32 v{AK}, s{sKD}, v{AK}")
            a(f"v_add_u32 v{AKR}, s{sKD}, v{AKR}")
        mark()
        a("s_waitcnt lgkmcnt(3)")
        qkm(a, 0, nx, vr(NEG, 16)); exps(cur, 0, 4); mark()
        pv(a, 3); exps(cur, 4, 4); rdV([3], it); mark()
        qkm(a, 1, nx, vr(NEG, 16))
        a(f"ds_read_b128 {vr(Km,4)}, v{AK} offset:{2048*i2}")
        cvts(cur, 0, 4); mark()
        exps(cur, 8, 4)
        a(f"ds_read_b128 {vr(Km+4,4)}, v{AK} offset:{2048*i2+1024}")
        mark()
        a("s_waitcnt lgkmcnt(5)")
        pv(a, 0); exps(cur, 12, 4); cvts(cur, 4, 2); mark()
        qkr(a, nx); cvts(cur, 6, 2)
        a(f"ds_read_b64 {vr(Kr,2)}, v{AKR} offset:{8192+1024*i2}")
        exps(cur, 16, 4); mark()
        exps(cur, 20, 4); cvts(cur, 8, 2); mark()
        a("s_waitcnt lgkmcnt(5)")
        pv(a, 1); cvts(cur, 10, 2); exps(cur, 24, 2); mark()
        exps(cur, 26, 3); mark()
        a("s_waitcnt lgkmcnt(4)")
        pv(a, 2); exps(cur, 29, 3); mark()
        cvts(cur, 12, 4)
        if it == 3:
            a(f"v_add_u32 v{AV}, s{sKD}, v{AV}")
            a(f"s_add_u32 s{sST}, s{sST}, 1")
            a(f"s_mul_i32 s{T0}, s{sST}, 0x56")
            a(f"s_lshr_b32 s{T0}, s{T0}, 8")
            a(f"s_mul_i32 s{T0}, s{T0}, 3")
            a(f"s_sub_u32 s{T0}, s{sST}, s{T0}")
            a(f"s_mov_b32 s{sKD}, {SLOT}")
            a(f"s_cmp_eq_u32 s{T0}, 2")
            a(f"s_cselect_b32 s{sKD}, {-2*SLOT & 0xffffffff}, s{sKD}")
        rdV([0, 1, 2], (it + 1) % 4)

def att_side(k):
    a = k.a
    a.label("L_att_side")
    a(f"s_cmp_ge_u32 s{sST}, 4")
    a("s_cbranch_scc1 L_as_hi")
    for st in range(3):
        a(f"s_cmp_eq_u32 s{sST}, {st}")
        a(f"s_cbranch_scc1 L_as_{st}")
    a(f"s_mov_b32 s{T0}, {FL_R}")
    a(f"buffer_load_dwordx4 v[{PL}:{PL+3}], v{DLIN}, {WS}, s{T0} offen sc1")
    a(f"buffer_load_dwordx4 v[{PL+4}:{PL+7}], v{DLIN}, {WS}, s{T0} offen offset:1024 sc1")
    a(f"s_setpc_b64 s[{sRET}:{sRET+1}]")
    a.label("L_as_0")
    k.relayout_issue()
    a(f"s_setpc_b64 s[{sRET}:{sRET+1}]")
    a.label("L_as_1")
    k.relayout_finish()
    a("s_nop 1")
    a(f"s_setpc_b64 s[{sRET}:{sRET+1}]")
    a.label("L_as_2")
    a(f"s_lshl_b32 s{T0}, s{S_G}, 3")
    a(f"s_add_u32 s{T0}, s{T0}, {FL_R}")
    k.flag_store(T0, PL)
    a(f"s_setpc_b64 s[{sRET}:{sRET+1}]")
    a.label("L_as_hi")
    a(f"s_cmp_lg_u32 s{sST}, 4")
    a("s_cbranch_scc1 L_as_ret")
    N = f"s[{S_NONCE}:{S_NONCE+1}]"
    a(f"v_cmp_ne_u64 vcc, {N}, v[{PL}:{PL+1}]")
    a(f"v_cmp_ne_u64 s[{S_M1}:{S_M1+1}], {N}, v[{PL+2}:{PL+3}]")
    a(f"s_and_b32 s{T1}, s{S_J}, 7")
    a(f"s_or_b64 s[{T4}:{T5}], vcc, s[{S_M1}:{S_M1+1}]")
    a(f"v_cmp_ne_u64 vcc, {N}, v[{PL+4}:{PL+5}]")
    a(f"v_cmp_ne_u64 s[{S_M1}:{S_M1+1}], {N}, v[{PL+6}:{PL+7}]")
    a(f"s_mul_i32 s{sSD}, s{T1}, {20*5120}")
    a(f"s_add_u32 s{sSD}, s{sSD}, {WS_WO}")
    a(f"s_add_u32 s{sWOo}, s{sSD}, s{sW10}")
    a(f"s_add_u32 s{sWOl}, s{sW10}, {WO_LDS}")
    a(f"s_lshl_b32 s{T2}, s{S_J}, 3")
    a(f"s_add_u32 s{T2}, s{T2}, s{S_W}")
    a(f"s_mul_i32 s{sTA}, s{T2}, 8960")
    a(f"s_add_u32 s{sTA}, s{sTA}, {WS_W1}")
    a(f"s_lshr_b32 s{sTB}, s{T2}, 4")
    a(f"s_mul_i32 s{sTB}, s{sTB}, {27*5120}")
    a(f"s_and_b32 s{T2}, s{T2}, 15")
    a(f"s_mul_i32 s{T2}, s{T2}, 4800")
    a(f"s_add_u32 s{sTB}, s{sTB}, s{T2}")
    a(f"s_add_u32 s{sTB}, s{sTB}, {WS_W2}")
    a(f"s_mov_b32 s{sTC}, 9")
    a(f"s_or_b64 s[{T4}:{T5}], s[{T4}:{T5}], vcc")
    a(f"s_or_b64 s[{T4}:{T5}], s[{T4}:{T5}], s[{S_M1}:{S_M1+1}]")
    a("s_cbranch_scc0 L_as_ret")
    a(f"s_mov_b32 s{T3}, {FL_R}")
    k.poll(256, T3, 8, PL, only_wave0=False)
    a.label("L_as_ret")
    a(f"s_cmp_eq_u32 s{sST}, 6")
    a("s_cbranch_scc0 L_as_ret2")
    for r in (sK0, sK1, sK2): a(f"s_mov_b32 s{r}, 0x7f000000")
    a.label("L_as_ret2")
    a(f"s_setpc_b64 s[{sRET}:{sRET+1}]")

def resid_x(k):
    a = k.a
    a(f"s_lshr_b32 s{T0}, s{S_J}, 3")
    a(f"s_lshl_b32 s{T1}, s{S_C}, 2")
    a(f"s_add_u32 s{T0}, s{T0}, s{T1}")
    a(f"s_lshl_b32 s{T0}, s{T0}, 2")
    a(f"s_and_b32 s{T1}, s{S_W}, 3")
    a(f"s_add_u32 s{T0}, s{T0}, s{T1}")
    a(f"s_mul_i32 s{T0}, s{T0}, {16*1280}")
    a(f"s_and_b32 s{T1}, s{S_J}, 7")
    a(f"s_mul_i32 s{T1}, s{T1}, 160")
    a(f"s_add_u32 s{T0}, s{T0}, s{T1}")
    a(f"s_lshr_b32 s{T1}, s{S_W}, 2")
    a(f"s_lshl_b32 s{T1}, s{T1}, 6")
    a(f"s_add_u32 s{T1}, s{T1}, s{T0}")
    a(f"v_lshrrev_b32 v{PL}, 2, v0")
    a(f"v_mul_u32_u24 v{PL}, 1280, v{PL}")
    a(f"v_and_b32 v{PL+1}, 3, v0")
    a(f"v_lshl_add_u32 v{PL}, v{PL+1}, 3, v{PL}")
    a(f"buffer_load_dwordx2 v[{XR}:{XR+1}], v{PL}, s[{SRD_X}:{SRD_X+3}], s{T1} offen")
    a(f"buffer_load_dwordx2 v[{XR+2}:{XR+3}], v{PL}, s[{SRD_X}:{SRD_X+3}], s{T1} offen offset:32")
    a(f"buffer_load_dwordx2 v[{XR+4}:{XR+5}], v{PL}, s[{SRD_X}:{SRD_X+3}], s{T0} offen offset:128")

def rowmax(a, b, n, dst, t):
    a(f"v_max3_f32 v{dst}, v{b}, v{b+1}, v{dst}")
    for i in range(2, n, 2): a(f"v_max3_f32 v{dst}, v{b+i}, v{b+i+1}, v{dst}")

def set_neg(a, m, t):
    a(f"v_mov_b32 v{t}, v{m}")
    a("s_nop 1")
    a(f"v_permlane32_swap_b32 v{m}, v{t}")
    a("s_nop 0")
    a(f"v_max_f32 v{m}, v{m}, v{t}")
    for r in range(16): a(f"v_sub_f32 v{NEG+r}, 0, v{m}")

def att_fallback(k):
    a = k.a
    a.label("L_att_fb")
    sI, sA, sB, sC = T0, T1, T2, T3
    def init():
        a(f"s_lshl_b32 s{sA}, s{sH}, 16")
        a(f"s_add_u32 s{sA}, s{sA}, {WS_K}")
        a(f"s_lshr_b32 s{sB}, s{sH}, 1")
        a(f"s_lshl_b32 s{sB}, s{sB}, 15")
        a(f"s_add_u32 s{sB}, s{sB}, {WS_K + 64*32768}")
        a(f"s_mul_i32 s{sC}, s{sH}, 81920")
        a(f"s_add_u32 s{sC}, s{sC}, {WS_V}")
        a(f"s_mov_b32 s{sI}, 0")
    def ldk():
        a(f"buffer_load_dwordx4 {vr(Km,4)}, v{DKM}, {WS}, s{sA} offen sc1")
        a(f"buffer_load_dwordx4 {vr(Km+4,4)}, v{DKM}, {WS}, s{sA} offen offset:512 sc1")
        a(f"buffer_load_dwordx2 {vr(Kr,2)}, v{PL+1}, {WS}, s{sB} offen sc1")
    def step():
        a(f"s_add_u32 s{sA}, s{sA}, 1024")
        a(f"s_add_u32 s{sB}, s{sB}, 1024")
        a(f"s_add_u32 s{sC}, s{sC}, 2560")
        a(f"s_add_u32 s{sI}, s{sI}, 1")
        a(f"s_cmp_lt_u32 s{sI}, 32")
    a(f"s_and_b32 s{T0}, s{sH}, 1")
    a(f"s_lshl_b32 s{T0}, s{T0}, 3")
    a(f"v_add_u32 v{PL+1}, s{T0}, v{DLIN}")
    a(f"v_lshrrev_b32 v{PL+2}, 5, v0")
    a(f"v_mul_u32_u24 v{PL+2}, 20, v{PL+2}")
    a(f"v_and_b32 v{PL+3}, 31, v0")
    a(f"v_add_lshl_u32 v{PL+2}, v{PL+2}, v{PL+3}, 4")
    a(f"v_mov_b32 v{PL}, 0xff800000")
    init()
    a.label("L_fb_max")
    ldk()
    a("s_waitcnt vmcnt(0)")
    qkm(a, 0, S0, "0"); qkm(a, 1, S0, "0")
    a("s_nop 9")
    qkr(a, S0)
    a("s_nop 15"); a("s_nop 3")
    rowmax(a, S0, 32, PL, PL + 4)
    step()
    a("s_cbranch_scc1 L_fb_max")
    set_neg(a, PL, PL + 4)
    for r in range(16): a(f"v_mov_b32 v{O+r}, 0")
    init()
    a.label("L_fb_acc")
    ldk()
    a(f"s_mov_b64 exec, s[{sVM}:{sVM+1}]")
    for j in range(4): a(f"buffer_load_dwordx4 {vr(V+4*j,4)}, v{PL+2}, {WS}, s{sC} offen offset:{640*j} sc1")
    a("s_mov_b64 exec, -1")
    a("s_waitcnt vmcnt(0)")
    qkm(a, 0, S0, vr(NEG, 16)); qkm(a, 1, S0, vr(NEG, 16))
    a("s_nop 9")
    qkr(a, S0)
    a("s_nop 15"); a("s_nop 3")
    for i in range(32): a(f"v_exp_f32 v{S0+i}, v{S0+i}")
    a("s_nop 0")
    for i in range(16): a(f"v_cvt_pk_bf16_f32 v{P+i}, v{S0+2*i}, v{S0+2*i+1}")
    a("s_nop 1")
    for j in range(4): pv(a, j)
    step()
    a("s_cbranch_scc1 L_fb_acc")
    a("s_nop 11")
    a("s_branch L_att_norm")

def phase2(k):
    a = k.a
    a.c("================ phase 2: attention")
    a(f"s_lshl_b32 s{sH}, s{S_C}, 2")
    a(f"s_lshr_b32 s{T0}, s{S_J}, 3")
    a(f"s_add_u32 s{sH}, s{sH}, s{T0}")
    a(f"s_and_b32 s{sQB}, s{S_J}, 7")
    a(f"v_lshlrev_b32 v{DLIN}, 4, v0")
    a("v_lshrrev_b32 v1, 5, v0")
    a("v_and_b32 v2, 31, v0")
    a("v_lshlrev_b32 v3, 15, v1")
    a(f"v_lshl_add_u32 v{DKM}, v2, 4, v3")
    a(f"v_mov_b32 v{AK}, v{DLIN}")
    a(f"s_and_b32 s{T0}, s{sH}, 1")
    a(f"s_lshl_b32 s{T0}, s{T0}, 3")
    a(f"v_add_u32 v{AKR}, s{T0}, v{DLIN}")
    a("v_mul_u32_u24 v3, 20, v1")
    a(f"v_add_lshl_u32 v{AV}, v3, v2, 4")
    a(f"v_lshl_add_u32 v10, v2, 4, s{T0}")
    a(f"s_mov_b32 s{sVM}, 0x000fffff")
    a(f"s_mov_b32 s{sVM+1}, 0x000fffff")
    a(f"s_lshl_b32 s{sK0}, s{sH}, 16")
    a(f"s_lshl_b32 s{T0}, s{S_W}, 9")
    a(f"s_add_u32 s{sK0}, s{sK0}, s{T0}")
    a(f"s_add_u32 s{sK0}, s{sK0}, {WS_K}")
    a(f"s_lshl_b32 s{T0}, s{S_W}, 10")
    a(f"s_mul_i32 s{sK2}, s{sH}, 81920")
    a(f"s_add_u32 s{sK2}, s{sK2}, s{T0}")
    a(f"s_add_u32 s{T1}, s{sK2}, {WS_V - 4096}")
    a(f"s_add_u32 s{sK2}, s{sK2}, {WS_V + 4096}")
    a(f"s_lshr_b32 s{T2}, s{sH}, 1")
    a(f"s_lshl_b32 s{T2}, s{T2}, 15")
    a(f"s_add_u32 s{sK1}, s{T2}, s{T0}")
    a(f"s_add_u32 s{sK1}, s{sK1}, {WS_K + 64*32768}")
    a(f"s_mov_b32 s{sS1}, 10240")
    a(f"s_cmp_lt_u32 s{S_W}, 4")
    a(f"s_cselect_b32 s{sK1}, s{sK1}, s{T1}")
    a(f"s_cselect_b32 s{sS1}, 4096, s{sS1}")
    a(f"s_mov_b32 s{sDS}, 0")
    a(f"s_mov_b32 s{sST}, 0")
    a(f"s_mov_b32 s{sKD}, {SLOT}")
    a(f"s_mov_b32 s{sW10}, s{T0}")
    a(f"s_mov_b32 s{sWOo}, 0")
    a(f"s_mov_b32 s{sSD}, 0")
    a(f"s_mov_b32 s{sSM}, 0x5f")
    a(f"s_mov_b32 s{sTA}, 0x7f000000")
    a(f"s_mov_b32 s{sTB}, 0x7f000000")
    a(f"s_mov_b32 s{sTC}, 0x100")
    a(f"s_mov_b32 s{sWOl}, 0x40000000")
    a(f"s_add_u32 s{sL2}, s{T0}, 16384")
    a(f"s_cmp_lt_u32 s{S_W}, 6")
    a(f"s_cselect_b32 s{sM2}, -1, 0")
    a(f"s_cselect_b32 s{sL2}, s{sL2}, {k.DUMMY}")
    a(f"s_cselect_b32 s{sK2}, s{sK2}, 0x7f000000")
    a(f"s_lshl_b32 s{T0}, s{sQB}, 3")
    a(f"s_add_u32 s{T0}, s{T0}, s{S_W}")
    a(f"s_lshl_b32 s{T0}, s{T0}, 9")
    a(f"s_add_u32 s{T2}, s{T2}, s{T0}")
    a(f"s_add_u32 s80, s{T2}, {WS_Q + 64*32768}")
    a(f"s_lshl_b32 s{T3}, s{sH}, 16")
    a(f"s_add_u32 s{T3}, s{T3}, s{T0}")
    a(f"s_add_u32 s81, s{T3}, {WS_Q}")
    a("v_cmp_eq_u32 vcc, 20, v2")
    a("v_mov_b32 v3, 0x3f803f80")
    a("s_nop 0")
    a("v_cndmask_b32 v3, 0, v3, vcc")
    for r in range(16): a(f"v_mov_b32 v{V+r}, v3")
    for r in range(16): a(f"v_mov_b32 v{O+r}, 0")
    for r in range(12, 16): a(f"v_mov_b32 v{P+r}, 0")
    a(f"s_mul_i32 s{T0}, s{sH}, 20")
    a(f"s_add_u32 s{T1}, s{T0}, 19")
    a(f"s_lshr_b32 s{T0}, s{T0}, 7")
    a(f"s_lshr_b32 s{T1}, s{T1}, 7")
    a(f"s_sub_u32 s{T1}, s{T1}, s{T0}")
    a(f"s_lshl_b32 s{T1}, s{T1}, 4")
    a(f"v_and_b32 v{PL+4}, s{T1}, v0")
    a(f"v_and_b32 v{PL+5}, 15, v0")
    a(f"v_add_u32 v{PL+5}, v{PL+5}, v{PL+4}")
    a(f"v_mul_u32_u24 v{PL+6}, 0x50, v1")
    a(f"v_add3_u32 v{PL+5}, v{PL+5}, v{PL+6}, 64")
    a(f"v_add_u32 v{PL+5}, 16, v{PL+5}")
    a(f"v_lshlrev_b32 v{PL+5}, 7, v{PL+5}")
    a(f"s_lshl_b32 s{T2}, s{sQB}, 1")
    a(f"v_and_b32 v{PL+6}, 1, v0")
    a(f"v_add3_u32 v{PL+4}, v{PL+4}, v{PL+6}, s{T2}")
    a(f"v_lshlrev_b32 v{PL+4}, 7, v{PL+4}")
    a(f"s_lshl_b32 s{T0}, s{T0}, 11")
    a(f"s_add_u32 s{T3}, s{T0}, {FL_1}")
    k.poll2(PL + 5, PL + 4, T3, PL)
    a("s_barrier")
    k.stamp(8)
    a(f"buffer_load_dwordx4 {vr(Qm,4)}, v{DKM}, {WS}, s81 offen sc1")
    a(f"buffer_load_dwordx2 {vr(Qr,2)}, v10, {WS}, s80 offen sc1")
    for i in range(3): kv_piece(k, i)
    a("s_waitcnt vmcnt(0)")
    for i in range(3): kv_piece(k, i)
    a("s_barrier")
    k.stamp(9)
    def rdk(i):
        a(f"ds_read_b128 {vr(Km,4)}, v{AK} offset:{2048*i}")
        a(f"ds_read_b128 {vr(Km+4,4)}, v{AK} offset:{2048*i+1024}")
        a(f"ds_read_b64 {vr(Kr,2)}, v{AKR} offset:{8192+1024*i}")
    rdk(0)
    a(f"v_mov_b32 v{PL}, 0xff800000")
    a("s_waitcnt lgkmcnt(0)")
    qkm(a, 0, S1, "0"); qkm(a, 1, S1, "0")
    a("s_nop 9")
    qkr(a, S1)
    a("s_nop 15"); a("s_nop 3")
    rowmax(a, S1, 32, PL, PL + 4)
    set_neg(a, PL, PL + 4)
    a("s_nop 1")
    qkm(a, 0, S0, vr(NEG, 16)); qkm(a, 1, S0, vr(NEG, 16))
    a("s_nop 9")
    qkr(a, S0)
    rdk(1)
    a(f"s_mov_b64 exec, s[{sVM}:{sVM+1}]")
    for j in range(3): a(f"ds_read_b128 {vr(V+4*j,4)}, v{AV} offset:{12288+j*640}")
    a("s_mov_b64 exec, -1")
    a("s_nop 10")
    a(f"s_cmp_ge_u32 s{S_W}, 4")
    a("s_cbranch_scc1 L_att_young")
    for young in (0, 1):
        L = "L_att_young" if young else "L_att_old"
        a.align(6)
        a.label(L)
        att_stage(k, young)
        a(f"s_cmp_lt_u32 s{sST}, 8")
        a(f"s_cbranch_scc1 {L}")
        if not young: a("s_branch L_att_done")
    a("s_setprio 0")
    a.label("L_att_done")
    a("s_waitcnt lgkmcnt(3)")
    pv(a, 3)
    k.stamp(10)
    a(f"s_lshl_b32 s{T0}, s{sQB}, 4")
    a(f"s_lshl_b32 s{T1}, s{S_W}, 1")
    a(f"s_add_u32 s{T0}, s{T0}, s{T1}")
    a(f"s_mul_i32 s{T0}, s{T0}, 20480")
    a(f"s_add_u32 s{T0}, s{T0}, {WS_O}")
    a(f"s_lshl_b32 s{T1}, s{sH}, 9")
    a(f"s_add_u32 s80, s{T0}, s{T1}")
    a(f"s_lshr_b32 s{T1}, s{sH}, 4")
    a(f"s_lshl_b32 s{T2}, s{T1}, 11")
    a(f"s_add_u32 s80, s80, s{T2}")
    a(f"s_lshl_b32 s{T1}, s{T1}, 13")
    a(f"s_add_u32 s{T0}, s{T0}, s{T1}")
    a(f"s_lshr_b32 s{T1}, s{sH}, 3")
    a(f"s_lshl_b32 s{T1}, s{T1}, 10")
    a(f"s_add_u32 s{T0}, s{T0}, s{T1}")
    a(f"s_bfe_u32 s{T1}, s{sH}, 0x20001")
    a(f"s_lshl_b32 s{T1}, s{T1}, 7")
    a(f"s_add_u32 s{T0}, s{T0}, s{T1}")
    a(f"s_and_b32 s{T1}, s{sH}, 1")
    a(f"s_lshl_b32 s{T1}, s{T1}, 9")
    a(f"s_add_u32 s{T0}, s{T0}, s{T1}")
    a(f"s_add_u32 s81, s{T0}, 8192")
    a("s_waitcnt lgkmcnt(0)")
    a(f"v_add_f32 v1, abs(v{O}), abs(v{O+1})")
    a(f"v_add_f32 v3, abs(v{O+2}), abs(v{O+3})")
    for r in range(4, 12, 2):
        a(f"v_add_f32 v1, abs(v{O+r}), v1")
        a(f"v_add_f32 v3, abs(v{O+r+1}), v3")
    a(f"v_mov_b32 v2, 0x{f2u(2.0**40):08x}")
    a("v_add_f32 v1, v1, v3")
    a("v_mov_b32 v3, 0x203")
    a(f"v_cmp_nle_f32 vcc, v{O+8}, v2")
    a(f"v_cmp_class_f32 s[{S_M1}:{S_M1+1}], v1, v3")
    a("s_and_b32 vcc_lo, vcc_lo, 0")
    a(f"s_or_b64 vcc, vcc, s[{S_M1}:{S_M1+1}]")
    a("s_cbranch_scc1 L_att_fb")
    a.label("L_att_norm")
    a(f"v_mov_b32 v1, v{O+8}")
    a(f"v_mov_b32 v2, v{O+8}")
    a("v_bfe_u32 v3, v0, 4, 1")
    a("v_mul_u32_u24 v3, 20480, v3")
    a("v_permlane32_swap_b32 v1, v2")
    a("s_nop 0")
    a("v_rcp_f32 v2, v2")
    a("v_and_b32 v10, 15, v0")
    a("v_lshl_add_u32 v11, v10, 4, v3")
    a("v_lshl_add_u32 v3, v10, 3, v3")
    a("v_lshrrev_b32 v10, 5, v0")
    a("v_lshl_add_u32 v10, v10, 8, v11")
    for r in range(12): a(f"v_mul_f32 v{O+r}, v2, v{O+r}")
    for r in range(6): a(f"v_cvt_pk_bf16_f32 v{P+r}, v{O+2*r}, v{O+2*r+1}")
    a(f"buffer_store_dwordx4 {vr(P,4)}, v10, {WS}, s80 offen sc1")
    a("s_mov_b64 exec, 0xffffffff")
    a(f"buffer_store_dwordx2 {vr(P+4,2)}, v3, {WS}, s81 offen sc1")
    a("s_mov_b64 exec, -1")
    a("s_branch L_att_end")
    att_side(k)
    att_fallback(k)
    a.label("L_att_end")
    if k.stop == 2:
        a("s_waitcnt vmcnt(0)")
        k.stamp(11)


class VQ:
    def __init__(self, a): self.a = a; self.q = []
    def add(self, tag): self.q.append(tag)
    def wait(self, tag):
        if tag not in self.q: return
        i = len(self.q) - 1 - self.q[::-1].index(tag)
        n = len(self.q) - 1 - i
        self.a(f"s_waitcnt vmcnt({n})")
        self.q = self.q[i + 1:]

def dma_ops(k, vq, tag, first, last, s_src, s_lds, lds0, nw=8):
    a = k.a
    def one(i):
        def f():
            a(f"s_add_u32 m0, s{s_lds}, {lds0 + nw * i * 1024}")
            a(f"s_add_u32 s{T0}, s{s_src}, {(first + nw * i) * 1024}")
            if first + nw * i + nw > last:
                a(f"s_cmp_ge_u32 s{S_W}, {last - first - nw*i + (8 - nw)}")
                a(f"s_cselect_b32 m0, {k.DUMMY}, m0")
                a(f"s_cselect_b32 s{T0}, 0x7f000000, s{T0}")
            k.dma(DLIN, SRD_WS, f"s{T0}", "sc1")
            if vq is not None: vq.add(tag)
        return f
    return [one(i) for i in range((last - first + nw - 1) // nw)]

DL8 = 252
def a_op(k, vq, j, ks, s_base, reg, split):
    a = k.a
    def f():
        a(f"s_add_u32 s{T0}, s{s_base}, {1024*ks}")
        if split:
            a(f"buffer_load_dwordx2 {vr(reg,2)}, v{DL8}, {WS}, s{T0} offen sc1")
            a(f"buffer_load_dwordx2 {vr(reg+2,2)}, v{DL8}, {WS}, s{T0} offen offset:512 sc1")
            vq.add(("a", j))
        else:
            a(f"buffer_load_dwordx4 {vr(reg,4)}, v{DLIN}, {WS}, s{T0} offen sc1")
        vq.add(("A", j))
    return f

AF = 4
WB = 112
ACC = 204
HR = 198
BA = 232
TM = 240
sRG, sKH, sN8, sRB64, sA, sB = 64, 65, 66, 67, 68, 69
sW7 = 72
CS_LDS = 158 * 1024

def mm_steps(k, vq, n, nt, addr, areg, extra, pre_hook=None):
    a = k.a
    NB = 3
    def rd(j, t):
        r, off = addr(j, t)
        a(f"ds_read_b128 {vr(WB + (j % NB) * 4 * nt + 4 * t, 4)}, v{r} offset:{off}")
    for j in range(2):
        for t in range(nt): rd(j, t)
    for j in range(n):
        b = WB + (j % NB) * 4 * nt
        ops = list(extra.get(j, []))
        slots = {}
        for i, f in enumerate(ops): slots.setdefault(1 + (i * (nt - 1)) // max(1, len(ops)), []).append(f)
        if pre_hook and j + 2 < n: pre_hook(j + 2)
        vq.wait(("A", j))
        a(f"s_waitcnt lgkmcnt({nt if j + 1 < n else 0})")
        for t in range(nt):
            c = "0" if j == 0 else vr(ACC + 4 * t, 4)
            a(f"{M16} {vr(ACC+4*t,4)}, {vr(b+4*t,4)}, {vr(areg(j),4)}, {c}")
            if j + 2 < n: rd(j + 2, t)
            for f in slots.get(t, []): f()

def tile_addrs(k, base_expr_sgpr, dst):
    a = k.a
    a(f"s_lshl_b32 s{T1}, s{sKH}, 11")
    a(f"v_add_u32 v{dst+2}, s{base_expr_sgpr}, v{DLIN}")
    a(f"v_add_u32 v{dst}, s{T1}, v{dst+2}")
    a(f"v_subrev_u32 v{dst+1}, s{T1}, v{dst+2}")

XW, XRD = 238, 239
def exch_addrs(k, scr):
    a = k.a
    a(f"s_mul_i32 s{T0}, s{sRG}, 5120")
    a(f"s_add_u32 s{T0}, s{T0}, {scr}")
    a(f"s_lshl_b32 s{T1}, s{sKH}, 11")
    a(f"s_add_u32 s{T2}, s{T0}, s{T1}")
    a(f"v_add_u32 v{XW}, s{T2}, v{DLIN}")
    a(f"s_sub_u32 s{T2}, s{T0}, s{T1}")
    a(f"s_add_u32 s{T2}, s{T2}, 2048")
    a(f"v_add_u32 v{XRD}, s{T2}, v{DLIN}")

def reduce_halves(k, resid, pad):
    a = k.a
    if pad: a(f"s_nop {pad-1}")
    a(f"ds_write_b128 v{XW}, {vr(ACC+8,4)}")
    a(f"ds_write_b128 v{XW}, {vr(ACC+12,4)} offset:1024")
    L = a.newlabel("rh")
    a(f"s_cmp_eq_u32 s{sKH}, 0")
    a(f"s_cbranch_scc1 {L}")
    a(f"ds_write_b128 v{XW}, {vr(ACC+16,4)} offset:2048")
    a.label(L)
    a("s_waitcnt lgkmcnt(2)")
    for i, t in enumerate((0, 1, 4)):
        for h in range(2):
            a(f"v_lshlrev_b32 v{TM+2}, 16, v{resid+2*i+h}")
            a(f"v_and_b32 v{TM+3}, 0xffff0000, v{resid+2*i+h}")
            a(f"v_add_f32 v{ACC+4*t+2*h}, v{ACC+4*t+2*h}, v{TM+2}")
            a(f"v_add_f32 v{ACC+4*t+2*h+1}, v{ACC+4*t+2*h+1}, v{TM+3}")
    a("s_waitcnt lgkmcnt(0)")
    a("s_barrier")
    for i in range(3): a(f"ds_read_b128 {vr(WB+4*i,4)}, v{XRD} offset:{1024*i}")
    for i, t in enumerate((0, 1, 4)):
        a(f"s_waitcnt lgkmcnt({2-i})")
        for r in range(4): a(f"v_add_f32 v{ACC+4*t+r}, v{ACC+4*t+r}, v{WB+4*i+r}")

def row_reduce(a, r, t):
    for sw in ("16", "32"):
        a(f"v_mov_b32 v{t}, v{r}")
        a(f"v_mov_b32 v{t+1}, v{r+1}")
        a("s_nop 0")
        a(f"v_permlane{sw}_swap_b32 v{r}, v{t}")
        a(f"v_permlane{sw}_swap_b32 v{r+1}, v{t+1}")
        a("s_nop 0")
        a(f"v_add_f32 v{r}, v{r}, v{t}")
        a(f"v_add_f32 v{r+1}, v{r+1}, v{t+1}")

def not_wave0(k, fn):
    a = k.a
    L = a.newlabel("nw0")
    a(f"s_cmp_eq_u32 s{S_W}, 0")
    a(f"s_cbranch_scc1 {L}")
    fn()
    a.label(L)

P3_SCR, P3_LAST = 35 * 1024, 56 * 1024
sW1, sW17, sTT3 = 80, 95, 81
def phase3(k):
    a = k.a
    a.c("================ phase 3: output projection + residual")
    a(f"s_lshl_b32 s{T0}, s{sQB}, 5")
    a(f"s_add_u32 s{T0}, s{T0}, s{sH}")
    a(f"s_mul_i32 s{T3}, s{T0}, {FSP}")
    a(f"s_add_u32 s{T3}, s{T3}, {FL_2}")
    a(f"s_and_b32 s{sRG}, s{S_W}, 3")
    a(f"s_lshr_b32 s{sKH}, s{S_W}, 2")
    a(f"s_and_b32 s{sN8}, s{S_J}, 7")
    a(f"s_lshl_b32 s{sRB64}, s{S_C}, 2")
    a(f"s_lshr_b32 s{T0}, s{S_J}, 3")
    a(f"s_add_u32 s{sRB64}, s{sRB64}, s{T0}")
    a(f"s_sub_u32 s{sW7}, s{sW10}, 1024")
    a(f"s_add_u32 s{sA}, s{sSD}, s{sW7}")
    a(f"s_and_b32 s{T1}, s{S_J}, 15")
    a(f"s_mul_i32 s{sW1}, s{T1}, {20*7168}")
    a(f"s_add_u32 s{sW1}, s{sW1}, {WS_W1}")
    a(f"s_add_u32 s{sW17}, s{sW1}, s{sW7}")
    a(f"s_add_u32 s{sW1}, s{sW1}, s{sW10}")
    a(f"v_lshlrev_b32 v{DL8}, 3, v0")
    a("s_waitcnt vmcnt(0)")
    a("s_barrier")
    k.stamp(11)
    k.flag_store(T3, TM)
    def early():
        for f in dma_ops(k, None, None, 45, 50, sA, sW7, P3_LAST, 7): f()
        for f in dma_ops(k, None, None, 95, 100, sA, sW7, P3_LAST + 5120, 7): f()
        for f in dma_ops(k, None, None, 0, 35, sW17, sW7, 0, 7): f()
        resid_x(k)
    not_wave0(k, early)
    a(f"s_cmp_lt_u32 s{S_W}, 6")
    a("s_cbranch_scc1 L_p3_nocs")
    a(f"s_and_b32 s{T1}, s{S_J}, 15")
    a(f"s_sub_u32 s{T0}, s{S_W}, 6")
    a(f"s_lshl_b32 s{T0}, s{T0}, 6")
    a(f"v_add_u32 v{TM+4}, s{T0}, v0")
    a(f"s_mul_i32 s{T2}, s{T1}, 96")
    a(f"v_add_u32 v{TM+5}, s{T2}, v{TM+4}")
    a(f"s_min_u32 s{T2}, s{T1}, 11")
    a(f"s_lshl_b32 s{T2}, s{T2}, 4")
    a(f"s_add_u32 s{T2}, s{T2}, 1536")
    a(f"v_and_b32 v{TM+6}, 15, v0")
    a(f"v_add_u32 v{TM+6}, s{T2}, v{TM+6}")
    a(f"v_cmp_gt_u32 vcc, 96, v{TM+4}")
    a(f"s_mov_b32 s{T2}, {WS_CS1}")
    a("s_nop 0")
    a(f"v_cndmask_b32 v{TM+5}, v{TM+6}, v{TM+5}, vcc")
    a(f"v_lshlrev_b32 v{TM+5}, 2, v{TM+5}")
    for i in range(20):
        a(f"buffer_load_dword v{CSV+i}, v{TM+5}, {WS}, s{T2} offen sc1")
        if i < 19: a(f"s_add_u32 s{T2}, s{T2}, {1728*4}")
    a.label("L_p3_nocs")
    a(f"s_mul_i32 s{T0}, s{sKH}, {45*1024}")
    a(f"s_add_u32 s{T0}, s{T0}, {WO_LDS}")
    tile_addrs(k, T0, BA)
    a(f"s_mul_i32 s{T0}, s{sKH}, 5120")
    a(f"s_add_u32 s{T0}, s{T0}, {P3_LAST}")
    tile_addrs(k, T0, BA + 3)
    exch_addrs(k, P3_SCR)
    a(f"s_lshl_b32 s{T0}, s{sRB64}, 2")
    a(f"s_add_u32 s{sTT3}, s{T0}, s{sRG}")
    a(f"s_mul_i32 s{sA}, s{sTT3}, 20480")
    a(f"s_mul_i32 s{T1}, s{sKH}, 10240")
    a(f"s_add_u32 s{sA}, s{sA}, s{T1}")
    a(f"s_add_u32 s{sA}, s{sA}, {WS_O}")
    a(f"s_mul_i32 s{T3}, s{S_C}, {32*FSP}")
    a(f"s_add_u32 s{T3}, s{T3}, {FL_2}")
    k.poll(32, T3, FSP, TM)
    a(f"s_cmp_lg_u32 s{S_W}, 0")
    a("s_cbranch_scc1 L_p3_rx")
    resid_x(k)
    a.label("L_p3_rx")
    a("s_waitcnt vmcnt(8)")
    a("s_barrier")
    k.stamp(12)
    vq = VQ(a)
    aop = [a_op(k, vq, j, j, sA, AF + 4 * j, j >= 8) for j in range(10)]
    D = int(k.o.get("d3", 4))
    for j in range(D): aop[j]()
    def addr(j, t):
        r = (BA if j < 9 else BA + 3) + (0, 0, 1, 1, 2)[t]
        return r, (j * 5120 if j < 9 else 0) + t * 1024
    mm_steps(k, vq, 10, 5, addr, lambda j: AF + 4 * j, {j: [aop[j + D]] for j in range(10 - D)})
    k.stamp(13)
    a(f"v_and_b32 v{TM+2}, 15, v0")
    a(f"v_lshrrev_b32 v{TM+3}, 4, v0")
    a(f"v_lshl_add_u32 v{TM+2}, v{TM+2}, 2, v{TM+3}")
    a(f"v_lshlrev_b32 v{TM+2}, 2, v{TM+2}")
    for r in range(6): a(f"ds_bpermute_b32 v{XR+r}, v{TM+2}, v{XR+r}")
    a(f"s_cmp_lt_u32 s{S_W}, 6")
    a("s_cbranch_scc1 L_p3_nocs2")
    for w in (10, 5):
        for i in range(w): a(f"v_add_f32 v{CSV+i}, v{CSV+i}, v{CSV+w+i}")
    for i in range(1, 5): a(f"v_add_f32 v{CSV}, v{CSV}, v{CSV+i}")
    a(f"s_lshl_b32 s{T0}, s{S_W}, 8")
    a(f"s_add_u32 s{T0}, s{T0}, {CS_LDS - 6*256}")
    a(f"v_lshl_add_u32 v{TM+4}, v0, 2, s{T0}")
    a(f"ds_write_b32 v{TM+4}, v{CSV}")
    a.label("L_p3_nocs2")
    a(f"s_mul_i32 s{sA}, s{sTT3}, 20480")
    a(f"s_add_u32 s{sA}, s{sA}, {WS_H}")
    a(f"s_lshl_b32 s{T0}, s{sN8}, 1")
    a(f"s_add_u32 s{T0}, s{T0}, s{sKH}")
    a(f"s_lshl_b32 s{T3}, s{T0}, 10")
    a(f"s_add_u32 s{T3}, s{T3}, s{sA}")
    reduce_halves(k, XR, 0)
    for i, t in enumerate((0, 1, 4)):
        for h in range(2): a(f"v_cvt_pk_bf16_f32 v{HR+2*i+h}, v{ACC+4*t+2*h}, v{ACC+4*t+2*h+1}")
        if i == 1: a(f"buffer_store_dwordx4 {vr(HR,4)}, v{DLIN}, {WS}, s{T3} offen sc1")
    a(f"v_mov_b32 v{TM+6}, 0x3f803f80")
    a(f"v_mov_b32 v{TM+4}, 0")
    a(f"v_mov_b32 v{TM+5}, 0")
    def acc_stats(regs):
        for r in regs:
            a(f"v_dot2_f32_bf16 v{TM+4}, v{r}, v{TM+6}, v{TM+4}")
            a(f"v_dot2_f32_bf16 v{TM+5}, v{r}, v{r}, v{TM+5}")
    acc_stats(range(HR, HR + 4))
    a(f"s_cmp_lg_u32 s{sKH}, 0")
    a("s_cbranch_scc1 L_p3_no4")
    a(f"s_lshr_b32 s{T0}, s{sN8}, 1")
    a(f"s_lshl_b32 s{T0}, s{T0}, 10")
    a(f"s_and_b32 s{T1}, s{sN8}, 1")
    a(f"s_lshl_b32 s{T1}, s{T1}, 9")
    a(f"s_add_u32 s{T0}, s{T0}, s{T1}")
    a(f"s_add_u32 s{T0}, s{T0}, s{sA}")
    a(f"s_add_u32 s{T0}, s{T0}, 16384")
    a(f"buffer_store_dwordx2 {vr(HR+4,2)}, v{DL8}, {WS}, s{T0} offen sc1")
    acc_stats(range(HR + 4, HR + 6))
    a.label("L_p3_no4")
    a(f"s_lshl_b32 s{T0}, s{sRB64}, 4")
    a(f"s_lshl_b32 s{T1}, s{sN8}, 1")
    a(f"s_add_u32 s{T0}, s{T0}, s{T1}")
    row_reduce(a, TM + 4, TM + 6)
    a(f"s_add_u32 s{T0}, s{T0}, s{sKH}")
    a(f"s_lshl_b32 s{T0}, s{T0}, 9")
    a(f"s_lshl_b32 s{T1}, s{sRG}, 7")
    a(f"s_add_u32 s{T0}, s{T0}, s{T1}")
    a(f"s_add_u32 s{T0}, s{T0}, {WS_ST}")
    a("s_mov_b64 exec, 0xffff")
    a(f"buffer_store_dwordx2 {vr(TM+4,2)}, v{DL8}, {WS}, s{T0} offen sc1")
    a("s_mov_b64 exec, -1")
    for f in dma_ops(k, None, None, 56, 96, sW1, sW10, 56 * 1024): f()
    a(f"s_lshl_b32 s{T0}, s{sRB64}, 3")
    a(f"s_add_u32 s{T0}, s{T0}, s{sN8}")
    a(f"s_mul_i32 s{T3}, s{T0}, {FSP}")
    a(f"s_add_u32 s{T3}, s{T3}, {FL_3}")
    a("s_waitcnt vmcnt(5)")
    a("s_barrier")
    k.stamp(14)
    k.flag_store(T3, TM)

sW2, sW27 = 83, 93
RING5 = 27 * 5120
HALF = 15 * 5120
def phase4(k):
    a = k.a
    a.c("================ phase 4: FFN up-projection + SiLU")
    sF, sRB, sTT = 70, 71, 74
    def late():
        for f in dma_ops(k, None, None, 96, 140, sW17, sW7, 96 * 1024, 7): f()
        for f in dma_ops(k, None, None, 35, 56, sW17, sW7, 35 * 1024, 7): f()
    not_wave0(k, late)
    a(f"s_and_b32 s{sF}, s{S_J}, 15")
    a(f"s_lshl_b32 s{T0}, s{S_J}, 3")
    a(f"s_add_u32 s{T0}, s{T0}, s{S_W}")
    a(f"s_lshr_b32 s{T1}, s{T0}, 4")
    a(f"s_and_b32 s{T0}, s{T0}, 15")
    a(f"s_mul_i32 s{T0}, s{T0}, 3840")
    a(f"s_mul_i32 s{T1}, s{T1}, {27*5120}")
    a(f"s_add_u32 s{T0}, s{T0}, s{T1}")
    a(f"s_add_u32 s75, s{T0}, {WS_W2 + 15*5120}")
    a(f"s_mul_i32 s{sW2}, s{sN8}, {54*5120}")
    a(f"s_add_u32 s{sW2}, s{sW2}, {WS_W2}")
    a(f"s_add_u32 s{sW27}, s{sW2}, s{sW7}")
    a(f"s_add_u32 s{sW2}, s{sW2}, s{sW10}")
    a(f"s_lshl_b32 s{sRB}, s{S_C}, 1")
    a(f"s_lshr_b32 s{T0}, s{S_J}, 4")
    a(f"s_add_u32 s{sRB}, s{sRB}, s{T0}")
    a(f"v_mov_b32 v{BA}, v{DLIN}")
    a(f"v_add_u32 v{BA+1}, {9*7168}, v{DLIN}")
    a(f"v_add_u32 v{BA+2}, {18*7168}, v{DLIN}")
    a(f"s_lshl_b32 s{T0}, s{sRB}, 3")
    a(f"s_add_u32 s{sTT}, s{T0}, s{S_W}")
    a(f"s_mul_i32 s{sA}, s{sTT}, 20480")
    a(f"s_add_u32 s{sA}, s{sA}, {WS_H}")
    a(f"s_lshr_b32 s{T0}, s{sTT}, 2")
    a(f"s_lshl_b32 s{T0}, s{T0}, 13")
    a(f"s_and_b32 s{T1}, s{sTT}, 3")
    a(f"s_lshl_b32 s{T1}, s{T1}, 7")
    a(f"s_add_u32 s{T0}, s{T0}, s{T1}")
    a(f"s_add_u32 s{sB}, s{T0}, {WS_ST}")
    a(f"v_and_b32 v{TM}, 15, v0")
    a(f"v_lshrrev_b32 v{TM+1}, 4, v0")
    a(f"v_lshlrev_b32 v{TM+10}, 11, v{TM+1}")
    a(f"v_lshl_add_u32 v{TM+10}, v{TM}, 3, v{TM+10}")
    a(f"v_lshlrev_b32 v{TM+11}, 4, v{TM+1}")
    a(f"v_add_u32 v{TM+11}, {CS_LDS}, v{TM+11}")
    a(f"s_mul_i32 s{T3}, s{sRB}, {16*FSP}")
    a(f"s_add_u32 s{T3}, s{T3}, {FL_3}")
    k.poll(16, T3, FSP, TM)
    a("s_waitcnt vmcnt(10) lgkmcnt(0)")
    a("s_barrier")
    k.stamp(15)
    vq = VQ(a)
    vq.add("L")
    order = list(range(5)) + list(range(8, 20)) + [5, 6, 7]
    aop = [a_op(k, vq, j, order[j], sA, AF + 4 * j, order[j] >= 16) for j in range(20)]
    D = int(k.o.get("d4", 4))
    for j in range(D): aop[j]()
    ST = 84 + AF
    def st_op(i):
        def f():
            a(f"buffer_load_dwordx2 {vr(ST+2*i,2)}, v{TM+10}, {WS}, s{sB} offen offset:{512*i} sc1")
            vq.add("S")
        return f
    def touch(i):
        def f():
            a(f"buffer_load_dword v{TM+8}, v{DLIN}, {WS}, s75 offen offset:{min(1024*i, 2816)} sc1")
            vq.add("T")
        return f
    extra = {j: [aop[j + D]] for j in range(20 - D)}
    for i in range(4): extra.setdefault(20 - D + i * D // 4, []).append(st_op(i))
    for i in range(4): extra.setdefault(16 + i, []).append(touch(i))
    def addr(j, t): return BA + order[j] // 9, (order[j] % 9) * 7168 + t * 1024
    def pre(j):
        if j == 10:
            vq.wait("L")
            a("s_barrier")
    mm_steps(k, vq, 20, 7, addr, lambda j: AF + 4 * j, extra, pre)
    k.stamp(16)
    CS = WB + 56
    for t in range(7): a(f"ds_read_b128 {vr(CS+4*t,4)}, v{TM+11} offset:{64*t}")
    a("s_barrier")
    w2 = []
    for x, y in zip(dma_ops(k, vq, "W", 0, 40, sW2, sW10, 0), dma_ops(k, vq, "W", 135, 175, sW2, sW10, HALF)): w2 += [x, y]
    vq.wait("S")
    for f in w2[:3]: f()
    a(f"v_add_f32 v{ST}, v{ST}, v{ST+2}")
    a(f"v_add_f32 v{ST+1}, v{ST+1}, v{ST+3}")
    a(f"v_add_f32 v{ST+4}, v{ST+4}, v{ST+6}")
    a(f"v_add_f32 v{ST+5}, v{ST+5}, v{ST+7}")
    a(f"v_add_f32 v{ST}, v{ST}, v{ST+4}")
    a(f"v_add_f32 v{ST+1}, v{ST+1}, v{ST+5}")
    row_reduce(a, ST, ST + 2)
    a(f"v_mul_f32 v{ST}, 0x{f2u(1.0/640):08x}, v{ST}")
    a(f"v_mul_f32 v{ST+2}, v{ST}, v{ST}")
    a(f"v_mov_b32 v{ST+3}, 0x{f2u(1.0/640):08x}")
    a(f"v_fma_f32 v{ST+2}, v{ST+1}, v{ST+3}, -v{ST+2}")
    a(f"v_max_f32 v{ST+2}, 0, v{ST+2}")
    a(f"v_add_f32 v{ST+2}, 0x{f2u(1e-5):08x}, v{ST+2}")
    a(f"v_rsq_f32 v{ST+1}, v{ST+2}")
    a(f"s_mul_i32 s{sA}, s{sTT}, {54*1024}")
    a(f"s_add_u32 s{sA}, s{sA}, {WS_H1}")
    a(f"v_mul_f32 v{ST}, v{ST}, v{ST+1}")
    a(f"s_lshr_b32 s{T0}, s{sF}, 3")
    a(f"s_add_u32 s{T0}, s{T0}, s{sF}")
    a(f"s_mul_i32 s{T0}, s{T0}, 3072")
    a(f"s_add_u32 s{sB}, s{T0}, s{sA}")
    a("s_waitcnt lgkmcnt(0)")
    E = AF; OUT = AF + 32
    def silu(tiles, mid=()):
        rs = [4 * t + r for t in tiles for r in range(4)]
        mid = list(mid)
        for r in rs: a(f"v_mul_f32 v{ACC+r}, v{ST+1}, v{ACC+r}")
        for r in rs: a(f"v_fma_f32 v{ACC+r}, -v{ST}, v{CS+r}, v{ACC+r}")
        for r in rs: a(f"v_mul_f32 v{E+r}, 0x{f2u(-math.log2(math.e)):08x}, v{ACC+r}")
        for r in rs: a(f"v_exp_f32 v{E+r}, v{E+r}")
        if mid: mid.pop(0)()
        for r in rs: a(f"v_add_f32 v{E+r}, 1.0, v{E+r}")
        for r in rs: a(f"v_rcp_f32 v{E+r}, v{E+r}")
        if mid: mid.pop(0)()
        for r in rs: a(f"v_mul_f32 v{ACC+r}, v{ACC+r}, v{E+r}")
        for r in rs[::2]: a(f"v_cvt_pk_bf16_f32 v{OUT+r//2}, v{ACC+r}, v{ACC+r+1}")
    a(f"s_cmp_ge_u32 s{sF}, 12")
    a("s_cbranch_scc1 L_p4_no6")
    silu((6,))
    a(f"s_lshr_b32 s{T0}, s{sF}, 1")
    a(f"s_cmp_ge_u32 s{sF}, 6")
    a(f"s_cselect_b32 s{T1}, 48, 24")
    a(f"s_add_u32 s{T0}, s{T0}, s{T1}")
    a(f"s_lshl_b32 s{T0}, s{T0}, 10")
    a(f"s_and_b32 s{T1}, s{sF}, 1")
    a(f"s_lshl_b32 s{T1}, s{T1}, 9")
    a(f"s_add_u32 s{T0}, s{T0}, s{T1}")
    a(f"s_add_u32 s{T0}, s{T0}, s{sA}")
    a(f"buffer_store_dwordx2 {vr(OUT+12,2)}, v{DL8}, {WS}, s{T0} offen sc1")
    a.label("L_p4_no6")
    for p in range(3):
        silu((2 * p, 2 * p + 1), w2[3 + 2 * p: 5 + 2 * p] if p < 2 else [])
        a(f"buffer_store_dwordx4 {vr(OUT+4*p,4)}, v{DLIN}, {WS}, s{sB} offen offset:{1024*p} sc1")
    for f in w2[7:]: f()
    a(f"s_lshl_b32 s{T0}, s{sRB}, 4")
    a(f"s_add_u32 s{T0}, s{T0}, s{sF}")
    a(f"s_mul_i32 s{T3}, s{T0}, {FSP}")
    a(f"s_add_u32 s{T3}, s{T3}, {FL_4}")
    a(f"s_waitcnt vmcnt({len(w2) - 7})")
    a("s_barrier")
    k.stamp(17)
    k.flag_store(T3, TM)

def phase5(k):
    a = k.a
    a.c("================ phase 5: FFN down-projection + residual")
    def late():
        for x, y in zip(dma_ops(k, None, None, 40, 75, sW27, sW7, 40 * 1024, 7), dma_ops(k, None, None, 175, 210, sW27, sW7, HALF + 40 * 1024, 7)): x(); y()
    not_wave0(k, late)
    a(f"s_mul_i32 s{T0}, s{sKH}, {HALF}")
    tile_addrs(k, T0, BA)
    for i in range(3): a(f"v_add_u32 v{BA+3+i}, {12*5120}, v{BA+i}")
    exch_addrs(k, 12 * 5120)
    a(f"s_mul_i32 s{sB}, s{sTT3}, {54*1024}")
    a(f"s_mul_i32 s{T1}, s{sKH}, {27*1024}")
    a(f"s_add_u32 s{sB}, s{sB}, s{T1}")
    a(f"s_add_u32 s{sB}, s{sB}, {WS_H1}")
    a(f"s_lshr_b32 s{T3}, s{sRB64}, 1")
    a(f"s_mul_i32 s{T3}, s{T3}, {16*FSP}")
    a(f"s_add_u32 s{T3}, s{T3}, {FL_4}")
    k.poll(16, T3, FSP, TM)
    a("s_waitcnt vmcnt(10)")
    a("s_barrier")
    k.stamp(18)
    vq = VQ(a)
    vq.add("L")
    aop = [a_op(k, vq, j, j, sB, AF + 4 * j, j >= 24) for j in range(27)]
    D = int(k.o.get("d5", 4))
    for j in range(D): aop[j]()
    extra = {j: [aop[j + D]] for j in range(27 - D)}
    G = 3
    groups = [(15 + G * g, G * g) for g in range(4)]
    free_at = {}
    need_at = {}
    for g, (j0, s0) in enumerate(groups):
        ops = []
        for x, y in zip(dma_ops(k, vq, f"R{g}", 5 * j0, 5 * j0 + 5 * G, sW2, sW10, s0 * 5120),
                        dma_ops(k, vq, f"R{g}", 135 + 5 * j0, 135 + 5 * j0 + 5 * G, sW2, sW10, HALF + s0 * 5120)): ops += [x, y]
        b = s0 + G
        free_at[b] = True
        for i, f in enumerate(ops): extra.setdefault(b + (i * G) // len(ops), []).append(f)
        need_at[j0] = f"R{g}"
    slot = lambda j: j if j < 15 else j - 15
    def addr(j, t):
        s = slot(j)
        return BA + (3 if s >= 12 else 0) + (0, 0, 1, 1, 2)[t], (s % 12) * 5120 + t * 1024
    def pre(j):
        bar = False
        if j == 8: vq.wait("L"); bar = True
        if j in need_at: vq.wait(need_at[j]); bar = True
        if (j - 2) in free_at: bar = True
        if bar: a("s_barrier")
    mm_steps(k, vq, 27, 5, addr, lambda j: AF + 4 * j, extra, pre)
    k.stamp(19)
    reduce_halves(k, HR, 6)
    for i, t in enumerate((0, 1, 4)):
        for h in range(2): a(f"v_cvt_pk_bf16_f32 v{AF+2*i+h}, v{ACC+4*t+2*h}, v{ACC+4*t+2*h+1}")
    a(f"s_mul_i32 s{T0}, s{sTT3}, {16*1280}")
    a(f"s_mul_i32 s{T1}, s{sN8}, 160")
    a(f"s_add_u32 s{T0}, s{T0}, s{T1}")
    a(f"s_lshl_b32 s{T1}, s{sKH}, 6")
    a(f"s_add_u32 s{T1}, s{T1}, s{T0}")
    a(f"v_and_b32 v{TM}, 15, v0")
    a(f"v_mul_u32_u24 v{TM}, 1280, v{TM}")
    a(f"v_lshrrev_b32 v{TM+1}, 4, v0")
    a(f"v_lshl_add_u32 v{TM}, v{TM+1}, 3, v{TM}")
    OUTS = f"s[{SRD_OUT}:{SRD_OUT+3}]"
    a(f"buffer_store_dwordx2 {vr(AF,2)}, v{TM}, {OUTS}, s{T1} offen")
    a(f"buffer_store_dwordx2 {vr(AF+2,2)}, v{TM}, {OUTS}, s{T1} offen offset:32")
    a(f"s_cmp_lg_u32 s{sKH}, 0")
    a("s_cbranch_scc1 L_p5_no4")
    a(f"buffer_store_dwordx2 {vr(AF+4,2)}, v{TM}, {OUTS}, s{T0} offen offset:128")
    a.label("L_p5_no4")
```

```python
import itertools
MB = 1 << 20
KB = 1 << 10
WS_Q   = 0
WS_K   = WS_Q + 80 * 32768
WS_V   = 5 * MB
WS_O   = 8 * MB
WS_H   = 11 * MB
WS_H1  = 14 * MB
WS_WO  = 21 * MB
WS_W1  = 22 * MB
WS_W2  = 25 * MB
WS_CS1 = 28 * MB
WS_ST  = 28 * MB + 512 * KB
WS_RS  = 28 * MB + 768 * KB
WS_CQ  = 28 * MB + 832 * KB
WS_FL  = 29 * MB
WS_SIZE = 30 * MB
FSP = 128
FL_R = WS_FL
FL_1 = WS_FL + 32768
FL_2 = WS_FL + 2 * 32768
FL_3 = WS_FL + 3 * 32768
FL_4 = WS_FL + 4 * 32768

def head_quads(h):
    q = 5 * h
    if h == 19: return ((q + 1, q + 2), (q + 3, q + 4), q)
    if h == 25: return ((q, q + 1), (q + 3, q + 4), q + 2)
    return ((q, q + 1), (q + 2, q + 3), q + 4)

def unit_quads(u):
    if u < 64: return head_quads(u >> 1)[u & 1]
    m = u - 64
    return (head_quads(2 * m)[2], head_quads(2 * m + 1)[2])

def ct_tiles(ct):
    units = [u for u in range(80) if unit_quads(u)[0] // 32 == ct]
    for u in units: assert unit_quads(u)[1] // 32 == ct
    assert len(units) == 16
    def rec(rem):
        if not rem: return []
        first = rem[0]
        for comb in itertools.combinations(rem[1:], 3):
            grp = (first,) + comb
            res = [q % 8 for u in grp for q in unit_quads(u)]
            if len(set(res)) == 8:
                r = rec([u for u in rem if u not in grp])
                if r is not None: return [grp] + r
        return None
    t = rec(units)
    assert t is not None, ct
    return t

def p1_table(ct, nh):
    tiles = ct_tiles(ct)
    qb = []; ub = []
    for i in range(2):
        grp = tiles[2 * nh + i]
        quads = [0] * 8
        for qq in range(2):
            for hf in range(2):
                a, b = unit_quads(grp[qq * 2 + hf])
                quads[4 * qq + hf] = a - 32 * ct
                quads[4 * qq + 2 + hf] = b - 32 * ct
        qb += quads
        ub += list(grp)
    pack = lambda bs: [sum(bs[4 * k + j] << (8 * j) for j in range(4)) for k in range(len(bs) // 4)]
    return pack(qb) + pack(ub)

if __name__ == "__main__":
    for ct in range(5):
        print(ct, ct_tiles(ct))
        for nh in range(2): print("  ", ["%08x" % x for x in p1_table(ct, nh)])
    assert all((F * 3277) >> 16 == F // 20 for F in range(640))
```

```python
import sys, math
from asmlib import Asm, vr, sr, f2u, check
from tables import *

NAME = "sequential_preLN__mha_block__dense_activation_silu__prompt"
LDS_BYTES = 163840
SPIN_MAX = 20000

S_G = 2
SRD_X, SRD_WQ, SRD_WS, SRD_OUT, SRD_DBG, SRD_RL = 4, 8, 12, 16, 20, 24
S_W, S_C, S_J = 28, 29, 30
S_NONCE = 32
S_PTR = 36
T0, T1, T2, T3, T4, T5 = 54, 55, 56, 57, 58, 59
S_M1 = 60
S_SPIN = 62

class K:
    def __init__(self, stop_after=99, opts=None):
        self.a = Asm()
        self.stop = stop_after
        self.o = opts or {}
        self.pad = 0

    def srd(self, d, ptr, nbytes):
        a = self.a
        a(f"s_mov_b32 s{d}, s{ptr}")
        a(f"s_and_b32 s{d+1}, s{ptr+1}, 0xffff")
        a(f"s_mov_b32 s{d+2}, {nbytes}")
        a(f"s_mov_b32 s{d+3}, 0x20000")

    def stamp(self, idx):
        if not self.o.get("stamps"): return
        a = self.a
        a("s_memrealtime s[100:101]")
        a("s_waitcnt lgkmcnt(0)")
        a(f"v_writelane_b32 v255, s100, {idx}")
        if idx < 22:
            a("s_memtime s[100:101]")
            a("s_waitcnt lgkmcnt(0)")
            a(f"v_writelane_b32 v255, s100, {idx+32}")

    def stamp_dyn(self, base, sreg):
        if not self.o.get("its"): return
        a = self.a
        a("s_memtime s[100:101]")
        a("s_mov_b32 s99, m0")
        a(f"s_add_u32 m0, s{sreg}, {base}")
        a("s_waitcnt lgkmcnt(0)")
        a("v_writelane_b32 v255, s100, m0")
        a("s_mov_b32 m0, s99")

    def stamp_flush(self):
        if not self.o.get("stamps"): return
        a = self.a
        if self.o.get("dbgwg"):
            L = a.newlabel("dbg")
            a(f"s_cmp_lg_u32 s{S_G}, {int(self.o['dbgwg'])}")
            a(f"s_cbranch_scc1 {L}")
            a(f"s_cmp_lg_u32 s{S_W}, 0")
            a(f"s_cbranch_scc1 {L}")
            a(f"v_readlane_b32 s{T1}, v255, 0")
            for n, i in enumerate((3, 4, 7, 8, 9, 10, 12, 13, 15, 16, 18, 19, 31)):
                a(f"v_readlane_b32 s{T0}, v255, {i}")
                a("s_nop 3")
                a(f"s_sub_u32 s{T0}, s{T0}, s{T1}")
                a(f"v_mov_b32 v1, s{T0}")
                a(f"v_mov_b32 v2, {8+4*n}")
                a(f"buffer_store_dword v1, v2, s[{SRD_DBG}:{SRD_DBG+3}], 0 offen")
            a.label(L)
            return
        a(f"s_lshl_b32 s{T0}, s{S_G}, 3")
        a(f"s_add_u32 s{T0}, s{T0}, s{S_W}")
        a(f"s_lshl_b32 s{T0}, s{T0}, 8")
        a(f"s_add_u32 s{T0}, s{T0}, {WS_SIZE}")
        a("v_lshlrev_b32 v1, 2, v0")
        a(f"buffer_store_dword v255, v1, s[{SRD_WS}:{SRD_WS+3}], s{T0} offen")
        a("s_mov_b64 exec, -1")

    def dma(self, voff, srd, soff, flags=""):
        if self.o.get("nodma"): return
        self.a(f"buffer_load_dwordx4 v{voff}, s[{srd}:{srd+3}], {soff} offen {flags} lds".replace("  ", " "))

    def flag_store(self, s_off, vt):
        a = self.a
        L = a.newlabel("nofl")
        a(f"s_cmp_lg_u32 s{S_W}, 0")
        a(f"s_cbranch_scc1 {L}")
        a(f"v_mov_b32 v{vt}, s{S_NONCE}")
        a(f"v_mov_b32 v{vt+1}, s{S_NONCE+1}")
        a(f"v_mov_b32 v{vt+2}, 0")
        a("s_mov_b64 exec, 1")
        a(f"buffer_store_dwordx2 v[{vt}:{vt+1}], v{vt+2}, s[{SRD_WS}:{SRD_WS+3}], s{s_off} offen sc1")
        a("s_mov_b64 exec, -1")
        a.label(L)

    def poll(self, n, s_off, spacing, vt, only_wave0=True):
        a = self.a
        L = a.newlabel("poll"); Ld = a.newlabel("polld")
        if only_wave0:
            a(f"s_cmp_lg_u32 s{S_W}, 0")
            a(f"s_cbranch_scc1 {Ld}")
        a(f"s_mov_b32 s{S_SPIN}, 0")
        if n == 256:
            assert spacing == 8
            a(f"v_lshlrev_b32 v{vt+8}, 4, v0")
            a.label(L)
            a(f"buffer_load_dwordx4 v[{vt}:{vt+3}], v{vt+8}, s[{SRD_WS}:{SRD_WS+3}], s{s_off} offen sc1")
            a(f"buffer_load_dwordx4 v[{vt+4}:{vt+7}], v{vt+8}, s[{SRD_WS}:{SRD_WS+3}], s{s_off} offen offset:1024 sc1")
            a(f"s_add_u32 s{S_SPIN}, s{S_SPIN}, 1")
            a("s_waitcnt vmcnt(0)")
            a(f"v_cmp_ne_u64 vcc, s[{S_NONCE}:{S_NONCE+1}], v[{vt}:{vt+1}]")
            a(f"v_cmp_ne_u64 s[{S_M1}:{S_M1+1}], s[{S_NONCE}:{S_NONCE+1}], v[{vt+2}:{vt+3}]")
            a("s_nop 0")
            a(f"s_or_b64 s[{T4}:{T5}], vcc, s[{S_M1}:{S_M1+1}]")
            a(f"v_cmp_ne_u64 vcc, s[{S_NONCE}:{S_NONCE+1}], v[{vt+4}:{vt+5}]")
            a(f"v_cmp_ne_u64 s[{S_M1}:{S_M1+1}], s[{S_NONCE}:{S_NONCE+1}], v[{vt+6}:{vt+7}]")
            a("s_nop 0")
            a(f"s_or_b64 s[{T4}:{T5}], s[{T4}:{T5}], vcc")
            a(f"s_or_b64 s[{T4}:{T5}], s[{T4}:{T5}], s[{S_M1}:{S_M1+1}]")
        else:
            a(f"v_and_b32 v{vt+8}, {n-1}, v0")
            a(f"v_mul_u32_u24 v{vt+8}, {spacing}, v{vt+8}")
            a.label(L)
            a(f"buffer_load_dwordx2 v[{vt}:{vt+1}], v{vt+8}, s[{SRD_WS}:{SRD_WS+3}], s{s_off} offen sc1")
            a(f"s_add_u32 s{S_SPIN}, s{S_SPIN}, 1")
            a("s_waitcnt vmcnt(0)")
            a(f"v_cmp_ne_u64 vcc, s[{S_NONCE}:{S_NONCE+1}], v[{vt}:{vt+1}]")
            a("s_nop 0")
            a(f"s_or_b64 s[{T4}:{T5}], vcc, vcc")
        a(f"s_cbranch_scc0 {Ld}")
        a(f"s_cmp_lt_u32 s{S_SPIN}, {SPIN_MAX}")
        a(f"s_cbranch_scc1 {L}")
        a.label(Ld)

    def poll2(self, va, vb, s_off, vt):
        a = self.a
        L = a.newlabel("poll"); Ld = a.newlabel("polld")
        N = f"s[{S_NONCE}:{S_NONCE+1}]"
        a(f"s_cmp_lg_u32 s{S_W}, 0")
        a(f"s_cbranch_scc1 {Ld}")
        a(f"s_mov_b32 s{S_SPIN}, 0")
        a.label(L)
        a(f"buffer_load_dwordx2 v[{vt}:{vt+1}], v{va}, s[{SRD_WS}:{SRD_WS+3}], s{s_off} offen sc1")
        a(f"buffer_load_dwordx2 v[{vt+2}:{vt+3}], v{vb}, s[{SRD_WS}:{SRD_WS+3}], s{s_off} offen sc1")
        a(f"s_add_u32 s{S_SPIN}, s{S_SPIN}, 1")
        a("s_waitcnt vmcnt(0)")
        a(f"v_cmp_ne_u64 vcc, {N}, v[{vt}:{vt+1}]")
        a(f"v_cmp_ne_u64 s[{S_M1}:{S_M1+1}], {N}, v[{vt+2}:{vt+3}]")
        a("s_nop 0")
        a(f"s_or_b64 vcc, vcc, s[{S_M1}:{S_M1+1}]")
        a(f"s_cbranch_scc0 {Ld}")
        a(f"s_cmp_lt_u32 s{S_SPIN}, {SPIN_MAX}")
        a(f"s_cbranch_scc1 {L}")
        a.label(Ld)

    def entry(self):
        a = self.a
        a(f"s_cmp_ge_u32 s{S_G}, 256")
        a("s_cbranch_scc1 L_end")
        a(f"s_load_dwordx16 s[{S_PTR}:{S_PTR+15}], s[0:1], 0")
        a(f"s_load_dwordx2 s[{S_PTR+16}:{S_PTR+17}], s[0:1], 64")
        a(f"s_memrealtime s[{S_NONCE}:{S_NONCE+1}]")
        if self.o.get("stamps"): a("v_mov_b32 v255, 0")
        self.stamp(0)
        a("v_lshrrev_b32 v1, 6, v0")
        a("v_and_b32 v0, 63, v0")
        a(f"v_readfirstlane_b32 s{S_W}, v1")
        a(f"s_and_b32 s{S_C}, s{S_G}, 7")
        a(f"s_lshr_b32 s{S_J}, s{S_G}, 3")

    ACC = 16; XF = 160; WF = 176; XA = 72; WA = 144; DXA, DXB, DW = 78, 79, 80; VXM = 76
    ONES = 82
    CQ = 96
    CQA = 81
    RSA, RS = 84, 128
    STA = 86
    RLV, RLA = 157, 158
    VN = 92
    sRB, sCT, sKC, sXO, sWO, sSLOT, sCNT, sXM, sTG, sNH = 64, 65, 66, 67, 68, 69, 70, 71, 72, 73
    sTAB = 74
    sM0X = 80; sWO2 = 81; sKC0 = 82; sSIDE = 83; sI1 = 71; sI2 = 34; sSM = 35
    sRL = 84
    P1_MISC = 148 * 1024
    RL_SCR = 68 * 1024
    CQ_SCR = 128 * 1024
    DUMMY = 159 * 1024
    CPF_LINES = 8

    def p1_issue(self, pieces=(0, 1, 2, 3)):
        a = self.a
        if 0 in pieces:
            a(f"s_add_u32 m0, s{self.sM0X}, s{self.sSLOT}")
            a(f"s_add_u32 s{self.sKC}, s{self.sKC}, 1")
            self.dma(self.DXA, SRD_X, f"s{self.sXO}")
        if 1 in pieces:
            a(f"s_add_u32 m0, m0, s{self.sI1}")
            a(f"s_add_u32 s{self.sWO2}, s{self.sWO}, 15360")
            self.dma(self.DW, SRD_WQ, f"s{self.sWO}")
        if 2 in pieces:
            a(f"s_sub_u32 m0, m0, s{self.sI2}")
            a(f"s_add_u32 s{self.sWO}, s{self.sWO}, 245760")
            self.dma(self.DXB, SRD_X, f"s{self.sXO}")
        if 3 in pieces:
            a(f"s_add_u32 m0, m0, s{self.sI1}")
            a(f"s_add_u32 s{self.sXO}, s{self.sXO}, 128")
            self.dma(self.DW, SRD_WQ, f"s{self.sWO2}")
            a(f"s_cmp_eq_u32 s{self.sKC}, 10")
            a(f"s_cselect_b32 s{T0}, 1280, 0")
            a(f"s_cselect_b32 s{T1}, 2457600, 0")
            a(f"s_cselect_b32 s{self.sKC}, 0, s{self.sKC}")
            a(f"s_sub_u32 s{self.sXO}, s{self.sXO}, s{T0}")
            a(f"s_sub_u32 s{self.sWO}, s{self.sWO}, s{T1}")
            a(f"s_add_u32 s{self.sSLOT}, s{self.sSLOT}, 32768")
            a(f"s_and_b32 s{self.sSLOT}, s{self.sSLOT}, s{self.sSM}")

    def p1_setup_a(self):
        a = self.a
        a(f"s_lshr_b32 s{T0}, s{S_C}, 1")
        a(f"s_lshl_b32 s{T0}, s{T0}, 2")
        a(f"s_lshr_b32 s{T1}, s{S_J}, 3")
        a(f"s_add_u32 s{self.sRB}, s{T0}, s{T1}")
        a(f"s_and_b32 s{T0}, s{S_C}, 1")
        a(f"s_lshl_b32 s{T0}, s{T0}, 3")
        a(f"s_and_b32 s{T2}, s{S_J}, 7")
        a(f"s_add_u32 s{self.sCT}, s{T0}, s{T2}")
        a(f"s_lshl_b32 s{T1}, s{T1}, 1")
        a(f"s_add_u32 s{self.sKC}, s{T2}, s{T1}")
        a(f"s_bfe_u32 s{T0}, s{S_C}, 0x10001")
        a(f"s_and_b32 s{T1}, s{S_C}, 4")
        a(f"s_lshl_b32 s{T1}, s{T1}, 1")
        a(f"s_add_u32 s{T0}, s{T0}, s{T1}")
        a(f"s_add_u32 s{self.sKC}, s{self.sKC}, s{T0}")
        a(f"s_mul_i32 s{T0}, s{self.sKC}, 26")
        a(f"s_lshr_b32 s{T0}, s{T0}, 8")
        a(f"s_mul_i32 s{T0}, s{T0}, 10")
        a(f"s_sub_u32 s{self.sKC}, s{self.sKC}, s{T0}")
        a(f"s_mov_b32 s{self.sKC0}, s{self.sKC}")
        a(f"s_mul_i32 s{self.sXO}, s{self.sRB}, 163840")
        a(f"s_lshl_b32 s{T0}, s{self.sKC}, 7")
        a(f"s_add_u32 s{self.sXO}, s{self.sXO}, s{T0}")
        a(f"s_mul_i32 s{self.sWO}, s{self.sKC}, 245760")
        a(f"s_lshl_b32 s{T0}, s{self.sCT}, 8")
        a(f"s_add_u32 s{self.sWO}, s{self.sWO}, s{T0}")
        a(f"s_lshl_b32 s{self.sM0X}, s{S_W}, 11")
        a(f"s_mov_b32 s{self.sSLOT}, 0")
        a(f"s_movk_i32 s{self.sI1}, 16384")
        a(f"s_movk_i32 s{self.sI2}, 15360")
        a(f"s_mov_b32 s{self.sSM}, 0x1ffff")
        a("v_lshrrev_b32 v1, 3, v0")
        a("v_lshrrev_b32 v2, 4, v0")
        a("v_and_b32 v3, 7, v0")
        a("v_xor_b32 v3, v3, v2")
        a(f"s_lshl_b32 s{T0}, s{S_W}, 4")
        a(f"v_add_u32 v4, s{T0}, v1")
        a("v_mul_u32_u24 v4, 1280, v4")
        a(f"v_lshl_add_u32 v{self.DXA}, v3, 4, v4")
        a(f"v_xor_b32 v{self.DXB}, 64, v{self.DXA}")
        a(f"v_add_u32 v{self.DXB}, 10240, v{self.DXB}")
        a("v_lshlrev_b32 v3, 2, v2")
        a("v_and_b32 v4, 15, v0")
        a("v_xor_b32 v3, v3, v4")
        a(f"s_lshl_b32 s{T0}, s{S_W}, 3")
        a(f"v_add_u32 v4, s{T0}, v2")
        a("v_mul_u32_u24 v4, 3840, v4")
        a(f"v_lshl_add_u32 v{self.DW}, v3, 4, v4")
        a("s_waitcnt lgkmcnt(0)")
        self.srd(SRD_X, S_PTR + 0, 2048 * 1280)
        self.srd(SRD_WQ, S_PTR + 2, 640 * 3840)
        a(f"s_cmp_eq_u32 s{self.sCT}, 15")
        a("s_cbranch_scc1 L_p1_noissue")
        self.p1_issue()
        self.p1_issue((0,))
        a.label("L_p1_noissue")
        self.stamp(1)
        self.srd(SRD_WS, S_PTR + 16, WS_SIZE + ((1 << 20) if self.o.get("stamps") else 0))
        self.srd(SRD_OUT, S_PTR + 12, 2048 * 1280)
        self.srd(SRD_DBG, S_PTR + 14, 256)
        if self.o.get("cpf", "1") == "1":
            Lc = a.newlabel("cpf")
            a(f"s_cmp_lg_u32 s{S_W}, 7")
            a(f"s_cbranch_scc1 {Lc}")
            a(f"s_getpc_b64 s[{T4}:{T5}]")
            a.label("L_pc_here")
            a(f"s_mul_i32 s{T0}, s{S_J}, {self.CPF_LINES*128}")
            a(f"s_sub_u32 s{T0}, s{T0}, L_pc_here-{NAME}_kernel")
            a(f"v_min_u32 v3, {self.CPF_LINES-1}, v0")
            a(f"v_lshl_add_u32 v3, v3, 7, s{T0}")
            a("v_ashrrev_i32 v5, 31, v3")
            a(f"v_mov_b32 v6, s{T5}")
            a(f"v_add_co_u32 v4, vcc, s{T4}, v3")
            a("s_nop 1")
            a("v_addc_co_u32 v5, vcc, v5, v6, vcc")
            a("global_load_dword v254, v[4:5], off")
            a.label(Lc)
        a(f"s_or_b32 s{T0}, s{S_G}, s{S_W}")
        a("s_cbranch_scc1 L_nonce_done")
        a("v_mov_b32 v3, 0")
        a(f"v_mov_b32 v4, s{S_NONCE}")
        a(f"v_mov_b32 v5, s{S_NONCE+1}")
        a("s_mov_b64 exec, 1")
        a(f"buffer_store_dwordx2 v[4:5], v3, s[{SRD_DBG}:{SRD_DBG+3}], 0 offen sc1")
        a("s_mov_b64 exec, -1")
        a.label("L_nonce_done")

    def relayout_setup(self):
        a = self.a
        R = self.sRL
        u = a.newlabel("u")
        sID, sKS, sCB, sST, sA, sB, sCc, sD = T0, T1, T2, T3, 93, 94, 95, 96
        sBase, sSl, sKsS = 97, 98, 99
        a(f"s_mul_i32 s{sID}, s{S_G}, 5")
        a(f"s_add_u32 s{sID}, s{sID}, s{S_W}")
        a(f"s_sub_u32 s{sID}, s{sID}, 1")
        a(f"s_min_u32 s{sID}, s{sID}, 1279")
        a(f"s_mov_b32 s{sA}, 16")
        a(f"s_mov_b32 s{sB}, 8")
        a(f"s_mov_b32 s{sCc}, 4")
        a(f"s_mov_b32 s{SRD_RL+3}, 0x20000")
        a(f"s_mov_b32 s{R+8}, -1")
        a(f"s_cmp_lt_u32 s{sID}, 200")
        a(f"s_cbranch_scc1 L_rl_wo{u}")
        a(f"s_cmp_lt_u32 s{sID}, 740")
        a(f"s_cbranch_scc1 L_rl_w1{u}")
        a(f"s_sub_u32 s{sID}, s{sID}, 740")
        a(f"s_mul_i32 s{sKS}, s{sID}, 6554")
        a(f"s_lshr_b32 s{sKS}, s{sKS}, 16")
        a(f"s_mul_i32 s{sCB}, s{sKS}, 10")
        a(f"s_sub_u32 s{sCB}, s{sID}, s{sCB}")
        a(f"s_lshl_b32 s{sD}, s{sKS}, 5")
        a(f"s_mov_b32 s{SRD_RL}, s{S_PTR+10}")
        a(f"s_and_b32 s{SRD_RL+1}, s{S_PTR+11}, 0xffff")
        a(f"s_mov_b32 s{SRD_RL+2}, {1728*1280}")
        a(f"s_mov_b32 s{sBase}, {WS_W2}")
        a(f"s_mov_b32 s{sSl}, {54*5120}")
        a(f"s_add_u32 s{T4}, s{sKS}, 3")
        a(f"s_cmp_ge_u32 s{sKS}, 24")
        a(f"s_cselect_b32 s{T4}, s{T4}, s{sKS}")
        a(f"s_sub_u32 s{T5}, s{sKS}, 24")
        a(f"s_cmp_ge_u32 s{sKS}, 48")
        a(f"s_cselect_b32 s{T4}, s{T5}, s{T4}")
        a(f"s_cmp_ge_u32 s{sKS}, 51")
        a(f"s_cselect_b32 s{sKS}, s{sKS}, s{T4}")
        a(f"s_branch L_rl_n640{u}")
        a.label(f"L_rl_wo{u}")
        a(f"s_mul_i32 s{sKS}, s{sID}, 6554")
        a(f"s_lshr_b32 s{sKS}, s{sKS}, 16")
        a(f"s_mul_i32 s{sCB}, s{sKS}, 10")
        a(f"s_sub_u32 s{sCB}, s{sID}, s{sCB}")
        a(f"s_mul_i32 s{sD}, s{sKS}, 40")
        a(f"s_mul_i32 s{sST}, s{sKS}, 160")
        a(f"s_sub_u32 s{sST}, s{sST}, {160*16-16}")
        a(f"s_cmp_lt_u32 s{sKS}, 16")
        a(f"s_cselect_b32 s{sD}, s{sD}, s{sST}")
        a(f"s_cselect_b32 s{sA}, 8, 20")
        a(f"s_cselect_b32 s{sB}, 20, 0x50")
        a(f"s_cselect_b32 s{sCc}, 4, 40")
        a(f"s_mov_b32 s{SRD_RL}, s{S_PTR+4}")
        a(f"s_and_b32 s{SRD_RL+1}, s{S_PTR+5}, 0xffff")
        a(f"s_mov_b32 s{SRD_RL+2}, {640*1280}")
        a(f"s_mov_b32 s{sBase}, {WS_WO}")
        a(f"s_mov_b32 s{sSl}, {20*5120}")
        a(f"s_add_u32 s{T4}, s{sKS}, 2")
        a(f"s_cmp_ge_u32 s{sKS}, 8")
        a(f"s_cselect_b32 s{T4}, s{T4}, s{sKS}")
        a(f"s_sub_u32 s{T5}, s{sKS}, 8")
        a(f"s_cmp_ge_u32 s{sKS}, 16")
        a(f"s_cselect_b32 s{T4}, s{T5}, s{T4}")
        a(f"s_cmp_ge_u32 s{sKS}, 18")
        a(f"s_cselect_b32 s{sKS}, s{sKS}, s{T4}")
        a.label(f"L_rl_n640{u}")
        a(f"s_mov_b32 s{sST}, 1280")
        a(f"s_mul_i32 s{sKsS}, s{sKS}, 5120")
        a(f"s_add_u32 s{sBase}, s{sBase}, s{sKsS}")
        for t in range(4):
            a(f"s_lshl_b32 s{T4}, s{sCB}, 2")
            a(f"s_add_u32 s{T4}, s{T4}, {t}")
            a(f"s_mul_i32 s{T5}, s{T4}, 52")
            a(f"s_lshr_b32 s{T5}, s{T5}, 8")
            a(f"s_mul_i32 s{R+4+t}, s{T5}, s{sSl}")
            a(f"s_mul_i32 s{T5}, s{T5}, 5")
            a(f"s_sub_u32 s{T4}, s{T4}, s{T5}")
            a(f"s_lshl_b32 s{T4}, s{T4}, 10")
            a(f"s_add_u32 s{R+4+t}, s{R+4+t}, s{T4}")
            a(f"s_add_u32 s{R+4+t}, s{R+4+t}, s{sBase}")
        a(f"s_branch L_rl_common{u}")
        a.label(f"L_rl_w1{u}")
        a(f"s_sub_u32 s{sID}, s{sID}, 200")
        a(f"s_mul_i32 s{sKS}, s{sID}, 2428")
        a(f"s_lshr_b32 s{sKS}, s{sKS}, 16")
        a(f"s_mul_i32 s{sCB}, s{sKS}, 27")
        a(f"s_sub_u32 s{sCB}, s{sID}, s{sCB}")
        a(f"s_lshr_b32 s{T4}, s{sKS}, 1")
        a(f"s_mul_i32 s{T4}, s{T4}, 0x50")
        a(f"s_and_b32 s{T5}, s{sKS}, 1")
        a(f"s_lshl_b32 s{T5}, s{T5}, 5")
        a(f"s_add_u32 s{sD}, s{T4}, s{T5}")
        a(f"s_mul_i32 s{T4}, s{sKS}, 160")
        a(f"s_sub_u32 s{T4}, s{T4}, {160*16-64}")
        a(f"s_cmp_lt_u32 s{sKS}, 16")
        a(f"s_cselect_b32 s{sD}, s{sD}, s{T4}")
        a(f"s_cselect_b32 s{sA}, 16, 0x50")
        a(f"s_mov_b32 s{SRD_RL}, s{S_PTR+8}")
        a(f"s_and_b32 s{SRD_RL+1}, s{S_PTR+9}, 0xffff")
        a(f"s_mov_b32 s{SRD_RL+2}, {640*3456}")
        a(f"s_mov_b32 s{sST}, 3456")
        a(f"s_mul_i32 s{sKsS}, s{sKS}, 7168")
        a(f"s_add_u32 s{sBase}, s{sKsS}, {WS_W1}")
        a(f"s_mul_i32 s{R+8}, s{sKS}, {1728*4}")
        a(f"s_lshl_b32 s{T4}, s{sCB}, 8")
        a(f"s_add_u32 s{R+8}, s{R+8}, s{T4}")
        a(f"s_add_u32 s{R+8}, s{R+8}, {WS_CS1}")
        for t in range(4):
            a(f"s_lshl_b32 s{T4}, s{sCB}, 2")
            a(f"s_add_u32 s{T4}, s{T4}, {t}")
            a(f"s_mul_i32 s{T5}, s{T4}, 43")
            a(f"s_lshr_b32 s{T5}, s{T5}, 8")
            a(f"s_mul_i32 s{sSl}, s{T5}, 6")
            a(f"s_sub_u32 s{sSl}, s{T4}, s{sSl}")
            a(f"s_sub_u32 s{sKsS}, s{T4}, 96")
            a(f"s_cmp_lt_u32 s{T4}, 96")
            a(f"s_cselect_b32 s{T5}, s{T5}, s{sKsS}")
            a(f"s_cselect_b32 s{sSl}, s{sSl}, 6")
            a(f"s_mul_i32 s{R+4+t}, s{T5}, {20*7168}")
            a(f"s_lshl_b32 s{sSl}, s{sSl}, 10")
            a(f"s_add_u32 s{R+4+t}, s{R+4+t}, s{sSl}")
            a(f"s_add_u32 s{R+4+t}, s{R+4+t}, s{sBase}")
        a.label(f"L_rl_common{u}")
        a(f"s_mul_i32 s{sD}, s{sD}, s{sST}")
        a(f"s_lshl_b32 s{T4}, s{sCB}, 7")
        a(f"s_add_u32 s{R}, s{sD}, s{T4}")
        a(f"s_mul_i32 s{sA}, s{sA}, s{sST}")
        a(f"s_mul_i32 s{sB}, s{sB}, s{sST}")
        a(f"s_add_u32 s{R+1}, s{R}, s{sB}")
        a(f"s_add_u32 s{R+2}, s{R}, s{sA}")
        a(f"s_add_u32 s{R+3}, s{R+2}, s{sB}")
        a("v_lshrrev_b32 v1, 5, v0")
        a(f"v_mul_u32_u24 v1, s{sCc}, v1")
        a("v_bfe_u32 v2, v0, 3, 2")
        a("v_add_u32 v1, v1, v2")
        a(f"v_mul_u32_u24 v1, s{sST}, v1")
        a("v_and_b32 v2, 7, v0")
        a(f"v_lshl_add_u32 v{self.RLV}, v2, 4, v1")
        a("v_lshrrev_b32 v1, 2, v0")
        a("v_lshlrev_b32 v1, 7, v1")
        a("v_and_b32 v2, 3, v0")
        a("v_lshl_add_u32 v1, v2, 3, v1")
        a(f"s_lshl_b32 s{T4}, s{S_W}, 12")
        a(f"s_add_u32 s{T4}, s{T4}, {self.RL_SCR-4096}")
        a(f"v_add_u32 v{self.RLA}, s{T4}, v1")

    def relayout_issue(self, drain_older=False):
        a = self.a
        L = a.newlabel("rlsk")
        a(f"s_sub_u32 s{T0}, s{S_W}, 1")
        a(f"s_cmp_ge_u32 s{T0}, {0 if self.o.get('norl') else 5}")
        a(f"s_cbranch_scc1 {L}")
        a(f"s_lshl_b32 s{T0}, s{S_W}, 12")
        a(f"s_add_u32 m0, s{T0}, {self.RL_SCR-4096}")
        for i in range(4):
            if i: a("s_add_u32 m0, m0, 1024")
            a("s_nop 0")
            self.dma(self.RLV, SRD_RL, f"s{self.sRL+i}")
        if drain_older:
            L2 = a.newlabel("rlw")
            a("s_waitcnt vmcnt(4)")
            a(f"s_branch {L2}")
            a.label(L)
            a("s_waitcnt vmcnt(0)")
            a.label(L2)
        else:
            a.label(L)

    def relayout_finish(self, younger=None):
        a = self.a
        L = a.newlabel("rlsk"); F = 168; t = 184
        a(f"s_sub_u32 s{T0}, s{S_W}, 1")
        a(f"s_cmp_ge_u32 s{T0}, 5")
        Lo = a.newlabel("rlo")
        a(f"s_cbranch_scc1 {Lo if younger is not None else L}")
        if younger is not None: a(f"s_waitcnt vmcnt({younger})")
        for q in range(4):
            for rd in range(2):
                a(f"ds_read_b64_tr_b16 v[{F+4*q+2*rd}:{F+4*q+2*rd+1}], v{self.RLA} offset:{rd*2048+q*32}")
        a(f"v_lshlrev_b32 v{t}, 4, v0")
        for q in range(4):
            a(f"s_waitcnt lgkmcnt({6-2*q})")
            a(f"buffer_store_dwordx4 v[{F+4*q}:{F+4*q+3}], v{t}, s[{SRD_WS}:{SRD_WS+3}], s{self.sRL+4+q} offen sc1")
        if younger is not None: a("s_waitcnt vmcnt(4)")
        a(f"s_cmp_eq_u32 s{self.sRL+8}, -1")
        a(f"s_cbranch_scc1 {L}")
        for q in range(4): a(f"v_mov_b32 v{t+2+q}, 0")
        a(f"v_mov_b32 v{t+6}, 0x3f803f80")
        for k in range(4):
            for q in range(4): a(f"v_dot2_f32_bf16 v{t+2+q}, v{F+4*q+k}, v{t+6}, v{t+2+q}")
        a(f"v_lshlrev_b32 v{t+1}, 2, v0")
        a("s_nop 1")
        a(f"v_permlane16_swap_b32 v{t+2}, v{t+3}")
        a(f"v_permlane16_swap_b32 v{t+4}, v{t+5}")
        a("s_nop 0")
        a(f"v_add_f32 v{t+2}, v{t+2}, v{t+3}")
        a(f"v_add_f32 v{t+4}, v{t+4}, v{t+5}")
        a("s_nop 1")
        a(f"v_permlane32_swap_b32 v{t+2}, v{t+4}")
        a("s_nop 0")
        a(f"v_add_f32 v{t+2}, v{t+2}, v{t+4}")
        a(f"buffer_store_dword v{t+2}, v{t+1}, s[{SRD_WS}:{SRD_WS+3}], s{self.sRL+8} offen sc1")
        if younger is not None:
            a(f"s_branch {L}")
            a.label(Lo)
            a("s_waitcnt vmcnt(0)")
        a.label(L)

    def p1_setup_b(self):
        a = self.a
        a(f"s_and_b32 s{self.sTG}, s{S_W}, 3")
        a(f"s_lshr_b32 s{self.sNH}, s{S_W}, 2")
        a(f"s_cmp_ge_u32 s{self.sCT}, 5")
        a(f"s_cselect_b32 s{T0}, 5, 0")
        a(f"s_sub_u32 s{T0}, s{self.sCT}, s{T0}")
        a(f"s_lshl_b32 s{T0}, s{T0}, 1")
        a(f"s_add_u32 s{T0}, s{T0}, s{self.sNH}")
        for idx in range(10):
            a(f"s_cmp_eq_u32 s{T0}, {idx}")
            a(f"s_cbranch_scc1 L_tab{idx}")
        a(f"s_mul_i32 s{T1}, s{self.sNH}, 0x10101010")
        for k in range(4): a(f"s_add_u32 s{self.sTAB+k}, s{T1}, 0x%08x" % (0x03020100 + 0x04040404 * k))
        a(f"s_mov_b32 s{self.sTAB+4}, 0")
        a(f"s_mov_b32 s{self.sTAB+5}, 0")
        a("s_branch L_tabdone")
        for idx in range(10):
            a.label(f"L_tab{idx}")
            for k, d in enumerate(p1_table(idx // 2, idx % 2)): a(f"s_mov_b32 s{self.sTAB+k}, 0x%08x" % d)
            if idx < 9: a("s_branch L_tabdone")
        a.label("L_tabdone")
        a("v_and_b32 v1, 31, v0")
        a(f"s_lshl_b32 s{T0}, s{self.sTG}, 5")
        a(f"v_add_u32 v2, s{T0}, v1")
        a("v_bfe_u32 v3, v2, 1, 3")
        a("v_lshrrev_b32 v4, 5, v0")
        a("v_xor_b32 v3, v3, v4")
        a("v_lshlrev_b32 v3, 4, v3")
        a(f"v_lshl_add_u32 v{self.XA}, v2, 7, v3")
        a(f"s_xor_b32 s{T3}, s{self.sTG}, s{self.sNH}")
        a(f"s_lshl_b32 s{T0}, s{T3}, 5")
        a(f"v_xor_b32 v{self.XA}, s{T0}, v{self.XA}")
        for ks in range(1, 4): a(f"v_xor_b32 v{self.XA+ks}, {ks<<5}, v{self.XA}")
        a("v_bfe_u32 v5, v0, 2, 2")
        a("v_lshl_add_u32 v6, v4, 3, v5")
        a("v_lshlrev_b32 v6, 8, v6")
        a("v_and_b32 v7, 3, v0")
        a("v_lshlrev_b32 v7, 3, v7")
        a("v_and_b32 v8, 16, v0")
        a("v_cmp_ne_u32 vcc, 0, v8")
        for i in range(2):
            a(f"v_mov_b32 v8, s{self.sTAB+2*i}")
            a(f"v_mov_b32 v9, s{self.sTAB+2*i+1}")
            a("v_cndmask_b32 v8, v8, v9, vcc")
            a("v_bfe_u32 v8, v8, v7, 8")
            a("v_lshlrev_b32 v8, 3, v8")
            a("v_lshlrev_b32 v9, 6, v5")
            a("v_xor_b32 v8, v8, v9")
            a(f"v_add_u32 v8, v6, v8")
            a(f"s_lshl_b32 s{T0}, s{T3}, 12")
            a(f"v_add_u32 v{self.WA+4*i}, s{T0}, v8")
            for j in range(1, 4): a(f"v_xor_b32 v{self.WA+4*i+j}, {j<<12}, v{self.WA+4*i}")
        a(f"s_lshl_b32 s{T0}, s{self.sRB}, 2")
        a(f"s_add_u32 s{T0}, s{T0}, s{self.sTG}")
        a(f"s_lshl_b32 s{T1}, s{T0}, 9")
        a(f"s_add_u32 s{T1}, s{T1}, {WS_RS}")
        a(f"v_lshl_add_u32 v{self.RSA}, v1, 4, s{T1}")
        a(f"s_cmp_ge_u32 s{self.sCT}, 10")
        a("s_cbranch_scc1 L_p1_vaddr")
        a(f"s_lshl_b32 s{T0}, s{T0}, 9")
        a(f"s_cmp_ge_u32 s{self.sCT}, 5")
        a(f"s_cselect_b32 s{T1}, {WS_K}, {WS_Q}")
        a(f"s_add_u32 s{T0}, s{T0}, s{T1}")
        a(f"v_lshl_add_u32 v2, v1, 4, s{T0}")
        a("v_lshlrev_b32 v3, 3, v4")
        a("v_add_u32 v5, 16, v3")
        for i in range(2):
            for qq in range(2):
                a(f"v_bfe_u32 v6, s{self.sTAB+4+i}, v{3 if qq == 0 else 5}, 8")
                a(f"v_lshl_add_u32 v{self.STA+2*i+qq}, v6, 15, v2")
        a("s_branch L_p1_addrdone")
        a.label("L_p1_vaddr")
        a(f"s_mul_i32 s{T0}, s{T0}, 1280")
        a(f"s_add_u32 s{T0}, s{T0}, {WS_V}")
        a(f"s_lshl_b32 s{T1}, s{self.sCT}, 7")
        a(f"s_lshl_b32 s{T2}, s{self.sNH}, 6")
        a(f"s_add_u32 s{T1}, s{T1}, s{T2}")
        a(f"s_sub_u32 s{T1}, s{T1}, 1280")
        a(f"v_mov_b32 v{self.STA+2}, 0")
        a(f"v_mov_b32 v{self.STA+3}, 0")
        a("v_mul_u32_u24 v3, 320, v4")
        a(f"v_add_u32 v3, s{T0}, v3")
        a(f"s_mov_b32 s{T2}, 81920")
        for i in range(2):
            a(f"v_add_u32 v5, s{T1}, v1")
            if i: a("v_add_u32 v5, 32, v5")
            a("v_mul_u32_u24 v6, 3277, v5")
            a("v_lshrrev_b32 v6, 16, v6")
            a("v_mul_u32_u24 v7, 20, v6")
            a("v_sub_u32 v5, v5, v7")
            a("v_lshl_add_u32 v5, v5, 4, v3")
            a(f"v_mad_u32_u24 v{self.STA+i}, v6, s{T2}, v5")
        a.label("L_p1_addrdone")
        for r in range(32): a(f"v_mov_b32 v{self.ACC+r}, 0")
        a(f"s_mul_i32 s{T0}, s{self.sCT}, 10240")
        a(f"s_lshl_b32 s{T1}, s{self.sNH}, 9")
        a(f"s_add_u32 s{T0}, s{T0}, s{T1}")
        a(f"s_add_u32 s{T0}, s{T0}, {WS_CQ}")
        a(f"v_lshl_add_u32 v{self.CQA}, v0, 3, s{T0}")
        a(f"s_mov_b32 s{self.sSIDE}, 0x81")
        a(f"v_mov_b32 v{self.VXM}, 0x8000")
        a(f"s_mov_b32 s{self.sCNT}, 0")

    def p1_loop(self, vmode):
        a = self.a
        tag = "v" if vmode else "q"
        a(f"s_cmp_lg_u32 s{self.sNH}, 0")
        a(f"s_cbranch_scc1 L_p1_B{tag}")
        self.p1_loop1(vmode, 0)
        a(f"s_branch L_p1_E{tag}")
        a.label(f"L_p1_B{tag}")
        self.p1_loop1(vmode, 1)
        a.label(f"L_p1_E{tag}")

    def p1_loop1(self, vmode, B):
        a = self.a
        L = a.newlabel("p1loop")
        pos = self.o.get("barB" if B else "barA", "1" if B else "0")
        def reads(ks):
            if self.o.get("nolds"): return
            a(f"ds_read_b128 v[{self.XF+4*ks}:{self.XF+4*ks+3}], v{self.XA+ks}")
            for i in range(2):
                for rd in range(2):
                    d = self.WF + 8 * ks + 4 * i + 2 * rd
                    a(f"ds_read_b64_tr_b16 v[{d}:{d+1}], v{self.WA+4*i+ks} offset:{16384+rd*1024}")
        def xors(ks):
            for r in (self.XA + ks, self.WA + ks, self.WA + 4 + ks): a(f"v_xor_b32 v{r}, v{self.VXM}, v{r}")
            if ks == 3: a(f"v_xor_b32 v{self.VXM}, 0x10000, v{self.VXM}")
        def bar():
            a("s_waitcnt vmcnt(4)")
            if not self.o.get("nobar"): a("s_barrier")
            if self.o.get("its") == "1": self.stamp_dyn(54, self.sCNT)
        def mf(ks, i):
            x = vr(self.XF + 4 * ks, 4); wv = vr(self.WF + 8 * ks + 4 * i, 4); acc = vr(self.ACC + 16 * i, 16)
            if self.o.get("nomfma"): pass
            elif vmode: a(f"v_mfma_f32_32x32x16_bf16 {acc}, {x}, {wv}, {acc}")
            else: a(f"v_mfma_f32_32x32x16_bf16 {acc}, {wv}, {x}, {acc}")
        def comp(ks):
            n = (ks + 2) % 4
            if ks == 2 and pos == "0": bar()
            a("s_waitcnt lgkmcnt(5)")
            mf(ks, 0)
            if ks == 2 and pos == "1": bar()
            if ks == 2 and pos == "2":
                mf(ks, 1); bar(); reads(n)
            else:
                reads(n); mf(ks, 1)
            xors(n)
            self.p1_issue((n,))
            if n == 3:
                Lp = a.newlabel("pre"); Lpb = a.newlabel("preb")
                self._pre = (Lp, Lpb)
                a(f"s_cmp_ge_u32 s{self.sCNT}, 7")
                a(f"s_cbranch_scc1 {Lp}")
                a.label(Lpb)
        a("s_waitcnt vmcnt(7)")
        a("s_barrier")
        self.stamp(3)
        reads(0); reads(1); xors(0); xors(1)
        a("v_mov_b32 v6, 0x3f803f80")
        a("v_mov_b32 v2, 0")
        a("v_mov_b32 v3, 0")
        a(f"s_lshl_b32 s{T0}, s{self.sNH}, 8")
        a(f"s_lshl_b32 s{T1}, s{self.sTG}, 9")
        a(f"s_add_u32 s{T0}, s{T0}, {self.P1_MISC}")
        a(f"s_add_u32 s{T1}, s{T1}, s{T0}")
        a(f"v_lshl_add_u32 v4, v0, 2, s{T1}")
        a(f"v_lshl_add_u32 v95, v0, 2, s{T0}")
        a("s_waitcnt lgkmcnt(5)")
        for k in range(4):
            for i in range(2): a(f"v_dot2_f32_bf16 v{2+i}, v{self.WF+4*i+k}, v6, v{2+i}")
        a("s_nop 2")
        a("v_permlane32_swap_b32 v2, v3")
        a("s_nop 0")
        a("v_add_f32 v2, v2, v3")
        a("ds_write_b32 v4, v2")
        a("s_waitcnt lgkmcnt(0)")
        a.align(6)
        a.label(L)
        comp(0); comp(1); comp(2)
        Lr = a.newlabel("back"); Ls = a.newlabel("side")
        a(f"s_bitcmp1_b32 s{self.sSIDE}, s{self.sCNT}")
        a(f"s_cbranch_scc1 {Ls}")
        a.label(Lr)
        comp(3)
        a(f"s_add_u32 s{self.sCNT}, s{self.sCNT}, 1")
        a(f"s_cmp_lt_u32 s{self.sCNT}, 10")
        a(f"s_cbranch_scc1 {L}")
        Le = a.newlabel("lend"); L8 = a.newlabel("side8")
        a(f"s_branch {Le}")
        a.label(Ls)
        a(f"s_cmp_lg_u32 s{self.sCNT}, 0")
        a(f"s_cbranch_scc1 {L8}")
        self.nonce_get()
        a(f"s_cmp_lg_u32 s{self.sTG}, 0")
        a(f"s_cbranch_scc1 {Lr}")
        for k in range(4): a(f"ds_read_b32 v{2+k}, v95 offset:{512*k}")
        a(f"s_lshl_b32 s{T0}, s{self.sKC0}, 10")
        a("s_waitcnt lgkmcnt(0)")
        a("v_add_f32 v2, v2, v3")
        a("v_add_f32 v4, v4, v5")
        a(f"v_mov_b32 v3, s{S_NONCE}")
        a("v_add_f32 v2, v2, v4")
        a(f"buffer_store_dwordx2 v[2:3], v{self.CQA}, s[{SRD_WS}:{SRD_WS+3}], s{T0} offen sc1")
        a(f"s_branch {Lr}")
        a.label(L8)
        a(f"buffer_load_dwordx4 v[{self.RS}:{self.RS+3}], v{self.RSA}, s[{SRD_WS}:{SRD_WS+3}], 0 offen sc1")
        a(f"s_mov_b32 s{T2}, m0")
        a(f"s_mul_i32 s{T0}, s{self.sCT}, 10240")
        a(f"s_lshl_b32 s{T1}, s{S_W}, 10")
        a(f"s_add_u32 s{T0}, s{T0}, s{T1}")
        a(f"s_add_u32 s{T0}, s{T0}, {WS_CQ}")
        a(f"s_add_u32 m0, s{T1}, {self.CQ_SCR}")
        a("v_lshlrev_b32 v1, 4, v0")
        self.dma(1, SRD_WS, f"s{T0}", "sc1")
        a(f"s_add_u32 s{T0}, s{T0}, 8192")
        a("s_add_u32 m0, m0, 8192")
        a(f"s_cmp_ge_u32 s{S_W}, 2")
        a(f"s_cselect_b32 s{T0}, 0x7f000000, s{T0}")
        self.dma(1, SRD_WS, f"s{T0}", "sc1")
        a(f"s_mov_b32 m0, s{T2}")
        a(f"s_branch {Lr}")
        Lp, Lpb = self._pre
        a.label(Lp)
        a(f"s_mov_b32 s{self.sXO}, 0x7f000000")
        a(f"s_mov_b32 s{self.sWO}, 0x7f000000")
        a(f"s_mov_b32 s{self.sM0X}, {self.DUMMY}")
        a(f"s_mov_b32 s{self.sI1}, 0")
        a(f"s_mov_b32 s{self.sI2}, 0")
        a(f"s_mov_b32 s{self.sSM}, 0")
        a(f"s_mov_b32 s{self.sSLOT}, 0")
        a(f"s_branch {Lpb}")
        a.label(Le)

    def p1_gather(self):
        a = self.a
        a(f"buffer_load_dwordx4 v[{self.RS}:{self.RS+3}], v{self.RSA}, s[{SRD_WS}:{SRD_WS+3}], 0 offen sc1")
        a(f"s_movk_i32 s{T0}, 0x1000")
        a(f"s_movk_i32 s{T1}, 0x2000")
        for k in range(10):
            so = ("0", f"s{T0}", f"s{T1}")[k // 4]
            a(f"buffer_load_dwordx2 v[{self.CQ+2*k}:{self.CQ+2*k+1}], v{self.CQA}, s[{SRD_WS}:{SRD_WS+3}], {so} offen offset:{1024*(k%4)} sc1")

    def p1_epi_common(self):
        a = self.a
        self.stamp(4)
        a(f"s_lshl_b32 s{T2}, s{S_W}, 9")
        a(f"s_add_u32 s{T2}, s{T2}, {self.P1_MISC+4096}")
        a(f"v_lshl_add_u32 v6, v0, 2, s{T2}")
        a("v_and_b32 v5, 31, v0")
        L = a.newlabel("rs"); Ld = a.newlabel("rsd")
        a(f"s_mov_b32 s{S_SPIN}, 0")
        a(f"s_lshl_b32 s{T0}, s{self.sNH}, 9")
        a(f"s_add_u32 s{T0}, s{T0}, {self.CQ_SCR}")
        a(f"v_lshl_add_u32 v1, v0, 3, s{T0}")
        for k in range(10): a(f"ds_read_b64 v[{self.CQ+2*k}:{self.CQ+2*k+1}], v1 offset:{1024*k}")
        a("s_waitcnt lgkmcnt(0)")
        a.label(L)
        a(f"v_xor_b32 v2, s{S_NONCE}, v{self.RS+1}")
        a(f"v_xor_b32 v3, s{S_NONCE}, v{self.RS+3}")
        for k in range(0, 10, 2):
            a(f"v_xor_b32 v4, s{S_NONCE}, v{self.CQ+2*k+1}")
            a(f"v_xor_b32 v7, s{S_NONCE}, v{self.CQ+2*k+3}")
            a("v_or3_b32 v2, v2, v4, v7")
        a("v_or_b32 v2, v2, v3")
        a("v_cmp_ne_u32 vcc, 0, v2")
        a(f"s_add_u32 s{S_SPIN}, s{S_SPIN}, 1")
        a("s_or_b64 vcc, vcc, vcc")
        a(f"s_cbranch_scc0 {Ld}")
        a(f"s_cmp_ge_u32 s{S_SPIN}, {SPIN_MAX}")
        a(f"s_cbranch_scc1 {Ld}")
        self.p1_gather()
        a("s_waitcnt vmcnt(0)")
        a(f"s_branch {L}")
        a.label(Ld)
        Q = self.CQ
        a(f"v_add_f32 v12, v{Q}, v{Q+2}")
        a(f"v_add_f32 v13, v{Q+4}, v{Q+6}")
        a(f"v_add_f32 v14, v{Q+8}, v{Q+10}")
        a(f"v_add_f32 v15, v{Q+12}, v{Q+14}")
        a(f"v_add_f32 v2, v{Q+16}, v{Q+18}")
        a("v_add_f32 v12, v12, v13")
        a("v_add_f32 v14, v14, v15")
        a("v_add_f32 v12, v12, v2")
        a("v_add_f32 v12, v12, v14")

    def rowstats(self):
        a = self.a
        X = 100
        a("v_lshrrev_b32 v1, 3, v0")
        a(f"s_lshl_b32 s{T0}, s{S_W}, 4")
        a(f"s_lshl_b32 s{T1}, s{self.sRB}, 7")
        a(f"s_add_u32 s{T0}, s{T0}, s{T1}")
        a(f"v_add_u32 v1, s{T0}, v1")
        a("v_mul_u32_u24 v2, 1280, v1")
        a("v_and_b32 v3, 7, v0")
        a("v_lshl_add_u32 v2, v3, 4, v2")
        a(f"s_mov_b32 s{T0}, 10240")
        a("v_mov_b32 v3, 0")
        a(f"buffer_load_dwordx2 v[{self.VN}:{self.VN+1}], v3, s[{SRD_DBG}:{SRD_DBG+3}], 0 offen sc1")
        for k in range(10):
            for hh in range(2):
                r = X + 8 * k + 4 * hh
                a(f"buffer_load_dwordx4 v[{r}:{r+3}], v2, s[{SRD_X}:{SRD_X+3}], {'s%d' % T0 if hh else '0'} offen offset:{128*k}")
        for r in range(4, 8): a(f"v_mov_b32 v{r}, 0")
        a("v_mov_b32 v8, 0x3f803f80")
        for k in range(10):
            a(f"s_waitcnt vmcnt({18-2*k})")
            for e in range(4):
                for hh in range(2):
                    r = X + 8 * k + 4 * hh + e
                    a(f"v_dot2_f32_bf16 v{4+hh}, v{r}, v8, v{4+hh}")
                    a(f"v_dot2_f32_bf16 v{6+hh}, v{r}, v{r}, v{6+hh}")
        a("s_nop 2")
        for ctl in ("quad_perm:[1,0,3,2]", "quad_perm:[2,3,0,1]", "row_half_mirror"):
            for r in range(4, 8): a(f"v_add_f32_dpp v{r}, v{r}, v{r} {ctl} row_mask:0xf bank_mask:0xf")
        self.nonce_get()
        a("v_and_b32 v3, 1, v0")
        a("v_cmp_ne_u32 vcc, 0, v3")
        a("v_lshlrev_b32 v3, 3, v3")
        a("v_add_u32 v1, v1, v3")
        a("v_cndmask_b32 v4, v4, v5, vcc")
        a("v_cndmask_b32 v6, v6, v7, vcc")
        a(f"v_mul_f32 v4, 0x%08x, v4" % f2u(1.0 / 640))
        a("v_mul_f32 v5, v4, v4")
        a(f"v_mov_b32 v7, 0x%08x" % f2u(1.0 / 640))
        a("v_fma_f32 v5, v6, v7, -v5")
        a("v_max_f32 v5, 0, v5")
        a(f"v_add_f32 v5, 0x%08x, v5" % f2u(1e-5))
        a("v_rsq_f32 v8, v5")
        a(f"v_mov_b32 v9, s{S_NONCE}")
        a(f"v_mov_b32 v11, s{S_NONCE}")
        a("v_mul_f32 v10, v4, v8")
        a("v_lshlrev_b32 v1, 4, v1")
        a(f"s_mov_b32 s{T0}, {WS_RS}")
        a("s_mov_b32 exec_lo, 0x03030303")
        a("s_mov_b32 exec_hi, 0x03030303")
        a(f"buffer_store_dwordx4 v[8:11], v1, s[{SRD_WS}:{SRD_WS+3}], s{T0} offen sc1")
        a("s_mov_b64 exec, -1")

    def p1_epi_q(self):
        a = self.a
        self.p1_epi_common()
        qs = math.log2(math.e) / math.sqrt(20.0)
        a("ds_write_b32 v6, v12")
        a("v_lshrrev_b32 v1, 5, v0")
        a(f"v_lshl_add_u32 v1, v1, 4, s{T2}")
        C = 48
        for i in range(2):
            for q4 in range(4):
                a(f"ds_read_b128 v[{C+16*i+4*q4}:{C+16*i+4*q4+3}], v1 offset:{i*128+q4*32}")
        a(f"s_cmp_lt_u32 s{self.sCT}, 5")
        a(f"s_cselect_b32 s{T1}, 0x%08x, 1.0" % f2u(qs))
        a(f"v_mul_f32 v2, s{T1}, v{self.RS}")
        a(f"v_mul_f32 v3, s{T1}, v{self.RS+2}")
        for i in range(2):
            for qq in range(2):
                a(f"s_waitcnt lgkmcnt({6-4*i-2*qq})")
                b = 16 * i + 8 * qq
                for r in range(8): a(f"v_mul_f32 v{self.ACC+b+r}, v2, v{self.ACC+b+r}")
                for r in range(8): a(f"v_fma_f32 v{self.ACC+b+r}, -v3, v{C+b+r}, v{self.ACC+b+r}")
                o = 4 + 4 * ((2 * i + qq) % 2)
                for r in range(4): a(f"v_cvt_pk_bf16_f32 v{o+r}, v{self.ACC+b+2*r}, v{self.ACC+b+2*r+1}")
                a(f"buffer_store_dwordx4 v[{o}:{o+3}], v{self.STA+2*i+qq}, s[{SRD_WS}:{SRD_WS+3}], 0 offen sc1")

    def p1_epi_v(self):
        a = self.a
        self.p1_epi_common()
        a("v_mov_b32 v13, v12")
        a(f"v_lshl_add_u32 v6, v5, 2, s{T2}")
        a("v_lshrrev_b32 v1, 5, v0")
        a("v_permlane32_swap_b32 v12, v13")
        a(f"ds_write_b32 v6, v{self.RS}")
        a(f"ds_write_b32 v6, v{self.RS+2} offset:128")
        a(f"v_lshl_add_u32 v6, v1, 4, s{T2}")
        C = 48
        for q4 in range(4):
            a(f"ds_read_b128 v[{C+4*q4}:{C+4*q4+3}], v6 offset:{q4*32}")
            a(f"ds_read_b128 v[{C+16+4*q4}:{C+16+4*q4+3}], v6 offset:{128+q4*32}")
        for grp in range(2):
            a(f"s_waitcnt lgkmcnt({4-4*grp})")
            for i in range(2):
                b = 16 * i + 8 * grp
                for r in range(8): a(f"v_mul_f32 v{self.ACC+b+r}, v{C+8*grp+r}, v{self.ACC+b+r}")
                for r in range(8): a(f"v_fma_f32 v{self.ACC+b+r}, -v{C+16+8*grp+r}, v{12+i}, v{self.ACC+b+r}")
                o = 4 + 4 * i
                for r in range(4): a(f"v_cvt_pk_bf16_f32 v{o+r}, v{self.ACC+b+2*r}, v{self.ACC+b+2*r+1}")
                a(f"buffer_store_dwordx4 v[{o}:{o+3}], v{self.STA+i}, s[{SRD_WS}:{SRD_WS+3}], 0 offen offset:{640*grp} sc1")

    def nonce_get(self):
        a = self.a
        a(f"s_mov_b32 s{S_SPIN}, 0")
        Lc = a.newlabel("nchk"); Lo = a.newlabel("nok")
        a.label(Lc)
        a(f"v_readfirstlane_b32 s{S_NONCE}, v{self.VN}")
        a(f"v_readfirstlane_b32 s{S_NONCE+1}, v{self.VN+1}")
        a(f"s_add_u32 s{S_SPIN}, s{S_SPIN}, 1")
        a(f"s_or_b32 s{T0}, s{S_NONCE}, s{S_NONCE+1}")
        a(f"s_cbranch_scc1 {Lo}")
        a(f"s_cmp_ge_u32 s{S_SPIN}, {SPIN_MAX}")
        a(f"s_cbranch_scc1 {Lo}")
        a("v_mov_b32 v94, 0")
        a(f"buffer_load_dwordx2 v[{self.VN}:{self.VN+1}], v94, s[{SRD_DBG}:{SRD_DBG+3}], 0 offen sc1")
        a("s_waitcnt vmcnt(0)")
        a(f"s_branch {Lc}")
        a.label(Lo)

    def phase1(self):
        a = self.a
        self.p1_setup_a()
        a(f"s_cmp_eq_u32 s{self.sCT}, 15")
        a("s_cbranch_scc0 L_p1_go")
        self.rowstats()
        self.relayout_setup()
        a("s_branch L_p1_done")
        a.label("L_p1_go")
        self.p1_setup_b()
        a("v_mov_b32 v1, 0")
        a(f"buffer_load_dwordx2 v[{self.VN}:{self.VN+1}], v1, s[{SRD_DBG}:{SRD_DBG+3}], 0 offen sc1")
        self.p1_issue((1, 2, 3))
        self.p1_issue((0, 1))
        self.relayout_setup()
        self.stamp(2)
        a(f"s_cmp_ge_u32 s{self.sCT}, 10")
        a("s_cbranch_scc1 L_p1_v")
        self.p1_loop(False)
        self.p1_epi_q()
        a("s_branch L_p1_done")
        a.label("L_p1_v")
        self.p1_loop(True)
        self.p1_epi_v()
        a.label("L_p1_done")
        self.stamp(5)
        a("s_waitcnt vmcnt(0)")
        self.stamp(6)
        a("s_barrier")
        a(f"s_lshl_b32 s{T0}, s{self.sCT}, 4")
        a(f"s_add_u32 s{T0}, s{T0}, s{self.sRB}")
        a(f"s_mul_i32 s{T0}, s{T0}, {FSP}")
        a(f"s_add_u32 s{T0}, s{T0}, {FL_1}")
        self.flag_store(T0, 2)
        self.stamp(7)
        if self.stop < 2:
            self.relayout_issue()
            a("s_waitcnt vmcnt(0)")
            self.relayout_finish()

    def build(self):
        a = self.a
        self.entry()
        self.phase1()
        if self.stop >= 2:
            from phases import phase2, phase3, phase4, phase5
            phase2(self)
            if self.stop >= 3: phase3(self)
            if self.stop >= 4: phase4(self)
            if self.stop >= 5: phase5(self)
        a("s_waitcnt vmcnt(0)")
        self.stamp(31)
        self.stamp_flush()
        a.label("L_end")
        a("s_endpgm")
        a.lines.append(f".fill {self.pad}, 4, 0xbf810000")
        body = a.text()
        errs = check(body)
        if errs:
            sys.stderr.write("\n".join(errs[:40]) + "\n%d hazards\n" % len(errs))
            raise SystemExit(1)
        head = f"""; Fused preLN -> MHA -> residual -> preLN -> SiLU FFN -> residual, one persistent launch.
; @launch grid=(256,1,1) block=(512,1,1) lds={LDS_BYTES}
.amdgcn_target "amdgcn-amd-amdhsa--gfx950"
.text
.globl {NAME}_kernel
.p2align 8
.type {NAME}_kernel,@function
{NAME}_kernel:
"""
        tail = f""".section .rodata,"a"
.p2align 6
.amdhsa_kernel {NAME}_kernel
  .amdhsa_next_free_vgpr 256
  .amdhsa_next_free_sgpr 102
  .amdhsa_accum_offset 256
  .amdhsa_group_segment_fixed_size 0
  .amdhsa_kernarg_size 72
  .amdhsa_user_sgpr_count 2
  .amdhsa_user_sgpr_kernarg_segment_ptr 1
  .amdhsa_system_sgpr_workgroup_id_x 1
.end_amdhsa_kernel
"""
        return head + body + tail

if __name__ == "__main__":
    stop = int(sys.argv[2]) if len(sys.argv) > 2 else 99
    opts = dict(kv.split("=") for kv in sys.argv[3:])
    import subprocess
    def asm_size(path):
        r = subprocess.run(["clang", "-x", "assembler", "-target", "amdgcn-amd-amdhsa", "-mcpu=gfx950", "-c", path, "-o", "_chk.o"], capture_output=True, text=True)
        if r.returncode: print(r.stderr[:1500]); raise SystemExit(1)
        r = subprocess.run(["llvm-readelf", "-S", "_chk.o"], capture_output=True, text=True)
        return int([l for l in r.stdout.split("\n") if ".text" in l][0].split()[6], 16)
    open(sys.argv[1], "w").write(K(stop, opts).build())
    n = asm_size(sys.argv[1])
    k = K(stop, opts)
    k.CPF_LINES = (n + 4095) // 4096
    k.pad = (k.CPF_LINES * 4096 - n) // 4 + 16
    open(sys.argv[1], "w").write(k.build())
    print(sys.argv[1], "code bytes:", n, "with pad:", asm_size(sys.argv[1]))
```

```python
import sys, math
from asmlib import Asm, vr, sr, f2u, check
from tables import *

NAME = "sequential_preLN__mha_block__dense_activation_silu__prompt"
LDS_BYTES = 163840
SPIN_MAX = 20000

S_G = 2
SRD_X, SRD_WQ, SRD_WS, SRD_OUT, SRD_DBG, SRD_RL = 4, 8, 12, 16, 20, 24
S_W, S_C, S_J = 28, 29, 30
S_NONCE = 32
S_PTR = 36
T0, T1, T2, T3, T4, T5 = 54, 55, 56, 57, 58, 59
S_M1 = 60
S_SPIN = 62

class K:
    def __init__(self, stop_after=99, opts=None):
        self.a = Asm()
        self.stop = stop_after
        self.o = opts or {}
        self.pad = 0

    def srd(self, d, ptr, nbytes):
        a = self.a
        a(f"s_mov_b32 s{d}, s{ptr}")
        a(f"s_and_b32 s{d+1}, s{ptr+1}, 0xffff")
        a(f"s_mov_b32 s{d+2}, {nbytes}")
        a(f"s_mov_b32 s{d+3}, 0x20000")

    def stamp(self, idx):
        if not self.o.get("stamps"): return
        a = self.a
        a("s_memrealtime s[100:101]")
        a("s_waitcnt lgkmcnt(0)")
        a(f"v_writelane_b32 v255, s100, {idx}")
        if idx < 22:
            a("s_memtime s[100:101]")
            a("s_waitcnt lgkmcnt(0)")
            a(f"v_writelane_b32 v255, s100, {idx+32}")

    def stamp_dyn(self, base, sreg):
        if not self.o.get("its"): return
        a = self.a
        a("s_memtime s[100:101]")
        a("s_mov_b32 s99, m0")
        a(f"s_add_u32 m0, s{sreg}, {base}")
        a("s_waitcnt lgkmcnt(0)")
        a("v_writelane_b32 v255, s100, m0")
        a("s_mov_b32 m0, s99")

    def stamp_flush(self):
        if not self.o.get("stamps"): return
        a = self.a
        if self.o.get("dbgwg"):
            L = a.newlabel("dbg")
            a(f"s_cmp_lg_u32 s{S_G}, {int(self.o['dbgwg'])}")
            a(f"s_cbranch_scc1 {L}")
            a(f"s_cmp_lg_u32 s{S_W}, 0")
            a(f"s_cbranch_scc1 {L}")
            a(f"v_readlane_b32 s{T1}, v255, 0")
            for n, i in enumerate((3, 4, 7, 8, 9, 10, 12, 13, 15, 16, 18, 19, 31)):
                a(f"v_readlane_b32 s{T0}, v255, {i}")
                a("s_nop 3")
                a(f"s_sub_u32 s{T0}, s{T0}, s{T1}")
                a(f"v_mov_b32 v1, s{T0}")
                a(f"v_mov_b32 v2, {8+4*n}")
                a(f"buffer_store_dword v1, v2, s[{SRD_DBG}:{SRD_DBG+3}], 0 offen")
            a.label(L)
            return
        a(f"s_lshl_b32 s{T0}, s{S_G}, 3")
        a(f"s_add_u32 s{T0}, s{T0}, s{S_W}")
        a(f"s_lshl_b32 s{T0}, s{T0}, 8")
        a(f"s_add_u32 s{T0}, s{T0}, {WS_SIZE}")
        a("v_lshlrev_b32 v1, 2, v0")
        a(f"buffer_store_dword v255, v1, s[{SRD_WS}:{SRD_WS+3}], s{T0} offen")
        a("s_mov_b64 exec, -1")

    def dma(self, voff, srd, soff, flags=""):
        if self.o.get("nodma"): return
        self.a(f"buffer_load_dwordx4 v{voff}, s[{srd}:{srd+3}], {soff} offen {flags} lds".replace("  ", " "))

    def flag_store(self, s_off, vt):
        a = self.a
        L = a.newlabel("nofl")
        a(f"s_cmp_lg_u32 s{S_W}, 0")
        a(f"s_cbranch_scc1 {L}")
        a(f"v_mov_b32 v{vt}, s{S_NONCE}")
        a(f"v_mov_b32 v{vt+1}, s{S_NONCE+1}")
        a(f"v_mov_b32 v{vt+2}, 0")
        a("s_mov_b64 exec, 1")
        a(f"buffer_store_dwordx2 v[{vt}:{vt+1}], v{vt+2}, s[{SRD_WS}:{SRD_WS+3}], s{s_off} offen sc1")
        a("s_mov_b64 exec, -1")
        a.label(L)

    def poll(self, n, s_off, spacing, vt, only_wave0=True):
        a = self.a
        L = a.newlabel("poll"); Ld = a.newlabel("polld")
        if only_wave0:
            a(f"s_cmp_lg_u32 s{S_W}, 0")
            a(f"s_cbranch_scc1 {Ld}")
        a(f"s_mov_b32 s{S_SPIN}, 0")
        if n == 256:
            assert spacing == 8
            a(f"v_lshlrev_b32 v{vt+8}, 4, v0")
            a.label(L)
            a(f"buffer_load_dwordx4 v[{vt}:{vt+3}], v{vt+8}, s[{SRD_WS}:{SRD_WS+3}], s{s_off} offen sc1")
            a(f"buffer_load_dwordx4 v[{vt+4}:{vt+7}], v{vt+8}, s[{SRD_WS}:{SRD_WS+3}], s{s_off} offen offset:1024 sc1")
            a(f"s_add_u32 s{S_SPIN}, s{S_SPIN}, 1")
            a("s_waitcnt vmcnt(0)")
            a(f"v_cmp_ne_u64 vcc, s[{S_NONCE}:{S_NONCE+1}], v[{vt}:{vt+1}]")
            a(f"v_cmp_ne_u64 s[{S_M1}:{S_M1+1}], s[{S_NONCE}:{S_NONCE+1}], v[{vt+2}:{vt+3}]")
            a("s_nop 0")
            a(f"s_or_b64 s[{T4}:{T5}], vcc, s[{S_M1}:{S_M1+1}]")
            a(f"v_cmp_ne_u64 vcc, s[{S_NONCE}:{S_NONCE+1}], v[{vt+4}:{vt+5}]")
            a(f"v_cmp_ne_u64 s[{S_M1}:{S_M1+1}], s[{S_NONCE}:{S_NONCE+1}], v[{vt+6}:{vt+7}]")
            a("s_nop 0")
            a(f"s_or_b64 s[{T4}:{T5}], s[{T4}:{T5}], vcc")
            a(f"s_or_b64 s[{T4}:{T5}], s[{T4}:{T5}], s[{S_M1}:{S_M1+1}]")
        else:
            a(f"v_and_b32 v{vt+8}, {n-1}, v0")
            a(f"v_mul_u32_u24 v{vt+8}, {spacing}, v{vt+8}")
            a.label(L)
            a(f"buffer_load_dwordx2 v[{vt}:{vt+1}], v{vt+8}, s[{SRD_WS}:{SRD_WS+3}], s{s_off} offen sc1")
            a(f"s_add_u32 s{S_SPIN}, s{S_SPIN}, 1")
            a("s_waitcnt vmcnt(0)")
            a(f"v_cmp_ne_u64 vcc, s[{S_NONCE}:{S_NONCE+1}], v[{vt}:{vt+1}]")
            a("s_nop 0")
            a(f"s_or_b64 s[{T4}:{T5}], vcc, vcc")
        a(f"s_cbranch_scc0 {Ld}")
        a(f"s_cmp_lt_u32 s{S_SPIN}, {SPIN_MAX}")
        a(f"s_cbranch_scc1 {L}")
        a.label(Ld)

    def poll2(self, va, vb, s_off, vt):
        a = self.a
        L = a.newlabel("poll"); Ld = a.newlabel("polld")
        N = f"s[{S_NONCE}:{S_NONCE+1}]"
        a(f"s_cmp_lg_u32 s{S_W}, 0")
        a(f"s_cbranch_scc1 {Ld}")
        a(f"s_mov_b32 s{S_SPIN}, 0")
        a.label(L)
        a(f"buffer_load_dwordx2 v[{vt}:{vt+1}], v{va}, s[{SRD_WS}:{SRD_WS+3}], s{s_off} offen sc1")
        a(f"buffer_load_dwordx2 v[{vt+2}:{vt+3}], v{vb}, s[{SRD_WS}:{SRD_WS+3}], s{s_off} offen sc1")
        a(f"s_add_u32 s{S_SPIN}, s{S_SPIN}, 1")
        a("s_waitcnt vmcnt(0)")
        a(f"v_cmp_ne_u64 vcc, {N}, v[{vt}:{vt+1}]")
        a(f"v_cmp_ne_u64 s[{S_M1}:{S_M1+1}], {N}, v[{vt+2}:{vt+3}]")
        a("s_nop 0")
        a(f"s_or_b64 vcc, vcc, s[{S_M1}:{S_M1+1}]")
        a(f"s_cbranch_scc0 {Ld}")
        a(f"s_cmp_lt_u32 s{S_SPIN}, {SPIN_MAX}")
        a(f"s_cbranch_scc1 {L}")
        a.label(Ld)

    def entry(self):
        a = self.a
        a(f"s_cmp_ge_u32 s{S_G}, 256")
        a("s_cbranch_scc1 L_end")
        a(f"s_load_dwordx16 s[{S_PTR}:{S_PTR+15}], s[0:1], 0")
        a(f"s_load_dwordx2 s[{S_PTR+16}:{S_PTR+17}], s[0:1], 64")
        a(f"s_memrealtime s[{S_NONCE}:{S_NONCE+1}]")
        if self.o.get("stamps"): a("v_mov_b32 v255, 0")
        self.stamp(0)
        a("v_lshrrev_b32 v1, 6, v0")
        a("v_and_b32 v0, 63, v0")
        a(f"v_readfirstlane_b32 s{S_W}, v1")
        a(f"s_and_b32 s{S_C}, s{S_G}, 7")
        a(f"s_lshr_b32 s{S_J}, s{S_G}, 3")

    ACC = 16; XF = 160; WF = 176; XA = 72; WA = 144; DXA, DXB, DW = 78, 79, 80; VXM = 76
    ONES = 82
    CQ = 96
    CQA = 81
    RSA, RS = 84, 128
    STA = 86
    RLV, RLA = 157, 158
    VN = 92
    sRB, sCT, sKC, sXO, sWO, sSLOT, sCNT, sXM, sTG, sNH = 64, 65, 66, 67, 68, 69, 70, 71, 72, 73
    sTAB = 74
    sM0X = 80; sWO2 = 81; sKC0 = 82; sSIDE = 83; sI1 = 71; sI2 = 34; sSM = 35
    sRL = 84
    P1_MISC = 148 * 1024
    RL_SCR = 68 * 1024
    CQ_SCR = 128 * 1024
    DUMMY = 159 * 1024
    CPF_LINES = 8

    def p1_issue(self, pieces=(0, 1, 2, 3)):
        a = self.a
        if 0 in pieces:
            a(f"s_add_u32 m0, s{self.sM0X}, s{self.sSLOT}")
            a(f"s_add_u32 s{self.sKC}, s{self.sKC}, 1")
            self.dma(self.DXA, SRD_X, f"s{self.sXO}")
        if 1 in pieces:
            a(f"s_add_u32 m0, m0, s{self.sI1}")
            a(f"s_add_u32 s{self.sWO2}, s{self.sWO}, 15360")
            self.dma(self.DW, SRD_WQ, f"s{self.sWO}")
        if 2 in pieces:
            a(f"s_sub_u32 m0, m0, s{self.sI2}")
            a(f"s_add_u32 s{self.sWO}, s{self.sWO}, 245760")
            self.dma(self.DXB, SRD_X, f"s{self.sXO}")
        if 3 in pieces:
            a(f"s_add_u32 m0, m0, s{self.sI1}")
            a(f"s_add_u32 s{self.sXO}, s{self.sXO}, 128")
            self.dma(self.DW, SRD_WQ, f"s{self.sWO2}")
            a(f"s_cmp_eq_u32 s{self.sKC}, 10")
            a(f"s_cselect_b32 s{T0}, 1280, 0")
            a(f"s_cselect_b32 s{T1}, 2457600, 0")
            a(f"s_cselect_b32 s{self.sKC}, 0, s{self.sKC}")
            a(f"s_sub_u32 s{self.sXO}, s{self.sXO}, s{T0}")
            a(f"s_sub_u32 s{self.sWO}, s{self.sWO}, s{T1}")
            a(f"s_add_u32 s{self.sSLOT}, s{self.sSLOT}, 32768")
            a(f"s_and_b32 s{self.sSLOT}, s{self.sSLOT}, s{self.sSM}")

    def p1_setup_a(self):
        a = self.a
        a(f"s_lshr_b32 s{T0}, s{S_C}, 1")
        a(f"s_lshl_b32 s{T0}, s{T0}, 2")
        a(f"s_lshr_b32 s{T1}, s{S_J}, 3")
        a(f"s_add_u32 s{self.sRB}, s{T0}, s{T1}")
        a(f"s_and_b32 s{T0}, s{S_C}, 1")
        a(f"s_lshl_b32 s{T0}, s{T0}, 3")
        a(f"s_and_b32 s{T2}, s{S_J}, 7")
        a(f"s_add_u32 s{self.sCT}, s{T0}, s{T2}")
        a(f"s_lshl_b32 s{T1}, s{T1}, 1")
        a(f"s_add_u32 s{self.sKC}, s{T2}, s{T1}")
        a(f"s_bfe_u32 s{T0}, s{S_C}, 0x10001")
        a(f"s_and_b32 s{T1}, s{S_C}, 4")
        a(f"s_lshl_b32 s{T1}, s{T1}, 1")
        a(f"s_add_u32 s{T0}, s{T0}, s{T1}")
        a(f"s_add_u32 s{self.sKC}, s{self.sKC}, s{T0}")
        a(f"s_mul_i32 s{T0}, s{self.sKC}, 26")
        a(f"s_lshr_b32 s{T0}, s{T0}, 8")
        a(f"s_mul_i32 s{T0}, s{T0}, 10")
        a(f"s_sub_u32 s{self.sKC}, s{self.sKC}, s{T0}")
        a(f"s_mov_b32 s{self.sKC0}, s{self.sKC}")
        a(f"s_mul_i32 s{self.sXO}, s{self.sRB}, 163840")
        a(f"s_lshl_b32 s{T0}, s{self.sKC}, 7")
        a(f"s_add_u32 s{self.sXO}, s{self.sXO}, s{T0}")
        a(f"s_mul_i32 s{self.sWO}, s{self.sKC}, 245760")
        a(f"s_lshl_b32 s{T0}, s{self.sCT}, 8")
        a(f"s_add_u32 s{self.sWO}, s{self.sWO}, s{T0}")
        a(f"s_lshl_b32 s{self.sM0X}, s{S_W}, 11")
        a(f"s_mov_b32 s{self.sSLOT}, 0")
        a(f"s_movk_i32 s{self.sI1}, 16384")
        a(f"s_movk_i32 s{self.sI2}, 15360")
        a(f"s_mov_b32 s{self.sSM}, 0x1ffff")
        a("v_lshrrev_b32 v1, 3, v0")
        a("v_lshrrev_b32 v2, 4, v0")
        a("v_and_b32 v3, 7, v0")
        a("v_xor_b32 v3, v3, v2")
        a(f"s_lshl_b32 s{T0}, s{S_W}, 4")
        a(f"v_add_u32 v4, s{T0}, v1")
        a("v_mul_u32_u24 v4, 1280, v4")
        a(f"v_lshl_add_u32 v{self.DXA}, v3, 4, v4")
        a(f"v_xor_b32 v{self.DXB}, 64, v{self.DXA}")
        a(f"v_add_u32 v{self.DXB}, 10240, v{self.DXB}")
        a("v_lshlrev_b32 v3, 2, v2")
        a("v_and_b32 v4, 15, v0")
        a("v_xor_b32 v3, v3, v4")
        a(f"s_lshl_b32 s{T0}, s{S_W}, 3")
        a(f"v_add_u32 v4, s{T0}, v2")
        a("v_mul_u32_u24 v4, 3840, v4")
        a(f"v_lshl_add_u32 v{self.DW}, v3, 4, v4")
        a("s_waitcnt lgkmcnt(0)")
        self.srd(SRD_X, S_PTR + 0, 2048 * 1280)
        self.srd(SRD_WQ, S_PTR + 2, 640 * 3840)
        a(f"s_cmp_eq_u32 s{self.sCT}, 15")
        a("s_cbranch_scc1 L_p1_noissue")
        self.p1_issue()
        self.p1_issue((0,))
        a.label("L_p1_noissue")
        self.stamp(1)
        self.srd(SRD_WS, S_PTR + 16, WS_SIZE + ((1 << 20) if self.o.get("stamps") else 0))
        self.srd(SRD_OUT, S_PTR + 12, 2048 * 1280)
        self.srd(SRD_DBG, S_PTR + 14, 256)
        if self.o.get("cpf", "1") == "1":
            Lc = a.newlabel("cpf")
            a(f"s_cmp_lg_u32 s{S_W}, 7")
            a(f"s_cbranch_scc1 {Lc}")
            a(f"s_getpc_b64 s[{T4}:{T5}]")
            a.label("L_pc_here")
            a(f"s_mul_i32 s{T0}, s{S_J}, {self.CPF_LINES*128}")
            a(f"s_sub_u32 s{T0}, s{T0}, L_pc_here-{NAME}_kernel")
            a(f"v_min_u32 v3, {self.CPF_LINES-1}, v0")
            a(f"v_lshl_add_u32 v3, v3, 7, s{T0}")
            a("v_ashrrev_i32 v5, 31, v3")
            a(f"v_mov_b32 v6, s{T5}")
            a(f"v_add_co_u32 v4, vcc, s{T4}, v3")
            a("s_nop 1")
            a("v_addc_co_u32 v5, vcc, v5, v6, vcc")
            a("global_load_dword v254, v[4:5], off")
            a.label(Lc)
        a(f"s_or_b32 s{T0}, s{S_G}, s{S_W}")
        a("s_cbranch_scc1 L_nonce_done")
        a("v_mov_b32 v3, 0")
        a(f"v_mov_b32 v4, s{S_NONCE}")
        a(f"v_mov_b32 v5, s{S_NONCE+1}")
        a("s_mov_b64 exec, 1")
        a(f"buffer_store_dwordx2 v[4:5], v3, s[{SRD_DBG}:{SRD_DBG+3}], 0 offen sc1")
        a("s_mov_b64 exec, -1")
        a.label("L_nonce_done")

    def relayout_setup(self):
        a = self.a
        R = self.sRL
        u = a.newlabel("u")
        sID, sKS, sCB, sST, sA, sB, sCc, sD = T0, T1, T2, T3, 93, 94, 95, 96
        sBase, sSl, sKsS = 97, 98, 99
        a(f"s_mul_i32 s{sID}, s{S_G}, 5")
        a(f"s_add_u32 s{sID}, s{sID}, s{S_W}")
        a(f"s_sub_u32 s{sID}, s{sID}, 1")
        a(f"s_min_u32 s{sID}, s{sID}, 1279")
        a(f"s_mov_b32 s{sA}, 16")
        a(f"s_mov_b32 s{sB}, 8")
        a(f"s_mov_b32 s{sCc}, 4")
        a(f"s_mov_b32 s{SRD_RL+3}, 0x20000")
        a(f"s_mov_b32 s{R+8}, -1")
        a(f"s_cmp_lt_u32 s{sID}, 200")
        a(f"s_cbranch_scc1 L_rl_wo{u}")
        a(f"s_cmp_lt_u32 s{sID}, 740")
        a(f"s_cbranch_scc1 L_rl_w1{u}")
        a(f"s_sub_u32 s{sID}, s{sID}, 740")
        a(f"s_mul_i32 s{sKS}, s{sID}, 6554")
        a(f"s_lshr_b32 s{sKS}, s{sKS}, 16")
        a(f"s_mul_i32 s{sCB}, s{sKS}, 10")
        a(f"s_sub_u32 s{sCB}, s{sID}, s{sCB}")
        a(f"s_lshl_b32 s{sD}, s{sKS}, 5")
        a(f"s_mov_b32 s{SRD_RL}, s{S_PTR+10}")
        a(f"s_and_b32 s{SRD_RL+1}, s{S_PTR+11}, 0xffff")
        a(f"s_mov_b32 s{SRD_RL+2}, {1728*1280}")
        a(f"s_mov_b32 s{sBase}, {WS_W2}")
        a(f"s_mov_b32 s{sSl}, {54*5120}")
        a(f"s_add_u32 s{T4}, s{sKS}, 3")
        a(f"s_cmp_ge_u32 s{sKS}, 24")
        a(f"s_cselect_b32 s{T4}, s{T4}, s{sKS}")
        a(f"s_sub_u32 s{T5}, s{sKS}, 24")
        a(f"s_cmp_ge_u32 s{sKS}, 48")
        a(f"s_cselect_b32 s{T4}, s{T5}, s{T4}")
        a(f"s_cmp_ge_u32 s{sKS}, 51")
        a(f"s_cselect_b32 s{sKS}, s{sKS}, s{T4}")
        a(f"s_branch L_rl_n640{u}")
        a.label(f"L_rl_wo{u}")
        a(f"s_mul_i32 s{sKS}, s{sID}, 6554")
        a(f"s_lshr_b32 s{sKS}, s{sKS}, 16")
        a(f"s_mul_i32 s{sCB}, s{sKS}, 10")
        a(f"s_sub_u32 s{sCB}, s{sID}, s{sCB}")
        a(f"s_mul_i32 s{sD}, s{sKS}, 40")
        a(f"s_mul_i32 s{sST}, s{sKS}, 160")
        a(f"s_sub_u32 s{sST}, s{sST}, {160*16-16}")
        a(f"s_cmp_lt_u32 s{sKS}, 16")
        a(f"s_cselect_b32 s{sD}, s{sD}, s{sST}")
        a(f"s_cselect_b32 s{sA}, 8, 20")
        a(f"s_cselect_b32 s{sB}, 20, 0x50")
        a(f"s_cselect_b32 s{sCc}, 4, 40")
        a(f"s_mov_b32 s{SRD_RL}, s{S_PTR+4}")
        a(f"s_and_b32 s{SRD_RL+1}, s{S_PTR+5}, 0xffff")
        a(f"s_mov_b32 s{SRD_RL+2}, {640*1280}")
        a(f"s_mov_b32 s{sBase}, {WS_WO}")
        a(f"s_mov_b32 s{sSl}, {20*5120}")
        a(f"s_add_u32 s{T4}, s{sKS}, 2")
        a(f"s_cmp_ge_u32 s{sKS}, 8")
        a(f"s_cselect_b32 s{T4}, s{T4}, s{sKS}")
        a(f"s_sub_u32 s{T5}, s{sKS}, 8")
        a(f"s_cmp_ge_u32 s{sKS}, 16")
        a(f"s_cselect_b32 s{T4}, s{T5}, s{T4}")
        a(f"s_cmp_ge_u32 s{sKS}, 18")
        a(f"s_cselect_b32 s{sKS}, s{sKS}, s{T4}")
        a.label(f"L_rl_n640{u}")
        a(f"s_mov_b32 s{sST}, 1280")
        a(f"s_mul_i32 s{sKsS}, s{sKS}, 5120")
        a(f"s_add_u32 s{sBase}, s{sBase}, s{sKsS}")
        for t in range(4):
            a(f"s_lshl_b32 s{T4}, s{sCB}, 2")
            a(f"s_add_u32 s{T4}, s{T4}, {t}")
            a(f"s_mul_i32 s{T5}, s{T4}, 52")
            a(f"s_lshr_b32 s{T5}, s{T5}, 8")
            a(f"s_mul_i32 s{R+4+t}, s{T5}, s{sSl}")
            a(f"s_mul_i32 s{T5}, s{T5}, 5")
            a(f"s_sub_u32 s{T4}, s{T4}, s{T5}")
            a(f"s_lshl_b32 s{T4}, s{T4}, 10")
            a(f"s_add_u32 s{R+4+t}, s{R+4+t}, s{T4}")
            a(f"s_add_u32 s{R+4+t}, s{R+4+t}, s{sBase}")
        a(f"s_branch L_rl_common{u}")
        a.label(f"L_rl_w1{u}")
        a(f"s_sub_u32 s{sID}, s{sID}, 200")
        a(f"s_mul_i32 s{sKS}, s{sID}, 2428")
        a(f"s_lshr_b32 s{sKS}, s{sKS}, 16")
        a(f"s_mul_i32 s{sCB}, s{sKS}, 27")
        a(f"s_sub_u32 s{sCB}, s{sID}, s{sCB}")
        a(f"s_lshr_b32 s{T4}, s{sKS}, 1")
        a(f"s_mul_i32 s{T4}, s{T4}, 0x50")
        a(f"s_and_b32 s{T5}, s{sKS}, 1")
        a(f"s_lshl_b32 s{T5}, s{T5}, 5")
        a(f"s_add_u32 s{sD}, s{T4}, s{T5}")
        a(f"s_mul_i32 s{T4}, s{sKS}, 160")
        a(f"s_sub_u32 s{T4}, s{T4}, {160*16-64}")
        a(f"s_cmp_lt_u32 s{sKS}, 16")
        a(f"s_cselect_b32 s{sD}, s{sD}, s{T4}")
        a(f"s_cselect_b32 s{sA}, 16, 0x50")
        a(f"s_mov_b32 s{SRD_RL}, s{S_PTR+8}")
        a(f"s_and_b32 s{SRD_RL+1}, s{S_PTR+9}, 0xffff")
        a(f"s_mov_b32 s{SRD_RL+2}, {640*3456}")
        a(f"s_mov_b32 s{sST}, 3456")
        a(f"s_mul_i32 s{sKsS}, s{sKS}, 7168")
        a(f"s_add_u32 s{sBase}, s{sKsS}, {WS_W1}")
        a(f"s_mul_i32 s{R+8}, s{sKS}, {1728*4}")
        a(f"s_lshl_b32 s{T4}, s{sCB}, 8")
        a(f"s_add_u32 s{R+8}, s{R+8}, s{T4}")
        a(f"s_add_u32 s{R+8}, s{R+8}, {WS_CS1}")
        for t in range(4):
            a(f"s_lshl_b32 s{T4}, s{sCB}, 2")
            a(f"s_add_u32 s{T4}, s{T4}, {t}")
            a(f"s_mul_i32 s{T5}, s{T4}, 43")
            a(f"s_lshr_b32 s{T5}, s{T5}, 8")
            a(f"s_mul_i32 s{sSl}, s{T5}, 6")
            a(f"s_sub_u32 s{sSl}, s{T4}, s{sSl}")
            a(f"s_sub_u32 s{sKsS}, s{T4}, 96")
            a(f"s_cmp_lt_u32 s{T4}, 96")
            a(f"s_cselect_b32 s{T5}, s{T5}, s{sKsS}")
            a(f"s_cselect_b32 s{sSl}, s{sSl}, 6")
            a(f"s_mul_i32 s{R+4+t}, s{T5}, {20*7168}")
            a(f"s_lshl_b32 s{sSl}, s{sSl}, 10")
            a(f"s_add_u32 s{R+4+t}, s{R+4+t}, s{sSl}")
            a(f"s_add_u32 s{R+4+t}, s{R+4+t}, s{sBase}")
        a.label(f"L_rl_common{u}")
        a(f"s_mul_i32 s{sD}, s{sD}, s{sST}")
        a(f"s_lshl_b32 s{T4}, s{sCB}, 7")
        a(f"s_add_u32 s{R}, s{sD}, s{T4}")
        a(f"s_mul_i32 s{sA}, s{sA}, s{sST}")
        a(f"s_mul_i32 s{sB}, s{sB}, s{sST}")
        a(f"s_add_u32 s{R+1}, s{R}, s{sB}")
        a(f"s_add_u32 s{R+2}, s{R}, s{sA}")
        a(f"s_add_u32 s{R+3}, s{R+2}, s{sB}")
        a("v_lshrrev_b32 v1, 5, v0")
        a(f"v_mul_u32_u24 v1, s{sCc}, v1")
        a("v_bfe_u32 v2, v0, 3, 2")
        a("v_add_u32 v1, v1, v2")
        a(f"v_mul_u32_u24 v1, s{sST}, v1")
        a("v_and_b32 v2, 7, v0")
        a(f"v_lshl_add_u32 v{self.RLV}, v2, 4, v1")
        a("v_lshrrev_b32 v1, 2, v0")
        a("v_lshlrev_b32 v1, 7, v1")
        a("v_and_b32 v2, 3, v0")
        a("v_lshl_add_u32 v1, v2, 3, v1")
        a(f"s_lshl_b32 s{T4}, s{S_W}, 12")
        a(f"s_add_u32 s{T4}, s{T4}, {self.RL_SCR-4096}")
        a(f"v_add_u32 v{self.RLA}, s{T4}, v1")

    def relayout_issue(self, drain_older=False):
        a = self.a
        L = a.newlabel("rlsk")
        a(f"s_sub_u32 s{T0}, s{S_W}, 1")
        a(f"s_cmp_ge_u32 s{T0}, {0 if self.o.get('norl') else 5}")
        a(f"s_cbranch_scc1 {L}")
        a(f"s_lshl_b32 s{T0}, s{S_W}, 12")
        a(f"s_add_u32 m0, s{T0}, {self.RL_SCR-4096}")
        for i in range(4):
            if i: a("s_add_u32 m0, m0, 1024")
            a("s_nop 0")
            self.dma(self.RLV, SRD_RL, f"s{self.sRL+i}")
        if drain_older:
            L2 = a.newlabel("rlw")
            a("s_waitcnt vmcnt(4)")
            a(f"s_branch {L2}")
            a.label(L)
            a("s_waitcnt vmcnt(0)")
            a.label(L2)
        else:
            a.label(L)

    def relayout_finish(self, younger=None):
        a = self.a
        L = a.newlabel("rlsk"); F = 168; t = 184
        a(f"s_sub_u32 s{T0}, s{S_W}, 1")
        a(f"s_cmp_ge_u32 s{T0}, 5")
        Lo = a.newlabel("rlo")
        a(f"s_cbranch_scc1 {Lo if younger is not None else L}")
        if younger is not None: a(f"s_waitcnt vmcnt({younger})")
        for q in range(4):
            for rd in range(2):
                a(f"ds_read_b64_tr_b16 v[{F+4*q+2*rd}:{F+4*q+2*rd+1}], v{self.RLA} offset:{rd*2048+q*32}")
        a(f"v_lshlrev_b32 v{t}, 4, v0")
        for q in range(4):
            a(f"s_waitcnt lgkmcnt({6-2*q})")
            a(f"buffer_store_dwordx4 v[{F+4*q}:{F+4*q+3}], v{t}, s[{SRD_WS}:{SRD_WS+3}], s{self.sRL+4+q} offen sc1")
        if younger is not None: a("s_waitcnt vmcnt(4)")
        a(f"s_cmp_eq_u32 s{self.sRL+8}, -1")
        a(f"s_cbranch_scc1 {L}")
        for q in range(4): a(f"v_mov_b32 v{t+2+q}, 0")
        a(f"v_mov_b32 v{t+6}, 0x3f803f80")
        for k in range(4):
            for q in range(4): a(f"v_dot2_f32_bf16 v{t+2+q}, v{F+4*q+k}, v{t+6}, v{t+2+q}")
        a(f"v_lshlrev_b32 v{t+1}, 2, v0")
        a("s_nop 1")
        a(f"v_permlane16_swap_b32 v{t+2}, v{t+3}")
        a(f"v_permlane16_swap_b32 v{t+4}, v{t+5}")
        a("s_nop 0")
        a(f"v_add_f32 v{t+2}, v{t+2}, v{t+3}")
        a(f"v_add_f32 v{t+4}, v{t+4}, v{t+5}")
        a("s_nop 1")
        a(f"v_permlane32_swap_b32 v{t+2}, v{t+4}")
        a("s_nop 0")
        a(f"v_add_f32 v{t+2}, v{t+2}, v{t+4}")
        a(f"buffer_store_dword v{t+2}, v{t+1}, s[{SRD_WS}:{SRD_WS+3}], s{self.sRL+8} offen sc1")
        if younger is not None:
            a(f"s_branch {L}")
            a.label(Lo)
            a("s_waitcnt vmcnt(0)")
        a.label(L)

    def p1_setup_b(self):
        a = self.a
        a(f"s_and_b32 s{self.sTG}, s{S_W}, 3")
        a(f"s_lshr_b32 s{self.sNH}, s{S_W}, 2")
        a(f"s_cmp_ge_u32 s{self.sCT}, 5")
        a(f"s_cselect_b32 s{T0}, 5, 0")
        a(f"s_sub_u32 s{T0}, s{self.sCT}, s{T0}")
        a(f"s_lshl_b32 s{T0}, s{T0}, 1")
        a(f"s_add_u32 s{T0}, s{T0}, s{self.sNH}")
        for idx in range(10):
            a(f"s_cmp_eq_u32 s{T0}, {idx}")
            a(f"s_cbranch_scc1 L_tab{idx}")
        a(f"s_mul_i32 s{T1}, s{self.sNH}, 0x10101010")
        for k in range(4): a(f"s_add_u32 s{self.sTAB+k}, s{T1}, 0x%08x" % (0x03020100 + 0x04040404 * k))
        a(f"s_mov_b32 s{self.sTAB+4}, 0")
        a(f"s_mov_b32 s{self.sTAB+5}, 0")
        a("s_branch L_tabdone")
        for idx in range(10):
            a.label(f"L_tab{idx}")
            for k, d in enumerate(p1_table(idx // 2, idx % 2)): a(f"s_mov_b32 s{self.sTAB+k}, 0x%08x" % d)
            if idx < 9: a("s_branch L_tabdone")
        a.label("L_tabdone")
        a("v_and_b32 v1, 31, v0")
        a(f"s_lshl_b32 s{T0}, s{self.sTG}, 5")
        a(f"v_add_u32 v2, s{T0}, v1")
        a("v_bfe_u32 v3, v2, 1, 3")
        a("v_lshrrev_b32 v4, 5, v0")
        a("v_xor_b32 v3, v3, v4")
        a("v_lshlrev_b32 v3, 4, v3")
        a(f"v_lshl_add_u32 v{self.XA}, v2, 7, v3")
        a(f"s_xor_b32 s{T3}, s{self.sTG}, s{self.sNH}")
        a(f"s_lshl_b32 s{T0}, s{T3}, 5")
        a(f"v_xor_b32 v{self.XA}, s{T0}, v{self.XA}")
        for ks in range(1, 4): a(f"v_xor_b32 v{self.XA+ks}, {ks<<5}, v{self.XA}")
        a("v_bfe_u32 v5, v0, 2, 2")
        a("v_lshl_add_u32 v6, v4, 3, v5")
        a("v_lshlrev_b32 v6, 8, v6")
        a("v_and_b32 v7, 3, v0")
        a("v_lshlrev_b32 v7, 3, v7")
        a("v_and_b32 v8, 16, v0")
        a("v_cmp_ne_u32 vcc, 0, v8")
        for i in range(2):
            a(f"v_mov_b32 v8, s{self.sTAB+2*i}")
            a(f"v_mov_b32 v9, s{self.sTAB+2*i+1}")
            a("v_cndmask_b32 v8, v8, v9, vcc")
            a("v_bfe_u32 v8, v8, v7, 8")
            a("v_lshlrev_b32 v8, 3, v8")
            a("v_lshlrev_b32 v9, 6, v5")
            a("v_xor_b32 v8, v8, v9")
            a(f"v_add_u32 v8, v6, v8")
            a(f"s_lshl_b32 s{T0}, s{T3}, 12")
            a(f"v_add_u32 v{self.WA+4*i}, s{T0}, v8")
            for j in range(1, 4): a(f"v_xor_b32 v{self.WA+4*i+j}, {j<<12}, v{self.WA+4*i}")
        a(f"s_lshl_b32 s{T0}, s{self.sRB}, 2")
        a(f"s_add_u32 s{T0}, s{T0}, s{self.sTG}")
        a(f"s_lshl_b32 s{T1}, s{T0}, 9")
        a(f"s_add_u32 s{T1}, s{T1}, {WS_RS}")
        a(f"v_lshl_add_u32 v{self.RSA}, v1, 4, s{T1}")
        a(f"s_cmp_ge_u32 s{self.sCT}, 10")
        a("s_cbranch_scc1 L_p1_vaddr")
        a(f"s_lshl_b32 s{T0}, s{T0}, 9")
        a(f"s_cmp_ge_u32 s{self.sCT}, 5")
        a(f"s_cselect_b32 s{T1}, {WS_K}, {WS_Q}")
        a(f"s_add_u32 s{T0}, s{T0}, s{T1}")
        a(f"v_lshl_add_u32 v2, v1, 4, s{T0}")
        a("v_lshlrev_b32 v3, 3, v4")
        a("v_add_u32 v5, 16, v3")
        for i in range(2):
            for qq in range(2):
                a(f"v_bfe_u32 v6, s{self.sTAB+4+i}, v{3 if qq == 0 else 5}, 8")
                a(f"v_lshl_add_u32 v{self.STA+2*i+qq}, v6, 15, v2")
        a("s_branch L_p1_addrdone")
        a.label("L_p1_vaddr")
        a(f"s_mul_i32 s{T0}, s{T0}, 1280")
        a(f"s_add_u32 s{T0}, s{T0}, {WS_V}")
        a(f"s_lshl_b32 s{T1}, s{self.sCT}, 7")
        a(f"s_lshl_b32 s{T2}, s{self.sNH}, 6")
        a(f"s_add_u32 s{T1}, s{T1}, s{T2}")
        a(f"s_sub_u32 s{T1}, s{T1}, 1280")
        a(f"v_mov_b32 v{self.STA+2}, 0")
        a(f"v_mov_b32 v{self.STA+3}, 0")
        a("v_mul_u32_u24 v3, 320, v4")
        a(f"v_add_u32 v3, s{T0}, v3")
        a(f"s_mov_b32 s{T2}, 81920")
        for i in range(2):
            a(f"v_add_u32 v5, s{T1}, v1")
            if i: a("v_add_u32 v5, 32, v5")
            a("v_mul_u32_u24 v6, 3277, v5")
            a("v_lshrrev_b32 v6, 16, v6")
            a("v_mul_u32_u24 v7, 20, v6")
            a("v_sub_u32 v5, v5, v7")
            a("v_lshl_add_u32 v5, v5, 4, v3")
            a(f"v_mad_u32_u24 v{self.STA+i}, v6, s{T2}, v5")
        a.label("L_p1_addrdone")
        for r in range(32): a(f"v_mov_b32 v{self.ACC+r}, 0")
        a(f"s_mul_i32 s{T0}, s{self.sCT}, 10240")
        a(f"s_lshl_b32 s{T1}, s{self.sNH}, 9")
        a(f"s_add_u32 s{T0}, s{T0}, s{T1}")
        a(f"s_add_u32 s{T0}, s{T0}, {WS_CQ}")
        a(f"v_lshl_add_u32 v{self.CQA}, v0, 3, s{T0}")
        a(f"s_mov_b32 s{self.sSIDE}, 0x81")
        a(f"v_mov_b32 v{self.VXM}, 0x8000")
        a(f"s_mov_b32 s{self.sCNT}, 0")

    def p1_loop(self, vmode):
        a = self.a
        tag = "v" if vmode else "q"
        a(f"s_cmp_lg_u32 s{self.sNH}, 0")
        a(f"s_cbranch_scc1 L_p1_B{tag}")
        self.p1_loop1(vmode, 0)
        a(f"s_branch L_p1_E{tag}")
        a.label(f"L_p1_B{tag}")
        self.p1_loop1(vmode, 1)
        a.label(f"L_p1_E{tag}")

    def p1_loop1(self, vmode, B):
        a = self.a
        L = a.newlabel("p1loop")
        pos = self.o.get("barB" if B else "barA", "1" if B else "0")
        def reads(ks):
            if self.o.get("nolds"): return
            a(f"ds_read_b128 v[{self.XF+4*ks}:{self.XF+4*ks+3}], v{self.XA+ks}")
            for i in range(2):
                for rd in range(2):
                    d = self.WF + 8 * ks + 4 * i + 2 * rd
                    a(f"ds_read_b64_tr_b16 v[{d}:{d+1}], v{self.WA+4*i+ks} offset:{16384+rd*1024}")
        def xors(ks):
            for r in (self.XA + ks, self.WA + ks, self.WA + 4 + ks): a(f"v_xor_b32 v{r}, v{self.VXM}, v{r}")
            if ks == 3: a(f"v_xor_b32 v{self.VXM}, 0x10000, v{self.VXM}")
        def bar():
            a("s_waitcnt vmcnt(4)")
            if not self.o.get("nobar"): a("s_barrier")
            if self.o.get("its") == "1": self.stamp_dyn(54, self.sCNT)
        def mf(ks, i):
            x = vr(self.XF + 4 * ks, 4); wv = vr(self.WF + 8 * ks + 4 * i, 4); acc = vr(self.ACC + 16 * i, 16)
            if self.o.get("nomfma"): pass
            elif vmode: a(f"v_mfma_f32_32x32x16_bf16 {acc}, {x}, {wv}, {acc}")
            else: a(f"v_mfma_f32_32x32x16_bf16 {acc}, {wv}, {x}, {acc}")
        def comp(ks):
            n = (ks + 2) % 4
            if ks == 2 and pos == "0": bar()
            a("s_waitcnt lgkmcnt(5)")
            mf(ks, 0)
            if ks == 2 and pos == "1": bar()
            if ks == 2 and pos == "2":
                mf(ks, 1); bar(); reads(n)
            else:
                reads(n); mf(ks, 1)
            xors(n)
            self.p1_issue((n,))
            if n == 3:
                Lp = a.newlabel("pre"); Lpb = a.newlabel("preb")
                self._pre = (Lp, Lpb)
                a(f"s_cmp_ge_u32 s{self.sCNT}, 7")
                a(f"s_cbranch_scc1 {Lp}")
                a.label(Lpb)
        a("s_waitcnt vmcnt(7)")
        a("s_barrier")
        self.stamp(3)
        reads(0); reads(1); xors(0); xors(1)
        a("v_mov_b32 v6, 0x3f803f80")
        a("v_mov_b32 v2, 0")
        a("v_mov_b32 v3, 0")
        a(f"s_lshl_b32 s{T0}, s{self.sNH}, 8")
        a(f"s_lshl_b32 s{T1}, s{self.sTG}, 9")
        a(f"s_add_u32 s{T0}, s{T0}, {self.P1_MISC}")
        a(f"s_add_u32 s{T1}, s{T1}, s{T0}")
        a(f"v_lshl_add_u32 v4, v0, 2, s{T1}")
        a(f"v_lshl_add_u32 v95, v0, 2, s{T0}")
        a("s_waitcnt lgkmcnt(5)")
        for k in range(4):
            for i in range(2): a(f"v_dot2_f32_bf16 v{2+i}, v{self.WF+4*i+k}, v6, v{2+i}")
        a("s_nop 2")
        a("v_permlane32_swap_b32 v2, v3")
        a("s_nop 0")
        a("v_add_f32 v2, v2, v3")
        a("ds_write_b32 v4, v2")
        a("s_waitcnt lgkmcnt(0)")
        a.align(6)
        a.label(L)
        comp(0); comp(1); comp(2)
        Lr = a.newlabel("back"); Ls = a.newlabel("side")
        a(f"s_bitcmp1_b32 s{self.sSIDE}, s{self.sCNT}")
        a(f"s_cbranch_scc1 {Ls}")
        a.label(Lr)
        comp(3)
        a(f"s_add_u32 s{self.sCNT}, s{self.sCNT}, 1")
        a(f"s_cmp_lt_u32 s{self.sCNT}, 10")
        a(f"s_cbranch_scc1 {L}")
        Le = a.newlabel("lend"); L8 = a.newlabel("side8")
        a(f"s_branch {Le}")
        a.label(Ls)
        a(f"s_cmp_lg_u32 s{self.sCNT}, 0")
        a(f"s_cbranch_scc1 {L8}")
        self.nonce_get()
        a(f"s_cmp_lg_u32 s{self.sTG}, 0")
        a(f"s_cbranch_scc1 {Lr}")
        for k in range(4): a(f"ds_read_b32 v{2+k}, v95 offset:{512*k}")
        a(f"s_lshl_b32 s{T0}, s{self.sKC0}, 10")
        a("s_waitcnt lgkmcnt(0)")
        a("v_add_f32 v2, v2, v3")
        a("v_add_f32 v4, v4, v5")
        a(f"v_mov_b32 v3, s{S_NONCE}")
        a("v_add_f32 v2, v2, v4")
        a(f"buffer_store_dwordx2 v[2:3], v{self.CQA}, s[{SRD_WS}:{SRD_WS+3}], s{T0} offen sc1")
        a(f"s_branch {Lr}")
        a.label(L8)
        a(f"buffer_load_dwordx4 v[{self.RS}:{self.RS+3}], v{self.RSA}, s[{SRD_WS}:{SRD_WS+3}], 0 offen sc1")
        a(f"s_mov_b32 s{T2}, m0")
        a(f"s_mul_i32 s{T0}, s{self.sCT}, 10240")
        a(f"s_lshl_b32 s{T1}, s{S_W}, 10")
        a(f"s_add_u32 s{T0}, s{T0}, s{T1}")
        a(f"s_add_u32 s{T0}, s{T0}, {WS_CQ}")
        a(f"s_add_u32 m0, s{T1}, {self.CQ_SCR}")
        a("v_lshlrev_b32 v1, 4, v0")
        self.dma(1, SRD_WS, f"s{T0}", "sc1")
        a(f"s_add_u32 s{T0}, s{T0}, 8192")
        a("s_add_u32 m0, m0, 8192")
        a(f"s_cmp_ge_u32 s{S_W}, 2")
        a(f"s_cselect_b32 s{T0}, 0x7f000000, s{T0}")
        self.dma(1, SRD_WS, f"s{T0}", "sc1")
        a(f"s_mov_b32 m0, s{T2}")
        a(f"s_branch {Lr}")
        Lp, Lpb = self._pre
        a.label(Lp)
        a(f"s_mov_b32 s{self.sXO}, 0x7f000000")
        a(f"s_mov_b32 s{self.sWO}, 0x7f000000")
        a(f"s_mov_b32 s{self.sM0X}, {self.DUMMY}")
        a(f"s_mov_b32 s{self.sI1}, 0")
        a(f"s_mov_b32 s{self.sI2}, 0")
        a(f"s_mov_b32 s{self.sSM}, 0")
        a(f"s_mov_b32 s{self.sSLOT}, 0")
        a(f"s_branch {Lpb}")
        a.label(Le)

    def p1_gather(self):
        a = self.a
        a(f"buffer_load_dwordx4 v[{self.RS}:{self.RS+3}], v{self.RSA}, s[{SRD_WS}:{SRD_WS+3}], 0 offen sc1")
        a(f"s_movk_i32 s{T0}, 0x1000")
        a(f"s_movk_i32 s{T1}, 0x2000")
        for k in range(10):
            so = ("0", f"s{T0}", f"s{T1}")[k // 4]
            a(f"buffer_load_dwordx2 v[{self.CQ+2*k}:{self.CQ+2*k+1}], v{self.CQA}, s[{SRD_WS}:{SRD_WS+3}], {so} offen offset:{1024*(k%4)} sc1")

    def p1_epi_common(self):
        a = self.a
        self.stamp(4)
        a(f"s_lshl_b32 s{T2}, s{S_W}, 9")
        a(f"s_add_u32 s{T2}, s{T2}, {self.P1_MISC+4096}")
        a(f"v_lshl_add_u32 v6, v0, 2, s{T2}")
        a("v_and_b32 v5, 31, v0")
        L = a.newlabel("rs"); Ld = a.newlabel("rsd")
        a(f"s_mov_b32 s{S_SPIN}, 0")
        a(f"s_lshl_b32 s{T0}, s{self.sNH}, 9")
        a(f"s_add_u32 s{T0}, s{T0}, {self.CQ_SCR}")
        a(f"v_lshl_add_u32 v1, v0, 3, s{T0}")
        for k in range(10): a(f"ds_read_b64 v[{self.CQ+2*k}:{self.CQ+2*k+1}], v1 offset:{1024*k}")
        a("s_waitcnt lgkmcnt(0)")
        a.label(L)
        a(f"v_xor_b32 v2, s{S_NONCE}, v{self.RS+1}")
        a(f"v_xor_b32 v3, s{S_NONCE}, v{self.RS+3}")
        for k in range(0, 10, 2):
            a(f"v_xor_b32 v4, s{S_NONCE}, v{self.CQ+2*k+1}")
            a(f"v_xor_b32 v7, s{S_NONCE}, v{self.CQ+2*k+3}")
            a("v_or3_b32 v2, v2, v4, v7")
        a("v_or_b32 v2, v2, v3")
        a("v_cmp_ne_u32 vcc, 0, v2")
        a(f"s_add_u32 s{S_SPIN}, s{S_SPIN}, 1")
        a("s_or_b64 vcc, vcc, vcc")
        a(f"s_cbranch_scc0 {Ld}")
        a(f"s_cmp_ge_u32 s{S_SPIN}, {SPIN_MAX}")
        a(f"s_cbranch_scc1 {Ld}")
        self.p1_gather()
        a("s_waitcnt vmcnt(0)")
        a(f"s_branch {L}")
        a.label(Ld)
        Q = self.CQ
        a(f"v_add_f32 v12, v{Q}, v{Q+2}")
        a(f"v_add_f32 v13, v{Q+4}, v{Q+6}")
        a(f"v_add_f32 v14, v{Q+8}, v{Q+10}")
        a(f"v_add_f32 v15, v{Q+12}, v{Q+14}")
        a(f"v_add_f32 v2, v{Q+16}, v{Q+18}")
        a("v_add_f32 v12, v12, v13")
        a("v_add_f32 v14, v14, v15")
        a("v_add_f32 v12, v12, v2")
        a("v_add_f32 v12, v12, v14")

    def rowstats(self):
        a = self.a
        X = 100
        a("v_lshrrev_b32 v1, 3, v0")
        a(f"s_lshl_b32 s{T0}, s{S_W}, 4")
        a(f"s_lshl_b32 s{T1}, s{self.sRB}, 7")
        a(f"s_add_u32 s{T0}, s{T0}, s{T1}")
        a(f"v_add_u32 v1, s{T0}, v1")
        a("v_mul_u32_u24 v2, 1280, v1")
        a("v_and_b32 v3, 7, v0")
        a("v_lshl_add_u32 v2, v3, 4, v2")
        a(f"s_mov_b32 s{T0}, 10240")
        a("v_mov_b32 v3, 0")
        a(f"buffer_load_dwordx2 v[{self.VN}:{self.VN+1}], v3, s[{SRD_DBG}:{SRD_DBG+3}], 0 offen sc1")
        for k in range(10):
            for hh in range(2):
                r = X + 8 * k + 4 * hh
                a(f"buffer_load_dwordx4 v[{r}:{r+3}], v2, s[{SRD_X}:{SRD_X+3}], {'s%d' % T0 if hh else '0'} offen offset:{128*k}")
        for r in range(4, 8): a(f"v_mov_b32 v{r}, 0")
        a("v_mov_b32 v8, 0x3f803f80")
        for k in range(10):
            a(f"s_waitcnt vmcnt({18-2*k})")
            for e in range(4):
                for hh in range(2):
                    r = X + 8 * k + 4 * hh + e
                    a(f"v_dot2_f32_bf16 v{4+hh}, v{r}, v8, v{4+hh}")
                    a(f"v_dot2_f32_bf16 v{6+hh}, v{r}, v{r}, v{6+hh}")
        a("s_nop 2")
        for ctl in ("quad_perm:[1,0,3,2]", "quad_perm:[2,3,0,1]", "row_half_mirror"):
            for r in range(4, 8): a(f"v_add_f32_dpp v{r}, v{r}, v{r} {ctl} row_mask:0xf bank_mask:0xf")
        self.nonce_get()
        a("v_and_b32 v3, 1, v0")
        a("v_cmp_ne_u32 vcc, 0, v3")
        a("v_lshlrev_b32 v3, 3, v3")
        a("v_add_u32 v1, v1, v3")
        a("v_cndmask_b32 v4, v4, v5, vcc")
        a("v_cndmask_b32 v6, v6, v7, vcc")
        a(f"v_mul_f32 v4, 0x%08x, v4" % f2u(1.0 / 640))
        a("v_mul_f32 v5, v4, v4")
        a(f"v_mov_b32 v7, 0x%08x" % f2u(1.0 / 640))
        a("v_fma_f32 v5, v6, v7, -v5")
        a("v_max_f32 v5, 0, v5")
        a(f"v_add_f32 v5, 0x%08x, v5" % f2u(1e-5))
        a("v_rsq_f32 v8, v5")
        a(f"v_mov_b32 v9, s{S_NONCE}")
        a(f"v_mov_b32 v11, s{S_NONCE}")
        a("v_mul_f32 v10, v4, v8")
        a("v_lshlrev_b32 v1, 4, v1")
        a(f"s_mov_b32 s{T0}, {WS_RS}")
        a("s_mov_b32 exec_lo, 0x03030303")
        a("s_mov_b32 exec_hi, 0x03030303")
        a(f"buffer_store_dwordx4 v[8:11], v1, s[{SRD_WS}:{SRD_WS+3}], s{T0} offen sc1")
        a("s_mov_b64 exec, -1")

    def p1_epi_q(self):
        a = self.a
        self.p1_epi_common()
        qs = math.log2(math.e) / math.sqrt(20.0)
        a("ds_write_b32 v6, v12")
        a("v_lshrrev_b32 v1, 5, v0")
        a(f"v_lshl_add_u32 v1, v1, 4, s{T2}")
        C = 48
        for i in range(2):
            for q4 in range(4):
                a(f"ds_read_b128 v[{C+16*i+4*q4}:{C+16*i+4*q4+3}], v1 offset:{i*128+q4*32}")
        a(f"s_cmp_lt_u32 s{self.sCT}, 5")
        a(f"s_cselect_b32 s{T1}, 0x%08x, 1.0" % f2u(qs))
        a(f"v_mul_f32 v2, s{T1}, v{self.RS}")
        a(f"v_mul_f32 v3, s{T1}, v{self.RS+2}")
        for i in range(2):
            for qq in range(2):
                a(f"s_waitcnt lgkmcnt({6-4*i-2*qq})")
                b = 16 * i + 8 * qq
                for r in range(8): a(f"v_mul_f32 v{self.ACC+b+r}, v2, v{self.ACC+b+r}")
                for r in range(8): a(f"v_fma_f32 v{self.ACC+b+r}, -v3, v{C+b+r}, v{self.ACC+b+r}")
                o = 4 + 4 * ((2 * i + qq) % 2)
                for r in range(4): a(f"v_cvt_pk_bf16_f32 v{o+r}, v{self.ACC+b+2*r}, v{self.ACC+b+2*r+1}")
                a(f"buffer_store_dwordx4 v[{o}:{o+3}], v{self.STA+2*i+qq}, s[{SRD_WS}:{SRD_WS+3}], 0 offen sc1")

    def p1_epi_v(self):
        a = self.a
        self.p1_epi_common()
        a("v_mov_b32 v13, v12")
        a(f"v_lshl_add_u32 v6, v5, 2, s{T2}")
        a("v_lshrrev_b32 v1, 5, v0")
        a("v_permlane32_swap_b32 v12, v13")
        a(f"ds_write_b32 v6, v{self.RS}")
        a(f"ds_write_b32 v6, v{self.RS+2} offset:128")
        a(f"v_lshl_add_u32 v6, v1, 4, s{T2}")
        C = 48
        for q4 in range(4):
            a(f"ds_read_b128 v[{C+4*q4}:{C+4*q4+3}], v6 offset:{q4*32}")
            a(f"ds_read_b128 v[{C+16+4*q4}:{C+16+4*q4+3}], v6 offset:{128+q4*32}")
        for grp in range(2):
            a(f"s_waitcnt lgkmcnt({4-4*grp})")
            for i in range(2):
                b = 16 * i + 8 * grp
                for r in range(8): a(f"v_mul_f32 v{self.ACC+b+r}, v{C+8*grp+r}, v{self.ACC+b+r}")
                for r in range(8): a(f"v_fma_f32 v{self.ACC+b+r}, -v{C+16+8*grp+r}, v{12+i}, v{self.ACC+b+r}")
                o = 4 + 4 * i
                for r in range(4): a(f"v_cvt_pk_bf16_f32 v{o+r}, v{self.ACC+b+2*r}, v{self.ACC+b+2*r+1}")
                a(f"buffer_store_dwordx4 v[{o}:{o+3}], v{self.STA+i}, s[{SRD_WS}:{SRD_WS+3}], 0 offen offset:{640*grp} sc1")

    def nonce_get(self):
        a = self.a
        a(f"s_mov_b32 s{S_SPIN}, 0")
        Lc = a.newlabel("nchk"); Lo = a.newlabel("nok")
        a.label(Lc)
        a(f"v_readfirstlane_b32 s{S_NONCE}, v{self.VN}")
        a(f"v_readfirstlane_b32 s{S_NONCE+1}, v{self.VN+1}")
        a(f"s_add_u32 s{S_SPIN}, s{S_SPIN}, 1")
        a(f"s_or_b32 s{T0}, s{S_NONCE}, s{S_NONCE+1}")
        a(f"s_cbranch_scc1 {Lo}")
        a(f"s_cmp_ge_u32 s{S_SPIN}, {SPIN_MAX}")
        a(f"s_cbranch_scc1 {Lo}")
        a("v_mov_b32 v94, 0")
        a(f"buffer_load_dwordx2 v[{self.VN}:{self.VN+1}], v94, s[{SRD_DBG}:{SRD_DBG+3}], 0 offen sc1")
        a("s_waitcnt vmcnt(0)")
        a(f"s_branch {Lc}")
        a.label(Lo)

    def phase1(self):
        a = self.a
        self.p1_setup_a()
        a(f"s_cmp_eq_u32 s{self.sCT}, 15")
        a("s_cbranch_scc0 L_p1_go")
        self.rowstats()
        self.relayout_setup()
        a("s_branch L_p1_done")
        a.label("L_p1_go")
        self.p1_setup_b()
        a("v_mov_b32 v1, 0")
        a(f"buffer_load_dwordx2 v[{self.VN}:{self.VN+1}], v1, s[{SRD_DBG}:{SRD_DBG+3}], 0 offen sc1")
        self.p1_issue((1, 2, 3))
        self.p1_issue((0, 1))
        self.relayout_setup()
        self.stamp(2)
        a(f"s_cmp_ge_u32 s{self.sCT}, 10")
        a("s_cbranch_scc1 L_p1_v")
        self.p1_loop(False)
        self.p1_epi_q()
        a("s_branch L_p1_done")
        a.label("L_p1_v")
        self.p1_loop(True)
        self.p1_epi_v()
        a.label("L_p1_done")
        self.stamp(5)
        a("s_waitcnt vmcnt(0)")
        self.stamp(6)
        a("s_barrier")
        a(f"s_lshl_b32 s{T0}, s{self.sCT}, 4")
        a(f"s_add_u32 s{T0}, s{T0}, s{self.sRB}")
        a(f"s_mul_i32 s{T0}, s{T0}, {FSP}")
        a(f"s_add_u32 s{T0}, s{T0}, {FL_1}")
        self.flag_store(T0, 2)
        self.stamp(7)
        if self.stop < 2:
            self.relayout_issue()
            a("s_waitcnt vmcnt(0)")
            self.relayout_finish()

    def build(self):
        a = self.a
        self.entry()
        self.phase1()
        if self.stop >= 2:
            from phases import phase2, phase3, phase4, phase5
            phase2(self)
            if self.stop >= 3: phase3(self)
            if self.stop >= 4: phase4(self)
            if self.stop >= 5: phase5(self)
        a("s_waitcnt vmcnt(0)")
        if self.o.get("fixend"):
            a.label("L_fixend")
            a("s_memrealtime s[100:101]")
            a("s_waitcnt lgkmcnt(0)")
            a(f"s_sub_u32 s100, s100, s{S_NONCE}")
            a(f"s_cmp_lt_u32 s100, {int(self.o['fixend'])*100}")
            a("s_cbranch_scc1 L_fixend")
        self.stamp(31)
        self.stamp_flush()
        a.label("L_end")
        a("s_endpgm")
        a.lines.append(f".fill {self.pad}, 4, 0xbf810000")
        body = a.text()
        errs = check(body)
        if errs:
            sys.stderr.write("\n".join(errs[:40]) + "\n%d hazards\n" % len(errs))
            raise SystemExit(1)
        head = f"""; Fused preLN -> MHA -> residual -> preLN -> SiLU FFN -> residual, one persistent launch.
; @launch grid=(256,1,1) block=(512,1,1) lds={LDS_BYTES}
.amdgcn_target "amdgcn-amd-amdhsa--gfx950"
.text
.globl {NAME}_kernel
.p2align 8
.type {NAME}_kernel,@function
{NAME}_kernel:
"""
        tail = f""".section .rodata,"a"
.p2align 6
.amdhsa_kernel {NAME}_kernel
  .amdhsa_next_free_vgpr 256
  .amdhsa_next_free_sgpr 102
  .amdhsa_accum_offset 256
  .amdhsa_group_segment_fixed_size 0
  .amdhsa_kernarg_size 72
  .amdhsa_user_sgpr_count 2
  .amdhsa_user_sgpr_kernarg_segment_ptr 1
  .amdhsa_system_sgpr_workgroup_id_x 1
.end_amdhsa_kernel
"""
        return head + body + tail

if __name__ == "__main__":
    stop = int(sys.argv[2]) if len(sys.argv) > 2 else 99
    opts = dict(kv.split("=") for kv in sys.argv[3:])
    import subprocess
    def asm_size(path):
        r = subprocess.run(["clang", "-x", "assembler", "-target", "amdgcn-amd-amdhsa", "-mcpu=gfx950", "-c", path, "-o", "_chk.o"], capture_output=True, text=True)
        if r.returncode: print(r.stderr[:1500]); raise SystemExit(1)
        r = subprocess.run(["llvm-readelf", "-S", "_chk.o"], capture_output=True, text=True)
        return int([l for l in r.stdout.split("\n") if ".text" in l][0].split()[6], 16)
    open(sys.argv[1], "w").write(K(stop, opts).build())
    n = asm_size(sys.argv[1])
    k = K(stop, opts)
    k.CPF_LINES = (n + 4095) // 4096
    k.pad = (k.CPF_LINES * 4096 - n) // 4 + 16
    open(sys.argv[1], "w").write(k.build())
    print(sys.argv[1], "code bytes:", n, "with pad:", asm_size(sys.argv[1]))
```

```python
import math
from asmlib import vr, sr, f2u
from tables import *
from gen import *

Qm, Qr, NEG, S0, S1, P, O, Km, Kr, V = 4, 8, 12, 28, 60, 92, 108, 124, 132, 136
AK, AKR, AV, DKM, DLIN = 152, 153, 154, 197, 196
XR = 198
CSV = 60
PL = 184
SLOT = 22528
WO_LDS = 3 * SLOT
sH, sQB, sST, sK0, sK1, sK2, sS1, sDS, sKD, sVM, sRET, sWOo, sWOl = 64, 65, 66, 67, 68, 69, 70, 71, 72, 74, 76, 78, 79
sW10, sB2, sM2, sL2, sSD = 73, 82, 83, 93, 94
sTA, sTB, sTC, sSM = 95, 96, 97, 98
WS = f"s[{SRD_WS}:{SRD_WS+3}]"
M32 = "v_mfma_f32_32x32x16_bf16"
M2B = "v_mfma_f32_32x32x4_2b_bf16"
M16 = "v_mfma_f32_16x16x32_bf16"

def kv_piece(k, i):
    a = k.a
    if i == 0:
        a(f"s_add_u32 m0, s{sW10}, s{sDS}")
        a(f"s_and_b32 s{sB2}, s{sDS}, s{sM2}")
        k.dma(DKM, SRD_WS, f"s{sK0}", "sc1")
        a(f"s_add_u32 s{sK0}, s{sK0}, 4096")
    elif i == 1:
        a(f"s_add_u32 m0, s{sW10}, s{sDS}")
        a("s_add_u32 m0, m0, 8192")
        a(f"s_add_u32 s{sDS}, s{sDS}, {SLOT}")
        k.dma(DLIN, SRD_WS, f"s{sK1}", "sc1")
        a(f"s_add_u32 s{sK1}, s{sK1}, s{sS1}")
        a(f"s_cmp_eq_u32 s{sDS}, {3*SLOT}")
        a(f"s_cselect_b32 s{sDS}, 0, s{sDS}")
    else:
        a(f"s_add_u32 m0, s{sB2}, s{sL2}")
        a("s_nop 0")
        k.dma(DLIN, SRD_WS, f"s{sK2}", "sc1")
        a(f"s_add_u32 s{sK2}, s{sK2}, 10240")

def wo_piece(k):
    a = k.a
    a(f"s_min_u32 m0, s{sWOl}, {k.DUMMY}")
    a(f"s_add_u32 s{T0}, s{sWOo}, 5120")
    a(f"s_cmp_ge_u32 s{sWOl}, {WO_LDS + 45*1024}")
    a(f"s_cselect_b32 s{T0}, s{T0}, s{sWOo}")
    a(f"s_cmp_ge_u32 s{sWOl}, {WO_LDS + 90*1024}")
    a(f"s_cselect_b32 s{T0}, 0x7f000000, s{T0}")
    k.dma(DLIN, SRD_WS, f"s{T0}", "sc1")
    a(f"s_add_u32 s{sWOl}, s{sWOl}, 8192")
    a(f"s_add_u32 s{sWOo}, s{sWOo}, 8192")

def touch_piece(k):
    a = k.a
    a(f"s_sub_u32 s{sTC}, s{sTC}, 1")
    a(f"buffer_load_dword v{PL+8}, v{DLIN}, {WS}, s{sTA} offen sc1")
    a(f"s_add_u32 s{sTA}, s{sTA}, 1024")
    a(f"s_cmp_eq_u32 s{sTC}, 0")
    a(f"s_cselect_b32 s{sTA}, s{sTB}, s{sTA}")

def qkm(a, t, d, c): a(f"{M32} {vr(d+16*t,16)}, {vr(Km+4*t,4)}, {vr(Qm,4)}, {c}")
def qkr(a, d): a(f"{M2B} {vr(d,32)}, {vr(Kr,2)}, {vr(Qr,2)}, {vr(d,32)}")
def pv(a, j): a(f"{M32} {vr(O,16)}, {vr(V+4*j,4)}, {vr(P+4*j,4)}, {vr(O,16)}")

def att_stage(k, young):
    a = k.a
    o = k.o
    barit, barpos = [int(x) for x in o.get("abarY" if young else "abarO", "0.9" if young else "1.4").split(".")]
    plo = int(o.get("plo", 9))
    def exps(b, n0, n):
        for i in range(n0, n0 + n): a(f"v_exp_f32 v{b+i}, v{b+i}")
    def cvts(b, n0, n):
        for i in range(n0, n0 + n): a(f"v_cvt_pk_bf16_f32 v{P+i}, v{b+2*i}, v{b+2*i+1}")
    def rdV(js, it):
        a(f"s_mov_b64 exec, s[{sVM}:{sVM+1}]")
        for j in js: a(f"ds_read_b128 {vr(V+4*j,4)}, v{AV} offset:{12288+(4*it+j)*640}")
        a("s_mov_b64 exec, -1")
    for it in range(4):
        cur, nx = (S0, S1) if it % 2 == 0 else (S1, S0)
        i2 = (it + 2) % 4
        npos = [0]
        def mark():
            g = it * 11 + npos[0] - (barit * 11 + barpos)
            if g == 0:
                a("s_waitcnt vmcnt(0)")
                if not o.get("anobar"): a("s_barrier")
                if o.get("its") == "2": k.stamp_dyn(54, sST)
            if not o.get("anoside"):
                d0 = int(o.get("dY" if young else "dO", 5 if young else 1)); dd = int(o.get("dd", 4))
                if g == d0 - 1:
                    Lb = a.newlabel("sb")
                    a(f"s_bitcmp1_b32 s{sSM}, s{sST}")
                    a(f"s_cbranch_scc0 {Lb}")
                    a(f"s_call_b64 s[{sRET}:{sRET+1}], L_att_side")
                    a.label(Lb)
                if not o.get("notouch") and (g - d0 - 2) % 44 in (0, 8, 16, 24): touch_piece(k)
                for i in range(3):
                    if g == d0 + i * dd: kv_piece(k, i)
                    if g == d0 + (3 + i) * dd: wo_piece(k)
            per = int(o.get("pper", 1))
            if young and it % per == 0 and npos[0] == 0: a("s_setprio 1")
            if young and it % per == per - 1 and npos[0] == plo: a("s_setprio 0")
            npos[0] += 1
        if it == 2:
            a(f"v_add_u32 v{AK}, s{sKD}, v{AK}")
            a(f"v_add_u32 v{AKR}, s{sKD}, v{AKR}")
        mark()
        a("s_waitcnt lgkmcnt(3)")
        qkm(a, 0, nx, vr(NEG, 16)); exps(cur, 0, 4); mark()
        pv(a, 3); exps(cur, 4, 4); rdV([3], it); mark()
        qkm(a, 1, nx, vr(NEG, 16))
        a(f"ds_read_b128 {vr(Km,4)}, v{AK} offset:{2048*i2}")
        cvts(cur, 0, 4); mark()
        exps(cur, 8, 4)
        a(f"ds_read_b128 {vr(Km+4,4)}, v{AK} offset:{2048*i2+1024}")
        mark()
        a("s_waitcnt lgkmcnt(5)")
        pv(a, 0); exps(cur, 12, 4); cvts(cur, 4, 2); mark()
        qkr(a, nx); cvts(cur, 6, 2)
        a(f"ds_read_b64 {vr(Kr,2)}, v{AKR} offset:{8192+1024*i2}")
        exps(cur, 16, 4); mark()
        exps(cur, 20, 4); cvts(cur, 8, 2); mark()
        a("s_waitcnt lgkmcnt(5)")
        pv(a, 1); cvts(cur, 10, 2); exps(cur, 24, 2); mark()
        exps(cur, 26, 3); mark()
        a("s_waitcnt lgkmcnt(4)")
        pv(a, 2); exps(cur, 29, 3); mark()
        cvts(cur, 12, 4)
        if it == 3:
            a(f"v_add_u32 v{AV}, s{sKD}, v{AV}")
            a(f"s_add_u32 s{sST}, s{sST}, 1")
            a(f"s_mul_i32 s{T0}, s{sST}, 0x56")
            a(f"s_lshr_b32 s{T0}, s{T0}, 8")
            a(f"s_mul_i32 s{T0}, s{T0}, 3")
            a(f"s_sub_u32 s{T0}, s{sST}, s{T0}")
            a(f"s_mov_b32 s{sKD}, {SLOT}")
            a(f"s_cmp_eq_u32 s{T0}, 2")
            a(f"s_cselect_b32 s{sKD}, {-2*SLOT & 0xffffffff}, s{sKD}")
        rdV([0, 1, 2], (it + 1) % 4)

def att_side(k):
    a = k.a
    a.label("L_att_side")
    a(f"s_cmp_ge_u32 s{sST}, 4")
    a("s_cbranch_scc1 L_as_hi")
    for st in range(3):
        a(f"s_cmp_eq_u32 s{sST}, {st}")
        a(f"s_cbranch_scc1 L_as_{st}")
    a(f"s_mov_b32 s{T0}, {FL_R}")
    a(f"buffer_load_dwordx4 v[{PL}:{PL+3}], v{DLIN}, {WS}, s{T0} offen sc1")
    a(f"buffer_load_dwordx4 v[{PL+4}:{PL+7}], v{DLIN}, {WS}, s{T0} offen offset:1024 sc1")
    a(f"s_setpc_b64 s[{sRET}:{sRET+1}]")
    a.label("L_as_0")
    k.relayout_issue()
    a(f"s_setpc_b64 s[{sRET}:{sRET+1}]")
    a.label("L_as_1")
    k.relayout_finish()
    a("s_nop 1")
    a(f"s_setpc_b64 s[{sRET}:{sRET+1}]")
    a.label("L_as_2")
    a(f"s_lshl_b32 s{T0}, s{S_G}, 3")
    a(f"s_add_u32 s{T0}, s{T0}, {FL_R}")
    k.flag_store(T0, PL)
    a(f"s_setpc_b64 s[{sRET}:{sRET+1}]")
    a.label("L_as_hi")
    a(f"s_cmp_lg_u32 s{sST}, 4")
    a("s_cbranch_scc1 L_as_ret")
    N = f"s[{S_NONCE}:{S_NONCE+1}]"
    a(f"v_cmp_ne_u64 vcc, {N}, v[{PL}:{PL+1}]")
    a(f"v_cmp_ne_u64 s[{S_M1}:{S_M1+1}], {N}, v[{PL+2}:{PL+3}]")
    a(f"s_and_b32 s{T1}, s{S_J}, 7")
    a(f"s_or_b64 s[{T4}:{T5}], vcc, s[{S_M1}:{S_M1+1}]")
    a(f"v_cmp_ne_u64 vcc, {N}, v[{PL+4}:{PL+5}]")
    a(f"v_cmp_ne_u64 s[{S_M1}:{S_M1+1}], {N}, v[{PL+6}:{PL+7}]")
    a(f"s_mul_i32 s{sSD}, s{T1}, {20*5120}")
    a(f"s_add_u32 s{sSD}, s{sSD}, {WS_WO}")
    a(f"s_add_u32 s{sWOo}, s{sSD}, s{sW10}")
    a(f"s_add_u32 s{sWOl}, s{sW10}, {WO_LDS}")
    a(f"s_lshl_b32 s{T2}, s{S_J}, 3")
    a(f"s_add_u32 s{T2}, s{T2}, s{S_W}")
    a(f"s_mul_i32 s{sTA}, s{T2}, 8960")
    a(f"s_add_u32 s{sTA}, s{sTA}, {WS_W1}")
    a(f"s_lshr_b32 s{sTB}, s{T2}, 4")
    a(f"s_mul_i32 s{sTB}, s{sTB}, {27*5120}")
    a(f"s_and_b32 s{T2}, s{T2}, 15")
    a(f"s_mul_i32 s{T2}, s{T2}, 4800")
    a(f"s_add_u32 s{sTB}, s{sTB}, s{T2}")
    a(f"s_add_u32 s{sTB}, s{sTB}, {WS_W2}")
    a(f"s_mov_b32 s{sTC}, 9")
    a(f"s_or_b64 s[{T4}:{T5}], s[{T4}:{T5}], vcc")
    a(f"s_or_b64 s[{T4}:{T5}], s[{T4}:{T5}], s[{S_M1}:{S_M1+1}]")
    a("s_cbranch_scc0 L_as_ret")
    a(f"s_mov_b32 s{T3}, {FL_R}")
    k.poll(256, T3, 8, PL, only_wave0=False)
    a.label("L_as_ret")
    a(f"s_cmp_eq_u32 s{sST}, 6")
    a("s_cbranch_scc0 L_as_ret2")
    for r in (sK0, sK1, sK2): a(f"s_mov_b32 s{r}, 0x7f000000")
    a.label("L_as_ret2")
    a(f"s_setpc_b64 s[{sRET}:{sRET+1}]")

def resid_x(k):
    a = k.a
    a(f"s_lshr_b32 s{T0}, s{S_J}, 3")
    a(f"s_lshl_b32 s{T1}, s{S_C}, 2")
    a(f"s_add_u32 s{T0}, s{T0}, s{T1}")
    a(f"s_lshl_b32 s{T0}, s{T0}, 2")
    a(f"s_and_b32 s{T1}, s{S_W}, 3")
    a(f"s_add_u32 s{T0}, s{T0}, s{T1}")
    a(f"s_mul_i32 s{T0}, s{T0}, {16*1280}")
    a(f"s_and_b32 s{T1}, s{S_J}, 7")
    a(f"s_mul_i32 s{T1}, s{T1}, 160")
    a(f"s_add_u32 s{T0}, s{T0}, s{T1}")
    a(f"s_lshr_b32 s{T1}, s{S_W}, 2")
    a(f"s_lshl_b32 s{T1}, s{T1}, 6")
    a(f"s_add_u32 s{T1}, s{T1}, s{T0}")
    a(f"v_lshrrev_b32 v{PL}, 2, v0")
    a(f"v_mul_u32_u24 v{PL}, 1280, v{PL}")
    a(f"v_and_b32 v{PL+1}, 3, v0")
    a(f"v_lshl_add_u32 v{PL}, v{PL+1}, 3, v{PL}")
    a(f"buffer_load_dwordx2 v[{XR}:{XR+1}], v{PL}, s[{SRD_X}:{SRD_X+3}], s{T1} offen")
    a(f"buffer_load_dwordx2 v[{XR+2}:{XR+3}], v{PL}, s[{SRD_X}:{SRD_X+3}], s{T1} offen offset:32")
    a(f"buffer_load_dwordx2 v[{XR+4}:{XR+5}], v{PL}, s[{SRD_X}:{SRD_X+3}], s{T0} offen offset:128")

def rowmax(a, b, n, dst, t):
    a(f"v_max3_f32 v{dst}, v{b}, v{b+1}, v{dst}")
    for i in range(2, n, 2): a(f"v_max3_f32 v{dst}, v{b+i}, v{b+i+1}, v{dst}")

def set_neg(a, m, t):
    a(f"v_mov_b32 v{t}, v{m}")
    a("s_nop 1")
    a(f"v_permlane32_swap_b32 v{m}, v{t}")
    a("s_nop 0")
    a(f"v_max_f32 v{m}, v{m}, v{t}")
    for r in range(16): a(f"v_sub_f32 v{NEG+r}, 0, v{m}")

def att_fallback(k):
    a = k.a
    a.label("L_att_fb")
    sI, sA, sB, sC = T0, T1, T2, T3
    def init():
        a(f"s_lshl_b32 s{sA}, s{sH}, 16")
        a(f"s_add_u32 s{sA}, s{sA}, {WS_K}")
        a(f"s_lshr_b32 s{sB}, s{sH}, 1")
        a(f"s_lshl_b32 s{sB}, s{sB}, 15")
        a(f"s_add_u32 s{sB}, s{sB}, {WS_K + 64*32768}")
        a(f"s_mul_i32 s{sC}, s{sH}, 81920")
        a(f"s_add_u32 s{sC}, s{sC}, {WS_V}")
        a(f"s_mov_b32 s{sI}, 0")
    def ldk():
        a(f"buffer_load_dwordx4 {vr(Km,4)}, v{DKM}, {WS}, s{sA} offen sc1")
        a(f"buffer_load_dwordx4 {vr(Km+4,4)}, v{DKM}, {WS}, s{sA} offen offset:512 sc1")
        a(f"buffer_load_dwordx2 {vr(Kr,2)}, v{PL+1}, {WS}, s{sB} offen sc1")
    def step():
        a(f"s_add_u32 s{sA}, s{sA}, 1024")
        a(f"s_add_u32 s{sB}, s{sB}, 1024")
        a(f"s_add_u32 s{sC}, s{sC}, 2560")
        a(f"s_add_u32 s{sI}, s{sI}, 1")
        a(f"s_cmp_lt_u32 s{sI}, 32")
    a(f"s_and_b32 s{T0}, s{sH}, 1")
    a(f"s_lshl_b32 s{T0}, s{T0}, 3")
    a(f"v_add_u32 v{PL+1}, s{T0}, v{DLIN}")
    a(f"v_lshrrev_b32 v{PL+2}, 5, v0")
    a(f"v_mul_u32_u24 v{PL+2}, 20, v{PL+2}")
    a(f"v_and_b32 v{PL+3}, 31, v0")
    a(f"v_add_lshl_u32 v{PL+2}, v{PL+2}, v{PL+3}, 4")
    a(f"v_mov_b32 v{PL}, 0xff800000")
    init()
    a.label("L_fb_max")
    ldk()
    a("s_waitcnt vmcnt(0)")
    qkm(a, 0, S0, "0"); qkm(a, 1, S0, "0")
    a("s_nop 9")
    qkr(a, S0)
    a("s_nop 15"); a("s_nop 3")
    rowmax(a, S0, 32, PL, PL + 4)
    step()
    a("s_cbranch_scc1 L_fb_max")
    set_neg(a, PL, PL + 4)
    for r in range(16): a(f"v_mov_b32 v{O+r}, 0")
    init()
    a.label("L_fb_acc")
    ldk()
    a(f"s_mov_b64 exec, s[{sVM}:{sVM+1}]")
    for j in range(4): a(f"buffer_load_dwordx4 {vr(V+4*j,4)}, v{PL+2}, {WS}, s{sC} offen offset:{640*j} sc1")
    a("s_mov_b64 exec, -1")
    a("s_waitcnt vmcnt(0)")
    qkm(a, 0, S0, vr(NEG, 16)); qkm(a, 1, S0, vr(NEG, 16))
    a("s_nop 9")
    qkr(a, S0)
    a("s_nop 15"); a("s_nop 3")
    for i in range(32): a(f"v_exp_f32 v{S0+i}, v{S0+i}")
    a("s_nop 0")
    for i in range(16): a(f"v_cvt_pk_bf16_f32 v{P+i}, v{S0+2*i}, v{S0+2*i+1}")
    a("s_nop 1")
    for j in range(4): pv(a, j)
    step()
    a("s_cbranch_scc1 L_fb_acc")
    a("s_nop 11")
    a("s_branch L_att_norm")

def phase2(k):
    a = k.a
    a.c("================ phase 2: attention")
    a(f"s_lshl_b32 s{sH}, s{S_C}, 2")
    a(f"s_lshr_b32 s{T0}, s{S_J}, 3")
    a(f"s_add_u32 s{sH}, s{sH}, s{T0}")
    a(f"s_and_b32 s{sQB}, s{S_J}, 7")
    a(f"v_lshlrev_b32 v{DLIN}, 4, v0")
    a("v_lshrrev_b32 v1, 5, v0")
    a("v_and_b32 v2, 31, v0")
    a("v_lshlrev_b32 v3, 15, v1")
    a(f"v_lshl_add_u32 v{DKM}, v2, 4, v3")
    a(f"v_mov_b32 v{AK}, v{DLIN}")
    a(f"s_and_b32 s{T0}, s{sH}, 1")
    a(f"s_lshl_b32 s{T0}, s{T0}, 3")
    a(f"v_add_u32 v{AKR}, s{T0}, v{DLIN}")
    a("v_mul_u32_u24 v3, 20, v1")
    a(f"v_add_lshl_u32 v{AV}, v3, v2, 4")
    a(f"v_lshl_add_u32 v10, v2, 4, s{T0}")
    a(f"s_mov_b32 s{sVM}, 0x000fffff")
    a(f"s_mov_b32 s{sVM+1}, 0x000fffff")
    a(f"s_lshl_b32 s{sK0}, s{sH}, 16")
    a(f"s_lshl_b32 s{T0}, s{S_W}, 9")
    a(f"s_add_u32 s{sK0}, s{sK0}, s{T0}")
    a(f"s_add_u32 s{sK0}, s{sK0}, {WS_K}")
    a(f"s_lshl_b32 s{T0}, s{S_W}, 10")
    a(f"s_mul_i32 s{sK2}, s{sH}, 81920")
    a(f"s_add_u32 s{sK2}, s{sK2}, s{T0}")
    a(f"s_add_u32 s{T1}, s{sK2}, {WS_V - 4096}")
    a(f"s_add_u32 s{sK2}, s{sK2}, {WS_V + 4096}")
    a(f"s_lshr_b32 s{T2}, s{sH}, 1")
    a(f"s_lshl_b32 s{T2}, s{T2}, 15")
    a(f"s_add_u32 s{sK1}, s{T2}, s{T0}")
    a(f"s_add_u32 s{sK1}, s{sK1}, {WS_K + 64*32768}")
    a(f"s_mov_b32 s{sS1}, 10240")
    a(f"s_cmp_lt_u32 s{S_W}, 4")
    a(f"s_cselect_b32 s{sK1}, s{sK1}, s{T1}")
    a(f"s_cselect_b32 s{sS1}, 4096, s{sS1}")
    a(f"s_mov_b32 s{sDS}, 0")
    a(f"s_mov_b32 s{sST}, 0")
    a(f"s_mov_b32 s{sKD}, {SLOT}")
    a(f"s_mov_b32 s{sW10}, s{T0}")
    a(f"s_mov_b32 s{sWOo}, 0")
    a(f"s_mov_b32 s{sSD}, 0")
    a(f"s_mov_b32 s{sSM}, 0x5f")
    a(f"s_mov_b32 s{sTA}, 0x7f000000")
    a(f"s_mov_b32 s{sTB}, 0x7f000000")
    a(f"s_mov_b32 s{sTC}, 0x100")
    a(f"s_mov_b32 s{sWOl}, 0x40000000")
    a(f"s_add_u32 s{sL2}, s{T0}, 16384")
    a(f"s_cmp_lt_u32 s{S_W}, 6")
    a(f"s_cselect_b32 s{sM2}, -1, 0")
    a(f"s_cselect_b32 s{sL2}, s{sL2}, {k.DUMMY}")
    a(f"s_cselect_b32 s{sK2}, s{sK2}, 0x7f000000")
    a(f"s_lshl_b32 s{T0}, s{sQB}, 3")
    a(f"s_add_u32 s{T0}, s{T0}, s{S_W}")
    a(f"s_lshl_b32 s{T0}, s{T0}, 9")
    a(f"s_add_u32 s{T2}, s{T2}, s{T0}")
    a(f"s_add_u32 s80, s{T2}, {WS_Q + 64*32768}")
    a(f"s_lshl_b32 s{T3}, s{sH}, 16")
    a(f"s_add_u32 s{T3}, s{T3}, s{T0}")
    a(f"s_add_u32 s81, s{T3}, {WS_Q}")
    a("v_cmp_eq_u32 vcc, 20, v2")
    a("v_mov_b32 v3, 0x3f803f80")
    a("s_nop 0")
    a("v_cndmask_b32 v3, 0, v3, vcc")
    for r in range(16): a(f"v_mov_b32 v{V+r}, v3")
    for r in range(16): a(f"v_mov_b32 v{O+r}, 0")
    for r in range(12, 16): a(f"v_mov_b32 v{P+r}, 0")
    a(f"s_mul_i32 s{T0}, s{sH}, 20")
    a(f"s_add_u32 s{T1}, s{T0}, 19")
    a(f"s_lshr_b32 s{T0}, s{T0}, 7")
    a(f"s_lshr_b32 s{T1}, s{T1}, 7")
    a(f"s_sub_u32 s{T1}, s{T1}, s{T0}")
    a(f"s_lshl_b32 s{T1}, s{T1}, 4")
    a(f"v_and_b32 v{PL+4}, s{T1}, v0")
    a(f"v_and_b32 v{PL+5}, 15, v0")
    a(f"v_add_u32 v{PL+5}, v{PL+5}, v{PL+4}")
    a(f"v_mul_u32_u24 v{PL+6}, 0x50, v1")
    a(f"v_add3_u32 v{PL+5}, v{PL+5}, v{PL+6}, 64")
    a(f"v_add_u32 v{PL+5}, 16, v{PL+5}")
    a(f"v_lshlrev_b32 v{PL+5}, 7, v{PL+5}")
    a(f"s_lshl_b32 s{T2}, s{sQB}, 1")
    a(f"v_and_b32 v{PL+6}, 1, v0")
    a(f"v_add3_u32 v{PL+4}, v{PL+4}, v{PL+6}, s{T2}")
    a(f"v_lshlrev_b32 v{PL+4}, 7, v{PL+4}")
    a(f"s_lshl_b32 s{T0}, s{T0}, 11")
    a(f"s_add_u32 s{T3}, s{T0}, {FL_1}")
    k.poll2(PL + 5, PL + 4, T3, PL)
    a("s_barrier")
    k.stamp(8)
    a(f"buffer_load_dwordx4 {vr(Qm,4)}, v{DKM}, {WS}, s81 offen sc1")
    a(f"buffer_load_dwordx2 {vr(Qr,2)}, v10, {WS}, s80 offen sc1")
    for i in range(3): kv_piece(k, i)
    a("s_waitcnt vmcnt(0)")
    for i in range(3): kv_piece(k, i)
    a("s_barrier")
    k.stamp(9)
    def rdk(i):
        a(f"ds_read_b128 {vr(Km,4)}, v{AK} offset:{2048*i}")
        a(f"ds_read_b128 {vr(Km+4,4)}, v{AK} offset:{2048*i+1024}")
        a(f"ds_read_b64 {vr(Kr,2)}, v{AKR} offset:{8192+1024*i}")
    rdk(0)
    a(f"v_mov_b32 v{PL}, 0xff800000")
    a("s_waitcnt lgkmcnt(0)")
    qkm(a, 0, S1, "0"); qkm(a, 1, S1, "0")
    a("s_nop 9")
    qkr(a, S1)
    a("s_nop 15"); a("s_nop 3")
    rowmax(a, S1, 32, PL, PL + 4)
    set_neg(a, PL, PL + 4)
    a("s_nop 1")
    qkm(a, 0, S0, vr(NEG, 16)); qkm(a, 1, S0, vr(NEG, 16))
    a("s_nop 9")
    qkr(a, S0)
    rdk(1)
    a(f"s_mov_b64 exec, s[{sVM}:{sVM+1}]")
    for j in range(3): a(f"ds_read_b128 {vr(V+4*j,4)}, v{AV} offset:{12288+j*640}")
    a("s_mov_b64 exec, -1")
    a("s_nop 10")
    a(f"s_cmp_ge_u32 s{S_W}, 4")
    a("s_cbranch_scc1 L_att_young")
    for young in (0, 1):
        L = "L_att_young" if young else "L_att_old"
        a.align(6)
        a.label(L)
        att_stage(k, young)
        a(f"s_cmp_lt_u32 s{sST}, 8")
        a(f"s_cbranch_scc1 {L}")
        if not young: a("s_branch L_att_done")
    a("s_setprio 0")
    a.label("L_att_done")
    a("s_waitcnt lgkmcnt(3)")
    pv(a, 3)
    k.stamp(10)
    a(f"s_lshl_b32 s{T0}, s{sQB}, 4")
    a(f"s_lshl_b32 s{T1}, s{S_W}, 1")
    a(f"s_add_u32 s{T0}, s{T0}, s{T1}")
    a(f"s_mul_i32 s{T0}, s{T0}, 20480")
    a(f"s_add_u32 s{T0}, s{T0}, {WS_O}")
    a(f"s_lshl_b32 s{T1}, s{sH}, 9")
    a(f"s_add_u32 s80, s{T0}, s{T1}")
    a(f"s_lshr_b32 s{T1}, s{sH}, 4")
    a(f"s_lshl_b32 s{T2}, s{T1}, 11")
    a(f"s_add_u32 s80, s80, s{T2}")
    a(f"s_lshl_b32 s{T1}, s{T1}, 13")
    a(f"s_add_u32 s{T0}, s{T0}, s{T1}")
    a(f"s_lshr_b32 s{T1}, s{sH}, 3")
    a(f"s_lshl_b32 s{T1}, s{T1}, 10")
    a(f"s_add_u32 s{T0}, s{T0}, s{T1}")
    a(f"s_bfe_u32 s{T1}, s{sH}, 0x20001")
    a(f"s_lshl_b32 s{T1}, s{T1}, 7")
    a(f"s_add_u32 s{T0}, s{T0}, s{T1}")
    a(f"s_and_b32 s{T1}, s{sH}, 1")
    a(f"s_lshl_b32 s{T1}, s{T1}, 9")
    a(f"s_add_u32 s{T0}, s{T0}, s{T1}")
    a(f"s_add_u32 s81, s{T0}, 8192")
    a("s_waitcnt lgkmcnt(0)")
    a(f"v_add_f32 v1, abs(v{O}), abs(v{O+1})")
    a(f"v_add_f32 v3, abs(v{O+2}), abs(v{O+3})")
    for r in range(4, 12, 2):
        a(f"v_add_f32 v1, abs(v{O+r}), v1")
        a(f"v_add_f32 v3, abs(v{O+r+1}), v3")
    a(f"v_mov_b32 v2, 0x{f2u(2.0**40):08x}")
    a("v_add_f32 v1, v1, v3")
    a("v_mov_b32 v3, 0x203")
    a(f"v_cmp_nle_f32 vcc, v{O+8}, v2")
    a(f"v_cmp_class_f32 s[{S_M1}:{S_M1+1}], v1, v3")
    a("s_and_b32 vcc_lo, vcc_lo, 0")
    a(f"s_or_b64 vcc, vcc, s[{S_M1}:{S_M1+1}]")
    a("s_cbranch_scc1 L_att_fb")
    a.label("L_att_norm")
    a(f"v_mov_b32 v1, v{O+8}")
    a(f"v_mov_b32 v2, v{O+8}")
    a("v_bfe_u32 v3, v0, 4, 1")
    a("v_mul_u32_u24 v3, 20480, v3")
    a("v_permlane32_swap_b32 v1, v2")
    a("s_nop 0")
    a("v_rcp_f32 v2, v2")
    a("v_and_b32 v10, 15, v0")
    a("v_lshl_add_u32 v11, v10, 4, v3")
    a("v_lshl_add_u32 v3, v10, 3, v3")
    a("v_lshrrev_b32 v10, 5, v0")
    a("v_lshl_add_u32 v10, v10, 8, v11")
    for r in range(12): a(f"v_mul_f32 v{O+r}, v2, v{O+r}")
    for r in range(6): a(f"v_cvt_pk_bf16_f32 v{P+r}, v{O+2*r}, v{O+2*r+1}")
    a(f"buffer_store_dwordx4 {vr(P,4)}, v10, {WS}, s80 offen sc1")
    a("s_mov_b64 exec, 0xffffffff")
    a(f"buffer_store_dwordx2 {vr(P+4,2)}, v3, {WS}, s81 offen sc1")
    a("s_mov_b64 exec, -1")
    a("s_branch L_att_end")
    att_side(k)
    att_fallback(k)
    a.label("L_att_end")
    if k.stop == 2:
        a("s_waitcnt vmcnt(0)")
        k.stamp(11)


class VQ:
    def __init__(self, a): self.a = a; self.q = []
    def add(self, tag): self.q.append(tag)
    def wait(self, tag):
        if tag not in self.q: return
        i = len(self.q) - 1 - self.q[::-1].index(tag)
        n = len(self.q) - 1 - i
        self.a(f"s_waitcnt vmcnt({n})")
        self.q = self.q[i + 1:]

def dma_ops(k, vq, tag, first, last, s_src, s_lds, lds0, nw=8):
    a = k.a
    def one(i):
        def f():
            a(f"s_add_u32 m0, s{s_lds}, {lds0 + nw * i * 1024}")
            a(f"s_add_u32 s{T0}, s{s_src}, {(first + nw * i) * 1024}")
            if first + nw * i + nw > last:
                a(f"s_cmp_ge_u32 s{S_W}, {last - first - nw*i + (1 if nw == 7 else 0)}")
                a(f"s_cselect_b32 m0, {k.DUMMY}, m0")
                a(f"s_cselect_b32 s{T0}, 0x7f000000, s{T0}")
            k.dma(DLIN, SRD_WS, f"s{T0}", "sc1")
            if vq is not None: vq.add(tag)
        return f
    return [one(i) for i in range((last - first + nw - 1) // nw)]

DL8 = 252
def a_op(k, vq, j, ks, s_base, reg, split):
    a = k.a
    def f():
        a(f"s_add_u32 s{T0}, s{s_base}, {1024*ks}")
        if split:
            a(f"buffer_load_dwordx2 {vr(reg,2)}, v{DL8}, {WS}, s{T0} offen sc1")
            a(f"buffer_load_dwordx2 {vr(reg+2,2)}, v{DL8}, {WS}, s{T0} offen offset:512 sc1")
            vq.add(("a", j))
        else:
            a(f"buffer_load_dwordx4 {vr(reg,4)}, v{DLIN}, {WS}, s{T0} offen sc1")
        vq.add(("A", j))
    return f

AF = 4
WB = 112
ACC = 204
HR = 198
BA = 232
TM = 240
sRG, sKH, sN8, sRB64, sA, sB = 64, 65, 66, 67, 68, 69
sW7 = 72
CS_LDS = 158 * 1024

def mm_steps(k, vq, n, nt, addr, areg, extra, pre_hook=None):
    a = k.a
    NB = 3
    def rd(j, t):
        r, off = addr(j, t)
        a(f"ds_read_b128 {vr(WB + (j % NB) * 4 * nt + 4 * t, 4)}, v{r} offset:{off}")
    for j in range(2):
        for t in range(nt): rd(j, t)
    for j in range(n):
        b = WB + (j % NB) * 4 * nt
        ops = list(extra.get(j, []))
        slots = {}
        for i, f in enumerate(ops): slots.setdefault(1 + (i * (nt - 1)) // max(1, len(ops)), []).append(f)
        if pre_hook and j + 2 < n: pre_hook(j + 2)
        vq.wait(("A", j))
        a(f"s_waitcnt lgkmcnt({nt if j + 1 < n else 0})")
        for t in range(nt):
            c = "0" if j == 0 else vr(ACC + 4 * t, 4)
            a(f"{M16} {vr(ACC+4*t,4)}, {vr(b+4*t,4)}, {vr(areg(j),4)}, {c}")
            if j + 2 < n: rd(j + 2, t)
            for f in slots.get(t, []): f()

def tile_addrs(k, base_expr_sgpr, dst):
    a = k.a
    a(f"s_lshl_b32 s{T1}, s{sKH}, 11")
    a(f"v_add_u32 v{dst+2}, s{base_expr_sgpr}, v{DLIN}")
    a(f"v_add_u32 v{dst}, s{T1}, v{dst+2}")
    a(f"v_subrev_u32 v{dst+1}, s{T1}, v{dst+2}")

XW, XRD = 238, 239
def exch_addrs(k, scr):
    a = k.a
    a(f"s_mul_i32 s{T0}, s{sRG}, 5120")
    a(f"s_add_u32 s{T0}, s{T0}, {scr}")
    a(f"s_lshl_b32 s{T1}, s{sKH}, 11")
    a(f"s_add_u32 s{T2}, s{T0}, s{T1}")
    a(f"v_add_u32 v{XW}, s{T2}, v{DLIN}")
    a(f"s_sub_u32 s{T2}, s{T0}, s{T1}")
    a(f"s_add_u32 s{T2}, s{T2}, 2048")
    a(f"v_add_u32 v{XRD}, s{T2}, v{DLIN}")

def reduce_halves(k, resid, pad):
    a = k.a
    if pad: a(f"s_nop {pad-1}")
    a(f"ds_write_b128 v{XW}, {vr(ACC+8,4)}")
    a(f"ds_write_b128 v{XW}, {vr(ACC+12,4)} offset:1024")
    L = a.newlabel("rh")
    a(f"s_cmp_eq_u32 s{sKH}, 0")
    a(f"s_cbranch_scc1 {L}")
    a(f"ds_write_b128 v{XW}, {vr(ACC+16,4)} offset:2048")
    a.label(L)
    a("s_waitcnt lgkmcnt(2)")
    for i, t in enumerate((0, 1, 4)):
        for h in range(2):
            a(f"v_lshlrev_b32 v{TM+2}, 16, v{resid+2*i+h}")
            a(f"v_and_b32 v{TM+3}, 0xffff0000, v{resid+2*i+h}")
            a(f"v_add_f32 v{ACC+4*t+2*h}, v{ACC+4*t+2*h}, v{TM+2}")
            a(f"v_add_f32 v{ACC+4*t+2*h+1}, v{ACC+4*t+2*h+1}, v{TM+3}")
    a("s_waitcnt lgkmcnt(0)")
    a("s_barrier")
    for i in range(3): a(f"ds_read_b128 {vr(WB+4*i,4)}, v{XRD} offset:{1024*i}")
    for i, t in enumerate((0, 1, 4)):
        a(f"s_waitcnt lgkmcnt({2-i})")
        for r in range(4): a(f"v_add_f32 v{ACC+4*t+r}, v{ACC+4*t+r}, v{WB+4*i+r}")

def row_reduce(a, r, t):
    for sw in ("16", "32"):
        a(f"v_mov_b32 v{t}, v{r}")
        a(f"v_mov_b32 v{t+1}, v{r+1}")
        a("s_nop 0")
        a(f"v_permlane{sw}_swap_b32 v{r}, v{t}")
        a(f"v_permlane{sw}_swap_b32 v{r+1}, v{t+1}")
        a("s_nop 0")
        a(f"v_add_f32 v{r}, v{r}, v{t}")
        a(f"v_add_f32 v{r+1}, v{r+1}, v{t+1}")

def not_wave0(k, fn):
    a = k.a
    L = a.newlabel("nw0")
    a(f"s_cmp_eq_u32 s{S_W}, 0")
    a(f"s_cbranch_scc1 {L}")
    fn()
    a.label(L)

P3_SCR, P3_LAST = 35 * 1024, 56 * 1024
sW1, sW17, sTT3 = 80, 95, 81
def phase3(k):
    a = k.a
    a.c("================ phase 3: output projection + residual")
    a(f"s_lshl_b32 s{T0}, s{sQB}, 5")
    a(f"s_add_u32 s{T0}, s{T0}, s{sH}")
    a(f"s_mul_i32 s{T3}, s{T0}, {FSP}")
    a(f"s_add_u32 s{T3}, s{T3}, {FL_2}")
    a(f"s_and_b32 s{sRG}, s{S_W}, 3")
    a(f"s_lshr_b32 s{sKH}, s{S_W}, 2")
    a(f"s_and_b32 s{sN8}, s{S_J}, 7")
    a(f"s_lshl_b32 s{sRB64}, s{S_C}, 2")
    a(f"s_lshr_b32 s{T0}, s{S_J}, 3")
    a(f"s_add_u32 s{sRB64}, s{sRB64}, s{T0}")
    a(f"s_sub_u32 s{sW7}, s{sW10}, 1024")
    a(f"s_add_u32 s{sA}, s{sSD}, s{sW7}")
    a(f"s_and_b32 s{T1}, s{S_J}, 15")
    a(f"s_mul_i32 s{sW1}, s{T1}, {20*7168}")
    a(f"s_add_u32 s{sW1}, s{sW1}, {WS_W1}")
    a(f"s_add_u32 s{sW17}, s{sW1}, s{sW7}")
    a(f"s_add_u32 s{sW1}, s{sW1}, s{sW10}")
    a(f"v_lshlrev_b32 v{DL8}, 3, v0")
    a("s_waitcnt vmcnt(0)")
    a("s_barrier")
    k.stamp(11)
    k.flag_store(T3, TM)
    def early():
        for f in dma_ops(k, None, None, 45, 50, sA, sW7, P3_LAST, 7): f()
        for f in dma_ops(k, None, None, 95, 100, sA, sW7, P3_LAST + 5120, 7): f()
        for f in dma_ops(k, None, None, 0, 35, sW17, sW7, 0, 7): f()
        resid_x(k)
    not_wave0(k, early)
    a(f"s_cmp_lt_u32 s{S_W}, 6")
    a("s_cbranch_scc1 L_p3_nocs")
    a(f"s_and_b32 s{T1}, s{S_J}, 15")
    a(f"s_sub_u32 s{T0}, s{S_W}, 6")
    a(f"s_lshl_b32 s{T0}, s{T0}, 6")
    a(f"v_add_u32 v{TM+4}, s{T0}, v0")
    a(f"s_mul_i32 s{T2}, s{T1}, 96")
    a(f"v_add_u32 v{TM+5}, s{T2}, v{TM+4}")
    a(f"s_min_u32 s{T2}, s{T1}, 11")
    a(f"s_lshl_b32 s{T2}, s{T2}, 4")
    a(f"s_add_u32 s{T2}, s{T2}, 1536")
    a(f"v_and_b32 v{TM+6}, 15, v0")
    a(f"v_add_u32 v{TM+6}, s{T2}, v{TM+6}")
    a(f"v_cmp_gt_u32 vcc, 96, v{TM+4}")
    a(f"s_mov_b32 s{T2}, {WS_CS1}")
    a("s_nop 0")
    a(f"v_cndmask_b32 v{TM+5}, v{TM+6}, v{TM+5}, vcc")
    a(f"v_lshlrev_b32 v{TM+5}, 2, v{TM+5}")
    for i in range(20):
        a(f"buffer_load_dword v{CSV+i}, v{TM+5}, {WS}, s{T2} offen sc1")
        if i < 19: a(f"s_add_u32 s{T2}, s{T2}, {1728*4}")
    a.label("L_p3_nocs")
    a(f"s_mul_i32 s{T0}, s{sKH}, {45*1024}")
    a(f"s_add_u32 s{T0}, s{T0}, {WO_LDS}")
    tile_addrs(k, T0, BA)
    a(f"s_mul_i32 s{T0}, s{sKH}, 5120")
    a(f"s_add_u32 s{T0}, s{T0}, {P3_LAST}")
    tile_addrs(k, T0, BA + 3)
    exch_addrs(k, P3_SCR)
    a(f"s_lshl_b32 s{T0}, s{sRB64}, 2")
    a(f"s_add_u32 s{sTT3}, s{T0}, s{sRG}")
    a(f"s_mul_i32 s{sA}, s{sTT3}, 20480")
    a(f"s_mul_i32 s{T1}, s{sKH}, 10240")
    a(f"s_add_u32 s{sA}, s{sA}, s{T1}")
    a(f"s_add_u32 s{sA}, s{sA}, {WS_O}")
    a(f"s_mul_i32 s{T3}, s{S_C}, {32*FSP}")
    a(f"s_add_u32 s{T3}, s{T3}, {FL_2}")
    k.poll(32, T3, FSP, TM)
    a(f"s_cmp_lg_u32 s{S_W}, 0")
    a("s_cbranch_scc1 L_p3_rx")
    resid_x(k)
    a.label("L_p3_rx")
    a("s_waitcnt vmcnt(8)")
    a("s_barrier")
    k.stamp(12)
    vq = VQ(a)
    aop = [a_op(k, vq, j, j, sA, AF + 4 * j, j >= 8) for j in range(10)]
    D = int(k.o.get("d3", 4))
    for j in range(D): aop[j]()
    def addr(j, t):
        r = (BA if j < 9 else BA + 3) + (0, 0, 1, 1, 2)[t]
        return r, (j * 5120 if j < 9 else 0) + t * 1024
    mm_steps(k, vq, 10, 5, addr, lambda j: AF + 4 * j, {j: [aop[j + D]] for j in range(10 - D)})
    k.stamp(13)
    a(f"v_and_b32 v{TM+2}, 15, v0")
    a(f"v_lshrrev_b32 v{TM+3}, 4, v0")
    a(f"v_lshl_add_u32 v{TM+2}, v{TM+2}, 2, v{TM+3}")
    a(f"v_lshlrev_b32 v{TM+2}, 2, v{TM+2}")
    for r in range(6): a(f"ds_bpermute_b32 v{XR+r}, v{TM+2}, v{XR+r}")
    a(f"s_cmp_lt_u32 s{S_W}, 6")
    a("s_cbranch_scc1 L_p3_nocs2")
    for w in (10, 5):
        for i in range(w): a(f"v_add_f32 v{CSV+i}, v{CSV+i}, v{CSV+w+i}")
    for i in range(1, 5): a(f"v_add_f32 v{CSV}, v{CSV}, v{CSV+i}")
    a(f"s_lshl_b32 s{T0}, s{S_W}, 8")
    a(f"s_add_u32 s{T0}, s{T0}, {CS_LDS - 6*256}")
    a(f"v_lshl_add_u32 v{TM+4}, v0, 2, s{T0}")
    a(f"ds_write_b32 v{TM+4}, v{CSV}")
    a.label("L_p3_nocs2")
    a(f"s_mul_i32 s{sA}, s{sTT3}, 20480")
    a(f"s_add_u32 s{sA}, s{sA}, {WS_H}")
    a(f"s_lshl_b32 s{T0}, s{sN8}, 1")
    a(f"s_add_u32 s{T0}, s{T0}, s{sKH}")
    a(f"s_lshl_b32 s{T3}, s{T0}, 10")
    a(f"s_add_u32 s{T3}, s{T3}, s{sA}")
    reduce_halves(k, XR, 0)
    for i, t in enumerate((0, 1, 4)):
        for h in range(2): a(f"v_cvt_pk_bf16_f32 v{HR+2*i+h}, v{ACC+4*t+2*h}, v{ACC+4*t+2*h+1}")
        if i == 1: a(f"buffer_store_dwordx4 {vr(HR,4)}, v{DLIN}, {WS}, s{T3} offen {k.o.get('lst', 'sc1')}")
    a(f"v_mov_b32 v{TM+6}, 0x3f803f80")
    a(f"v_mov_b32 v{TM+4}, 0")
    a(f"v_mov_b32 v{TM+5}, 0")
    def acc_stats(regs):
        for r in regs:
            a(f"v_dot2_f32_bf16 v{TM+4}, v{r}, v{TM+6}, v{TM+4}")
            a(f"v_dot2_f32_bf16 v{TM+5}, v{r}, v{r}, v{TM+5}")
    acc_stats(range(HR, HR + 4))
    a(f"s_cmp_lg_u32 s{sKH}, 0")
    a("s_cbranch_scc1 L_p3_no4")
    a(f"s_lshr_b32 s{T0}, s{sN8}, 1")
    a(f"s_lshl_b32 s{T0}, s{T0}, 10")
    a(f"s_and_b32 s{T1}, s{sN8}, 1")
    a(f"s_lshl_b32 s{T1}, s{T1}, 9")
    a(f"s_add_u32 s{T0}, s{T0}, s{T1}")
    a(f"s_add_u32 s{T0}, s{T0}, s{sA}")
    a(f"s_add_u32 s{T0}, s{T0}, 16384")
    a(f"buffer_store_dwordx2 {vr(HR+4,2)}, v{DL8}, {WS}, s{T0} offen {k.o.get('lst', 'sc1')}")
    acc_stats(range(HR + 4, HR + 6))
    a.label("L_p3_no4")
    a(f"s_lshl_b32 s{T0}, s{sRB64}, 4")
    a(f"s_lshl_b32 s{T1}, s{sN8}, 1")
    a(f"s_add_u32 s{T0}, s{T0}, s{T1}")
    row_reduce(a, TM + 4, TM + 6)
    a(f"s_add_u32 s{T0}, s{T0}, s{sKH}")
    a(f"s_lshl_b32 s{T0}, s{T0}, 9")
    a(f"s_lshl_b32 s{T1}, s{sRG}, 7")
    a(f"s_add_u32 s{T0}, s{T0}, s{T1}")
    a(f"s_add_u32 s{T0}, s{T0}, {WS_ST}")
    a("s_mov_b64 exec, 0xffff")
    a(f"buffer_store_dwordx2 {vr(TM+4,2)}, v{DL8}, {WS}, s{T0} offen {k.o.get('lst', 'sc1')}")
    a("s_mov_b64 exec, -1")
    for f in dma_ops(k, None, None, 56, 96, sW1, sW10, 56 * 1024): f()
    a(f"s_lshl_b32 s{T0}, s{sRB64}, 3")
    a(f"s_add_u32 s{T0}, s{T0}, s{sN8}")
    a(f"s_mul_i32 s{T3}, s{T0}, {FSP}")
    a(f"s_add_u32 s{T3}, s{T3}, {FL_3}")
    a("s_waitcnt vmcnt(5)")
    a("s_barrier")
    k.stamp(14)
    k.flag_store(T3, TM, k.o.get('lfl', 'sc1'))

sW2, sW27 = 83, 93
RING5 = 27 * 5120
HALF = 15 * 5120
def phase4(k):
    a = k.a
    a.c("================ phase 4: FFN up-projection + SiLU")
    sF, sRB, sTT = 70, 71, 74
    def late():
        for f in dma_ops(k, None, None, 96, 140, sW17, sW7, 96 * 1024, 7): f()
        for f in dma_ops(k, None, None, 35, 56, sW17, sW7, 35 * 1024, 7): f()
    not_wave0(k, late)
    a(f"s_and_b32 s{sF}, s{S_J}, 15")
    a(f"s_lshl_b32 s{T0}, s{S_J}, 3")
    a(f"s_add_u32 s{T0}, s{T0}, s{S_W}")
    a(f"s_lshr_b32 s{T1}, s{T0}, 4")
    a(f"s_and_b32 s{T0}, s{T0}, 15")
    a(f"s_mul_i32 s{T0}, s{T0}, 3840")
    a(f"s_mul_i32 s{T1}, s{T1}, {27*5120}")
    a(f"s_add_u32 s{T0}, s{T0}, s{T1}")
    a(f"s_add_u32 s75, s{T0}, {WS_W2 + 15*5120}")
    a(f"s_mul_i32 s{sW2}, s{sN8}, {54*5120}")
    a(f"s_add_u32 s{sW2}, s{sW2}, {WS_W2}")
    a(f"s_add_u32 s{sW27}, s{sW2}, s{sW7}")
    a(f"s_add_u32 s{sW2}, s{sW2}, s{sW10}")
    a(f"s_lshl_b32 s{sRB}, s{S_C}, 1")
    a(f"s_lshr_b32 s{T0}, s{S_J}, 4")
    a(f"s_add_u32 s{sRB}, s{sRB}, s{T0}")
    a(f"v_mov_b32 v{BA}, v{DLIN}")
    a(f"v_add_u32 v{BA+1}, {9*7168}, v{DLIN}")
    a(f"v_add_u32 v{BA+2}, {18*7168}, v{DLIN}")
    a(f"s_lshl_b32 s{T0}, s{sRB}, 3")
    a(f"s_add_u32 s{sTT}, s{T0}, s{S_W}")
    a(f"s_mul_i32 s{sA}, s{sTT}, 20480")
    a(f"s_add_u32 s{sA}, s{sA}, {WS_H}")
    a(f"s_lshr_b32 s{T0}, s{sTT}, 2")
    a(f"s_lshl_b32 s{T0}, s{T0}, 13")
    a(f"s_and_b32 s{T1}, s{sTT}, 3")
    a(f"s_lshl_b32 s{T1}, s{T1}, 7")
    a(f"s_add_u32 s{T0}, s{T0}, s{T1}")
    a(f"s_add_u32 s{sB}, s{T0}, {WS_ST}")
    a(f"v_and_b32 v{TM}, 15, v0")
    a(f"v_lshrrev_b32 v{TM+1}, 4, v0")
    a(f"v_lshlrev_b32 v{TM+10}, 11, v{TM+1}")
    a(f"v_lshl_add_u32 v{TM+10}, v{TM}, 3, v{TM+10}")
    a(f"v_lshlrev_b32 v{TM+11}, 4, v{TM+1}")
    a(f"v_add_u32 v{TM+11}, {CS_LDS}, v{TM+11}")
    a(f"s_mul_i32 s{T3}, s{sRB}, {16*FSP}")
    a(f"s_add_u32 s{T3}, s{T3}, {FL_3}")
    k.poll(16, T3, FSP, TM)
    a("s_waitcnt vmcnt(10) lgkmcnt(0)")
    a("s_barrier")
    k.stamp(15)
    vq = VQ(a)
    vq.add("L")
    order = list(range(5)) + list(range(8, 20)) + [5, 6, 7]
    aop = [a_op(k, vq, j, order[j], sA, AF + 4 * j, order[j] >= 16) for j in range(20)]
    D = int(k.o.get("d4", 4))
    for j in range(D): aop[j]()
    ST = 84 + AF
    def st_op(i):
        def f():
            a(f"buffer_load_dwordx2 {vr(ST+2*i,2)}, v{TM+10}, {WS}, s{sB} offen offset:{512*i} sc1")
            vq.add("S")
        return f
    def touch(i):
        def f():
            a(f"buffer_load_dword v{TM+8}, v{DLIN}, {WS}, s75 offen offset:{min(1024*i, 2816)} sc1")
            vq.add("T")
        return f
    extra = {j: [aop[j + D]] for j in range(20 - D)}
    for i in range(4): extra.setdefault(20 - D + i * D // 4, []).append(st_op(i))
    for i in range(4): extra.setdefault(16 + i, []).append(touch(i))
    def addr(j, t): return BA + order[j] // 9, (order[j] % 9) * 7168 + t * 1024
    def pre(j):
        if j == 10:
            vq.wait("L")
            a("s_barrier")
    mm_steps(k, vq, 20, 7, addr, lambda j: AF + 4 * j, extra, pre)
    k.stamp(16)
    CS = WB + 56
    for t in range(7): a(f"ds_read_b128 {vr(CS+4*t,4)}, v{TM+11} offset:{64*t}")
    a(f"s_cmp_lt_u32 s{S_W}, 4")
    a("s_cbranch_scc1 L_p4_nb")
    a("s_barrier")
    a.label("L_p4_nb")
    vq.wait("S")
    a(f"v_add_f32 v{ST}, v{ST}, v{ST+2}")
    a(f"v_add_f32 v{ST+1}, v{ST+1}, v{ST+3}")
    a(f"v_add_f32 v{ST+4}, v{ST+4}, v{ST+6}")
    a(f"v_add_f32 v{ST+5}, v{ST+5}, v{ST+7}")
    a(f"v_add_f32 v{ST}, v{ST}, v{ST+4}")
    a(f"v_add_f32 v{ST+1}, v{ST+1}, v{ST+5}")
    row_reduce(a, ST, ST + 2)
    a(f"v_mul_f32 v{ST}, 0x{f2u(1.0/640):08x}, v{ST}")
    a(f"v_mul_f32 v{ST+2}, v{ST}, v{ST}")
    a(f"v_mov_b32 v{ST+3}, 0x{f2u(1.0/640):08x}")
    a(f"v_fma_f32 v{ST+2}, v{ST+1}, v{ST+3}, -v{ST+2}")
    a(f"v_max_f32 v{ST+2}, 0, v{ST+2}")
    a(f"v_add_f32 v{ST+2}, 0x{f2u(1e-5):08x}, v{ST+2}")
    a(f"v_rsq_f32 v{ST+1}, v{ST+2}")
    a(f"s_mul_i32 s{sA}, s{sTT}, {54*1024}")
    a(f"s_add_u32 s{sA}, s{sA}, {WS_H1}")
    a(f"v_mul_f32 v{ST}, v{ST}, v{ST+1}")
    a(f"s_lshr_b32 s{T0}, s{sF}, 3")
    a(f"s_add_u32 s{T0}, s{T0}, s{sF}")
    a(f"s_mul_i32 s{T0}, s{T0}, 3072")
    a(f"s_add_u32 s{sB}, s{T0}, s{sA}")
    a("s_waitcnt lgkmcnt(0)")
    E = AF; OUT = AF + 32
    def silu(tiles):
        rs = [4 * t + r for t in tiles for r in range(4)]
        for r in rs: a(f"v_mul_f32 v{ACC+r}, v{ST+1}, v{ACC+r}")
        for r in rs: a(f"v_fma_f32 v{ACC+r}, -v{ST}, v{CS+r}, v{ACC+r}")
        for r in rs: a(f"v_mul_f32 v{E+r}, 0x{f2u(-math.log2(math.e)):08x}, v{ACC+r}")
        for r in rs: a(f"v_exp_f32 v{E+r}, v{E+r}")
        for r in rs: a(f"v_add_f32 v{E+r}, 1.0, v{E+r}")
        for r in rs: a(f"v_rcp_f32 v{E+r}, v{E+r}")
        for r in rs: a(f"v_mul_f32 v{ACC+r}, v{ACC+r}, v{E+r}")
        for r in rs[::2]: a(f"v_cvt_pk_bf16_f32 v{OUT+r//2}, v{ACC+r}, v{ACC+r+1}")
    for p in range(3):
        silu((2 * p, 2 * p + 1))
        a(f"buffer_store_dwordx4 {vr(OUT+4*p,4)}, v{DLIN}, {WS}, s{sB} offen offset:{1024*p} {k.o.get('lst', 'sc1')}")
    a(f"s_cmp_ge_u32 s{sF}, 12")
    a("s_cbranch_scc1 L_p4_no6")
    silu((6,))
    a(f"s_lshr_b32 s{T0}, s{sF}, 1")
    a(f"s_cmp_ge_u32 s{sF}, 6")
    a(f"s_cselect_b32 s{T1}, 48, 24")
    a(f"s_add_u32 s{T0}, s{T0}, s{T1}")
    a(f"s_lshl_b32 s{T0}, s{T0}, 10")
    a(f"s_and_b32 s{T1}, s{sF}, 1")
    a(f"s_lshl_b32 s{T1}, s{T1}, 9")
    a(f"s_add_u32 s{T0}, s{T0}, s{T1}")
    a(f"s_add_u32 s{T0}, s{T0}, s{sA}")
    a(f"buffer_store_dwordx2 {vr(OUT+12,2)}, v{DL8}, {WS}, s{T0} offen {k.o.get('lst', 'sc1')}")
    a.label("L_p4_no6")
    a(f"s_cmp_ge_u32 s{S_W}, 4")
    a("s_cbranch_scc1 L_p4_y")
    a("s_barrier")
    NW2 = int(k.o.get("nw2", 40))
    w2 = []
    for x, y in zip(dma_ops(k, None, None, 0, NW2, sW2, sW10, 0, 4), dma_ops(k, None, None, 135, 135 + NW2, sW2, sW10, HALF, 4)): w2 += [x, y]
    for f in w2: f()
    a(f"s_waitcnt vmcnt({len(w2)})")
    a("s_branch L_p4_e")
    a.label("L_p4_y")
    a("s_waitcnt vmcnt(0)")
    a.label("L_p4_e")
    a(f"s_lshl_b32 s{T0}, s{sRB}, 4")
    a(f"s_add_u32 s{T0}, s{T0}, s{sF}")
    a(f"s_mul_i32 s{T3}, s{T0}, {FSP}")
    a(f"s_add_u32 s{T3}, s{T3}, {FL_4}")
    a("s_barrier")
    k.stamp(17)
    k.flag_store(T3, TM, k.o.get('lfl', 'sc1'))

def phase5(k):
    a = k.a
    a.c("================ phase 5: FFN down-projection + residual")
    NW2 = int(k.o.get("nw2", 40))
    def late():
        for x, y in zip(dma_ops(k, None, None, NW2, 75, sW27, sW7, NW2 * 1024, 7), dma_ops(k, None, None, 135 + NW2, 210, sW27, sW7, HALF + NW2 * 1024, 7)): x(); y()
    not_wave0(k, late)
    a(f"s_mul_i32 s{T0}, s{sKH}, {HALF}")
    tile_addrs(k, T0, BA)
    for i in range(3): a(f"v_add_u32 v{BA+3+i}, {12*5120}, v{BA+i}")
    exch_addrs(k, 12 * 5120)
    a(f"s_mul_i32 s{sB}, s{sTT3}, {54*1024}")
    a(f"s_mul_i32 s{T1}, s{sKH}, {27*1024}")
    a(f"s_add_u32 s{sB}, s{sB}, s{T1}")
    a(f"s_add_u32 s{sB}, s{sB}, {WS_H1}")
    a(f"s_lshr_b32 s{T3}, s{sRB64}, 1")
    a(f"s_mul_i32 s{T3}, s{T3}, {16*FSP}")
    a(f"s_add_u32 s{T3}, s{T3}, {FL_4}")
    k.poll(16, T3, FSP, TM)
    a(f"s_waitcnt vmcnt({2 * ((75 - NW2 + 6) // 7)})")
    a("s_barrier")
    k.stamp(18)
    vq = VQ(a)
    vq.add("L")
    aop = [a_op(k, vq, j, j, sB, AF + 4 * j, j >= 24) for j in range(27)]
    D = int(k.o.get("d5", 4))
    for j in range(D): aop[j]()
    extra = {j: [aop[j + D]] for j in range(27 - D)}
    G = 3
    groups = [(15 + G * g, G * g) for g in range(4)]
    free_at = {}
    need_at = {}
    for g, (j0, s0) in enumerate(groups):
        ops = []
        for x, y in zip(dma_ops(k, vq, f"R{g}", 5 * j0, 5 * j0 + 5 * G, sW2, sW10, s0 * 5120),
                        dma_ops(k, vq, f"R{g}", 135 + 5 * j0, 135 + 5 * j0 + 5 * G, sW2, sW10, HALF + s0 * 5120)): ops += [x, y]
        b = s0 + G
        free_at[b] = True
        for i, f in enumerate(ops): extra.setdefault(b + (i * G) // len(ops), []).append(f)
        need_at[j0] = f"R{g}"
    slot = lambda j: j if j < 15 else j - 15
    def addr(j, t):
        s = slot(j)
        return BA + (3 if s >= 12 else 0) + (0, 0, 1, 1, 2)[t], (s % 12) * 5120 + t * 1024
    def pre(j):
        bar = False
        if j == NW2 // 5: vq.wait("L"); bar = True
        if j in need_at: vq.wait(need_at[j]); bar = True
        if (j - 2) in free_at: bar = True
        if bar: a("s_barrier")
    mm_steps(k, vq, 27, 5, addr, lambda j: AF + 4 * j, extra, pre)
    k.stamp(19)
    reduce_halves(k, HR, 6)
    for i, t in enumerate((0, 1, 4)):
        for h in range(2): a(f"v_cvt_pk_bf16_f32 v{AF+2*i+h}, v{ACC+4*t+2*h}, v{ACC+4*t+2*h+1}")
    a(f"s_mul_i32 s{T0}, s{sTT3}, {16*1280}")
    a(f"s_mul_i32 s{T1}, s{sN8}, 160")
    a(f"s_add_u32 s{T0}, s{T0}, s{T1}")
    a(f"s_lshl_b32 s{T1}, s{sKH}, 6")
    a(f"s_add_u32 s{T1}, s{T1}, s{T0}")
    a(f"v_and_b32 v{TM}, 15, v0")
    a(f"v_mul_u32_u24 v{TM}, 1280, v{TM}")
    a(f"v_lshrrev_b32 v{TM+1}, 4, v0")
    a(f"v_lshl_add_u32 v{TM}, v{TM+1}, 3, v{TM}")
    OUTS = f"s[{SRD_OUT}:{SRD_OUT+3}]"
    a(f"buffer_store_dwordx2 {vr(AF,2)}, v{TM}, {OUTS}, s{T1} offen {k.o.get('ost', '')}")
    a(f"buffer_store_dwordx2 {vr(AF+2,2)}, v{TM}, {OUTS}, s{T1} offen offset:32 {k.o.get('ost', '')}")
    a(f"s_cmp_lg_u32 s{sKH}, 0")
    a("s_cbranch_scc1 L_p5_no4")
    a(f"buffer_store_dwordx2 {vr(AF+4,2)}, v{TM}, {OUTS}, s{T0} offen offset:128 {k.o.get('ost', '')}")
    a.label("L_p5_no4")
```

```python
import sys, math
from asmlib import Asm, vr, sr, f2u, check
from tables import *

NAME = "sequential_preLN__mha_block__dense_activation_silu__prompt"
LDS_BYTES = 163840
SPIN_MAX = 20000

S_G = 2
SRD_X, SRD_WQ, SRD_WS, SRD_OUT, SRD_DBG, SRD_RL = 4, 8, 12, 16, 20, 24
S_W, S_C, S_J = 28, 29, 30
S_NONCE = 32
S_PTR = 36
T0, T1, T2, T3, T4, T5 = 54, 55, 56, 57, 58, 59
S_M1 = 60
S_SPIN = 62

class K:
    def __init__(self, stop_after=99, opts=None):
        self.a = Asm()
        self.stop = stop_after
        self.o = opts or {}
        self.pad = 0

    def srd(self, d, ptr, nbytes):
        a = self.a
        a(f"s_mov_b32 s{d}, s{ptr}")
        a(f"s_and_b32 s{d+1}, s{ptr+1}, 0xffff")
        a(f"s_mov_b32 s{d+2}, {nbytes}")
        a(f"s_mov_b32 s{d+3}, 0x20000")

    def stamp(self, idx):
        if not self.o.get("stamps"): return
        a = self.a
        a("s_memrealtime s[100:101]")
        a("s_waitcnt lgkmcnt(0)")
        a(f"v_writelane_b32 v255, s100, {idx}")
        if idx < 22:
            a("s_memtime s[100:101]")
            a("s_waitcnt lgkmcnt(0)")
            a(f"v_writelane_b32 v255, s100, {idx+32}")

    def stamp_dyn(self, base, sreg):
        if not self.o.get("its"): return
        a = self.a
        a("s_memtime s[100:101]")
        a("s_mov_b32 s99, m0")
        a(f"s_add_u32 m0, s{sreg}, {base}")
        a("s_waitcnt lgkmcnt(0)")
        a("v_writelane_b32 v255, s100, m0")
        a("s_mov_b32 m0, s99")

    def stamp_flush(self):
        if not self.o.get("stamps"): return
        a = self.a
        if self.o.get("dbgwg"):
            L = a.newlabel("dbg")
            a(f"s_cmp_lg_u32 s{S_G}, {int(self.o['dbgwg'])}")
            a(f"s_cbranch_scc1 {L}")
            a(f"s_cmp_lg_u32 s{S_W}, 0")
            a(f"s_cbranch_scc1 {L}")
            a(f"v_readlane_b32 s{T1}, v255, 0")
            for n, i in enumerate((3, 4, 7, 8, 9, 10, 12, 13, 15, 16, 18, 19, 31)):
                a(f"v_readlane_b32 s{T0}, v255, {i}")
                a("s_nop 3")
                a(f"s_sub_u32 s{T0}, s{T0}, s{T1}")
                a(f"v_mov_b32 v1, s{T0}")
                a(f"v_mov_b32 v2, {8+4*n}")
                a(f"buffer_store_dword v1, v2, s[{SRD_DBG}:{SRD_DBG+3}], 0 offen")
            a.label(L)
            return
        a(f"s_lshl_b32 s{T0}, s{S_G}, 3")
        a(f"s_add_u32 s{T0}, s{T0}, s{S_W}")
        a(f"s_lshl_b32 s{T0}, s{T0}, 8")
        a(f"s_add_u32 s{T0}, s{T0}, {WS_SIZE}")
        a("v_lshlrev_b32 v1, 2, v0")
        a(f"buffer_store_dword v255, v1, s[{SRD_WS}:{SRD_WS+3}], s{T0} offen")
        a("s_mov_b64 exec, -1")

    def dma(self, voff, srd, soff, flags=""):
        if self.o.get("nodma"): return
        self.a(f"buffer_load_dwordx4 v{voff}, s[{srd}:{srd+3}], {soff} offen {flags} lds".replace("  ", " "))

    def flag_store(self, s_off, vt, pol="sc1"):
        a = self.a
        L = a.newlabel("nofl")
        a(f"s_cmp_lg_u32 s{S_W}, 0")
        a(f"s_cbranch_scc1 {L}")
        a(f"v_mov_b32 v{vt}, s{S_NONCE}")
        a(f"v_mov_b32 v{vt+1}, s{S_NONCE+1}")
        a(f"v_mov_b32 v{vt+2}, 0")
        a("s_mov_b64 exec, 1")
        a(f"buffer_store_dwordx2 v[{vt}:{vt+1}], v{vt+2}, s[{SRD_WS}:{SRD_WS+3}], s{s_off} offen {pol}")
        a("s_mov_b64 exec, -1")
        a.label(L)

    def poll(self, n, s_off, spacing, vt, only_wave0=True):
        a = self.a
        L = a.newlabel("poll"); Ld = a.newlabel("polld")
        if only_wave0:
            a(f"s_cmp_lg_u32 s{S_W}, 0")
            a(f"s_cbranch_scc1 {Ld}")
        a(f"s_mov_b32 s{S_SPIN}, 0")
        if n == 256:
            assert spacing == 8
            a(f"v_lshlrev_b32 v{vt+8}, 4, v0")
            a.label(L)
            a(f"buffer_load_dwordx4 v[{vt}:{vt+3}], v{vt+8}, s[{SRD_WS}:{SRD_WS+3}], s{s_off} offen sc1")
            a(f"buffer_load_dwordx4 v[{vt+4}:{vt+7}], v{vt+8}, s[{SRD_WS}:{SRD_WS+3}], s{s_off} offen offset:1024 sc1")
            a(f"s_add_u32 s{S_SPIN}, s{S_SPIN}, 1")
            a("s_waitcnt vmcnt(0)")
            a(f"v_cmp_ne_u64 vcc, s[{S_NONCE}:{S_NONCE+1}], v[{vt}:{vt+1}]")
            a(f"v_cmp_ne_u64 s[{S_M1}:{S_M1+1}], s[{S_NONCE}:{S_NONCE+1}], v[{vt+2}:{vt+3}]")
            a("s_nop 0")
            a(f"s_or_b64 s[{T4}:{T5}], vcc, s[{S_M1}:{S_M1+1}]")
            a(f"v_cmp_ne_u64 vcc, s[{S_NONCE}:{S_NONCE+1}], v[{vt+4}:{vt+5}]")
            a(f"v_cmp_ne_u64 s[{S_M1}:{S_M1+1}], s[{S_NONCE}:{S_NONCE+1}], v[{vt+6}:{vt+7}]")
            a("s_nop 0")
            a(f"s_or_b64 s[{T4}:{T5}], s[{T4}:{T5}], vcc")
            a(f"s_or_b64 s[{T4}:{T5}], s[{T4}:{T5}], s[{S_M1}:{S_M1+1}]")
        else:
            a(f"v_and_b32 v{vt+8}, {n-1}, v0")
            a(f"v_mul_u32_u24 v{vt+8}, {spacing}, v{vt+8}")
            a.label(L)
            a(f"buffer_load_dwordx2 v[{vt}:{vt+1}], v{vt+8}, s[{SRD_WS}:{SRD_WS+3}], s{s_off} offen sc1")
            a(f"s_add_u32 s{S_SPIN}, s{S_SPIN}, 1")
            a("s_waitcnt vmcnt(0)")
            a(f"v_cmp_ne_u64 vcc, s[{S_NONCE}:{S_NONCE+1}], v[{vt}:{vt+1}]")
            a("s_nop 0")
            a(f"s_or_b64 s[{T4}:{T5}], vcc, vcc")
        a(f"s_cbranch_scc0 {Ld}")
        a(f"s_cmp_lt_u32 s{S_SPIN}, {SPIN_MAX}")
        a(f"s_cbranch_scc1 {L}")
        a.label(Ld)

    def poll2(self, va, vb, s_off, vt):
        a = self.a
        L = a.newlabel("poll"); Ld = a.newlabel("polld")
        N = f"s[{S_NONCE}:{S_NONCE+1}]"
        a(f"s_cmp_lg_u32 s{S_W}, 0")
        a(f"s_cbranch_scc1 {Ld}")
        a(f"s_mov_b32 s{S_SPIN}, 0")
        a.label(L)
        a(f"buffer_load_dwordx2 v[{vt}:{vt+1}], v{va}, s[{SRD_WS}:{SRD_WS+3}], s{s_off} offen sc1")
        a(f"buffer_load_dwordx2 v[{vt+2}:{vt+3}], v{vb}, s[{SRD_WS}:{SRD_WS+3}], s{s_off} offen sc1")
        a(f"s_add_u32 s{S_SPIN}, s{S_SPIN}, 1")
        a("s_waitcnt vmcnt(0)")
        a(f"v_cmp_ne_u64 vcc, {N}, v[{vt}:{vt+1}]")
        a(f"v_cmp_ne_u64 s[{S_M1}:{S_M1+1}], {N}, v[{vt+2}:{vt+3}]")
        a("s_nop 0")
        a(f"s_or_b64 vcc, vcc, s[{S_M1}:{S_M1+1}]")
        a(f"s_cbranch_scc0 {Ld}")
        a(f"s_cmp_lt_u32 s{S_SPIN}, {SPIN_MAX}")
        a(f"s_cbranch_scc1 {L}")
        a.label(Ld)

    def entry(self):
        a = self.a
        a(f"s_cmp_ge_u32 s{S_G}, 256")
        a("s_cbranch_scc1 L_end")
        a(f"s_load_dwordx16 s[{S_PTR}:{S_PTR+15}], s[0:1], 0")
        a(f"s_load_dwordx2 s[{S_PTR+16}:{S_PTR+17}], s[0:1], 64")
        a(f"s_memrealtime s[{S_NONCE}:{S_NONCE+1}]")
        if self.o.get("stamps"): a("v_mov_b32 v255, 0")
        self.stamp(0)
        a("v_lshrrev_b32 v1, 6, v0")
        a("v_and_b32 v0, 63, v0")
        a(f"v_readfirstlane_b32 s{S_W}, v1")
        a(f"s_and_b32 s{S_C}, s{S_G}, 7")
        a(f"s_lshr_b32 s{S_J}, s{S_G}, 3")

    ACC = 16; XF = 160; WF = 176; XA = 72; WA = 144; DXA, DXB, DW = 78, 79, 80; VXM = 76
    ONES = 82
    CQ = 96
    CQA = 81
    RSA, RS = 84, 128
    STA = 86
    RLV, RLA = 157, 158
    VN = 92
    sRB, sCT, sKC, sXO, sWO, sSLOT, sCNT, sXM, sTG, sNH = 64, 65, 66, 67, 68, 69, 70, 71, 72, 73
    sTAB = 74
    sM0X = 80; sWO2 = 81; sKC0 = 82; sSIDE = 83; sI1 = 71; sI2 = 34; sSM = 35
    sRL = 84
    P1_MISC = 148 * 1024
    RL_SCR = 68 * 1024
    CQ_SCR = 128 * 1024
    DUMMY = 159 * 1024
    CPF_LINES = 8

    def p1_issue(self, pieces=(0, 1, 2, 3)):
        a = self.a
        if 0 in pieces:
            a(f"s_add_u32 m0, s{self.sM0X}, s{self.sSLOT}")
            a(f"s_add_u32 s{self.sKC}, s{self.sKC}, 1")
            self.dma(self.DXA, SRD_X, f"s{self.sXO}")
        if 1 in pieces:
            a(f"s_add_u32 m0, m0, s{self.sI1}")
            a(f"s_add_u32 s{self.sWO2}, s{self.sWO}, 15360")
            self.dma(self.DW, SRD_WQ, f"s{self.sWO}")
        if 2 in pieces:
            a(f"s_sub_u32 m0, m0, s{self.sI2}")
            a(f"s_add_u32 s{self.sWO}, s{self.sWO}, 245760")
            self.dma(self.DXB, SRD_X, f"s{self.sXO}")
        if 3 in pieces:
            a(f"s_add_u32 m0, m0, s{self.sI1}")
            a(f"s_add_u32 s{self.sXO}, s{self.sXO}, 128")
            self.dma(self.DW, SRD_WQ, f"s{self.sWO2}")
            a(f"s_cmp_eq_u32 s{self.sKC}, 10")
            a(f"s_cselect_b32 s{T0}, 1280, 0")
            a(f"s_cselect_b32 s{T1}, 2457600, 0")
            a(f"s_cselect_b32 s{self.sKC}, 0, s{self.sKC}")
            a(f"s_sub_u32 s{self.sXO}, s{self.sXO}, s{T0}")
            a(f"s_sub_u32 s{self.sWO}, s{self.sWO}, s{T1}")
            a(f"s_add_u32 s{self.sSLOT}, s{self.sSLOT}, 32768")
            a(f"s_and_b32 s{self.sSLOT}, s{self.sSLOT}, s{self.sSM}")

    def p1_setup_a(self):
        a = self.a
        a(f"s_lshr_b32 s{T0}, s{S_C}, 1")
        a(f"s_lshl_b32 s{T0}, s{T0}, 2")
        a(f"s_lshr_b32 s{T1}, s{S_J}, 3")
        a(f"s_add_u32 s{self.sRB}, s{T0}, s{T1}")
        a(f"s_and_b32 s{T0}, s{S_C}, 1")
        a(f"s_lshl_b32 s{T0}, s{T0}, 3")
        a(f"s_and_b32 s{T2}, s{S_J}, 7")
        a(f"s_add_u32 s{self.sCT}, s{T0}, s{T2}")
        a(f"s_lshl_b32 s{T1}, s{T1}, 1")
        a(f"s_add_u32 s{self.sKC}, s{T2}, s{T1}")
        a(f"s_bfe_u32 s{T0}, s{S_C}, 0x10001")
        a(f"s_and_b32 s{T1}, s{S_C}, 4")
        a(f"s_lshl_b32 s{T1}, s{T1}, 1")
        a(f"s_add_u32 s{T0}, s{T0}, s{T1}")
        a(f"s_add_u32 s{self.sKC}, s{self.sKC}, s{T0}")
        a(f"s_mul_i32 s{T0}, s{self.sKC}, 26")
        a(f"s_lshr_b32 s{T0}, s{T0}, 8")
        a(f"s_mul_i32 s{T0}, s{T0}, 10")
        a(f"s_sub_u32 s{self.sKC}, s{self.sKC}, s{T0}")
        a(f"s_mov_b32 s{self.sKC0}, s{self.sKC}")
        a(f"s_mul_i32 s{self.sXO}, s{self.sRB}, 163840")
        a(f"s_lshl_b32 s{T0}, s{self.sKC}, 7")
        a(f"s_add_u32 s{self.sXO}, s{self.sXO}, s{T0}")
        a(f"s_mul_i32 s{self.sWO}, s{self.sKC}, 245760")
        a(f"s_lshl_b32 s{T0}, s{self.sCT}, 8")
        a(f"s_add_u32 s{self.sWO}, s{self.sWO}, s{T0}")
        a(f"s_lshl_b32 s{self.sM0X}, s{S_W}, 11")
        a(f"s_mov_b32 s{self.sSLOT}, 0")
        a(f"s_mov_b64 s[{SRD_RL}:{SRD_RL+1}], 0")
        a(f"s_mov_b32 s{SRD_RL+2}, 0")
        a(f"s_mov_b32 s{SRD_RL+3}, 0x20000")
        a(f"v_mov_b32 v{self.RLV}, 0")
        a(f"s_movk_i32 s{self.sI1}, 16384")
        a(f"s_movk_i32 s{self.sI2}, 15360")
        a(f"s_mov_b32 s{self.sSM}, 0x1ffff")
        a("v_lshrrev_b32 v1, 3, v0")
        a("v_lshrrev_b32 v2, 4, v0")
        a("v_and_b32 v3, 7, v0")
        a("v_xor_b32 v3, v3, v2")
        a(f"s_lshl_b32 s{T0}, s{S_W}, 4")
        a(f"v_add_u32 v4, s{T0}, v1")
        a("v_mul_u32_u24 v4, 1280, v4")
        a(f"v_lshl_add_u32 v{self.DXA}, v3, 4, v4")
        a(f"v_xor_b32 v{self.DXB}, 64, v{self.DXA}")
        a(f"v_add_u32 v{self.DXB}, 10240, v{self.DXB}")
        a("v_lshlrev_b32 v3, 2, v2")
        a("v_and_b32 v4, 15, v0")
        a("v_xor_b32 v3, v3, v4")
        a(f"s_lshl_b32 s{T0}, s{S_W}, 3")
        a(f"v_add_u32 v4, s{T0}, v2")
        a("v_mul_u32_u24 v4, 3840, v4")
        a(f"v_lshl_add_u32 v{self.DW}, v3, 4, v4")
        a("s_waitcnt lgkmcnt(0)")
        self.srd(SRD_X, S_PTR + 0, 2048 * 1280)
        self.srd(SRD_WQ, S_PTR + 2, 640 * 3840)
        a(f"s_cmp_eq_u32 s{self.sCT}, 15")
        a("s_cbranch_scc1 L_p1_noissue")
        self.p1_issue()
        self.p1_issue((0,))
        a.label("L_p1_noissue")
        self.stamp(1)
        self.srd(SRD_WS, S_PTR + 16, WS_SIZE + ((1 << 20) if self.o.get("stamps") else 0))
        self.srd(SRD_OUT, S_PTR + 12, 2048 * 1280)
        self.srd(SRD_DBG, S_PTR + 14, 256)
        if self.o.get("cpf", "1") == "1":
            Lc = a.newlabel("cpf")
            a(f"s_cmp_lg_u32 s{S_W}, 7")
            a(f"s_cbranch_scc1 {Lc}")
            a(f"s_getpc_b64 s[{T4}:{T5}]")
            a.label("L_pc_here")
            a(f"s_mul_i32 s{T0}, s{S_J}, {self.CPF_LINES*128}")
            a(f"s_sub_u32 s{T0}, s{T0}, L_pc_here-{NAME}_kernel")
            a(f"v_min_u32 v3, {self.CPF_LINES-1}, v0")
            a(f"v_lshl_add_u32 v3, v3, 7, s{T0}")
            a("v_ashrrev_i32 v5, 31, v3")
            a(f"v_mov_b32 v6, s{T5}")
            a(f"v_add_co_u32 v4, vcc, s{T4}, v3")
            a("s_nop 1")
            a("v_addc_co_u32 v5, vcc, v5, v6, vcc")
            a("global_load_dword v254, v[4:5], off")
            a.label(Lc)
        a(f"s_or_b32 s{T0}, s{S_G}, s{S_W}")
        a("s_cbranch_scc1 L_nonce_done")
        a("v_mov_b32 v3, 0")
        a(f"v_mov_b32 v4, s{S_NONCE}")
        a(f"v_mov_b32 v5, s{S_NONCE+1}")
        a("s_mov_b64 exec, 1")
        a(f"buffer_store_dwordx2 v[4:5], v3, s[{SRD_DBG}:{SRD_DBG+3}], 0 offen sc1")
        a("s_mov_b64 exec, -1")
        a.label("L_nonce_done")

    def relayout_setup(self):
        a = self.a
        R = self.sRL
        u = a.newlabel("u")
        sID, sKS, sCB, sST, sA, sB, sCc, sD = T0, T1, T2, T3, 93, 94, 95, 96
        sBase, sSl, sKsS = 97, 98, 99
        a(f"s_mul_i32 s{sID}, s{S_G}, 5")
        a(f"s_add_u32 s{sID}, s{sID}, s{S_W}")
        a(f"s_sub_u32 s{sID}, s{sID}, 1")
        a(f"s_min_u32 s{sID}, s{sID}, 1279")
        a(f"s_mov_b32 s{sA}, 16")
        a(f"s_mov_b32 s{sB}, 8")
        a(f"s_mov_b32 s{sCc}, 4")
        a(f"s_mov_b32 s{SRD_RL+3}, 0x20000")
        a(f"s_mov_b32 s{R+8}, -1")
        a(f"s_cmp_lt_u32 s{sID}, 200")
        a(f"s_cbranch_scc1 L_rl_wo{u}")
        a(f"s_cmp_lt_u32 s{sID}, 740")
        a(f"s_cbranch_scc1 L_rl_w1{u}")
        a(f"s_sub_u32 s{sID}, s{sID}, 740")
        a(f"s_mul_i32 s{sKS}, s{sID}, 6554")
        a(f"s_lshr_b32 s{sKS}, s{sKS}, 16")
        a(f"s_mul_i32 s{sCB}, s{sKS}, 10")
        a(f"s_sub_u32 s{sCB}, s{sID}, s{sCB}")
        a(f"s_lshl_b32 s{sD}, s{sKS}, 5")
        a(f"s_mov_b32 s{SRD_RL}, s{S_PTR+10}")
        a(f"s_and_b32 s{SRD_RL+1}, s{S_PTR+11}, 0xffff")
        a(f"s_mov_b32 s{SRD_RL+2}, {1728*1280}")
        a(f"s_mov_b32 s{sBase}, {WS_W2}")
        a(f"s_mov_b32 s{sSl}, {54*5120}")
        a(f"s_add_u32 s{T4}, s{sKS}, 3")
        a(f"s_cmp_ge_u32 s{sKS}, 24")
        a(f"s_cselect_b32 s{T4}, s{T4}, s{sKS}")
        a(f"s_sub_u32 s{T5}, s{sKS}, 24")
        a(f"s_cmp_ge_u32 s{sKS}, 48")
        a(f"s_cselect_b32 s{T4}, s{T5}, s{T4}")
        a(f"s_cmp_ge_u32 s{sKS}, 51")
        a(f"s_cselect_b32 s{sKS}, s{sKS}, s{T4}")
        a(f"s_branch L_rl_n640{u}")
        a.label(f"L_rl_wo{u}")
        a(f"s_mul_i32 s{sKS}, s{sID}, 6554")
        a(f"s_lshr_b32 s{sKS}, s{sKS}, 16")
        a(f"s_mul_i32 s{sCB}, s{sKS}, 10")
        a(f"s_sub_u32 s{sCB}, s{sID}, s{sCB}")
        a(f"s_mul_i32 s{sD}, s{sKS}, 40")
        a(f"s_mul_i32 s{sST}, s{sKS}, 160")
        a(f"s_sub_u32 s{sST}, s{sST}, {160*16-16}")
        a(f"s_cmp_lt_u32 s{sKS}, 16")
        a(f"s_cselect_b32 s{sD}, s{sD}, s{sST}")
        a(f"s_cselect_b32 s{sA}, 8, 20")
        a(f"s_cselect_b32 s{sB}, 20, 0x50")
        a(f"s_cselect_b32 s{sCc}, 4, 40")
        a(f"s_mov_b32 s{SRD_RL}, s{S_PTR+4}")
        a(f"s_and_b32 s{SRD_RL+1}, s{S_PTR+5}, 0xffff")
        a(f"s_mov_b32 s{SRD_RL+2}, {640*1280}")
        a(f"s_mov_b32 s{sBase}, {WS_WO}")
        a(f"s_mov_b32 s{sSl}, {20*5120}")
        a(f"s_add_u32 s{T4}, s{sKS}, 2")
        a(f"s_cmp_ge_u32 s{sKS}, 8")
        a(f"s_cselect_b32 s{T4}, s{T4}, s{sKS}")
        a(f"s_sub_u32 s{T5}, s{sKS}, 8")
        a(f"s_cmp_ge_u32 s{sKS}, 16")
        a(f"s_cselect_b32 s{T4}, s{T5}, s{T4}")
        a(f"s_cmp_ge_u32 s{sKS}, 18")
        a(f"s_cselect_b32 s{sKS}, s{sKS}, s{T4}")
        a.label(f"L_rl_n640{u}")
        a(f"s_mov_b32 s{sST}, 1280")
        a(f"s_mul_i32 s{sKsS}, s{sKS}, 5120")
        a(f"s_add_u32 s{sBase}, s{sBase}, s{sKsS}")
        for t in range(4):
            a(f"s_lshl_b32 s{T4}, s{sCB}, 2")
            a(f"s_add_u32 s{T4}, s{T4}, {t}")
            a(f"s_mul_i32 s{T5}, s{T4}, 52")
            a(f"s_lshr_b32 s{T5}, s{T5}, 8")
            a(f"s_mul_i32 s{R+4+t}, s{T5}, s{sSl}")
            a(f"s_mul_i32 s{T5}, s{T5}, 5")
            a(f"s_sub_u32 s{T4}, s{T4}, s{T5}")
            a(f"s_lshl_b32 s{T4}, s{T4}, 10")
            a(f"s_add_u32 s{R+4+t}, s{R+4+t}, s{T4}")
            a(f"s_add_u32 s{R+4+t}, s{R+4+t}, s{sBase}")
        a(f"s_branch L_rl_common{u}")
        a.label(f"L_rl_w1{u}")
        a(f"s_sub_u32 s{sID}, s{sID}, 200")
        a(f"s_mul_i32 s{sKS}, s{sID}, 2428")
        a(f"s_lshr_b32 s{sKS}, s{sKS}, 16")
        a(f"s_mul_i32 s{sCB}, s{sKS}, 27")
        a(f"s_sub_u32 s{sCB}, s{sID}, s{sCB}")
        a(f"s_lshr_b32 s{T4}, s{sKS}, 1")
        a(f"s_mul_i32 s{T4}, s{T4}, 0x50")
        a(f"s_and_b32 s{T5}, s{sKS}, 1")
        a(f"s_lshl_b32 s{T5}, s{T5}, 5")
        a(f"s_add_u32 s{sD}, s{T4}, s{T5}")
        a(f"s_mul_i32 s{T4}, s{sKS}, 160")
        a(f"s_sub_u32 s{T4}, s{T4}, {160*16-64}")
        a(f"s_cmp_lt_u32 s{sKS}, 16")
        a(f"s_cselect_b32 s{sD}, s{sD}, s{T4}")
        a(f"s_cselect_b32 s{sA}, 16, 0x50")
        a(f"s_mov_b32 s{SRD_RL}, s{S_PTR+8}")
        a(f"s_and_b32 s{SRD_RL+1}, s{S_PTR+9}, 0xffff")
        a(f"s_mov_b32 s{SRD_RL+2}, {640*3456}")
        a(f"s_mov_b32 s{sST}, 3456")
        a(f"s_mul_i32 s{sKsS}, s{sKS}, 7168")
        a(f"s_add_u32 s{sBase}, s{sKsS}, {WS_W1}")
        a(f"s_mul_i32 s{R+8}, s{sKS}, {1728*4}")
        a(f"s_lshl_b32 s{T4}, s{sCB}, 8")
        a(f"s_add_u32 s{R+8}, s{R+8}, s{T4}")
        a(f"s_add_u32 s{R+8}, s{R+8}, {WS_CS1}")
        for t in range(4):
            a(f"s_lshl_b32 s{T4}, s{sCB}, 2")
            a(f"s_add_u32 s{T4}, s{T4}, {t}")
            a(f"s_mul_i32 s{T5}, s{T4}, 43")
            a(f"s_lshr_b32 s{T5}, s{T5}, 8")
            a(f"s_mul_i32 s{sSl}, s{T5}, 6")
            a(f"s_sub_u32 s{sSl}, s{T4}, s{sSl}")
            a(f"s_sub_u32 s{sKsS}, s{T4}, 96")
            a(f"s_cmp_lt_u32 s{T4}, 96")
            a(f"s_cselect_b32 s{T5}, s{T5}, s{sKsS}")
            a(f"s_cselect_b32 s{sSl}, s{sSl}, 6")
            a(f"s_mul_i32 s{R+4+t}, s{T5}, {20*7168}")
            a(f"s_lshl_b32 s{sSl}, s{sSl}, 10")
            a(f"s_add_u32 s{R+4+t}, s{R+4+t}, s{sSl}")
            a(f"s_add_u32 s{R+4+t}, s{R+4+t}, s{sBase}")
        a.label(f"L_rl_common{u}")
        a(f"s_mul_i32 s{sD}, s{sD}, s{sST}")
        a(f"s_lshl_b32 s{T4}, s{sCB}, 7")
        a(f"s_add_u32 s{R}, s{sD}, s{T4}")
        a(f"s_mul_i32 s{sA}, s{sA}, s{sST}")
        a(f"s_mul_i32 s{sB}, s{sB}, s{sST}")
        a(f"s_add_u32 s{R+1}, s{R}, s{sB}")
        a(f"s_add_u32 s{R+2}, s{R}, s{sA}")
        a(f"s_add_u32 s{R+3}, s{R+2}, s{sB}")
        a("v_lshrrev_b32 v1, 5, v0")
        a(f"v_mul_u32_u24 v1, s{sCc}, v1")
        a("v_bfe_u32 v2, v0, 3, 2")
        a("v_add_u32 v1, v1, v2")
        a(f"v_mul_u32_u24 v1, s{sST}, v1")
        a("v_and_b32 v2, 7, v0")
        a(f"v_lshl_add_u32 v{self.RLV}, v2, 4, v1")
        a("v_lshrrev_b32 v1, 2, v0")
        a("v_lshlrev_b32 v1, 7, v1")
        a("v_and_b32 v2, 3, v0")
        a("v_lshl_add_u32 v1, v2, 3, v1")
        a(f"s_lshl_b32 s{T4}, s{S_W}, 12")
        a(f"s_add_u32 s{T4}, s{T4}, {self.RL_SCR-4096}")
        a(f"v_add_u32 v{self.RLA}, s{T4}, v1")

    def relayout_issue(self, drain_older=False):
        a = self.a
        L = a.newlabel("rlsk")
        a(f"s_sub_u32 s{T0}, s{S_W}, 1")
        a(f"s_cmp_ge_u32 s{T0}, {0 if self.o.get('norl') else 5}")
        a(f"s_cbranch_scc1 {L}")
        a(f"s_lshl_b32 s{T0}, s{S_W}, 12")
        a(f"s_add_u32 m0, s{T0}, {self.RL_SCR-4096}")
        for i in range(4):
            if i: a("s_add_u32 m0, m0, 1024")
            a("s_nop 0")
            self.dma(self.RLV, SRD_RL, f"s{self.sRL+i}")
        if drain_older:
            L2 = a.newlabel("rlw")
            a("s_waitcnt vmcnt(4)")
            a(f"s_branch {L2}")
            a.label(L)
            a("s_waitcnt vmcnt(0)")
            a.label(L2)
        else:
            a.label(L)

    def relayout_finish(self, younger=None):
        a = self.a
        L = a.newlabel("rlsk"); F = 168; t = 184
        a(f"s_sub_u32 s{T0}, s{S_W}, 1")
        a(f"s_cmp_ge_u32 s{T0}, 5")
        Lo = a.newlabel("rlo")
        a(f"s_cbranch_scc1 {Lo if younger is not None else L}")
        if younger is not None: a(f"s_waitcnt vmcnt({younger})")
        for q in range(4):
            for rd in range(2):
                a(f"ds_read_b64_tr_b16 v[{F+4*q+2*rd}:{F+4*q+2*rd+1}], v{self.RLA} offset:{rd*2048+q*32}")
        a(f"v_lshlrev_b32 v{t}, 4, v0")
        for q in range(4):
            a(f"s_waitcnt lgkmcnt({6-2*q})")
            a(f"buffer_store_dwordx4 v[{F+4*q}:{F+4*q+3}], v{t}, s[{SRD_WS}:{SRD_WS+3}], s{self.sRL+4+q} offen sc1")
        if younger is not None: a("s_waitcnt vmcnt(4)")
        a(f"s_cmp_eq_u32 s{self.sRL+8}, -1")
        a(f"s_cbranch_scc1 {L}")
        for q in range(4): a(f"v_mov_b32 v{t+2+q}, 0")
        a(f"v_mov_b32 v{t+6}, 0x3f803f80")
        for k in range(4):
            for q in range(4): a(f"v_dot2_f32_bf16 v{t+2+q}, v{F+4*q+k}, v{t+6}, v{t+2+q}")
        a(f"v_lshlrev_b32 v{t+1}, 2, v0")
        a("s_nop 1")
        a(f"v_permlane16_swap_b32 v{t+2}, v{t+3}")
        a(f"v_permlane16_swap_b32 v{t+4}, v{t+5}")
        a("s_nop 0")
        a(f"v_add_f32 v{t+2}, v{t+2}, v{t+3}")
        a(f"v_add_f32 v{t+4}, v{t+4}, v{t+5}")
        a("s_nop 1")
        a(f"v_permlane32_swap_b32 v{t+2}, v{t+4}")
        a("s_nop 0")
        a(f"v_add_f32 v{t+2}, v{t+2}, v{t+4}")
        a(f"buffer_store_dword v{t+2}, v{t+1}, s[{SRD_WS}:{SRD_WS+3}], s{self.sRL+8} offen sc1")
        if younger is not None:
            a(f"s_branch {L}")
            a.label(Lo)
            a("s_waitcnt vmcnt(0)")
        a.label(L)

    def p1_setup_b(self):
        a = self.a
        a(f"s_and_b32 s{self.sTG}, s{S_W}, 3")
        a(f"s_lshr_b32 s{self.sNH}, s{S_W}, 2")
        a(f"s_cmp_ge_u32 s{self.sCT}, 5")
        a(f"s_cselect_b32 s{T0}, 5, 0")
        a(f"s_sub_u32 s{T0}, s{self.sCT}, s{T0}")
        a(f"s_lshl_b32 s{T0}, s{T0}, 1")
        a(f"s_add_u32 s{T0}, s{T0}, s{self.sNH}")
        for idx in range(10):
            a(f"s_cmp_eq_u32 s{T0}, {idx}")
            a(f"s_cbranch_scc1 L_tab{idx}")
        a(f"s_mul_i32 s{T1}, s{self.sNH}, 0x10101010")
        for k in range(4): a(f"s_add_u32 s{self.sTAB+k}, s{T1}, 0x%08x" % (0x03020100 + 0x04040404 * k))
        a(f"s_mov_b32 s{self.sTAB+4}, 0")
        a(f"s_mov_b32 s{self.sTAB+5}, 0")
        a("s_branch L_tabdone")
        for idx in range(10):
            a.label(f"L_tab{idx}")
            for k, d in enumerate(p1_table(idx // 2, idx % 2)): a(f"s_mov_b32 s{self.sTAB+k}, 0x%08x" % d)
            if idx < 9: a("s_branch L_tabdone")
        a.label("L_tabdone")
        a("v_and_b32 v1, 31, v0")
        a(f"s_lshl_b32 s{T0}, s{self.sTG}, 5")
        a(f"v_add_u32 v2, s{T0}, v1")
        a("v_bfe_u32 v3, v2, 1, 3")
        a("v_lshrrev_b32 v4, 5, v0")
        a("v_xor_b32 v3, v3, v4")
        a("v_lshlrev_b32 v3, 4, v3")
        a(f"v_lshl_add_u32 v{self.XA}, v2, 7, v3")
        a(f"s_xor_b32 s{T3}, s{self.sTG}, s{self.sNH}")
        a(f"s_lshl_b32 s{T0}, s{T3}, 5")
        a(f"v_xor_b32 v{self.XA}, s{T0}, v{self.XA}")
        for ks in range(1, 4): a(f"v_xor_b32 v{self.XA+ks}, {ks<<5}, v{self.XA}")
        a("v_bfe_u32 v5, v0, 2, 2")
        a("v_lshl_add_u32 v6, v4, 3, v5")
        a("v_lshlrev_b32 v6, 8, v6")
        a("v_and_b32 v7, 3, v0")
        a("v_lshlrev_b32 v7, 3, v7")
        a("v_and_b32 v8, 16, v0")
        a("v_cmp_ne_u32 vcc, 0, v8")
        for i in range(2):
            a(f"v_mov_b32 v8, s{self.sTAB+2*i}")
            a(f"v_mov_b32 v9, s{self.sTAB+2*i+1}")
            a("v_cndmask_b32 v8, v8, v9, vcc")
            a("v_bfe_u32 v8, v8, v7, 8")
            a("v_lshlrev_b32 v8, 3, v8")
            a("v_lshlrev_b32 v9, 6, v5")
            a("v_xor_b32 v8, v8, v9")
            a(f"v_add_u32 v8, v6, v8")
            a(f"s_lshl_b32 s{T0}, s{T3}, 12")
            a(f"v_add_u32 v{self.WA+4*i}, s{T0}, v8")
            for j in range(1, 4): a(f"v_xor_b32 v{self.WA+4*i+j}, {j<<12}, v{self.WA+4*i}")
        a(f"s_lshl_b32 s{T0}, s{self.sRB}, 2")
        a(f"s_add_u32 s{T0}, s{T0}, s{self.sTG}")
        a(f"s_lshl_b32 s{T1}, s{T0}, 9")
        a(f"s_add_u32 s{T1}, s{T1}, {WS_RS}")
        a(f"v_lshl_add_u32 v{self.RSA}, v1, 4, s{T1}")
        a(f"s_cmp_ge_u32 s{self.sCT}, 10")
        a("s_cbranch_scc1 L_p1_vaddr")
        a(f"s_lshl_b32 s{T0}, s{T0}, 9")
        a(f"s_cmp_ge_u32 s{self.sCT}, 5")
        a(f"s_cselect_b32 s{T1}, {WS_K}, {WS_Q}")
        a(f"s_add_u32 s{T0}, s{T0}, s{T1}")
        a(f"v_lshl_add_u32 v2, v1, 4, s{T0}")
        a("v_lshlrev_b32 v3, 3, v4")
        a("v_add_u32 v5, 16, v3")
        for i in range(2):
            for qq in range(2):
                a(f"v_bfe_u32 v6, s{self.sTAB+4+i}, v{3 if qq == 0 else 5}, 8")
                a(f"v_lshl_add_u32 v{self.STA+2*i+qq}, v6, 15, v2")
        a("s_branch L_p1_addrdone")
        a.label("L_p1_vaddr")
        a(f"s_mul_i32 s{T0}, s{T0}, 1280")
        a(f"s_add_u32 s{T0}, s{T0}, {WS_V}")
        a(f"s_lshl_b32 s{T1}, s{self.sCT}, 7")
        a(f"s_lshl_b32 s{T2}, s{self.sNH}, 6")
        a(f"s_add_u32 s{T1}, s{T1}, s{T2}")
        a(f"s_sub_u32 s{T1}, s{T1}, 1280")
        a(f"v_mov_b32 v{self.STA+2}, 0")
        a(f"v_mov_b32 v{self.STA+3}, 0")
        a("v_mul_u32_u24 v3, 320, v4")
        a(f"v_add_u32 v3, s{T0}, v3")
        a(f"s_mov_b32 s{T2}, 81920")
        for i in range(2):
            a(f"v_add_u32 v5, s{T1}, v1")
            if i: a("v_add_u32 v5, 32, v5")
            a("v_mul_u32_u24 v6, 3277, v5")
            a("v_lshrrev_b32 v6, 16, v6")
            a("v_mul_u32_u24 v7, 20, v6")
            a("v_sub_u32 v5, v5, v7")
            a("v_lshl_add_u32 v5, v5, 4, v3")
            a(f"v_mad_u32_u24 v{self.STA+i}, v6, s{T2}, v5")
        a.label("L_p1_addrdone")
        for r in range(32): a(f"v_mov_b32 v{self.ACC+r}, 0")
        a(f"s_mul_i32 s{T0}, s{self.sCT}, 10240")
        a(f"s_lshl_b32 s{T1}, s{self.sNH}, 9")
        a(f"s_add_u32 s{T0}, s{T0}, s{T1}")
        a(f"s_add_u32 s{T0}, s{T0}, {WS_CQ}")
        a(f"v_lshl_add_u32 v{self.CQA}, v0, 3, s{T0}")
        a(f"s_mov_b32 s{self.sSIDE}, 0x81")
        a(f"v_mov_b32 v{self.VXM}, 0x8000")
        a(f"s_mov_b32 s{self.sCNT}, 0")

    def p1_loop(self, vmode):
        a = self.a
        tag = "v" if vmode else "q"
        a(f"s_cmp_lg_u32 s{self.sNH}, 0")
        a(f"s_cbranch_scc1 L_p1_B{tag}")
        self.p1_loop1(vmode, 0)
        a(f"s_branch L_p1_E{tag}")
        a.label(f"L_p1_B{tag}")
        self.p1_loop1(vmode, 1)
        a.label(f"L_p1_E{tag}")

    def p1_loop1(self, vmode, B):
        a = self.a
        L = a.newlabel("p1loop")
        pos = self.o.get("barB" if B else "barA", "1" if B else "0")
        def reads(ks):
            if self.o.get("nolds"): return
            a(f"ds_read_b128 v[{self.XF+4*ks}:{self.XF+4*ks+3}], v{self.XA+ks}")
            for i in range(2):
                for rd in range(2):
                    d = self.WF + 8 * ks + 4 * i + 2 * rd
                    a(f"ds_read_b64_tr_b16 v[{d}:{d+1}], v{self.WA+4*i+ks} offset:{16384+rd*1024}")
        def xors(ks):
            for r in (self.XA + ks, self.WA + ks, self.WA + 4 + ks): a(f"v_xor_b32 v{r}, v{self.VXM}, v{r}")
            if ks == 3: a(f"v_xor_b32 v{self.VXM}, 0x10000, v{self.VXM}")
        def bar():
            a("s_waitcnt vmcnt(4)")
            if not self.o.get("nobar"): a("s_barrier")
            if self.o.get("its") == "1": self.stamp_dyn(54, self.sCNT)
        def mf(ks, i):
            x = vr(self.XF + 4 * ks, 4); wv = vr(self.WF + 8 * ks + 4 * i, 4); acc = vr(self.ACC + 16 * i, 16)
            if self.o.get("nomfma"): pass
            elif vmode: a(f"v_mfma_f32_32x32x16_bf16 {acc}, {x}, {wv}, {acc}")
            else: a(f"v_mfma_f32_32x32x16_bf16 {acc}, {wv}, {x}, {acc}")
        def comp(ks):
            n = (ks + 2) % 4
            if ks == 2 and pos == "0": bar()
            a("s_waitcnt lgkmcnt(5)")
            mf(ks, 0)
            if ks == 2 and pos == "1": bar()
            if ks == 2 and pos == "2":
                mf(ks, 1); bar(); reads(n)
            else:
                reads(n); mf(ks, 1)
            xors(n)
            self.p1_issue((n,))
            if n == 3:
                Lp = a.newlabel("pre"); Lpb = a.newlabel("preb")
                self._pre = (Lp, Lpb)
                a(f"s_cmp_ge_u32 s{self.sCNT}, 7")
                a(f"s_cbranch_scc1 {Lp}")
                a.label(Lpb)
        a("s_waitcnt vmcnt(7)")
        a("s_barrier")
        self.stamp(3)
        reads(0); reads(1); xors(0); xors(1)
        a("v_mov_b32 v6, 0x3f803f80")
        a("v_mov_b32 v2, 0")
        a("v_mov_b32 v3, 0")
        a(f"s_lshl_b32 s{T0}, s{self.sNH}, 8")
        a(f"s_lshl_b32 s{T1}, s{self.sTG}, 9")
        a(f"s_add_u32 s{T0}, s{T0}, {self.P1_MISC}")
        a(f"s_add_u32 s{T1}, s{T1}, s{T0}")
        a(f"v_lshl_add_u32 v4, v0, 2, s{T1}")
        a(f"v_lshl_add_u32 v95, v0, 2, s{T0}")
        a("s_waitcnt lgkmcnt(5)")
        for k in range(4):
            for i in range(2): a(f"v_dot2_f32_bf16 v{2+i}, v{self.WF+4*i+k}, v6, v{2+i}")
        a("s_nop 2")
        a("v_permlane32_swap_b32 v2, v3")
        a("s_nop 0")
        a("v_add_f32 v2, v2, v3")
        a("ds_write_b32 v4, v2")
        a("s_waitcnt lgkmcnt(0)")
        a.align(6)
        a.label(L)
        comp(0); comp(1); comp(2)
        Lr = a.newlabel("back"); Ls = a.newlabel("side")
        a(f"s_bitcmp1_b32 s{self.sSIDE}, s{self.sCNT}")
        a(f"s_cbranch_scc1 {Ls}")
        a.label(Lr)
        comp(3)
        a(f"s_add_u32 s{self.sCNT}, s{self.sCNT}, 1")
        a(f"s_cmp_lt_u32 s{self.sCNT}, 10")
        a(f"s_cbranch_scc1 {L}")
        Le = a.newlabel("lend"); L8 = a.newlabel("side8")
        a(f"s_branch {Le}")
        a.label(Ls)
        a(f"s_cmp_lg_u32 s{self.sCNT}, 0")
        a(f"s_cbranch_scc1 {L8}")
        self.nonce_get()
        a(f"s_cmp_lg_u32 s{self.sTG}, 0")
        a(f"s_cbranch_scc1 {Lr}")
        for k in range(4): a(f"ds_read_b32 v{2+k}, v95 offset:{512*k}")
        a(f"s_lshl_b32 s{T0}, s{self.sKC0}, 10")
        a("s_waitcnt lgkmcnt(0)")
        a("v_add_f32 v2, v2, v3")
        a("v_add_f32 v4, v4, v5")
        a(f"v_mov_b32 v3, s{S_NONCE}")
        a("v_add_f32 v2, v2, v4")
        a(f"buffer_store_dwordx2 v[2:3], v{self.CQA}, s[{SRD_WS}:{SRD_WS+3}], s{T0} offen sc1")
        a(f"s_branch {Lr}")
        a.label(L8)
        a(f"buffer_load_dwordx4 v[{self.RS}:{self.RS+3}], v{self.RSA}, s[{SRD_WS}:{SRD_WS+3}], 0 offen sc1")
        a(f"s_mov_b32 s{T2}, m0")
        a(f"s_mul_i32 s{T0}, s{self.sCT}, 10240")
        a(f"s_lshl_b32 s{T1}, s{S_W}, 10")
        a(f"s_add_u32 s{T0}, s{T0}, s{T1}")
        a(f"s_add_u32 s{T0}, s{T0}, {WS_CQ}")
        a(f"s_add_u32 m0, s{T1}, {self.CQ_SCR}")
        a("v_lshlrev_b32 v1, 4, v0")
        self.dma(1, SRD_WS, f"s{T0}", "sc1")
        a(f"s_add_u32 s{T0}, s{T0}, 8192")
        a("s_add_u32 m0, m0, 8192")
        a(f"s_cmp_ge_u32 s{S_W}, 2")
        a(f"s_cselect_b32 s{T0}, 0x7f000000, s{T0}")
        self.dma(1, SRD_WS, f"s{T0}", "sc1")
        a(f"s_mov_b32 m0, s{T2}")
        a(f"s_branch {Lr}")
        Lp, Lpb = self._pre
        a.label(Lp)
        a(f"s_mov_b32 s{self.sXO}, 0x7f000000")
        a(f"s_mov_b32 s{self.sWO}, 0x7f000000")
        a(f"s_mov_b32 s{self.sM0X}, {self.DUMMY}")
        a(f"s_mov_b32 s{self.sI1}, 0")
        a(f"s_mov_b32 s{self.sI2}, 0")
        a(f"s_mov_b32 s{self.sSM}, 0")
        a(f"s_mov_b32 s{self.sSLOT}, 0")
        a(f"s_branch {Lpb}")
        a.label(Le)

    def p1_gather(self):
        a = self.a
        a(f"buffer_load_dwordx4 v[{self.RS}:{self.RS+3}], v{self.RSA}, s[{SRD_WS}:{SRD_WS+3}], 0 offen sc1")
        a(f"s_movk_i32 s{T0}, 0x1000")
        a(f"s_movk_i32 s{T1}, 0x2000")
        for k in range(10):
            so = ("0", f"s{T0}", f"s{T1}")[k // 4]
            a(f"buffer_load_dwordx2 v[{self.CQ+2*k}:{self.CQ+2*k+1}], v{self.CQA}, s[{SRD_WS}:{SRD_WS+3}], {so} offen offset:{1024*(k%4)} sc1")

    def p1_epi_common(self):
        a = self.a
        self.stamp(4)
        a(f"s_lshl_b32 s{T2}, s{S_W}, 9")
        a(f"s_add_u32 s{T2}, s{T2}, {self.P1_MISC+4096}")
        a(f"v_lshl_add_u32 v6, v0, 2, s{T2}")
        a("v_and_b32 v5, 31, v0")
        L = a.newlabel("rs"); Ld = a.newlabel("rsd")
        a(f"s_mov_b32 s{S_SPIN}, 0")
        a(f"s_lshl_b32 s{T0}, s{self.sNH}, 9")
        a(f"s_add_u32 s{T0}, s{T0}, {self.CQ_SCR}")
        a(f"v_lshl_add_u32 v1, v0, 3, s{T0}")
        for k in range(10): a(f"ds_read_b64 v[{self.CQ+2*k}:{self.CQ+2*k+1}], v1 offset:{1024*k}")
        a("s_waitcnt lgkmcnt(0)")
        a.label(L)
        a(f"v_xor_b32 v2, s{S_NONCE}, v{self.RS+1}")
        a(f"v_xor_b32 v3, s{S_NONCE}, v{self.RS+3}")
        for k in range(0, 10, 2):
            a(f"v_xor_b32 v4, s{S_NONCE}, v{self.CQ+2*k+1}")
            a(f"v_xor_b32 v7, s{S_NONCE}, v{self.CQ+2*k+3}")
            a("v_or3_b32 v2, v2, v4, v7")
        a("v_or_b32 v2, v2, v3")
        a("v_cmp_ne_u32 vcc, 0, v2")
        a(f"s_add_u32 s{S_SPIN}, s{S_SPIN}, 1")
        a("s_or_b64 vcc, vcc, vcc")
        a(f"s_cbranch_scc0 {Ld}")
        a(f"s_cmp_ge_u32 s{S_SPIN}, {SPIN_MAX}")
        a(f"s_cbranch_scc1 {Ld}")
        self.p1_gather()
        a("s_waitcnt vmcnt(0)")
        a(f"s_branch {L}")
        a.label(Ld)
        Q = self.CQ
        a(f"v_add_f32 v12, v{Q}, v{Q+2}")
        a(f"v_add_f32 v13, v{Q+4}, v{Q+6}")
        a(f"v_add_f32 v14, v{Q+8}, v{Q+10}")
        a(f"v_add_f32 v15, v{Q+12}, v{Q+14}")
        a(f"v_add_f32 v2, v{Q+16}, v{Q+18}")
        a("v_add_f32 v12, v12, v13")
        a("v_add_f32 v14, v14, v15")
        a("v_add_f32 v12, v12, v2")
        a("v_add_f32 v12, v12, v14")

    def rowstats(self):
        a = self.a
        X = 100
        a("v_lshrrev_b32 v1, 3, v0")
        a(f"s_lshl_b32 s{T0}, s{S_W}, 4")
        a(f"s_lshl_b32 s{T1}, s{self.sRB}, 7")
        a(f"s_add_u32 s{T0}, s{T0}, s{T1}")
        a(f"v_add_u32 v1, s{T0}, v1")
        a("v_mul_u32_u24 v2, 1280, v1")
        a("v_and_b32 v3, 7, v0")
        a("v_lshl_add_u32 v2, v3, 4, v2")
        a(f"s_mov_b32 s{T0}, 10240")
        a("v_mov_b32 v3, 0")
        a(f"buffer_load_dwordx2 v[{self.VN}:{self.VN+1}], v3, s[{SRD_DBG}:{SRD_DBG+3}], 0 offen sc1")
        for k in range(10):
            for hh in range(2):
                r = X + 8 * k + 4 * hh
                a(f"buffer_load_dwordx4 v[{r}:{r+3}], v2, s[{SRD_X}:{SRD_X+3}], {'s%d' % T0 if hh else '0'} offen offset:{128*k}")
        for r in range(4, 8): a(f"v_mov_b32 v{r}, 0")
        a("v_mov_b32 v8, 0x3f803f80")
        for k in range(10):
            a(f"s_waitcnt vmcnt({18-2*k})")
            for e in range(4):
                for hh in range(2):
                    r = X + 8 * k + 4 * hh + e
                    a(f"v_dot2_f32_bf16 v{4+hh}, v{r}, v8, v{4+hh}")
                    a(f"v_dot2_f32_bf16 v{6+hh}, v{r}, v{r}, v{6+hh}")
        a("s_nop 2")
        for ctl in ("quad_perm:[1,0,3,2]", "quad_perm:[2,3,0,1]", "row_half_mirror"):
            for r in range(4, 8): a(f"v_add_f32_dpp v{r}, v{r}, v{r} {ctl} row_mask:0xf bank_mask:0xf")
        self.nonce_get()
        a("v_and_b32 v3, 1, v0")
        a("v_cmp_ne_u32 vcc, 0, v3")
        a("v_lshlrev_b32 v3, 3, v3")
        a("v_add_u32 v1, v1, v3")
        a("v_cndmask_b32 v4, v4, v5, vcc")
        a("v_cndmask_b32 v6, v6, v7, vcc")
        a(f"v_mul_f32 v4, 0x%08x, v4" % f2u(1.0 / 640))
        a("v_mul_f32 v5, v4, v4")
        a(f"v_mov_b32 v7, 0x%08x" % f2u(1.0 / 640))
        a("v_fma_f32 v5, v6, v7, -v5")
        a("v_max_f32 v5, 0, v5")
        a(f"v_add_f32 v5, 0x%08x, v5" % f2u(1e-5))
        a("v_rsq_f32 v8, v5")
        a(f"v_mov_b32 v9, s{S_NONCE}")
        a(f"v_mov_b32 v11, s{S_NONCE}")
        a("v_mul_f32 v10, v4, v8")
        a("v_lshlrev_b32 v1, 4, v1")
        a(f"s_mov_b32 s{T0}, {WS_RS}")
        a("s_mov_b32 exec_lo, 0x03030303")
        a("s_mov_b32 exec_hi, 0x03030303")
        a(f"buffer_store_dwordx4 v[8:11], v1, s[{SRD_WS}:{SRD_WS+3}], s{T0} offen sc1")
        a("s_mov_b64 exec, -1")

    def p1_epi_q(self):
        a = self.a
        self.p1_epi_common()
        qs = math.log2(math.e) / math.sqrt(20.0)
        a("ds_write_b32 v6, v12")
        a("v_lshrrev_b32 v1, 5, v0")
        a(f"v_lshl_add_u32 v1, v1, 4, s{T2}")
        C = 48
        for i in range(2):
            for q4 in range(4):
                a(f"ds_read_b128 v[{C+16*i+4*q4}:{C+16*i+4*q4+3}], v1 offset:{i*128+q4*32}")
        a(f"s_cmp_lt_u32 s{self.sCT}, 5")
        a(f"s_cselect_b32 s{T1}, 0x%08x, 1.0" % f2u(qs))
        a(f"v_mul_f32 v2, s{T1}, v{self.RS}")
        a(f"v_mul_f32 v3, s{T1}, v{self.RS+2}")
        for i in range(2):
            for qq in range(2):
                a(f"s_waitcnt lgkmcnt({6-4*i-2*qq})")
                b = 16 * i + 8 * qq
                for r in range(8): a(f"v_mul_f32 v{self.ACC+b+r}, v2, v{self.ACC+b+r}")
                for r in range(8): a(f"v_fma_f32 v{self.ACC+b+r}, -v3, v{C+b+r}, v{self.ACC+b+r}")
                o = 4 + 4 * ((2 * i + qq) % 2)
                for r in range(4): a(f"v_cvt_pk_bf16_f32 v{o+r}, v{self.ACC+b+2*r}, v{self.ACC+b+2*r+1}")
                a(f"buffer_store_dwordx4 v[{o}:{o+3}], v{self.STA+2*i+qq}, s[{SRD_WS}:{SRD_WS+3}], 0 offen sc1")

    def p1_epi_v(self):
        a = self.a
        self.p1_epi_common()
        a("v_mov_b32 v13, v12")
        a(f"v_lshl_add_u32 v6, v5, 2, s{T2}")
        a("v_lshrrev_b32 v1, 5, v0")
        a("v_permlane32_swap_b32 v12, v13")
        a(f"ds_write_b32 v6, v{self.RS}")
        a(f"ds_write_b32 v6, v{self.RS+2} offset:128")
        a(f"v_lshl_add_u32 v6, v1, 4, s{T2}")
        C = 48
        for q4 in range(4):
            a(f"ds_read_b128 v[{C+4*q4}:{C+4*q4+3}], v6 offset:{q4*32}")
            a(f"ds_read_b128 v[{C+16+4*q4}:{C+16+4*q4+3}], v6 offset:{128+q4*32}")
        for grp in range(2):
            a(f"s_waitcnt lgkmcnt({4-4*grp})")
            for i in range(2):
                b = 16 * i + 8 * grp
                for r in range(8): a(f"v_mul_f32 v{self.ACC+b+r}, v{C+8*grp+r}, v{self.ACC+b+r}")
                for r in range(8): a(f"v_fma_f32 v{self.ACC+b+r}, -v{C+16+8*grp+r}, v{12+i}, v{self.ACC+b+r}")
                o = 4 + 4 * i
                for r in range(4): a(f"v_cvt_pk_bf16_f32 v{o+r}, v{self.ACC+b+2*r}, v{self.ACC+b+2*r+1}")
                a(f"buffer_store_dwordx4 v[{o}:{o+3}], v{self.STA+i}, s[{SRD_WS}:{SRD_WS+3}], 0 offen offset:{640*grp} sc1")

    def nonce_get(self):
        a = self.a
        a(f"s_mov_b32 s{S_SPIN}, 0")
        Lc = a.newlabel("nchk"); Lo = a.newlabel("nok")
        a.label(Lc)
        a(f"v_readfirstlane_b32 s{S_NONCE}, v{self.VN}")
        a(f"v_readfirstlane_b32 s{S_NONCE+1}, v{self.VN+1}")
        a(f"s_add_u32 s{S_SPIN}, s{S_SPIN}, 1")
        a(f"s_or_b32 s{T0}, s{S_NONCE}, s{S_NONCE+1}")
        a(f"s_cbranch_scc1 {Lo}")
        a(f"s_cmp_ge_u32 s{S_SPIN}, {SPIN_MAX}")
        a(f"s_cbranch_scc1 {Lo}")
        a("v_mov_b32 v94, 0")
        a(f"buffer_load_dwordx2 v[{self.VN}:{self.VN+1}], v94, s[{SRD_DBG}:{SRD_DBG+3}], 0 offen sc1")
        a("s_waitcnt vmcnt(0)")
        a(f"s_branch {Lc}")
        a.label(Lo)

    def phase1(self):
        a = self.a
        self.p1_setup_a()
        a(f"s_cmp_eq_u32 s{self.sCT}, 15")
        a("s_cbranch_scc0 L_p1_go")
        self.rowstats()
        a("s_branch L_p1_done")
        a.label("L_p1_go")
        self.p1_setup_b()
        a("v_mov_b32 v1, 0")
        a(f"buffer_load_dwordx2 v[{self.VN}:{self.VN+1}], v1, s[{SRD_DBG}:{SRD_DBG+3}], 0 offen sc1")
        self.p1_issue((1, 2, 3))
        self.p1_issue((0, 1))
        self.stamp(2)
        a(f"s_cmp_ge_u32 s{self.sCT}, 10")
        a("s_cbranch_scc1 L_p1_v")
        self.p1_loop(False)
        self.p1_epi_q()
        a("s_branch L_p1_done")
        a.label("L_p1_v")
        self.p1_loop(True)
        self.p1_epi_v()
        a.label("L_p1_done")
        self.stamp(5)
        a("s_waitcnt vmcnt(0)")
        self.stamp(6)
        a("s_barrier")
        a(f"s_lshl_b32 s{T0}, s{self.sCT}, 4")
        a(f"s_add_u32 s{T0}, s{T0}, s{self.sRB}")
        a(f"s_mul_i32 s{T0}, s{T0}, {FSP}")
        a(f"s_add_u32 s{T0}, s{T0}, {FL_1}")
        self.flag_store(T0, 2)
        self.stamp(7)
        a(f"s_cmp_eq_u32 s{S_W}, 0")
        a("s_cbranch_scc1 L_no_rls")
        self.relayout_setup()
        a.label("L_no_rls")
        if self.stop < 2:
            self.relayout_issue()
            a("s_waitcnt vmcnt(0)")
            self.relayout_finish()

    def build(self):
        a = self.a
        self.entry()
        self.phase1()
        if self.stop >= 2:
            from phases import phase2, phase3, phase4, phase5
            phase2(self)
            if self.stop >= 3: phase3(self)
            if self.stop >= 4: phase4(self)
            if self.stop >= 5: phase5(self)
        a("s_waitcnt vmcnt(0)")
        if self.o.get("fixend"):
            a.label("L_fixend")
            a("s_memrealtime s[100:101]")
            a("s_waitcnt lgkmcnt(0)")
            a(f"s_sub_u32 s100, s100, s{S_NONCE}")
            a(f"s_cmp_lt_u32 s100, {int(self.o['fixend'])*100}")
            a("s_cbranch_scc1 L_fixend")
        self.stamp(31)
        self.stamp_flush()
        a.label("L_end")
        a("s_endpgm")
        a.lines.append(f".fill {self.pad}, 4, 0xbf810000")
        body = a.text()
        errs = check(body)
        if errs:
            sys.stderr.write("\n".join(errs[:40]) + "\n%d hazards\n" % len(errs))
            raise SystemExit(1)
        head = f"""; Fused preLN -> MHA -> residual -> preLN -> SiLU FFN -> residual, one persistent launch.
; @launch grid=(256,1,1) block=(512,1,1) lds={LDS_BYTES}
.amdgcn_target "amdgcn-amd-amdhsa--gfx950"
.text
.globl {NAME}_kernel
.p2align 8
.type {NAME}_kernel,@function
{NAME}_kernel:
"""
        tail = f""".section .rodata,"a"
.p2align 6
.amdhsa_kernel {NAME}_kernel
  .amdhsa_next_free_vgpr 256
  .amdhsa_next_free_sgpr 102
  .amdhsa_accum_offset 256
  .amdhsa_group_segment_fixed_size 0
  .amdhsa_kernarg_size 72
  .amdhsa_user_sgpr_count 2
  .amdhsa_user_sgpr_kernarg_segment_ptr 1
  .amdhsa_system_sgpr_workgroup_id_x 1
.end_amdhsa_kernel
"""
        return head + body + tail

if __name__ == "__main__":
    stop = int(sys.argv[2]) if len(sys.argv) > 2 else 99
    opts = dict(kv.split("=") for kv in sys.argv[3:])
    import subprocess
    def asm_size(path):
        r = subprocess.run(["clang", "-x", "assembler", "-target", "amdgcn-amd-amdhsa", "-mcpu=gfx950", "-c", path, "-o", "_chk.o"], capture_output=True, text=True)
        if r.returncode: print(r.stderr[:1500]); raise SystemExit(1)
        r = subprocess.run(["llvm-readelf", "-S", "_chk.o"], capture_output=True, text=True)
        return int([l for l in r.stdout.split("\n") if ".text" in l][0].split()[6], 16)
    open(sys.argv[1], "w").write(K(stop, opts).build())
    n = asm_size(sys.argv[1])
    k = K(stop, opts)
    k.CPF_LINES = (n + 4095) // 4096
    k.pad = (k.CPF_LINES * 4096 - n) // 4 + 16
    open(sys.argv[1], "w").write(k.build())
    print(sys.argv[1], "code bytes:", n, "with pad:", asm_size(sys.argv[1]))
```

```python
import math
from asmlib import vr, sr, f2u
from tables import *
from gen import *

Qm, Qr, NEG, S0, S1, P, O, Km, Kr, V = 4, 8, 12, 28, 60, 92, 108, 124, 132, 136
AK, AKR, AV, DKM, DLIN = 152, 153, 154, 197, 196
XR = 198
PL = 184
SLOT = 22528
WO_LDS = 3 * SLOT
sH, sQB, sST, sK0, sK1, sK2, sS1, sDS, sKD, sVM, sRET, sWOo, sWOl = 64, 65, 66, 67, 68, 69, 70, 71, 72, 74, 76, 78, 79
sW10, sB2, sM2, sL2, sSD = 73, 82, 83, 93, 94
sTA, sW1, sSM = 95, 96, 98
WS = f"s[{SRD_WS}:{SRD_WS+3}]"
M32 = "v_mfma_f32_32x32x16_bf16"
M2B = "v_mfma_f32_32x32x4_2b_bf16"
M16 = "v_mfma_f32_16x16x32_bf16"

def kv_piece(k, i):
    a = k.a
    if i == 0:
        a(f"s_add_u32 m0, s{sW10}, s{sDS}")
        a(f"s_and_b32 s{sB2}, s{sDS}, s{sM2}")
        k.dma(DKM, SRD_WS, f"s{sK0}", "sc1")
        a(f"s_add_u32 s{sK0}, s{sK0}, 4096")
    elif i == 1:
        a(f"s_add_u32 m0, s{sW10}, s{sDS}")
        a("s_add_u32 m0, m0, 8192")
        a(f"s_add_u32 s{sDS}, s{sDS}, {SLOT}")
        k.dma(DLIN, SRD_WS, f"s{sK1}", "sc1")
        a(f"s_add_u32 s{sK1}, s{sK1}, s{sS1}")
        a(f"s_cmp_eq_u32 s{sDS}, {3*SLOT}")
        a(f"s_cselect_b32 s{sDS}, 0, s{sDS}")
    else:
        a(f"s_add_u32 m0, s{sB2}, s{sL2}")
        a("s_nop 0")
        k.dma(DLIN, SRD_WS, f"s{sK2}", "sc1")
        a(f"s_add_u32 s{sK2}, s{sK2}, 10240")

def wo_piece(k):
    a = k.a
    a(f"s_min_u32 m0, s{sWOl}, {k.DUMMY}")
    a(f"s_add_u32 s{T0}, s{sWOo}, 5120")
    a(f"s_cmp_ge_u32 s{sWOl}, {WO_LDS + 45*1024}")
    a(f"s_cselect_b32 s{T0}, s{T0}, s{sWOo}")
    a(f"s_cmp_ge_u32 s{sWOl}, {WO_LDS + 90*1024}")
    a(f"s_cselect_b32 s{T0}, 0x7f000000, s{T0}")
    k.dma(DLIN, SRD_WS, f"s{T0}", "sc1")
    a(f"s_add_u32 s{sWOl}, s{sWOl}, 8192")
    a(f"s_add_u32 s{sWOo}, s{sWOo}, 8192")

def touch_piece(k):
    a = k.a
    a(f"buffer_load_dwordx4 v[160:163], v{DLIN}, {WS}, s{sTA} offen sc1")
    a(f"s_add_u32 s{sTA}, s{sTA}, 1024")

def SG(i): return 172 + 4 * i if i < 6 else 204 + 4 * (i - 6)

def stage_load(k, vq, tag, i, s_src, off, valid=8):
    a = k.a
    a(f"s_add_u32 s{T0}, s{s_src}, {off}")
    if valid < 8:
        a(f"s_cmp_ge_u32 s{S_W}, {valid}")
        a(f"s_cselect_b32 s{T0}, 0x7f000000, s{T0}")
    a(f"buffer_load_dwordx4 {vr(SG(i),4)}, v{DLIN}, {WS}, s{T0} offen sc1")
    if vq is not None: vq.add(tag)

def qkm(a, t, d, c): a(f"{M32} {vr(d+16*t,16)}, {vr(Km+4*t,4)}, {vr(Qm,4)}, {c}")
def qkr(a, d): a(f"{M2B} {vr(d,32)}, {vr(Kr,2)}, {vr(Qr,2)}, {vr(d,32)}")
def pv(a, j): a(f"{M32} {vr(O,16)}, {vr(V+4*j,4)}, {vr(P+4*j,4)}, {vr(O,16)}")

def att_stage(k, young):
    a = k.a
    o = k.o
    barit, barpos = [int(x) for x in o.get("abarY" if young else "abarO", "0.9" if young else "1.4").split(".")]
    plo = int(o.get("plo", 9))
    def exps(b, n0, n):
        for i in range(n0, n0 + n): a(f"v_exp_f32 v{b+i}, v{b+i}")
    def cvts(b, n0, n):
        for i in range(n0, n0 + n): a(f"v_cvt_pk_bf16_f32 v{P+i}, v{b+2*i}, v{b+2*i+1}")
    def rdV(js, it):
        a(f"s_mov_b64 exec, s[{sVM}:{sVM+1}]")
        for j in js: a(f"ds_read_b128 {vr(V+4*j,4)}, v{AV} offset:{12288+(4*it+j)*640}")
        a("s_mov_b64 exec, -1")
    for it in range(4):
        cur, nx = (S0, S1) if it % 2 == 0 else (S1, S0)
        i2 = (it + 2) % 4
        npos = [0]
        def mark():
            g = it * 11 + npos[0] - (barit * 11 + barpos)
            if g == 0:
                a("s_waitcnt vmcnt(0)")
                if not o.get("anobar"): a("s_barrier")
                if o.get("its") == "2": k.stamp_dyn(54, sST)
            if not o.get("anoside"):
                d0 = int(o.get("dY" if young else "dO", 5 if young else 1)); dd = int(o.get("dd", 3))
                if g == d0 - 1:
                    a(f"s_call_b64 s[{sRET}:{sRET+1}], L_att_side")
                if not o.get("notouch") and g in [d0 + (5 + 2 * i) * dd for i in range(int(o.get("ntouch", 2)))]: touch_piece(k)
                for i in range(3):
                    if g == d0 + (1 + i) * dd: kv_piece(k, i)
                for i in range(3):
                    if g == d0 + (4 + 2 * i) * dd: wo_piece(k)
            per = int(o.get("pper", 1))
            if young and it % per == 0 and npos[0] == 0: a("s_setprio 1")
            if young and it % per == per - 1 and npos[0] == plo: a("s_setprio 0")
            npos[0] += 1
        if it == 2:
            a(f"v_add_u32 v{AK}, s{sKD}, v{AK}")
            a(f"v_add_u32 v{AKR}, s{sKD}, v{AKR}")
        mark()
        a("s_waitcnt lgkmcnt(3)")
        qkm(a, 0, nx, vr(NEG, 16)); exps(cur, 0, 4); mark()
        pv(a, 3); exps(cur, 4, 4); rdV([3], it); mark()
        qkm(a, 1, nx, vr(NEG, 16))
        a(f"ds_read_b128 {vr(Km,4)}, v{AK} offset:{2048*i2}")
        cvts(cur, 0, 4); mark()
        exps(cur, 8, 4)
        a(f"ds_read_b128 {vr(Km+4,4)}, v{AK} offset:{2048*i2+1024}")
        mark()
        a("s_waitcnt lgkmcnt(5)")
        pv(a, 0); exps(cur, 12, 4); cvts(cur, 4, 2); mark()
        qkr(a, nx); cvts(cur, 6, 2)
        a(f"ds_read_b64 {vr(Kr,2)}, v{AKR} offset:{8192+1024*i2}")
        exps(cur, 16, 4); mark()
        exps(cur, 20, 4); cvts(cur, 8, 2); mark()
        a("s_waitcnt lgkmcnt(5)")
        pv(a, 1); cvts(cur, 10, 2); exps(cur, 24, 2); mark()
        exps(cur, 26, 3); mark()
        a("s_waitcnt lgkmcnt(4)")
        pv(a, 2); exps(cur, 29, 3); mark()
        cvts(cur, 12, 4)
        if it == 3:
            a(f"v_add_u32 v{AV}, s{sKD}, v{AV}")
            a(f"s_add_u32 s{sST}, s{sST}, 1")
            a(f"s_mul_i32 s{T0}, s{sST}, 0x56")
            a(f"s_lshr_b32 s{T0}, s{T0}, 8")
            a(f"s_mul_i32 s{T0}, s{T0}, 3")
            a(f"s_sub_u32 s{T0}, s{sST}, s{T0}")
            a(f"s_mov_b32 s{sKD}, {SLOT}")
            a(f"s_cmp_eq_u32 s{T0}, 2")
            a(f"s_cselect_b32 s{sKD}, {-2*SLOT & 0xffffffff}, s{sKD}")
        rdV([0, 1, 2], (it + 1) % 4)

def att_side(k):
    a = k.a
    a.label("L_att_side")
    for st in (5, 6, 7, 4, 0, 1, 2):
        a(f"s_cmp_eq_u32 s{sST}, {st}")
        a(f"s_cbranch_scc1 L_as_{st}")
    a(f"s_mov_b32 s{T0}, {FL_R}")
    a(f"buffer_load_dwordx4 v[{PL}:{PL+3}], v{DLIN}, {WS}, s{T0} offen sc1")
    a(f"buffer_load_dwordx4 v[{PL+4}:{PL+7}], v{DLIN}, {WS}, s{T0} offen offset:1024 sc1")
    a(f"s_setpc_b64 s[{sRET}:{sRET+1}]")
    a.label("L_as_2")
    a(f"s_lshl_b32 s{T0}, s{S_G}, 3")
    a(f"s_add_u32 s{T0}, s{T0}, {FL_R}")
    k.flag_store(T0, PL)
    a(f"s_setpc_b64 s[{sRET}:{sRET+1}]")
    a.label("L_as_0")
    k.relayout_issue()
    a(f"s_setpc_b64 s[{sRET}:{sRET+1}]")
    a.label("L_as_1")
    k.relayout_finish()
    a("s_nop 1")
    a(f"s_setpc_b64 s[{sRET}:{sRET+1}]")
    a.label("L_as_4")
    N = f"s[{S_NONCE}:{S_NONCE+1}]"
    a(f"v_cmp_ne_u64 vcc, {N}, v[{PL}:{PL+1}]")
    a(f"v_cmp_ne_u64 s[{S_M1}:{S_M1+1}], {N}, v[{PL+2}:{PL+3}]")
    a(f"s_and_b32 s{T1}, s{S_J}, 7")
    a(f"s_or_b64 s[{T4}:{T5}], vcc, s[{S_M1}:{S_M1+1}]")
    a(f"v_cmp_ne_u64 vcc, {N}, v[{PL+4}:{PL+5}]")
    a(f"v_cmp_ne_u64 s[{S_M1}:{S_M1+1}], {N}, v[{PL+6}:{PL+7}]")
    a(f"s_mul_i32 s{sSD}, s{T1}, {20*5120}")
    a(f"s_add_u32 s{sSD}, s{sSD}, {WS_WO}")
    a(f"s_add_u32 s{sWOo}, s{sSD}, s{sW10}")
    a(f"s_add_u32 s{sWOl}, s{sW10}, {WO_LDS}")
    a(f"s_lshl_b32 s{T2}, s{S_J}, 3")
    a(f"s_add_u32 s{T2}, s{T2}, s{S_W}")
    a(f"s_mul_i32 s{sTA}, s{T2}, 8640")
    a(f"s_add_u32 s{sTA}, s{sTA}, {WS_W2}")
    a(f"s_and_b32 s{T2}, s{S_J}, 15")
    a(f"s_mul_i32 s{sW1}, s{T2}, {20*7168}")
    a(f"s_add_u32 s{sW1}, s{sW1}, s{sW10}")
    a(f"s_add_u32 s{sW1}, s{sW1}, {WS_W1}")
    a(f"s_or_b64 s[{T4}:{T5}], s[{T4}:{T5}], vcc")
    a(f"s_or_b64 s[{T4}:{T5}], s[{T4}:{T5}], s[{S_M1}:{S_M1+1}]")
    a("s_cbranch_scc0 L_as_ret")
    a(f"s_mov_b32 s{T3}, {FL_R}")
    k.poll(256, T3, 8, PL, only_wave0=False)
    a.label("L_as_ret")
    grp = ((0, 4), (4, 9), (9, 14), (14, 18))
    for st in range(4, 8):
        if st > 4: a.label(f"L_as_{st}")
        if st == 6:
            for r in (sK0, sK1, sK2): a(f"s_mov_b32 s{r}, 0x7f000000")
        for i in range(*grp[st - 4]): stage_load(k, None, None, i, sW1, 8192 * i, 4 if i == 17 else 8)
        a(f"s_setpc_b64 s[{sRET}:{sRET+1}]")

def resid_x(k):
    a = k.a
    a(f"s_lshr_b32 s{T0}, s{S_J}, 3")
    a(f"s_lshl_b32 s{T1}, s{S_C}, 2")
    a(f"s_add_u32 s{T0}, s{T0}, s{T1}")
    a(f"s_lshl_b32 s{T0}, s{T0}, 2")
    a(f"s_and_b32 s{T1}, s{S_W}, 3")
    a(f"s_add_u32 s{T0}, s{T0}, s{T1}")
    a(f"s_mul_i32 s{T0}, s{T0}, {16*1280}")
    a(f"s_and_b32 s{T1}, s{S_J}, 7")
    a(f"s_mul_i32 s{T1}, s{T1}, 160")
    a(f"s_add_u32 s{T0}, s{T0}, s{T1}")
    a(f"s_lshr_b32 s{T1}, s{S_W}, 2")
    a(f"s_lshl_b32 s{T1}, s{T1}, 6")
    a(f"s_add_u32 s{T1}, s{T1}, s{T0}")
    a(f"v_lshrrev_b32 v{TM}, 2, v0")
    a(f"v_mul_u32_u24 v{TM}, 1280, v{TM}")
    a(f"v_and_b32 v{TM+1}, 3, v0")
    a(f"v_lshl_add_u32 v{TM}, v{TM+1}, 3, v{TM}")
    a(f"buffer_load_dwordx2 v[{XR}:{XR+1}], v{TM}, s[{SRD_X}:{SRD_X+3}], s{T1} offen")
    a(f"buffer_load_dwordx2 v[{XR+2}:{XR+3}], v{TM}, s[{SRD_X}:{SRD_X+3}], s{T1} offen offset:32")
    a(f"buffer_load_dwordx2 v[{XR+4}:{XR+5}], v{TM}, s[{SRD_X}:{SRD_X+3}], s{T0} offen offset:128")

def rowmax(a, b, n, dst, t):
    a(f"v_max3_f32 v{dst}, v{b}, v{b+1}, v{dst}")
    for i in range(2, n, 2): a(f"v_max3_f32 v{dst}, v{b+i}, v{b+i+1}, v{dst}")

def set_neg(a, m, t):
    a(f"v_mov_b32 v{t}, v{m}")
    a("s_nop 1")
    a(f"v_permlane32_swap_b32 v{m}, v{t}")
    a("s_nop 0")
    a(f"v_max_f32 v{m}, v{m}, v{t}")
    for r in range(16): a(f"v_sub_f32 v{NEG+r}, 0, v{m}")

def att_fallback(k):
    a = k.a
    FT = S1
    a.label("L_att_fb")
    sI, sA, sB, sC = T0, T1, T2, T3
    def init():
        a(f"s_lshl_b32 s{sA}, s{sH}, 16")
        a(f"s_add_u32 s{sA}, s{sA}, {WS_K}")
        a(f"s_lshr_b32 s{sB}, s{sH}, 1")
        a(f"s_lshl_b32 s{sB}, s{sB}, 15")
        a(f"s_add_u32 s{sB}, s{sB}, {WS_K + 64*32768}")
        a(f"s_mul_i32 s{sC}, s{sH}, 81920")
        a(f"s_add_u32 s{sC}, s{sC}, {WS_V}")
        a(f"s_mov_b32 s{sI}, 0")
    def ldk():
        a(f"buffer_load_dwordx4 {vr(Km,4)}, v{DKM}, {WS}, s{sA} offen sc1")
        a(f"buffer_load_dwordx4 {vr(Km+4,4)}, v{DKM}, {WS}, s{sA} offen offset:512 sc1")
        a(f"buffer_load_dwordx2 {vr(Kr,2)}, v{FT+1}, {WS}, s{sB} offen sc1")
    def step():
        a(f"s_add_u32 s{sA}, s{sA}, 1024")
        a(f"s_add_u32 s{sB}, s{sB}, 1024")
        a(f"s_add_u32 s{sC}, s{sC}, 2560")
        a(f"s_add_u32 s{sI}, s{sI}, 1")
        a(f"s_cmp_lt_u32 s{sI}, 32")
    a(f"s_and_b32 s{T0}, s{sH}, 1")
    a(f"s_lshl_b32 s{T0}, s{T0}, 3")
    a(f"v_add_u32 v{FT+1}, s{T0}, v{DLIN}")
    a(f"v_lshrrev_b32 v{FT+2}, 5, v0")
    a(f"v_mul_u32_u24 v{FT+2}, 20, v{FT+2}")
    a(f"v_and_b32 v{FT+3}, 31, v0")
    a(f"v_add_lshl_u32 v{FT+2}, v{FT+2}, v{FT+3}, 4")
    a(f"v_mov_b32 v{FT}, 0xff800000")
    init()
    a.label("L_fb_max")
    ldk()
    a("s_waitcnt vmcnt(0)")
    qkm(a, 0, S0, "0"); qkm(a, 1, S0, "0")
    a("s_nop 9")
    qkr(a, S0)
    a("s_nop 15"); a("s_nop 3")
    rowmax(a, S0, 32, FT, FT + 4)
    step()
    a("s_cbranch_scc1 L_fb_max")
    set_neg(a, FT, FT + 4)
    for r in range(16): a(f"v_mov_b32 v{O+r}, 0")
    init()
    a.label("L_fb_acc")
    ldk()
    a(f"s_mov_b64 exec, s[{sVM}:{sVM+1}]")
    for j in range(4): a(f"buffer_load_dwordx4 {vr(V+4*j,4)}, v{FT+2}, {WS}, s{sC} offen offset:{640*j} sc1")
    a("s_mov_b64 exec, -1")
    a("s_waitcnt vmcnt(0)")
    qkm(a, 0, S0, vr(NEG, 16)); qkm(a, 1, S0, vr(NEG, 16))
    a("s_nop 9")
    qkr(a, S0)
    a("s_nop 15"); a("s_nop 3")
    for i in range(32): a(f"v_exp_f32 v{S0+i}, v{S0+i}")
    a("s_nop 0")
    for i in range(16): a(f"v_cvt_pk_bf16_f32 v{P+i}, v{S0+2*i}, v{S0+2*i+1}")
    a("s_nop 1")
    for j in range(4): pv(a, j)
    step()
    a("s_cbranch_scc1 L_fb_acc")
    a("s_nop 11")
    a("s_branch L_att_norm")

def phase2(k):
    a = k.a
    a.c("================ phase 2: attention")
    a(f"s_lshl_b32 s{sH}, s{S_C}, 2")
    a(f"s_lshr_b32 s{T0}, s{S_J}, 3")
    a(f"s_add_u32 s{sH}, s{sH}, s{T0}")
    a(f"s_and_b32 s{sQB}, s{S_J}, 7")
    a(f"v_lshlrev_b32 v{DLIN}, 4, v0")
    a("v_lshrrev_b32 v1, 5, v0")
    a("v_and_b32 v2, 31, v0")
    a("v_lshlrev_b32 v3, 15, v1")
    a(f"v_lshl_add_u32 v{DKM}, v2, 4, v3")
    a(f"v_mov_b32 v{AK}, v{DLIN}")
    a(f"s_and_b32 s{T0}, s{sH}, 1")
    a(f"s_lshl_b32 s{T0}, s{T0}, 3")
    a(f"v_add_u32 v{AKR}, s{T0}, v{DLIN}")
    a("v_mul_u32_u24 v3, 20, v1")
    a(f"v_add_lshl_u32 v{AV}, v3, v2, 4")
    a(f"v_lshl_add_u32 v10, v2, 4, s{T0}")
    if k.o.get("dry", "1") == "1":
        a(f"s_cmp_lg_u32 s{S_W}, 7")
        a("s_cbranch_scc1 L_nodry")
        a(f"s_mov_b32 s{sW1}, 0x7f000000")
        for st in (3, 5, 6, 7):
            a(f"s_mov_b32 s{sST}, {st}")
            if st == 3: continue
            a(f"s_call_b64 s[{sRET}:{sRET+1}], L_att_side")
        a.label("L_nodry")
    a(f"s_mov_b32 s{sVM}, 0x000fffff")
    a(f"s_mov_b32 s{sVM+1}, 0x000fffff")
    a(f"s_lshl_b32 s{sK0}, s{sH}, 16")
    a(f"s_lshl_b32 s{T0}, s{S_W}, 9")
    a(f"s_add_u32 s{sK0}, s{sK0}, s{T0}")
    a(f"s_add_u32 s{sK0}, s{sK0}, {WS_K}")
    a(f"s_lshl_b32 s{T0}, s{S_W}, 10")
    a(f"s_mul_i32 s{sK2}, s{sH}, 81920")
    a(f"s_add_u32 s{sK2}, s{sK2}, s{T0}")
    a(f"s_add_u32 s{T1}, s{sK2}, {WS_V - 4096}")
    a(f"s_add_u32 s{sK2}, s{sK2}, {WS_V + 4096}")
    a(f"s_lshr_b32 s{T2}, s{sH}, 1")
    a(f"s_lshl_b32 s{T2}, s{T2}, 15")
    a(f"s_add_u32 s{sK1}, s{T2}, s{T0}")
    a(f"s_add_u32 s{sK1}, s{sK1}, {WS_K + 64*32768}")
    a(f"s_mov_b32 s{sS1}, 10240")
    a(f"s_cmp_lt_u32 s{S_W}, 4")
    a(f"s_cselect_b32 s{sK1}, s{sK1}, s{T1}")
    a(f"s_cselect_b32 s{sS1}, 4096, s{sS1}")
    a(f"s_mov_b32 s{sDS}, 0")
    a(f"s_mov_b32 s{sST}, 0")
    a(f"s_mov_b32 s{sKD}, {SLOT}")
    a(f"s_mov_b32 s{sW10}, s{T0}")
    a(f"s_mov_b32 s{sWOo}, 0")
    a(f"s_mov_b32 s{sSD}, 0")
    a(f"s_mov_b32 s{sTA}, 0x7f000000")
    a(f"s_mov_b32 s{sWOl}, 0x40000000")
    a(f"s_add_u32 s{sL2}, s{T0}, 16384")
    a(f"s_cmp_lt_u32 s{S_W}, 6")
    a(f"s_cselect_b32 s{sM2}, -1, 0")
    a(f"s_cselect_b32 s{sL2}, s{sL2}, {k.DUMMY}")
    a(f"s_cselect_b32 s{sK2}, s{sK2}, 0x7f000000")
    a(f"s_lshl_b32 s{T0}, s{sQB}, 3")
    a(f"s_add_u32 s{T0}, s{T0}, s{S_W}")
    a(f"s_lshl_b32 s{T0}, s{T0}, 9")
    a(f"s_add_u32 s{T2}, s{T2}, s{T0}")
    a(f"s_add_u32 s80, s{T2}, {WS_Q + 64*32768}")
    a(f"s_lshl_b32 s{T3}, s{sH}, 16")
    a(f"s_add_u32 s{T3}, s{T3}, s{T0}")
    a(f"s_add_u32 s81, s{T3}, {WS_Q}")
    a("v_cmp_eq_u32 vcc, 20, v2")
    a("v_mov_b32 v3, 0x3f803f80")
    a("s_nop 0")
    a("v_cndmask_b32 v3, 0, v3, vcc")
    for r in range(16): a(f"v_mov_b32 v{V+r}, v3")
    for r in range(16): a(f"v_mov_b32 v{O+r}, 0")
    for r in range(12, 16): a(f"v_mov_b32 v{P+r}, 0")
    a(f"s_mul_i32 s{T0}, s{sH}, 20")
    a(f"s_add_u32 s{T1}, s{T0}, 19")
    a(f"s_lshr_b32 s{T0}, s{T0}, 7")
    a(f"s_lshr_b32 s{T1}, s{T1}, 7")
    a(f"s_sub_u32 s{T1}, s{T1}, s{T0}")
    a(f"s_lshl_b32 s{T1}, s{T1}, 4")
    a(f"v_and_b32 v{PL+4}, s{T1}, v0")
    a(f"v_and_b32 v{PL+5}, 15, v0")
    a(f"v_add_u32 v{PL+5}, v{PL+5}, v{PL+4}")
    a(f"v_mul_u32_u24 v{PL+6}, 0x50, v1")
    a(f"v_add3_u32 v{PL+5}, v{PL+5}, v{PL+6}, 64")
    a(f"v_add_u32 v{PL+5}, 16, v{PL+5}")
    a(f"v_lshlrev_b32 v{PL+5}, 7, v{PL+5}")
    a(f"s_lshl_b32 s{T2}, s{sQB}, 1")
    a(f"v_and_b32 v{PL+6}, 1, v0")
    a(f"v_add3_u32 v{PL+4}, v{PL+4}, v{PL+6}, s{T2}")
    a(f"v_lshlrev_b32 v{PL+4}, 7, v{PL+4}")
    a(f"s_lshl_b32 s{T0}, s{T0}, 11")
    a(f"s_add_u32 s{T3}, s{T0}, {FL_1}")
    k.poll2(PL + 5, PL + 4, T3, PL)
    a("s_barrier")
    k.stamp(8)
    a(f"buffer_load_dwordx4 {vr(Qm,4)}, v{DKM}, {WS}, s81 offen sc1")
    a(f"buffer_load_dwordx2 {vr(Qr,2)}, v10, {WS}, s80 offen sc1")
    for i in range(3): kv_piece(k, i)
    a("s_waitcnt vmcnt(0)")
    for i in range(3): kv_piece(k, i)
    a("s_barrier")
    k.stamp(9)
    def rdk(i):
        a(f"ds_read_b128 {vr(Km,4)}, v{AK} offset:{2048*i}")
        a(f"ds_read_b128 {vr(Km+4,4)}, v{AK} offset:{2048*i+1024}")
        a(f"ds_read_b64 {vr(Kr,2)}, v{AKR} offset:{8192+1024*i}")
    rdk(0)
    a(f"v_mov_b32 v{PL}, 0xff800000")
    a("s_waitcnt lgkmcnt(0)")
    qkm(a, 0, S1, "0"); qkm(a, 1, S1, "0")
    a("s_nop 9")
    qkr(a, S1)
    a("s_nop 15"); a("s_nop 3")
    rowmax(a, S1, 32, PL, PL + 4)
    set_neg(a, PL, PL + 4)
    a("s_nop 1")
    qkm(a, 0, S0, vr(NEG, 16)); qkm(a, 1, S0, vr(NEG, 16))
    a("s_nop 9")
    qkr(a, S0)
    rdk(1)
    a(f"s_mov_b64 exec, s[{sVM}:{sVM+1}]")
    for j in range(3): a(f"ds_read_b128 {vr(V+4*j,4)}, v{AV} offset:{12288+j*640}")
    a("s_mov_b64 exec, -1")
    a("s_nop 10")
    a(f"s_cmp_ge_u32 s{S_W}, 4")
    a("s_cbranch_scc1 L_att_young")
    for young in (0, 1):
        L = "L_att_young" if young else "L_att_old"
        a.align(6)
        a.label(L)
        att_stage(k, young)
        a(f"s_cmp_lt_u32 s{sST}, 8")
        a(f"s_cbranch_scc1 {L}")
        if not young: a("s_branch L_att_done")
    a("s_setprio 0")
    a.label("L_att_done")
    a("s_waitcnt lgkmcnt(3)")
    pv(a, 3)
    k.stamp(10)
    a(f"s_lshl_b32 s{T0}, s{sQB}, 4")
    a(f"s_lshl_b32 s{T1}, s{S_W}, 1")
    a(f"s_add_u32 s{T0}, s{T0}, s{T1}")
    a(f"s_mul_i32 s{T0}, s{T0}, 20480")
    a(f"s_add_u32 s{T0}, s{T0}, {WS_O}")
    a(f"s_lshl_b32 s{T1}, s{sH}, 9")
    a(f"s_add_u32 s80, s{T0}, s{T1}")
    a(f"s_lshr_b32 s{T1}, s{sH}, 4")
    a(f"s_lshl_b32 s{T2}, s{T1}, 11")
    a(f"s_add_u32 s80, s80, s{T2}")
    a(f"s_lshl_b32 s{T1}, s{T1}, 13")
    a(f"s_add_u32 s{T0}, s{T0}, s{T1}")
    a(f"s_lshr_b32 s{T1}, s{sH}, 3")
    a(f"s_lshl_b32 s{T1}, s{T1}, 10")
    a(f"s_add_u32 s{T0}, s{T0}, s{T1}")
    a(f"s_bfe_u32 s{T1}, s{sH}, 0x20001")
    a(f"s_lshl_b32 s{T1}, s{T1}, 7")
    a(f"s_add_u32 s{T0}, s{T0}, s{T1}")
    a(f"s_and_b32 s{T1}, s{sH}, 1")
    a(f"s_lshl_b32 s{T1}, s{T1}, 9")
    a(f"s_add_u32 s{T0}, s{T0}, s{T1}")
    a(f"s_add_u32 s81, s{T0}, 8192")
    a("s_waitcnt lgkmcnt(0)")
    a(f"v_add_f32 v1, abs(v{O}), abs(v{O+1})")
    a(f"v_add_f32 v3, abs(v{O+2}), abs(v{O+3})")
    for r in range(4, 12, 2):
        a(f"v_add_f32 v1, abs(v{O+r}), v1")
        a(f"v_add_f32 v3, abs(v{O+r+1}), v3")
    a(f"v_mov_b32 v2, 0x{f2u(2.0**40):08x}")
    a("v_add_f32 v1, v1, v3")
    a("v_mov_b32 v3, 0x203")
    a(f"v_cmp_nle_f32 vcc, v{O+8}, v2")
    a(f"v_cmp_class_f32 s[{S_M1}:{S_M1+1}], v1, v3")
    a("s_and_b32 vcc_lo, vcc_lo, 0")
    a(f"s_or_b64 vcc, vcc, s[{S_M1}:{S_M1+1}]")
    a("s_cbranch_scc1 L_att_fb")
    a.label("L_att_norm")
    a(f"v_mov_b32 v1, v{O+8}")
    a(f"v_mov_b32 v2, v{O+8}")
    a("v_bfe_u32 v3, v0, 4, 1")
    a("v_mul_u32_u24 v3, 20480, v3")
    a("v_permlane32_swap_b32 v1, v2")
    a("s_nop 0")
    a("v_rcp_f32 v2, v2")
    a("v_and_b32 v10, 15, v0")
    a("v_lshl_add_u32 v11, v10, 4, v3")
    a("v_lshl_add_u32 v3, v10, 3, v3")
    a("v_lshrrev_b32 v10, 5, v0")
    a("v_lshl_add_u32 v10, v10, 8, v11")
    for r in range(12): a(f"v_mul_f32 v{O+r}, v2, v{O+r}")
    for r in range(6): a(f"v_cvt_pk_bf16_f32 v{P+r}, v{O+2*r}, v{O+2*r+1}")
    a(f"buffer_store_dwordx4 {vr(P,4)}, v10, {WS}, s80 offen sc1")
    a("s_mov_b64 exec, 0xffffffff")
    a(f"buffer_store_dwordx2 {vr(P+4,2)}, v3, {WS}, s81 offen sc1")
    a("s_mov_b64 exec, -1")
    a("s_branch L_att_end")
    att_side(k)
    att_fallback(k)
    a.label("L_att_end")
    if k.stop == 2:
        a("s_waitcnt vmcnt(0)")
        k.stamp(11)


class VQ:
    def __init__(self, a): self.a = a; self.q = []
    def add(self, tag): self.q.append(tag)
    def wait(self, tag):
        if tag not in self.q: return
        i = len(self.q) - 1 - self.q[::-1].index(tag)
        n = len(self.q) - 1 - i
        self.a(f"s_waitcnt vmcnt({n})")
        self.q = self.q[i + 1:]

def dma_ops(k, vq, tag, first, last, s_src, s_lds, lds0, nw=8):
    a = k.a
    def one(i):
        def f():
            a(f"s_add_u32 m0, s{s_lds}, {lds0 + nw * i * 1024}")
            a(f"s_add_u32 s{T0}, s{s_src}, {(first + nw * i) * 1024}")
            if first + nw * i + nw > last:
                a(f"s_cmp_ge_u32 s{S_W}, {last - first - nw*i + (1 if nw == 7 else 0)}")
                a(f"s_cselect_b32 m0, {k.DUMMY}, m0")
                a(f"s_cselect_b32 s{T0}, 0x7f000000, s{T0}")
            k.dma(DLIN, SRD_WS, f"s{T0}", "sc1")
            if vq is not None: vq.add(tag)
        return f
    return [one(i) for i in range((last - first + nw - 1) // nw)]

DL8 = 197
RA = 8
AF = 4
ST = 36
ACC = 44
BA = 72
XW, XRD = 78, 79
TM = 80
WB = 88
CSV = 148
SW = 1
TL = 252
HR = 198
sRG, sKH, sN8, sRB64, sA, sB = 64, 65, 66, 67, 68, 69
sW7 = 72
CS_LDS = 158 * 1024

def a_op(k, vq, j, ks, s_base, split):
    a = k.a
    reg = AF + 4 * (j % RA)
    pol = k.o.get("apol", "sc1")
    def f():
        if k.o.get("noa"): return
        a(f"s_add_u32 s{T0}, s{s_base}, {1024*ks}")
        if split:
            a(f"buffer_load_dwordx2 {vr(reg,2)}, v{DL8}, {WS}, s{T0} offen sc1")
            a(f"buffer_load_dwordx2 {vr(reg+2,2)}, v{DL8}, {WS}, s{T0} offen offset:512 sc1")
            vq.add(("a", j))
        else:
            a(f"buffer_load_dwordx4 {vr(reg,4)}, v{DLIN}, {WS}, s{T0} offen {pol}")
        vq.add(("A", j))
    return f

def coop_touch(k, vq, s_base, s_idx, stride, n):
    a = k.a
    if not k.o.get("coop"): return
    a(f"s_lshl_b32 s{T1}, s{s_idx}, 10")
    a(f"s_add_u32 s{T1}, s{T1}, s{s_base}")
    for i in range((n + stride - 1) // stride):
        a(f"s_add_u32 s{T0}, s{T1}, {1024*stride*i}")
        if stride * i + stride > n:
            a(f"s_cmp_ge_u32 s{s_idx}, {n - stride*i}")
            a(f"s_cselect_b32 s{T0}, s{T1}, s{T0}")
        a(f"buffer_load_dwordx4 {vr(TM+4,4)}, v{DLIN}, {WS}, s{T0} offen sc1")
        vq.add("t")

class LQ(VQ):
    def wait(self, tag):
        if tag not in self.q: return
        i = len(self.q) - 1 - self.q[::-1].index(tag)
        self.a(f"s_waitcnt lgkmcnt({min(15, len(self.q) - 1 - i)})")
        self.q = self.q[i + 1:]

def stage_write(k, lq, i, lds, tail=None):
    a = k.a
    if tail is not None: a(f"ds_write_b128 v{tail}, {vr(SG(i),4)}")
    else: a(f"ds_write_b128 v{SW + lds // 65536}, {vr(SG(i),4)} offset:{lds % 65536}")
    if lq is not None: lq.add("w")

def mm_steps(k, vq, n, nt, addr, extra, pre_hook=None):
    a = k.a
    NB = 3
    lq = k.lq = LQ(a)
    def rd(j, t):
        r, off = addr(j, t)
        a(f"ds_read_b128 {vr(WB + (j % NB) * 4 * nt + 4 * t, 4)}, v{r} offset:{off}")
        lq.add(("r", j))
    for j in range(2):
        for t in range(nt): rd(j, t)
    for j in range(n):
        b = WB + (j % NB) * 4 * nt
        ops = list(extra.get(j, []))
        slots = {}
        for i, f in enumerate(ops): slots.setdefault(1 + (i * (nt - 1)) // max(1, len(ops)), []).append(f)
        if pre_hook and j + 2 < n: pre_hook(j + 2)
        vq.wait(("A", j))
        lq.wait(("r", j))
        for t in range(nt):
            c = "0" if j == 0 else vr(ACC + 4 * t, 4)
            a(f"{M16} {vr(ACC+4*t,4)}, {vr(b+4*t,4)}, {vr(AF+4*(j%RA),4)}, {c}")
            if j + 2 < n: rd(j + 2, t)
            for f in slots.get(t, []): f()

def tile_addrs(k, base_expr_sgpr, dst):
    a = k.a
    a(f"s_lshl_b32 s{T1}, s{sKH}, 11")
    a(f"v_add_u32 v{dst+2}, s{base_expr_sgpr}, v{DLIN}")
    a(f"v_add_u32 v{dst}, s{T1}, v{dst+2}")
    a(f"v_subrev_u32 v{dst+1}, s{T1}, v{dst+2}")

def exch_addrs(k, scr):
    a = k.a
    a(f"s_mul_i32 s{T0}, s{sRG}, 5120")
    a(f"s_add_u32 s{T0}, s{T0}, {scr}")
    a(f"s_lshl_b32 s{T1}, s{sKH}, 11")
    a(f"s_add_u32 s{T2}, s{T0}, s{T1}")
    a(f"v_add_u32 v{XW}, s{T2}, v{DLIN}")
    a(f"s_sub_u32 s{T2}, s{T0}, s{T1}")
    a(f"s_add_u32 s{T2}, s{T2}, 2048")
    a(f"v_add_u32 v{XRD}, s{T2}, v{DLIN}")

def reduce_halves(k, resid, pad):
    a = k.a
    if pad: a(f"s_nop {pad-1}")
    a(f"ds_write_b128 v{XW}, {vr(ACC+8,4)}")
    a(f"ds_write_b128 v{XW}, {vr(ACC+12,4)} offset:1024")
    L = a.newlabel("rh")
    a(f"s_cmp_eq_u32 s{sKH}, 0")
    a(f"s_cbranch_scc1 {L}")
    a(f"ds_write_b128 v{XW}, {vr(ACC+16,4)} offset:2048")
    a.label(L)
    a("s_waitcnt lgkmcnt(2)")
    for i, t in enumerate((0, 1, 4)):
        for h in range(2):
            a(f"v_lshlrev_b32 v{TM+2}, 16, v{resid+2*i+h}")
            a(f"v_and_b32 v{TM+3}, 0xffff0000, v{resid+2*i+h}")
            a(f"v_add_f32 v{ACC+4*t+2*h}, v{ACC+4*t+2*h}, v{TM+2}")
            a(f"v_add_f32 v{ACC+4*t+2*h+1}, v{ACC+4*t+2*h+1}, v{TM+3}")
    a("s_waitcnt lgkmcnt(0)")
    a("s_barrier")
    for i in range(3): a(f"ds_read_b128 {vr(WB+4*i,4)}, v{XRD} offset:{1024*i}")
    for i, t in enumerate((0, 1, 4)):
        a(f"s_waitcnt lgkmcnt({2-i})")
        for r in range(4): a(f"v_add_f32 v{ACC+4*t+r}, v{ACC+4*t+r}, v{WB+4*i+r}")

def row_reduce(a, r, t):
    for sw in ("16", "32"):
        a(f"v_mov_b32 v{t}, v{r}")
        a(f"v_mov_b32 v{t+1}, v{r+1}")
        a("s_nop 0")
        a(f"v_permlane{sw}_swap_b32 v{r}, v{t}")
        a(f"v_permlane{sw}_swap_b32 v{r+1}, v{t+1}")
        a("s_nop 0")
        a(f"v_add_f32 v{r}, v{r}, v{t}")
        a(f"v_add_f32 v{r+1}, v{r+1}, v{t+1}")

def not_wave0(k, fn):
    a = k.a
    L = a.newlabel("nw0")
    a(f"s_cmp_eq_u32 s{S_W}, 0")
    a(f"s_cbranch_scc1 {L}")
    fn()
    a.label(L)

NS5 = 14
HALF = NS5 * 5120
sW2 = 83
def w2_load(k, vq, tag, i, batch):
    h, q = divmod(i, 9)
    first = (0, 5 * NS5)[batch]; n = (5 * NS5, 135 - 5 * NS5)[batch]
    stage_load(k, vq, tag, i, sW2, (135 * h + first + 8 * q) * 1024, min(8, n - 8 * q))
def w2_write(k, lq, i):
    h, q = divmod(i, 9)
    stage_write(k, lq, i, HALF * h + 8192 * q, TL + h if q == 8 else None)
def w2_tails(k, valid):
    a = k.a
    a(f"s_sub_u32 s{T0}, {k.DUMMY - 65536}, s{sW10}")
    a(f"s_cmp_lt_u32 s{S_W}, {valid}")
    a(f"s_cselect_b32 s{T1}, 0, s{T0}")
    a(f"s_cselect_b32 s{T0}, {HALF}, s{T0}")
    a(f"v_add_u32 v{TL}, s{T1}, v{SW+1}")
    a(f"v_add_u32 v{TL+1}, s{T0}, v{SW+1}")

P3_SCR, P3_LAST = 35 * 1024, 56 * 1024
sTT3 = 81
def phase3(k):
    a = k.a
    a.c("================ phase 3: output projection + residual")
    a(f"s_lshl_b32 s{T0}, s{sQB}, 5")
    a(f"s_add_u32 s{T0}, s{T0}, s{sH}")
    a(f"s_mul_i32 s{T3}, s{T0}, {FSP}")
    a(f"s_add_u32 s{T3}, s{T3}, {FL_2}")
    a(f"s_and_b32 s{sRG}, s{S_W}, 3")
    a(f"s_lshr_b32 s{sKH}, s{S_W}, 2")
    a(f"s_and_b32 s{sN8}, s{S_J}, 7")
    a(f"s_lshl_b32 s{sRB64}, s{S_C}, 2")
    a(f"s_lshr_b32 s{T0}, s{S_J}, 3")
    a(f"s_add_u32 s{sRB64}, s{sRB64}, s{T0}")
    a(f"s_sub_u32 s{sW7}, s{sW10}, 1024")
    a(f"s_add_u32 s{sA}, s{sSD}, s{sW7}")
    a(f"s_mul_i32 s{sW2}, s{sN8}, {54*5120}")
    a(f"s_add_u32 s{sW2}, s{sW2}, s{sW10}")
    a(f"s_add_u32 s{sW2}, s{sW2}, {WS_W2}")
    a(f"v_lshlrev_b32 v{DL8}, 3, v0")
    a(f"v_add_u32 v{SW}, s{sW10}, v{DLIN}")
    a(f"v_add_u32 v{SW+1}, 0x10000, v{SW}")
    a(f"v_add_u32 v{SW+2}, 0x20000, v{SW}")
    a("s_waitcnt vmcnt(0)")
    a("s_barrier")
    k.stamp(11)
    k.flag_store(T3, TM)
    def early():
        for f in dma_ops(k, None, None, 45, 50, sA, sW7, P3_LAST, 7): f()
        for f in dma_ops(k, None, None, 95, 100, sA, sW7, P3_LAST + 5120, 7): f()
        resid_x(k)
    not_wave0(k, early)
    for i in range(4): stage_write(k, None, i, 8192 * i)
    a(f"s_cmp_lt_u32 s{S_W}, 6")
    a("s_cbranch_scc1 L_p3_nocs")
    a(f"s_and_b32 s{T1}, s{S_J}, 15")
    a(f"s_sub_u32 s{T0}, s{S_W}, 6")
    a(f"s_lshl_b32 s{T0}, s{T0}, 6")
    a(f"v_add_u32 v{TM+4}, s{T0}, v0")
    a(f"s_mul_i32 s{T2}, s{T1}, 96")
    a(f"v_add_u32 v{TM+5}, s{T2}, v{TM+4}")
    a(f"s_min_u32 s{T2}, s{T1}, 11")
    a(f"s_lshl_b32 s{T2}, s{T2}, 4")
    a(f"s_add_u32 s{T2}, s{T2}, 1536")
    a(f"v_and_b32 v{TM+6}, 15, v0")
    a(f"v_add_u32 v{TM+6}, s{T2}, v{TM+6}")
    a(f"v_cmp_gt_u32 vcc, 96, v{TM+4}")
    a(f"s_mov_b32 s{T2}, {WS_CS1}")
    a("s_nop 0")
    a(f"v_cndmask_b32 v{TM+5}, v{TM+6}, v{TM+5}, vcc")
    a(f"v_lshlrev_b32 v{TM+5}, 2, v{TM+5}")
    for i in range(20):
        a(f"buffer_load_dword v{CSV+i}, v{TM+5}, {WS}, s{T2} offen sc1")
        if i < 19: a(f"s_add_u32 s{T2}, s{T2}, {1728*4}")
    a.label("L_p3_nocs")
    a(f"s_mul_i32 s{T0}, s{sKH}, {45*1024}")
    a(f"s_add_u32 s{T0}, s{T0}, {WO_LDS}")
    tile_addrs(k, T0, BA)
    a(f"s_mul_i32 s{T0}, s{sKH}, 5120")
    a(f"s_add_u32 s{T0}, s{T0}, {P3_LAST}")
    tile_addrs(k, T0, BA + 3)
    exch_addrs(k, P3_SCR)
    a(f"s_lshl_b32 s{T0}, s{sRB64}, 2")
    a(f"s_add_u32 s{sTT3}, s{T0}, s{sRG}")
    a(f"s_mul_i32 s{sA}, s{sTT3}, 20480")
    a(f"s_mul_i32 s{T1}, s{sKH}, 10240")
    a(f"s_add_u32 s{sA}, s{sA}, s{T1}")
    a(f"s_add_u32 s{sA}, s{sA}, {WS_O}")
    a(f"s_mul_i32 s{T3}, s{S_C}, {32*FSP}")
    a(f"s_add_u32 s{T3}, s{T3}, {FL_2}")
    k.poll(32, T3, FSP, TM)
    a(f"s_cmp_lg_u32 s{S_W}, 0")
    a("s_cbranch_scc1 L_p3_rx")
    resid_x(k)
    a.label("L_p3_rx")
    a("s_waitcnt vmcnt(3) lgkmcnt(0)")
    a("s_barrier")
    k.stamp(12)
    vq = VQ(a)
    aop = [a_op(k, vq, j, j, sA, j >= 8) for j in range(10)]
    D = int(k.o.get("d3", 4))
    coop_touch(k, vq, sA, sN8, 8, 10)
    for j in range(D): aop[j]()
    def addr(j, t):
        r = (BA if j < 9 else BA + 3) + (0, 0, 1, 1, 2)[t]
        return r, (j * 5120 if j < 9 else 0) + t * 1024
    mm_steps(k, vq, 10, 5, addr, {j: [aop[j + D]] for j in range(10 - D)})
    k.stamp(13)
    a(f"v_and_b32 v{TM+2}, 15, v0")
    a(f"v_lshrrev_b32 v{TM+3}, 4, v0")
    a(f"v_lshl_add_u32 v{TM+2}, v{TM+2}, 2, v{TM+3}")
    a(f"v_lshlrev_b32 v{TM+2}, 2, v{TM+2}")
    for r in range(6): a(f"ds_bpermute_b32 v{XR+r}, v{TM+2}, v{XR+r}")
    a(f"s_cmp_lt_u32 s{S_W}, 6")
    a("s_cbranch_scc1 L_p3_nocs2")
    for w in (10, 5):
        for i in range(w): a(f"v_add_f32 v{CSV+i}, v{CSV+i}, v{CSV+w+i}")
    for i in range(1, 5): a(f"v_add_f32 v{CSV}, v{CSV}, v{CSV+i}")
    a(f"s_lshl_b32 s{T0}, s{S_W}, 8")
    a(f"s_add_u32 s{T0}, s{T0}, {CS_LDS - 6*256}")
    a(f"v_lshl_add_u32 v{TM+4}, v0, 2, s{T0}")
    a(f"ds_write_b32 v{TM+4}, v{CSV}")
    a.label("L_p3_nocs2")
    a(f"s_mul_i32 s{sA}, s{sTT3}, 20480")
    a(f"s_add_u32 s{sA}, s{sA}, {WS_H}")
    a(f"s_lshl_b32 s{T0}, s{sN8}, 1")
    a(f"s_add_u32 s{T0}, s{T0}, s{sKH}")
    a(f"s_lshl_b32 s{T3}, s{T0}, 10")
    a(f"s_add_u32 s{T3}, s{T3}, s{sA}")
    reduce_halves(k, XR, 0)
    for i, t in enumerate((0, 1, 4)):
        for h in range(2): a(f"v_cvt_pk_bf16_f32 v{HR+2*i+h}, v{ACC+4*t+2*h}, v{ACC+4*t+2*h+1}")
        if i == 1: a(f"buffer_store_dwordx4 {vr(HR,4)}, v{DLIN}, {WS}, s{T3} offen sc1")
    a(f"v_mov_b32 v{TM+6}, 0x3f803f80")
    a(f"v_mov_b32 v{TM+4}, 0")
    a(f"v_mov_b32 v{TM+5}, 0")
    def acc_stats(regs):
        for r in regs:
            a(f"v_dot2_f32_bf16 v{TM+4}, v{r}, v{TM+6}, v{TM+4}")
            a(f"v_dot2_f32_bf16 v{TM+5}, v{r}, v{r}, v{TM+5}")
    acc_stats(range(HR, HR + 4))
    a(f"s_cmp_lg_u32 s{sKH}, 0")
    a("s_cbranch_scc1 L_p3_no4")
    a(f"s_lshr_b32 s{T0}, s{sN8}, 1")
    a(f"s_lshl_b32 s{T0}, s{T0}, 10")
    a(f"s_and_b32 s{T1}, s{sN8}, 1")
    a(f"s_lshl_b32 s{T1}, s{T1}, 9")
    a(f"s_add_u32 s{T0}, s{T0}, s{T1}")
    a(f"s_add_u32 s{T0}, s{T0}, s{sA}")
    a(f"s_add_u32 s{T0}, s{T0}, 16384")
    a(f"buffer_store_dwordx2 {vr(HR+4,2)}, v{DL8}, {WS}, s{T0} offen sc1")
    acc_stats(range(HR + 4, HR + 6))
    a.label("L_p3_no4")
    a(f"s_lshl_b32 s{T0}, s{sRB64}, 4")
    a(f"s_lshl_b32 s{T1}, s{sN8}, 1")
    a(f"s_add_u32 s{T0}, s{T0}, s{T1}")
    row_reduce(a, TM + 4, TM + 6)
    a(f"s_add_u32 s{T0}, s{T0}, s{sKH}")
    a(f"s_lshl_b32 s{T0}, s{T0}, 9")
    a(f"s_lshl_b32 s{T1}, s{sRG}, 7")
    a(f"s_add_u32 s{T0}, s{T0}, s{T1}")
    a(f"s_add_u32 s{T0}, s{T0}, {WS_ST}")
    a("s_mov_b64 exec, 0xffff")
    a(f"buffer_store_dwordx2 {vr(TM+4,2)}, v{DL8}, {WS}, s{T0} offen sc1")
    a("s_mov_b64 exec, -1")
    for i in range(4): w2_load(k, None, None, i, 0)
    for i in range(7, 18): stage_write(k, None, i, 8192 * i)
    a(f"s_lshl_b32 s{T0}, s{sRB64}, 3")
    a(f"s_add_u32 s{T0}, s{T0}, s{sN8}")
    a(f"s_mul_i32 s{T3}, s{T0}, {FSP}")
    a(f"s_add_u32 s{T3}, s{T3}, {FL_3}")
    a("s_waitcnt vmcnt(4)")
    a("s_barrier")
    k.stamp(14)
    k.flag_store(T3, TM)

def phase4(k):
    a = k.a
    a.c("================ phase 4: FFN up-projection + SiLU")
    sF, sRB, sTT = 70, 71, 74
    for i in range(4, 7): stage_write(k, None, i, 8192 * i)
    NB4 = int(k.o.get("nb4", 4))
    a("s_waitcnt lgkmcnt(3)")
    for i in range(7, 7 + NB4): w2_load(k, None, None, i, 0)
    a(f"s_and_b32 s{sF}, s{S_J}, 15")
    a(f"s_lshl_b32 s{sRB}, s{S_C}, 1")
    a(f"s_lshr_b32 s{T0}, s{S_J}, 4")
    a(f"s_add_u32 s{sRB}, s{sRB}, s{T0}")
    a(f"v_mov_b32 v{BA}, v{DLIN}")
    a(f"v_add_u32 v{BA+1}, {9*7168}, v{DLIN}")
    a(f"v_add_u32 v{BA+2}, {18*7168}, v{DLIN}")
    a(f"s_lshl_b32 s{T0}, s{sRB}, 3")
    a(f"s_add_u32 s{sTT}, s{T0}, s{S_W}")
    a(f"s_mul_i32 s{sA}, s{sTT}, 20480")
    a(f"s_add_u32 s{sA}, s{sA}, {WS_H}")
    a(f"s_lshr_b32 s{T0}, s{sTT}, 2")
    a(f"s_lshl_b32 s{T0}, s{T0}, 13")
    a(f"s_and_b32 s{T1}, s{sTT}, 3")
    a(f"s_lshl_b32 s{T1}, s{T1}, 7")
    a(f"s_add_u32 s{T0}, s{T0}, s{T1}")
    a(f"s_add_u32 s{sB}, s{T0}, {WS_ST}")
    a(f"v_and_b32 v{TM}, 15, v0")
    a(f"v_lshrrev_b32 v{TM+1}, 4, v0")
    a(f"v_lshlrev_b32 v{BA+3}, 11, v{TM+1}")
    a(f"v_lshl_add_u32 v{BA+3}, v{TM}, 3, v{BA+3}")
    a(f"v_lshlrev_b32 v{BA+4}, 4, v{TM+1}")
    a(f"v_add_u32 v{BA+4}, {CS_LDS}, v{BA+4}")
    w2_tails(k, 5 * NS5 - 64)
    a(f"s_mul_i32 s{T3}, s{sRB}, {16*FSP}")
    a(f"s_add_u32 s{T3}, s{T3}, {FL_3}")
    k.poll(16, T3, FSP, TM)
    a("s_waitcnt lgkmcnt(0)")
    a("s_barrier")
    k.stamp(15)
    vq = VQ(a)
    aop = [a_op(k, vq, j, j, sA, j >= 16) for j in range(20)]
    D = int(k.o.get("d4", 4))
    coop_touch(k, vq, sA, sF, 16, 20)
    for j in range(D): aop[j]()
    def st_op(i):
        def f():
            a(f"buffer_load_dwordx2 {vr(ST+2*i,2)}, v{BA+3}, {WS}, s{sB} offen offset:{512*i} sc1")
            vq.add("S")
        return f
    extra = {j: [aop[j + D]] for j in range(20 - D)}
    rest = list(range(7 + NB4, 18)) + [4, 5, 6]
    for n, i in enumerate(rest): extra.setdefault(1 + (n * 19) // len(rest), []).append(lambda i=i: w2_load(k, vq, "W", i, 0))
    for i in range(4): extra.setdefault(16 + i, []).insert(0, st_op(i))
    def addr(j, t): return BA + j // 9, (j % 9) * 7168 + t * 1024
    mm_steps(k, vq, 20, 7, addr, extra)
    k.stamp(16)
    CS = WB + 56
    for t in range(7): a(f"ds_read_b128 {vr(CS+4*t,4)}, v{BA+4} offset:{64*t}")
    a(f"s_cmp_lt_u32 s{S_W}, 4")
    a("s_cbranch_scc1 L_p4_nb")
    a("s_barrier")
    a.label("L_p4_nb")
    vq.wait("S")
    a(f"v_add_f32 v{ST}, v{ST}, v{ST+2}")
    a(f"v_add_f32 v{ST+1}, v{ST+1}, v{ST+3}")
    a(f"v_add_f32 v{ST+4}, v{ST+4}, v{ST+6}")
    a(f"v_add_f32 v{ST+5}, v{ST+5}, v{ST+7}")
    a(f"v_add_f32 v{ST}, v{ST}, v{ST+4}")
    a(f"v_add_f32 v{ST+1}, v{ST+1}, v{ST+5}")
    row_reduce(a, ST, ST + 2)
    a(f"v_mul_f32 v{ST}, 0x{f2u(1.0/640):08x}, v{ST}")
    a(f"v_mul_f32 v{ST+2}, v{ST}, v{ST}")
    a(f"v_mov_b32 v{ST+3}, 0x{f2u(1.0/640):08x}")
    a(f"v_fma_f32 v{ST+2}, v{ST+1}, v{ST+3}, -v{ST+2}")
    a(f"v_max_f32 v{ST+2}, 0, v{ST+2}")
    a(f"v_add_f32 v{ST+2}, 0x{f2u(1e-5):08x}, v{ST+2}")
    a(f"v_rsq_f32 v{ST+1}, v{ST+2}")
    a(f"s_mul_i32 s{sA}, s{sTT}, {54*1024}")
    a(f"s_add_u32 s{sA}, s{sA}, {WS_H1}")
    a(f"v_mul_f32 v{ST}, v{ST}, v{ST+1}")
    a(f"s_lshr_b32 s{T0}, s{sF}, 3")
    a(f"s_add_u32 s{T0}, s{T0}, s{sF}")
    a(f"s_mul_i32 s{T0}, s{T0}, 3072")
    a(f"s_add_u32 s{sB}, s{T0}, s{sA}")
    a("s_waitcnt lgkmcnt(0)")
    E = WB; OUT = AF
    def silu(tiles):
        rs = [4 * t + r for t in tiles for r in range(4)]
        for r in rs: a(f"v_mul_f32 v{ACC+r}, v{ST+1}, v{ACC+r}")
        for r in rs: a(f"v_fma_f32 v{ACC+r}, -v{ST}, v{CS+r}, v{ACC+r}")
        for r in rs: a(f"v_mul_f32 v{E+r}, 0x{f2u(-math.log2(math.e)):08x}, v{ACC+r}")
        for r in rs: a(f"v_exp_f32 v{E+r}, v{E+r}")
        for r in rs: a(f"v_add_f32 v{E+r}, 1.0, v{E+r}")
        for r in rs: a(f"v_rcp_f32 v{E+r}, v{E+r}")
        for r in rs: a(f"v_mul_f32 v{ACC+r}, v{ACC+r}, v{E+r}")
        for r in rs[::2]: a(f"v_cvt_pk_bf16_f32 v{OUT+r//2}, v{ACC+r}, v{ACC+r+1}")
    for p in range(3):
        silu((2 * p, 2 * p + 1))
        a(f"buffer_store_dwordx4 {vr(OUT+4*p,4)}, v{DLIN}, {WS}, s{sB} offen offset:{1024*p} sc1")
    a(f"s_cmp_ge_u32 s{sF}, 12")
    a("s_cbranch_scc1 L_p4_no6")
    silu((6,))
    a(f"s_lshr_b32 s{T0}, s{sF}, 1")
    a(f"s_cmp_ge_u32 s{sF}, 6")
    a(f"s_cselect_b32 s{T1}, 48, 24")
    a(f"s_add_u32 s{T0}, s{T0}, s{T1}")
    a(f"s_lshl_b32 s{T0}, s{T0}, 10")
    a(f"s_and_b32 s{T1}, s{sF}, 1")
    a(f"s_lshl_b32 s{T1}, s{T1}, 9")
    a(f"s_add_u32 s{T0}, s{T0}, s{T1}")
    a(f"s_add_u32 s{T0}, s{T0}, s{sA}")
    a(f"buffer_store_dwordx2 {vr(OUT+12,2)}, v{DL8}, {WS}, s{T0} offen sc1")
    a.label("L_p4_no6")
    a(f"s_lshl_b32 s{T0}, s{sRB}, 4")
    a(f"s_add_u32 s{T0}, s{T0}, s{sF}")
    a(f"s_mul_i32 s{T3}, s{T0}, {FSP}")
    a(f"s_add_u32 s{T3}, s{T3}, {FL_4}")
    order = [x for q in range(9) for x in (q, 9 + q)]
    NB5 = 12
    def w2_swap():
        for n, i in enumerate(order):
            w2_write(k, None, i)
            if 4 <= n < 4 + NB5:
                a("s_waitcnt lgkmcnt(4)")
                w2_load(k, None, None, order[n - 4], 1)
        if NB5 > 14:
            a("s_waitcnt lgkmcnt(0)")
            for i in order[14:NB5]: w2_load(k, None, None, i, 1)
    a(f"s_cmp_ge_u32 s{S_W}, 4")
    a("s_cbranch_scc1 L_p4_y")
    a("s_barrier")
    a("s_waitcnt vmcnt(3)")
    w2_swap()
    a(f"s_waitcnt vmcnt({NB5})")
    a("s_barrier")
    k.stamp(17)
    k.flag_store(T3, TM)
    a("s_branch L_p4_e")
    a.label("L_p4_y")
    a("s_waitcnt vmcnt(0)")
    a("s_barrier")
    k.stamp(17)
    w2_swap()
    a.label("L_p4_e")

def phase5(k):
    a = k.a
    a.c("================ phase 5: FFN down-projection + residual")
    a(f"s_mul_i32 s{T0}, s{sKH}, {HALF}")
    tile_addrs(k, T0, BA)
    for i in range(3): a(f"v_add_u32 v{BA+3+i}, {12*5120}, v{BA+i}")
    exch_addrs(k, 2 * HALF)
    a(f"s_mul_i32 s{sB}, s{sTT3}, {54*1024}")
    a(f"s_mul_i32 s{T1}, s{sKH}, {27*1024}")
    a(f"s_add_u32 s{sB}, s{sB}, s{T1}")
    a(f"s_add_u32 s{sB}, s{sB}, {WS_H1}")
    if k.o.get("p5hot"): a(f"s_mov_b32 s{sB}, {WS_W2}")
    if k.o.get("p5oob"): a(f"s_mov_b32 s{sB}, 0x7f000000")
    a(f"s_lshr_b32 s{T3}, s{sRB64}, 1")
    a(f"s_mul_i32 s{T3}, s{T3}, {16*FSP}")
    a(f"s_add_u32 s{T3}, s{T3}, {FL_4}")
    k.poll(16, T3, FSP, TM)
    a("s_waitcnt lgkmcnt(0)")
    a("s_barrier")
    k.stamp(18)
    vq = VQ(a)
    aop = [a_op(k, vq, j, j, sB, j >= 24) for j in range(27)]
    D = int(k.o.get("d5", 5))
    coop_touch(k, vq, sB, sN8, 8, 27)
    for j in range(D): aop[j]()
    extra = {j: [aop[j + D]] for j in range(27 - D)}
    NB5 = 12
    NB5 = 12
    bars = (5, 10, 13, 20)
    dm = [x for p in zip(dma_ops(k, vq, "R", 5 * NS5 + 48, 135, sW2, sW10, 48 * 1024), dma_ops(k, vq, "R", 135 + 5 * NS5 + 48, 270, sW2, sW10, HALF + 48 * 1024)) for x in p]
    for n, f in enumerate(dm): extra.setdefault(13 + n // 2, []).append(f)
    def wr(i):
        vq.wait(("W", i))
        w2_write(k, k.lq, i)
    for g in range(2):
        for n, i in enumerate(x for q in range(3 * g, 3 * g + 3) for x in (q, 9 + q)):
            if 6 * g + n >= NB5: extra.setdefault(6 * g + n - NB5, []).append(lambda i=i: w2_load(k, vq, ("W", i), i, 1))
            if not k.o.get("p5now"): extra.setdefault(bars[g] + n // 2, []).append(lambda i=i: wr(i))
    slot = lambda j: j if j < NS5 else j - NS5
    def addr(j, t):
        s = slot(j)
        return BA + (3 if s >= 12 else 0) + (0, 0, 1, 1, 2)[t], (s % 12) * 5120 + t * 1024
    def pre(j):
        if j - 2 in bars:
            k.lq.wait("w")
            vq.wait("R") if j - 2 == 20 else None
            if not k.o.get("p5nob"): a("s_barrier")
    mm_steps(k, vq, 27, 5, addr, extra, pre)
    k.stamp(19)
    reduce_halves(k, HR, 6)
    for i, t in enumerate((0, 1, 4)):
        for h in range(2): a(f"v_cvt_pk_bf16_f32 v{AF+2*i+h}, v{ACC+4*t+2*h}, v{ACC+4*t+2*h+1}")
    a(f"s_mul_i32 s{T0}, s{sTT3}, {16*1280}")
    a(f"s_mul_i32 s{T1}, s{sN8}, 160")
    a(f"s_add_u32 s{T0}, s{T0}, s{T1}")
    a(f"s_lshl_b32 s{T1}, s{sKH}, 6")
    a(f"s_add_u32 s{T1}, s{T1}, s{T0}")
    a(f"v_and_b32 v{TM}, 15, v0")
    a(f"v_mul_u32_u24 v{TM}, 1280, v{TM}")
    a(f"v_lshrrev_b32 v{TM+1}, 4, v0")
    a(f"v_lshl_add_u32 v{TM}, v{TM+1}, 3, v{TM}")
    OUTS = f"s[{SRD_OUT}:{SRD_OUT+3}]"
    a(f"buffer_store_dwordx2 {vr(AF,2)}, v{TM}, {OUTS}, s{T1} offen")
    a(f"buffer_store_dwordx2 {vr(AF+2,2)}, v{TM}, {OUTS}, s{T1} offen offset:32")
    a(f"s_cmp_lg_u32 s{sKH}, 0")
    a("s_cbranch_scc1 L_p5_no4")
    a(f"buffer_store_dwordx2 {vr(AF+4,2)}, v{TM}, {OUTS}, s{T0} offen offset:128")
    a.label("L_p5_no4")
```

```python
import sys, math
from asmlib import Asm, vr, sr, f2u, check
from tables import *

NAME = "sequential_preLN__mha_block__dense_activation_silu__prompt"
LDS_BYTES = 163840
SPIN_MAX = 20000

S_G = 2
SRD_X, SRD_WQ, SRD_WS, SRD_OUT, SRD_DBG, SRD_RL = 4, 8, 12, 16, 20, 24
S_W, S_C, S_J = 28, 29, 30
S_NONCE = 32
S_PTR = 36
T0, T1, T2, T3, T4, T5 = 54, 55, 56, 57, 58, 59
S_M1 = 60
S_SPIN = 62

class K:
    def __init__(self, stop_after=99, opts=None):
        self.a = Asm()
        self.stop = stop_after
        self.o = opts or {}
        self.pad = 0
        self._sides = []

    def srd(self, d, ptr, nbytes):
        a = self.a
        a(f"s_mov_b32 s{d}, s{ptr}")
        a(f"s_and_b32 s{d+1}, s{ptr+1}, 0xffff")
        a(f"s_mov_b32 s{d+2}, {nbytes}")
        a(f"s_mov_b32 s{d+3}, 0x20000")

    def stamp(self, idx):
        if not self.o.get("stamps"): return
        a = self.a
        a("s_memrealtime s[100:101]")
        a("s_waitcnt lgkmcnt(0)")
        a(f"v_writelane_b32 v255, s100, {idx}")
        if idx < 22:
            a("s_memtime s[100:101]")
            a("s_waitcnt lgkmcnt(0)")
            a(f"v_writelane_b32 v255, s100, {idx+32}")

    def stamp_dyn(self, base, sreg):
        if not self.o.get("its"): return
        a = self.a
        a("s_memtime s[100:101]")
        a("s_mov_b32 s99, m0")
        a(f"s_add_u32 m0, s{sreg}, {base}")
        a("s_waitcnt lgkmcnt(0)")
        a("v_writelane_b32 v255, s100, m0")
        a("s_mov_b32 m0, s99")

    def stamp_flush(self):
        if not self.o.get("stamps"): return
        a = self.a
        if self.o.get("dbgwg"):
            L = a.newlabel("dbg")
            a(f"s_cmp_lg_u32 s{S_G}, {int(self.o['dbgwg'])}")
            a(f"s_cbranch_scc1 {L}")
            a(f"s_cmp_lg_u32 s{S_W}, 0")
            a(f"s_cbranch_scc1 {L}")
            a(f"v_readlane_b32 s{T1}, v255, 0")
            for n, i in enumerate((3, 4, 7, 8, 9, 10, 12, 13, 15, 16, 18, 19, 31)):
                a(f"v_readlane_b32 s{T0}, v255, {i}")
                a("s_nop 3")
                a(f"s_sub_u32 s{T0}, s{T0}, s{T1}")
                a(f"v_mov_b32 v1, s{T0}")
                a(f"v_mov_b32 v2, {8+4*n}")
                a(f"buffer_store_dword v1, v2, s[{SRD_DBG}:{SRD_DBG+3}], 0 offen")
            a.label(L)
            return
        a(f"s_lshl_b32 s{T0}, s{S_G}, 3")
        a(f"s_add_u32 s{T0}, s{T0}, s{S_W}")
        a(f"s_lshl_b32 s{T0}, s{T0}, 8")
        a(f"s_add_u32 s{T0}, s{T0}, {WS_SIZE}")
        a("v_lshlrev_b32 v1, 2, v0")
        a(f"buffer_store_dword v255, v1, s[{SRD_WS}:{SRD_WS+3}], s{T0} offen")
        a("s_mov_b64 exec, -1")

    def dma(self, voff, srd, soff, flags=""):
        if self.o.get("nodma"): return
        self.a(f"buffer_load_dwordx4 v{voff}, s[{srd}:{srd+3}], {soff} offen {flags} lds".replace("  ", " "))

    def flag_store(self, s_off, vt, pol="sc1"):
        a = self.a
        L = a.newlabel("nofl")
        a(f"s_cmp_lg_u32 s{S_W}, 0")
        a(f"s_cbranch_scc1 {L}")
        a(f"v_mov_b32 v{vt}, s{S_NONCE}")
        a(f"v_mov_b32 v{vt+1}, s{S_NONCE+1}")
        a(f"v_mov_b32 v{vt+2}, 0")
        a("s_mov_b64 exec, 1")
        a(f"buffer_store_dwordx2 v[{vt}:{vt+1}], v{vt+2}, s[{SRD_WS}:{SRD_WS+3}], s{s_off} offen {pol}")
        a("s_mov_b64 exec, -1")
        a.label(L)

    def poll(self, n, s_off, spacing, vt, only_wave0=True):
        a = self.a
        L = a.newlabel("poll"); Ld = a.newlabel("polld")
        if only_wave0:
            a(f"s_cmp_lg_u32 s{S_W}, 0")
            a(f"s_cbranch_scc1 {Ld}")
        a(f"s_mov_b32 s{S_SPIN}, 0")
        if n == 256:
            assert spacing == 8
            a(f"v_lshlrev_b32 v{vt+8}, 4, v0")
            a.label(L)
            a(f"buffer_load_dwordx4 v[{vt}:{vt+3}], v{vt+8}, s[{SRD_WS}:{SRD_WS+3}], s{s_off} offen sc1")
            a(f"buffer_load_dwordx4 v[{vt+4}:{vt+7}], v{vt+8}, s[{SRD_WS}:{SRD_WS+3}], s{s_off} offen offset:1024 sc1")
            a(f"s_add_u32 s{S_SPIN}, s{S_SPIN}, 1")
            a("s_waitcnt vmcnt(0)")
            a(f"v_cmp_ne_u64 vcc, s[{S_NONCE}:{S_NONCE+1}], v[{vt}:{vt+1}]")
            a(f"v_cmp_ne_u64 s[{S_M1}:{S_M1+1}], s[{S_NONCE}:{S_NONCE+1}], v[{vt+2}:{vt+3}]")
            a("s_nop 0")
            a(f"s_or_b64 s[{T4}:{T5}], vcc, s[{S_M1}:{S_M1+1}]")
            a(f"v_cmp_ne_u64 vcc, s[{S_NONCE}:{S_NONCE+1}], v[{vt+4}:{vt+5}]")
            a(f"v_cmp_ne_u64 s[{S_M1}:{S_M1+1}], s[{S_NONCE}:{S_NONCE+1}], v[{vt+6}:{vt+7}]")
            a("s_nop 0")
            a(f"s_or_b64 s[{T4}:{T5}], s[{T4}:{T5}], vcc")
            a(f"s_or_b64 s[{T4}:{T5}], s[{T4}:{T5}], s[{S_M1}:{S_M1+1}]")
        else:
            a(f"v_and_b32 v{vt+2}, {n-1}, v0")
            a(f"v_mul_u32_u24 v{vt+2}, {spacing}, v{vt+2}")
            a.label(L)
            a(f"buffer_load_dwordx2 v[{vt}:{vt+1}], v{vt+2}, s[{SRD_WS}:{SRD_WS+3}], s{s_off} offen sc1")
            a(f"s_add_u32 s{S_SPIN}, s{S_SPIN}, 1")
            a("s_waitcnt vmcnt(0)")
            a(f"v_cmp_ne_u64 vcc, s[{S_NONCE}:{S_NONCE+1}], v[{vt}:{vt+1}]")
            a("s_nop 0")
            a(f"s_or_b64 s[{T4}:{T5}], vcc, vcc")
        a(f"s_cbranch_scc0 {Ld}")
        a(f"s_cmp_lt_u32 s{S_SPIN}, {SPIN_MAX}")
        a(f"s_cbranch_scc1 {L}")
        a.label(Ld)

    def poll2(self, va, vb, s_off, vt):
        a = self.a
        L = a.newlabel("poll"); Ld = a.newlabel("polld")
        N = f"s[{S_NONCE}:{S_NONCE+1}]"
        a(f"s_cmp_lg_u32 s{S_W}, 0")
        a(f"s_cbranch_scc1 {Ld}")
        a(f"s_mov_b32 s{S_SPIN}, 0")
        a.label(L)
        a(f"buffer_load_dwordx2 v[{vt}:{vt+1}], v{va}, s[{SRD_WS}:{SRD_WS+3}], s{s_off} offen sc1")
        a(f"buffer_load_dwordx2 v[{vt+2}:{vt+3}], v{vb}, s[{SRD_WS}:{SRD_WS+3}], s{s_off} offen sc1")
        a(f"s_add_u32 s{S_SPIN}, s{S_SPIN}, 1")
        a("s_waitcnt vmcnt(0)")
        a(f"v_cmp_ne_u64 vcc, {N}, v[{vt}:{vt+1}]")
        a(f"v_cmp_ne_u64 s[{S_M1}:{S_M1+1}], {N}, v[{vt+2}:{vt+3}]")
        a("s_nop 0")
        a(f"s_or_b64 vcc, vcc, s[{S_M1}:{S_M1+1}]")
        a(f"s_cbranch_scc0 {Ld}")
        a(f"s_cmp_lt_u32 s{S_SPIN}, {SPIN_MAX}")
        a(f"s_cbranch_scc1 {L}")
        a.label(Ld)

    def entry(self):
        a = self.a
        a(f"s_cmp_ge_u32 s{S_G}, 256")
        a("s_cbranch_scc1 L_end")
        a(f"s_load_dwordx16 s[{S_PTR}:{S_PTR+15}], s[0:1], 0")
        a(f"s_load_dwordx2 s[{S_PTR+16}:{S_PTR+17}], s[0:1], 64")
        a(f"s_memrealtime s[{S_NONCE}:{S_NONCE+1}]")
        if self.o.get("stamps"): a("v_mov_b32 v255, 0")
        self.stamp(0)
        a("v_lshrrev_b32 v1, 6, v0")
        a("v_and_b32 v0, 63, v0")
        a(f"v_readfirstlane_b32 s{S_W}, v1")
        a(f"s_and_b32 s{S_C}, s{S_G}, 7")
        a(f"s_lshr_b32 s{S_J}, s{S_G}, 3")

    ACC = 16; XF = 160; WF = 176; XA = 72; WA = 144; DXA, DXB, DW = 78, 79, 80; VXM = 76
    ONES = 82
    CQ = 96
    CQA = 81; CSW = 85
    RSA, RS = 84, 128
    STA = 86
    RLV, RLA = 157, 158
    VN = 92
    sRB, sCT, sKC, sXO, sWO, sSLOT, sCNT, sXM, sTG, sNH = 64, 65, 66, 67, 68, 69, 70, 71, 72, 73
    sTAB = 74
    sM0X = 80; sWO2 = 81; sKC0 = 82; sSIDE = 83; sI1 = 71; sI2 = 34; sSM = 35
    sRL = 84
    P1_MISC = 148 * 1024
    RL_SCR = 68 * 1024
    CQ_SCR = 128 * 1024
    DUMMY = 159 * 1024
    CPF_LINES = 8

    def p1_issue(self, pieces=(0, 1, 2, 3)):
        a = self.a
        if 0 in pieces:
            a(f"s_add_u32 m0, s{self.sM0X}, s{self.sSLOT}")
            a(f"s_add_u32 s{self.sKC}, s{self.sKC}, 1")
            self.dma(self.DXA, SRD_X, f"s{self.sXO}")
        if 1 in pieces:
            a("s_add_u32 m0, m0, 16384")
            a(f"s_add_u32 s{self.sWO2}, s{self.sWO}, 15360")
            self.dma(self.DW, SRD_WQ, f"s{self.sWO}")
        if 2 in pieces:
            a("s_sub_u32 m0, m0, 15360")
            a(f"s_add_u32 s{self.sWO}, s{self.sWO}, 245760")
            self.dma(self.DXB, SRD_X, f"s{self.sXO}")
        if 3 in pieces:
            a("s_add_u32 m0, m0, 16384")
            a(f"s_add_u32 s{self.sXO}, s{self.sXO}, 128")
            self.dma(self.DW, SRD_WQ, f"s{self.sWO2}")
            a(f"s_cmp_eq_u32 s{self.sKC}, 10")
            a(f"s_cselect_b32 s{T0}, 1280, 0")
            a(f"s_cselect_b32 s{T1}, 2457600, 0")
            a(f"s_cselect_b32 s{self.sKC}, 0, s{self.sKC}")
            a(f"s_sub_u32 s{self.sXO}, s{self.sXO}, s{T0}")
            a(f"s_sub_u32 s{self.sWO}, s{self.sWO}, s{T1}")
            a(f"s_add_u32 s{self.sSLOT}, s{self.sSLOT}, 32768")
            a(f"s_and_b32 s{self.sSLOT}, s{self.sSLOT}, 0x1ffff")

    def p1_setup_a(self):
        a = self.a
        a(f"s_lshr_b32 s{T0}, s{S_C}, 1")
        a(f"s_lshl_b32 s{T0}, s{T0}, 2")
        a(f"s_lshr_b32 s{T1}, s{S_J}, 3")
        a(f"s_add_u32 s{self.sRB}, s{T0}, s{T1}")
        a(f"s_and_b32 s{T0}, s{S_C}, 1")
        a(f"s_lshl_b32 s{T0}, s{T0}, 3")
        a(f"s_and_b32 s{T2}, s{S_J}, 7")
        a(f"s_add_u32 s{self.sCT}, s{T0}, s{T2}")
        g = int(self.o.get("rotg", 3))
        if g == 8:
            a(f"s_lshl_b32 s{T1}, s{T1}, 1")
            a(f"s_add_u32 s{self.sKC}, s{T2}, s{T1}")
            a(f"s_bfe_u32 s{T0}, s{S_C}, 0x10001")
            a(f"s_and_b32 s{T1}, s{S_C}, 4")
            a(f"s_lshl_b32 s{T1}, s{T1}, 1")
            a(f"s_add_u32 s{T0}, s{T0}, s{T1}")
            a(f"s_add_u32 s{self.sKC}, s{self.sKC}, s{T0}")
        else:
            bases, offs, shift = {3: ((0, 3, 7), (0, 1, 2, 6), 0), 4: ((0, 2, 5, 7), (0, 1, 2, 3), 0), 5: ((0, 2, 4, 6, 8), (0, 1, 0, 1), 1)}[g]
            a(f"s_add_u32 s{T1}, s{T1}, s{T2}")
            a(f"s_lshr_b32 s{T0}, s{S_C}, 1")
            if shift: a(f"s_add_u32 s{T1}, s{T1}, s{T0}")
            tab = sum(bases[i % g] << (4 * i) for i in range(16))
            a(f"s_lshl_b32 s{T1}, s{T1}, 2")
            a(f"s_mov_b32 s{T4}, 0x{tab & 0xffffffff:08x}")
            a(f"s_mov_b32 s{T5}, 0x{tab >> 32:08x}")
            a(f"s_lshr_b64 s[{T4}:{T5}], s[{T4}:{T5}], s{T1}")
            a(f"s_and_b32 s{self.sKC}, s{T4}, 15")
            a(f"s_lshl_b32 s{T0}, s{T0}, 2")
            a(f"s_lshr_b32 s{T0}, 0x{sum(o << (4 * i) for i, o in enumerate(offs)):04x}, s{T0}")
            a(f"s_and_b32 s{T0}, s{T0}, 15")
            a(f"s_add_u32 s{self.sKC}, s{self.sKC}, s{T0}")
            for ct in range(8):
                assert len({(bases[(ct + rl + shift * aa) % g] + offs[aa]) % 10 for aa in range(4) for rl in range(4)}) == 10
        a(f"s_mul_i32 s{T0}, s{self.sKC}, 26")
        a(f"s_lshr_b32 s{T0}, s{T0}, 8")
        a(f"s_mul_i32 s{T0}, s{T0}, 10")
        a(f"s_sub_u32 s{self.sKC}, s{self.sKC}, s{T0}")
        a(f"s_mov_b32 s{self.sKC0}, s{self.sKC}")
        a(f"s_mul_i32 s{self.sXO}, s{self.sRB}, 163840")
        a(f"s_lshl_b32 s{T0}, s{self.sKC}, 7")
        a(f"s_add_u32 s{self.sXO}, s{self.sXO}, s{T0}")
        a(f"s_mul_i32 s{self.sWO}, s{self.sKC}, 245760")
        a(f"s_lshl_b32 s{T0}, s{self.sCT}, 8")
        a(f"s_add_u32 s{self.sWO}, s{self.sWO}, s{T0}")
        a(f"s_lshl_b32 s{self.sM0X}, s{S_W}, 11")
        a(f"s_mov_b32 s{self.sSLOT}, 0")
        a(f"s_mov_b64 s[{SRD_RL}:{SRD_RL+1}], 0")
        a(f"s_mov_b32 s{SRD_RL+2}, 0")
        a(f"s_mov_b32 s{SRD_RL+3}, 0x20000")
        a(f"v_mov_b32 v{self.RLV}, 0")
        a("v_lshrrev_b32 v1, 3, v0")
        a("v_lshrrev_b32 v2, 4, v0")
        a("v_and_b32 v3, 7, v0")
        a("v_xor_b32 v3, v3, v2")
        a(f"s_lshl_b32 s{T0}, s{S_W}, 4")
        a(f"v_add_u32 v4, s{T0}, v1")
        a("v_mul_u32_u24 v4, 1280, v4")
        a(f"v_lshl_add_u32 v{self.DXA}, v3, 4, v4")
        a(f"v_xor_b32 v{self.DXB}, 64, v{self.DXA}")
        a(f"v_add_u32 v{self.DXB}, 10240, v{self.DXB}")
        a("v_lshlrev_b32 v3, 2, v2")
        a("v_and_b32 v4, 15, v0")
        a("v_xor_b32 v3, v3, v4")
        a(f"s_lshl_b32 s{T0}, s{S_W}, 3")
        a(f"v_add_u32 v4, s{T0}, v2")
        a("v_mul_u32_u24 v4, 3840, v4")
        a(f"v_lshl_add_u32 v{self.DW}, v3, 4, v4")
        a("s_waitcnt lgkmcnt(0)")
        self.srd(SRD_X, S_PTR + 0, 2048 * 1280)
        self.srd(SRD_WQ, S_PTR + 2, 640 * 3840)
        a(f"s_cmp_eq_u32 s{self.sCT}, 15")
        a("s_cbranch_scc1 L_p1_noissue")
        self.p1_issue()
        if self.o.get("first5", "1") == "1": self.p1_issue((0,))
        a.label("L_p1_noissue")
        self.stamp(1)
        self.srd(SRD_WS, S_PTR + 16, WS_SIZE + ((1 << 20) if self.o.get("stamps") else 0))
        self.srd(SRD_OUT, S_PTR + 12, 2048 * 1280)
        self.srd(SRD_DBG, S_PTR + 14, 256)
        if self.o.get("cpf", "1") == "1":
            Lc = a.newlabel("cpf")
            a(f"s_cmp_lg_u32 s{S_W}, 7")
            a(f"s_cbranch_scc1 {Lc}")
            a(f"s_getpc_b64 s[{T4}:{T5}]")
            a.label("L_pc_here")
            a(f"s_mul_i32 s{T0}, s{S_J}, {self.CPF_LINES*128}")
            a(f"s_sub_u32 s{T0}, s{T0}, L_pc_here-{NAME}_kernel")
            a(f"v_min_u32 v3, {self.CPF_LINES-1}, v0")
            a(f"v_lshl_add_u32 v3, v3, 7, s{T0}")
            a("v_ashrrev_i32 v5, 31, v3")
            a(f"v_mov_b32 v6, s{T5}")
            a(f"v_add_co_u32 v4, vcc, s{T4}, v3")
            a("s_nop 1")
            a("v_addc_co_u32 v5, vcc, v5, v6, vcc")
            a("global_load_dword v254, v[4:5], off")
            a.label(Lc)
        a(f"s_or_b32 s{T0}, s{S_G}, s{S_W}")
        a("s_cbranch_scc1 L_nonce_done")
        a("v_mov_b32 v3, 0")
        a(f"v_mov_b32 v4, s{S_NONCE}")
        a(f"v_mov_b32 v5, s{S_NONCE+1}")
        a("s_mov_b64 exec, 1")
        a(f"buffer_store_dwordx2 v[4:5], v3, s[{SRD_DBG}:{SRD_DBG+3}], 0 offen sc1")
        a("s_mov_b64 exec, -1")
        a.label("L_nonce_done")

    def relayout_setup(self):
        a = self.a
        R = self.sRL
        u = a.newlabel("u")
        sID, sKS, sCB, sST, sA, sB, sCc, sD = T0, T1, T2, T3, 93, 94, 95, 96
        sBase, sSl, sKsS = 97, 98, 99
        a(f"s_mul_i32 s{sID}, s{S_G}, 5")
        a(f"s_add_u32 s{sID}, s{sID}, s{S_W}")
        a(f"s_sub_u32 s{sID}, s{sID}, 1")
        a(f"s_min_u32 s{sID}, s{sID}, 1279")
        a(f"s_mov_b32 s{sA}, 16")
        a(f"s_mov_b32 s{sB}, 8")
        a(f"s_mov_b32 s{sCc}, 4")
        a(f"s_mov_b32 s{SRD_RL+3}, 0x20000")
        a(f"s_mov_b32 s{R+8}, -1")
        a(f"s_cmp_lt_u32 s{sID}, 200")
        a(f"s_cbranch_scc1 L_rl_wo{u}")
        a(f"s_cmp_lt_u32 s{sID}, 740")
        a(f"s_cbranch_scc1 L_rl_w1{u}")
        a(f"s_sub_u32 s{sID}, s{sID}, 740")
        a(f"s_mul_i32 s{sKS}, s{sID}, 6554")
        a(f"s_lshr_b32 s{sKS}, s{sKS}, 16")
        a(f"s_mul_i32 s{sCB}, s{sKS}, 10")
        a(f"s_sub_u32 s{sCB}, s{sID}, s{sCB}")
        a(f"s_lshl_b32 s{sD}, s{sKS}, 5")
        a(f"s_mov_b32 s{SRD_RL}, s{S_PTR+10}")
        a(f"s_and_b32 s{SRD_RL+1}, s{S_PTR+11}, 0xffff")
        a(f"s_mov_b32 s{SRD_RL+2}, {1728*1280}")
        a(f"s_mov_b32 s{sBase}, {WS_W2}")
        a(f"s_mov_b32 s{sSl}, {54*5120}")
        a(f"s_add_u32 s{T4}, s{sKS}, 3")
        a(f"s_cmp_ge_u32 s{sKS}, 24")
        a(f"s_cselect_b32 s{T4}, s{T4}, s{sKS}")
        a(f"s_sub_u32 s{T5}, s{sKS}, 24")
        a(f"s_cmp_ge_u32 s{sKS}, 48")
        a(f"s_cselect_b32 s{T4}, s{T5}, s{T4}")
        a(f"s_cmp_ge_u32 s{sKS}, 51")
        a(f"s_cselect_b32 s{sKS}, s{sKS}, s{T4}")
        a(f"s_branch L_rl_n640{u}")
        a.label(f"L_rl_wo{u}")
        a(f"s_mul_i32 s{sKS}, s{sID}, 6554")
        a(f"s_lshr_b32 s{sKS}, s{sKS}, 16")
        a(f"s_mul_i32 s{sCB}, s{sKS}, 10")
        a(f"s_sub_u32 s{sCB}, s{sID}, s{sCB}")
        a(f"s_mul_i32 s{sD}, s{sKS}, 40")
        a(f"s_mul_i32 s{sST}, s{sKS}, 160")
        a(f"s_sub_u32 s{sST}, s{sST}, {160*16-16}")
        a(f"s_cmp_lt_u32 s{sKS}, 16")
        a(f"s_cselect_b32 s{sD}, s{sD}, s{sST}")
        a(f"s_cselect_b32 s{sA}, 8, 20")
        a(f"s_cselect_b32 s{sB}, 20, 0x50")
        a(f"s_cselect_b32 s{sCc}, 4, 40")
        a(f"s_mov_b32 s{SRD_RL}, s{S_PTR+4}")
        a(f"s_and_b32 s{SRD_RL+1}, s{S_PTR+5}, 0xffff")
        a(f"s_mov_b32 s{SRD_RL+2}, {640*1280}")
        a(f"s_mov_b32 s{sBase}, {WS_WO}")
        a(f"s_mov_b32 s{sSl}, {20*5120}")
        a(f"s_add_u32 s{T4}, s{sKS}, 2")
        a(f"s_cmp_ge_u32 s{sKS}, 8")
        a(f"s_cselect_b32 s{T4}, s{T4}, s{sKS}")
        a(f"s_sub_u32 s{T5}, s{sKS}, 8")
        a(f"s_cmp_ge_u32 s{sKS}, 16")
        a(f"s_cselect_b32 s{T4}, s{T5}, s{T4}")
        a(f"s_cmp_ge_u32 s{sKS}, 18")
        a(f"s_cselect_b32 s{sKS}, s{sKS}, s{T4}")
        a.label(f"L_rl_n640{u}")
        a(f"s_mov_b32 s{sST}, 1280")
        a(f"s_mul_i32 s{sKsS}, s{sKS}, 5120")
        a(f"s_add_u32 s{sBase}, s{sBase}, s{sKsS}")
        for t in range(4):
            a(f"s_lshl_b32 s{T4}, s{sCB}, 2")
            a(f"s_add_u32 s{T4}, s{T4}, {t}")
            a(f"s_mul_i32 s{T5}, s{T4}, 52")
            a(f"s_lshr_b32 s{T5}, s{T5}, 8")
            a(f"s_mul_i32 s{R+4+t}, s{T5}, s{sSl}")
            a(f"s_mul_i32 s{T5}, s{T5}, 5")
            a(f"s_sub_u32 s{T4}, s{T4}, s{T5}")
            a(f"s_lshl_b32 s{T4}, s{T4}, 10")
            a(f"s_add_u32 s{R+4+t}, s{R+4+t}, s{T4}")
            a(f"s_add_u32 s{R+4+t}, s{R+4+t}, s{sBase}")
        a(f"s_branch L_rl_common{u}")
        a.label(f"L_rl_w1{u}")
        a(f"s_sub_u32 s{sID}, s{sID}, 200")
        a(f"s_mul_i32 s{sKS}, s{sID}, 2428")
        a(f"s_lshr_b32 s{sKS}, s{sKS}, 16")
        a(f"s_mul_i32 s{sCB}, s{sKS}, 27")
        a(f"s_sub_u32 s{sCB}, s{sID}, s{sCB}")
        a(f"s_lshr_b32 s{T4}, s{sKS}, 1")
        a(f"s_mul_i32 s{T4}, s{T4}, 0x50")
        a(f"s_and_b32 s{T5}, s{sKS}, 1")
        a(f"s_lshl_b32 s{T5}, s{T5}, 5")
        a(f"s_add_u32 s{sD}, s{T4}, s{T5}")
        a(f"s_mul_i32 s{T4}, s{sKS}, 160")
        a(f"s_sub_u32 s{T4}, s{T4}, {160*16-64}")
        a(f"s_cmp_lt_u32 s{sKS}, 16")
        a(f"s_cselect_b32 s{sD}, s{sD}, s{T4}")
        a(f"s_cselect_b32 s{sA}, 16, 0x50")
        a(f"s_mov_b32 s{SRD_RL}, s{S_PTR+8}")
        a(f"s_and_b32 s{SRD_RL+1}, s{S_PTR+9}, 0xffff")
        a(f"s_mov_b32 s{SRD_RL+2}, {640*3456}")
        a(f"s_mov_b32 s{sST}, 3456")
        a(f"s_mul_i32 s{sKsS}, s{sKS}, 7168")
        a(f"s_add_u32 s{sBase}, s{sKsS}, {WS_W1}")
        a(f"s_mul_i32 s{R+8}, s{sKS}, {1728*4}")
        a(f"s_lshl_b32 s{T4}, s{sCB}, 8")
        a(f"s_add_u32 s{R+8}, s{R+8}, s{T4}")
        a(f"s_add_u32 s{R+8}, s{R+8}, {WS_CS1}")
        for t in range(4):
            a(f"s_lshl_b32 s{T4}, s{sCB}, 2")
            a(f"s_add_u32 s{T4}, s{T4}, {t}")
            a(f"s_mul_i32 s{T5}, s{T4}, 43")
            a(f"s_lshr_b32 s{T5}, s{T5}, 8")
            a(f"s_mul_i32 s{sSl}, s{T5}, 6")
            a(f"s_sub_u32 s{sSl}, s{T4}, s{sSl}")
            a(f"s_sub_u32 s{sKsS}, s{T4}, 96")
            a(f"s_cmp_lt_u32 s{T4}, 96")
            a(f"s_cselect_b32 s{T5}, s{T5}, s{sKsS}")
            a(f"s_cselect_b32 s{sSl}, s{sSl}, 6")
            a(f"s_mul_i32 s{R+4+t}, s{T5}, {20*7168}")
            a(f"s_lshl_b32 s{sSl}, s{sSl}, 10")
            a(f"s_add_u32 s{R+4+t}, s{R+4+t}, s{sSl}")
            a(f"s_add_u32 s{R+4+t}, s{R+4+t}, s{sBase}")
        a.label(f"L_rl_common{u}")
        a(f"s_mul_i32 s{sD}, s{sD}, s{sST}")
        a(f"s_lshl_b32 s{T4}, s{sCB}, 7")
        a(f"s_add_u32 s{R}, s{sD}, s{T4}")
        a(f"s_mul_i32 s{sA}, s{sA}, s{sST}")
        a(f"s_mul_i32 s{sB}, s{sB}, s{sST}")
        a(f"s_add_u32 s{R+1}, s{R}, s{sB}")
        a(f"s_add_u32 s{R+2}, s{R}, s{sA}")
        a(f"s_add_u32 s{R+3}, s{R+2}, s{sB}")
        a("v_lshrrev_b32 v1, 5, v0")
        a(f"v_mul_u32_u24 v1, s{sCc}, v1")
        a("v_bfe_u32 v2, v0, 3, 2")
        a("v_add_u32 v1, v1, v2")
        a(f"v_mul_u32_u24 v1, s{sST}, v1")
        a("v_and_b32 v2, 7, v0")
        a(f"v_lshl_add_u32 v{self.RLV}, v2, 4, v1")
        a("v_lshrrev_b32 v1, 2, v0")
        a("v_lshlrev_b32 v1, 7, v1")
        a("v_and_b32 v2, 3, v0")
        a("v_lshl_add_u32 v1, v2, 3, v1")
        a(f"s_lshl_b32 s{T4}, s{S_W}, 12")
        a(f"s_add_u32 s{T4}, s{T4}, {self.RL_SCR-4096}")
        a(f"v_add_u32 v{self.RLA}, s{T4}, v1")

    def relayout_issue(self, drain_older=False):
        a = self.a
        L = a.newlabel("rlsk")
        a(f"s_sub_u32 s{T0}, s{S_W}, 1")
        a(f"s_cmp_ge_u32 s{T0}, {0 if self.o.get('norl') else 5}")
        a(f"s_cbranch_scc1 {L}")
        a(f"s_lshl_b32 s{T0}, s{S_W}, 12")
        a(f"s_add_u32 m0, s{T0}, {self.RL_SCR-4096}")
        for i in range(4):
            if i: a("s_add_u32 m0, m0, 1024")
            a("s_nop 0")
            self.dma(self.RLV, SRD_RL, f"s{self.sRL+i}")
        if drain_older:
            L2 = a.newlabel("rlw")
            a("s_waitcnt vmcnt(4)")
            a(f"s_branch {L2}")
            a.label(L)
            a("s_waitcnt vmcnt(0)")
            a.label(L2)
        else:
            a.label(L)

    def relayout_finish(self, younger=None):
        a = self.a
        L = a.newlabel("rlsk"); F = 168; t = 184
        a(f"s_sub_u32 s{T0}, s{S_W}, 1")
        a(f"s_cmp_ge_u32 s{T0}, 5")
        Lo = a.newlabel("rlo")
        a(f"s_cbranch_scc1 {Lo if younger is not None else L}")
        if younger is not None: a(f"s_waitcnt vmcnt({younger})")
        for q in range(4):
            for rd in range(2):
                a(f"ds_read_b64_tr_b16 v[{F+4*q+2*rd}:{F+4*q+2*rd+1}], v{self.RLA} offset:{rd*2048+q*32}")
        a(f"v_lshlrev_b32 v{t}, 4, v0")
        for q in range(4):
            a(f"s_waitcnt lgkmcnt({6-2*q})")
            a(f"buffer_store_dwordx4 v[{F+4*q}:{F+4*q+3}], v{t}, s[{SRD_WS}:{SRD_WS+3}], s{self.sRL+4+q} offen sc1")
        if younger is not None: a("s_waitcnt vmcnt(4)")
        a(f"s_cmp_eq_u32 s{self.sRL+8}, -1")
        a(f"s_cbranch_scc1 {L}")
        for q in range(4): a(f"v_mov_b32 v{t+2+q}, 0")
        a(f"v_mov_b32 v{t+6}, 0x3f803f80")
        for k in range(4):
            for q in range(4): a(f"v_dot2_f32_bf16 v{t+2+q}, v{F+4*q+k}, v{t+6}, v{t+2+q}")
        a(f"v_lshlrev_b32 v{t+1}, 2, v0")
        a("s_nop 1")
        a(f"v_permlane16_swap_b32 v{t+2}, v{t+3}")
        a(f"v_permlane16_swap_b32 v{t+4}, v{t+5}")
        a("s_nop 0")
        a(f"v_add_f32 v{t+2}, v{t+2}, v{t+3}")
        a(f"v_add_f32 v{t+4}, v{t+4}, v{t+5}")
        a("s_nop 1")
        a(f"v_permlane32_swap_b32 v{t+2}, v{t+4}")
        a("s_nop 0")
        a(f"v_add_f32 v{t+2}, v{t+2}, v{t+4}")
        a(f"buffer_store_dword v{t+2}, v{t+1}, s[{SRD_WS}:{SRD_WS+3}], s{self.sRL+8} offen sc1")
        if younger is not None:
            a(f"s_branch {L}")
            a.label(Lo)
            a("s_waitcnt vmcnt(0)")
        a.label(L)

    def p1_setup_b(self):
        a = self.a
        a(f"s_and_b32 s{self.sTG}, s{S_W}, 3")
        a(f"s_lshr_b32 s{self.sNH}, s{S_W}, 2")
        a(f"s_cmp_ge_u32 s{self.sCT}, 5")
        a(f"s_cselect_b32 s{T0}, 5, 0")
        a(f"s_sub_u32 s{T0}, s{self.sCT}, s{T0}")
        a(f"s_lshl_b32 s{T0}, s{T0}, 1")
        a(f"s_add_u32 s{T0}, s{T0}, s{self.sNH}")
        for idx in range(10):
            a(f"s_cmp_eq_u32 s{T0}, {idx}")
            a(f"s_cbranch_scc1 L_tab{idx}")
        a(f"s_mul_i32 s{T1}, s{self.sNH}, 0x10101010")
        for k in range(4): a(f"s_add_u32 s{self.sTAB+k}, s{T1}, 0x%08x" % (0x03020100 + 0x04040404 * k))
        a(f"s_mov_b32 s{self.sTAB+4}, 0")
        a(f"s_mov_b32 s{self.sTAB+5}, 0")
        a("s_branch L_tabdone")
        for idx in range(10):
            a.label(f"L_tab{idx}")
            for k, d in enumerate(p1_table(idx // 2, idx % 2)): a(f"s_mov_b32 s{self.sTAB+k}, 0x%08x" % d)
            if idx < 9: a("s_branch L_tabdone")
        a.label("L_tabdone")
        a("v_and_b32 v1, 31, v0")
        a(f"s_lshl_b32 s{T0}, s{self.sTG}, 5")
        a(f"v_add_u32 v2, s{T0}, v1")
        a("v_bfe_u32 v3, v2, 1, 3")
        a("v_lshrrev_b32 v4, 5, v0")
        a("v_xor_b32 v3, v3, v4")
        a("v_lshlrev_b32 v3, 4, v3")
        a(f"v_lshl_add_u32 v{self.XA}, v2, 7, v3")
        a(f"s_xor_b32 s{T3}, s{self.sTG}, s{self.sNH}")
        a(f"s_lshl_b32 s{T0}, s{T3}, 5")
        a(f"v_xor_b32 v{self.XA}, s{T0}, v{self.XA}")
        for ks in range(1, 4): a(f"v_xor_b32 v{self.XA+ks}, {ks<<5}, v{self.XA}")
        a("v_bfe_u32 v5, v0, 2, 2")
        a("v_lshl_add_u32 v6, v4, 3, v5")
        a("v_lshlrev_b32 v6, 8, v6")
        a("v_and_b32 v7, 3, v0")
        a("v_lshlrev_b32 v7, 3, v7")
        a("v_and_b32 v8, 16, v0")
        a("v_cmp_ne_u32 vcc, 0, v8")
        for i in range(2):
            a(f"v_mov_b32 v8, s{self.sTAB+2*i}")
            a(f"v_mov_b32 v9, s{self.sTAB+2*i+1}")
            a("v_cndmask_b32 v8, v8, v9, vcc")
            a("v_bfe_u32 v8, v8, v7, 8")
            a("v_lshlrev_b32 v8, 3, v8")
            a("v_lshlrev_b32 v9, 6, v5")
            a("v_xor_b32 v8, v8, v9")
            a(f"v_add_u32 v8, v6, v8")
            a(f"s_lshl_b32 s{T0}, s{T3}, 12")
            a(f"v_add_u32 v{self.WA+4*i}, s{T0}, v8")
            for j in range(1, 4): a(f"v_xor_b32 v{self.WA+4*i+j}, {j<<12}, v{self.WA+4*i}")
        a(f"s_lshl_b32 s{T0}, s{self.sRB}, 2")
        a(f"s_add_u32 s{T0}, s{T0}, s{self.sTG}")
        a(f"s_lshl_b32 s{T1}, s{T0}, 9")
        a(f"s_add_u32 s{T1}, s{T1}, {WS_RS}")
        a(f"v_lshl_add_u32 v{self.RSA}, v1, 4, s{T1}")
        a(f"s_cmp_ge_u32 s{self.sCT}, 10")
        a("s_cbranch_scc1 L_p1_vaddr")
        a(f"s_lshl_b32 s{T0}, s{T0}, 9")
        a(f"s_cmp_ge_u32 s{self.sCT}, 5")
        a(f"s_cselect_b32 s{T1}, {WS_K}, {WS_Q}")
        a(f"s_add_u32 s{T0}, s{T0}, s{T1}")
        a(f"v_lshl_add_u32 v2, v1, 4, s{T0}")
        a("v_lshlrev_b32 v3, 3, v4")
        a("v_add_u32 v5, 16, v3")
        for i in range(2):
            for qq in range(2):
                a(f"v_bfe_u32 v6, s{self.sTAB+4+i}, v{3 if qq == 0 else 5}, 8")
                a(f"v_lshl_add_u32 v{self.STA+2*i+qq}, v6, 15, v2")
        a("s_branch L_p1_addrdone")
        a.label("L_p1_vaddr")
        a(f"s_mul_i32 s{T0}, s{T0}, 1280")
        a(f"s_add_u32 s{T0}, s{T0}, {WS_V}")
        a(f"s_lshl_b32 s{T1}, s{self.sCT}, 7")
        a(f"s_lshl_b32 s{T2}, s{self.sNH}, 6")
        a(f"s_add_u32 s{T1}, s{T1}, s{T2}")
        a(f"s_sub_u32 s{T1}, s{T1}, 1280")
        a(f"v_mov_b32 v{self.STA+2}, 0")
        a(f"v_mov_b32 v{self.STA+3}, 0")
        a("v_mul_u32_u24 v3, 320, v4")
        a(f"v_add_u32 v3, s{T0}, v3")
        a(f"s_mov_b32 s{T2}, 81920")
        for i in range(2):
            a(f"v_add_u32 v5, s{T1}, v1")
            if i: a("v_add_u32 v5, 32, v5")
            a("v_mul_u32_u24 v6, 3277, v5")
            a("v_lshrrev_b32 v6, 16, v6")
            a("v_mul_u32_u24 v7, 20, v6")
            a("v_sub_u32 v5, v5, v7")
            a("v_lshl_add_u32 v5, v5, 4, v3")
            a(f"v_mad_u32_u24 v{self.STA+i}, v6, s{T2}, v5")
        a.label("L_p1_addrdone")
        for r in range(32): a(f"v_mov_b32 v{self.ACC+r}, 0")
        a(f"s_mul_i32 s{T0}, s{self.sCT}, 10240")
        a(f"s_lshl_b32 s{T1}, s{self.sNH}, 9")
        a(f"s_add_u32 s{T0}, s{T0}, s{T1}")
        a(f"s_add_u32 s{T0}, s{T0}, {WS_CQ}")
        a(f"v_lshl_add_u32 v{self.CQA}, v0, 3, s{T0}")
        a(f"s_lshl_b32 s{T0}, s{self.sNH}, 8")
        a(f"s_lshl_b32 s{T1}, s{self.sTG}, 9")
        a(f"s_add_u32 s{T0}, s{T0}, {self.P1_MISC}")
        a(f"s_add_u32 s{T1}, s{T1}, s{T0}")
        a(f"v_lshl_add_u32 v{self.CSW}, v0, 2, s{T1}")
        a(f"v_lshl_add_u32 v95, v0, 2, s{T0}")
        a(f"v_mov_b32 v{self.VXM}, 0x8000")
        a(f"s_mov_b32 s{self.sCNT}, -1")

    def p1_loop(self, vmode):
        a = self.a
        tag = "v" if vmode else "q"
        a(f"s_cmp_lg_u32 s{self.sNH}, 0")
        a(f"s_cbranch_scc1 L_p1_B{tag}")
        self.p1_loop1(vmode, 0)
        a(f"s_branch L_p1_E{tag}")
        a.label(f"L_p1_B{tag}")
        self.p1_loop1(vmode, 1)
        a.label(f"L_p1_E{tag}")
        reads, xors, mf = self.p1_parts(vmode)
        def comp(ks, rd=True, xr=True):
            a(f"s_waitcnt lgkmcnt({5 if rd or ks == 2 else 0})")
            mf(ks, 0)
            if rd: reads((ks + 2) % 4)
            mf(ks, 1)
            if xr: xors((ks + 2) % 4)
        comp(0); self.p1_issue((2,))
        comp(1); self.p1_issue((3,))
        a(f"buffer_load_dwordx4 v[{self.RS}:{self.RS+3}], v{self.RSA}, s[{SRD_WS}:{SRD_WS+3}], 0 offen sc1")
        a(f"s_mul_i32 s{T0}, s{self.sCT}, 10240")
        a(f"s_lshl_b32 s{T1}, s{S_W}, 10")
        a(f"s_add_u32 s{T0}, s{T0}, s{T1}")
        a(f"s_add_u32 s{T0}, s{T0}, {WS_CQ}")
        a(f"s_add_u32 m0, s{T1}, {self.CQ_SCR}")
        a("v_lshlrev_b32 v1, 4, v0")
        self.dma(1, SRD_WS, f"s{T0}", "sc1")
        a(f"s_add_u32 s{T0}, s{T0}, 8192")
        a("s_add_u32 m0, m0, 8192")
        a(f"s_cmp_ge_u32 s{S_W}, 2")
        a(f"s_cselect_b32 s{T0}, 0x7f000000, s{T0}")
        self.dma(1, SRD_WS, f"s{T0}", "sc1")
        a("s_waitcnt vmcnt(7)")
        a("s_barrier")
        comp(2); comp(3)
        comp(0); comp(1)
        a("s_waitcnt vmcnt(3)")
        a("s_barrier")
        comp(2, xr=False); comp(3, xr=False)
        comp(0, xr=False); comp(1, xr=False)
        comp(2, False, False)
        a("s_waitcnt vmcnt(0)")
        comp(3, False, False)
        a("s_barrier")

    def p1_parts(self, vmode):
        a = self.a
        def reads(ks):
            if self.o.get("nolds"): return
            a(f"ds_read_b128 v[{self.XF+4*ks}:{self.XF+4*ks+3}], v{self.XA+ks}")
            for i in range(2):
                for rd in range(2):
                    d = self.WF + 8 * ks + 4 * i + 2 * rd
                    a(f"ds_read_b64_tr_b16 v[{d}:{d+1}], v{self.WA+4*i+ks} offset:{16384+rd*1024}")
        def xors(ks):
            for r in (self.XA + ks, self.WA + ks, self.WA + 4 + ks): a(f"v_xor_b32 v{r}, v{self.VXM}, v{r}")
            if ks == 3: a(f"v_xor_b32 v{self.VXM}, 0x10000, v{self.VXM}")
        def mf(ks, i):
            x = vr(self.XF + 4 * ks, 4); wv = vr(self.WF + 8 * ks + 4 * i, 4); acc = vr(self.ACC + 16 * i, 16)
            if self.o.get("nomfma"): pass
            elif vmode: a(f"v_mfma_f32_32x32x16_bf16 {acc}, {x}, {wv}, {acc}")
            else: a(f"v_mfma_f32_32x32x16_bf16 {acc}, {wv}, {x}, {acc}")
        return reads, xors, mf

    def p1_loop1(self, vmode, B):
        a = self.a
        L = a.newlabel("p1loop")
        pos = self.o.get("barB" if B else "barA", "1" if B else "0")
        reads, xors, mf = self.p1_parts(vmode)
        def bar():
            a("s_waitcnt vmcnt(4)")
            if not self.o.get("nobar"): a("s_barrier")
            if self.o.get("its") == "1": self.stamp_dyn(54, self.sCNT)
        def comp(ks):
            n = (ks + 2) % 4
            if ks == 2 and pos == "0": bar()
            a("s_waitcnt lgkmcnt(5)")
            mf(ks, 0)
            if ks == 2 and pos == "1": bar()
            if ks == 2 and pos == "2":
                mf(ks, 1); bar(); reads(n)
            else:
                reads(n); mf(ks, 1)
            xors(n)
            self.p1_issue((n,))
        a("s_waitcnt vmcnt(7)")
        a("s_barrier")
        self.stamp(3)
        reads(0); reads(1); xors(0); xors(1)
        a("v_mov_b32 v6, 0x3f803f80")
        a("v_mov_b32 v2, 0")
        a("v_mov_b32 v3, 0")
        a("s_waitcnt lgkmcnt(5)")
        for k in range(4):
            for i in range(2): a(f"v_dot2_f32_bf16 v{2+i}, v{self.WF+4*i+k}, v6, v{2+i}")
        a("s_nop 2")
        a("v_permlane32_swap_b32 v2, v3")
        a("s_nop 0")
        a("v_add_f32 v2, v2, v3")
        a(f"ds_write_b32 v{self.CSW}, v2")
        a("s_waitcnt lgkmcnt(0)")
        a.align(6)
        a.label(L)
        comp(0); comp(1); comp(2)
        Lr = a.newlabel("back"); Ls = a.newlabel("side")
        a(f"s_add_u32 s{self.sCNT}, s{self.sCNT}, 1")
        a(f"s_cbranch_scc1 {Ls}")
        a.label(Lr)
        comp(3)
        a(f"s_cmp_lt_u32 s{self.sCNT}, {int(self.o.get('p1n', 10)) - 4}")
        a(f"s_cbranch_scc1 {L}")
        self._sides.append((Ls, Lr))

    def p1_sides(self):
        a = self.a
        for Ls, Lr in self._sides:
            a.label(Ls)
            self.nonce_get()
            a(f"s_cmp_lg_u32 s{self.sTG}, 0")
            a(f"s_cbranch_scc1 {Lr}")
            for k in range(4): a(f"ds_read_b32 v{2+k}, v95 offset:{512*k}")
            a(f"s_lshl_b32 s{T0}, s{self.sKC0}, 10")
            a("s_waitcnt lgkmcnt(0)")
            a("v_add_f32 v2, v2, v3")
            a("v_add_f32 v4, v4, v5")
            a(f"v_mov_b32 v3, s{S_NONCE}")
            a("v_add_f32 v2, v2, v4")
            a(f"buffer_store_dwordx2 v[2:3], v{self.CQA}, s[{SRD_WS}:{SRD_WS+3}], s{T0} offen sc1")
            a(f"s_branch {Lr}")

    def p1_gather(self):
        a = self.a
        a(f"buffer_load_dwordx4 v[{self.RS}:{self.RS+3}], v{self.RSA}, s[{SRD_WS}:{SRD_WS+3}], 0 offen sc1")
        a(f"s_movk_i32 s{T0}, 0x1000")
        a(f"s_movk_i32 s{T1}, 0x2000")
        for k in range(10):
            so = ("0", f"s{T0}", f"s{T1}")[k // 4]
            a(f"buffer_load_dwordx2 v[{self.CQ+2*k}:{self.CQ+2*k+1}], v{self.CQA}, s[{SRD_WS}:{SRD_WS+3}], {so} offen offset:{1024*(k%4)} sc1")

    def p1_epi_common(self):
        a = self.a
        self.stamp(4)
        a(f"s_lshl_b32 s{T2}, s{S_W}, 9")
        a(f"s_add_u32 s{T2}, s{T2}, {self.P1_MISC+4096}")
        a(f"v_lshl_add_u32 v6, v0, 2, s{T2}")
        a("v_and_b32 v5, 31, v0")
        L = a.newlabel("rs"); Ld = a.newlabel("rsd")
        a(f"s_mov_b32 s{S_SPIN}, 0")
        a(f"s_lshl_b32 s{T0}, s{self.sNH}, 9")
        a(f"s_add_u32 s{T0}, s{T0}, {self.CQ_SCR}")
        a(f"v_lshl_add_u32 v1, v0, 3, s{T0}")
        for k in range(10): a(f"ds_read_b64 v[{self.CQ+2*k}:{self.CQ+2*k+1}], v1 offset:{1024*k}")
        a("s_waitcnt lgkmcnt(0)")
        a.label(L)
        a(f"v_xor_b32 v2, s{S_NONCE}, v{self.RS+1}")
        a(f"v_xor_b32 v3, s{S_NONCE}, v{self.RS+3}")
        for k in range(0, 10, 2):
            a(f"v_xor_b32 v4, s{S_NONCE}, v{self.CQ+2*k+1}")
            a(f"v_xor_b32 v7, s{S_NONCE}, v{self.CQ+2*k+3}")
            a("v_or3_b32 v2, v2, v4, v7")
        a("v_or_b32 v2, v2, v3")
        a("v_cmp_ne_u32 vcc, 0, v2")
        a(f"s_add_u32 s{S_SPIN}, s{S_SPIN}, 1")
        a("s_or_b64 vcc, vcc, vcc")
        a(f"s_cbranch_scc0 {Ld}")
        a(f"s_cmp_ge_u32 s{S_SPIN}, {SPIN_MAX}")
        a(f"s_cbranch_scc1 {Ld}")
        self.p1_gather()
        a("s_waitcnt vmcnt(0)")
        a(f"s_branch {L}")
        a.label(Ld)
        Q = self.CQ
        a(f"v_add_f32 v12, v{Q}, v{Q+2}")
        a(f"v_add_f32 v13, v{Q+4}, v{Q+6}")
        a(f"v_add_f32 v14, v{Q+8}, v{Q+10}")
        a(f"v_add_f32 v15, v{Q+12}, v{Q+14}")
        a(f"v_add_f32 v2, v{Q+16}, v{Q+18}")
        a("v_add_f32 v12, v12, v13")
        a("v_add_f32 v14, v14, v15")
        a("v_add_f32 v12, v12, v2")
        a("v_add_f32 v12, v12, v14")

    def rowstats(self):
        a = self.a
        X = 100
        a("v_lshrrev_b32 v1, 3, v0")
        a(f"s_lshl_b32 s{T0}, s{S_W}, 4")
        a(f"s_lshl_b32 s{T1}, s{self.sRB}, 7")
        a(f"s_add_u32 s{T0}, s{T0}, s{T1}")
        a(f"v_add_u32 v1, s{T0}, v1")
        a("v_mul_u32_u24 v2, 1280, v1")
        a("v_and_b32 v3, 7, v0")
        a("v_lshl_add_u32 v2, v3, 4, v2")
        a(f"s_mov_b32 s{T0}, 10240")
        a("v_mov_b32 v3, 0")
        a(f"buffer_load_dwordx2 v[{self.VN}:{self.VN+1}], v3, s[{SRD_DBG}:{SRD_DBG+3}], 0 offen sc1")
        for k in range(10):
            for hh in range(2):
                r = X + 8 * k + 4 * hh
                a(f"buffer_load_dwordx4 v[{r}:{r+3}], v2, s[{SRD_X}:{SRD_X+3}], {'s%d' % T0 if hh else '0'} offen offset:{128*k}")
        for r in range(4, 8): a(f"v_mov_b32 v{r}, 0")
        a("v_mov_b32 v8, 0x3f803f80")
        for k in range(10):
            a(f"s_waitcnt vmcnt({18-2*k})")
            for e in range(4):
                for hh in range(2):
                    r = X + 8 * k + 4 * hh + e
                    a(f"v_dot2_f32_bf16 v{4+hh}, v{r}, v8, v{4+hh}")
                    a(f"v_dot2_f32_bf16 v{6+hh}, v{r}, v{r}, v{6+hh}")
        a("s_nop 2")
        for ctl in ("quad_perm:[1,0,3,2]", "quad_perm:[2,3,0,1]", "row_half_mirror"):
            for r in range(4, 8): a(f"v_add_f32_dpp v{r}, v{r}, v{r} {ctl} row_mask:0xf bank_mask:0xf")
        self.nonce_get()
        a("v_and_b32 v3, 1, v0")
        a("v_cmp_ne_u32 vcc, 0, v3")
        a("v_lshlrev_b32 v3, 3, v3")
        a("v_add_u32 v1, v1, v3")
        a("v_cndmask_b32 v4, v4, v5, vcc")
        a("v_cndmask_b32 v6, v6, v7, vcc")
        a(f"v_mul_f32 v4, 0x%08x, v4" % f2u(1.0 / 640))
        a("v_mul_f32 v5, v4, v4")
        a(f"v_mov_b32 v7, 0x%08x" % f2u(1.0 / 640))
        a("v_fma_f32 v5, v6, v7, -v5")
        a("v_max_f32 v5, 0, v5")
        a(f"v_add_f32 v5, 0x%08x, v5" % f2u(1e-5))
        a("v_rsq_f32 v8, v5")
        a(f"v_mov_b32 v9, s{S_NONCE}")
        a(f"v_mov_b32 v11, s{S_NONCE}")
        a("v_mul_f32 v10, v4, v8")
        a("v_lshlrev_b32 v1, 4, v1")
        a(f"s_mov_b32 s{T0}, {WS_RS}")
        a("s_mov_b32 exec_lo, 0x03030303")
        a("s_mov_b32 exec_hi, 0x03030303")
        a(f"buffer_store_dwordx4 v[8:11], v1, s[{SRD_WS}:{SRD_WS+3}], s{T0} offen sc1")
        a("s_mov_b64 exec, -1")

    def p1_epi_q(self):
        a = self.a
        self.p1_epi_common()
        qs = math.log2(math.e) / math.sqrt(20.0)
        a("ds_write_b32 v6, v12")
        a("v_lshrrev_b32 v1, 5, v0")
        a(f"v_lshl_add_u32 v1, v1, 4, s{T2}")
        C = 48
        for i in range(2):
            for q4 in range(4):
                a(f"ds_read_b128 v[{C+16*i+4*q4}:{C+16*i+4*q4+3}], v1 offset:{i*128+q4*32}")
        a(f"s_cmp_lt_u32 s{self.sCT}, 5")
        a(f"s_cselect_b32 s{T1}, 0x%08x, 1.0" % f2u(qs))
        a(f"v_mul_f32 v2, s{T1}, v{self.RS}")
        a(f"v_mul_f32 v3, s{T1}, v{self.RS+2}")
        for i in range(2):
            for qq in range(2):
                a(f"s_waitcnt lgkmcnt({6-4*i-2*qq})")
                b = 16 * i + 8 * qq
                for r in range(8): a(f"v_mul_f32 v{self.ACC+b+r}, v2, v{self.ACC+b+r}")
                for r in range(8): a(f"v_fma_f32 v{self.ACC+b+r}, -v3, v{C+b+r}, v{self.ACC+b+r}")
                o = 4 + 4 * ((2 * i + qq) % 2)
                for r in range(4): a(f"v_cvt_pk_bf16_f32 v{o+r}, v{self.ACC+b+2*r}, v{self.ACC+b+2*r+1}")
                a(f"buffer_store_dwordx4 v[{o}:{o+3}], v{self.STA+2*i+qq}, s[{SRD_WS}:{SRD_WS+3}], 0 offen sc1")

    def p1_epi_v(self):
        a = self.a
        self.p1_epi_common()
        a("v_mov_b32 v13, v12")
        a(f"v_lshl_add_u32 v6, v5, 2, s{T2}")
        a("v_lshrrev_b32 v1, 5, v0")
        a("v_permlane32_swap_b32 v12, v13")
        a(f"ds_write_b32 v6, v{self.RS}")
        a(f"ds_write_b32 v6, v{self.RS+2} offset:128")
        a(f"v_lshl_add_u32 v6, v1, 4, s{T2}")
        C = 48
        for q4 in range(4):
            a(f"ds_read_b128 v[{C+4*q4}:{C+4*q4+3}], v6 offset:{q4*32}")
            a(f"ds_read_b128 v[{C+16+4*q4}:{C+16+4*q4+3}], v6 offset:{128+q4*32}")
        for grp in range(2):
            a(f"s_waitcnt lgkmcnt({4-4*grp})")
            for i in range(2):
                b = 16 * i + 8 * grp
                for r in range(8): a(f"v_mul_f32 v{self.ACC+b+r}, v{C+8*grp+r}, v{self.ACC+b+r}")
                for r in range(8): a(f"v_fma_f32 v{self.ACC+b+r}, -v{C+16+8*grp+r}, v{12+i}, v{self.ACC+b+r}")
                o = 4 + 4 * i
                for r in range(4): a(f"v_cvt_pk_bf16_f32 v{o+r}, v{self.ACC+b+2*r}, v{self.ACC+b+2*r+1}")
                a(f"buffer_store_dwordx4 v[{o}:{o+3}], v{self.STA+i}, s[{SRD_WS}:{SRD_WS+3}], 0 offen offset:{640*grp} sc1")

    def nonce_get(self):
        a = self.a
        a(f"s_mov_b32 s{S_SPIN}, 0")
        Lc = a.newlabel("nchk"); Lo = a.newlabel("nok")
        a.label(Lc)
        a(f"v_readfirstlane_b32 s{S_NONCE}, v{self.VN}")
        a(f"v_readfirstlane_b32 s{S_NONCE+1}, v{self.VN+1}")
        a(f"s_add_u32 s{S_SPIN}, s{S_SPIN}, 1")
        a(f"s_or_b32 s{T0}, s{S_NONCE}, s{S_NONCE+1}")
        a(f"s_cbranch_scc1 {Lo}")
        a(f"s_cmp_ge_u32 s{S_SPIN}, {SPIN_MAX}")
        a(f"s_cbranch_scc1 {Lo}")
        a("v_mov_b32 v94, 0")
        a(f"buffer_load_dwordx2 v[{self.VN}:{self.VN+1}], v94, s[{SRD_DBG}:{SRD_DBG+3}], 0 offen sc1")
        a("s_waitcnt vmcnt(0)")
        a(f"s_branch {Lc}")
        a.label(Lo)

    def phase1(self):
        a = self.a
        self.p1_setup_a()
        a(f"s_cmp_eq_u32 s{self.sCT}, 15")
        a("s_cbranch_scc0 L_p1_go")
        self.rowstats()
        a("s_branch L_p1_done")
        a.label("L_p1_go")
        self.p1_setup_b()
        a("v_mov_b32 v1, 0")
        a(f"buffer_load_dwordx2 v[{self.VN}:{self.VN+1}], v1, s[{SRD_DBG}:{SRD_DBG+3}], 0 offen sc1")
        self.p1_issue((1, 2, 3) if self.o.get("first5", "1") == "1" else (0, 1, 2, 3))
        self.p1_issue((0, 1))
        self.stamp(2)
        a(f"s_cmp_ge_u32 s{self.sCT}, 10")
        a("s_cbranch_scc1 L_p1_v")
        self.p1_loop(False)
        self.p1_epi_q()
        a("s_branch L_p1_done")
        self.p1_sides(); self._sides = []
        a.label("L_p1_v")
        self.p1_loop(True)
        self.p1_epi_v()
        a("s_branch L_p1_done")
        self.p1_sides()
        a.label("L_p1_done")
        self.stamp(5)
        a("s_waitcnt vmcnt(0)")
        self.stamp(6)
        a("s_barrier")
        a(f"s_lshl_b32 s{T0}, s{self.sCT}, 4")
        a(f"s_add_u32 s{T0}, s{T0}, s{self.sRB}")
        a(f"s_mul_i32 s{T0}, s{T0}, {FSP}")
        a(f"s_add_u32 s{T0}, s{T0}, {FL_1}")
        self.flag_store(T0, 2)
        self.stamp(7)
        a(f"s_cmp_eq_u32 s{S_W}, 0")
        a("s_cbranch_scc1 L_no_rls")
        self.relayout_setup()
        a.label("L_no_rls")
        if self.stop < 2:
            self.relayout_issue()
            a("s_waitcnt vmcnt(0)")
            self.relayout_finish()

    def build(self):
        a = self.a
        self.entry()
        self.phase1()
        if self.stop >= 2:
            from phases import phase2, phase3, phase4, phase5
            phase2(self)
            if self.stop >= 3: phase3(self)
            if self.stop >= 4: phase4(self)
            if self.stop >= 5: phase5(self)
        a("s_waitcnt vmcnt(0)")
        if self.o.get("fixend"):
            a.label("L_fixend")
            a("s_memrealtime s[100:101]")
            a("s_waitcnt lgkmcnt(0)")
            a(f"s_sub_u32 s100, s100, s{S_NONCE}")
            a(f"s_cmp_lt_u32 s100, {int(self.o['fixend'])*100}")
            a("s_cbranch_scc1 L_fixend")
        self.stamp(31)
        self.stamp_flush()
        a.label("L_end")
        a("s_endpgm")
        a.lines.append(f".fill {self.pad}, 4, 0xbf810000")
        body = a.text()
        errs = check(body)
        if errs:
            sys.stderr.write("\n".join(errs[:40]) + "\n%d hazards\n" % len(errs))
            raise SystemExit(1)
        head = f"""; Fused preLN -> MHA -> residual -> preLN -> SiLU FFN -> residual, one persistent launch.
; @launch grid=(256,1,1) block=(512,1,1) lds={LDS_BYTES}
.amdgcn_target "amdgcn-amd-amdhsa--gfx950"
.text
.globl {NAME}_kernel
.p2align 8
.type {NAME}_kernel,@function
{NAME}_kernel:
"""
        tail = f""".section .rodata,"a"
.p2align 6
.amdhsa_kernel {NAME}_kernel
  .amdhsa_next_free_vgpr 256
  .amdhsa_next_free_sgpr 102
  .amdhsa_accum_offset 256
  .amdhsa_group_segment_fixed_size 0
  .amdhsa_kernarg_size 72
  .amdhsa_user_sgpr_count 2
  .amdhsa_user_sgpr_kernarg_segment_ptr 1
  .amdhsa_system_sgpr_workgroup_id_x 1
.end_amdhsa_kernel
"""
        return head + body + tail

if __name__ == "__main__":
    stop = int(sys.argv[2]) if len(sys.argv) > 2 else 99
    opts = dict(kv.split("=") for kv in sys.argv[3:])
    import subprocess
    def asm_size(path):
        r = subprocess.run(["clang", "-x", "assembler", "-target", "amdgcn-amd-amdhsa", "-mcpu=gfx950", "-c", path, "-o", "_chk.o"], capture_output=True, text=True)
        if r.returncode: print(r.stderr[:1500]); raise SystemExit(1)
        r = subprocess.run(["llvm-readelf", "-S", "_chk.o"], capture_output=True, text=True)
        return int([l for l in r.stdout.split("\n") if ".text" in l][0].split()[6], 16)
    open(sys.argv[1], "w").write(K(stop, opts).build())
    n = asm_size(sys.argv[1])
    k = K(stop, opts)
    k.CPF_LINES = (n + 4095) // 4096
    k.pad = (k.CPF_LINES * 4096 - n) // 4 + 16
    open(sys.argv[1], "w").write(k.build())
    print(sys.argv[1], "code bytes:", n, "with pad:", asm_size(sys.argv[1]))
```

```python
import sys, math
from asmlib import Asm, vr, sr, f2u, check
from tables import *

NAME = "sequential_preLN__mha_block__dense_activation_silu__prompt"
LDS_BYTES = 163840
SPIN_MAX = 20000

S_G = 2
SRD_X, SRD_WQ, SRD_WS, SRD_OUT, SRD_DBG, SRD_RL = 4, 8, 12, 16, 20, 24
S_W, S_C, S_J = 28, 29, 30
S_NONCE = 32
S_PTR = 36
T0, T1, T2, T3, T4, T5 = 54, 55, 56, 57, 58, 59
S_M1 = 60
S_SPIN = 62

class K:
    def __init__(self, stop_after=99, opts=None):
        self.a = Asm()
        self.stop = stop_after
        self.o = opts or {}
        self.pad = 0
        self._sides = []

    def srd(self, d, ptr, nbytes):
        a = self.a
        a(f"s_mov_b32 s{d}, s{ptr}")
        a(f"s_and_b32 s{d+1}, s{ptr+1}, 0xffff")
        a(f"s_mov_b32 s{d+2}, {nbytes}")
        a(f"s_mov_b32 s{d+3}, 0x20000")

    def stamp(self, idx):
        if not self.o.get("stamps"): return
        if self.o["stamps"] == "min" and idx not in (0, 9, 10, 31): return
        a = self.a
        a("s_memrealtime s[100:101]")
        a("s_waitcnt lgkmcnt(0)")
        a(f"v_writelane_b32 v255, s100, {idx}")
        if idx < 22 and self.o["stamps"] != "min":
            a("s_memtime s[100:101]")
            a("s_waitcnt lgkmcnt(0)")
            a(f"v_writelane_b32 v255, s100, {idx+32}")

    def stamp_dyn(self, base, sreg):
        if not self.o.get("its"): return
        a = self.a
        a("s_memtime s[100:101]")
        a("s_mov_b32 s99, m0")
        a(f"s_add_u32 m0, s{sreg}, {base}")
        a("s_waitcnt lgkmcnt(0)")
        a("v_writelane_b32 v255, s100, m0")
        a("s_mov_b32 m0, s99")

    def stamp_flush(self):
        if not self.o.get("stamps"): return
        a = self.a
        if self.o.get("dbgwg"):
            L = a.newlabel("dbg")
            a(f"s_cmp_lg_u32 s{S_G}, {int(self.o['dbgwg'])}")
            a(f"s_cbranch_scc1 {L}")
            a(f"s_cmp_lg_u32 s{S_W}, 0")
            a(f"s_cbranch_scc1 {L}")
            a(f"v_readlane_b32 s{T1}, v255, 0")
            for n, i in enumerate((3, 4, 7, 8, 9, 10, 12, 13, 15, 16, 18, 19, 31)):
                a(f"v_readlane_b32 s{T0}, v255, {i}")
                a("s_nop 3")
                a(f"s_sub_u32 s{T0}, s{T0}, s{T1}")
                a(f"v_mov_b32 v1, s{T0}")
                a(f"v_mov_b32 v2, {8+4*n}")
                a(f"buffer_store_dword v1, v2, s[{SRD_DBG}:{SRD_DBG+3}], 0 offen")
            a.label(L)
            return
        a(f"s_lshl_b32 s{T0}, s{S_G}, 3")
        a(f"s_add_u32 s{T0}, s{T0}, s{S_W}")
        a(f"s_lshl_b32 s{T0}, s{T0}, 8")
        a(f"s_add_u32 s{T0}, s{T0}, {WS_SIZE}")
        a("v_lshlrev_b32 v1, 2, v0")
        a(f"buffer_store_dword v255, v1, s[{SRD_WS}:{SRD_WS+3}], s{T0} offen")
        a("s_mov_b64 exec, -1")

    def dma(self, voff, srd, soff, flags=""):
        if self.o.get("nodma"): return
        self.a(f"buffer_load_dwordx4 v{voff}, s[{srd}:{srd+3}], {soff} offen {flags} lds".replace("  ", " "))

    def flag_store(self, s_off, vt, pol="sc1"):
        a = self.a
        L = a.newlabel("nofl")
        a(f"s_cmp_lg_u32 s{S_W}, 0")
        a(f"s_cbranch_scc1 {L}")
        a(f"v_mov_b32 v{vt}, s{S_NONCE}")
        a(f"v_mov_b32 v{vt+1}, s{S_NONCE+1}")
        a(f"v_mov_b32 v{vt+2}, 0")
        a("s_mov_b64 exec, 1")
        a(f"buffer_store_dwordx2 v[{vt}:{vt+1}], v{vt+2}, s[{SRD_WS}:{SRD_WS+3}], s{s_off} offen {pol}")
        a("s_mov_b64 exec, -1")
        a.label(L)

    def poll(self, n, s_off, spacing, vt, only_wave0=True):
        a = self.a
        L = a.newlabel("poll"); Ld = a.newlabel("polld")
        if only_wave0:
            a(f"s_cmp_lg_u32 s{S_W}, 0")
            a(f"s_cbranch_scc1 {Ld}")
        a(f"s_mov_b32 s{S_SPIN}, 0")
        if n == 256:
            assert spacing == 8
            a(f"v_lshlrev_b32 v{vt+8}, 4, v0")
            a.label(L)
            a(f"buffer_load_dwordx4 v[{vt}:{vt+3}], v{vt+8}, s[{SRD_WS}:{SRD_WS+3}], s{s_off} offen sc1")
            a(f"buffer_load_dwordx4 v[{vt+4}:{vt+7}], v{vt+8}, s[{SRD_WS}:{SRD_WS+3}], s{s_off} offen offset:1024 sc1")
            a(f"s_add_u32 s{S_SPIN}, s{S_SPIN}, 1")
            a("s_waitcnt vmcnt(0)")
            a(f"v_cmp_ne_u64 vcc, s[{S_NONCE}:{S_NONCE+1}], v[{vt}:{vt+1}]")
            a(f"v_cmp_ne_u64 s[{S_M1}:{S_M1+1}], s[{S_NONCE}:{S_NONCE+1}], v[{vt+2}:{vt+3}]")
            a("s_nop 0")
            a(f"s_or_b64 s[{T4}:{T5}], vcc, s[{S_M1}:{S_M1+1}]")
            a(f"v_cmp_ne_u64 vcc, s[{S_NONCE}:{S_NONCE+1}], v[{vt+4}:{vt+5}]")
            a(f"v_cmp_ne_u64 s[{S_M1}:{S_M1+1}], s[{S_NONCE}:{S_NONCE+1}], v[{vt+6}:{vt+7}]")
            a("s_nop 0")
            a(f"s_or_b64 s[{T4}:{T5}], s[{T4}:{T5}], vcc")
            a(f"s_or_b64 s[{T4}:{T5}], s[{T4}:{T5}], s[{S_M1}:{S_M1+1}]")
        else:
            a(f"v_and_b32 v{vt+2}, {n-1}, v0")
            a(f"v_mul_u32_u24 v{vt+2}, {spacing}, v{vt+2}")
            a.label(L)
            a(f"buffer_load_dwordx2 v[{vt}:{vt+1}], v{vt+2}, s[{SRD_WS}:{SRD_WS+3}], s{s_off} offen sc1")
            a(f"s_add_u32 s{S_SPIN}, s{S_SPIN}, 1")
            a("s_waitcnt vmcnt(0)")
            a(f"v_cmp_ne_u64 vcc, s[{S_NONCE}:{S_NONCE+1}], v[{vt}:{vt+1}]")
            a("s_nop 0")
            a(f"s_or_b64 s[{T4}:{T5}], vcc, vcc")
        a(f"s_cbranch_scc0 {Ld}")
        a(f"s_cmp_lt_u32 s{S_SPIN}, {SPIN_MAX}")
        a(f"s_cbranch_scc1 {L}")
        a.label(Ld)

    def poll2(self, va, vb, s_off, vt):
        a = self.a
        L = a.newlabel("poll"); Ld = a.newlabel("polld")
        N = f"s[{S_NONCE}:{S_NONCE+1}]"
        a(f"s_cmp_lg_u32 s{S_W}, 0")
        a(f"s_cbranch_scc1 {Ld}")
        a(f"s_mov_b32 s{S_SPIN}, 0")
        a.label(L)
        a(f"buffer_load_dwordx2 v[{vt}:{vt+1}], v{va}, s[{SRD_WS}:{SRD_WS+3}], s{s_off} offen sc1")
        a(f"buffer_load_dwordx2 v[{vt+2}:{vt+3}], v{vb}, s[{SRD_WS}:{SRD_WS+3}], s{s_off} offen sc1")
        a(f"s_add_u32 s{S_SPIN}, s{S_SPIN}, 1")
        a("s_waitcnt vmcnt(0)")
        a(f"v_cmp_ne_u64 vcc, {N}, v[{vt}:{vt+1}]")
        a(f"v_cmp_ne_u64 s[{S_M1}:{S_M1+1}], {N}, v[{vt+2}:{vt+3}]")
        a("s_nop 0")
        a(f"s_or_b64 vcc, vcc, s[{S_M1}:{S_M1+1}]")
        a(f"s_cbranch_scc0 {Ld}")
        a(f"s_cmp_lt_u32 s{S_SPIN}, {SPIN_MAX}")
        a(f"s_cbranch_scc1 {L}")
        a.label(Ld)

    def entry(self):
        a = self.a
        a(f"s_cmp_ge_u32 s{S_G}, 256")
        a("s_cbranch_scc1 L_end")
        a(f"s_load_dwordx16 s[{S_PTR}:{S_PTR+15}], s[0:1], 0")
        a(f"s_load_dwordx2 s[{S_PTR+16}:{S_PTR+17}], s[0:1], 64")
        a(f"s_memrealtime s[{S_NONCE}:{S_NONCE+1}]")
        if self.o.get("stamps"): a("v_mov_b32 v255, 0")
        self.stamp(0)
        a("v_lshrrev_b32 v1, 6, v0")
        a("v_and_b32 v0, 63, v0")
        a(f"v_readfirstlane_b32 s{S_W}, v1")
        a(f"s_and_b32 s{S_C}, s{S_G}, 7")
        a(f"s_lshr_b32 s{S_J}, s{S_G}, 3")

    ACC = 16; XF = 160; WF = 176; XA = 72; WA = 144; DXA, DXB, DW = 78, 79, 80; VXM = 76
    ONES = 82
    CQ = 96
    CQA = 81; CSW = 85
    RSA, RS = 84, 128
    STA = 86
    RLV, RLA = 157, 158
    VN = 92
    sRB, sCT, sKC, sXO, sWO, sSLOT, sCNT, sXM, sTG, sNH = 64, 65, 66, 67, 68, 69, 70, 71, 72, 73
    sTAB = 74
    sM0X = 80; sWO2 = 81; sKC0 = 82; sSIDE = 83; sI1 = 71; sI2 = 34; sSM = 35
    sRL = 84
    P1_MISC = 148 * 1024
    RL_SCR = 68 * 1024
    CQ_SCR = 128 * 1024
    DUMMY = 159 * 1024
    CPF_LINES = 8

    def p1_issue(self, pieces=(0, 1, 2, 3)):
        a = self.a
        if 0 in pieces:
            a(f"s_add_u32 m0, s{self.sM0X}, s{self.sSLOT}")
            a(f"s_add_u32 s{self.sKC}, s{self.sKC}, 1")
            self.dma(self.DXA, SRD_X, f"s{self.sXO}")
        if 1 in pieces:
            a("s_add_u32 m0, m0, 16384")
            a(f"s_add_u32 s{self.sWO2}, s{self.sWO}, 15360")
            self.dma(self.DW, SRD_WQ, f"s{self.sWO}")
        if 2 in pieces:
            a("s_sub_u32 m0, m0, 15360")
            a(f"s_add_u32 s{self.sWO}, s{self.sWO}, 245760")
            self.dma(self.DXB, SRD_X, f"s{self.sXO}")
        if 3 in pieces:
            a("s_add_u32 m0, m0, 16384")
            a(f"s_add_u32 s{self.sXO}, s{self.sXO}, 128")
            self.dma(self.DW, SRD_WQ, f"s{self.sWO2}")
            a(f"s_cmp_eq_u32 s{self.sKC}, 10")
            a(f"s_cselect_b32 s{T0}, 1280, 0")
            a(f"s_cselect_b32 s{T1}, 2457600, 0")
            a(f"s_cselect_b32 s{self.sKC}, 0, s{self.sKC}")
            a(f"s_sub_u32 s{self.sXO}, s{self.sXO}, s{T0}")
            a(f"s_sub_u32 s{self.sWO}, s{self.sWO}, s{T1}")
            a(f"s_add_u32 s{self.sSLOT}, s{self.sSLOT}, 32768")
            a(f"s_and_b32 s{self.sSLOT}, s{self.sSLOT}, 0x1ffff")

    def p1_setup_a(self):
        a = self.a
        a(f"s_lshr_b32 s{T0}, s{S_C}, 1")
        a(f"s_lshl_b32 s{T0}, s{T0}, 2")
        a(f"s_lshr_b32 s{T1}, s{S_J}, 3")
        a(f"s_add_u32 s{self.sRB}, s{T0}, s{T1}")
        a(f"s_and_b32 s{T0}, s{S_C}, 1")
        a(f"s_lshl_b32 s{T0}, s{T0}, 3")
        a(f"s_and_b32 s{T2}, s{S_J}, 7")
        a(f"s_add_u32 s{self.sCT}, s{T0}, s{T2}")
        g = int(self.o.get("rotg", 4))
        if g == 8:
            a(f"s_lshl_b32 s{T1}, s{T1}, 1")
            a(f"s_add_u32 s{self.sKC}, s{T2}, s{T1}")
            a(f"s_bfe_u32 s{T0}, s{S_C}, 0x10001")
            a(f"s_and_b32 s{T1}, s{S_C}, 4")
            a(f"s_lshl_b32 s{T1}, s{T1}, 1")
            a(f"s_add_u32 s{T0}, s{T0}, s{T1}")
            a(f"s_add_u32 s{self.sKC}, s{self.sKC}, s{T0}")
        else:
            bases, offs, shift = {3: ((0, 3, 7), (0, 1, 2, 6), 0), 4: ((0, 2, 5, 7), (0, 1, 2, 3), 0), 5: ((0, 2, 4, 6, 8), (0, 1, 0, 1), 1)}[g]
            a(f"s_add_u32 s{T1}, s{T1}, s{T2}")
            a(f"s_lshr_b32 s{T0}, s{S_C}, 1")
            if shift: a(f"s_add_u32 s{T1}, s{T1}, s{T0}")
            tab = sum(bases[i % g] << (4 * i) for i in range(16))
            a(f"s_lshl_b32 s{T1}, s{T1}, 2")
            a(f"s_mov_b32 s{T4}, 0x{tab & 0xffffffff:08x}")
            a(f"s_mov_b32 s{T5}, 0x{tab >> 32:08x}")
            a(f"s_lshr_b64 s[{T4}:{T5}], s[{T4}:{T5}], s{T1}")
            a(f"s_and_b32 s{self.sKC}, s{T4}, 15")
            a(f"s_lshl_b32 s{T0}, s{T0}, 2")
            a(f"s_lshr_b32 s{T0}, 0x{sum(o << (4 * i) for i, o in enumerate(offs)):04x}, s{T0}")
            a(f"s_and_b32 s{T0}, s{T0}, 15")
            a(f"s_add_u32 s{self.sKC}, s{self.sKC}, s{T0}")
            for ct in range(8):
                assert len({(bases[(ct + rl + shift * aa) % g] + offs[aa]) % 10 for aa in range(4) for rl in range(4)}) == 10
        a(f"s_mul_i32 s{T0}, s{self.sKC}, 26")
        a(f"s_lshr_b32 s{T0}, s{T0}, 8")
        a(f"s_mul_i32 s{T0}, s{T0}, 10")
        a(f"s_sub_u32 s{self.sKC}, s{self.sKC}, s{T0}")
        a(f"s_mov_b32 s{self.sKC0}, s{self.sKC}")
        a(f"s_mul_i32 s{self.sXO}, s{self.sRB}, 163840")
        a(f"s_lshl_b32 s{T0}, s{self.sKC}, 7")
        a(f"s_add_u32 s{self.sXO}, s{self.sXO}, s{T0}")
        a(f"s_mul_i32 s{self.sWO}, s{self.sKC}, 245760")
        a(f"s_lshl_b32 s{T0}, s{self.sCT}, 8")
        a(f"s_add_u32 s{self.sWO}, s{self.sWO}, s{T0}")
        a(f"s_lshl_b32 s{self.sM0X}, s{S_W}, 11")
        a(f"s_mov_b32 s{self.sSLOT}, 0")
        a(f"s_mov_b64 s[{SRD_RL}:{SRD_RL+1}], 0")
        a(f"s_mov_b32 s{SRD_RL+2}, 0")
        a(f"s_mov_b32 s{SRD_RL+3}, 0x20000")
        a(f"v_mov_b32 v{self.RLV}, 0")
        a("v_lshrrev_b32 v1, 3, v0")
        a("v_lshrrev_b32 v2, 4, v0")
        a("v_and_b32 v3, 7, v0")
        a("v_xor_b32 v3, v3, v2")
        a(f"s_lshl_b32 s{T0}, s{S_W}, 4")
        a(f"v_add_u32 v4, s{T0}, v1")
        a("v_mul_u32_u24 v4, 1280, v4")
        a(f"v_lshl_add_u32 v{self.DXA}, v3, 4, v4")
        a(f"v_xor_b32 v{self.DXB}, 64, v{self.DXA}")
        a(f"v_add_u32 v{self.DXB}, 10240, v{self.DXB}")
        a("v_lshlrev_b32 v3, 2, v2")
        a("v_and_b32 v4, 15, v0")
        a("v_xor_b32 v3, v3, v4")
        a(f"s_lshl_b32 s{T0}, s{S_W}, 3")
        a(f"v_add_u32 v4, s{T0}, v2")
        a("v_mul_u32_u24 v4, 3840, v4")
        a(f"v_lshl_add_u32 v{self.DW}, v3, 4, v4")
        a("s_waitcnt lgkmcnt(0)")
        self.srd(SRD_X, S_PTR + 0, 2048 * 1280)
        self.srd(SRD_WQ, S_PTR + 2, 640 * 3840)
        a(f"s_cmp_eq_u32 s{self.sCT}, 15")
        a("s_cbranch_scc1 L_p1_noissue")
        self.p1_issue()
        if self.o.get("first5", "1") == "1": self.p1_issue((0,))
        a.label("L_p1_noissue")
        self.stamp(1)
        self.srd(SRD_WS, S_PTR + 16, WS_SIZE + ((1 << 20) if self.o.get("stamps") else 0))
        self.srd(SRD_OUT, S_PTR + 12, 2048 * 1280)
        self.srd(SRD_DBG, S_PTR + 14, 256)
        if self.o.get("cpf", "1") == "1":
            Lc = a.newlabel("cpf")
            a(f"s_cmp_lg_u32 s{S_W}, 7")
            a(f"s_cbranch_scc1 {Lc}")
            a(f"s_getpc_b64 s[{T4}:{T5}]")
            a.label("L_pc_here")
            a(f"s_mul_i32 s{T0}, s{S_J}, {self.CPF_LINES*128}")
            a(f"s_sub_u32 s{T0}, s{T0}, L_pc_here-{NAME}_kernel")
            a(f"v_min_u32 v3, {self.CPF_LINES-1}, v0")
            a(f"v_lshl_add_u32 v3, v3, 7, s{T0}")
            a("v_ashrrev_i32 v5, 31, v3")
            a(f"v_mov_b32 v6, s{T5}")
            a(f"v_add_co_u32 v4, vcc, s{T4}, v3")
            a("s_nop 1")
            a("v_addc_co_u32 v5, vcc, v5, v6, vcc")
            a("global_load_dword v254, v[4:5], off")
            a.label(Lc)
        a(f"s_or_b32 s{T0}, s{S_G}, s{S_W}")
        a("s_cbranch_scc1 L_nonce_done")
        a("v_mov_b32 v3, 0")
        a(f"v_mov_b32 v4, s{S_NONCE}")
        a(f"v_mov_b32 v5, s{S_NONCE+1}")
        a("s_mov_b64 exec, 1")
        a(f"buffer_store_dwordx2 v[4:5], v3, s[{SRD_DBG}:{SRD_DBG+3}], 0 offen sc1")
        a("s_mov_b64 exec, -1")
        a.label("L_nonce_done")

    def relayout_setup(self):
        a = self.a
        R = self.sRL
        u = a.newlabel("u")
        sID, sKS, sCB, sST, sA, sB, sCc, sD = T0, T1, T2, T3, 93, 94, 95, 96
        sBase, sSl, sKsS = 97, 98, 99
        a(f"s_mul_i32 s{sID}, s{S_G}, 5")
        a(f"s_add_u32 s{sID}, s{sID}, s{S_W}")
        a(f"s_sub_u32 s{sID}, s{sID}, 1")
        a(f"s_min_u32 s{sID}, s{sID}, 1279")
        a(f"s_mov_b32 s{sA}, 16")
        a(f"s_mov_b32 s{sB}, 8")
        a(f"s_mov_b32 s{sCc}, 4")
        a(f"s_mov_b32 s{SRD_RL+3}, 0x20000")
        a(f"s_mov_b32 s{R+8}, -1")
        a(f"s_cmp_lt_u32 s{sID}, 200")
        a(f"s_cbranch_scc1 L_rl_wo{u}")
        a(f"s_cmp_lt_u32 s{sID}, 740")
        a(f"s_cbranch_scc1 L_rl_w1{u}")
        a(f"s_sub_u32 s{sID}, s{sID}, 740")
        a(f"s_mul_i32 s{sKS}, s{sID}, 6554")
        a(f"s_lshr_b32 s{sKS}, s{sKS}, 16")
        a(f"s_mul_i32 s{sCB}, s{sKS}, 10")
        a(f"s_sub_u32 s{sCB}, s{sID}, s{sCB}")
        a(f"s_lshl_b32 s{sD}, s{sKS}, 5")
        a(f"s_mov_b32 s{SRD_RL}, s{S_PTR+10}")
        a(f"s_and_b32 s{SRD_RL+1}, s{S_PTR+11}, 0xffff")
        a(f"s_mov_b32 s{SRD_RL+2}, {1728*1280}")
        a(f"s_mov_b32 s{sBase}, {WS_W2}")
        a(f"s_mov_b32 s{sSl}, {54*5120}")
        a(f"s_add_u32 s{T4}, s{sKS}, 3")
        a(f"s_cmp_ge_u32 s{sKS}, 24")
        a(f"s_cselect_b32 s{T4}, s{T4}, s{sKS}")
        a(f"s_sub_u32 s{T5}, s{sKS}, 24")
        a(f"s_cmp_ge_u32 s{sKS}, 48")
        a(f"s_cselect_b32 s{T4}, s{T5}, s{T4}")
        a(f"s_cmp_ge_u32 s{sKS}, 51")
        a(f"s_cselect_b32 s{sKS}, s{sKS}, s{T4}")
        a(f"s_branch L_rl_n640{u}")
        a.label(f"L_rl_wo{u}")
        a(f"s_mul_i32 s{sKS}, s{sID}, 6554")
        a(f"s_lshr_b32 s{sKS}, s{sKS}, 16")
        a(f"s_mul_i32 s{sCB}, s{sKS}, 10")
        a(f"s_sub_u32 s{sCB}, s{sID}, s{sCB}")
        a(f"s_mul_i32 s{sD}, s{sKS}, 40")
        a(f"s_mul_i32 s{sST}, s{sKS}, 160")
        a(f"s_sub_u32 s{sST}, s{sST}, {160*16-16}")
        a(f"s_cmp_lt_u32 s{sKS}, 16")
        a(f"s_cselect_b32 s{sD}, s{sD}, s{sST}")
        a(f"s_cselect_b32 s{sA}, 8, 20")
        a(f"s_cselect_b32 s{sB}, 20, 0x50")
        a(f"s_cselect_b32 s{sCc}, 4, 40")
        a(f"s_mov_b32 s{SRD_RL}, s{S_PTR+4}")
        a(f"s_and_b32 s{SRD_RL+1}, s{S_PTR+5}, 0xffff")
        a(f"s_mov_b32 s{SRD_RL+2}, {640*1280}")
        a(f"s_mov_b32 s{sBase}, {WS_WO}")
        a(f"s_mov_b32 s{sSl}, {20*5120}")
        a(f"s_add_u32 s{T4}, s{sKS}, 2")
        a(f"s_cmp_ge_u32 s{sKS}, 8")
        a(f"s_cselect_b32 s{T4}, s{T4}, s{sKS}")
        a(f"s_sub_u32 s{T5}, s{sKS}, 8")
        a(f"s_cmp_ge_u32 s{sKS}, 16")
        a(f"s_cselect_b32 s{T4}, s{T5}, s{T4}")
        a(f"s_cmp_ge_u32 s{sKS}, 18")
        a(f"s_cselect_b32 s{sKS}, s{sKS}, s{T4}")
        a.label(f"L_rl_n640{u}")
        a(f"s_mov_b32 s{sST}, 1280")
        a(f"s_mul_i32 s{sKsS}, s{sKS}, 5120")
        a(f"s_add_u32 s{sBase}, s{sBase}, s{sKsS}")
        for t in range(4):
            a(f"s_lshl_b32 s{T4}, s{sCB}, 2")
            a(f"s_add_u32 s{T4}, s{T4}, {t}")
            a(f"s_mul_i32 s{T5}, s{T4}, 52")
            a(f"s_lshr_b32 s{T5}, s{T5}, 8")
            a(f"s_mul_i32 s{R+4+t}, s{T5}, s{sSl}")
            a(f"s_mul_i32 s{T5}, s{T5}, 5")
            a(f"s_sub_u32 s{T4}, s{T4}, s{T5}")
            a(f"s_lshl_b32 s{T4}, s{T4}, 10")
            a(f"s_add_u32 s{R+4+t}, s{R+4+t}, s{T4}")
            a(f"s_add_u32 s{R+4+t}, s{R+4+t}, s{sBase}")
        a(f"s_branch L_rl_common{u}")
        a.label(f"L_rl_w1{u}")
        a(f"s_sub_u32 s{sID}, s{sID}, 200")
        a(f"s_mul_i32 s{sKS}, s{sID}, 2428")
        a(f"s_lshr_b32 s{sKS}, s{sKS}, 16")
        a(f"s_mul_i32 s{sCB}, s{sKS}, 27")
        a(f"s_sub_u32 s{sCB}, s{sID}, s{sCB}")
        a(f"s_lshr_b32 s{T4}, s{sKS}, 1")
        a(f"s_mul_i32 s{T4}, s{T4}, 0x50")
        a(f"s_and_b32 s{T5}, s{sKS}, 1")
        a(f"s_lshl_b32 s{T5}, s{T5}, 5")
        a(f"s_add_u32 s{sD}, s{T4}, s{T5}")
        a(f"s_mul_i32 s{T4}, s{sKS}, 160")
        a(f"s_sub_u32 s{T4}, s{T4}, {160*16-64}")
        a(f"s_cmp_lt_u32 s{sKS}, 16")
        a(f"s_cselect_b32 s{sD}, s{sD}, s{T4}")
        a(f"s_cselect_b32 s{sA}, 16, 0x50")
        a(f"s_mov_b32 s{SRD_RL}, s{S_PTR+8}")
        a(f"s_and_b32 s{SRD_RL+1}, s{S_PTR+9}, 0xffff")
        a(f"s_mov_b32 s{SRD_RL+2}, {640*3456}")
        a(f"s_mov_b32 s{sST}, 3456")
        a(f"s_mul_i32 s{sKsS}, s{sKS}, 7168")
        a(f"s_add_u32 s{sBase}, s{sKsS}, {WS_W1}")
        a(f"s_mul_i32 s{R+8}, s{sKS}, {1728*4}")
        a(f"s_lshl_b32 s{T4}, s{sCB}, 8")
        a(f"s_add_u32 s{R+8}, s{R+8}, s{T4}")
        a(f"s_add_u32 s{R+8}, s{R+8}, {WS_CS1}")
        for t in range(4):
            a(f"s_lshl_b32 s{T4}, s{sCB}, 2")
            a(f"s_add_u32 s{T4}, s{T4}, {t}")
            a(f"s_mul_i32 s{T5}, s{T4}, 43")
            a(f"s_lshr_b32 s{T5}, s{T5}, 8")
            a(f"s_mul_i32 s{sSl}, s{T5}, 6")
            a(f"s_sub_u32 s{sSl}, s{T4}, s{sSl}")
            a(f"s_sub_u32 s{sKsS}, s{T4}, 96")
            a(f"s_cmp_lt_u32 s{T4}, 96")
            a(f"s_cselect_b32 s{T5}, s{T5}, s{sKsS}")
            a(f"s_cselect_b32 s{sSl}, s{sSl}, 6")
            a(f"s_mul_i32 s{R+4+t}, s{T5}, {20*7168}")
            a(f"s_lshl_b32 s{sSl}, s{sSl}, 10")
            a(f"s_add_u32 s{R+4+t}, s{R+4+t}, s{sSl}")
            a(f"s_add_u32 s{R+4+t}, s{R+4+t}, s{sBase}")
        a.label(f"L_rl_common{u}")
        a(f"s_mul_i32 s{sD}, s{sD}, s{sST}")
        a(f"s_lshl_b32 s{T4}, s{sCB}, 7")
        a(f"s_add_u32 s{R}, s{sD}, s{T4}")
        a(f"s_mul_i32 s{sA}, s{sA}, s{sST}")
        a(f"s_mul_i32 s{sB}, s{sB}, s{sST}")
        a(f"s_add_u32 s{R+1}, s{R}, s{sB}")
        a(f"s_add_u32 s{R+2}, s{R}, s{sA}")
        a(f"s_add_u32 s{R+3}, s{R+2}, s{sB}")
        a("v_lshrrev_b32 v1, 5, v0")
        a(f"v_mul_u32_u24 v1, s{sCc}, v1")
        a("v_bfe_u32 v2, v0, 3, 2")
        a("v_add_u32 v1, v1, v2")
        a(f"v_mul_u32_u24 v1, s{sST}, v1")
        a("v_and_b32 v2, 7, v0")
        a(f"v_lshl_add_u32 v{self.RLV}, v2, 4, v1")
        a("v_lshrrev_b32 v1, 2, v0")
        a("v_lshlrev_b32 v1, 7, v1")
        a("v_and_b32 v2, 3, v0")
        a("v_lshl_add_u32 v1, v2, 3, v1")
        a(f"s_lshl_b32 s{T4}, s{S_W}, 12")
        a(f"s_add_u32 s{T4}, s{T4}, {self.RL_SCR-4096}")
        a(f"v_add_u32 v{self.RLA}, s{T4}, v1")

    def relayout_issue(self, drain_older=False):
        a = self.a
        L = a.newlabel("rlsk")
        a(f"s_sub_u32 s{T0}, s{S_W}, 1")
        a(f"s_cmp_ge_u32 s{T0}, {0 if self.o.get('norl') else 5}")
        a(f"s_cbranch_scc1 {L}")
        a(f"s_lshl_b32 s{T0}, s{S_W}, 12")
        a(f"s_add_u32 m0, s{T0}, {self.RL_SCR-4096}")
        for i in range(4):
            if i: a("s_add_u32 m0, m0, 1024")
            a("s_nop 0")
            self.dma(self.RLV, SRD_RL, f"s{self.sRL+i}")
        if drain_older:
            L2 = a.newlabel("rlw")
            a("s_waitcnt vmcnt(4)")
            a(f"s_branch {L2}")
            a.label(L)
            a("s_waitcnt vmcnt(0)")
            a.label(L2)
        else:
            a.label(L)

    def relayout_finish(self, younger=None):
        a = self.a
        L = a.newlabel("rlsk"); F = 168; t = 184
        a(f"s_sub_u32 s{T0}, s{S_W}, 1")
        a(f"s_cmp_ge_u32 s{T0}, 5")
        Lo = a.newlabel("rlo")
        a(f"s_cbranch_scc1 {Lo if younger is not None else L}")
        if younger is not None: a(f"s_waitcnt vmcnt({younger})")
        for q in range(4):
            for rd in range(2):
                a(f"ds_read_b64_tr_b16 v[{F+4*q+2*rd}:{F+4*q+2*rd+1}], v{self.RLA} offset:{rd*2048+q*32}")
        a(f"v_lshlrev_b32 v{t}, 4, v0")
        for q in range(4):
            a(f"s_waitcnt lgkmcnt({6-2*q})")
            a(f"buffer_store_dwordx4 v[{F+4*q}:{F+4*q+3}], v{t}, s[{SRD_WS}:{SRD_WS+3}], s{self.sRL+4+q} offen sc1")
        if younger is not None: a("s_waitcnt vmcnt(4)")
        a(f"s_cmp_eq_u32 s{self.sRL+8}, -1")
        a(f"s_cbranch_scc1 {L}")
        for q in range(4): a(f"v_mov_b32 v{t+2+q}, 0")
        a(f"v_mov_b32 v{t+6}, 0x3f803f80")
        for k in range(4):
            for q in range(4): a(f"v_dot2_f32_bf16 v{t+2+q}, v{F+4*q+k}, v{t+6}, v{t+2+q}")
        a(f"v_lshlrev_b32 v{t+1}, 2, v0")
        a("s_nop 1")
        a(f"v_permlane16_swap_b32 v{t+2}, v{t+3}")
        a(f"v_permlane16_swap_b32 v{t+4}, v{t+5}")
        a("s_nop 0")
        a(f"v_add_f32 v{t+2}, v{t+2}, v{t+3}")
        a(f"v_add_f32 v{t+4}, v{t+4}, v{t+5}")
        a("s_nop 1")
        a(f"v_permlane32_swap_b32 v{t+2}, v{t+4}")
        a("s_nop 0")
        a(f"v_add_f32 v{t+2}, v{t+2}, v{t+4}")
        a(f"buffer_store_dword v{t+2}, v{t+1}, s[{SRD_WS}:{SRD_WS+3}], s{self.sRL+8} offen sc1")
        if younger is not None:
            a(f"s_branch {L}")
            a.label(Lo)
            a("s_waitcnt vmcnt(0)")
        a.label(L)

    def p1_setup_b(self):
        a = self.a
        a(f"s_and_b32 s{self.sTG}, s{S_W}, 3")
        a(f"s_lshr_b32 s{self.sNH}, s{S_W}, 2")
        a(f"s_cmp_ge_u32 s{self.sCT}, 5")
        a(f"s_cselect_b32 s{T0}, 5, 0")
        a(f"s_sub_u32 s{T0}, s{self.sCT}, s{T0}")
        a(f"s_lshl_b32 s{T0}, s{T0}, 1")
        a(f"s_add_u32 s{T0}, s{T0}, s{self.sNH}")
        for idx in range(10):
            a(f"s_cmp_eq_u32 s{T0}, {idx}")
            a(f"s_cbranch_scc1 L_tab{idx}")
        a(f"s_mul_i32 s{T1}, s{self.sNH}, 0x10101010")
        for k in range(4): a(f"s_add_u32 s{self.sTAB+k}, s{T1}, 0x%08x" % (0x03020100 + 0x04040404 * k))
        a(f"s_mov_b32 s{self.sTAB+4}, 0")
        a(f"s_mov_b32 s{self.sTAB+5}, 0")
        a("s_branch L_tabdone")
        for idx in range(10):
            a.label(f"L_tab{idx}")
            for k, d in enumerate(p1_table(idx // 2, idx % 2)): a(f"s_mov_b32 s{self.sTAB+k}, 0x%08x" % d)
            if idx < 9: a("s_branch L_tabdone")
        a.label("L_tabdone")
        a("v_and_b32 v1, 31, v0")
        a(f"s_lshl_b32 s{T0}, s{self.sTG}, 5")
        a(f"v_add_u32 v2, s{T0}, v1")
        a("v_bfe_u32 v3, v2, 1, 3")
        a("v_lshrrev_b32 v4, 5, v0")
        a("v_xor_b32 v3, v3, v4")
        a("v_lshlrev_b32 v3, 4, v3")
        a(f"v_lshl_add_u32 v{self.XA}, v2, 7, v3")
        a(f"s_xor_b32 s{T3}, s{self.sTG}, s{self.sNH}")
        a(f"s_lshl_b32 s{T0}, s{T3}, 5")
        a(f"v_xor_b32 v{self.XA}, s{T0}, v{self.XA}")
        for ks in range(1, 4): a(f"v_xor_b32 v{self.XA+ks}, {ks<<5}, v{self.XA}")
        a("v_bfe_u32 v5, v0, 2, 2")
        a("v_lshl_add_u32 v6, v4, 3, v5")
        a("v_lshlrev_b32 v6, 8, v6")
        a("v_and_b32 v7, 3, v0")
        a("v_lshlrev_b32 v7, 3, v7")
        a("v_and_b32 v8, 16, v0")
        a("v_cmp_ne_u32 vcc, 0, v8")
        for i in range(2):
            a(f"v_mov_b32 v8, s{self.sTAB+2*i}")
            a(f"v_mov_b32 v9, s{self.sTAB+2*i+1}")
            a("v_cndmask_b32 v8, v8, v9, vcc")
            a("v_bfe_u32 v8, v8, v7, 8")
            a("v_lshlrev_b32 v8, 3, v8")
            a("v_lshlrev_b32 v9, 6, v5")
            a("v_xor_b32 v8, v8, v9")
            a(f"v_add_u32 v8, v6, v8")
            a(f"s_lshl_b32 s{T0}, s{T3}, 12")
            a(f"v_add_u32 v{self.WA+4*i}, s{T0}, v8")
            for j in range(1, 4): a(f"v_xor_b32 v{self.WA+4*i+j}, {j<<12}, v{self.WA+4*i}")
        a(f"s_lshl_b32 s{T0}, s{self.sRB}, 2")
        a(f"s_add_u32 s{T0}, s{T0}, s{self.sTG}")
        a(f"s_lshl_b32 s{T1}, s{T0}, 9")
        a(f"s_add_u32 s{T1}, s{T1}, {WS_RS}")
        a(f"v_lshl_add_u32 v{self.RSA}, v1, 4, s{T1}")
        a(f"s_cmp_ge_u32 s{self.sCT}, 10")
        a("s_cbranch_scc1 L_p1_vaddr")
        a(f"s_lshl_b32 s{T0}, s{T0}, 9")
        a(f"s_cmp_ge_u32 s{self.sCT}, 5")
        a(f"s_cselect_b32 s{T1}, {WS_K}, {WS_Q}")
        a(f"s_add_u32 s{T0}, s{T0}, s{T1}")
        a(f"v_lshl_add_u32 v2, v1, 4, s{T0}")
        a("v_lshlrev_b32 v3, 3, v4")
        a("v_add_u32 v5, 16, v3")
        for i in range(2):
            for qq in range(2):
                a(f"v_bfe_u32 v6, s{self.sTAB+4+i}, v{3 if qq == 0 else 5}, 8")
                a(f"v_lshl_add_u32 v{self.STA+2*i+qq}, v6, 15, v2")
        a("s_branch L_p1_addrdone")
        a.label("L_p1_vaddr")
        a(f"s_mul_i32 s{T0}, s{T0}, 1280")
        a(f"s_add_u32 s{T0}, s{T0}, {WS_V}")
        a(f"s_lshl_b32 s{T1}, s{self.sCT}, 7")
        a(f"s_lshl_b32 s{T2}, s{self.sNH}, 6")
        a(f"s_add_u32 s{T1}, s{T1}, s{T2}")
        a(f"s_sub_u32 s{T1}, s{T1}, 1280")
        a(f"v_mov_b32 v{self.STA+2}, 0")
        a(f"v_mov_b32 v{self.STA+3}, 0")
        a("v_mul_u32_u24 v3, 320, v4")
        a(f"v_add_u32 v3, s{T0}, v3")
        a(f"s_mov_b32 s{T2}, 81920")
        for i in range(2):
            a(f"v_add_u32 v5, s{T1}, v1")
            if i: a("v_add_u32 v5, 32, v5")
            a("v_mul_u32_u24 v6, 3277, v5")
            a("v_lshrrev_b32 v6, 16, v6")
            a("v_mul_u32_u24 v7, 20, v6")
            a("v_sub_u32 v5, v5, v7")
            a("v_lshl_add_u32 v5, v5, 4, v3")
            a(f"v_mad_u32_u24 v{self.STA+i}, v6, s{T2}, v5")
        a.label("L_p1_addrdone")
        for r in range(32): a(f"v_mov_b32 v{self.ACC+r}, 0")
        a(f"s_mul_i32 s{T0}, s{self.sCT}, 10240")
        a(f"s_lshl_b32 s{T1}, s{self.sNH}, 9")
        a(f"s_add_u32 s{T0}, s{T0}, s{T1}")
        a(f"s_add_u32 s{T0}, s{T0}, {WS_CQ}")
        a(f"v_lshl_add_u32 v{self.CQA}, v0, 3, s{T0}")
        a(f"s_lshl_b32 s{T0}, s{self.sNH}, 8")
        a(f"s_lshl_b32 s{T1}, s{self.sTG}, 9")
        a(f"s_add_u32 s{T0}, s{T0}, {self.P1_MISC}")
        a(f"s_add_u32 s{T1}, s{T1}, s{T0}")
        a(f"v_lshl_add_u32 v{self.CSW}, v0, 2, s{T1}")
        a(f"v_lshl_add_u32 v95, v0, 2, s{T0}")
        a(f"v_mov_b32 v{self.VXM}, 0x8000")
        a(f"s_mov_b32 s{self.sCNT}, -1")

    def p1_loop(self, vmode):
        a = self.a
        tag = "v" if vmode else "q"
        a(f"s_cmp_lg_u32 s{self.sNH}, 0")
        a(f"s_cbranch_scc1 L_p1_B{tag}")
        self.p1_loop1(vmode, 0)
        a(f"s_branch L_p1_E{tag}")
        a.label(f"L_p1_B{tag}")
        self.p1_loop1(vmode, 1)
        a.label(f"L_p1_E{tag}")
        reads, xors, mf = self.p1_parts(vmode)
        def comp(ks, rd=True, xr=True):
            a(f"s_waitcnt lgkmcnt({5 if rd or ks == 2 else 0})")
            mf(ks, 0)
            if rd: reads((ks + 2) % 4)
            mf(ks, 1)
            if xr: xors((ks + 2) % 4)
        comp(0); self.p1_issue((2,))
        comp(1); self.p1_issue((3,))
        a(f"buffer_load_dwordx4 v[{self.RS}:{self.RS+3}], v{self.RSA}, s[{SRD_WS}:{SRD_WS+3}], 0 offen sc1")
        a(f"s_mul_i32 s{T0}, s{self.sCT}, 10240")
        a(f"s_lshl_b32 s{T1}, s{S_W}, 10")
        a(f"s_add_u32 s{T0}, s{T0}, s{T1}")
        a(f"s_add_u32 s{T0}, s{T0}, {WS_CQ}")
        a(f"s_add_u32 m0, s{T1}, {self.CQ_SCR}")
        a("v_lshlrev_b32 v1, 4, v0")
        self.dma(1, SRD_WS, f"s{T0}", "sc1")
        a(f"s_add_u32 s{T0}, s{T0}, 8192")
        a("s_add_u32 m0, m0, 8192")
        a(f"s_cmp_ge_u32 s{S_W}, 2")
        a(f"s_cselect_b32 s{T0}, 0x7f000000, s{T0}")
        self.dma(1, SRD_WS, f"s{T0}", "sc1")
        a("s_waitcnt vmcnt(7)")
        a("s_barrier")
        comp(2); comp(3)
        comp(0); comp(1)
        a("s_waitcnt vmcnt(3)")
        a("s_barrier")
        comp(2, xr=False); comp(3, xr=False)
        comp(0, xr=False); comp(1, xr=False)
        a("s_waitcnt vmcnt(0)")
        a("s_barrier")
        self.p1_epi_reads()
        a("s_waitcnt lgkmcnt(15)")
        mf(2, 0); mf(2, 1)
        a("s_waitcnt lgkmcnt(10)")
        mf(3, 0); mf(3, 1)

    def p1_parts(self, vmode):
        a = self.a
        def reads(ks):
            if self.o.get("nolds"): return
            a(f"ds_read_b128 v[{self.XF+4*ks}:{self.XF+4*ks+3}], v{self.XA+ks}")
            for i in range(2):
                for rd in range(2):
                    d = self.WF + 8 * ks + 4 * i + 2 * rd
                    a(f"ds_read_b64_tr_b16 v[{d}:{d+1}], v{self.WA+4*i+ks} offset:{16384+rd*1024}")
        def xors(ks):
            for r in (self.XA + ks, self.WA + ks, self.WA + 4 + ks): a(f"v_xor_b32 v{r}, v{self.VXM}, v{r}")
            if ks == 3: a(f"v_xor_b32 v{self.VXM}, 0x10000, v{self.VXM}")
        def mf(ks, i):
            x = vr(self.XF + 4 * ks, 4); wv = vr(self.WF + 8 * ks + 4 * i, 4); acc = vr(self.ACC + 16 * i, 16)
            if self.o.get("nomfma"): pass
            elif vmode: a(f"v_mfma_f32_32x32x16_bf16 {acc}, {x}, {wv}, {acc}")
            else: a(f"v_mfma_f32_32x32x16_bf16 {acc}, {wv}, {x}, {acc}")
        return reads, xors, mf

    def p1_loop1(self, vmode, B):
        a = self.a
        L = a.newlabel("p1loop")
        pos = self.o.get("barB" if B else "barA", "1" if B else "0")
        reads, xors, mf = self.p1_parts(vmode)
        def bar():
            a("s_waitcnt vmcnt(4)")
            if not self.o.get("nobar"): a("s_barrier")
            if self.o.get("its") == "1": self.stamp_dyn(54, self.sCNT)
        def comp(ks):
            n = (ks + 2) % 4
            if ks == 2 and pos == "0": bar()
            a("s_waitcnt lgkmcnt(5)")
            mf(ks, 0)
            if ks == 2 and pos == "1": bar()
            if ks == 2 and pos == "2":
                mf(ks, 1); bar(); reads(n)
            else:
                reads(n); mf(ks, 1)
            xors(n)
            self.p1_issue((n,))
        a("s_waitcnt vmcnt(7)")
        a("s_barrier")
        self.stamp(3)
        reads(0); reads(1); xors(0); xors(1)
        a("v_mov_b32 v6, 0x3f803f80")
        a("v_mov_b32 v2, 0")
        a("v_mov_b32 v3, 0")
        a("s_waitcnt lgkmcnt(5)")
        for k in range(4):
            for i in range(2): a(f"v_dot2_f32_bf16 v{2+i}, v{self.WF+4*i+k}, v6, v{2+i}")
        a("s_nop 2")
        a("v_permlane32_swap_b32 v2, v3")
        a("s_nop 0")
        a("v_add_f32 v2, v2, v3")
        a(f"ds_write_b32 v{self.CSW}, v2")
        a("s_waitcnt lgkmcnt(0)")
        a.align(6)
        a.label(L)
        comp(0); comp(1); comp(2)
        Lr = a.newlabel("back"); Ls = a.newlabel("side")
        a(f"s_add_u32 s{self.sCNT}, s{self.sCNT}, 1")
        a(f"s_cbranch_scc1 {Ls}")
        a.label(Lr)
        comp(3)
        a(f"s_cmp_lt_u32 s{self.sCNT}, {int(self.o.get('p1n', 10)) - 4}")
        a(f"s_cbranch_scc1 {L}")
        self._sides.append((Ls, Lr))

    def p1_sides(self):
        a = self.a
        for Ls, Lr in self._sides:
            a.label(Ls)
            self.nonce_get()
            a(f"s_cmp_lg_u32 s{self.sTG}, 0")
            a(f"s_cbranch_scc1 {Lr}")
            for k in range(4): a(f"ds_read_b32 v{2+k}, v95 offset:{512*k}")
            a(f"s_lshl_b32 s{T0}, s{self.sKC0}, 10")
            a("s_waitcnt lgkmcnt(0)")
            a("v_add_f32 v2, v2, v3")
            a("v_add_f32 v4, v4, v5")
            a(f"v_mov_b32 v3, s{S_NONCE}")
            a("v_add_f32 v2, v2, v4")
            a(f"buffer_store_dwordx2 v[2:3], v{self.CQA}, s[{SRD_WS}:{SRD_WS+3}], s{T0} offen sc1")
            a(f"s_branch {Lr}")

    def p1_gather(self):
        a = self.a
        a(f"buffer_load_dwordx4 v[{self.RS}:{self.RS+3}], v{self.RSA}, s[{SRD_WS}:{SRD_WS+3}], 0 offen sc1")
        a(f"s_movk_i32 s{T0}, 0x1000")
        a(f"s_movk_i32 s{T1}, 0x2000")
        for k in range(10):
            so = ("0", f"s{T0}", f"s{T1}")[k // 4]
            a(f"buffer_load_dwordx2 v[{self.CQ+2*k}:{self.CQ+2*k+1}], v{self.CQA}, s[{SRD_WS}:{SRD_WS+3}], {so} offen offset:{1024*(k%4)} sc1")

    def p1_epi_reads(self):
        a = self.a
        a(f"s_lshl_b32 s{T0}, s{self.sNH}, 9")
        a(f"s_add_u32 s{T0}, s{T0}, {self.CQ_SCR}")
        a(f"v_lshl_add_u32 v1, v0, 3, s{T0}")
        for k in range(10): a(f"ds_read_b64 v[{self.CQ+2*k}:{self.CQ+2*k+1}], v1 offset:{1024*k}")
        a(f"s_lshl_b32 s{T2}, s{S_W}, 9")
        a(f"s_add_u32 s{T2}, s{T2}, {self.P1_MISC+4096}")
        a(f"v_lshl_add_u32 v6, v0, 2, s{T2}")
        a("v_and_b32 v5, 31, v0")
        a(f"s_mov_b32 s{S_SPIN}, 0")

    def p1_epi_common(self):
        a = self.a
        L = a.newlabel("rs"); Ld = a.newlabel("rsd")
        a("s_waitcnt lgkmcnt(0)")
        a.label(L)
        a(f"v_xor_b32 v2, s{S_NONCE}, v{self.RS+1}")
        a(f"v_xor_b32 v3, s{S_NONCE}, v{self.RS+3}")
        for k in range(0, 10, 2):
            a(f"v_xor_b32 v4, s{S_NONCE}, v{self.CQ+2*k+1}")
            a(f"v_xor_b32 v7, s{S_NONCE}, v{self.CQ+2*k+3}")
            a("v_or3_b32 v2, v2, v4, v7")
        a("v_or_b32 v2, v2, v3")
        a("v_cmp_ne_u32 vcc, 0, v2")
        a(f"s_add_u32 s{S_SPIN}, s{S_SPIN}, 1")
        a("s_or_b64 vcc, vcc, vcc")
        a(f"s_cbranch_scc0 {Ld}")
        a(f"s_cmp_ge_u32 s{S_SPIN}, {SPIN_MAX}")
        a(f"s_cbranch_scc1 {Ld}")
        self.p1_gather()
        a("s_waitcnt vmcnt(0)")
        a(f"s_branch {L}")
        a.label(Ld)
        Q = self.CQ
        a(f"v_add_f32 v12, v{Q}, v{Q+2}")
        a(f"v_add_f32 v13, v{Q+4}, v{Q+6}")
        a(f"v_add_f32 v14, v{Q+8}, v{Q+10}")
        a(f"v_add_f32 v15, v{Q+12}, v{Q+14}")
        a(f"v_add_f32 v2, v{Q+16}, v{Q+18}")
        a("v_add_f32 v12, v12, v13")
        a("v_add_f32 v14, v14, v15")
        a("v_add_f32 v12, v12, v2")
        a("v_add_f32 v12, v12, v14")
        self.stamp(4)

    def rowstats(self):
        a = self.a
        X = 100
        a("v_lshrrev_b32 v1, 3, v0")
        a(f"s_lshl_b32 s{T0}, s{S_W}, 4")
        a(f"s_lshl_b32 s{T1}, s{self.sRB}, 7")
        a(f"s_add_u32 s{T0}, s{T0}, s{T1}")
        a(f"v_add_u32 v1, s{T0}, v1")
        a("v_mul_u32_u24 v2, 1280, v1")
        a("v_and_b32 v3, 7, v0")
        a("v_lshl_add_u32 v2, v3, 4, v2")
        a(f"s_mov_b32 s{T0}, 10240")
        a("v_mov_b32 v3, 0")
        a(f"buffer_load_dwordx2 v[{self.VN}:{self.VN+1}], v3, s[{SRD_DBG}:{SRD_DBG+3}], 0 offen sc1")
        for k in range(10):
            for hh in range(2):
                r = X + 8 * k + 4 * hh
                a(f"buffer_load_dwordx4 v[{r}:{r+3}], v2, s[{SRD_X}:{SRD_X+3}], {'s%d' % T0 if hh else '0'} offen offset:{128*k}")
        for r in range(4, 8): a(f"v_mov_b32 v{r}, 0")
        a("v_mov_b32 v8, 0x3f803f80")
        for k in range(10):
            a(f"s_waitcnt vmcnt({18-2*k})")
            for e in range(4):
                for hh in range(2):
                    r = X + 8 * k + 4 * hh + e
                    a(f"v_dot2_f32_bf16 v{4+hh}, v{r}, v8, v{4+hh}")
                    a(f"v_dot2_f32_bf16 v{6+hh}, v{r}, v{r}, v{6+hh}")
        a("s_nop 2")
        for ctl in ("quad_perm:[1,0,3,2]", "quad_perm:[2,3,0,1]", "row_half_mirror"):
            for r in range(4, 8): a(f"v_add_f32_dpp v{r}, v{r}, v{r} {ctl} row_mask:0xf bank_mask:0xf")
        self.nonce_get()
        a("v_and_b32 v3, 1, v0")
        a("v_cmp_ne_u32 vcc, 0, v3")
        a("v_lshlrev_b32 v3, 3, v3")
        a("v_add_u32 v1, v1, v3")
        a("v_cndmask_b32 v4, v4, v5, vcc")
        a("v_cndmask_b32 v6, v6, v7, vcc")
        a(f"v_mul_f32 v4, 0x%08x, v4" % f2u(1.0 / 640))
        a("v_mul_f32 v5, v4, v4")
        a(f"v_mov_b32 v7, 0x%08x" % f2u(1.0 / 640))
        a("v_fma_f32 v5, v6, v7, -v5")
        a("v_max_f32 v5, 0, v5")
        a(f"v_add_f32 v5, 0x%08x, v5" % f2u(1e-5))
        a("v_rsq_f32 v8, v5")
        a(f"v_mov_b32 v9, s{S_NONCE}")
        a(f"v_mov_b32 v11, s{S_NONCE}")
        a("v_mul_f32 v10, v4, v8")
        a("v_lshlrev_b32 v1, 4, v1")
        a(f"s_mov_b32 s{T0}, {WS_RS}")
        a("s_mov_b32 exec_lo, 0x03030303")
        a("s_mov_b32 exec_hi, 0x03030303")
        a(f"buffer_store_dwordx4 v[8:11], v1, s[{SRD_WS}:{SRD_WS+3}], s{T0} offen sc1")
        a("s_mov_b64 exec, -1")

    def p1_epi_q(self):
        a = self.a
        self.p1_epi_common()
        qs = math.log2(math.e) / math.sqrt(20.0)
        a("ds_write_b32 v6, v12")
        a("v_lshrrev_b32 v1, 5, v0")
        a(f"v_lshl_add_u32 v1, v1, 4, s{T2}")
        C = 48
        for i in range(2):
            for q4 in range(4):
                a(f"ds_read_b128 v[{C+16*i+4*q4}:{C+16*i+4*q4+3}], v1 offset:{i*128+q4*32}")
        a(f"s_cmp_lt_u32 s{self.sCT}, 5")
        a(f"s_cselect_b32 s{T1}, 0x%08x, 1.0" % f2u(qs))
        a(f"v_mul_f32 v2, s{T1}, v{self.RS}")
        a(f"v_mul_f32 v3, s{T1}, v{self.RS+2}")
        for i in range(2):
            for qq in range(2):
                a(f"s_waitcnt lgkmcnt({6-4*i-2*qq})")
                b = 16 * i + 8 * qq
                for r in range(8): a(f"v_mul_f32 v{self.ACC+b+r}, v2, v{self.ACC+b+r}")
                for r in range(8): a(f"v_fma_f32 v{self.ACC+b+r}, -v3, v{C+b+r}, v{self.ACC+b+r}")
                o = 4 + 4 * ((2 * i + qq) % 2)
                for r in range(4): a(f"v_cvt_pk_bf16_f32 v{o+r}, v{self.ACC+b+2*r}, v{self.ACC+b+2*r+1}")
                a(f"buffer_store_dwordx4 v[{o}:{o+3}], v{self.STA+2*i+qq}, s[{SRD_WS}:{SRD_WS+3}], 0 offen sc1")

    def p1_epi_v(self):
        a = self.a
        self.p1_epi_common()
        a("v_mov_b32 v13, v12")
        a(f"v_lshl_add_u32 v6, v5, 2, s{T2}")
        a("v_lshrrev_b32 v1, 5, v0")
        a("v_permlane32_swap_b32 v12, v13")
        a(f"ds_write_b32 v6, v{self.RS}")
        a(f"ds_write_b32 v6, v{self.RS+2} offset:128")
        a(f"v_lshl_add_u32 v6, v1, 4, s{T2}")
        C = 48
        for q4 in range(4):
            a(f"ds_read_b128 v[{C+4*q4}:{C+4*q4+3}], v6 offset:{q4*32}")
            a(f"ds_read_b128 v[{C+16+4*q4}:{C+16+4*q4+3}], v6 offset:{128+q4*32}")
        for grp in range(2):
            a(f"s_waitcnt lgkmcnt({4-4*grp})")
            for i in range(2):
                b = 16 * i + 8 * grp
                for r in range(8): a(f"v_mul_f32 v{self.ACC+b+r}, v{C+8*grp+r}, v{self.ACC+b+r}")
                for r in range(8): a(f"v_fma_f32 v{self.ACC+b+r}, -v{C+16+8*grp+r}, v{12+i}, v{self.ACC+b+r}")
                o = 4 + 4 * i
                for r in range(4): a(f"v_cvt_pk_bf16_f32 v{o+r}, v{self.ACC+b+2*r}, v{self.ACC+b+2*r+1}")
                a(f"buffer_store_dwordx4 v[{o}:{o+3}], v{self.STA+i}, s[{SRD_WS}:{SRD_WS+3}], 0 offen offset:{640*grp} sc1")

    def nonce_get(self):
        a = self.a
        a(f"s_mov_b32 s{S_SPIN}, 0")
        Lc = a.newlabel("nchk"); Lo = a.newlabel("nok")
        a.label(Lc)
        a(f"v_readfirstlane_b32 s{S_NONCE}, v{self.VN}")
        a(f"v_readfirstlane_b32 s{S_NONCE+1}, v{self.VN+1}")
        a(f"s_add_u32 s{S_SPIN}, s{S_SPIN}, 1")
        a(f"s_or_b32 s{T0}, s{S_NONCE}, s{S_NONCE+1}")
        a(f"s_cbranch_scc1 {Lo}")
        a(f"s_cmp_ge_u32 s{S_SPIN}, {SPIN_MAX}")
        a(f"s_cbranch_scc1 {Lo}")
        a("v_mov_b32 v94, 0")
        a(f"buffer_load_dwordx2 v[{self.VN}:{self.VN+1}], v94, s[{SRD_DBG}:{SRD_DBG+3}], 0 offen sc1")
        a("s_waitcnt vmcnt(0)")
        a(f"s_branch {Lc}")
        a.label(Lo)

    def phase1(self):
        a = self.a
        self.p1_setup_a()
        a(f"s_cmp_eq_u32 s{self.sCT}, 15")
        a("s_cbranch_scc0 L_p1_go")
        self.rowstats()
        a("s_branch L_p1_done")
        a.label("L_p1_go")
        self.p1_setup_b()
        a("v_mov_b32 v1, 0")
        a(f"buffer_load_dwordx2 v[{self.VN}:{self.VN+1}], v1, s[{SRD_DBG}:{SRD_DBG+3}], 0 offen sc1")
        self.p1_issue((1, 2, 3) if self.o.get("first5", "1") == "1" else (0, 1, 2, 3))
        self.p1_issue((0, 1))
        self.stamp(2)
        a(f"s_cmp_ge_u32 s{self.sCT}, 10")
        a("s_cbranch_scc1 L_p1_v")
        self.p1_loop(False)
        self.p1_epi_q()
        a("s_branch L_p1_done")
        self.p1_sides(); self._sides = []
        a.label("L_p1_v")
        self.p1_loop(True)
        self.p1_epi_v()
        a("s_branch L_p1_done")
        self.p1_sides()
        a.label("L_p1_done")
        self.stamp(5)
        a("s_waitcnt vmcnt(0)")
        self.stamp(6)
        a("s_barrier")
        a(f"s_lshl_b32 s{T0}, s{self.sCT}, 4")
        a(f"s_add_u32 s{T0}, s{T0}, s{self.sRB}")
        a(f"s_mul_i32 s{T0}, s{T0}, {FSP}")
        a(f"s_add_u32 s{T0}, s{T0}, {FL_1}")
        self.flag_store(T0, 2)
        self.stamp(7)
        a(f"s_cmp_eq_u32 s{S_W}, 0")
        a("s_cbranch_scc1 L_no_rls")
        self.relayout_setup()
        a.label("L_no_rls")
        if self.stop < 2:
            self.relayout_issue()
            a("s_waitcnt vmcnt(0)")
            self.relayout_finish()

    def build(self):
        a = self.a
        self.entry()
        self.phase1()
        if self.stop >= 2:
            from phases import phase2, phase3, phase4, phase5
            phase2(self)
            if self.stop >= 3: phase3(self)
            if self.stop >= 4: phase4(self)
            if self.stop >= 5: phase5(self)
        a("s_waitcnt vmcnt(0)")
        if self.o.get("fixend"):
            a.label("L_fixend")
            a("s_memrealtime s[100:101]")
            a("s_waitcnt lgkmcnt(0)")
            a(f"s_sub_u32 s100, s100, s{S_NONCE}")
            a(f"s_cmp_lt_u32 s100, {int(self.o['fixend'])*100}")
            a("s_cbranch_scc1 L_fixend")
        self.stamp(31)
        self.stamp_flush()
        a.label("L_end")
        a("s_endpgm")
        a.lines.append(f".fill {self.pad}, 4, 0xbf810000")
        body = a.text()
        errs = check(body)
        if errs:
            sys.stderr.write("\n".join(errs[:40]) + "\n%d hazards\n" % len(errs))
            raise SystemExit(1)
        head = f"""; Fused preLN -> MHA -> residual -> preLN -> SiLU FFN -> residual, one persistent launch.
; @launch grid=(256,1,1) block=(512,1,1) lds={LDS_BYTES}
.amdgcn_target "amdgcn-amd-amdhsa--gfx950"
.text
.globl {NAME}_kernel
.p2align 8
.type {NAME}_kernel,@function
{NAME}_kernel:
"""
        tail = f""".section .rodata,"a"
.p2align 6
.amdhsa_kernel {NAME}_kernel
  .amdhsa_next_free_vgpr 256
  .amdhsa_next_free_sgpr 102
  .amdhsa_accum_offset 256
  .amdhsa_group_segment_fixed_size 0
  .amdhsa_kernarg_size 72
  .amdhsa_user_sgpr_count 2
  .amdhsa_user_sgpr_kernarg_segment_ptr 1
  .amdhsa_system_sgpr_workgroup_id_x 1
.end_amdhsa_kernel
"""
        return head + body + tail

if __name__ == "__main__":
    stop = int(sys.argv[2]) if len(sys.argv) > 2 else 99
    opts = dict(kv.split("=") for kv in sys.argv[3:])
    import subprocess
    def asm_size(path):
        r = subprocess.run(["clang", "-x", "assembler", "-target", "amdgcn-amd-amdhsa", "-mcpu=gfx950", "-c", path, "-o", "_chk.o"], capture_output=True, text=True)
        if r.returncode: print(r.stderr[:1500]); raise SystemExit(1)
        r = subprocess.run(["llvm-readelf", "-S", "_chk.o"], capture_output=True, text=True)
        return int([l for l in r.stdout.split("\n") if ".text" in l][0].split()[6], 16)
    open(sys.argv[1], "w").write(K(stop, opts).build())
    n = asm_size(sys.argv[1])
    k = K(stop, opts)
    k.CPF_LINES = (n + 4095) // 4096
    k.pad = (k.CPF_LINES * 4096 - n) // 4 + 16
    open(sys.argv[1], "w").write(k.build())
    print(sys.argv[1], "code bytes:", n, "with pad:", asm_size(sys.argv[1]))
```

```python
import math
from asmlib import vr, sr, f2u
from tables import *
from gen import *

Qm, Qr, NEG, S0, S1, P, O, Km, Kr, V = 4, 8, 12, 28, 60, 92, 108, 124, 132, 136
AK, AKR, AV, DKM, DLIN = 152, 153, 154, 197, 196
XR = 198
PL = 184
SLOT = 22528
WO_LDS = 3 * SLOT
sH, sQB, sST, sK0, sK1, sK2, sS1, sDS, sKD, sVM, sRET, sWOo, sWOl = 64, 65, 66, 67, 68, 69, 70, 71, 72, 74, 76, 78, 79
sW10, sB2, sM2, sL2, sSD = 73, 82, 83, 93, 94
sTA, sW1, sSM = 95, 96, 98
WS = f"s[{SRD_WS}:{SRD_WS+3}]"
M32 = "v_mfma_f32_32x32x16_bf16"
M2B = "v_mfma_f32_32x32x4_2b_bf16"
M16 = "v_mfma_f32_16x16x32_bf16"

def kv_piece(k, i):
    a = k.a
    if i == 0:
        a(f"s_add_u32 m0, s{sW10}, s{sDS}")
        a(f"s_and_b32 s{sB2}, s{sDS}, s{sM2}")
        k.dma(DKM, SRD_WS, f"s{sK0}", "sc1")
        a(f"s_add_u32 s{sK0}, s{sK0}, 4096")
    elif i == 1:
        a(f"s_add_u32 m0, s{sW10}, s{sDS}")
        a("s_add_u32 m0, m0, 8192")
        a(f"s_add_u32 s{sDS}, s{sDS}, {SLOT}")
        k.dma(DLIN, SRD_WS, f"s{sK1}", "sc1")
        a(f"s_add_u32 s{sK1}, s{sK1}, s{sS1}")
        a(f"s_cmp_eq_u32 s{sDS}, {3*SLOT}")
        a(f"s_cselect_b32 s{sDS}, 0, s{sDS}")
    else:
        a(f"s_add_u32 m0, s{sB2}, s{sL2}")
        a("s_nop 0")
        k.dma(DLIN, SRD_WS, f"s{sK2}", "sc1")
        a(f"s_add_u32 s{sK2}, s{sK2}, 10240")

def wo_piece(k):
    a = k.a
    a(f"s_min_u32 m0, s{sWOl}, {k.DUMMY}")
    a(f"s_add_u32 s{T0}, s{sWOo}, 5120")
    a(f"s_cmp_ge_u32 s{sWOl}, {WO_LDS + 45*1024}")
    a(f"s_cselect_b32 s{T0}, s{T0}, s{sWOo}")
    a(f"s_cmp_ge_u32 s{sWOl}, {WO_LDS + 90*1024}")
    a(f"s_cselect_b32 s{T0}, 0x7f000000, s{T0}")
    k.dma(DLIN, SRD_WS, f"s{T0}", "sc1")
    a(f"s_add_u32 s{sWOl}, s{sWOl}, 8192")
    a(f"s_add_u32 s{sWOo}, s{sWOo}, 8192")

def touch_piece(k):
    a = k.a
    a(f"buffer_load_dwordx4 v[160:163], v{DLIN}, {WS}, s{sTA} offen sc1")
    a(f"s_add_u32 s{sTA}, s{sTA}, 1024")

def SG(i): return 172 + 4 * i if i < 6 else 204 + 4 * (i - 6)

def stage_load(k, vq, tag, i, s_src, off, valid=8):
    a = k.a
    a(f"s_add_u32 s{T0}, s{s_src}, {off}")
    if valid < 8:
        a(f"s_cmp_ge_u32 s{S_W}, {valid}")
        a(f"s_cselect_b32 s{T0}, 0x7f000000, s{T0}")
    a(f"buffer_load_dwordx4 {vr(SG(i),4)}, v{DLIN}, {WS}, s{T0} offen sc1")
    if vq is not None: vq.add(tag)

def qkm(a, t, d, c): a(f"{M32} {vr(d+16*t,16)}, {vr(Km+4*t,4)}, {vr(Qm,4)}, {c}")
def qkr(a, d): a(f"{M2B} {vr(d,32)}, {vr(Kr,2)}, {vr(Qr,2)}, {vr(d,32)}")
def pv(a, j): a(f"{M32} {vr(O,16)}, {vr(V+4*j,4)}, {vr(P+4*j,4)}, {vr(O,16)}")

def att_stage(k, young):
    a = k.a
    o = k.o
    barit, barpos = [int(x) for x in o.get("abarY" if young else "abarO", "0.6" if young else "1.4").split(".")]
    plo = int(o.get("plo", 7))
    def exps(b, n0, n):
        for i in range(n0, n0 + n): a(f"v_exp_f32 v{b+i}, v{b+i}")
    def cvts(b, n0, n):
        for i in range(n0, n0 + n): a(f"v_cvt_pk_bf16_f32 v{P+i}, v{b+2*i}, v{b+2*i+1}")
    def rdV(js, it):
        a(f"s_mov_b64 exec, s[{sVM}:{sVM+1}]")
        for j in js: a(f"ds_read_b128 {vr(V+4*j,4)}, v{AV} offset:{12288+(4*it+j)*640}")
        a("s_mov_b64 exec, -1")
    for it in range(4):
        cur, nx = (S0, S1) if it % 2 == 0 else (S1, S0)
        i2 = (it + 2) % 4
        npos = [0]
        def mark():
            g = it * 11 + npos[0] - (barit * 11 + barpos)
            if g == 0:
                a("s_waitcnt vmcnt(0)")
                if not o.get("anobar"): a("s_barrier")
                if o.get("its") == "2": k.stamp_dyn(54, sST)
            if not o.get("anoside"):
                d0 = int(o.get("dY" if young else "dO", 5 if young else 1)); dd = int(o.get("dd", 3))
                if g == d0 - 1:
                    a(f"s_call_b64 s[{sRET}:{sRET+1}], L_att_side")
                if not o.get("notouch") and g in [d0 + (5 + 2 * i) * dd for i in range(int(o.get("ntouch", 3)))]: touch_piece(k)
                for i in range(3):
                    if g == d0 + (1 + i) * dd: kv_piece(k, i)
                for i in range(3):
                    if g == d0 + (4 + 2 * i) * dd: wo_piece(k)
            per = int(o.get("pper", 1))
            if young and it % per == 0 and npos[0] == 0: a("s_setprio 1")
            if young and it % per == per - 1 and npos[0] == plo: a("s_setprio 0")
            npos[0] += 1
        if it == 2:
            a(f"v_add_u32 v{AK}, s{sKD}, v{AK}")
            a(f"v_add_u32 v{AKR}, s{sKD}, v{AKR}")
        mark()
        a("s_waitcnt lgkmcnt(3)")
        qkm(a, 0, nx, vr(NEG, 16)); exps(cur, 0, 4); mark()
        pv(a, 3); exps(cur, 4, 4); rdV([3], it); mark()
        qkm(a, 1, nx, vr(NEG, 16))
        a(f"ds_read_b128 {vr(Km,4)}, v{AK} offset:{2048*i2}")
        cvts(cur, 0, 4); mark()
        exps(cur, 8, 4)
        a(f"ds_read_b128 {vr(Km+4,4)}, v{AK} offset:{2048*i2+1024}")
        mark()
        a("s_waitcnt lgkmcnt(5)")
        pv(a, 0); exps(cur, 12, 4); cvts(cur, 4, 2); mark()
        qkr(a, nx); cvts(cur, 6, 2)
        a(f"ds_read_b64 {vr(Kr,2)}, v{AKR} offset:{8192+1024*i2}")
        exps(cur, 16, 4); mark()
        exps(cur, 20, 4); cvts(cur, 8, 2); mark()
        a("s_waitcnt lgkmcnt(5)")
        pv(a, 1); cvts(cur, 10, 2); exps(cur, 24, 2); mark()
        exps(cur, 26, 3); mark()
        a("s_waitcnt lgkmcnt(4)")
        pv(a, 2); exps(cur, 29, 3); mark()
        cvts(cur, 12, 4)
        if it == 3:
            a(f"v_add_u32 v{AV}, s{sKD}, v{AV}")
            a(f"s_add_u32 s{sST}, s{sST}, 1")
            a(f"s_mul_i32 s{T0}, s{sST}, 0x56")
            a(f"s_lshr_b32 s{T0}, s{T0}, 8")
            a(f"s_mul_i32 s{T0}, s{T0}, 3")
            a(f"s_sub_u32 s{T0}, s{sST}, s{T0}")
            a(f"s_mov_b32 s{sKD}, {SLOT}")
            a(f"s_cmp_eq_u32 s{T0}, 2")
            a(f"s_cselect_b32 s{sKD}, {-2*SLOT & 0xffffffff}, s{sKD}")
        rdV([0, 1, 2], (it + 1) % 4)

def att_side(k):
    a = k.a
    a.label("L_att_side")
    for st in (5, 6, 7, 4, 0, 1, 2):
        a(f"s_cmp_eq_u32 s{sST}, {st}")
        a(f"s_cbranch_scc1 L_as_{st}")
    a(f"s_mov_b32 s{T0}, {FL_R}")
    a(f"buffer_load_dwordx4 v[{PL}:{PL+3}], v{DLIN}, {WS}, s{T0} offen sc1")
    a(f"buffer_load_dwordx4 v[{PL+4}:{PL+7}], v{DLIN}, {WS}, s{T0} offen offset:1024 sc1")
    a(f"s_setpc_b64 s[{sRET}:{sRET+1}]")
    a.label("L_as_2")
    a(f"s_lshl_b32 s{T0}, s{S_G}, 3")
    a(f"s_add_u32 s{T0}, s{T0}, {FL_R}")
    k.flag_store(T0, PL)
    a(f"s_setpc_b64 s[{sRET}:{sRET+1}]")
    a.label("L_as_0")
    k.relayout_issue()
    a(f"s_setpc_b64 s[{sRET}:{sRET+1}]")
    a.label("L_as_1")
    k.relayout_finish()
    a("s_nop 1")
    a(f"s_setpc_b64 s[{sRET}:{sRET+1}]")
    a.label("L_as_4")
    N = f"s[{S_NONCE}:{S_NONCE+1}]"
    a(f"v_cmp_ne_u64 vcc, {N}, v[{PL}:{PL+1}]")
    a(f"v_cmp_ne_u64 s[{S_M1}:{S_M1+1}], {N}, v[{PL+2}:{PL+3}]")
    a(f"s_and_b32 s{T1}, s{S_J}, 7")
    a(f"s_or_b64 s[{T4}:{T5}], vcc, s[{S_M1}:{S_M1+1}]")
    a(f"v_cmp_ne_u64 vcc, {N}, v[{PL+4}:{PL+5}]")
    a(f"v_cmp_ne_u64 s[{S_M1}:{S_M1+1}], {N}, v[{PL+6}:{PL+7}]")
    a(f"s_mul_i32 s{sSD}, s{T1}, {20*5120}")
    a(f"s_add_u32 s{sSD}, s{sSD}, {WS_WO}")
    a(f"s_add_u32 s{sWOo}, s{sSD}, s{sW10}")
    a(f"s_add_u32 s{sWOl}, s{sW10}, {WO_LDS}")
    a(f"s_lshl_b32 s{T2}, s{S_J}, 3")
    a(f"s_add_u32 s{T2}, s{T2}, s{S_W}")
    a(f"s_mul_i32 s{sTA}, s{T2}, 8640")
    a(f"s_add_u32 s{sTA}, s{sTA}, {WS_W2}")
    a(f"s_and_b32 s{T2}, s{S_J}, 15")
    a(f"s_mul_i32 s{sW1}, s{T2}, {20*7168}")
    a(f"s_add_u32 s{sW1}, s{sW1}, s{sW10}")
    a(f"s_add_u32 s{sW1}, s{sW1}, {WS_W1}")
    a(f"s_or_b64 s[{T4}:{T5}], s[{T4}:{T5}], vcc")
    a(f"s_or_b64 s[{T4}:{T5}], s[{T4}:{T5}], s[{S_M1}:{S_M1+1}]")
    a("s_cbranch_scc0 L_as_ret")
    a(f"s_mov_b32 s{T3}, {FL_R}")
    k.poll(256, T3, 8, PL, only_wave0=False)
    a.label("L_as_ret")
    grp = ((0, 4), (4, 9), (9, 14), (14, 18))
    for st in range(4, 8):
        if st > 4: a.label(f"L_as_{st}")
        if st == 6:
            for r in (sK0, sK1, sK2): a(f"s_mov_b32 s{r}, 0x7f000000")
        for i in range(*grp[st - 4]): stage_load(k, None, None, i, sW1, 8192 * i, 4 if i == 17 else 8)
        a(f"s_setpc_b64 s[{sRET}:{sRET+1}]")

def resid_x(k):
    a = k.a
    a(f"s_lshr_b32 s{T0}, s{S_J}, 3")
    a(f"s_lshl_b32 s{T1}, s{S_C}, 2")
    a(f"s_add_u32 s{T0}, s{T0}, s{T1}")
    a(f"s_lshl_b32 s{T0}, s{T0}, 2")
    a(f"s_and_b32 s{T1}, s{S_W}, 3")
    a(f"s_add_u32 s{T0}, s{T0}, s{T1}")
    a(f"s_mul_i32 s{T0}, s{T0}, {16*1280}")
    a(f"s_and_b32 s{T1}, s{S_J}, 7")
    a(f"s_mul_i32 s{T1}, s{T1}, 160")
    a(f"s_add_u32 s{T0}, s{T0}, s{T1}")
    a(f"s_lshr_b32 s{T1}, s{S_W}, 2")
    a(f"s_lshl_b32 s{T1}, s{T1}, 6")
    a(f"s_add_u32 s{T1}, s{T1}, s{T0}")
    a(f"v_lshrrev_b32 v{TM}, 2, v0")
    a(f"v_mul_u32_u24 v{TM}, 1280, v{TM}")
    a(f"v_and_b32 v{TM+1}, 3, v0")
    a(f"v_lshl_add_u32 v{TM}, v{TM+1}, 3, v{TM}")
    a(f"buffer_load_dwordx2 v[{XR}:{XR+1}], v{TM}, s[{SRD_X}:{SRD_X+3}], s{T1} offen")
    a(f"buffer_load_dwordx2 v[{XR+2}:{XR+3}], v{TM}, s[{SRD_X}:{SRD_X+3}], s{T1} offen offset:32")
    a(f"buffer_load_dwordx2 v[{XR+4}:{XR+5}], v{TM}, s[{SRD_X}:{SRD_X+3}], s{T0} offen offset:128")

def rowmax(a, b, n, dst, t):
    a(f"v_max3_f32 v{dst}, v{b}, v{b+1}, v{dst}")
    for i in range(2, n, 2): a(f"v_max3_f32 v{dst}, v{b+i}, v{b+i+1}, v{dst}")

def set_neg(a, m, t):
    a(f"v_mov_b32 v{t}, v{m}")
    a("s_nop 1")
    a(f"v_permlane32_swap_b32 v{m}, v{t}")
    a("s_nop 0")
    a(f"v_max_f32 v{m}, v{m}, v{t}")
    for r in range(16): a(f"v_sub_f32 v{NEG+r}, 0, v{m}")

def att_fallback(k):
    a = k.a
    FT = S1
    a.label("L_att_fb")
    sI, sA, sB, sC = T0, T1, T2, T3
    def init():
        a(f"s_lshl_b32 s{sA}, s{sH}, 16")
        a(f"s_add_u32 s{sA}, s{sA}, {WS_K}")
        a(f"s_lshr_b32 s{sB}, s{sH}, 1")
        a(f"s_lshl_b32 s{sB}, s{sB}, 15")
        a(f"s_add_u32 s{sB}, s{sB}, {WS_K + 64*32768}")
        a(f"s_mul_i32 s{sC}, s{sH}, 81920")
        a(f"s_add_u32 s{sC}, s{sC}, {WS_V}")
        a(f"s_mov_b32 s{sI}, 0")
    def ldk():
        a(f"buffer_load_dwordx4 {vr(Km,4)}, v{DKM}, {WS}, s{sA} offen sc1")
        a(f"buffer_load_dwordx4 {vr(Km+4,4)}, v{DKM}, {WS}, s{sA} offen offset:512 sc1")
        a(f"buffer_load_dwordx2 {vr(Kr,2)}, v{FT+1}, {WS}, s{sB} offen sc1")
    def step():
        a(f"s_add_u32 s{sA}, s{sA}, 1024")
        a(f"s_add_u32 s{sB}, s{sB}, 1024")
        a(f"s_add_u32 s{sC}, s{sC}, 2560")
        a(f"s_add_u32 s{sI}, s{sI}, 1")
        a(f"s_cmp_lt_u32 s{sI}, 32")
    a(f"s_and_b32 s{T0}, s{sH}, 1")
    a(f"s_lshl_b32 s{T0}, s{T0}, 3")
    a(f"v_add_u32 v{FT+1}, s{T0}, v{DLIN}")
    a(f"v_lshrrev_b32 v{FT+2}, 5, v0")
    a(f"v_mul_u32_u24 v{FT+2}, 20, v{FT+2}")
    a(f"v_and_b32 v{FT+3}, 31, v0")
    a(f"v_add_lshl_u32 v{FT+2}, v{FT+2}, v{FT+3}, 4")
    a(f"v_mov_b32 v{FT}, 0xff800000")
    init()
    a.label("L_fb_max")
    ldk()
    a("s_waitcnt vmcnt(0)")
    qkm(a, 0, S0, "0"); qkm(a, 1, S0, "0")
    a("s_nop 9")
    qkr(a, S0)
    a("s_nop 15"); a("s_nop 3")
    rowmax(a, S0, 32, FT, FT + 4)
    step()
    a("s_cbranch_scc1 L_fb_max")
    set_neg(a, FT, FT + 4)
    for r in range(16): a(f"v_mov_b32 v{O+r}, 0")
    init()
    a.label("L_fb_acc")
    ldk()
    a(f"s_mov_b64 exec, s[{sVM}:{sVM+1}]")
    for j in range(4): a(f"buffer_load_dwordx4 {vr(V+4*j,4)}, v{FT+2}, {WS}, s{sC} offen offset:{640*j} sc1")
    a("s_mov_b64 exec, -1")
    a("s_waitcnt vmcnt(0)")
    qkm(a, 0, S0, vr(NEG, 16)); qkm(a, 1, S0, vr(NEG, 16))
    a("s_nop 9")
    qkr(a, S0)
    a("s_nop 15"); a("s_nop 3")
    for i in range(32): a(f"v_exp_f32 v{S0+i}, v{S0+i}")
    a("s_nop 0")
    for i in range(16): a(f"v_cvt_pk_bf16_f32 v{P+i}, v{S0+2*i}, v{S0+2*i+1}")
    a("s_nop 1")
    for j in range(4): pv(a, j)
    step()
    a("s_cbranch_scc1 L_fb_acc")
    a("s_nop 11")
    a("s_branch L_att_norm")

def phase2(k):
    a = k.a
    a.c("================ phase 2: attention")
    a(f"s_lshl_b32 s{sH}, s{S_C}, 2")
    a(f"s_lshr_b32 s{T0}, s{S_J}, 3")
    a(f"s_add_u32 s{sH}, s{sH}, s{T0}")
    a(f"s_and_b32 s{sQB}, s{S_J}, 7")
    a(f"v_lshlrev_b32 v{DLIN}, 4, v0")
    a("v_lshrrev_b32 v1, 5, v0")
    a("v_and_b32 v2, 31, v0")
    a("v_lshlrev_b32 v3, 15, v1")
    a(f"v_lshl_add_u32 v{DKM}, v2, 4, v3")
    a(f"v_mov_b32 v{AK}, v{DLIN}")
    a(f"s_and_b32 s{T0}, s{sH}, 1")
    a(f"s_lshl_b32 s{T0}, s{T0}, 3")
    a(f"v_add_u32 v{AKR}, s{T0}, v{DLIN}")
    a("v_mul_u32_u24 v3, 20, v1")
    a(f"v_add_lshl_u32 v{AV}, v3, v2, 4")
    a(f"v_lshl_add_u32 v10, v2, 4, s{T0}")
    if k.o.get("dry", "1") == "1":
        a(f"s_cmp_lg_u32 s{S_W}, 7")
        a("s_cbranch_scc1 L_nodry")
        a(f"s_mov_b32 s{sW1}, 0x7f000000")
        for st in (3, 5, 6, 7):
            a(f"s_mov_b32 s{sST}, {st}")
            if st == 3: continue
            a(f"s_call_b64 s[{sRET}:{sRET+1}], L_att_side")
        a.label("L_nodry")
    a(f"s_mov_b32 s{sVM}, 0x000fffff")
    a(f"s_mov_b32 s{sVM+1}, 0x000fffff")
    a(f"s_lshl_b32 s{sK0}, s{sH}, 16")
    a(f"s_lshl_b32 s{T0}, s{S_W}, 9")
    a(f"s_add_u32 s{sK0}, s{sK0}, s{T0}")
    a(f"s_add_u32 s{sK0}, s{sK0}, {WS_K}")
    a(f"s_lshl_b32 s{T0}, s{S_W}, 10")
    a(f"s_mul_i32 s{sK2}, s{sH}, 81920")
    a(f"s_add_u32 s{sK2}, s{sK2}, s{T0}")
    a(f"s_add_u32 s{T1}, s{sK2}, {WS_V - 4096}")
    a(f"s_add_u32 s{sK2}, s{sK2}, {WS_V + 4096}")
    a(f"s_lshr_b32 s{T2}, s{sH}, 1")
    a(f"s_lshl_b32 s{T2}, s{T2}, 15")
    a(f"s_add_u32 s{sK1}, s{T2}, s{T0}")
    a(f"s_add_u32 s{sK1}, s{sK1}, {WS_K + 64*32768}")
    a(f"s_mov_b32 s{sS1}, 10240")
    a(f"s_cmp_lt_u32 s{S_W}, 4")
    a(f"s_cselect_b32 s{sK1}, s{sK1}, s{T1}")
    a(f"s_cselect_b32 s{sS1}, 4096, s{sS1}")
    a(f"s_mov_b32 s{sDS}, 0")
    a(f"s_mov_b32 s{sST}, 0")
    a(f"s_mov_b32 s{sKD}, {SLOT}")
    a(f"s_mov_b32 s{sW10}, s{T0}")
    a(f"s_mov_b32 s{sWOo}, 0")
    a(f"s_mov_b32 s{sSD}, 0")
    a(f"s_mov_b32 s{sTA}, 0x7f000000")
    a(f"s_mov_b32 s{sWOl}, 0x40000000")
    a(f"s_add_u32 s{sL2}, s{T0}, 16384")
    a(f"s_cmp_lt_u32 s{S_W}, 6")
    a(f"s_cselect_b32 s{sM2}, -1, 0")
    a(f"s_cselect_b32 s{sL2}, s{sL2}, {k.DUMMY}")
    a(f"s_cselect_b32 s{sK2}, s{sK2}, 0x7f000000")
    a(f"s_lshl_b32 s{T0}, s{sQB}, 3")
    a(f"s_add_u32 s{T0}, s{T0}, s{S_W}")
    a(f"s_lshl_b32 s{T0}, s{T0}, 9")
    a(f"s_add_u32 s{T2}, s{T2}, s{T0}")
    a(f"s_add_u32 s80, s{T2}, {WS_Q + 64*32768}")
    a(f"s_lshl_b32 s{T3}, s{sH}, 16")
    a(f"s_add_u32 s{T3}, s{T3}, s{T0}")
    a(f"s_add_u32 s81, s{T3}, {WS_Q}")
    a("v_cmp_eq_u32 vcc, 20, v2")
    a("v_mov_b32 v3, 0x3f803f80")
    a("s_nop 0")
    a("v_cndmask_b32 v3, 0, v3, vcc")
    for r in range(16): a(f"v_mov_b32 v{V+r}, v3")
    for r in range(16): a(f"v_mov_b32 v{O+r}, 0")
    for r in range(12, 16): a(f"v_mov_b32 v{P+r}, 0")
    a(f"s_mul_i32 s{T0}, s{sH}, 20")
    a(f"s_add_u32 s{T1}, s{T0}, 19")
    a(f"s_lshr_b32 s{T0}, s{T0}, 7")
    a(f"s_lshr_b32 s{T1}, s{T1}, 7")
    a(f"s_sub_u32 s{T1}, s{T1}, s{T0}")
    a(f"s_lshl_b32 s{T1}, s{T1}, 4")
    a(f"v_and_b32 v{PL+4}, s{T1}, v0")
    a(f"v_and_b32 v{PL+5}, 15, v0")
    a(f"v_add_u32 v{PL+5}, v{PL+5}, v{PL+4}")
    a(f"v_mul_u32_u24 v{PL+6}, 0x50, v1")
    a(f"v_add3_u32 v{PL+5}, v{PL+5}, v{PL+6}, 64")
    a(f"v_add_u32 v{PL+5}, 16, v{PL+5}")
    a(f"v_lshlrev_b32 v{PL+5}, 7, v{PL+5}")
    a(f"s_lshl_b32 s{T2}, s{sQB}, 1")
    a(f"v_and_b32 v{PL+6}, 1, v0")
    a(f"v_add3_u32 v{PL+4}, v{PL+4}, v{PL+6}, s{T2}")
    a(f"v_lshlrev_b32 v{PL+4}, 7, v{PL+4}")
    a(f"s_lshl_b32 s{T0}, s{T0}, 11")
    a(f"s_add_u32 s{T3}, s{T0}, {FL_1}")
    k.poll2(PL + 5, PL + 4, T3, PL)
    a("s_barrier")
    k.stamp(8)
    a(f"buffer_load_dwordx4 {vr(Qm,4)}, v{DKM}, {WS}, s81 offen sc1")
    a(f"buffer_load_dwordx2 {vr(Qr,2)}, v10, {WS}, s80 offen sc1")
    for i in range(3): kv_piece(k, i)
    a("s_waitcnt vmcnt(0)")
    for i in range(3): kv_piece(k, i)
    a("s_barrier")
    k.stamp(9)
    def rdk(i):
        a(f"ds_read_b128 {vr(Km,4)}, v{AK} offset:{2048*i}")
        a(f"ds_read_b128 {vr(Km+4,4)}, v{AK} offset:{2048*i+1024}")
        a(f"ds_read_b64 {vr(Kr,2)}, v{AKR} offset:{8192+1024*i}")
    rdk(0)
    a(f"v_mov_b32 v{PL}, 0xff800000")
    a("s_waitcnt lgkmcnt(0)")
    qkm(a, 0, S1, "0"); qkm(a, 1, S1, "0")
    a("s_nop 9")
    qkr(a, S1)
    a("s_nop 15"); a("s_nop 3")
    rowmax(a, S1, 32, PL, PL + 4)
    set_neg(a, PL, PL + 4)
    a("s_nop 1")
    qkm(a, 0, S0, vr(NEG, 16)); qkm(a, 1, S0, vr(NEG, 16))
    a("s_nop 9")
    qkr(a, S0)
    rdk(1)
    a(f"s_mov_b64 exec, s[{sVM}:{sVM+1}]")
    for j in range(3): a(f"ds_read_b128 {vr(V+4*j,4)}, v{AV} offset:{12288+j*640}")
    a("s_mov_b64 exec, -1")
    a("s_nop 10")
    a(f"s_cmp_ge_u32 s{S_W}, 4")
    a("s_cbranch_scc1 L_att_young")
    for young in (0, 1):
        L = "L_att_young" if young else "L_att_old"
        a.align(6)
        a.label(L)
        att_stage(k, young)
        a(f"s_cmp_lt_u32 s{sST}, 8")
        a(f"s_cbranch_scc1 {L}")
        if not young: a("s_branch L_att_done")
    a("s_setprio 0")
    a.label("L_att_done")
    a("s_waitcnt lgkmcnt(3)")
    pv(a, 3)
    k.stamp(10)
    a(f"s_lshl_b32 s{T0}, s{sQB}, 4")
    a(f"s_lshl_b32 s{T1}, s{S_W}, 1")
    a(f"s_add_u32 s{T0}, s{T0}, s{T1}")
    a(f"s_mul_i32 s{T0}, s{T0}, 20480")
    a(f"s_add_u32 s{T0}, s{T0}, {WS_O}")
    a(f"s_lshl_b32 s{T1}, s{sH}, 9")
    a(f"s_add_u32 s80, s{T0}, s{T1}")
    a(f"s_lshr_b32 s{T1}, s{sH}, 4")
    a(f"s_lshl_b32 s{T2}, s{T1}, 11")
    a(f"s_add_u32 s80, s80, s{T2}")
    a(f"s_lshl_b32 s{T1}, s{T1}, 13")
    a(f"s_add_u32 s{T0}, s{T0}, s{T1}")
    a(f"s_lshr_b32 s{T1}, s{sH}, 3")
    a(f"s_lshl_b32 s{T1}, s{T1}, 10")
    a(f"s_add_u32 s{T0}, s{T0}, s{T1}")
    a(f"s_bfe_u32 s{T1}, s{sH}, 0x20001")
    a(f"s_lshl_b32 s{T1}, s{T1}, 7")
    a(f"s_add_u32 s{T0}, s{T0}, s{T1}")
    a(f"s_and_b32 s{T1}, s{sH}, 1")
    a(f"s_lshl_b32 s{T1}, s{T1}, 9")
    a(f"s_add_u32 s{T0}, s{T0}, s{T1}")
    a(f"s_add_u32 s81, s{T0}, 8192")
    a("s_waitcnt lgkmcnt(0)")
    a(f"v_add_f32 v1, abs(v{O}), abs(v{O+1})")
    a(f"v_add_f32 v3, abs(v{O+2}), abs(v{O+3})")
    for r in range(4, 12, 2):
        a(f"v_add_f32 v1, abs(v{O+r}), v1")
        a(f"v_add_f32 v3, abs(v{O+r+1}), v3")
    a(f"v_mov_b32 v2, 0x{f2u(2.0**40):08x}")
    a("v_add_f32 v1, v1, v3")
    a("v_mov_b32 v3, 0x203")
    a(f"v_cmp_nle_f32 vcc, v{O+8}, v2")
    a(f"v_cmp_class_f32 s[{S_M1}:{S_M1+1}], v1, v3")
    a("s_and_b32 vcc_lo, vcc_lo, 0")
    a(f"s_or_b64 vcc, vcc, s[{S_M1}:{S_M1+1}]")
    a("s_cbranch_scc1 L_att_fb")
    a.label("L_att_norm")
    a(f"v_mov_b32 v1, v{O+8}")
    a(f"v_mov_b32 v2, v{O+8}")
    a("v_bfe_u32 v3, v0, 4, 1")
    a("v_mul_u32_u24 v3, 20480, v3")
    a("v_permlane32_swap_b32 v1, v2")
    a("s_nop 0")
    a("v_rcp_f32 v2, v2")
    a("v_and_b32 v10, 15, v0")
    a("v_lshl_add_u32 v11, v10, 4, v3")
    a("v_lshl_add_u32 v3, v10, 3, v3")
    a("v_lshrrev_b32 v10, 5, v0")
    a("v_lshl_add_u32 v10, v10, 8, v11")
    for r in range(12): a(f"v_mul_f32 v{O+r}, v2, v{O+r}")
    for r in range(6): a(f"v_cvt_pk_bf16_f32 v{P+r}, v{O+2*r}, v{O+2*r+1}")
    a(f"buffer_store_dwordx4 {vr(P,4)}, v10, {WS}, s80 offen sc1")
    a("s_mov_b64 exec, 0xffffffff")
    a(f"buffer_store_dwordx2 {vr(P+4,2)}, v3, {WS}, s81 offen sc1")
    a("s_mov_b64 exec, -1")
    a("s_branch L_att_end")
    att_side(k)
    att_fallback(k)
    a.label("L_att_end")
    if k.stop == 2:
        a("s_waitcnt vmcnt(0)")
        k.stamp(11)


class VQ:
    def __init__(self, a): self.a = a; self.q = []
    def add(self, tag): self.q.append(tag)
    def wait(self, tag):
        if tag not in self.q: return
        i = len(self.q) - 1 - self.q[::-1].index(tag)
        n = len(self.q) - 1 - i
        self.a(f"s_waitcnt vmcnt({n})")
        self.q = self.q[i + 1:]

def dma_ops(k, vq, tag, first, last, s_src, s_lds, lds0, nw=8):
    a = k.a
    def one(i):
        def f():
            a(f"s_add_u32 m0, s{s_lds}, {lds0 + nw * i * 1024}")
            a(f"s_add_u32 s{T0}, s{s_src}, {(first + nw * i) * 1024}")
            if first + nw * i + nw > last:
                a(f"s_cmp_ge_u32 s{S_W}, {last - first - nw*i + (1 if nw == 7 else 0)}")
                a(f"s_cselect_b32 m0, {k.DUMMY}, m0")
                a(f"s_cselect_b32 s{T0}, 0x7f000000, s{T0}")
            k.dma(DLIN, SRD_WS, f"s{T0}", "sc1")
            if vq is not None: vq.add(tag)
        return f
    return [one(i) for i in range((last - first + nw - 1) // nw)]

DL8 = 197
RA = 8
AF = 4
ST = 36
ACC = 44
BA = 72
XW, XRD = 78, 79
TM = 80
WB = 88
CSV = 148
SW = 1
TL = 252
HR = 198
sRG, sKH, sN8, sRB64, sA, sB = 64, 65, 66, 67, 68, 69
sW7 = 72
CS_LDS = 158 * 1024

def a_op(k, vq, j, ks, s_base, split):
    a = k.a
    reg = AF + 4 * (j % RA)
    pol = k.o.get("apol", "sc1")
    def f():
        if k.o.get("noa"): return
        a(f"s_add_u32 s{T0}, s{s_base}, {1024*ks}")
        if split:
            a(f"buffer_load_dwordx2 {vr(reg,2)}, v{DL8}, {WS}, s{T0} offen sc1")
            a(f"buffer_load_dwordx2 {vr(reg+2,2)}, v{DL8}, {WS}, s{T0} offen offset:512 sc1")
            vq.add(("a", j))
        else:
            a(f"buffer_load_dwordx4 {vr(reg,4)}, v{DLIN}, {WS}, s{T0} offen {pol}")
        vq.add(("A", j))
    return f

def coop_touch(k, vq, s_base, s_idx, stride, n):
    a = k.a
    if not k.o.get("coop"): return
    a(f"s_lshl_b32 s{T1}, s{s_idx}, 10")
    a(f"s_add_u32 s{T1}, s{T1}, s{s_base}")
    for i in range((n + stride - 1) // stride):
        a(f"s_add_u32 s{T0}, s{T1}, {1024*stride*i}")
        if stride * i + stride > n:
            a(f"s_cmp_ge_u32 s{s_idx}, {n - stride*i}")
            a(f"s_cselect_b32 s{T0}, s{T1}, s{T0}")
        a(f"buffer_load_dwordx4 {vr(TM+4,4)}, v{DLIN}, {WS}, s{T0} offen sc1")
        vq.add("t")

class LQ(VQ):
    def wait(self, tag):
        if tag not in self.q: return
        i = len(self.q) - 1 - self.q[::-1].index(tag)
        self.a(f"s_waitcnt lgkmcnt({min(15, len(self.q) - 1 - i)})")
        self.q = self.q[i + 1:]

def stage_write(k, lq, i, lds, tail=None):
    a = k.a
    if tail is not None: a(f"ds_write_b128 v{tail}, {vr(SG(i),4)}")
    else: a(f"ds_write_b128 v{SW + lds // 65536}, {vr(SG(i),4)} offset:{lds % 65536}")
    if lq is not None: lq.add("w")

def mm_steps(k, vq, n, nt, addr, extra, pre_hook=None):
    a = k.a
    NB = 3
    lq = k.lq = LQ(a)
    def rd(j, t):
        r, off = addr(j, t)
        a(f"ds_read_b128 {vr(WB + (j % NB) * 4 * nt + 4 * t, 4)}, v{r} offset:{off}")
        lq.add(("r", j))
    for j in range(2):
        for t in range(nt): rd(j, t)
    for j in range(n):
        b = WB + (j % NB) * 4 * nt
        ops = list(extra.get(j, []))
        slots = {}
        for i, f in enumerate(ops): slots.setdefault(1 + (i * (nt - 1)) // max(1, len(ops)), []).append(f)
        if pre_hook and j + 2 < n: pre_hook(j + 2)
        vq.wait(("A", j))
        lq.wait(("r", j))
        for t in range(nt):
            c = "0" if j == 0 else vr(ACC + 4 * t, 4)
            a(f"{M16} {vr(ACC+4*t,4)}, {vr(b+4*t,4)}, {vr(AF+4*(j%RA),4)}, {c}")
            if j + 2 < n: rd(j + 2, t)
            for f in slots.get(t, []): f()

def tile_addrs(k, base_expr_sgpr, dst):
    a = k.a
    a(f"s_lshl_b32 s{T1}, s{sKH}, 11")
    a(f"v_add_u32 v{dst+2}, s{base_expr_sgpr}, v{DLIN}")
    a(f"v_add_u32 v{dst}, s{T1}, v{dst+2}")
    a(f"v_subrev_u32 v{dst+1}, s{T1}, v{dst+2}")

def exch_addrs(k, scr):
    a = k.a
    a(f"s_mul_i32 s{T0}, s{sRG}, 5120")
    a(f"s_add_u32 s{T0}, s{T0}, {scr}")
    a(f"s_lshl_b32 s{T1}, s{sKH}, 11")
    a(f"s_add_u32 s{T2}, s{T0}, s{T1}")
    a(f"v_add_u32 v{XW}, s{T2}, v{DLIN}")
    a(f"s_sub_u32 s{T2}, s{T0}, s{T1}")
    a(f"s_add_u32 s{T2}, s{T2}, 2048")
    a(f"v_add_u32 v{XRD}, s{T2}, v{DLIN}")

def reduce_halves(k, resid, pad):
    a = k.a
    if pad: a(f"s_nop {pad-1}")
    a(f"ds_write_b128 v{XW}, {vr(ACC+8,4)}")
    a(f"ds_write_b128 v{XW}, {vr(ACC+12,4)} offset:1024")
    L = a.newlabel("rh")
    a(f"s_cmp_eq_u32 s{sKH}, 0")
    a(f"s_cbranch_scc1 {L}")
    a(f"ds_write_b128 v{XW}, {vr(ACC+16,4)} offset:2048")
    a.label(L)
    a("s_waitcnt lgkmcnt(2)")
    for i, t in enumerate((0, 1, 4)):
        for h in range(2):
            a(f"v_lshlrev_b32 v{TM+2}, 16, v{resid+2*i+h}")
            a(f"v_and_b32 v{TM+3}, 0xffff0000, v{resid+2*i+h}")
            a(f"v_add_f32 v{ACC+4*t+2*h}, v{ACC+4*t+2*h}, v{TM+2}")
            a(f"v_add_f32 v{ACC+4*t+2*h+1}, v{ACC+4*t+2*h+1}, v{TM+3}")
    a("s_waitcnt lgkmcnt(0)")
    a("s_barrier")
    for i in range(3): a(f"ds_read_b128 {vr(WB+4*i,4)}, v{XRD} offset:{1024*i}")
    for i, t in enumerate((0, 1, 4)):
        a(f"s_waitcnt lgkmcnt({2-i})")
        for r in range(4): a(f"v_add_f32 v{ACC+4*t+r}, v{ACC+4*t+r}, v{WB+4*i+r}")

def row_reduce(a, r, t):
    for sw in ("16", "32"):
        a(f"v_mov_b32 v{t}, v{r}")
        a(f"v_mov_b32 v{t+1}, v{r+1}")
        a("s_nop 0")
        a(f"v_permlane{sw}_swap_b32 v{r}, v{t}")
        a(f"v_permlane{sw}_swap_b32 v{r+1}, v{t+1}")
        a("s_nop 0")
        a(f"v_add_f32 v{r}, v{r}, v{t}")
        a(f"v_add_f32 v{r+1}, v{r+1}, v{t+1}")

def not_wave0(k, fn):
    a = k.a
    L = a.newlabel("nw0")
    a(f"s_cmp_eq_u32 s{S_W}, 0")
    a(f"s_cbranch_scc1 {L}")
    fn()
    a.label(L)

OUT_PITCH = 336
OUT_HALF = 14 * 5120
OUT_LDS = 0
NS5 = 14
HALF = NS5 * 5120
sW2 = 83
def w2_load(k, vq, tag, i, batch):
    h, q = divmod(i, 9)
    first = (0, 5 * NS5)[batch]; n = (5 * NS5, 135 - 5 * NS5)[batch]
    stage_load(k, vq, tag, i, sW2, (135 * h + first + 8 * q) * 1024, min(8, n - 8 * q))
def w2_write(k, lq, i):
    h, q = divmod(i, 9)
    stage_write(k, lq, i, HALF * h + 8192 * q, TL + h if q == 8 else None)
def w2_tails(k, valid):
    a = k.a
    a(f"s_sub_u32 s{T0}, {k.DUMMY - 65536}, s{sW10}")
    a(f"s_cmp_lt_u32 s{S_W}, {valid}")
    a(f"s_cselect_b32 s{T1}, 0, s{T0}")
    a(f"s_cselect_b32 s{T0}, {HALF}, s{T0}")
    a(f"v_add_u32 v{TL}, s{T1}, v{SW+1}")
    a(f"v_add_u32 v{TL+1}, s{T0}, v{SW+1}")

P3_SCR, P3_LAST = 35 * 1024, 56 * 1024
sTT3 = 81
def phase3(k):
    a = k.a
    a.c("================ phase 3: output projection + residual")
    a(f"s_lshl_b32 s{T0}, s{sQB}, 5")
    a(f"s_add_u32 s{T0}, s{T0}, s{sH}")
    a(f"s_mul_i32 s{T3}, s{T0}, {FSP}")
    a(f"s_add_u32 s{T3}, s{T3}, {FL_2}")
    a(f"s_and_b32 s{sRG}, s{S_W}, 3")
    a(f"s_lshr_b32 s{sKH}, s{S_W}, 2")
    a(f"s_and_b32 s{sN8}, s{S_J}, 7")
    a(f"s_lshl_b32 s{sRB64}, s{S_C}, 2")
    a(f"s_lshr_b32 s{T0}, s{S_J}, 3")
    a(f"s_add_u32 s{sRB64}, s{sRB64}, s{T0}")
    a(f"s_sub_u32 s{sW7}, s{sW10}, 1024")
    a(f"s_add_u32 s{sA}, s{sSD}, s{sW7}")
    a(f"s_mul_i32 s{sW2}, s{sN8}, {54*5120}")
    a(f"s_add_u32 s{sW2}, s{sW2}, s{sW10}")
    a(f"s_add_u32 s{sW2}, s{sW2}, {WS_W2}")
    a(f"v_lshlrev_b32 v{DL8}, 3, v0")
    a(f"v_add_u32 v{SW}, s{sW10}, v{DLIN}")
    a(f"v_add_u32 v{SW+1}, 0x10000, v{SW}")
    a(f"v_add_u32 v{SW+2}, 0x20000, v{SW}")
    a("s_waitcnt vmcnt(0)")
    a("s_barrier")
    k.stamp(11)
    k.flag_store(T3, TM)
    def early():
        for f in dma_ops(k, None, None, 45, 50, sA, sW7, P3_LAST, 7): f()
        for f in dma_ops(k, None, None, 95, 100, sA, sW7, P3_LAST + 5120, 7): f()
        resid_x(k)
    not_wave0(k, early)
    for i in range(4): stage_write(k, None, i, 8192 * i)
    a(f"s_cmp_lt_u32 s{S_W}, 6")
    a("s_cbranch_scc1 L_p3_nocs")
    a(f"s_and_b32 s{T1}, s{S_J}, 15")
    a(f"s_sub_u32 s{T0}, s{S_W}, 6")
    a(f"s_lshl_b32 s{T0}, s{T0}, 6")
    a(f"v_add_u32 v{TM+4}, s{T0}, v0")
    a(f"s_mul_i32 s{T2}, s{T1}, 96")
    a(f"v_add_u32 v{TM+5}, s{T2}, v{TM+4}")
    a(f"s_min_u32 s{T2}, s{T1}, 11")
    a(f"s_lshl_b32 s{T2}, s{T2}, 4")
    a(f"s_add_u32 s{T2}, s{T2}, 1536")
    a(f"v_and_b32 v{TM+6}, 15, v0")
    a(f"v_add_u32 v{TM+6}, s{T2}, v{TM+6}")
    a(f"v_cmp_gt_u32 vcc, 96, v{TM+4}")
    a(f"s_mov_b32 s{T2}, {WS_CS1}")
    a("s_nop 0")
    a(f"v_cndmask_b32 v{TM+5}, v{TM+6}, v{TM+5}, vcc")
    a(f"v_lshlrev_b32 v{TM+5}, 2, v{TM+5}")
    for i in range(20):
        a(f"buffer_load_dword v{CSV+i}, v{TM+5}, {WS}, s{T2} offen sc1")
        if i < 19: a(f"s_add_u32 s{T2}, s{T2}, {1728*4}")
    a.label("L_p3_nocs")
    a(f"s_mul_i32 s{T0}, s{sKH}, {45*1024}")
    a(f"s_add_u32 s{T0}, s{T0}, {WO_LDS}")
    tile_addrs(k, T0, BA)
    a(f"s_mul_i32 s{T0}, s{sKH}, 5120")
    a(f"s_add_u32 s{T0}, s{T0}, {P3_LAST}")
    tile_addrs(k, T0, BA + 3)
    exch_addrs(k, P3_SCR)
    a(f"s_lshl_b32 s{T0}, s{sRB64}, 2")
    a(f"s_add_u32 s{sTT3}, s{T0}, s{sRG}")
    a(f"s_mul_i32 s{sA}, s{sTT3}, 20480")
    a(f"s_mul_i32 s{T1}, s{sKH}, 10240")
    a(f"s_add_u32 s{sA}, s{sA}, s{T1}")
    a(f"s_add_u32 s{sA}, s{sA}, {WS_O}")
    a(f"v_and_b32 v{TM+6}, 15, v0")
    a(f"v_lshrrev_b32 v{TM+7}, 4, v0")
    a(f"v_lshl_add_u32 v{TM+7}, v{TM+6}, 2, v{TM+7}")
    a(f"v_lshlrev_b32 v{TM+7}, 2, v{TM+7}")
    a(f"s_mul_i32 s70, s{sTT3}, 20480")
    a(f"s_add_u32 s70, s70, {WS_H}")
    a(f"s_lshl_b32 s{T0}, s{sN8}, 1")
    a(f"s_add_u32 s{T0}, s{T0}, s{sKH}")
    a(f"s_lshl_b32 s71, s{T0}, 10")
    a(f"s_add_u32 s71, s71, s70")
    a(f"s_lshl_b32 s{T1}, s{sRB64}, 4")
    a(f"s_add_u32 s{T0}, s{T0}, s{T1}")
    a(f"s_lshl_b32 s{T0}, s{T0}, 9")
    a(f"s_lshl_b32 s{T1}, s{sRG}, 7")
    a(f"s_add_u32 s{T0}, s{T0}, s{T1}")
    a(f"s_add_u32 s74, s{T0}, {WS_ST}")
    a(f"s_lshr_b32 s{T0}, s{sN8}, 1")
    a(f"s_lshl_b32 s{T0}, s{T0}, 10")
    a(f"s_and_b32 s{T1}, s{sN8}, 1")
    a(f"s_lshl_b32 s{T1}, s{T1}, 9")
    a(f"s_add_u32 s{T0}, s{T0}, s{T1}")
    a(f"s_add_u32 s70, s70, s{T0}")
    a(f"s_add_u32 s70, s70, 16384")
    a(f"s_lshl_b32 s{T0}, s{sRB64}, 3")
    a(f"s_add_u32 s{T0}, s{T0}, s{sN8}")
    a(f"s_mul_i32 s75, s{T0}, {FSP}")
    a(f"s_add_u32 s75, s75, {FL_3}")
    a(f"s_mul_i32 s{T3}, s{S_C}, {32*FSP}")
    a(f"s_add_u32 s{T3}, s{T3}, {FL_2}")
    k.poll(32, T3, FSP, TM)
    a(f"s_cmp_lg_u32 s{S_W}, 0")
    a("s_cbranch_scc1 L_p3_rx")
    resid_x(k)
    a.label("L_p3_rx")
    a("s_waitcnt vmcnt(3) lgkmcnt(0)")
    a("s_barrier")
    k.stamp(12)
    vq = VQ(a)
    aop = [a_op(k, vq, j, j, sA, j >= 8) for j in range(10)]
    D = int(k.o.get("d3", 4))
    coop_touch(k, vq, sA, sN8, 8, 10)
    for j in range(D): aop[j]()
    def addr(j, t):
        r = (BA if j < 9 else BA + 3) + (0, 0, 1, 1, 2)[t]
        return r, (j * 5120 if j < 9 else 0) + t * 1024
    extra = {j: [aop[j + D]] for j in range(10 - D)}
    def perm(r):
        def f():
            a(f"ds_bpermute_b32 v{XR+r}, v{TM+7}, v{XR+r}")
            k.lq.add("p")
        return f
    for r in range(6): extra.setdefault(6 + r // 2, []).append(perm(r))
    mm_steps(k, vq, 10, 5, addr, extra)
    k.stamp(13)
    reduce_halves(k, XR, 6)
    for i, t in enumerate((0, 1, 4)):
        for h in range(2): a(f"v_cvt_pk_bf16_f32 v{HR+2*i+h}, v{ACC+4*t+2*h}, v{ACC+4*t+2*h+1}")
        if i == 1: a(f"buffer_store_dwordx4 {vr(HR,4)}, v{DLIN}, {WS}, s71 offen sc1")
    a(f"v_mov_b32 v{TM+6}, 0x3f803f80")
    a(f"v_mov_b32 v{TM+4}, 0")
    a(f"v_mov_b32 v{TM+5}, 0")
    def acc_stats(regs):
        for r in regs:
            a(f"v_dot2_f32_bf16 v{TM+4}, v{r}, v{TM+6}, v{TM+4}")
            a(f"v_dot2_f32_bf16 v{TM+5}, v{r}, v{r}, v{TM+5}")
    a(f"s_cmp_lg_u32 s{sKH}, 0")
    a("s_cbranch_scc1 L_p3_no4")
    a(f"buffer_store_dwordx2 {vr(HR+4,2)}, v{DL8}, {WS}, s70 offen sc1")
    acc_stats(range(HR + 4, HR + 6))
    a.label("L_p3_no4")
    acc_stats(range(HR, HR + 4))
    a("s_nop 1")
    row_reduce(a, TM + 4, TM + 6)
    a("s_mov_b64 exec, 0xffff")
    a(f"buffer_store_dwordx2 {vr(TM+4,2)}, v{DL8}, {WS}, s74 offen sc1")
    a("s_mov_b64 exec, -1")
    for i in range(4): w2_load(k, None, None, i, 0)
    NW3 = int(k.o.get("nw3", 4))
    for i in range(7, 7 + NW3): stage_write(k, None, i, 8192 * i)
    a("s_waitcnt vmcnt(4)")
    a("s_barrier")
    k.stamp(14)
    k.flag_store(75, TM)

def phase4(k):
    a = k.a
    a.c("================ phase 4: FFN up-projection + SiLU")
    sF, sRB, sTT = 70, 71, 74
    NW3 = int(k.o.get("nw3", 4)); NB4 = min(NW3, int(k.o.get("nb4", 4)))
    def rest_writes():
        for i in list(range(7 + NW3, 18)) + [4, 5, 6]: stage_write(k, None, i, 8192 * i)
    a("s_waitcnt lgkmcnt(0)")
    for i in range(7, 7 + NB4): w2_load(k, None, None, i, 0)
    not_wave0(k, rest_writes)
    a(f"s_cmp_lt_u32 s{S_W}, 6")
    a("s_cbranch_scc1 L_p4_nocs2")
    for w in (10, 5):
        for i in range(w): a(f"v_add_f32 v{CSV+i}, v{CSV+i}, v{CSV+w+i}")
    for i in range(1, 5): a(f"v_add_f32 v{CSV}, v{CSV}, v{CSV+i}")
    a(f"s_lshl_b32 s{T0}, s{S_W}, 8")
    a(f"s_add_u32 s{T0}, s{T0}, {CS_LDS - 6*256}")
    a(f"v_lshl_add_u32 v{TM+4}, v0, 2, s{T0}")
    a(f"ds_write_b32 v{TM+4}, v{CSV}")
    a.label("L_p4_nocs2")
    a(f"s_and_b32 s{sF}, s{S_J}, 15")
    a(f"s_lshl_b32 s{sRB}, s{S_C}, 1")
    a(f"s_lshr_b32 s{T0}, s{S_J}, 4")
    a(f"s_add_u32 s{sRB}, s{sRB}, s{T0}")
    a(f"v_mov_b32 v{BA}, v{DLIN}")
    a(f"v_add_u32 v{BA+1}, {9*7168}, v{DLIN}")
    a(f"v_add_u32 v{BA+2}, {18*7168}, v{DLIN}")
    a(f"s_lshl_b32 s{T0}, s{sRB}, 3")
    a(f"s_add_u32 s{sTT}, s{T0}, s{S_W}")
    a(f"s_mul_i32 s{sA}, s{sTT}, 20480")
    a(f"s_add_u32 s{sA}, s{sA}, {WS_H}")
    a(f"s_lshr_b32 s{T0}, s{sTT}, 2")
    a(f"s_lshl_b32 s{T0}, s{T0}, 13")
    a(f"s_and_b32 s{T1}, s{sTT}, 3")
    a(f"s_lshl_b32 s{T1}, s{T1}, 7")
    a(f"s_add_u32 s{T0}, s{T0}, s{T1}")
    a(f"s_add_u32 s{sB}, s{T0}, {WS_ST}")
    a(f"v_and_b32 v{TM}, 15, v0")
    a(f"v_lshrrev_b32 v{TM+1}, 4, v0")
    a(f"v_lshlrev_b32 v{BA+3}, 11, v{TM+1}")
    a(f"v_lshl_add_u32 v{BA+3}, v{TM}, 3, v{BA+3}")
    a(f"v_lshlrev_b32 v{BA+4}, 4, v{TM+1}")
    a(f"v_add_u32 v{BA+4}, {CS_LDS}, v{BA+4}")
    w2_tails(k, 5 * NS5 - 64)
    a(f"s_mul_i32 s{T3}, s{sRB}, {16*FSP}")
    a(f"s_add_u32 s{T3}, s{T3}, {FL_3}")
    k.poll(16, T3, FSP, TM)
    a(f"s_cmp_lg_u32 s{S_W}, 0")
    a("s_cbranch_scc1 L_p4_w0")
    rest_writes()
    a.label("L_p4_w0")
    a("s_waitcnt lgkmcnt(0)")
    a("s_barrier")
    k.stamp(15)
    vq = VQ(a)
    aop = [a_op(k, vq, j, j, sA, j >= 16) for j in range(20)]
    D = int(k.o.get("d4", 4))
    coop_touch(k, vq, sA, sF, 16, 20)
    for j in range(D): aop[j]()
    def st_op(i):
        def f():
            a(f"buffer_load_dwordx2 {vr(ST+2*i,2)}, v{BA+3}, {WS}, s{sB} offen offset:{512*i} sc1")
            vq.add("S")
        return f
    extra = {j: [aop[j + D]] for j in range(20 - D)}
    rest = list(range(7 + NB4, 18)) + [4, 5, 6]
    for n, i in enumerate(rest): extra.setdefault(1 + (n * 19) // len(rest), []).append(lambda i=i: w2_load(k, vq, "W", i, 0))
    for i in range(4): extra.setdefault(6 + i, []).insert(0, st_op(i))
    def stats_a():
        vq.wait("S")
        a(f"v_add_f32 v{ST}, v{ST}, v{ST+2}")
        a(f"v_add_f32 v{ST+1}, v{ST+1}, v{ST+3}")
        a(f"v_add_f32 v{ST+4}, v{ST+4}, v{ST+6}")
        a(f"v_add_f32 v{ST+5}, v{ST+5}, v{ST+7}")
        a(f"v_add_f32 v{ST}, v{ST}, v{ST+4}")
        a(f"v_add_f32 v{ST+1}, v{ST+1}, v{ST+5}")
    def stats_sw(sw):
        def f():
            a(f"v_mov_b32 v{ST+2}, v{ST}")
            a(f"v_mov_b32 v{ST+3}, v{ST+1}")
            a("s_nop 0")
            a(f"v_permlane{sw}_swap_b32 v{ST}, v{ST+2}")
            a(f"v_permlane{sw}_swap_b32 v{ST+1}, v{ST+3}")
            a("s_nop 0")
            a(f"v_add_f32 v{ST}, v{ST}, v{ST+2}")
            a(f"v_add_f32 v{ST+1}, v{ST+1}, v{ST+3}")
        return f
    def stats_b():
        a(f"v_mul_f32 v{ST}, 0x{f2u(1.0/640):08x}, v{ST}")
        a(f"v_mul_f32 v{ST+2}, v{ST}, v{ST}")
        a(f"v_mov_b32 v{ST+3}, 0x{f2u(1.0/640):08x}")
        a(f"v_fma_f32 v{ST+2}, v{ST+1}, v{ST+3}, -v{ST+2}")
        a(f"v_max_f32 v{ST+2}, 0, v{ST+2}")
        a(f"v_add_f32 v{ST+2}, 0x{f2u(1e-5):08x}, v{ST+2}")
        a(f"v_rsq_f32 v{ST+1}, v{ST+2}")
        a(f"s_mul_i32 s76, s{sTT}, {54*1024}")
        a(f"s_add_u32 s76, s76, {WS_H1}")
        a(f"v_mul_f32 v{ST}, v{ST}, v{ST+1}")
        a(f"s_lshr_b32 s{T1}, s{sF}, 3")
        a(f"s_add_u32 s{T1}, s{T1}, s{sF}")
        a(f"s_mul_i32 s{T1}, s{T1}, 3072")
        a(f"s_add_u32 s77, s{T1}, s76")
    def stats_c():
        a(f"s_lshr_b32 s{T2}, s{sF}, 1")
        a(f"s_cmp_ge_u32 s{sF}, 6")
        a(f"s_cselect_b32 s{T1}, 48, 24")
        a(f"s_add_u32 s{T2}, s{T2}, s{T1}")
        a(f"s_lshl_b32 s{T2}, s{T2}, 10")
        a(f"s_and_b32 s{T1}, s{sF}, 1")
        a(f"s_lshl_b32 s{T1}, s{T1}, 9")
        a(f"s_add_u32 s{T2}, s{T2}, s{T1}")
        a(f"s_add_u32 s76, s76, s{T2}")
        a(f"s_lshl_b32 s{T1}, s{sRB}, 4")
        a(f"s_add_u32 s{T1}, s{T1}, s{sF}")
        a(f"s_mul_i32 s{T3}, s{T1}, {FSP}")
        a(f"s_add_u32 s{T3}, s{T3}, {FL_4}")
    for j, f in ((14, stats_a), (15, stats_sw(16)), (16, stats_sw(32)), (17, stats_b), (18, stats_c)): extra.setdefault(j, []).append(f)
    def addr(j, t): return BA + j // 9, (j % 9) * 7168 + t * 1024
    mm_steps(k, vq, 20, 7, addr, extra)
    k.stamp(16)
    CS = WB + 56
    for t in range(7): a(f"ds_read_b128 {vr(CS+4*t,4)}, v{BA+4} offset:{64*t}")
    a(f"s_cmp_lt_u32 s{S_W}, 4")
    a("s_cbranch_scc1 L_p4_nb")
    a("s_barrier")
    a.label("L_p4_nb")
    a("s_waitcnt lgkmcnt(0)")
    E = WB; OUT = AF
    def silu(tiles):
        rs = [4 * t + r for t in tiles for r in range(4)]
        for r in rs: a(f"v_mul_f32 v{ACC+r}, v{ST+1}, v{ACC+r}")
        for r in rs: a(f"v_fma_f32 v{ACC+r}, -v{ST}, v{CS+r}, v{ACC+r}")
        for r in rs: a(f"v_mul_f32 v{E+r}, 0x{f2u(-math.log2(math.e)):08x}, v{ACC+r}")
        for r in rs: a(f"v_exp_f32 v{E+r}, v{E+r}")
        for r in rs: a(f"v_add_f32 v{E+r}, 1.0, v{E+r}")
        for r in rs: a(f"v_rcp_f32 v{E+r}, v{E+r}")
        for r in rs: a(f"v_mul_f32 v{ACC+r}, v{ACC+r}, v{E+r}")
        for r in rs[::2]: a(f"v_cvt_pk_bf16_f32 v{OUT+r//2}, v{ACC+r}, v{ACC+r+1}")
    a(f"s_cmp_ge_u32 s{sF}, 12")
    a("s_cbranch_scc1 L_p4_no6")
    silu((6,))
    a(f"buffer_store_dwordx2 {vr(OUT+12,2)}, v{DL8}, {WS}, s76 offen sc1")
    a.label("L_p4_no6")
    PB = int(k.o.get("pb4", 2))
    for p in range(3):
        if p == PB:
            a(f"s_cmp_ge_u32 s{S_W}, 4")
            a("s_cbranch_scc1 L_p4_nb2")
            a("s_barrier")
            a.label("L_p4_nb2")
        silu((2 * p, 2 * p + 1))
        a(f"buffer_store_dwordx4 {vr(OUT+4*p,4)}, v{DLIN}, {WS}, s77 offen offset:{1024*p} sc1")
    order = [x for q in range(9) for x in (q, 9 + q)]
    NB5 = 12
    def w2_swap():
        for n, i in enumerate(order):
            w2_write(k, None, i)
            if 4 <= n < 4 + NB5:
                a("s_waitcnt lgkmcnt(4)")
                w2_load(k, None, None, order[n - 4], 1)
        if NB5 > 14:
            a("s_waitcnt lgkmcnt(0)")
            for i in order[14:NB5]: w2_load(k, None, None, i, 1)
    a(f"s_cmp_ge_u32 s{S_W}, 4")
    a("s_cbranch_scc1 L_p4_y")
    if PB == 3: a("s_barrier")
    a("s_waitcnt vmcnt(3)")
    w2_swap()
    a(f"s_waitcnt vmcnt({NB5})")
    a("s_barrier")
    k.stamp(17)
    k.flag_store(T3, TM)
    a("s_branch L_p4_e")
    a.label("L_p4_y")
    a("s_waitcnt vmcnt(0)")
    a("s_barrier")
    k.stamp(17)
    w2_swap()
    a.label("L_p4_e")

def phase5(k):
    a = k.a
    a.c("================ phase 5: FFN down-projection + residual")
    a(f"s_mul_i32 s{T0}, s{sKH}, {HALF}")
    tile_addrs(k, T0, BA)
    for i in range(3): a(f"v_add_u32 v{BA+3+i}, {12*5120}, v{BA+i}")
    a(f"v_and_b32 v{TM+4}, 15, v0")
    a(f"s_lshl_b32 s{T0}, s{sRG}, 4")
    a(f"v_add_u32 v{TM+4}, s{T0}, v{TM+4}")
    a(f"v_mul_u32_u24 v{TM+4}, {OUT_PITCH}, v{TM+4}")
    a(f"v_lshrrev_b32 v{TM+5}, 4, v0")
    a(f"v_lshl_add_u32 v{TM+4}, v{TM+5}, 4, v{TM+4}")
    a(f"s_mul_i32 s{T0}, s{sKH}, {OUT_HALF}")
    a(f"s_add_u32 s{T0}, s{T0}, {OUT_LDS}")
    a(f"v_add_u32 v{TL}, s{T0}, v{TM+4}")
    a(f"s_lshl_b32 s{T0}, s{sKH}, 7")
    a(f"v_add_u32 v{XW}, s{T0}, v{TL}")
    a(f"v_subrev_u32 v{XRD}, s{T0}, v{TL}")
    for n in range(2):
        a(f"s_lshl_b32 s{T0}, s{S_W}, 6")
        a(f"s_add_u32 s{T0}, s{T0}, {512*n}")
        a(f"v_add_u32 v{TM+2}, s{T0}, v0")
        a(f"v_mul_u32_u24 v{TM+3}, 6554, v{TM+2}")
        a(f"v_lshrrev_b32 v{TM+3}, 16, v{TM+3}")
        a(f"v_mul_u32_u24 v{TM+4+2*n}, 10, v{TM+3}")
        a(f"v_sub_u32 v{TM+2}, v{TM+2}, v{TM+4+2*n}")
        a(f"v_mul_u32_u24 v{TM+4+2*n}, {OUT_PITCH}, v{TM+3}")
        a(f"v_lshl_add_u32 v{TM+4+2*n}, v{TM+2}, 5, v{TM+4+2*n}")
        a(f"v_add_u32 v{TM+4+2*n}, {OUT_LDS}, v{TM+4+2*n}")
        a(f"v_mul_u32_u24 v{TM+5+2*n}, 1280, v{TM+3}")
        a(f"v_lshl_add_u32 v{TM+5+2*n}, v{TM+2}, 4, v{TM+5+2*n}")
    a(f"s_mul_i32 s{sA}, s{sRB64}, {64*1280}")
    a(f"s_mul_i32 s{T0}, s{sN8}, 160")
    a(f"s_add_u32 s{sA}, s{sA}, s{T0}")
    a(f"s_mul_i32 s{sB}, s{sTT3}, {54*1024}")
    a(f"s_mul_i32 s{T1}, s{sKH}, {27*1024}")
    a(f"s_add_u32 s{sB}, s{sB}, s{T1}")
    a(f"s_add_u32 s{sB}, s{sB}, {WS_H1}")
    if k.o.get("p5hot"): a(f"s_mov_b32 s{sB}, {WS_W2}")
    if k.o.get("p5oob"): a(f"s_mov_b32 s{sB}, 0x7f000000")
    a(f"s_lshr_b32 s{T3}, s{sRB64}, 1")
    a(f"s_mul_i32 s{T3}, s{T3}, {16*FSP}")
    a(f"s_add_u32 s{T3}, s{T3}, {FL_4}")
    k.poll(16, T3, FSP, TM)
    a("s_waitcnt lgkmcnt(0)")
    a("s_barrier")
    k.stamp(18)
    vq = VQ(a)
    aop = [a_op(k, vq, j, j, sB, j >= 24) for j in range(27)]
    D = int(k.o.get("d5", 5))
    coop_touch(k, vq, sB, sN8, 8, 27)
    for j in range(D): aop[j]()
    extra = {j: [aop[j + D]] for j in range(27 - D)}
    NB5 = 12
    NB5 = 12
    bars = (5, 10, 13, 20)
    dm = [x for p in zip(dma_ops(k, vq, "R", 5 * NS5 + 48, 135, sW2, sW10, 48 * 1024), dma_ops(k, vq, "R", 135 + 5 * NS5 + 48, 270, sW2, sW10, HALF + 48 * 1024)) for x in p]
    for n, f in enumerate(dm): extra.setdefault(13 + n // 2, []).append(f)
    def wr(i):
        vq.wait(("W", i))
        w2_write(k, k.lq, i)
    for g in range(2):
        for n, i in enumerate(x for q in range(3 * g, 3 * g + 3) for x in (q, 9 + q)):
            if 6 * g + n >= NB5: extra.setdefault(6 * g + n - NB5, []).append(lambda i=i: w2_load(k, vq, ("W", i), i, 1))
            if not k.o.get("p5now"): extra.setdefault(bars[g] + n // 2, []).append(lambda i=i: wr(i))
    slot = lambda j: j if j < NS5 else j - NS5
    def addr(j, t):
        s = slot(j)
        return BA + (3 if s >= 12 else 0) + (0, 0, 1, 1, 2)[t], (s % 12) * 5120 + t * 1024
    def pre(j):
        if j - 2 in bars:
            k.lq.wait("w")
            vq.wait("R") if j - 2 == 20 else None
            if not k.o.get("p5nob"): a("s_barrier")
    mm_steps(k, vq, 27, 5, addr, extra, pre)
    k.stamp(19)
    a("s_nop 1")
    for i, t in enumerate((0, 1, 4)):
        if i == 2:
            a(f"s_cmp_lg_u32 s{sKH}, 0")
            a("s_cbranch_scc1 L_p5_no4")
        for h in range(2):
            a(f"v_lshlrev_b32 v{TM+2}, 16, v{HR+2*i+h}")
            a(f"v_and_b32 v{TM+3}, 0xffff0000, v{HR+2*i+h}")
            a(f"v_add_f32 v{ACC+4*t+2*h}, v{ACC+4*t+2*h}, v{TM+2}")
            a(f"v_add_f32 v{ACC+4*t+2*h+1}, v{ACC+4*t+2*h+1}, v{TM+3}")
        if i < 2: a(f"ds_write_b128 v{XW}, {vr(ACC+4*t,4)} offset:{64*t}")
        if i == 1:
            a(f"ds_write_b128 v{XRD}, {vr(ACC+8,4)} offset:128")
            a(f"ds_write_b128 v{XRD}, {vr(ACC+12,4)} offset:192")
    a.label("L_p5_no4")
    a(f"ds_write_b128 v{TL}, {vr(ACC+16,4)} offset:256")
    a("s_waitcnt lgkmcnt(0)")
    a("s_barrier")
    OUTS = f"s[{SRD_OUT}:{SRD_OUT+3}]"
    def outrow(ra, ga, base):
        for h in range(2):
            for q in range(2): a(f"ds_read_b128 {vr(base+8*h+4*q,4)}, v{ra} offset:{16*q}")
            if h == 0: a(f"v_add_u32 v{ra}, {OUT_HALF}, v{ra}")
        a("s_waitcnt lgkmcnt(0)")
        for r in range(8): a(f"v_add_f32 v{base+r}, v{base+r}, v{base+8+r}")
        for r in range(4): a(f"v_cvt_pk_bf16_f32 v{base+r}, v{base+2*r}, v{base+2*r+1}")
        a(f"buffer_store_dwordx4 {vr(base,4)}, v{ga}, {OUTS}, s{sA} offen {k.o.get('ost', '')}")
    outrow(TM + 4, TM + 5, WB)
    a(f"s_cmp_ge_u32 s{S_W}, 2")
    a("s_cbranch_scc1 L_p5_end")
    outrow(TM + 6, TM + 7, WB + 16)
    a.label("L_p5_end")
```

```python
import math
from asmlib import vr, sr, f2u
from tables import *
from gen import *

Qm, Qr, NEG, S0, S1, P, O, Km, Kr, V = 4, 8, 12, 28, 60, 92, 108, 124, 132, 136
AK, AKR, AV, DKM, DLIN = 152, 153, 154, 197, 196
XR = 198
PL = 184
SLOT = 22528
WO_LDS = 3 * SLOT
sH, sQB, sST, sK0, sK1, sK2, sS1, sDS, sKD, sVM, sRET, sWOo, sWOl = 64, 65, 66, 67, 68, 69, 70, 71, 72, 74, 76, 78, 79
sW10, sL1, sD1, sL2, sSD, sD2 = 73, 82, 83, 93, 94, 78
sTA, sW1, sSM = 95, 96, 98
WS = f"s[{SRD_WS}:{SRD_WS+3}]"
M32 = "v_mfma_f32_32x32x16_bf16"
M2B = "v_mfma_f32_32x32x4_2b_bf16"
M16 = "v_mfma_f32_16x16x32_bf16"

def kv_piece(k, i):
    a = k.a
    a(f"s_add_u32 m0, s{(sW10, sL1, sL2)[i]}, s{sDS}")
    a(f"s_add_u32 s{sK0+i}, s{sK0+i}, {('4096', f's{sS1}', '10240')[i]}")
    k.dma((DKM, DLIN, DLIN)[i], SRD_WS, f"s{sK0+i}", "sc1")

def wo_piece(k):
    a = k.a
    a(f"s_min_u32 m0, s{sWOl}, {k.DUMMY}")
    a(f"s_add_u32 s{sWOl}, s{sWOl}, 8192")
    k.dma(DLIN, SRD_WQ, "m0", "sc1")

def touch_piece(k):
    a = k.a
    a(f"buffer_load_dwordx4 v[160:163], v{DLIN}, {WS}, s{sTA} offen sc1")
    a(f"s_add_u32 s{sTA}, s{sTA}, 1024")

def SG(i): return 172 + 4 * i if i < 6 else 204 + 4 * (i - 6)

def stage_load(k, vq, tag, i, s_src, off, valid=8):
    a = k.a
    a(f"s_add_u32 s{T0}, s{s_src}, {off}")
    if valid < 8:
        a(f"s_cmp_ge_u32 s{S_W}, {valid}")
        a(f"s_cselect_b32 s{T0}, 0x7f000000, s{T0}")
    a(f"buffer_load_dwordx4 {vr(SG(i),4)}, v{DLIN}, {WS}, s{T0} offen sc1")
    if vq is not None: vq.add(tag)

def qkm(a, t, d, c): a(f"{M32} {vr(d+16*t,16)}, {vr(Km+4*t,4)}, {vr(Qm,4)}, {c}")
def qkr(a, d): a(f"{M2B} {vr(d,32)}, {vr(Kr,2)}, {vr(Qr,2)}, {vr(d,32)}")
def pv(a, j): a(f"{M32} {vr(O,16)}, {vr(V+4*j,4)}, {vr(P+4*j,4)}, {vr(O,16)}")

def att_stage(k, young):
    a = k.a
    o = k.o
    barit, barpos = [int(x) for x in o.get("abarY" if young else "abarO", "0.6" if young else "1.2").split(".")]
    plo = int(o.get("plo", 7))
    def exps(b, n0, n):
        for i in range(n0, n0 + n): a(f"v_exp_f32 v{b+i}, v{b+i}")
    def cvts(b, n0, n):
        for i in range(n0, n0 + n): a(f"v_cvt_pk_bf16_f32 v{P+i}, v{b+2*i}, v{b+2*i+1}")
    def rdV(js, it):
        a(f"s_mov_b64 exec, s[{sVM}:{sVM+1}]")
        for j in js: a(f"ds_read_b128 {vr(V+4*j,4)}, v{AV} offset:{12288+(4*it+j)*640}")
        a("s_mov_b64 exec, -1")
    for it in range(4):
        cur, nx = (S0, S1) if it % 2 == 0 else (S1, S0)
        i2 = (it + 2) % 4
        npos = [0]
        def mark():
            g = it * 11 + npos[0] - (barit * 11 + barpos)
            if g == 0:
                a("s_waitcnt vmcnt(0)")
                if not o.get("anobar"): a("s_barrier")
                if o.get("its") == "2": k.stamp_dyn(54, sST)
            if not o.get("anoside"):
                d0 = int(o.get("dY" if young else "dO", 5 if young else 1)); dd = int(o.get("dd", 3))
                if g == d0 - 1:
                    a(f"s_call_b64 s[{sRET}:{sRET+1}], L_att_side")
                if not o.get("notouch") and g in [d0 + (5 + 2 * i) * dd for i in range(int(o.get("ntouch", 3)))]: touch_piece(k)
                for i in range(3):
                    if g == d0 + (1 + i) * dd: kv_piece(k, i)
                for i in range(3):
                    if g == d0 + (4 + 2 * i) * dd: wo_piece(k)
            per = int(o.get("pper", 1))
            if young and it % per == 0 and npos[0] == 0: a("s_setprio 1")
            if young and it % per == per - 1 and npos[0] == plo: a("s_setprio 0")
            npos[0] += 1
        if it == 2:
            a(f"v_add_u32 v{AK}, s{sKD}, v{AK}")
            a(f"v_add_u32 v{AKR}, s{sKD}, v{AKR}")
        mark()
        a("s_waitcnt lgkmcnt(0)")
        qkm(a, 0, nx, vr(NEG, 16)); exps(cur, 0, 4); mark()
        pv(a, 3); rdV([0, 1, 2, 3], it); exps(cur, 4, 4); mark()
        qkm(a, 1, nx, vr(NEG, 16))
        a(f"ds_read_b128 {vr(Km,4)}, v{AK} offset:{2048*i2}")
        cvts(cur, 0, 4); mark()
        exps(cur, 8, 4)
        a(f"ds_read_b128 {vr(Km+4,4)}, v{AK} offset:{2048*i2+1024}")
        mark()
        a("s_waitcnt lgkmcnt(5)")
        pv(a, 0); exps(cur, 12, 4); cvts(cur, 4, 2); mark()
        qkr(a, nx); cvts(cur, 6, 2)
        a(f"ds_read_b64 {vr(Kr,2)}, v{AKR} offset:{8192+1024*i2}")
        exps(cur, 16, 4); mark()
        exps(cur, 20, 4); cvts(cur, 8, 2); mark()
        a("s_waitcnt lgkmcnt(5)")
        pv(a, 1); cvts(cur, 10, 2); exps(cur, 24, 2); mark()
        exps(cur, 26, 3); mark()
        a("s_waitcnt lgkmcnt(4)")
        pv(a, 2); exps(cur, 29, 3); mark()
        cvts(cur, 12, 4)
        if it == 3:
            a(f"v_add_u32 v{AV}, s{sKD}, v{AV}")
            a(f"s_add_u32 s{sST}, s{sST}, 1")
            a(f"s_add_u32 s{sDS}, s{sDS}, s{sD2}")
            a(f"s_mov_b32 s{T0}, s{sKD}")
            a(f"s_mov_b32 s{sKD}, s{sD1}")
            a(f"s_mov_b32 s{sD1}, s{sD2}")
            a(f"s_mov_b32 s{sD2}, s{T0}")

def att_side(k):
    a = k.a
    a.label("L_att_side")
    a(f"s_bitcmp1_b32 s{sST}, 2")
    a("s_cbranch_scc1 L_as_hi")
    a(f"s_cmp_lt_u32 s{sST}, 1")
    a("s_cbranch_scc1 L_as_0")
    a(f"s_cmp_lt_u32 s{sST}, 2")
    a("s_cbranch_scc1 L_as_1")
    a(f"s_cmp_lt_u32 s{sST}, 3")
    a("s_cbranch_scc1 L_as_2")
    a(f"s_mov_b32 s{T0}, {FL_R}")
    a(f"buffer_load_dwordx4 v[{PL}:{PL+3}], v{DLIN}, {WS}, s{T0} offen sc1")
    a(f"buffer_load_dwordx4 v[{PL+4}:{PL+7}], v{DLIN}, {WS}, s{T0} offen offset:1024 sc1")
    a(f"s_setpc_b64 s[{sRET}:{sRET+1}]")
    a.label("L_as_2")
    a(f"s_lshl_b32 s{T0}, s{S_G}, 3")
    a(f"s_add_u32 s{T0}, s{T0}, {FL_R}")
    k.flag_store(T0, PL)
    a(f"s_setpc_b64 s[{sRET}:{sRET+1}]")
    a.label("L_as_0")
    k.relayout_issue()
    a(f"s_setpc_b64 s[{sRET}:{sRET+1}]")
    a.label("L_as_1")
    k.relayout_finish()
    a("s_nop 1")
    a(f"s_setpc_b64 s[{sRET}:{sRET+1}]")
    a.label("L_as_hi")
    a(f"s_cmp_eq_u32 s{sST}, 7")
    a("s_cbranch_scc1 L_as_7")
    a(f"s_cmp_eq_u32 s{sST}, 6")
    a("s_cbranch_scc1 L_as_6")
    a(f"s_cmp_eq_u32 s{sST}, 5")
    a("s_cbranch_scc1 L_as_5")
    N = f"s[{S_NONCE}:{S_NONCE+1}]"
    a(f"v_cmp_ne_u64 vcc, {N}, v[{PL}:{PL+1}]")
    a(f"v_cmp_ne_u64 s[{S_M1}:{S_M1+1}], {N}, v[{PL+2}:{PL+3}]")
    a(f"s_and_b32 s{T1}, s{S_J}, 7")
    a(f"s_or_b64 s[{T4}:{T5}], vcc, s[{S_M1}:{S_M1+1}]")
    a(f"v_cmp_ne_u64 vcc, {N}, v[{PL+4}:{PL+5}]")
    a(f"v_cmp_ne_u64 s[{S_M1}:{S_M1+1}], {N}, v[{PL+6}:{PL+7}]")
    a(f"s_add_u32 s{sWOl}, s{sW10}, {WO_LDS}")
    a(f"s_lshl_b32 s{T2}, s{S_J}, 3")
    a(f"s_add_u32 s{T2}, s{T2}, s{S_W}")
    a(f"s_mul_i32 s{sTA}, s{T2}, 8640")
    a(f"s_add_u32 s{sTA}, s{sTA}, {WS_W2}")
    a(f"s_and_b32 s{T2}, s{S_J}, 15")
    a(f"s_mul_i32 s{sW1}, s{T2}, {20*7168}")
    a(f"s_add_u32 s{sW1}, s{sW1}, s{sW10}")
    a(f"s_add_u32 s{sW1}, s{sW1}, {WS_W1}")
    a(f"s_or_b64 s[{T4}:{T5}], s[{T4}:{T5}], vcc")
    a(f"s_or_b64 s[{T4}:{T5}], s[{T4}:{T5}], s[{S_M1}:{S_M1+1}]")
    a("s_cbranch_scc0 L_as_ret")
    a(f"s_mov_b32 s{T3}, {FL_R}")
    k.diag("fr")
    k.poll(256, T3, 8, PL, only_wave0=False)
    a.label("L_as_ret")
    grp = ((0, 4), (4, 9), (9, 14), (14, 18))
    for st in range(4, 8):
        if st > 4: a.label(f"L_as_{st}")
        if st == 6:
            for r in (sK0, sK1, sK2): a(f"s_mov_b32 s{r}, 0x7f000000")
        for i in range(*grp[st - 4]): stage_load(k, None, None, i, sW1, 8192 * i, 4 if i == 17 else 8)
        a(f"s_setpc_b64 s[{sRET}:{sRET+1}]")

def resid_x(k):
    a = k.a
    a(f"s_lshr_b32 s{T0}, s{S_J}, 3")
    a(f"s_lshl_b32 s{T1}, s{S_C}, 2")
    a(f"s_add_u32 s{T0}, s{T0}, s{T1}")
    a(f"s_lshl_b32 s{T0}, s{T0}, 2")
    a(f"s_and_b32 s{T1}, s{S_W}, 3")
    a(f"s_add_u32 s{T0}, s{T0}, s{T1}")
    a(f"s_mul_i32 s{T0}, s{T0}, {16*1280}")
    a(f"s_and_b32 s{T1}, s{S_J}, 7")
    a(f"s_mul_i32 s{T1}, s{T1}, 160")
    a(f"s_add_u32 s{T0}, s{T0}, s{T1}")
    a(f"s_lshr_b32 s{T1}, s{S_W}, 2")
    a(f"s_lshl_b32 s{T1}, s{T1}, 6")
    a(f"s_add_u32 s{T1}, s{T1}, s{T0}")
    a(f"v_lshrrev_b32 v{TM}, 2, v0")
    a(f"v_mul_u32_u24 v{TM}, 1280, v{TM}")
    a(f"v_and_b32 v{TM+1}, 3, v0")
    a(f"v_lshl_add_u32 v{TM}, v{TM+1}, 3, v{TM}")
    a(f"buffer_load_dwordx2 v[{XR}:{XR+1}], v{TM}, s[{SRD_X}:{SRD_X+3}], s{T1} offen")
    a(f"buffer_load_dwordx2 v[{XR+2}:{XR+3}], v{TM}, s[{SRD_X}:{SRD_X+3}], s{T1} offen offset:32")
    a(f"buffer_load_dwordx2 v[{XR+4}:{XR+5}], v{TM}, s[{SRD_X}:{SRD_X+3}], s{T0} offen offset:128")

def rowmax(a, b, n, dst, t):
    a(f"v_max3_f32 v{dst}, v{b}, v{b+1}, v{dst}")
    for i in range(2, n, 2): a(f"v_max3_f32 v{dst}, v{b+i}, v{b+i+1}, v{dst}")

def set_neg(a, m, t):
    a(f"v_mov_b32 v{t}, v{m}")
    a("s_nop 1")
    a(f"v_permlane32_swap_b32 v{m}, v{t}")
    a("s_nop 0")
    a(f"v_max_f32 v{m}, v{m}, v{t}")
    for r in range(16): a(f"v_sub_f32 v{NEG+r}, 0, v{m}")

def att_fallback(k):
    a = k.a
    FT = S1
    a.label("L_att_fb")
    sI, sA, sB, sC = T0, T1, T2, T3
    def init():
        a(f"s_lshl_b32 s{sA}, s{sH}, 16")
        a(f"s_add_u32 s{sA}, s{sA}, {WS_K}")
        a(f"s_lshr_b32 s{sB}, s{sH}, 1")
        a(f"s_lshl_b32 s{sB}, s{sB}, 15")
        a(f"s_add_u32 s{sB}, s{sB}, {WS_K + 64*32768}")
        a(f"s_mul_i32 s{sC}, s{sH}, 81920")
        a(f"s_add_u32 s{sC}, s{sC}, {WS_V}")
        a(f"s_mov_b32 s{sI}, 0")
    def ldk():
        a(f"buffer_load_dwordx4 {vr(Km,4)}, v{DKM}, {WS}, s{sA} offen sc1")
        a(f"buffer_load_dwordx4 {vr(Km+4,4)}, v{DKM}, {WS}, s{sA} offen offset:512 sc1")
        a(f"buffer_load_dwordx2 {vr(Kr,2)}, v{FT+1}, {WS}, s{sB} offen sc1")
    def step():
        a(f"s_add_u32 s{sA}, s{sA}, 1024")
        a(f"s_add_u32 s{sB}, s{sB}, 1024")
        a(f"s_add_u32 s{sC}, s{sC}, 2560")
        a(f"s_add_u32 s{sI}, s{sI}, 1")
        a(f"s_cmp_lt_u32 s{sI}, 32")
    a(f"s_and_b32 s{T0}, s{sH}, 1")
    a(f"s_lshl_b32 s{T0}, s{T0}, 3")
    a(f"v_add_u32 v{FT+1}, s{T0}, v{DLIN}")
    a(f"v_lshrrev_b32 v{FT+2}, 5, v0")
    a(f"v_mul_u32_u24 v{FT+2}, 20, v{FT+2}")
    a(f"v_and_b32 v{FT+3}, 31, v0")
    a(f"v_add_lshl_u32 v{FT+2}, v{FT+2}, v{FT+3}, 4")
    a(f"v_mov_b32 v{FT}, 0xff800000")
    init()
    a.label("L_fb_max")
    ldk()
    a("s_waitcnt vmcnt(0)")
    qkm(a, 0, S0, "0"); qkm(a, 1, S0, "0")
    a("s_nop 9")
    qkr(a, S0)
    a("s_nop 15"); a("s_nop 3")
    rowmax(a, S0, 32, FT, FT + 4)
    step()
    a("s_cbranch_scc1 L_fb_max")
    set_neg(a, FT, FT + 4)
    for r in range(16): a(f"v_mov_b32 v{O+r}, 0")
    init()
    a.label("L_fb_acc")
    ldk()
    a(f"s_mov_b64 exec, s[{sVM}:{sVM+1}]")
    for j in range(4): a(f"buffer_load_dwordx4 {vr(V+4*j,4)}, v{FT+2}, {WS}, s{sC} offen offset:{640*j} sc1")
    a("s_mov_b64 exec, -1")
    a("s_waitcnt vmcnt(0)")
    qkm(a, 0, S0, vr(NEG, 16)); qkm(a, 1, S0, vr(NEG, 16))
    a("s_nop 9")
    qkr(a, S0)
    a("s_nop 15"); a("s_nop 3")
    for i in range(32): a(f"v_exp_f32 v{S0+i}, v{S0+i}")
    a("s_nop 0")
    for i in range(16): a(f"v_cvt_pk_bf16_f32 v{P+i}, v{S0+2*i}, v{S0+2*i+1}")
    a("s_nop 1")
    for j in range(4): pv(a, j)
    step()
    a("s_cbranch_scc1 L_fb_acc")
    a("s_nop 11")
    a("s_branch L_att_norm")

def phase2(k):
    a = k.a
    a.c("================ phase 2: attention")
    a(f"s_lshl_b32 s{sH}, s{S_C}, 2")
    a(f"s_lshr_b32 s{T0}, s{S_J}, 3")
    a(f"s_add_u32 s{sH}, s{sH}, s{T0}")
    a(f"s_and_b32 s{sQB}, s{S_J}, 7")
    a(f"v_lshlrev_b32 v{DLIN}, 4, v0")
    a("v_lshrrev_b32 v1, 5, v0")
    a("v_and_b32 v2, 31, v0")
    a("v_lshlrev_b32 v3, 15, v1")
    a(f"v_lshl_add_u32 v{DKM}, v2, 4, v3")
    a(f"v_mov_b32 v{AK}, v{DLIN}")
    a(f"s_and_b32 s{T0}, s{sH}, 1")
    a(f"s_lshl_b32 s{T0}, s{T0}, 3")
    a(f"v_add_u32 v{AKR}, s{T0}, v{DLIN}")
    a("v_mul_u32_u24 v3, 20, v1")
    a(f"v_add_lshl_u32 v{AV}, v3, v2, 4")
    a(f"v_lshl_add_u32 v10, v2, 4, s{T0}")
    if k.o.get("dry", "1") == "1":
        a(f"s_cmp_lg_u32 s{S_W}, 7")
        a("s_cbranch_scc1 L_nodry")
        a(f"s_mov_b32 s{sW1}, 0x7f000000")
        for st in (3, 5, 6, 7):
            a(f"s_mov_b32 s{sST}, {st}")
            if st == 3: continue
            a(f"s_call_b64 s[{sRET}:{sRET+1}], L_att_side")
        a.label("L_nodry")
    a(f"s_mov_b32 s{sVM}, 0x000fffff")
    a(f"s_mov_b32 s{sVM+1}, 0x000fffff")
    a(f"s_lshl_b32 s{sK0}, s{sH}, 16")
    a(f"s_lshl_b32 s{T0}, s{S_W}, 9")
    a(f"s_add_u32 s{sK0}, s{sK0}, s{T0}")
    a(f"s_add_u32 s{sK0}, s{sK0}, {WS_K - 4096}")
    a(f"s_lshl_b32 s{T0}, s{S_W}, 10")
    a(f"s_mul_i32 s{sK2}, s{sH}, 81920")
    a(f"s_add_u32 s{sK2}, s{sK2}, s{T0}")
    a(f"s_add_u32 s{T1}, s{sK2}, {WS_V - 4096 - 10240}")
    a(f"s_cmp_ge_u32 s{S_W}, 6")
    a(f"s_cselect_b32 s{T2}, 2048, 0")
    a(f"s_sub_u32 s{sK2}, s{sK2}, s{T2}")
    a(f"s_add_u32 s{sK2}, s{sK2}, {WS_V + 4096 - 10240}")
    a(f"s_sub_u32 s{sL2}, s{T0}, s{T2}")
    a(f"s_add_u32 s{sL2}, s{sL2}, 16384")
    a(f"s_add_u32 s{sL1}, s{T0}, 8192")
    a(f"s_lshr_b32 s{T2}, s{sH}, 1")
    a(f"s_lshl_b32 s{T2}, s{T2}, 15")
    a(f"s_add_u32 s{sK1}, s{T2}, s{T0}")
    a(f"s_add_u32 s{sK1}, s{sK1}, {WS_K + 64*32768 - 4096}")
    a(f"s_mov_b32 s{sS1}, 10240")
    a(f"s_cmp_lt_u32 s{S_W}, 4")
    a(f"s_cselect_b32 s{sK1}, s{sK1}, s{T1}")
    a(f"s_cselect_b32 s{sS1}, 4096, s{sS1}")
    a(f"s_mov_b32 s{sDS}, 0")
    a(f"s_mov_b32 s{sST}, 0")
    a(f"s_mov_b32 s{sKD}, {SLOT}")
    a(f"s_mov_b32 s{sD1}, {SLOT}")
    a(f"s_mov_b32 s{sD2}, {-2*SLOT & 0xffffffff}")
    a(f"s_mov_b32 s{sW10}, s{T0}")
    a(f"s_mov_b32 s{sWOl}, 0x40000000")
    a(f"s_mov_b32 s{sTA}, 0x7f000000")
    a(f"s_and_b32 s{T1}, s{S_J}, 7")
    a(f"s_mul_i32 s{sSD}, s{T1}, {20*5120}")
    a(f"s_add_u32 s{sSD}, s{sSD}, {WS_WO}")
    a(f"s_sub_u32 s{T1}, s{sSD}, {WO_LDS}")
    a(f"s_add_u32 s{SRD_WQ}, s{SRD_WS}, s{T1}")
    a(f"s_addc_u32 s{SRD_WQ+1}, s{SRD_WS+1}, 0")
    a(f"s_mov_b32 s{SRD_WQ+2}, {WO_LDS + 90*1024}")
    a(f"s_lshl_b32 s{T0}, s{sQB}, 3")
    a(f"s_add_u32 s{T0}, s{T0}, s{S_W}")
    a(f"s_lshl_b32 s{T0}, s{T0}, 9")
    a(f"s_add_u32 s{T2}, s{T2}, s{T0}")
    a(f"s_add_u32 s80, s{T2}, {WS_Q + 64*32768}")
    a(f"s_lshl_b32 s{T3}, s{sH}, 16")
    a(f"s_add_u32 s{T3}, s{T3}, s{T0}")
    a(f"s_add_u32 s81, s{T3}, {WS_Q}")
    a("v_cmp_eq_u32 vcc, 20, v2")
    a("v_mov_b32 v3, 0x3f803f80")
    a("s_nop 0")
    a("v_cndmask_b32 v3, 0, v3, vcc")
    for r in range(16): a(f"v_mov_b32 v{V+r}, v3")
    for r in range(16): a(f"v_mov_b32 v{O+r}, 0")
    for r in range(12, 16): a(f"v_mov_b32 v{P+r}, 0")
    a(f"s_mul_i32 s{T0}, s{sH}, 20")
    a(f"s_add_u32 s{T1}, s{T0}, 19")
    a(f"s_lshr_b32 s{T0}, s{T0}, 7")
    a(f"s_lshr_b32 s{T1}, s{T1}, 7")
    a(f"s_sub_u32 s{T1}, s{T1}, s{T0}")
    a(f"s_lshl_b32 s{T1}, s{T1}, 4")
    a(f"v_and_b32 v{PL+4}, s{T1}, v0")
    a(f"v_and_b32 v{PL+5}, 15, v0")
    a(f"v_add_u32 v{PL+5}, v{PL+5}, v{PL+4}")
    a(f"v_mul_u32_u24 v{PL+6}, 0x50, v1")
    a(f"v_add3_u32 v{PL+5}, v{PL+5}, v{PL+6}, 64")
    a(f"v_add_u32 v{PL+5}, 16, v{PL+5}")
    a(f"v_lshlrev_b32 v{PL+5}, 7, v{PL+5}")
    a(f"s_lshl_b32 s{T2}, s{sQB}, 1")
    a(f"v_and_b32 v{PL+6}, 1, v0")
    a(f"v_add3_u32 v{PL+4}, v{PL+4}, v{PL+6}, s{T2}")
    a(f"v_lshlrev_b32 v{PL+4}, 7, v{PL+4}")
    a(f"s_lshl_b32 s{T0}, s{T0}, 11")
    a(f"s_add_u32 s{T3}, s{T0}, {FL_1}")
    k.poll2(PL + 5, PL + 4, T3, PL)
    a("s_barrier")
    k.stamp(8)
    a(f"buffer_load_dwordx4 {vr(Qm,4)}, v{DKM}, {WS}, s81 offen sc1")
    a(f"buffer_load_dwordx2 {vr(Qr,2)}, v10, {WS}, s80 offen sc1")
    for i in range(3): kv_piece(k, i)
    a(f"s_mov_b32 s{sDS}, {SLOT}")
    a("s_waitcnt vmcnt(0)")
    for i in range(3): kv_piece(k, i)
    a(f"s_mov_b32 s{sDS}, {2*SLOT}")
    a("s_barrier")
    k.stamp(9)
    def rdk(i):
        a(f"ds_read_b128 {vr(Km,4)}, v{AK} offset:{2048*i}")
        a(f"ds_read_b128 {vr(Km+4,4)}, v{AK} offset:{2048*i+1024}")
        a(f"ds_read_b64 {vr(Kr,2)}, v{AKR} offset:{8192+1024*i}")
    rdk(0)
    a(f"v_mov_b32 v{PL}, 0xff800000")
    a("s_waitcnt lgkmcnt(0)")
    qkm(a, 0, S1, "0"); qkm(a, 1, S1, "0")
    a("s_nop 9")
    qkr(a, S1)
    a("s_nop 15"); a("s_nop 3")
    rowmax(a, S1, 32, PL, PL + 4)
    set_neg(a, PL, PL + 4)
    a("s_nop 1")
    qkm(a, 0, S0, vr(NEG, 16)); qkm(a, 1, S0, vr(NEG, 16))
    a("s_nop 9")
    qkr(a, S0)
    rdk(1)
    a("s_nop 15")
    a(f"s_cmp_ge_u32 s{S_W}, 4")
    a("s_cbranch_scc1 L_att_young")
    for young in (0, 1):
        L = "L_att_young" if young else "L_att_old"
        a.align(6)
        a.label(L)
        att_stage(k, young)
        a(f"s_cmp_lt_u32 s{sST}, 8")
        a(f"s_cbranch_scc1 {L}")
        if not young: a("s_branch L_att_done")
    a("s_setprio 0")
    a.label("L_att_done")
    a("s_waitcnt lgkmcnt(3)")
    pv(a, 3)
    k.stamp(10)
    a(f"s_lshl_b32 s{T0}, s{sQB}, 4")
    a(f"s_lshl_b32 s{T1}, s{S_W}, 1")
    a(f"s_add_u32 s{T0}, s{T0}, s{T1}")
    a(f"s_mul_i32 s{T0}, s{T0}, 20480")
    a(f"s_add_u32 s{T0}, s{T0}, {WS_O}")
    a(f"s_lshl_b32 s{T1}, s{sH}, 9")
    a(f"s_add_u32 s80, s{T0}, s{T1}")
    a(f"s_lshr_b32 s{T1}, s{sH}, 4")
    a(f"s_lshl_b32 s{T2}, s{T1}, 11")
    a(f"s_add_u32 s80, s80, s{T2}")
    a(f"s_lshl_b32 s{T1}, s{T1}, 13")
    a(f"s_add_u32 s{T0}, s{T0}, s{T1}")
    a(f"s_lshr_b32 s{T1}, s{sH}, 3")
    a(f"s_lshl_b32 s{T1}, s{T1}, 10")
    a(f"s_add_u32 s{T0}, s{T0}, s{T1}")
    a(f"s_bfe_u32 s{T1}, s{sH}, 0x20001")
    a(f"s_lshl_b32 s{T1}, s{T1}, 7")
    a(f"s_add_u32 s{T0}, s{T0}, s{T1}")
    a(f"s_and_b32 s{T1}, s{sH}, 1")
    a(f"s_lshl_b32 s{T1}, s{T1}, 9")
    a(f"s_add_u32 s{T0}, s{T0}, s{T1}")
    a(f"s_add_u32 s81, s{T0}, 8192")
    a("s_waitcnt lgkmcnt(0)")
    a(f"v_add_f32 v1, abs(v{O}), abs(v{O+1})")
    a(f"v_add_f32 v3, abs(v{O+2}), abs(v{O+3})")
    for r in range(4, 12, 2):
        a(f"v_add_f32 v1, abs(v{O+r}), v1")
        a(f"v_add_f32 v3, abs(v{O+r+1}), v3")
    a(f"v_mov_b32 v2, 0x{f2u(2.0**40):08x}")
    a("v_add_f32 v1, v1, v3")
    a("v_mov_b32 v3, 0x203")
    a(f"v_cmp_nle_f32 vcc, v{O+8}, v2")
    a(f"v_cmp_class_f32 s[{S_M1}:{S_M1+1}], v1, v3")
    a("s_and_b32 vcc_lo, vcc_lo, 0")
    a(f"s_or_b64 vcc, vcc, s[{S_M1}:{S_M1+1}]")
    a("s_cbranch_scc1 L_att_fb")
    a.label("L_att_norm")
    a(f"v_mov_b32 v1, v{O+8}")
    a(f"v_mov_b32 v2, v{O+8}")
    a("v_bfe_u32 v3, v0, 4, 1")
    a("v_mul_u32_u24 v3, 20480, v3")
    a("v_permlane32_swap_b32 v1, v2")
    a("s_nop 0")
    a("v_rcp_f32 v2, v2")
    a("v_and_b32 v10, 15, v0")
    a("v_lshl_add_u32 v11, v10, 4, v3")
    a("v_lshl_add_u32 v3, v10, 3, v3")
    a("v_lshrrev_b32 v10, 5, v0")
    a("v_lshl_add_u32 v10, v10, 8, v11")
    for r in range(12): a(f"v_mul_f32 v{O+r}, v2, v{O+r}")
    for r in range(6): a(f"v_cvt_pk_bf16_f32 v{P+r}, v{O+2*r}, v{O+2*r+1}")
    a(f"buffer_store_dwordx4 {vr(P,4)}, v10, {WS}, s80 offen sc1")
    a("s_mov_b64 exec, 0xffffffff")
    a(f"buffer_store_dwordx2 {vr(P+4,2)}, v3, {WS}, s81 offen sc1")
    a("s_mov_b64 exec, -1")
    a("s_branch L_att_end")
    att_side(k)
    att_fallback(k)
    a.label("L_att_end")
    if k.stop == 2:
        a("s_waitcnt vmcnt(0)")
        k.stamp(11)


class VQ:
    def __init__(self, a): self.a = a; self.q = []
    def add(self, tag): self.q.append(tag)
    def wait(self, tag):
        if tag not in self.q: return
        i = len(self.q) - 1 - self.q[::-1].index(tag)
        n = len(self.q) - 1 - i
        self.a(f"s_waitcnt vmcnt({n})")
        self.q = self.q[i + 1:]

def dma_ops(k, vq, tag, first, last, s_src, s_lds, lds0, nw=8):
    a = k.a
    def one(i):
        def f():
            a(f"s_add_u32 m0, s{s_lds}, {lds0 + nw * i * 1024}")
            a(f"s_add_u32 s{T0}, s{s_src}, {(first + nw * i) * 1024}")
            if first + nw * i + nw > last:
                a(f"s_cmp_ge_u32 s{S_W}, {last - first - nw*i + (1 if nw == 7 else 0)}")
                a(f"s_cselect_b32 m0, {k.DUMMY}, m0")
                a(f"s_cselect_b32 s{T0}, 0x7f000000, s{T0}")
            k.dma(DLIN, SRD_WS, f"s{T0}", "sc1")
            if vq is not None: vq.add(tag)
        return f
    return [one(i) for i in range((last - first + nw - 1) // nw)]

DL8 = 197
RA = 8
AF = 4
ST = 36
ACC = 44
BA = 72
XW, XRD = 78, 79
TM = 80
WB = 88
CSV = 148
SW = 1
TL = 252
HR = 198
sRG, sKH, sN8, sRB64, sA, sB = 64, 65, 66, 67, 68, 69
sW7 = 72
CS_LDS = 158 * 1024

def a_op(k, vq, j, ks, s_base, split):
    a = k.a
    reg = AF + 4 * (j % RA)
    pol = k.o.get("apol", "sc1")
    def f():
        if k.o.get("noa"): return
        a(f"s_add_u32 s{T0}, s{s_base}, {1024*ks}")
        if split:
            a(f"buffer_load_dwordx2 {vr(reg,2)}, v{DL8}, {WS}, s{T0} offen sc1")
            a(f"buffer_load_dwordx2 {vr(reg+2,2)}, v{DL8}, {WS}, s{T0} offen offset:512 sc1")
            vq.add(("a", j))
        else:
            a(f"buffer_load_dwordx4 {vr(reg,4)}, v{DLIN}, {WS}, s{T0} offen {pol}")
        vq.add(("A", j))
    return f

def coop_touch(k, vq, s_base, s_idx, stride, n):
    a = k.a
    if not k.o.get("coop"): return
    a(f"s_lshl_b32 s{T1}, s{s_idx}, 10")
    a(f"s_add_u32 s{T1}, s{T1}, s{s_base}")
    for i in range((n + stride - 1) // stride):
        a(f"s_add_u32 s{T0}, s{T1}, {1024*stride*i}")
        if stride * i + stride > n:
            a(f"s_cmp_ge_u32 s{s_idx}, {n - stride*i}")
            a(f"s_cselect_b32 s{T0}, s{T1}, s{T0}")
        a(f"buffer_load_dwordx4 {vr(TM+4,4)}, v{DLIN}, {WS}, s{T0} offen sc1")
        vq.add("t")

class LQ(VQ):
    def wait(self, tag):
        if tag not in self.q: return
        i = len(self.q) - 1 - self.q[::-1].index(tag)
        self.a(f"s_waitcnt lgkmcnt({min(15, len(self.q) - 1 - i)})")
        self.q = self.q[i + 1:]

def stage_write(k, lq, i, lds, tail=None):
    a = k.a
    if tail is not None: a(f"ds_write_b128 v{tail}, {vr(SG(i),4)}")
    else: a(f"ds_write_b128 v{SW + lds // 65536}, {vr(SG(i),4)} offset:{lds % 65536}")
    if lq is not None: lq.add("w")

def mm_steps(k, vq, n, nt, addr, extra, pre_hook=None):
    a = k.a
    NB = 3
    lq = k.lq = LQ(a)
    def rd(j, t):
        r, off = addr(j, t)
        a(f"ds_read_b128 {vr(WB + (j % NB) * 4 * nt + 4 * t, 4)}, v{r} offset:{off}")
        lq.add(("r", j))
    for j in range(2):
        for t in range(nt): rd(j, t)
    for j in range(n):
        b = WB + (j % NB) * 4 * nt
        ops = list(extra.get(j, []))
        slots = {}
        for i, f in enumerate(ops): slots.setdefault(1 + (i * (nt - 1)) // max(1, len(ops)), []).append(f)
        if pre_hook and j + 2 < n: pre_hook(j + 2)
        vq.wait(("A", j))
        lq.wait(("r", j))
        for t in range(nt):
            c = "0" if j == 0 else vr(ACC + 4 * t, 4)
            a(f"{M16} {vr(ACC+4*t,4)}, {vr(b+4*t,4)}, {vr(AF+4*(j%RA),4)}, {c}")
            if j + 2 < n: rd(j + 2, t)
            for f in slots.get(t, []): f()

def tile_addrs(k, base_expr_sgpr, dst):
    a = k.a
    a(f"s_lshl_b32 s{T1}, s{sKH}, 11")
    a(f"v_add_u32 v{dst+2}, s{base_expr_sgpr}, v{DLIN}")
    a(f"v_add_u32 v{dst}, s{T1}, v{dst+2}")
    a(f"v_subrev_u32 v{dst+1}, s{T1}, v{dst+2}")

def exch_addrs(k, scr):
    a = k.a
    a(f"s_mul_i32 s{T0}, s{sRG}, 5120")
    a(f"s_add_u32 s{T0}, s{T0}, {scr}")
    a(f"s_lshl_b32 s{T1}, s{sKH}, 11")
    a(f"s_add_u32 s{T2}, s{T0}, s{T1}")
    a(f"v_add_u32 v{XW}, s{T2}, v{DLIN}")
    a(f"s_sub_u32 s{T2}, s{T0}, s{T1}")
    a(f"s_add_u32 s{T2}, s{T2}, 2048")
    a(f"v_add_u32 v{XRD}, s{T2}, v{DLIN}")

def reduce_halves(k, resid, pad):
    a = k.a
    if pad: a(f"s_nop {pad-1}")
    a(f"ds_write_b128 v{XW}, {vr(ACC+8,4)}")
    a(f"ds_write_b128 v{XW}, {vr(ACC+12,4)} offset:1024")
    L = a.newlabel("rh")
    a(f"s_cmp_eq_u32 s{sKH}, 0")
    a(f"s_cbranch_scc1 {L}")
    a(f"ds_write_b128 v{XW}, {vr(ACC+16,4)} offset:2048")
    a.label(L)
    a("s_waitcnt lgkmcnt(2)")
    for i, t in enumerate((0, 1, 4)):
        for h in range(2):
            a(f"v_lshlrev_b32 v{TM+2}, 16, v{resid+2*i+h}")
            a(f"v_and_b32 v{TM+3}, 0xffff0000, v{resid+2*i+h}")
            a(f"v_add_f32 v{ACC+4*t+2*h}, v{ACC+4*t+2*h}, v{TM+2}")
            a(f"v_add_f32 v{ACC+4*t+2*h+1}, v{ACC+4*t+2*h+1}, v{TM+3}")
    a("s_waitcnt lgkmcnt(0)")
    a("s_barrier")
    for i in range(3): a(f"ds_read_b128 {vr(WB+4*i,4)}, v{XRD} offset:{1024*i}")
    for i, t in enumerate((0, 1, 4)):
        a(f"s_waitcnt lgkmcnt({2-i})")
        for r in range(4): a(f"v_add_f32 v{ACC+4*t+r}, v{ACC+4*t+r}, v{WB+4*i+r}")

def row_reduce(a, r, t):
    for sw in ("16", "32"):
        a(f"v_mov_b32 v{t}, v{r}")
        a(f"v_mov_b32 v{t+1}, v{r+1}")
        a("s_nop 0")
        a(f"v_permlane{sw}_swap_b32 v{r}, v{t}")
        a(f"v_permlane{sw}_swap_b32 v{r+1}, v{t+1}")
        a("s_nop 0")
        a(f"v_add_f32 v{r}, v{r}, v{t}")
        a(f"v_add_f32 v{r+1}, v{r+1}, v{t+1}")

def not_wave0(k, fn):
    a = k.a
    L = a.newlabel("nw0")
    a(f"s_cmp_eq_u32 s{S_W}, 0")
    a(f"s_cbranch_scc1 {L}")
    fn()
    a.label(L)

OUT_PITCH = 336
OUT_HALF = 14 * 5120
OUT_LDS = 0
NS5 = 14
HALF = NS5 * 5120
sW2 = 83
def w2_load(k, vq, tag, i, batch):
    h, q = divmod(i, 9)
    first = (0, 5 * NS5)[batch]; n = (5 * NS5, 135 - 5 * NS5)[batch]
    stage_load(k, vq, tag, i, sW2, (135 * h + first + 8 * q) * 1024, min(8, n - 8 * q))
def w2_write(k, lq, i):
    h, q = divmod(i, 9)
    stage_write(k, lq, i, HALF * h + 8192 * q, TL + h if q == 8 else None)
def w2_tails(k, valid):
    a = k.a
    a(f"s_sub_u32 s{T0}, {k.DUMMY - 65536}, s{sW10}")
    a(f"s_cmp_lt_u32 s{S_W}, {valid}")
    a(f"s_cselect_b32 s{T1}, 0, s{T0}")
    a(f"s_cselect_b32 s{T0}, {HALF}, s{T0}")
    a(f"v_add_u32 v{TL}, s{T1}, v{SW+1}")
    a(f"v_add_u32 v{TL+1}, s{T0}, v{SW+1}")

P3_SCR, P3_LAST = 35 * 1024, 56 * 1024
sTT3 = 81
def phase3(k):
    a = k.a
    a.c("================ phase 3: output projection + residual")
    a(f"s_lshl_b32 s{T0}, s{sQB}, 5")
    a(f"s_add_u32 s{T0}, s{T0}, s{sH}")
    a(f"s_mul_i32 s{T3}, s{T0}, {FSP}")
    a(f"s_add_u32 s{T3}, s{T3}, {FL_2}")
    a(f"s_and_b32 s{sRG}, s{S_W}, 3")
    a(f"s_lshr_b32 s{sKH}, s{S_W}, 2")
    a(f"s_and_b32 s{sN8}, s{S_J}, 7")
    a(f"s_lshl_b32 s{sRB64}, s{S_C}, 2")
    a(f"s_lshr_b32 s{T0}, s{S_J}, 3")
    a(f"s_add_u32 s{sRB64}, s{sRB64}, s{T0}")
    a(f"s_sub_u32 s{sW7}, s{sW10}, 1024")
    a(f"s_add_u32 s{sA}, s{sSD}, s{sW7}")
    a(f"s_mul_i32 s{sW2}, s{sN8}, {54*5120}")
    a(f"s_add_u32 s{sW2}, s{sW2}, s{sW10}")
    a(f"s_add_u32 s{sW2}, s{sW2}, {WS_W2}")
    a(f"v_lshlrev_b32 v{DL8}, 3, v0")
    a(f"v_add_u32 v{SW}, s{sW10}, v{DLIN}")
    a(f"v_add_u32 v{SW+1}, 0x10000, v{SW}")
    a(f"v_add_u32 v{SW+2}, 0x20000, v{SW}")
    a("s_waitcnt vmcnt(0)")
    a("s_barrier")
    k.stamp(11)
    k.flag_store(T3, TM)
    def early():
        for f in dma_ops(k, None, None, 90, 100, sA, sW7, P3_LAST, 7): f()
        resid_x(k)
    not_wave0(k, early)
    for i in range(4): stage_write(k, None, i, 8192 * i)
    a(f"s_cmp_lt_u32 s{S_W}, 6")
    a("s_cbranch_scc1 L_p3_nocs")
    a(f"s_and_b32 s{T1}, s{S_J}, 15")
    a(f"s_sub_u32 s{T0}, s{S_W}, 6")
    a(f"s_lshl_b32 s{T0}, s{T0}, 6")
    a(f"v_add_u32 v{TM+4}, s{T0}, v0")
    a(f"s_mul_i32 s{T2}, s{T1}, 96")
    a(f"v_add_u32 v{TM+5}, s{T2}, v{TM+4}")
    a(f"s_min_u32 s{T2}, s{T1}, 11")
    a(f"s_lshl_b32 s{T2}, s{T2}, 4")
    a(f"s_add_u32 s{T2}, s{T2}, 1536")
    a(f"v_and_b32 v{TM+6}, 15, v0")
    a(f"v_add_u32 v{TM+6}, s{T2}, v{TM+6}")
    a(f"v_cmp_gt_u32 vcc, 96, v{TM+4}")
    a(f"s_mov_b32 s{T2}, {WS_CS1}")
    a("s_nop 0")
    a(f"v_cndmask_b32 v{TM+5}, v{TM+6}, v{TM+5}, vcc")
    a(f"v_lshlrev_b32 v{TM+5}, 2, v{TM+5}")
    for i in range(20):
        a(f"buffer_load_dword v{CSV+i}, v{TM+5}, {WS}, s{T2} offen sc1")
        if i < 19: a(f"s_add_u32 s{T2}, s{T2}, {1728*4}")
    a.label("L_p3_nocs")
    a(f"s_mul_i32 s{T0}, s{sKH}, {45*1024}")
    a(f"s_add_u32 s{T0}, s{T0}, {WO_LDS}")
    tile_addrs(k, T0, BA)
    a(f"s_mul_i32 s{T0}, s{sKH}, 5120")
    a(f"s_add_u32 s{T0}, s{T0}, {P3_LAST}")
    tile_addrs(k, T0, BA + 3)
    exch_addrs(k, P3_SCR)
    a(f"s_lshl_b32 s{T0}, s{sRB64}, 2")
    a(f"s_add_u32 s{sTT3}, s{T0}, s{sRG}")
    a(f"s_mul_i32 s{sA}, s{sTT3}, 20480")
    a(f"s_mul_i32 s{T1}, s{sKH}, 10240")
    a(f"s_add_u32 s{sA}, s{sA}, s{T1}")
    a(f"s_add_u32 s{sA}, s{sA}, {WS_O}")
    a(f"v_and_b32 v{TM+6}, 15, v0")
    a(f"v_lshrrev_b32 v{TM+7}, 4, v0")
    a(f"v_lshl_add_u32 v{TM+7}, v{TM+6}, 2, v{TM+7}")
    a(f"v_lshlrev_b32 v{TM+7}, 2, v{TM+7}")
    a(f"s_mul_i32 s70, s{sTT3}, 20480")
    a(f"s_add_u32 s70, s70, {WS_H}")
    a(f"s_lshl_b32 s{T0}, s{sN8}, 1")
    a(f"s_add_u32 s{T0}, s{T0}, s{sKH}")
    a(f"s_lshl_b32 s71, s{T0}, 10")
    a(f"s_add_u32 s71, s71, s70")
    a(f"s_lshl_b32 s{T1}, s{sRB64}, 4")
    a(f"s_add_u32 s{T0}, s{T0}, s{T1}")
    a(f"s_lshl_b32 s{T0}, s{T0}, 9")
    a(f"s_lshl_b32 s{T1}, s{sRG}, 7")
    a(f"s_add_u32 s{T0}, s{T0}, s{T1}")
    a(f"s_add_u32 s74, s{T0}, {WS_ST}")
    a(f"s_lshr_b32 s{T0}, s{sN8}, 1")
    a(f"s_lshl_b32 s{T0}, s{T0}, 10")
    a(f"s_and_b32 s{T1}, s{sN8}, 1")
    a(f"s_lshl_b32 s{T1}, s{T1}, 9")
    a(f"s_add_u32 s{T0}, s{T0}, s{T1}")
    a(f"s_add_u32 s70, s70, s{T0}")
    a(f"s_add_u32 s70, s70, 16384")
    a(f"s_lshl_b32 s{T0}, s{sRB64}, 3")
    a(f"s_add_u32 s{T0}, s{T0}, s{sN8}")
    a(f"s_mul_i32 s75, s{T0}, {FSP}")
    a(f"s_add_u32 s75, s75, {FL_3}")
    a(f"s_mul_i32 s{T3}, s{S_C}, {32*FSP}")
    a(f"s_add_u32 s{T3}, s{T3}, {FL_2}")
    k.poll(32, T3, FSP, TM)
    a(f"s_cmp_lg_u32 s{S_W}, 0")
    a("s_cbranch_scc1 L_p3_rx")
    resid_x(k)
    a.label("L_p3_rx")
    a("s_waitcnt vmcnt(3) lgkmcnt(0)")
    a("s_barrier")
    k.stamp(12)
    vq = VQ(a)
    aop = [a_op(k, vq, j, j, sA, j >= 8) for j in range(10)]
    D = int(k.o.get("d3", 4))
    coop_touch(k, vq, sA, sN8, 8, 10)
    for j in range(D): aop[j]()
    def addr(j, t):
        r = (BA if j < 9 else BA + 3) + (0, 0, 1, 1, 2)[t]
        return r, (j * 5120 if j < 9 else 0) + t * 1024
    extra = {j: [aop[j + D]] for j in range(10 - D)}
    def perm(r):
        def f():
            a(f"ds_bpermute_b32 v{XR+r}, v{TM+7}, v{XR+r}")
            k.lq.add("p")
        return f
    for r in range(6): extra.setdefault(6 + r // 2, []).append(perm(r))
    mm_steps(k, vq, 10, 5, addr, extra)
    k.stamp(13)
    reduce_halves(k, XR, 6)
    for i, t in enumerate((0, 1, 4)):
        for h in range(2): a(f"v_cvt_pk_bf16_f32 v{HR+2*i+h}, v{ACC+4*t+2*h}, v{ACC+4*t+2*h+1}")
        if i == 1: a(f"buffer_store_dwordx4 {vr(HR,4)}, v{DLIN}, {WS}, s71 offen sc1")
    a(f"v_mov_b32 v{TM+6}, 0x3f803f80")
    a(f"v_mov_b32 v{TM+4}, 0")
    a(f"v_mov_b32 v{TM+5}, 0")
    def acc_stats(regs):
        for r in regs:
            a(f"v_dot2_f32_bf16 v{TM+4}, v{r}, v{TM+6}, v{TM+4}")
            a(f"v_dot2_f32_bf16 v{TM+5}, v{r}, v{r}, v{TM+5}")
    a(f"s_cmp_lg_u32 s{sKH}, 0")
    a("s_cbranch_scc1 L_p3_no4")
    a(f"buffer_store_dwordx2 {vr(HR+4,2)}, v{DL8}, {WS}, s70 offen sc1")
    acc_stats(range(HR + 4, HR + 6))
    a.label("L_p3_no4")
    acc_stats(range(HR, HR + 4))
    a("s_nop 1")
    row_reduce(a, TM + 4, TM + 6)
    a("s_mov_b64 exec, 0xffff")
    a(f"buffer_store_dwordx2 {vr(TM+4,2)}, v{DL8}, {WS}, s74 offen sc1")
    a("s_mov_b64 exec, -1")
    for i in range(4): w2_load(k, None, None, i, 0)
    NW3 = int(k.o.get("nw3", 4))
    for i in range(7, 7 + NW3): stage_write(k, None, i, 8192 * i)
    a("s_waitcnt vmcnt(4)")
    a("s_barrier")
    k.stamp(14)
    k.flag_store(75, TM)

def phase4(k):
    a = k.a
    a.c("================ phase 4: FFN up-projection + SiLU")
    sF, sRB, sTT = 70, 71, 74
    NW3 = int(k.o.get("nw3", 4)); NB4 = min(NW3, int(k.o.get("nb4", 4)))
    def rest_writes():
        for i in list(range(7 + NW3, 18)) + [4, 5, 6]: stage_write(k, None, i, 8192 * i)
    a("s_waitcnt lgkmcnt(0)")
    for i in range(7, 7 + NB4): w2_load(k, None, None, i, 0)
    not_wave0(k, rest_writes)
    a(f"s_cmp_lt_u32 s{S_W}, 6")
    a("s_cbranch_scc1 L_p4_nocs2")
    for w in (10, 5):
        for i in range(w): a(f"v_add_f32 v{CSV+i}, v{CSV+i}, v{CSV+w+i}")
    for i in range(1, 5): a(f"v_add_f32 v{CSV}, v{CSV}, v{CSV+i}")
    a(f"s_lshl_b32 s{T0}, s{S_W}, 8")
    a(f"s_add_u32 s{T0}, s{T0}, {CS_LDS - 6*256}")
    a(f"v_lshl_add_u32 v{TM+4}, v0, 2, s{T0}")
    a(f"ds_write_b32 v{TM+4}, v{CSV}")
    a.label("L_p4_nocs2")
    a(f"s_and_b32 s{sF}, s{S_J}, 15")
    a(f"s_lshl_b32 s{sRB}, s{S_C}, 1")
    a(f"s_lshr_b32 s{T0}, s{S_J}, 4")
    a(f"s_add_u32 s{sRB}, s{sRB}, s{T0}")
    a(f"v_mov_b32 v{BA}, v{DLIN}")
    a(f"v_add_u32 v{BA+1}, {9*7168}, v{DLIN}")
    a(f"v_add_u32 v{BA+2}, {18*7168}, v{DLIN}")
    a(f"s_lshl_b32 s{T0}, s{sRB}, 3")
    a(f"s_add_u32 s{sTT}, s{T0}, s{S_W}")
    a(f"s_mul_i32 s{sA}, s{sTT}, 20480")
    a(f"s_add_u32 s{sA}, s{sA}, {WS_H}")
    a(f"s_lshr_b32 s{T0}, s{sTT}, 2")
    a(f"s_lshl_b32 s{T0}, s{T0}, 13")
    a(f"s_and_b32 s{T1}, s{sTT}, 3")
    a(f"s_lshl_b32 s{T1}, s{T1}, 7")
    a(f"s_add_u32 s{T0}, s{T0}, s{T1}")
    a(f"s_add_u32 s{sB}, s{T0}, {WS_ST}")
    a(f"v_and_b32 v{TM}, 15, v0")
    a(f"v_lshrrev_b32 v{TM+1}, 4, v0")
    a(f"v_lshlrev_b32 v{BA+3}, 11, v{TM+1}")
    a(f"v_lshl_add_u32 v{BA+3}, v{TM}, 3, v{BA+3}")
    a(f"v_lshlrev_b32 v{BA+4}, 4, v{TM+1}")
    a(f"v_add_u32 v{BA+4}, {CS_LDS}, v{BA+4}")
    w2_tails(k, 5 * NS5 - 64)
    a(f"s_mul_i32 s{T3}, s{sRB}, {16*FSP}")
    a(f"s_add_u32 s{T3}, s{T3}, {FL_3}")
    k.poll(16, T3, FSP, TM)
    a(f"s_cmp_lg_u32 s{S_W}, 0")
    a("s_cbranch_scc1 L_p4_w0")
    rest_writes()
    a.label("L_p4_w0")
    a("s_waitcnt lgkmcnt(0)")
    a("s_barrier")
    k.stamp(15)
    vq = VQ(a)
    aop = [a_op(k, vq, j, j, sA, j >= 16) for j in range(20)]
    D = int(k.o.get("d4", 4))
    coop_touch(k, vq, sA, sF, 16, 20)
    for j in range(D): aop[j]()
    def st_op(i):
        def f():
            a(f"buffer_load_dwordx2 {vr(ST+2*i,2)}, v{BA+3}, {WS}, s{sB} offen offset:{512*i} sc1")
            vq.add("S")
        return f
    extra = {j: [aop[j + D]] for j in range(20 - D)}
    rest = list(range(7 + NB4, 18)) + [4, 5, 6]
    for n, i in enumerate(rest): extra.setdefault(1 + (n * 19) // len(rest), []).append(lambda i=i: w2_load(k, vq, "W", i, 0))
    for i in range(4): extra.setdefault(6 + i, []).insert(0, st_op(i))
    def stats_a():
        vq.wait("S")
        a(f"v_add_f32 v{ST}, v{ST}, v{ST+2}")
        a(f"v_add_f32 v{ST+1}, v{ST+1}, v{ST+3}")
        a(f"v_add_f32 v{ST+4}, v{ST+4}, v{ST+6}")
        a(f"v_add_f32 v{ST+5}, v{ST+5}, v{ST+7}")
        a(f"v_add_f32 v{ST}, v{ST}, v{ST+4}")
        a(f"v_add_f32 v{ST+1}, v{ST+1}, v{ST+5}")
    def stats_sw(sw):
        def f():
            a(f"v_mov_b32 v{ST+2}, v{ST}")
            a(f"v_mov_b32 v{ST+3}, v{ST+1}")
            a("s_nop 0")
            a(f"v_permlane{sw}_swap_b32 v{ST}, v{ST+2}")
            a(f"v_permlane{sw}_swap_b32 v{ST+1}, v{ST+3}")
            a("s_nop 0")
            a(f"v_add_f32 v{ST}, v{ST}, v{ST+2}")
            a(f"v_add_f32 v{ST+1}, v{ST+1}, v{ST+3}")
        return f
    def stats_b():
        a(f"v_mul_f32 v{ST}, 0x{f2u(1.0/640):08x}, v{ST}")
        a(f"v_mul_f32 v{ST+2}, v{ST}, v{ST}")
        a(f"v_mov_b32 v{ST+3}, 0x{f2u(1.0/640):08x}")
        a(f"v_fma_f32 v{ST+2}, v{ST+1}, v{ST+3}, -v{ST+2}")
        a(f"v_max_f32 v{ST+2}, 0, v{ST+2}")
        a(f"v_add_f32 v{ST+2}, 0x{f2u(1e-5):08x}, v{ST+2}")
        a(f"v_rsq_f32 v{ST+1}, v{ST+2}")
        a(f"s_mul_i32 s76, s{sTT}, {54*1024}")
        a(f"s_add_u32 s76, s76, {WS_H1}")
        a(f"v_mul_f32 v{ST}, v{ST}, v{ST+1}")
        a(f"s_lshr_b32 s{T1}, s{sF}, 3")
        a(f"s_add_u32 s{T1}, s{T1}, s{sF}")
        a(f"s_mul_i32 s{T1}, s{T1}, 3072")
        a(f"s_add_u32 s77, s{T1}, s76")
    def stats_c():
        a(f"s_lshr_b32 s{T2}, s{sF}, 1")
        a(f"s_cmp_ge_u32 s{sF}, 6")
        a(f"s_cselect_b32 s{T1}, 48, 24")
        a(f"s_add_u32 s{T2}, s{T2}, s{T1}")
        a(f"s_lshl_b32 s{T2}, s{T2}, 10")
        a(f"s_and_b32 s{T1}, s{sF}, 1")
        a(f"s_lshl_b32 s{T1}, s{T1}, 9")
        a(f"s_add_u32 s{T2}, s{T2}, s{T1}")
        a(f"s_add_u32 s76, s76, s{T2}")
        a(f"s_lshl_b32 s{T1}, s{sRB}, 4")
        a(f"s_add_u32 s{T1}, s{T1}, s{sF}")
        a(f"s_mul_i32 s{T3}, s{T1}, {FSP}")
        a(f"s_add_u32 s{T3}, s{T3}, {FL_4}")
    for j, f in ((14, stats_a), (15, stats_sw(16)), (16, stats_sw(32)), (17, stats_b), (18, stats_c)): extra.setdefault(j, []).append(f)
    def addr(j, t): return BA + j // 9, (j % 9) * 7168 + t * 1024
    mm_steps(k, vq, 20, 7, addr, extra)
    k.stamp(16)
    CS = WB + 56
    for t in range(7): a(f"ds_read_b128 {vr(CS+4*t,4)}, v{BA+4} offset:{64*t}")
    a(f"s_cmp_lt_u32 s{S_W}, 4")
    a("s_cbranch_scc1 L_p4_nb")
    a("s_barrier")
    a.label("L_p4_nb")
    a("s_waitcnt lgkmcnt(0)")
    E = WB; OUT = AF
    def silu(tiles):
        rs = [4 * t + r for t in tiles for r in range(4)]
        for r in rs: a(f"v_mul_f32 v{ACC+r}, v{ST+1}, v{ACC+r}")
        for r in rs: a(f"v_fma_f32 v{ACC+r}, -v{ST}, v{CS+r}, v{ACC+r}")
        for r in rs: a(f"v_mul_f32 v{E+r}, 0x{f2u(-math.log2(math.e)):08x}, v{ACC+r}")
        for r in rs: a(f"v_exp_f32 v{E+r}, v{E+r}")
        for r in rs: a(f"v_add_f32 v{E+r}, 1.0, v{E+r}")
        for r in rs: a(f"v_rcp_f32 v{E+r}, v{E+r}")
        for r in rs: a(f"v_mul_f32 v{ACC+r}, v{ACC+r}, v{E+r}")
        for r in rs[::2]: a(f"v_cvt_pk_bf16_f32 v{OUT+r//2}, v{ACC+r}, v{ACC+r+1}")
    a(f"s_cmp_ge_u32 s{sF}, 12")
    a("s_cbranch_scc1 L_p4_no6")
    silu((6,))
    a(f"buffer_store_dwordx2 {vr(OUT+12,2)}, v{DL8}, {WS}, s76 offen sc1")
    a.label("L_p4_no6")
    PB = int(k.o.get("pb4", 2))
    for p in range(3):
        if p == PB:
            a(f"s_cmp_ge_u32 s{S_W}, 4")
            a("s_cbranch_scc1 L_p4_nb2")
            a("s_barrier")
            a.label("L_p4_nb2")
        silu((2 * p, 2 * p + 1))
        a(f"buffer_store_dwordx4 {vr(OUT+4*p,4)}, v{DLIN}, {WS}, s77 offen offset:{1024*p} sc1")
    order = [x for q in range(9) for x in (q, 9 + q)]
    NB5 = 12
    def w2_swap():
        for n, i in enumerate(order):
            w2_write(k, None, i)
            if 4 <= n < 4 + NB5:
                a("s_waitcnt lgkmcnt(4)")
                w2_load(k, None, None, order[n - 4], 1)
        if NB5 > 14:
            a("s_waitcnt lgkmcnt(0)")
            for i in order[14:NB5]: w2_load(k, None, None, i, 1)
    a(f"s_cmp_ge_u32 s{S_W}, 4")
    a("s_cbranch_scc1 L_p4_y")
    if PB == 3: a("s_barrier")
    a("s_waitcnt vmcnt(3)")
    w2_swap()
    a(f"s_waitcnt vmcnt({NB5})")
    a("s_barrier")
    k.stamp(17)
    k.flag_store(T3, TM)
    a("s_branch L_p4_e")
    a.label("L_p4_y")
    a("s_waitcnt vmcnt(0)")
    a("s_barrier")
    k.stamp(17)
    w2_swap()
    a.label("L_p4_e")

def phase5(k):
    a = k.a
    a.c("================ phase 5: FFN down-projection + residual")
    a(f"s_mul_i32 s{T0}, s{sKH}, {HALF}")
    tile_addrs(k, T0, BA)
    for i in range(3): a(f"v_add_u32 v{BA+3+i}, {12*5120}, v{BA+i}")
    a(f"v_and_b32 v{TM+4}, 15, v0")
    a(f"s_lshl_b32 s{T0}, s{sRG}, 4")
    a(f"v_add_u32 v{TM+4}, s{T0}, v{TM+4}")
    a(f"v_mul_u32_u24 v{TM+4}, {OUT_PITCH}, v{TM+4}")
    a(f"v_lshrrev_b32 v{TM+5}, 4, v0")
    a(f"v_lshl_add_u32 v{TM+4}, v{TM+5}, 4, v{TM+4}")
    a(f"s_mul_i32 s{T0}, s{sKH}, {OUT_HALF}")
    a(f"s_add_u32 s{T0}, s{T0}, {OUT_LDS}")
    a(f"v_add_u32 v{TL}, s{T0}, v{TM+4}")
    a(f"s_lshl_b32 s{T0}, s{sKH}, 7")
    a(f"v_add_u32 v{XW}, s{T0}, v{TL}")
    a(f"v_subrev_u32 v{XRD}, s{T0}, v{TL}")
    for n in range(2):
        a(f"s_lshl_b32 s{T0}, s{S_W}, 6")
        a(f"s_add_u32 s{T0}, s{T0}, {512*n}")
        a(f"v_add_u32 v{TM+2}, s{T0}, v0")
        a(f"v_mul_u32_u24 v{TM+3}, 6554, v{TM+2}")
        a(f"v_lshrrev_b32 v{TM+3}, 16, v{TM+3}")
        a(f"v_mul_u32_u24 v{TM+4+2*n}, 10, v{TM+3}")
        a(f"v_sub_u32 v{TM+2}, v{TM+2}, v{TM+4+2*n}")
        a(f"v_mul_u32_u24 v{TM+4+2*n}, {OUT_PITCH}, v{TM+3}")
        a(f"v_lshl_add_u32 v{TM+4+2*n}, v{TM+2}, 5, v{TM+4+2*n}")
        a(f"v_add_u32 v{TM+4+2*n}, {OUT_LDS}, v{TM+4+2*n}")
        a(f"v_mul_u32_u24 v{TM+5+2*n}, 1280, v{TM+3}")
        a(f"v_lshl_add_u32 v{TM+5+2*n}, v{TM+2}, 4, v{TM+5+2*n}")
    a(f"s_mul_i32 s{sA}, s{sRB64}, {64*1280}")
    a(f"s_mul_i32 s{T0}, s{sN8}, 160")
    a(f"s_add_u32 s{sA}, s{sA}, s{T0}")
    a(f"s_mul_i32 s{sB}, s{sTT3}, {54*1024}")
    a(f"s_mul_i32 s{T1}, s{sKH}, {27*1024}")
    a(f"s_add_u32 s{sB}, s{sB}, s{T1}")
    a(f"s_add_u32 s{sB}, s{sB}, {WS_H1}")
    if k.o.get("p5hot"): a(f"s_mov_b32 s{sB}, {WS_W2}")
    if k.o.get("p5oob"): a(f"s_mov_b32 s{sB}, 0x7f000000")
    a(f"s_lshr_b32 s{T3}, s{sRB64}, 1")
    a(f"s_mul_i32 s{T3}, s{T3}, {16*FSP}")
    a(f"s_add_u32 s{T3}, s{T3}, {FL_4}")
    k.poll(16, T3, FSP, TM)
    a("s_waitcnt lgkmcnt(0)")
    a("s_barrier")
    k.stamp(18)
    vq = VQ(a)
    aop = [a_op(k, vq, j, j, sB, j >= 24) for j in range(27)]
    D = int(k.o.get("d5", 5))
    coop_touch(k, vq, sB, sN8, 8, 27)
    for j in range(D): aop[j]()
    extra = {j: [aop[j + D]] for j in range(27 - D)}
    NB5 = 12
    NB5 = 12
    bars = (5, 10, 13, 20)
    dm = [x for p in zip(dma_ops(k, vq, "R", 5 * NS5 + 48, 135, sW2, sW10, 48 * 1024), dma_ops(k, vq, "R", 135 + 5 * NS5 + 48, 270, sW2, sW10, HALF + 48 * 1024)) for x in p]
    for n, f in enumerate(dm): extra.setdefault(13 + n // 2, []).append(f)
    def wr(i):
        vq.wait(("W", i))
        w2_write(k, k.lq, i)
    for g in range(2):
        for n, i in enumerate(x for q in range(3 * g, 3 * g + 3) for x in (q, 9 + q)):
            if 6 * g + n >= NB5: extra.setdefault(6 * g + n - NB5, []).append(lambda i=i: w2_load(k, vq, ("W", i), i, 1))
            if not k.o.get("p5now"): extra.setdefault(bars[g] + n // 2, []).append(lambda i=i: wr(i))
    slot = lambda j: j if j < NS5 else j - NS5
    def addr(j, t):
        s = slot(j)
        return BA + (3 if s >= 12 else 0) + (0, 0, 1, 1, 2)[t], (s % 12) * 5120 + t * 1024
    def pre(j):
        if j - 2 in bars:
            k.lq.wait("w")
            vq.wait("R") if j - 2 == 20 else None
            if not k.o.get("p5nob"): a("s_barrier")
    mm_steps(k, vq, 27, 5, addr, extra, pre)
    k.stamp(19)
    a("s_nop 1")
    for i, t in enumerate((0, 1, 4)):
        if i == 2:
            a(f"s_cmp_lg_u32 s{sKH}, 0")
            a("s_cbranch_scc1 L_p5_no4")
        for h in range(2):
            a(f"v_lshlrev_b32 v{TM+2}, 16, v{HR+2*i+h}")
            a(f"v_and_b32 v{TM+3}, 0xffff0000, v{HR+2*i+h}")
            a(f"v_add_f32 v{ACC+4*t+2*h}, v{ACC+4*t+2*h}, v{TM+2}")
            a(f"v_add_f32 v{ACC+4*t+2*h+1}, v{ACC+4*t+2*h+1}, v{TM+3}")
        if i < 2: a(f"ds_write_b128 v{XW}, {vr(ACC+4*t,4)} offset:{64*t}")
        if i == 1:
            a(f"ds_write_b128 v{XRD}, {vr(ACC+8,4)} offset:128")
            a(f"ds_write_b128 v{XRD}, {vr(ACC+12,4)} offset:192")
    a.label("L_p5_no4")
    a(f"ds_write_b128 v{TL}, {vr(ACC+16,4)} offset:256")
    a("s_waitcnt lgkmcnt(0)")
    a("s_barrier")
    OUTS = f"s[{SRD_OUT}:{SRD_OUT+3}]"
    def outrow(ra, ga, base):
        for h in range(2):
            for q in range(2): a(f"ds_read_b128 {vr(base+8*h+4*q,4)}, v{ra} offset:{16*q}")
            if h == 0: a(f"v_add_u32 v{ra}, {OUT_HALF}, v{ra}")
        a("s_waitcnt lgkmcnt(0)")
        for r in range(8): a(f"v_add_f32 v{base+r}, v{base+r}, v{base+8+r}")
        for r in range(4): a(f"v_cvt_pk_bf16_f32 v{base+r}, v{base+2*r}, v{base+2*r+1}")
        a(f"buffer_store_dwordx4 {vr(base,4)}, v{ga}, {OUTS}, s{sA} offen {k.o.get('ost', '')}")
    outrow(TM + 4, TM + 5, WB)
    a(f"s_cmp_ge_u32 s{S_W}, 2")
    a("s_cbranch_scc1 L_p5_end")
    outrow(TM + 6, TM + 7, WB + 16)
    a.label("L_p5_end")
```

```python
import sys, math
from asmlib import Asm, vr, sr, f2u, check
from tables import *

NAME = "sequential_preLN__mha_block__dense_activation_silu__prompt"
LDS_BYTES = 163840
SPIN_MAX = 20000

S_G = 2
SRD_X, SRD_WQ, SRD_WS, SRD_OUT, SRD_DBG, SRD_RL = 4, 8, 12, 16, 20, 24
S_W, S_C, S_J = 28, 29, 30
S_NONCE = 32
S_PTR = 36
T0, T1, T2, T3, T4, T5 = 54, 55, 56, 57, 58, 59
S_M1 = 60
S_SPIN = 62

class K:
    def __init__(self, stop_after=99, opts=None):
        self.a = Asm()
        self.stop = stop_after
        self.o = opts or {}
        self.pad = 0
        self._sides = []

    def srd(self, d, ptr, nbytes):
        a = self.a
        a(f"s_mov_b32 s{d}, s{ptr}")
        a(f"s_and_b32 s{d+1}, s{ptr+1}, 0xffff")
        a(f"s_mov_b32 s{d+2}, {nbytes}")
        a(f"s_mov_b32 s{d+3}, 0x20000")

    def stamp(self, idx):
        if not self.o.get("stamps"): return
        if self.o["stamps"] == "min" and idx not in (0, 9, 10, 31): return
        a = self.a
        a("s_memrealtime s[100:101]")
        a("s_waitcnt lgkmcnt(0)")
        a(f"v_writelane_b32 v255, s100, {idx}")
        if idx < 22 and self.o["stamps"] != "min":
            a("s_memtime s[100:101]")
            a("s_waitcnt lgkmcnt(0)")
            a(f"v_writelane_b32 v255, s100, {idx+32}")

    def stamp_dyn(self, base, sreg):
        if not self.o.get("its"): return
        a = self.a
        a("s_memtime s[100:101]")
        a("s_mov_b32 s99, m0")
        a(f"s_add_u32 m0, s{sreg}, {base}")
        a("s_waitcnt lgkmcnt(0)")
        a("v_writelane_b32 v255, s100, m0")
        a("s_mov_b32 m0, s99")

    def stamp_flush(self):
        if not self.o.get("stamps"): return
        a = self.a
        if self.o.get("dbgwg"):
            L = a.newlabel("dbg")
            a(f"s_cmp_lg_u32 s{S_G}, {int(self.o['dbgwg'])}")
            a(f"s_cbranch_scc1 {L}")
            a(f"s_cmp_lg_u32 s{S_W}, 0")
            a(f"s_cbranch_scc1 {L}")
            a(f"v_readlane_b32 s{T1}, v255, 0")
            for n, i in enumerate((3, 4, 7, 8, 9, 10, 12, 13, 15, 16, 18, 19, 31)):
                a(f"v_readlane_b32 s{T0}, v255, {i}")
                a("s_nop 3")
                a(f"s_sub_u32 s{T0}, s{T0}, s{T1}")
                a(f"v_mov_b32 v1, s{T0}")
                a(f"v_mov_b32 v2, {8+4*n}")
                a(f"buffer_store_dword v1, v2, s[{SRD_DBG}:{SRD_DBG+3}], 0 offen")
            a.label(L)
            return
        a(f"s_lshl_b32 s{T0}, s{S_G}, 3")
        a(f"s_add_u32 s{T0}, s{T0}, s{S_W}")
        a(f"s_lshl_b32 s{T0}, s{T0}, 8")
        a(f"s_add_u32 s{T0}, s{T0}, {WS_SIZE}")
        a("v_lshlrev_b32 v1, 2, v0")
        a(f"buffer_store_dword v255, v1, s[{SRD_WS}:{SRD_WS+3}], s{T0} offen")
        a("s_mov_b64 exec, -1")

    def dma(self, voff, srd, soff, flags=""):
        if self.o.get("nodma"): return
        self.a(f"buffer_load_dwordx4 v{voff}, s[{srd}:{srd+3}], {soff} offen {flags} lds".replace("  ", " "))

    def flag_store(self, s_off, vt, pol="sc1"):
        a = self.a
        L = a.newlabel("nofl")
        a(f"s_cmp_lg_u32 s{S_W}, 0")
        a(f"s_cbranch_scc1 {L}")
        a(f"v_mov_b32 v{vt}, s{S_NONCE}")
        a(f"v_mov_b32 v{vt+1}, s{S_NONCE+1}")
        a(f"v_mov_b32 v{vt+2}, 0")
        a("s_mov_b64 exec, 1")
        a(f"buffer_store_dwordx2 v[{vt}:{vt+1}], v{vt+2}, s[{SRD_WS}:{SRD_WS+3}], s{s_off} offen {pol}")
        a("s_mov_b64 exec, -1")
        a.label(L)

    def poll(self, n, s_off, spacing, vt, only_wave0=True):
        a = self.a
        L = a.newlabel("poll"); Ld = a.newlabel("polld")
        if only_wave0:
            a(f"s_cmp_lg_u32 s{S_W}, 0")
            a(f"s_cbranch_scc1 {Ld}")
        a(f"s_mov_b32 s{S_SPIN}, 0")
        if n == 256:
            assert spacing == 8
            a(f"v_lshlrev_b32 v{vt+8}, 4, v0")
            a.label(L)
            a(f"buffer_load_dwordx4 v[{vt}:{vt+3}], v{vt+8}, s[{SRD_WS}:{SRD_WS+3}], s{s_off} offen sc1")
            a(f"buffer_load_dwordx4 v[{vt+4}:{vt+7}], v{vt+8}, s[{SRD_WS}:{SRD_WS+3}], s{s_off} offen offset:1024 sc1")
            a(f"s_add_u32 s{S_SPIN}, s{S_SPIN}, 1")
            a("s_waitcnt vmcnt(0)")
            a(f"v_cmp_ne_u64 vcc, s[{S_NONCE}:{S_NONCE+1}], v[{vt}:{vt+1}]")
            a(f"v_cmp_ne_u64 s[{S_M1}:{S_M1+1}], s[{S_NONCE}:{S_NONCE+1}], v[{vt+2}:{vt+3}]")
            a("s_nop 0")
            a(f"s_or_b64 s[{T4}:{T5}], vcc, s[{S_M1}:{S_M1+1}]")
            a(f"v_cmp_ne_u64 vcc, s[{S_NONCE}:{S_NONCE+1}], v[{vt+4}:{vt+5}]")
            a(f"v_cmp_ne_u64 s[{S_M1}:{S_M1+1}], s[{S_NONCE}:{S_NONCE+1}], v[{vt+6}:{vt+7}]")
            a("s_nop 0")
            a(f"s_or_b64 s[{T4}:{T5}], s[{T4}:{T5}], vcc")
            a(f"s_or_b64 s[{T4}:{T5}], s[{T4}:{T5}], s[{S_M1}:{S_M1+1}]")
        else:
            a(f"v_and_b32 v{vt+2}, {n-1}, v0")
            a(f"v_mul_u32_u24 v{vt+2}, {spacing}, v{vt+2}")
            a.label(L)
            a(f"buffer_load_dwordx2 v[{vt}:{vt+1}], v{vt+2}, s[{SRD_WS}:{SRD_WS+3}], s{s_off} offen sc1")
            a(f"s_add_u32 s{S_SPIN}, s{S_SPIN}, 1")
            a("s_waitcnt vmcnt(0)")
            a(f"v_cmp_ne_u64 vcc, s[{S_NONCE}:{S_NONCE+1}], v[{vt}:{vt+1}]")
            a("s_nop 0")
            a(f"s_or_b64 s[{T4}:{T5}], vcc, vcc")
        a(f"s_cbranch_scc0 {Ld}")
        a(f"s_cmp_lt_u32 s{S_SPIN}, {SPIN_MAX}")
        a(f"s_cbranch_scc1 {L}")
        a.label(Ld)

    def poll2(self, va, vb, s_off, vt):
        a = self.a
        L = a.newlabel("poll"); Ld = a.newlabel("polld")
        N = f"s[{S_NONCE}:{S_NONCE+1}]"
        a(f"s_cmp_lg_u32 s{S_W}, 0")
        a(f"s_cbranch_scc1 {Ld}")
        a(f"s_mov_b32 s{S_SPIN}, 0")
        a.label(L)
        a(f"buffer_load_dwordx2 v[{vt}:{vt+1}], v{va}, s[{SRD_WS}:{SRD_WS+3}], s{s_off} offen sc1")
        a(f"buffer_load_dwordx2 v[{vt+2}:{vt+3}], v{vb}, s[{SRD_WS}:{SRD_WS+3}], s{s_off} offen sc1")
        a(f"s_add_u32 s{S_SPIN}, s{S_SPIN}, 1")
        a("s_waitcnt vmcnt(0)")
        a(f"v_cmp_ne_u64 vcc, {N}, v[{vt}:{vt+1}]")
        a(f"v_cmp_ne_u64 s[{S_M1}:{S_M1+1}], {N}, v[{vt+2}:{vt+3}]")
        a("s_nop 0")
        a(f"s_or_b64 vcc, vcc, s[{S_M1}:{S_M1+1}]")
        a(f"s_cbranch_scc0 {Ld}")
        a(f"s_cmp_lt_u32 s{S_SPIN}, {SPIN_MAX}")
        a(f"s_cbranch_scc1 {L}")
        a.label(Ld)

    def entry(self):
        a = self.a
        a(f"s_cmp_ge_u32 s{S_G}, 256")
        a("s_cbranch_scc1 L_end")
        a(f"s_load_dwordx16 s[{S_PTR}:{S_PTR+15}], s[0:1], 0")
        a(f"s_load_dwordx2 s[{S_PTR+16}:{S_PTR+17}], s[0:1], 64")
        a(f"s_memrealtime s[{S_NONCE}:{S_NONCE+1}]")
        if self.o.get("stamps"): a("v_mov_b32 v255, 0")
        self.stamp(0)
        a("v_lshrrev_b32 v1, 6, v0")
        a("v_and_b32 v0, 63, v0")
        a(f"v_readfirstlane_b32 s{S_W}, v1")
        a(f"s_and_b32 s{S_C}, s{S_G}, 7")
        a(f"s_lshr_b32 s{S_J}, s{S_G}, 3")

    ACC = 16; XF = 160; WF = 176; XA = 72; WA = 144; DXA, DXB, DW = 78, 79, 80; VXM = 76
    ONES = 82
    CQ = 96
    CQA = 81; CSW = 85
    RSA, RS = 84, 128
    STA = 86
    RLV, RLA = 157, 158
    VN = 92
    sRB, sCT, sKC, sXO, sWO, sSLOT, sCNT, sXM, sTG, sNH = 64, 65, 66, 67, 68, 69, 70, 71, 72, 73
    sTAB = 74
    sM0X = 80; sWO2 = 81; sKC0 = 82; sSIDE = 83; sI1 = 71; sI2 = 34; sSM = 35
    sRL = 84
    P1_MISC = 148 * 1024
    RL_SCR = 68 * 1024
    CQ_SCR = 128 * 1024
    DUMMY = 159 * 1024
    CPF_LINES = 8

    def p1_issue(self, pieces=(0, 1, 2, 3)):
        a = self.a
        if 0 in pieces:
            a(f"s_add_u32 m0, s{self.sM0X}, s{self.sSLOT}")
            a(f"s_add_u32 s{self.sKC}, s{self.sKC}, 1")
            self.dma(self.DXA, SRD_X, f"s{self.sXO}")
        if 1 in pieces:
            a("s_add_u32 m0, m0, 16384")
            a(f"s_add_u32 s{self.sWO2}, s{self.sWO}, 15360")
            self.dma(self.DW, SRD_WQ, f"s{self.sWO}")
        if 2 in pieces:
            a("s_sub_u32 m0, m0, 15360")
            a(f"s_add_u32 s{self.sWO}, s{self.sWO}, 245760")
            self.dma(self.DXB, SRD_X, f"s{self.sXO}")
        if 3 in pieces:
            a("s_add_u32 m0, m0, 16384")
            a(f"s_add_u32 s{self.sXO}, s{self.sXO}, 128")
            self.dma(self.DW, SRD_WQ, f"s{self.sWO2}")
            a(f"s_cmp_eq_u32 s{self.sKC}, 10")
            a(f"s_cselect_b32 s{T0}, 1280, 0")
            a(f"s_cselect_b32 s{T1}, 2457600, 0")
            a(f"s_cselect_b32 s{self.sKC}, 0, s{self.sKC}")
            a(f"s_sub_u32 s{self.sXO}, s{self.sXO}, s{T0}")
            a(f"s_sub_u32 s{self.sWO}, s{self.sWO}, s{T1}")
            a(f"s_add_u32 s{self.sSLOT}, s{self.sSLOT}, 32768")
            a(f"s_and_b32 s{self.sSLOT}, s{self.sSLOT}, 0x1ffff")

    def p1_setup_a(self):
        a = self.a
        a(f"s_lshr_b32 s{T0}, s{S_C}, 1")
        a(f"s_lshl_b32 s{T0}, s{T0}, 2")
        a(f"s_lshr_b32 s{T1}, s{S_J}, 3")
        a(f"s_add_u32 s{self.sRB}, s{T0}, s{T1}")
        a(f"s_and_b32 s{T0}, s{S_C}, 1")
        a(f"s_lshl_b32 s{T0}, s{T0}, 3")
        a(f"s_and_b32 s{T2}, s{S_J}, 7")
        a(f"s_add_u32 s{self.sCT}, s{T0}, s{T2}")
        g = int(self.o.get("rotg", 4))
        if g == 8:
            a(f"s_lshl_b32 s{T1}, s{T1}, 1")
            a(f"s_add_u32 s{self.sKC}, s{T2}, s{T1}")
            a(f"s_bfe_u32 s{T0}, s{S_C}, 0x10001")
            a(f"s_and_b32 s{T1}, s{S_C}, 4")
            a(f"s_lshl_b32 s{T1}, s{T1}, 1")
            a(f"s_add_u32 s{T0}, s{T0}, s{T1}")
            a(f"s_add_u32 s{self.sKC}, s{self.sKC}, s{T0}")
        else:
            bases, offs, shift = {3: ((0, 3, 7), (0, 1, 2, 6), 0), 4: ((0, 2, 5, 7), (0, 1, 2, 3), 0), 5: ((0, 2, 4, 6, 8), (0, 1, 0, 1), 1)}[g]
            a(f"s_add_u32 s{T1}, s{T1}, s{T2}")
            a(f"s_lshr_b32 s{T0}, s{S_C}, 1")
            if shift: a(f"s_add_u32 s{T1}, s{T1}, s{T0}")
            tab = sum(bases[i % g] << (4 * i) for i in range(16))
            a(f"s_lshl_b32 s{T1}, s{T1}, 2")
            a(f"s_mov_b32 s{T4}, 0x{tab & 0xffffffff:08x}")
            a(f"s_mov_b32 s{T5}, 0x{tab >> 32:08x}")
            a(f"s_lshr_b64 s[{T4}:{T5}], s[{T4}:{T5}], s{T1}")
            a(f"s_and_b32 s{self.sKC}, s{T4}, 15")
            a(f"s_lshl_b32 s{T0}, s{T0}, 2")
            a(f"s_lshr_b32 s{T0}, 0x{sum(o << (4 * i) for i, o in enumerate(offs)):04x}, s{T0}")
            a(f"s_and_b32 s{T0}, s{T0}, 15")
            a(f"s_add_u32 s{self.sKC}, s{self.sKC}, s{T0}")
            for ct in range(8):
                assert len({(bases[(ct + rl + shift * aa) % g] + offs[aa]) % 10 for aa in range(4) for rl in range(4)}) == 10
        a(f"s_mul_i32 s{T0}, s{self.sKC}, 26")
        a(f"s_lshr_b32 s{T0}, s{T0}, 8")
        a(f"s_mul_i32 s{T0}, s{T0}, 10")
        a(f"s_sub_u32 s{self.sKC}, s{self.sKC}, s{T0}")
        a(f"s_mov_b32 s{self.sKC0}, s{self.sKC}")
        a(f"s_mul_i32 s{self.sXO}, s{self.sRB}, 163840")
        a(f"s_lshl_b32 s{T0}, s{self.sKC}, 7")
        a(f"s_add_u32 s{self.sXO}, s{self.sXO}, s{T0}")
        a(f"s_mul_i32 s{self.sWO}, s{self.sKC}, 245760")
        a(f"s_lshl_b32 s{T0}, s{self.sCT}, 8")
        a(f"s_add_u32 s{self.sWO}, s{self.sWO}, s{T0}")
        a(f"s_lshl_b32 s{self.sM0X}, s{S_W}, 11")
        a(f"s_mov_b32 s{self.sSLOT}, 0")
        a(f"s_mov_b64 s[{SRD_RL}:{SRD_RL+1}], 0")
        a(f"s_mov_b32 s{SRD_RL+2}, 0")
        a(f"s_mov_b32 s{SRD_RL+3}, 0x20000")
        a(f"v_mov_b32 v{self.RLV}, 0")
        a("v_lshrrev_b32 v1, 3, v0")
        a("v_lshrrev_b32 v2, 4, v0")
        a("v_and_b32 v3, 7, v0")
        a("v_xor_b32 v3, v3, v2")
        a(f"s_lshl_b32 s{T0}, s{S_W}, 4")
        a(f"v_add_u32 v4, s{T0}, v1")
        a("v_mul_u32_u24 v4, 1280, v4")
        a(f"v_lshl_add_u32 v{self.DXA}, v3, 4, v4")
        a(f"v_xor_b32 v{self.DXB}, 64, v{self.DXA}")
        a(f"v_add_u32 v{self.DXB}, 10240, v{self.DXB}")
        a("v_lshlrev_b32 v3, 2, v2")
        a("v_and_b32 v4, 15, v0")
        a("v_xor_b32 v3, v3, v4")
        a(f"s_lshl_b32 s{T0}, s{S_W}, 3")
        a(f"v_add_u32 v4, s{T0}, v2")
        a("v_mul_u32_u24 v4, 3840, v4")
        a(f"v_lshl_add_u32 v{self.DW}, v3, 4, v4")
        a("s_waitcnt lgkmcnt(0)")
        if self.o.get("fixown"): a(f"s_mov_b32 s31, s{S_NONCE}")
        self.srd(SRD_X, S_PTR + 0, 2048 * 1280)
        self.srd(SRD_WQ, S_PTR + 2, 640 * 3840)
        a(f"s_cmp_eq_u32 s{self.sCT}, 15")
        a("s_cbranch_scc1 L_p1_noissue")
        self.p1_issue()
        if self.o.get("first5", "1") == "1": self.p1_issue((0,))
        a.label("L_p1_noissue")
        self.stamp(1)
        self.srd(SRD_WS, S_PTR + 16, WS_SIZE + ((1 << 20) if self.o.get("stamps") else 0))
        self.srd(SRD_OUT, S_PTR + 12, 2048 * 1280)
        self.srd(SRD_DBG, S_PTR + 14, 256)
        if self.o.get("cpf", "1") == "1":
            Lc = a.newlabel("cpf")
            a(f"s_cmp_lg_u32 s{S_W}, 7")
            a(f"s_cbranch_scc1 {Lc}")
            a(f"s_getpc_b64 s[{T4}:{T5}]")
            a.label("L_pc_here")
            a(f"s_mul_i32 s{T0}, s{S_J}, {self.CPF_LINES*128}")
            a(f"s_sub_u32 s{T0}, s{T0}, L_pc_here-{NAME}_kernel")
            a(f"v_min_u32 v3, {self.CPF_LINES-1}, v0")
            a(f"v_lshl_add_u32 v3, v3, 7, s{T0}")
            a("v_ashrrev_i32 v5, 31, v3")
            a(f"v_mov_b32 v6, s{T5}")
            a(f"v_add_co_u32 v4, vcc, s{T4}, v3")
            a("s_nop 1")
            a("v_addc_co_u32 v5, vcc, v5, v6, vcc")
            a("global_load_dword v254, v[4:5], off")
            a.label(Lc)
        a(f"s_or_b32 s{T0}, s{S_G}, s{S_W}")
        a("s_cbranch_scc1 L_nonce_done")
        a("v_mov_b32 v3, 0")
        a(f"v_mov_b32 v4, s{S_NONCE}")
        a(f"v_mov_b32 v5, s{S_NONCE+1}")
        a("s_mov_b64 exec, 1")
        a(f"buffer_store_dwordx2 v[4:5], v3, s[{SRD_DBG}:{SRD_DBG+3}], 0 offen sc1")
        a("s_mov_b64 exec, -1")
        a.label("L_nonce_done")

    def relayout_setup(self):
        a = self.a
        R = self.sRL
        u = a.newlabel("u")
        sID, sKS, sCB, sST, sA, sB, sCc, sD = T0, T1, T2, T3, 93, 94, 95, 96
        sBase, sSl, sKsS = 97, 98, 99
        a(f"s_mul_i32 s{sID}, s{S_G}, 5")
        a(f"s_add_u32 s{sID}, s{sID}, s{S_W}")
        a(f"s_sub_u32 s{sID}, s{sID}, 1")
        a(f"s_min_u32 s{sID}, s{sID}, 1279")
        a(f"s_mov_b32 s{sA}, 16")
        a(f"s_mov_b32 s{sB}, 8")
        a(f"s_mov_b32 s{sCc}, 4")
        a(f"s_mov_b32 s{SRD_RL+3}, 0x20000")
        a(f"s_mov_b32 s{R+8}, -1")
        a(f"s_cmp_lt_u32 s{sID}, 200")
        a(f"s_cbranch_scc1 L_rl_wo{u}")
        a(f"s_cmp_lt_u32 s{sID}, 740")
        a(f"s_cbranch_scc1 L_rl_w1{u}")
        a(f"s_sub_u32 s{sID}, s{sID}, 740")
        a(f"s_mul_i32 s{sKS}, s{sID}, 6554")
        a(f"s_lshr_b32 s{sKS}, s{sKS}, 16")
        a(f"s_mul_i32 s{sCB}, s{sKS}, 10")
        a(f"s_sub_u32 s{sCB}, s{sID}, s{sCB}")
        a(f"s_lshl_b32 s{sD}, s{sKS}, 5")
        a(f"s_mov_b32 s{SRD_RL}, s{S_PTR+10}")
        a(f"s_and_b32 s{SRD_RL+1}, s{S_PTR+11}, 0xffff")
        a(f"s_mov_b32 s{SRD_RL+2}, {1728*1280}")
        a(f"s_mov_b32 s{sBase}, {WS_W2}")
        a(f"s_mov_b32 s{sSl}, {54*5120}")
        a(f"s_add_u32 s{T4}, s{sKS}, 3")
        a(f"s_cmp_ge_u32 s{sKS}, 24")
        a(f"s_cselect_b32 s{T4}, s{T4}, s{sKS}")
        a(f"s_sub_u32 s{T5}, s{sKS}, 24")
        a(f"s_cmp_ge_u32 s{sKS}, 48")
        a(f"s_cselect_b32 s{T4}, s{T5}, s{T4}")
        a(f"s_cmp_ge_u32 s{sKS}, 51")
        a(f"s_cselect_b32 s{sKS}, s{sKS}, s{T4}")
        a(f"s_branch L_rl_n640{u}")
        a.label(f"L_rl_wo{u}")
        a(f"s_mul_i32 s{sKS}, s{sID}, 6554")
        a(f"s_lshr_b32 s{sKS}, s{sKS}, 16")
        a(f"s_mul_i32 s{sCB}, s{sKS}, 10")
        a(f"s_sub_u32 s{sCB}, s{sID}, s{sCB}")
        a(f"s_mul_i32 s{sD}, s{sKS}, 40")
        a(f"s_mul_i32 s{sST}, s{sKS}, 160")
        a(f"s_sub_u32 s{sST}, s{sST}, {160*16-16}")
        a(f"s_cmp_lt_u32 s{sKS}, 16")
        a(f"s_cselect_b32 s{sD}, s{sD}, s{sST}")
        a(f"s_cselect_b32 s{sA}, 8, 20")
        a(f"s_cselect_b32 s{sB}, 20, 0x50")
        a(f"s_cselect_b32 s{sCc}, 4, 40")
        a(f"s_mov_b32 s{SRD_RL}, s{S_PTR+4}")
        a(f"s_and_b32 s{SRD_RL+1}, s{S_PTR+5}, 0xffff")
        a(f"s_mov_b32 s{SRD_RL+2}, {640*1280}")
        a(f"s_mov_b32 s{sBase}, {WS_WO}")
        a(f"s_mov_b32 s{sSl}, {20*5120}")
        a(f"s_add_u32 s{T4}, s{sKS}, 2")
        a(f"s_cmp_ge_u32 s{sKS}, 8")
        a(f"s_cselect_b32 s{T4}, s{T4}, s{sKS}")
        a(f"s_sub_u32 s{T5}, s{sKS}, 8")
        a(f"s_cmp_ge_u32 s{sKS}, 16")
        a(f"s_cselect_b32 s{T4}, s{T5}, s{T4}")
        a(f"s_cmp_ge_u32 s{sKS}, 18")
        a(f"s_cselect_b32 s{sKS}, s{sKS}, s{T4}")
        a(f"s_sub_u32 s{T4}, s{sKS}, 1")
        a(f"s_cmp_ge_u32 s{sKS}, 10")
        a(f"s_cselect_b32 s{T4}, s{T4}, s{sKS}")
        a(f"s_cmp_eq_u32 s{sKS}, 9")
        a(f"s_cselect_b32 s{T4}, 18, s{T4}")
        a(f"s_cmp_eq_u32 s{sKS}, 19")
        a(f"s_cselect_b32 s{sKS}, 19, s{T4}")
        a.label(f"L_rl_n640{u}")
        a(f"s_mov_b32 s{sST}, 1280")
        a(f"s_mul_i32 s{sKsS}, s{sKS}, 5120")
        a(f"s_add_u32 s{sBase}, s{sBase}, s{sKsS}")
        for t in range(4):
            a(f"s_lshl_b32 s{T4}, s{sCB}, 2")
            a(f"s_add_u32 s{T4}, s{T4}, {t}")
            a(f"s_mul_i32 s{T5}, s{T4}, 52")
            a(f"s_lshr_b32 s{T5}, s{T5}, 8")
            a(f"s_mul_i32 s{R+4+t}, s{T5}, s{sSl}")
            a(f"s_mul_i32 s{T5}, s{T5}, 5")
            a(f"s_sub_u32 s{T4}, s{T4}, s{T5}")
            a(f"s_lshl_b32 s{T4}, s{T4}, 10")
            a(f"s_add_u32 s{R+4+t}, s{R+4+t}, s{T4}")
            a(f"s_add_u32 s{R+4+t}, s{R+4+t}, s{sBase}")
        a(f"s_branch L_rl_common{u}")
        a.label(f"L_rl_w1{u}")
        a(f"s_sub_u32 s{sID}, s{sID}, 200")
        a(f"s_mul_i32 s{sKS}, s{sID}, 2428")
        a(f"s_lshr_b32 s{sKS}, s{sKS}, 16")
        a(f"s_mul_i32 s{sCB}, s{sKS}, 27")
        a(f"s_sub_u32 s{sCB}, s{sID}, s{sCB}")
        a(f"s_lshr_b32 s{T4}, s{sKS}, 1")
        a(f"s_mul_i32 s{T4}, s{T4}, 0x50")
        a(f"s_and_b32 s{T5}, s{sKS}, 1")
        a(f"s_lshl_b32 s{T5}, s{T5}, 5")
        a(f"s_add_u32 s{sD}, s{T4}, s{T5}")
        a(f"s_mul_i32 s{T4}, s{sKS}, 160")
        a(f"s_sub_u32 s{T4}, s{T4}, {160*16-64}")
        a(f"s_cmp_lt_u32 s{sKS}, 16")
        a(f"s_cselect_b32 s{sD}, s{sD}, s{T4}")
        a(f"s_cselect_b32 s{sA}, 16, 0x50")
        a(f"s_mov_b32 s{SRD_RL}, s{S_PTR+8}")
        a(f"s_and_b32 s{SRD_RL+1}, s{S_PTR+9}, 0xffff")
        a(f"s_mov_b32 s{SRD_RL+2}, {640*3456}")
        a(f"s_mov_b32 s{sST}, 3456")
        a(f"s_mul_i32 s{sKsS}, s{sKS}, 7168")
        a(f"s_add_u32 s{sBase}, s{sKsS}, {WS_W1}")
        a(f"s_mul_i32 s{R+8}, s{sKS}, {1728*4}")
        a(f"s_lshl_b32 s{T4}, s{sCB}, 8")
        a(f"s_add_u32 s{R+8}, s{R+8}, s{T4}")
        a(f"s_add_u32 s{R+8}, s{R+8}, {WS_CS1}")
        for t in range(4):
            a(f"s_lshl_b32 s{T4}, s{sCB}, 2")
            a(f"s_add_u32 s{T4}, s{T4}, {t}")
            a(f"s_mul_i32 s{T5}, s{T4}, 43")
            a(f"s_lshr_b32 s{T5}, s{T5}, 8")
            a(f"s_mul_i32 s{sSl}, s{T5}, 6")
            a(f"s_sub_u32 s{sSl}, s{T4}, s{sSl}")
            a(f"s_sub_u32 s{sKsS}, s{T4}, 96")
            a(f"s_cmp_lt_u32 s{T4}, 96")
            a(f"s_cselect_b32 s{T5}, s{T5}, s{sKsS}")
            a(f"s_cselect_b32 s{sSl}, s{sSl}, 6")
            a(f"s_mul_i32 s{R+4+t}, s{T5}, {20*7168}")
            a(f"s_lshl_b32 s{sSl}, s{sSl}, 10")
            a(f"s_add_u32 s{R+4+t}, s{R+4+t}, s{sSl}")
            a(f"s_add_u32 s{R+4+t}, s{R+4+t}, s{sBase}")
        a.label(f"L_rl_common{u}")
        a(f"s_mul_i32 s{sD}, s{sD}, s{sST}")
        a(f"s_lshl_b32 s{T4}, s{sCB}, 7")
        a(f"s_add_u32 s{R}, s{sD}, s{T4}")
        a(f"s_mul_i32 s{sA}, s{sA}, s{sST}")
        a(f"s_mul_i32 s{sB}, s{sB}, s{sST}")
        a(f"s_add_u32 s{R+1}, s{R}, s{sB}")
        a(f"s_add_u32 s{R+2}, s{R}, s{sA}")
        a(f"s_add_u32 s{R+3}, s{R+2}, s{sB}")
        a("v_lshrrev_b32 v1, 5, v0")
        a(f"v_mul_u32_u24 v1, s{sCc}, v1")
        a("v_bfe_u32 v2, v0, 3, 2")
        a("v_add_u32 v1, v1, v2")
        a(f"v_mul_u32_u24 v1, s{sST}, v1")
        a("v_and_b32 v2, 7, v0")
        a(f"v_lshl_add_u32 v{self.RLV}, v2, 4, v1")
        a("v_lshrrev_b32 v1, 2, v0")
        a("v_lshlrev_b32 v1, 7, v1")
        a("v_and_b32 v2, 3, v0")
        a("v_lshl_add_u32 v1, v2, 3, v1")
        a(f"s_lshl_b32 s{T4}, s{S_W}, 12")
        a(f"s_add_u32 s{T4}, s{T4}, {self.RL_SCR-4096}")
        a(f"v_add_u32 v{self.RLA}, s{T4}, v1")

    def relayout_issue(self, drain_older=False):
        a = self.a
        L = a.newlabel("rlsk")
        a(f"s_sub_u32 s{T0}, s{S_W}, 1")
        a(f"s_cmp_ge_u32 s{T0}, {0 if self.o.get('norl') else 5}")
        a(f"s_cbranch_scc1 {L}")
        a(f"s_lshl_b32 s{T0}, s{S_W}, 12")
        a(f"s_add_u32 m0, s{T0}, {self.RL_SCR-4096}")
        for i in range(4):
            if i: a("s_add_u32 m0, m0, 1024")
            a("s_nop 0")
            self.dma(self.RLV, SRD_RL, f"s{self.sRL+i}")
        if drain_older:
            L2 = a.newlabel("rlw")
            a("s_waitcnt vmcnt(4)")
            a(f"s_branch {L2}")
            a.label(L)
            a("s_waitcnt vmcnt(0)")
            a.label(L2)
        else:
            a.label(L)

    def relayout_finish(self, younger=None):
        a = self.a
        L = a.newlabel("rlsk"); F = 168; t = 184
        a(f"s_sub_u32 s{T0}, s{S_W}, 1")
        a(f"s_cmp_ge_u32 s{T0}, 5")
        Lo = a.newlabel("rlo")
        a(f"s_cbranch_scc1 {Lo if younger is not None else L}")
        if younger is not None: a(f"s_waitcnt vmcnt({younger})")
        for q in range(4):
            for rd in range(2):
                a(f"ds_read_b64_tr_b16 v[{F+4*q+2*rd}:{F+4*q+2*rd+1}], v{self.RLA} offset:{rd*2048+q*32}")
        a(f"v_lshlrev_b32 v{t}, 4, v0")
        for q in range(4):
            a(f"s_waitcnt lgkmcnt({6-2*q})")
            a(f"buffer_store_dwordx4 v[{F+4*q}:{F+4*q+3}], v{t}, s[{SRD_WS}:{SRD_WS+3}], s{self.sRL+4+q} offen sc1")
        if younger is not None: a("s_waitcnt vmcnt(4)")
        a(f"s_cmp_eq_u32 s{self.sRL+8}, -1")
        a(f"s_cbranch_scc1 {L}")
        for q in range(4): a(f"v_mov_b32 v{t+2+q}, 0")
        a(f"v_mov_b32 v{t+6}, 0x3f803f80")
        for k in range(4):
            for q in range(4): a(f"v_dot2_f32_bf16 v{t+2+q}, v{F+4*q+k}, v{t+6}, v{t+2+q}")
        a(f"v_lshlrev_b32 v{t+1}, 2, v0")
        a("s_nop 1")
        a(f"v_permlane16_swap_b32 v{t+2}, v{t+3}")
        a(f"v_permlane16_swap_b32 v{t+4}, v{t+5}")
        a("s_nop 0")
        a(f"v_add_f32 v{t+2}, v{t+2}, v{t+3}")
        a(f"v_add_f32 v{t+4}, v{t+4}, v{t+5}")
        a("s_nop 1")
        a(f"v_permlane32_swap_b32 v{t+2}, v{t+4}")
        a("s_nop 0")
        a(f"v_add_f32 v{t+2}, v{t+2}, v{t+4}")
        a(f"buffer_store_dword v{t+2}, v{t+1}, s[{SRD_WS}:{SRD_WS+3}], s{self.sRL+8} offen sc1")
        if younger is not None:
            a(f"s_branch {L}")
            a.label(Lo)
            a("s_waitcnt vmcnt(0)")
        a.label(L)

    def p1_setup_b(self):
        a = self.a
        a(f"s_and_b32 s{self.sTG}, s{S_W}, 3")
        a(f"s_lshr_b32 s{self.sNH}, s{S_W}, 2")
        a(f"s_cmp_ge_u32 s{self.sCT}, 5")
        a(f"s_cselect_b32 s{T0}, 5, 0")
        a(f"s_sub_u32 s{T0}, s{self.sCT}, s{T0}")
        a(f"s_lshl_b32 s{T0}, s{T0}, 1")
        a(f"s_add_u32 s{T0}, s{T0}, s{self.sNH}")
        for idx in range(10):
            a(f"s_cmp_eq_u32 s{T0}, {idx}")
            a(f"s_cbranch_scc1 L_tab{idx}")
        a(f"s_mul_i32 s{T1}, s{self.sNH}, 0x10101010")
        for k in range(4): a(f"s_add_u32 s{self.sTAB+k}, s{T1}, 0x%08x" % (0x03020100 + 0x04040404 * k))
        a(f"s_mov_b32 s{self.sTAB+4}, 0")
        a(f"s_mov_b32 s{self.sTAB+5}, 0")
        a("s_branch L_tabdone")
        for idx in range(10):
            a.label(f"L_tab{idx}")
            for k, d in enumerate(p1_table(idx // 2, idx % 2)): a(f"s_mov_b32 s{self.sTAB+k}, 0x%08x" % d)
            if idx < 9: a("s_branch L_tabdone")
        a.label("L_tabdone")
        a("v_and_b32 v1, 31, v0")
        a(f"s_lshl_b32 s{T0}, s{self.sTG}, 5")
        a(f"v_add_u32 v2, s{T0}, v1")
        a("v_bfe_u32 v3, v2, 1, 3")
        a("v_lshrrev_b32 v4, 5, v0")
        a("v_xor_b32 v3, v3, v4")
        a("v_lshlrev_b32 v3, 4, v3")
        a(f"v_lshl_add_u32 v{self.XA}, v2, 7, v3")
        a(f"s_xor_b32 s{T3}, s{self.sTG}, s{self.sNH}")
        a(f"s_lshl_b32 s{T0}, s{T3}, 5")
        a(f"v_xor_b32 v{self.XA}, s{T0}, v{self.XA}")
        for ks in range(1, 4): a(f"v_xor_b32 v{self.XA+ks}, {ks<<5}, v{self.XA}")
        a("v_bfe_u32 v5, v0, 2, 2")
        a("v_lshl_add_u32 v6, v4, 3, v5")
        a("v_lshlrev_b32 v6, 8, v6")
        a("v_and_b32 v7, 3, v0")
        a("v_lshlrev_b32 v7, 3, v7")
        a("v_and_b32 v8, 16, v0")
        a("v_cmp_ne_u32 vcc, 0, v8")
        for i in range(2):
            a(f"v_mov_b32 v8, s{self.sTAB+2*i}")
            a(f"v_mov_b32 v9, s{self.sTAB+2*i+1}")
            a("v_cndmask_b32 v8, v8, v9, vcc")
            a("v_bfe_u32 v8, v8, v7, 8")
            a("v_lshlrev_b32 v8, 3, v8")
            a("v_lshlrev_b32 v9, 6, v5")
            a("v_xor_b32 v8, v8, v9")
            a(f"v_add_u32 v8, v6, v8")
            a(f"s_lshl_b32 s{T0}, s{T3}, 12")
            a(f"v_add_u32 v{self.WA+4*i}, s{T0}, v8")
            for j in range(1, 4): a(f"v_xor_b32 v{self.WA+4*i+j}, {j<<12}, v{self.WA+4*i}")
        a(f"s_lshl_b32 s{T0}, s{self.sRB}, 2")
        a(f"s_add_u32 s{T0}, s{T0}, s{self.sTG}")
        a(f"s_lshl_b32 s{T1}, s{T0}, 9")
        a(f"s_add_u32 s{T1}, s{T1}, {WS_RS}")
        a(f"v_lshl_add_u32 v{self.RSA}, v1, 4, s{T1}")
        a(f"s_cmp_ge_u32 s{self.sCT}, 10")
        a("s_cbranch_scc1 L_p1_vaddr")
        a(f"s_lshl_b32 s{T0}, s{T0}, 9")
        a(f"s_cmp_ge_u32 s{self.sCT}, 5")
        a(f"s_cselect_b32 s{T1}, {WS_K}, {WS_Q}")
        a(f"s_add_u32 s{T0}, s{T0}, s{T1}")
        a(f"v_lshl_add_u32 v2, v1, 4, s{T0}")
        a("v_lshlrev_b32 v3, 3, v4")
        a("v_add_u32 v5, 16, v3")
        for i in range(2):
            for qq in range(2):
                a(f"v_bfe_u32 v6, s{self.sTAB+4+i}, v{3 if qq == 0 else 5}, 8")
                a(f"v_lshl_add_u32 v{self.STA+2*i+qq}, v6, 15, v2")
        a("s_branch L_p1_addrdone")
        a.label("L_p1_vaddr")
        a(f"s_mul_i32 s{T0}, s{T0}, 1280")
        a(f"s_add_u32 s{T0}, s{T0}, {WS_V}")
        a(f"s_lshl_b32 s{T1}, s{self.sCT}, 7")
        a(f"s_lshl_b32 s{T2}, s{self.sNH}, 6")
        a(f"s_add_u32 s{T1}, s{T1}, s{T2}")
        a(f"s_sub_u32 s{T1}, s{T1}, 1280")
        a(f"v_mov_b32 v{self.STA+2}, 0")
        a(f"v_mov_b32 v{self.STA+3}, 0")
        a("v_mul_u32_u24 v3, 320, v4")
        a(f"v_add_u32 v3, s{T0}, v3")
        a(f"s_mov_b32 s{T2}, 81920")
        for i in range(2):
            a(f"v_add_u32 v5, s{T1}, v1")
            if i: a("v_add_u32 v5, 32, v5")
            a("v_mul_u32_u24 v6, 3277, v5")
            a("v_lshrrev_b32 v6, 16, v6")
            a("v_mul_u32_u24 v7, 20, v6")
            a("v_sub_u32 v5, v5, v7")
            a("v_lshl_add_u32 v5, v5, 4, v3")
            a(f"v_mad_u32_u24 v{self.STA+i}, v6, s{T2}, v5")
        a.label("L_p1_addrdone")
        for r in range(32): a(f"v_mov_b32 v{self.ACC+r}, 0")
        a(f"s_mul_i32 s{T0}, s{self.sCT}, 10240")
        a(f"s_lshl_b32 s{T1}, s{self.sNH}, 9")
        a(f"s_add_u32 s{T0}, s{T0}, s{T1}")
        a(f"s_add_u32 s{T0}, s{T0}, {WS_CQ}")
        a(f"v_lshl_add_u32 v{self.CQA}, v0, 3, s{T0}")
        a(f"s_lshl_b32 s{T0}, s{self.sNH}, 8")
        a(f"s_lshl_b32 s{T1}, s{self.sTG}, 9")
        a(f"s_add_u32 s{T0}, s{T0}, {self.P1_MISC}")
        a(f"s_add_u32 s{T1}, s{T1}, s{T0}")
        a(f"v_lshl_add_u32 v{self.CSW}, v0, 2, s{T1}")
        a(f"v_lshl_add_u32 v95, v0, 2, s{T0}")
        a(f"v_mov_b32 v{self.VXM}, 0x8000")
        a(f"s_mov_b32 s{self.sCNT}, -1")

    def p1_loop(self, vmode):
        a = self.a
        tag = "v" if vmode else "q"
        a(f"s_cmp_lg_u32 s{self.sNH}, 0")
        a(f"s_cbranch_scc1 L_p1_B{tag}")
        self.p1_loop1(vmode, 0)
        a(f"s_branch L_p1_E{tag}")
        a.label(f"L_p1_B{tag}")
        self.p1_loop1(vmode, 1)
        a.label(f"L_p1_E{tag}")
        reads, xors, mf = self.p1_parts(vmode)
        def comp(ks, rd=True, xr=True):
            a(f"s_waitcnt lgkmcnt({5 if rd or ks == 2 else 0})")
            mf(ks, 0)
            if rd: reads((ks + 2) % 4)
            mf(ks, 1)
            if xr: xors((ks + 2) % 4)
        comp(0); self.p1_issue((2,))
        comp(1); self.p1_issue((3,))
        a(f"buffer_load_dwordx4 v[{self.RS}:{self.RS+3}], v{self.RSA}, s[{SRD_WS}:{SRD_WS+3}], 0 offen sc1")
        a(f"s_mul_i32 s{T0}, s{self.sCT}, 10240")
        a(f"s_lshl_b32 s{T1}, s{S_W}, 10")
        a(f"s_add_u32 s{T0}, s{T0}, s{T1}")
        a(f"s_add_u32 s{T0}, s{T0}, {WS_CQ}")
        a(f"s_add_u32 m0, s{T1}, {self.CQ_SCR}")
        a("v_lshlrev_b32 v1, 4, v0")
        self.dma(1, SRD_WS, f"s{T0}", "sc1")
        a(f"s_add_u32 s{T0}, s{T0}, 8192")
        a("s_add_u32 m0, m0, 8192")
        a(f"s_cmp_ge_u32 s{S_W}, 2")
        a(f"s_cselect_b32 s{T0}, 0x7f000000, s{T0}")
        self.dma(1, SRD_WS, f"s{T0}", "sc1")
        a("s_waitcnt vmcnt(7)")
        a("s_barrier")
        comp(2); comp(3)
        comp(0); comp(1)
        a("s_waitcnt vmcnt(3)")
        a("s_barrier")
        comp(2, xr=False); comp(3, xr=False)
        comp(0, xr=False); comp(1, xr=False)
        a("s_waitcnt vmcnt(0)")
        a("s_barrier")
        self.p1_epi_reads()
        a("s_waitcnt lgkmcnt(15)")
        mf(2, 0); mf(2, 1)
        a("s_waitcnt lgkmcnt(10)")
        mf(3, 0); mf(3, 1)

    def p1_parts(self, vmode):
        a = self.a
        def reads(ks):
            if self.o.get("nolds"): return
            a(f"ds_read_b128 v[{self.XF+4*ks}:{self.XF+4*ks+3}], v{self.XA+ks}")
            for i in range(2):
                for rd in range(2):
                    d = self.WF + 8 * ks + 4 * i + 2 * rd
                    a(f"ds_read_b64_tr_b16 v[{d}:{d+1}], v{self.WA+4*i+ks} offset:{16384+rd*1024}")
        def xors(ks):
            for r in (self.XA + ks, self.WA + ks, self.WA + 4 + ks): a(f"v_xor_b32 v{r}, v{self.VXM}, v{r}")
            if ks == 3: a(f"v_xor_b32 v{self.VXM}, 0x10000, v{self.VXM}")
        def mf(ks, i):
            x = vr(self.XF + 4 * ks, 4); wv = vr(self.WF + 8 * ks + 4 * i, 4); acc = vr(self.ACC + 16 * i, 16)
            if self.o.get("nomfma"): pass
            elif vmode: a(f"v_mfma_f32_32x32x16_bf16 {acc}, {x}, {wv}, {acc}")
            else: a(f"v_mfma_f32_32x32x16_bf16 {acc}, {wv}, {x}, {acc}")
        return reads, xors, mf

    def p1_loop1(self, vmode, B):
        a = self.a
        L = a.newlabel("p1loop")
        pos = self.o.get("barB" if B else "barA", "1" if B else "0")
        reads, xors, mf = self.p1_parts(vmode)
        def bar():
            a("s_waitcnt vmcnt(4)")
            if not self.o.get("nobar"): a("s_barrier")
            if self.o.get("its") == "1": self.stamp_dyn(54, self.sCNT)
        def comp(ks):
            n = (ks + 2) % 4
            if ks == 2 and pos == "0": bar()
            a("s_waitcnt lgkmcnt(5)")
            mf(ks, 0)
            if ks == 2 and pos == "1": bar()
            if ks == 2 and pos == "2":
                mf(ks, 1); bar(); reads(n)
            else:
                reads(n); mf(ks, 1)
            xors(n)
            self.p1_issue((n,))
        a("s_waitcnt vmcnt(7)")
        a("s_barrier")
        self.stamp(3)
        reads(0); reads(1); xors(0); xors(1)
        a("v_mov_b32 v6, 0x3f803f80")
        a("v_mov_b32 v2, 0")
        a("v_mov_b32 v3, 0")
        a("s_waitcnt lgkmcnt(5)")
        for k in range(4):
            for i in range(2): a(f"v_dot2_f32_bf16 v{2+i}, v{self.WF+4*i+k}, v6, v{2+i}")
        a("s_nop 2")
        a("v_permlane32_swap_b32 v2, v3")
        a("s_nop 0")
        a("v_add_f32 v2, v2, v3")
        a(f"ds_write_b32 v{self.CSW}, v2")
        a("s_waitcnt lgkmcnt(0)")
        a.align(6)
        a.label(L)
        comp(0); comp(1); comp(2)
        Lr = a.newlabel("back"); Ls = a.newlabel("side")
        a(f"s_add_u32 s{self.sCNT}, s{self.sCNT}, 1")
        a(f"s_cbranch_scc1 {Ls}")
        a.label(Lr)
        comp(3)
        a(f"s_cmp_lt_u32 s{self.sCNT}, {int(self.o.get('p1n', 10)) - 4}")
        a(f"s_cbranch_scc1 {L}")
        self._sides.append((Ls, Lr))

    def p1_sides(self):
        a = self.a
        for Ls, Lr in self._sides:
            a.label(Ls)
            self.nonce_get()
            a(f"s_cmp_lg_u32 s{self.sTG}, 0")
            a(f"s_cbranch_scc1 {Lr}")
            for k in range(4): a(f"ds_read_b32 v{2+k}, v95 offset:{512*k}")
            a(f"s_lshl_b32 s{T0}, s{self.sKC0}, 10")
            a("s_waitcnt lgkmcnt(0)")
            a("v_add_f32 v2, v2, v3")
            a("v_add_f32 v4, v4, v5")
            a(f"v_mov_b32 v3, s{S_NONCE}")
            a("v_add_f32 v2, v2, v4")
            a(f"buffer_store_dwordx2 v[2:3], v{self.CQA}, s[{SRD_WS}:{SRD_WS+3}], s{T0} offen sc1")
            a(f"s_branch {Lr}")

    def p1_gather(self):
        a = self.a
        a(f"buffer_load_dwordx4 v[{self.RS}:{self.RS+3}], v{self.RSA}, s[{SRD_WS}:{SRD_WS+3}], 0 offen sc1")
        a(f"s_movk_i32 s{T0}, 0x1000")
        a(f"s_movk_i32 s{T1}, 0x2000")
        for k in range(10):
            so = ("0", f"s{T0}", f"s{T1}")[k // 4]
            a(f"buffer_load_dwordx2 v[{self.CQ+2*k}:{self.CQ+2*k+1}], v{self.CQA}, s[{SRD_WS}:{SRD_WS+3}], {so} offen offset:{1024*(k%4)} sc1")

    def p1_epi_reads(self):
        a = self.a
        a(f"s_lshl_b32 s{T0}, s{self.sNH}, 9")
        a(f"s_add_u32 s{T0}, s{T0}, {self.CQ_SCR}")
        a(f"v_lshl_add_u32 v1, v0, 3, s{T0}")
        for k in range(10): a(f"ds_read_b64 v[{self.CQ+2*k}:{self.CQ+2*k+1}], v1 offset:{1024*k}")
        a(f"s_lshl_b32 s{T2}, s{S_W}, 9")
        a(f"s_add_u32 s{T2}, s{T2}, {self.P1_MISC+4096}")
        a(f"v_lshl_add_u32 v6, v0, 2, s{T2}")
        a("v_and_b32 v5, 31, v0")
        a(f"s_mov_b32 s{S_SPIN}, 0")

    def p1_epi_common(self):
        a = self.a
        L = a.newlabel("rs"); Ld = a.newlabel("rsd")
        a("s_waitcnt lgkmcnt(0)")
        a.label(L)
        a(f"v_xor_b32 v2, s{S_NONCE}, v{self.RS+1}")
        a(f"v_xor_b32 v3, s{S_NONCE}, v{self.RS+3}")
        for k in range(0, 10, 2):
            a(f"v_xor_b32 v4, s{S_NONCE}, v{self.CQ+2*k+1}")
            a(f"v_xor_b32 v7, s{S_NONCE}, v{self.CQ+2*k+3}")
            a("v_or3_b32 v2, v2, v4, v7")
        a("v_or_b32 v2, v2, v3")
        a("v_cmp_ne_u32 vcc, 0, v2")
        a(f"s_add_u32 s{S_SPIN}, s{S_SPIN}, 1")
        a("s_or_b64 vcc, vcc, vcc")
        a(f"s_cbranch_scc0 {Ld}")
        a(f"s_cmp_ge_u32 s{S_SPIN}, {SPIN_MAX}")
        a(f"s_cbranch_scc1 {Ld}")
        self.p1_gather()
        a("s_waitcnt vmcnt(0)")
        a(f"s_branch {L}")
        a.label(Ld)
        Q = self.CQ
        a(f"v_add_f32 v12, v{Q}, v{Q+2}")
        a(f"v_add_f32 v13, v{Q+4}, v{Q+6}")
        a(f"v_add_f32 v14, v{Q+8}, v{Q+10}")
        a(f"v_add_f32 v15, v{Q+12}, v{Q+14}")
        a(f"v_add_f32 v2, v{Q+16}, v{Q+18}")
        a("v_add_f32 v12, v12, v13")
        a("v_add_f32 v14, v14, v15")
        a("v_add_f32 v12, v12, v2")
        a("v_add_f32 v12, v12, v14")
        self.stamp(4)

    def rowstats(self):
        a = self.a
        X = 100
        a("v_lshrrev_b32 v1, 3, v0")
        a(f"s_lshl_b32 s{T0}, s{S_W}, 4")
        a(f"s_lshl_b32 s{T1}, s{self.sRB}, 7")
        a(f"s_add_u32 s{T0}, s{T0}, s{T1}")
        a(f"v_add_u32 v1, s{T0}, v1")
        a("v_mul_u32_u24 v2, 1280, v1")
        a("v_and_b32 v3, 7, v0")
        a("v_lshl_add_u32 v2, v3, 4, v2")
        a(f"s_mov_b32 s{T0}, 10240")
        a("v_mov_b32 v3, 0")
        a(f"buffer_load_dwordx2 v[{self.VN}:{self.VN+1}], v3, s[{SRD_DBG}:{SRD_DBG+3}], 0 offen sc1")
        for k in range(10):
            for hh in range(2):
                r = X + 8 * k + 4 * hh
                a(f"buffer_load_dwordx4 v[{r}:{r+3}], v2, s[{SRD_X}:{SRD_X+3}], {'s%d' % T0 if hh else '0'} offen offset:{128*k}")
        for r in range(4, 8): a(f"v_mov_b32 v{r}, 0")
        a("v_mov_b32 v8, 0x3f803f80")
        for k in range(10):
            a(f"s_waitcnt vmcnt({18-2*k})")
            for e in range(4):
                for hh in range(2):
                    r = X + 8 * k + 4 * hh + e
                    a(f"v_dot2_f32_bf16 v{4+hh}, v{r}, v8, v{4+hh}")
                    a(f"v_dot2_f32_bf16 v{6+hh}, v{r}, v{r}, v{6+hh}")
        a("s_nop 2")
        for ctl in ("quad_perm:[1,0,3,2]", "quad_perm:[2,3,0,1]", "row_half_mirror"):
            for r in range(4, 8): a(f"v_add_f32_dpp v{r}, v{r}, v{r} {ctl} row_mask:0xf bank_mask:0xf")
        self.nonce_get()
        a("v_and_b32 v3, 1, v0")
        a("v_cmp_ne_u32 vcc, 0, v3")
        a("v_lshlrev_b32 v3, 3, v3")
        a("v_add_u32 v1, v1, v3")
        a("v_cndmask_b32 v4, v4, v5, vcc")
        a("v_cndmask_b32 v6, v6, v7, vcc")
        a(f"v_mul_f32 v4, 0x%08x, v4" % f2u(1.0 / 640))
        a("v_mul_f32 v5, v4, v4")
        a(f"v_mov_b32 v7, 0x%08x" % f2u(1.0 / 640))
        a("v_fma_f32 v5, v6, v7, -v5")
        a("v_max_f32 v5, 0, v5")
        a(f"v_add_f32 v5, 0x%08x, v5" % f2u(1e-5))
        a("v_rsq_f32 v8, v5")
        a(f"v_mov_b32 v9, s{S_NONCE}")
        a(f"v_mov_b32 v11, s{S_NONCE}")
        a("v_mul_f32 v10, v4, v8")
        a("v_lshlrev_b32 v1, 4, v1")
        a(f"s_mov_b32 s{T0}, {WS_RS}")
        a("s_mov_b32 exec_lo, 0x03030303")
        a("s_mov_b32 exec_hi, 0x03030303")
        a(f"buffer_store_dwordx4 v[8:11], v1, s[{SRD_WS}:{SRD_WS+3}], s{T0} offen sc1")
        a("s_mov_b64 exec, -1")

    def p1_epi_q(self):
        a = self.a
        self.p1_epi_common()
        qs = math.log2(math.e) / math.sqrt(20.0)
        a("ds_write_b32 v6, v12")
        a("v_lshrrev_b32 v1, 5, v0")
        a(f"v_lshl_add_u32 v1, v1, 4, s{T2}")
        C = 48
        for i in range(2):
            for q4 in range(4):
                a(f"ds_read_b128 v[{C+16*i+4*q4}:{C+16*i+4*q4+3}], v1 offset:{i*128+q4*32}")
        a(f"s_cmp_lt_u32 s{self.sCT}, 5")
        a(f"s_cselect_b32 s{T1}, 0x%08x, 1.0" % f2u(qs))
        a(f"v_mul_f32 v2, s{T1}, v{self.RS}")
        a(f"v_mul_f32 v3, s{T1}, v{self.RS+2}")
        for i in range(2):
            for qq in range(2):
                a(f"s_waitcnt lgkmcnt({6-4*i-2*qq})")
                b = 16 * i + 8 * qq
                for r in range(8): a(f"v_mul_f32 v{self.ACC+b+r}, v2, v{self.ACC+b+r}")
                for r in range(8): a(f"v_fma_f32 v{self.ACC+b+r}, -v3, v{C+b+r}, v{self.ACC+b+r}")
                o = 4 + 4 * ((2 * i + qq) % 2)
                for r in range(4): a(f"v_cvt_pk_bf16_f32 v{o+r}, v{self.ACC+b+2*r}, v{self.ACC+b+2*r+1}")
                a(f"buffer_store_dwordx4 v[{o}:{o+3}], v{self.STA+2*i+qq}, s[{SRD_WS}:{SRD_WS+3}], 0 offen sc1")

    def p1_epi_v(self):
        a = self.a
        self.p1_epi_common()
        a("v_mov_b32 v13, v12")
        a(f"v_lshl_add_u32 v6, v5, 2, s{T2}")
        a("v_lshrrev_b32 v1, 5, v0")
        a("v_permlane32_swap_b32 v12, v13")
        a(f"ds_write_b32 v6, v{self.RS}")
        a(f"ds_write_b32 v6, v{self.RS+2} offset:128")
        a(f"v_lshl_add_u32 v6, v1, 4, s{T2}")
        C = 48
        for q4 in range(4):
            a(f"ds_read_b128 v[{C+4*q4}:{C+4*q4+3}], v6 offset:{q4*32}")
            a(f"ds_read_b128 v[{C+16+4*q4}:{C+16+4*q4+3}], v6 offset:{128+q4*32}")
        for grp in range(2):
            a(f"s_waitcnt lgkmcnt({4-4*grp})")
            for i in range(2):
                b = 16 * i + 8 * grp
                for r in range(8): a(f"v_mul_f32 v{self.ACC+b+r}, v{C+8*grp+r}, v{self.ACC+b+r}")
                for r in range(8): a(f"v_fma_f32 v{self.ACC+b+r}, -v{C+16+8*grp+r}, v{12+i}, v{self.ACC+b+r}")
                o = 4 + 4 * i
                for r in range(4): a(f"v_cvt_pk_bf16_f32 v{o+r}, v{self.ACC+b+2*r}, v{self.ACC+b+2*r+1}")
                a(f"buffer_store_dwordx4 v[{o}:{o+3}], v{self.STA+i}, s[{SRD_WS}:{SRD_WS+3}], 0 offen offset:{640*grp} sc1")

    def nonce_get(self):
        a = self.a
        a(f"s_mov_b32 s{S_SPIN}, 0")
        Lc = a.newlabel("nchk"); Lo = a.newlabel("nok")
        a.label(Lc)
        a(f"v_readfirstlane_b32 s{S_NONCE}, v{self.VN}")
        a(f"v_readfirstlane_b32 s{S_NONCE+1}, v{self.VN+1}")
        a(f"s_add_u32 s{S_SPIN}, s{S_SPIN}, 1")
        a(f"s_or_b32 s{T0}, s{S_NONCE}, s{S_NONCE+1}")
        a(f"s_cbranch_scc1 {Lo}")
        a(f"s_cmp_ge_u32 s{S_SPIN}, {SPIN_MAX}")
        a(f"s_cbranch_scc1 {Lo}")
        a("v_mov_b32 v94, 0")
        a(f"buffer_load_dwordx2 v[{self.VN}:{self.VN+1}], v94, s[{SRD_DBG}:{SRD_DBG+3}], 0 offen sc1")
        a("s_waitcnt vmcnt(0)")
        a(f"s_branch {Lc}")
        a.label(Lo)

    def phase1(self):
        a = self.a
        self.p1_setup_a()
        a(f"s_cmp_eq_u32 s{self.sCT}, 15")
        a("s_cbranch_scc0 L_p1_go")
        self.rowstats()
        a("s_branch L_p1_done")
        a.label("L_p1_go")
        self.p1_setup_b()
        a("v_mov_b32 v1, 0")
        a(f"buffer_load_dwordx2 v[{self.VN}:{self.VN+1}], v1, s[{SRD_DBG}:{SRD_DBG+3}], 0 offen sc1")
        self.p1_issue((1, 2, 3) if self.o.get("first5", "1") == "1" else (0, 1, 2, 3))
        self.p1_issue((0, 1))
        self.stamp(2)
        a(f"s_cmp_ge_u32 s{self.sCT}, 10")
        a("s_cbranch_scc1 L_p1_v")
        self.p1_loop(False)
        self.p1_epi_q()
        a("s_branch L_p1_done")
        self.p1_sides(); self._sides = []
        a.label("L_p1_v")
        self.p1_loop(True)
        self.p1_epi_v()
        a("s_branch L_p1_done")
        self.p1_sides()
        a.label("L_p1_done")
        self.stamp(5)
        a("s_waitcnt vmcnt(0)")
        self.stamp(6)
        a("s_barrier")
        a(f"s_lshl_b32 s{T0}, s{self.sCT}, 4")
        a(f"s_add_u32 s{T0}, s{T0}, s{self.sRB}")
        a(f"s_mul_i32 s{T0}, s{T0}, {FSP}")
        a(f"s_add_u32 s{T0}, s{T0}, {FL_1}")
        self.flag_store(T0, 2)
        self.stamp(7)
        a(f"s_cmp_eq_u32 s{S_W}, 0")
        a("s_cbranch_scc1 L_no_rls")
        self.relayout_setup()
        a.label("L_no_rls")
        if self.stop < 2:
            self.relayout_issue()
            a("s_waitcnt vmcnt(0)")
            self.relayout_finish()

    def build(self):
        a = self.a
        self.entry()
        self.phase1()
        if self.stop >= 2:
            from phases import phase2, phase3, phase4, phase5
            phase2(self)
            if self.stop >= 3: phase3(self)
            if self.stop >= 4: phase4(self)
            if self.stop >= 5: phase5(self)
        a("s_waitcnt vmcnt(0)")
        if self.o.get("fixend"):
            a.label("L_fixend")
            a("s_memrealtime s[100:101]")
            a("s_waitcnt lgkmcnt(0)")
            a(f"s_sub_u32 s100, s100, s{31 if self.o.get('fixown') else S_NONCE}")
            a(f"s_cmp_lt_u32 s100, {int(self.o['fixend'])*100}")
            a("s_cbranch_scc1 L_fixend")
        self.stamp(31)
        self.stamp_flush()
        a.label("L_end")
        a("s_endpgm")
        a.lines.append(f".fill {self.pad}, 4, 0xbf810000")
        body = a.text()
        errs = check(body)
        if errs:
            sys.stderr.write("\n".join(errs[:40]) + "\n%d hazards\n" % len(errs))
            raise SystemExit(1)
        head = f"""; Fused preLN -> MHA -> residual -> preLN -> SiLU FFN -> residual, one persistent launch.
; @launch grid=(256,1,1) block=(512,1,1) lds={LDS_BYTES}
.amdgcn_target "amdgcn-amd-amdhsa--gfx950"
.text
.globl {NAME}_kernel
.p2align 8
.type {NAME}_kernel,@function
{NAME}_kernel:
"""
        tail = f""".section .rodata,"a"
.p2align 6
.amdhsa_kernel {NAME}_kernel
  .amdhsa_next_free_vgpr 256
  .amdhsa_next_free_sgpr 102
  .amdhsa_accum_offset 256
  .amdhsa_group_segment_fixed_size 0
  .amdhsa_kernarg_size 72
  .amdhsa_user_sgpr_count 2
  .amdhsa_user_sgpr_kernarg_segment_ptr 1
  .amdhsa_system_sgpr_workgroup_id_x 1
.end_amdhsa_kernel
"""
        return head + body + tail

if __name__ == "__main__":
    stop = int(sys.argv[2]) if len(sys.argv) > 2 else 99
    opts = dict(kv.split("=") for kv in sys.argv[3:])
    import subprocess
    def asm_size(path):
        r = subprocess.run(["clang", "-x", "assembler", "-target", "amdgcn-amd-amdhsa", "-mcpu=gfx950", "-c", path, "-o", "_chk.o"], capture_output=True, text=True)
        if r.returncode: print(r.stderr[:1500]); raise SystemExit(1)
        r = subprocess.run(["llvm-readelf", "-S", "_chk.o"], capture_output=True, text=True)
        return int([l for l in r.stdout.split("\n") if ".text" in l][0].split()[6], 16)
    open(sys.argv[1], "w").write(K(stop, opts).build())
    n = asm_size(sys.argv[1])
    k = K(stop, opts)
    k.CPF_LINES = (n + 4095) // 4096
    k.pad = (k.CPF_LINES * 4096 - n) // 4 + 16
    open(sys.argv[1], "w").write(k.build())
    print(sys.argv[1], "code bytes:", n, "with pad:", asm_size(sys.argv[1]))
```

```python
import sys, math
from asmlib import Asm, vr, sr, f2u, check
from tables import *

NAME = "sequential_preLN__mha_block__dense_activation_silu__prompt"
LDS_BYTES = 163840
SPIN_MAX = 20000

S_G = 2
SRD_X, SRD_WQ, SRD_WS, SRD_OUT, SRD_DBG, SRD_RL = 4, 8, 12, 16, 20, 24
S_W, S_C, S_J = 28, 29, 30
S_NONCE = 32
S_PTR = 36
T0, T1, T2, T3, T4, T5 = 54, 55, 56, 57, 58, 59
S_M1 = 60
S_SPIN = 62

class K:
    def __init__(self, stop_after=99, opts=None):
        self.a = Asm()
        self.stop = stop_after
        self.o = opts or {}
        self.pad = 0
        self._sides = []

    def srd(self, d, ptr, nbytes):
        a = self.a
        a(f"s_mov_b32 s{d}, s{ptr}")
        a(f"s_and_b32 s{d+1}, s{ptr+1}, 0xffff")
        a(f"s_mov_b32 s{d+2}, {nbytes}")
        a(f"s_mov_b32 s{d+3}, 0x20000")

    def stamp(self, idx):
        if not self.o.get("stamps"): return
        if self.o["stamps"] == "min" and idx not in (0, 9, 10, 31): return
        a = self.a
        a("s_memrealtime s[100:101]")
        a("s_waitcnt lgkmcnt(0)")
        a(f"v_writelane_b32 v255, s100, {idx}")
        if idx < 22 and self.o["stamps"] != "min":
            a("s_memtime s[100:101]")
            a("s_waitcnt lgkmcnt(0)")
            a(f"v_writelane_b32 v255, s100, {idx+32}")

    def stamp_dyn(self, base, sreg):
        if not self.o.get("its"): return
        a = self.a
        a("s_memtime s[100:101]")
        a("s_mov_b32 s99, m0")
        a(f"s_add_u32 m0, s{sreg}, {base}")
        a("s_waitcnt lgkmcnt(0)")
        a("v_writelane_b32 v255, s100, m0")
        a("s_mov_b32 m0, s99")

    def stamp_flush(self):
        if not self.o.get("stamps"): return
        a = self.a
        if self.o.get("dbgwg"):
            L = a.newlabel("dbg")
            a(f"s_cmp_lg_u32 s{S_G}, {int(self.o['dbgwg'])}")
            a(f"s_cbranch_scc1 {L}")
            a(f"s_cmp_lg_u32 s{S_W}, 0")
            a(f"s_cbranch_scc1 {L}")
            a(f"v_readlane_b32 s{T1}, v255, 0")
            for n, i in enumerate((3, 4, 7, 8, 9, 10, 12, 13, 15, 16, 18, 19, 31)):
                a(f"v_readlane_b32 s{T0}, v255, {i}")
                a("s_nop 3")
                a(f"s_sub_u32 s{T0}, s{T0}, s{T1}")
                a(f"v_mov_b32 v1, s{T0}")
                a(f"v_mov_b32 v2, {8+4*n}")
                a(f"buffer_store_dword v1, v2, s[{SRD_DBG}:{SRD_DBG+3}], 0 offen")
            a.label(L)
            return
        a(f"s_lshl_b32 s{T0}, s{S_G}, 3")
        a(f"s_add_u32 s{T0}, s{T0}, s{S_W}")
        a(f"s_lshl_b32 s{T0}, s{T0}, 8")
        a(f"s_add_u32 s{T0}, s{T0}, {WS_SIZE}")
        a("v_lshlrev_b32 v1, 2, v0")
        a(f"buffer_store_dword v255, v1, s[{SRD_WS}:{SRD_WS+3}], s{T0} offen")
        a("s_mov_b64 exec, -1")

    def diag(self, what):
        if self.o.get("diag") == what: self.a("s_mov_b32 s35, 1")

    def dma(self, voff, srd, soff, flags=""):
        if self.o.get("nodma"): return
        self.a(f"buffer_load_dwordx4 v{voff}, s[{srd}:{srd+3}], {soff} offen {flags} lds".replace("  ", " "))

    def flag_store(self, s_off, vt, pol="sc1"):
        a = self.a
        L = a.newlabel("nofl")
        a(f"s_cmp_lg_u32 s{S_W}, 0")
        a(f"s_cbranch_scc1 {L}")
        a(f"v_mov_b32 v{vt}, s{S_NONCE}")
        a(f"v_mov_b32 v{vt+1}, s{S_NONCE+1}")
        a(f"v_mov_b32 v{vt+2}, 0")
        a("s_mov_b64 exec, 1")
        a(f"buffer_store_dwordx2 v[{vt}:{vt+1}], v{vt+2}, s[{SRD_WS}:{SRD_WS+3}], s{s_off} offen {pol}")
        a("s_mov_b64 exec, -1")
        a.label(L)

    def poll(self, n, s_off, spacing, vt, only_wave0=True):
        a = self.a
        L = a.newlabel("poll"); Ld = a.newlabel("polld")
        if only_wave0:
            a(f"s_cmp_lg_u32 s{S_W}, 0")
            a(f"s_cbranch_scc1 {Ld}")
        a(f"s_mov_b32 s{S_SPIN}, 0")
        if n == 256:
            assert spacing == 8
            a(f"v_lshlrev_b32 v{vt+8}, 4, v0")
            a.label(L)
            a(f"buffer_load_dwordx4 v[{vt}:{vt+3}], v{vt+8}, s[{SRD_WS}:{SRD_WS+3}], s{s_off} offen sc1")
            a(f"buffer_load_dwordx4 v[{vt+4}:{vt+7}], v{vt+8}, s[{SRD_WS}:{SRD_WS+3}], s{s_off} offen offset:1024 sc1")
            a(f"s_add_u32 s{S_SPIN}, s{S_SPIN}, 1")
            a("s_waitcnt vmcnt(0)")
            a(f"v_cmp_ne_u64 vcc, s[{S_NONCE}:{S_NONCE+1}], v[{vt}:{vt+1}]")
            a(f"v_cmp_ne_u64 s[{S_M1}:{S_M1+1}], s[{S_NONCE}:{S_NONCE+1}], v[{vt+2}:{vt+3}]")
            a("s_nop 0")
            a(f"s_or_b64 s[{T4}:{T5}], vcc, s[{S_M1}:{S_M1+1}]")
            a(f"v_cmp_ne_u64 vcc, s[{S_NONCE}:{S_NONCE+1}], v[{vt+4}:{vt+5}]")
            a(f"v_cmp_ne_u64 s[{S_M1}:{S_M1+1}], s[{S_NONCE}:{S_NONCE+1}], v[{vt+6}:{vt+7}]")
            a("s_nop 0")
            a(f"s_or_b64 s[{T4}:{T5}], s[{T4}:{T5}], vcc")
            a(f"s_or_b64 s[{T4}:{T5}], s[{T4}:{T5}], s[{S_M1}:{S_M1+1}]")
        else:
            a(f"v_and_b32 v{vt+2}, {n-1}, v0")
            a(f"v_mul_u32_u24 v{vt+2}, {spacing}, v{vt+2}")
            a.label(L)
            a(f"buffer_load_dwordx2 v[{vt}:{vt+1}], v{vt+2}, s[{SRD_WS}:{SRD_WS+3}], s{s_off} offen sc1")
            a(f"s_add_u32 s{S_SPIN}, s{S_SPIN}, 1")
            a("s_waitcnt vmcnt(0)")
            a(f"v_cmp_ne_u64 vcc, s[{S_NONCE}:{S_NONCE+1}], v[{vt}:{vt+1}]")
            a("s_nop 0")
            a(f"s_or_b64 s[{T4}:{T5}], vcc, vcc")
        a(f"s_cbranch_scc0 {Ld}")
        a(f"s_cmp_lt_u32 s{S_SPIN}, {SPIN_MAX}")
        a(f"s_cbranch_scc1 {L}")
        a.label(Ld)

    def poll2(self, va, vb, s_off, vt):
        a = self.a
        L = a.newlabel("poll"); Ld = a.newlabel("polld")
        N = f"s[{S_NONCE}:{S_NONCE+1}]"
        a(f"s_cmp_lg_u32 s{S_W}, 0")
        a(f"s_cbranch_scc1 {Ld}")
        a(f"s_mov_b32 s{S_SPIN}, 0")
        a.label(L)
        a(f"buffer_load_dwordx2 v[{vt}:{vt+1}], v{va}, s[{SRD_WS}:{SRD_WS+3}], s{s_off} offen sc1")
        a(f"buffer_load_dwordx2 v[{vt+2}:{vt+3}], v{vb}, s[{SRD_WS}:{SRD_WS+3}], s{s_off} offen sc1")
        a(f"s_add_u32 s{S_SPIN}, s{S_SPIN}, 1")
        a("s_waitcnt vmcnt(0)")
        a(f"v_cmp_ne_u64 vcc, {N}, v[{vt}:{vt+1}]")
        a(f"v_cmp_ne_u64 s[{S_M1}:{S_M1+1}], {N}, v[{vt+2}:{vt+3}]")
        a("s_nop 0")
        a(f"s_or_b64 vcc, vcc, s[{S_M1}:{S_M1+1}]")
        a(f"s_cbranch_scc0 {Ld}")
        a(f"s_cmp_lt_u32 s{S_SPIN}, {SPIN_MAX}")
        a(f"s_cbranch_scc1 {L}")
        a.label(Ld)

    def entry(self):
        a = self.a
        a(f"s_cmp_ge_u32 s{S_G}, 256")
        a("s_cbranch_scc1 L_end")
        a(f"s_load_dwordx16 s[{S_PTR}:{S_PTR+15}], s[0:1], 0")
        a(f"s_load_dwordx2 s[{S_PTR+16}:{S_PTR+17}], s[0:1], 64")
        a(f"s_memrealtime s[{S_NONCE}:{S_NONCE+1}]")
        if self.o.get("stamps"): a("v_mov_b32 v255, 0")
        self.stamp(0)
        a("v_lshrrev_b32 v1, 6, v0")
        a("v_and_b32 v0, 63, v0")
        a(f"v_readfirstlane_b32 s{S_W}, v1")
        a(f"s_and_b32 s{S_C}, s{S_G}, 7")
        a(f"s_lshr_b32 s{S_J}, s{S_G}, 3")

    ACC = 16; XF = 160; WF = 176; XA = 72; WA = 144; DXA, DXB, DW = 78, 79, 80; VXM = 76
    ONES = 82
    CQ = 96
    CQA = 81; CSW = 85
    RSA, RS = 84, 128
    STA = 86
    RLV, RLA = 157, 158
    VN = 92
    sRB, sCT, sKC, sXO, sWO, sSLOT, sCNT, sXM, sTG, sNH = 64, 65, 66, 67, 68, 69, 70, 71, 72, 73
    sTAB = 74
    sM0X = 80; sWO2 = 81; sKC0 = 82; sSIDE = 83; sI1 = 71; sI2 = 34; sSM = 35
    sRL = 84
    P1_MISC = 148 * 1024
    RL_SCR = 68 * 1024
    CQ_SCR = 128 * 1024
    DUMMY = 159 * 1024
    CPF_LINES = 8

    def p1_issue(self, pieces=(0, 1, 2, 3)):
        a = self.a
        if 0 in pieces:
            a(f"s_add_u32 m0, s{self.sM0X}, s{self.sSLOT}")
            a(f"s_add_u32 s{self.sKC}, s{self.sKC}, 1")
            self.dma(self.DXA, SRD_X, f"s{self.sXO}")
        if 1 in pieces:
            a("s_add_u32 m0, m0, 16384")
            a(f"s_add_u32 s{self.sWO2}, s{self.sWO}, 15360")
            self.dma(self.DW, SRD_WQ, f"s{self.sWO}")
        if 2 in pieces:
            a("s_sub_u32 m0, m0, 15360")
            a(f"s_add_u32 s{self.sWO}, s{self.sWO}, 245760")
            self.dma(self.DXB, SRD_X, f"s{self.sXO}")
        if 3 in pieces:
            a("s_add_u32 m0, m0, 16384")
            a(f"s_add_u32 s{self.sXO}, s{self.sXO}, 128")
            self.dma(self.DW, SRD_WQ, f"s{self.sWO2}")
            a(f"s_cmp_eq_u32 s{self.sKC}, 10")
            a(f"s_cselect_b32 s{T0}, 1280, 0")
            a(f"s_cselect_b32 s{T1}, 2457600, 0")
            a(f"s_cselect_b32 s{self.sKC}, 0, s{self.sKC}")
            a(f"s_sub_u32 s{self.sXO}, s{self.sXO}, s{T0}")
            a(f"s_sub_u32 s{self.sWO}, s{self.sWO}, s{T1}")
            a(f"s_add_u32 s{self.sSLOT}, s{self.sSLOT}, 32768")
            a(f"s_and_b32 s{self.sSLOT}, s{self.sSLOT}, 0x1ffff")

    def p1_setup_a(self):
        a = self.a
        a(f"s_lshr_b32 s{T0}, s{S_C}, 1")
        a(f"s_lshl_b32 s{T0}, s{T0}, 2")
        a(f"s_lshr_b32 s{T1}, s{S_J}, 3")
        a(f"s_add_u32 s{self.sRB}, s{T0}, s{T1}")
        a(f"s_and_b32 s{T0}, s{S_C}, 1")
        a(f"s_lshl_b32 s{T0}, s{T0}, 3")
        a(f"s_and_b32 s{T2}, s{S_J}, 7")
        a(f"s_add_u32 s{self.sCT}, s{T0}, s{T2}")
        g = int(self.o.get("rotg", 4))
        if g == 8:
            a(f"s_lshl_b32 s{T1}, s{T1}, 1")
            a(f"s_add_u32 s{self.sKC}, s{T2}, s{T1}")
            a(f"s_bfe_u32 s{T0}, s{S_C}, 0x10001")
            a(f"s_and_b32 s{T1}, s{S_C}, 4")
            a(f"s_lshl_b32 s{T1}, s{T1}, 1")
            a(f"s_add_u32 s{T0}, s{T0}, s{T1}")
            a(f"s_add_u32 s{self.sKC}, s{self.sKC}, s{T0}")
        else:
            bases, offs, shift = {3: ((0, 3, 7), (0, 1, 2, 6), 0), 4: ((0, 2, 5, 7), (0, 1, 2, 3), 0), 5: ((0, 2, 4, 6, 8), (0, 1, 0, 1), 1)}[g]
            a(f"s_add_u32 s{T1}, s{T1}, s{T2}")
            a(f"s_lshr_b32 s{T0}, s{S_C}, 1")
            if shift: a(f"s_add_u32 s{T1}, s{T1}, s{T0}")
            tab = sum(bases[i % g] << (4 * i) for i in range(16))
            a(f"s_lshl_b32 s{T1}, s{T1}, 2")
            a(f"s_mov_b32 s{T4}, 0x{tab & 0xffffffff:08x}")
            a(f"s_mov_b32 s{T5}, 0x{tab >> 32:08x}")
            a(f"s_lshr_b64 s[{T4}:{T5}], s[{T4}:{T5}], s{T1}")
            a(f"s_and_b32 s{self.sKC}, s{T4}, 15")
            a(f"s_lshl_b32 s{T0}, s{T0}, 2")
            a(f"s_lshr_b32 s{T0}, 0x{sum(o << (4 * i) for i, o in enumerate(offs)):04x}, s{T0}")
            a(f"s_and_b32 s{T0}, s{T0}, 15")
            a(f"s_add_u32 s{self.sKC}, s{self.sKC}, s{T0}")
            for ct in range(8):
                assert len({(bases[(ct + rl + shift * aa) % g] + offs[aa]) % 10 for aa in range(4) for rl in range(4)}) == 10
        a(f"s_mul_i32 s{T0}, s{self.sKC}, 26")
        a(f"s_lshr_b32 s{T0}, s{T0}, 8")
        a(f"s_mul_i32 s{T0}, s{T0}, 10")
        a(f"s_sub_u32 s{self.sKC}, s{self.sKC}, s{T0}")
        a(f"s_mov_b32 s{self.sKC0}, s{self.sKC}")
        a(f"s_mul_i32 s{self.sXO}, s{self.sRB}, 163840")
        a(f"s_lshl_b32 s{T0}, s{self.sKC}, 7")
        a(f"s_add_u32 s{self.sXO}, s{self.sXO}, s{T0}")
        a(f"s_mul_i32 s{self.sWO}, s{self.sKC}, 245760")
        a(f"s_lshl_b32 s{T0}, s{self.sCT}, 8")
        a(f"s_add_u32 s{self.sWO}, s{self.sWO}, s{T0}")
        a(f"s_lshl_b32 s{self.sM0X}, s{S_W}, 11")
        a(f"s_mov_b32 s{self.sSLOT}, 0")
        a(f"s_mov_b64 s[{SRD_RL}:{SRD_RL+1}], 0")
        a(f"s_mov_b32 s{SRD_RL+2}, 0")
        a(f"s_mov_b32 s{SRD_RL+3}, 0x20000")
        a(f"v_mov_b32 v{self.RLV}, 0")
        a("v_lshrrev_b32 v1, 3, v0")
        a("v_lshrrev_b32 v2, 4, v0")
        a("v_and_b32 v3, 7, v0")
        a("v_xor_b32 v3, v3, v2")
        a(f"s_lshl_b32 s{T0}, s{S_W}, 4")
        a(f"v_add_u32 v4, s{T0}, v1")
        a("v_mul_u32_u24 v4, 1280, v4")
        a(f"v_lshl_add_u32 v{self.DXA}, v3, 4, v4")
        a(f"v_xor_b32 v{self.DXB}, 64, v{self.DXA}")
        a(f"v_add_u32 v{self.DXB}, 10240, v{self.DXB}")
        a("v_lshlrev_b32 v3, 2, v2")
        a("v_and_b32 v4, 15, v0")
        a("v_xor_b32 v3, v3, v4")
        a(f"s_lshl_b32 s{T0}, s{S_W}, 3")
        a(f"v_add_u32 v4, s{T0}, v2")
        a("v_mul_u32_u24 v4, 3840, v4")
        a(f"v_lshl_add_u32 v{self.DW}, v3, 4, v4")
        a("s_waitcnt lgkmcnt(0)")
        if self.o.get("fixown"): a(f"s_mov_b32 s31, s{S_NONCE}")
        if self.o.get("diag"): a("s_mov_b32 s35, 0")
        self.srd(SRD_X, S_PTR + 0, 2048 * 1280)
        self.srd(SRD_WQ, S_PTR + 2, 640 * 3840)
        a(f"s_cmp_eq_u32 s{self.sCT}, 15")
        a("s_cbranch_scc1 L_p1_noissue")
        self.p1_issue()
        if self.o.get("first5", "1") == "1": self.p1_issue((0,))
        a.label("L_p1_noissue")
        self.stamp(1)
        self.srd(SRD_WS, S_PTR + 16, WS_SIZE + ((1 << 20) if self.o.get("stamps") else 0))
        self.srd(SRD_OUT, S_PTR + 12, 2048 * 1280)
        self.srd(SRD_DBG, S_PTR + 14, 256)
        if self.o.get("cpf", "1") == "1":
            Lc = a.newlabel("cpf")
            a(f"s_cmp_lg_u32 s{S_W}, 7")
            a(f"s_cbranch_scc1 {Lc}")
            a(f"s_getpc_b64 s[{T4}:{T5}]")
            a.label("L_pc_here")
            a(f"s_mul_i32 s{T0}, s{S_J}, {self.CPF_LINES*128}")
            a(f"s_sub_u32 s{T0}, s{T0}, L_pc_here-{NAME}_kernel")
            a(f"v_min_u32 v3, {self.CPF_LINES-1}, v0")
            a(f"v_lshl_add_u32 v3, v3, 7, s{T0}")
            a("v_ashrrev_i32 v5, 31, v3")
            a(f"v_mov_b32 v6, s{T5}")
            a(f"v_add_co_u32 v4, vcc, s{T4}, v3")
            a("s_nop 1")
            a("v_addc_co_u32 v5, vcc, v5, v6, vcc")
            a("global_load_dword v254, v[4:5], off")
            a.label(Lc)
        a(f"s_or_b32 s{T0}, s{S_G}, s{S_W}")
        a("s_cbranch_scc1 L_nonce_done")
        a("v_mov_b32 v3, 0")
        a(f"v_mov_b32 v4, s{S_NONCE}")
        a(f"v_mov_b32 v5, s{S_NONCE+1}")
        a("s_mov_b64 exec, 1")
        a(f"buffer_store_dwordx2 v[4:5], v3, s[{SRD_DBG}:{SRD_DBG+3}], 0 offen sc1")
        a("s_mov_b64 exec, -1")
        a.label("L_nonce_done")

    def relayout_setup(self):
        a = self.a
        R = self.sRL
        u = a.newlabel("u")
        sID, sKS, sCB, sST, sA, sB, sCc, sD = T0, T1, T2, T3, 93, 94, 95, 96
        sBase, sSl, sKsS = 97, 98, 99
        a(f"s_mul_i32 s{sID}, s{S_G}, 5")
        a(f"s_add_u32 s{sID}, s{sID}, s{S_W}")
        a(f"s_sub_u32 s{sID}, s{sID}, 1")
        a(f"s_min_u32 s{sID}, s{sID}, 1279")
        a(f"s_mov_b32 s{sA}, 16")
        a(f"s_mov_b32 s{sB}, 8")
        a(f"s_mov_b32 s{sCc}, 4")
        a(f"s_mov_b32 s{SRD_RL+3}, 0x20000")
        a(f"s_mov_b32 s{R+8}, -1")
        a(f"s_cmp_lt_u32 s{sID}, 200")
        a(f"s_cbranch_scc1 L_rl_wo{u}")
        a(f"s_cmp_lt_u32 s{sID}, 740")
        a(f"s_cbranch_scc1 L_rl_w1{u}")
        a(f"s_sub_u32 s{sID}, s{sID}, 740")
        a(f"s_mul_i32 s{sKS}, s{sID}, 6554")
        a(f"s_lshr_b32 s{sKS}, s{sKS}, 16")
        a(f"s_mul_i32 s{sCB}, s{sKS}, 10")
        a(f"s_sub_u32 s{sCB}, s{sID}, s{sCB}")
        a(f"s_lshl_b32 s{sD}, s{sKS}, 5")
        a(f"s_mov_b32 s{SRD_RL}, s{S_PTR+10}")
        a(f"s_and_b32 s{SRD_RL+1}, s{S_PTR+11}, 0xffff")
        a(f"s_mov_b32 s{SRD_RL+2}, {1728*1280}")
        a(f"s_mov_b32 s{sBase}, {WS_W2}")
        a(f"s_mov_b32 s{sSl}, {54*5120}")
        a(f"s_add_u32 s{T4}, s{sKS}, 3")
        a(f"s_cmp_ge_u32 s{sKS}, 24")
        a(f"s_cselect_b32 s{T4}, s{T4}, s{sKS}")
        a(f"s_sub_u32 s{T5}, s{sKS}, 24")
        a(f"s_cmp_ge_u32 s{sKS}, 48")
        a(f"s_cselect_b32 s{T4}, s{T5}, s{T4}")
        a(f"s_cmp_ge_u32 s{sKS}, 51")
        a(f"s_cselect_b32 s{sKS}, s{sKS}, s{T4}")
        a(f"s_branch L_rl_n640{u}")
        a.label(f"L_rl_wo{u}")
        a(f"s_mul_i32 s{sKS}, s{sID}, 6554")
        a(f"s_lshr_b32 s{sKS}, s{sKS}, 16")
        a(f"s_mul_i32 s{sCB}, s{sKS}, 10")
        a(f"s_sub_u32 s{sCB}, s{sID}, s{sCB}")
        a(f"s_mul_i32 s{sD}, s{sKS}, 40")
        a(f"s_mul_i32 s{sST}, s{sKS}, 160")
        a(f"s_sub_u32 s{sST}, s{sST}, {160*16-16}")
        a(f"s_cmp_lt_u32 s{sKS}, 16")
        a(f"s_cselect_b32 s{sD}, s{sD}, s{sST}")
        a(f"s_cselect_b32 s{sA}, 8, 20")
        a(f"s_cselect_b32 s{sB}, 20, 0x50")
        a(f"s_cselect_b32 s{sCc}, 4, 40")
        a(f"s_mov_b32 s{SRD_RL}, s{S_PTR+4}")
        a(f"s_and_b32 s{SRD_RL+1}, s{S_PTR+5}, 0xffff")
        a(f"s_mov_b32 s{SRD_RL+2}, {640*1280}")
        a(f"s_mov_b32 s{sBase}, {WS_WO}")
        a(f"s_mov_b32 s{sSl}, {20*5120}")
        a(f"s_add_u32 s{T4}, s{sKS}, 2")
        a(f"s_cmp_ge_u32 s{sKS}, 8")
        a(f"s_cselect_b32 s{T4}, s{T4}, s{sKS}")
        a(f"s_sub_u32 s{T5}, s{sKS}, 8")
        a(f"s_cmp_ge_u32 s{sKS}, 16")
        a(f"s_cselect_b32 s{T4}, s{T5}, s{T4}")
        a(f"s_cmp_ge_u32 s{sKS}, 18")
        a(f"s_cselect_b32 s{sKS}, s{sKS}, s{T4}")
        a(f"s_sub_u32 s{T4}, s{sKS}, 1")
        a(f"s_cmp_ge_u32 s{sKS}, 10")
        a(f"s_cselect_b32 s{T4}, s{T4}, s{sKS}")
        a(f"s_cmp_eq_u32 s{sKS}, 9")
        a(f"s_cselect_b32 s{T4}, 18, s{T4}")
        a(f"s_cmp_eq_u32 s{sKS}, 19")
        a(f"s_cselect_b32 s{sKS}, 19, s{T4}")
        a.label(f"L_rl_n640{u}")
        a(f"s_mov_b32 s{sST}, 1280")
        a(f"s_mul_i32 s{sKsS}, s{sKS}, 5120")
        a(f"s_add_u32 s{sBase}, s{sBase}, s{sKsS}")
        for t in range(4):
            a(f"s_lshl_b32 s{T4}, s{sCB}, 2")
            a(f"s_add_u32 s{T4}, s{T4}, {t}")
            a(f"s_mul_i32 s{T5}, s{T4}, 52")
            a(f"s_lshr_b32 s{T5}, s{T5}, 8")
            a(f"s_mul_i32 s{R+4+t}, s{T5}, s{sSl}")
            a(f"s_mul_i32 s{T5}, s{T5}, 5")
            a(f"s_sub_u32 s{T4}, s{T4}, s{T5}")
            a(f"s_lshl_b32 s{T4}, s{T4}, 10")
            a(f"s_add_u32 s{R+4+t}, s{R+4+t}, s{T4}")
            a(f"s_add_u32 s{R+4+t}, s{R+4+t}, s{sBase}")
        a(f"s_branch L_rl_common{u}")
        a.label(f"L_rl_w1{u}")
        a(f"s_sub_u32 s{sID}, s{sID}, 200")
        a(f"s_mul_i32 s{sKS}, s{sID}, 2428")
        a(f"s_lshr_b32 s{sKS}, s{sKS}, 16")
        a(f"s_mul_i32 s{sCB}, s{sKS}, 27")
        a(f"s_sub_u32 s{sCB}, s{sID}, s{sCB}")
        a(f"s_lshr_b32 s{T4}, s{sKS}, 1")
        a(f"s_mul_i32 s{T4}, s{T4}, 0x50")
        a(f"s_and_b32 s{T5}, s{sKS}, 1")
        a(f"s_lshl_b32 s{T5}, s{T5}, 5")
        a(f"s_add_u32 s{sD}, s{T4}, s{T5}")
        a(f"s_mul_i32 s{T4}, s{sKS}, 160")
        a(f"s_sub_u32 s{T4}, s{T4}, {160*16-64}")
        a(f"s_cmp_lt_u32 s{sKS}, 16")
        a(f"s_cselect_b32 s{sD}, s{sD}, s{T4}")
        a(f"s_cselect_b32 s{sA}, 16, 0x50")
        a(f"s_mov_b32 s{SRD_RL}, s{S_PTR+8}")
        a(f"s_and_b32 s{SRD_RL+1}, s{S_PTR+9}, 0xffff")
        a(f"s_mov_b32 s{SRD_RL+2}, {640*3456}")
        a(f"s_mov_b32 s{sST}, 3456")
        a(f"s_mul_i32 s{sKsS}, s{sKS}, 7168")
        a(f"s_add_u32 s{sBase}, s{sKsS}, {WS_W1}")
        a(f"s_mul_i32 s{R+8}, s{sKS}, {1728*4}")
        a(f"s_lshl_b32 s{T4}, s{sCB}, 8")
        a(f"s_add_u32 s{R+8}, s{R+8}, s{T4}")
        a(f"s_add_u32 s{R+8}, s{R+8}, {WS_CS1}")
        for t in range(4):
            a(f"s_lshl_b32 s{T4}, s{sCB}, 2")
            a(f"s_add_u32 s{T4}, s{T4}, {t}")
            a(f"s_mul_i32 s{T5}, s{T4}, 43")
            a(f"s_lshr_b32 s{T5}, s{T5}, 8")
            a(f"s_mul_i32 s{sSl}, s{T5}, 6")
            a(f"s_sub_u32 s{sSl}, s{T4}, s{sSl}")
            a(f"s_sub_u32 s{sKsS}, s{T4}, 96")
            a(f"s_cmp_lt_u32 s{T4}, 96")
            a(f"s_cselect_b32 s{T5}, s{T5}, s{sKsS}")
            a(f"s_cselect_b32 s{sSl}, s{sSl}, 6")
            a(f"s_mul_i32 s{R+4+t}, s{T5}, {20*7168}")
            a(f"s_lshl_b32 s{sSl}, s{sSl}, 10")
            a(f"s_add_u32 s{R+4+t}, s{R+4+t}, s{sSl}")
            a(f"s_add_u32 s{R+4+t}, s{R+4+t}, s{sBase}")
        a.label(f"L_rl_common{u}")
        a(f"s_mul_i32 s{sD}, s{sD}, s{sST}")
        a(f"s_lshl_b32 s{T4}, s{sCB}, 7")
        a(f"s_add_u32 s{R}, s{sD}, s{T4}")
        a(f"s_mul_i32 s{sA}, s{sA}, s{sST}")
        a(f"s_mul_i32 s{sB}, s{sB}, s{sST}")
        a(f"s_add_u32 s{R+1}, s{R}, s{sB}")
        a(f"s_add_u32 s{R+2}, s{R}, s{sA}")
        a(f"s_add_u32 s{R+3}, s{R+2}, s{sB}")
        a("v_lshrrev_b32 v1, 5, v0")
        a(f"v_mul_u32_u24 v1, s{sCc}, v1")
        a("v_bfe_u32 v2, v0, 3, 2")
        a("v_add_u32 v1, v1, v2")
        a(f"v_mul_u32_u24 v1, s{sST}, v1")
        a("v_and_b32 v2, 7, v0")
        a(f"v_lshl_add_u32 v{self.RLV}, v2, 4, v1")
        a("v_lshrrev_b32 v1, 2, v0")
        a("v_lshlrev_b32 v1, 7, v1")
        a("v_and_b32 v2, 3, v0")
        a("v_lshl_add_u32 v1, v2, 3, v1")
        a(f"s_lshl_b32 s{T4}, s{S_W}, 12")
        a(f"s_add_u32 s{T4}, s{T4}, {self.RL_SCR-4096}")
        a(f"v_add_u32 v{self.RLA}, s{T4}, v1")

    def relayout_issue(self, drain_older=False):
        a = self.a
        L = a.newlabel("rlsk")
        a(f"s_sub_u32 s{T0}, s{S_W}, 1")
        a(f"s_cmp_ge_u32 s{T0}, {0 if self.o.get('norl') else 5}")
        a(f"s_cbranch_scc1 {L}")
        a(f"s_lshl_b32 s{T0}, s{S_W}, 12")
        a(f"s_add_u32 m0, s{T0}, {self.RL_SCR-4096}")
        for i in range(4):
            if i: a("s_add_u32 m0, m0, 1024")
            a("s_nop 0")
            self.dma(self.RLV, SRD_RL, f"s{self.sRL+i}")
        if drain_older:
            L2 = a.newlabel("rlw")
            a("s_waitcnt vmcnt(4)")
            a(f"s_branch {L2}")
            a.label(L)
            a("s_waitcnt vmcnt(0)")
            a.label(L2)
        else:
            a.label(L)

    def relayout_finish(self, younger=None):
        a = self.a
        L = a.newlabel("rlsk"); F = 168; t = 184
        a(f"s_sub_u32 s{T0}, s{S_W}, 1")
        a(f"s_cmp_ge_u32 s{T0}, 5")
        Lo = a.newlabel("rlo")
        a(f"s_cbranch_scc1 {Lo if younger is not None else L}")
        if younger is not None: a(f"s_waitcnt vmcnt({younger})")
        for q in range(4):
            for rd in range(2):
                a(f"ds_read_b64_tr_b16 v[{F+4*q+2*rd}:{F+4*q+2*rd+1}], v{self.RLA} offset:{rd*2048+q*32}")
        a(f"v_lshlrev_b32 v{t}, 4, v0")
        for q in range(4):
            a(f"s_waitcnt lgkmcnt({6-2*q})")
            a(f"buffer_store_dwordx4 v[{F+4*q}:{F+4*q+3}], v{t}, s[{SRD_WS}:{SRD_WS+3}], s{self.sRL+4+q} offen sc1")
        if younger is not None: a("s_waitcnt vmcnt(4)")
        a(f"s_cmp_eq_u32 s{self.sRL+8}, -1")
        a(f"s_cbranch_scc1 {L}")
        for q in range(4): a(f"v_mov_b32 v{t+2+q}, 0")
        a(f"v_mov_b32 v{t+6}, 0x3f803f80")
        for k in range(4):
            for q in range(4): a(f"v_dot2_f32_bf16 v{t+2+q}, v{F+4*q+k}, v{t+6}, v{t+2+q}")
        a(f"v_lshlrev_b32 v{t+1}, 2, v0")
        a("s_nop 1")
        a(f"v_permlane16_swap_b32 v{t+2}, v{t+3}")
        a(f"v_permlane16_swap_b32 v{t+4}, v{t+5}")
        a("s_nop 0")
        a(f"v_add_f32 v{t+2}, v{t+2}, v{t+3}")
        a(f"v_add_f32 v{t+4}, v{t+4}, v{t+5}")
        a("s_nop 1")
        a(f"v_permlane32_swap_b32 v{t+2}, v{t+4}")
        a("s_nop 0")
        a(f"v_add_f32 v{t+2}, v{t+2}, v{t+4}")
        a(f"buffer_store_dword v{t+2}, v{t+1}, s[{SRD_WS}:{SRD_WS+3}], s{self.sRL+8} offen sc1")
        if younger is not None:
            a(f"s_branch {L}")
            a.label(Lo)
            a("s_waitcnt vmcnt(0)")
        a.label(L)

    def p1_setup_b(self):
        a = self.a
        a(f"s_and_b32 s{self.sTG}, s{S_W}, 3")
        a(f"s_lshr_b32 s{self.sNH}, s{S_W}, 2")
        a(f"s_cmp_ge_u32 s{self.sCT}, 5")
        a(f"s_cselect_b32 s{T0}, 5, 0")
        a(f"s_sub_u32 s{T0}, s{self.sCT}, s{T0}")
        a(f"s_lshl_b32 s{T0}, s{T0}, 1")
        a(f"s_add_u32 s{T0}, s{T0}, s{self.sNH}")
        for idx in range(10):
            a(f"s_cmp_eq_u32 s{T0}, {idx}")
            a(f"s_cbranch_scc1 L_tab{idx}")
        a(f"s_mul_i32 s{T1}, s{self.sNH}, 0x10101010")
        for k in range(4): a(f"s_add_u32 s{self.sTAB+k}, s{T1}, 0x%08x" % (0x03020100 + 0x04040404 * k))
        a(f"s_mov_b32 s{self.sTAB+4}, 0")
        a(f"s_mov_b32 s{self.sTAB+5}, 0")
        a("s_branch L_tabdone")
        for idx in range(10):
            a.label(f"L_tab{idx}")
            for k, d in enumerate(p1_table(idx // 2, idx % 2)): a(f"s_mov_b32 s{self.sTAB+k}, 0x%08x" % d)
            if idx < 9: a("s_branch L_tabdone")
        a.label("L_tabdone")
        a("v_and_b32 v1, 31, v0")
        a(f"s_lshl_b32 s{T0}, s{self.sTG}, 5")
        a(f"v_add_u32 v2, s{T0}, v1")
        a("v_bfe_u32 v3, v2, 1, 3")
        a("v_lshrrev_b32 v4, 5, v0")
        a("v_xor_b32 v3, v3, v4")
        a("v_lshlrev_b32 v3, 4, v3")
        a(f"v_lshl_add_u32 v{self.XA}, v2, 7, v3")
        a(f"s_xor_b32 s{T3}, s{self.sTG}, s{self.sNH}")
        a(f"s_lshl_b32 s{T0}, s{T3}, 5")
        a(f"v_xor_b32 v{self.XA}, s{T0}, v{self.XA}")
        for ks in range(1, 4): a(f"v_xor_b32 v{self.XA+ks}, {ks<<5}, v{self.XA}")
        a("v_bfe_u32 v5, v0, 2, 2")
        a("v_lshl_add_u32 v6, v4, 3, v5")
        a("v_lshlrev_b32 v6, 8, v6")
        a("v_and_b32 v7, 3, v0")
        a("v_lshlrev_b32 v7, 3, v7")
        a("v_and_b32 v8, 16, v0")
        a("v_cmp_ne_u32 vcc, 0, v8")
        for i in range(2):
            a(f"v_mov_b32 v8, s{self.sTAB+2*i}")
            a(f"v_mov_b32 v9, s{self.sTAB+2*i+1}")
            a("v_cndmask_b32 v8, v8, v9, vcc")
            a("v_bfe_u32 v8, v8, v7, 8")
            a("v_lshlrev_b32 v8, 3, v8")
            a("v_lshlrev_b32 v9, 6, v5")
            a("v_xor_b32 v8, v8, v9")
            a(f"v_add_u32 v8, v6, v8")
            a(f"s_lshl_b32 s{T0}, s{T3}, 12")
            a(f"v_add_u32 v{self.WA+4*i}, s{T0}, v8")
            for j in range(1, 4): a(f"v_xor_b32 v{self.WA+4*i+j}, {j<<12}, v{self.WA+4*i}")
        a(f"s_lshl_b32 s{T0}, s{self.sRB}, 2")
        a(f"s_add_u32 s{T0}, s{T0}, s{self.sTG}")
        a(f"s_lshl_b32 s{T1}, s{T0}, 9")
        a(f"s_add_u32 s{T1}, s{T1}, {WS_RS}")
        a(f"v_lshl_add_u32 v{self.RSA}, v1, 4, s{T1}")
        a(f"s_cmp_ge_u32 s{self.sCT}, 10")
        a("s_cbranch_scc1 L_p1_vaddr")
        a(f"s_lshl_b32 s{T0}, s{T0}, 9")
        a(f"s_cmp_ge_u32 s{self.sCT}, 5")
        a(f"s_cselect_b32 s{T1}, {WS_K}, {WS_Q}")
        a(f"s_add_u32 s{T0}, s{T0}, s{T1}")
        a(f"v_lshl_add_u32 v2, v1, 4, s{T0}")
        a("v_lshlrev_b32 v3, 3, v4")
        a("v_add_u32 v5, 16, v3")
        for i in range(2):
            for qq in range(2):
                a(f"v_bfe_u32 v6, s{self.sTAB+4+i}, v{3 if qq == 0 else 5}, 8")
                a(f"v_lshl_add_u32 v{self.STA+2*i+qq}, v6, 15, v2")
        a("s_branch L_p1_addrdone")
        a.label("L_p1_vaddr")
        a(f"s_mul_i32 s{T0}, s{T0}, 1280")
        a(f"s_add_u32 s{T0}, s{T0}, {WS_V}")
        a(f"s_lshl_b32 s{T1}, s{self.sCT}, 7")
        a(f"s_lshl_b32 s{T2}, s{self.sNH}, 6")
        a(f"s_add_u32 s{T1}, s{T1}, s{T2}")
        a(f"s_sub_u32 s{T1}, s{T1}, 1280")
        a(f"v_mov_b32 v{self.STA+2}, 0")
        a(f"v_mov_b32 v{self.STA+3}, 0")
        a("v_mul_u32_u24 v3, 320, v4")
        a(f"v_add_u32 v3, s{T0}, v3")
        a(f"s_mov_b32 s{T2}, 81920")
        for i in range(2):
            a(f"v_add_u32 v5, s{T1}, v1")
            if i: a("v_add_u32 v5, 32, v5")
            a("v_mul_u32_u24 v6, 3277, v5")
            a("v_lshrrev_b32 v6, 16, v6")
            a("v_mul_u32_u24 v7, 20, v6")
            a("v_sub_u32 v5, v5, v7")
            a("v_lshl_add_u32 v5, v5, 4, v3")
            a(f"v_mad_u32_u24 v{self.STA+i}, v6, s{T2}, v5")
        a.label("L_p1_addrdone")
        for r in range(32): a(f"v_mov_b32 v{self.ACC+r}, 0")
        a(f"s_mul_i32 s{T0}, s{self.sCT}, 10240")
        a(f"s_lshl_b32 s{T1}, s{self.sNH}, 9")
        a(f"s_add_u32 s{T0}, s{T0}, s{T1}")
        a(f"s_add_u32 s{T0}, s{T0}, {WS_CQ}")
        a(f"v_lshl_add_u32 v{self.CQA}, v0, 3, s{T0}")
        a(f"s_lshl_b32 s{T0}, s{self.sNH}, 8")
        a(f"s_lshl_b32 s{T1}, s{self.sTG}, 9")
        a(f"s_add_u32 s{T0}, s{T0}, {self.P1_MISC}")
        a(f"s_add_u32 s{T1}, s{T1}, s{T0}")
        a(f"v_lshl_add_u32 v{self.CSW}, v0, 2, s{T1}")
        a(f"v_lshl_add_u32 v95, v0, 2, s{T0}")
        a(f"v_mov_b32 v{self.VXM}, 0x8000")
        a(f"s_mov_b32 s{self.sCNT}, -1")

    def p1_loop(self, vmode):
        a = self.a
        tag = "v" if vmode else "q"
        a(f"s_cmp_lg_u32 s{self.sNH}, 0")
        a(f"s_cbranch_scc1 L_p1_B{tag}")
        self.p1_loop1(vmode, 0)
        a(f"s_branch L_p1_E{tag}")
        a.label(f"L_p1_B{tag}")
        self.p1_loop1(vmode, 1)
        a.label(f"L_p1_E{tag}")
        reads, xors, mf = self.p1_parts(vmode)
        def comp(ks, rd=True, xr=True):
            a(f"s_waitcnt lgkmcnt({5 if rd or ks == 2 else 0})")
            mf(ks, 0)
            if rd: reads((ks + 2) % 4)
            mf(ks, 1)
            if xr: xors((ks + 2) % 4)
        comp(0); self.p1_issue((2,))
        comp(1); self.p1_issue((3,))
        a(f"buffer_load_dwordx4 v[{self.RS}:{self.RS+3}], v{self.RSA}, s[{SRD_WS}:{SRD_WS+3}], 0 offen sc1")
        a(f"s_mul_i32 s{T0}, s{self.sCT}, 10240")
        a(f"s_lshl_b32 s{T1}, s{S_W}, 10")
        a(f"s_add_u32 s{T0}, s{T0}, s{T1}")
        a(f"s_add_u32 s{T0}, s{T0}, {WS_CQ}")
        a(f"s_add_u32 m0, s{T1}, {self.CQ_SCR}")
        a("v_lshlrev_b32 v1, 4, v0")
        self.dma(1, SRD_WS, f"s{T0}", "sc1")
        a(f"s_add_u32 s{T0}, s{T0}, 8192")
        a("s_add_u32 m0, m0, 8192")
        a(f"s_cmp_ge_u32 s{S_W}, 2")
        a(f"s_cselect_b32 s{T0}, 0x7f000000, s{T0}")
        self.dma(1, SRD_WS, f"s{T0}", "sc1")
        a("s_waitcnt vmcnt(7)")
        a("s_barrier")
        comp(2); comp(3)
        comp(0); comp(1)
        a("s_waitcnt vmcnt(3)")
        a("s_barrier")
        comp(2, xr=False); comp(3, xr=False)
        comp(0, xr=False); comp(1, xr=False)
        a("s_waitcnt vmcnt(0)")
        a("s_barrier")
        self.p1_epi_reads()
        a("s_waitcnt lgkmcnt(15)")
        mf(2, 0); mf(2, 1)
        a("s_waitcnt lgkmcnt(10)")
        mf(3, 0); mf(3, 1)

    def p1_parts(self, vmode):
        a = self.a
        def reads(ks):
            if self.o.get("nolds"): return
            a(f"ds_read_b128 v[{self.XF+4*ks}:{self.XF+4*ks+3}], v{self.XA+ks}")
            for i in range(2):
                for rd in range(2):
                    d = self.WF + 8 * ks + 4 * i + 2 * rd
                    a(f"ds_read_b64_tr_b16 v[{d}:{d+1}], v{self.WA+4*i+ks} offset:{16384+rd*1024}")
        def xors(ks):
            for r in (self.XA + ks, self.WA + ks, self.WA + 4 + ks): a(f"v_xor_b32 v{r}, v{self.VXM}, v{r}")
            if ks == 3: a(f"v_xor_b32 v{self.VXM}, 0x10000, v{self.VXM}")
        def mf(ks, i):
            x = vr(self.XF + 4 * ks, 4); wv = vr(self.WF + 8 * ks + 4 * i, 4); acc = vr(self.ACC + 16 * i, 16)
            if self.o.get("nomfma"): pass
            elif vmode: a(f"v_mfma_f32_32x32x16_bf16 {acc}, {x}, {wv}, {acc}")
            else: a(f"v_mfma_f32_32x32x16_bf16 {acc}, {wv}, {x}, {acc}")
        return reads, xors, mf

    def p1_loop1(self, vmode, B):
        a = self.a
        L = a.newlabel("p1loop")
        pos = self.o.get("barB" if B else "barA", "1" if B else "0")
        reads, xors, mf = self.p1_parts(vmode)
        def bar():
            a("s_waitcnt vmcnt(4)")
            if not self.o.get("nobar"): a("s_barrier")
            if self.o.get("its") == "1": self.stamp_dyn(54, self.sCNT)
        def comp(ks):
            n = (ks + 2) % 4
            if ks == 2 and pos == "0": bar()
            a("s_waitcnt lgkmcnt(5)")
            mf(ks, 0)
            if ks == 2 and pos == "1": bar()
            if ks == 2 and pos == "2":
                mf(ks, 1); bar(); reads(n)
            else:
                reads(n); mf(ks, 1)
            xors(n)
            self.p1_issue((n,))
        a("s_waitcnt vmcnt(7)")
        a("s_barrier")
        self.stamp(3)
        reads(0); reads(1); xors(0); xors(1)
        a("v_mov_b32 v6, 0x3f803f80")
        a("v_mov_b32 v2, 0")
        a("v_mov_b32 v3, 0")
        a("s_waitcnt lgkmcnt(5)")
        for k in range(4):
            for i in range(2): a(f"v_dot2_f32_bf16 v{2+i}, v{self.WF+4*i+k}, v6, v{2+i}")
        a("s_nop 2")
        a("v_permlane32_swap_b32 v2, v3")
        a("s_nop 0")
        a("v_add_f32 v2, v2, v3")
        a(f"ds_write_b32 v{self.CSW}, v2")
        a("s_waitcnt lgkmcnt(0)")
        a.align(6)
        a.label(L)
        comp(0); comp(1); comp(2)
        Lr = a.newlabel("back"); Ls = a.newlabel("side")
        a(f"s_add_u32 s{self.sCNT}, s{self.sCNT}, 1")
        a(f"s_cbranch_scc1 {Ls}")
        a.label(Lr)
        comp(3)
        a(f"s_cmp_lt_u32 s{self.sCNT}, {int(self.o.get('p1n', 10)) - 4}")
        a(f"s_cbranch_scc1 {L}")
        self._sides.append((Ls, Lr))

    def p1_sides(self):
        a = self.a
        for Ls, Lr in self._sides:
            a.label(Ls)
            self.nonce_get()
            a(f"s_cmp_lg_u32 s{self.sTG}, 0")
            a(f"s_cbranch_scc1 {Lr}")
            for k in range(4): a(f"ds_read_b32 v{2+k}, v95 offset:{512*k}")
            a(f"s_lshl_b32 s{T0}, s{self.sKC0}, 10")
            a("s_waitcnt lgkmcnt(0)")
            a("v_add_f32 v2, v2, v3")
            a("v_add_f32 v4, v4, v5")
            a(f"v_mov_b32 v3, s{S_NONCE}")
            a("v_add_f32 v2, v2, v4")
            a(f"buffer_store_dwordx2 v[2:3], v{self.CQA}, s[{SRD_WS}:{SRD_WS+3}], s{T0} offen sc1")
            a(f"s_branch {Lr}")

    def p1_gather(self):
        a = self.a
        a(f"buffer_load_dwordx4 v[{self.RS}:{self.RS+3}], v{self.RSA}, s[{SRD_WS}:{SRD_WS+3}], 0 offen sc1")
        a(f"s_movk_i32 s{T0}, 0x1000")
        a(f"s_movk_i32 s{T1}, 0x2000")
        for k in range(10):
            so = ("0", f"s{T0}", f"s{T1}")[k // 4]
            a(f"buffer_load_dwordx2 v[{self.CQ+2*k}:{self.CQ+2*k+1}], v{self.CQA}, s[{SRD_WS}:{SRD_WS+3}], {so} offen offset:{1024*(k%4)} sc1")

    def p1_epi_reads(self):
        a = self.a
        a(f"s_lshl_b32 s{T0}, s{self.sNH}, 9")
        a(f"s_add_u32 s{T0}, s{T0}, {self.CQ_SCR}")
        a(f"v_lshl_add_u32 v1, v0, 3, s{T0}")
        for k in range(10): a(f"ds_read_b64 v[{self.CQ+2*k}:{self.CQ+2*k+1}], v1 offset:{1024*k}")
        a(f"s_lshl_b32 s{T2}, s{S_W}, 9")
        a(f"s_add_u32 s{T2}, s{T2}, {self.P1_MISC+4096}")
        a(f"v_lshl_add_u32 v6, v0, 2, s{T2}")
        a("v_and_b32 v5, 31, v0")
        a(f"s_mov_b32 s{S_SPIN}, 0")

    def p1_epi_common(self):
        a = self.a
        L = a.newlabel("rs"); Ld = a.newlabel("rsd")
        a("s_waitcnt lgkmcnt(0)")
        a.label(L)
        a(f"v_xor_b32 v2, s{S_NONCE}, v{self.RS+1}")
        a(f"v_xor_b32 v3, s{S_NONCE}, v{self.RS+3}")
        for k in range(0, 10, 2):
            a(f"v_xor_b32 v4, s{S_NONCE}, v{self.CQ+2*k+1}")
            a(f"v_xor_b32 v7, s{S_NONCE}, v{self.CQ+2*k+3}")
            a("v_or3_b32 v2, v2, v4, v7")
        a("v_or_b32 v2, v2, v3")
        a("v_cmp_ne_u32 vcc, 0, v2")
        a(f"s_add_u32 s{S_SPIN}, s{S_SPIN}, 1")
        a("s_or_b64 vcc, vcc, vcc")
        a(f"s_cbranch_scc0 {Ld}")
        a(f"s_cmp_ge_u32 s{S_SPIN}, {SPIN_MAX}")
        a(f"s_cbranch_scc1 {Ld}")
        self.diag("gather")
        self.p1_gather()
        a("s_waitcnt vmcnt(0)")
        a(f"s_branch {L}")
        a.label(Ld)
        Q = self.CQ
        a(f"v_add_f32 v12, v{Q}, v{Q+2}")
        a(f"v_add_f32 v13, v{Q+4}, v{Q+6}")
        a(f"v_add_f32 v14, v{Q+8}, v{Q+10}")
        a(f"v_add_f32 v15, v{Q+12}, v{Q+14}")
        a(f"v_add_f32 v2, v{Q+16}, v{Q+18}")
        a("v_add_f32 v12, v12, v13")
        a("v_add_f32 v14, v14, v15")
        a("v_add_f32 v12, v12, v2")
        a("v_add_f32 v12, v12, v14")
        self.stamp(4)

    def rowstats(self):
        a = self.a
        X = 100
        a("v_lshrrev_b32 v1, 3, v0")
        a(f"s_lshl_b32 s{T0}, s{S_W}, 4")
        a(f"s_lshl_b32 s{T1}, s{self.sRB}, 7")
        a(f"s_add_u32 s{T0}, s{T0}, s{T1}")
        a(f"v_add_u32 v1, s{T0}, v1")
        a("v_mul_u32_u24 v2, 1280, v1")
        a("v_and_b32 v3, 7, v0")
        a("v_lshl_add_u32 v2, v3, 4, v2")
        a(f"s_mov_b32 s{T0}, 10240")
        a("v_mov_b32 v3, 0")
        a(f"buffer_load_dwordx2 v[{self.VN}:{self.VN+1}], v3, s[{SRD_DBG}:{SRD_DBG+3}], 0 offen sc1")
        for k in range(10):
            for hh in range(2):
                r = X + 8 * k + 4 * hh
                a(f"buffer_load_dwordx4 v[{r}:{r+3}], v2, s[{SRD_X}:{SRD_X+3}], {'s%d' % T0 if hh else '0'} offen offset:{128*k}")
        for r in range(4, 8): a(f"v_mov_b32 v{r}, 0")
        a("v_mov_b32 v8, 0x3f803f80")
        for k in range(10):
            a(f"s_waitcnt vmcnt({18-2*k})")
            for e in range(4):
                for hh in range(2):
                    r = X + 8 * k + 4 * hh + e
                    a(f"v_dot2_f32_bf16 v{4+hh}, v{r}, v8, v{4+hh}")
                    a(f"v_dot2_f32_bf16 v{6+hh}, v{r}, v{r}, v{6+hh}")
        a("s_nop 2")
        for ctl in ("quad_perm:[1,0,3,2]", "quad_perm:[2,3,0,1]", "row_half_mirror"):
            for r in range(4, 8): a(f"v_add_f32_dpp v{r}, v{r}, v{r} {ctl} row_mask:0xf bank_mask:0xf")
        self.nonce_get()
        a("v_and_b32 v3, 1, v0")
        a("v_cmp_ne_u32 vcc, 0, v3")
        a("v_lshlrev_b32 v3, 3, v3")
        a("v_add_u32 v1, v1, v3")
        a("v_cndmask_b32 v4, v4, v5, vcc")
        a("v_cndmask_b32 v6, v6, v7, vcc")
        a(f"v_mul_f32 v4, 0x%08x, v4" % f2u(1.0 / 640))
        a("v_mul_f32 v5, v4, v4")
        a(f"v_mov_b32 v7, 0x%08x" % f2u(1.0 / 640))
        a("v_fma_f32 v5, v6, v7, -v5")
        a("v_max_f32 v5, 0, v5")
        a(f"v_add_f32 v5, 0x%08x, v5" % f2u(1e-5))
        a("v_rsq_f32 v8, v5")
        a(f"v_mov_b32 v9, s{S_NONCE}")
        a(f"v_mov_b32 v11, s{S_NONCE}")
        a("v_mul_f32 v10, v4, v8")
        a("v_lshlrev_b32 v1, 4, v1")
        a(f"s_mov_b32 s{T0}, {WS_RS}")
        a("s_mov_b32 exec_lo, 0x03030303")
        a("s_mov_b32 exec_hi, 0x03030303")
        a(f"buffer_store_dwordx4 v[8:11], v1, s[{SRD_WS}:{SRD_WS+3}], s{T0} offen sc1")
        a("s_mov_b64 exec, -1")

    def p1_epi_q(self):
        a = self.a
        self.p1_epi_common()
        qs = math.log2(math.e) / math.sqrt(20.0)
        a("ds_write_b32 v6, v12")
        a("v_lshrrev_b32 v1, 5, v0")
        a(f"v_lshl_add_u32 v1, v1, 4, s{T2}")
        C = 48
        for i in range(2):
            for q4 in range(4):
                a(f"ds_read_b128 v[{C+16*i+4*q4}:{C+16*i+4*q4+3}], v1 offset:{i*128+q4*32}")
        a(f"s_cmp_lt_u32 s{self.sCT}, 5")
        a(f"s_cselect_b32 s{T1}, 0x%08x, 1.0" % f2u(qs))
        a(f"v_mul_f32 v2, s{T1}, v{self.RS}")
        a(f"v_mul_f32 v3, s{T1}, v{self.RS+2}")
        for i in range(2):
            for qq in range(2):
                a(f"s_waitcnt lgkmcnt({6-4*i-2*qq})")
                b = 16 * i + 8 * qq
                for r in range(8): a(f"v_mul_f32 v{self.ACC+b+r}, v2, v{self.ACC+b+r}")
                for r in range(8): a(f"v_fma_f32 v{self.ACC+b+r}, -v3, v{C+b+r}, v{self.ACC+b+r}")
                o = 4 + 4 * ((2 * i + qq) % 2)
                for r in range(4): a(f"v_cvt_pk_bf16_f32 v{o+r}, v{self.ACC+b+2*r}, v{self.ACC+b+2*r+1}")
                a(f"buffer_store_dwordx4 v[{o}:{o+3}], v{self.STA+2*i+qq}, s[{SRD_WS}:{SRD_WS+3}], 0 offen sc1")

    def p1_epi_v(self):
        a = self.a
        self.p1_epi_common()
        a("v_mov_b32 v13, v12")
        a(f"v_lshl_add_u32 v6, v5, 2, s{T2}")
        a("v_lshrrev_b32 v1, 5, v0")
        a("v_permlane32_swap_b32 v12, v13")
        a(f"ds_write_b32 v6, v{self.RS}")
        a(f"ds_write_b32 v6, v{self.RS+2} offset:128")
        a(f"v_lshl_add_u32 v6, v1, 4, s{T2}")
        C = 48
        for q4 in range(4):
            a(f"ds_read_b128 v[{C+4*q4}:{C+4*q4+3}], v6 offset:{q4*32}")
            a(f"ds_read_b128 v[{C+16+4*q4}:{C+16+4*q4+3}], v6 offset:{128+q4*32}")
        for grp in range(2):
            a(f"s_waitcnt lgkmcnt({4-4*grp})")
            for i in range(2):
                b = 16 * i + 8 * grp
                for r in range(8): a(f"v_mul_f32 v{self.ACC+b+r}, v{C+8*grp+r}, v{self.ACC+b+r}")
                for r in range(8): a(f"v_fma_f32 v{self.ACC+b+r}, -v{C+16+8*grp+r}, v{12+i}, v{self.ACC+b+r}")
                o = 4 + 4 * i
                for r in range(4): a(f"v_cvt_pk_bf16_f32 v{o+r}, v{self.ACC+b+2*r}, v{self.ACC+b+2*r+1}")
                a(f"buffer_store_dwordx4 v[{o}:{o+3}], v{self.STA+i}, s[{SRD_WS}:{SRD_WS+3}], 0 offen offset:{640*grp} sc1")

    def nonce_get(self):
        a = self.a
        a(f"s_mov_b32 s{S_SPIN}, 0")
        Lc = a.newlabel("nchk"); Lo = a.newlabel("nok")
        a.label(Lc)
        a(f"v_readfirstlane_b32 s{S_NONCE}, v{self.VN}")
        a(f"v_readfirstlane_b32 s{S_NONCE+1}, v{self.VN+1}")
        a(f"s_add_u32 s{S_SPIN}, s{S_SPIN}, 1")
        a(f"s_or_b32 s{T0}, s{S_NONCE}, s{S_NONCE+1}")
        a(f"s_cbranch_scc1 {Lo}")
        a(f"s_cmp_ge_u32 s{S_SPIN}, {SPIN_MAX}")
        a(f"s_cbranch_scc1 {Lo}")
        self.diag("nonce")
        a("v_mov_b32 v94, 0")
        a(f"buffer_load_dwordx2 v[{self.VN}:{self.VN+1}], v94, s[{SRD_DBG}:{SRD_DBG+3}], 0 offen sc1")
        a("s_waitcnt vmcnt(0)")
        a(f"s_branch {Lc}")
        a.label(Lo)

    def phase1(self):
        a = self.a
        self.p1_setup_a()
        a(f"s_cmp_eq_u32 s{self.sCT}, 15")
        a("s_cbranch_scc0 L_p1_go")
        self.rowstats()
        a("s_branch L_p1_done")
        a.label("L_p1_go")
        self.p1_setup_b()
        a("v_mov_b32 v1, 0")
        a(f"buffer_load_dwordx2 v[{self.VN}:{self.VN+1}], v1, s[{SRD_DBG}:{SRD_DBG+3}], 0 offen sc1")
        self.p1_issue((1, 2, 3) if self.o.get("first5", "1") == "1" else (0, 1, 2, 3))
        self.p1_issue((0, 1))
        self.stamp(2)
        a(f"s_cmp_ge_u32 s{self.sCT}, 10")
        a("s_cbranch_scc1 L_p1_v")
        self.p1_loop(False)
        self.p1_epi_q()
        a("s_branch L_p1_done")
        self.p1_sides(); self._sides = []
        a.label("L_p1_v")
        self.p1_loop(True)
        self.p1_epi_v()
        a("s_branch L_p1_done")
        self.p1_sides()
        a.label("L_p1_done")
        self.stamp(5)
        a("s_waitcnt vmcnt(0)")
        self.stamp(6)
        a("s_barrier")
        a(f"s_lshl_b32 s{T0}, s{self.sCT}, 4")
        a(f"s_add_u32 s{T0}, s{T0}, s{self.sRB}")
        a(f"s_mul_i32 s{T0}, s{T0}, {FSP}")
        a(f"s_add_u32 s{T0}, s{T0}, {FL_1}")
        self.flag_store(T0, 2)
        self.stamp(7)
        a(f"s_cmp_eq_u32 s{S_W}, 0")
        a("s_cbranch_scc1 L_no_rls")
        self.relayout_setup()
        a.label("L_no_rls")
        if self.stop < 2:
            self.relayout_issue()
            a("s_waitcnt vmcnt(0)")
            self.relayout_finish()

    def build(self):
        a = self.a
        self.entry()
        self.phase1()
        if self.stop >= 2:
            from phases import phase2, phase3, phase4, phase5
            phase2(self)
            if self.stop >= 3: phase3(self)
            if self.stop >= 4: phase4(self)
            if self.stop >= 5: phase5(self)
        a("s_waitcnt vmcnt(0)")
        if self.o.get("fixend"):
            if self.o.get("diag"):
                a("s_cmp_eq_u32 s35, 0")
                a("s_cbranch_scc1 L_end")
            a.label("L_fixend")
            a("s_memrealtime s[100:101]")
            a("s_waitcnt lgkmcnt(0)")
            a(f"s_sub_u32 s100, s100, s{31 if self.o.get('fixown') else S_NONCE}")
            a(f"s_cmp_lt_u32 s100, {int(self.o['fixend'])*100}")
            a("s_cbranch_scc1 L_fixend")
        self.stamp(31)
        self.stamp_flush()
        a.label("L_end")
        a("s_endpgm")
        a.lines.append(f".fill {self.pad}, 4, 0xbf810000")
        body = a.text()
        errs = check(body)
        if errs:
            sys.stderr.write("\n".join(errs[:40]) + "\n%d hazards\n" % len(errs))
            raise SystemExit(1)
        head = f"""; Fused preLN -> MHA -> residual -> preLN -> SiLU FFN -> residual, one persistent launch.
; @launch grid=(256,1,1) block=(512,1,1) lds={LDS_BYTES}
.amdgcn_target "amdgcn-amd-amdhsa--gfx950"
.text
.globl {NAME}_kernel
.p2align 8
.type {NAME}_kernel,@function
{NAME}_kernel:
"""
        tail = f""".section .rodata,"a"
.p2align 6
.amdhsa_kernel {NAME}_kernel
  .amdhsa_next_free_vgpr 256
  .amdhsa_next_free_sgpr 102
  .amdhsa_accum_offset 256
  .amdhsa_group_segment_fixed_size 0
  .amdhsa_kernarg_size 72
  .amdhsa_user_sgpr_count 2
  .amdhsa_user_sgpr_kernarg_segment_ptr 1
  .amdhsa_system_sgpr_workgroup_id_x 1
.end_amdhsa_kernel
"""
        return head + body + tail

if __name__ == "__main__":
    stop = int(sys.argv[2]) if len(sys.argv) > 2 else 99
    opts = dict(kv.split("=") for kv in sys.argv[3:])
    import subprocess
    def asm_size(path):
        r = subprocess.run(["clang", "-x", "assembler", "-target", "amdgcn-amd-amdhsa", "-mcpu=gfx950", "-c", path, "-o", "_chk.o"], capture_output=True, text=True)
        if r.returncode: print(r.stderr[:1500]); raise SystemExit(1)
        r = subprocess.run(["llvm-readelf", "-S", "_chk.o"], capture_output=True, text=True)
        return int([l for l in r.stdout.split("\n") if ".text" in l][0].split()[6], 16)
    open(sys.argv[1], "w").write(K(stop, opts).build())
    n = asm_size(sys.argv[1])
    k = K(stop, opts)
    k.CPF_LINES = (n + 4095) // 4096
    k.pad = (k.CPF_LINES * 4096 - n) // 4 + 16
    open(sys.argv[1], "w").write(k.build())
    print(sys.argv[1], "code bytes:", n, "with pad:", asm_size(sys.argv[1]))
```

```python
import sys, math
from asmlib import Asm, vr, sr, f2u, check
from tables import *

NAME = "sequential_preLN__mha_block__dense_activation_silu__prompt"
LDS_BYTES = 163840
SPIN_MAX = 20000

S_G = 2
SRD_X, SRD_WQ, SRD_WS, SRD_OUT, SRD_DBG, SRD_RL = 4, 8, 12, 16, 20, 24
S_W, S_C, S_J = 28, 29, 30
S_NONCE = 32
S_PTR = 36
T0, T1, T2, T3, T4, T5 = 54, 55, 56, 57, 58, 59
S_M1 = 60
S_SPIN = 62

class K:
    def __init__(self, stop_after=99, opts=None):
        self.a = Asm()
        self.stop = stop_after
        self.o = opts or {}
        self.pad = 0
        self._sides = []

    def srd(self, d, ptr, nbytes):
        a = self.a
        a(f"s_mov_b32 s{d}, s{ptr}")
        a(f"s_and_b32 s{d+1}, s{ptr+1}, 0xffff")
        a(f"s_mov_b32 s{d+2}, {nbytes}")
        a(f"s_mov_b32 s{d+3}, 0x20000")

    def stamp(self, idx):
        if not self.o.get("stamps"): return
        if self.o["stamps"] == "min" and idx not in (0, 9, 10, 31): return
        a = self.a
        a("s_memrealtime s[100:101]")
        a("s_waitcnt lgkmcnt(0)")
        a(f"v_writelane_b32 v255, s100, {idx}")
        if idx < 22 and self.o["stamps"] != "min":
            a("s_memtime s[100:101]")
            a("s_waitcnt lgkmcnt(0)")
            a(f"v_writelane_b32 v255, s100, {idx+32}")

    def stamp_dyn(self, base, sreg):
        if not self.o.get("its"): return
        a = self.a
        a("s_memtime s[100:101]")
        a("s_mov_b32 s99, m0")
        a(f"s_add_u32 m0, s{sreg}, {base}")
        a("s_waitcnt lgkmcnt(0)")
        a("v_writelane_b32 v255, s100, m0")
        a("s_mov_b32 m0, s99")

    def stamp_flush(self):
        if not self.o.get("stamps"): return
        a = self.a
        if self.o.get("dbgwg"):
            L = a.newlabel("dbg")
            a(f"s_cmp_lg_u32 s{S_G}, {int(self.o['dbgwg'])}")
            a(f"s_cbranch_scc1 {L}")
            a(f"s_cmp_lg_u32 s{S_W}, 0")
            a(f"s_cbranch_scc1 {L}")
            a(f"v_readlane_b32 s{T1}, v255, 0")
            for n, i in enumerate((3, 4, 7, 8, 9, 10, 12, 13, 15, 16, 18, 19, 31)):
                a(f"v_readlane_b32 s{T0}, v255, {i}")
                a("s_nop 3")
                a(f"s_sub_u32 s{T0}, s{T0}, s{T1}")
                a(f"v_mov_b32 v1, s{T0}")
                a(f"v_mov_b32 v2, {8+4*n}")
                a(f"buffer_store_dword v1, v2, s[{SRD_DBG}:{SRD_DBG+3}], 0 offen")
            a.label(L)
            return
        a(f"s_lshl_b32 s{T0}, s{S_G}, 3")
        a(f"s_add_u32 s{T0}, s{T0}, s{S_W}")
        a(f"s_lshl_b32 s{T0}, s{T0}, 8")
        a(f"s_add_u32 s{T0}, s{T0}, {WS_SIZE}")
        a("v_lshlrev_b32 v1, 2, v0")
        a(f"buffer_store_dword v255, v1, s[{SRD_WS}:{SRD_WS+3}], s{T0} offen")
        a("s_mov_b64 exec, -1")

    def diag(self, what):
        if self.o.get("diag") == what: self.a("s_mov_b32 s35, 1")

    def dma(self, voff, srd, soff, flags=""):
        if self.o.get("nodma"): return
        self.a(f"buffer_load_dwordx4 v{voff}, s[{srd}:{srd+3}], {soff} offen {flags} lds".replace("  ", " "))

    def flag_store(self, s_off, vt, pol="sc1"):
        a = self.a
        L = a.newlabel("nofl")
        a(f"s_cmp_lg_u32 s{S_W}, 0")
        a(f"s_cbranch_scc1 {L}")
        a(f"v_mov_b32 v{vt}, s{S_NONCE}")
        a(f"v_mov_b32 v{vt+1}, s{S_NONCE+1}")
        a(f"v_mov_b32 v{vt+2}, 0")
        a("s_mov_b64 exec, 1")
        a(f"buffer_store_dwordx2 v[{vt}:{vt+1}], v{vt+2}, s[{SRD_WS}:{SRD_WS+3}], s{s_off} offen {pol}")
        a("s_mov_b64 exec, -1")
        a.label(L)

    def poll(self, n, s_off, spacing, vt, only_wave0=True):
        a = self.a
        L = a.newlabel("poll"); Ld = a.newlabel("polld")
        if only_wave0:
            a(f"s_cmp_lg_u32 s{S_W}, 0")
            a(f"s_cbranch_scc1 {Ld}")
        a(f"s_mov_b32 s{S_SPIN}, 0")
        if n == 256:
            assert spacing == 8
            a(f"v_lshlrev_b32 v{vt+8}, 4, v0")
            a.label(L)
            a(f"buffer_load_dwordx4 v[{vt}:{vt+3}], v{vt+8}, s[{SRD_WS}:{SRD_WS+3}], s{s_off} offen sc1")
            a(f"buffer_load_dwordx4 v[{vt+4}:{vt+7}], v{vt+8}, s[{SRD_WS}:{SRD_WS+3}], s{s_off} offen offset:1024 sc1")
            a(f"s_add_u32 s{S_SPIN}, s{S_SPIN}, 1")
            a("s_waitcnt vmcnt(0)")
            a(f"v_cmp_ne_u64 vcc, s[{S_NONCE}:{S_NONCE+1}], v[{vt}:{vt+1}]")
            a(f"v_cmp_ne_u64 s[{S_M1}:{S_M1+1}], s[{S_NONCE}:{S_NONCE+1}], v[{vt+2}:{vt+3}]")
            a("s_nop 0")
            a(f"s_or_b64 s[{T4}:{T5}], vcc, s[{S_M1}:{S_M1+1}]")
            a(f"v_cmp_ne_u64 vcc, s[{S_NONCE}:{S_NONCE+1}], v[{vt+4}:{vt+5}]")
            a(f"v_cmp_ne_u64 s[{S_M1}:{S_M1+1}], s[{S_NONCE}:{S_NONCE+1}], v[{vt+6}:{vt+7}]")
            a("s_nop 0")
            a(f"s_or_b64 s[{T4}:{T5}], s[{T4}:{T5}], vcc")
            a(f"s_or_b64 s[{T4}:{T5}], s[{T4}:{T5}], s[{S_M1}:{S_M1+1}]")
        else:
            a(f"v_and_b32 v{vt+2}, {n-1}, v0")
            a(f"v_mul_u32_u24 v{vt+2}, {spacing}, v{vt+2}")
            a.label(L)
            a(f"buffer_load_dwordx2 v[{vt}:{vt+1}], v{vt+2}, s[{SRD_WS}:{SRD_WS+3}], s{s_off} offen sc1")
            a(f"s_add_u32 s{S_SPIN}, s{S_SPIN}, 1")
            a("s_waitcnt vmcnt(0)")
            a(f"v_cmp_ne_u64 vcc, s[{S_NONCE}:{S_NONCE+1}], v[{vt}:{vt+1}]")
            a("s_nop 0")
            a(f"s_or_b64 s[{T4}:{T5}], vcc, vcc")
        a(f"s_cbranch_scc0 {Ld}")
        a(f"s_cmp_lt_u32 s{S_SPIN}, {SPIN_MAX}")
        a(f"s_cbranch_scc1 {L}")
        a.label(Ld)

    def poll2(self, va, vb, s_off, vt):
        a = self.a
        L = a.newlabel("poll"); Ld = a.newlabel("polld")
        N = f"s[{S_NONCE}:{S_NONCE+1}]"
        a(f"s_cmp_lg_u32 s{S_W}, 0")
        a(f"s_cbranch_scc1 {Ld}")
        a(f"s_mov_b32 s{S_SPIN}, 0")
        a.label(L)
        a(f"buffer_load_dwordx2 v[{vt}:{vt+1}], v{va}, s[{SRD_WS}:{SRD_WS+3}], s{s_off} offen sc1")
        a(f"buffer_load_dwordx2 v[{vt+2}:{vt+3}], v{vb}, s[{SRD_WS}:{SRD_WS+3}], s{s_off} offen sc1")
        a(f"s_add_u32 s{S_SPIN}, s{S_SPIN}, 1")
        a("s_waitcnt vmcnt(0)")
        a(f"v_cmp_ne_u64 vcc, {N}, v[{vt}:{vt+1}]")
        a(f"v_cmp_ne_u64 s[{S_M1}:{S_M1+1}], {N}, v[{vt+2}:{vt+3}]")
        a("s_nop 0")
        a(f"s_or_b64 vcc, vcc, s[{S_M1}:{S_M1+1}]")
        a(f"s_cbranch_scc0 {Ld}")
        a(f"s_cmp_lt_u32 s{S_SPIN}, {SPIN_MAX}")
        a(f"s_cbranch_scc1 {L}")
        a.label(Ld)

    def entry(self):
        a = self.a
        a(f"s_cmp_ge_u32 s{S_G}, 256")
        a("s_cbranch_scc1 L_end")
        a(f"s_load_dwordx16 s[{S_PTR}:{S_PTR+15}], s[0:1], 0")
        a(f"s_load_dwordx2 s[{S_PTR+16}:{S_PTR+17}], s[0:1], 64")
        a(f"s_memrealtime s[{S_NONCE}:{S_NONCE+1}]")
        if self.o.get("stamps"): a("v_mov_b32 v255, 0")
        self.stamp(0)
        a("v_lshrrev_b32 v1, 6, v0")
        a("v_and_b32 v0, 63, v0")
        a(f"v_readfirstlane_b32 s{S_W}, v1")
        a(f"s_and_b32 s{S_C}, s{S_G}, 7")
        a(f"s_lshr_b32 s{S_J}, s{S_G}, 3")

    ACC = 16; XF = 160; WF = 176; XA = 72; WA = 144; DXA, DXB, DW = 78, 79, 80; VXM = 76
    ONES = 82
    CQ = 96
    CQA = 81; CSW = 85
    RSA, RS = 84, 128
    STA = 86
    RLV, RLA = 157, 158
    VN = 92
    sRB, sCT, sKC, sXO, sWO, sSLOT, sCNT, sXM, sTG, sNH = 64, 65, 66, 67, 68, 69, 70, 71, 72, 73
    sTAB = 74
    sM0X = 80; sWO2 = 81; sKC0 = 82; sSIDE = 83; sI1 = 71; sI2 = 34; sSM = 35
    sRL = 84
    P1_MISC = 148 * 1024
    RL_SCR = 68 * 1024
    CQ_SCR = 128 * 1024
    DUMMY = 159 * 1024
    CPF_LINES = 8

    def p1_issue(self, pieces=(0, 1, 2, 3)):
        a = self.a
        if 0 in pieces:
            a(f"s_add_u32 m0, s{self.sM0X}, s{self.sSLOT}")
            a(f"s_add_u32 s{self.sKC}, s{self.sKC}, 1")
            self.dma(self.DXA, SRD_X, f"s{self.sXO}")
        if 1 in pieces:
            a("s_add_u32 m0, m0, 16384")
            a(f"s_add_u32 s{self.sWO2}, s{self.sWO}, 15360")
            self.dma(self.DW, SRD_WQ, f"s{self.sWO}")
        if 2 in pieces:
            a("s_sub_u32 m0, m0, 15360")
            a(f"s_add_u32 s{self.sWO}, s{self.sWO}, 245760")
            self.dma(self.DXB, SRD_X, f"s{self.sXO}")
        if 3 in pieces:
            a("s_add_u32 m0, m0, 16384")
            a(f"s_add_u32 s{self.sXO}, s{self.sXO}, 128")
            self.dma(self.DW, SRD_WQ, f"s{self.sWO2}")
            a(f"s_cmp_eq_u32 s{self.sKC}, 10")
            a(f"s_cselect_b32 s{T0}, 1280, 0")
            a(f"s_cselect_b32 s{T1}, 2457600, 0")
            a(f"s_cselect_b32 s{self.sKC}, 0, s{self.sKC}")
            a(f"s_sub_u32 s{self.sXO}, s{self.sXO}, s{T0}")
            a(f"s_sub_u32 s{self.sWO}, s{self.sWO}, s{T1}")
            a(f"s_add_u32 s{self.sSLOT}, s{self.sSLOT}, 32768")
            a(f"s_and_b32 s{self.sSLOT}, s{self.sSLOT}, 0x1ffff")

    def p1_setup_a(self):
        a = self.a
        a(f"s_lshr_b32 s{T0}, s{S_C}, 1")
        a(f"s_lshl_b32 s{T0}, s{T0}, 2")
        a(f"s_lshr_b32 s{T1}, s{S_J}, 3")
        a(f"s_add_u32 s{self.sRB}, s{T0}, s{T1}")
        a(f"s_and_b32 s{T0}, s{S_C}, 1")
        a(f"s_lshl_b32 s{T0}, s{T0}, 3")
        a(f"s_and_b32 s{T2}, s{S_J}, 7")
        a(f"s_add_u32 s{self.sCT}, s{T0}, s{T2}")
        g = int(self.o.get("rotg", 4))
        if g == 8:
            a(f"s_lshl_b32 s{T1}, s{T1}, 1")
            a(f"s_add_u32 s{self.sKC}, s{T2}, s{T1}")
            a(f"s_bfe_u32 s{T0}, s{S_C}, 0x10001")
            a(f"s_and_b32 s{T1}, s{S_C}, 4")
            a(f"s_lshl_b32 s{T1}, s{T1}, 1")
            a(f"s_add_u32 s{T0}, s{T0}, s{T1}")
            a(f"s_add_u32 s{self.sKC}, s{self.sKC}, s{T0}")
        else:
            bases, offs, shift = {3: ((0, 3, 7), (0, 1, 2, 6), 0), 4: ((0, 2, 5, 7), (0, 1, 2, 3), 0), 5: ((0, 2, 4, 6, 8), (0, 1, 0, 1), 1)}[g]
            a(f"s_add_u32 s{T1}, s{T1}, s{T2}")
            a(f"s_lshr_b32 s{T0}, s{S_C}, 1")
            if shift: a(f"s_add_u32 s{T1}, s{T1}, s{T0}")
            tab = sum(bases[i % g] << (4 * i) for i in range(16))
            a(f"s_lshl_b32 s{T1}, s{T1}, 2")
            a(f"s_mov_b32 s{T4}, 0x{tab & 0xffffffff:08x}")
            a(f"s_mov_b32 s{T5}, 0x{tab >> 32:08x}")
            a(f"s_lshr_b64 s[{T4}:{T5}], s[{T4}:{T5}], s{T1}")
            a(f"s_and_b32 s{self.sKC}, s{T4}, 15")
            a(f"s_lshl_b32 s{T0}, s{T0}, 2")
            a(f"s_lshr_b32 s{T0}, 0x{sum(o << (4 * i) for i, o in enumerate(offs)):04x}, s{T0}")
            a(f"s_and_b32 s{T0}, s{T0}, 15")
            a(f"s_add_u32 s{self.sKC}, s{self.sKC}, s{T0}")
            for ct in range(8):
                assert len({(bases[(ct + rl + shift * aa) % g] + offs[aa]) % 10 for aa in range(4) for rl in range(4)}) == 10
        a(f"s_mul_i32 s{T0}, s{self.sKC}, 26")
        a(f"s_lshr_b32 s{T0}, s{T0}, 8")
        a(f"s_mul_i32 s{T0}, s{T0}, 10")
        a(f"s_sub_u32 s{self.sKC}, s{self.sKC}, s{T0}")
        a(f"s_mov_b32 s{self.sKC0}, s{self.sKC}")
        a(f"s_mul_i32 s{self.sXO}, s{self.sRB}, 163840")
        a(f"s_lshl_b32 s{T0}, s{self.sKC}, 7")
        a(f"s_add_u32 s{self.sXO}, s{self.sXO}, s{T0}")
        a(f"s_mul_i32 s{self.sWO}, s{self.sKC}, 245760")
        a(f"s_lshl_b32 s{T0}, s{self.sCT}, 8")
        a(f"s_add_u32 s{self.sWO}, s{self.sWO}, s{T0}")
        a(f"s_lshl_b32 s{self.sM0X}, s{S_W}, 11")
        a(f"s_mov_b32 s{self.sSLOT}, 0")
        a(f"s_mov_b64 s[{SRD_RL}:{SRD_RL+1}], 0")
        a(f"s_mov_b32 s{SRD_RL+2}, 0")
        a(f"s_mov_b32 s{SRD_RL+3}, 0x20000")
        a(f"v_mov_b32 v{self.RLV}, 0")
        a("v_lshrrev_b32 v1, 3, v0")
        a("v_lshrrev_b32 v2, 4, v0")
        a("v_and_b32 v3, 7, v0")
        a("v_xor_b32 v3, v3, v2")
        a(f"s_lshl_b32 s{T0}, s{S_W}, 4")
        a(f"v_add_u32 v4, s{T0}, v1")
        a("v_mul_u32_u24 v4, 1280, v4")
        a(f"v_lshl_add_u32 v{self.DXA}, v3, 4, v4")
        a(f"v_xor_b32 v{self.DXB}, 64, v{self.DXA}")
        a(f"v_add_u32 v{self.DXB}, 10240, v{self.DXB}")
        a("v_lshlrev_b32 v3, 2, v2")
        a("v_and_b32 v4, 15, v0")
        a("v_xor_b32 v3, v3, v4")
        a(f"s_lshl_b32 s{T0}, s{S_W}, 3")
        a(f"v_add_u32 v4, s{T0}, v2")
        a("v_mul_u32_u24 v4, 3840, v4")
        a(f"v_lshl_add_u32 v{self.DW}, v3, 4, v4")
        a("s_waitcnt lgkmcnt(0)")
        if self.o.get("fixown"): a(f"s_mov_b32 s31, s{S_NONCE}")
        if self.o.get("diag"): a("s_mov_b32 s35, 0")
        self.srd(SRD_DBG, S_PTR + 14, 256)
        a(f"s_or_b32 s{T0}, s{S_G}, s{S_W}")
        a("s_cbranch_scc1 L_nonce_done")
        a("v_mov_b32 v3, 0")
        a(f"v_mov_b32 v4, s{S_NONCE}")
        a(f"v_mov_b32 v5, s{S_NONCE+1}")
        a("s_mov_b64 exec, 1")
        a(f"buffer_store_dwordx2 v[4:5], v3, s[{SRD_DBG}:{SRD_DBG+3}], 0 offen sc1")
        a("s_mov_b64 exec, -1")
        a.label("L_nonce_done")
        self.srd(SRD_X, S_PTR + 0, 2048 * 1280)
        self.srd(SRD_WQ, S_PTR + 2, 640 * 3840)
        a(f"s_cmp_eq_u32 s{self.sCT}, 15")
        a("s_cbranch_scc1 L_p1_noissue")
        self.p1_issue()
        if self.o.get("first5", "1") == "1": self.p1_issue((0,))
        a.label("L_p1_noissue")
        self.stamp(1)
        self.srd(SRD_WS, S_PTR + 16, WS_SIZE + ((1 << 20) if self.o.get("stamps") else 0))
        self.srd(SRD_OUT, S_PTR + 12, 2048 * 1280)
        if self.o.get("cpf", "1") == "1":
            Lc = a.newlabel("cpf")
            a(f"s_cmp_lg_u32 s{S_W}, 7")
            a(f"s_cbranch_scc1 {Lc}")
            a(f"s_getpc_b64 s[{T4}:{T5}]")
            a.label("L_pc_here")
            a(f"s_mul_i32 s{T0}, s{S_J}, {self.CPF_LINES*128}")
            a(f"s_sub_u32 s{T0}, s{T0}, L_pc_here-{NAME}_kernel")
            a(f"v_min_u32 v3, {self.CPF_LINES-1}, v0")
            a(f"v_lshl_add_u32 v3, v3, 7, s{T0}")
            a("v_ashrrev_i32 v5, 31, v3")
            a(f"v_mov_b32 v6, s{T5}")
            a(f"v_add_co_u32 v4, vcc, s{T4}, v3")
            a("s_nop 1")
            a("v_addc_co_u32 v5, vcc, v5, v6, vcc")
            a("global_load_dword v254, v[4:5], off")
            a.label(Lc)

    def relayout_setup(self):
        a = self.a
        R = self.sRL
        u = a.newlabel("u")
        sID, sKS, sCB, sST, sA, sB, sCc, sD = T0, T1, T2, T3, 93, 94, 95, 96
        sBase, sSl, sKsS = 97, 98, 99
        a(f"s_mul_i32 s{sID}, s{S_G}, 5")
        a(f"s_add_u32 s{sID}, s{sID}, s{S_W}")
        a(f"s_sub_u32 s{sID}, s{sID}, 1")
        a(f"s_min_u32 s{sID}, s{sID}, 1279")
        a(f"s_mov_b32 s{sA}, 16")
        a(f"s_mov_b32 s{sB}, 8")
        a(f"s_mov_b32 s{sCc}, 4")
        a(f"s_mov_b32 s{SRD_RL+3}, 0x20000")
        a(f"s_mov_b32 s{R+8}, -1")
        a(f"s_cmp_lt_u32 s{sID}, 200")
        a(f"s_cbranch_scc1 L_rl_wo{u}")
        a(f"s_cmp_lt_u32 s{sID}, 740")
        a(f"s_cbranch_scc1 L_rl_w1{u}")
        a(f"s_sub_u32 s{sID}, s{sID}, 740")
        a(f"s_mul_i32 s{sKS}, s{sID}, 6554")
        a(f"s_lshr_b32 s{sKS}, s{sKS}, 16")
        a(f"s_mul_i32 s{sCB}, s{sKS}, 10")
        a(f"s_sub_u32 s{sCB}, s{sID}, s{sCB}")
        a(f"s_lshl_b32 s{sD}, s{sKS}, 5")
        a(f"s_mov_b32 s{SRD_RL}, s{S_PTR+10}")
        a(f"s_and_b32 s{SRD_RL+1}, s{S_PTR+11}, 0xffff")
        a(f"s_mov_b32 s{SRD_RL+2}, {1728*1280}")
        a(f"s_mov_b32 s{sBase}, {WS_W2}")
        a(f"s_mov_b32 s{sSl}, {54*5120}")
        a(f"s_add_u32 s{T4}, s{sKS}, 3")
        a(f"s_cmp_ge_u32 s{sKS}, 24")
        a(f"s_cselect_b32 s{T4}, s{T4}, s{sKS}")
        a(f"s_sub_u32 s{T5}, s{sKS}, 24")
        a(f"s_cmp_ge_u32 s{sKS}, 48")
        a(f"s_cselect_b32 s{T4}, s{T5}, s{T4}")
        a(f"s_cmp_ge_u32 s{sKS}, 51")
        a(f"s_cselect_b32 s{sKS}, s{sKS}, s{T4}")
        a(f"s_branch L_rl_n640{u}")
        a.label(f"L_rl_wo{u}")
        a(f"s_mul_i32 s{sKS}, s{sID}, 6554")
        a(f"s_lshr_b32 s{sKS}, s{sKS}, 16")
        a(f"s_mul_i32 s{sCB}, s{sKS}, 10")
        a(f"s_sub_u32 s{sCB}, s{sID}, s{sCB}")
        a(f"s_mul_i32 s{sD}, s{sKS}, 40")
        a(f"s_mul_i32 s{sST}, s{sKS}, 160")
        a(f"s_sub_u32 s{sST}, s{sST}, {160*16-16}")
        a(f"s_cmp_lt_u32 s{sKS}, 16")
        a(f"s_cselect_b32 s{sD}, s{sD}, s{sST}")
        a(f"s_cselect_b32 s{sA}, 8, 20")
        a(f"s_cselect_b32 s{sB}, 20, 0x50")
        a(f"s_cselect_b32 s{sCc}, 4, 40")
        a(f"s_mov_b32 s{SRD_RL}, s{S_PTR+4}")
        a(f"s_and_b32 s{SRD_RL+1}, s{S_PTR+5}, 0xffff")
        a(f"s_mov_b32 s{SRD_RL+2}, {640*1280}")
        a(f"s_mov_b32 s{sBase}, {WS_WO}")
        a(f"s_mov_b32 s{sSl}, {20*5120}")
        a(f"s_add_u32 s{T4}, s{sKS}, 2")
        a(f"s_cmp_ge_u32 s{sKS}, 8")
        a(f"s_cselect_b32 s{T4}, s{T4}, s{sKS}")
        a(f"s_sub_u32 s{T5}, s{sKS}, 8")
        a(f"s_cmp_ge_u32 s{sKS}, 16")
        a(f"s_cselect_b32 s{T4}, s{T5}, s{T4}")
        a(f"s_cmp_ge_u32 s{sKS}, 18")
        a(f"s_cselect_b32 s{sKS}, s{sKS}, s{T4}")
        a(f"s_sub_u32 s{T4}, s{sKS}, 1")
        a(f"s_cmp_ge_u32 s{sKS}, 10")
        a(f"s_cselect_b32 s{T4}, s{T4}, s{sKS}")
        a(f"s_cmp_eq_u32 s{sKS}, 9")
        a(f"s_cselect_b32 s{T4}, 18, s{T4}")
        a(f"s_cmp_eq_u32 s{sKS}, 19")
        a(f"s_cselect_b32 s{sKS}, 19, s{T4}")
        a.label(f"L_rl_n640{u}")
        a(f"s_mov_b32 s{sST}, 1280")
        a(f"s_mul_i32 s{sKsS}, s{sKS}, 5120")
        a(f"s_add_u32 s{sBase}, s{sBase}, s{sKsS}")
        for t in range(4):
            a(f"s_lshl_b32 s{T4}, s{sCB}, 2")
            a(f"s_add_u32 s{T4}, s{T4}, {t}")
            a(f"s_mul_i32 s{T5}, s{T4}, 52")
            a(f"s_lshr_b32 s{T5}, s{T5}, 8")
            a(f"s_mul_i32 s{R+4+t}, s{T5}, s{sSl}")
            a(f"s_mul_i32 s{T5}, s{T5}, 5")
            a(f"s_sub_u32 s{T4}, s{T4}, s{T5}")
            a(f"s_lshl_b32 s{T4}, s{T4}, 10")
            a(f"s_add_u32 s{R+4+t}, s{R+4+t}, s{T4}")
            a(f"s_add_u32 s{R+4+t}, s{R+4+t}, s{sBase}")
        a(f"s_branch L_rl_common{u}")
        a.label(f"L_rl_w1{u}")
        a(f"s_sub_u32 s{sID}, s{sID}, 200")
        a(f"s_mul_i32 s{sKS}, s{sID}, 2428")
        a(f"s_lshr_b32 s{sKS}, s{sKS}, 16")
        a(f"s_mul_i32 s{sCB}, s{sKS}, 27")
        a(f"s_sub_u32 s{sCB}, s{sID}, s{sCB}")
        a(f"s_lshr_b32 s{T4}, s{sKS}, 1")
        a(f"s_mul_i32 s{T4}, s{T4}, 0x50")
        a(f"s_and_b32 s{T5}, s{sKS}, 1")
        a(f"s_lshl_b32 s{T5}, s{T5}, 5")
        a(f"s_add_u32 s{sD}, s{T4}, s{T5}")
        a(f"s_mul_i32 s{T4}, s{sKS}, 160")
        a(f"s_sub_u32 s{T4}, s{T4}, {160*16-64}")
        a(f"s_cmp_lt_u32 s{sKS}, 16")
        a(f"s_cselect_b32 s{sD}, s{sD}, s{T4}")
        a(f"s_cselect_b32 s{sA}, 16, 0x50")
        a(f"s_mov_b32 s{SRD_RL}, s{S_PTR+8}")
        a(f"s_and_b32 s{SRD_RL+1}, s{S_PTR+9}, 0xffff")
        a(f"s_mov_b32 s{SRD_RL+2}, {640*3456}")
        a(f"s_mov_b32 s{sST}, 3456")
        a(f"s_mul_i32 s{sKsS}, s{sKS}, 7168")
        a(f"s_add_u32 s{sBase}, s{sKsS}, {WS_W1}")
        a(f"s_mul_i32 s{R+8}, s{sKS}, {1728*4}")
        a(f"s_lshl_b32 s{T4}, s{sCB}, 8")
        a(f"s_add_u32 s{R+8}, s{R+8}, s{T4}")
        a(f"s_add_u32 s{R+8}, s{R+8}, {WS_CS1}")
        for t in range(4):
            a(f"s_lshl_b32 s{T4}, s{sCB}, 2")
            a(f"s_add_u32 s{T4}, s{T4}, {t}")
            a(f"s_mul_i32 s{T5}, s{T4}, 43")
            a(f"s_lshr_b32 s{T5}, s{T5}, 8")
            a(f"s_mul_i32 s{sSl}, s{T5}, 6")
            a(f"s_sub_u32 s{sSl}, s{T4}, s{sSl}")
            a(f"s_sub_u32 s{sKsS}, s{T4}, 96")
            a(f"s_cmp_lt_u32 s{T4}, 96")
            a(f"s_cselect_b32 s{T5}, s{T5}, s{sKsS}")
            a(f"s_cselect_b32 s{sSl}, s{sSl}, 6")
            a(f"s_mul_i32 s{R+4+t}, s{T5}, {20*7168}")
            a(f"s_lshl_b32 s{sSl}, s{sSl}, 10")
            a(f"s_add_u32 s{R+4+t}, s{R+4+t}, s{sSl}")
            a(f"s_add_u32 s{R+4+t}, s{R+4+t}, s{sBase}")
        a.label(f"L_rl_common{u}")
        a(f"s_mul_i32 s{sD}, s{sD}, s{sST}")
        a(f"s_lshl_b32 s{T4}, s{sCB}, 7")
        a(f"s_add_u32 s{R}, s{sD}, s{T4}")
        a(f"s_mul_i32 s{sA}, s{sA}, s{sST}")
        a(f"s_mul_i32 s{sB}, s{sB}, s{sST}")
        a(f"s_add_u32 s{R+1}, s{R}, s{sB}")
        a(f"s_add_u32 s{R+2}, s{R}, s{sA}")
        a(f"s_add_u32 s{R+3}, s{R+2}, s{sB}")
        a("v_lshrrev_b32 v1, 5, v0")
        a(f"v_mul_u32_u24 v1, s{sCc}, v1")
        a("v_bfe_u32 v2, v0, 3, 2")
        a("v_add_u32 v1, v1, v2")
        a(f"v_mul_u32_u24 v1, s{sST}, v1")
        a("v_and_b32 v2, 7, v0")
        a(f"v_lshl_add_u32 v{self.RLV}, v2, 4, v1")
        a("v_lshrrev_b32 v1, 2, v0")
        a("v_lshlrev_b32 v1, 7, v1")
        a("v_and_b32 v2, 3, v0")
        a("v_lshl_add_u32 v1, v2, 3, v1")
        a(f"s_lshl_b32 s{T4}, s{S_W}, 12")
        a(f"s_add_u32 s{T4}, s{T4}, {self.RL_SCR-4096}")
        a(f"v_add_u32 v{self.RLA}, s{T4}, v1")

    def relayout_issue(self, drain_older=False):
        a = self.a
        L = a.newlabel("rlsk")
        a(f"s_sub_u32 s{T0}, s{S_W}, 1")
        a(f"s_cmp_ge_u32 s{T0}, {0 if self.o.get('norl') else 5}")
        a(f"s_cbranch_scc1 {L}")
        a(f"s_lshl_b32 s{T0}, s{S_W}, 12")
        a(f"s_add_u32 m0, s{T0}, {self.RL_SCR-4096}")
        for i in range(4):
            if i: a("s_add_u32 m0, m0, 1024")
            a("s_nop 0")
            self.dma(self.RLV, SRD_RL, f"s{self.sRL+i}")
        if drain_older:
            L2 = a.newlabel("rlw")
            a("s_waitcnt vmcnt(4)")
            a(f"s_branch {L2}")
            a.label(L)
            a("s_waitcnt vmcnt(0)")
            a.label(L2)
        else:
            a.label(L)

    def relayout_finish(self, younger=None):
        a = self.a
        L = a.newlabel("rlsk"); F = 168; t = 184
        a(f"s_sub_u32 s{T0}, s{S_W}, 1")
        a(f"s_cmp_ge_u32 s{T0}, 5")
        Lo = a.newlabel("rlo")
        a(f"s_cbranch_scc1 {Lo if younger is not None else L}")
        if younger is not None: a(f"s_waitcnt vmcnt({younger})")
        for q in range(4):
            for rd in range(2):
                a(f"ds_read_b64_tr_b16 v[{F+4*q+2*rd}:{F+4*q+2*rd+1}], v{self.RLA} offset:{rd*2048+q*32}")
        a(f"v_lshlrev_b32 v{t}, 4, v0")
        for q in range(4):
            a(f"s_waitcnt lgkmcnt({6-2*q})")
            a(f"buffer_store_dwordx4 v[{F+4*q}:{F+4*q+3}], v{t}, s[{SRD_WS}:{SRD_WS+3}], s{self.sRL+4+q} offen sc1")
        if younger is not None: a("s_waitcnt vmcnt(4)")
        a(f"s_cmp_eq_u32 s{self.sRL+8}, -1")
        a(f"s_cbranch_scc1 {L}")
        for q in range(4): a(f"v_mov_b32 v{t+2+q}, 0")
        a(f"v_mov_b32 v{t+6}, 0x3f803f80")
        for k in range(4):
            for q in range(4): a(f"v_dot2_f32_bf16 v{t+2+q}, v{F+4*q+k}, v{t+6}, v{t+2+q}")
        a(f"v_lshlrev_b32 v{t+1}, 2, v0")
        a("s_nop 1")
        a(f"v_permlane16_swap_b32 v{t+2}, v{t+3}")
        a(f"v_permlane16_swap_b32 v{t+4}, v{t+5}")
        a("s_nop 0")
        a(f"v_add_f32 v{t+2}, v{t+2}, v{t+3}")
        a(f"v_add_f32 v{t+4}, v{t+4}, v{t+5}")
        a("s_nop 1")
        a(f"v_permlane32_swap_b32 v{t+2}, v{t+4}")
        a("s_nop 0")
        a(f"v_add_f32 v{t+2}, v{t+2}, v{t+4}")
        a(f"buffer_store_dword v{t+2}, v{t+1}, s[{SRD_WS}:{SRD_WS+3}], s{self.sRL+8} offen sc1")
        if younger is not None:
            a(f"s_branch {L}")
            a.label(Lo)
            a("s_waitcnt vmcnt(0)")
        a.label(L)

    def p1_setup_b(self):
        a = self.a
        a(f"s_and_b32 s{self.sTG}, s{S_W}, 3")
        a(f"s_lshr_b32 s{self.sNH}, s{S_W}, 2")
        a(f"s_cmp_ge_u32 s{self.sCT}, 5")
        a(f"s_cselect_b32 s{T0}, 5, 0")
        a(f"s_sub_u32 s{T0}, s{self.sCT}, s{T0}")
        a(f"s_lshl_b32 s{T0}, s{T0}, 1")
        a(f"s_add_u32 s{T0}, s{T0}, s{self.sNH}")
        for idx in range(10):
            a(f"s_cmp_eq_u32 s{T0}, {idx}")
            a(f"s_cbranch_scc1 L_tab{idx}")
        a(f"s_mul_i32 s{T1}, s{self.sNH}, 0x10101010")
        for k in range(4): a(f"s_add_u32 s{self.sTAB+k}, s{T1}, 0x%08x" % (0x03020100 + 0x04040404 * k))
        a(f"s_mov_b32 s{self.sTAB+4}, 0")
        a(f"s_mov_b32 s{self.sTAB+5}, 0")
        a("s_branch L_tabdone")
        for idx in range(10):
            a.label(f"L_tab{idx}")
            for k, d in enumerate(p1_table(idx // 2, idx % 2)): a(f"s_mov_b32 s{self.sTAB+k}, 0x%08x" % d)
            if idx < 9: a("s_branch L_tabdone")
        a.label("L_tabdone")
        a("v_and_b32 v1, 31, v0")
        a(f"s_lshl_b32 s{T0}, s{self.sTG}, 5")
        a(f"v_add_u32 v2, s{T0}, v1")
        a("v_bfe_u32 v3, v2, 1, 3")
        a("v_lshrrev_b32 v4, 5, v0")
        a("v_xor_b32 v3, v3, v4")
        a("v_lshlrev_b32 v3, 4, v3")
        a(f"v_lshl_add_u32 v{self.XA}, v2, 7, v3")
        a(f"s_xor_b32 s{T3}, s{self.sTG}, s{self.sNH}")
        a(f"s_lshl_b32 s{T0}, s{T3}, 5")
        a(f"v_xor_b32 v{self.XA}, s{T0}, v{self.XA}")
        for ks in range(1, 4): a(f"v_xor_b32 v{self.XA+ks}, {ks<<5}, v{self.XA}")
        a("v_bfe_u32 v5, v0, 2, 2")
        a("v_lshl_add_u32 v6, v4, 3, v5")
        a("v_lshlrev_b32 v6, 8, v6")
        a("v_and_b32 v7, 3, v0")
        a("v_lshlrev_b32 v7, 3, v7")
        a("v_and_b32 v8, 16, v0")
        a("v_cmp_ne_u32 vcc, 0, v8")
        for i in range(2):
            a(f"v_mov_b32 v8, s{self.sTAB+2*i}")
            a(f"v_mov_b32 v9, s{self.sTAB+2*i+1}")
            a("v_cndmask_b32 v8, v8, v9, vcc")
            a("v_bfe_u32 v8, v8, v7, 8")
            a("v_lshlrev_b32 v8, 3, v8")
            a("v_lshlrev_b32 v9, 6, v5")
            a("v_xor_b32 v8, v8, v9")
            a(f"v_add_u32 v8, v6, v8")
            a(f"s_lshl_b32 s{T0}, s{T3}, 12")
            a(f"v_add_u32 v{self.WA+4*i}, s{T0}, v8")
            for j in range(1, 4): a(f"v_xor_b32 v{self.WA+4*i+j}, {j<<12}, v{self.WA+4*i}")
        a(f"s_lshl_b32 s{T0}, s{self.sRB}, 2")
        a(f"s_add_u32 s{T0}, s{T0}, s{self.sTG}")
        a(f"s_lshl_b32 s{T1}, s{T0}, 9")
        a(f"s_add_u32 s{T1}, s{T1}, {WS_RS}")
        a(f"v_lshl_add_u32 v{self.RSA}, v1, 4, s{T1}")
        a(f"s_cmp_ge_u32 s{self.sCT}, 10")
        a("s_cbranch_scc1 L_p1_vaddr")
        a(f"s_lshl_b32 s{T0}, s{T0}, 9")
        a(f"s_cmp_ge_u32 s{self.sCT}, 5")
        a(f"s_cselect_b32 s{T1}, {WS_K}, {WS_Q}")
        a(f"s_add_u32 s{T0}, s{T0}, s{T1}")
        a(f"v_lshl_add_u32 v2, v1, 4, s{T0}")
        a("v_lshlrev_b32 v3, 3, v4")
        a("v_add_u32 v5, 16, v3")
        for i in range(2):
            for qq in range(2):
                a(f"v_bfe_u32 v6, s{self.sTAB+4+i}, v{3 if qq == 0 else 5}, 8")
                a(f"v_lshl_add_u32 v{self.STA+2*i+qq}, v6, 15, v2")
        a("s_branch L_p1_addrdone")
        a.label("L_p1_vaddr")
        a(f"s_mul_i32 s{T0}, s{T0}, 1280")
        a(f"s_add_u32 s{T0}, s{T0}, {WS_V}")
        a(f"s_lshl_b32 s{T1}, s{self.sCT}, 7")
        a(f"s_lshl_b32 s{T2}, s{self.sNH}, 6")
        a(f"s_add_u32 s{T1}, s{T1}, s{T2}")
        a(f"s_sub_u32 s{T1}, s{T1}, 1280")
        a(f"v_mov_b32 v{self.STA+2}, 0")
        a(f"v_mov_b32 v{self.STA+3}, 0")
        a("v_mul_u32_u24 v3, 320, v4")
        a(f"v_add_u32 v3, s{T0}, v3")
        a(f"s_mov_b32 s{T2}, 81920")
        for i in range(2):
            a(f"v_add_u32 v5, s{T1}, v1")
            if i: a("v_add_u32 v5, 32, v5")
            a("v_mul_u32_u24 v6, 3277, v5")
            a("v_lshrrev_b32 v6, 16, v6")
            a("v_mul_u32_u24 v7, 20, v6")
            a("v_sub_u32 v5, v5, v7")
            a("v_lshl_add_u32 v5, v5, 4, v3")
            a(f"v_mad_u32_u24 v{self.STA+i}, v6, s{T2}, v5")
        a.label("L_p1_addrdone")
        for r in range(32): a(f"v_mov_b32 v{self.ACC+r}, 0")
        a(f"s_mul_i32 s{T0}, s{self.sCT}, 10240")
        a(f"s_lshl_b32 s{T1}, s{self.sNH}, 9")
        a(f"s_add_u32 s{T0}, s{T0}, s{T1}")
        a(f"s_add_u32 s{T0}, s{T0}, {WS_CQ}")
        a(f"v_lshl_add_u32 v{self.CQA}, v0, 3, s{T0}")
        a(f"s_lshl_b32 s{T0}, s{self.sNH}, 8")
        a(f"s_lshl_b32 s{T1}, s{self.sTG}, 9")
        a(f"s_add_u32 s{T0}, s{T0}, {self.P1_MISC}")
        a(f"s_add_u32 s{T1}, s{T1}, s{T0}")
        a(f"v_lshl_add_u32 v{self.CSW}, v0, 2, s{T1}")
        a(f"v_lshl_add_u32 v95, v0, 2, s{T0}")
        a(f"v_mov_b32 v{self.VXM}, 0x8000")
        a(f"s_mov_b32 s{self.sCNT}, -1")
        a(f"s_cmp_eq_u32 s{self.sTG}, 0")
        a(f"s_cselect_b32 s{self.sSIDE}, 2, 0")

    def p1_loop(self, vmode):
        a = self.a
        tag = "v" if vmode else "q"
        a(f"s_cmp_lg_u32 s{self.sNH}, 0")
        a(f"s_cbranch_scc1 L_p1_B{tag}")
        self.p1_loop1(vmode, 0)
        a(f"s_branch L_p1_E{tag}")
        a.label(f"L_p1_B{tag}")
        self.p1_loop1(vmode, 1)
        a.label(f"L_p1_E{tag}")
        reads, xors, mf = self.p1_parts(vmode)
        def comp(ks, rd=True, xr=True):
            a(f"s_waitcnt lgkmcnt({5 if rd or ks == 2 else 0})")
            mf(ks, 0)
            if rd: reads((ks + 2) % 4)
            mf(ks, 1)
            if xr: xors((ks + 2) % 4)
        comp(0); self.p1_issue((2,))
        comp(1); self.p1_issue((3,))
        a(f"buffer_load_dwordx4 v[{self.RS}:{self.RS+3}], v{self.RSA}, s[{SRD_WS}:{SRD_WS+3}], 0 offen sc1")
        a(f"s_mul_i32 s{T0}, s{self.sCT}, 10240")
        a(f"s_lshl_b32 s{T1}, s{S_W}, 10")
        a(f"s_add_u32 s{T0}, s{T0}, s{T1}")
        a(f"s_add_u32 s{T0}, s{T0}, {WS_CQ}")
        a(f"s_add_u32 m0, s{T1}, {self.CQ_SCR}")
        a("v_lshlrev_b32 v1, 4, v0")
        self.dma(1, SRD_WS, f"s{T0}", "sc1")
        a(f"s_add_u32 s{T0}, s{T0}, 8192")
        a("s_add_u32 m0, m0, 8192")
        a(f"s_cmp_ge_u32 s{S_W}, 2")
        a(f"s_cselect_b32 s{T0}, 0x7f000000, s{T0}")
        self.dma(1, SRD_WS, f"s{T0}", "sc1")
        a("s_waitcnt vmcnt(7)")
        a("s_barrier")
        comp(2); comp(3)
        comp(0); comp(1)
        a("s_waitcnt vmcnt(3)")
        a("s_barrier")
        comp(2, xr=False); comp(3, xr=False)
        comp(0, xr=False); comp(1, xr=False)
        a("s_waitcnt vmcnt(0)")
        a("s_barrier")
        self.p1_epi_reads()
        a("s_waitcnt lgkmcnt(15)")
        mf(2, 0); mf(2, 1)
        a("s_waitcnt lgkmcnt(11)")
        mf(3, 0); mf(3, 1)

    def p1_parts(self, vmode):
        a = self.a
        def reads(ks):
            if self.o.get("nolds"): return
            a(f"ds_read_b128 v[{self.XF+4*ks}:{self.XF+4*ks+3}], v{self.XA+ks}")
            for i in range(2):
                for rd in range(2):
                    d = self.WF + 8 * ks + 4 * i + 2 * rd
                    a(f"ds_read_b64_tr_b16 v[{d}:{d+1}], v{self.WA+4*i+ks} offset:{16384+rd*1024}")
        def xors(ks):
            for r in (self.XA + ks, self.WA + ks, self.WA + 4 + ks): a(f"v_xor_b32 v{r}, v{self.VXM}, v{r}")
            if ks == 3: a(f"v_xor_b32 v{self.VXM}, 0x10000, v{self.VXM}")
        def mf(ks, i):
            x = vr(self.XF + 4 * ks, 4); wv = vr(self.WF + 8 * ks + 4 * i, 4); acc = vr(self.ACC + 16 * i, 16)
            if self.o.get("nomfma"): pass
            elif vmode: a(f"v_mfma_f32_32x32x16_bf16 {acc}, {x}, {wv}, {acc}")
            else: a(f"v_mfma_f32_32x32x16_bf16 {acc}, {wv}, {x}, {acc}")
        return reads, xors, mf

    def p1_loop1(self, vmode, B):
        a = self.a
        L = a.newlabel("p1loop")
        pos = self.o.get("barB" if B else "barA", "1" if B else "0")
        reads, xors, mf = self.p1_parts(vmode)
        def bar():
            a("s_waitcnt vmcnt(4)")
            if not self.o.get("nobar"): a("s_barrier")
            if self.o.get("its") == "1": self.stamp_dyn(54, self.sCNT)
        def comp(ks):
            n = (ks + 2) % 4
            if ks == 2 and pos == "0": bar()
            a("s_waitcnt lgkmcnt(5)")
            mf(ks, 0)
            if ks == 2 and pos == "1": bar()
            if ks == 2 and pos == "2":
                mf(ks, 1); bar(); reads(n)
            else:
                reads(n); mf(ks, 1)
            xors(n)
            self.p1_issue((n,))
        a("s_waitcnt vmcnt(6)")
        a("s_barrier")
        self.stamp(3)
        reads(0); reads(1); xors(0); xors(1)
        a("v_mov_b32 v6, 0x3f803f80")
        a("v_mov_b32 v2, 0")
        a("v_mov_b32 v3, 0")
        a("s_waitcnt lgkmcnt(5)")
        for k in range(4):
            for i in range(2): a(f"v_dot2_f32_bf16 v{2+i}, v{self.WF+4*i+k}, v6, v{2+i}")
        a("s_nop 2")
        a("v_permlane32_swap_b32 v2, v3")
        a("s_nop 0")
        a("v_add_f32 v2, v2, v3")
        a(f"ds_write_b32 v{self.CSW}, v2")
        a("s_waitcnt lgkmcnt(0)")
        a.align(6)
        a.label(L)
        comp(0); comp(1); comp(2)
        Lr = a.newlabel("back"); Ls = a.newlabel("side")
        a(f"s_add_u32 s{self.sCNT}, s{self.sCNT}, 1")
        a(f"s_cmp_lt_u32 s{self.sCNT}, s{self.sSIDE}")
        a(f"s_cbranch_scc1 {Ls}")
        a.label(Lr)
        comp(3)
        a(f"s_cmp_lt_u32 s{self.sCNT}, {int(self.o.get('p1n', 10)) - 4}")
        a(f"s_cbranch_scc1 {L}")
        self._sides.append((Ls, Lr))

    def p1_sides(self):
        a = self.a
        for Ls, Lr in self._sides:
            a.label(Ls)
            L1 = a.newlabel("s1")
            a(f"s_cmp_lg_u32 s{self.sCNT}, 0")
            a(f"s_cbranch_scc1 {L1}")
            a("v_mov_b32 v1, 0")
            a(f"buffer_load_dwordx2 v[{self.VN}:{self.VN+1}], v1, s[{SRD_DBG}:{SRD_DBG+3}], 0 offen sc1")
            a(f"s_branch {Lr}")
            a.label(L1)
            a("s_waitcnt vmcnt(4)")
            self.nonce_get("nonce2")
            a(f"v_mov_b32 v1, {self.P1_MISC + 2048}")
            a(f"ds_write_b64 v1, v[{self.VN}:{self.VN+1}]")
            for k in range(4): a(f"ds_read_b32 v{2+k}, v95 offset:{512*k}")
            a(f"s_lshl_b32 s{T0}, s{self.sKC0}, 10")
            a("s_waitcnt lgkmcnt(0)")
            a("v_add_f32 v2, v2, v3")
            a("v_add_f32 v4, v4, v5")
            a(f"v_mov_b32 v3, s{S_NONCE}")
            a("v_add_f32 v2, v2, v4")
            a(f"buffer_store_dwordx2 v[2:3], v{self.CQA}, s[{SRD_WS}:{SRD_WS+3}], s{T0} offen sc1")
            a(f"s_branch {Lr}")

    def p1_gather(self):
        a = self.a
        a(f"buffer_load_dwordx4 v[{self.RS}:{self.RS+3}], v{self.RSA}, s[{SRD_WS}:{SRD_WS+3}], 0 offen sc1")
        a(f"s_movk_i32 s{T0}, 0x1000")
        a(f"s_movk_i32 s{T1}, 0x2000")
        for k in range(10):
            so = ("0", f"s{T0}", f"s{T1}")[k // 4]
            a(f"buffer_load_dwordx2 v[{self.CQ+2*k}:{self.CQ+2*k+1}], v{self.CQA}, s[{SRD_WS}:{SRD_WS+3}], {so} offen offset:{1024*(k%4)} sc1")

    def p1_epi_reads(self):
        a = self.a
        a(f"s_lshl_b32 s{T0}, s{self.sNH}, 9")
        a(f"s_add_u32 s{T0}, s{T0}, {self.CQ_SCR}")
        a(f"v_lshl_add_u32 v1, v0, 3, s{T0}")
        for k in range(10): a(f"ds_read_b64 v[{self.CQ+2*k}:{self.CQ+2*k+1}], v1 offset:{1024*k}")
        a(f"v_mov_b32 v1, {self.P1_MISC + 2048}")
        a(f"ds_read_b64 v[{self.VN}:{self.VN+1}], v1")
        a(f"s_lshl_b32 s{T2}, s{S_W}, 9")
        a(f"s_add_u32 s{T2}, s{T2}, {self.P1_MISC+4096}")
        a(f"v_lshl_add_u32 v6, v0, 2, s{T2}")
        a("v_and_b32 v5, 31, v0")
        a(f"s_mov_b32 s{S_SPIN}, 0")

    def p1_epi_common(self):
        a = self.a
        L = a.newlabel("rs"); Ld = a.newlabel("rsd")
        a("s_waitcnt lgkmcnt(0)")
        a(f"v_readfirstlane_b32 s{S_NONCE}, v{self.VN}")
        a(f"v_readfirstlane_b32 s{S_NONCE+1}, v{self.VN+1}")
        a("s_nop 0")
        a.label(L)
        a(f"v_xor_b32 v2, s{S_NONCE}, v{self.RS+1}")
        a(f"v_xor_b32 v3, s{S_NONCE}, v{self.RS+3}")
        for k in range(0, 10, 2):
            a(f"v_xor_b32 v4, s{S_NONCE}, v{self.CQ+2*k+1}")
            a(f"v_xor_b32 v7, s{S_NONCE}, v{self.CQ+2*k+3}")
            a("v_or3_b32 v2, v2, v4, v7")
        a("v_or_b32 v2, v2, v3")
        a("v_cmp_ne_u32 vcc, 0, v2")
        a(f"s_add_u32 s{S_SPIN}, s{S_SPIN}, 1")
        a("s_or_b64 vcc, vcc, vcc")
        a(f"s_cbranch_scc0 {Ld}")
        a(f"s_cmp_ge_u32 s{S_SPIN}, {SPIN_MAX}")
        a(f"s_cbranch_scc1 {Ld}")
        self.diag("gather")
        self.p1_gather()
        a("s_waitcnt vmcnt(0)")
        a(f"s_branch {L}")
        a.label(Ld)
        Q = self.CQ
        a(f"v_add_f32 v12, v{Q}, v{Q+2}")
        a(f"v_add_f32 v13, v{Q+4}, v{Q+6}")
        a(f"v_add_f32 v14, v{Q+8}, v{Q+10}")
        a(f"v_add_f32 v15, v{Q+12}, v{Q+14}")
        a(f"v_add_f32 v2, v{Q+16}, v{Q+18}")
        a("v_add_f32 v12, v12, v13")
        a("v_add_f32 v14, v14, v15")
        a("v_add_f32 v12, v12, v2")
        a("v_add_f32 v12, v12, v14")
        self.stamp(4)

    def rowstats(self):
        a = self.a
        X = 100
        a("v_lshrrev_b32 v1, 3, v0")
        a(f"s_lshl_b32 s{T0}, s{S_W}, 4")
        a(f"s_lshl_b32 s{T1}, s{self.sRB}, 7")
        a(f"s_add_u32 s{T0}, s{T0}, s{T1}")
        a(f"v_add_u32 v1, s{T0}, v1")
        a("v_mul_u32_u24 v2, 1280, v1")
        a("v_and_b32 v3, 7, v0")
        a("v_lshl_add_u32 v2, v3, 4, v2")
        a(f"s_mov_b32 s{T0}, 10240")
        for k in range(10):
            for hh in range(2):
                r = X + 8 * k + 4 * hh
                a(f"buffer_load_dwordx4 v[{r}:{r+3}], v2, s[{SRD_X}:{SRD_X+3}], {'s%d' % T0 if hh else '0'} offen offset:{128*k}")
        for r in range(4, 8): a(f"v_mov_b32 v{r}, 0")
        a("v_mov_b32 v8, 0x3f803f80")
        for k in range(10):
            a(f"s_waitcnt vmcnt({18-2*k if k < 9 else 1})")
            if k == 8:
                a("v_mov_b32 v3, 0")
                a(f"buffer_load_dwordx2 v[{self.VN}:{self.VN+1}], v3, s[{SRD_DBG}:{SRD_DBG+3}], 0 offen sc1")
            for e in range(4):
                for hh in range(2):
                    r = X + 8 * k + 4 * hh + e
                    a(f"v_dot2_f32_bf16 v{4+hh}, v{r}, v8, v{4+hh}")
                    a(f"v_dot2_f32_bf16 v{6+hh}, v{r}, v{r}, v{6+hh}")
        a("s_nop 2")
        for ctl in ("quad_perm:[1,0,3,2]", "quad_perm:[2,3,0,1]", "row_half_mirror"):
            for r in range(4, 8): a(f"v_add_f32_dpp v{r}, v{r}, v{r} {ctl} row_mask:0xf bank_mask:0xf")
        a("s_waitcnt vmcnt(0)")
        self.nonce_get()
        a("v_and_b32 v3, 1, v0")
        a("v_cmp_ne_u32 vcc, 0, v3")
        a("v_lshlrev_b32 v3, 3, v3")
        a("v_add_u32 v1, v1, v3")
        a("v_cndmask_b32 v4, v4, v5, vcc")
        a("v_cndmask_b32 v6, v6, v7, vcc")
        a(f"v_mul_f32 v4, 0x%08x, v4" % f2u(1.0 / 640))
        a("v_mul_f32 v5, v4, v4")
        a(f"v_mov_b32 v7, 0x%08x" % f2u(1.0 / 640))
        a("v_fma_f32 v5, v6, v7, -v5")
        a("v_max_f32 v5, 0, v5")
        a(f"v_add_f32 v5, 0x%08x, v5" % f2u(1e-5))
        a("v_rsq_f32 v8, v5")
        a(f"v_mov_b32 v9, s{S_NONCE}")
        a(f"v_mov_b32 v11, s{S_NONCE}")
        a("v_mul_f32 v10, v4, v8")
        a("v_lshlrev_b32 v1, 4, v1")
        a(f"s_mov_b32 s{T0}, {WS_RS}")
        a("s_mov_b32 exec_lo, 0x03030303")
        a("s_mov_b32 exec_hi, 0x03030303")
        a(f"buffer_store_dwordx4 v[8:11], v1, s[{SRD_WS}:{SRD_WS+3}], s{T0} offen sc1")
        a("s_mov_b64 exec, -1")

    def p1_epi_q(self):
        a = self.a
        self.p1_epi_common()
        qs = math.log2(math.e) / math.sqrt(20.0)
        a("ds_write_b32 v6, v12")
        a("v_lshrrev_b32 v1, 5, v0")
        a(f"v_lshl_add_u32 v1, v1, 4, s{T2}")
        C = 48
        for i in range(2):
            for q4 in range(4):
                a(f"ds_read_b128 v[{C+16*i+4*q4}:{C+16*i+4*q4+3}], v1 offset:{i*128+q4*32}")
        a(f"s_cmp_lt_u32 s{self.sCT}, 5")
        a(f"s_cselect_b32 s{T1}, 0x%08x, 1.0" % f2u(qs))
        a(f"v_mul_f32 v2, s{T1}, v{self.RS}")
        a(f"v_mul_f32 v3, s{T1}, v{self.RS+2}")
        for i in range(2):
            for qq in range(2):
                a(f"s_waitcnt lgkmcnt({6-4*i-2*qq})")
                b = 16 * i + 8 * qq
                for r in range(8): a(f"v_mul_f32 v{self.ACC+b+r}, v2, v{self.ACC+b+r}")
                for r in range(8): a(f"v_fma_f32 v{self.ACC+b+r}, -v3, v{C+b+r}, v{self.ACC+b+r}")
                o = 4 + 4 * ((2 * i + qq) % 2)
                for r in range(4): a(f"v_cvt_pk_bf16_f32 v{o+r}, v{self.ACC+b+2*r}, v{self.ACC+b+2*r+1}")
                a(f"buffer_store_dwordx4 v[{o}:{o+3}], v{self.STA+2*i+qq}, s[{SRD_WS}:{SRD_WS+3}], 0 offen sc1")

    def p1_epi_v(self):
        a = self.a
        self.p1_epi_common()
        a("v_mov_b32 v13, v12")
        a(f"v_lshl_add_u32 v6, v5, 2, s{T2}")
        a("v_lshrrev_b32 v1, 5, v0")
        a("v_permlane32_swap_b32 v12, v13")
        a(f"ds_write_b32 v6, v{self.RS}")
        a(f"ds_write_b32 v6, v{self.RS+2} offset:128")
        a(f"v_lshl_add_u32 v6, v1, 4, s{T2}")
        C = 48
        for q4 in range(4):
            a(f"ds_read_b128 v[{C+4*q4}:{C+4*q4+3}], v6 offset:{q4*32}")
            a(f"ds_read_b128 v[{C+16+4*q4}:{C+16+4*q4+3}], v6 offset:{128+q4*32}")
        for grp in range(2):
            a(f"s_waitcnt lgkmcnt({4-4*grp})")
            for i in range(2):
                b = 16 * i + 8 * grp
                for r in range(8): a(f"v_mul_f32 v{self.ACC+b+r}, v{C+8*grp+r}, v{self.ACC+b+r}")
                for r in range(8): a(f"v_fma_f32 v{self.ACC+b+r}, -v{C+16+8*grp+r}, v{12+i}, v{self.ACC+b+r}")
                o = 4 + 4 * i
                for r in range(4): a(f"v_cvt_pk_bf16_f32 v{o+r}, v{self.ACC+b+2*r}, v{self.ACC+b+2*r+1}")
                a(f"buffer_store_dwordx4 v[{o}:{o+3}], v{self.STA+i}, s[{SRD_WS}:{SRD_WS+3}], 0 offen offset:{640*grp} sc1")

    def nonce_get(self, where="nonce"):
        a = self.a
        a(f"s_mov_b32 s{S_SPIN}, 0")
        Lc = a.newlabel("nchk"); Lo = a.newlabel("nok")
        a.label(Lc)
        a(f"v_readfirstlane_b32 s{S_NONCE}, v{self.VN}")
        a(f"v_readfirstlane_b32 s{S_NONCE+1}, v{self.VN+1}")
        a(f"s_add_u32 s{S_SPIN}, s{S_SPIN}, 1")
        a(f"s_or_b32 s{T0}, s{S_NONCE}, s{S_NONCE+1}")
        a(f"s_cbranch_scc1 {Lo}")
        a(f"s_cmp_ge_u32 s{S_SPIN}, {SPIN_MAX}")
        a(f"s_cbranch_scc1 {Lo}")
        self.diag(where)
        a("v_mov_b32 v94, 0")
        a(f"buffer_load_dwordx2 v[{self.VN}:{self.VN+1}], v94, s[{SRD_DBG}:{SRD_DBG+3}], 0 offen sc1")
        a("s_waitcnt vmcnt(0)")
        a(f"s_branch {Lc}")
        a.label(Lo)

    def phase1(self):
        a = self.a
        self.p1_setup_a()
        a(f"s_cmp_eq_u32 s{self.sCT}, 15")
        a("s_cbranch_scc0 L_p1_go")
        self.rowstats()
        a("s_branch L_p1_done")
        a.label("L_p1_go")
        self.p1_setup_b()
        self.p1_issue((1, 2, 3) if self.o.get("first5", "1") == "1" else (0, 1, 2, 3))
        self.p1_issue((0, 1))
        self.stamp(2)
        a(f"s_cmp_ge_u32 s{self.sCT}, 10")
        a("s_cbranch_scc1 L_p1_v")
        self.p1_loop(False)
        self.p1_epi_q()
        a("s_branch L_p1_done")
        self.p1_sides(); self._sides = []
        a.label("L_p1_v")
        self.p1_loop(True)
        self.p1_epi_v()
        a("s_branch L_p1_done")
        self.p1_sides()
        a.label("L_p1_done")
        self.stamp(5)
        a("s_waitcnt vmcnt(0)")
        self.stamp(6)
        a("s_barrier")
        a(f"s_lshl_b32 s{T0}, s{self.sCT}, 4")
        a(f"s_add_u32 s{T0}, s{T0}, s{self.sRB}")
        a(f"s_mul_i32 s{T0}, s{T0}, {FSP}")
        a(f"s_add_u32 s{T0}, s{T0}, {FL_1}")
        self.flag_store(T0, 2)
        self.stamp(7)
        a(f"s_cmp_eq_u32 s{S_W}, 0")
        a("s_cbranch_scc1 L_no_rls")
        self.relayout_setup()
        a.label("L_no_rls")
        if self.stop < 2:
            self.relayout_issue()
            a("s_waitcnt vmcnt(0)")
            self.relayout_finish()

    def build(self):
        a = self.a
        self.entry()
        self.phase1()
        if self.stop >= 2:
            from phases import phase2, phase3, phase4, phase5
            phase2(self)
            if self.stop >= 3: phase3(self)
            if self.stop >= 4: phase4(self)
            if self.stop >= 5: phase5(self)
        a("s_waitcnt vmcnt(0)")
        if self.o.get("fixend"):
            if self.o.get("diag"):
                a("s_cmp_eq_u32 s35, 0")
                a("s_cbranch_scc1 L_end")
            a.label("L_fixend")
            a("s_memrealtime s[100:101]")
            a("s_waitcnt lgkmcnt(0)")
            a(f"s_sub_u32 s100, s100, s{31 if self.o.get('fixown') else S_NONCE}")
            a(f"s_cmp_lt_u32 s100, {int(self.o['fixend'])*100}")
            a("s_cbranch_scc1 L_fixend")
        self.stamp(31)
        self.stamp_flush()
        a.label("L_end")
        a("s_endpgm")
        a.lines.append(f".fill {self.pad}, 4, 0xbf810000")
        body = a.text()
        errs = check(body)
        if errs:
            sys.stderr.write("\n".join(errs[:40]) + "\n%d hazards\n" % len(errs))
            raise SystemExit(1)
        head = f"""; Fused preLN -> MHA -> residual -> preLN -> SiLU FFN -> residual, one persistent launch.
; @launch grid=(256,1,1) block=(512,1,1) lds={LDS_BYTES}
.amdgcn_target "amdgcn-amd-amdhsa--gfx950"
.text
.globl {NAME}_kernel
.p2align 8
.type {NAME}_kernel,@function
{NAME}_kernel:
"""
        tail = f""".section .rodata,"a"
.p2align 6
.amdhsa_kernel {NAME}_kernel
  .amdhsa_next_free_vgpr 256
  .amdhsa_next_free_sgpr 102
  .amdhsa_accum_offset 256
  .amdhsa_group_segment_fixed_size 0
  .amdhsa_kernarg_size 72
  .amdhsa_user_sgpr_count 2
  .amdhsa_user_sgpr_kernarg_segment_ptr 1
  .amdhsa_system_sgpr_workgroup_id_x 1
.end_amdhsa_kernel
"""
        return head + body + tail

if __name__ == "__main__":
    stop = int(sys.argv[2]) if len(sys.argv) > 2 else 99
    opts = dict(kv.split("=") for kv in sys.argv[3:])
    import subprocess
    def asm_size(path):
        r = subprocess.run(["clang", "-x", "assembler", "-target", "amdgcn-amd-amdhsa", "-mcpu=gfx950", "-c", path, "-o", "_chk.o"], capture_output=True, text=True)
        if r.returncode: print(r.stderr[:1500]); raise SystemExit(1)
        r = subprocess.run(["llvm-readelf", "-S", "_chk.o"], capture_output=True, text=True)
        return int([l for l in r.stdout.split("\n") if ".text" in l][0].split()[6], 16)
    open(sys.argv[1], "w").write(K(stop, opts).build())
    n = asm_size(sys.argv[1])
    k = K(stop, opts)
    k.CPF_LINES = (n + 4095) // 4096
    k.pad = (k.CPF_LINES * 4096 - n) // 4 + 16
    open(sys.argv[1], "w").write(k.build())
    print(sys.argv[1], "code bytes:", n, "with pad:", asm_size(sys.argv[1]))
```

```python
import math
from asmlib import vr, sr, f2u
from tables import *
from gen import *

Qm, Qr, NEG, S0, S1, P, O, Km, Kr, V = 4, 8, 12, 28, 60, 92, 108, 124, 132, 136
AK, AKR, AV, DKM, DLIN = 152, 153, 154, 197, 196
XR = 198
PL = 184
SLOT = 22528
WO_LDS = 3 * SLOT
sH, sQB, sST, sK0, sK1, sK2, sS1, sDS, sKD, sVM, sRET, sWOo, sWOl = 64, 65, 66, 67, 68, 69, 70, 71, 72, 74, 76, 78, 79
sW10, sL1, sD1, sL2, sSD, sD2 = 73, 82, 83, 93, 94, 78
sTA, sW1, sSM = 95, 96, 98
WS = f"s[{SRD_WS}:{SRD_WS+3}]"
M32 = "v_mfma_f32_32x32x16_bf16"
M2B = "v_mfma_f32_32x32x4_2b_bf16"
M16 = "v_mfma_f32_16x16x32_bf16"

def kv_piece(k, i):
    a = k.a
    a(f"s_add_u32 m0, s{(sW10, sL1, sL2)[i]}, s{sDS}")
    a(f"s_add_u32 s{sK0+i}, s{sK0+i}, {('4096', f's{sS1}', '10240')[i]}")
    k.dma((DKM, DLIN, DLIN)[i], SRD_WS, f"s{sK0+i}", "sc1")

def wo_piece(k):
    a = k.a
    a(f"s_min_u32 m0, s{sWOl}, {WO_LDS + 90*1024}")
    a(f"s_add_u32 s{sWOl}, s{sWOl}, 8192")
    k.dma(DLIN, SRD_WQ, "m0", "sc1")

def touch_piece(k):
    a = k.a
    a(f"buffer_load_dwordx4 v[160:163], v{DLIN}, {WS}, s{sTA} offen sc1")
    a(f"s_add_u32 s{sTA}, s{sTA}, 1024")

def SG(i): return 172 + 4 * i if i < 6 else 204 + 4 * (i - 6)

def stage_load(k, vq, tag, i, s_src, off, valid=8):
    a = k.a
    a(f"s_add_u32 s{T0}, s{s_src}, {off}")
    if valid < 8:
        a(f"s_cmp_ge_u32 s{S_W}, {valid}")
        a(f"s_cselect_b32 s{T0}, 0x7f000000, s{T0}")
    a(f"buffer_load_dwordx4 {vr(SG(i),4)}, v{DLIN}, {WS}, s{T0} offen sc1")
    if vq is not None: vq.add(tag)

def qkm(a, t, d, c): a(f"{M32} {vr(d+16*t,16)}, {vr(Km+4*t,4)}, {vr(Qm,4)}, {c}")
def qkr(a, d): a(f"{M2B} {vr(d,32)}, {vr(Kr,2)}, {vr(Qr,2)}, {vr(d,32)}")
def pv(a, j): a(f"{M32} {vr(O,16)}, {vr(V+4*j,4)}, {vr(P+4*j,4)}, {vr(O,16)}")

PGA, PGV, PGR, PGD = 155, 156, 159, 164
PG_LDS = 157 * 1024
def att_stage(k, young):
    a = k.a
    o = k.o
    soft = o.get("soft", "1") == "1"
    tag = "Y" if young else "O"
    barit, barpos = [int(x) for x in o.get("abar" + tag, "0.6" if young else "1.2").split(".")]
    pA = int(o.get("pA" + tag, o.get("pA", 4))); pC = int(o.get("pC" + tag, o.get("pC", 20)))
    plo = int(o.get("plo", 7)); ntouch = int(o.get("ntouch", 2))
    lq = LQ(a)
    def exps(b, n0, n):
        for i in range(n0, n0 + n): a(f"v_exp_f32 v{b+i}, v{b+i}")
    def cvts(b, n0, n):
        for i in range(n0, n0 + n): a(f"v_cvt_pk_bf16_f32 v{P+i}, v{b+2*i}, v{b+2*i+1}")
    def rdV(js, it):
        a(f"s_mov_b64 exec, s[{sVM}:{sVM+1}]")
        for j in js:
            a(f"ds_read_b128 {vr(V+4*j,4)}, v{AV} offset:{12288+(4*it+j)*640}"); lq.add(("V", j))
        a("s_mov_b64 exec, -1")
    for it in range(4):
        cur, nx = (S0, S1) if it % 2 == 0 else (S1, S0)
        i2 = (it + 2) % 4
        npos = [0]
        def mark():
            p = it * 11 + npos[0]
            if soft:
                if p == pA:
                    a(f"v_add_u32 v{PGV}, 1, v{PGV}")
                    a(f"s_waitcnt vmcnt({3 + ntouch})")
                    a(f"ds_write_b32 v{PGA}, v{PGV}"); lq.add("a")
                if p == pC - int(o.get("pR", 2)):
                    a(f"ds_read_b32 v{PGD}, v{PGR}"); lq.add("g")
                if p == pC:
                    lq.wait("g")
                    Lw, Lb = a.newlabel("late"), a.newlabel("go")
                    a(f"v_cmp_lt_u32 vcc, v{PGD}, v{PGV}")
                    a(f"s_cbranch_vccnz {Lw}")
                    a.label(Lb)
                    k._late.append((Lw, Lb))
                    if o.get("its") == "2": k.stamp_dyn(54, sST)
                g = p - pC; d0 = 1; dd = int(o.get("dd", 2))
            else:
                g = p - (barit * 11 + barpos)
                if g == 0:
                    a("s_waitcnt vmcnt(0)")
                    a("s_barrier")
                    if o.get("its") == "2": k.stamp_dyn(54, sST)
                d0 = int(o.get("d" + tag, 5 if young else 1)); dd = int(o.get("dd", 3))
            if g == d0 - 1:
                a(f"s_call_b64 s[{sRET}:{sRET+1}], L_att_side")
            if g in [d0 + (5 + 2 * i) * dd for i in range(ntouch)]: touch_piece(k); k._n += 1
            for i in range(3):
                if g == d0 + (1 + i) * dd: kv_piece(k, i); k._n += 1
            for i in range(3):
                if g == d0 + (4 + 2 * i) * dd: wo_piece(k); k._n += 1
            if young and npos[0] == 0: a("s_setprio 1")
            if young and npos[0] == plo: a("s_setprio 0")
            npos[0] += 1
        if it == 2:
            a(f"v_add_u32 v{AK}, s{sKD}, v{AK}")
            a(f"v_add_u32 v{AKR}, s{sKD}, v{AKR}")
        mark()
        a("s_waitcnt lgkmcnt(0)"); lq.q = []
        qkm(a, 0, nx, vr(NEG, 16)); exps(cur, 0, 4); mark()
        pv(a, 3); rdV([0, 1, 2, 3], it); exps(cur, 4, 4); mark()
        qkm(a, 1, nx, vr(NEG, 16))
        a(f"ds_read_b128 {vr(Km,4)}, v{AK} offset:{2048*i2}"); lq.add("K")
        cvts(cur, 0, 4); mark()
        exps(cur, 8, 4)
        a(f"ds_read_b128 {vr(Km+4,4)}, v{AK} offset:{2048*i2+1024}"); lq.add("K")
        mark()
        lq.wait(("V", 0))
        pv(a, 0); exps(cur, 12, 4); cvts(cur, 4, 2); mark()
        qkr(a, nx); cvts(cur, 6, 2)
        a(f"ds_read_b64 {vr(Kr,2)}, v{AKR} offset:{8192+1024*i2}"); lq.add("K")
        exps(cur, 16, 4); mark()
        exps(cur, 20, 4); cvts(cur, 8, 2); mark()
        lq.wait(("V", 1))
        pv(a, 1); cvts(cur, 10, 2); exps(cur, 24, 2); mark()
        exps(cur, 26, 3); mark()
        lq.wait(("V", 2))
        pv(a, 2); exps(cur, 29, 3); mark()
        cvts(cur, 12, 4)
        if it == 3:
            a(f"v_add_u32 v{AV}, s{sKD}, v{AV}")
            a(f"s_add_u32 s{sST}, s{sST}, 1")
            a(f"s_add_u32 s{sDS}, s{sDS}, s{sD2}")
            a(f"s_mov_b32 s{T0}, s{sKD}")
            a(f"s_mov_b32 s{sKD}, s{sD1}")
            a(f"s_mov_b32 s{sD1}, s{sD2}")
            a(f"s_mov_b32 s{sD2}, s{T0}")

def att_late(k):
    a = k.a
    for Lw, Lb in k._late:
        a.label(Lw)
        a(f"s_mov_b32 s{S_SPIN}, 0")
        L = a.newlabel("lsp")
        a.label(L)
        a(f"ds_read_b32 v{PGD}, v{PGR}")
        a(f"s_add_u32 s{S_SPIN}, s{S_SPIN}, 1")
        a(f"s_cmp_ge_u32 s{S_SPIN}, {SPIN_MAX * 16}")
        a(f"s_cbranch_scc1 {Lb}")
        a("s_waitcnt lgkmcnt(0)")
        a(f"v_cmp_lt_u32 vcc, v{PGD}, v{PGV}")
        a(f"s_cbranch_vccnz {L}")
        a(f"s_branch {Lb}")

def att_side(k):
    a = k.a
    a.label("L_att_side")
    a(f"s_bitcmp1_b32 s{sST}, 2")
    a("s_cbranch_scc1 L_as_hi")
    a(f"s_cmp_lt_u32 s{sST}, 1")
    a("s_cbranch_scc1 L_as_0")
    a(f"s_cmp_lt_u32 s{sST}, 2")
    a("s_cbranch_scc1 L_as_1")
    a(f"s_cmp_lt_u32 s{sST}, 3")
    a("s_cbranch_scc1 L_as_2")
    a(f"s_mov_b32 s{T0}, {FL_R}")
    a(f"buffer_load_dwordx4 v[{PL}:{PL+3}], v{DLIN}, {WS}, s{T0} offen sc1")
    a(f"buffer_load_dwordx4 v[{PL+4}:{PL+7}], v{DLIN}, {WS}, s{T0} offen offset:1024 sc1")
    a(f"s_setpc_b64 s[{sRET}:{sRET+1}]")
    a.label("L_as_2")
    a(f"s_lshl_b32 s{T0}, s{S_G}, 3")
    a(f"s_add_u32 s{T0}, s{T0}, {FL_R}")
    k.flag_store(T0, PL)
    a(f"s_setpc_b64 s[{sRET}:{sRET+1}]")
    a.label("L_as_0")
    k.relayout_issue()
    a(f"s_setpc_b64 s[{sRET}:{sRET+1}]")
    a.label("L_as_1")
    k.relayout_finish()
    a("s_nop 1")
    a(f"s_setpc_b64 s[{sRET}:{sRET+1}]")
    a.label("L_as_hi")
    a(f"s_cmp_eq_u32 s{sST}, 7")
    a("s_cbranch_scc1 L_as_7")
    a(f"s_cmp_eq_u32 s{sST}, 6")
    a("s_cbranch_scc1 L_as_6")
    a(f"s_cmp_eq_u32 s{sST}, 5")
    a("s_cbranch_scc1 L_as_5")
    N = f"s[{S_NONCE}:{S_NONCE+1}]"
    a(f"v_cmp_ne_u64 vcc, {N}, v[{PL}:{PL+1}]")
    a(f"v_cmp_ne_u64 s[{S_M1}:{S_M1+1}], {N}, v[{PL+2}:{PL+3}]")
    a(f"s_and_b32 s{T1}, s{S_J}, 7")
    a(f"s_or_b64 s[{T4}:{T5}], vcc, s[{S_M1}:{S_M1+1}]")
    a(f"v_cmp_ne_u64 vcc, {N}, v[{PL+4}:{PL+5}]")
    a(f"v_cmp_ne_u64 s[{S_M1}:{S_M1+1}], {N}, v[{PL+6}:{PL+7}]")
    a(f"s_add_u32 s{sWOl}, s{sW10}, {WO_LDS}")
    a(f"s_lshl_b32 s{T2}, s{S_J}, 3")
    a(f"s_add_u32 s{T2}, s{T2}, s{S_W}")
    a(f"s_mul_i32 s{sTA}, s{T2}, 8640")
    a(f"s_add_u32 s{sTA}, s{sTA}, {WS_W2}")
    a(f"s_and_b32 s{T2}, s{S_J}, 15")
    a(f"s_mul_i32 s{sW1}, s{T2}, {20*7168}")
    a(f"s_add_u32 s{sW1}, s{sW1}, s{sW10}")
    a(f"s_add_u32 s{sW1}, s{sW1}, {WS_W1}")
    a(f"s_or_b64 s[{T4}:{T5}], s[{T4}:{T5}], vcc")
    a(f"s_or_b64 s[{T4}:{T5}], s[{T4}:{T5}], s[{S_M1}:{S_M1+1}]")
    a("s_cbranch_scc0 L_as_ret")
    a(f"s_mov_b32 s{T3}, {FL_R}")
    k.diag("fr")
    k.poll(256, T3, 8, PL, only_wave0=False)
    a.label("L_as_ret")
    grp = ((0, 4), (4, 9), (9, 14), (14, 18))
    for st in range(4, 8):
        if st > 4: a.label(f"L_as_{st}")
        if st == 6:
            for r in (sK0, sK1, sK2): a(f"s_mov_b32 s{r}, 0x7f000000")
        for i in range(*grp[st - 4]): stage_load(k, None, None, i, sW1, 8192 * i, 4 if i == 17 else 8)
        a(f"s_setpc_b64 s[{sRET}:{sRET+1}]")

def resid_x(k):
    a = k.a
    a(f"s_lshr_b32 s{T0}, s{S_J}, 3")
    a(f"s_lshl_b32 s{T1}, s{S_C}, 2")
    a(f"s_add_u32 s{T0}, s{T0}, s{T1}")
    a(f"s_lshl_b32 s{T0}, s{T0}, 2")
    a(f"s_and_b32 s{T1}, s{S_W}, 3")
    a(f"s_add_u32 s{T0}, s{T0}, s{T1}")
    a(f"s_mul_i32 s{T0}, s{T0}, {16*1280}")
    a(f"s_and_b32 s{T1}, s{S_J}, 7")
    a(f"s_mul_i32 s{T1}, s{T1}, 160")
    a(f"s_add_u32 s{T0}, s{T0}, s{T1}")
    a(f"s_lshr_b32 s{T1}, s{S_W}, 2")
    a(f"s_lshl_b32 s{T1}, s{T1}, 6")
    a(f"s_add_u32 s{T1}, s{T1}, s{T0}")
    a(f"v_lshrrev_b32 v{TM}, 2, v0")
    a(f"v_mul_u32_u24 v{TM}, 1280, v{TM}")
    a(f"v_and_b32 v{TM+1}, 3, v0")
    a(f"v_lshl_add_u32 v{TM}, v{TM+1}, 3, v{TM}")
    a(f"buffer_load_dwordx2 v[{XR}:{XR+1}], v{TM}, s[{SRD_X}:{SRD_X+3}], s{T1} offen")
    a(f"buffer_load_dwordx2 v[{XR+2}:{XR+3}], v{TM}, s[{SRD_X}:{SRD_X+3}], s{T1} offen offset:32")
    a(f"buffer_load_dwordx2 v[{XR+4}:{XR+5}], v{TM}, s[{SRD_X}:{SRD_X+3}], s{T0} offen offset:128")

def rowmax(a, b, n, dst, t):
    a(f"v_max3_f32 v{dst}, v{b}, v{b+1}, v{dst}")
    for i in range(2, n, 2): a(f"v_max3_f32 v{dst}, v{b+i}, v{b+i+1}, v{dst}")

def set_neg(a, m, t):
    a(f"v_mov_b32 v{t}, v{m}")
    a("s_nop 1")
    a(f"v_permlane32_swap_b32 v{m}, v{t}")
    a("s_nop 0")
    a(f"v_max_f32 v{m}, v{m}, v{t}")
    for r in range(16): a(f"v_sub_f32 v{NEG+r}, 0, v{m}")

def att_fallback(k):
    a = k.a
    FT = S1
    a.label("L_att_fb")
    sI, sA, sB, sC = T0, T1, T2, T3
    def init():
        a(f"s_lshl_b32 s{sA}, s{sH}, 16")
        a(f"s_add_u32 s{sA}, s{sA}, {WS_K}")
        a(f"s_lshr_b32 s{sB}, s{sH}, 1")
        a(f"s_lshl_b32 s{sB}, s{sB}, 15")
        a(f"s_add_u32 s{sB}, s{sB}, {WS_K + 64*32768}")
        a(f"s_mul_i32 s{sC}, s{sH}, 81920")
        a(f"s_add_u32 s{sC}, s{sC}, {WS_V}")
        a(f"s_mov_b32 s{sI}, 0")
    def ldk():
        a(f"buffer_load_dwordx4 {vr(Km,4)}, v{DKM}, {WS}, s{sA} offen sc1")
        a(f"buffer_load_dwordx4 {vr(Km+4,4)}, v{DKM}, {WS}, s{sA} offen offset:512 sc1")
        a(f"buffer_load_dwordx2 {vr(Kr,2)}, v{FT+1}, {WS}, s{sB} offen sc1")
    def step():
        a(f"s_add_u32 s{sA}, s{sA}, 1024")
        a(f"s_add_u32 s{sB}, s{sB}, 1024")
        a(f"s_add_u32 s{sC}, s{sC}, 2560")
        a(f"s_add_u32 s{sI}, s{sI}, 1")
        a(f"s_cmp_lt_u32 s{sI}, 32")
    a(f"s_and_b32 s{T0}, s{sH}, 1")
    a(f"s_lshl_b32 s{T0}, s{T0}, 3")
    a(f"v_add_u32 v{FT+1}, s{T0}, v{DLIN}")
    a(f"v_lshrrev_b32 v{FT+2}, 5, v0")
    a(f"v_mul_u32_u24 v{FT+2}, 20, v{FT+2}")
    a(f"v_and_b32 v{FT+3}, 31, v0")
    a(f"v_add_lshl_u32 v{FT+2}, v{FT+2}, v{FT+3}, 4")
    a(f"v_mov_b32 v{FT}, 0xff800000")
    init()
    a.label("L_fb_max")
    ldk()
    a("s_waitcnt vmcnt(0)")
    qkm(a, 0, S0, "0"); qkm(a, 1, S0, "0")
    a("s_nop 9")
    qkr(a, S0)
    a("s_nop 15"); a("s_nop 3")
    rowmax(a, S0, 32, FT, FT + 4)
    step()
    a("s_cbranch_scc1 L_fb_max")
    set_neg(a, FT, FT + 4)
    for r in range(16): a(f"v_mov_b32 v{O+r}, 0")
    init()
    a.label("L_fb_acc")
    ldk()
    a(f"s_mov_b64 exec, s[{sVM}:{sVM+1}]")
    for j in range(4): a(f"buffer_load_dwordx4 {vr(V+4*j,4)}, v{FT+2}, {WS}, s{sC} offen offset:{640*j} sc1")
    a("s_mov_b64 exec, -1")
    a("s_waitcnt vmcnt(0)")
    qkm(a, 0, S0, vr(NEG, 16)); qkm(a, 1, S0, vr(NEG, 16))
    a("s_nop 9")
    qkr(a, S0)
    a("s_nop 15"); a("s_nop 3")
    for i in range(32): a(f"v_exp_f32 v{S0+i}, v{S0+i}")
    a("s_nop 0")
    for i in range(16): a(f"v_cvt_pk_bf16_f32 v{P+i}, v{S0+2*i}, v{S0+2*i+1}")
    a("s_nop 1")
    for j in range(4): pv(a, j)
    step()
    a("s_cbranch_scc1 L_fb_acc")
    a("s_nop 11")
    a("s_branch L_att_norm")

def phase2(k):
    a = k.a
    a.c("================ phase 2: attention")
    a(f"s_lshl_b32 s{sH}, s{S_C}, 2")
    a(f"s_lshr_b32 s{T0}, s{S_J}, 3")
    a(f"s_add_u32 s{sH}, s{sH}, s{T0}")
    a(f"s_and_b32 s{sQB}, s{S_J}, 7")
    a(f"v_lshlrev_b32 v{DLIN}, 4, v0")
    a("v_lshrrev_b32 v1, 5, v0")
    a("v_and_b32 v2, 31, v0")
    a("v_lshlrev_b32 v3, 15, v1")
    a(f"v_lshl_add_u32 v{DKM}, v2, 4, v3")
    a(f"v_mov_b32 v{AK}, v{DLIN}")
    a(f"s_and_b32 s{T0}, s{sH}, 1")
    a(f"s_lshl_b32 s{T0}, s{T0}, 3")
    a(f"v_add_u32 v{AKR}, s{T0}, v{DLIN}")
    a("v_mul_u32_u24 v3, 20, v1")
    a(f"v_add_lshl_u32 v{AV}, v3, v2, 4")
    a(f"v_lshl_add_u32 v10, v2, 4, s{T0}")
    if k.o.get("dry", "0") == "1":
        a(f"s_cmp_lg_u32 s{S_W}, 7")
        a("s_cbranch_scc1 L_nodry")
        a(f"s_mov_b32 s{sW1}, 0x7f000000")
        for st in (3, 5, 6, 7):
            a(f"s_mov_b32 s{sST}, {st}")
            if st == 3: continue
            a(f"s_call_b64 s[{sRET}:{sRET+1}], L_att_side")
        a.label("L_nodry")
    a(f"s_lshl_b32 s{T0}, s{S_W}, 2")
    a(f"s_add_u32 s{T0}, s{T0}, {PG_LDS}")
    a(f"v_mov_b32 v{PGA}, s{T0}")
    a(f"v_mov_b32 v{PGV}, 0")
    a(f"v_and_b32 v{PGR}, 7, v0")
    a(f"v_lshlrev_b32 v{PGR}, 2, v{PGR}")
    a(f"v_add_u32 v{PGR}, {PG_LDS}, v{PGR}")
    a(f"ds_write_b32 v{PGA}, v{PGV}")
    k._late = []; k._n = 0
    a(f"s_mov_b32 s{sVM}, 0x000fffff")
    a(f"s_mov_b32 s{sVM+1}, 0x000fffff")
    a(f"s_lshl_b32 s{sK0}, s{sH}, 16")
    a(f"s_lshl_b32 s{T0}, s{S_W}, 9")
    a(f"s_add_u32 s{sK0}, s{sK0}, s{T0}")
    a(f"s_add_u32 s{sK0}, s{sK0}, {WS_K - 4096}")
    a(f"s_lshl_b32 s{T0}, s{S_W}, 10")
    a(f"s_mul_i32 s{sK2}, s{sH}, 81920")
    a(f"s_add_u32 s{sK2}, s{sK2}, s{T0}")
    a(f"s_add_u32 s{T1}, s{sK2}, {WS_V - 4096 - 10240}")
    a(f"s_cmp_ge_u32 s{S_W}, 6")
    a(f"s_cselect_b32 s{T2}, 2048, 0")
    a(f"s_sub_u32 s{sK2}, s{sK2}, s{T2}")
    a(f"s_add_u32 s{sK2}, s{sK2}, {WS_V + 4096 - 10240}")
    a(f"s_sub_u32 s{sL2}, s{T0}, s{T2}")
    a(f"s_add_u32 s{sL2}, s{sL2}, 16384")
    a(f"s_add_u32 s{sL1}, s{T0}, 8192")
    a(f"s_lshr_b32 s{T2}, s{sH}, 1")
    a(f"s_lshl_b32 s{T2}, s{T2}, 15")
    a(f"s_add_u32 s{sK1}, s{T2}, s{T0}")
    a(f"s_add_u32 s{sK1}, s{sK1}, {WS_K + 64*32768 - 4096}")
    a(f"s_mov_b32 s{sS1}, 10240")
    a(f"s_cmp_lt_u32 s{S_W}, 4")
    a(f"s_cselect_b32 s{sK1}, s{sK1}, s{T1}")
    a(f"s_cselect_b32 s{sS1}, 4096, s{sS1}")
    a(f"s_mov_b32 s{sDS}, 0")
    a(f"s_mov_b32 s{sST}, 0")
    a(f"s_mov_b32 s{sKD}, {SLOT}")
    a(f"s_mov_b32 s{sD1}, {SLOT}")
    a(f"s_mov_b32 s{sD2}, {-2*SLOT & 0xffffffff}")
    a(f"s_mov_b32 s{sW10}, s{T0}")
    a(f"s_mov_b32 s{sWOl}, 0x40000000")
    a(f"s_mov_b32 s{sTA}, 0x7f000000")
    a(f"s_and_b32 s{T1}, s{S_J}, 7")
    a(f"s_mul_i32 s{sSD}, s{T1}, {20*5120}")
    a(f"s_add_u32 s{sSD}, s{sSD}, {WS_WO}")
    a(f"s_sub_u32 s{T1}, s{sSD}, {WO_LDS}")
    a(f"s_add_u32 s{SRD_WQ}, s{SRD_WS}, s{T1}")
    a(f"s_addc_u32 s{SRD_WQ+1}, s{SRD_WS+1}, 0")
    a(f"s_mov_b32 s{SRD_WQ+2}, {WO_LDS + 90*1024}")
    a(f"s_lshl_b32 s{T0}, s{sQB}, 3")
    a(f"s_add_u32 s{T0}, s{T0}, s{S_W}")
    a(f"s_lshl_b32 s{T0}, s{T0}, 9")
    a(f"s_add_u32 s{T2}, s{T2}, s{T0}")
    a(f"s_add_u32 s80, s{T2}, {WS_Q + 64*32768}")
    a(f"s_lshl_b32 s{T3}, s{sH}, 16")
    a(f"s_add_u32 s{T3}, s{T3}, s{T0}")
    a(f"s_add_u32 s81, s{T3}, {WS_Q}")
    a("v_cmp_eq_u32 vcc, 20, v2")
    a("v_mov_b32 v3, 0x3f803f80")
    a("s_nop 0")
    a("v_cndmask_b32 v3, 0, v3, vcc")
    for r in range(16): a(f"v_mov_b32 v{V+r}, v3")
    for r in range(16): a(f"v_mov_b32 v{O+r}, 0")
    for r in range(12, 16): a(f"v_mov_b32 v{P+r}, 0")
    a(f"s_mul_i32 s{T0}, s{sH}, 20")
    a(f"s_add_u32 s{T1}, s{T0}, 19")
    a(f"s_lshr_b32 s{T0}, s{T0}, 7")
    a(f"s_lshr_b32 s{T1}, s{T1}, 7")
    a(f"s_sub_u32 s{T1}, s{T1}, s{T0}")
    a(f"s_lshl_b32 s{T1}, s{T1}, 4")
    a(f"v_and_b32 v{PL+4}, s{T1}, v0")
    a(f"v_and_b32 v{PL+5}, 15, v0")
    a(f"v_add_u32 v{PL+5}, v{PL+5}, v{PL+4}")
    a(f"v_mul_u32_u24 v{PL+6}, 0x50, v1")
    a(f"v_add3_u32 v{PL+5}, v{PL+5}, v{PL+6}, 64")
    a(f"v_add_u32 v{PL+5}, 16, v{PL+5}")
    a(f"v_lshlrev_b32 v{PL+5}, 7, v{PL+5}")
    a(f"s_lshl_b32 s{T2}, s{sQB}, 1")
    a(f"v_and_b32 v{PL+6}, 1, v0")
    a(f"v_add3_u32 v{PL+4}, v{PL+4}, v{PL+6}, s{T2}")
    a(f"v_lshlrev_b32 v{PL+4}, 7, v{PL+4}")
    a(f"s_lshl_b32 s{T0}, s{T0}, 11")
    a(f"s_add_u32 s{T3}, s{T0}, {FL_1}")
    k.poll2(PL + 5, PL + 4, T3, PL)
    a("s_waitcnt lgkmcnt(0)")
    a("s_barrier")
    k.stamp(8)
    a(f"buffer_load_dwordx4 {vr(Qm,4)}, v{DKM}, {WS}, s81 offen sc1")
    a(f"buffer_load_dwordx2 {vr(Qr,2)}, v10, {WS}, s80 offen sc1")
    for i in range(3): kv_piece(k, i)
    a(f"s_mov_b32 s{sDS}, {SLOT}")
    a("s_waitcnt vmcnt(0)")
    for i in range(3): kv_piece(k, i)
    a(f"s_mov_b32 s{sDS}, {2*SLOT}")
    a("s_barrier")
    k.hold("fix9")
    k.stamp(9)
    def rdk(i):
        a(f"ds_read_b128 {vr(Km,4)}, v{AK} offset:{2048*i}")
        a(f"ds_read_b128 {vr(Km+4,4)}, v{AK} offset:{2048*i+1024}")
        a(f"ds_read_b64 {vr(Kr,2)}, v{AKR} offset:{8192+1024*i}")
    rdk(0)
    a(f"v_mov_b32 v{PL}, 0xff800000")
    a("s_waitcnt lgkmcnt(0)")
    qkm(a, 0, S0, "0"); qkm(a, 1, S0, "0")
    a("s_nop 9")
    qkr(a, S0)
    rdk(1)
    if k.o.get("soft", "1") == "1":
        for i in range(3): wo_piece(k)
        for i in range(int(k.o.get("ntouch", 2))): touch_piece(k)
    a("s_nop 3")
    rowmax(a, S0, 32, PL, PL + 4)
    set_neg(a, PL, PL + 4)
    for r in range(32): a(f"v_sub_f32 v{S0+r}, v{S0+r}, v{PL}")
    a(f"s_cmp_ge_u32 s{S_W}, 4")
    a("s_cbranch_scc1 L_att_young")
    for young in (0, 1):
        L = "L_att_young" if young else "L_att_old"
        a.align(6)
        a.label(L)
        att_stage(k, young)
        a(f"s_cmp_lt_u32 s{sST}, 8")
        a(f"s_cbranch_scc1 {L}")
        if not young: a("s_branch L_att_done")
    a("s_setprio 0")
    a.label("L_att_done")
    a("s_waitcnt lgkmcnt(3)")
    pv(a, 3)
    k.stamp(10)
    a(f"s_lshl_b32 s{T0}, s{sQB}, 4")
    a(f"s_lshl_b32 s{T1}, s{S_W}, 1")
    a(f"s_add_u32 s{T0}, s{T0}, s{T1}")
    a(f"s_mul_i32 s{T0}, s{T0}, 20480")
    a(f"s_add_u32 s{T0}, s{T0}, {WS_O}")
    a(f"s_lshl_b32 s{T1}, s{sH}, 9")
    a(f"s_add_u32 s80, s{T0}, s{T1}")
    a(f"s_lshr_b32 s{T1}, s{sH}, 4")
    a(f"s_lshl_b32 s{T2}, s{T1}, 11")
    a(f"s_add_u32 s80, s80, s{T2}")
    a(f"s_lshl_b32 s{T1}, s{T1}, 13")
    a(f"s_add_u32 s{T0}, s{T0}, s{T1}")
    a(f"s_lshr_b32 s{T1}, s{sH}, 3")
    a(f"s_lshl_b32 s{T1}, s{T1}, 10")
    a(f"s_add_u32 s{T0}, s{T0}, s{T1}")
    a(f"s_bfe_u32 s{T1}, s{sH}, 0x20001")
    a(f"s_lshl_b32 s{T1}, s{T1}, 7")
    a(f"s_add_u32 s{T0}, s{T0}, s{T1}")
    a(f"s_and_b32 s{T1}, s{sH}, 1")
    a(f"s_lshl_b32 s{T1}, s{T1}, 9")
    a(f"s_add_u32 s{T0}, s{T0}, s{T1}")
    a(f"s_add_u32 s81, s{T0}, 8192")
    a("s_waitcnt lgkmcnt(0)")
    a(f"v_add_f32 v1, abs(v{O}), abs(v{O+1})")
    a(f"v_add_f32 v3, abs(v{O+2}), abs(v{O+3})")
    for r in range(4, 12, 2):
        a(f"v_add_f32 v1, abs(v{O+r}), v1")
        a(f"v_add_f32 v3, abs(v{O+r+1}), v3")
    a(f"v_mov_b32 v2, 0x{f2u(2.0**40):08x}")
    a("v_add_f32 v1, v1, v3")
    a("v_mov_b32 v3, 0x203")
    a(f"v_cmp_nle_f32 vcc, v{O+8}, v2")
    a(f"v_cmp_class_f32 s[{S_M1}:{S_M1+1}], v1, v3")
    a("s_and_b32 vcc_lo, vcc_lo, 0")
    a(f"s_or_b64 vcc, vcc, s[{S_M1}:{S_M1+1}]")
    a("s_cbranch_scc1 L_att_fb")
    a.label("L_att_norm")
    a(f"v_mov_b32 v1, v{O+8}")
    a(f"v_mov_b32 v2, v{O+8}")
    a("v_bfe_u32 v3, v0, 4, 1")
    a("v_mul_u32_u24 v3, 20480, v3")
    a("v_permlane32_swap_b32 v1, v2")
    a("s_nop 0")
    a("v_rcp_f32 v2, v2")
    a("v_and_b32 v10, 15, v0")
    a("v_lshl_add_u32 v11, v10, 4, v3")
    a("v_lshl_add_u32 v3, v10, 3, v3")
    a("v_lshrrev_b32 v10, 5, v0")
    a("v_lshl_add_u32 v10, v10, 8, v11")
    for r in range(12): a(f"v_mul_f32 v{O+r}, v2, v{O+r}")
    for r in range(6): a(f"v_cvt_pk_bf16_f32 v{P+r}, v{O+2*r}, v{O+2*r+1}")
    a(f"buffer_store_dwordx4 {vr(P,4)}, v10, {WS}, s80 offen sc1")
    a("s_mov_b64 exec, 0xffffffff")
    a(f"buffer_store_dwordx2 {vr(P+4,2)}, v3, {WS}, s81 offen sc1")
    a("s_mov_b64 exec, -1")
    a("s_branch L_att_end")
    assert k._n == 2 * (6 + int(k.o.get("ntouch", 2))), k._n
    att_side(k)
    att_late(k)
    att_fallback(k)
    a.label("L_att_end")
    if k.stop == 2:
        a("s_waitcnt vmcnt(0)")
        k.stamp(11)


class VQ:
    def __init__(self, a): self.a = a; self.q = []
    def add(self, tag): self.q.append(tag)
    def wait(self, tag):
        if tag not in self.q: return
        i = len(self.q) - 1 - self.q[::-1].index(tag)
        n = len(self.q) - 1 - i
        self.a(f"s_waitcnt vmcnt({n})")
        self.q = self.q[i + 1:]

def dma_ops(k, vq, tag, first, last, s_src, s_lds, lds0, nw=8):
    a = k.a
    def one(i):
        def f():
            a(f"s_add_u32 m0, s{s_lds}, {lds0 + nw * i * 1024}")
            a(f"s_add_u32 s{T0}, s{s_src}, {(first + nw * i) * 1024}")
            if first + nw * i + nw > last:
                a(f"s_cmp_ge_u32 s{S_W}, {last - first - nw*i + (1 if nw == 7 else 0)}")
                a(f"s_cselect_b32 m0, {k.DUMMY}, m0")
                a(f"s_cselect_b32 s{T0}, 0x7f000000, s{T0}")
            k.dma(DLIN, SRD_WS, f"s{T0}", "sc1")
            if vq is not None: vq.add(tag)
        return f
    return [one(i) for i in range((last - first + nw - 1) // nw)]

DL8 = 197
RA = 8
AF = 4
ST = 36
ACC = 44
BA = 72
XW, XRD = 78, 79
TM = 80
WB = 88
CSV = 148
SW = 1
TL = 252
HR = 198
sRG, sKH, sN8, sRB64, sA, sB = 64, 65, 66, 67, 68, 69
sW7 = 72
CS_LDS = 158 * 1024

def a_op(k, vq, j, ks, s_base, split):
    a = k.a
    reg = AF + 4 * (j % RA)
    pol = k.o.get("apol", "sc1")
    def f():
        if k.o.get("noa"): return
        a(f"s_add_u32 s{T0}, s{s_base}, {1024*ks}")
        if split:
            a(f"buffer_load_dwordx2 {vr(reg,2)}, v{DL8}, {WS}, s{T0} offen sc1")
            a(f"buffer_load_dwordx2 {vr(reg+2,2)}, v{DL8}, {WS}, s{T0} offen offset:512 sc1")
            vq.add(("a", j))
        else:
            a(f"buffer_load_dwordx4 {vr(reg,4)}, v{DLIN}, {WS}, s{T0} offen {pol}")
        vq.add(("A", j))
    return f

def coop_touch(k, vq, s_base, s_idx, stride, n):
    a = k.a
    if not k.o.get("coop"): return
    a(f"s_lshl_b32 s{T1}, s{s_idx}, 10")
    a(f"s_add_u32 s{T1}, s{T1}, s{s_base}")
    for i in range((n + stride - 1) // stride):
        a(f"s_add_u32 s{T0}, s{T1}, {1024*stride*i}")
        if stride * i + stride > n:
            a(f"s_cmp_ge_u32 s{s_idx}, {n - stride*i}")
            a(f"s_cselect_b32 s{T0}, s{T1}, s{T0}")
        a(f"buffer_load_dwordx4 {vr(TM+4,4)}, v{DLIN}, {WS}, s{T0} offen sc1")
        vq.add("t")

class LQ(VQ):
    def wait(self, tag):
        if tag not in self.q: return
        i = len(self.q) - 1 - self.q[::-1].index(tag)
        self.a(f"s_waitcnt lgkmcnt({min(15, len(self.q) - 1 - i)})")
        self.q = self.q[i + 1:]

def stage_write(k, lq, i, lds, tail=None):
    a = k.a
    if tail is not None: a(f"ds_write_b128 v{tail}, {vr(SG(i),4)}")
    else: a(f"ds_write_b128 v{SW + lds // 65536}, {vr(SG(i),4)} offset:{lds % 65536}")
    if lq is not None: lq.add("w")

def mm_steps(k, vq, n, nt, addr, extra, pre_hook=None):
    a = k.a
    NB = 3
    lq = k.lq = LQ(a)
    def rd(j, t):
        r, off = addr(j, t)
        a(f"ds_read_b128 {vr(WB + (j % NB) * 4 * nt + 4 * t, 4)}, v{r} offset:{off}")
        lq.add(("r", j))
    for j in range(2):
        for t in range(nt): rd(j, t)
    for j in range(n):
        b = WB + (j % NB) * 4 * nt
        ops = list(extra.get(j, []))
        slots = {}
        for i, f in enumerate(ops): slots.setdefault(1 + (i * (nt - 1)) // max(1, len(ops)), []).append(f)
        if pre_hook and j + 2 < n: pre_hook(j + 2)
        vq.wait(("A", j))
        lq.wait(("r", j))
        for t in range(nt):
            c = "0" if j == 0 else vr(ACC + 4 * t, 4)
            a(f"{M16} {vr(ACC+4*t,4)}, {vr(b+4*t,4)}, {vr(AF+4*(j%RA),4)}, {c}")
            if j + 2 < n: rd(j + 2, t)
            for f in slots.get(t, []): f()

def tile_addrs(k, base_expr_sgpr, dst):
    a = k.a
    a(f"s_lshl_b32 s{T1}, s{sKH}, 11")
    a(f"v_add_u32 v{dst+2}, s{base_expr_sgpr}, v{DLIN}")
    a(f"v_add_u32 v{dst}, s{T1}, v{dst+2}")
    a(f"v_subrev_u32 v{dst+1}, s{T1}, v{dst+2}")

def exch_addrs(k, scr):
    a = k.a
    a(f"s_mul_i32 s{T0}, s{sRG}, 5120")
    a(f"s_add_u32 s{T0}, s{T0}, {scr}")
    a(f"s_lshl_b32 s{T1}, s{sKH}, 11")
    a(f"s_add_u32 s{T2}, s{T0}, s{T1}")
    a(f"v_add_u32 v{XW}, s{T2}, v{DLIN}")
    a(f"s_sub_u32 s{T2}, s{T0}, s{T1}")
    a(f"s_add_u32 s{T2}, s{T2}, 2048")
    a(f"v_add_u32 v{XRD}, s{T2}, v{DLIN}")

def reduce_halves(k, resid, pad):
    a = k.a
    if pad: a(f"s_nop {pad-1}")
    a(f"ds_write_b128 v{XW}, {vr(ACC+8,4)}")
    a(f"ds_write_b128 v{XW}, {vr(ACC+12,4)} offset:1024")
    L = a.newlabel("rh")
    a(f"s_cmp_eq_u32 s{sKH}, 0")
    a(f"s_cbranch_scc1 {L}")
    a(f"ds_write_b128 v{XW}, {vr(ACC+16,4)} offset:2048")
    a.label(L)
    a("s_waitcnt lgkmcnt(2)")
    for i, t in enumerate((0, 1, 4)):
        for h in range(2):
            a(f"v_lshlrev_b32 v{TM+2}, 16, v{resid+2*i+h}")
            a(f"v_and_b32 v{TM+3}, 0xffff0000, v{resid+2*i+h}")
            a(f"v_add_f32 v{ACC+4*t+2*h}, v{ACC+4*t+2*h}, v{TM+2}")
            a(f"v_add_f32 v{ACC+4*t+2*h+1}, v{ACC+4*t+2*h+1}, v{TM+3}")
    a("s_waitcnt lgkmcnt(0)")
    a("s_barrier")
    for i in range(3): a(f"ds_read_b128 {vr(WB+4*i,4)}, v{XRD} offset:{1024*i}")
    for i, t in enumerate((0, 1, 4)):
        a(f"s_waitcnt lgkmcnt({2-i})")
        for r in range(4): a(f"v_add_f32 v{ACC+4*t+r}, v{ACC+4*t+r}, v{WB+4*i+r}")

def row_reduce(a, r, t):
    for sw in ("16", "32"):
        a(f"v_mov_b32 v{t}, v{r}")
        a(f"v_mov_b32 v{t+1}, v{r+1}")
        a("s_nop 0")
        a(f"v_permlane{sw}_swap_b32 v{r}, v{t}")
        a(f"v_permlane{sw}_swap_b32 v{r+1}, v{t+1}")
        a("s_nop 0")
        a(f"v_add_f32 v{r}, v{r}, v{t}")
        a(f"v_add_f32 v{r+1}, v{r+1}, v{t+1}")

def not_wave0(k, fn):
    a = k.a
    L = a.newlabel("nw0")
    a(f"s_cmp_eq_u32 s{S_W}, 0")
    a(f"s_cbranch_scc1 {L}")
    fn()
    a.label(L)

OUT_PITCH = 336
OUT_HALF = 14 * 5120
OUT_LDS = 0
NS5 = 14
HALF = NS5 * 5120
sW2 = 83
def w2_load(k, vq, tag, i, batch):
    h, q = divmod(i, 9)
    first = (0, 5 * NS5)[batch]; n = (5 * NS5, 135 - 5 * NS5)[batch]
    stage_load(k, vq, tag, i, sW2, (135 * h + first + 8 * q) * 1024, min(8, n - 8 * q))
def w2_write(k, lq, i):
    h, q = divmod(i, 9)
    stage_write(k, lq, i, HALF * h + 8192 * q, TL + h if q == 8 else None)
def w2_tails(k, valid):
    a = k.a
    a(f"s_sub_u32 s{T0}, {k.DUMMY - 65536}, s{sW10}")
    a(f"s_cmp_lt_u32 s{S_W}, {valid}")
    a(f"s_cselect_b32 s{T1}, 0, s{T0}")
    a(f"s_cselect_b32 s{T0}, {HALF}, s{T0}")
    a(f"v_add_u32 v{TL}, s{T1}, v{SW+1}")
    a(f"v_add_u32 v{TL+1}, s{T0}, v{SW+1}")

P3_SCR, P3_LAST = 35 * 1024, 56 * 1024
sTT3 = 81
def phase3(k):
    a = k.a
    a.c("================ phase 3: output projection + residual")
    a(f"s_lshl_b32 s{T0}, s{sQB}, 5")
    a(f"s_add_u32 s{T0}, s{T0}, s{sH}")
    a(f"s_mul_i32 s{T3}, s{T0}, {FSP}")
    a(f"s_add_u32 s{T3}, s{T3}, {FL_2}")
    a(f"s_and_b32 s{sRG}, s{S_W}, 3")
    a(f"s_lshr_b32 s{sKH}, s{S_W}, 2")
    a(f"s_and_b32 s{sN8}, s{S_J}, 7")
    a(f"s_lshl_b32 s{sRB64}, s{S_C}, 2")
    a(f"s_lshr_b32 s{T0}, s{S_J}, 3")
    a(f"s_add_u32 s{sRB64}, s{sRB64}, s{T0}")
    a(f"s_sub_u32 s{sW7}, s{sW10}, 1024")
    a(f"s_add_u32 s{sA}, s{sSD}, s{sW7}")
    a(f"s_mul_i32 s{sW2}, s{sN8}, {54*5120}")
    a(f"s_add_u32 s{sW2}, s{sW2}, s{sW10}")
    a(f"s_add_u32 s{sW2}, s{sW2}, {WS_W2}")
    a(f"v_lshlrev_b32 v{DL8}, 3, v0")
    a(f"v_add_u32 v{SW}, s{sW10}, v{DLIN}")
    a(f"v_add_u32 v{SW+1}, 0x10000, v{SW}")
    a(f"v_add_u32 v{SW+2}, 0x20000, v{SW}")
    a("s_waitcnt vmcnt(0)")
    a("s_barrier")
    k.stamp(11)
    k.flag_store(T3, TM)
    def early():
        for f in dma_ops(k, None, None, 90, 100, sA, sW7, P3_LAST, 7): f()
        if not k.o.get("w0a", "1") == "1": resid_x(k)
    not_wave0(k, early)
    if k.o.get("w0a", "1") == "1": resid_x(k)
    for i in range(4): stage_write(k, None, i, 8192 * i)
    a(f"s_cmp_lt_u32 s{S_W}, 6")
    a("s_cbranch_scc1 L_p3_nocs")
    a(f"s_and_b32 s{T1}, s{S_J}, 15")
    a(f"s_sub_u32 s{T0}, s{S_W}, 6")
    a(f"s_lshl_b32 s{T0}, s{T0}, 6")
    a(f"v_add_u32 v{TM+4}, s{T0}, v0")
    a(f"s_mul_i32 s{T2}, s{T1}, 96")
    a(f"v_add_u32 v{TM+5}, s{T2}, v{TM+4}")
    a(f"s_min_u32 s{T2}, s{T1}, 11")
    a(f"s_lshl_b32 s{T2}, s{T2}, 4")
    a(f"s_add_u32 s{T2}, s{T2}, 1536")
    a(f"v_and_b32 v{TM+6}, 15, v0")
    a(f"v_add_u32 v{TM+6}, s{T2}, v{TM+6}")
    a(f"v_cmp_gt_u32 vcc, 96, v{TM+4}")
    a(f"s_mov_b32 s{T2}, {WS_CS1}")
    a("s_nop 0")
    a(f"v_cndmask_b32 v{TM+5}, v{TM+6}, v{TM+5}, vcc")
    a(f"v_lshlrev_b32 v{TM+5}, 2, v{TM+5}")
    for i in range(20):
        a(f"buffer_load_dword v{CSV+i}, v{TM+5}, {WS}, s{T2} offen sc1")
        if i < 19: a(f"s_add_u32 s{T2}, s{T2}, {1728*4}")
    a.label("L_p3_nocs")
    a(f"s_mul_i32 s{T0}, s{sKH}, {45*1024}")
    a(f"s_add_u32 s{T0}, s{T0}, {WO_LDS}")
    tile_addrs(k, T0, BA)
    a(f"s_mul_i32 s{T0}, s{sKH}, 5120")
    a(f"s_add_u32 s{T0}, s{T0}, {P3_LAST}")
    tile_addrs(k, T0, BA + 3)
    exch_addrs(k, P3_SCR)
    a(f"s_lshl_b32 s{T0}, s{sRB64}, 2")
    a(f"s_add_u32 s{sTT3}, s{T0}, s{sRG}")
    a(f"s_mul_i32 s{sA}, s{sTT3}, 20480")
    a(f"s_mul_i32 s{T1}, s{sKH}, 10240")
    a(f"s_add_u32 s{sA}, s{sA}, s{T1}")
    a(f"s_add_u32 s{sA}, s{sA}, {WS_O}")
    a(f"v_and_b32 v{TM+6}, 15, v0")
    a(f"v_lshrrev_b32 v{TM+7}, 4, v0")
    a(f"v_lshl_add_u32 v{TM+7}, v{TM+6}, 2, v{TM+7}")
    a(f"v_lshlrev_b32 v{TM+7}, 2, v{TM+7}")
    a(f"s_mul_i32 s70, s{sTT3}, 20480")
    a(f"s_add_u32 s70, s70, {WS_H}")
    a(f"s_lshl_b32 s{T0}, s{sN8}, 1")
    a(f"s_add_u32 s{T0}, s{T0}, s{sKH}")
    a(f"s_lshl_b32 s71, s{T0}, 10")
    a(f"s_add_u32 s71, s71, s70")
    a(f"s_lshl_b32 s{T1}, s{sRB64}, 4")
    a(f"s_add_u32 s{T0}, s{T0}, s{T1}")
    a(f"s_lshl_b32 s{T0}, s{T0}, 9")
    a(f"s_lshl_b32 s{T1}, s{sRG}, 7")
    a(f"s_add_u32 s{T0}, s{T0}, s{T1}")
    a(f"s_add_u32 s74, s{T0}, {WS_ST}")
    a(f"s_lshr_b32 s{T0}, s{sN8}, 1")
    a(f"s_lshl_b32 s{T0}, s{T0}, 10")
    a(f"s_and_b32 s{T1}, s{sN8}, 1")
    a(f"s_lshl_b32 s{T1}, s{T1}, 9")
    a(f"s_add_u32 s{T0}, s{T0}, s{T1}")
    a(f"s_add_u32 s70, s70, s{T0}")
    a(f"s_add_u32 s70, s70, 16384")
    a(f"s_lshl_b32 s{T0}, s{sRB64}, 3")
    a(f"s_add_u32 s{T0}, s{T0}, s{sN8}")
    a(f"s_mul_i32 s75, s{T0}, {FSP}")
    a(f"s_add_u32 s75, s75, {FL_3}")
    a(f"s_mul_i32 s{T3}, s{S_C}, {32*FSP}")
    a(f"s_add_u32 s{T3}, s{T3}, {FL_2}")
    k.poll(32, T3, FSP, TM)
    if not k.o.get("w0a", "1") == "1":
        a(f"s_cmp_lg_u32 s{S_W}, 0")
        a("s_cbranch_scc1 L_p3_rx")
        resid_x(k)
        a.label("L_p3_rx")
    a("s_waitcnt vmcnt(3) lgkmcnt(0)")
    a("s_barrier")
    k.hold("fix12")
    k.stamp(12)
    vq = VQ(a)
    aop = [a_op(k, vq, j, j, sA, j >= 8) for j in range(10)]
    D = int(k.o.get("d3", 4))
    coop_touch(k, vq, sA, sN8, 8, 10)
    for j in range(D): aop[j]()
    def addr(j, t):
        r = (BA if j < 9 else BA + 3) + (0, 0, 1, 1, 2)[t]
        return r, (j * 5120 if j < 9 else 0) + t * 1024
    extra = {j: [aop[j + D]] for j in range(10 - D)}
    def perm(r):
        def f():
            a(f"ds_bpermute_b32 v{XR+r}, v{TM+7}, v{XR+r}")
            k.lq.add("p")
        return f
    for r in range(6): extra.setdefault(6 + r // 2, []).append(perm(r))
    mm_steps(k, vq, 10, 5, addr, extra)
    k.stamp(13)
    reduce_halves(k, XR, 6)
    for i, t in enumerate((0, 1, 4)):
        for h in range(2): a(f"v_cvt_pk_bf16_f32 v{HR+2*i+h}, v{ACC+4*t+2*h}, v{ACC+4*t+2*h+1}")
        if i == 1: a(f"buffer_store_dwordx4 {vr(HR,4)}, v{DLIN}, {WS}, s71 offen sc1")
    a(f"v_mov_b32 v{TM+6}, 0x3f803f80")
    a(f"v_mov_b32 v{TM+4}, 0")
    a(f"v_mov_b32 v{TM+5}, 0")
    def acc_stats(regs):
        for r in regs:
            a(f"v_dot2_f32_bf16 v{TM+4}, v{r}, v{TM+6}, v{TM+4}")
            a(f"v_dot2_f32_bf16 v{TM+5}, v{r}, v{r}, v{TM+5}")
    a(f"s_cmp_lg_u32 s{sKH}, 0")
    a("s_cbranch_scc1 L_p3_no4")
    a(f"buffer_store_dwordx2 {vr(HR+4,2)}, v{DL8}, {WS}, s70 offen sc1")
    acc_stats(range(HR + 4, HR + 6))
    a.label("L_p3_no4")
    acc_stats(range(HR, HR + 4))
    a("s_nop 1")
    row_reduce(a, TM + 4, TM + 6)
    a("s_mov_b64 exec, 0xffff")
    a(f"buffer_store_dwordx2 {vr(TM+4,2)}, v{DL8}, {WS}, s74 offen sc1")
    a("s_mov_b64 exec, -1")
    for i in range(4): w2_load(k, None, None, i, 0)
    NW3 = int(k.o.get("nw3", 8))
    for i in range(7, 7 + NW3): stage_write(k, None, i, 8192 * i)
    a("s_waitcnt vmcnt(4)")
    a("s_barrier")
    k.stamp(14)
    k.flag_store(75, TM)

def phase4(k):
    a = k.a
    a.c("================ phase 4: FFN up-projection + SiLU")
    sF, sRB, sTT = 70, 71, 74
    NW3 = int(k.o.get("nw3", 8)); NB4 = min(NW3, int(k.o.get("nb4", 4)))
    def rest_writes():
        for i in list(range(7 + NW3, 18)) + [4, 5, 6]: stage_write(k, None, i, 8192 * i)
    a("s_waitcnt lgkmcnt(0)")
    for i in range(7, 7 + NB4): w2_load(k, None, None, i, 0)
    if k.o.get("w0b", "1") == "1": rest_writes()
    else: not_wave0(k, rest_writes)
    a(f"s_cmp_lt_u32 s{S_W}, 6")
    a("s_cbranch_scc1 L_p4_nocs2")
    for w in (10, 5):
        for i in range(w): a(f"v_add_f32 v{CSV+i}, v{CSV+i}, v{CSV+w+i}")
    for i in range(1, 5): a(f"v_add_f32 v{CSV}, v{CSV}, v{CSV+i}")
    a(f"s_lshl_b32 s{T0}, s{S_W}, 8")
    a(f"s_add_u32 s{T0}, s{T0}, {CS_LDS - 6*256}")
    a(f"v_lshl_add_u32 v{TM+4}, v0, 2, s{T0}")
    a(f"ds_write_b32 v{TM+4}, v{CSV}")
    a.label("L_p4_nocs2")
    a(f"s_and_b32 s{sF}, s{S_J}, 15")
    a(f"s_lshl_b32 s{sRB}, s{S_C}, 1")
    a(f"s_lshr_b32 s{T0}, s{S_J}, 4")
    a(f"s_add_u32 s{sRB}, s{sRB}, s{T0}")
    a(f"v_mov_b32 v{BA}, v{DLIN}")
    a(f"v_add_u32 v{BA+1}, {9*7168}, v{DLIN}")
    a(f"v_add_u32 v{BA+2}, {18*7168}, v{DLIN}")
    a(f"s_lshl_b32 s{T0}, s{sRB}, 3")
    a(f"s_add_u32 s{sTT}, s{T0}, s{S_W}")
    a(f"s_mul_i32 s{sA}, s{sTT}, 20480")
    a(f"s_add_u32 s{sA}, s{sA}, {WS_H}")
    a(f"s_lshr_b32 s{T0}, s{sTT}, 2")
    a(f"s_lshl_b32 s{T0}, s{T0}, 13")
    a(f"s_and_b32 s{T1}, s{sTT}, 3")
    a(f"s_lshl_b32 s{T1}, s{T1}, 7")
    a(f"s_add_u32 s{T0}, s{T0}, s{T1}")
    a(f"s_add_u32 s{sB}, s{T0}, {WS_ST}")
    a(f"v_and_b32 v{TM}, 15, v0")
    a(f"v_lshrrev_b32 v{TM+1}, 4, v0")
    a(f"v_lshlrev_b32 v{BA+3}, 11, v{TM+1}")
    a(f"v_lshl_add_u32 v{BA+3}, v{TM}, 3, v{BA+3}")
    a(f"v_lshlrev_b32 v{BA+4}, 4, v{TM+1}")
    a(f"v_add_u32 v{BA+4}, {CS_LDS}, v{BA+4}")
    w2_tails(k, 5 * NS5 - 64)
    a(f"s_mul_i32 s{T3}, s{sRB}, {16*FSP}")
    a(f"s_add_u32 s{T3}, s{T3}, {FL_3}")
    k.poll(16, T3, FSP, TM)
    if not k.o.get("w0b", "1") == "1":
        a(f"s_cmp_lg_u32 s{S_W}, 0")
        a("s_cbranch_scc1 L_p4_w0")
        rest_writes()
        a.label("L_p4_w0")
    a("s_waitcnt lgkmcnt(0)")
    a("s_barrier")
    k.stamp(15)
    vq = VQ(a)
    aop = [a_op(k, vq, j, j, sA, j >= 16) for j in range(20)]
    D = int(k.o.get("d4", 4))
    coop_touch(k, vq, sA, sF, 16, 20)
    for j in range(D): aop[j]()
    def st_op(i):
        def f():
            a(f"buffer_load_dwordx2 {vr(ST+2*i,2)}, v{BA+3}, {WS}, s{sB} offen offset:{512*i} sc1")
            vq.add("S")
        return f
    extra = {j: [aop[j + D]] for j in range(20 - D)}
    rest = list(range(7 + NB4, 18)) + [4, 5, 6]
    for n, i in enumerate(rest): extra.setdefault(1 + (n * 19) // len(rest), []).append(lambda i=i: w2_load(k, vq, "W", i, 0))
    for i in range(4): extra.setdefault(6 + i, []).insert(0, st_op(i))
    def stats_a():
        vq.wait("S")
        a(f"v_add_f32 v{ST}, v{ST}, v{ST+2}")
        a(f"v_add_f32 v{ST+1}, v{ST+1}, v{ST+3}")
        a(f"v_add_f32 v{ST+4}, v{ST+4}, v{ST+6}")
        a(f"v_add_f32 v{ST+5}, v{ST+5}, v{ST+7}")
        a(f"v_add_f32 v{ST}, v{ST}, v{ST+4}")
        a(f"v_add_f32 v{ST+1}, v{ST+1}, v{ST+5}")
    def stats_sw(sw):
        def f():
            a(f"v_mov_b32 v{ST+2}, v{ST}")
            a(f"v_mov_b32 v{ST+3}, v{ST+1}")
            a("s_nop 0")
            a(f"v_permlane{sw}_swap_b32 v{ST}, v{ST+2}")
            a(f"v_permlane{sw}_swap_b32 v{ST+1}, v{ST+3}")
            a("s_nop 0")
            a(f"v_add_f32 v{ST}, v{ST}, v{ST+2}")
            a(f"v_add_f32 v{ST+1}, v{ST+1}, v{ST+3}")
        return f
    def stats_b():
        a(f"v_mul_f32 v{ST}, 0x{f2u(1.0/640):08x}, v{ST}")
        a(f"v_mul_f32 v{ST+2}, v{ST}, v{ST}")
        a(f"v_mov_b32 v{ST+3}, 0x{f2u(1.0/640):08x}")
        a(f"v_fma_f32 v{ST+2}, v{ST+1}, v{ST+3}, -v{ST+2}")
        a(f"v_max_f32 v{ST+2}, 0, v{ST+2}")
        a(f"v_add_f32 v{ST+2}, 0x{f2u(1e-5):08x}, v{ST+2}")
        a(f"v_rsq_f32 v{ST+1}, v{ST+2}")
        a(f"v_mov_b32 v{ST+2}, 0x{f2u(-math.log2(math.e)):08x}")
        a(f"s_mul_i32 s76, s{sTT}, {54*1024}")
        a(f"v_mul_f32 v{ST+1}, v{ST+1}, v{ST+2}")
        a(f"s_add_u32 s76, s76, {WS_H1}")
        a(f"v_mul_f32 v{ST}, v{ST}, v{ST+1}")
        a(f"s_lshr_b32 s{T1}, s{sF}, 3")
        a(f"s_add_u32 s{T1}, s{T1}, s{sF}")
        a(f"s_mul_i32 s{T1}, s{T1}, 3072")
        a(f"s_add_u32 s77, s{T1}, s76")
    def stats_c():
        a(f"s_lshr_b32 s{T2}, s{sF}, 1")
        a(f"s_cmp_ge_u32 s{sF}, 6")
        a(f"s_cselect_b32 s{T1}, 48, 24")
        a(f"s_add_u32 s{T2}, s{T2}, s{T1}")
        a(f"s_lshl_b32 s{T2}, s{T2}, 10")
        a(f"s_and_b32 s{T1}, s{sF}, 1")
        a(f"s_lshl_b32 s{T1}, s{T1}, 9")
        a(f"s_add_u32 s{T2}, s{T2}, s{T1}")
        a(f"s_add_u32 s76, s76, s{T2}")
        a(f"s_lshl_b32 s{T1}, s{sRB}, 4")
        a(f"s_add_u32 s{T1}, s{T1}, s{sF}")
        a(f"s_mul_i32 s{T3}, s{T1}, {FSP}")
        a(f"s_add_u32 s{T3}, s{T3}, {FL_4}")
    for j, f in ((14, stats_a), (15, stats_sw(16)), (16, stats_sw(32)), (17, stats_b), (18, stats_c)): extra.setdefault(j, []).append(f)
    def addr(j, t): return BA + j // 9, (j % 9) * 7168 + t * 1024
    mm_steps(k, vq, 20, 7, addr, extra)
    k.stamp(16)
    CS = WB + 56
    for t in range(7): a(f"ds_read_b128 {vr(CS+4*t,4)}, v{BA+4} offset:{64*t}")
    a(f"s_cmp_lt_u32 s{S_W}, 4")
    a("s_cbranch_scc1 L_p4_nb")
    a("s_barrier")
    a.label("L_p4_nb")
    a("s_waitcnt lgkmcnt(0)")
    E = WB; OUT = AF
    def silu(tiles):
        rs = [4 * t + r for t in tiles for r in range(4)]
        for r in rs: a(f"v_mul_f32 v{ACC+r}, v{ST+1}, v{ACC+r}")
        for r in rs: a(f"v_fma_f32 v{ACC+r}, -v{ST}, v{CS+r}, v{ACC+r}")
        for r in rs: a(f"v_exp_f32 v{E+r}, v{ACC+r}")
        for r in rs: a(f"v_fma_f32 v{E+r}, v{E+r}, v{ST+2}, v{ST+2}")
        for r in rs: a(f"v_rcp_f32 v{E+r}, v{E+r}")
        for r in rs: a(f"v_mul_f32 v{ACC+r}, v{ACC+r}, v{E+r}")
        for r in rs[::2]: a(f"v_cvt_pk_bf16_f32 v{OUT+r//2}, v{ACC+r}, v{ACC+r+1}")
    a(f"s_cmp_ge_u32 s{sF}, 12")
    a("s_cbranch_scc1 L_p4_no6")
    silu((6,))
    a(f"buffer_store_dwordx2 {vr(OUT+12,2)}, v{DL8}, {WS}, s76 offen sc1")
    a.label("L_p4_no6")
    PB = int(k.o.get("pb4", 2))
    for p in range(3):
        if p == PB:
            a(f"s_cmp_ge_u32 s{S_W}, 4")
            a("s_cbranch_scc1 L_p4_nb2")
            a("s_barrier")
            a.label("L_p4_nb2")
        silu((2 * p, 2 * p + 1))
        a(f"buffer_store_dwordx4 {vr(OUT+4*p,4)}, v{DLIN}, {WS}, s77 offen offset:{1024*p} sc1")
    order = [x for q in range(9) for x in (q, 9 + q)]
    NB5 = 12
    def w2_swap():
        for n, i in enumerate(order):
            w2_write(k, None, i)
            if 4 <= n < 4 + NB5:
                a("s_waitcnt lgkmcnt(4)")
                w2_load(k, None, None, order[n - 4], 1)
        if NB5 > 14:
            a("s_waitcnt lgkmcnt(0)")
            for i in order[14:NB5]: w2_load(k, None, None, i, 1)
    a(f"s_cmp_ge_u32 s{S_W}, 4")
    a("s_cbranch_scc1 L_p4_y")
    if PB == 3: a("s_barrier")
    a("s_waitcnt vmcnt(3)")
    w2_swap()
    a(f"s_waitcnt vmcnt({NB5})")
    a("s_barrier")
    k.stamp(17)
    k.flag_store(T3, TM)
    a("s_branch L_p4_e")
    a.label("L_p4_y")
    a("s_waitcnt vmcnt(0)")
    a("s_barrier")
    k.stamp(17)
    w2_swap()
    a.label("L_p4_e")

def phase5(k):
    a = k.a
    a.c("================ phase 5: FFN down-projection + residual")
    a(f"s_mul_i32 s{T0}, s{sKH}, {HALF}")
    tile_addrs(k, T0, BA)
    for i in range(3): a(f"v_add_u32 v{BA+3+i}, {12*5120}, v{BA+i}")
    a(f"v_and_b32 v{TM+4}, 15, v0")
    a(f"s_lshl_b32 s{T0}, s{sRG}, 4")
    a(f"v_add_u32 v{TM+4}, s{T0}, v{TM+4}")
    a(f"v_mul_u32_u24 v{TM+4}, {OUT_PITCH}, v{TM+4}")
    a(f"v_lshrrev_b32 v{TM+5}, 4, v0")
    a(f"v_lshl_add_u32 v{TM+4}, v{TM+5}, 4, v{TM+4}")
    a(f"s_mul_i32 s{T0}, s{sKH}, {OUT_HALF}")
    a(f"s_add_u32 s{T0}, s{T0}, {OUT_LDS}")
    a(f"v_add_u32 v{TL}, s{T0}, v{TM+4}")
    a(f"s_lshl_b32 s{T0}, s{sKH}, 7")
    a(f"v_add_u32 v{XW}, s{T0}, v{TL}")
    a(f"v_subrev_u32 v{XRD}, s{T0}, v{TL}")
    for n in range(2):
        a(f"s_mul_i32 s{T0}, s{S_W}, 0x50")
        a(f"s_add_u32 s{T0}, s{T0}, {64*n}")
        a(f"v_add_u32 v{TM+2}, s{T0}, v0")
        a(f"v_mul_u32_u24 v{TM+3}, 6554, v{TM+2}")
        a(f"v_lshrrev_b32 v{TM+3}, 16, v{TM+3}")
        a(f"v_mul_u32_u24 v{TM+4+2*n}, 10, v{TM+3}")
        a(f"v_sub_u32 v{TM+2}, v{TM+2}, v{TM+4+2*n}")
        a(f"v_mul_u32_u24 v{TM+4+2*n}, {OUT_PITCH}, v{TM+3}")
        a(f"v_lshl_add_u32 v{TM+4+2*n}, v{TM+2}, 5, v{TM+4+2*n}")
        a(f"v_add_u32 v{TM+4+2*n}, {OUT_LDS}, v{TM+4+2*n}")
        a(f"v_mul_u32_u24 v{TM+5+2*n}, 1280, v{TM+3}")
        a(f"v_lshl_add_u32 v{TM+5+2*n}, v{TM+2}, 4, v{TM+5+2*n}")
    a(f"s_mul_i32 s{sA}, s{sRB64}, {64*1280}")
    a(f"s_mul_i32 s{T0}, s{sN8}, 160")
    a(f"s_add_u32 s{sA}, s{sA}, s{T0}")
    a(f"s_mul_i32 s{sB}, s{sTT3}, {54*1024}")
    a(f"s_mul_i32 s{T1}, s{sKH}, {27*1024}")
    a(f"s_add_u32 s{sB}, s{sB}, s{T1}")
    a(f"s_add_u32 s{sB}, s{sB}, {WS_H1}")
    if k.o.get("p5hot"): a(f"s_mov_b32 s{sB}, {WS_W2}")
    if k.o.get("p5oob"): a(f"s_mov_b32 s{sB}, 0x7f000000")
    a(f"s_lshr_b32 s{T3}, s{sRB64}, 1")
    a(f"s_mul_i32 s{T3}, s{T3}, {16*FSP}")
    a(f"s_add_u32 s{T3}, s{T3}, {FL_4}")
    k.poll(16, T3, FSP, TM)
    a("s_waitcnt lgkmcnt(0)")
    a("s_barrier")
    k.stamp(18)
    vq = VQ(a)
    aop = [a_op(k, vq, j, j, sB, j >= 24) for j in range(27)]
    D = int(k.o.get("d5", 5))
    coop_touch(k, vq, sB, sN8, 8, 27)
    for j in range(D): aop[j]()
    extra = {j: [aop[j + D]] for j in range(27 - D)}
    NB5 = 12
    NB5 = 12
    bars = (5, 10, 13, 20)
    dm = [x for p in zip(dma_ops(k, vq, "R", 5 * NS5 + 48, 135, sW2, sW10, 48 * 1024), dma_ops(k, vq, "R", 135 + 5 * NS5 + 48, 270, sW2, sW10, HALF + 48 * 1024)) for x in p]
    for n, f in enumerate(dm): extra.setdefault(13 + n // 2, []).append(f)
    def wr(i):
        vq.wait(("W", i))
        w2_write(k, k.lq, i)
    for g in range(2):
        for n, i in enumerate(x for q in range(3 * g, 3 * g + 3) for x in (q, 9 + q)):
            if 6 * g + n >= NB5: extra.setdefault(6 * g + n - NB5, []).append(lambda i=i: w2_load(k, vq, ("W", i), i, 1))
            if not k.o.get("p5now"): extra.setdefault(bars[g] + n // 2, []).append(lambda i=i: wr(i))
    slot = lambda j: j if j < NS5 else j - NS5
    def addr(j, t):
        s = slot(j)
        return BA + (3 if s >= 12 else 0) + (0, 0, 1, 1, 2)[t], (s % 12) * 5120 + t * 1024
    def pre(j):
        if j - 2 in bars:
            k.lq.wait("w")
            vq.wait("R") if j - 2 == 20 else None
            if not k.o.get("p5nob"): a("s_barrier")
    mm_steps(k, vq, 27, 5, addr, extra, pre)
    k.stamp(19)
    a("s_nop 1")
    for i, t in enumerate((0, 1, 4)):
        if i == 2:
            a(f"s_cmp_lg_u32 s{sKH}, 0")
            a("s_cbranch_scc1 L_p5_no4")
        for h in range(2):
            a(f"v_lshlrev_b32 v{TM+2}, 16, v{HR+2*i+h}")
            a(f"v_and_b32 v{TM+3}, 0xffff0000, v{HR+2*i+h}")
            a(f"v_add_f32 v{ACC+4*t+2*h}, v{ACC+4*t+2*h}, v{TM+2}")
            a(f"v_add_f32 v{ACC+4*t+2*h+1}, v{ACC+4*t+2*h+1}, v{TM+3}")
        if i < 2: a(f"ds_write_b128 v{XW}, {vr(ACC+4*t,4)} offset:{64*t}")
        if i == 1:
            a(f"ds_write_b128 v{XRD}, {vr(ACC+8,4)} offset:128")
            a(f"ds_write_b128 v{XRD}, {vr(ACC+12,4)} offset:192")
    a.label("L_p5_no4")
    a(f"ds_write_b128 v{TL}, {vr(ACC+16,4)} offset:256")
    a("s_waitcnt lgkmcnt(0)")
    a("s_barrier")
    OUTS = f"s[{SRD_OUT}:{SRD_OUT+3}]"
    def rd(ra, base):
        for h in range(2):
            for q in range(2): a(f"ds_read_b128 {vr(base+8*h+4*q,4)}, v{ra} offset:{16*q}")
            if h == 0: a(f"v_add_u32 v{ra}, {OUT_HALF}, v{ra}")
    def fin(ga, base):
        for r in range(8): a(f"v_add_f32 v{base+r}, v{base+r}, v{base+8+r}")
        for r in range(4): a(f"v_cvt_pk_bf16_f32 v{base+r}, v{base+2*r}, v{base+2*r+1}")
        a(f"buffer_store_dwordx4 {vr(base,4)}, v{ga}, {OUTS}, s{sA} offen {k.o.get('ost', '')}")
    rd(TM + 4, WB)
    a("s_mov_b64 exec, 0xffff")
    rd(TM + 6, WB + 16)
    a("s_mov_b64 exec, -1")
    a("s_waitcnt lgkmcnt(4)")
    fin(TM + 5, WB)
    a("s_mov_b64 exec, 0xffff")
    a("s_waitcnt lgkmcnt(0)")
    fin(TM + 7, WB + 16)
    a("s_mov_b64 exec, -1")
```

```python
import sys, math
from asmlib import Asm, vr, sr, f2u, check
from tables import *

NAME = "sequential_preLN__mha_block__dense_activation_silu__prompt"
LDS_BYTES = 163840
SPIN_MAX = 20000

S_G = 2
SRD_X, SRD_WQ, SRD_WS, SRD_OUT, SRD_DBG, SRD_RL = 4, 8, 12, 16, 20, 24
S_W, S_C, S_J = 28, 29, 30
S_NONCE = 32
S_PTR = 36
T0, T1, T2, T3, T4, T5 = 54, 55, 56, 57, 58, 59
S_M1 = 60
S_SPIN = 62

class K:
    def __init__(self, stop_after=99, opts=None):
        self.a = Asm()
        self.stop = stop_after
        self.o = opts or {}
        self.pad = 0
        self._sides = []; self._late1 = []

    def srd(self, d, ptr, nbytes):
        a = self.a
        a(f"s_mov_b32 s{d}, s{ptr}")
        a(f"s_and_b32 s{d+1}, s{ptr+1}, 0xffff")
        a(f"s_mov_b32 s{d+2}, {nbytes}")
        a(f"s_mov_b32 s{d+3}, 0x20000")

    def stamp(self, idx):
        if not self.o.get("stamps"): return
        if self.o["stamps"] == "min" and idx not in (0, 9, 10, 31): return
        a = self.a
        a("s_memrealtime s[100:101]")
        a("s_waitcnt lgkmcnt(0)")
        a(f"v_writelane_b32 v255, s100, {idx}")
        if idx < 22 and self.o["stamps"] != "min":
            a("s_memtime s[100:101]")
            a("s_waitcnt lgkmcnt(0)")
            a(f"v_writelane_b32 v255, s100, {idx+32}")

    def stamp_dyn(self, base, sreg):
        if not self.o.get("its"): return
        a = self.a
        a("s_memtime s[100:101]")
        a("s_mov_b32 s99, m0")
        a(f"s_add_u32 m0, s{sreg}, {base}")
        a("s_waitcnt lgkmcnt(0)")
        a("v_writelane_b32 v255, s100, m0")
        a("s_mov_b32 m0, s99")

    def stamp_flush(self):
        if not self.o.get("stamps"): return
        a = self.a
        if self.o.get("dbgwg"):
            L = a.newlabel("dbg")
            a(f"s_cmp_lg_u32 s{S_G}, {int(self.o['dbgwg'])}")
            a(f"s_cbranch_scc1 {L}")
            a(f"s_cmp_lg_u32 s{S_W}, 0")
            a(f"s_cbranch_scc1 {L}")
            a(f"v_readlane_b32 s{T1}, v255, 0")
            for n, i in enumerate((3, 4, 7, 8, 9, 10, 12, 13, 15, 16, 18, 19, 31)):
                a(f"v_readlane_b32 s{T0}, v255, {i}")
                a("s_nop 3")
                a(f"s_sub_u32 s{T0}, s{T0}, s{T1}")
                a(f"v_mov_b32 v1, s{T0}")
                a(f"v_mov_b32 v2, {8+4*n}")
                a(f"buffer_store_dword v1, v2, s[{SRD_DBG}:{SRD_DBG+3}], 0 offen")
            a.label(L)
            return
        a(f"s_lshl_b32 s{T0}, s{S_G}, 3")
        a(f"s_add_u32 s{T0}, s{T0}, s{S_W}")
        a(f"s_lshl_b32 s{T0}, s{T0}, 8")
        a(f"s_add_u32 s{T0}, s{T0}, {WS_SIZE}")
        a("v_lshlrev_b32 v1, 2, v0")
        a(f"buffer_store_dword v255, v1, s[{SRD_WS}:{SRD_WS+3}], s{T0} offen")
        a("s_mov_b64 exec, -1")

    def diag(self, what):
        if self.o.get("diag") == what: self.a("s_mov_b32 s35, 1")

    def dma(self, voff, srd, soff, flags=""):
        if self.o.get("nodma"): return
        self.a(f"buffer_load_dwordx4 v{voff}, s[{srd}:{srd+3}], {soff} offen {flags} lds".replace("  ", " "))

    def flag_store(self, s_off, vt, pol="sc1"):
        a = self.a
        L = a.newlabel("nofl")
        a(f"s_cmp_lg_u32 s{S_W}, 0")
        a(f"s_cbranch_scc1 {L}")
        a(f"v_mov_b32 v{vt}, s{S_NONCE}")
        a(f"v_mov_b32 v{vt+1}, s{S_NONCE+1}")
        a(f"v_mov_b32 v{vt+2}, 0")
        a("s_mov_b64 exec, 1")
        a(f"buffer_store_dwordx2 v[{vt}:{vt+1}], v{vt+2}, s[{SRD_WS}:{SRD_WS+3}], s{s_off} offen {pol}")
        a("s_mov_b64 exec, -1")
        a.label(L)

    def poll(self, n, s_off, spacing, vt, only_wave0=True):
        a = self.a
        L = a.newlabel("poll"); Ld = a.newlabel("polld")
        if only_wave0:
            a(f"s_cmp_lg_u32 s{S_W}, 0")
            a(f"s_cbranch_scc1 {Ld}")
        a(f"s_mov_b32 s{S_SPIN}, 0")
        if n == 256:
            assert spacing == 8
            a(f"v_lshlrev_b32 v{vt+8}, 4, v0")
            a.label(L)
            a(f"buffer_load_dwordx4 v[{vt}:{vt+3}], v{vt+8}, s[{SRD_WS}:{SRD_WS+3}], s{s_off} offen sc1")
            a(f"buffer_load_dwordx4 v[{vt+4}:{vt+7}], v{vt+8}, s[{SRD_WS}:{SRD_WS+3}], s{s_off} offen offset:1024 sc1")
            a(f"s_add_u32 s{S_SPIN}, s{S_SPIN}, 1")
            a("s_waitcnt vmcnt(0)")
            a(f"v_cmp_ne_u64 vcc, s[{S_NONCE}:{S_NONCE+1}], v[{vt}:{vt+1}]")
            a(f"v_cmp_ne_u64 s[{S_M1}:{S_M1+1}], s[{S_NONCE}:{S_NONCE+1}], v[{vt+2}:{vt+3}]")
            a("s_nop 0")
            a(f"s_or_b64 s[{T4}:{T5}], vcc, s[{S_M1}:{S_M1+1}]")
            a(f"v_cmp_ne_u64 vcc, s[{S_NONCE}:{S_NONCE+1}], v[{vt+4}:{vt+5}]")
            a(f"v_cmp_ne_u64 s[{S_M1}:{S_M1+1}], s[{S_NONCE}:{S_NONCE+1}], v[{vt+6}:{vt+7}]")
            a("s_nop 0")
            a(f"s_or_b64 s[{T4}:{T5}], s[{T4}:{T5}], vcc")
            a(f"s_or_b64 s[{T4}:{T5}], s[{T4}:{T5}], s[{S_M1}:{S_M1+1}]")
        else:
            a(f"v_and_b32 v{vt+2}, {n-1}, v0")
            a(f"v_mul_u32_u24 v{vt+2}, {spacing}, v{vt+2}")
            a.label(L)
            a(f"buffer_load_dwordx2 v[{vt}:{vt+1}], v{vt+2}, s[{SRD_WS}:{SRD_WS+3}], s{s_off} offen sc1")
            a(f"s_add_u32 s{S_SPIN}, s{S_SPIN}, 1")
            a("s_waitcnt vmcnt(0)")
            a(f"v_cmp_ne_u64 vcc, s[{S_NONCE}:{S_NONCE+1}], v[{vt}:{vt+1}]")
            a("s_nop 0")
            a(f"s_or_b64 s[{T4}:{T5}], vcc, vcc")
        a(f"s_cbranch_scc0 {Ld}")
        a(f"s_cmp_lt_u32 s{S_SPIN}, {SPIN_MAX}")
        a(f"s_cbranch_scc1 {L}")
        a.label(Ld)

    def poll2(self, va, vb, s_off, vt):
        a = self.a
        L = a.newlabel("poll"); Ld = a.newlabel("polld")
        N = f"s[{S_NONCE}:{S_NONCE+1}]"
        a(f"s_cmp_lg_u32 s{S_W}, 0")
        a(f"s_cbranch_scc1 {Ld}")
        a(f"s_mov_b32 s{S_SPIN}, 0")
        a.label(L)
        a(f"buffer_load_dwordx2 v[{vt}:{vt+1}], v{va}, s[{SRD_WS}:{SRD_WS+3}], s{s_off} offen sc1")
        a(f"buffer_load_dwordx2 v[{vt+2}:{vt+3}], v{vb}, s[{SRD_WS}:{SRD_WS+3}], s{s_off} offen sc1")
        a(f"s_add_u32 s{S_SPIN}, s{S_SPIN}, 1")
        a("s_waitcnt vmcnt(0)")
        a(f"v_cmp_ne_u64 vcc, {N}, v[{vt}:{vt+1}]")
        a(f"v_cmp_ne_u64 s[{S_M1}:{S_M1+1}], {N}, v[{vt+2}:{vt+3}]")
        a("s_nop 0")
        a(f"s_or_b64 vcc, vcc, s[{S_M1}:{S_M1+1}]")
        a(f"s_cbranch_scc0 {Ld}")
        a(f"s_cmp_lt_u32 s{S_SPIN}, {SPIN_MAX}")
        a(f"s_cbranch_scc1 {L}")
        a.label(Ld)

    def entry(self):
        a = self.a
        a(f"s_cmp_ge_u32 s{S_G}, 256")
        a("s_cbranch_scc1 L_end")
        a(f"s_load_dwordx2 s[{SRD_X}:{SRD_X+1}], s[0:1], 0")
        a(f"s_load_dwordx2 s[{SRD_WQ}:{SRD_WQ+1}], s[0:1], 8")
        a(f"s_load_dwordx2 s[{SRD_DBG}:{SRD_DBG+1}], s[0:1], 56")
        a(f"s_load_dwordx16 s[{S_PTR}:{S_PTR+15}], s[0:1], 0")
        a(f"s_load_dwordx2 s[{S_PTR+16}:{S_PTR+17}], s[0:1], 64")
        a(f"s_memrealtime s[{S_NONCE}:{S_NONCE+1}]")
        if self.o.get("stamps"): a("v_mov_b32 v255, 0")
        self.stamp(0)
        a("v_lshrrev_b32 v1, 6, v0")
        a("v_and_b32 v0, 63, v0")
        a(f"v_readfirstlane_b32 s{S_W}, v1")
        a(f"s_and_b32 s{S_C}, s{S_G}, 7")
        a(f"s_lshr_b32 s{S_J}, s{S_G}, 3")

    ACC = 16; XF = 160; WF = 176; XA = 72; WA = 144; DXA, DXB, DW = 78, 79, 80; VXM = 76
    ONES = 82
    CQ = 96
    CQA = 81; CSW = 85
    PGA, PGV, PGR, PGD = 116, 117, 118, 119
    RSA, RS = 84, 128
    STA = 86
    RLV, RLA = 157, 158
    VN = 92
    sRB, sCT, sKC, sXO, sWO, sSLOT, sCNT, sXM, sTG, sNH = 64, 65, 66, 67, 68, 69, 70, 71, 72, 73
    sTAB = 74
    sM0X = 80; sWO2 = 81; sKC0 = 82; sSIDE = 83; sI1 = 71; sI2 = 34; sSM = 35
    sRL = 84
    P1_MISC = 148 * 1024
    RL_SCR = 68 * 1024
    CQ_SCR = 128 * 1024
    DUMMY = 159 * 1024
    CPF_LINES = 8

    def p1_issue(self, pieces=(0, 1, 2, 3)):
        a = self.a
        if 0 in pieces:
            a(f"s_add_u32 m0, s{self.sM0X}, s{self.sSLOT}")
            a(f"s_add_u32 s{self.sKC}, s{self.sKC}, 1")
            self.dma(self.DXA, SRD_X, f"s{self.sXO}")
        if 1 in pieces:
            a("s_add_u32 m0, m0, 16384")
            a(f"s_add_u32 s{self.sWO2}, s{self.sWO}, 15360")
            self.dma(self.DW, SRD_WQ, f"s{self.sWO}")
        if 2 in pieces:
            a("s_sub_u32 m0, m0, 15360")
            a(f"s_add_u32 s{self.sWO}, s{self.sWO}, 245760")
            self.dma(self.DXB, SRD_X, f"s{self.sXO}")
        if 3 in pieces:
            a("s_add_u32 m0, m0, 16384")
            a(f"s_add_u32 s{self.sXO}, s{self.sXO}, 128")
            self.dma(self.DW, SRD_WQ, f"s{self.sWO2}")
            a(f"s_cmp_eq_u32 s{self.sKC}, 10")
            a(f"s_cselect_b32 s{T0}, 1280, 0")
            a(f"s_cselect_b32 s{T1}, 2457600, 0")
            a(f"s_cselect_b32 s{self.sKC}, 0, s{self.sKC}")
            a(f"s_sub_u32 s{self.sXO}, s{self.sXO}, s{T0}")
            a(f"s_sub_u32 s{self.sWO}, s{self.sWO}, s{T1}")
            a(f"s_add_u32 s{self.sSLOT}, s{self.sSLOT}, 32768")
            a(f"s_and_b32 s{self.sSLOT}, s{self.sSLOT}, 0x1ffff")

    def p1_setup_a(self):
        a = self.a
        a(f"s_lshr_b32 s{T0}, s{S_C}, 1")
        a(f"s_lshl_b32 s{T0}, s{T0}, 2")
        a(f"s_lshr_b32 s{T1}, s{S_J}, 3")
        a(f"s_add_u32 s{self.sRB}, s{T0}, s{T1}")
        a(f"s_and_b32 s{T0}, s{S_C}, 1")
        a(f"s_lshl_b32 s{T0}, s{T0}, 3")
        a(f"s_and_b32 s{T2}, s{S_J}, 7")
        a(f"s_add_u32 s{self.sCT}, s{T0}, s{T2}")
        g = int(self.o.get("rotg", 4))
        if g == 8:
            a(f"s_lshl_b32 s{T1}, s{T1}, 1")
            a(f"s_add_u32 s{self.sKC}, s{T2}, s{T1}")
            a(f"s_bfe_u32 s{T0}, s{S_C}, 0x10001")
            a(f"s_and_b32 s{T1}, s{S_C}, 4")
            a(f"s_lshl_b32 s{T1}, s{T1}, 1")
            a(f"s_add_u32 s{T0}, s{T0}, s{T1}")
            a(f"s_add_u32 s{self.sKC}, s{self.sKC}, s{T0}")
        else:
            bases, offs, shift = {3: ((0, 3, 7), (0, 1, 2, 6), 0), 4: ((0, 2, 5, 7), (0, 1, 2, 3), 0), 5: ((0, 2, 4, 6, 8), (0, 1, 0, 1), 1)}[g]
            a(f"s_add_u32 s{T1}, s{T1}, s{T2}")
            a(f"s_lshr_b32 s{T0}, s{S_C}, 1")
            if shift: a(f"s_add_u32 s{T1}, s{T1}, s{T0}")
            tab = sum(bases[i % g] << (4 * i) for i in range(16))
            a(f"s_lshl_b32 s{T1}, s{T1}, 2")
            a(f"s_mov_b32 s{T4}, 0x{tab & 0xffffffff:08x}")
            a(f"s_mov_b32 s{T5}, 0x{tab >> 32:08x}")
            a(f"s_lshr_b64 s[{T4}:{T5}], s[{T4}:{T5}], s{T1}")
            a(f"s_and_b32 s{self.sKC}, s{T4}, 15")
            a(f"s_lshl_b32 s{T0}, s{T0}, 2")
            a(f"s_lshr_b32 s{T0}, 0x{sum(o << (4 * i) for i, o in enumerate(offs)):04x}, s{T0}")
            a(f"s_and_b32 s{T0}, s{T0}, 15")
            a(f"s_add_u32 s{self.sKC}, s{self.sKC}, s{T0}")
            for ct in range(8):
                assert len({(bases[(ct + rl + shift * aa) % g] + offs[aa]) % 10 for aa in range(4) for rl in range(4)}) == 10
        a(f"s_mul_i32 s{T0}, s{self.sKC}, 26")
        a(f"s_lshr_b32 s{T0}, s{T0}, 8")
        a(f"s_mul_i32 s{T0}, s{T0}, 10")
        a(f"s_sub_u32 s{self.sKC}, s{self.sKC}, s{T0}")
        a(f"s_mov_b32 s{self.sKC0}, s{self.sKC}")
        a(f"s_mul_i32 s{self.sXO}, s{self.sRB}, 163840")
        a(f"s_lshl_b32 s{T0}, s{self.sKC}, 7")
        a(f"s_add_u32 s{self.sXO}, s{self.sXO}, s{T0}")
        a(f"s_mul_i32 s{self.sWO}, s{self.sKC}, 245760")
        a(f"s_lshl_b32 s{T0}, s{self.sCT}, 8")
        a(f"s_add_u32 s{self.sWO}, s{self.sWO}, s{T0}")
        a(f"s_lshl_b32 s{self.sM0X}, s{S_W}, 11")
        a(f"s_mov_b32 s{self.sSLOT}, 0")
        a("v_lshrrev_b32 v1, 3, v0")
        a("v_lshrrev_b32 v2, 4, v0")
        a("v_and_b32 v3, 7, v0")
        a("v_xor_b32 v3, v3, v2")
        a(f"s_lshl_b32 s{T0}, s{S_W}, 4")
        a(f"v_add_u32 v4, s{T0}, v1")
        a("v_mul_u32_u24 v4, 1280, v4")
        a(f"v_lshl_add_u32 v{self.DXA}, v3, 4, v4")
        a(f"v_xor_b32 v{self.DXB}, 64, v{self.DXA}")
        a(f"v_add_u32 v{self.DXB}, 10240, v{self.DXB}")
        a("v_lshlrev_b32 v3, 2, v2")
        a("v_and_b32 v4, 15, v0")
        a("v_xor_b32 v3, v3, v4")
        a(f"s_lshl_b32 s{T0}, s{S_W}, 3")
        a(f"v_add_u32 v4, s{T0}, v2")
        a("v_mul_u32_u24 v4, 3840, v4")
        a(f"v_lshl_add_u32 v{self.DW}, v3, 4, v4")
        for d, n in ((SRD_X, 2048 * 1280), (SRD_WQ, 640 * 3840), (SRD_DBG, 256)):
            a(f"s_mov_b32 s{d+2}, {n}")
            a(f"s_mov_b32 s{d+3}, 0x20000")
        a("s_waitcnt lgkmcnt(0)")
        if self.o.get("fixown"): a(f"s_mov_b32 s31, s{S_NONCE}")
        if self.o.get("diag"): a("s_mov_b32 s35, 0")
        a(f"s_or_b32 s{T0}, s{S_G}, s{S_W}")
        a("s_cbranch_scc0 L_nonce_pub")
        a.label("L_nonce_done")
        a(f"s_cmp_eq_u32 s{self.sCT}, 15")
        a("s_cbranch_scc1 L_p1_noissue")
        self.p1_issue()
        if self.o.get("first5", "1") == "1": self.p1_issue((0,))
        a.label("L_p1_noissue")
        self.stamp(1)
        self.srd(SRD_WS, S_PTR + 16, WS_SIZE + ((1 << 20) if self.o.get("stamps") else 0))
        self.srd(SRD_OUT, S_PTR + 12, 2048 * 1280)
        a(f"s_mov_b64 s[{SRD_RL}:{SRD_RL+1}], 0")
        a(f"s_mov_b32 s{SRD_RL+2}, 0")
        a(f"s_mov_b32 s{SRD_RL+3}, 0x20000")
        a(f"v_mov_b32 v{self.RLV}, 0")
        if self.o.get("cpf", "1") == "1":
            Lc = a.newlabel("cpf")
            a(f"s_cmp_lg_u32 s{S_W}, 7")
            a(f"s_cbranch_scc1 {Lc}")
            a(f"s_getpc_b64 s[{T4}:{T5}]")
            a.label("L_pc_here")
            a(f"s_mul_i32 s{T0}, s{S_J}, {self.CPF_LINES*128}")
            a(f"s_sub_u32 s{T0}, s{T0}, L_pc_here-{NAME}_kernel")
            a(f"v_min_u32 v3, {self.CPF_LINES-1}, v0")
            a(f"v_lshl_add_u32 v3, v3, 7, s{T0}")
            a("v_ashrrev_i32 v5, 31, v3")
            a(f"v_mov_b32 v6, s{T5}")
            a(f"v_add_co_u32 v4, vcc, s{T4}, v3")
            a("s_nop 1")
            a("v_addc_co_u32 v5, vcc, v5, v6, vcc")
            a("global_load_dword v254, v[4:5], off")
            a.label(Lc)

    def relayout_setup(self):
        a = self.a
        R = self.sRL
        u = a.newlabel("u")
        sID, sKS, sCB, sST, sA, sB, sCc, sD = T0, T1, T2, T3, 93, 94, 95, 96
        sBase, sSl, sKsS = 97, 98, 99
        a(f"s_mul_i32 s{sID}, s{S_G}, 5")
        a(f"s_add_u32 s{sID}, s{sID}, s{S_W}")
        a(f"s_sub_u32 s{sID}, s{sID}, 1")
        a(f"s_min_u32 s{sID}, s{sID}, 1279")
        a(f"s_mov_b32 s{sA}, 16")
        a(f"s_mov_b32 s{sB}, 8")
        a(f"s_mov_b32 s{sCc}, 4")
        a(f"s_mov_b32 s{SRD_RL+3}, 0x20000")
        a(f"s_mov_b32 s{R+8}, -1")
        a(f"s_cmp_lt_u32 s{sID}, 200")
        a(f"s_cbranch_scc1 L_rl_wo{u}")
        a(f"s_cmp_lt_u32 s{sID}, 740")
        a(f"s_cbranch_scc1 L_rl_w1{u}")
        a(f"s_sub_u32 s{sID}, s{sID}, 740")
        a(f"s_mul_i32 s{sKS}, s{sID}, 6554")
        a(f"s_lshr_b32 s{sKS}, s{sKS}, 16")
        a(f"s_mul_i32 s{sCB}, s{sKS}, 10")
        a(f"s_sub_u32 s{sCB}, s{sID}, s{sCB}")
        a(f"s_lshl_b32 s{sD}, s{sKS}, 5")
        a(f"s_mov_b32 s{SRD_RL}, s{S_PTR+10}")
        a(f"s_and_b32 s{SRD_RL+1}, s{S_PTR+11}, 0xffff")
        a(f"s_mov_b32 s{SRD_RL+2}, {1728*1280}")
        a(f"s_mov_b32 s{sBase}, {WS_W2}")
        a(f"s_mov_b32 s{sSl}, {54*5120}")
        a(f"s_add_u32 s{T4}, s{sKS}, 3")
        a(f"s_cmp_ge_u32 s{sKS}, 24")
        a(f"s_cselect_b32 s{T4}, s{T4}, s{sKS}")
        a(f"s_sub_u32 s{T5}, s{sKS}, 24")
        a(f"s_cmp_ge_u32 s{sKS}, 48")
        a(f"s_cselect_b32 s{T4}, s{T5}, s{T4}")
        a(f"s_cmp_ge_u32 s{sKS}, 51")
        a(f"s_cselect_b32 s{sKS}, s{sKS}, s{T4}")
        a(f"s_branch L_rl_n640{u}")
        a.label(f"L_rl_wo{u}")
        a(f"s_mul_i32 s{sKS}, s{sID}, 6554")
        a(f"s_lshr_b32 s{sKS}, s{sKS}, 16")
        a(f"s_mul_i32 s{sCB}, s{sKS}, 10")
        a(f"s_sub_u32 s{sCB}, s{sID}, s{sCB}")
        a(f"s_mul_i32 s{sD}, s{sKS}, 40")
        a(f"s_mul_i32 s{sST}, s{sKS}, 160")
        a(f"s_sub_u32 s{sST}, s{sST}, {160*16-16}")
        a(f"s_cmp_lt_u32 s{sKS}, 16")
        a(f"s_cselect_b32 s{sD}, s{sD}, s{sST}")
        a(f"s_cselect_b32 s{sA}, 8, 20")
        a(f"s_cselect_b32 s{sB}, 20, 0x50")
        a(f"s_cselect_b32 s{sCc}, 4, 40")
        a(f"s_mov_b32 s{SRD_RL}, s{S_PTR+4}")
        a(f"s_and_b32 s{SRD_RL+1}, s{S_PTR+5}, 0xffff")
        a(f"s_mov_b32 s{SRD_RL+2}, {640*1280}")
        a(f"s_mov_b32 s{sBase}, {WS_WO}")
        a(f"s_mov_b32 s{sSl}, {20*5120}")
        a(f"s_add_u32 s{T4}, s{sKS}, 2")
        a(f"s_cmp_ge_u32 s{sKS}, 8")
        a(f"s_cselect_b32 s{T4}, s{T4}, s{sKS}")
        a(f"s_sub_u32 s{T5}, s{sKS}, 8")
        a(f"s_cmp_ge_u32 s{sKS}, 16")
        a(f"s_cselect_b32 s{T4}, s{T5}, s{T4}")
        a(f"s_cmp_ge_u32 s{sKS}, 18")
        a(f"s_cselect_b32 s{sKS}, s{sKS}, s{T4}")
        a(f"s_sub_u32 s{T4}, s{sKS}, 1")
        a(f"s_cmp_ge_u32 s{sKS}, 10")
        a(f"s_cselect_b32 s{T4}, s{T4}, s{sKS}")
        a(f"s_cmp_eq_u32 s{sKS}, 9")
        a(f"s_cselect_b32 s{T4}, 18, s{T4}")
        a(f"s_cmp_eq_u32 s{sKS}, 19")
        a(f"s_cselect_b32 s{sKS}, 19, s{T4}")
        a.label(f"L_rl_n640{u}")
        a(f"s_mov_b32 s{sST}, 1280")
        a(f"s_mul_i32 s{sKsS}, s{sKS}, 5120")
        a(f"s_add_u32 s{sBase}, s{sBase}, s{sKsS}")
        for t in range(4):
            a(f"s_lshl_b32 s{T4}, s{sCB}, 2")
            a(f"s_add_u32 s{T4}, s{T4}, {t}")
            a(f"s_mul_i32 s{T5}, s{T4}, 52")
            a(f"s_lshr_b32 s{T5}, s{T5}, 8")
            a(f"s_mul_i32 s{R+4+t}, s{T5}, s{sSl}")
            a(f"s_mul_i32 s{T5}, s{T5}, 5")
            a(f"s_sub_u32 s{T4}, s{T4}, s{T5}")
            a(f"s_lshl_b32 s{T4}, s{T4}, 10")
            a(f"s_add_u32 s{R+4+t}, s{R+4+t}, s{T4}")
            a(f"s_add_u32 s{R+4+t}, s{R+4+t}, s{sBase}")
        a(f"s_branch L_rl_common{u}")
        a.label(f"L_rl_w1{u}")
        a(f"s_sub_u32 s{sID}, s{sID}, 200")
        a(f"s_mul_i32 s{sKS}, s{sID}, 2428")
        a(f"s_lshr_b32 s{sKS}, s{sKS}, 16")
        a(f"s_mul_i32 s{sCB}, s{sKS}, 27")
        a(f"s_sub_u32 s{sCB}, s{sID}, s{sCB}")
        a(f"s_lshr_b32 s{T4}, s{sKS}, 1")
        a(f"s_mul_i32 s{T4}, s{T4}, 0x50")
        a(f"s_and_b32 s{T5}, s{sKS}, 1")
        a(f"s_lshl_b32 s{T5}, s{T5}, 5")
        a(f"s_add_u32 s{sD}, s{T4}, s{T5}")
        a(f"s_mul_i32 s{T4}, s{sKS}, 160")
        a(f"s_sub_u32 s{T4}, s{T4}, {160*16-64}")
        a(f"s_cmp_lt_u32 s{sKS}, 16")
        a(f"s_cselect_b32 s{sD}, s{sD}, s{T4}")
        a(f"s_cselect_b32 s{sA}, 16, 0x50")
        a(f"s_mov_b32 s{SRD_RL}, s{S_PTR+8}")
        a(f"s_and_b32 s{SRD_RL+1}, s{S_PTR+9}, 0xffff")
        a(f"s_mov_b32 s{SRD_RL+2}, {640*3456}")
        a(f"s_mov_b32 s{sST}, 3456")
        a(f"s_mul_i32 s{sKsS}, s{sKS}, 7168")
        a(f"s_add_u32 s{sBase}, s{sKsS}, {WS_W1}")
        a(f"s_mul_i32 s{R+8}, s{sKS}, {1728*4}")
        a(f"s_lshl_b32 s{T4}, s{sCB}, 8")
        a(f"s_add_u32 s{R+8}, s{R+8}, s{T4}")
        a(f"s_add_u32 s{R+8}, s{R+8}, {WS_CS1}")
        for t in range(4):
            a(f"s_lshl_b32 s{T4}, s{sCB}, 2")
            a(f"s_add_u32 s{T4}, s{T4}, {t}")
            a(f"s_mul_i32 s{T5}, s{T4}, 43")
            a(f"s_lshr_b32 s{T5}, s{T5}, 8")
            a(f"s_mul_i32 s{sSl}, s{T5}, 6")
            a(f"s_sub_u32 s{sSl}, s{T4}, s{sSl}")
            a(f"s_sub_u32 s{sKsS}, s{T4}, 96")
            a(f"s_cmp_lt_u32 s{T4}, 96")
            a(f"s_cselect_b32 s{T5}, s{T5}, s{sKsS}")
            a(f"s_cselect_b32 s{sSl}, s{sSl}, 6")
            a(f"s_mul_i32 s{R+4+t}, s{T5}, {20*7168}")
            a(f"s_lshl_b32 s{sSl}, s{sSl}, 10")
            a(f"s_add_u32 s{R+4+t}, s{R+4+t}, s{sSl}")
            a(f"s_add_u32 s{R+4+t}, s{R+4+t}, s{sBase}")
        a.label(f"L_rl_common{u}")
        a(f"s_mul_i32 s{sD}, s{sD}, s{sST}")
        a(f"s_lshl_b32 s{T4}, s{sCB}, 7")
        a(f"s_add_u32 s{R}, s{sD}, s{T4}")
        a(f"s_mul_i32 s{sA}, s{sA}, s{sST}")
        a(f"s_mul_i32 s{sB}, s{sB}, s{sST}")
        a(f"s_add_u32 s{R+1}, s{R}, s{sB}")
        a(f"s_add_u32 s{R+2}, s{R}, s{sA}")
        a(f"s_add_u32 s{R+3}, s{R+2}, s{sB}")
        a("v_lshrrev_b32 v1, 5, v0")
        a(f"v_mul_u32_u24 v1, s{sCc}, v1")
        a("v_bfe_u32 v2, v0, 3, 2")
        a("v_add_u32 v1, v1, v2")
        a(f"v_mul_u32_u24 v1, s{sST}, v1")
        a("v_and_b32 v2, 7, v0")
        a(f"v_lshl_add_u32 v{self.RLV}, v2, 4, v1")
        a("v_lshrrev_b32 v1, 2, v0")
        a("v_lshlrev_b32 v1, 7, v1")
        a("v_and_b32 v2, 3, v0")
        a("v_lshl_add_u32 v1, v2, 3, v1")
        a(f"s_lshl_b32 s{T4}, s{S_W}, 12")
        a(f"s_add_u32 s{T4}, s{T4}, {self.RL_SCR-4096}")
        a(f"v_add_u32 v{self.RLA}, s{T4}, v1")

    def relayout_issue(self, drain_older=False):
        a = self.a
        L = a.newlabel("rlsk")
        a(f"s_sub_u32 s{T0}, s{S_W}, 1")
        a(f"s_cmp_ge_u32 s{T0}, {0 if self.o.get('norl') else 5}")
        a(f"s_cbranch_scc1 {L}")
        a(f"s_lshl_b32 s{T0}, s{S_W}, 12")
        a(f"s_add_u32 m0, s{T0}, {self.RL_SCR-4096}")
        for i in range(4):
            if i: a("s_add_u32 m0, m0, 1024")
            a("s_nop 0")
            self.dma(self.RLV, SRD_RL, f"s{self.sRL+i}")
        if drain_older:
            L2 = a.newlabel("rlw")
            a("s_waitcnt vmcnt(4)")
            a(f"s_branch {L2}")
            a.label(L)
            a("s_waitcnt vmcnt(0)")
            a.label(L2)
        else:
            a.label(L)

    def relayout_finish(self, younger=None):
        a = self.a
        L = a.newlabel("rlsk"); F = 168; t = 184
        a(f"s_sub_u32 s{T0}, s{S_W}, 1")
        a(f"s_cmp_ge_u32 s{T0}, 5")
        Lo = a.newlabel("rlo")
        a(f"s_cbranch_scc1 {Lo if younger is not None else L}")
        if younger is not None: a(f"s_waitcnt vmcnt({younger})")
        for q in range(4):
            for rd in range(2):
                a(f"ds_read_b64_tr_b16 v[{F+4*q+2*rd}:{F+4*q+2*rd+1}], v{self.RLA} offset:{rd*2048+q*32}")
        a(f"v_lshlrev_b32 v{t}, 4, v0")
        for q in range(4):
            a(f"s_waitcnt lgkmcnt({6-2*q})")
            a(f"buffer_store_dwordx4 v[{F+4*q}:{F+4*q+3}], v{t}, s[{SRD_WS}:{SRD_WS+3}], s{self.sRL+4+q} offen sc1")
        if younger is not None: a("s_waitcnt vmcnt(4)")
        a(f"s_cmp_eq_u32 s{self.sRL+8}, -1")
        a(f"s_cbranch_scc1 {L}")
        for q in range(4): a(f"v_mov_b32 v{t+2+q}, 0")
        a(f"v_mov_b32 v{t+6}, 0x3f803f80")
        for k in range(4):
            for q in range(4): a(f"v_dot2_f32_bf16 v{t+2+q}, v{F+4*q+k}, v{t+6}, v{t+2+q}")
        a(f"v_lshlrev_b32 v{t+1}, 2, v0")
        a("s_nop 1")
        a(f"v_permlane16_swap_b32 v{t+2}, v{t+3}")
        a(f"v_permlane16_swap_b32 v{t+4}, v{t+5}")
        a("s_nop 0")
        a(f"v_add_f32 v{t+2}, v{t+2}, v{t+3}")
        a(f"v_add_f32 v{t+4}, v{t+4}, v{t+5}")
        a("s_nop 1")
        a(f"v_permlane32_swap_b32 v{t+2}, v{t+4}")
        a("s_nop 0")
        a(f"v_add_f32 v{t+2}, v{t+2}, v{t+4}")
        a(f"buffer_store_dword v{t+2}, v{t+1}, s[{SRD_WS}:{SRD_WS+3}], s{self.sRL+8} offen sc1")
        if younger is not None:
            a(f"s_branch {L}")
            a.label(Lo)
            a("s_waitcnt vmcnt(0)")
        a.label(L)

    def p1_setup_b(self):
        a = self.a
        a(f"s_and_b32 s{self.sTG}, s{S_W}, 3")
        a(f"s_lshr_b32 s{self.sNH}, s{S_W}, 2")
        a(f"s_cmp_ge_u32 s{self.sCT}, 5")
        a(f"s_cselect_b32 s{T0}, 5, 0")
        a(f"s_sub_u32 s{T0}, s{self.sCT}, s{T0}")
        a(f"s_lshl_b32 s{T0}, s{T0}, 1")
        a(f"s_add_u32 s{T0}, s{T0}, s{self.sNH}")
        for idx in range(10):
            a(f"s_cmp_eq_u32 s{T0}, {idx}")
            a(f"s_cbranch_scc1 L_tab{idx}")
        a(f"s_mul_i32 s{T1}, s{self.sNH}, 0x10101010")
        for k in range(4): a(f"s_add_u32 s{self.sTAB+k}, s{T1}, 0x%08x" % (0x03020100 + 0x04040404 * k))
        a(f"s_mov_b32 s{self.sTAB+4}, 0")
        a(f"s_mov_b32 s{self.sTAB+5}, 0")
        a("s_branch L_tabdone")
        for idx in range(10):
            a.label(f"L_tab{idx}")
            for k, d in enumerate(p1_table(idx // 2, idx % 2)): a(f"s_mov_b32 s{self.sTAB+k}, 0x%08x" % d)
            if idx < 9: a("s_branch L_tabdone")
        a.label("L_tabdone")
        a("v_and_b32 v1, 31, v0")
        a(f"s_lshl_b32 s{T0}, s{self.sTG}, 5")
        a(f"v_add_u32 v2, s{T0}, v1")
        a("v_bfe_u32 v3, v2, 1, 3")
        a("v_lshrrev_b32 v4, 5, v0")
        a("v_xor_b32 v3, v3, v4")
        a("v_lshlrev_b32 v3, 4, v3")
        a(f"v_lshl_add_u32 v{self.XA}, v2, 7, v3")
        a(f"s_xor_b32 s{T3}, s{self.sTG}, s{self.sNH}")
        a(f"s_lshl_b32 s{T0}, s{T3}, 5")
        a(f"v_xor_b32 v{self.XA}, s{T0}, v{self.XA}")
        for ks in range(1, 4): a(f"v_xor_b32 v{self.XA+ks}, {ks<<5}, v{self.XA}")
        a("v_bfe_u32 v5, v0, 2, 2")
        a("v_lshl_add_u32 v6, v4, 3, v5")
        a("v_lshlrev_b32 v6, 8, v6")
        a("v_and_b32 v7, 3, v0")
        a("v_lshlrev_b32 v7, 3, v7")
        a("v_and_b32 v8, 16, v0")
        a("v_cmp_ne_u32 vcc, 0, v8")
        for i in range(2):
            a(f"v_mov_b32 v8, s{self.sTAB+2*i}")
            a(f"v_mov_b32 v9, s{self.sTAB+2*i+1}")
            a("v_cndmask_b32 v8, v8, v9, vcc")
            a("v_bfe_u32 v8, v8, v7, 8")
            a("v_lshlrev_b32 v8, 3, v8")
            a("v_lshlrev_b32 v9, 6, v5")
            a("v_xor_b32 v8, v8, v9")
            a(f"v_add_u32 v8, v6, v8")
            a(f"s_lshl_b32 s{T0}, s{T3}, 12")
            a(f"v_add_u32 v{self.WA+4*i}, s{T0}, v8")
            for j in range(1, 4): a(f"v_xor_b32 v{self.WA+4*i+j}, {j<<12}, v{self.WA+4*i}")
        a(f"s_lshl_b32 s{T0}, s{self.sRB}, 2")
        a(f"s_add_u32 s{T0}, s{T0}, s{self.sTG}")
        a(f"s_lshl_b32 s{T1}, s{T0}, 9")
        a(f"s_add_u32 s{T1}, s{T1}, {WS_RS}")
        a(f"v_lshl_add_u32 v{self.RSA}, v1, 4, s{T1}")
        a(f"s_cmp_ge_u32 s{self.sCT}, 10")
        a("s_cbranch_scc1 L_p1_vaddr")
        a(f"s_lshl_b32 s{T0}, s{T0}, 9")
        a(f"s_cmp_ge_u32 s{self.sCT}, 5")
        a(f"s_cselect_b32 s{T1}, {WS_K}, {WS_Q}")
        a(f"s_add_u32 s{T0}, s{T0}, s{T1}")
        a(f"v_lshl_add_u32 v2, v1, 4, s{T0}")
        a("v_lshlrev_b32 v3, 3, v4")
        a("v_add_u32 v5, 16, v3")
        for i in range(2):
            for qq in range(2):
                a(f"v_bfe_u32 v6, s{self.sTAB+4+i}, v{3 if qq == 0 else 5}, 8")
                a(f"v_lshl_add_u32 v{self.STA+2*i+qq}, v6, 15, v2")
        a("s_branch L_p1_addrdone")
        a.label("L_p1_vaddr")
        a(f"s_mul_i32 s{T0}, s{T0}, 1280")
        a(f"s_add_u32 s{T0}, s{T0}, {WS_V}")
        a(f"s_lshl_b32 s{T1}, s{self.sCT}, 7")
        a(f"s_lshl_b32 s{T2}, s{self.sNH}, 6")
        a(f"s_add_u32 s{T1}, s{T1}, s{T2}")
        a(f"s_sub_u32 s{T1}, s{T1}, 1280")
        a(f"v_mov_b32 v{self.STA+2}, 0")
        a(f"v_mov_b32 v{self.STA+3}, 0")
        a("v_mul_u32_u24 v3, 320, v4")
        a(f"v_add_u32 v3, s{T0}, v3")
        a(f"s_mov_b32 s{T2}, 81920")
        for i in range(2):
            a(f"v_add_u32 v5, s{T1}, v1")
            if i: a("v_add_u32 v5, 32, v5")
            a("v_mul_u32_u24 v6, 3277, v5")
            a("v_lshrrev_b32 v6, 16, v6")
            a("v_mul_u32_u24 v7, 20, v6")
            a("v_sub_u32 v5, v5, v7")
            a("v_lshl_add_u32 v5, v5, 4, v3")
            a(f"v_mad_u32_u24 v{self.STA+i}, v6, s{T2}, v5")
        a.label("L_p1_addrdone")
        for r in range(32): a(f"v_mov_b32 v{self.ACC+r}, 0")
        a(f"s_mul_i32 s{T0}, s{self.sCT}, 10240")
        a(f"s_lshl_b32 s{T1}, s{self.sNH}, 9")
        a(f"s_add_u32 s{T0}, s{T0}, s{T1}")
        a(f"s_add_u32 s{T0}, s{T0}, {WS_CQ}")
        a(f"v_lshl_add_u32 v{self.CQA}, v0, 3, s{T0}")
        a(f"s_lshl_b32 s{T0}, s{self.sNH}, 8")
        a(f"s_lshl_b32 s{T1}, s{self.sTG}, 9")
        a(f"s_add_u32 s{T0}, s{T0}, {self.P1_MISC}")
        a(f"s_add_u32 s{T1}, s{T1}, s{T0}")
        a(f"v_lshl_add_u32 v{self.CSW}, v0, 2, s{T1}")
        a(f"v_lshl_add_u32 v95, v0, 2, s{T0}")
        a(f"v_mov_b32 v{self.VXM}, 0x8000")
        a(f"s_lshl_b32 s{T0}, s{S_W}, 2")
        a(f"s_add_u32 s{T0}, s{T0}, {self.P1_MISC + 2304}")
        a(f"v_mov_b32 v{self.PGA}, s{T0}")
        a(f"v_mov_b32 v{self.PGV}, 0")
        a(f"v_and_b32 v{self.PGR}, 7, v0")
        a(f"v_lshlrev_b32 v{self.PGR}, 2, v{self.PGR}")
        a(f"v_add_u32 v{self.PGR}, {self.P1_MISC + 2304}, v{self.PGR}")
        a(f"ds_write_b32 v{self.PGA}, v{self.PGV}")
        a(f"s_mov_b32 s{self.sCNT}, -1")
        a(f"s_cmp_eq_u32 s{self.sTG}, 0")
        a(f"s_cselect_b32 s{self.sSIDE}, 2, 0")

    def p1_loop(self, vmode):
        a = self.a
        tag = "v" if vmode else "q"
        if self.o.get("p1soft"):
            self.p1_loop1(vmode, 0)
        else:
            a(f"s_cmp_lg_u32 s{self.sNH}, 0")
            a(f"s_cbranch_scc1 L_p1_B{tag}")
            self.p1_loop1(vmode, 0)
            a(f"s_branch L_p1_E{tag}")
            a.label(f"L_p1_B{tag}")
            self.p1_loop1(vmode, 1)
            a.label(f"L_p1_E{tag}")
        reads, xors, mf = self.p1_parts(vmode)
        def comp(ks, rd=True, xr=True):
            a(f"s_waitcnt lgkmcnt({5 if rd or ks == 2 else 0})")
            mf(ks, 0)
            if rd: reads((ks + 2) % 4)
            mf(ks, 1)
            if xr: xors((ks + 2) % 4)
        comp(0); self.p1_issue((2,))
        comp(1); self.p1_issue((3,))
        a(f"buffer_load_dwordx4 v[{self.RS}:{self.RS+3}], v{self.RSA}, s[{SRD_WS}:{SRD_WS+3}], 0 offen sc1")
        a(f"s_mul_i32 s{T0}, s{self.sCT}, 10240")
        a(f"s_lshl_b32 s{T1}, s{S_W}, 10")
        a(f"s_add_u32 s{T0}, s{T0}, s{T1}")
        a(f"s_add_u32 s{T0}, s{T0}, {WS_CQ}")
        a(f"s_add_u32 m0, s{T1}, {self.CQ_SCR}")
        a("v_lshlrev_b32 v1, 4, v0")
        self.dma(1, SRD_WS, f"s{T0}", "sc1")
        a(f"s_add_u32 s{T0}, s{T0}, 8192")
        a("s_add_u32 m0, m0, 8192")
        a(f"s_cmp_ge_u32 s{S_W}, 2")
        a(f"s_cselect_b32 s{T0}, 0x7f000000, s{T0}")
        self.dma(1, SRD_WS, f"s{T0}", "sc1")
        a("s_waitcnt vmcnt(7)")
        a("s_barrier")
        comp(2); comp(3)
        comp(0); comp(1)
        a("s_waitcnt vmcnt(3)")
        a("s_barrier")
        comp(2, xr=False); comp(3, xr=False)
        comp(0, xr=False); comp(1, xr=False)
        a("s_waitcnt vmcnt(0)")
        a("s_barrier")
        self.p1_epi_reads()
        a("s_waitcnt lgkmcnt(15)")
        mf(2, 0); mf(2, 1)
        a("s_waitcnt lgkmcnt(11)")
        mf(3, 0); mf(3, 1)

    def p1_parts(self, vmode):
        a = self.a
        def reads(ks):
            if self.o.get("nolds"): return
            a(f"ds_read_b128 v[{self.XF+4*ks}:{self.XF+4*ks+3}], v{self.XA+ks}")
            for i in range(2):
                for rd in range(2):
                    d = self.WF + 8 * ks + 4 * i + 2 * rd
                    a(f"ds_read_b64_tr_b16 v[{d}:{d+1}], v{self.WA+4*i+ks} offset:{16384+rd*1024}")
        def xors(ks):
            for r in (self.XA + ks, self.WA + ks, self.WA + 4 + ks): a(f"v_xor_b32 v{r}, v{self.VXM}, v{r}")
            if ks == 3: a(f"v_xor_b32 v{self.VXM}, 0x10000, v{self.VXM}")
        def mf(ks, i):
            x = vr(self.XF + 4 * ks, 4); wv = vr(self.WF + 8 * ks + 4 * i, 4); acc = vr(self.ACC + 16 * i, 16)
            if self.o.get("nomfma"): pass
            elif vmode: a(f"v_mfma_f32_32x32x16_bf16 {acc}, {x}, {wv}, {acc}")
            else: a(f"v_mfma_f32_32x32x16_bf16 {acc}, {wv}, {x}, {acc}")
        return reads, xors, mf

    def p1_loop1(self, vmode, B):
        a = self.a
        L = a.newlabel("p1loop")
        pos = self.o.get("barB" if B else "barA", "1" if B else "0")
        reads, xors, mf = self.p1_parts(vmode)
        def bar():
            a("s_waitcnt vmcnt(4)")
            if not self.o.get("nobar"): a("s_barrier")
            if self.o.get("its") == "1": self.stamp_dyn(54, self.sCNT)
        soft = self.o.get("p1soft")
        def comp(ks):
            n = (ks + 2) % 4
            if soft: return comp_soft(ks)
            if ks == 2 and pos == "0": bar()
            a("s_waitcnt lgkmcnt(5)")
            mf(ks, 0)
            if ks == 2 and pos == "1": bar()
            if ks == 2 and pos == "2":
                mf(ks, 1); bar(); reads(n)
            else:
                reads(n); mf(ks, 1)
            xors(n)
            self.p1_issue((n,))
        def comp_soft(ks):
            n = (ks + 2) % 4
            ar = int(soft) - 1
            extra = {0: 0, 1: (1 if ar == 0 else 0), 2: 0, 3: 0}[ks]
            a(f"s_waitcnt lgkmcnt({5 + extra})" if ks != 2 else "s_waitcnt lgkmcnt(0)" if self.o.get("p1g0") else "s_waitcnt lgkmcnt(6)")
            mf(ks, 0)
            if ks == ar:
                a(f"v_add_u32 v{self.PGV}, 1, v{self.PGV}")
                a(f"s_waitcnt vmcnt({2 + ks})")
                a(f"ds_write_b32 v{self.PGA}, v{self.PGV}")
            if ks == 2:
                Lw, Lb = a.newlabel("late"), a.newlabel("go")
                a("s_waitcnt lgkmcnt(0)")
                a(f"v_cmp_lt_u32 vcc, v{self.PGD}, v{self.PGV}")
                a(f"s_cbranch_vccnz {Lw}")
                a.label(Lb)
                self._late1.append((Lw, Lb))
            reads(n); mf(ks, 1)
            if ks == 1: a(f"ds_read_b32 v{self.PGD}, v{self.PGR}")
            xors(n)
            self.p1_issue((n,))
        a("s_waitcnt vmcnt(6) lgkmcnt(0)")
        a("s_barrier")
        self.stamp(3)
        reads(0); reads(1); xors(0); xors(1)
        a("v_mov_b32 v6, 0x3f803f80")
        a("v_mov_b32 v2, 0")
        a("v_mov_b32 v3, 0")
        a("s_waitcnt lgkmcnt(5)")
        for k in range(4):
            for i in range(2): a(f"v_dot2_f32_bf16 v{2+i}, v{self.WF+4*i+k}, v6, v{2+i}")
        a("s_nop 2")
        a("v_permlane32_swap_b32 v2, v3")
        a("s_nop 0")
        a("v_add_f32 v2, v2, v3")
        a(f"ds_write_b32 v{self.CSW}, v2")
        a("s_waitcnt lgkmcnt(0)")
        a.align(6)
        a.label(L)
        comp(0); comp(1); comp(2)
        Lr = a.newlabel("back"); Ls = a.newlabel("side")
        a(f"s_add_u32 s{self.sCNT}, s{self.sCNT}, 1")
        a(f"s_cmp_lt_u32 s{self.sCNT}, s{self.sSIDE}")
        a(f"s_cbranch_scc1 {Ls}")
        a.label(Lr)
        comp(3)
        a(f"s_cmp_lt_u32 s{self.sCNT}, {int(self.o.get('p1n', 10)) - 4}")
        a(f"s_cbranch_scc1 {L}")
        self._sides.append((Ls, Lr))

    def p1_sides(self):
        a = self.a
        for Lw, Lb in self._late1:
            a.label(Lw)
            a(f"s_mov_b32 s{S_SPIN}, 0")
            L = a.newlabel("lsp")
            a.label(L)
            a(f"ds_read_b32 v{self.PGD}, v{self.PGR}")
            a(f"s_add_u32 s{S_SPIN}, s{S_SPIN}, 1")
            a(f"s_cmp_ge_u32 s{S_SPIN}, {SPIN_MAX * 16}")
            a(f"s_cbranch_scc1 {Lb}")
            a("s_waitcnt lgkmcnt(0)")
            a(f"v_cmp_lt_u32 vcc, v{self.PGD}, v{self.PGV}")
            a(f"s_cbranch_vccnz {L}")
            a(f"s_branch {Lb}")
        self._late1 = []
        for Ls, Lr in self._sides:
            a.label(Ls)
            L1 = a.newlabel("s1")
            a(f"s_cmp_lg_u32 s{self.sCNT}, 0")
            a(f"s_cbranch_scc1 {L1}")
            a("v_mov_b32 v1, 0")
            a(f"buffer_load_dwordx2 v[{self.VN}:{self.VN+1}], v1, s[{SRD_DBG}:{SRD_DBG+3}], 0 offen sc1")
            a(f"s_branch {Lr}")
            a.label(L1)
            a("s_waitcnt vmcnt(4)")
            self.nonce_get("nonce2")
            a(f"v_mov_b32 v1, {self.P1_MISC + 2048}")
            a(f"ds_write_b64 v1, v[{self.VN}:{self.VN+1}]")
            for k in range(4): a(f"ds_read_b32 v{2+k}, v95 offset:{512*k}")
            a(f"s_lshl_b32 s{T0}, s{self.sKC0}, 10")
            a("s_waitcnt lgkmcnt(0)")
            a("v_add_f32 v2, v2, v3")
            a("v_add_f32 v4, v4, v5")
            a(f"v_mov_b32 v3, s{S_NONCE}")
            a("v_add_f32 v2, v2, v4")
            a(f"buffer_store_dwordx2 v[2:3], v{self.CQA}, s[{SRD_WS}:{SRD_WS+3}], s{T0} offen sc1")
            a(f"s_branch {Lr}")

    def p1_gather(self):
        a = self.a
        a(f"buffer_load_dwordx4 v[{self.RS}:{self.RS+3}], v{self.RSA}, s[{SRD_WS}:{SRD_WS+3}], 0 offen sc1")
        a(f"s_movk_i32 s{T0}, 0x1000")
        a(f"s_movk_i32 s{T1}, 0x2000")
        for k in range(10):
            so = ("0", f"s{T0}", f"s{T1}")[k // 4]
            a(f"buffer_load_dwordx2 v[{self.CQ+2*k}:{self.CQ+2*k+1}], v{self.CQA}, s[{SRD_WS}:{SRD_WS+3}], {so} offen offset:{1024*(k%4)} sc1")

    def p1_epi_reads(self):
        a = self.a
        a(f"s_lshl_b32 s{T0}, s{self.sNH}, 9")
        a(f"s_add_u32 s{T0}, s{T0}, {self.CQ_SCR}")
        a(f"v_lshl_add_u32 v1, v0, 3, s{T0}")
        for k in range(10): a(f"ds_read_b64 v[{self.CQ+2*k}:{self.CQ+2*k+1}], v1 offset:{1024*k}")
        a(f"v_mov_b32 v1, {self.P1_MISC + 2048}")
        a(f"ds_read_b64 v[{self.VN}:{self.VN+1}], v1")
        a(f"s_lshl_b32 s{T2}, s{S_W}, 9")
        a(f"s_add_u32 s{T2}, s{T2}, {self.P1_MISC+4096}")
        a(f"v_lshl_add_u32 v6, v0, 2, s{T2}")
        a("v_and_b32 v5, 31, v0")
        a(f"s_mov_b32 s{S_SPIN}, 0")

    def p1_epi_common(self):
        a = self.a
        L = a.newlabel("rs"); Ld = a.newlabel("rsd")
        a("s_waitcnt lgkmcnt(0)")
        a(f"v_readfirstlane_b32 s{S_NONCE}, v{self.VN}")
        a(f"v_readfirstlane_b32 s{S_NONCE+1}, v{self.VN+1}")
        a("s_nop 0")
        a.label(L)
        a(f"v_xor_b32 v2, s{S_NONCE}, v{self.RS+1}")
        a(f"v_xor_b32 v3, s{S_NONCE}, v{self.RS+3}")
        for k in range(0, 10, 2):
            a(f"v_xor_b32 v4, s{S_NONCE}, v{self.CQ+2*k+1}")
            a(f"v_xor_b32 v7, s{S_NONCE}, v{self.CQ+2*k+3}")
            a("v_or3_b32 v2, v2, v4, v7")
        a("v_or_b32 v2, v2, v3")
        a("v_cmp_ne_u32 vcc, 0, v2")
        a(f"s_add_u32 s{S_SPIN}, s{S_SPIN}, 1")
        a("s_or_b64 vcc, vcc, vcc")
        a(f"s_cbranch_scc0 {Ld}")
        a(f"s_cmp_ge_u32 s{S_SPIN}, {SPIN_MAX}")
        a(f"s_cbranch_scc1 {Ld}")
        self.diag("gather")
        self.p1_gather()
        a("s_waitcnt vmcnt(0)")
        a(f"s_branch {L}")
        a.label(Ld)
        Q = self.CQ
        a(f"v_add_f32 v12, v{Q}, v{Q+2}")
        a(f"v_add_f32 v13, v{Q+4}, v{Q+6}")
        a(f"v_add_f32 v14, v{Q+8}, v{Q+10}")
        a(f"v_add_f32 v15, v{Q+12}, v{Q+14}")
        a(f"v_add_f32 v2, v{Q+16}, v{Q+18}")
        a("v_add_f32 v12, v12, v13")
        a("v_add_f32 v14, v14, v15")
        a("v_add_f32 v12, v12, v2")
        a("v_add_f32 v12, v12, v14")
        self.stamp(4)

    def rowstats(self):
        a = self.a
        X = 100
        a("v_lshrrev_b32 v1, 3, v0")
        a(f"s_lshl_b32 s{T0}, s{S_W}, 4")
        a(f"s_lshl_b32 s{T1}, s{self.sRB}, 7")
        a(f"s_add_u32 s{T0}, s{T0}, s{T1}")
        a(f"v_add_u32 v1, s{T0}, v1")
        a("v_mul_u32_u24 v2, 1280, v1")
        a("v_and_b32 v3, 7, v0")
        a("v_lshl_add_u32 v2, v3, 4, v2")
        a(f"s_mov_b32 s{T0}, 10240")
        for k in range(10):
            for hh in range(2):
                r = X + 8 * k + 4 * hh
                a(f"buffer_load_dwordx4 v[{r}:{r+3}], v2, s[{SRD_X}:{SRD_X+3}], {'s%d' % T0 if hh else '0'} offen offset:{128*k}")
        for r in range(4, 8): a(f"v_mov_b32 v{r}, 0")
        a("v_mov_b32 v8, 0x3f803f80")
        for k in range(10):
            a(f"s_waitcnt vmcnt({18-2*k if k < 9 else 1})")
            if k == 8:
                a("v_mov_b32 v3, 0")
                a(f"buffer_load_dwordx2 v[{self.VN}:{self.VN+1}], v3, s[{SRD_DBG}:{SRD_DBG+3}], 0 offen sc1")
            for e in range(4):
                for hh in range(2):
                    r = X + 8 * k + 4 * hh + e
                    a(f"v_dot2_f32_bf16 v{4+hh}, v{r}, v8, v{4+hh}")
                    a(f"v_dot2_f32_bf16 v{6+hh}, v{r}, v{r}, v{6+hh}")
        a("s_nop 2")
        for ctl in ("quad_perm:[1,0,3,2]", "quad_perm:[2,3,0,1]", "row_half_mirror"):
            for r in range(4, 8): a(f"v_add_f32_dpp v{r}, v{r}, v{r} {ctl} row_mask:0xf bank_mask:0xf")
        a("s_waitcnt vmcnt(0)")
        self.nonce_get()
        a("v_and_b32 v3, 1, v0")
        a("v_cmp_ne_u32 vcc, 0, v3")
        a("v_lshlrev_b32 v3, 3, v3")
        a("v_add_u32 v1, v1, v3")
        a("v_cndmask_b32 v4, v4, v5, vcc")
        a("v_cndmask_b32 v6, v6, v7, vcc")
        a(f"v_mul_f32 v4, 0x%08x, v4" % f2u(1.0 / 640))
        a("v_mul_f32 v5, v4, v4")
        a(f"v_mov_b32 v7, 0x%08x" % f2u(1.0 / 640))
        a("v_fma_f32 v5, v6, v7, -v5")
        a("v_max_f32 v5, 0, v5")
        a(f"v_add_f32 v5, 0x%08x, v5" % f2u(1e-5))
        a("v_rsq_f32 v8, v5")
        a(f"v_mov_b32 v9, s{S_NONCE}")
        a(f"v_mov_b32 v11, s{S_NONCE}")
        a("v_mul_f32 v10, v4, v8")
        a("v_lshlrev_b32 v1, 4, v1")
        a(f"s_mov_b32 s{T0}, {WS_RS}")
        a("s_mov_b32 exec_lo, 0x03030303")
        a("s_mov_b32 exec_hi, 0x03030303")
        a(f"buffer_store_dwordx4 v[8:11], v1, s[{SRD_WS}:{SRD_WS+3}], s{T0} offen sc1")
        a("s_mov_b64 exec, -1")

    def p1_epi_q(self):
        a = self.a
        self.p1_epi_common()
        qs = math.log2(math.e) / math.sqrt(20.0)
        a("ds_write_b32 v6, v12")
        a("v_lshrrev_b32 v1, 5, v0")
        a(f"v_lshl_add_u32 v1, v1, 4, s{T2}")
        C = 48
        for i in range(2):
            for q4 in range(4):
                a(f"ds_read_b128 v[{C+16*i+4*q4}:{C+16*i+4*q4+3}], v1 offset:{i*128+q4*32}")
        a(f"s_cmp_lt_u32 s{self.sCT}, 5")
        a(f"s_cselect_b32 s{T1}, 0x%08x, 1.0" % f2u(qs))
        a(f"v_mul_f32 v2, s{T1}, v{self.RS}")
        a(f"v_mul_f32 v3, s{T1}, v{self.RS+2}")
        for i in range(2):
            for qq in range(2):
                a(f"s_waitcnt lgkmcnt({6-4*i-2*qq})")
                b = 16 * i + 8 * qq
                for r in range(8): a(f"v_mul_f32 v{self.ACC+b+r}, v2, v{self.ACC+b+r}")
                for r in range(8): a(f"v_fma_f32 v{self.ACC+b+r}, -v3, v{C+b+r}, v{self.ACC+b+r}")
                o = 4 + 4 * ((2 * i + qq) % 2)
                for r in range(4): a(f"v_cvt_pk_bf16_f32 v{o+r}, v{self.ACC+b+2*r}, v{self.ACC+b+2*r+1}")
                a(f"buffer_store_dwordx4 v[{o}:{o+3}], v{self.STA+2*i+qq}, s[{SRD_WS}:{SRD_WS+3}], 0 offen sc1")

    def p1_epi_v(self):
        a = self.a
        self.p1_epi_common()
        a("v_mov_b32 v13, v12")
        a(f"v_lshl_add_u32 v6, v5, 2, s{T2}")
        a("v_lshrrev_b32 v1, 5, v0")
        a("v_permlane32_swap_b32 v12, v13")
        a(f"ds_write_b32 v6, v{self.RS}")
        a(f"ds_write_b32 v6, v{self.RS+2} offset:128")
        a(f"v_lshl_add_u32 v6, v1, 4, s{T2}")
        C = 48
        for q4 in range(4):
            a(f"ds_read_b128 v[{C+4*q4}:{C+4*q4+3}], v6 offset:{q4*32}")
            a(f"ds_read_b128 v[{C+16+4*q4}:{C+16+4*q4+3}], v6 offset:{128+q4*32}")
        for grp in range(2):
            a(f"s_waitcnt lgkmcnt({4-4*grp})")
            for i in range(2):
                b = 16 * i + 8 * grp
                for r in range(8): a(f"v_mul_f32 v{self.ACC+b+r}, v{C+8*grp+r}, v{self.ACC+b+r}")
                for r in range(8): a(f"v_fma_f32 v{self.ACC+b+r}, -v{C+16+8*grp+r}, v{12+i}, v{self.ACC+b+r}")
                o = 4 + 4 * i
                for r in range(4): a(f"v_cvt_pk_bf16_f32 v{o+r}, v{self.ACC+b+2*r}, v{self.ACC+b+2*r+1}")
                a(f"buffer_store_dwordx4 v[{o}:{o+3}], v{self.STA+i}, s[{SRD_WS}:{SRD_WS+3}], 0 offen offset:{640*grp} sc1")

    def nonce_get(self, where="nonce"):
        a = self.a
        a(f"s_mov_b32 s{S_SPIN}, 0")
        Lc = a.newlabel("nchk"); Lo = a.newlabel("nok")
        a.label(Lc)
        a(f"v_readfirstlane_b32 s{S_NONCE}, v{self.VN}")
        a(f"v_readfirstlane_b32 s{S_NONCE+1}, v{self.VN+1}")
        a(f"s_add_u32 s{S_SPIN}, s{S_SPIN}, 1")
        a(f"s_or_b32 s{T0}, s{S_NONCE}, s{S_NONCE+1}")
        a(f"s_cbranch_scc1 {Lo}")
        a(f"s_cmp_ge_u32 s{S_SPIN}, {SPIN_MAX}")
        a(f"s_cbranch_scc1 {Lo}")
        self.diag(where)
        a("v_mov_b32 v94, 0")
        a(f"buffer_load_dwordx2 v[{self.VN}:{self.VN+1}], v94, s[{SRD_DBG}:{SRD_DBG+3}], 0 offen sc1")
        a("s_waitcnt vmcnt(0)")
        a(f"s_branch {Lc}")
        a.label(Lo)

    def phase1(self):
        a = self.a
        self.p1_setup_a()
        a(f"s_cmp_eq_u32 s{self.sCT}, 15")
        a("s_cbranch_scc0 L_p1_go")
        self.rowstats()
        a("s_branch L_p1_done")
        a.label("L_nonce_pub")
        a("v_mov_b32 v3, 0")
        a(f"v_mov_b32 v4, s{S_NONCE}")
        a(f"v_mov_b32 v5, s{S_NONCE+1}")
        a("s_mov_b64 exec, 1")
        a(f"buffer_store_dwordx2 v[4:5], v3, s[{SRD_DBG}:{SRD_DBG+3}], 0 offen sc1")
        a("s_mov_b64 exec, -1")
        a("s_branch L_nonce_done")
        a.label("L_p1_go")
        self.p1_setup_b()
        self.p1_issue((1, 2, 3) if self.o.get("first5", "1") == "1" else (0, 1, 2, 3))
        self.p1_issue((0, 1))
        self.stamp(2)
        a(f"s_cmp_ge_u32 s{self.sCT}, 10")
        a("s_cbranch_scc1 L_p1_v")
        self.p1_loop(False)
        self.p1_epi_q()
        a("s_branch L_p1_done")
        self.p1_sides(); self._sides = []
        a.label("L_p1_v")
        self.p1_loop(True)
        self.p1_epi_v()
        a("s_branch L_p1_done")
        self.p1_sides()
        a.label("L_p1_done")
        self.stamp(5)
        a("s_waitcnt vmcnt(0)")
        self.stamp(6)
        a("s_barrier")
        a(f"s_lshl_b32 s{T0}, s{self.sCT}, 4")
        a(f"s_add_u32 s{T0}, s{T0}, s{self.sRB}")
        a(f"s_mul_i32 s{T0}, s{T0}, {FSP}")
        a(f"s_add_u32 s{T0}, s{T0}, {FL_1}")
        self.flag_store(T0, 2)
        self.stamp(7)
        a(f"s_cmp_eq_u32 s{S_W}, 0")
        a("s_cbranch_scc1 L_no_rls")
        self.relayout_setup()
        a.label("L_no_rls")
        if self.stop < 2:
            self.relayout_issue()
            a("s_waitcnt vmcnt(0)")
            self.relayout_finish()

    def build(self):
        a = self.a
        self.entry()
        self.phase1()
        if self.stop >= 2:
            from phases import phase2, phase3, phase4, phase5
            phase2(self)
            if self.stop >= 3: phase3(self)
            if self.stop >= 4: phase4(self)
            if self.stop >= 5: phase5(self)
        a("s_waitcnt vmcnt(0)")
        if self.o.get("fixend"):
            if self.o.get("diag"):
                a("s_cmp_eq_u32 s35, 0")
                a("s_cbranch_scc1 L_end")
            a.label("L_fixend")
            a("s_memrealtime s[100:101]")
            a("s_waitcnt lgkmcnt(0)")
            a(f"s_sub_u32 s100, s100, s{31 if self.o.get('fixown') else S_NONCE}")
            a(f"s_cmp_lt_u32 s100, {int(self.o['fixend'])*100}")
            a("s_cbranch_scc1 L_fixend")
        self.stamp(31)
        self.stamp_flush()
        a.label("L_end")
        a("s_endpgm")
        a.lines.append(f".fill {self.pad}, 4, 0xbf810000")
        body = a.text()
        errs = check(body)
        if errs:
            sys.stderr.write("\n".join(errs[:40]) + "\n%d hazards\n" % len(errs))
            raise SystemExit(1)
        head = f"""; Fused preLN -> MHA -> residual -> preLN -> SiLU FFN -> residual, one persistent launch.
; @launch grid=(256,1,1) block=(512,1,1) lds={LDS_BYTES}
.amdgcn_target "amdgcn-amd-amdhsa--gfx950"
.text
.globl {NAME}_kernel
.p2align 8
.type {NAME}_kernel,@function
{NAME}_kernel:
"""
        tail = f""".section .rodata,"a"
.p2align 6
.amdhsa_kernel {NAME}_kernel
  .amdhsa_next_free_vgpr 256
  .amdhsa_next_free_sgpr 102
  .amdhsa_accum_offset 256
  .amdhsa_group_segment_fixed_size 0
  .amdhsa_kernarg_size 72
  .amdhsa_user_sgpr_count 2
  .amdhsa_user_sgpr_kernarg_segment_ptr 1
  .amdhsa_system_sgpr_workgroup_id_x 1
.end_amdhsa_kernel
"""
        return head + body + tail

if __name__ == "__main__":
    stop = int(sys.argv[2]) if len(sys.argv) > 2 else 99
    opts = dict(kv.split("=") for kv in sys.argv[3:])
    import subprocess
    def asm_size(path):
        r = subprocess.run(["clang", "-x", "assembler", "-target", "amdgcn-amd-amdhsa", "-mcpu=gfx950", "-c", path, "-o", "_chk.o"], capture_output=True, text=True)
        if r.returncode: print(r.stderr[:1500]); raise SystemExit(1)
        r = subprocess.run(["llvm-readelf", "-S", "_chk.o"], capture_output=True, text=True)
        return int([l for l in r.stdout.split("\n") if ".text" in l][0].split()[6], 16)
    open(sys.argv[1], "w").write(K(stop, opts).build())
    n = asm_size(sys.argv[1])
    k = K(stop, opts)
    k.CPF_LINES = (n + 4095) // 4096
    k.pad = (k.CPF_LINES * 4096 - n) // 4 + 16
    open(sys.argv[1], "w").write(k.build())
    print(sys.argv[1], "code bytes:", n, "with pad:", asm_size(sys.argv[1]))
```

```python
import sys, math
from asmlib import Asm, vr, sr, f2u, check
from tables import *

NAME = "sequential_preLN__mha_block__dense_activation_silu__prompt"
LDS_BYTES = 163840
SPIN_MAX = 20000

S_G = 2
SRD_X, SRD_WQ, SRD_WS, SRD_OUT, SRD_DBG, SRD_RL = 4, 8, 12, 16, 20, 24
S_W, S_C, S_J = 28, 29, 30
S_NONCE = 32
S_PTR = 36
T0, T1, T2, T3, T4, T5 = 54, 55, 56, 57, 58, 59
S_M1 = 60
S_SPIN = 62

class K:
    def __init__(self, stop_after=99, opts=None):
        self.a = Asm()
        self.stop = stop_after
        self.o = opts or {}
        self.pad = 0
        self._sides = []; self._late1 = []

    def srd(self, d, ptr, nbytes):
        a = self.a
        a(f"s_mov_b32 s{d}, s{ptr}")
        a(f"s_and_b32 s{d+1}, s{ptr+1}, 0xffff")
        a(f"s_mov_b32 s{d+2}, {nbytes}")
        a(f"s_mov_b32 s{d+3}, 0x20000")

    def stamp(self, idx):
        if not self.o.get("stamps"): return
        if self.o["stamps"] == "min" and idx not in (0, 9, 10, 31): return
        a = self.a
        a("s_memrealtime s[100:101]")
        a("s_waitcnt lgkmcnt(0)")
        a(f"v_writelane_b32 v255, s100, {idx}")
        if idx < 22 and self.o["stamps"] != "min":
            a("s_memtime s[100:101]")
            a("s_waitcnt lgkmcnt(0)")
            a(f"v_writelane_b32 v255, s100, {idx+32}")

    def stamp_dyn(self, base, sreg):
        if not self.o.get("its"): return
        a = self.a
        a("s_memtime s[100:101]")
        a("s_mov_b32 s99, m0")
        a(f"s_add_u32 m0, s{sreg}, {base}")
        a("s_waitcnt lgkmcnt(0)")
        a("v_writelane_b32 v255, s100, m0")
        a("s_mov_b32 m0, s99")

    def stamp_flush(self):
        if not self.o.get("stamps"): return
        a = self.a
        if self.o.get("dbgwg"):
            L = a.newlabel("dbg")
            a(f"s_cmp_lg_u32 s{S_G}, {int(self.o['dbgwg'])}")
            a(f"s_cbranch_scc1 {L}")
            a(f"s_cmp_lg_u32 s{S_W}, 0")
            a(f"s_cbranch_scc1 {L}")
            a(f"v_readlane_b32 s{T1}, v255, 0")
            for n, i in enumerate((3, 4, 7, 8, 9, 10, 12, 13, 15, 16, 18, 19, 31)):
                a(f"v_readlane_b32 s{T0}, v255, {i}")
                a("s_nop 3")
                a(f"s_sub_u32 s{T0}, s{T0}, s{T1}")
                a(f"v_mov_b32 v1, s{T0}")
                a(f"v_mov_b32 v2, {8+4*n}")
                a(f"buffer_store_dword v1, v2, s[{SRD_DBG}:{SRD_DBG+3}], 0 offen")
            a.label(L)
            return
        a(f"s_lshl_b32 s{T0}, s{S_G}, 3")
        a(f"s_add_u32 s{T0}, s{T0}, s{S_W}")
        a(f"s_lshl_b32 s{T0}, s{T0}, 8")
        a(f"s_add_u32 s{T0}, s{T0}, {WS_SIZE}")
        a("v_lshlrev_b32 v1, 2, v0")
        a(f"buffer_store_dword v255, v1, s[{SRD_WS}:{SRD_WS+3}], s{T0} offen")
        a("s_mov_b64 exec, -1")

    def hold(self, key):
        if not self.o.get(key): return
        a = self.a
        L = a.newlabel("hold")
        a.label(L)
        a("s_memrealtime s[100:101]")
        a("s_waitcnt lgkmcnt(0)")
        a(f"s_sub_u32 s100, s100, s{S_NONCE}")
        a(f"s_cmp_lt_u32 s100, {int(float(self.o[key]) * 100)}")
        a(f"s_cbranch_scc1 {L}")

    def diag(self, what):
        if self.o.get("diag") == what: self.a("s_mov_b32 s35, 1")

    def dma(self, voff, srd, soff, flags=""):
        if self.o.get("nodma"): return
        self.a(f"buffer_load_dwordx4 v{voff}, s[{srd}:{srd+3}], {soff} offen {flags} lds".replace("  ", " "))

    def flag_store(self, s_off, vt, pol="sc1"):
        a = self.a
        L = a.newlabel("nofl")
        a(f"s_cmp_lg_u32 s{S_W}, 0")
        a(f"s_cbranch_scc1 {L}")
        a(f"v_mov_b32 v{vt}, s{S_NONCE}")
        a(f"v_mov_b32 v{vt+1}, s{S_NONCE+1}")
        a(f"v_mov_b32 v{vt+2}, 0")
        a("s_mov_b64 exec, 1")
        a(f"buffer_store_dwordx2 v[{vt}:{vt+1}], v{vt+2}, s[{SRD_WS}:{SRD_WS+3}], s{s_off} offen {pol}")
        a("s_mov_b64 exec, -1")
        a.label(L)

    def poll(self, n, s_off, spacing, vt, only_wave0=True):
        a = self.a
        L = a.newlabel("poll"); Ld = a.newlabel("polld")
        if only_wave0:
            a(f"s_cmp_lg_u32 s{S_W}, 0")
            a(f"s_cbranch_scc1 {Ld}")
        a(f"s_mov_b32 s{S_SPIN}, 0")
        if n == 256:
            assert spacing == 8
            a(f"v_lshlrev_b32 v{vt+8}, 4, v0")
            a.label(L)
            a(f"buffer_load_dwordx4 v[{vt}:{vt+3}], v{vt+8}, s[{SRD_WS}:{SRD_WS+3}], s{s_off} offen sc1")
            a(f"buffer_load_dwordx4 v[{vt+4}:{vt+7}], v{vt+8}, s[{SRD_WS}:{SRD_WS+3}], s{s_off} offen offset:1024 sc1")
            a(f"s_add_u32 s{S_SPIN}, s{S_SPIN}, 1")
            a("s_waitcnt vmcnt(0)")
            a(f"v_cmp_ne_u64 vcc, s[{S_NONCE}:{S_NONCE+1}], v[{vt}:{vt+1}]")
            a(f"v_cmp_ne_u64 s[{S_M1}:{S_M1+1}], s[{S_NONCE}:{S_NONCE+1}], v[{vt+2}:{vt+3}]")
            a("s_nop 0")
            a(f"s_or_b64 s[{T4}:{T5}], vcc, s[{S_M1}:{S_M1+1}]")
            a(f"v_cmp_ne_u64 vcc, s[{S_NONCE}:{S_NONCE+1}], v[{vt+4}:{vt+5}]")
            a(f"v_cmp_ne_u64 s[{S_M1}:{S_M1+1}], s[{S_NONCE}:{S_NONCE+1}], v[{vt+6}:{vt+7}]")
            a("s_nop 0")
            a(f"s_or_b64 s[{T4}:{T5}], s[{T4}:{T5}], vcc")
            a(f"s_or_b64 s[{T4}:{T5}], s[{T4}:{T5}], s[{S_M1}:{S_M1+1}]")
        else:
            a(f"v_and_b32 v{vt+2}, {n-1}, v0")
            a(f"v_mul_u32_u24 v{vt+2}, {spacing}, v{vt+2}")
            a.label(L)
            a(f"buffer_load_dwordx2 v[{vt}:{vt+1}], v{vt+2}, s[{SRD_WS}:{SRD_WS+3}], s{s_off} offen sc1")
            a(f"s_add_u32 s{S_SPIN}, s{S_SPIN}, 1")
            a("s_waitcnt vmcnt(0)")
            a(f"v_cmp_ne_u64 vcc, s[{S_NONCE}:{S_NONCE+1}], v[{vt}:{vt+1}]")
            a("s_nop 0")
            a(f"s_or_b64 s[{T4}:{T5}], vcc, vcc")
        a(f"s_cbranch_scc0 {Ld}")
        a(f"s_cmp_lt_u32 s{S_SPIN}, {SPIN_MAX}")
        a(f"s_cbranch_scc1 {L}")
        a.label(Ld)

    def poll2(self, va, vb, s_off, vt):
        a = self.a
        L = a.newlabel("poll"); Ld = a.newlabel("polld")
        N = f"s[{S_NONCE}:{S_NONCE+1}]"
        a(f"s_cmp_lg_u32 s{S_W}, 0")
        a(f"s_cbranch_scc1 {Ld}")
        a(f"s_mov_b32 s{S_SPIN}, 0")
        a.label(L)
        a(f"buffer_load_dwordx2 v[{vt}:{vt+1}], v{va}, s[{SRD_WS}:{SRD_WS+3}], s{s_off} offen sc1")
        a(f"buffer_load_dwordx2 v[{vt+2}:{vt+3}], v{vb}, s[{SRD_WS}:{SRD_WS+3}], s{s_off} offen sc1")
        a(f"s_add_u32 s{S_SPIN}, s{S_SPIN}, 1")
        a("s_waitcnt vmcnt(0)")
        a(f"v_cmp_ne_u64 vcc, {N}, v[{vt}:{vt+1}]")
        a(f"v_cmp_ne_u64 s[{S_M1}:{S_M1+1}], {N}, v[{vt+2}:{vt+3}]")
        a("s_nop 0")
        a(f"s_or_b64 vcc, vcc, s[{S_M1}:{S_M1+1}]")
        a(f"s_cbranch_scc0 {Ld}")
        a(f"s_cmp_lt_u32 s{S_SPIN}, {SPIN_MAX}")
        a(f"s_cbranch_scc1 {L}")
        a.label(Ld)

    def entry(self):
        a = self.a
        a(f"s_cmp_ge_u32 s{S_G}, 256")
        a("s_cbranch_scc1 L_end")
        a(f"s_load_dwordx2 s[{SRD_X}:{SRD_X+1}], s[0:1], 0")
        a(f"s_load_dwordx2 s[{SRD_WQ}:{SRD_WQ+1}], s[0:1], 8")
        a(f"s_load_dwordx2 s[{SRD_DBG}:{SRD_DBG+1}], s[0:1], 56")
        a(f"s_load_dwordx16 s[{S_PTR}:{S_PTR+15}], s[0:1], 0")
        a(f"s_load_dwordx2 s[{S_PTR+16}:{S_PTR+17}], s[0:1], 64")
        a(f"s_memrealtime s[{S_NONCE}:{S_NONCE+1}]")
        if self.o.get("stamps"): a("v_mov_b32 v255, 0")
        self.stamp(0)
        a("v_lshrrev_b32 v1, 6, v0")
        a("v_and_b32 v0, 63, v0")
        a(f"v_readfirstlane_b32 s{S_W}, v1")
        a(f"s_and_b32 s{S_C}, s{S_G}, 7")
        a(f"s_lshr_b32 s{S_J}, s{S_G}, 3")

    ACC = 16; XF = 160; WF = 176; XA = 72; WA = 144; DXA, DXB, DW = 78, 79, 80; VXM = 76
    ONES = 82
    CQ = 96
    CQA = 81; CSW = 85
    PGA, PGV, PGR, PGD = 116, 117, 118, 119
    RSA, RS = 84, 128
    STA = 86
    RLV, RLA = 157, 158
    VN = 92
    sRB, sCT, sKC, sXO, sWO, sSLOT, sCNT, sXM, sTG, sNH = 64, 65, 66, 67, 68, 69, 70, 71, 72, 73
    sTAB = 74
    sM0X = 80; sWO2 = 81; sKC0 = 82; sSIDE = 83; sI1 = 71; sI2 = 34; sSM = 35
    sRL = 84
    P1_MISC = 148 * 1024
    RL_SCR = 68 * 1024
    CQ_SCR = 128 * 1024
    DUMMY = 159 * 1024
    CPF_LINES = 8

    def p1_issue(self, pieces=(0, 1, 2, 3)):
        a = self.a
        if 0 in pieces:
            a(f"s_add_u32 m0, s{self.sM0X}, s{self.sSLOT}")
            a(f"s_add_u32 s{self.sKC}, s{self.sKC}, 1")
            self.dma(self.DXA, SRD_X, f"s{self.sXO}")
        if 1 in pieces:
            a("s_add_u32 m0, m0, 16384")
            a(f"s_add_u32 s{self.sWO2}, s{self.sWO}, 15360")
            self.dma(self.DW, SRD_WQ, f"s{self.sWO}")
        if 2 in pieces:
            a("s_sub_u32 m0, m0, 15360")
            a(f"s_add_u32 s{self.sWO}, s{self.sWO}, 245760")
            self.dma(self.DXB, SRD_X, f"s{self.sXO}")
        if 3 in pieces:
            a("s_add_u32 m0, m0, 16384")
            a(f"s_add_u32 s{self.sXO}, s{self.sXO}, 128")
            self.dma(self.DW, SRD_WQ, f"s{self.sWO2}")
            a(f"s_cmp_eq_u32 s{self.sKC}, 10")
            a(f"s_cselect_b32 s{T0}, 1280, 0")
            a(f"s_cselect_b32 s{T1}, 2457600, 0")
            a(f"s_cselect_b32 s{self.sKC}, 0, s{self.sKC}")
            a(f"s_sub_u32 s{self.sXO}, s{self.sXO}, s{T0}")
            a(f"s_sub_u32 s{self.sWO}, s{self.sWO}, s{T1}")
            a(f"s_add_u32 s{self.sSLOT}, s{self.sSLOT}, 32768")
            a(f"s_and_b32 s{self.sSLOT}, s{self.sSLOT}, 0x1ffff")

    def p1_setup_a(self):
        a = self.a
        a(f"s_lshr_b32 s{T0}, s{S_C}, 1")
        a(f"s_lshl_b32 s{T0}, s{T0}, 2")
        a(f"s_lshr_b32 s{T1}, s{S_J}, 3")
        a(f"s_add_u32 s{self.sRB}, s{T0}, s{T1}")
        a(f"s_and_b32 s{T0}, s{S_C}, 1")
        a(f"s_lshl_b32 s{T0}, s{T0}, 3")
        a(f"s_and_b32 s{T2}, s{S_J}, 7")
        a(f"s_add_u32 s{self.sCT}, s{T0}, s{T2}")
        g = int(self.o.get("rotg", 4))
        if g == 8:
            a(f"s_lshl_b32 s{T1}, s{T1}, 1")
            a(f"s_add_u32 s{self.sKC}, s{T2}, s{T1}")
            a(f"s_bfe_u32 s{T0}, s{S_C}, 0x10001")
            a(f"s_and_b32 s{T1}, s{S_C}, 4")
            a(f"s_lshl_b32 s{T1}, s{T1}, 1")
            a(f"s_add_u32 s{T0}, s{T0}, s{T1}")
            a(f"s_add_u32 s{self.sKC}, s{self.sKC}, s{T0}")
        else:
            bases, offs, shift = {3: ((0, 3, 7), (0, 1, 2, 6), 0), 4: ((0, 2, 5, 7), (0, 1, 2, 3), 0), 5: ((0, 2, 4, 6, 8), (0, 1, 0, 1), 1)}[g]
            a(f"s_add_u32 s{T1}, s{T1}, s{T2}")
            a(f"s_lshr_b32 s{T0}, s{S_C}, 1")
            if shift: a(f"s_add_u32 s{T1}, s{T1}, s{T0}")
            tab = sum(bases[i % g] << (4 * i) for i in range(16))
            a(f"s_lshl_b32 s{T1}, s{T1}, 2")
            a(f"s_mov_b32 s{T4}, 0x{tab & 0xffffffff:08x}")
            a(f"s_mov_b32 s{T5}, 0x{tab >> 32:08x}")
            a(f"s_lshr_b64 s[{T4}:{T5}], s[{T4}:{T5}], s{T1}")
            a(f"s_and_b32 s{self.sKC}, s{T4}, 15")
            a(f"s_lshl_b32 s{T0}, s{T0}, 2")
            a(f"s_lshr_b32 s{T0}, 0x{sum(o << (4 * i) for i, o in enumerate(offs)):04x}, s{T0}")
            a(f"s_and_b32 s{T0}, s{T0}, 15")
            a(f"s_add_u32 s{self.sKC}, s{self.sKC}, s{T0}")
            for ct in range(8):
                assert len({(bases[(ct + rl + shift * aa) % g] + offs[aa]) % 10 for aa in range(4) for rl in range(4)}) == 10
        a(f"s_mul_i32 s{T0}, s{self.sKC}, 26")
        a(f"s_lshr_b32 s{T0}, s{T0}, 8")
        a(f"s_mul_i32 s{T0}, s{T0}, 10")
        a(f"s_sub_u32 s{self.sKC}, s{self.sKC}, s{T0}")
        a(f"s_mov_b32 s{self.sKC0}, s{self.sKC}")
        a(f"s_mul_i32 s{self.sXO}, s{self.sRB}, 163840")
        a(f"s_lshl_b32 s{T0}, s{self.sKC}, 7")
        a(f"s_add_u32 s{self.sXO}, s{self.sXO}, s{T0}")
        a(f"s_mul_i32 s{self.sWO}, s{self.sKC}, 245760")
        a(f"s_lshl_b32 s{T0}, s{self.sCT}, 8")
        a(f"s_add_u32 s{self.sWO}, s{self.sWO}, s{T0}")
        a(f"s_lshl_b32 s{self.sM0X}, s{S_W}, 11")
        a(f"s_mov_b32 s{self.sSLOT}, 0")
        a("v_lshrrev_b32 v1, 3, v0")
        a("v_lshrrev_b32 v2, 4, v0")
        a("v_and_b32 v3, 7, v0")
        a("v_xor_b32 v3, v3, v2")
        a(f"s_lshl_b32 s{T0}, s{S_W}, 4")
        a(f"v_add_u32 v4, s{T0}, v1")
        a("v_mul_u32_u24 v4, 1280, v4")
        a(f"v_lshl_add_u32 v{self.DXA}, v3, 4, v4")
        a(f"v_xor_b32 v{self.DXB}, 64, v{self.DXA}")
        a(f"v_add_u32 v{self.DXB}, 10240, v{self.DXB}")
        a("v_lshlrev_b32 v3, 2, v2")
        a("v_and_b32 v4, 15, v0")
        a("v_xor_b32 v3, v3, v4")
        a(f"s_lshl_b32 s{T0}, s{S_W}, 3")
        a(f"v_add_u32 v4, s{T0}, v2")
        a("v_mul_u32_u24 v4, 3840, v4")
        a(f"v_lshl_add_u32 v{self.DW}, v3, 4, v4")
        for d, n in ((SRD_X, 2048 * 1280), (SRD_WQ, 640 * 3840), (SRD_DBG, 256)):
            a(f"s_mov_b32 s{d+2}, {n}")
            a(f"s_mov_b32 s{d+3}, 0x20000")
        a("s_waitcnt lgkmcnt(0)")
        if self.o.get("fixown"): a(f"s_mov_b32 s31, s{S_NONCE}")
        if self.o.get("diag"): a("s_mov_b32 s35, 0")
        a(f"s_or_b32 s{T0}, s{S_G}, s{S_W}")
        a("s_cbranch_scc0 L_nonce_pub")
        a.label("L_nonce_done")
        a(f"s_cmp_eq_u32 s{self.sCT}, 15")
        a("s_cbranch_scc1 L_p1_noissue")
        self.p1_issue()
        if self.o.get("first5", "1") == "1": self.p1_issue((0,))
        a.label("L_p1_noissue")
        self.stamp(1)
        self.srd(SRD_WS, S_PTR + 16, WS_SIZE + ((1 << 20) if self.o.get("stamps") else 0))
        self.srd(SRD_OUT, S_PTR + 12, 2048 * 1280)
        a(f"s_mov_b64 s[{SRD_RL}:{SRD_RL+1}], 0")
        a(f"s_mov_b32 s{SRD_RL+2}, 0")
        a(f"s_mov_b32 s{SRD_RL+3}, 0x20000")
        a(f"v_mov_b32 v{self.RLV}, 0")
        if self.o.get("cpf", "1") == "1":
            Lc = a.newlabel("cpf")
            a(f"s_cmp_lg_u32 s{S_W}, 7")
            a(f"s_cbranch_scc1 {Lc}")
            a(f"s_getpc_b64 s[{T4}:{T5}]")
            a.label("L_pc_here")
            a(f"s_mul_i32 s{T0}, s{S_J}, {self.CPF_LINES*128}")
            a(f"s_sub_u32 s{T0}, s{T0}, L_pc_here-{NAME}_kernel")
            a(f"v_min_u32 v3, {self.CPF_LINES-1}, v0")
            a(f"v_lshl_add_u32 v3, v3, 7, s{T0}")
            a("v_ashrrev_i32 v5, 31, v3")
            a(f"v_mov_b32 v6, s{T5}")
            a(f"v_add_co_u32 v4, vcc, s{T4}, v3")
            a("s_nop 1")
            a("v_addc_co_u32 v5, vcc, v5, v6, vcc")
            a("global_load_dword v254, v[4:5], off")
            a.label(Lc)

    def relayout_setup(self):
        a = self.a
        R = self.sRL
        u = a.newlabel("u")
        sID, sKS, sCB, sST, sA, sB, sCc, sD = T0, T1, T2, T3, 93, 94, 95, 96
        sBase, sSl, sKsS = 97, 98, 99
        a(f"s_mul_i32 s{sID}, s{S_G}, 5")
        a(f"s_add_u32 s{sID}, s{sID}, s{S_W}")
        a(f"s_sub_u32 s{sID}, s{sID}, 1")
        a(f"s_min_u32 s{sID}, s{sID}, 1279")
        a(f"s_mov_b32 s{sA}, 16")
        a(f"s_mov_b32 s{sB}, 8")
        a(f"s_mov_b32 s{sCc}, 4")
        a(f"s_mov_b32 s{SRD_RL+3}, 0x20000")
        a(f"s_mov_b32 s{R+8}, -1")
        a(f"s_cmp_lt_u32 s{sID}, 200")
        a(f"s_cbranch_scc1 L_rl_wo{u}")
        a(f"s_cmp_lt_u32 s{sID}, 740")
        a(f"s_cbranch_scc1 L_rl_w1{u}")
        a(f"s_sub_u32 s{sID}, s{sID}, 740")
        a(f"s_mul_i32 s{sKS}, s{sID}, 6554")
        a(f"s_lshr_b32 s{sKS}, s{sKS}, 16")
        a(f"s_mul_i32 s{sCB}, s{sKS}, 10")
        a(f"s_sub_u32 s{sCB}, s{sID}, s{sCB}")
        a(f"s_lshl_b32 s{sD}, s{sKS}, 5")
        a(f"s_mov_b32 s{SRD_RL}, s{S_PTR+10}")
        a(f"s_and_b32 s{SRD_RL+1}, s{S_PTR+11}, 0xffff")
        a(f"s_mov_b32 s{SRD_RL+2}, {1728*1280}")
        a(f"s_mov_b32 s{sBase}, {WS_W2}")
        a(f"s_mov_b32 s{sSl}, {54*5120}")
        a(f"s_add_u32 s{T4}, s{sKS}, 3")
        a(f"s_cmp_ge_u32 s{sKS}, 24")
        a(f"s_cselect_b32 s{T4}, s{T4}, s{sKS}")
        a(f"s_sub_u32 s{T5}, s{sKS}, 24")
        a(f"s_cmp_ge_u32 s{sKS}, 48")
        a(f"s_cselect_b32 s{T4}, s{T5}, s{T4}")
        a(f"s_cmp_ge_u32 s{sKS}, 51")
        a(f"s_cselect_b32 s{sKS}, s{sKS}, s{T4}")
        a(f"s_branch L_rl_n640{u}")
        a.label(f"L_rl_wo{u}")
        a(f"s_mul_i32 s{sKS}, s{sID}, 6554")
        a(f"s_lshr_b32 s{sKS}, s{sKS}, 16")
        a(f"s_mul_i32 s{sCB}, s{sKS}, 10")
        a(f"s_sub_u32 s{sCB}, s{sID}, s{sCB}")
        a(f"s_mul_i32 s{sD}, s{sKS}, 40")
        a(f"s_mul_i32 s{sST}, s{sKS}, 160")
        a(f"s_sub_u32 s{sST}, s{sST}, {160*16-16}")
        a(f"s_cmp_lt_u32 s{sKS}, 16")
        a(f"s_cselect_b32 s{sD}, s{sD}, s{sST}")
        a(f"s_cselect_b32 s{sA}, 8, 20")
        a(f"s_cselect_b32 s{sB}, 20, 0x50")
        a(f"s_cselect_b32 s{sCc}, 4, 40")
        a(f"s_mov_b32 s{SRD_RL}, s{S_PTR+4}")
        a(f"s_and_b32 s{SRD_RL+1}, s{S_PTR+5}, 0xffff")
        a(f"s_mov_b32 s{SRD_RL+2}, {640*1280}")
        a(f"s_mov_b32 s{sBase}, {WS_WO}")
        a(f"s_mov_b32 s{sSl}, {20*5120}")
        a(f"s_add_u32 s{T4}, s{sKS}, 2")
        a(f"s_cmp_ge_u32 s{sKS}, 8")
        a(f"s_cselect_b32 s{T4}, s{T4}, s{sKS}")
        a(f"s_sub_u32 s{T5}, s{sKS}, 8")
        a(f"s_cmp_ge_u32 s{sKS}, 16")
        a(f"s_cselect_b32 s{T4}, s{T5}, s{T4}")
        a(f"s_cmp_ge_u32 s{sKS}, 18")
        a(f"s_cselect_b32 s{sKS}, s{sKS}, s{T4}")
        a(f"s_sub_u32 s{T4}, s{sKS}, 1")
        a(f"s_cmp_ge_u32 s{sKS}, 10")
        a(f"s_cselect_b32 s{T4}, s{T4}, s{sKS}")
        a(f"s_cmp_eq_u32 s{sKS}, 9")
        a(f"s_cselect_b32 s{T4}, 18, s{T4}")
        a(f"s_cmp_eq_u32 s{sKS}, 19")
        a(f"s_cselect_b32 s{sKS}, 19, s{T4}")
        a.label(f"L_rl_n640{u}")
        a(f"s_mov_b32 s{sST}, 1280")
        a(f"s_mul_i32 s{sKsS}, s{sKS}, 5120")
        a(f"s_add_u32 s{sBase}, s{sBase}, s{sKsS}")
        for t in range(4):
            a(f"s_lshl_b32 s{T4}, s{sCB}, 2")
            a(f"s_add_u32 s{T4}, s{T4}, {t}")
            a(f"s_mul_i32 s{T5}, s{T4}, 52")
            a(f"s_lshr_b32 s{T5}, s{T5}, 8")
            a(f"s_mul_i32 s{R+4+t}, s{T5}, s{sSl}")
            a(f"s_mul_i32 s{T5}, s{T5}, 5")
            a(f"s_sub_u32 s{T4}, s{T4}, s{T5}")
            a(f"s_lshl_b32 s{T4}, s{T4}, 10")
            a(f"s_add_u32 s{R+4+t}, s{R+4+t}, s{T4}")
            a(f"s_add_u32 s{R+4+t}, s{R+4+t}, s{sBase}")
        a(f"s_branch L_rl_common{u}")
        a.label(f"L_rl_w1{u}")
        a(f"s_sub_u32 s{sID}, s{sID}, 200")
        a(f"s_mul_i32 s{sKS}, s{sID}, 2428")
        a(f"s_lshr_b32 s{sKS}, s{sKS}, 16")
        a(f"s_mul_i32 s{sCB}, s{sKS}, 27")
        a(f"s_sub_u32 s{sCB}, s{sID}, s{sCB}")
        a(f"s_lshr_b32 s{T4}, s{sKS}, 1")
        a(f"s_mul_i32 s{T4}, s{T4}, 0x50")
        a(f"s_and_b32 s{T5}, s{sKS}, 1")
        a(f"s_lshl_b32 s{T5}, s{T5}, 5")
        a(f"s_add_u32 s{sD}, s{T4}, s{T5}")
        a(f"s_mul_i32 s{T4}, s{sKS}, 160")
        a(f"s_sub_u32 s{T4}, s{T4}, {160*16-64}")
        a(f"s_cmp_lt_u32 s{sKS}, 16")
        a(f"s_cselect_b32 s{sD}, s{sD}, s{T4}")
        a(f"s_cselect_b32 s{sA}, 16, 0x50")
        a(f"s_mov_b32 s{SRD_RL}, s{S_PTR+8}")
        a(f"s_and_b32 s{SRD_RL+1}, s{S_PTR+9}, 0xffff")
        a(f"s_mov_b32 s{SRD_RL+2}, {640*3456}")
        a(f"s_mov_b32 s{sST}, 3456")
        a(f"s_mul_i32 s{sKsS}, s{sKS}, 7168")
        a(f"s_add_u32 s{sBase}, s{sKsS}, {WS_W1}")
        a(f"s_mul_i32 s{R+8}, s{sKS}, {1728*4}")
        a(f"s_lshl_b32 s{T4}, s{sCB}, 8")
        a(f"s_add_u32 s{R+8}, s{R+8}, s{T4}")
        a(f"s_add_u32 s{R+8}, s{R+8}, {WS_CS1}")
        for t in range(4):
            a(f"s_lshl_b32 s{T4}, s{sCB}, 2")
            a(f"s_add_u32 s{T4}, s{T4}, {t}")
            a(f"s_mul_i32 s{T5}, s{T4}, 43")
            a(f"s_lshr_b32 s{T5}, s{T5}, 8")
            a(f"s_mul_i32 s{sSl}, s{T5}, 6")
            a(f"s_sub_u32 s{sSl}, s{T4}, s{sSl}")
            a(f"s_sub_u32 s{sKsS}, s{T4}, 96")
            a(f"s_cmp_lt_u32 s{T4}, 96")
            a(f"s_cselect_b32 s{T5}, s{T5}, s{sKsS}")
            a(f"s_cselect_b32 s{sSl}, s{sSl}, 6")
            a(f"s_mul_i32 s{R+4+t}, s{T5}, {20*7168}")
            a(f"s_lshl_b32 s{sSl}, s{sSl}, 10")
            a(f"s_add_u32 s{R+4+t}, s{R+4+t}, s{sSl}")
            a(f"s_add_u32 s{R+4+t}, s{R+4+t}, s{sBase}")
        a.label(f"L_rl_common{u}")
        a(f"s_mul_i32 s{sD}, s{sD}, s{sST}")
        a(f"s_lshl_b32 s{T4}, s{sCB}, 7")
        a(f"s_add_u32 s{R}, s{sD}, s{T4}")
        a(f"s_mul_i32 s{sA}, s{sA}, s{sST}")
        a(f"s_mul_i32 s{sB}, s{sB}, s{sST}")
        a(f"s_add_u32 s{R+1}, s{R}, s{sB}")
        a(f"s_add_u32 s{R+2}, s{R}, s{sA}")
        a(f"s_add_u32 s{R+3}, s{R+2}, s{sB}")
        a("v_lshrrev_b32 v1, 5, v0")
        a(f"v_mul_u32_u24 v1, s{sCc}, v1")
        a("v_bfe_u32 v2, v0, 3, 2")
        a("v_add_u32 v1, v1, v2")
        a(f"v_mul_u32_u24 v1, s{sST}, v1")
        a("v_and_b32 v2, 7, v0")
        a(f"v_lshl_add_u32 v{self.RLV}, v2, 4, v1")
        a("v_lshrrev_b32 v1, 2, v0")
        a("v_lshlrev_b32 v1, 7, v1")
        a("v_and_b32 v2, 3, v0")
        a("v_lshl_add_u32 v1, v2, 3, v1")
        a(f"s_lshl_b32 s{T4}, s{S_W}, 12")
        a(f"s_add_u32 s{T4}, s{T4}, {self.RL_SCR-4096}")
        a(f"v_add_u32 v{self.RLA}, s{T4}, v1")

    def relayout_issue(self, drain_older=False):
        a = self.a
        L = a.newlabel("rlsk")
        a(f"s_sub_u32 s{T0}, s{S_W}, 1")
        a(f"s_cmp_ge_u32 s{T0}, {0 if self.o.get('norl') else 5}")
        a(f"s_cbranch_scc1 {L}")
        a(f"s_lshl_b32 s{T0}, s{S_W}, 12")
        a(f"s_add_u32 m0, s{T0}, {self.RL_SCR-4096}")
        for i in range(4):
            if i: a("s_add_u32 m0, m0, 1024")
            a("s_nop 0")
            self.dma(self.RLV, SRD_RL, f"s{self.sRL+i}")
        if drain_older:
            L2 = a.newlabel("rlw")
            a("s_waitcnt vmcnt(4)")
            a(f"s_branch {L2}")
            a.label(L)
            a("s_waitcnt vmcnt(0)")
            a.label(L2)
        else:
            a.label(L)

    def relayout_finish(self, younger=None):
        a = self.a
        L = a.newlabel("rlsk"); F = 168; t = 184
        a(f"s_sub_u32 s{T0}, s{S_W}, 1")
        a(f"s_cmp_ge_u32 s{T0}, 5")
        Lo = a.newlabel("rlo")
        a(f"s_cbranch_scc1 {Lo if younger is not None else L}")
        if younger is not None: a(f"s_waitcnt vmcnt({younger})")
        for q in range(4):
            for rd in range(2):
                a(f"ds_read_b64_tr_b16 v[{F+4*q+2*rd}:{F+4*q+2*rd+1}], v{self.RLA} offset:{rd*2048+q*32}")
        a(f"v_lshlrev_b32 v{t}, 4, v0")
        for q in range(4):
            a(f"s_waitcnt lgkmcnt({6-2*q})")
            a(f"buffer_store_dwordx4 v[{F+4*q}:{F+4*q+3}], v{t}, s[{SRD_WS}:{SRD_WS+3}], s{self.sRL+4+q} offen sc1")
        if younger is not None: a("s_waitcnt vmcnt(4)")
        a(f"s_cmp_eq_u32 s{self.sRL+8}, -1")
        a(f"s_cbranch_scc1 {L}")
        for q in range(4): a(f"v_mov_b32 v{t+2+q}, 0")
        a(f"v_mov_b32 v{t+6}, 0x3f803f80")
        for k in range(4):
            for q in range(4): a(f"v_dot2_f32_bf16 v{t+2+q}, v{F+4*q+k}, v{t+6}, v{t+2+q}")
        a(f"v_lshlrev_b32 v{t+1}, 2, v0")
        a("s_nop 1")
        a(f"v_permlane16_swap_b32 v{t+2}, v{t+3}")
        a(f"v_permlane16_swap_b32 v{t+4}, v{t+5}")
        a("s_nop 0")
        a(f"v_add_f32 v{t+2}, v{t+2}, v{t+3}")
        a(f"v_add_f32 v{t+4}, v{t+4}, v{t+5}")
        a("s_nop 1")
        a(f"v_permlane32_swap_b32 v{t+2}, v{t+4}")
        a("s_nop 0")
        a(f"v_add_f32 v{t+2}, v{t+2}, v{t+4}")
        a(f"buffer_store_dword v{t+2}, v{t+1}, s[{SRD_WS}:{SRD_WS+3}], s{self.sRL+8} offen sc1")
        if younger is not None:
            a(f"s_branch {L}")
            a.label(Lo)
            a("s_waitcnt vmcnt(0)")
        a.label(L)

    def p1_setup_b(self):
        a = self.a
        a(f"s_and_b32 s{self.sTG}, s{S_W}, 3")
        a(f"s_lshr_b32 s{self.sNH}, s{S_W}, 2")
        a(f"s_cmp_ge_u32 s{self.sCT}, 5")
        a(f"s_cselect_b32 s{T0}, 5, 0")
        a(f"s_sub_u32 s{T0}, s{self.sCT}, s{T0}")
        a(f"s_lshl_b32 s{T0}, s{T0}, 1")
        a(f"s_add_u32 s{T0}, s{T0}, s{self.sNH}")
        for idx in range(10):
            a(f"s_cmp_eq_u32 s{T0}, {idx}")
            a(f"s_cbranch_scc1 L_tab{idx}")
        a(f"s_mul_i32 s{T1}, s{self.sNH}, 0x10101010")
        for k in range(4): a(f"s_add_u32 s{self.sTAB+k}, s{T1}, 0x%08x" % (0x03020100 + 0x04040404 * k))
        a(f"s_mov_b32 s{self.sTAB+4}, 0")
        a(f"s_mov_b32 s{self.sTAB+5}, 0")
        a("s_branch L_tabdone")
        for idx in range(10):
            a.label(f"L_tab{idx}")
            for k, d in enumerate(p1_table(idx // 2, idx % 2)): a(f"s_mov_b32 s{self.sTAB+k}, 0x%08x" % d)
            if idx < 9: a("s_branch L_tabdone")
        a.label("L_tabdone")
        a("v_and_b32 v1, 31, v0")
        a(f"s_lshl_b32 s{T0}, s{self.sTG}, 5")
        a(f"v_add_u32 v2, s{T0}, v1")
        a("v_bfe_u32 v3, v2, 1, 3")
        a("v_lshrrev_b32 v4, 5, v0")
        a("v_xor_b32 v3, v3, v4")
        a("v_lshlrev_b32 v3, 4, v3")
        a(f"v_lshl_add_u32 v{self.XA}, v2, 7, v3")
        a(f"s_xor_b32 s{T3}, s{self.sTG}, s{self.sNH}")
        a(f"s_lshl_b32 s{T0}, s{T3}, 5")
        a(f"v_xor_b32 v{self.XA}, s{T0}, v{self.XA}")
        for ks in range(1, 4): a(f"v_xor_b32 v{self.XA+ks}, {ks<<5}, v{self.XA}")
        a("v_bfe_u32 v5, v0, 2, 2")
        a("v_lshl_add_u32 v6, v4, 3, v5")
        a("v_lshlrev_b32 v6, 8, v6")
        a("v_and_b32 v7, 3, v0")
        a("v_lshlrev_b32 v7, 3, v7")
        a("v_and_b32 v8, 16, v0")
        a("v_cmp_ne_u32 vcc, 0, v8")
        for i in range(2):
            a(f"v_mov_b32 v8, s{self.sTAB+2*i}")
            a(f"v_mov_b32 v9, s{self.sTAB+2*i+1}")
            a("v_cndmask_b32 v8, v8, v9, vcc")
            a("v_bfe_u32 v8, v8, v7, 8")
            a("v_lshlrev_b32 v8, 3, v8")
            a("v_lshlrev_b32 v9, 6, v5")
            a("v_xor_b32 v8, v8, v9")
            a(f"v_add_u32 v8, v6, v8")
            a(f"s_lshl_b32 s{T0}, s{T3}, 12")
            a(f"v_add_u32 v{self.WA+4*i}, s{T0}, v8")
            for j in range(1, 4): a(f"v_xor_b32 v{self.WA+4*i+j}, {j<<12}, v{self.WA+4*i}")
        a(f"s_lshl_b32 s{T0}, s{self.sRB}, 2")
        a(f"s_add_u32 s{T0}, s{T0}, s{self.sTG}")
        a(f"s_lshl_b32 s{T1}, s{T0}, 9")
        a(f"s_add_u32 s{T1}, s{T1}, {WS_RS}")
        a(f"v_lshl_add_u32 v{self.RSA}, v1, 4, s{T1}")
        a(f"s_cmp_ge_u32 s{self.sCT}, 10")
        a("s_cbranch_scc1 L_p1_vaddr")
        a(f"s_lshl_b32 s{T0}, s{T0}, 9")
        a(f"s_cmp_ge_u32 s{self.sCT}, 5")
        a(f"s_cselect_b32 s{T1}, {WS_K}, {WS_Q}")
        a(f"s_add_u32 s{T0}, s{T0}, s{T1}")
        a(f"v_lshl_add_u32 v2, v1, 4, s{T0}")
        a("v_lshlrev_b32 v3, 3, v4")
        a("v_add_u32 v5, 16, v3")
        for i in range(2):
            for qq in range(2):
                a(f"v_bfe_u32 v6, s{self.sTAB+4+i}, v{3 if qq == 0 else 5}, 8")
                a(f"v_lshl_add_u32 v{self.STA+2*i+qq}, v6, 15, v2")
        a("s_branch L_p1_addrdone")
        a.label("L_p1_vaddr")
        a(f"s_mul_i32 s{T0}, s{T0}, 1280")
        a(f"s_add_u32 s{T0}, s{T0}, {WS_V}")
        a(f"s_lshl_b32 s{T1}, s{self.sCT}, 7")
        a(f"s_lshl_b32 s{T2}, s{self.sNH}, 6")
        a(f"s_add_u32 s{T1}, s{T1}, s{T2}")
        a(f"s_sub_u32 s{T1}, s{T1}, 1280")
        a(f"v_mov_b32 v{self.STA+2}, 0")
        a(f"v_mov_b32 v{self.STA+3}, 0")
        a("v_mul_u32_u24 v3, 320, v4")
        a(f"v_add_u32 v3, s{T0}, v3")
        a(f"s_mov_b32 s{T2}, 81920")
        for i in range(2):
            a(f"v_add_u32 v5, s{T1}, v1")
            if i: a("v_add_u32 v5, 32, v5")
            a("v_mul_u32_u24 v6, 3277, v5")
            a("v_lshrrev_b32 v6, 16, v6")
            a("v_mul_u32_u24 v7, 20, v6")
            a("v_sub_u32 v5, v5, v7")
            a("v_lshl_add_u32 v5, v5, 4, v3")
            a(f"v_mad_u32_u24 v{self.STA+i}, v6, s{T2}, v5")
        a.label("L_p1_addrdone")
        for r in range(32): a(f"v_mov_b32 v{self.ACC+r}, 0")
        a(f"s_mul_i32 s{T0}, s{self.sCT}, 10240")
        a(f"s_lshl_b32 s{T1}, s{self.sNH}, 9")
        a(f"s_add_u32 s{T0}, s{T0}, s{T1}")
        a(f"s_add_u32 s{T0}, s{T0}, {WS_CQ}")
        a(f"v_lshl_add_u32 v{self.CQA}, v0, 3, s{T0}")
        a(f"s_lshl_b32 s{T0}, s{self.sNH}, 8")
        a(f"s_lshl_b32 s{T1}, s{self.sTG}, 9")
        a(f"s_add_u32 s{T0}, s{T0}, {self.P1_MISC}")
        a(f"s_add_u32 s{T1}, s{T1}, s{T0}")
        a(f"v_lshl_add_u32 v{self.CSW}, v0, 2, s{T1}")
        a(f"v_lshl_add_u32 v95, v0, 2, s{T0}")
        a(f"v_mov_b32 v{self.VXM}, 0x8000")
        a(f"s_lshl_b32 s{T0}, s{S_W}, 2")
        a(f"s_add_u32 s{T0}, s{T0}, {self.P1_MISC + 2304}")
        a(f"v_mov_b32 v{self.PGA}, s{T0}")
        a(f"v_mov_b32 v{self.PGV}, 0")
        a(f"v_and_b32 v{self.PGR}, 7, v0")
        a(f"v_lshlrev_b32 v{self.PGR}, 2, v{self.PGR}")
        a(f"v_add_u32 v{self.PGR}, {self.P1_MISC + 2304}, v{self.PGR}")
        a(f"ds_write_b32 v{self.PGA}, v{self.PGV}")
        a(f"s_mov_b32 s{self.sCNT}, -1")
        a(f"s_cmp_eq_u32 s{self.sTG}, 0")
        a(f"s_cselect_b32 s{self.sSIDE}, 2, 0")

    def p1_loop(self, vmode):
        a = self.a
        tag = "v" if vmode else "q"
        if self.o.get("p1soft"):
            self.p1_loop1(vmode, 0)
        else:
            a(f"s_cmp_lg_u32 s{self.sNH}, 0")
            a(f"s_cbranch_scc1 L_p1_B{tag}")
            self.p1_loop1(vmode, 0)
            a(f"s_branch L_p1_E{tag}")
            a.label(f"L_p1_B{tag}")
            self.p1_loop1(vmode, 1)
            a.label(f"L_p1_E{tag}")
        reads, xors, mf = self.p1_parts(vmode)
        def comp(ks, rd=True, xr=True):
            a(f"s_waitcnt lgkmcnt({5 if rd or ks == 2 else 0})")
            mf(ks, 0)
            if rd: reads((ks + 2) % 4)
            mf(ks, 1)
            if xr: xors((ks + 2) % 4)
        comp(0); self.p1_issue((2,))
        comp(1); self.p1_issue((3,))
        a(f"buffer_load_dwordx4 v[{self.RS}:{self.RS+3}], v{self.RSA}, s[{SRD_WS}:{SRD_WS+3}], 0 offen sc1")
        a(f"s_mul_i32 s{T0}, s{self.sCT}, 10240")
        a(f"s_lshl_b32 s{T1}, s{S_W}, 10")
        a(f"s_add_u32 s{T0}, s{T0}, s{T1}")
        a(f"s_add_u32 s{T0}, s{T0}, {WS_CQ}")
        a(f"s_add_u32 m0, s{T1}, {self.CQ_SCR}")
        a("v_lshlrev_b32 v1, 4, v0")
        self.dma(1, SRD_WS, f"s{T0}", "sc1")
        a(f"s_add_u32 s{T0}, s{T0}, 8192")
        a("s_add_u32 m0, m0, 8192")
        a(f"s_cmp_ge_u32 s{S_W}, 2")
        a(f"s_cselect_b32 s{T0}, 0x7f000000, s{T0}")
        self.dma(1, SRD_WS, f"s{T0}", "sc1")
        a("s_waitcnt vmcnt(7)")
        a("s_barrier")
        comp(2); comp(3)
        comp(0); comp(1)
        a("s_waitcnt vmcnt(3)")
        a("s_barrier")
        comp(2, xr=False); comp(3, xr=False)
        comp(0, xr=False); comp(1, xr=False)
        a("s_waitcnt vmcnt(0)")
        a("s_barrier")
        self.p1_epi_reads()
        a("s_waitcnt lgkmcnt(15)")
        mf(2, 0); mf(2, 1)
        a("s_waitcnt lgkmcnt(11)")
        mf(3, 0); mf(3, 1)

    def p1_parts(self, vmode):
        a = self.a
        def reads(ks):
            if self.o.get("nolds"): return
            a(f"ds_read_b128 v[{self.XF+4*ks}:{self.XF+4*ks+3}], v{self.XA+ks}")
            for i in range(2):
                for rd in range(2):
                    d = self.WF + 8 * ks + 4 * i + 2 * rd
                    a(f"ds_read_b64_tr_b16 v[{d}:{d+1}], v{self.WA+4*i+ks} offset:{16384+rd*1024}")
        def xors(ks):
            for r in (self.XA + ks, self.WA + ks, self.WA + 4 + ks): a(f"v_xor_b32 v{r}, v{self.VXM}, v{r}")
            if ks == 3: a(f"v_xor_b32 v{self.VXM}, 0x10000, v{self.VXM}")
        def mf(ks, i):
            x = vr(self.XF + 4 * ks, 4); wv = vr(self.WF + 8 * ks + 4 * i, 4); acc = vr(self.ACC + 16 * i, 16)
            if self.o.get("nomfma"): pass
            elif vmode: a(f"v_mfma_f32_32x32x16_bf16 {acc}, {x}, {wv}, {acc}")
            else: a(f"v_mfma_f32_32x32x16_bf16 {acc}, {wv}, {x}, {acc}")
        return reads, xors, mf

    def p1_loop1(self, vmode, B):
        a = self.a
        L = a.newlabel("p1loop")
        pos = self.o.get("barB" if B else "barA", "1" if B else "0")
        reads, xors, mf = self.p1_parts(vmode)
        def bar():
            a("s_waitcnt vmcnt(4)")
            if not self.o.get("nobar"): a("s_barrier")
            if self.o.get("its") == "1": self.stamp_dyn(54, self.sCNT)
        soft = self.o.get("p1soft")
        def comp(ks):
            n = (ks + 2) % 4
            if soft: return comp_soft(ks)
            if ks == 2 and pos == "0": bar()
            a("s_waitcnt lgkmcnt(5)")
            mf(ks, 0)
            if ks == 2 and pos == "1": bar()
            if ks == 2 and pos == "2":
                mf(ks, 1); bar(); reads(n)
            else:
                reads(n); mf(ks, 1)
            xors(n)
            self.p1_issue((n,))
        def comp_soft(ks):
            n = (ks + 2) % 4
            ar = int(soft) - 1
            extra = {0: 0, 1: (1 if ar == 0 else 0), 2: 0, 3: 0}[ks]
            a(f"s_waitcnt lgkmcnt({5 + extra})" if ks != 2 else "s_waitcnt lgkmcnt(0)" if self.o.get("p1g0") else "s_waitcnt lgkmcnt(6)")
            mf(ks, 0)
            if ks == ar:
                a(f"v_add_u32 v{self.PGV}, 1, v{self.PGV}")
                a(f"s_waitcnt vmcnt({2 + ks})")
                a(f"ds_write_b32 v{self.PGA}, v{self.PGV}")
            if ks == 2:
                Lw, Lb = a.newlabel("late"), a.newlabel("go")
                a("s_waitcnt lgkmcnt(0)")
                a(f"v_cmp_lt_u32 vcc, v{self.PGD}, v{self.PGV}")
                a(f"s_cbranch_vccnz {Lw}")
                a.label(Lb)
                self._late1.append((Lw, Lb))
            reads(n); mf(ks, 1)
            if ks == 1: a(f"ds_read_b32 v{self.PGD}, v{self.PGR}")
            xors(n)
            self.p1_issue((n,))
        a("s_waitcnt vmcnt(6) lgkmcnt(0)")
        a("s_barrier")
        self.stamp(3)
        reads(0); reads(1); xors(0); xors(1)
        a("v_mov_b32 v6, 0x3f803f80")
        a("v_mov_b32 v2, 0")
        a("v_mov_b32 v3, 0")
        a("s_waitcnt lgkmcnt(5)")
        for k in range(4):
            for i in range(2): a(f"v_dot2_f32_bf16 v{2+i}, v{self.WF+4*i+k}, v6, v{2+i}")
        a("s_nop 2")
        a("v_permlane32_swap_b32 v2, v3")
        a("s_nop 0")
        a("v_add_f32 v2, v2, v3")
        a(f"ds_write_b32 v{self.CSW}, v2")
        a("s_waitcnt lgkmcnt(0)")
        a.align(6)
        a.label(L)
        comp(0); comp(1); comp(2)
        Lr = a.newlabel("back"); Ls = a.newlabel("side")
        a(f"s_add_u32 s{self.sCNT}, s{self.sCNT}, 1")
        a(f"s_cmp_lt_u32 s{self.sCNT}, s{self.sSIDE}")
        a(f"s_cbranch_scc1 {Ls}")
        a.label(Lr)
        comp(3)
        a(f"s_cmp_lt_u32 s{self.sCNT}, {int(self.o.get('p1n', 10)) - 4}")
        a(f"s_cbranch_scc1 {L}")
        self._sides.append((Ls, Lr))

    def p1_sides(self):
        a = self.a
        for Lw, Lb in self._late1:
            a.label(Lw)
            a(f"s_mov_b32 s{S_SPIN}, 0")
            L = a.newlabel("lsp")
            a.label(L)
            a(f"ds_read_b32 v{self.PGD}, v{self.PGR}")
            a(f"s_add_u32 s{S_SPIN}, s{S_SPIN}, 1")
            a(f"s_cmp_ge_u32 s{S_SPIN}, {SPIN_MAX * 16}")
            a(f"s_cbranch_scc1 {Lb}")
            a("s_waitcnt lgkmcnt(0)")
            a(f"v_cmp_lt_u32 vcc, v{self.PGD}, v{self.PGV}")
            a(f"s_cbranch_vccnz {L}")
            a(f"s_branch {Lb}")
        self._late1 = []
        for Ls, Lr in self._sides:
            a.label(Ls)
            L1 = a.newlabel("s1")
            a(f"s_cmp_lg_u32 s{self.sCNT}, 0")
            a(f"s_cbranch_scc1 {L1}")
            a("v_mov_b32 v1, 0")
            a(f"buffer_load_dwordx2 v[{self.VN}:{self.VN+1}], v1, s[{SRD_DBG}:{SRD_DBG+3}], 0 offen sc1")
            a(f"s_branch {Lr}")
            a.label(L1)
            a("s_waitcnt vmcnt(4)")
            self.nonce_get("nonce2")
            a(f"v_mov_b32 v1, {self.P1_MISC + 2048}")
            a(f"ds_write_b64 v1, v[{self.VN}:{self.VN+1}]")
            for k in range(4): a(f"ds_read_b32 v{2+k}, v95 offset:{512*k}")
            a(f"s_lshl_b32 s{T0}, s{self.sKC0}, 10")
            a("s_waitcnt lgkmcnt(0)")
            a("v_add_f32 v2, v2, v3")
            a("v_add_f32 v4, v4, v5")
            a(f"v_mov_b32 v3, s{S_NONCE}")
            a("v_add_f32 v2, v2, v4")
            a(f"buffer_store_dwordx2 v[2:3], v{self.CQA}, s[{SRD_WS}:{SRD_WS+3}], s{T0} offen sc1")
            a(f"s_branch {Lr}")

    def p1_gather(self):
        a = self.a
        a(f"buffer_load_dwordx4 v[{self.RS}:{self.RS+3}], v{self.RSA}, s[{SRD_WS}:{SRD_WS+3}], 0 offen sc1")
        a(f"s_movk_i32 s{T0}, 0x1000")
        a(f"s_movk_i32 s{T1}, 0x2000")
        for k in range(10):
            so = ("0", f"s{T0}", f"s{T1}")[k // 4]
            a(f"buffer_load_dwordx2 v[{self.CQ+2*k}:{self.CQ+2*k+1}], v{self.CQA}, s[{SRD_WS}:{SRD_WS+3}], {so} offen offset:{1024*(k%4)} sc1")

    def p1_epi_reads(self):
        a = self.a
        a(f"s_lshl_b32 s{T0}, s{self.sNH}, 9")
        a(f"s_add_u32 s{T0}, s{T0}, {self.CQ_SCR}")
        a(f"v_lshl_add_u32 v1, v0, 3, s{T0}")
        for k in range(10): a(f"ds_read_b64 v[{self.CQ+2*k}:{self.CQ+2*k+1}], v1 offset:{1024*k}")
        a(f"v_mov_b32 v1, {self.P1_MISC + 2048}")
        a(f"ds_read_b64 v[{self.VN}:{self.VN+1}], v1")
        a(f"s_lshl_b32 s{T2}, s{S_W}, 9")
        a(f"s_add_u32 s{T2}, s{T2}, {self.P1_MISC+4096}")
        a(f"v_lshl_add_u32 v6, v0, 2, s{T2}")
        a("v_and_b32 v5, 31, v0")
        a(f"s_mov_b32 s{S_SPIN}, 0")

    def p1_epi_common(self):
        a = self.a
        L = a.newlabel("rs"); Ld = a.newlabel("rsd")
        a("s_waitcnt lgkmcnt(0)")
        a(f"v_readfirstlane_b32 s{S_NONCE}, v{self.VN}")
        a(f"v_readfirstlane_b32 s{S_NONCE+1}, v{self.VN+1}")
        a("s_nop 0")
        a.label(L)
        a(f"v_xor_b32 v2, s{S_NONCE}, v{self.RS+1}")
        a(f"v_xor_b32 v3, s{S_NONCE}, v{self.RS+3}")
        for k in range(0, 10, 2):
            a(f"v_xor_b32 v4, s{S_NONCE}, v{self.CQ+2*k+1}")
            a(f"v_xor_b32 v7, s{S_NONCE}, v{self.CQ+2*k+3}")
            a("v_or3_b32 v2, v2, v4, v7")
        a("v_or_b32 v2, v2, v3")
        a("v_cmp_ne_u32 vcc, 0, v2")
        a(f"s_add_u32 s{S_SPIN}, s{S_SPIN}, 1")
        a("s_or_b64 vcc, vcc, vcc")
        a(f"s_cbranch_scc0 {Ld}")
        a(f"s_cmp_ge_u32 s{S_SPIN}, {SPIN_MAX}")
        a(f"s_cbranch_scc1 {Ld}")
        self.diag("gather")
        self.p1_gather()
        a("s_waitcnt vmcnt(0)")
        a(f"s_branch {L}")
        a.label(Ld)
        Q = self.CQ
        a(f"v_add_f32 v12, v{Q}, v{Q+2}")
        a(f"v_add_f32 v13, v{Q+4}, v{Q+6}")
        a(f"v_add_f32 v14, v{Q+8}, v{Q+10}")
        a(f"v_add_f32 v15, v{Q+12}, v{Q+14}")
        a(f"v_add_f32 v2, v{Q+16}, v{Q+18}")
        a("v_add_f32 v12, v12, v13")
        a("v_add_f32 v14, v14, v15")
        a("v_add_f32 v12, v12, v2")
        a("v_add_f32 v12, v12, v14")
        self.stamp(4)

    def rowstats(self):
        a = self.a
        X = 100
        a("v_lshrrev_b32 v1, 3, v0")
        a(f"s_lshl_b32 s{T0}, s{S_W}, 4")
        a(f"s_lshl_b32 s{T1}, s{self.sRB}, 7")
        a(f"s_add_u32 s{T0}, s{T0}, s{T1}")
        a(f"v_add_u32 v1, s{T0}, v1")
        a("v_mul_u32_u24 v2, 1280, v1")
        a("v_and_b32 v3, 7, v0")
        a("v_lshl_add_u32 v2, v3, 4, v2")
        a(f"s_mov_b32 s{T0}, 10240")
        for k in range(10):
            for hh in range(2):
                r = X + 8 * k + 4 * hh
                a(f"buffer_load_dwordx4 v[{r}:{r+3}], v2, s[{SRD_X}:{SRD_X+3}], {'s%d' % T0 if hh else '0'} offen offset:{128*k}")
        for r in range(4, 8): a(f"v_mov_b32 v{r}, 0")
        a("v_mov_b32 v8, 0x3f803f80")
        for k in range(10):
            a(f"s_waitcnt vmcnt({18-2*k if k < 9 else 1})")
            if k == 8:
                a("v_mov_b32 v3, 0")
                a(f"buffer_load_dwordx2 v[{self.VN}:{self.VN+1}], v3, s[{SRD_DBG}:{SRD_DBG+3}], 0 offen sc1")
            for e in range(4):
                for hh in range(2):
                    r = X + 8 * k + 4 * hh + e
                    a(f"v_dot2_f32_bf16 v{4+hh}, v{r}, v8, v{4+hh}")
                    a(f"v_dot2_f32_bf16 v{6+hh}, v{r}, v{r}, v{6+hh}")
        a("s_nop 2")
        for ctl in ("quad_perm:[1,0,3,2]", "quad_perm:[2,3,0,1]", "row_half_mirror"):
            for r in range(4, 8): a(f"v_add_f32_dpp v{r}, v{r}, v{r} {ctl} row_mask:0xf bank_mask:0xf")
        a("s_waitcnt vmcnt(0)")
        self.nonce_get()
        a("v_and_b32 v3, 1, v0")
        a("v_cmp_ne_u32 vcc, 0, v3")
        a("v_lshlrev_b32 v3, 3, v3")
        a("v_add_u32 v1, v1, v3")
        a("v_cndmask_b32 v4, v4, v5, vcc")
        a("v_cndmask_b32 v6, v6, v7, vcc")
        a(f"v_mul_f32 v4, 0x%08x, v4" % f2u(1.0 / 640))
        a("v_mul_f32 v5, v4, v4")
        a(f"v_mov_b32 v7, 0x%08x" % f2u(1.0 / 640))
        a("v_fma_f32 v5, v6, v7, -v5")
        a("v_max_f32 v5, 0, v5")
        a(f"v_add_f32 v5, 0x%08x, v5" % f2u(1e-5))
        a("v_rsq_f32 v8, v5")
        a(f"v_mov_b32 v9, s{S_NONCE}")
        a(f"v_mov_b32 v11, s{S_NONCE}")
        a("v_mul_f32 v10, v4, v8")
        a("v_lshlrev_b32 v1, 4, v1")
        a(f"s_mov_b32 s{T0}, {WS_RS}")
        a("s_mov_b32 exec_lo, 0x03030303")
        a("s_mov_b32 exec_hi, 0x03030303")
        a(f"buffer_store_dwordx4 v[8:11], v1, s[{SRD_WS}:{SRD_WS+3}], s{T0} offen sc1")
        a("s_mov_b64 exec, -1")

    def p1_epi_q(self):
        a = self.a
        self.p1_epi_common()
        qs = math.log2(math.e) / math.sqrt(20.0)
        a("ds_write_b32 v6, v12")
        a("v_lshrrev_b32 v1, 5, v0")
        a(f"v_lshl_add_u32 v1, v1, 4, s{T2}")
        C = 48
        for i in range(2):
            for q4 in range(4):
                a(f"ds_read_b128 v[{C+16*i+4*q4}:{C+16*i+4*q4+3}], v1 offset:{i*128+q4*32}")
        a(f"s_cmp_lt_u32 s{self.sCT}, 5")
        a(f"s_cselect_b32 s{T1}, 0x%08x, 1.0" % f2u(qs))
        a(f"v_mul_f32 v2, s{T1}, v{self.RS}")
        a(f"v_mul_f32 v3, s{T1}, v{self.RS+2}")
        for i in range(2):
            for qq in range(2):
                a(f"s_waitcnt lgkmcnt({6-4*i-2*qq})")
                b = 16 * i + 8 * qq
                for r in range(8): a(f"v_mul_f32 v{self.ACC+b+r}, v2, v{self.ACC+b+r}")
                for r in range(8): a(f"v_fma_f32 v{self.ACC+b+r}, -v3, v{C+b+r}, v{self.ACC+b+r}")
                o = 4 + 4 * ((2 * i + qq) % 2)
                for r in range(4): a(f"v_cvt_pk_bf16_f32 v{o+r}, v{self.ACC+b+2*r}, v{self.ACC+b+2*r+1}")
                a(f"buffer_store_dwordx4 v[{o}:{o+3}], v{self.STA+2*i+qq}, s[{SRD_WS}:{SRD_WS+3}], 0 offen sc1")

    def p1_epi_v(self):
        a = self.a
        self.p1_epi_common()
        a("v_mov_b32 v13, v12")
        a(f"v_lshl_add_u32 v6, v5, 2, s{T2}")
        a("v_lshrrev_b32 v1, 5, v0")
        a("v_permlane32_swap_b32 v12, v13")
        a(f"ds_write_b32 v6, v{self.RS}")
        a(f"ds_write_b32 v6, v{self.RS+2} offset:128")
        a(f"v_lshl_add_u32 v6, v1, 4, s{T2}")
        C = 48
        for q4 in range(4):
            a(f"ds_read_b128 v[{C+4*q4}:{C+4*q4+3}], v6 offset:{q4*32}")
            a(f"ds_read_b128 v[{C+16+4*q4}:{C+16+4*q4+3}], v6 offset:{128+q4*32}")
        for grp in range(2):
            a(f"s_waitcnt lgkmcnt({4-4*grp})")
            for i in range(2):
                b = 16 * i + 8 * grp
                for r in range(8): a(f"v_mul_f32 v{self.ACC+b+r}, v{C+8*grp+r}, v{self.ACC+b+r}")
                for r in range(8): a(f"v_fma_f32 v{self.ACC+b+r}, -v{C+16+8*grp+r}, v{12+i}, v{self.ACC+b+r}")
                o = 4 + 4 * i
                for r in range(4): a(f"v_cvt_pk_bf16_f32 v{o+r}, v{self.ACC+b+2*r}, v{self.ACC+b+2*r+1}")
                a(f"buffer_store_dwordx4 v[{o}:{o+3}], v{self.STA+i}, s[{SRD_WS}:{SRD_WS+3}], 0 offen offset:{640*grp} sc1")

    def nonce_get(self, where="nonce"):
        a = self.a
        a(f"s_mov_b32 s{S_SPIN}, 0")
        Lc = a.newlabel("nchk"); Lo = a.newlabel("nok")
        a.label(Lc)
        a(f"v_readfirstlane_b32 s{S_NONCE}, v{self.VN}")
        a(f"v_readfirstlane_b32 s{S_NONCE+1}, v{self.VN+1}")
        a(f"s_add_u32 s{S_SPIN}, s{S_SPIN}, 1")
        a(f"s_or_b32 s{T0}, s{S_NONCE}, s{S_NONCE+1}")
        a(f"s_cbranch_scc1 {Lo}")
        a(f"s_cmp_ge_u32 s{S_SPIN}, {SPIN_MAX}")
        a(f"s_cbranch_scc1 {Lo}")
        self.diag(where)
        a("v_mov_b32 v94, 0")
        a(f"buffer_load_dwordx2 v[{self.VN}:{self.VN+1}], v94, s[{SRD_DBG}:{SRD_DBG+3}], 0 offen sc1")
        a("s_waitcnt vmcnt(0)")
        a(f"s_branch {Lc}")
        a.label(Lo)

    def phase1(self):
        a = self.a
        self.p1_setup_a()
        a(f"s_cmp_eq_u32 s{self.sCT}, 15")
        a("s_cbranch_scc0 L_p1_go")
        self.rowstats()
        a("s_branch L_p1_done")
        a.label("L_nonce_pub")
        a("v_mov_b32 v3, 0")
        a(f"v_mov_b32 v4, s{S_NONCE}")
        a(f"v_mov_b32 v5, s{S_NONCE+1}")
        a("s_mov_b64 exec, 1")
        a(f"buffer_store_dwordx2 v[4:5], v3, s[{SRD_DBG}:{SRD_DBG+3}], 0 offen sc1")
        a("s_mov_b64 exec, -1")
        a("s_branch L_nonce_done")
        a.label("L_p1_go")
        self.p1_setup_b()
        self.p1_issue((1, 2, 3) if self.o.get("first5", "1") == "1" else (0, 1, 2, 3))
        self.p1_issue((0, 1))
        self.stamp(2)
        a(f"s_cmp_ge_u32 s{self.sCT}, 10")
        a("s_cbranch_scc1 L_p1_v")
        self.p1_loop(False)
        self.p1_epi_q()
        a("s_branch L_p1_done")
        self.p1_sides(); self._sides = []
        a.label("L_p1_v")
        self.p1_loop(True)
        self.p1_epi_v()
        a("s_branch L_p1_done")
        self.p1_sides()
        a.label("L_p1_done")
        self.stamp(5)
        a("s_waitcnt vmcnt(0)")
        self.stamp(6)
        a("s_barrier")
        a(f"s_lshl_b32 s{T0}, s{self.sCT}, 4")
        a(f"s_add_u32 s{T0}, s{T0}, s{self.sRB}")
        a(f"s_mul_i32 s{T0}, s{T0}, {FSP}")
        a(f"s_add_u32 s{T0}, s{T0}, {FL_1}")
        self.flag_store(T0, 2)
        self.stamp(7)
        a(f"s_cmp_eq_u32 s{S_W}, 0")
        a("s_cbranch_scc1 L_no_rls")
        self.relayout_setup()
        a.label("L_no_rls")
        if self.stop < 2:
            self.relayout_issue()
            a("s_waitcnt vmcnt(0)")
            self.relayout_finish()

    def build(self):
        a = self.a
        self.entry()
        self.phase1()
        if self.stop >= 2:
            from phases import phase2, phase3, phase4, phase5
            phase2(self)
            if self.stop >= 3: phase3(self)
            if self.stop >= 4: phase4(self)
            if self.stop >= 5: phase5(self)
        a("s_waitcnt vmcnt(0)")
        if self.o.get("fixend"):
            if self.o.get("diag"):
                a("s_cmp_eq_u32 s35, 0")
                a("s_cbranch_scc1 L_end")
            a.label("L_fixend")
            a("s_memrealtime s[100:101]")
            a("s_waitcnt lgkmcnt(0)")
            a(f"s_sub_u32 s100, s100, s{31 if self.o.get('fixown') else S_NONCE}")
            a(f"s_cmp_lt_u32 s100, {int(self.o['fixend'])*100}")
            a("s_cbranch_scc1 L_fixend")
        self.stamp(31)
        self.stamp_flush()
        a.label("L_end")
        a("s_endpgm")
        a.lines.append(f".fill {self.pad}, 4, 0xbf810000")
        body = a.text()
        errs = check(body)
        if errs:
            sys.stderr.write("\n".join(errs[:40]) + "\n%d hazards\n" % len(errs))
            raise SystemExit(1)
        head = f"""; Fused preLN -> MHA -> residual -> preLN -> SiLU FFN -> residual, one persistent launch.
; @launch grid=(256,1,1) block=(512,1,1) lds={LDS_BYTES}
.amdgcn_target "amdgcn-amd-amdhsa--gfx950"
.text
.globl {NAME}_kernel
.p2align 8
.type {NAME}_kernel,@function
{NAME}_kernel:
"""
        tail = f""".section .rodata,"a"
.p2align 6
.amdhsa_kernel {NAME}_kernel
  .amdhsa_next_free_vgpr 256
  .amdhsa_next_free_sgpr 102
  .amdhsa_accum_offset 256
  .amdhsa_group_segment_fixed_size 0
  .amdhsa_kernarg_size 72
  .amdhsa_user_sgpr_count 2
  .amdhsa_user_sgpr_kernarg_segment_ptr 1
  .amdhsa_system_sgpr_workgroup_id_x 1
.end_amdhsa_kernel
"""
        return head + body + tail

if __name__ == "__main__":
    stop = int(sys.argv[2]) if len(sys.argv) > 2 else 99
    opts = dict(kv.split("=") for kv in sys.argv[3:])
    import subprocess
    def asm_size(path):
        r = subprocess.run(["clang", "-x", "assembler", "-target", "amdgcn-amd-amdhsa", "-mcpu=gfx950", "-c", path, "-o", "_chk.o"], capture_output=True, text=True)
        if r.returncode: print(r.stderr[:1500]); raise SystemExit(1)
        r = subprocess.run(["llvm-readelf", "-S", "_chk.o"], capture_output=True, text=True)
        return int([l for l in r.stdout.split("\n") if ".text" in l][0].split()[6], 16)
    open(sys.argv[1], "w").write(K(stop, opts).build())
    n = asm_size(sys.argv[1])
    k = K(stop, opts)
    k.CPF_LINES = (n + 4095) // 4096
    k.pad = (k.CPF_LINES * 4096 - n) // 4 + 16
    open(sys.argv[1], "w").write(k.build())
    print(sys.argv[1], "code bytes:", n, "with pad:", asm_size(sys.argv[1]))
```

```python
import math
from asmlib import vr, sr, f2u
from tables import *
from gen import *

Qm, Qr, NEG, S0, S1, P, O, Km, Kr, V = 4, 8, 12, 28, 60, 92, 108, 124, 132, 136
AK, AKR, AV, DKM, DLIN = 152, 153, 154, 197, 196
XR = 198
PL = 184
SLOT = 22528
WO_LDS = 3 * SLOT
sH, sQB, sST, sK0, sK1, sK2, sS1, sDS, sKD, sVM, sRET, sWOo, sWOl = 64, 65, 66, 67, 68, 69, 70, 71, 72, 74, 76, 78, 79
sW10, sL1, sD1, sL2, sSD, sD2 = 73, 82, 83, 93, 94, 78
sTA, sW1, sSM = 95, 96, 98
WS = f"s[{SRD_WS}:{SRD_WS+3}]"
M32 = "v_mfma_f32_32x32x16_bf16"
M2B = "v_mfma_f32_32x32x4_2b_bf16"
M16 = "v_mfma_f32_16x16x32_bf16"

def kv_piece(k, i):
    a = k.a
    a(f"s_add_u32 m0, s{(sW10, sL1, sL2)[i]}, s{sDS}")
    a(f"s_add_u32 s{sK0+i}, s{sK0+i}, {('4096', f's{sS1}', '10240')[i]}")
    k.dma((DKM, DLIN, DLIN)[i], SRD_WS, f"s{sK0+i}", "sc1")

def wo_piece(k):
    a = k.a
    a(f"s_min_u32 m0, s{sWOl}, {WO_LDS + 90*1024}")
    a(f"s_add_u32 s{sWOl}, s{sWOl}, 8192")
    k.dma(DLIN, SRD_WQ, "m0", "sc1")

def touch_piece(k):
    a = k.a
    a(f"buffer_load_dwordx4 v[160:163], v{DLIN}, {WS}, s{sTA} offen sc1")
    a(f"s_add_u32 s{sTA}, s{sTA}, 1024")

def SG(i): return 172 + 4 * i if i < 6 else 204 + 4 * (i - 6)

def stage_load(k, vq, tag, i, s_src, off, valid=8):
    a = k.a
    a(f"s_add_u32 s{T0}, s{s_src}, {off}")
    if valid < 8:
        a(f"s_cmp_ge_u32 s{S_W}, {valid}")
        a(f"s_cselect_b32 s{T0}, 0x7f000000, s{T0}")
    a(f"buffer_load_dwordx4 {vr(SG(i),4)}, v{DLIN}, {WS}, s{T0} offen sc1")
    if vq is not None: vq.add(tag)

def qkm(a, t, d, c): a(f"{M32} {vr(d+16*t,16)}, {vr(Km+4*t,4)}, {vr(Qm,4)}, {c}")
def qkr(a, d): a(f"{M2B} {vr(d,32)}, {vr(Kr,2)}, {vr(Qr,2)}, {vr(d,32)}")
def pv(a, j): a(f"{M32} {vr(O,16)}, {vr(V+4*j,4)}, {vr(P+4*j,4)}, {vr(O,16)}")

PGA, PGV, PGR, PGD = 155, 156, 159, 164
PG_LDS = 157 * 1024
def att_stage(k, young):
    a = k.a
    o = k.o
    soft = o.get("soft", "1") == "1"
    tag = "Y" if young else "O"
    barit, barpos = [int(x) for x in o.get("abar" + tag, "0.6" if young else "1.2").split(".")]
    pA = int(o.get("pA" + tag, o.get("pA", 4))); pC = int(o.get("pC" + tag, o.get("pC", 20)))
    plo = int(o.get("plo", 7)); ntouch = int(o.get("ntouch", 2))
    lq = LQ(a)
    def exps(b, n0, n):
        for i in range(n0, n0 + n): a(f"v_exp_f32 v{b+i}, v{b+i}")
    def cvts(b, n0, n):
        for i in range(n0, n0 + n): a(f"v_cvt_pk_bf16_f32 v{P+i}, v{b+2*i}, v{b+2*i+1}")
    def rdV(js, it):
        a(f"s_mov_b64 exec, s[{sVM}:{sVM+1}]")
        for j in js:
            a(f"ds_read_b128 {vr(V+4*j,4)}, v{AV} offset:{12288+(4*it+j)*640}"); lq.add(("V", j))
        a("s_mov_b64 exec, -1")
    for it in range(4):
        cur, nx = (S0, S1) if it % 2 == 0 else (S1, S0)
        i2 = (it + 2) % 4
        npos = [0]
        def mark():
            p = it * 11 + npos[0]
            if soft:
                if p == pA:
                    a(f"v_add_u32 v{PGV}, 1, v{PGV}")
                    a(f"s_waitcnt vmcnt({3 + ntouch})")
                    a(f"ds_write_b32 v{PGA}, v{PGV}"); lq.add("a")
                if p == pC - int(o.get("pR", 2)):
                    a(f"ds_read_b32 v{PGD}, v{PGR}"); lq.add("g")
                if p == pC:
                    lq.wait("g")
                    Lw, Lb = a.newlabel("late"), a.newlabel("go")
                    a(f"v_cmp_lt_u32 vcc, v{PGD}, v{PGV}")
                    a(f"s_cbranch_vccnz {Lw}")
                    a.label(Lb)
                    k._late.append((Lw, Lb))
                    if o.get("its") == "2": k.stamp_dyn(54, sST)
                g = p - pC; d0 = 1; dd = int(o.get("dd", 2))
            else:
                g = p - (barit * 11 + barpos)
                if g == 0:
                    a("s_waitcnt vmcnt(0)")
                    a("s_barrier")
                    if o.get("its") == "2": k.stamp_dyn(54, sST)
                d0 = int(o.get("d" + tag, 5 if young else 1)); dd = int(o.get("dd", 3))
            if g == d0 - 1:
                a(f"s_call_b64 s[{sRET}:{sRET+1}], L_att_side")
            if g in [d0 + (5 + 2 * i) * dd for i in range(ntouch)]: touch_piece(k); k._n += 1
            for i in range(3):
                if g == d0 + (1 + i) * dd: kv_piece(k, i); k._n += 1
            for i in range(3):
                if g == d0 + (4 + 2 * i) * dd: wo_piece(k); k._n += 1
            if young and npos[0] == 0: a("s_setprio 1")
            if young and npos[0] == plo: a("s_setprio 0")
            npos[0] += 1
        if it == 2:
            a(f"v_add_u32 v{AK}, s{sKD}, v{AK}")
            a(f"v_add_u32 v{AKR}, s{sKD}, v{AKR}")
        mark()
        a("s_waitcnt lgkmcnt(0)"); lq.q = []
        qkm(a, 0, nx, vr(NEG, 16)); exps(cur, 0, 4); mark()
        pv(a, 3); rdV([0, 1, 2, 3], it); exps(cur, 4, 4); mark()
        qkm(a, 1, nx, vr(NEG, 16))
        a(f"ds_read_b128 {vr(Km,4)}, v{AK} offset:{2048*i2}"); lq.add("K")
        cvts(cur, 0, 4); mark()
        exps(cur, 8, 4)
        a(f"ds_read_b128 {vr(Km+4,4)}, v{AK} offset:{2048*i2+1024}"); lq.add("K")
        mark()
        lq.wait(("V", 0))
        pv(a, 0); exps(cur, 12, 4); cvts(cur, 4, 2); mark()
        qkr(a, nx); cvts(cur, 6, 2)
        a(f"ds_read_b64 {vr(Kr,2)}, v{AKR} offset:{8192+1024*i2}"); lq.add("K")
        exps(cur, 16, 4); mark()
        exps(cur, 20, 4); cvts(cur, 8, 2); mark()
        lq.wait(("V", 1))
        pv(a, 1); cvts(cur, 10, 2); exps(cur, 24, 2); mark()
        exps(cur, 26, 3); mark()
        lq.wait(("V", 2))
        pv(a, 2); exps(cur, 29, 3); mark()
        cvts(cur, 12, 4)
        if it == 3:
            a(f"v_add_u32 v{AV}, s{sKD}, v{AV}")
            a(f"s_add_u32 s{sST}, s{sST}, 1")
            a(f"s_add_u32 s{sDS}, s{sDS}, s{sD2}")
            a(f"s_mov_b32 s{T0}, s{sKD}")
            a(f"s_mov_b32 s{sKD}, s{sD1}")
            a(f"s_mov_b32 s{sD1}, s{sD2}")
            a(f"s_mov_b32 s{sD2}, s{T0}")

def att_late(k):
    a = k.a
    for Lw, Lb in k._late:
        a.label(Lw)
        a(f"s_mov_b32 s{S_SPIN}, 0")
        L = a.newlabel("lsp")
        a.label(L)
        a(f"ds_read_b32 v{PGD}, v{PGR}")
        a(f"s_add_u32 s{S_SPIN}, s{S_SPIN}, 1")
        a(f"s_cmp_ge_u32 s{S_SPIN}, {SPIN_MAX * 16}")
        a(f"s_cbranch_scc1 {Lb}")
        a("s_waitcnt lgkmcnt(0)")
        a(f"v_cmp_lt_u32 vcc, v{PGD}, v{PGV}")
        a(f"s_cbranch_vccnz {L}")
        a(f"s_branch {Lb}")

def att_side(k):
    a = k.a
    a.label("L_att_side")
    a(f"s_bitcmp1_b32 s{sST}, 2")
    a("s_cbranch_scc1 L_as_hi")
    a(f"s_cmp_lt_u32 s{sST}, 1")
    a("s_cbranch_scc1 L_as_0")
    a(f"s_cmp_lt_u32 s{sST}, 2")
    a("s_cbranch_scc1 L_as_1")
    a(f"s_cmp_lt_u32 s{sST}, 3")
    a("s_cbranch_scc1 L_as_2")
    a(f"s_mov_b32 s{T0}, {FL_R}")
    a(f"buffer_load_dwordx4 v[{PL}:{PL+3}], v{DLIN}, {WS}, s{T0} offen sc1")
    a(f"buffer_load_dwordx4 v[{PL+4}:{PL+7}], v{DLIN}, {WS}, s{T0} offen offset:1024 sc1")
    a(f"s_setpc_b64 s[{sRET}:{sRET+1}]")
    a.label("L_as_2")
    a(f"s_lshl_b32 s{T0}, s{S_G}, 3")
    a(f"s_add_u32 s{T0}, s{T0}, {FL_R}")
    k.flag_store(T0, PL)
    a(f"s_setpc_b64 s[{sRET}:{sRET+1}]")
    a.label("L_as_0")
    k.relayout_issue()
    a(f"s_setpc_b64 s[{sRET}:{sRET+1}]")
    a.label("L_as_1")
    k.relayout_finish()
    a("s_nop 1")
    a(f"s_setpc_b64 s[{sRET}:{sRET+1}]")
    a.label("L_as_hi")
    a(f"s_cmp_eq_u32 s{sST}, 7")
    a("s_cbranch_scc1 L_as_7")
    a(f"s_cmp_eq_u32 s{sST}, 6")
    a("s_cbranch_scc1 L_as_6")
    a(f"s_cmp_eq_u32 s{sST}, 5")
    a("s_cbranch_scc1 L_as_5")
    N = f"s[{S_NONCE}:{S_NONCE+1}]"
    a(f"v_cmp_ne_u64 vcc, {N}, v[{PL}:{PL+1}]")
    a(f"v_cmp_ne_u64 s[{S_M1}:{S_M1+1}], {N}, v[{PL+2}:{PL+3}]")
    a(f"s_and_b32 s{T1}, s{S_J}, 7")
    a(f"s_or_b64 s[{T4}:{T5}], vcc, s[{S_M1}:{S_M1+1}]")
    a(f"v_cmp_ne_u64 vcc, {N}, v[{PL+4}:{PL+5}]")
    a(f"v_cmp_ne_u64 s[{S_M1}:{S_M1+1}], {N}, v[{PL+6}:{PL+7}]")
    a(f"s_add_u32 s{sWOl}, s{sW10}, {WO_LDS}")
    a(f"s_lshl_b32 s{T2}, s{S_J}, 3")
    a(f"s_add_u32 s{T2}, s{T2}, s{S_W}")
    a(f"s_mul_i32 s{sTA}, s{T2}, 8640")
    a(f"s_add_u32 s{sTA}, s{sTA}, {WS_W2}")
    a(f"s_and_b32 s{T2}, s{S_J}, 15")
    a(f"s_mul_i32 s{sW1}, s{T2}, {20*7168}")
    a(f"s_add_u32 s{sW1}, s{sW1}, s{sW10}")
    a(f"s_add_u32 s{sW1}, s{sW1}, {WS_W1}")
    a(f"s_or_b64 s[{T4}:{T5}], s[{T4}:{T5}], vcc")
    a(f"s_or_b64 s[{T4}:{T5}], s[{T4}:{T5}], s[{S_M1}:{S_M1+1}]")
    a("s_cbranch_scc0 L_as_ret")
    a(f"s_mov_b32 s{T3}, {FL_R}")
    k.diag("fr")
    k.poll(256, T3, 8, PL, only_wave0=False)
    a.label("L_as_ret")
    grp = ((0, 4), (4, 9), (9, 14), (14, 18))
    for st in range(4, 8):
        if st > 4: a.label(f"L_as_{st}")
        if st == 6:
            for r in (sK0, sK1, sK2): a(f"s_mov_b32 s{r}, 0x7f000000")
        for i in range(*grp[st - 4]): stage_load(k, None, None, i, sW1, 8192 * i, 4 if i == 17 else 8)
        a(f"s_setpc_b64 s[{sRET}:{sRET+1}]")

def resid_x(k):
    a = k.a
    a(f"s_lshr_b32 s{T0}, s{S_J}, 3")
    a(f"s_lshl_b32 s{T1}, s{S_C}, 2")
    a(f"s_add_u32 s{T0}, s{T0}, s{T1}")
    a(f"s_lshl_b32 s{T0}, s{T0}, 2")
    a(f"s_and_b32 s{T1}, s{S_W}, 3")
    a(f"s_add_u32 s{T0}, s{T0}, s{T1}")
    a(f"s_mul_i32 s{T0}, s{T0}, {16*1280}")
    a(f"s_and_b32 s{T1}, s{S_J}, 7")
    a(f"s_mul_i32 s{T1}, s{T1}, 160")
    a(f"s_add_u32 s{T0}, s{T0}, s{T1}")
    a(f"s_lshr_b32 s{T1}, s{S_W}, 2")
    a(f"s_lshl_b32 s{T1}, s{T1}, 6")
    a(f"s_add_u32 s{T1}, s{T1}, s{T0}")
    a(f"v_lshrrev_b32 v{TM}, 2, v0")
    a(f"v_mul_u32_u24 v{TM}, 1280, v{TM}")
    a(f"v_and_b32 v{TM+1}, 3, v0")
    a(f"v_lshl_add_u32 v{TM}, v{TM+1}, 3, v{TM}")
    a(f"buffer_load_dwordx2 v[{XR}:{XR+1}], v{TM}, s[{SRD_X}:{SRD_X+3}], s{T1} offen")
    a(f"buffer_load_dwordx2 v[{XR+2}:{XR+3}], v{TM}, s[{SRD_X}:{SRD_X+3}], s{T1} offen offset:32")
    a(f"buffer_load_dwordx2 v[{XR+4}:{XR+5}], v{TM}, s[{SRD_X}:{SRD_X+3}], s{T0} offen offset:128")

def rowmax(a, b, n, dst, t):
    a(f"v_max3_f32 v{dst}, v{b}, v{b+1}, v{dst}")
    for i in range(2, n, 2): a(f"v_max3_f32 v{dst}, v{b+i}, v{b+i+1}, v{dst}")

def set_neg(a, m, t):
    a(f"v_mov_b32 v{t}, v{m}")
    a("s_nop 1")
    a(f"v_permlane32_swap_b32 v{m}, v{t}")
    a("s_nop 0")
    a(f"v_max_f32 v{m}, v{m}, v{t}")
    for r in range(16): a(f"v_sub_f32 v{NEG+r}, 0, v{m}")

def att_fallback(k):
    a = k.a
    FT = S1
    a.label("L_att_fb")
    sI, sA, sB, sC = T0, T1, T2, T3
    def init():
        a(f"s_lshl_b32 s{sA}, s{sH}, 16")
        a(f"s_add_u32 s{sA}, s{sA}, {WS_K}")
        a(f"s_lshr_b32 s{sB}, s{sH}, 1")
        a(f"s_lshl_b32 s{sB}, s{sB}, 15")
        a(f"s_add_u32 s{sB}, s{sB}, {WS_K + 64*32768}")
        a(f"s_mul_i32 s{sC}, s{sH}, 81920")
        a(f"s_add_u32 s{sC}, s{sC}, {WS_V}")
        a(f"s_mov_b32 s{sI}, 0")
    def ldk():
        a(f"buffer_load_dwordx4 {vr(Km,4)}, v{DKM}, {WS}, s{sA} offen sc1")
        a(f"buffer_load_dwordx4 {vr(Km+4,4)}, v{DKM}, {WS}, s{sA} offen offset:512 sc1")
        a(f"buffer_load_dwordx2 {vr(Kr,2)}, v{FT+1}, {WS}, s{sB} offen sc1")
    def step():
        a(f"s_add_u32 s{sA}, s{sA}, 1024")
        a(f"s_add_u32 s{sB}, s{sB}, 1024")
        a(f"s_add_u32 s{sC}, s{sC}, 2560")
        a(f"s_add_u32 s{sI}, s{sI}, 1")
        a(f"s_cmp_lt_u32 s{sI}, 32")
    a(f"s_and_b32 s{T0}, s{sH}, 1")
    a(f"s_lshl_b32 s{T0}, s{T0}, 3")
    a(f"v_add_u32 v{FT+1}, s{T0}, v{DLIN}")
    a(f"v_lshrrev_b32 v{FT+2}, 5, v0")
    a(f"v_mul_u32_u24 v{FT+2}, 20, v{FT+2}")
    a(f"v_and_b32 v{FT+3}, 31, v0")
    a(f"v_add_lshl_u32 v{FT+2}, v{FT+2}, v{FT+3}, 4")
    a(f"v_mov_b32 v{FT}, 0xff800000")
    init()
    a.label("L_fb_max")
    ldk()
    a("s_waitcnt vmcnt(0)")
    qkm(a, 0, S0, "0"); qkm(a, 1, S0, "0")
    a("s_nop 9")
    qkr(a, S0)
    a("s_nop 15"); a("s_nop 3")
    rowmax(a, S0, 32, FT, FT + 4)
    step()
    a("s_cbranch_scc1 L_fb_max")
    set_neg(a, FT, FT + 4)
    for r in range(16): a(f"v_mov_b32 v{O+r}, 0")
    init()
    a.label("L_fb_acc")
    ldk()
    a(f"s_mov_b64 exec, s[{sVM}:{sVM+1}]")
    for j in range(4): a(f"buffer_load_dwordx4 {vr(V+4*j,4)}, v{FT+2}, {WS}, s{sC} offen offset:{640*j} sc1")
    a("s_mov_b64 exec, -1")
    a("s_waitcnt vmcnt(0)")
    qkm(a, 0, S0, vr(NEG, 16)); qkm(a, 1, S0, vr(NEG, 16))
    a("s_nop 9")
    qkr(a, S0)
    a("s_nop 15"); a("s_nop 3")
    for i in range(32): a(f"v_exp_f32 v{S0+i}, v{S0+i}")
    a("s_nop 0")
    for i in range(16): a(f"v_cvt_pk_bf16_f32 v{P+i}, v{S0+2*i}, v{S0+2*i+1}")
    a("s_nop 1")
    for j in range(4): pv(a, j)
    step()
    a("s_cbranch_scc1 L_fb_acc")
    a("s_nop 11")
    a("s_branch L_att_norm")

def phase2(k):
    a = k.a
    a.c("================ phase 2: attention")
    a(f"s_lshl_b32 s{sH}, s{S_C}, 2")
    a(f"s_lshr_b32 s{T0}, s{S_J}, 3")
    a(f"s_add_u32 s{sH}, s{sH}, s{T0}")
    a(f"s_and_b32 s{sQB}, s{S_J}, 7")
    a(f"v_lshlrev_b32 v{DLIN}, 4, v0")
    a("v_lshrrev_b32 v1, 5, v0")
    a("v_and_b32 v2, 31, v0")
    a("v_lshlrev_b32 v3, 15, v1")
    a(f"v_lshl_add_u32 v{DKM}, v2, 4, v3")
    a(f"v_mov_b32 v{AK}, v{DLIN}")
    a(f"s_and_b32 s{T0}, s{sH}, 1")
    a(f"s_lshl_b32 s{T0}, s{T0}, 3")
    a(f"v_add_u32 v{AKR}, s{T0}, v{DLIN}")
    a("v_mul_u32_u24 v3, 20, v1")
    a(f"v_add_lshl_u32 v{AV}, v3, v2, 4")
    a(f"v_lshl_add_u32 v10, v2, 4, s{T0}")
    if k.o.get("dry", "0") == "1":
        a(f"s_cmp_lg_u32 s{S_W}, 7")
        a("s_cbranch_scc1 L_nodry")
        a(f"s_mov_b32 s{sW1}, 0x7f000000")
        for st in (3, 5, 6, 7):
            a(f"s_mov_b32 s{sST}, {st}")
            if st == 3: continue
            a(f"s_call_b64 s[{sRET}:{sRET+1}], L_att_side")
        a.label("L_nodry")
    a(f"s_lshl_b32 s{T0}, s{S_W}, 2")
    a(f"s_add_u32 s{T0}, s{T0}, {PG_LDS}")
    a(f"v_mov_b32 v{PGA}, s{T0}")
    a(f"v_mov_b32 v{PGV}, 0")
    a(f"v_and_b32 v{PGR}, 7, v0")
    a(f"v_lshlrev_b32 v{PGR}, 2, v{PGR}")
    a(f"v_add_u32 v{PGR}, {PG_LDS}, v{PGR}")
    a(f"ds_write_b32 v{PGA}, v{PGV}")
    k._late = []; k._n = 0
    a(f"s_mov_b32 s{sVM}, 0x000fffff")
    a(f"s_mov_b32 s{sVM+1}, 0x000fffff")
    a(f"s_lshl_b32 s{sK0}, s{sH}, 16")
    a(f"s_lshl_b32 s{T0}, s{S_W}, 9")
    a(f"s_add_u32 s{sK0}, s{sK0}, s{T0}")
    a(f"s_add_u32 s{sK0}, s{sK0}, {WS_K - 4096}")
    a(f"s_lshl_b32 s{T0}, s{S_W}, 10")
    a(f"s_mul_i32 s{sK2}, s{sH}, 81920")
    a(f"s_add_u32 s{sK2}, s{sK2}, s{T0}")
    a(f"s_add_u32 s{T1}, s{sK2}, {WS_V - 4096 - 10240}")
    a(f"s_cmp_ge_u32 s{S_W}, 6")
    a(f"s_cselect_b32 s{T2}, 2048, 0")
    a(f"s_sub_u32 s{sK2}, s{sK2}, s{T2}")
    a(f"s_add_u32 s{sK2}, s{sK2}, {WS_V + 4096 - 10240}")
    a(f"s_sub_u32 s{sL2}, s{T0}, s{T2}")
    a(f"s_add_u32 s{sL2}, s{sL2}, 16384")
    a(f"s_add_u32 s{sL1}, s{T0}, 8192")
    a(f"s_lshr_b32 s{T2}, s{sH}, 1")
    a(f"s_lshl_b32 s{T2}, s{T2}, 15")
    a(f"s_add_u32 s{sK1}, s{T2}, s{T0}")
    a(f"s_add_u32 s{sK1}, s{sK1}, {WS_K + 64*32768 - 4096}")
    a(f"s_mov_b32 s{sS1}, 10240")
    a(f"s_cmp_lt_u32 s{S_W}, 4")
    a(f"s_cselect_b32 s{sK1}, s{sK1}, s{T1}")
    a(f"s_cselect_b32 s{sS1}, 4096, s{sS1}")
    a(f"s_mov_b32 s{sDS}, 0")
    a(f"s_mov_b32 s{sST}, 0")
    a(f"s_mov_b32 s{sKD}, {SLOT}")
    a(f"s_mov_b32 s{sD1}, {SLOT}")
    a(f"s_mov_b32 s{sD2}, {-2*SLOT & 0xffffffff}")
    a(f"s_mov_b32 s{sW10}, s{T0}")
    a(f"s_mov_b32 s{sWOl}, 0x40000000")
    a(f"s_mov_b32 s{sTA}, 0x7f000000")
    a(f"s_and_b32 s{T1}, s{S_J}, 7")
    a(f"s_mul_i32 s{sSD}, s{T1}, {20*5120}")
    a(f"s_add_u32 s{sSD}, s{sSD}, {WS_WO}")
    a(f"s_sub_u32 s{T1}, s{sSD}, {WO_LDS}")
    a(f"s_add_u32 s{SRD_WQ}, s{SRD_WS}, s{T1}")
    a(f"s_addc_u32 s{SRD_WQ+1}, s{SRD_WS+1}, 0")
    a(f"s_mov_b32 s{SRD_WQ+2}, {WO_LDS + 90*1024}")
    a(f"s_lshl_b32 s{T0}, s{sQB}, 3")
    a(f"s_add_u32 s{T0}, s{T0}, s{S_W}")
    a(f"s_lshl_b32 s{T0}, s{T0}, 9")
    a(f"s_add_u32 s{T2}, s{T2}, s{T0}")
    a(f"s_add_u32 s80, s{T2}, {WS_Q + 64*32768}")
    a(f"s_lshl_b32 s{T3}, s{sH}, 16")
    a(f"s_add_u32 s{T3}, s{T3}, s{T0}")
    a(f"s_add_u32 s81, s{T3}, {WS_Q}")
    a("v_cmp_eq_u32 vcc, 20, v2")
    a("v_mov_b32 v3, 0x3f803f80")
    a("s_nop 0")
    a("v_cndmask_b32 v3, 0, v3, vcc")
    for r in range(16): a(f"v_mov_b32 v{V+r}, v3")
    for r in range(16): a(f"v_mov_b32 v{O+r}, 0")
    for r in range(12, 16): a(f"v_mov_b32 v{P+r}, 0")
    a(f"s_mul_i32 s{T0}, s{sH}, 20")
    a(f"s_add_u32 s{T1}, s{T0}, 19")
    a(f"s_lshr_b32 s{T0}, s{T0}, 7")
    a(f"s_lshr_b32 s{T1}, s{T1}, 7")
    a(f"s_sub_u32 s{T1}, s{T1}, s{T0}")
    a(f"s_lshl_b32 s{T1}, s{T1}, 4")
    a(f"v_and_b32 v{PL+4}, s{T1}, v0")
    a(f"v_and_b32 v{PL+5}, 15, v0")
    a(f"v_add_u32 v{PL+5}, v{PL+5}, v{PL+4}")
    a(f"v_mul_u32_u24 v{PL+6}, 0x50, v1")
    a(f"v_add3_u32 v{PL+5}, v{PL+5}, v{PL+6}, 64")
    a(f"v_add_u32 v{PL+5}, 16, v{PL+5}")
    a(f"v_lshlrev_b32 v{PL+5}, 7, v{PL+5}")
    a(f"s_lshl_b32 s{T2}, s{sQB}, 1")
    a(f"v_and_b32 v{PL+6}, 1, v0")
    a(f"v_add3_u32 v{PL+4}, v{PL+4}, v{PL+6}, s{T2}")
    a(f"v_lshlrev_b32 v{PL+4}, 7, v{PL+4}")
    a(f"s_lshl_b32 s{T0}, s{T0}, 11")
    a(f"s_add_u32 s{T3}, s{T0}, {FL_1}")
    k.poll2(PL + 5, PL + 4, T3, PL)
    a("s_waitcnt lgkmcnt(0)")
    a("s_barrier")
    k.stamp(8)
    a(f"buffer_load_dwordx4 {vr(Qm,4)}, v{DKM}, {WS}, s81 offen sc1")
    a(f"buffer_load_dwordx2 {vr(Qr,2)}, v10, {WS}, s80 offen sc1")
    for i in range(3): kv_piece(k, i)
    a(f"s_mov_b32 s{sDS}, {SLOT}")
    a("s_waitcnt vmcnt(0)")
    for i in range(3): kv_piece(k, i)
    a(f"s_mov_b32 s{sDS}, {2*SLOT}")
    a("s_barrier")
    k.hold("fix9")
    k.stamp(9)
    def rdk(i):
        a(f"ds_read_b128 {vr(Km,4)}, v{AK} offset:{2048*i}")
        a(f"ds_read_b128 {vr(Km+4,4)}, v{AK} offset:{2048*i+1024}")
        a(f"ds_read_b64 {vr(Kr,2)}, v{AKR} offset:{8192+1024*i}")
    rdk(0)
    a(f"v_mov_b32 v{PL}, 0xff800000")
    a("s_waitcnt lgkmcnt(0)")
    qkm(a, 0, S0, "0"); qkm(a, 1, S0, "0")
    a("s_nop 9")
    qkr(a, S0)
    rdk(1)
    if k.o.get("soft", "1") == "1":
        for i in range(3): wo_piece(k)
        for i in range(int(k.o.get("ntouch", 2))): touch_piece(k)
    a("s_nop 3")
    rowmax(a, S0, 32, PL, PL + 4)
    set_neg(a, PL, PL + 4)
    for r in range(32): a(f"v_sub_f32 v{S0+r}, v{S0+r}, v{PL}")
    a(f"s_cmp_ge_u32 s{S_W}, 4")
    a("s_cbranch_scc1 L_att_young")
    for young in (0, 1):
        L = "L_att_young" if young else "L_att_old"
        a.align(6)
        a.label(L)
        att_stage(k, young)
        a(f"s_cmp_lt_u32 s{sST}, 8")
        a(f"s_cbranch_scc1 {L}")
        if not young: a("s_branch L_att_done")
    a("s_setprio 0")
    a.label("L_att_done")
    a("s_waitcnt lgkmcnt(3)")
    pv(a, 3)
    k.stamp(10)
    a(f"s_lshl_b32 s{T0}, s{sQB}, 4")
    a(f"s_lshl_b32 s{T1}, s{S_W}, 1")
    a(f"s_add_u32 s{T0}, s{T0}, s{T1}")
    a(f"s_mul_i32 s{T0}, s{T0}, 20480")
    a(f"s_add_u32 s{T0}, s{T0}, {WS_O}")
    a(f"s_lshl_b32 s{T1}, s{sH}, 9")
    a(f"s_add_u32 s80, s{T0}, s{T1}")
    a(f"s_lshr_b32 s{T1}, s{sH}, 4")
    a(f"s_lshl_b32 s{T2}, s{T1}, 11")
    a(f"s_add_u32 s80, s80, s{T2}")
    a(f"s_lshl_b32 s{T1}, s{T1}, 13")
    a(f"s_add_u32 s{T0}, s{T0}, s{T1}")
    a(f"s_lshr_b32 s{T1}, s{sH}, 3")
    a(f"s_lshl_b32 s{T1}, s{T1}, 10")
    a(f"s_add_u32 s{T0}, s{T0}, s{T1}")
    a(f"s_bfe_u32 s{T1}, s{sH}, 0x20001")
    a(f"s_lshl_b32 s{T1}, s{T1}, 7")
    a(f"s_add_u32 s{T0}, s{T0}, s{T1}")
    a(f"s_and_b32 s{T1}, s{sH}, 1")
    a(f"s_lshl_b32 s{T1}, s{T1}, 9")
    a(f"s_add_u32 s{T0}, s{T0}, s{T1}")
    a(f"s_add_u32 s81, s{T0}, 8192")
    a("s_waitcnt lgkmcnt(0)")
    a(f"v_add_f32 v1, abs(v{O}), abs(v{O+1})")
    a(f"v_add_f32 v3, abs(v{O+2}), abs(v{O+3})")
    for r in range(4, 12, 2):
        a(f"v_add_f32 v1, abs(v{O+r}), v1")
        a(f"v_add_f32 v3, abs(v{O+r+1}), v3")
    a(f"v_mov_b32 v2, 0x{f2u(2.0**40):08x}")
    a("v_add_f32 v1, v1, v3")
    a("v_mov_b32 v3, 0x203")
    a(f"v_cmp_nle_f32 vcc, v{O+8}, v2")
    a(f"v_cmp_class_f32 s[{S_M1}:{S_M1+1}], v1, v3")
    a("s_and_b32 vcc_lo, vcc_lo, 0")
    a(f"s_or_b64 vcc, vcc, s[{S_M1}:{S_M1+1}]")
    a("s_cbranch_scc1 L_att_fb")
    a.label("L_att_norm")
    a(f"v_mov_b32 v1, v{O+8}")
    a(f"v_mov_b32 v2, v{O+8}")
    a("v_bfe_u32 v3, v0, 4, 1")
    a("v_mul_u32_u24 v3, 20480, v3")
    a("v_permlane32_swap_b32 v1, v2")
    a("s_nop 0")
    a("v_rcp_f32 v2, v2")
    a("v_and_b32 v10, 15, v0")
    a("v_lshl_add_u32 v11, v10, 4, v3")
    a("v_lshl_add_u32 v3, v10, 3, v3")
    a("v_lshrrev_b32 v10, 5, v0")
    a("v_lshl_add_u32 v10, v10, 8, v11")
    for r in range(12): a(f"v_mul_f32 v{O+r}, v2, v{O+r}")
    for r in range(6): a(f"v_cvt_pk_bf16_f32 v{P+r}, v{O+2*r}, v{O+2*r+1}")
    a(f"buffer_store_dwordx4 {vr(P,4)}, v10, {WS}, s80 offen sc1")
    a("s_mov_b64 exec, 0xffffffff")
    a(f"buffer_store_dwordx2 {vr(P+4,2)}, v3, {WS}, s81 offen sc1")
    a("s_mov_b64 exec, -1")
    a("s_branch L_att_end")
    assert k._n == 2 * (6 + int(k.o.get("ntouch", 2))), k._n
    att_side(k)
    att_late(k)
    att_fallback(k)
    a.label("L_att_end")
    if k.stop == 2:
        a("s_waitcnt vmcnt(0)")
        k.stamp(11)


class VQ:
    def __init__(self, a): self.a = a; self.q = []
    def add(self, tag): self.q.append(tag)
    def wait(self, tag):
        if tag not in self.q: return
        i = len(self.q) - 1 - self.q[::-1].index(tag)
        n = len(self.q) - 1 - i
        self.a(f"s_waitcnt vmcnt({n})")
        self.q = self.q[i + 1:]

def dma_ops(k, vq, tag, first, last, s_src, s_lds, lds0, nw=8):
    a = k.a
    def one(i):
        def f():
            a(f"s_add_u32 m0, s{s_lds}, {lds0 + nw * i * 1024}")
            a(f"s_add_u32 s{T0}, s{s_src}, {(first + nw * i) * 1024}")
            if first + nw * i + nw > last:
                a(f"s_cmp_ge_u32 s{S_W}, {last - first - nw*i + (1 if nw == 7 else 0)}")
                a(f"s_cselect_b32 m0, {k.DUMMY}, m0")
                a(f"s_cselect_b32 s{T0}, 0x7f000000, s{T0}")
            k.dma(DLIN, SRD_WS, f"s{T0}", "sc1")
            if vq is not None: vq.add(tag)
        return f
    return [one(i) for i in range((last - first + nw - 1) // nw)]

DL8 = 197
RA = 8
AF = 4
ST = 36
ACC = 44
BA = 72
XW, XRD = 78, 79
TM = 80
WB = 88
CSV = 148
SW = 1
TL = 252
HR = 198
sRG, sKH, sN8, sRB64, sA, sB = 64, 65, 66, 67, 68, 69
sW7 = 72
CS_LDS = 158 * 1024

def a_op(k, vq, j, ks, s_base, split):
    a = k.a
    reg = AF + 4 * (j % RA)
    pol = k.o.get("apol", "sc1")
    def f():
        if k.o.get("noa"): return
        a(f"s_add_u32 s{T0}, s{s_base}, {1024*ks}")
        if split:
            a(f"buffer_load_dwordx2 {vr(reg,2)}, v{DL8}, {WS}, s{T0} offen sc1")
            a(f"buffer_load_dwordx2 {vr(reg+2,2)}, v{DL8}, {WS}, s{T0} offen offset:512 sc1")
            vq.add(("a", j))
        else:
            a(f"buffer_load_dwordx4 {vr(reg,4)}, v{DLIN}, {WS}, s{T0} offen {pol}")
        vq.add(("A", j))
    return f

def coop_touch(k, vq, s_base, s_idx, stride, n):
    a = k.a
    if not k.o.get("coop"): return
    a(f"s_lshl_b32 s{T1}, s{s_idx}, 10")
    a(f"s_add_u32 s{T1}, s{T1}, s{s_base}")
    for i in range((n + stride - 1) // stride):
        a(f"s_add_u32 s{T0}, s{T1}, {1024*stride*i}")
        if stride * i + stride > n:
            a(f"s_cmp_ge_u32 s{s_idx}, {n - stride*i}")
            a(f"s_cselect_b32 s{T0}, s{T1}, s{T0}")
        a(f"buffer_load_dwordx4 {vr(TM+4,4)}, v{DLIN}, {WS}, s{T0} offen sc1")
        vq.add("t")

class LQ(VQ):
    def wait(self, tag):
        if tag not in self.q: return
        i = len(self.q) - 1 - self.q[::-1].index(tag)
        self.a(f"s_waitcnt lgkmcnt({min(15, len(self.q) - 1 - i)})")
        self.q = self.q[i + 1:]

def stage_write(k, lq, i, lds, tail=None):
    a = k.a
    if tail is not None: a(f"ds_write_b128 v{tail}, {vr(SG(i),4)}")
    else: a(f"ds_write_b128 v{SW + lds // 65536}, {vr(SG(i),4)} offset:{lds % 65536}")
    if lq is not None: lq.add("w")

def mm_steps(k, vq, n, nt, addr, extra, pre_hook=None):
    a = k.a
    NB = 3
    lq = k.lq = LQ(a)
    def rd(j, t):
        r, off = addr(j, t)
        a(f"ds_read_b128 {vr(WB + (j % NB) * 4 * nt + 4 * t, 4)}, v{r} offset:{off}")
        lq.add(("r", j))
    for j in range(2):
        for t in range(nt): rd(j, t)
    for j in range(n):
        b = WB + (j % NB) * 4 * nt
        ops = list(extra.get(j, []))
        slots = {}
        for i, f in enumerate(ops): slots.setdefault(1 + (i * (nt - 1)) // max(1, len(ops)), []).append(f)
        if pre_hook and j + 2 < n: pre_hook(j + 2)
        vq.wait(("A", j))
        lq.wait(("r", j))
        for t in range(nt):
            c = "0" if j == 0 else vr(ACC + 4 * t, 4)
            a(f"{M16} {vr(ACC+4*t,4)}, {vr(b+4*t,4)}, {vr(AF+4*(j%RA),4)}, {c}")
            if j + 2 < n: rd(j + 2, t)
            for f in slots.get(t, []): f()

def tile_addrs(k, base_expr_sgpr, dst):
    a = k.a
    a(f"s_lshl_b32 s{T1}, s{sKH}, 11")
    a(f"v_add_u32 v{dst+2}, s{base_expr_sgpr}, v{DLIN}")
    a(f"v_add_u32 v{dst}, s{T1}, v{dst+2}")
    a(f"v_subrev_u32 v{dst+1}, s{T1}, v{dst+2}")

def exch_addrs(k, scr):
    a = k.a
    a(f"s_mul_i32 s{T0}, s{sRG}, 5120")
    a(f"s_add_u32 s{T0}, s{T0}, {scr}")
    a(f"s_lshl_b32 s{T1}, s{sKH}, 11")
    a(f"s_add_u32 s{T2}, s{T0}, s{T1}")
    a(f"v_add_u32 v{XW}, s{T2}, v{DLIN}")
    a(f"s_sub_u32 s{T2}, s{T0}, s{T1}")
    a(f"s_add_u32 s{T2}, s{T2}, 2048")
    a(f"v_add_u32 v{XRD}, s{T2}, v{DLIN}")

def reduce_halves(k, resid, pad):
    a = k.a
    if pad: a(f"s_nop {pad-1}")
    a(f"ds_write_b128 v{XW}, {vr(ACC+8,4)}")
    a(f"ds_write_b128 v{XW}, {vr(ACC+12,4)} offset:1024")
    L = a.newlabel("rh")
    a(f"s_cmp_eq_u32 s{sKH}, 0")
    a(f"s_cbranch_scc1 {L}")
    a(f"ds_write_b128 v{XW}, {vr(ACC+16,4)} offset:2048")
    a.label(L)
    a("s_waitcnt lgkmcnt(2)")
    for i, t in enumerate((0, 1, 4)):
        for h in range(2):
            a(f"v_lshlrev_b32 v{TM+2}, 16, v{resid+2*i+h}")
            a(f"v_and_b32 v{TM+3}, 0xffff0000, v{resid+2*i+h}")
            a(f"v_add_f32 v{ACC+4*t+2*h}, v{ACC+4*t+2*h}, v{TM+2}")
            a(f"v_add_f32 v{ACC+4*t+2*h+1}, v{ACC+4*t+2*h+1}, v{TM+3}")
    a("s_waitcnt lgkmcnt(0)")
    a("s_barrier")
    for i in range(3): a(f"ds_read_b128 {vr(WB+4*i,4)}, v{XRD} offset:{1024*i}")
    for i, t in enumerate((0, 1, 4)):
        a(f"s_waitcnt lgkmcnt({2-i})")
        for r in range(4): a(f"v_add_f32 v{ACC+4*t+r}, v{ACC+4*t+r}, v{WB+4*i+r}")

def row_reduce(a, r, t):
    for sw in ("16", "32"):
        a(f"v_mov_b32 v{t}, v{r}")
        a(f"v_mov_b32 v{t+1}, v{r+1}")
        a("s_nop 0")
        a(f"v_permlane{sw}_swap_b32 v{r}, v{t}")
        a(f"v_permlane{sw}_swap_b32 v{r+1}, v{t+1}")
        a("s_nop 0")
        a(f"v_add_f32 v{r}, v{r}, v{t}")
        a(f"v_add_f32 v{r+1}, v{r+1}, v{t+1}")

def fpoll(k, n):
    d = int(k.o.get("pdepth", 1))
    if d == 1: k.poll(n, T3, FSP, TM)
    else: k.pollp(n, T3, FSP, TM, ST, d)

def not_wave0(k, fn):
    a = k.a
    L = a.newlabel("nw0")
    a(f"s_cmp_eq_u32 s{S_W}, 0")
    a(f"s_cbranch_scc1 {L}")
    fn()
    a.label(L)

NS5 = 16
HALF = NS5 * 5120
OUT_PITCH = 336
OUT_HALF = HALF
OUT_LDS = 11 * 5120
sW2 = 83
def w2_load(k, vq, tag, i, batch):
    h, q = divmod(i, 9)
    stage_load(k, vq, tag, i, sW2, (135 * h + (0, 5 * NS5)[batch] + 8 * q) * 1024)
def w2_write(k, lq, i):
    h, q = divmod(i, 9)
    stage_write(k, lq, i, HALF * h + 8192 * q)

P3_SCR, P3_LAST = 35 * 1024, 56 * 1024
sTT3 = 81
def phase3(k):
    a = k.a
    a.c("================ phase 3: output projection + residual")
    a(f"s_lshl_b32 s{T0}, s{sQB}, 5")
    a(f"s_add_u32 s{T0}, s{T0}, s{sH}")
    a(f"s_mul_i32 s{T3}, s{T0}, {FSP}")
    a(f"s_add_u32 s{T3}, s{T3}, {FL_2}")
    a(f"s_and_b32 s{sRG}, s{S_W}, 3")
    a(f"s_lshr_b32 s{sKH}, s{S_W}, 2")
    a(f"s_and_b32 s{sN8}, s{S_J}, 7")
    a(f"s_lshl_b32 s{sRB64}, s{S_C}, 2")
    a(f"s_lshr_b32 s{T0}, s{S_J}, 3")
    a(f"s_add_u32 s{sRB64}, s{sRB64}, s{T0}")
    a(f"s_sub_u32 s{sW7}, s{sW10}, 1024")
    a(f"s_add_u32 s{sA}, s{sSD}, s{sW7}")
    a(f"s_mul_i32 s{sW2}, s{sN8}, {54*5120}")
    a(f"s_add_u32 s{sW2}, s{sW2}, s{sW10}")
    a(f"s_add_u32 s{sW2}, s{sW2}, {WS_W2}")
    a(f"v_lshlrev_b32 v{DL8}, 3, v0")
    a(f"v_add_u32 v{SW}, s{sW10}, v{DLIN}")
    a(f"v_add_u32 v{SW+1}, 0x10000, v{SW}")
    a(f"v_add_u32 v{SW+2}, 0x20000, v{SW}")
    a("s_waitcnt vmcnt(0)")
    a("s_barrier")
    k.stamp(11)
    k.flag_store(T3, TM)
    def early():
        for f in dma_ops(k, None, None, 90, 100, sA, sW7, P3_LAST, 7): f()
        if not k.o.get("w0a", "1") == "1": resid_x(k)
    not_wave0(k, early)
    if k.o.get("w0a", "1") == "1": resid_x(k)
    for i in range(4): stage_write(k, None, i, 8192 * i)
    a(f"s_cmp_lt_u32 s{S_W}, 6")
    a("s_cbranch_scc1 L_p3_nocs")
    a(f"s_and_b32 s{T1}, s{S_J}, 15")
    a(f"s_sub_u32 s{T0}, s{S_W}, 6")
    a(f"s_lshl_b32 s{T0}, s{T0}, 6")
    a(f"v_add_u32 v{TM+4}, s{T0}, v0")
    a(f"s_mul_i32 s{T2}, s{T1}, 96")
    a(f"v_add_u32 v{TM+5}, s{T2}, v{TM+4}")
    a(f"s_min_u32 s{T2}, s{T1}, 11")
    a(f"s_lshl_b32 s{T2}, s{T2}, 4")
    a(f"s_add_u32 s{T2}, s{T2}, 1536")
    a(f"v_and_b32 v{TM+6}, 15, v0")
    a(f"v_add_u32 v{TM+6}, s{T2}, v{TM+6}")
    a(f"v_cmp_gt_u32 vcc, 96, v{TM+4}")
    a(f"s_mov_b32 s{T2}, {WS_CS1}")
    a("s_nop 0")
    a(f"v_cndmask_b32 v{TM+5}, v{TM+6}, v{TM+5}, vcc")
    a(f"v_lshlrev_b32 v{TM+5}, 2, v{TM+5}")
    for i in range(20):
        a(f"buffer_load_dword v{CSV+i}, v{TM+5}, {WS}, s{T2} offen sc1")
        if i < 19: a(f"s_add_u32 s{T2}, s{T2}, {1728*4}")
    a.label("L_p3_nocs")
    a(f"s_mul_i32 s{T0}, s{sKH}, {45*1024}")
    a(f"s_add_u32 s{T0}, s{T0}, {WO_LDS}")
    tile_addrs(k, T0, BA)
    a(f"s_mul_i32 s{T0}, s{sKH}, 5120")
    a(f"s_add_u32 s{T0}, s{T0}, {P3_LAST}")
    tile_addrs(k, T0, BA + 3)
    exch_addrs(k, P3_SCR)
    a(f"s_lshl_b32 s{T0}, s{sRB64}, 2")
    a(f"s_add_u32 s{sTT3}, s{T0}, s{sRG}")
    a(f"s_mul_i32 s{sA}, s{sTT3}, 20480")
    a(f"s_mul_i32 s{T1}, s{sKH}, 10240")
    a(f"s_add_u32 s{sA}, s{sA}, s{T1}")
    a(f"s_add_u32 s{sA}, s{sA}, {WS_O}")
    a(f"v_and_b32 v{TM+6}, 15, v0")
    a(f"v_lshrrev_b32 v{TM+7}, 4, v0")
    a(f"v_lshl_add_u32 v{TM+7}, v{TM+6}, 2, v{TM+7}")
    a(f"v_lshlrev_b32 v{TM+7}, 2, v{TM+7}")
    a(f"s_mul_i32 s70, s{sTT3}, 20480")
    a(f"s_add_u32 s70, s70, {WS_H}")
    a(f"s_lshl_b32 s{T0}, s{sN8}, 1")
    a(f"s_add_u32 s{T0}, s{T0}, s{sKH}")
    a(f"s_lshl_b32 s71, s{T0}, 10")
    a(f"s_add_u32 s71, s71, s70")
    a(f"s_lshl_b32 s{T1}, s{sRB64}, 4")
    a(f"s_add_u32 s{T0}, s{T0}, s{T1}")
    a(f"s_lshl_b32 s{T0}, s{T0}, 9")
    a(f"s_lshl_b32 s{T1}, s{sRG}, 7")
    a(f"s_add_u32 s{T0}, s{T0}, s{T1}")
    a(f"s_add_u32 s74, s{T0}, {WS_ST}")
    a(f"s_lshr_b32 s{T0}, s{sN8}, 1")
    a(f"s_lshl_b32 s{T0}, s{T0}, 10")
    a(f"s_and_b32 s{T1}, s{sN8}, 1")
    a(f"s_lshl_b32 s{T1}, s{T1}, 9")
    a(f"s_add_u32 s{T0}, s{T0}, s{T1}")
    a(f"s_add_u32 s70, s70, s{T0}")
    a(f"s_add_u32 s70, s70, 16384")
    a(f"s_lshl_b32 s{T0}, s{sRB64}, 3")
    a(f"s_add_u32 s{T0}, s{T0}, s{sN8}")
    a(f"s_mul_i32 s75, s{T0}, {FSP}")
    a(f"s_add_u32 s75, s75, {FL_3}")
    a(f"s_mul_i32 s{T3}, s{S_C}, {32*FSP}")
    a(f"s_add_u32 s{T3}, s{T3}, {FL_2}")
    fpoll(k, 32)
    if not k.o.get("w0a", "1") == "1":
        a(f"s_cmp_lg_u32 s{S_W}, 0")
        a("s_cbranch_scc1 L_p3_rx")
        resid_x(k)
        a.label("L_p3_rx")
    a("s_waitcnt vmcnt(3) lgkmcnt(0)")
    a("s_barrier")
    k.hold("fix12")
    k.stamp(12)
    vq = VQ(a)
    aop = [a_op(k, vq, j, j, sA, j >= 8) for j in range(10)]
    D = int(k.o.get("d3", 4))
    coop_touch(k, vq, sA, sN8, 8, 10)
    for j in range(D): aop[j]()
    def addr(j, t):
        r = (BA if j < 9 else BA + 3) + (0, 0, 1, 1, 2)[t]
        return r, (j * 5120 if j < 9 else 0) + t * 1024
    extra = {j: [aop[j + D]] for j in range(10 - D)}
    def perm(r):
        def f():
            a(f"ds_bpermute_b32 v{XR+r}, v{TM+7}, v{XR+r}")
            k.lq.add("p")
        return f
    for r in range(6): extra.setdefault(6 + r // 2, []).append(perm(r))
    mm_steps(k, vq, 10, 5, addr, extra)
    k.stamp(13)
    reduce_halves(k, XR, 6)
    for i, t in enumerate((0, 1, 4)):
        for h in range(2): a(f"v_cvt_pk_bf16_f32 v{HR+2*i+h}, v{ACC+4*t+2*h}, v{ACC+4*t+2*h+1}")
        if i == 1: a(f"buffer_store_dwordx4 {vr(HR,4)}, v{DLIN}, {WS}, s71 offen sc1")
    a(f"v_mov_b32 v{TM+6}, 0x3f803f80")
    a(f"v_mov_b32 v{TM+4}, 0")
    a(f"v_mov_b32 v{TM+5}, 0")
    def acc_stats(regs):
        for r in regs:
            a(f"v_dot2_f32_bf16 v{TM+4}, v{r}, v{TM+6}, v{TM+4}")
            a(f"v_dot2_f32_bf16 v{TM+5}, v{r}, v{r}, v{TM+5}")
    a(f"s_cmp_lg_u32 s{sKH}, 0")
    a("s_cbranch_scc1 L_p3_no4")
    a(f"buffer_store_dwordx2 {vr(HR+4,2)}, v{DL8}, {WS}, s70 offen sc1")
    acc_stats(range(HR + 4, HR + 6))
    a.label("L_p3_no4")
    acc_stats(range(HR, HR + 4))
    a("s_nop 1")
    row_reduce(a, TM + 4, TM + 6)
    a("s_mov_b64 exec, 0xffff")
    a(f"buffer_store_dwordx2 {vr(TM+4,2)}, v{DL8}, {WS}, s74 offen sc1")
    a("s_mov_b64 exec, -1")
    for i in range(4): w2_load(k, None, None, i, 0)
    NW3 = int(k.o.get("nw3", 8))
    for i in range(7, 7 + NW3): stage_write(k, None, i, 8192 * i)
    a("s_waitcnt vmcnt(4)")
    a("s_barrier")
    k.stamp(14)
    k.flag_store(75, TM)

def phase4(k):
    a = k.a
    a.c("================ phase 4: FFN up-projection + SiLU")
    sF, sRB, sTT = 70, 71, 74
    NW3 = int(k.o.get("nw3", 8)); NB4 = min(NW3, int(k.o.get("nb4", 4)))
    def rest_writes():
        for i in list(range(7 + NW3, 18)) + [4, 5, 6]: stage_write(k, None, i, 8192 * i)
    a("s_waitcnt lgkmcnt(0)")
    for i in range(7, 7 + NB4): w2_load(k, None, None, i, 0)
    if k.o.get("w0b", "1") == "1": rest_writes()
    else: not_wave0(k, rest_writes)
    a(f"s_cmp_lt_u32 s{S_W}, 6")
    a("s_cbranch_scc1 L_p4_nocs2")
    for w in (10, 5):
        for i in range(w): a(f"v_add_f32 v{CSV+i}, v{CSV+i}, v{CSV+w+i}")
    for i in range(1, 5): a(f"v_add_f32 v{CSV}, v{CSV}, v{CSV+i}")
    a(f"s_lshl_b32 s{T0}, s{S_W}, 8")
    a(f"s_add_u32 s{T0}, s{T0}, {CS_LDS - 6*256}")
    a(f"v_lshl_add_u32 v{TM+4}, v0, 2, s{T0}")
    a(f"ds_write_b32 v{TM+4}, v{CSV}")
    a.label("L_p4_nocs2")
    a(f"s_and_b32 s{sF}, s{S_J}, 15")
    a(f"s_lshl_b32 s{sRB}, s{S_C}, 1")
    a(f"s_lshr_b32 s{T0}, s{S_J}, 4")
    a(f"s_add_u32 s{sRB}, s{sRB}, s{T0}")
    a(f"v_mov_b32 v{BA}, v{DLIN}")
    a(f"v_add_u32 v{BA+1}, {9*7168}, v{DLIN}")
    a(f"v_add_u32 v{BA+2}, {18*7168}, v{DLIN}")
    a(f"s_lshl_b32 s{T0}, s{sRB}, 3")
    a(f"s_add_u32 s{sTT}, s{T0}, s{S_W}")
    a(f"s_mul_i32 s{sA}, s{sTT}, 20480")
    a(f"s_add_u32 s{sA}, s{sA}, {WS_H}")
    a(f"s_lshr_b32 s{T0}, s{sTT}, 2")
    a(f"s_lshl_b32 s{T0}, s{T0}, 13")
    a(f"s_and_b32 s{T1}, s{sTT}, 3")
    a(f"s_lshl_b32 s{T1}, s{T1}, 7")
    a(f"s_add_u32 s{T0}, s{T0}, s{T1}")
    a(f"s_add_u32 s{sB}, s{T0}, {WS_ST}")
    a(f"v_and_b32 v{TM}, 15, v0")
    a(f"v_lshrrev_b32 v{TM+1}, 4, v0")
    a(f"v_lshlrev_b32 v{BA+3}, 11, v{TM+1}")
    a(f"v_lshl_add_u32 v{BA+3}, v{TM}, 3, v{BA+3}")
    a(f"v_lshlrev_b32 v{BA+4}, 4, v{TM+1}")
    a(f"v_add_u32 v{BA+4}, {CS_LDS}, v{BA+4}")
    a(f"s_mul_i32 s{T3}, s{sRB}, {16*FSP}")
    a(f"s_add_u32 s{T3}, s{T3}, {FL_3}")
    fpoll(k, 16)
    if not k.o.get("w0b", "1") == "1":
        a(f"s_cmp_lg_u32 s{S_W}, 0")
        a("s_cbranch_scc1 L_p4_w0")
        rest_writes()
        a.label("L_p4_w0")
    a("s_waitcnt lgkmcnt(0)")
    a("s_barrier")
    k.stamp(15)
    vq = VQ(a)
    aop = [a_op(k, vq, j, j, sA, j >= 16) for j in range(20)]
    D = int(k.o.get("d4", 4))
    coop_touch(k, vq, sA, sF, 16, 20)
    for j in range(D): aop[j]()
    def st_op(i):
        def f():
            a(f"buffer_load_dwordx2 {vr(ST+2*i,2)}, v{BA+3}, {WS}, s{sB} offen offset:{512*i} sc1")
            vq.add("S")
        return f
    extra = {j: [aop[j + D]] for j in range(20 - D)}
    rest = list(range(7 + NB4, 18)) + [4, 5, 6]
    NE4 = int(k.o.get("ne4", 3))
    late4, rest = rest[len(rest) - NE4:], rest[:len(rest) - NE4]
    for n, i in enumerate(rest): extra.setdefault(1 + (n * 19) // len(rest), []).append(lambda i=i: w2_load(k, vq, "W", i, 0))
    for i in range(4): extra.setdefault(6 + i, []).insert(0, st_op(i))
    def stats_a():
        vq.wait("S")
        a(f"v_add_f32 v{ST}, v{ST}, v{ST+2}")
        a(f"v_add_f32 v{ST+1}, v{ST+1}, v{ST+3}")
        a(f"v_add_f32 v{ST+4}, v{ST+4}, v{ST+6}")
        a(f"v_add_f32 v{ST+5}, v{ST+5}, v{ST+7}")
        a(f"v_add_f32 v{ST}, v{ST}, v{ST+4}")
        a(f"v_add_f32 v{ST+1}, v{ST+1}, v{ST+5}")
    def stats_sw(sw):
        def f():
            a(f"v_mov_b32 v{ST+2}, v{ST}")
            a(f"v_mov_b32 v{ST+3}, v{ST+1}")
            a("s_nop 0")
            a(f"v_permlane{sw}_swap_b32 v{ST}, v{ST+2}")
            a(f"v_permlane{sw}_swap_b32 v{ST+1}, v{ST+3}")
            a("s_nop 0")
            a(f"v_add_f32 v{ST}, v{ST}, v{ST+2}")
            a(f"v_add_f32 v{ST+1}, v{ST+1}, v{ST+3}")
        return f
    def stats_b():
        a(f"v_mul_f32 v{ST}, 0x{f2u(1.0/640):08x}, v{ST}")
        a(f"v_mul_f32 v{ST+2}, v{ST}, v{ST}")
        a(f"v_mov_b32 v{ST+3}, 0x{f2u(1.0/640):08x}")
        a(f"v_fma_f32 v{ST+2}, v{ST+1}, v{ST+3}, -v{ST+2}")
        a(f"v_max_f32 v{ST+2}, 0, v{ST+2}")
        a(f"v_add_f32 v{ST+2}, 0x{f2u(1e-5):08x}, v{ST+2}")
        a(f"v_rsq_f32 v{ST+1}, v{ST+2}")
        a(f"v_mov_b32 v{ST+2}, 0x{f2u(-math.log2(math.e)):08x}")
        a(f"s_mul_i32 s76, s{sTT}, {54*1024}")
        a(f"v_mul_f32 v{ST+1}, v{ST+1}, v{ST+2}")
        a(f"s_add_u32 s76, s76, {WS_H1}")
        a(f"v_mul_f32 v{ST}, v{ST}, v{ST+1}")
        a(f"s_lshr_b32 s{T1}, s{sF}, 3")
        a(f"s_add_u32 s{T1}, s{T1}, s{sF}")
        a(f"s_mul_i32 s{T1}, s{T1}, 3072")
        a(f"s_add_u32 s77, s{T1}, s76")
    def stats_c():
        a(f"s_lshr_b32 s{T2}, s{sF}, 1")
        a(f"s_cmp_ge_u32 s{sF}, 6")
        a(f"s_cselect_b32 s{T1}, 48, 24")
        a(f"s_add_u32 s{T2}, s{T2}, s{T1}")
        a(f"s_lshl_b32 s{T2}, s{T2}, 10")
        a(f"s_and_b32 s{T1}, s{sF}, 1")
        a(f"s_lshl_b32 s{T1}, s{T1}, 9")
        a(f"s_add_u32 s{T2}, s{T2}, s{T1}")
        a(f"s_add_u32 s76, s76, s{T2}")
        a(f"s_lshl_b32 s{T1}, s{sRB}, 4")
        a(f"s_add_u32 s{T1}, s{T1}, s{sF}")
        a(f"s_mul_i32 s{T3}, s{T1}, {FSP}")
        a(f"s_add_u32 s{T3}, s{T3}, {FL_4}")
    for j, f in ((14, stats_a), (15, stats_sw(16)), (16, stats_sw(32)), (17, stats_b), (18, stats_c)): extra.setdefault(j, []).append(f)
    def addr(j, t): return BA + j // 9, (j % 9) * 7168 + t * 1024
    mm_steps(k, vq, 20, 7, addr, extra)
    k.stamp(16)
    CS = WB + 56
    for t in range(7): a(f"ds_read_b128 {vr(CS+4*t,4)}, v{BA+4} offset:{64*t}")
    for i in late4: w2_load(k, None, None, i, 0)
    a(f"s_cmp_lt_u32 s{S_W}, 4")
    a("s_cbranch_scc1 L_p4_nb")
    a("s_waitcnt lgkmcnt(0)")
    a("s_barrier")
    a.label("L_p4_nb")
    a("s_waitcnt lgkmcnt(0)")
    E = WB; OUT = AF
    def silu(tiles):
        rs = [4 * t + r for t in tiles for r in range(4)]
        for r in rs: a(f"v_mul_f32 v{ACC+r}, v{ST+1}, v{ACC+r}")
        for r in rs: a(f"v_fma_f32 v{ACC+r}, -v{ST}, v{CS+r}, v{ACC+r}")
        for r in rs: a(f"v_exp_f32 v{E+r}, v{ACC+r}")
        for r in rs: a(f"v_fma_f32 v{E+r}, v{E+r}, v{ST+2}, v{ST+2}")
        for r in rs: a(f"v_rcp_f32 v{E+r}, v{E+r}")
        for r in rs: a(f"v_mul_f32 v{ACC+r}, v{ACC+r}, v{E+r}")
        for r in rs[::2]: a(f"v_cvt_pk_bf16_f32 v{OUT+r//2}, v{ACC+r}, v{ACC+r+1}")
    a(f"s_cmp_ge_u32 s{sF}, 12")
    a("s_cbranch_scc1 L_p4_no6")
    silu((6,))
    a(f"buffer_store_dwordx2 {vr(OUT+12,2)}, v{DL8}, {WS}, s76 offen sc1")
    a.label("L_p4_no6")
    PB = int(k.o.get("pb4", 3))
    for p in range(3):
        if p == PB:
            a(f"s_cmp_ge_u32 s{S_W}, 4")
            a("s_cbranch_scc1 L_p4_nb2")
            a("s_barrier")
            a.label("L_p4_nb2")
        silu((2 * p, 2 * p + 1))
        a(f"buffer_store_dwordx4 {vr(OUT+4*p,4)}, v{DLIN}, {WS}, s77 offen offset:{1024*p} sc1")
    order = [x for q in range(9) for x in (q, 9 + q)]
    NB5 = 7
    def w2_swap():
        for h in range(2): dma_ops(k, None, None, 135 * h + 72, 135 * h + 80, sW2, sW10, HALF * h + 72 * 1024)[0]()
        for n in range(18):
            w2_write(k, None, n)
            if 4 <= n < 4 + NB5:
                a("s_waitcnt lgkmcnt(4)")
                w2_load(k, None, None, n - 4, 1)
    a(f"s_cmp_ge_u32 s{S_W}, 4")
    a("s_cbranch_scc1 L_p4_y")
    if PB == 3: a("s_barrier")
    a("s_waitcnt vmcnt(3)")
    w2_swap()
    a(f"s_waitcnt vmcnt({NB5 + 2})")
    a("s_barrier")
    k.stamp(17)
    k.flag_store(T3, TM)
    a("s_branch L_p4_e")
    a.label("L_p4_y")
    a("s_waitcnt vmcnt(0)")
    a("s_barrier")
    k.stamp(17)
    w2_swap()
    a.label("L_p4_e")

def phase5(k):
    a = k.a
    a.c("================ phase 5: FFN down-projection + residual")
    a(f"s_mul_i32 s{T0}, s{sKH}, {HALF}")
    tile_addrs(k, T0, BA)
    for i in range(3): a(f"v_add_u32 v{BA+3+i}, {12*5120}, v{BA+i}")
    a(f"v_and_b32 v{TM+4}, 15, v0")
    a(f"s_lshl_b32 s{T0}, s{sRG}, 4")
    a(f"v_add_u32 v{TM+4}, s{T0}, v{TM+4}")
    a(f"v_mul_u32_u24 v{TM+4}, {OUT_PITCH}, v{TM+4}")
    a(f"v_lshrrev_b32 v{TM+5}, 4, v0")
    a(f"v_lshl_add_u32 v{TM+4}, v{TM+5}, 4, v{TM+4}")
    a(f"s_mul_i32 s{T0}, s{sKH}, {OUT_HALF}")
    a(f"s_add_u32 s{T0}, s{T0}, {OUT_LDS}")
    a(f"v_add_u32 v{TL}, s{T0}, v{TM+4}")
    a(f"s_lshl_b32 s{T0}, s{sKH}, 7")
    a(f"v_add_u32 v{XW}, s{T0}, v{TL}")
    a(f"v_subrev_u32 v{XRD}, s{T0}, v{TL}")
    for n in range(2):
        a(f"s_mul_i32 s{T0}, s{S_W}, 0x50")
        a(f"s_add_u32 s{T0}, s{T0}, {64*n}")
        a(f"v_add_u32 v{TM+2}, s{T0}, v0")
        a(f"v_mul_u32_u24 v{TM+3}, 6554, v{TM+2}")
        a(f"v_lshrrev_b32 v{TM+3}, 16, v{TM+3}")
        a(f"v_mul_u32_u24 v{TM+4+2*n}, 10, v{TM+3}")
        a(f"v_sub_u32 v{TM+2}, v{TM+2}, v{TM+4+2*n}")
        a(f"v_mul_u32_u24 v{TM+4+2*n}, {OUT_PITCH}, v{TM+3}")
        a(f"v_lshl_add_u32 v{TM+4+2*n}, v{TM+2}, 5, v{TM+4+2*n}")
        a(f"v_add_u32 v{TM+4+2*n}, {OUT_LDS}, v{TM+4+2*n}")
        a(f"v_mul_u32_u24 v{TM+5+2*n}, 1280, v{TM+3}")
        a(f"v_lshl_add_u32 v{TM+5+2*n}, v{TM+2}, 4, v{TM+5+2*n}")
    a(f"s_mul_i32 s{sA}, s{sRB64}, {64*1280}")
    a(f"s_mul_i32 s{T0}, s{sN8}, 160")
    a(f"s_add_u32 s{sA}, s{sA}, s{T0}")
    a(f"s_mul_i32 s{sB}, s{sTT3}, {54*1024}")
    a(f"s_mul_i32 s{T1}, s{sKH}, {27*1024}")
    a(f"s_add_u32 s{sB}, s{sB}, s{T1}")
    a(f"s_add_u32 s{sB}, s{sB}, {WS_H1}")
    if k.o.get("p5hot"): a(f"s_mov_b32 s{sB}, {WS_W2}")
    if k.o.get("p5oob"): a(f"s_mov_b32 s{sB}, 0x7f000000")
    a(f"s_lshr_b32 s{T3}, s{sRB64}, 1")
    a(f"s_mul_i32 s{T3}, s{T3}, {16*FSP}")
    a(f"s_add_u32 s{T3}, s{T3}, {FL_4}")
    fpoll(k, 16)
    a("s_waitcnt lgkmcnt(0)")
    a("s_barrier")
    k.stamp(18)
    vq = VQ(a)
    aop = [a_op(k, vq, j, j, sB, j >= 24) for j in range(27)]
    D = int(k.o.get("d5", 6))
    coop_touch(k, vq, sB, sN8, 8, 27)
    for j in range(D): aop[j]()
    extra = {j: [aop[j + D]] for j in range(27 - D)}
    bars = (5, 10, 14, 19)
    at = (5, 6, 7, 10, 11, 12, 14)
    dm = dma_ops(k, vq, None, 135 + 5 * NS5, 135 + 5 * NS5 + 56, sW2, sW10, HALF)
    for i in range(7):
        def both(i=i):
            if not k.o.get("p5nod"):
                dm[i](); vq.q[-1] = ("R", i)
            if not k.o.get("p5now"): stage_write(k, k.lq, i, 8192 * i)
        extra.setdefault(at[i], []).append(both)
    cover = {14: 3, 19: 6}
    slot = lambda j: j if j < NS5 else j - NS5
    def addr(j, t):
        s = slot(j)
        return BA + (3 if s >= 12 else 0) + (0, 0, 1, 1, 2)[t], (s % 12) * 5120 + t * 1024
    def pre(j):
        if j - 2 in bars:
            k.lq.wait("w")
            if j - 2 in cover: vq.wait(("R", cover[j - 2]))
            if not k.o.get("p5nob"): a("s_barrier")
    mm_steps(k, vq, 27, 5, addr, extra, pre)
    k.stamp(19)
    a("s_nop 1")
    for i, t in enumerate((0, 1, 4)):
        if i == 2:
            a(f"s_cmp_lg_u32 s{sKH}, 0")
            a("s_cbranch_scc1 L_p5_no4")
        for h in range(2):
            a(f"v_lshlrev_b32 v{TM+2}, 16, v{HR+2*i+h}")
            a(f"v_and_b32 v{TM+3}, 0xffff0000, v{HR+2*i+h}")
            a(f"v_add_f32 v{ACC+4*t+2*h}, v{ACC+4*t+2*h}, v{TM+2}")
            a(f"v_add_f32 v{ACC+4*t+2*h+1}, v{ACC+4*t+2*h+1}, v{TM+3}")
        if i < 2: a(f"ds_write_b128 v{XW}, {vr(ACC+4*t,4)} offset:{64*t}")
        if i == 1:
            a(f"ds_write_b128 v{XRD}, {vr(ACC+8,4)} offset:128")
            a(f"ds_write_b128 v{XRD}, {vr(ACC+12,4)} offset:192")
    a.label("L_p5_no4")
    a(f"ds_write_b128 v{TL}, {vr(ACC+16,4)} offset:256")
    a("s_waitcnt lgkmcnt(0)")
    a("s_barrier")
    OUTS = f"s[{SRD_OUT}:{SRD_OUT+3}]"
    def rd(ra, base):
        for h in range(2):
            for q in range(2): a(f"ds_read_b128 {vr(base+8*h+4*q,4)}, v{ra} offset:{16*q}")
            if h == 0: a(f"v_add_u32 v{ra}, {OUT_HALF}, v{ra}")
    def fin(ga, base):
        for r in range(8): a(f"v_add_f32 v{base+r}, v{base+r}, v{base+8+r}")
        for r in range(4): a(f"v_cvt_pk_bf16_f32 v{base+r}, v{base+2*r}, v{base+2*r+1}")
        a(f"buffer_store_dwordx4 {vr(base,4)}, v{ga}, {OUTS}, s{sA} offen {k.o.get('ost', '')}")
    rd(TM + 4, WB)
    a("s_mov_b64 exec, 0xffff")
    rd(TM + 6, WB + 16)
    a("s_mov_b64 exec, -1")
    a("s_waitcnt lgkmcnt(4)")
    fin(TM + 5, WB)
    a("s_mov_b64 exec, 0xffff")
    a("s_waitcnt lgkmcnt(0)")
    fin(TM + 7, WB + 16)
    a("s_mov_b64 exec, -1")
```

```python
import sys, math
from asmlib import Asm, vr, sr, f2u, check
from tables import *

NAME = "sequential_preLN__mha_block__dense_activation_silu__prompt"
LDS_BYTES = 163840
SPIN_MAX = 200000

S_G = 2
SRD_X, SRD_WQ, SRD_WS, SRD_OUT, SRD_DBG, SRD_RL = 4, 8, 12, 16, 20, 24
S_W, S_C, S_J = 28, 29, 30
S_NONCE = 32
S_PTR = 36
T0, T1, T2, T3, T4, T5 = 54, 55, 56, 57, 58, 59
S_M1 = 60
S_SPIN = 62

class K:
    def __init__(self, stop_after=99, opts=None):
        self.a = Asm()
        self.stop = stop_after
        self.o = opts or {}
        self.pad = 0
        self._sides = []; self._late1 = []

    def srd(self, d, ptr, nbytes):
        a = self.a
        a(f"s_mov_b32 s{d}, s{ptr}")
        a(f"s_and_b32 s{d+1}, s{ptr+1}, 0xffff")
        a(f"s_mov_b32 s{d+2}, {nbytes}")
        a(f"s_mov_b32 s{d+3}, 0x20000")

    def stamp(self, idx):
        if not self.o.get("stamps"): return
        if self.o["stamps"] == "min" and idx not in (0, 9, 10, 31): return
        a = self.a
        a("s_memrealtime s[100:101]")
        a("s_waitcnt lgkmcnt(0)")
        a(f"v_writelane_b32 v255, s100, {idx}")
        if idx < 22 and self.o["stamps"] != "min":
            a("s_memtime s[100:101]")
            a("s_waitcnt lgkmcnt(0)")
            a(f"v_writelane_b32 v255, s100, {idx+32}")

    def stamp_dyn(self, base, sreg):
        if not self.o.get("its"): return
        a = self.a
        a("s_memtime s[100:101]")
        a("s_mov_b32 s99, m0")
        a(f"s_add_u32 m0, s{sreg}, {base}")
        a("s_waitcnt lgkmcnt(0)")
        a("v_writelane_b32 v255, s100, m0")
        a("s_mov_b32 m0, s99")

    def stamp_flush(self):
        if not self.o.get("stamps"): return
        a = self.a
        if self.o.get("dbgwg"):
            L = a.newlabel("dbg")
            a(f"s_cmp_lg_u32 s{S_G}, {int(self.o['dbgwg'])}")
            a(f"s_cbranch_scc1 {L}")
            a(f"s_cmp_lg_u32 s{S_W}, 0")
            a(f"s_cbranch_scc1 {L}")
            a(f"v_readlane_b32 s{T1}, v255, 0")
            for n, i in enumerate((3, 4, 7, 8, 9, 10, 12, 13, 15, 16, 18, 19, 31)):
                a(f"v_readlane_b32 s{T0}, v255, {i}")
                a("s_nop 3")
                a(f"s_sub_u32 s{T0}, s{T0}, s{T1}")
                a(f"v_mov_b32 v1, s{T0}")
                a(f"v_mov_b32 v2, {8+4*n}")
                a(f"buffer_store_dword v1, v2, s[{SRD_DBG}:{SRD_DBG+3}], 0 offen")
            a.label(L)
            return
        a(f"s_lshl_b32 s{T0}, s{S_G}, 3")
        a(f"s_add_u32 s{T0}, s{T0}, s{S_W}")
        a(f"s_lshl_b32 s{T0}, s{T0}, 8")
        a(f"s_add_u32 s{T0}, s{T0}, {WS_SIZE}")
        a("v_lshlrev_b32 v1, 2, v0")
        a(f"buffer_store_dword v255, v1, s[{SRD_WS}:{SRD_WS+3}], s{T0} offen")
        a("s_mov_b64 exec, -1")

    def hold(self, key):
        if not self.o.get(key): return
        a = self.a
        L = a.newlabel("hold")
        a.label(L)
        a("s_memrealtime s[100:101]")
        a("s_waitcnt lgkmcnt(0)")
        a(f"s_sub_u32 s100, s100, s{S_NONCE}")
        a(f"s_cmp_lt_u32 s100, {int(float(self.o[key]) * 100)}")
        a(f"s_cbranch_scc1 {L}")

    def diag(self, what):
        if self.o.get("diag") == what: self.a("s_mov_b32 s35, 1")

    def dma(self, voff, srd, soff, flags=""):
        if self.o.get("nodma"): return
        self.a(f"buffer_load_dwordx4 v{voff}, s[{srd}:{srd+3}], {soff} offen {flags} lds".replace("  ", " "))

    def flag_store(self, s_off, vt, pol="sc1"):
        a = self.a
        L = a.newlabel("nofl")
        a(f"s_cmp_lg_u32 s{S_W}, 0")
        a(f"s_cbranch_scc1 {L}")
        a(f"v_mov_b32 v{vt}, s{S_NONCE}")
        a(f"v_mov_b32 v{vt+1}, s{S_NONCE+1}")
        a(f"v_mov_b32 v{vt+2}, 0")
        a("s_mov_b64 exec, 1")
        a(f"buffer_store_dwordx2 v[{vt}:{vt+1}], v{vt+2}, s[{SRD_WS}:{SRD_WS+3}], s{s_off} offen {pol}")
        a("s_mov_b64 exec, -1")
        a.label(L)

    def poll(self, n, s_off, spacing, vt, only_wave0=True):
        a = self.a
        L = a.newlabel("poll"); Ld = a.newlabel("polld")
        if only_wave0:
            a(f"s_cmp_lg_u32 s{S_W}, 0")
            a(f"s_cbranch_scc1 {Ld}")
        a(f"s_mov_b32 s{S_SPIN}, 0")
        if n == 256:
            assert spacing == 8
            a(f"v_lshlrev_b32 v{vt+8}, 4, v0")
            a.label(L)
            a(f"buffer_load_dwordx4 v[{vt}:{vt+3}], v{vt+8}, s[{SRD_WS}:{SRD_WS+3}], s{s_off} offen sc1")
            a(f"buffer_load_dwordx4 v[{vt+4}:{vt+7}], v{vt+8}, s[{SRD_WS}:{SRD_WS+3}], s{s_off} offen offset:1024 sc1")
            a(f"s_add_u32 s{S_SPIN}, s{S_SPIN}, 1")
            a("s_waitcnt vmcnt(0)")
            a(f"v_cmp_ne_u64 vcc, s[{S_NONCE}:{S_NONCE+1}], v[{vt}:{vt+1}]")
            a(f"v_cmp_ne_u64 s[{S_M1}:{S_M1+1}], s[{S_NONCE}:{S_NONCE+1}], v[{vt+2}:{vt+3}]")
            a("s_nop 0")
            a(f"s_or_b64 s[{T4}:{T5}], vcc, s[{S_M1}:{S_M1+1}]")
            a(f"v_cmp_ne_u64 vcc, s[{S_NONCE}:{S_NONCE+1}], v[{vt+4}:{vt+5}]")
            a(f"v_cmp_ne_u64 s[{S_M1}:{S_M1+1}], s[{S_NONCE}:{S_NONCE+1}], v[{vt+6}:{vt+7}]")
            a("s_nop 0")
            a(f"s_or_b64 s[{T4}:{T5}], s[{T4}:{T5}], vcc")
            a(f"s_or_b64 s[{T4}:{T5}], s[{T4}:{T5}], s[{S_M1}:{S_M1+1}]")
        else:
            a(f"v_and_b32 v{vt+2}, {n-1}, v0")
            a(f"v_mul_u32_u24 v{vt+2}, {spacing}, v{vt+2}")
            a.label(L)
            a(f"buffer_load_dwordx2 v[{vt}:{vt+1}], v{vt+2}, s[{SRD_WS}:{SRD_WS+3}], s{s_off} offen sc1")
            a(f"s_add_u32 s{S_SPIN}, s{S_SPIN}, 1")
            a("s_waitcnt vmcnt(0)")
            a(f"v_cmp_ne_u64 vcc, s[{S_NONCE}:{S_NONCE+1}], v[{vt}:{vt+1}]")
            a("s_nop 0")
            a(f"s_or_b64 s[{T4}:{T5}], vcc, vcc")
        a(f"s_cbranch_scc0 {Ld}")
        if self.o.get("psleep"): a(f"s_sleep {int(self.o['psleep'])}")
        a(f"s_cmp_lt_u32 s{S_SPIN}, {SPIN_MAX}")
        a(f"s_cbranch_scc1 {L}")
        a.label(Ld)

    def pollp(self, n, s_off, spacing, va, vt, depth):
        a = self.a
        L = a.newlabel("poll"); Ld = a.newlabel("polld")
        N = f"s[{S_NONCE}:{S_NONCE+1}]"
        a(f"s_cmp_lg_u32 s{S_W}, 0")
        a(f"s_cbranch_scc1 {Ld}")
        a(f"s_mov_b32 s{S_SPIN}, 0")
        a(f"v_and_b32 v{va}, {n-1}, v0")
        a(f"v_mul_u32_u24 v{va}, {spacing}, v{va}")
        ld = lambda i: a(f"buffer_load_dwordx2 v[{vt+2*i}:{vt+2*i+1}], v{va}, s[{SRD_WS}:{SRD_WS+3}], s{s_off} offen sc1")
        for i in range(depth - 1):
            ld(i); a(f"s_sleep {int(self.o.get('psl', 2))}")
        a.label(L)
        for i in range(depth):
            ld((i + depth - 1) % depth)
            a(f"s_waitcnt vmcnt({depth-1})")
            a(f"v_cmp_ne_u64 vcc, {N}, v[{vt+2*i}:{vt+2*i+1}]")
            a(f"s_cbranch_vccz {Ld}")
        a(f"s_add_u32 s{S_SPIN}, s{S_SPIN}, 1")
        a(f"s_cmp_lt_u32 s{S_SPIN}, {SPIN_MAX}")
        a(f"s_cbranch_scc1 {L}")
        a.label(Ld)

    def poll2(self, va, vb, s_off, vt):
        a = self.a
        L = a.newlabel("poll"); Ld = a.newlabel("polld")
        N = f"s[{S_NONCE}:{S_NONCE+1}]"
        a(f"s_cmp_lg_u32 s{S_W}, 0")
        a(f"s_cbranch_scc1 {Ld}")
        a(f"s_mov_b32 s{S_SPIN}, 0")
        a.label(L)
        a(f"buffer_load_dwordx2 v[{vt}:{vt+1}], v{va}, s[{SRD_WS}:{SRD_WS+3}], s{s_off} offen sc1")
        a(f"buffer_load_dwordx2 v[{vt+2}:{vt+3}], v{vb}, s[{SRD_WS}:{SRD_WS+3}], s{s_off} offen sc1")
        a(f"s_add_u32 s{S_SPIN}, s{S_SPIN}, 1")
        a("s_waitcnt vmcnt(0)")
        a(f"v_cmp_ne_u64 vcc, {N}, v[{vt}:{vt+1}]")
        a(f"v_cmp_ne_u64 s[{S_M1}:{S_M1+1}], {N}, v[{vt+2}:{vt+3}]")
        a("s_nop 0")
        a(f"s_or_b64 vcc, vcc, s[{S_M1}:{S_M1+1}]")
        a(f"s_cbranch_scc0 {Ld}")
        if self.o.get("psleep"): a(f"s_sleep {int(self.o['psleep'])}")
        a(f"s_cmp_lt_u32 s{S_SPIN}, {SPIN_MAX}")
        a(f"s_cbranch_scc1 {L}")
        a.label(Ld)

    def entry(self):
        a = self.a
        a(f"s_cmp_ge_u32 s{S_G}, 256")
        a("s_cbranch_scc1 L_end")
        a(f"s_load_dwordx2 s[{SRD_X}:{SRD_X+1}], s[0:1], 0")
        a(f"s_load_dwordx2 s[{SRD_WQ}:{SRD_WQ+1}], s[0:1], 8")
        a(f"s_load_dwordx2 s[{SRD_DBG}:{SRD_DBG+1}], s[0:1], 56")
        a(f"s_load_dwordx16 s[{S_PTR}:{S_PTR+15}], s[0:1], 0")
        a(f"s_load_dwordx2 s[{S_PTR+16}:{S_PTR+17}], s[0:1], 64")
        a(f"s_memrealtime s[{S_NONCE}:{S_NONCE+1}]")
        if self.o.get("stamps"): a("v_mov_b32 v255, 0")
        self.stamp(0)
        a("v_lshrrev_b32 v1, 6, v0")
        a("v_and_b32 v0, 63, v0")
        a(f"v_readfirstlane_b32 s{S_W}, v1")
        a(f"s_and_b32 s{S_C}, s{S_G}, 7")
        a(f"s_lshr_b32 s{S_J}, s{S_G}, 3")

    ACC = 16; XF = 160; WF = 176; XA = 72; WA = 144; DXA, DXB, DW = 78, 79, 80; VXM = 76
    ONES = 82
    CQ = 96
    CQA = 81; CSW = 85
    PGA, PGV, PGR, PGD = 116, 117, 118, 119
    RSA, RS = 84, 128
    STA = 86
    RLV, RLA = 157, 158
    VN = 92
    sRB, sCT, sKC, sXO, sWO, sSLOT, sCNT, sXM, sTG, sNH = 64, 65, 66, 67, 68, 69, 70, 71, 72, 73
    sTAB = 74
    sM0X = 80; sWO2 = 81; sKC0 = 82; sSIDE = 83; sI1 = 71; sI2 = 34; sSM = 35
    sRL = 84
    P1_MISC = 148 * 1024
    RL_SCR = 68 * 1024
    CQ_SCR = 128 * 1024
    DUMMY = 159 * 1024
    CPF_LINES = 8

    def p1_issue(self, pieces=(0, 1, 2, 3)):
        a = self.a
        if 0 in pieces:
            a(f"s_add_u32 m0, s{self.sM0X}, s{self.sSLOT}")
            a(f"s_add_u32 s{self.sKC}, s{self.sKC}, 1")
            self.dma(self.DXA, SRD_X, f"s{self.sXO}")
        if 1 in pieces:
            a("s_add_u32 m0, m0, 16384")
            a(f"s_add_u32 s{self.sWO2}, s{self.sWO}, 15360")
            self.dma(self.DW, SRD_WQ, f"s{self.sWO}")
        if 2 in pieces:
            a("s_sub_u32 m0, m0, 15360")
            a(f"s_add_u32 s{self.sWO}, s{self.sWO}, 245760")
            self.dma(self.DXB, SRD_X, f"s{self.sXO}")
        if 3 in pieces:
            a("s_add_u32 m0, m0, 16384")
            a(f"s_add_u32 s{self.sXO}, s{self.sXO}, 128")
            self.dma(self.DW, SRD_WQ, f"s{self.sWO2}")
            a(f"s_cmp_eq_u32 s{self.sKC}, 10")
            a(f"s_cselect_b32 s{T0}, 1280, 0")
            a(f"s_cselect_b32 s{T1}, 2457600, 0")
            a(f"s_cselect_b32 s{self.sKC}, 0, s{self.sKC}")
            a(f"s_sub_u32 s{self.sXO}, s{self.sXO}, s{T0}")
            a(f"s_sub_u32 s{self.sWO}, s{self.sWO}, s{T1}")
            a(f"s_add_u32 s{self.sSLOT}, s{self.sSLOT}, 32768")
            a(f"s_and_b32 s{self.sSLOT}, s{self.sSLOT}, 0x1ffff")

    def p1_setup_a(self):
        a = self.a
        a(f"s_lshr_b32 s{T0}, s{S_C}, 1")
        a(f"s_lshl_b32 s{T0}, s{T0}, 2")
        a(f"s_lshr_b32 s{T1}, s{S_J}, 3")
        a(f"s_add_u32 s{self.sRB}, s{T0}, s{T1}")
        a(f"s_and_b32 s{T0}, s{S_C}, 1")
        a(f"s_lshl_b32 s{T0}, s{T0}, 3")
        a(f"s_and_b32 s{T2}, s{S_J}, 7")
        a(f"s_add_u32 s{self.sCT}, s{T0}, s{T2}")
        g = int(self.o.get("rotg", 4))
        if g == 8:
            a(f"s_lshl_b32 s{T1}, s{T1}, 1")
            a(f"s_add_u32 s{self.sKC}, s{T2}, s{T1}")
            a(f"s_bfe_u32 s{T0}, s{S_C}, 0x10001")
            a(f"s_and_b32 s{T1}, s{S_C}, 4")
            a(f"s_lshl_b32 s{T1}, s{T1}, 1")
            a(f"s_add_u32 s{T0}, s{T0}, s{T1}")
            a(f"s_add_u32 s{self.sKC}, s{self.sKC}, s{T0}")
        else:
            bases, offs, shift = {3: ((0, 3, 7), (0, 1, 2, 6), 0), 4: ((0, 2, 5, 7), (0, 1, 2, 3), 0), 5: ((0, 2, 4, 6, 8), (0, 1, 0, 1), 1)}[g]
            a(f"s_add_u32 s{T1}, s{T1}, s{T2}")
            a(f"s_lshr_b32 s{T0}, s{S_C}, 1")
            if shift: a(f"s_add_u32 s{T1}, s{T1}, s{T0}")
            tab = sum(bases[i % g] << (4 * i) for i in range(16))
            a(f"s_lshl_b32 s{T1}, s{T1}, 2")
            a(f"s_mov_b32 s{T4}, 0x{tab & 0xffffffff:08x}")
            a(f"s_mov_b32 s{T5}, 0x{tab >> 32:08x}")
            a(f"s_lshr_b64 s[{T4}:{T5}], s[{T4}:{T5}], s{T1}")
            a(f"s_and_b32 s{self.sKC}, s{T4}, 15")
            a(f"s_lshl_b32 s{T0}, s{T0}, 2")
            a(f"s_lshr_b32 s{T0}, 0x{sum(o << (4 * i) for i, o in enumerate(offs)):04x}, s{T0}")
            a(f"s_and_b32 s{T0}, s{T0}, 15")
            a(f"s_add_u32 s{self.sKC}, s{self.sKC}, s{T0}")
            for ct in range(8):
                assert len({(bases[(ct + rl + shift * aa) % g] + offs[aa]) % 10 for aa in range(4) for rl in range(4)}) == 10
        a(f"s_mul_i32 s{T0}, s{self.sKC}, 26")
        a(f"s_lshr_b32 s{T0}, s{T0}, 8")
        a(f"s_mul_i32 s{T0}, s{T0}, 10")
        a(f"s_sub_u32 s{self.sKC}, s{self.sKC}, s{T0}")
        a(f"s_mov_b32 s{self.sKC0}, s{self.sKC}")
        a(f"s_mul_i32 s{self.sXO}, s{self.sRB}, 163840")
        a(f"s_lshl_b32 s{T0}, s{self.sKC}, 7")
        a(f"s_add_u32 s{self.sXO}, s{self.sXO}, s{T0}")
        a(f"s_mul_i32 s{self.sWO}, s{self.sKC}, 245760")
        a(f"s_lshl_b32 s{T0}, s{self.sCT}, 8")
        a(f"s_add_u32 s{self.sWO}, s{self.sWO}, s{T0}")
        a(f"s_lshl_b32 s{self.sM0X}, s{S_W}, 11")
        a(f"s_mov_b32 s{self.sSLOT}, 0")
        a("v_lshrrev_b32 v1, 3, v0")
        a("v_lshrrev_b32 v2, 4, v0")
        a("v_and_b32 v3, 7, v0")
        a("v_xor_b32 v3, v3, v2")
        a(f"s_lshl_b32 s{T0}, s{S_W}, 4")
        a(f"v_add_u32 v4, s{T0}, v1")
        a("v_mul_u32_u24 v4, 1280, v4")
        a(f"v_lshl_add_u32 v{self.DXA}, v3, 4, v4")
        a(f"v_xor_b32 v{self.DXB}, 64, v{self.DXA}")
        a(f"v_add_u32 v{self.DXB}, 10240, v{self.DXB}")
        a("v_lshlrev_b32 v3, 2, v2")
        a("v_and_b32 v4, 15, v0")
        a("v_xor_b32 v3, v3, v4")
        a(f"s_lshl_b32 s{T0}, s{S_W}, 3")
        a(f"v_add_u32 v4, s{T0}, v2")
        a("v_mul_u32_u24 v4, 3840, v4")
        a(f"v_lshl_add_u32 v{self.DW}, v3, 4, v4")
        for d, n in ((SRD_X, 2048 * 1280), (SRD_WQ, 640 * 3840), (SRD_DBG, 256)):
            a(f"s_mov_b32 s{d+2}, {n}")
            a(f"s_mov_b32 s{d+3}, 0x20000")
        a("s_waitcnt lgkmcnt(0)")
        if self.o.get("fixown"): a(f"s_mov_b32 s31, s{S_NONCE}")
        if self.o.get("diag"): a("s_mov_b32 s35, 0")
        a(f"s_or_b32 s{T0}, s{S_G}, s{S_W}")
        a("s_cbranch_scc0 L_nonce_pub")
        a.label("L_nonce_done")
        a(f"s_cmp_eq_u32 s{self.sCT}, 15")
        a("s_cbranch_scc1 L_p1_noissue")
        self.p1_issue()
        if self.o.get("first5", "1") == "1": self.p1_issue((0,))
        a.label("L_p1_noissue")
        self.stamp(1)
        self.srd(SRD_WS, S_PTR + 16, WS_SIZE + ((1 << 20) if self.o.get("stamps") else 0))
        self.srd(SRD_OUT, S_PTR + 12, 2048 * 1280)
        a(f"s_mov_b64 s[{SRD_RL}:{SRD_RL+1}], 0")
        a(f"s_mov_b32 s{SRD_RL+2}, 0")
        a(f"s_mov_b32 s{SRD_RL+3}, 0x20000")
        a(f"v_mov_b32 v{self.RLV}, 0")
        if self.o.get("cpf", "1") == "1":
            Lc = a.newlabel("cpf")
            a(f"s_cmp_lg_u32 s{S_W}, 7")
            a(f"s_cbranch_scc1 {Lc}")
            a(f"s_getpc_b64 s[{T4}:{T5}]")
            a.label("L_pc_here")
            a(f"s_mul_i32 s{T0}, s{S_J}, {self.CPF_LINES*128}")
            a(f"s_sub_u32 s{T0}, s{T0}, L_pc_here-{NAME}_kernel")
            a(f"v_min_u32 v3, {self.CPF_LINES-1}, v0")
            a(f"v_lshl_add_u32 v3, v3, 7, s{T0}")
            a("v_ashrrev_i32 v5, 31, v3")
            a(f"v_mov_b32 v6, s{T5}")
            a(f"v_add_co_u32 v4, vcc, s{T4}, v3")
            a("s_nop 1")
            a("v_addc_co_u32 v5, vcc, v5, v6, vcc")
            a("global_load_dword v254, v[4:5], off")
            a.label(Lc)

    def relayout_setup(self):
        a = self.a
        R = self.sRL
        u = a.newlabel("u")
        sID, sKS, sCB, sST, sA, sB, sCc, sD = T0, T1, T2, T3, 93, 94, 95, 96
        sBase, sSl, sKsS = 97, 98, 99
        a(f"s_mul_i32 s{sID}, s{S_G}, 5")
        a(f"s_add_u32 s{sID}, s{sID}, s{S_W}")
        a(f"s_sub_u32 s{sID}, s{sID}, 1")
        a(f"s_min_u32 s{sID}, s{sID}, 1279")
        a(f"s_mov_b32 s{sA}, 16")
        a(f"s_mov_b32 s{sB}, 8")
        a(f"s_mov_b32 s{sCc}, 4")
        a(f"s_mov_b32 s{SRD_RL+3}, 0x20000")
        a(f"s_mov_b32 s{R+8}, -1")
        a(f"s_cmp_lt_u32 s{sID}, 200")
        a(f"s_cbranch_scc1 L_rl_wo{u}")
        a(f"s_cmp_lt_u32 s{sID}, 740")
        a(f"s_cbranch_scc1 L_rl_w1{u}")
        a(f"s_sub_u32 s{sID}, s{sID}, 740")
        a(f"s_mul_i32 s{sKS}, s{sID}, 6554")
        a(f"s_lshr_b32 s{sKS}, s{sKS}, 16")
        a(f"s_mul_i32 s{sCB}, s{sKS}, 10")
        a(f"s_sub_u32 s{sCB}, s{sID}, s{sCB}")
        a(f"s_lshl_b32 s{sD}, s{sKS}, 5")
        a(f"s_mov_b32 s{SRD_RL}, s{S_PTR+10}")
        a(f"s_and_b32 s{SRD_RL+1}, s{S_PTR+11}, 0xffff")
        a(f"s_mov_b32 s{SRD_RL+2}, {1728*1280}")
        a(f"s_mov_b32 s{sBase}, {WS_W2}")
        a(f"s_mov_b32 s{sSl}, {54*5120}")
        a(f"s_add_u32 s{T4}, s{sKS}, 3")
        a(f"s_cmp_ge_u32 s{sKS}, 24")
        a(f"s_cselect_b32 s{T4}, s{T4}, s{sKS}")
        a(f"s_sub_u32 s{T5}, s{sKS}, 24")
        a(f"s_cmp_ge_u32 s{sKS}, 48")
        a(f"s_cselect_b32 s{T4}, s{T5}, s{T4}")
        a(f"s_cmp_ge_u32 s{sKS}, 51")
        a(f"s_cselect_b32 s{sKS}, s{sKS}, s{T4}")
        a(f"s_branch L_rl_n640{u}")
        a.label(f"L_rl_wo{u}")
        a(f"s_mul_i32 s{sKS}, s{sID}, 6554")
        a(f"s_lshr_b32 s{sKS}, s{sKS}, 16")
        a(f"s_mul_i32 s{sCB}, s{sKS}, 10")
        a(f"s_sub_u32 s{sCB}, s{sID}, s{sCB}")
        a(f"s_mul_i32 s{sD}, s{sKS}, 40")
        a(f"s_mul_i32 s{sST}, s{sKS}, 160")
        a(f"s_sub_u32 s{sST}, s{sST}, {160*16-16}")
        a(f"s_cmp_lt_u32 s{sKS}, 16")
        a(f"s_cselect_b32 s{sD}, s{sD}, s{sST}")
        a(f"s_cselect_b32 s{sA}, 8, 20")
        a(f"s_cselect_b32 s{sB}, 20, 0x50")
        a(f"s_cselect_b32 s{sCc}, 4, 40")
        a(f"s_mov_b32 s{SRD_RL}, s{S_PTR+4}")
        a(f"s_and_b32 s{SRD_RL+1}, s{S_PTR+5}, 0xffff")
        a(f"s_mov_b32 s{SRD_RL+2}, {640*1280}")
        a(f"s_mov_b32 s{sBase}, {WS_WO}")
        a(f"s_mov_b32 s{sSl}, {20*5120}")
        a(f"s_add_u32 s{T4}, s{sKS}, 2")
        a(f"s_cmp_ge_u32 s{sKS}, 8")
        a(f"s_cselect_b32 s{T4}, s{T4}, s{sKS}")
        a(f"s_sub_u32 s{T5}, s{sKS}, 8")
        a(f"s_cmp_ge_u32 s{sKS}, 16")
        a(f"s_cselect_b32 s{T4}, s{T5}, s{T4}")
        a(f"s_cmp_ge_u32 s{sKS}, 18")
        a(f"s_cselect_b32 s{sKS}, s{sKS}, s{T4}")
        a(f"s_sub_u32 s{T4}, s{sKS}, 1")
        a(f"s_cmp_ge_u32 s{sKS}, 10")
        a(f"s_cselect_b32 s{T4}, s{T4}, s{sKS}")
        a(f"s_cmp_eq_u32 s{sKS}, 9")
        a(f"s_cselect_b32 s{T4}, 18, s{T4}")
        a(f"s_cmp_eq_u32 s{sKS}, 19")
        a(f"s_cselect_b32 s{sKS}, 19, s{T4}")
        a.label(f"L_rl_n640{u}")
        a(f"s_mov_b32 s{sST}, 1280")
        a(f"s_mul_i32 s{sKsS}, s{sKS}, 5120")
        a(f"s_add_u32 s{sBase}, s{sBase}, s{sKsS}")
        for t in range(4):
            a(f"s_lshl_b32 s{T4}, s{sCB}, 2")
            a(f"s_add_u32 s{T4}, s{T4}, {t}")
            a(f"s_mul_i32 s{T5}, s{T4}, 52")
            a(f"s_lshr_b32 s{T5}, s{T5}, 8")
            a(f"s_mul_i32 s{R+4+t}, s{T5}, s{sSl}")
            a(f"s_mul_i32 s{T5}, s{T5}, 5")
            a(f"s_sub_u32 s{T4}, s{T4}, s{T5}")
            a(f"s_lshl_b32 s{T4}, s{T4}, 10")
            a(f"s_add_u32 s{R+4+t}, s{R+4+t}, s{T4}")
            a(f"s_add_u32 s{R+4+t}, s{R+4+t}, s{sBase}")
        a(f"s_branch L_rl_common{u}")
        a.label(f"L_rl_w1{u}")
        a(f"s_sub_u32 s{sID}, s{sID}, 200")
        a(f"s_mul_i32 s{sKS}, s{sID}, 2428")
        a(f"s_lshr_b32 s{sKS}, s{sKS}, 16")
        a(f"s_mul_i32 s{sCB}, s{sKS}, 27")
        a(f"s_sub_u32 s{sCB}, s{sID}, s{sCB}")
        a(f"s_lshr_b32 s{T4}, s{sKS}, 1")
        a(f"s_mul_i32 s{T4}, s{T4}, 0x50")
        a(f"s_and_b32 s{T5}, s{sKS}, 1")
        a(f"s_lshl_b32 s{T5}, s{T5}, 5")
        a(f"s_add_u32 s{sD}, s{T4}, s{T5}")
        a(f"s_mul_i32 s{T4}, s{sKS}, 160")
        a(f"s_sub_u32 s{T4}, s{T4}, {160*16-64}")
        a(f"s_cmp_lt_u32 s{sKS}, 16")
        a(f"s_cselect_b32 s{sD}, s{sD}, s{T4}")
        a(f"s_cselect_b32 s{sA}, 16, 0x50")
        a(f"s_mov_b32 s{SRD_RL}, s{S_PTR+8}")
        a(f"s_and_b32 s{SRD_RL+1}, s{S_PTR+9}, 0xffff")
        a(f"s_mov_b32 s{SRD_RL+2}, {640*3456}")
        a(f"s_mov_b32 s{sST}, 3456")
        a(f"s_mul_i32 s{sKsS}, s{sKS}, 7168")
        a(f"s_add_u32 s{sBase}, s{sKsS}, {WS_W1}")
        a(f"s_mul_i32 s{R+8}, s{sKS}, {1728*4}")
        a(f"s_lshl_b32 s{T4}, s{sCB}, 8")
        a(f"s_add_u32 s{R+8}, s{R+8}, s{T4}")
        a(f"s_add_u32 s{R+8}, s{R+8}, {WS_CS1}")
        for t in range(4):
            a(f"s_lshl_b32 s{T4}, s{sCB}, 2")
            a(f"s_add_u32 s{T4}, s{T4}, {t}")
            a(f"s_mul_i32 s{T5}, s{T4}, 43")
            a(f"s_lshr_b32 s{T5}, s{T5}, 8")
            a(f"s_mul_i32 s{sSl}, s{T5}, 6")
            a(f"s_sub_u32 s{sSl}, s{T4}, s{sSl}")
            a(f"s_sub_u32 s{sKsS}, s{T4}, 96")
            a(f"s_cmp_lt_u32 s{T4}, 96")
            a(f"s_cselect_b32 s{T5}, s{T5}, s{sKsS}")
            a(f"s_cselect_b32 s{sSl}, s{sSl}, 6")
            a(f"s_mul_i32 s{R+4+t}, s{T5}, {20*7168}")
            a(f"s_lshl_b32 s{sSl}, s{sSl}, 10")
            a(f"s_add_u32 s{R+4+t}, s{R+4+t}, s{sSl}")
            a(f"s_add_u32 s{R+4+t}, s{R+4+t}, s{sBase}")
        a.label(f"L_rl_common{u}")
        a(f"s_mul_i32 s{sD}, s{sD}, s{sST}")
        a(f"s_lshl_b32 s{T4}, s{sCB}, 7")
        a(f"s_add_u32 s{R}, s{sD}, s{T4}")
        a(f"s_mul_i32 s{sA}, s{sA}, s{sST}")
        a(f"s_mul_i32 s{sB}, s{sB}, s{sST}")
        a(f"s_add_u32 s{R+1}, s{R}, s{sB}")
        a(f"s_add_u32 s{R+2}, s{R}, s{sA}")
        a(f"s_add_u32 s{R+3}, s{R+2}, s{sB}")
        a("v_lshrrev_b32 v1, 5, v0")
        a(f"v_mul_u32_u24 v1, s{sCc}, v1")
        a("v_bfe_u32 v2, v0, 3, 2")
        a("v_add_u32 v1, v1, v2")
        a(f"v_mul_u32_u24 v1, s{sST}, v1")
        a("v_and_b32 v2, 7, v0")
        a(f"v_lshl_add_u32 v{self.RLV}, v2, 4, v1")
        a("v_lshrrev_b32 v1, 2, v0")
        a("v_lshlrev_b32 v1, 7, v1")
        a("v_and_b32 v2, 3, v0")
        a("v_lshl_add_u32 v1, v2, 3, v1")
        a(f"s_lshl_b32 s{T4}, s{S_W}, 12")
        a(f"s_add_u32 s{T4}, s{T4}, {self.RL_SCR-4096}")
        a(f"v_add_u32 v{self.RLA}, s{T4}, v1")

    def relayout_issue(self, drain_older=False):
        a = self.a
        L = a.newlabel("rlsk")
        a(f"s_sub_u32 s{T0}, s{S_W}, 1")
        a(f"s_cmp_ge_u32 s{T0}, {0 if self.o.get('norl') else 5}")
        a(f"s_cbranch_scc1 {L}")
        a(f"s_lshl_b32 s{T0}, s{S_W}, 12")
        a(f"s_add_u32 m0, s{T0}, {self.RL_SCR-4096}")
        for i in range(4):
            if i: a("s_add_u32 m0, m0, 1024")
            a("s_nop 0")
            self.dma(self.RLV, SRD_RL, f"s{self.sRL+i}")
        if drain_older:
            L2 = a.newlabel("rlw")
            a("s_waitcnt vmcnt(4)")
            a(f"s_branch {L2}")
            a.label(L)
            a("s_waitcnt vmcnt(0)")
            a.label(L2)
        else:
            a.label(L)

    def relayout_finish(self, younger=None):
        a = self.a
        L = a.newlabel("rlsk"); F = 168; t = 184
        a(f"s_sub_u32 s{T0}, s{S_W}, 1")
        a(f"s_cmp_ge_u32 s{T0}, 5")
        Lo = a.newlabel("rlo")
        a(f"s_cbranch_scc1 {Lo if younger is not None else L}")
        if younger is not None: a(f"s_waitcnt vmcnt({younger})")
        for q in range(4):
            for rd in range(2):
                a(f"ds_read_b64_tr_b16 v[{F+4*q+2*rd}:{F+4*q+2*rd+1}], v{self.RLA} offset:{rd*2048+q*32}")
        a(f"v_lshlrev_b32 v{t}, 4, v0")
        for q in range(4):
            a(f"s_waitcnt lgkmcnt({6-2*q})")
            a(f"buffer_store_dwordx4 v[{F+4*q}:{F+4*q+3}], v{t}, s[{SRD_WS}:{SRD_WS+3}], s{self.sRL+4+q} offen sc1")
        if younger is not None: a("s_waitcnt vmcnt(4)")
        a(f"s_cmp_eq_u32 s{self.sRL+8}, -1")
        a(f"s_cbranch_scc1 {L}")
        for q in range(4): a(f"v_mov_b32 v{t+2+q}, 0")
        a(f"v_mov_b32 v{t+6}, 0x3f803f80")
        for k in range(4):
            for q in range(4): a(f"v_dot2_f32_bf16 v{t+2+q}, v{F+4*q+k}, v{t+6}, v{t+2+q}")
        a(f"v_lshlrev_b32 v{t+1}, 2, v0")
        a("s_nop 1")
        a(f"v_permlane16_swap_b32 v{t+2}, v{t+3}")
        a(f"v_permlane16_swap_b32 v{t+4}, v{t+5}")
        a("s_nop 0")
        a(f"v_add_f32 v{t+2}, v{t+2}, v{t+3}")
        a(f"v_add_f32 v{t+4}, v{t+4}, v{t+5}")
        a("s_nop 1")
        a(f"v_permlane32_swap_b32 v{t+2}, v{t+4}")
        a("s_nop 0")
        a(f"v_add_f32 v{t+2}, v{t+2}, v{t+4}")
        a(f"buffer_store_dword v{t+2}, v{t+1}, s[{SRD_WS}:{SRD_WS+3}], s{self.sRL+8} offen sc1")
        if younger is not None:
            a(f"s_branch {L}")
            a.label(Lo)
            a("s_waitcnt vmcnt(0)")
        a.label(L)

    def p1_setup_b(self):
        a = self.a
        a(f"s_and_b32 s{self.sTG}, s{S_W}, 3")
        a(f"s_lshr_b32 s{self.sNH}, s{S_W}, 2")
        a(f"s_cmp_ge_u32 s{self.sCT}, 5")
        a(f"s_cselect_b32 s{T0}, 5, 0")
        a(f"s_sub_u32 s{T0}, s{self.sCT}, s{T0}")
        a(f"s_lshl_b32 s{T0}, s{T0}, 1")
        a(f"s_add_u32 s{T0}, s{T0}, s{self.sNH}")
        for idx in range(10):
            a(f"s_cmp_eq_u32 s{T0}, {idx}")
            a(f"s_cbranch_scc1 L_tab{idx}")
        a(f"s_mul_i32 s{T1}, s{self.sNH}, 0x10101010")
        for k in range(4): a(f"s_add_u32 s{self.sTAB+k}, s{T1}, 0x%08x" % (0x03020100 + 0x04040404 * k))
        a(f"s_mov_b32 s{self.sTAB+4}, 0")
        a(f"s_mov_b32 s{self.sTAB+5}, 0")
        a("s_branch L_tabdone")
        for idx in range(10):
            a.label(f"L_tab{idx}")
            for k, d in enumerate(p1_table(idx // 2, idx % 2)): a(f"s_mov_b32 s{self.sTAB+k}, 0x%08x" % d)
            if idx < 9: a("s_branch L_tabdone")
        a.label("L_tabdone")
        a("v_and_b32 v1, 31, v0")
        a(f"s_lshl_b32 s{T0}, s{self.sTG}, 5")
        a(f"v_add_u32 v2, s{T0}, v1")
        a("v_bfe_u32 v3, v2, 1, 3")
        a("v_lshrrev_b32 v4, 5, v0")
        a("v_xor_b32 v3, v3, v4")
        a("v_lshlrev_b32 v3, 4, v3")
        a(f"v_lshl_add_u32 v{self.XA}, v2, 7, v3")
        a(f"s_xor_b32 s{T3}, s{self.sTG}, s{self.sNH}")
        a(f"s_lshl_b32 s{T0}, s{T3}, 5")
        a(f"v_xor_b32 v{self.XA}, s{T0}, v{self.XA}")
        for ks in range(1, 4): a(f"v_xor_b32 v{self.XA+ks}, {ks<<5}, v{self.XA}")
        a("v_bfe_u32 v5, v0, 2, 2")
        a("v_lshl_add_u32 v6, v4, 3, v5")
        a("v_lshlrev_b32 v6, 8, v6")
        a("v_and_b32 v7, 3, v0")
        a("v_lshlrev_b32 v7, 3, v7")
        a("v_and_b32 v8, 16, v0")
        a("v_cmp_ne_u32 vcc, 0, v8")
        for i in range(2):
            a(f"v_mov_b32 v8, s{self.sTAB+2*i}")
            a(f"v_mov_b32 v9, s{self.sTAB+2*i+1}")
            a("v_cndmask_b32 v8, v8, v9, vcc")
            a("v_bfe_u32 v8, v8, v7, 8")
            a("v_lshlrev_b32 v8, 3, v8")
            a("v_lshlrev_b32 v9, 6, v5")
            a("v_xor_b32 v8, v8, v9")
            a(f"v_add_u32 v8, v6, v8")
            a(f"s_lshl_b32 s{T0}, s{T3}, 12")
            a(f"v_add_u32 v{self.WA+4*i}, s{T0}, v8")
            for j in range(1, 4): a(f"v_xor_b32 v{self.WA+4*i+j}, {j<<12}, v{self.WA+4*i}")
        a(f"s_lshl_b32 s{T0}, s{self.sRB}, 2")
        a(f"s_add_u32 s{T0}, s{T0}, s{self.sTG}")
        a(f"s_lshl_b32 s{T1}, s{T0}, 9")
        a(f"s_add_u32 s{T1}, s{T1}, {WS_RS}")
        a(f"v_lshl_add_u32 v{self.RSA}, v1, 4, s{T1}")
        a(f"s_cmp_ge_u32 s{self.sCT}, 10")
        a("s_cbranch_scc1 L_p1_vaddr")
        a(f"s_lshl_b32 s{T0}, s{T0}, 9")
        a(f"s_cmp_ge_u32 s{self.sCT}, 5")
        a(f"s_cselect_b32 s{T1}, {WS_K}, {WS_Q}")
        a(f"s_add_u32 s{T0}, s{T0}, s{T1}")
        a(f"v_lshl_add_u32 v2, v1, 4, s{T0}")
        a("v_lshlrev_b32 v3, 3, v4")
        a("v_add_u32 v5, 16, v3")
        for i in range(2):
            for qq in range(2):
                a(f"v_bfe_u32 v6, s{self.sTAB+4+i}, v{3 if qq == 0 else 5}, 8")
                a(f"v_lshl_add_u32 v{self.STA+2*i+qq}, v6, 15, v2")
        a("s_branch L_p1_addrdone")
        a.label("L_p1_vaddr")
        a(f"s_mul_i32 s{T0}, s{T0}, 1280")
        a(f"s_add_u32 s{T0}, s{T0}, {WS_V}")
        a(f"s_lshl_b32 s{T1}, s{self.sCT}, 7")
        a(f"s_lshl_b32 s{T2}, s{self.sNH}, 6")
        a(f"s_add_u32 s{T1}, s{T1}, s{T2}")
        a(f"s_sub_u32 s{T1}, s{T1}, 1280")
        a(f"v_mov_b32 v{self.STA+2}, 0")
        a(f"v_mov_b32 v{self.STA+3}, 0")
        a("v_mul_u32_u24 v3, 320, v4")
        a(f"v_add_u32 v3, s{T0}, v3")
        a(f"s_mov_b32 s{T2}, 81920")
        for i in range(2):
            a(f"v_add_u32 v5, s{T1}, v1")
            if i: a("v_add_u32 v5, 32, v5")
            a("v_mul_u32_u24 v6, 3277, v5")
            a("v_lshrrev_b32 v6, 16, v6")
            a("v_mul_u32_u24 v7, 20, v6")
            a("v_sub_u32 v5, v5, v7")
            a("v_lshl_add_u32 v5, v5, 4, v3")
            a(f"v_mad_u32_u24 v{self.STA+i}, v6, s{T2}, v5")
        a.label("L_p1_addrdone")
        for r in range(32): a(f"v_mov_b32 v{self.ACC+r}, 0")
        a(f"s_mul_i32 s{T0}, s{self.sCT}, 10240")
        a(f"s_lshl_b32 s{T1}, s{self.sNH}, 9")
        a(f"s_add_u32 s{T0}, s{T0}, s{T1}")
        a(f"s_add_u32 s{T0}, s{T0}, {WS_CQ}")
        a(f"v_lshl_add_u32 v{self.CQA}, v0, 3, s{T0}")
        a(f"s_lshl_b32 s{T0}, s{self.sNH}, 8")
        a(f"s_lshl_b32 s{T1}, s{self.sTG}, 9")
        a(f"s_add_u32 s{T0}, s{T0}, {self.P1_MISC}")
        a(f"s_add_u32 s{T1}, s{T1}, s{T0}")
        a(f"v_lshl_add_u32 v{self.CSW}, v0, 2, s{T1}")
        a(f"v_lshl_add_u32 v95, v0, 2, s{T0}")
        a(f"v_mov_b32 v{self.VXM}, 0x8000")
        a(f"s_lshl_b32 s{T0}, s{S_W}, 2")
        a(f"s_add_u32 s{T0}, s{T0}, {self.P1_MISC + 2304}")
        a(f"v_mov_b32 v{self.PGA}, s{T0}")
        a(f"v_mov_b32 v{self.PGV}, 0")
        a(f"v_and_b32 v{self.PGR}, 7, v0")
        a(f"v_lshlrev_b32 v{self.PGR}, 2, v{self.PGR}")
        a(f"v_add_u32 v{self.PGR}, {self.P1_MISC + 2304}, v{self.PGR}")
        a(f"ds_write_b32 v{self.PGA}, v{self.PGV}")
        a(f"s_mov_b32 s{self.sCNT}, -1")
        a(f"s_cmp_eq_u32 s{self.sTG}, 0")
        a(f"s_cselect_b32 s{self.sSIDE}, 2, 0")

    def p1_loop(self, vmode):
        a = self.a
        tag = "v" if vmode else "q"
        if self.o.get("p1soft"):
            self.p1_loop1(vmode, 0)
        else:
            a(f"s_cmp_lg_u32 s{self.sNH}, 0")
            a(f"s_cbranch_scc1 L_p1_B{tag}")
            self.p1_loop1(vmode, 0)
            a(f"s_branch L_p1_E{tag}")
            a.label(f"L_p1_B{tag}")
            self.p1_loop1(vmode, 1)
            a.label(f"L_p1_E{tag}")
        reads, xors, mf = self.p1_parts(vmode)
        def comp(ks, rd=True, xr=True):
            a(f"s_waitcnt lgkmcnt({5 if rd or ks == 2 else 0})")
            mf(ks, 0)
            if rd: reads((ks + 2) % 4)
            mf(ks, 1)
            if xr: xors((ks + 2) % 4)
        comp(0); self.p1_issue((2,))
        comp(1); self.p1_issue((3,))
        a(f"buffer_load_dwordx4 v[{self.RS}:{self.RS+3}], v{self.RSA}, s[{SRD_WS}:{SRD_WS+3}], 0 offen sc1")
        a(f"s_mul_i32 s{T0}, s{self.sCT}, 10240")
        a(f"s_lshl_b32 s{T1}, s{S_W}, 10")
        a(f"s_add_u32 s{T0}, s{T0}, s{T1}")
        a(f"s_add_u32 s{T0}, s{T0}, {WS_CQ}")
        a(f"s_add_u32 m0, s{T1}, {self.CQ_SCR}")
        a("v_lshlrev_b32 v1, 4, v0")
        self.dma(1, SRD_WS, f"s{T0}", "sc1")
        a(f"s_add_u32 s{T0}, s{T0}, 8192")
        a("s_add_u32 m0, m0, 8192")
        a(f"s_cmp_ge_u32 s{S_W}, 2")
        a(f"s_cselect_b32 s{T0}, 0x7f000000, s{T0}")
        self.dma(1, SRD_WS, f"s{T0}", "sc1")
        a("s_waitcnt vmcnt(7)")
        a("s_barrier")
        comp(2); comp(3)
        comp(0); comp(1)
        a("s_waitcnt vmcnt(3)")
        a("s_barrier")
        comp(2, xr=False); comp(3, xr=False)
        comp(0, xr=False); comp(1, xr=False)
        a("s_waitcnt vmcnt(0)")
        a("s_barrier")
        self.p1_epi_reads()
        a("s_waitcnt lgkmcnt(15)")
        mf(2, 0); mf(2, 1)
        a("s_waitcnt lgkmcnt(11)")
        mf(3, 0); mf(3, 1)

    def p1_parts(self, vmode):
        a = self.a
        def reads(ks):
            if self.o.get("nolds"): return
            a(f"ds_read_b128 v[{self.XF+4*ks}:{self.XF+4*ks+3}], v{self.XA+ks}")
            for i in range(2):
                for rd in range(2):
                    d = self.WF + 8 * ks + 4 * i + 2 * rd
                    a(f"ds_read_b64_tr_b16 v[{d}:{d+1}], v{self.WA+4*i+ks} offset:{16384+rd*1024}")
        def xors(ks):
            for r in (self.XA + ks, self.WA + ks, self.WA + 4 + ks): a(f"v_xor_b32 v{r}, v{self.VXM}, v{r}")
            if ks == 3: a(f"v_xor_b32 v{self.VXM}, 0x10000, v{self.VXM}")
        def mf(ks, i):
            x = vr(self.XF + 4 * ks, 4); wv = vr(self.WF + 8 * ks + 4 * i, 4); acc = vr(self.ACC + 16 * i, 16)
            if self.o.get("nomfma"): pass
            elif vmode: a(f"v_mfma_f32_32x32x16_bf16 {acc}, {x}, {wv}, {acc}")
            else: a(f"v_mfma_f32_32x32x16_bf16 {acc}, {wv}, {x}, {acc}")
        return reads, xors, mf

    def p1_loop1(self, vmode, B):
        a = self.a
        L = a.newlabel("p1loop")
        pos = self.o.get("barB" if B else "barA", "1" if B else "0")
        reads, xors, mf = self.p1_parts(vmode)
        def bar():
            a("s_waitcnt vmcnt(4)")
            if not self.o.get("nobar"): a("s_barrier")
            if self.o.get("its") == "1": self.stamp_dyn(54, self.sCNT)
        soft = self.o.get("p1soft")
        def comp(ks):
            n = (ks + 2) % 4
            if soft: return comp_soft(ks)
            if ks == 2 and pos == "0": bar()
            a("s_waitcnt lgkmcnt(5)")
            mf(ks, 0)
            if ks == 2 and pos == "1": bar()
            if ks == 2 and pos == "2":
                mf(ks, 1); bar(); reads(n)
            else:
                reads(n); mf(ks, 1)
            xors(n)
            self.p1_issue((n,))
        def comp_soft(ks):
            n = (ks + 2) % 4
            ar = int(soft) - 1
            extra = {0: 0, 1: (1 if ar == 0 else 0), 2: 0, 3: 0}[ks]
            a(f"s_waitcnt lgkmcnt({5 + extra})" if ks != 2 else "s_waitcnt lgkmcnt(0)" if self.o.get("p1g0") else "s_waitcnt lgkmcnt(6)")
            mf(ks, 0)
            if ks == ar:
                a(f"v_add_u32 v{self.PGV}, 1, v{self.PGV}")
                a(f"s_waitcnt vmcnt({2 + ks})")
                a(f"ds_write_b32 v{self.PGA}, v{self.PGV}")
            if ks == 2:
                Lw, Lb = a.newlabel("late"), a.newlabel("go")
                a("s_waitcnt lgkmcnt(0)")
                a(f"v_cmp_lt_u32 vcc, v{self.PGD}, v{self.PGV}")
                a(f"s_cbranch_vccnz {Lw}")
                a.label(Lb)
                self._late1.append((Lw, Lb))
            reads(n); mf(ks, 1)
            if ks == 1: a(f"ds_read_b32 v{self.PGD}, v{self.PGR}")
            xors(n)
            self.p1_issue((n,))
        a("s_waitcnt vmcnt(6) lgkmcnt(0)")
        a("s_barrier")
        self.stamp(3)
        reads(0); reads(1); xors(0); xors(1)
        a("v_mov_b32 v6, 0x3f803f80")
        a("v_mov_b32 v2, 0")
        a("v_mov_b32 v3, 0")
        a("s_waitcnt lgkmcnt(5)")
        for k in range(4):
            for i in range(2): a(f"v_dot2_f32_bf16 v{2+i}, v{self.WF+4*i+k}, v6, v{2+i}")
        a("s_nop 2")
        a("v_permlane32_swap_b32 v2, v3")
        a("s_nop 0")
        a("v_add_f32 v2, v2, v3")
        a(f"ds_write_b32 v{self.CSW}, v2")
        a("s_waitcnt lgkmcnt(0)")
        a.align(6)
        a.label(L)
        comp(0); comp(1); comp(2)
        Lr = a.newlabel("back"); Ls = a.newlabel("side")
        a(f"s_add_u32 s{self.sCNT}, s{self.sCNT}, 1")
        a(f"s_cmp_lt_u32 s{self.sCNT}, s{self.sSIDE}")
        a(f"s_cbranch_scc1 {Ls}")
        a.label(Lr)
        comp(3)
        a(f"s_cmp_lt_u32 s{self.sCNT}, {int(self.o.get('p1n', 10)) - 4}")
        a(f"s_cbranch_scc1 {L}")
        self._sides.append((Ls, Lr))

    def p1_sides(self):
        a = self.a
        for Lw, Lb in self._late1:
            a.label(Lw)
            a(f"s_mov_b32 s{S_SPIN}, 0")
            L = a.newlabel("lsp")
            a.label(L)
            a(f"ds_read_b32 v{self.PGD}, v{self.PGR}")
            a(f"s_add_u32 s{S_SPIN}, s{S_SPIN}, 1")
            a(f"s_cmp_ge_u32 s{S_SPIN}, {SPIN_MAX * 16}")
            a(f"s_cbranch_scc1 {Lb}")
            a("s_waitcnt lgkmcnt(0)")
            a(f"v_cmp_lt_u32 vcc, v{self.PGD}, v{self.PGV}")
            a(f"s_cbranch_vccnz {L}")
            a(f"s_branch {Lb}")
        self._late1 = []
        for Ls, Lr in self._sides:
            a.label(Ls)
            L1 = a.newlabel("s1")
            a(f"s_cmp_lg_u32 s{self.sCNT}, 0")
            a(f"s_cbranch_scc1 {L1}")
            a("v_mov_b32 v1, 0")
            a(f"buffer_load_dwordx2 v[{self.VN}:{self.VN+1}], v1, s[{SRD_DBG}:{SRD_DBG+3}], 0 offen sc1")
            a(f"s_branch {Lr}")
            a.label(L1)
            a("s_waitcnt vmcnt(4)")
            self.nonce_get("nonce2")
            a(f"v_mov_b32 v1, {self.P1_MISC + 2048}")
            a(f"ds_write_b64 v1, v[{self.VN}:{self.VN+1}]")
            for k in range(4): a(f"ds_read_b32 v{2+k}, v95 offset:{512*k}")
            a(f"s_lshl_b32 s{T0}, s{self.sKC0}, 10")
            a("s_waitcnt lgkmcnt(0)")
            a("v_add_f32 v2, v2, v3")
            a("v_add_f32 v4, v4, v5")
            a(f"v_mov_b32 v3, s{S_NONCE}")
            a("v_add_f32 v2, v2, v4")
            a(f"buffer_store_dwordx2 v[2:3], v{self.CQA}, s[{SRD_WS}:{SRD_WS+3}], s{T0} offen sc1")
            a(f"s_branch {Lr}")

    def p1_gather(self):
        a = self.a
        a(f"buffer_load_dwordx4 v[{self.RS}:{self.RS+3}], v{self.RSA}, s[{SRD_WS}:{SRD_WS+3}], 0 offen sc1")
        a(f"s_movk_i32 s{T0}, 0x1000")
        a(f"s_movk_i32 s{T1}, 0x2000")
        for k in range(10):
            so = ("0", f"s{T0}", f"s{T1}")[k // 4]
            a(f"buffer_load_dwordx2 v[{self.CQ+2*k}:{self.CQ+2*k+1}], v{self.CQA}, s[{SRD_WS}:{SRD_WS+3}], {so} offen offset:{1024*(k%4)} sc1")

    def p1_epi_reads(self):
        a = self.a
        a(f"s_lshl_b32 s{T0}, s{self.sNH}, 9")
        a(f"s_add_u32 s{T0}, s{T0}, {self.CQ_SCR}")
        a(f"v_lshl_add_u32 v1, v0, 3, s{T0}")
        for k in range(10): a(f"ds_read_b64 v[{self.CQ+2*k}:{self.CQ+2*k+1}], v1 offset:{1024*k}")
        a(f"v_mov_b32 v1, {self.P1_MISC + 2048}")
        a(f"ds_read_b64 v[{self.VN}:{self.VN+1}], v1")
        a(f"s_lshl_b32 s{T2}, s{S_W}, 9")
        a(f"s_add_u32 s{T2}, s{T2}, {self.P1_MISC+4096}")
        a(f"v_lshl_add_u32 v6, v0, 2, s{T2}")
        a("v_and_b32 v5, 31, v0")
        a(f"s_mov_b32 s{S_SPIN}, 0")

    def p1_epi_common(self):
        a = self.a
        L = a.newlabel("rs"); Ld = a.newlabel("rsd")
        a("s_waitcnt lgkmcnt(0)")
        a(f"v_readfirstlane_b32 s{S_NONCE}, v{self.VN}")
        a(f"v_readfirstlane_b32 s{S_NONCE+1}, v{self.VN+1}")
        a("s_nop 0")
        a.label(L)
        a(f"v_xor_b32 v2, s{S_NONCE}, v{self.RS+1}")
        a(f"v_xor_b32 v3, s{S_NONCE}, v{self.RS+3}")
        for k in range(0, 10, 2):
            a(f"v_xor_b32 v4, s{S_NONCE}, v{self.CQ+2*k+1}")
            a(f"v_xor_b32 v7, s{S_NONCE}, v{self.CQ+2*k+3}")
            a("v_or3_b32 v2, v2, v4, v7")
        a("v_or_b32 v2, v2, v3")
        a("v_cmp_ne_u32 vcc, 0, v2")
        a(f"s_add_u32 s{S_SPIN}, s{S_SPIN}, 1")
        a("s_or_b64 vcc, vcc, vcc")
        a(f"s_cbranch_scc0 {Ld}")
        a(f"s_cmp_ge_u32 s{S_SPIN}, {SPIN_MAX}")
        a(f"s_cbranch_scc1 {Ld}")
        self.diag("gather")
        self.p1_gather()
        a("s_waitcnt vmcnt(0)")
        a(f"s_branch {L}")
        a.label(Ld)
        Q = self.CQ
        a(f"v_add_f32 v12, v{Q}, v{Q+2}")
        a(f"v_add_f32 v13, v{Q+4}, v{Q+6}")
        a(f"v_add_f32 v14, v{Q+8}, v{Q+10}")
        a(f"v_add_f32 v15, v{Q+12}, v{Q+14}")
        a(f"v_add_f32 v2, v{Q+16}, v{Q+18}")
        a("v_add_f32 v12, v12, v13")
        a("v_add_f32 v14, v14, v15")
        a("v_add_f32 v12, v12, v2")
        a("v_add_f32 v12, v12, v14")
        self.stamp(4)

    def rowstats(self):
        a = self.a
        X = 100
        a("v_lshrrev_b32 v1, 3, v0")
        a(f"s_lshl_b32 s{T0}, s{S_W}, 4")
        a(f"s_lshl_b32 s{T1}, s{self.sRB}, 7")
        a(f"s_add_u32 s{T0}, s{T0}, s{T1}")
        a(f"v_add_u32 v1, s{T0}, v1")
        a("v_mul_u32_u24 v2, 1280, v1")
        a("v_and_b32 v3, 7, v0")
        a("v_lshl_add_u32 v2, v3, 4, v2")
        a(f"s_mov_b32 s{T0}, 10240")
        for k in range(10):
            for hh in range(2):
                r = X + 8 * k + 4 * hh
                a(f"buffer_load_dwordx4 v[{r}:{r+3}], v2, s[{SRD_X}:{SRD_X+3}], {'s%d' % T0 if hh else '0'} offen offset:{128*k}")
        for r in range(4, 8): a(f"v_mov_b32 v{r}, 0")
        a("v_mov_b32 v8, 0x3f803f80")
        for k in range(10):
            a(f"s_waitcnt vmcnt({18-2*k if k < 9 else 1})")
            if k == 8:
                a("v_mov_b32 v3, 0")
                a(f"buffer_load_dwordx2 v[{self.VN}:{self.VN+1}], v3, s[{SRD_DBG}:{SRD_DBG+3}], 0 offen sc1")
            for e in range(4):
                for hh in range(2):
                    r = X + 8 * k + 4 * hh + e
                    a(f"v_dot2_f32_bf16 v{4+hh}, v{r}, v8, v{4+hh}")
                    a(f"v_dot2_f32_bf16 v{6+hh}, v{r}, v{r}, v{6+hh}")
        a("s_nop 2")
        for ctl in ("quad_perm:[1,0,3,2]", "quad_perm:[2,3,0,1]", "row_half_mirror"):
            for r in range(4, 8): a(f"v_add_f32_dpp v{r}, v{r}, v{r} {ctl} row_mask:0xf bank_mask:0xf")
        a("s_waitcnt vmcnt(0)")
        self.nonce_get()
        a("v_and_b32 v3, 1, v0")
        a("v_cmp_ne_u32 vcc, 0, v3")
        a("v_lshlrev_b32 v3, 3, v3")
        a("v_add_u32 v1, v1, v3")
        a("v_cndmask_b32 v4, v4, v5, vcc")
        a("v_cndmask_b32 v6, v6, v7, vcc")
        a(f"v_mul_f32 v4, 0x%08x, v4" % f2u(1.0 / 640))
        a("v_mul_f32 v5, v4, v4")
        a(f"v_mov_b32 v7, 0x%08x" % f2u(1.0 / 640))
        a("v_fma_f32 v5, v6, v7, -v5")
        a("v_max_f32 v5, 0, v5")
        a(f"v_add_f32 v5, 0x%08x, v5" % f2u(1e-5))
        a("v_rsq_f32 v8, v5")
        a(f"v_mov_b32 v9, s{S_NONCE}")
        a(f"v_mov_b32 v11, s{S_NONCE}")
        a("v_mul_f32 v10, v4, v8")
        a("v_lshlrev_b32 v1, 4, v1")
        a(f"s_mov_b32 s{T0}, {WS_RS}")
        a("s_mov_b32 exec_lo, 0x03030303")
        a("s_mov_b32 exec_hi, 0x03030303")
        a(f"buffer_store_dwordx4 v[8:11], v1, s[{SRD_WS}:{SRD_WS+3}], s{T0} offen sc1")
        a("s_mov_b64 exec, -1")

    def p1_epi_q(self):
        a = self.a
        self.p1_epi_common()
        qs = math.log2(math.e) / math.sqrt(20.0)
        a("ds_write_b32 v6, v12")
        a("v_lshrrev_b32 v1, 5, v0")
        a(f"v_lshl_add_u32 v1, v1, 4, s{T2}")
        C = 48
        for i in range(2):
            for q4 in range(4):
                a(f"ds_read_b128 v[{C+16*i+4*q4}:{C+16*i+4*q4+3}], v1 offset:{i*128+q4*32}")
        a(f"s_cmp_lt_u32 s{self.sCT}, 5")
        a(f"s_cselect_b32 s{T1}, 0x%08x, 1.0" % f2u(qs))
        a(f"v_mul_f32 v2, s{T1}, v{self.RS}")
        a(f"v_mul_f32 v3, s{T1}, v{self.RS+2}")
        for i in range(2):
            for qq in range(2):
                a(f"s_waitcnt lgkmcnt({6-4*i-2*qq})")
                b = 16 * i + 8 * qq
                for r in range(8): a(f"v_mul_f32 v{self.ACC+b+r}, v2, v{self.ACC+b+r}")
                for r in range(8): a(f"v_fma_f32 v{self.ACC+b+r}, -v3, v{C+b+r}, v{self.ACC+b+r}")
                o = 4 + 4 * ((2 * i + qq) % 2)
                for r in range(4): a(f"v_cvt_pk_bf16_f32 v{o+r}, v{self.ACC+b+2*r}, v{self.ACC+b+2*r+1}")
                a(f"buffer_store_dwordx4 v[{o}:{o+3}], v{self.STA+2*i+qq}, s[{SRD_WS}:{SRD_WS+3}], 0 offen sc1")

    def p1_epi_v(self):
        a = self.a
        self.p1_epi_common()
        a("v_mov_b32 v13, v12")
        a(f"v_lshl_add_u32 v6, v5, 2, s{T2}")
        a("v_lshrrev_b32 v1, 5, v0")
        a("v_permlane32_swap_b32 v12, v13")
        a(f"ds_write_b32 v6, v{self.RS}")
        a(f"ds_write_b32 v6, v{self.RS+2} offset:128")
        a(f"v_lshl_add_u32 v6, v1, 4, s{T2}")
        C = 48
        for q4 in range(4):
            a(f"ds_read_b128 v[{C+4*q4}:{C+4*q4+3}], v6 offset:{q4*32}")
            a(f"ds_read_b128 v[{C+16+4*q4}:{C+16+4*q4+3}], v6 offset:{128+q4*32}")
        for grp in range(2):
            a(f"s_waitcnt lgkmcnt({4-4*grp})")
            for i in range(2):
                b = 16 * i + 8 * grp
                for r in range(8): a(f"v_mul_f32 v{self.ACC+b+r}, v{C+8*grp+r}, v{self.ACC+b+r}")
                for r in range(8): a(f"v_fma_f32 v{self.ACC+b+r}, -v{C+16+8*grp+r}, v{12+i}, v{self.ACC+b+r}")
                o = 4 + 4 * i
                for r in range(4): a(f"v_cvt_pk_bf16_f32 v{o+r}, v{self.ACC+b+2*r}, v{self.ACC+b+2*r+1}")
                a(f"buffer_store_dwordx4 v[{o}:{o+3}], v{self.STA+i}, s[{SRD_WS}:{SRD_WS+3}], 0 offen offset:{640*grp} sc1")

    def nonce_get(self, where="nonce"):
        a = self.a
        a(f"s_mov_b32 s{S_SPIN}, 0")
        Lc = a.newlabel("nchk"); Lo = a.newlabel("nok")
        a.label(Lc)
        a(f"v_readfirstlane_b32 s{S_NONCE}, v{self.VN}")
        a(f"v_readfirstlane_b32 s{S_NONCE+1}, v{self.VN+1}")
        a(f"s_add_u32 s{S_SPIN}, s{S_SPIN}, 1")
        a(f"s_or_b32 s{T0}, s{S_NONCE}, s{S_NONCE+1}")
        a(f"s_cbranch_scc1 {Lo}")
        a(f"s_cmp_ge_u32 s{S_SPIN}, {SPIN_MAX}")
        a(f"s_cbranch_scc1 {Lo}")
        self.diag(where)
        a("v_mov_b32 v94, 0")
        a(f"buffer_load_dwordx2 v[{self.VN}:{self.VN+1}], v94, s[{SRD_DBG}:{SRD_DBG+3}], 0 offen sc1")
        a("s_waitcnt vmcnt(0)")
        a(f"s_branch {Lc}")
        a.label(Lo)

    def phase1(self):
        a = self.a
        self.p1_setup_a()
        a(f"s_cmp_eq_u32 s{self.sCT}, 15")
        a("s_cbranch_scc0 L_p1_go")
        self.rowstats()
        a("s_branch L_p1_done")
        a.label("L_nonce_pub")
        a("v_mov_b32 v3, 0")
        a(f"v_mov_b32 v4, s{S_NONCE}")
        a(f"v_mov_b32 v5, s{S_NONCE+1}")
        a("s_mov_b64 exec, 1")
        a(f"buffer_store_dwordx2 v[4:5], v3, s[{SRD_DBG}:{SRD_DBG+3}], 0 offen sc1")
        a("s_mov_b64 exec, -1")
        a("s_branch L_nonce_done")
        a.label("L_p1_go")
        self.p1_setup_b()
        self.p1_issue((1, 2, 3) if self.o.get("first5", "1") == "1" else (0, 1, 2, 3))
        self.p1_issue((0, 1))
        self.stamp(2)
        a(f"s_cmp_ge_u32 s{self.sCT}, 10")
        a("s_cbranch_scc1 L_p1_v")
        self.p1_loop(False)
        self.p1_epi_q()
        a("s_branch L_p1_done")
        self.p1_sides(); self._sides = []
        a.label("L_p1_v")
        self.p1_loop(True)
        self.p1_epi_v()
        a("s_branch L_p1_done")
        self.p1_sides()
        a.label("L_p1_done")
        self.stamp(5)
        a("s_waitcnt vmcnt(0)")
        self.stamp(6)
        a("s_barrier")
        a(f"s_lshl_b32 s{T0}, s{self.sCT}, 4")
        a(f"s_add_u32 s{T0}, s{T0}, s{self.sRB}")
        a(f"s_mul_i32 s{T0}, s{T0}, {FSP}")
        a(f"s_add_u32 s{T0}, s{T0}, {FL_1}")
        self.flag_store(T0, 2)
        self.stamp(7)
        a(f"s_cmp_eq_u32 s{S_W}, 0")
        a("s_cbranch_scc1 L_no_rls")
        self.relayout_setup()
        a.label("L_no_rls")
        if self.stop < 2:
            self.relayout_issue()
            a("s_waitcnt vmcnt(0)")
            self.relayout_finish()

    def build(self):
        a = self.a
        self.entry()
        self.phase1()
        if self.stop >= 2:
            from phases import phase2, phase3, phase4, phase5
            phase2(self)
            if self.stop >= 3: phase3(self)
            if self.stop >= 4: phase4(self)
            if self.stop >= 5: phase5(self)
        a("s_waitcnt vmcnt(0)")
        if self.o.get("fixend"):
            if self.o.get("diag"):
                a("s_cmp_eq_u32 s35, 0")
                a("s_cbranch_scc1 L_end")
            a.label("L_fixend")
            a("s_memrealtime s[100:101]")
            a("s_waitcnt lgkmcnt(0)")
            a(f"s_sub_u32 s100, s100, s{31 if self.o.get('fixown') else S_NONCE}")
            a(f"s_cmp_lt_u32 s100, {int(self.o['fixend'])*100}")
            a("s_cbranch_scc1 L_fixend")
        self.stamp(31)
        self.stamp_flush()
        a.label("L_end")
        a("s_endpgm")
        a.lines.append(f".fill {self.pad}, 4, 0xbf810000")
        body = a.text()
        errs = check(body)
        if errs:
            sys.stderr.write("\n".join(errs[:40]) + "\n%d hazards\n" % len(errs))
            raise SystemExit(1)
        head = f"""; Fused preLN -> MHA -> residual -> preLN -> SiLU FFN -> residual in one persistent launch
;      checks its sums and outputs; if the shift was unsafe (sum > 2^40, inf or NaN) the wave redoes its rows
; @launch grid=(256,1,1) block=(512,1,1) lds={LDS_BYTES}
.amdgcn_target "amdgcn-amd-amdhsa--gfx950"
.text
.globl {NAME}_kernel
.p2align 8
.type {NAME}_kernel,@function
{NAME}_kernel:
"""
        tail = f""".section .rodata,"a"
.p2align 6
.amdhsa_kernel {NAME}_kernel
  .amdhsa_next_free_vgpr 256
  .amdhsa_next_free_sgpr 102
  .amdhsa_accum_offset 256
  .amdhsa_group_segment_fixed_size 0
  .amdhsa_kernarg_size 72
  .amdhsa_user_sgpr_count 2
  .amdhsa_user_sgpr_kernarg_segment_ptr 1
  .amdhsa_system_sgpr_workgroup_id_x 1
.end_amdhsa_kernel
"""
        return head + body + tail

if __name__ == "__main__":
    stop = int(sys.argv[2]) if len(sys.argv) > 2 else 99
    opts = dict(kv.split("=") for kv in sys.argv[3:])
    import subprocess
    def asm_size(path):
        r = subprocess.run(["clang", "-x", "assembler", "-target", "amdgcn-amd-amdhsa", "-mcpu=gfx950", "-c", path, "-o", "_chk.o"], capture_output=True, text=True)
        if r.returncode: print(r.stderr[:1500]); raise SystemExit(1)
        r = subprocess.run(["llvm-readelf", "-S", "_chk.o"], capture_output=True, text=True)
        return int([l for l in r.stdout.split("\n") if ".text" in l][0].split()[6], 16)
    open(sys.argv[1], "w").write(K(stop, opts).build())
    n = asm_size(sys.argv[1])
    k = K(stop, opts)
    k.CPF_LINES = (n + 4095) // 4096
    k.pad = (k.CPF_LINES * 4096 - n) // 4 + 16
    open(sys.argv[1], "w").write(k.build())
    print(sys.argv[1], "code bytes:", n, "with pad:", asm_size(sys.argv[1]))
```

```python
import sys, math
from asmlib import Asm, vr, sr, f2u, check
from tables import *

NAME = "sequential_preLN__mha_block__dense_activation_silu__prompt"
LDS_BYTES = 163840
SPIN_MAX = 200000

S_G = 2
SRD_X, SRD_WQ, SRD_WS, SRD_OUT, SRD_DBG, SRD_RL = 4, 8, 12, 16, 20, 24
S_W, S_C, S_J = 28, 29, 30
S_NONCE = 32
S_PTR = 36
T0, T1, T2, T3, T4, T5 = 54, 55, 56, 57, 58, 59
S_M1 = 60
S_SPIN = 62

class K:
    def __init__(self, stop_after=99, opts=None):
        self.a = Asm()
        self.stop = stop_after
        self.o = opts or {}
        self.pad = 0
        self._sides = []; self._late1 = []

    def srd(self, d, ptr, nbytes):
        a = self.a
        a(f"s_mov_b32 s{d}, s{ptr}")
        a(f"s_and_b32 s{d+1}, s{ptr+1}, 0xffff")
        a(f"s_mov_b32 s{d+2}, {nbytes}")
        a(f"s_mov_b32 s{d+3}, 0x20000")

    def stamp(self, idx):
        if not self.o.get("stamps"): return
        if self.o["stamps"] == "min" and idx not in (0, 9, 10, 31): return
        a = self.a
        a("s_memrealtime s[100:101]")
        a("s_waitcnt lgkmcnt(0)")
        a(f"v_writelane_b32 v255, s100, {idx}")
        if idx < 22 and self.o["stamps"] != "min":
            a("s_memtime s[100:101]")
            a("s_waitcnt lgkmcnt(0)")
            a(f"v_writelane_b32 v255, s100, {idx+32}")

    def stamp_dyn(self, base, sreg):
        if not self.o.get("its"): return
        a = self.a
        a("s_memtime s[100:101]")
        a("s_mov_b32 s99, m0")
        a(f"s_add_u32 m0, s{sreg}, {base}")
        a("s_waitcnt lgkmcnt(0)")
        a("v_writelane_b32 v255, s100, m0")
        a("s_mov_b32 m0, s99")

    def stamp_flush(self):
        if not self.o.get("stamps"): return
        a = self.a
        if self.o.get("dbgwg"):
            L = a.newlabel("dbg")
            a(f"s_cmp_lg_u32 s{S_G}, {int(self.o['dbgwg'])}")
            a(f"s_cbranch_scc1 {L}")
            a(f"s_cmp_lg_u32 s{S_W}, 0")
            a(f"s_cbranch_scc1 {L}")
            a(f"v_readlane_b32 s{T1}, v255, 0")
            for n, i in enumerate((3, 4, 7, 8, 9, 10, 12, 13, 15, 16, 18, 19, 31)):
                a(f"v_readlane_b32 s{T0}, v255, {i}")
                a("s_nop 3")
                a(f"s_sub_u32 s{T0}, s{T0}, s{T1}")
                a(f"v_mov_b32 v1, s{T0}")
                a(f"v_mov_b32 v2, {8+4*n}")
                a(f"buffer_store_dword v1, v2, s[{SRD_DBG}:{SRD_DBG+3}], 0 offen")
            a.label(L)
            return
        a(f"s_lshl_b32 s{T0}, s{S_G}, 3")
        a(f"s_add_u32 s{T0}, s{T0}, s{S_W}")
        a(f"s_lshl_b32 s{T0}, s{T0}, 8")
        a(f"s_add_u32 s{T0}, s{T0}, {WS_SIZE}")
        a("v_lshlrev_b32 v1, 2, v0")
        a(f"buffer_store_dword v255, v1, s[{SRD_WS}:{SRD_WS+3}], s{T0} offen")
        a("s_mov_b64 exec, -1")

    def hold(self, key):
        if not self.o.get(key): return
        a = self.a
        L = a.newlabel("hold")
        a.label(L)
        a("s_memrealtime s[100:101]")
        a("s_waitcnt lgkmcnt(0)")
        a(f"s_sub_u32 s100, s100, s{S_NONCE}")
        a(f"s_cmp_lt_u32 s100, {int(float(self.o[key]) * 100)}")
        a(f"s_cbranch_scc1 {L}")

    def diag(self, what):
        if self.o.get("diag") == what: self.a("s_mov_b32 s35, 1")

    def dma(self, voff, srd, soff, flags=""):
        if self.o.get("nodma"): return
        self.a(f"buffer_load_dwordx4 v{voff}, s[{srd}:{srd+3}], {soff} offen {flags} lds".replace("  ", " "))

    def flag_store(self, s_off, vt, pol="sc1"):
        a = self.a
        L = a.newlabel("nofl")
        a(f"s_cmp_lg_u32 s{S_W}, 0")
        a(f"s_cbranch_scc1 {L}")
        a(f"v_mov_b32 v{vt}, s{S_NONCE}")
        a(f"v_mov_b32 v{vt+1}, s{S_NONCE+1}")
        a(f"v_mov_b32 v{vt+2}, 0")
        a("s_mov_b64 exec, 1")
        a(f"buffer_store_dwordx2 v[{vt}:{vt+1}], v{vt+2}, s[{SRD_WS}:{SRD_WS+3}], s{s_off} offen {pol}")
        a("s_mov_b64 exec, -1")
        a.label(L)

    def poll(self, n, s_off, spacing, vt, only_wave0=True):
        a = self.a
        L = a.newlabel("poll"); Ld = a.newlabel("polld")
        if only_wave0:
            a(f"s_cmp_lg_u32 s{S_W}, 0")
            a(f"s_cbranch_scc1 {Ld}")
        a(f"s_mov_b32 s{S_SPIN}, 0")
        if n == 256:
            assert spacing == 8
            a(f"v_lshlrev_b32 v{vt+8}, 4, v0")
            a.label(L)
            a(f"buffer_load_dwordx4 v[{vt}:{vt+3}], v{vt+8}, s[{SRD_WS}:{SRD_WS+3}], s{s_off} offen sc1")
            a(f"buffer_load_dwordx4 v[{vt+4}:{vt+7}], v{vt+8}, s[{SRD_WS}:{SRD_WS+3}], s{s_off} offen offset:1024 sc1")
            a(f"s_add_u32 s{S_SPIN}, s{S_SPIN}, 1")
            a("s_waitcnt vmcnt(0)")
            a(f"v_cmp_ne_u64 vcc, s[{S_NONCE}:{S_NONCE+1}], v[{vt}:{vt+1}]")
            a(f"v_cmp_ne_u64 s[{S_M1}:{S_M1+1}], s[{S_NONCE}:{S_NONCE+1}], v[{vt+2}:{vt+3}]")
            a("s_nop 0")
            a(f"s_or_b64 s[{T4}:{T5}], vcc, s[{S_M1}:{S_M1+1}]")
            a(f"v_cmp_ne_u64 vcc, s[{S_NONCE}:{S_NONCE+1}], v[{vt+4}:{vt+5}]")
            a(f"v_cmp_ne_u64 s[{S_M1}:{S_M1+1}], s[{S_NONCE}:{S_NONCE+1}], v[{vt+6}:{vt+7}]")
            a("s_nop 0")
            a(f"s_or_b64 s[{T4}:{T5}], s[{T4}:{T5}], vcc")
            a(f"s_or_b64 s[{T4}:{T5}], s[{T4}:{T5}], s[{S_M1}:{S_M1+1}]")
        else:
            a(f"v_and_b32 v{vt+2}, {n-1}, v0")
            a(f"v_mul_u32_u24 v{vt+2}, {spacing}, v{vt+2}")
            a.label(L)
            a(f"buffer_load_dwordx2 v[{vt}:{vt+1}], v{vt+2}, s[{SRD_WS}:{SRD_WS+3}], s{s_off} offen sc1")
            a(f"s_add_u32 s{S_SPIN}, s{S_SPIN}, 1")
            a("s_waitcnt vmcnt(0)")
            a(f"v_cmp_ne_u64 vcc, s[{S_NONCE}:{S_NONCE+1}], v[{vt}:{vt+1}]")
            a("s_nop 0")
            a(f"s_or_b64 s[{T4}:{T5}], vcc, vcc")
        a(f"s_cbranch_scc0 {Ld}")
        if self.o.get("psleep"): a(f"s_sleep {int(self.o['psleep'])}")
        a(f"s_cmp_lt_u32 s{S_SPIN}, {SPIN_MAX}")
        a(f"s_cbranch_scc1 {L}")
        a.label(Ld)

    def pollp(self, n, s_off, spacing, va, vt, depth):
        a = self.a
        L = a.newlabel("poll"); Ld = a.newlabel("polld")
        N = f"s[{S_NONCE}:{S_NONCE+1}]"
        a(f"s_cmp_lg_u32 s{S_W}, 0")
        a(f"s_cbranch_scc1 {Ld}")
        a(f"s_mov_b32 s{S_SPIN}, 0")
        a(f"v_and_b32 v{va}, {n-1}, v0")
        a(f"v_mul_u32_u24 v{va}, {spacing}, v{va}")
        ld = lambda i: a(f"buffer_load_dwordx2 v[{vt+2*i}:{vt+2*i+1}], v{va}, s[{SRD_WS}:{SRD_WS+3}], s{s_off} offen sc1")
        for i in range(depth - 1):
            ld(i); a(f"s_sleep {int(self.o.get('psl', 2))}")
        a.label(L)
        for i in range(depth):
            ld((i + depth - 1) % depth)
            a(f"s_waitcnt vmcnt({depth-1})")
            a(f"v_cmp_ne_u64 vcc, {N}, v[{vt+2*i}:{vt+2*i+1}]")
            a(f"s_cbranch_vccz {Ld}")
        a(f"s_add_u32 s{S_SPIN}, s{S_SPIN}, 1")
        a(f"s_cmp_lt_u32 s{S_SPIN}, {SPIN_MAX}")
        a(f"s_cbranch_scc1 {L}")
        a.label(Ld)

    def poll2(self, va, vb, s_off, vt):
        a = self.a
        L = a.newlabel("poll"); Ld = a.newlabel("polld")
        N = f"s[{S_NONCE}:{S_NONCE+1}]"
        a(f"s_cmp_lg_u32 s{S_W}, 0")
        a(f"s_cbranch_scc1 {Ld}")
        a(f"s_mov_b32 s{S_SPIN}, 0")
        a.label(L)
        a(f"buffer_load_dwordx2 v[{vt}:{vt+1}], v{va}, s[{SRD_WS}:{SRD_WS+3}], s{s_off} offen sc1")
        a(f"buffer_load_dwordx2 v[{vt+2}:{vt+3}], v{vb}, s[{SRD_WS}:{SRD_WS+3}], s{s_off} offen sc1")
        a(f"s_add_u32 s{S_SPIN}, s{S_SPIN}, 1")
        a("s_waitcnt vmcnt(0)")
        a(f"v_cmp_ne_u64 vcc, {N}, v[{vt}:{vt+1}]")
        a(f"v_cmp_ne_u64 s[{S_M1}:{S_M1+1}], {N}, v[{vt+2}:{vt+3}]")
        a("s_nop 0")
        a(f"s_or_b64 vcc, vcc, s[{S_M1}:{S_M1+1}]")
        a(f"s_cbranch_scc0 {Ld}")
        if self.o.get("psleep"): a(f"s_sleep {int(self.o['psleep'])}")
        a(f"s_cmp_lt_u32 s{S_SPIN}, {SPIN_MAX}")
        a(f"s_cbranch_scc1 {L}")
        a.label(Ld)

    def entry(self):
        a = self.a
        a(f"s_cmp_ge_u32 s{S_G}, 256")
        a("s_cbranch_scc1 L_end")
        a(f"s_load_dwordx2 s[{SRD_X}:{SRD_X+1}], s[0:1], 0")
        a(f"s_load_dwordx2 s[{SRD_WQ}:{SRD_WQ+1}], s[0:1], 8")
        a(f"s_load_dwordx2 s[{SRD_DBG}:{SRD_DBG+1}], s[0:1], 56")
        a(f"s_load_dwordx16 s[{S_PTR}:{S_PTR+15}], s[0:1], 0")
        a(f"s_load_dwordx2 s[{S_PTR+16}:{S_PTR+17}], s[0:1], 64")
        a(f"s_memrealtime s[{S_NONCE}:{S_NONCE+1}]")
        if self.o.get("stamps"): a("v_mov_b32 v255, 0")
        self.stamp(0)
        a("v_lshrrev_b32 v1, 6, v0")
        a("v_and_b32 v0, 63, v0")
        a(f"v_readfirstlane_b32 s{S_W}, v1")
        a(f"s_and_b32 s{S_C}, s{S_G}, 7")
        a(f"s_lshr_b32 s{S_J}, s{S_G}, 3")

    ACC = 16; XF = 160; WF = 176; XA = 72; WA = 144; DXA, DXB, DW = 78, 79, 80; VXM = 76
    ONES = 82
    CQ = 96
    CQA = 81; CSW = 85
    PGA, PGV, PGR, PGD = 116, 117, 118, 119
    RSA, RS = 84, 128
    STA = 86
    RLV, RLA = 157, 158
    VN = 92
    sRB, sCT, sKC, sXO, sWO, sSLOT, sCNT, sXM, sTG, sNH = 64, 65, 66, 67, 68, 69, 70, 71, 72, 73
    sTAB = 74
    sM0X = 80; sWO2 = 81; sKC0 = 82; sSIDE = 83; sI1 = 71; sI2 = 34; sSM = 35
    sRL = 84
    P1_MISC = 148 * 1024
    RL_SCR = 68 * 1024
    CQ_SCR = 128 * 1024
    DUMMY = 159 * 1024
    CPF_LINES = 8

    def p1_issue(self, pieces=(0, 1, 2, 3)):
        a = self.a
        if 0 in pieces:
            a(f"s_add_u32 m0, s{self.sM0X}, s{self.sSLOT}")
            a(f"s_add_u32 s{self.sKC}, s{self.sKC}, 1")
            self.dma(self.DXA, SRD_X, f"s{self.sXO}")
        if 1 in pieces:
            a("s_add_u32 m0, m0, 16384")
            a(f"s_add_u32 s{self.sWO2}, s{self.sWO}, 15360")
            self.dma(self.DW, SRD_WQ, f"s{self.sWO}")
        if 2 in pieces:
            a("s_sub_u32 m0, m0, 15360")
            a(f"s_add_u32 s{self.sWO}, s{self.sWO}, 245760")
            self.dma(self.DXB, SRD_X, f"s{self.sXO}")
        if 3 in pieces:
            a("s_add_u32 m0, m0, 16384")
            a(f"s_add_u32 s{self.sXO}, s{self.sXO}, 128")
            self.dma(self.DW, SRD_WQ, f"s{self.sWO2}")
            a(f"s_cmp_eq_u32 s{self.sKC}, 10")
            a(f"s_cselect_b32 s{T0}, 1280, 0")
            a(f"s_cselect_b32 s{T1}, 2457600, 0")
            a(f"s_cselect_b32 s{self.sKC}, 0, s{self.sKC}")
            a(f"s_sub_u32 s{self.sXO}, s{self.sXO}, s{T0}")
            a(f"s_sub_u32 s{self.sWO}, s{self.sWO}, s{T1}")
            a(f"s_add_u32 s{self.sSLOT}, s{self.sSLOT}, 32768")
            a(f"s_and_b32 s{self.sSLOT}, s{self.sSLOT}, 0x1ffff")

    def p1_setup_a(self):
        a = self.a
        a(f"s_lshr_b32 s{T0}, s{S_C}, 1")
        a(f"s_lshl_b32 s{T0}, s{T0}, 2")
        a(f"s_lshr_b32 s{T1}, s{S_J}, 3")
        a(f"s_add_u32 s{self.sRB}, s{T0}, s{T1}")
        a(f"s_and_b32 s{T0}, s{S_C}, 1")
        a(f"s_lshl_b32 s{T0}, s{T0}, 3")
        a(f"s_and_b32 s{T2}, s{S_J}, 7")
        a(f"s_add_u32 s{self.sCT}, s{T0}, s{T2}")
        g = int(self.o.get("rotg", 4))
        if g == 8:
            a(f"s_lshl_b32 s{T1}, s{T1}, 1")
            a(f"s_add_u32 s{self.sKC}, s{T2}, s{T1}")
            a(f"s_bfe_u32 s{T0}, s{S_C}, 0x10001")
            a(f"s_and_b32 s{T1}, s{S_C}, 4")
            a(f"s_lshl_b32 s{T1}, s{T1}, 1")
            a(f"s_add_u32 s{T0}, s{T0}, s{T1}")
            a(f"s_add_u32 s{self.sKC}, s{self.sKC}, s{T0}")
        else:
            bases, offs, shift = {3: ((0, 3, 7), (0, 1, 2, 6), 0), 4: ((0, 2, 5, 7), (0, 1, 2, 3), 0), 5: ((0, 2, 4, 6, 8), (0, 1, 0, 1), 1)}[g]
            a(f"s_add_u32 s{T1}, s{T1}, s{T2}")
            a(f"s_lshr_b32 s{T0}, s{S_C}, 1")
            if shift: a(f"s_add_u32 s{T1}, s{T1}, s{T0}")
            tab = sum(bases[i % g] << (4 * i) for i in range(16))
            a(f"s_lshl_b32 s{T1}, s{T1}, 2")
            a(f"s_mov_b32 s{T4}, 0x{tab & 0xffffffff:08x}")
            a(f"s_mov_b32 s{T5}, 0x{tab >> 32:08x}")
            a(f"s_lshr_b64 s[{T4}:{T5}], s[{T4}:{T5}], s{T1}")
            a(f"s_and_b32 s{self.sKC}, s{T4}, 15")
            a(f"s_lshl_b32 s{T0}, s{T0}, 2")
            a(f"s_lshr_b32 s{T0}, 0x{sum(o << (4 * i) for i, o in enumerate(offs)):04x}, s{T0}")
            a(f"s_and_b32 s{T0}, s{T0}, 15")
            a(f"s_add_u32 s{self.sKC}, s{self.sKC}, s{T0}")
            for ct in range(8):
                assert len({(bases[(ct + rl + shift * aa) % g] + offs[aa]) % 10 for aa in range(4) for rl in range(4)}) == 10
        a(f"s_mul_i32 s{T0}, s{self.sKC}, 26")
        a(f"s_lshr_b32 s{T0}, s{T0}, 8")
        a(f"s_mul_i32 s{T0}, s{T0}, 10")
        a(f"s_sub_u32 s{self.sKC}, s{self.sKC}, s{T0}")
        a(f"s_mov_b32 s{self.sKC0}, s{self.sKC}")
        a(f"s_mul_i32 s{self.sXO}, s{self.sRB}, 163840")
        a(f"s_lshl_b32 s{T0}, s{self.sKC}, 7")
        a(f"s_add_u32 s{self.sXO}, s{self.sXO}, s{T0}")
        a(f"s_mul_i32 s{self.sWO}, s{self.sKC}, 245760")
        a(f"s_lshl_b32 s{T0}, s{self.sCT}, 8")
        a(f"s_add_u32 s{self.sWO}, s{self.sWO}, s{T0}")
        a(f"s_lshl_b32 s{self.sM0X}, s{S_W}, 11")
        a(f"s_mov_b32 s{self.sSLOT}, 0")
        a("v_lshrrev_b32 v1, 3, v0")
        a("v_lshrrev_b32 v2, 4, v0")
        a("v_and_b32 v3, 7, v0")
        a("v_xor_b32 v3, v3, v2")
        a(f"s_lshl_b32 s{T0}, s{S_W}, 4")
        a(f"v_add_u32 v4, s{T0}, v1")
        a("v_mul_u32_u24 v4, 1280, v4")
        a(f"v_lshl_add_u32 v{self.DXA}, v3, 4, v4")
        a(f"v_xor_b32 v{self.DXB}, 64, v{self.DXA}")
        a(f"v_add_u32 v{self.DXB}, 10240, v{self.DXB}")
        a("v_lshlrev_b32 v3, 2, v2")
        a("v_and_b32 v4, 15, v0")
        a("v_xor_b32 v3, v3, v4")
        a(f"s_lshl_b32 s{T0}, s{S_W}, 3")
        a(f"v_add_u32 v4, s{T0}, v2")
        a("v_mul_u32_u24 v4, 3840, v4")
        a(f"v_lshl_add_u32 v{self.DW}, v3, 4, v4")
        for d, n in ((SRD_X, 2048 * 1280), (SRD_WQ, 640 * 3840), (SRD_DBG, 256)):
            a(f"s_mov_b32 s{d+2}, {n}")
            a(f"s_mov_b32 s{d+3}, 0x20000")
        a("s_waitcnt lgkmcnt(0)")
        if self.o.get("fixown"): a(f"s_mov_b32 s31, s{S_NONCE}")
        if self.o.get("diag"): a("s_mov_b32 s35, 0")
        a(f"s_or_b32 s{T0}, s{S_G}, s{S_W}")
        a("s_cbranch_scc0 L_nonce_pub")
        a.label("L_nonce_done")
        a(f"s_cmp_eq_u32 s{self.sCT}, 15")
        a("s_cbranch_scc1 L_p1_noissue")
        self.p1_issue()
        if self.o.get("first5", "1") == "1": self.p1_issue((0,))
        a.label("L_p1_noissue")
        self.stamp(1)
        self.srd(SRD_WS, S_PTR + 16, WS_SIZE + ((1 << 20) if self.o.get("stamps") else 0))
        self.srd(SRD_OUT, S_PTR + 12, 2048 * 1280)
        a(f"s_mov_b64 s[{SRD_RL}:{SRD_RL+1}], 0")
        a(f"s_mov_b32 s{SRD_RL+2}, 0")
        a(f"s_mov_b32 s{SRD_RL+3}, 0x20000")
        a(f"v_mov_b32 v{self.RLV}, 0")
        if self.o.get("cpf", "1") == "1":
            Lc = a.newlabel("cpf")
            a(f"s_cmp_lg_u32 s{S_W}, 7")
            a(f"s_cbranch_scc1 {Lc}")
            a(f"s_getpc_b64 s[{T4}:{T5}]")
            a.label("L_pc_here")
            a(f"s_mul_i32 s{T0}, s{S_J}, {self.CPF_LINES*128}")
            a(f"s_sub_u32 s{T0}, s{T0}, L_pc_here-{NAME}_kernel")
            a(f"v_min_u32 v3, {self.CPF_LINES-1}, v0")
            a(f"v_lshl_add_u32 v3, v3, 7, s{T0}")
            a("v_ashrrev_i32 v5, 31, v3")
            a(f"v_mov_b32 v6, s{T5}")
            a(f"v_add_co_u32 v4, vcc, s{T4}, v3")
            a("s_nop 1")
            a("v_addc_co_u32 v5, vcc, v5, v6, vcc")
            a("global_load_dword v254, v[4:5], off")
            a.label(Lc)

    def relayout_setup(self):
        a = self.a
        R = self.sRL
        u = a.newlabel("u")
        sID, sKS, sCB, sST, sA, sB, sCc, sD = T0, T1, T2, T3, 93, 94, 95, 96
        sBase, sSl, sKsS = 97, 98, 99
        a(f"s_mul_i32 s{sID}, s{S_G}, 5")
        a(f"s_add_u32 s{sID}, s{sID}, s{S_W}")
        a(f"s_sub_u32 s{sID}, s{sID}, 1")
        a(f"s_min_u32 s{sID}, s{sID}, 1279")
        a(f"s_mov_b32 s{sA}, 16")
        a(f"s_mov_b32 s{sB}, 8")
        a(f"s_mov_b32 s{sCc}, 4")
        a(f"s_mov_b32 s{SRD_RL+3}, 0x20000")
        a(f"s_mov_b32 s{R+8}, -1")
        a(f"s_cmp_lt_u32 s{sID}, 200")
        a(f"s_cbranch_scc1 L_rl_wo{u}")
        a(f"s_cmp_lt_u32 s{sID}, 740")
        a(f"s_cbranch_scc1 L_rl_w1{u}")
        a(f"s_sub_u32 s{sID}, s{sID}, 740")
        a(f"s_mul_i32 s{sKS}, s{sID}, 6554")
        a(f"s_lshr_b32 s{sKS}, s{sKS}, 16")
        a(f"s_mul_i32 s{sCB}, s{sKS}, 10")
        a(f"s_sub_u32 s{sCB}, s{sID}, s{sCB}")
        a(f"s_lshl_b32 s{sD}, s{sKS}, 5")
        a(f"s_mov_b32 s{SRD_RL}, s{S_PTR+10}")
        a(f"s_and_b32 s{SRD_RL+1}, s{S_PTR+11}, 0xffff")
        a(f"s_mov_b32 s{SRD_RL+2}, {1728*1280}")
        a(f"s_mov_b32 s{sBase}, {WS_W2}")
        a(f"s_mov_b32 s{sSl}, {54*5120}")
        a(f"s_cmp_ge_u32 s{sKS}, 48")
        a(f"s_cselect_b32 s{sA}, 4, 16")
        a(f"s_cselect_b32 s{sB}, 16, 8")
        a(f"s_cselect_b32 s{sCc}, 8, 4")
        a(f"s_add_u32 s{T4}, s{sKS}, 3")
        a(f"s_cmp_ge_u32 s{sKS}, 24")
        a(f"s_cselect_b32 s{T4}, s{T4}, s{sKS}")
        a(f"s_sub_u32 s{T5}, s{sKS}, 24")
        a(f"s_cmp_ge_u32 s{sKS}, 48")
        a(f"s_cselect_b32 s{T4}, s{T5}, s{T4}")
        a(f"s_cmp_ge_u32 s{sKS}, 51")
        a(f"s_cselect_b32 s{sKS}, s{sKS}, s{T4}")
        a(f"s_branch L_rl_n640{u}")
        a.label(f"L_rl_wo{u}")
        a(f"s_mul_i32 s{sKS}, s{sID}, 6554")
        a(f"s_lshr_b32 s{sKS}, s{sKS}, 16")
        a(f"s_mul_i32 s{sCB}, s{sKS}, 10")
        a(f"s_sub_u32 s{sCB}, s{sID}, s{sCB}")
        a(f"s_mul_i32 s{sD}, s{sKS}, 40")
        a(f"s_mul_i32 s{sST}, s{sKS}, 160")
        a(f"s_sub_u32 s{sST}, s{sST}, {160*16-16}")
        a(f"s_cmp_lt_u32 s{sKS}, 16")
        a(f"s_cselect_b32 s{sD}, s{sD}, s{sST}")
        a(f"s_cselect_b32 s{sA}, 8, 20")
        a(f"s_cselect_b32 s{sB}, 20, 0x50")
        a(f"s_cselect_b32 s{sCc}, 4, 40")
        a(f"s_mov_b32 s{SRD_RL}, s{S_PTR+4}")
        a(f"s_and_b32 s{SRD_RL+1}, s{S_PTR+5}, 0xffff")
        a(f"s_mov_b32 s{SRD_RL+2}, {640*1280}")
        a(f"s_mov_b32 s{sBase}, {WS_WO}")
        a(f"s_mov_b32 s{sSl}, {20*5120}")
        a(f"s_add_u32 s{T4}, s{sKS}, 2")
        a(f"s_cmp_ge_u32 s{sKS}, 8")
        a(f"s_cselect_b32 s{T4}, s{T4}, s{sKS}")
        a(f"s_sub_u32 s{T5}, s{sKS}, 8")
        a(f"s_cmp_ge_u32 s{sKS}, 16")
        a(f"s_cselect_b32 s{T4}, s{T5}, s{T4}")
        a(f"s_cmp_ge_u32 s{sKS}, 18")
        a(f"s_cselect_b32 s{sKS}, s{sKS}, s{T4}")
        a(f"s_sub_u32 s{T4}, s{sKS}, 1")
        a(f"s_cmp_ge_u32 s{sKS}, 10")
        a(f"s_cselect_b32 s{T4}, s{T4}, s{sKS}")
        a(f"s_cmp_eq_u32 s{sKS}, 9")
        a(f"s_cselect_b32 s{T4}, 18, s{T4}")
        a(f"s_cmp_eq_u32 s{sKS}, 19")
        a(f"s_cselect_b32 s{sKS}, 19, s{T4}")
        a.label(f"L_rl_n640{u}")
        a(f"s_mov_b32 s{sST}, 1280")
        a(f"s_mul_i32 s{sKsS}, s{sKS}, 5120")
        a(f"s_add_u32 s{sBase}, s{sBase}, s{sKsS}")
        for t in range(4):
            a(f"s_lshl_b32 s{T4}, s{sCB}, 2")
            a(f"s_add_u32 s{T4}, s{T4}, {t}")
            a(f"s_mul_i32 s{T5}, s{T4}, 52")
            a(f"s_lshr_b32 s{T5}, s{T5}, 8")
            a(f"s_mul_i32 s{R+4+t}, s{T5}, s{sSl}")
            a(f"s_mul_i32 s{T5}, s{T5}, 5")
            a(f"s_sub_u32 s{T4}, s{T4}, s{T5}")
            a(f"s_lshl_b32 s{T4}, s{T4}, 10")
            a(f"s_add_u32 s{R+4+t}, s{R+4+t}, s{T4}")
            a(f"s_add_u32 s{R+4+t}, s{R+4+t}, s{sBase}")
        a(f"s_branch L_rl_common{u}")
        a.label(f"L_rl_w1{u}")
        a(f"s_sub_u32 s{sID}, s{sID}, 200")
        a(f"s_mul_i32 s{sKS}, s{sID}, 2428")
        a(f"s_lshr_b32 s{sKS}, s{sKS}, 16")
        a(f"s_mul_i32 s{sCB}, s{sKS}, 27")
        a(f"s_sub_u32 s{sCB}, s{sID}, s{sCB}")
        a(f"s_lshr_b32 s{T4}, s{sKS}, 1")
        a(f"s_mul_i32 s{T4}, s{T4}, 0x50")
        a(f"s_and_b32 s{T5}, s{sKS}, 1")
        a(f"s_lshl_b32 s{T5}, s{T5}, 5")
        a(f"s_add_u32 s{sD}, s{T4}, s{T5}")
        a(f"s_mul_i32 s{T4}, s{sKS}, 160")
        a(f"s_sub_u32 s{T4}, s{T4}, {160*16-64}")
        a(f"s_cmp_lt_u32 s{sKS}, 16")
        a(f"s_cselect_b32 s{sD}, s{sD}, s{T4}")
        a(f"s_cselect_b32 s{sA}, 16, 4")
        a(f"s_cselect_b32 s{sB}, 8, 0x50")
        a(f"s_cselect_b32 s{sCc}, 4, 8")
        a(f"s_mov_b32 s{SRD_RL}, s{S_PTR+8}")
        a(f"s_and_b32 s{SRD_RL+1}, s{S_PTR+9}, 0xffff")
        a(f"s_mov_b32 s{SRD_RL+2}, {640*3456}")
        a(f"s_mov_b32 s{sST}, 3456")
        a(f"s_mul_i32 s{sKsS}, s{sKS}, 7168")
        a(f"s_add_u32 s{sBase}, s{sKsS}, {WS_W1}")
        a(f"s_mul_i32 s{R+8}, s{sKS}, {1728*4}")
        a(f"s_lshl_b32 s{T4}, s{sCB}, 8")
        a(f"s_add_u32 s{R+8}, s{R+8}, s{T4}")
        a(f"s_add_u32 s{R+8}, s{R+8}, {WS_CS1}")
        for t in range(4):
            a(f"s_lshl_b32 s{T4}, s{sCB}, 2")
            a(f"s_add_u32 s{T4}, s{T4}, {t}")
            a(f"s_mul_i32 s{T5}, s{T4}, 43")
            a(f"s_lshr_b32 s{T5}, s{T5}, 8")
            a(f"s_mul_i32 s{sSl}, s{T5}, 6")
            a(f"s_sub_u32 s{sSl}, s{T4}, s{sSl}")
            a(f"s_sub_u32 s{sKsS}, s{T4}, 96")
            a(f"s_cmp_lt_u32 s{T4}, 96")
            a(f"s_cselect_b32 s{T5}, s{T5}, s{sKsS}")
            a(f"s_cselect_b32 s{sSl}, s{sSl}, 6")
            a(f"s_mul_i32 s{R+4+t}, s{T5}, {20*7168}")
            a(f"s_lshl_b32 s{sSl}, s{sSl}, 10")
            a(f"s_add_u32 s{R+4+t}, s{R+4+t}, s{sSl}")
            a(f"s_add_u32 s{R+4+t}, s{R+4+t}, s{sBase}")
        a.label(f"L_rl_common{u}")
        a(f"s_mul_i32 s{sD}, s{sD}, s{sST}")
        a(f"s_lshl_b32 s{T4}, s{sCB}, 7")
        a(f"s_add_u32 s{R}, s{sD}, s{T4}")
        a(f"s_mul_i32 s{sA}, s{sA}, s{sST}")
        a(f"s_mul_i32 s{sB}, s{sB}, s{sST}")
        a(f"s_add_u32 s{R+1}, s{R}, s{sB}")
        a(f"s_add_u32 s{R+2}, s{R}, s{sA}")
        a(f"s_add_u32 s{R+3}, s{R+2}, s{sB}")
        a("v_lshrrev_b32 v1, 5, v0")
        a(f"v_mul_u32_u24 v1, s{sCc}, v1")
        a("v_bfe_u32 v2, v0, 3, 2")
        a("v_add_u32 v1, v1, v2")
        a(f"v_mul_u32_u24 v1, s{sST}, v1")
        a("v_and_b32 v2, 7, v0")
        a(f"v_lshl_add_u32 v{self.RLV}, v2, 4, v1")
        a("v_lshrrev_b32 v1, 2, v0")
        a("v_lshlrev_b32 v1, 7, v1")
        a("v_and_b32 v2, 3, v0")
        a("v_lshl_add_u32 v1, v2, 3, v1")
        a(f"s_lshl_b32 s{T4}, s{S_W}, 12")
        a(f"s_add_u32 s{T4}, s{T4}, {self.RL_SCR-4096}")
        a(f"v_add_u32 v{self.RLA}, s{T4}, v1")

    def relayout_issue(self, drain_older=False):
        a = self.a
        L = a.newlabel("rlsk")
        a(f"s_sub_u32 s{T0}, s{S_W}, 1")
        a(f"s_cmp_ge_u32 s{T0}, {0 if self.o.get('norl') else 5}")
        a(f"s_cbranch_scc1 {L}")
        a(f"s_lshl_b32 s{T0}, s{S_W}, 12")
        a(f"s_add_u32 m0, s{T0}, {self.RL_SCR-4096}")
        for i in range(4):
            if i: a("s_add_u32 m0, m0, 1024")
            a("s_nop 0")
            self.dma(self.RLV, SRD_RL, f"s{self.sRL+i}")
        if drain_older:
            L2 = a.newlabel("rlw")
            a("s_waitcnt vmcnt(4)")
            a(f"s_branch {L2}")
            a.label(L)
            a("s_waitcnt vmcnt(0)")
            a.label(L2)
        else:
            a.label(L)

    def relayout_finish(self, younger=None):
        a = self.a
        L = a.newlabel("rlsk"); F = 168; t = 184
        a(f"s_sub_u32 s{T0}, s{S_W}, 1")
        a(f"s_cmp_ge_u32 s{T0}, 5")
        Lo = a.newlabel("rlo")
        a(f"s_cbranch_scc1 {Lo if younger is not None else L}")
        if younger is not None: a(f"s_waitcnt vmcnt({younger})")
        for q in range(4):
            for rd in range(2):
                a(f"ds_read_b64_tr_b16 v[{F+4*q+2*rd}:{F+4*q+2*rd+1}], v{self.RLA} offset:{rd*2048+q*32}")
        a(f"v_lshlrev_b32 v{t}, 4, v0")
        for q in range(4):
            a(f"s_waitcnt lgkmcnt({6-2*q})")
            a(f"buffer_store_dwordx4 v[{F+4*q}:{F+4*q+3}], v{t}, s[{SRD_WS}:{SRD_WS+3}], s{self.sRL+4+q} offen sc1")
        if younger is not None: a("s_waitcnt vmcnt(4)")
        a(f"s_cmp_eq_u32 s{self.sRL+8}, -1")
        a(f"s_cbranch_scc1 {L}")
        for q in range(4): a(f"v_mov_b32 v{t+2+q}, 0")
        a(f"v_mov_b32 v{t+6}, 0x3f803f80")
        for k in range(4):
            for q in range(4): a(f"v_dot2_f32_bf16 v{t+2+q}, v{F+4*q+k}, v{t+6}, v{t+2+q}")
        a(f"v_lshlrev_b32 v{t+1}, 2, v0")
        a("s_nop 1")
        a(f"v_permlane16_swap_b32 v{t+2}, v{t+3}")
        a(f"v_permlane16_swap_b32 v{t+4}, v{t+5}")
        a("s_nop 0")
        a(f"v_add_f32 v{t+2}, v{t+2}, v{t+3}")
        a(f"v_add_f32 v{t+4}, v{t+4}, v{t+5}")
        a("s_nop 1")
        a(f"v_permlane32_swap_b32 v{t+2}, v{t+4}")
        a("s_nop 0")
        a(f"v_add_f32 v{t+2}, v{t+2}, v{t+4}")
        a(f"buffer_store_dword v{t+2}, v{t+1}, s[{SRD_WS}:{SRD_WS+3}], s{self.sRL+8} offen sc1")
        if younger is not None:
            a(f"s_branch {L}")
            a.label(Lo)
            a("s_waitcnt vmcnt(0)")
        a.label(L)

    def p1_setup_b(self):
        a = self.a
        a(f"s_and_b32 s{self.sTG}, s{S_W}, 3")
        a(f"s_lshr_b32 s{self.sNH}, s{S_W}, 2")
        a(f"s_cmp_ge_u32 s{self.sCT}, 5")
        a(f"s_cselect_b32 s{T0}, 5, 0")
        a(f"s_sub_u32 s{T0}, s{self.sCT}, s{T0}")
        a(f"s_lshl_b32 s{T0}, s{T0}, 1")
        a(f"s_add_u32 s{T0}, s{T0}, s{self.sNH}")
        for idx in range(10):
            a(f"s_cmp_eq_u32 s{T0}, {idx}")
            a(f"s_cbranch_scc1 L_tab{idx}")
        a(f"s_mul_i32 s{T1}, s{self.sNH}, 0x10101010")
        for k in range(4): a(f"s_add_u32 s{self.sTAB+k}, s{T1}, 0x%08x" % (0x03020100 + 0x04040404 * k))
        a(f"s_mov_b32 s{self.sTAB+4}, 0")
        a(f"s_mov_b32 s{self.sTAB+5}, 0")
        a("s_branch L_tabdone")
        for idx in range(10):
            a.label(f"L_tab{idx}")
            for k, d in enumerate(p1_table(idx // 2, idx % 2)): a(f"s_mov_b32 s{self.sTAB+k}, 0x%08x" % d)
            if idx < 9: a("s_branch L_tabdone")
        a.label("L_tabdone")
        a("v_and_b32 v1, 31, v0")
        a(f"s_lshl_b32 s{T0}, s{self.sTG}, 5")
        a(f"v_add_u32 v2, s{T0}, v1")
        a("v_bfe_u32 v3, v2, 1, 3")
        a("v_lshrrev_b32 v4, 5, v0")
        a("v_xor_b32 v3, v3, v4")
        a("v_lshlrev_b32 v3, 4, v3")
        a(f"v_lshl_add_u32 v{self.XA}, v2, 7, v3")
        a(f"s_xor_b32 s{T3}, s{self.sTG}, s{self.sNH}")
        a(f"s_lshl_b32 s{T0}, s{T3}, 5")
        a(f"v_xor_b32 v{self.XA}, s{T0}, v{self.XA}")
        for ks in range(1, 4): a(f"v_xor_b32 v{self.XA+ks}, {ks<<5}, v{self.XA}")
        a("v_bfe_u32 v5, v0, 2, 2")
        a("v_lshl_add_u32 v6, v4, 3, v5")
        a("v_lshlrev_b32 v6, 8, v6")
        a("v_and_b32 v7, 3, v0")
        a("v_lshlrev_b32 v7, 3, v7")
        a("v_and_b32 v8, 16, v0")
        a("v_cmp_ne_u32 vcc, 0, v8")
        for i in range(2):
            a(f"v_mov_b32 v8, s{self.sTAB+2*i}")
            a(f"v_mov_b32 v9, s{self.sTAB+2*i+1}")
            a("v_cndmask_b32 v8, v8, v9, vcc")
            a("v_bfe_u32 v8, v8, v7, 8")
            a("v_lshlrev_b32 v8, 3, v8")
            a("v_lshlrev_b32 v9, 6, v5")
            a("v_xor_b32 v8, v8, v9")
            a(f"v_add_u32 v8, v6, v8")
            a(f"s_lshl_b32 s{T0}, s{T3}, 12")
            a(f"v_add_u32 v{self.WA+4*i}, s{T0}, v8")
            for j in range(1, 4): a(f"v_xor_b32 v{self.WA+4*i+j}, {j<<12}, v{self.WA+4*i}")
        a(f"s_lshl_b32 s{T0}, s{self.sRB}, 2")
        a(f"s_add_u32 s{T0}, s{T0}, s{self.sTG}")
        a(f"s_lshl_b32 s{T1}, s{T0}, 9")
        a(f"s_add_u32 s{T1}, s{T1}, {WS_RS}")
        a(f"v_lshl_add_u32 v{self.RSA}, v1, 4, s{T1}")
        a(f"s_cmp_ge_u32 s{self.sCT}, 10")
        a("s_cbranch_scc1 L_p1_vaddr")
        a(f"s_lshl_b32 s{T0}, s{T0}, 9")
        a(f"s_cmp_ge_u32 s{self.sCT}, 5")
        a(f"s_cselect_b32 s{T1}, {WS_K}, {WS_Q}")
        a(f"s_add_u32 s{T0}, s{T0}, s{T1}")
        a(f"v_lshl_add_u32 v2, v1, 4, s{T0}")
        a("v_lshlrev_b32 v3, 3, v4")
        a("v_add_u32 v5, 16, v3")
        for i in range(2):
            for qq in range(2):
                a(f"v_bfe_u32 v6, s{self.sTAB+4+i}, v{3 if qq == 0 else 5}, 8")
                a(f"v_lshl_add_u32 v{self.STA+2*i+qq}, v6, 15, v2")
        a("s_branch L_p1_addrdone")
        a.label("L_p1_vaddr")
        a(f"s_mul_i32 s{T0}, s{T0}, 1280")
        a(f"s_add_u32 s{T0}, s{T0}, {WS_V}")
        a(f"s_lshl_b32 s{T1}, s{self.sCT}, 7")
        a(f"s_lshl_b32 s{T2}, s{self.sNH}, 6")
        a(f"s_add_u32 s{T1}, s{T1}, s{T2}")
        a(f"s_sub_u32 s{T1}, s{T1}, 1280")
        a(f"v_mov_b32 v{self.STA+2}, 0")
        a(f"v_mov_b32 v{self.STA+3}, 0")
        a("v_mul_u32_u24 v3, 320, v4")
        a(f"v_add_u32 v3, s{T0}, v3")
        a(f"s_mov_b32 s{T2}, 81920")
        for i in range(2):
            a(f"v_add_u32 v5, s{T1}, v1")
            if i: a("v_add_u32 v5, 32, v5")
            a("v_mul_u32_u24 v6, 3277, v5")
            a("v_lshrrev_b32 v6, 16, v6")
            a("v_mul_u32_u24 v7, 20, v6")
            a("v_sub_u32 v5, v5, v7")
            a("v_lshl_add_u32 v5, v5, 4, v3")
            a(f"v_mad_u32_u24 v{self.STA+i}, v6, s{T2}, v5")
        a.label("L_p1_addrdone")
        for r in range(32): a(f"v_mov_b32 v{self.ACC+r}, 0")
        a(f"s_mul_i32 s{T0}, s{self.sCT}, 10240")
        a(f"s_lshl_b32 s{T1}, s{self.sNH}, 9")
        a(f"s_add_u32 s{T0}, s{T0}, s{T1}")
        a(f"s_add_u32 s{T0}, s{T0}, {WS_CQ}")
        a(f"v_lshl_add_u32 v{self.CQA}, v0, 3, s{T0}")
        a(f"s_lshl_b32 s{T0}, s{self.sNH}, 8")
        a(f"s_lshl_b32 s{T1}, s{self.sTG}, 9")
        a(f"s_add_u32 s{T0}, s{T0}, {self.P1_MISC}")
        a(f"s_add_u32 s{T1}, s{T1}, s{T0}")
        a(f"v_lshl_add_u32 v{self.CSW}, v0, 2, s{T1}")
        a(f"v_lshl_add_u32 v95, v0, 2, s{T0}")
        a(f"v_mov_b32 v{self.VXM}, 0x8000")
        a(f"s_lshl_b32 s{T0}, s{S_W}, 2")
        a(f"s_add_u32 s{T0}, s{T0}, {self.P1_MISC + 2304}")
        a(f"v_mov_b32 v{self.PGA}, s{T0}")
        a(f"v_mov_b32 v{self.PGV}, 0")
        a(f"v_and_b32 v{self.PGR}, 7, v0")
        a(f"v_lshlrev_b32 v{self.PGR}, 2, v{self.PGR}")
        a(f"v_add_u32 v{self.PGR}, {self.P1_MISC + 2304}, v{self.PGR}")
        a(f"ds_write_b32 v{self.PGA}, v{self.PGV}")
        a(f"s_mov_b32 s{self.sCNT}, -1")
        a(f"s_cmp_eq_u32 s{self.sTG}, 0")
        a(f"s_cselect_b32 s{self.sSIDE}, 2, 0")

    def p1_loop(self, vmode):
        a = self.a
        tag = "v" if vmode else "q"
        if self.o.get("p1soft"):
            self.p1_loop1(vmode, 0)
        else:
            a(f"s_cmp_lg_u32 s{self.sNH}, 0")
            a(f"s_cbranch_scc1 L_p1_B{tag}")
            self.p1_loop1(vmode, 0)
            a(f"s_branch L_p1_E{tag}")
            a.label(f"L_p1_B{tag}")
            self.p1_loop1(vmode, 1)
            a.label(f"L_p1_E{tag}")
        reads, xors, mf = self.p1_parts(vmode)
        def comp(ks, rd=True, xr=True):
            a(f"s_waitcnt lgkmcnt({5 if rd or ks == 2 else 0})")
            mf(ks, 0)
            if rd: reads((ks + 2) % 4)
            mf(ks, 1)
            if xr: xors((ks + 2) % 4)
        comp(0); self.p1_issue((2,))
        comp(1); self.p1_issue((3,))
        a(f"buffer_load_dwordx4 v[{self.RS}:{self.RS+3}], v{self.RSA}, s[{SRD_WS}:{SRD_WS+3}], 0 offen sc1")
        a(f"s_mul_i32 s{T0}, s{self.sCT}, 10240")
        a(f"s_lshl_b32 s{T1}, s{S_W}, 10")
        a(f"s_add_u32 s{T0}, s{T0}, s{T1}")
        a(f"s_add_u32 s{T0}, s{T0}, {WS_CQ}")
        a(f"s_add_u32 m0, s{T1}, {self.CQ_SCR}")
        a("v_lshlrev_b32 v1, 4, v0")
        self.dma(1, SRD_WS, f"s{T0}", "sc1")
        a(f"s_add_u32 s{T0}, s{T0}, 8192")
        a("s_add_u32 m0, m0, 8192")
        a(f"s_cmp_ge_u32 s{S_W}, 2")
        a(f"s_cselect_b32 s{T0}, 0x7f000000, s{T0}")
        self.dma(1, SRD_WS, f"s{T0}", "sc1")
        a("s_waitcnt vmcnt(7)")
        a("s_barrier")
        comp(2); comp(3)
        comp(0); comp(1)
        a("s_waitcnt vmcnt(3)")
        a("s_barrier")
        comp(2, xr=False); comp(3, xr=False)
        comp(0, xr=False); comp(1, xr=False)
        a("s_waitcnt vmcnt(0)")
        a("s_barrier")
        self.p1_epi_reads()
        a("s_waitcnt lgkmcnt(15)")
        mf(2, 0); mf(2, 1)
        a("s_waitcnt lgkmcnt(11)")
        mf(3, 0); mf(3, 1)

    def p1_parts(self, vmode):
        a = self.a
        def reads(ks):
            if self.o.get("nolds"): return
            a(f"ds_read_b128 v[{self.XF+4*ks}:{self.XF+4*ks+3}], v{self.XA+ks}")
            for i in range(2):
                for rd in range(2):
                    d = self.WF + 8 * ks + 4 * i + 2 * rd
                    a(f"ds_read_b64_tr_b16 v[{d}:{d+1}], v{self.WA+4*i+ks} offset:{16384+rd*1024}")
        def xors(ks):
            for r in (self.XA + ks, self.WA + ks, self.WA + 4 + ks): a(f"v_xor_b32 v{r}, v{self.VXM}, v{r}")
            if ks == 3: a(f"v_xor_b32 v{self.VXM}, 0x10000, v{self.VXM}")
        def mf(ks, i):
            x = vr(self.XF + 4 * ks, 4); wv = vr(self.WF + 8 * ks + 4 * i, 4); acc = vr(self.ACC + 16 * i, 16)
            if self.o.get("nomfma"): pass
            elif vmode: a(f"v_mfma_f32_32x32x16_bf16 {acc}, {x}, {wv}, {acc}")
            else: a(f"v_mfma_f32_32x32x16_bf16 {acc}, {wv}, {x}, {acc}")
        return reads, xors, mf

    def p1_loop1(self, vmode, B):
        a = self.a
        L = a.newlabel("p1loop")
        pos = self.o.get("barB" if B else "barA", "1" if B else "0")
        reads, xors, mf = self.p1_parts(vmode)
        def bar():
            a("s_waitcnt vmcnt(4)")
            if not self.o.get("nobar"): a("s_barrier")
            if self.o.get("its") == "1": self.stamp_dyn(54, self.sCNT)
        soft = self.o.get("p1soft")
        def comp(ks):
            n = (ks + 2) % 4
            if soft: return comp_soft(ks)
            if ks == 2 and pos == "0": bar()
            a("s_waitcnt lgkmcnt(5)")
            mf(ks, 0)
            if ks == 2 and pos == "1": bar()
            if ks == 2 and pos == "2":
                mf(ks, 1); bar(); reads(n)
            else:
                reads(n); mf(ks, 1)
            xors(n)
            self.p1_issue((n,))
        def comp_soft(ks):
            n = (ks + 2) % 4
            ar = int(soft) - 1
            extra = {0: 0, 1: (1 if ar == 0 else 0), 2: 0, 3: 0}[ks]
            a(f"s_waitcnt lgkmcnt({5 + extra})" if ks != 2 else "s_waitcnt lgkmcnt(0)" if self.o.get("p1g0") else "s_waitcnt lgkmcnt(6)")
            mf(ks, 0)
            if ks == ar:
                a(f"v_add_u32 v{self.PGV}, 1, v{self.PGV}")
                a(f"s_waitcnt vmcnt({2 + ks})")
                a(f"ds_write_b32 v{self.PGA}, v{self.PGV}")
            if ks == 2:
                Lw, Lb = a.newlabel("late"), a.newlabel("go")
                a("s_waitcnt lgkmcnt(0)")
                a(f"v_cmp_lt_u32 vcc, v{self.PGD}, v{self.PGV}")
                a(f"s_cbranch_vccnz {Lw}")
                a.label(Lb)
                self._late1.append((Lw, Lb))
            reads(n); mf(ks, 1)
            if ks == 1: a(f"ds_read_b32 v{self.PGD}, v{self.PGR}")
            xors(n)
            self.p1_issue((n,))
        a("s_waitcnt vmcnt(6) lgkmcnt(0)")
        a("s_barrier")
        self.stamp(3)
        reads(0); reads(1); xors(0); xors(1)
        a("v_mov_b32 v6, 0x3f803f80")
        a("v_mov_b32 v2, 0")
        a("v_mov_b32 v3, 0")
        a("s_waitcnt lgkmcnt(5)")
        for k in range(4):
            for i in range(2): a(f"v_dot2_f32_bf16 v{2+i}, v{self.WF+4*i+k}, v6, v{2+i}")
        a("s_nop 2")
        a("v_permlane32_swap_b32 v2, v3")
        a("s_nop 0")
        a("v_add_f32 v2, v2, v3")
        a(f"ds_write_b32 v{self.CSW}, v2")
        a("s_waitcnt lgkmcnt(0)")
        a.align(6)
        a.label(L)
        comp(0); comp(1); comp(2)
        Lr = a.newlabel("back"); Ls = a.newlabel("side")
        a(f"s_add_u32 s{self.sCNT}, s{self.sCNT}, 1")
        a(f"s_cmp_lt_u32 s{self.sCNT}, s{self.sSIDE}")
        a(f"s_cbranch_scc1 {Ls}")
        a.label(Lr)
        comp(3)
        a(f"s_cmp_lt_u32 s{self.sCNT}, {int(self.o.get('p1n', 10)) - 4}")
        a(f"s_cbranch_scc1 {L}")
        self._sides.append((Ls, Lr))

    def p1_sides(self):
        a = self.a
        for Lw, Lb in self._late1:
            a.label(Lw)
            a(f"s_mov_b32 s{S_SPIN}, 0")
            L = a.newlabel("lsp")
            a.label(L)
            a(f"ds_read_b32 v{self.PGD}, v{self.PGR}")
            a(f"s_add_u32 s{S_SPIN}, s{S_SPIN}, 1")
            a(f"s_cmp_ge_u32 s{S_SPIN}, {SPIN_MAX * 16}")
            a(f"s_cbranch_scc1 {Lb}")
            a("s_waitcnt lgkmcnt(0)")
            a(f"v_cmp_lt_u32 vcc, v{self.PGD}, v{self.PGV}")
            a(f"s_cbranch_vccnz {L}")
            a(f"s_branch {Lb}")
        self._late1 = []
        for Ls, Lr in self._sides:
            a.label(Ls)
            L1 = a.newlabel("s1")
            a(f"s_cmp_lg_u32 s{self.sCNT}, 0")
            a(f"s_cbranch_scc1 {L1}")
            a("v_mov_b32 v1, 0")
            a(f"buffer_load_dwordx2 v[{self.VN}:{self.VN+1}], v1, s[{SRD_DBG}:{SRD_DBG+3}], 0 offen sc1")
            a(f"s_branch {Lr}")
            a.label(L1)
            a("s_waitcnt vmcnt(4)")
            self.nonce_get("nonce2")
            a(f"v_mov_b32 v1, {self.P1_MISC + 2048}")
            a(f"ds_write_b64 v1, v[{self.VN}:{self.VN+1}]")
            for k in range(4): a(f"ds_read_b32 v{2+k}, v95 offset:{512*k}")
            a(f"s_lshl_b32 s{T0}, s{self.sKC0}, 10")
            a("s_waitcnt lgkmcnt(0)")
            a("v_add_f32 v2, v2, v3")
            a("v_add_f32 v4, v4, v5")
            a(f"v_mov_b32 v3, s{S_NONCE}")
            a("v_add_f32 v2, v2, v4")
            a(f"buffer_store_dwordx2 v[2:3], v{self.CQA}, s[{SRD_WS}:{SRD_WS+3}], s{T0} offen sc1")
            a(f"s_branch {Lr}")

    def p1_gather(self):
        a = self.a
        a(f"buffer_load_dwordx4 v[{self.RS}:{self.RS+3}], v{self.RSA}, s[{SRD_WS}:{SRD_WS+3}], 0 offen sc1")
        a(f"s_movk_i32 s{T0}, 0x1000")
        a(f"s_movk_i32 s{T1}, 0x2000")
        for k in range(10):
            so = ("0", f"s{T0}", f"s{T1}")[k // 4]
            a(f"buffer_load_dwordx2 v[{self.CQ+2*k}:{self.CQ+2*k+1}], v{self.CQA}, s[{SRD_WS}:{SRD_WS+3}], {so} offen offset:{1024*(k%4)} sc1")

    def p1_epi_reads(self):
        a = self.a
        a(f"s_lshl_b32 s{T0}, s{self.sNH}, 9")
        a(f"s_add_u32 s{T0}, s{T0}, {self.CQ_SCR}")
        a(f"v_lshl_add_u32 v1, v0, 3, s{T0}")
        for k in range(10): a(f"ds_read_b64 v[{self.CQ+2*k}:{self.CQ+2*k+1}], v1 offset:{1024*k}")
        a(f"v_mov_b32 v1, {self.P1_MISC + 2048}")
        a(f"ds_read_b64 v[{self.VN}:{self.VN+1}], v1")
        a(f"s_lshl_b32 s{T2}, s{S_W}, 9")
        a(f"s_add_u32 s{T2}, s{T2}, {self.P1_MISC+4096}")
        a(f"v_lshl_add_u32 v6, v0, 2, s{T2}")
        a("v_and_b32 v5, 31, v0")
        a(f"s_mov_b32 s{S_SPIN}, 0")

    def p1_epi_common(self):
        a = self.a
        L = a.newlabel("rs"); Ld = a.newlabel("rsd")
        a("s_waitcnt lgkmcnt(0)")
        a(f"v_readfirstlane_b32 s{S_NONCE}, v{self.VN}")
        a(f"v_readfirstlane_b32 s{S_NONCE+1}, v{self.VN+1}")
        a("s_nop 0")
        a.label(L)
        a(f"v_xor_b32 v2, s{S_NONCE}, v{self.RS+1}")
        a(f"v_xor_b32 v3, s{S_NONCE}, v{self.RS+3}")
        for k in range(0, 10, 2):
            a(f"v_xor_b32 v4, s{S_NONCE}, v{self.CQ+2*k+1}")
            a(f"v_xor_b32 v7, s{S_NONCE}, v{self.CQ+2*k+3}")
            a("v_or3_b32 v2, v2, v4, v7")
        a("v_or_b32 v2, v2, v3")
        a("v_cmp_ne_u32 vcc, 0, v2")
        a(f"s_add_u32 s{S_SPIN}, s{S_SPIN}, 1")
        a("s_or_b64 vcc, vcc, vcc")
        a(f"s_cbranch_scc0 {Ld}")
        a(f"s_cmp_ge_u32 s{S_SPIN}, {SPIN_MAX}")
        a(f"s_cbranch_scc1 {Ld}")
        self.diag("gather")
        self.p1_gather()
        a("s_waitcnt vmcnt(0)")
        a(f"s_branch {L}")
        a.label(Ld)
        Q = self.CQ
        a(f"v_add_f32 v12, v{Q}, v{Q+2}")
        a(f"v_add_f32 v13, v{Q+4}, v{Q+6}")
        a(f"v_add_f32 v14, v{Q+8}, v{Q+10}")
        a(f"v_add_f32 v15, v{Q+12}, v{Q+14}")
        a(f"v_add_f32 v2, v{Q+16}, v{Q+18}")
        a("v_add_f32 v12, v12, v13")
        a("v_add_f32 v14, v14, v15")
        a("v_add_f32 v12, v12, v2")
        a("v_add_f32 v12, v12, v14")
        self.stamp(4)

    def rowstats(self):
        a = self.a
        X = 100
        a("v_lshrrev_b32 v1, 3, v0")
        a(f"s_lshl_b32 s{T0}, s{S_W}, 4")
        a(f"s_lshl_b32 s{T1}, s{self.sRB}, 7")
        a(f"s_add_u32 s{T0}, s{T0}, s{T1}")
        a(f"v_add_u32 v1, s{T0}, v1")
        a("v_mul_u32_u24 v2, 1280, v1")
        a("v_and_b32 v3, 7, v0")
        a("v_lshl_add_u32 v2, v3, 4, v2")
        a(f"s_mov_b32 s{T0}, 10240")
        for k in range(10):
            for hh in range(2):
                r = X + 8 * k + 4 * hh
                a(f"buffer_load_dwordx4 v[{r}:{r+3}], v2, s[{SRD_X}:{SRD_X+3}], {'s%d' % T0 if hh else '0'} offen offset:{128*k}")
        for r in range(4, 8): a(f"v_mov_b32 v{r}, 0")
        a("v_mov_b32 v8, 0x3f803f80")
        for k in range(10):
            a(f"s_waitcnt vmcnt({18-2*k if k < 9 else 1})")
            if k == 8:
                a("v_mov_b32 v3, 0")
                a(f"buffer_load_dwordx2 v[{self.VN}:{self.VN+1}], v3, s[{SRD_DBG}:{SRD_DBG+3}], 0 offen sc1")
            for e in range(4):
                for hh in range(2):
                    r = X + 8 * k + 4 * hh + e
                    a(f"v_dot2_f32_bf16 v{4+hh}, v{r}, v8, v{4+hh}")
                    a(f"v_dot2_f32_bf16 v{6+hh}, v{r}, v{r}, v{6+hh}")
        a("s_nop 2")
        for ctl in ("quad_perm:[1,0,3,2]", "quad_perm:[2,3,0,1]", "row_half_mirror"):
            for r in range(4, 8): a(f"v_add_f32_dpp v{r}, v{r}, v{r} {ctl} row_mask:0xf bank_mask:0xf")
        a("s_waitcnt vmcnt(0)")
        self.nonce_get()
        a("v_and_b32 v3, 1, v0")
        a("v_cmp_ne_u32 vcc, 0, v3")
        a("v_lshlrev_b32 v3, 3, v3")
        a("v_add_u32 v1, v1, v3")
        a("v_cndmask_b32 v4, v4, v5, vcc")
        a("v_cndmask_b32 v6, v6, v7, vcc")
        a(f"v_mul_f32 v4, 0x%08x, v4" % f2u(1.0 / 640))
        a("v_mul_f32 v5, v4, v4")
        a(f"v_mov_b32 v7, 0x%08x" % f2u(1.0 / 640))
        a("v_fma_f32 v5, v6, v7, -v5")
        a("v_max_f32 v5, 0, v5")
        a(f"v_add_f32 v5, 0x%08x, v5" % f2u(1e-5))
        a("v_rsq_f32 v8, v5")
        a(f"v_mov_b32 v9, s{S_NONCE}")
        a(f"v_mov_b32 v11, s{S_NONCE}")
        a("v_mul_f32 v10, v4, v8")
        a("v_lshlrev_b32 v1, 4, v1")
        a(f"s_mov_b32 s{T0}, {WS_RS}")
        a("s_mov_b32 exec_lo, 0x03030303")
        a("s_mov_b32 exec_hi, 0x03030303")
        a(f"buffer_store_dwordx4 v[8:11], v1, s[{SRD_WS}:{SRD_WS+3}], s{T0} offen sc1")
        a("s_mov_b64 exec, -1")

    def p1_epi_q(self):
        a = self.a
        self.p1_epi_common()
        qs = math.log2(math.e) / math.sqrt(20.0)
        a("ds_write_b32 v6, v12")
        a("v_lshrrev_b32 v1, 5, v0")
        a(f"v_lshl_add_u32 v1, v1, 4, s{T2}")
        C = 48
        for i in range(2):
            for q4 in range(4):
                a(f"ds_read_b128 v[{C+16*i+4*q4}:{C+16*i+4*q4+3}], v1 offset:{i*128+q4*32}")
        a(f"s_cmp_lt_u32 s{self.sCT}, 5")
        a(f"s_cselect_b32 s{T1}, 0x%08x, 1.0" % f2u(qs))
        a(f"v_mul_f32 v2, s{T1}, v{self.RS}")
        a(f"v_mul_f32 v3, s{T1}, v{self.RS+2}")
        for i in range(2):
            for qq in range(2):
                a(f"s_waitcnt lgkmcnt({6-4*i-2*qq})")
                b = 16 * i + 8 * qq
                for r in range(8): a(f"v_mul_f32 v{self.ACC+b+r}, v2, v{self.ACC+b+r}")
                for r in range(8): a(f"v_fma_f32 v{self.ACC+b+r}, -v3, v{C+b+r}, v{self.ACC+b+r}")
                o = 4 + 4 * ((2 * i + qq) % 2)
                for r in range(4): a(f"v_cvt_pk_bf16_f32 v{o+r}, v{self.ACC+b+2*r}, v{self.ACC+b+2*r+1}")
                a(f"buffer_store_dwordx4 v[{o}:{o+3}], v{self.STA+2*i+qq}, s[{SRD_WS}:{SRD_WS+3}], 0 offen sc1")

    def p1_epi_v(self):
        a = self.a
        self.p1_epi_common()
        a("v_mov_b32 v13, v12")
        a(f"v_lshl_add_u32 v6, v5, 2, s{T2}")
        a("v_lshrrev_b32 v1, 5, v0")
        a("v_permlane32_swap_b32 v12, v13")
        a(f"ds_write_b32 v6, v{self.RS}")
        a(f"ds_write_b32 v6, v{self.RS+2} offset:128")
        a(f"v_lshl_add_u32 v6, v1, 4, s{T2}")
        C = 48
        for q4 in range(4):
            a(f"ds_read_b128 v[{C+4*q4}:{C+4*q4+3}], v6 offset:{q4*32}")
            a(f"ds_read_b128 v[{C+16+4*q4}:{C+16+4*q4+3}], v6 offset:{128+q4*32}")
        for grp in range(2):
            a(f"s_waitcnt lgkmcnt({4-4*grp})")
            for i in range(2):
                b = 16 * i + 8 * grp
                for r in range(8): a(f"v_mul_f32 v{self.ACC+b+r}, v{C+8*grp+r}, v{self.ACC+b+r}")
                for r in range(8): a(f"v_fma_f32 v{self.ACC+b+r}, -v{C+16+8*grp+r}, v{12+i}, v{self.ACC+b+r}")
                o = 4 + 4 * i
                for r in range(4): a(f"v_cvt_pk_bf16_f32 v{o+r}, v{self.ACC+b+2*r}, v{self.ACC+b+2*r+1}")
                a(f"buffer_store_dwordx4 v[{o}:{o+3}], v{self.STA+i}, s[{SRD_WS}:{SRD_WS+3}], 0 offen offset:{640*grp} sc1")

    def nonce_get(self, where="nonce"):
        a = self.a
        a(f"s_mov_b32 s{S_SPIN}, 0")
        Lc = a.newlabel("nchk"); Lo = a.newlabel("nok")
        a.label(Lc)
        a(f"v_readfirstlane_b32 s{S_NONCE}, v{self.VN}")
        a(f"v_readfirstlane_b32 s{S_NONCE+1}, v{self.VN+1}")
        a(f"s_add_u32 s{S_SPIN}, s{S_SPIN}, 1")
        a(f"s_or_b32 s{T0}, s{S_NONCE}, s{S_NONCE+1}")
        a(f"s_cbranch_scc1 {Lo}")
        a(f"s_cmp_ge_u32 s{S_SPIN}, {SPIN_MAX}")
        a(f"s_cbranch_scc1 {Lo}")
        self.diag(where)
        a("v_mov_b32 v94, 0")
        a(f"buffer_load_dwordx2 v[{self.VN}:{self.VN+1}], v94, s[{SRD_DBG}:{SRD_DBG+3}], 0 offen sc1")
        a("s_waitcnt vmcnt(0)")
        a(f"s_branch {Lc}")
        a.label(Lo)

    def phase1(self):
        a = self.a
        self.p1_setup_a()
        a(f"s_cmp_eq_u32 s{self.sCT}, 15")
        a("s_cbranch_scc0 L_p1_go")
        self.rowstats()
        a("s_branch L_p1_done")
        a.label("L_nonce_pub")
        a("v_mov_b32 v3, 0")
        a(f"v_mov_b32 v4, s{S_NONCE}")
        a(f"v_mov_b32 v5, s{S_NONCE+1}")
        a("s_mov_b64 exec, 1")
        a(f"buffer_store_dwordx2 v[4:5], v3, s[{SRD_DBG}:{SRD_DBG+3}], 0 offen sc1")
        a("s_mov_b64 exec, -1")
        a("s_branch L_nonce_done")
        a.label("L_p1_go")
        self.p1_setup_b()
        self.p1_issue((1, 2, 3) if self.o.get("first5", "1") == "1" else (0, 1, 2, 3))
        self.p1_issue((0, 1))
        self.stamp(2)
        a(f"s_cmp_ge_u32 s{self.sCT}, 10")
        a("s_cbranch_scc1 L_p1_v")
        self.p1_loop(False)
        self.p1_epi_q()
        a("s_branch L_p1_done")
        self.p1_sides(); self._sides = []
        a.label("L_p1_v")
        self.p1_loop(True)
        self.p1_epi_v()
        a("s_branch L_p1_done")
        self.p1_sides()
        a.label("L_p1_done")
        self.stamp(5)
        a("s_waitcnt vmcnt(0)")
        self.stamp(6)
        a("s_barrier")
        a(f"s_lshl_b32 s{T0}, s{self.sCT}, 4")
        a(f"s_add_u32 s{T0}, s{T0}, s{self.sRB}")
        a(f"s_mul_i32 s{T0}, s{T0}, {FSP}")
        a(f"s_add_u32 s{T0}, s{T0}, {FL_1}")
        self.flag_store(T0, 2)
        self.stamp(7)
        a(f"s_cmp_eq_u32 s{S_W}, 0")
        a("s_cbranch_scc1 L_no_rls")
        self.relayout_setup()
        a.label("L_no_rls")
        if self.stop < 2:
            self.relayout_issue()
            a("s_waitcnt vmcnt(0)")
            self.relayout_finish()

    def build(self):
        a = self.a
        self.entry()
        self.phase1()
        if self.stop >= 2:
            from phases import phase2, phase3, phase4, phase5
            phase2(self)
            if self.stop >= 3: phase3(self)
            if self.stop >= 4: phase4(self)
            if self.stop >= 5: phase5(self)
        a("s_waitcnt vmcnt(0)")
        if self.o.get("fixend"):
            if self.o.get("diag"):
                a("s_cmp_eq_u32 s35, 0")
                a("s_cbranch_scc1 L_end")
            a.label("L_fixend")
            a("s_memrealtime s[100:101]")
            a("s_waitcnt lgkmcnt(0)")
            a(f"s_sub_u32 s100, s100, s{31 if self.o.get('fixown') else S_NONCE}")
            a(f"s_cmp_lt_u32 s100, {int(self.o['fixend'])*100}")
            a("s_cbranch_scc1 L_fixend")
        self.stamp(31)
        self.stamp_flush()
        a.label("L_end")
        a("s_endpgm")
        a.lines.append(f".fill {self.pad}, 4, 0xbf810000")
        body = a.text()
        errs = check(body)
        if errs:
            sys.stderr.write("\n".join(errs[:40]) + "\n%d hazards\n" % len(errs))
            raise SystemExit(1)
        head = f"""; Fused preLN -> MHA -> residual -> preLN -> SiLU FFN -> residual in one persistent launch
;      checks its sums and outputs; if the shift was unsafe (sum > 2^40, inf or NaN) the wave redoes its rows
; @launch grid=(256,1,1) block=(512,1,1) lds={LDS_BYTES}
.amdgcn_target "amdgcn-amd-amdhsa--gfx950"
.text
.globl {NAME}_kernel
.p2align 8
.type {NAME}_kernel,@function
{NAME}_kernel:
"""
        tail = f""".section .rodata,"a"
.p2align 6
.amdhsa_kernel {NAME}_kernel
  .amdhsa_next_free_vgpr 256
  .amdhsa_next_free_sgpr 102
  .amdhsa_accum_offset 256
  .amdhsa_group_segment_fixed_size 0
  .amdhsa_kernarg_size 72
  .amdhsa_user_sgpr_count 2
  .amdhsa_user_sgpr_kernarg_segment_ptr 1
  .amdhsa_system_sgpr_workgroup_id_x 1
.end_amdhsa_kernel
"""
        return head + body + tail

if __name__ == "__main__":
    stop = int(sys.argv[2]) if len(sys.argv) > 2 else 99
    opts = dict(kv.split("=") for kv in sys.argv[3:])
    import subprocess
    def asm_size(path):
        r = subprocess.run(["clang", "-x", "assembler", "-target", "amdgcn-amd-amdhsa", "-mcpu=gfx950", "-c", path, "-o", "_chk.o"], capture_output=True, text=True)
        if r.returncode: print(r.stderr[:1500]); raise SystemExit(1)
        r = subprocess.run(["llvm-readelf", "-S", "_chk.o"], capture_output=True, text=True)
        return int([l for l in r.stdout.split("\n") if ".text" in l][0].split()[6], 16)
    open(sys.argv[1], "w").write(K(stop, opts).build())
    n = asm_size(sys.argv[1])
    k = K(stop, opts)
    k.CPF_LINES = (n + 4095) // 4096
    k.pad = (k.CPF_LINES * 4096 - n) // 4 + 16
    open(sys.argv[1], "w").write(k.build())
    print(sys.argv[1], "code bytes:", n, "with pad:", asm_size(sys.argv[1]))
```

```python
import math
from asmlib import vr, sr, f2u
from tables import *
from gen import *

Qm, Qr, NEG, S0, S1, P, O, Km, Kr, V = 4, 8, 12, 28, 60, 92, 108, 124, 132, 136
AK, AKR, AV, DKM, DLIN = 152, 153, 154, 197, 196
XR = 198
PL = 184
SLOT = 22528
WO_LDS = 3 * SLOT
sH, sQB, sST, sK0, sK1, sK2, sS1, sDS, sKD, sVM, sRET, sWOo, sWOl = 64, 65, 66, 67, 68, 69, 70, 71, 72, 74, 76, 78, 79
sW10, sL1, sD1, sL2, sSD, sD2 = 73, 82, 83, 93, 94, 78
sTA, sW1, sSM = 95, 96, 98
WS = f"s[{SRD_WS}:{SRD_WS+3}]"
M32 = "v_mfma_f32_32x32x16_bf16"
M2B = "v_mfma_f32_32x32x4_2b_bf16"
M16 = "v_mfma_f32_16x16x32_bf16"

def kv_piece(k, i):
    a = k.a
    a(f"s_add_u32 m0, s{(sW10, sL1, sL2)[i]}, s{sDS}")
    a(f"s_add_u32 s{sK0+i}, s{sK0+i}, {('4096', f's{sS1}', '10240')[i]}")
    k.dma((DKM, DLIN, DLIN)[i], SRD_WS, f"s{sK0+i}", "sc1")

def wo_piece(k):
    a = k.a
    a(f"s_min_u32 m0, s{sWOl}, {WO_LDS + 90*1024}")
    a(f"s_add_u32 s{sWOl}, s{sWOl}, 8192")
    k.dma(DLIN, SRD_WQ, "m0", "sc1")

def touch_piece(k):
    a = k.a
    a(f"buffer_load_dwordx4 v[160:163], v{DLIN}, {WS}, s{sTA} offen sc1")
    a(f"s_add_u32 s{sTA}, s{sTA}, 1024")

def SG(i): return 172 + 4 * i if i < 6 else 204 + 4 * (i - 6)

def stage_load(k, vq, tag, i, s_src, off, valid=8):
    a = k.a
    a(f"s_add_u32 s{T0}, s{s_src}, {off}")
    if valid < 8:
        a(f"s_cmp_ge_u32 s{S_W}, {valid}")
        a(f"s_cselect_b32 s{T0}, 0x7f000000, s{T0}")
    a(f"buffer_load_dwordx4 {vr(SG(i),4)}, v{DLIN}, {WS}, s{T0} offen sc1")
    if vq is not None: vq.add(tag)

def qkm(a, t, d, c): a(f"{M32} {vr(d+16*t,16)}, {vr(Km+4*t,4)}, {vr(Qm,4)}, {c}")
def qkr(a, d): a(f"{M2B} {vr(d,32)}, {vr(Kr,2)}, {vr(Qr,2)}, {vr(d,32)}")
def pv(a, j): a(f"{M32} {vr(O,16)}, {vr(V+4*j,4)}, {vr(P+4*j,4)}, {vr(O,16)}")

PGA, PGV, PGR, PGD = 155, 156, 159, 164
PG_LDS = 157 * 1024
SCHED = {
 "a": "q0 e4 m p3 v e4 m q1 k0 c4 m e4 k1 m p0 e4 c2 m qr c2 kr e4 m e4 c2 m p1 c2 e2 m e3 m p2 e3 m c4",
 "b": "q0 e5 m p3 v e3 c2 m q1 k0 c2 e3 m k1 e2 m p0 e3 c2 m qr kr c2 e4 m e4 c2 m p1 c2 e3 m e2 m p2 e3 m c4",
 "c": "p3 v e4 m q0 e4 m c2 q1 k0 c2 m e4 k1 m p0 e4 c2 m qr c2 kr e4 m e4 c2 m p1 c2 e2 m e3 m p2 e3 m c4",
 "d": "q0 e4 m q1 k0 e4 m p3 v c4 k1 m e5 m qr kr e3 c2 m e4 c2 m p0 e4 m c2 p1 c2 e2 m e3 m p2 e3 m c4",
 "e": "q0 e6 m p3 v e2 c3 m q1 k0 c1 e4 m k1 m p0 e4 c2 m qr c2 kr e4 m e4 c2 m p1 c2 e3 m e3 m p2 e2 m c4",
 "f": "q0 e4 m p3 v e4 m q1 k0 c4 m e4 k1 m p0 e4 c4 m qr kr e4 m e4 m p1 c4 e2 m e2 m p2 e4 m c4",
}
def att_stage(k, young):
    a = k.a
    o = k.o
    soft = o.get("soft", "1") == "1"
    tag = "Y" if young else "O"
    barit, barpos = [int(x) for x in o.get("abar" + tag, "0.6" if young else "1.2").split(".")]
    pA = int(o.get("pA" + tag, o.get("pA", 4))); pC = int(o.get("pC" + tag, o.get("pC", 20)))
    plo = int(o.get("plo", 7)); ntouch = int(o.get("ntouch", 2))
    lq = LQ(a)
    def exps(b, n0, n):
        for i in range(n0, n0 + n): a(f"v_exp_f32 v{b+i}, v{b+i}")
    def cvts(b, n0, n):
        for i in range(n0, n0 + n): a(f"v_cvt_pk_bf16_f32 v{P+i}, v{b+2*i}, v{b+2*i+1}")
    def rdV(js, it):
        a(f"s_mov_b64 exec, s[{sVM}:{sVM+1}]")
        for j in js:
            a(f"ds_read_b128 {vr(V+4*j,4)}, v{AV} offset:{12288+(4*it+j)*640}"); lq.add(("V", j))
        a("s_mov_b64 exec, -1")
    for it in range(4):
        cur, nx = (S0, S1) if it % 2 == 0 else (S1, S0)
        i2 = (it + 2) % 4
        npos = [0]
        def mark():
            p = it * 11 + npos[0]
            if soft:
                if p == pA:
                    a(f"v_add_u32 v{PGV}, 1, v{PGV}")
                    a(f"s_waitcnt vmcnt({3 + ntouch})")
                    a(f"ds_write_b32 v{PGA}, v{PGV}"); lq.add("a")
                if p == pC - int(o.get("pR", 2)):
                    a(f"ds_read_b32 v{PGD}, v{PGR}"); lq.add("g")
                if p == pC:
                    lq.wait("g")
                    Lw, Lb = a.newlabel("late"), a.newlabel("go")
                    a(f"v_cmp_lt_u32 vcc, v{PGD}, v{PGV}")
                    a(f"s_cbranch_vccnz {Lw}")
                    a.label(Lb)
                    k._late.append((Lw, Lb))
                    if o.get("its") == "2": k.stamp_dyn(54, sST)
                g = p - pC; d0 = 1; dd = int(o.get("dd", 2))
            else:
                g = p - (barit * 11 + barpos)
                if g == 0:
                    a("s_waitcnt vmcnt(0)")
                    a("s_barrier")
                    if o.get("its") == "2": k.stamp_dyn(54, sST)
                d0 = int(o.get("d" + tag, 5 if young else 1)); dd = int(o.get("dd", 3))
            if g == d0 - 1:
                a(f"s_call_b64 s[{sRET}:{sRET+1}], L_att_side")
            if g in [d0 + (5 + 2 * i) * dd for i in range(ntouch)]: touch_piece(k); k._n += 1
            for i in range(3):
                if g == d0 + (1 + i) * dd: kv_piece(k, i); k._n += 1
            for i in range(3):
                if g == d0 + (4 + 2 * i) * dd: wo_piece(k); k._n += 1
            if young and npos[0] == 0: a("s_setprio 1")
            if young and npos[0] == plo: a("s_setprio 0")
            npos[0] += 1
        if it == 2:
            a(f"v_add_u32 v{AK}, s{sKD}, v{AK}")
            a(f"v_add_u32 v{AKR}, s{sKD}, v{AKR}")
        ne = [0]; nc = [0]
        def E(n): exps(cur, ne[0], n); ne[0] += n
        def C(n): cvts(cur, nc[0], n); nc[0] += n
        def rk(t): a(f"ds_read_b128 {vr(Km+4*t,4)}, v{AK} offset:{2048*i2+1024*t}"); lq.add("K")
        def rkr(): a(f"ds_read_b64 {vr(Kr,2)}, v{AKR} offset:{8192+1024*i2}"); lq.add("K")
        def PV(j):
            if j < 3: lq.wait(("V", max(j, int(o.get("vw", 3)))))
            pv(a, j)
        ops = dict(q0=lambda: qkm(a, 0, nx, vr(NEG, 16)), q1=lambda: qkm(a, 1, nx, vr(NEG, 16)), qr=lambda: qkr(a, nx),
                   p0=lambda: PV(0), p1=lambda: PV(1), p2=lambda: PV(2), p3=lambda: PV(3), v=lambda: rdV([0, 1, 2, 3], it),
                   k0=lambda: rk(0), k1=lambda: rk(1), kr=rkr, m=mark)
        sched = SCHED[o.get("sched", "a")].split()
        mark()
        a("s_waitcnt lgkmcnt(0)"); lq.q = []
        for x in sched:
            if x[0] == "e": E(int(x[1:]))
            elif x[0] == "c": C(int(x[1:]))
            else: ops[x]()
        assert ne[0] == 32 and nc[0] == 16 and npos[0] == 11
        if it == 3:
            a(f"v_add_u32 v{AV}, s{sKD}, v{AV}")
            a(f"s_add_u32 s{sST}, s{sST}, 1")
            a(f"s_add_u32 s{sDS}, s{sDS}, s{sD2}")
            a(f"s_mov_b32 s{T0}, s{sKD}")
            a(f"s_mov_b32 s{sKD}, s{sD1}")
            a(f"s_mov_b32 s{sD1}, s{sD2}")
            a(f"s_mov_b32 s{sD2}, s{T0}")

def att_late(k):
    a = k.a
    for Lw, Lb in k._late:
        a.label(Lw)
        a(f"s_mov_b32 s{S_SPIN}, 0")
        L = a.newlabel("lsp")
        a.label(L)
        a(f"ds_read_b32 v{PGD}, v{PGR}")
        a(f"s_add_u32 s{S_SPIN}, s{S_SPIN}, 1")
        a(f"s_cmp_ge_u32 s{S_SPIN}, {SPIN_MAX * 16}")
        a(f"s_cbranch_scc1 {Lb}")
        a("s_waitcnt lgkmcnt(0)")
        a(f"v_cmp_lt_u32 vcc, v{PGD}, v{PGV}")
        a(f"s_cbranch_vccnz {L}")
        a(f"s_branch {Lb}")

def att_side(k):
    a = k.a
    a.label("L_att_side")
    a(f"s_bitcmp1_b32 s{sST}, 2")
    a("s_cbranch_scc1 L_as_hi")
    a(f"s_cmp_lt_u32 s{sST}, 1")
    a("s_cbranch_scc1 L_as_0")
    a(f"s_cmp_lt_u32 s{sST}, 2")
    a("s_cbranch_scc1 L_as_1")
    a(f"s_cmp_lt_u32 s{sST}, 3")
    a("s_cbranch_scc1 L_as_2")
    a(f"s_mov_b32 s{T0}, {FL_R}")
    a(f"buffer_load_dwordx4 v[{PL}:{PL+3}], v{DLIN}, {WS}, s{T0} offen sc1")
    a(f"buffer_load_dwordx4 v[{PL+4}:{PL+7}], v{DLIN}, {WS}, s{T0} offen offset:1024 sc1")
    a(f"s_setpc_b64 s[{sRET}:{sRET+1}]")
    a.label("L_as_2")
    a(f"s_lshl_b32 s{T0}, s{S_G}, 3")
    a(f"s_add_u32 s{T0}, s{T0}, {FL_R}")
    k.flag_store(T0, PL)
    a(f"s_setpc_b64 s[{sRET}:{sRET+1}]")
    a.label("L_as_0")
    k.relayout_issue()
    a(f"s_setpc_b64 s[{sRET}:{sRET+1}]")
    a.label("L_as_1")
    k.relayout_finish()
    a("s_nop 1")
    a(f"s_setpc_b64 s[{sRET}:{sRET+1}]")
    a.label("L_as_hi")
    a(f"s_cmp_eq_u32 s{sST}, 7")
    a("s_cbranch_scc1 L_as_7")
    a(f"s_cmp_eq_u32 s{sST}, 6")
    a("s_cbranch_scc1 L_as_6")
    a(f"s_cmp_eq_u32 s{sST}, 5")
    a("s_cbranch_scc1 L_as_5")
    N = f"s[{S_NONCE}:{S_NONCE+1}]"
    a(f"v_cmp_ne_u64 vcc, {N}, v[{PL}:{PL+1}]")
    a(f"v_cmp_ne_u64 s[{S_M1}:{S_M1+1}], {N}, v[{PL+2}:{PL+3}]")
    a(f"s_and_b32 s{T1}, s{S_J}, 7")
    a(f"s_or_b64 s[{T4}:{T5}], vcc, s[{S_M1}:{S_M1+1}]")
    a(f"v_cmp_ne_u64 vcc, {N}, v[{PL+4}:{PL+5}]")
    a(f"v_cmp_ne_u64 s[{S_M1}:{S_M1+1}], {N}, v[{PL+6}:{PL+7}]")
    a(f"s_add_u32 s{sWOl}, s{sW10}, {WO_LDS}")
    a(f"s_lshl_b32 s{T2}, s{S_J}, 3")
    a(f"s_add_u32 s{T2}, s{T2}, s{S_W}")
    a(f"s_mul_i32 s{sTA}, s{T2}, 8640")
    a(f"s_add_u32 s{sTA}, s{sTA}, {WS_W2}")
    a(f"s_and_b32 s{T2}, s{S_J}, 15")
    a(f"s_mul_i32 s{sW1}, s{T2}, {20*7168}")
    a(f"s_add_u32 s{sW1}, s{sW1}, s{sW10}")
    a(f"s_add_u32 s{sW1}, s{sW1}, {WS_W1}")
    a(f"s_or_b64 s[{T4}:{T5}], s[{T4}:{T5}], vcc")
    a(f"s_or_b64 s[{T4}:{T5}], s[{T4}:{T5}], s[{S_M1}:{S_M1+1}]")
    a("s_cbranch_scc0 L_as_ret")
    a(f"s_mov_b32 s{T3}, {FL_R}")
    k.diag("fr")
    k.poll(256, T3, 8, PL, only_wave0=False)
    a.label("L_as_ret")
    grp = ((0, 4), (4, 9), (9, 14), (14, 18))
    for st in range(4, 8):
        if st > 4: a.label(f"L_as_{st}")
        if st == 6:
            for r in (sK0, sK1, sK2): a(f"s_mov_b32 s{r}, 0x7f000000")
        for i in range(*grp[st - 4]): stage_load(k, None, None, i, sW1, 8192 * i, 4 if i == 17 else 8)
        a(f"s_setpc_b64 s[{sRET}:{sRET+1}]")

def resid_x(k):
    a = k.a
    a(f"s_lshr_b32 s{T0}, s{S_J}, 3")
    a(f"s_lshl_b32 s{T1}, s{S_C}, 2")
    a(f"s_add_u32 s{T0}, s{T0}, s{T1}")
    a(f"s_lshl_b32 s{T0}, s{T0}, 2")
    a(f"s_and_b32 s{T1}, s{S_W}, 3")
    a(f"s_add_u32 s{T0}, s{T0}, s{T1}")
    a(f"s_mul_i32 s{T0}, s{T0}, {16*1280}")
    a(f"s_and_b32 s{T1}, s{S_J}, 7")
    a(f"s_mul_i32 s{T1}, s{T1}, 160")
    a(f"s_add_u32 s{T0}, s{T0}, s{T1}")
    a(f"s_lshr_b32 s{T1}, s{S_W}, 2")
    a(f"s_lshl_b32 s{T1}, s{T1}, 6")
    a(f"s_add_u32 s{T1}, s{T1}, s{T0}")
    a(f"v_lshrrev_b32 v{TM}, 2, v0")
    a(f"v_mul_u32_u24 v{TM}, 1280, v{TM}")
    a(f"v_and_b32 v{TM+1}, 3, v0")
    a(f"v_lshl_add_u32 v{TM}, v{TM+1}, 3, v{TM}")
    a(f"buffer_load_dwordx2 v[{XR}:{XR+1}], v{TM}, s[{SRD_X}:{SRD_X+3}], s{T1} offen")
    a(f"buffer_load_dwordx2 v[{XR+2}:{XR+3}], v{TM}, s[{SRD_X}:{SRD_X+3}], s{T1} offen offset:32")
    a(f"buffer_load_dwordx2 v[{XR+4}:{XR+5}], v{TM}, s[{SRD_X}:{SRD_X+3}], s{T0} offen offset:128")

def rowmax(a, b, n, dst, t):
    a(f"v_max3_f32 v{dst}, v{b}, v{b+1}, v{dst}")
    for i in range(2, n, 2): a(f"v_max3_f32 v{dst}, v{b+i}, v{b+i+1}, v{dst}")

def set_neg(a, m, t):
    a(f"v_mov_b32 v{t}, v{m}")
    a("s_nop 1")
    a(f"v_permlane32_swap_b32 v{m}, v{t}")
    a("s_nop 0")
    a(f"v_max_f32 v{m}, v{m}, v{t}")
    for r in range(16): a(f"v_sub_f32 v{NEG+r}, 0, v{m}")

def att_fallback(k):
    a = k.a
    FT = S1
    a.label("L_att_fb")
    sI, sA, sB, sC = T0, T1, T2, T3
    def init():
        a(f"s_lshl_b32 s{sA}, s{sH}, 16")
        a(f"s_add_u32 s{sA}, s{sA}, {WS_K}")
        a(f"s_lshr_b32 s{sB}, s{sH}, 1")
        a(f"s_lshl_b32 s{sB}, s{sB}, 15")
        a(f"s_add_u32 s{sB}, s{sB}, {WS_K + 64*32768}")
        a(f"s_mul_i32 s{sC}, s{sH}, 81920")
        a(f"s_add_u32 s{sC}, s{sC}, {WS_V}")
        a(f"s_mov_b32 s{sI}, 0")
    def ldk():
        a(f"buffer_load_dwordx4 {vr(Km,4)}, v{DKM}, {WS}, s{sA} offen sc1")
        a(f"buffer_load_dwordx4 {vr(Km+4,4)}, v{DKM}, {WS}, s{sA} offen offset:512 sc1")
        a(f"buffer_load_dwordx2 {vr(Kr,2)}, v{FT+1}, {WS}, s{sB} offen sc1")
    def step():
        a(f"s_add_u32 s{sA}, s{sA}, 1024")
        a(f"s_add_u32 s{sB}, s{sB}, 1024")
        a(f"s_add_u32 s{sC}, s{sC}, 2560")
        a(f"s_add_u32 s{sI}, s{sI}, 1")
        a(f"s_cmp_lt_u32 s{sI}, 32")
    a(f"s_and_b32 s{T0}, s{sH}, 1")
    a(f"s_lshl_b32 s{T0}, s{T0}, 3")
    a(f"v_add_u32 v{FT+1}, s{T0}, v{DLIN}")
    a(f"v_lshrrev_b32 v{FT+2}, 5, v0")
    a(f"v_mul_u32_u24 v{FT+2}, 20, v{FT+2}")
    a(f"v_and_b32 v{FT+3}, 31, v0")
    a(f"v_add_lshl_u32 v{FT+2}, v{FT+2}, v{FT+3}, 4")
    a(f"v_mov_b32 v{FT}, 0xff800000")
    init()
    a.label("L_fb_max")
    ldk()
    a("s_waitcnt vmcnt(0)")
    qkm(a, 0, S0, "0"); qkm(a, 1, S0, "0")
    a("s_nop 9")
    qkr(a, S0)
    a("s_nop 15"); a("s_nop 3")
    rowmax(a, S0, 32, FT, FT + 4)
    step()
    a("s_cbranch_scc1 L_fb_max")
    set_neg(a, FT, FT + 4)
    for r in range(16): a(f"v_mov_b32 v{O+r}, 0")
    init()
    a.label("L_fb_acc")
    ldk()
    a(f"s_mov_b64 exec, s[{sVM}:{sVM+1}]")
    for j in range(4): a(f"buffer_load_dwordx4 {vr(V+4*j,4)}, v{FT+2}, {WS}, s{sC} offen offset:{640*j} sc1")
    a("s_mov_b64 exec, -1")
    a("s_waitcnt vmcnt(0)")
    qkm(a, 0, S0, vr(NEG, 16)); qkm(a, 1, S0, vr(NEG, 16))
    a("s_nop 9")
    qkr(a, S0)
    a("s_nop 15"); a("s_nop 3")
    for i in range(32): a(f"v_exp_f32 v{S0+i}, v{S0+i}")
    a("s_nop 0")
    for i in range(16): a(f"v_cvt_pk_bf16_f32 v{P+i}, v{S0+2*i}, v{S0+2*i+1}")
    a("s_nop 1")
    for j in range(4): pv(a, j)
    step()
    a("s_cbranch_scc1 L_fb_acc")
    a("s_nop 11")
    a("s_branch L_att_norm")

def phase2(k):
    a = k.a
    a.c("================ phase 2: attention")
    a(f"s_lshl_b32 s{sH}, s{S_C}, 2")
    a(f"s_lshr_b32 s{T0}, s{S_J}, 3")
    a(f"s_add_u32 s{sH}, s{sH}, s{T0}")
    a(f"s_and_b32 s{sQB}, s{S_J}, 7")
    a(f"v_lshlrev_b32 v{DLIN}, 4, v0")
    a("v_lshrrev_b32 v1, 5, v0")
    a("v_and_b32 v2, 31, v0")
    a("v_lshlrev_b32 v3, 15, v1")
    a(f"v_lshl_add_u32 v{DKM}, v2, 4, v3")
    a(f"v_mov_b32 v{AK}, v{DLIN}")
    a(f"s_and_b32 s{T0}, s{sH}, 1")
    a(f"s_lshl_b32 s{T0}, s{T0}, 3")
    a(f"v_add_u32 v{AKR}, s{T0}, v{DLIN}")
    a("v_mul_u32_u24 v3, 20, v1")
    a(f"v_add_lshl_u32 v{AV}, v3, v2, 4")
    a(f"v_lshl_add_u32 v10, v2, 4, s{T0}")
    if k.o.get("dry", "0") == "1":
        a(f"s_cmp_lg_u32 s{S_W}, 7")
        a("s_cbranch_scc1 L_nodry")
        a(f"s_mov_b32 s{sW1}, 0x7f000000")
        for st in (3, 5, 6, 7):
            a(f"s_mov_b32 s{sST}, {st}")
            if st == 3: continue
            a(f"s_call_b64 s[{sRET}:{sRET+1}], L_att_side")
        a.label("L_nodry")
    a(f"s_lshl_b32 s{T0}, s{S_W}, 2")
    a(f"s_add_u32 s{T0}, s{T0}, {PG_LDS}")
    a(f"v_mov_b32 v{PGA}, s{T0}")
    a(f"v_mov_b32 v{PGV}, 0")
    a(f"v_and_b32 v{PGR}, 7, v0")
    a(f"v_lshlrev_b32 v{PGR}, 2, v{PGR}")
    a(f"v_add_u32 v{PGR}, {PG_LDS}, v{PGR}")
    a(f"ds_write_b32 v{PGA}, v{PGV}")
    k._late = []; k._n = 0
    a(f"s_mov_b32 s{sVM}, 0x000fffff")
    a(f"s_mov_b32 s{sVM+1}, 0x000fffff")
    a(f"s_lshl_b32 s{sK0}, s{sH}, 16")
    a(f"s_lshl_b32 s{T0}, s{S_W}, 9")
    a(f"s_add_u32 s{sK0}, s{sK0}, s{T0}")
    a(f"s_add_u32 s{sK0}, s{sK0}, {WS_K - 4096}")
    a(f"s_lshl_b32 s{T0}, s{S_W}, 10")
    a(f"s_mul_i32 s{sK2}, s{sH}, 81920")
    a(f"s_add_u32 s{sK2}, s{sK2}, s{T0}")
    a(f"s_add_u32 s{T1}, s{sK2}, {WS_V - 4096 - 10240}")
    a(f"s_cmp_ge_u32 s{S_W}, 6")
    a(f"s_cselect_b32 s{T2}, 2048, 0")
    a(f"s_sub_u32 s{sK2}, s{sK2}, s{T2}")
    a(f"s_add_u32 s{sK2}, s{sK2}, {WS_V + 4096 - 10240}")
    a(f"s_sub_u32 s{sL2}, s{T0}, s{T2}")
    a(f"s_add_u32 s{sL2}, s{sL2}, 16384")
    a(f"s_add_u32 s{sL1}, s{T0}, 8192")
    a(f"s_lshr_b32 s{T2}, s{sH}, 1")
    a(f"s_lshl_b32 s{T2}, s{T2}, 15")
    a(f"s_add_u32 s{sK1}, s{T2}, s{T0}")
    a(f"s_add_u32 s{sK1}, s{sK1}, {WS_K + 64*32768 - 4096}")
    a(f"s_mov_b32 s{sS1}, 10240")
    a(f"s_cmp_lt_u32 s{S_W}, 4")
    a(f"s_cselect_b32 s{sK1}, s{sK1}, s{T1}")
    a(f"s_cselect_b32 s{sS1}, 4096, s{sS1}")
    a(f"s_mov_b32 s{sDS}, 0")
    a(f"s_mov_b32 s{sST}, 0")
    a(f"s_mov_b32 s{sKD}, {SLOT}")
    a(f"s_mov_b32 s{sD1}, {SLOT}")
    a(f"s_mov_b32 s{sD2}, {-2*SLOT & 0xffffffff}")
    a(f"s_mov_b32 s{sW10}, s{T0}")
    a(f"s_mov_b32 s{sWOl}, 0x40000000")
    a(f"s_mov_b32 s{sTA}, 0x7f000000")
    a(f"s_and_b32 s{T1}, s{S_J}, 7")
    a(f"s_mul_i32 s{sSD}, s{T1}, {20*5120}")
    a(f"s_add_u32 s{sSD}, s{sSD}, {WS_WO}")
    a(f"s_sub_u32 s{T1}, s{sSD}, {WO_LDS}")
    a(f"s_add_u32 s{SRD_WQ}, s{SRD_WS}, s{T1}")
    a(f"s_addc_u32 s{SRD_WQ+1}, s{SRD_WS+1}, 0")
    a(f"s_mov_b32 s{SRD_WQ+2}, {WO_LDS + 90*1024}")
    a(f"s_lshl_b32 s{T0}, s{sQB}, 3")
    a(f"s_add_u32 s{T0}, s{T0}, s{S_W}")
    a(f"s_lshl_b32 s{T0}, s{T0}, 9")
    a(f"s_add_u32 s{T2}, s{T2}, s{T0}")
    a(f"s_add_u32 s80, s{T2}, {WS_Q + 64*32768}")
    a(f"s_lshl_b32 s{T3}, s{sH}, 16")
    a(f"s_add_u32 s{T3}, s{T3}, s{T0}")
    a(f"s_add_u32 s81, s{T3}, {WS_Q}")
    a("v_cmp_eq_u32 vcc, 20, v2")
    a("v_mov_b32 v3, 0x3f803f80")
    a("s_nop 0")
    a("v_cndmask_b32 v3, 0, v3, vcc")
    for r in range(16): a(f"v_mov_b32 v{V+r}, v3")
    for r in range(16): a(f"v_mov_b32 v{O+r}, 0")
    for r in range(12, 16): a(f"v_mov_b32 v{P+r}, 0")
    a(f"s_mul_i32 s{T0}, s{sH}, 20")
    a(f"s_add_u32 s{T1}, s{T0}, 19")
    a(f"s_lshr_b32 s{T0}, s{T0}, 7")
    a(f"s_lshr_b32 s{T1}, s{T1}, 7")
    a(f"s_sub_u32 s{T1}, s{T1}, s{T0}")
    a(f"s_lshl_b32 s{T1}, s{T1}, 4")
    a(f"v_and_b32 v{PL+4}, s{T1}, v0")
    a(f"v_and_b32 v{PL+5}, 15, v0")
    a(f"v_add_u32 v{PL+5}, v{PL+5}, v{PL+4}")
    a(f"v_mul_u32_u24 v{PL+6}, 0x50, v1")
    a(f"v_add3_u32 v{PL+5}, v{PL+5}, v{PL+6}, 64")
    a(f"v_add_u32 v{PL+5}, 16, v{PL+5}")
    a(f"v_lshlrev_b32 v{PL+5}, 7, v{PL+5}")
    a(f"s_lshl_b32 s{T2}, s{sQB}, 1")
    a(f"v_and_b32 v{PL+6}, 1, v0")
    a(f"v_add3_u32 v{PL+4}, v{PL+4}, v{PL+6}, s{T2}")
    a(f"v_lshlrev_b32 v{PL+4}, 7, v{PL+4}")
    a(f"s_lshl_b32 s{T0}, s{T0}, 11")
    a(f"s_add_u32 s{T3}, s{T0}, {FL_1}")
    def ldq():
        a(f"buffer_load_dwordx4 {vr(Qm,4)}, v{DKM}, {WS}, s81 offen sc1")
        a(f"buffer_load_dwordx2 {vr(Qr,2)}, v10, {WS}, s80 offen sc1")
    early_q = k.o.get("earlyq", "1") == "1"
    if early_q:
        def own_q():
            a(f"s_lshr_b32 s{T0}, s{S_W}, 2")
            a(f"s_add_u32 s{T0}, s{T0}, s{T2}")
            a(f"v_and_b32 v{PL+4}, s{T1}, v0")
            a(f"v_add_lshl_u32 v{PL+4}, v{PL+4}, s{T0}, 7")
            L = a.newlabel("qp"); Ld = a.newlabel("qpd")
            a(f"s_mov_b32 s{S_SPIN}, 0")
            a.label(L)
            a(f"buffer_load_dwordx2 v[{PL}:{PL+1}], v{PL+4}, {WS}, s{T3} offen sc1")
            a(f"s_add_u32 s{S_SPIN}, s{S_SPIN}, 1")
            a(f"s_cmp_ge_u32 s{S_SPIN}, {SPIN_MAX}")
            a(f"s_cbranch_scc1 {Ld}")
            a("s_waitcnt vmcnt(0)")
            a(f"v_cmp_ne_u64 vcc, s[{S_NONCE}:{S_NONCE+1}], v[{PL}:{PL+1}]")
            a(f"s_cbranch_vccnz {L}")
            a.label(Ld)
            ldq()
        not_wave0(k, own_q)
    k.poll2(PL + 5, PL + 4, T3, PL)
    a("s_waitcnt lgkmcnt(0)")
    a("s_barrier")
    k.stamp(8)
    if early_q:
        a(f"s_cmp_lg_u32 s{S_W}, 0")
        a("s_cbranch_scc1 L_noq")
    ldq()
    if early_q: a.label("L_noq")
    for i in range(3): kv_piece(k, i)
    a(f"s_mov_b32 s{sDS}, {SLOT}")
    a("s_waitcnt vmcnt(0)")
    for i in range(3): kv_piece(k, i)
    a(f"s_mov_b32 s{sDS}, {2*SLOT}")
    a("s_barrier")
    k.hold("fix9")
    k.stamp(9)
    def rdk(i):
        a(f"ds_read_b128 {vr(Km,4)}, v{AK} offset:{2048*i}")
        a(f"ds_read_b128 {vr(Km+4,4)}, v{AK} offset:{2048*i+1024}")
        a(f"ds_read_b64 {vr(Kr,2)}, v{AKR} offset:{8192+1024*i}")
    rdk(0)
    a(f"v_mov_b32 v{PL}, 0xff800000")
    a("s_waitcnt lgkmcnt(0)")
    qkm(a, 0, S0, "0"); qkm(a, 1, S0, "0")
    a("s_nop 9")
    qkr(a, S0)
    rdk(1)
    if k.o.get("soft", "1") == "1":
        for i in range(3): wo_piece(k)
        for i in range(int(k.o.get("ntouch", 2))): touch_piece(k)
    a("s_nop 3")
    rowmax(a, S0, 32, PL, PL + 4)
    set_neg(a, PL, PL + 4)
    for r in range(32): a(f"v_sub_f32 v{S0+r}, v{S0+r}, v{PL}")
    a(f"s_cmp_ge_u32 s{S_W}, 4")
    a("s_cbranch_scc1 L_att_young")
    for young in (0, 1):
        L = "L_att_young" if young else "L_att_old"
        a.align(6)
        a.label(L)
        att_stage(k, young)
        a(f"s_cmp_lt_u32 s{sST}, 8")
        a(f"s_cbranch_scc1 {L}")
        if not young: a("s_branch L_att_done")
    a("s_setprio 0")
    a.label("L_att_done")
    a("s_waitcnt lgkmcnt(3)")
    pv(a, 3)
    k.stamp(10)
    a(f"s_lshl_b32 s{T0}, s{sQB}, 4")
    a(f"s_lshl_b32 s{T1}, s{S_W}, 1")
    a(f"s_add_u32 s{T0}, s{T0}, s{T1}")
    a(f"s_mul_i32 s{T0}, s{T0}, 20480")
    a(f"s_add_u32 s{T0}, s{T0}, {WS_O}")
    a(f"s_lshl_b32 s{T1}, s{sH}, 9")
    a(f"s_add_u32 s80, s{T0}, s{T1}")
    a(f"s_lshr_b32 s{T1}, s{sH}, 4")
    a(f"s_lshl_b32 s{T2}, s{T1}, 11")
    a(f"s_add_u32 s80, s80, s{T2}")
    a(f"s_lshl_b32 s{T1}, s{T1}, 13")
    a(f"s_add_u32 s{T0}, s{T0}, s{T1}")
    a(f"s_lshr_b32 s{T1}, s{sH}, 3")
    a(f"s_lshl_b32 s{T1}, s{T1}, 10")
    a(f"s_add_u32 s{T0}, s{T0}, s{T1}")
    a(f"s_bfe_u32 s{T1}, s{sH}, 0x20001")
    a(f"s_lshl_b32 s{T1}, s{T1}, 7")
    a(f"s_add_u32 s{T0}, s{T0}, s{T1}")
    a(f"s_and_b32 s{T1}, s{sH}, 1")
    a(f"s_lshl_b32 s{T1}, s{T1}, 9")
    a(f"s_add_u32 s{T0}, s{T0}, s{T1}")
    a(f"s_add_u32 s81, s{T0}, 8192")
    a("s_waitcnt lgkmcnt(0)")
    a(f"v_add_f32 v1, abs(v{O}), abs(v{O+1})")
    a(f"v_add_f32 v3, abs(v{O+2}), abs(v{O+3})")
    for r in range(4, 12, 2):
        a(f"v_add_f32 v1, abs(v{O+r}), v1")
        a(f"v_add_f32 v3, abs(v{O+r+1}), v3")
    a(f"v_mov_b32 v2, 0x{f2u(2.0**40):08x}")
    a("v_add_f32 v1, v1, v3")
    a("v_mov_b32 v3, 0x203")
    a(f"v_cmp_nle_f32 vcc, v{O+8}, v2")
    a(f"v_cmp_class_f32 s[{S_M1}:{S_M1+1}], v1, v3")
    a("s_and_b32 vcc_lo, vcc_lo, 0")
    a(f"s_or_b64 vcc, vcc, s[{S_M1}:{S_M1+1}]")
    a("s_cbranch_scc1 L_att_fb")
    a.label("L_att_norm")
    a(f"v_mov_b32 v1, v{O+8}")
    a(f"v_mov_b32 v2, v{O+8}")
    a("v_bfe_u32 v3, v0, 4, 1")
    a("v_mul_u32_u24 v3, 20480, v3")
    a("v_permlane32_swap_b32 v1, v2")
    a("s_nop 0")
    a("v_rcp_f32 v2, v2")
    a("v_and_b32 v10, 15, v0")
    a("v_lshl_add_u32 v11, v10, 4, v3")
    a("v_lshl_add_u32 v3, v10, 3, v3")
    a("v_lshrrev_b32 v10, 5, v0")
    a("v_lshl_add_u32 v10, v10, 8, v11")
    for r in range(12): a(f"v_mul_f32 v{O+r}, v2, v{O+r}")
    for r in range(6): a(f"v_cvt_pk_bf16_f32 v{P+r}, v{O+2*r}, v{O+2*r+1}")
    a(f"buffer_store_dwordx4 {vr(P,4)}, v10, {WS}, s80 offen sc1")
    a("s_mov_b64 exec, 0xffffffff")
    a(f"buffer_store_dwordx2 {vr(P+4,2)}, v3, {WS}, s81 offen sc1")
    a("s_mov_b64 exec, -1")
    a("s_branch L_att_end")
    assert k._n == 2 * (6 + int(k.o.get("ntouch", 2))), k._n
    att_side(k)
    att_late(k)
    att_fallback(k)
    a.label("L_att_end")
    if k.stop == 2:
        a("s_waitcnt vmcnt(0)")
        k.stamp(11)


class VQ:
    def __init__(self, a): self.a = a; self.q = []
    def add(self, tag): self.q.append(tag)
    def wait(self, tag):
        if tag not in self.q: return
        i = len(self.q) - 1 - self.q[::-1].index(tag)
        n = len(self.q) - 1 - i
        self.a(f"s_waitcnt vmcnt({n})")
        self.q = self.q[i + 1:]

def dma_ops(k, vq, tag, first, last, s_src, s_lds, lds0, nw=8):
    a = k.a
    def one(i):
        def f():
            a(f"s_add_u32 m0, s{s_lds}, {lds0 + nw * i * 1024}")
            a(f"s_add_u32 s{T0}, s{s_src}, {(first + nw * i) * 1024}")
            if first + nw * i + nw > last:
                a(f"s_cmp_ge_u32 s{S_W}, {last - first - nw*i + (1 if nw == 7 else 0)}")
                a(f"s_cselect_b32 m0, {k.DUMMY}, m0")
                a(f"s_cselect_b32 s{T0}, 0x7f000000, s{T0}")
            k.dma(DLIN, SRD_WS, f"s{T0}", "sc1")
            if vq is not None: vq.add(tag)
        return f
    return [one(i) for i in range((last - first + nw - 1) // nw)]

DL8 = 197
RA = 8
AF = 4
ST = 36
ACC = 44
BA = 72
XW, XRD = 78, 79
TM = 80
WB = 88
CSV = 148
SW = 1
TL = 252
HR = 198
sRG, sKH, sN8, sRB64, sA, sB = 64, 65, 66, 67, 68, 69
sW7 = 72
CS_LDS = 158 * 1024

def a_op(k, vq, j, ks, s_base, split):
    a = k.a
    reg = AF + 4 * (j % RA)
    pol = k.o.get("apol", "sc1")
    def f():
        if k.o.get("noa"): return
        a(f"s_add_u32 s{T0}, s{s_base}, {1024*ks}")
        if split:
            a(f"buffer_load_dwordx2 {vr(reg,2)}, v{DL8}, {WS}, s{T0} offen sc1")
            a(f"buffer_load_dwordx2 {vr(reg+2,2)}, v{DL8}, {WS}, s{T0} offen offset:512 sc1")
            vq.add(("a", j))
        else:
            a(f"buffer_load_dwordx4 {vr(reg,4)}, v{DLIN}, {WS}, s{T0} offen {pol}")
        vq.add(("A", j))
    return f

def coop_touch(k, vq, s_base, s_idx, stride, n):
    a = k.a
    if not k.o.get("coop"): return
    a(f"s_lshl_b32 s{T1}, s{s_idx}, 10")
    a(f"s_add_u32 s{T1}, s{T1}, s{s_base}")
    for i in range((n + stride - 1) // stride):
        a(f"s_add_u32 s{T0}, s{T1}, {1024*stride*i}")
        if stride * i + stride > n:
            a(f"s_cmp_ge_u32 s{s_idx}, {n - stride*i}")
            a(f"s_cselect_b32 s{T0}, s{T1}, s{T0}")
        a(f"buffer_load_dwordx4 {vr(TM+4,4)}, v{DLIN}, {WS}, s{T0} offen sc1")
        vq.add("t")

class LQ(VQ):
    def wait(self, tag):
        if tag not in self.q: return
        i = len(self.q) - 1 - self.q[::-1].index(tag)
        self.a(f"s_waitcnt lgkmcnt({min(15, len(self.q) - 1 - i)})")
        self.q = self.q[i + 1:]

def stage_write(k, lq, i, lds, tail=None):
    a = k.a
    if tail is not None: a(f"ds_write_b128 v{tail}, {vr(SG(i),4)}")
    else: a(f"ds_write_b128 v{SW + lds // 65536}, {vr(SG(i),4)} offset:{lds % 65536}")
    if lq is not None: lq.add("w")

def mm_steps(k, vq, n, nt, addr, extra, pre_hook=None):
    a = k.a
    NB = 3
    lq = k.lq = LQ(a)
    def rd(j, t):
        r, off = addr(j, t)
        a(f"ds_read_b128 {vr(WB + (j % NB) * 4 * nt + 4 * t, 4)}, v{r} offset:{off}")
        lq.add(("r", j))
    for j in range(2):
        for t in range(nt): rd(j, t)
    for j in range(n):
        b = WB + (j % NB) * 4 * nt
        ops = list(extra.get(j, []))
        slots = {}
        for i, f in enumerate(ops): slots.setdefault(1 + (i * (nt - 1)) // max(1, len(ops)), []).append(f)
        if pre_hook and j + 2 < n: pre_hook(j + 2)
        vq.wait(("A", j))
        lq.wait(("r", j))
        for t in range(nt):
            c = "0" if j == 0 else vr(ACC + 4 * t, 4)
            a(f"{M16} {vr(ACC+4*t,4)}, {vr(b+4*t,4)}, {vr(AF+4*(j%RA),4)}, {c}")
            if j + 2 < n: rd(j + 2, t)
            for f in slots.get(t, []): f()

def tile_addrs(k, base_expr_sgpr, dst):
    a = k.a
    a(f"s_lshl_b32 s{T1}, s{sKH}, 11")
    a(f"v_add_u32 v{dst+2}, s{base_expr_sgpr}, v{DLIN}")
    a(f"v_add_u32 v{dst}, s{T1}, v{dst+2}")
    a(f"v_subrev_u32 v{dst+1}, s{T1}, v{dst+2}")

def exch_addrs(k, scr):
    a = k.a
    a(f"s_mul_i32 s{T0}, s{sRG}, 5120")
    a(f"s_add_u32 s{T0}, s{T0}, {scr}")
    a(f"s_lshl_b32 s{T1}, s{sKH}, 11")
    a(f"s_add_u32 s{T2}, s{T0}, s{T1}")
    a(f"v_add_u32 v{XW}, s{T2}, v{DLIN}")
    a(f"s_sub_u32 s{T2}, s{T0}, s{T1}")
    a(f"s_add_u32 s{T2}, s{T2}, 2048")
    a(f"v_add_u32 v{XRD}, s{T2}, v{DLIN}")

def reduce_halves(k, resid, pad):
    a = k.a
    if pad: a(f"s_nop {pad-1}")
    a(f"ds_write_b128 v{XW}, {vr(ACC+8,4)}")
    a(f"ds_write_b128 v{XW}, {vr(ACC+12,4)} offset:1024")
    L = a.newlabel("rh")
    a(f"s_cmp_eq_u32 s{sKH}, 0")
    a(f"s_cbranch_scc1 {L}")
    a(f"ds_write_b128 v{XW}, {vr(ACC+16,4)} offset:2048")
    a.label(L)
    a("s_waitcnt lgkmcnt(2)")
    for i, t in enumerate((0, 1, 4)):
        for h in range(2):
            a(f"v_lshlrev_b32 v{TM+2}, 16, v{resid+2*i+h}")
            a(f"v_and_b32 v{TM+3}, 0xffff0000, v{resid+2*i+h}")
            a(f"v_add_f32 v{ACC+4*t+2*h}, v{ACC+4*t+2*h}, v{TM+2}")
            a(f"v_add_f32 v{ACC+4*t+2*h+1}, v{ACC+4*t+2*h+1}, v{TM+3}")
    a("s_waitcnt lgkmcnt(0)")
    a("s_barrier")
    if k.o.get("fine") == "3": k.stamp(20)
    for i in range(3): a(f"ds_read_b128 {vr(WB+4*i,4)}, v{XRD} offset:{1024*i}")
    for i, t in enumerate((0, 1, 4)):
        a(f"s_waitcnt lgkmcnt({2-i})")
        for r in range(4): a(f"v_add_f32 v{ACC+4*t+r}, v{ACC+4*t+r}, v{WB+4*i+r}")

DH = 254
def odd_tile_store(k, src, tmp, soff):
    a = k.a
    for i in range(4): a(f"v_mov_b32 v{tmp+i}, v{src+i%2}")
    a("s_nop 0")
    a(f"v_permlane16_swap_b32 v{tmp}, v{tmp+2}")
    a(f"v_permlane16_swap_b32 v{tmp+1}, v{tmp+3}")
    a("s_mov_b32 exec_lo, 0xffff")
    a("s_mov_b32 exec_hi, 0xffff")
    a(f"buffer_store_dwordx4 {vr(tmp,4)}, v{DH}, {WS}, s{soff} offen sc1")
    a("s_mov_b64 exec, -1")

def row_reduce(a, r, t):
    for sw in ("16", "32"):
        a(f"v_mov_b32 v{t}, v{r}")
        a(f"v_mov_b32 v{t+1}, v{r+1}")
        a("s_nop 0")
        a(f"v_permlane{sw}_swap_b32 v{r}, v{t}")
        a(f"v_permlane{sw}_swap_b32 v{r+1}, v{t+1}")
        a("s_nop 0")
        a(f"v_add_f32 v{r}, v{r}, v{t}")
        a(f"v_add_f32 v{r+1}, v{r+1}, v{t+1}")

def fpoll(k, n):
    d = int(k.o.get("pdepth", 1))
    if d == 1: k.poll(n, T3, FSP, TM)
    else: k.pollp(n, T3, FSP, TM, ST, d)

def not_wave0(k, fn):
    a = k.a
    L = a.newlabel("nw0")
    a(f"s_cmp_eq_u32 s{S_W}, 0")
    a(f"s_cbranch_scc1 {L}")
    fn()
    a.label(L)

NS5 = 16
HALF = NS5 * 5120
OUT_PITCH = 336
OUT_HALF = HALF
OUT_LDS = 11 * 5120
sW2 = 83
def w2_load(k, vq, tag, i, batch):
    h, q = divmod(i, 9)
    stage_load(k, vq, tag, i, sW2, (135 * h + (0, 5 * NS5)[batch] + 8 * q) * 1024)
def w2_write(k, lq, i):
    h, q = divmod(i, 9)
    stage_write(k, lq, i, HALF * h + 8192 * q)

P3_SCR, P3_LAST = 35 * 1024, 56 * 1024
sTT3 = 81
def phase3(k):
    a = k.a
    a.c("================ phase 3: output projection + residual")
    a(f"s_lshl_b32 s{T0}, s{sQB}, 5")
    a(f"s_add_u32 s{T0}, s{T0}, s{sH}")
    a(f"s_mul_i32 s{T3}, s{T0}, {FSP}")
    a(f"s_add_u32 s{T3}, s{T3}, {FL_2}")
    a(f"s_and_b32 s{sRG}, s{S_W}, 3")
    a(f"s_lshr_b32 s{sKH}, s{S_W}, 2")
    a(f"s_and_b32 s{sN8}, s{S_J}, 7")
    a(f"s_lshl_b32 s{sRB64}, s{S_C}, 2")
    a(f"s_lshr_b32 s{T0}, s{S_J}, 3")
    a(f"s_add_u32 s{sRB64}, s{sRB64}, s{T0}")
    a(f"s_sub_u32 s{sW7}, s{sW10}, 1024")
    a(f"s_add_u32 s{sA}, s{sSD}, s{sW7}")
    a(f"s_mul_i32 s{sW2}, s{sN8}, {54*5120}")
    a(f"s_add_u32 s{sW2}, s{sW2}, s{sW10}")
    a(f"s_add_u32 s{sW2}, s{sW2}, {WS_W2}")
    a(f"v_lshlrev_b32 v{DL8}, 3, v0")
    a(f"v_lshrrev_b32 v{DH}, 5, v0")
    a(f"v_and_b32 v{TM}, 15, v0")
    a(f"v_lshlrev_b32 v{TM}, 4, v{TM}")
    a(f"v_lshl_add_u32 v{DH}, v{DH}, 8, v{TM}")
    a(f"v_add_u32 v{SW}, s{sW10}, v{DLIN}")
    a(f"v_add_u32 v{SW+1}, 0x10000, v{SW}")
    a(f"v_add_u32 v{SW+2}, 0x20000, v{SW}")
    a("s_waitcnt vmcnt(0)")
    a("s_barrier")
    k.stamp(11)
    k.flag_store(T3, TM)
    def early():
        for f in dma_ops(k, None, None, 90, 100, sA, sW7, P3_LAST, 7): f()
        if not k.o.get("w0a", "1") == "1": resid_x(k)
    not_wave0(k, early)
    if k.o.get("w0a", "1") == "1": resid_x(k)
    for i in range(4): stage_write(k, None, i, 8192 * i)
    a(f"s_cmp_lt_u32 s{S_W}, 6")
    a("s_cbranch_scc1 L_p3_nocs")
    a(f"s_and_b32 s{T1}, s{S_J}, 15")
    a(f"s_sub_u32 s{T0}, s{S_W}, 6")
    a(f"s_lshl_b32 s{T0}, s{T0}, 6")
    a(f"v_add_u32 v{TM+4}, s{T0}, v0")
    a(f"s_mul_i32 s{T2}, s{T1}, 96")
    a(f"v_add_u32 v{TM+5}, s{T2}, v{TM+4}")
    a(f"s_min_u32 s{T2}, s{T1}, 11")
    a(f"s_lshl_b32 s{T2}, s{T2}, 4")
    a(f"s_add_u32 s{T2}, s{T2}, 1536")
    a(f"v_and_b32 v{TM+6}, 15, v0")
    a(f"v_add_u32 v{TM+6}, s{T2}, v{TM+6}")
    a(f"v_cmp_gt_u32 vcc, 96, v{TM+4}")
    a(f"s_mov_b32 s{T2}, {WS_CS1}")
    a("s_nop 0")
    a(f"v_cndmask_b32 v{TM+5}, v{TM+6}, v{TM+5}, vcc")
    a(f"v_lshlrev_b32 v{TM+5}, 2, v{TM+5}")
    for i in range(20):
        a(f"buffer_load_dword v{CSV+i}, v{TM+5}, {WS}, s{T2} offen sc1")
        if i < 19: a(f"s_add_u32 s{T2}, s{T2}, {1728*4}")
    a.label("L_p3_nocs")
    a(f"s_mul_i32 s{T0}, s{sKH}, {45*1024}")
    a(f"s_add_u32 s{T0}, s{T0}, {WO_LDS}")
    tile_addrs(k, T0, BA)
    a(f"s_mul_i32 s{T0}, s{sKH}, 5120")
    a(f"s_add_u32 s{T0}, s{T0}, {P3_LAST}")
    tile_addrs(k, T0, BA + 3)
    exch_addrs(k, P3_SCR)
    a(f"s_lshl_b32 s{T0}, s{sRB64}, 2")
    a(f"s_add_u32 s{sTT3}, s{T0}, s{sRG}")
    a(f"s_mul_i32 s{sA}, s{sTT3}, 20480")
    a(f"s_mul_i32 s{T1}, s{sKH}, 10240")
    a(f"s_add_u32 s{sA}, s{sA}, s{T1}")
    a(f"s_add_u32 s{sA}, s{sA}, {WS_O}")
    a(f"v_and_b32 v{TM+6}, 15, v0")
    a(f"v_lshrrev_b32 v{TM+7}, 4, v0")
    a(f"v_lshl_add_u32 v{TM+7}, v{TM+6}, 2, v{TM+7}")
    a(f"v_lshlrev_b32 v{TM+7}, 2, v{TM+7}")
    a(f"s_mul_i32 s70, s{sTT3}, 20480")
    a(f"s_add_u32 s70, s70, {WS_H}")
    a(f"s_lshl_b32 s{T0}, s{sN8}, 1")
    a(f"s_add_u32 s{T0}, s{T0}, s{sKH}")
    a(f"s_lshl_b32 s71, s{T0}, 10")
    a(f"s_add_u32 s71, s71, s70")
    a(f"s_lshl_b32 s{T1}, s{sRB64}, 4")
    a(f"s_add_u32 s{T0}, s{T0}, s{T1}")
    a(f"s_lshl_b32 s{T0}, s{T0}, 9")
    a(f"s_lshl_b32 s{T1}, s{sRG}, 7")
    a(f"s_add_u32 s{T0}, s{T0}, s{T1}")
    a(f"s_add_u32 s74, s{T0}, {WS_ST}")
    a(f"s_lshr_b32 s{T0}, s{sN8}, 1")
    a(f"s_lshl_b32 s{T0}, s{T0}, 10")
    a(f"s_and_b32 s{T1}, s{sN8}, 1")
    a(f"s_lshl_b32 s{T1}, s{T1}, 9")
    a(f"s_add_u32 s{T0}, s{T0}, s{T1}")
    a(f"s_add_u32 s70, s70, s{T0}")
    a(f"s_add_u32 s70, s70, 16384")
    a(f"s_lshl_b32 s{T0}, s{sRB64}, 3")
    a(f"s_add_u32 s{T0}, s{T0}, s{sN8}")
    a(f"s_mul_i32 s75, s{T0}, {FSP}")
    a(f"s_add_u32 s75, s75, {FL_3}")
    a(f"s_mul_i32 s{T3}, s{S_C}, {32*FSP}")
    a(f"s_add_u32 s{T3}, s{T3}, {FL_2}")
    fpoll(k, 32)
    if not k.o.get("w0a", "1") == "1":
        a(f"s_cmp_lg_u32 s{S_W}, 0")
        a("s_cbranch_scc1 L_p3_rx")
        resid_x(k)
        a.label("L_p3_rx")
    a("s_waitcnt vmcnt(3) lgkmcnt(0)")
    a("s_barrier")
    k.hold("fix12")
    k.stamp(12)
    vq = VQ(a)
    aop = [a_op(k, vq, j, j, sA, j >= 8) for j in range(10)]
    D = int(k.o.get("d3", 4))
    coop_touch(k, vq, sA, sN8, 8, 10)
    for j in range(D): aop[j]()
    def addr(j, t):
        r = (BA if j < 9 else BA + 3) + (0, 0, 1, 1, 2)[t]
        return r, (j * 5120 if j < 9 else 0) + t * 1024
    extra = {j: [aop[j + D]] for j in range(10 - D)}
    def perm(r):
        def f():
            a(f"ds_bpermute_b32 v{XR+r}, v{TM+7}, v{XR+r}")
            k.lq.add("p")
        return f
    for r in range(6): extra.setdefault(6 + r // 2, []).append(perm(r))
    mm_steps(k, vq, 10, 5, addr, extra)
    k.stamp(13)
    reduce_halves(k, XR, 6)
    for i, t in enumerate((0, 1, 4)):
        for h in range(2): a(f"v_cvt_pk_bf16_f32 v{HR+2*i+h}, v{ACC+4*t+2*h}, v{ACC+4*t+2*h+1}")
        if i == 1: a(f"buffer_store_dwordx4 {vr(HR,4)}, v{DLIN}, {WS}, s71 offen sc1")
    a(f"v_mov_b32 v{TM+6}, 0x3f803f80")
    a(f"v_mov_b32 v{TM+4}, 0")
    a(f"v_mov_b32 v{TM+5}, 0")
    def acc_stats(regs):
        for r in regs:
            a(f"v_dot2_f32_bf16 v{TM+4}, v{r}, v{TM+6}, v{TM+4}")
            a(f"v_dot2_f32_bf16 v{TM+5}, v{r}, v{r}, v{TM+5}")
    a(f"s_cmp_lg_u32 s{sKH}, 0")
    a("s_cbranch_scc1 L_p3_no4")
    odd_tile_store(k, HR + 4, WB, 70)
    acc_stats(range(HR + 4, HR + 6))
    a.label("L_p3_no4")
    acc_stats(range(HR, HR + 4))
    a("s_nop 1")
    row_reduce(a, TM + 4, TM + 6)
    a("s_mov_b64 exec, 0xffff")
    a(f"buffer_store_dwordx2 {vr(TM+4,2)}, v{DL8}, {WS}, s74 offen sc1")
    a("s_mov_b64 exec, -1")
    if k.o.get("fine") == "3": k.stamp(21)
    for i in range(4): w2_load(k, None, None, i, 0)
    NW3 = int(k.o.get("nw3", 8))
    for i in range(7, 7 + NW3): stage_write(k, None, i, 8192 * i)
    if k.o.get("fine") == "3": k.stamp(22)
    a("s_waitcnt vmcnt(4)")
    if k.o.get("fine") == "3": k.stamp(23)
    a("s_barrier")
    k.stamp(14)
    k.flag_store(75, TM)

def phase4(k):
    a = k.a
    a.c("================ phase 4: FFN up-projection + SiLU")
    sF, sRB, sTT = 70, 71, 74
    NW3 = int(k.o.get("nw3", 8)); NB4 = min(NW3, int(k.o.get("nb4", 4)))
    def rest_writes():
        for i in list(range(7 + NW3, 18)) + [4, 5, 6]: stage_write(k, None, i, 8192 * i)
    a("s_waitcnt lgkmcnt(0)")
    for i in range(7, 7 + NB4): w2_load(k, None, None, i, 0)
    if k.o.get("w0b", "1") == "1": rest_writes()
    else: not_wave0(k, rest_writes)
    a(f"s_cmp_lt_u32 s{S_W}, 6")
    a("s_cbranch_scc1 L_p4_nocs2")
    for w in (10, 5):
        for i in range(w): a(f"v_add_f32 v{CSV+i}, v{CSV+i}, v{CSV+w+i}")
    for i in range(1, 5): a(f"v_add_f32 v{CSV}, v{CSV}, v{CSV+i}")
    a(f"s_lshl_b32 s{T0}, s{S_W}, 8")
    a(f"s_add_u32 s{T0}, s{T0}, {CS_LDS - 6*256}")
    a(f"v_lshl_add_u32 v{TM+4}, v0, 2, s{T0}")
    a(f"ds_write_b32 v{TM+4}, v{CSV}")
    a.label("L_p4_nocs2")
    a(f"s_and_b32 s{sF}, s{S_J}, 15")
    a(f"s_lshl_b32 s{sRB}, s{S_C}, 1")
    a(f"s_lshr_b32 s{T0}, s{S_J}, 4")
    a(f"s_add_u32 s{sRB}, s{sRB}, s{T0}")
    a(f"v_mov_b32 v{BA}, v{DLIN}")
    a(f"v_add_u32 v{BA+1}, {9*7168}, v{DLIN}")
    a(f"v_add_u32 v{BA+2}, {18*7168}, v{DLIN}")
    a(f"s_lshl_b32 s{T0}, s{sRB}, 3")
    a(f"s_add_u32 s{sTT}, s{T0}, s{S_W}")
    a(f"s_mul_i32 s{sA}, s{sTT}, 20480")
    a(f"s_add_u32 s{sA}, s{sA}, {WS_H}")
    a(f"s_lshr_b32 s{T0}, s{sTT}, 2")
    a(f"s_lshl_b32 s{T0}, s{T0}, 13")
    a(f"s_and_b32 s{T1}, s{sTT}, 3")
    a(f"s_lshl_b32 s{T1}, s{T1}, 7")
    a(f"s_add_u32 s{T0}, s{T0}, s{T1}")
    a(f"s_add_u32 s{sB}, s{T0}, {WS_ST}")
    a(f"v_and_b32 v{TM}, 15, v0")
    a(f"v_lshrrev_b32 v{TM+1}, 4, v0")
    a(f"v_lshlrev_b32 v{BA+3}, 11, v{TM+1}")
    a(f"v_lshl_add_u32 v{BA+3}, v{TM}, 3, v{BA+3}")
    a(f"v_lshlrev_b32 v{BA+4}, 4, v{TM+1}")
    a(f"v_add_u32 v{BA+4}, {CS_LDS}, v{BA+4}")
    a(f"s_mul_i32 s{T3}, s{sRB}, {16*FSP}")
    a(f"s_add_u32 s{T3}, s{T3}, {FL_3}")
    fpoll(k, 16)
    if not k.o.get("w0b", "1") == "1":
        a(f"s_cmp_lg_u32 s{S_W}, 0")
        a("s_cbranch_scc1 L_p4_w0")
        rest_writes()
        a.label("L_p4_w0")
    a("s_waitcnt lgkmcnt(0)")
    a("s_barrier")
    k.stamp(15)
    vq = VQ(a)
    aop = [a_op(k, vq, j, j, sA, False) for j in range(20)]
    D = int(k.o.get("d4", 4))
    coop_touch(k, vq, sA, sF, 16, 20)
    for j in range(D): aop[j]()
    def st_op(i):
        def f():
            a(f"buffer_load_dwordx2 {vr(ST+2*i,2)}, v{BA+3}, {WS}, s{sB} offen offset:{512*i} sc1")
            vq.add("S")
        return f
    extra = {j: [aop[j + D]] for j in range(20 - D)}
    rest = list(range(7 + NB4, 18)) + [4, 5, 6]
    NE4 = int(k.o.get("ne4", 3))
    late4, rest = rest[len(rest) - NE4:], rest[:len(rest) - NE4]
    for n, i in enumerate(rest): extra.setdefault(1 + (n * 19) // len(rest), []).append(lambda i=i: w2_load(k, vq, "W", i, 0))
    for i in range(4): extra.setdefault(6 + i, []).insert(0, st_op(i))
    def stats_a():
        vq.wait("S")
        a(f"v_add_f32 v{ST}, v{ST}, v{ST+2}")
        a(f"v_add_f32 v{ST+1}, v{ST+1}, v{ST+3}")
        a(f"v_add_f32 v{ST+4}, v{ST+4}, v{ST+6}")
        a(f"v_add_f32 v{ST+5}, v{ST+5}, v{ST+7}")
        a(f"v_add_f32 v{ST}, v{ST}, v{ST+4}")
        a(f"v_add_f32 v{ST+1}, v{ST+1}, v{ST+5}")
    def stats_sw(sw):
        def f():
            a(f"v_mov_b32 v{ST+2}, v{ST}")
            a(f"v_mov_b32 v{ST+3}, v{ST+1}")
            a("s_nop 0")
            a(f"v_permlane{sw}_swap_b32 v{ST}, v{ST+2}")
            a(f"v_permlane{sw}_swap_b32 v{ST+1}, v{ST+3}")
            a("s_nop 0")
            a(f"v_add_f32 v{ST}, v{ST}, v{ST+2}")
            a(f"v_add_f32 v{ST+1}, v{ST+1}, v{ST+3}")
        return f
    def stats_b():
        a(f"v_mul_f32 v{ST}, 0x{f2u(1.0/640):08x}, v{ST}")
        a(f"v_mul_f32 v{ST+2}, v{ST}, v{ST}")
        a(f"v_mov_b32 v{ST+3}, 0x{f2u(1.0/640):08x}")
        a(f"v_fma_f32 v{ST+2}, v{ST+1}, v{ST+3}, -v{ST+2}")
        a(f"v_max_f32 v{ST+2}, 0, v{ST+2}")
        a(f"v_add_f32 v{ST+2}, 0x{f2u(1e-5):08x}, v{ST+2}")
        a(f"v_rsq_f32 v{ST+1}, v{ST+2}")
        a(f"v_mov_b32 v{ST+2}, 0x{f2u(-math.log2(math.e)):08x}")
        a(f"s_mul_i32 s76, s{sTT}, {54*1024}")
        a(f"v_mul_f32 v{ST+1}, v{ST+1}, v{ST+2}")
        a(f"s_add_u32 s76, s76, {WS_H1}")
        a(f"v_mul_f32 v{ST}, v{ST}, v{ST+1}")
        a(f"s_lshr_b32 s{T1}, s{sF}, 3")
        a(f"s_add_u32 s{T1}, s{T1}, s{sF}")
        a(f"s_mul_i32 s{T1}, s{T1}, 3072")
        a(f"s_add_u32 s77, s{T1}, s76")
    def stats_c():
        a(f"s_lshr_b32 s{T2}, s{sF}, 1")
        a(f"s_cmp_ge_u32 s{sF}, 6")
        a(f"s_cselect_b32 s{T1}, 48, 24")
        a(f"s_add_u32 s{T2}, s{T2}, s{T1}")
        a(f"s_lshl_b32 s{T2}, s{T2}, 10")
        a(f"s_and_b32 s{T1}, s{sF}, 1")
        a(f"s_lshl_b32 s{T1}, s{T1}, 9")
        a(f"s_add_u32 s{T2}, s{T2}, s{T1}")
        a(f"s_add_u32 s76, s76, s{T2}")
        a(f"s_lshl_b32 s{T1}, s{sRB}, 4")
        a(f"s_add_u32 s{T1}, s{T1}, s{sF}")
        a(f"s_mul_i32 s{T3}, s{T1}, {FSP}")
        a(f"s_add_u32 s{T3}, s{T3}, {FL_4}")
    for j, f in ((14, stats_a), (15, stats_sw(16)), (16, stats_sw(32)), (17, stats_b), (18, stats_c)): extra.setdefault(j, []).append(f)
    def addr(j, t): return BA + j // 9, (j % 9) * 7168 + t * 1024
    mm_steps(k, vq, 20, 7, addr, extra)
    k.stamp(16)
    CS = WB + 56
    for t in range(7): a(f"ds_read_b128 {vr(CS+4*t,4)}, v{BA+4} offset:{64*t}")
    for i in late4: w2_load(k, None, None, i, 0)
    a(f"s_cmp_lt_u32 s{S_W}, 4")
    a("s_cbranch_scc1 L_p4_nb")
    a("s_waitcnt lgkmcnt(0)")
    a("s_barrier")
    a.label("L_p4_nb")
    a("s_waitcnt lgkmcnt(0)")
    E = WB; OUT = AF
    def silu(tiles):
        rs = [4 * t + r for t in tiles for r in range(4)]
        for r in rs: a(f"v_mul_f32 v{ACC+r}, v{ST+1}, v{ACC+r}")
        for r in rs: a(f"v_fma_f32 v{ACC+r}, -v{ST}, v{CS+r}, v{ACC+r}")
        for r in rs: a(f"v_exp_f32 v{E+r}, v{ACC+r}")
        for r in rs: a(f"v_fma_f32 v{E+r}, v{E+r}, v{ST+2}, v{ST+2}")
        for r in rs: a(f"v_rcp_f32 v{E+r}, v{E+r}")
        for r in rs: a(f"v_mul_f32 v{ACC+r}, v{ACC+r}, v{E+r}")
        for r in rs[::2]: a(f"v_cvt_pk_bf16_f32 v{OUT+r//2}, v{ACC+r}, v{ACC+r+1}")
    a(f"s_cmp_ge_u32 s{sF}, 12")
    a("s_cbranch_scc1 L_p4_no6")
    silu((6,))
    odd_tile_store(k, OUT + 12, OUT + 16, 76)
    a.label("L_p4_no6")
    PB = int(k.o.get("pb4", 3))
    for p in range(3):
        if p == PB:
            a(f"s_cmp_ge_u32 s{S_W}, 4")
            a("s_cbranch_scc1 L_p4_nb2")
            a("s_barrier")
            a.label("L_p4_nb2")
        silu((2 * p, 2 * p + 1))
        a(f"buffer_store_dwordx4 {vr(OUT+4*p,4)}, v{DLIN}, {WS}, s77 offen offset:{1024*p} sc1")
    order = [x for q in range(9) for x in (q, 9 + q)]
    NB5 = 7
    def w2_swap():
        for h in range(2): dma_ops(k, None, None, 135 * h + 72, 135 * h + 80, sW2, sW10, HALF * h + 72 * 1024)[0]()
        for n in range(18):
            w2_write(k, None, n)
            if 4 <= n < 4 + NB5:
                a("s_waitcnt lgkmcnt(4)")
                w2_load(k, None, None, n - 4, 1)
    a(f"s_cmp_ge_u32 s{S_W}, 4")
    a("s_cbranch_scc1 L_p4_y")
    if PB == 3: a("s_barrier")
    a("s_waitcnt vmcnt(3)")
    w2_swap()
    a(f"s_waitcnt vmcnt({NB5 + 2})")
    a("s_barrier")
    k.stamp(17)
    k.flag_store(T3, TM)
    a("s_branch L_p4_e")
    a.label("L_p4_y")
    NY = int(k.o.get("ny", 18))
    a("s_waitcnt vmcnt(3)")
    for n in range(NY): w2_write(k, None, n)
    a("s_waitcnt vmcnt(0)")
    a("s_barrier")
    k.stamp(17)
    for n in range(NY, 18): w2_write(k, None, n)
    for h in range(2): dma_ops(k, None, None, 135 * h + 72, 135 * h + 80, sW2, sW10, HALF * h + 72 * 1024)[0]()
    a(f"s_waitcnt lgkmcnt({min(15, 18 - NB5)})")
    for n in range(NB5): w2_load(k, None, None, n, 1)
    a.label("L_p4_e")

def phase5(k):
    a = k.a
    a.c("================ phase 5: FFN down-projection + residual")
    a(f"s_mul_i32 s{T0}, s{sKH}, {HALF}")
    tile_addrs(k, T0, BA)
    for i in range(3): a(f"v_add_u32 v{BA+3+i}, {12*5120}, v{BA+i}")
    a(f"v_and_b32 v{TM+4}, 15, v0")
    a(f"s_lshl_b32 s{T0}, s{sRG}, 4")
    a(f"v_add_u32 v{TM+4}, s{T0}, v{TM+4}")
    a(f"v_mul_u32_u24 v{TM+4}, {OUT_PITCH}, v{TM+4}")
    a(f"v_lshrrev_b32 v{TM+5}, 4, v0")
    a(f"v_lshl_add_u32 v{TM+4}, v{TM+5}, 4, v{TM+4}")
    a(f"s_mul_i32 s{T0}, s{sKH}, {OUT_HALF}")
    a(f"s_add_u32 s{T0}, s{T0}, {OUT_LDS}")
    a(f"v_add_u32 v{TL}, s{T0}, v{TM+4}")
    a(f"s_lshl_b32 s{T0}, s{sKH}, 7")
    a(f"v_add_u32 v{XW}, s{T0}, v{TL}")
    a(f"v_subrev_u32 v{XRD}, s{T0}, v{TL}")
    for n in range(2):
        a(f"s_mul_i32 s{T0}, s{S_W}, 0x50")
        a(f"s_add_u32 s{T0}, s{T0}, {64*n}")
        a(f"v_add_u32 v{TM+2}, s{T0}, v0")
        a(f"v_mul_u32_u24 v{TM+3}, 6554, v{TM+2}")
        a(f"v_lshrrev_b32 v{TM+3}, 16, v{TM+3}")
        a(f"v_mul_u32_u24 v{TM+4+2*n}, 10, v{TM+3}")
        a(f"v_sub_u32 v{TM+2}, v{TM+2}, v{TM+4+2*n}")
        a(f"v_mul_u32_u24 v{TM+4+2*n}, {OUT_PITCH}, v{TM+3}")
        a(f"v_lshl_add_u32 v{TM+4+2*n}, v{TM+2}, 5, v{TM+4+2*n}")
        a(f"v_add_u32 v{TM+4+2*n}, {OUT_LDS}, v{TM+4+2*n}")
        a(f"v_mul_u32_u24 v{TM+5+2*n}, 1280, v{TM+3}")
        a(f"v_lshl_add_u32 v{TM+5+2*n}, v{TM+2}, 4, v{TM+5+2*n}")
    a(f"s_mul_i32 s{sA}, s{sRB64}, {64*1280}")
    a(f"s_mul_i32 s{T0}, s{sN8}, 160")
    a(f"s_add_u32 s{sA}, s{sA}, s{T0}")
    a(f"s_mul_i32 s{sB}, s{sTT3}, {54*1024}")
    a(f"s_mul_i32 s{T1}, s{sKH}, {27*1024}")
    a(f"s_add_u32 s{sB}, s{sB}, s{T1}")
    a(f"s_add_u32 s{sB}, s{sB}, {WS_H1}")
    if k.o.get("p5hot"): a(f"s_mov_b32 s{sB}, {WS_W2}")
    if k.o.get("p5oob"): a(f"s_mov_b32 s{sB}, 0x7f000000")
    a(f"s_lshr_b32 s{T3}, s{sRB64}, 1")
    a(f"s_mul_i32 s{T3}, s{T3}, {16*FSP}")
    a(f"s_add_u32 s{T3}, s{T3}, {FL_4}")
    fpoll(k, 16)
    a("s_waitcnt lgkmcnt(0)")
    a("s_barrier")
    k.stamp(18)
    vq = VQ(a)
    aop = [a_op(k, vq, j, j, sB, False) for j in range(27)]
    D = int(k.o.get("d5", 6))
    coop_touch(k, vq, sB, sN8, 8, 27)
    for j in range(D): aop[j]()
    extra = {j: [aop[j + D]] for j in range(27 - D)}
    bars = (5, 10, 14, 19)
    at = (5, 6, 7, 10, 11, 12, 14)
    dm = dma_ops(k, vq, None, 135 + 5 * NS5, 135 + 5 * NS5 + 56, sW2, sW10, HALF)
    for i in range(7):
        def both(i=i):
            if not k.o.get("p5nod"):
                dm[i](); vq.q[-1] = ("R", i)
            if not k.o.get("p5now"): stage_write(k, k.lq, i, 8192 * i)
        extra.setdefault(at[i], []).append(both)
    cover = {14: 3, 19: 6}
    slot = lambda j: j if j < NS5 else j - NS5
    def addr(j, t):
        s = slot(j)
        return BA + (3 if s >= 12 else 0) + (0, 0, 1, 1, 2)[t], (s % 12) * 5120 + t * 1024
    def pre(j):
        if j - 2 in bars:
            k.lq.wait("w")
            if j - 2 in cover: vq.wait(("R", cover[j - 2]))
            if not k.o.get("p5nob"): a("s_barrier")
    mm_steps(k, vq, 27, 5, addr, extra, pre)
    k.stamp(19)
    a("s_nop 1")
    for i, t in enumerate((0, 1, 4)):
        if i == 2:
            a(f"s_cmp_lg_u32 s{sKH}, 0")
            a("s_cbranch_scc1 L_p5_no4")
        for h in range(2):
            a(f"v_lshlrev_b32 v{TM+2}, 16, v{HR+2*i+h}")
            a(f"v_and_b32 v{TM+3}, 0xffff0000, v{HR+2*i+h}")
            a(f"v_add_f32 v{ACC+4*t+2*h}, v{ACC+4*t+2*h}, v{TM+2}")
            a(f"v_add_f32 v{ACC+4*t+2*h+1}, v{ACC+4*t+2*h+1}, v{TM+3}")
        if i < 2: a(f"ds_write_b128 v{XW}, {vr(ACC+4*t,4)} offset:{64*t}")
        if i == 1:
            a(f"ds_write_b128 v{XRD}, {vr(ACC+8,4)} offset:128")
            a(f"ds_write_b128 v{XRD}, {vr(ACC+12,4)} offset:192")
    a.label("L_p5_no4")
    a(f"ds_write_b128 v{TL}, {vr(ACC+16,4)} offset:256")
    a("s_waitcnt lgkmcnt(0)")
    a("s_barrier")
    OUTS = f"s[{SRD_OUT}:{SRD_OUT+3}]"
    def rd(ra, base):
        for h in range(2):
            for q in range(2): a(f"ds_read_b128 {vr(base+8*h+4*q,4)}, v{ra} offset:{16*q}")
            if h == 0: a(f"v_add_u32 v{ra}, {OUT_HALF}, v{ra}")
    def fin(ga, base):
        for r in range(8): a(f"v_add_f32 v{base+r}, v{base+r}, v{base+8+r}")
        for r in range(4): a(f"v_cvt_pk_bf16_f32 v{base+r}, v{base+2*r}, v{base+2*r+1}")
        a(f"buffer_store_dwordx4 {vr(base,4)}, v{ga}, {OUTS}, s{sA} offen {k.o.get('ost', '')}")
    rd(TM + 4, WB)
    a("s_mov_b64 exec, 0xffff")
    rd(TM + 6, WB + 16)
    a("s_mov_b64 exec, -1")
    a("s_waitcnt lgkmcnt(4)")
    fin(TM + 5, WB)
    a("s_mov_b64 exec, 0xffff")
    a("s_waitcnt lgkmcnt(0)")
    fin(TM + 7, WB + 16)
    a("s_mov_b64 exec, -1")
```

```python
import sys, math
from asmlib import Asm, vr, sr, f2u, check
from tables import *

NAME = "sequential_preLN__mha_block__dense_activation_silu__prompt"
LDS_BYTES = 163840
SPIN_MAX = 200000

S_G = 2
SRD_X, SRD_WQ, SRD_WS, SRD_OUT, SRD_DBG, SRD_RL = 4, 8, 12, 16, 20, 24
S_W, S_C, S_J = 28, 29, 30
S_NONCE = 32
S_PTR = 36
T0, T1, T2, T3, T4, T5 = 54, 55, 56, 57, 58, 59
S_M1 = 60
S_SPIN = 62

class K:
    def __init__(self, stop_after=99, opts=None):
        self.a = Asm()
        self.stop = stop_after
        self.o = opts or {}
        self.pad = 0
        self._sides = []; self._late1 = []

    def srd(self, d, ptr, nbytes):
        a = self.a
        a(f"s_mov_b32 s{d}, s{ptr}")
        a(f"s_and_b32 s{d+1}, s{ptr+1}, 0xffff")
        a(f"s_mov_b32 s{d+2}, {nbytes}")
        a(f"s_mov_b32 s{d+3}, 0x20000")

    def stamp(self, idx):
        if not self.o.get("stamps"): return
        if self.o["stamps"] == "min" and idx not in (0, 9, 10, 31): return
        a = self.a
        a("s_memrealtime s[100:101]")
        a("s_waitcnt lgkmcnt(0)")
        a(f"v_writelane_b32 v255, s100, {idx}")
        if idx < 22 and self.o["stamps"] != "min":
            a("s_memtime s[100:101]")
            a("s_waitcnt lgkmcnt(0)")
            a(f"v_writelane_b32 v255, s100, {idx+32}")

    def stamp_dyn(self, base, sreg):
        if not self.o.get("its"): return
        a = self.a
        a("s_memtime s[100:101]")
        a("s_mov_b32 s99, m0")
        a(f"s_add_u32 m0, s{sreg}, {base}")
        a("s_waitcnt lgkmcnt(0)")
        a("v_writelane_b32 v255, s100, m0")
        a("s_mov_b32 m0, s99")

    def stamp_flush(self):
        if not self.o.get("stamps"): return
        a = self.a
        if self.o.get("dbgwg"):
            L = a.newlabel("dbg")
            a(f"s_cmp_lg_u32 s{S_G}, {int(self.o['dbgwg'])}")
            a(f"s_cbranch_scc1 {L}")
            a(f"s_cmp_lg_u32 s{S_W}, 0")
            a(f"s_cbranch_scc1 {L}")
            a(f"v_readlane_b32 s{T1}, v255, 0")
            for n, i in enumerate((3, 4, 7, 8, 9, 10, 12, 13, 15, 16, 18, 19, 31)):
                a(f"v_readlane_b32 s{T0}, v255, {i}")
                a("s_nop 3")
                a(f"s_sub_u32 s{T0}, s{T0}, s{T1}")
                a(f"v_mov_b32 v1, s{T0}")
                a(f"v_mov_b32 v2, {8+4*n}")
                a(f"buffer_store_dword v1, v2, s[{SRD_DBG}:{SRD_DBG+3}], 0 offen")
            a.label(L)
            return
        a(f"s_lshl_b32 s{T0}, s{S_G}, 3")
        a(f"s_add_u32 s{T0}, s{T0}, s{S_W}")
        a(f"s_lshl_b32 s{T0}, s{T0}, 8")
        a(f"s_add_u32 s{T0}, s{T0}, {WS_SIZE}")
        a("v_lshlrev_b32 v1, 2, v0")
        a(f"buffer_store_dword v255, v1, s[{SRD_WS}:{SRD_WS+3}], s{T0} offen")
        a("s_mov_b64 exec, -1")

    def hold(self, key):
        if not self.o.get(key): return
        a = self.a
        L = a.newlabel("hold")
        a.label(L)
        a("s_memrealtime s[100:101]")
        a("s_waitcnt lgkmcnt(0)")
        a(f"s_sub_u32 s100, s100, s{S_NONCE}")
        a(f"s_cmp_lt_u32 s100, {int(float(self.o[key]) * 100)}")
        a(f"s_cbranch_scc1 {L}")

    def diag(self, what):
        if self.o.get("diag") == what: self.a("s_mov_b32 s35, 1")

    def dma(self, voff, srd, soff, flags=""):
        if self.o.get("nodma"): return
        self.a(f"buffer_load_dwordx4 v{voff}, s[{srd}:{srd+3}], {soff} offen {flags} lds".replace("  ", " "))

    def flag_store(self, s_off, vt, pol="sc1"):
        a = self.a
        L = a.newlabel("nofl")
        a(f"s_cmp_lg_u32 s{S_W}, 0")
        a(f"s_cbranch_scc1 {L}")
        a(f"v_mov_b32 v{vt}, s{S_NONCE}")
        a(f"v_mov_b32 v{vt+1}, s{S_NONCE+1}")
        a(f"v_mov_b32 v{vt+2}, 0")
        a("s_mov_b64 exec, 1")
        a(f"buffer_store_dwordx2 v[{vt}:{vt+1}], v{vt+2}, s[{SRD_WS}:{SRD_WS+3}], s{s_off} offen {pol}")
        a("s_mov_b64 exec, -1")
        a.label(L)

    def poll(self, n, s_off, spacing, vt, only_wave0=True):
        a = self.a
        L = a.newlabel("poll"); Ld = a.newlabel("polld")
        if only_wave0:
            a(f"s_cmp_lg_u32 s{S_W}, 0")
            a(f"s_cbranch_scc1 {Ld}")
        a(f"s_mov_b32 s{S_SPIN}, 0")
        if n == 256:
            assert spacing == 8
            a(f"v_lshlrev_b32 v{vt+8}, 4, v0")
            a.label(L)
            a(f"buffer_load_dwordx4 v[{vt}:{vt+3}], v{vt+8}, s[{SRD_WS}:{SRD_WS+3}], s{s_off} offen sc1")
            a(f"buffer_load_dwordx4 v[{vt+4}:{vt+7}], v{vt+8}, s[{SRD_WS}:{SRD_WS+3}], s{s_off} offen offset:1024 sc1")
            a(f"s_add_u32 s{S_SPIN}, s{S_SPIN}, 1")
            a("s_waitcnt vmcnt(0)")
            a(f"v_cmp_ne_u64 vcc, s[{S_NONCE}:{S_NONCE+1}], v[{vt}:{vt+1}]")
            a(f"v_cmp_ne_u64 s[{S_M1}:{S_M1+1}], s[{S_NONCE}:{S_NONCE+1}], v[{vt+2}:{vt+3}]")
            a("s_nop 0")
            a(f"s_or_b64 s[{T4}:{T5}], vcc, s[{S_M1}:{S_M1+1}]")
            a(f"v_cmp_ne_u64 vcc, s[{S_NONCE}:{S_NONCE+1}], v[{vt+4}:{vt+5}]")
            a(f"v_cmp_ne_u64 s[{S_M1}:{S_M1+1}], s[{S_NONCE}:{S_NONCE+1}], v[{vt+6}:{vt+7}]")
            a("s_nop 0")
            a(f"s_or_b64 s[{T4}:{T5}], s[{T4}:{T5}], vcc")
            a(f"s_or_b64 s[{T4}:{T5}], s[{T4}:{T5}], s[{S_M1}:{S_M1+1}]")
        else:
            a(f"v_and_b32 v{vt+2}, {n-1}, v0")
            a(f"v_mul_u32_u24 v{vt+2}, {spacing}, v{vt+2}")
            a.label(L)
            a(f"buffer_load_dwordx2 v[{vt}:{vt+1}], v{vt+2}, s[{SRD_WS}:{SRD_WS+3}], s{s_off} offen sc1")
            a(f"s_add_u32 s{S_SPIN}, s{S_SPIN}, 1")
            a("s_waitcnt vmcnt(0)")
            a(f"v_cmp_ne_u64 vcc, s[{S_NONCE}:{S_NONCE+1}], v[{vt}:{vt+1}]")
            a("s_nop 0")
            a(f"s_or_b64 s[{T4}:{T5}], vcc, vcc")
        a(f"s_cbranch_scc0 {Ld}")
        if self.o.get("psleep"): a(f"s_sleep {int(self.o['psleep'])}")
        a(f"s_cmp_lt_u32 s{S_SPIN}, {SPIN_MAX}")
        a(f"s_cbranch_scc1 {L}")
        a.label(Ld)

    def pollp(self, n, s_off, spacing, va, vt, depth):
        a = self.a
        L = a.newlabel("poll"); Ld = a.newlabel("polld")
        N = f"s[{S_NONCE}:{S_NONCE+1}]"
        a(f"s_cmp_lg_u32 s{S_W}, 0")
        a(f"s_cbranch_scc1 {Ld}")
        a(f"s_mov_b32 s{S_SPIN}, 0")
        a(f"v_and_b32 v{va}, {n-1}, v0")
        a(f"v_mul_u32_u24 v{va}, {spacing}, v{va}")
        ld = lambda i: a(f"buffer_load_dwordx2 v[{vt+2*i}:{vt+2*i+1}], v{va}, s[{SRD_WS}:{SRD_WS+3}], s{s_off} offen sc1")
        for i in range(depth - 1):
            ld(i); a(f"s_sleep {int(self.o.get('psl', 2))}")
        a.label(L)
        for i in range(depth):
            ld((i + depth - 1) % depth)
            a(f"s_waitcnt vmcnt({depth-1})")
            a(f"v_cmp_ne_u64 vcc, {N}, v[{vt+2*i}:{vt+2*i+1}]")
            a(f"s_cbranch_vccz {Ld}")
        a(f"s_add_u32 s{S_SPIN}, s{S_SPIN}, 1")
        a(f"s_cmp_lt_u32 s{S_SPIN}, {SPIN_MAX}")
        a(f"s_cbranch_scc1 {L}")
        a.label(Ld)

    def poll2(self, va, vb, s_off, vt):
        a = self.a
        L = a.newlabel("poll"); Ld = a.newlabel("polld")
        N = f"s[{S_NONCE}:{S_NONCE+1}]"
        a(f"s_cmp_lg_u32 s{S_W}, 0")
        a(f"s_cbranch_scc1 {Ld}")
        a(f"s_mov_b32 s{S_SPIN}, 0")
        a.label(L)
        a(f"buffer_load_dwordx2 v[{vt}:{vt+1}], v{va}, s[{SRD_WS}:{SRD_WS+3}], s{s_off} offen sc1")
        a(f"buffer_load_dwordx2 v[{vt+2}:{vt+3}], v{vb}, s[{SRD_WS}:{SRD_WS+3}], s{s_off} offen sc1")
        a(f"s_add_u32 s{S_SPIN}, s{S_SPIN}, 1")
        a("s_waitcnt vmcnt(0)")
        a(f"v_cmp_ne_u64 vcc, {N}, v[{vt}:{vt+1}]")
        a(f"v_cmp_ne_u64 s[{S_M1}:{S_M1+1}], {N}, v[{vt+2}:{vt+3}]")
        a("s_nop 0")
        a(f"s_or_b64 vcc, vcc, s[{S_M1}:{S_M1+1}]")
        a(f"s_cbranch_scc0 {Ld}")
        if self.o.get("psleep"): a(f"s_sleep {int(self.o['psleep'])}")
        a(f"s_cmp_lt_u32 s{S_SPIN}, {SPIN_MAX}")
        a(f"s_cbranch_scc1 {L}")
        a.label(Ld)

    def entry(self):
        a = self.a
        a(f"s_cmp_ge_u32 s{S_G}, 256")
        a("s_cbranch_scc1 L_end")
        a(f"s_load_dwordx2 s[{SRD_X}:{SRD_X+1}], s[0:1], 0")
        a(f"s_load_dwordx2 s[{SRD_WQ}:{SRD_WQ+1}], s[0:1], 8")
        a(f"s_load_dwordx2 s[{SRD_DBG}:{SRD_DBG+1}], s[0:1], 56")
        a(f"s_load_dwordx16 s[{S_PTR}:{S_PTR+15}], s[0:1], 0")
        a(f"s_load_dwordx2 s[{S_PTR+16}:{S_PTR+17}], s[0:1], 64")
        a(f"s_memrealtime s[{S_NONCE}:{S_NONCE+1}]")
        if self.o.get("stamps"): a("v_mov_b32 v255, 0")
        self.stamp(0)
        a("v_lshrrev_b32 v1, 6, v0")
        a("v_and_b32 v0, 63, v0")
        a(f"v_readfirstlane_b32 s{S_W}, v1")
        a(f"s_and_b32 s{S_C}, s{S_G}, 7")
        a(f"s_lshr_b32 s{S_J}, s{S_G}, 3")

    ACC = 16; XF = 160; WF = 176; XA = 72; WA = 144; DXA, DXB, DW = 78, 79, 80; VXM = 76
    ONES = 82
    CQ = 96
    CQA = 81; CSW = 85
    PGA, PGV, PGR, PGD = 116, 117, 118, 119
    RSA, RS = 84, 128
    STA = 86
    RLV, RLA = 157, 158
    VN = 92
    sRB, sCT, sKC, sXO, sWO, sSLOT, sCNT, sXM, sTG, sNH = 64, 65, 66, 67, 68, 69, 70, 71, 72, 73
    sTAB = 74
    sM0X = 80; sWO2 = 81; sKC0 = 82; sSIDE = 83; sXB = 71; sWB = 69
    sRL = 84
    P1_MISC = 148 * 1024
    RL_SCR = 68 * 1024
    CQ_SCR = 128 * 1024
    DUMMY = 159 * 1024
    CPF_LINES = 8

    def p1_issue(self, pieces=(0, 1, 2, 3)):
        a = self.a
        if 0 in pieces:
            a(f"s_mov_b32 m0, s{self.sM0X}")
            a(f"s_add_u32 s{self.sM0X}, s{self.sM0X}, 32768")
            self.dma(self.DXA, SRD_X, f"s{self.sXO}")
        if 1 in pieces:
            a("s_add_u32 m0, m0, 16384")
            a(f"s_add_u32 s{self.sWO2}, s{self.sWO}, 15360")
            self.dma(self.DW, SRD_WQ, f"s{self.sWO}")
        if 2 in pieces:
            a("s_sub_u32 m0, m0, 15360")
            a(f"s_add_u32 s{self.sWO}, s{self.sWO}, 245760")
            self.dma(self.DXB, SRD_X, f"s{self.sXO}")
        if 3 in pieces:
            a("s_add_u32 m0, m0, 16384")
            a(f"s_add_u32 s{self.sXO}, s{self.sXO}, 128")
            self.dma(self.DW, SRD_WQ, f"s{self.sWO2}")
            a(f"s_and_b32 s{self.sM0X}, s{self.sM0X}, 0x1ffff")
            a(f"s_sub_u32 s{self.sKC}, s{self.sKC}, 1")
            a(f"s_cmov_b32 s{self.sXO}, s{self.sXB}")
            a(f"s_cmov_b32 s{self.sWO}, s{self.sWB}")

    def p1_setup_a(self):
        a = self.a
        a(f"s_lshr_b32 s{T0}, s{S_C}, 1")
        a(f"s_lshl_b32 s{T0}, s{T0}, 2")
        a(f"s_lshr_b32 s{T1}, s{S_J}, 3")
        a(f"s_add_u32 s{self.sRB}, s{T0}, s{T1}")
        a(f"s_and_b32 s{T0}, s{S_C}, 1")
        a(f"s_lshl_b32 s{T0}, s{T0}, 3")
        a(f"s_and_b32 s{T2}, s{S_J}, 7")
        a(f"s_add_u32 s{self.sCT}, s{T0}, s{T2}")
        g = int(self.o.get("rotg", 4))
        if g == 8:
            a(f"s_lshl_b32 s{T1}, s{T1}, 1")
            a(f"s_add_u32 s{self.sKC}, s{T2}, s{T1}")
            a(f"s_bfe_u32 s{T0}, s{S_C}, 0x10001")
            a(f"s_and_b32 s{T1}, s{S_C}, 4")
            a(f"s_lshl_b32 s{T1}, s{T1}, 1")
            a(f"s_add_u32 s{T0}, s{T0}, s{T1}")
            a(f"s_add_u32 s{self.sKC}, s{self.sKC}, s{T0}")
        else:
            bases, offs, shift = {3: ((0, 3, 7), (0, 1, 2, 6), 0), 4: ((0, 2, 5, 7), (0, 1, 2, 3), 0), 5: ((0, 2, 4, 6, 8), (0, 1, 0, 1), 1)}[g]
            a(f"s_add_u32 s{T1}, s{T1}, s{T2}")
            a(f"s_lshr_b32 s{T0}, s{S_C}, 1")
            if shift: a(f"s_add_u32 s{T1}, s{T1}, s{T0}")
            tab = sum(bases[i % g] << (4 * i) for i in range(16))
            a(f"s_lshl_b32 s{T1}, s{T1}, 2")
            a(f"s_mov_b32 s{T4}, 0x{tab & 0xffffffff:08x}")
            a(f"s_mov_b32 s{T5}, 0x{tab >> 32:08x}")
            a(f"s_lshr_b64 s[{T4}:{T5}], s[{T4}:{T5}], s{T1}")
            a(f"s_and_b32 s{self.sKC}, s{T4}, 15")
            a(f"s_lshl_b32 s{T0}, s{T0}, 2")
            a(f"s_lshr_b32 s{T0}, 0x{sum(o << (4 * i) for i, o in enumerate(offs)):04x}, s{T0}")
            a(f"s_and_b32 s{T0}, s{T0}, 15")
            a(f"s_add_u32 s{self.sKC}, s{self.sKC}, s{T0}")
            for ct in range(8):
                assert len({(bases[(ct + rl + shift * aa) % g] + offs[aa]) % 10 for aa in range(4) for rl in range(4)}) == 10
        a(f"s_mul_i32 s{T0}, s{self.sKC}, 26")
        a(f"s_lshr_b32 s{T0}, s{T0}, 8")
        a(f"s_mul_i32 s{T0}, s{T0}, 10")
        a(f"s_sub_u32 s{self.sKC}, s{self.sKC}, s{T0}")
        a(f"s_mov_b32 s{self.sKC0}, s{self.sKC}")
        a(f"s_mul_i32 s{self.sXB}, s{self.sRB}, 163840")
        a(f"s_lshl_b32 s{T0}, s{self.sKC}, 7")
        a(f"s_add_u32 s{self.sXO}, s{self.sXB}, s{T0}")
        a(f"s_mul_i32 s{self.sWO}, s{self.sKC}, 245760")
        a(f"s_lshl_b32 s{self.sWB}, s{self.sCT}, 8")
        a(f"s_add_u32 s{self.sWO}, s{self.sWO}, s{self.sWB}")
        a(f"s_lshl_b32 s{self.sM0X}, s{S_W}, 11")
        a(f"s_sub_u32 s{self.sKC}, 9, s{self.sKC}")
        a("v_lshrrev_b32 v1, 3, v0")
        a("v_lshrrev_b32 v2, 4, v0")
        a("v_and_b32 v3, 7, v0")
        a("v_xor_b32 v3, v3, v2")
        a(f"s_lshl_b32 s{T0}, s{S_W}, 4")
        a(f"v_add_u32 v4, s{T0}, v1")
        a("v_mul_u32_u24 v4, 1280, v4")
        a(f"v_lshl_add_u32 v{self.DXA}, v3, 4, v4")
        a(f"v_xor_b32 v{self.DXB}, 64, v{self.DXA}")
        a(f"v_add_u32 v{self.DXB}, 10240, v{self.DXB}")
        a("v_lshlrev_b32 v3, 2, v2")
        a("v_and_b32 v4, 15, v0")
        a("v_xor_b32 v3, v3, v4")
        a(f"s_lshl_b32 s{T0}, s{S_W}, 3")
        a(f"v_add_u32 v4, s{T0}, v2")
        a("v_mul_u32_u24 v4, 3840, v4")
        a(f"v_lshl_add_u32 v{self.DW}, v3, 4, v4")
        for d, n in ((SRD_X, 2048 * 1280), (SRD_WQ, 640 * 3840), (SRD_DBG, 256)):
            a(f"s_mov_b32 s{d+2}, {n}")
            a(f"s_mov_b32 s{d+3}, 0x20000")
        a("s_waitcnt lgkmcnt(0)")
        if self.o.get("fixown"): a(f"s_mov_b32 s31, s{S_NONCE}")
        if self.o.get("diag"): a("s_mov_b32 s35, 0")
        a(f"s_or_b32 s{T0}, s{S_G}, s{S_W}")
        a("s_cbranch_scc0 L_nonce_pub")
        a.label("L_nonce_done")
        a(f"s_cmp_eq_u32 s{self.sCT}, 15")
        a("s_cbranch_scc1 L_p1_noissue")
        self.p1_issue()
        if self.o.get("first5", "1") == "1": self.p1_issue((0,))
        a.label("L_p1_noissue")
        self.stamp(1)
        self.srd(SRD_WS, S_PTR + 16, WS_SIZE + ((1 << 20) if self.o.get("stamps") else 0))
        self.srd(SRD_OUT, S_PTR + 12, 2048 * 1280)
        a(f"s_mov_b64 s[{SRD_RL}:{SRD_RL+1}], 0")
        a(f"s_mov_b32 s{SRD_RL+2}, 0")
        a(f"s_mov_b32 s{SRD_RL+3}, 0x20000")
        a(f"v_mov_b32 v{self.RLV}, 0")
        if self.o.get("cpf", "1") == "1":
            Lc = a.newlabel("cpf")
            a(f"s_cmp_lg_u32 s{S_W}, 7")
            a(f"s_cbranch_scc1 {Lc}")
            a(f"s_getpc_b64 s[{T4}:{T5}]")
            a.label("L_pc_here")
            a(f"s_mul_i32 s{T0}, s{S_J}, {self.CPF_LINES*128}")
            a(f"s_sub_u32 s{T0}, s{T0}, L_pc_here-{NAME}_kernel")
            a(f"v_min_u32 v3, {self.CPF_LINES-1}, v0")
            a(f"v_lshl_add_u32 v3, v3, 7, s{T0}")
            a("v_ashrrev_i32 v5, 31, v3")
            a(f"v_mov_b32 v6, s{T5}")
            a(f"v_add_co_u32 v4, vcc, s{T4}, v3")
            a("s_nop 1")
            a("v_addc_co_u32 v5, vcc, v5, v6, vcc")
            a("global_load_dword v254, v[4:5], off")
            a.label(Lc)

    def relayout_setup(self):
        a = self.a
        R = self.sRL
        u = a.newlabel("u")
        sID, sKS, sCB, sST, sA, sB, sCc, sD = T0, T1, T2, T3, 93, 94, 95, 96
        sBase, sSl, sKsS = 97, 98, 99
        a(f"s_mul_i32 s{sID}, s{S_G}, 5")
        a(f"s_add_u32 s{sID}, s{sID}, s{S_W}")
        a(f"s_sub_u32 s{sID}, s{sID}, 1")
        a(f"s_min_u32 s{sID}, s{sID}, 1279")
        a(f"s_mov_b32 s{sA}, 16")
        a(f"s_mov_b32 s{sB}, 8")
        a(f"s_mov_b32 s{sCc}, 4")
        a(f"s_mov_b32 s{SRD_RL+3}, 0x20000")
        a(f"s_mov_b32 s{R+8}, -1")
        a(f"s_cmp_lt_u32 s{sID}, 200")
        a(f"s_cbranch_scc1 L_rl_wo{u}")
        a(f"s_cmp_lt_u32 s{sID}, 740")
        a(f"s_cbranch_scc1 L_rl_w1{u}")
        a(f"s_sub_u32 s{sID}, s{sID}, 740")
        a(f"s_mul_i32 s{sKS}, s{sID}, 6554")
        a(f"s_lshr_b32 s{sKS}, s{sKS}, 16")
        a(f"s_mul_i32 s{sCB}, s{sKS}, 10")
        a(f"s_sub_u32 s{sCB}, s{sID}, s{sCB}")
        a(f"s_lshl_b32 s{sD}, s{sKS}, 5")
        a(f"s_mov_b32 s{SRD_RL}, s{S_PTR+10}")
        a(f"s_and_b32 s{SRD_RL+1}, s{S_PTR+11}, 0xffff")
        a(f"s_mov_b32 s{SRD_RL+2}, {1728*1280}")
        a(f"s_mov_b32 s{sBase}, {WS_W2}")
        a(f"s_mov_b32 s{sSl}, {54*5120}")
        a(f"s_cmp_ge_u32 s{sKS}, 48")
        a(f"s_cselect_b32 s{sA}, 4, 16")
        a(f"s_cselect_b32 s{sB}, 16, 8")
        a(f"s_cselect_b32 s{sCc}, 8, 4")
        a(f"s_add_u32 s{T4}, s{sKS}, 3")
        a(f"s_cmp_ge_u32 s{sKS}, 24")
        a(f"s_cselect_b32 s{T4}, s{T4}, s{sKS}")
        a(f"s_sub_u32 s{T5}, s{sKS}, 24")
        a(f"s_cmp_ge_u32 s{sKS}, 48")
        a(f"s_cselect_b32 s{T4}, s{T5}, s{T4}")
        a(f"s_cmp_ge_u32 s{sKS}, 51")
        a(f"s_cselect_b32 s{sKS}, s{sKS}, s{T4}")
        a(f"s_branch L_rl_n640{u}")
        a.label(f"L_rl_wo{u}")
        a(f"s_mul_i32 s{sKS}, s{sID}, 6554")
        a(f"s_lshr_b32 s{sKS}, s{sKS}, 16")
        a(f"s_mul_i32 s{sCB}, s{sKS}, 10")
        a(f"s_sub_u32 s{sCB}, s{sID}, s{sCB}")
        a(f"s_mul_i32 s{sD}, s{sKS}, 40")
        a(f"s_mul_i32 s{sST}, s{sKS}, 160")
        a(f"s_sub_u32 s{sST}, s{sST}, {160*16-16}")
        a(f"s_cmp_lt_u32 s{sKS}, 16")
        a(f"s_cselect_b32 s{sD}, s{sD}, s{sST}")
        a(f"s_cselect_b32 s{sA}, 8, 20")
        a(f"s_cselect_b32 s{sB}, 20, 0x50")
        a(f"s_cselect_b32 s{sCc}, 4, 40")
        a(f"s_mov_b32 s{SRD_RL}, s{S_PTR+4}")
        a(f"s_and_b32 s{SRD_RL+1}, s{S_PTR+5}, 0xffff")
        a(f"s_mov_b32 s{SRD_RL+2}, {640*1280}")
        a(f"s_mov_b32 s{sBase}, {WS_WO}")
        a(f"s_mov_b32 s{sSl}, {20*5120}")
        a(f"s_add_u32 s{T4}, s{sKS}, 2")
        a(f"s_cmp_ge_u32 s{sKS}, 8")
        a(f"s_cselect_b32 s{T4}, s{T4}, s{sKS}")
        a(f"s_sub_u32 s{T5}, s{sKS}, 8")
        a(f"s_cmp_ge_u32 s{sKS}, 16")
        a(f"s_cselect_b32 s{T4}, s{T5}, s{T4}")
        a(f"s_cmp_ge_u32 s{sKS}, 18")
        a(f"s_cselect_b32 s{sKS}, s{sKS}, s{T4}")
        a(f"s_sub_u32 s{T4}, s{sKS}, 1")
        a(f"s_cmp_ge_u32 s{sKS}, 10")
        a(f"s_cselect_b32 s{T4}, s{T4}, s{sKS}")
        a(f"s_cmp_eq_u32 s{sKS}, 9")
        a(f"s_cselect_b32 s{T4}, 18, s{T4}")
        a(f"s_cmp_eq_u32 s{sKS}, 19")
        a(f"s_cselect_b32 s{sKS}, 19, s{T4}")
        a.label(f"L_rl_n640{u}")
        a(f"s_mov_b32 s{sST}, 1280")
        a(f"s_mul_i32 s{sKsS}, s{sKS}, 5120")
        a(f"s_add_u32 s{sBase}, s{sBase}, s{sKsS}")
        for t in range(4):
            a(f"s_lshl_b32 s{T4}, s{sCB}, 2")
            a(f"s_add_u32 s{T4}, s{T4}, {t}")
            a(f"s_mul_i32 s{T5}, s{T4}, 52")
            a(f"s_lshr_b32 s{T5}, s{T5}, 8")
            a(f"s_mul_i32 s{R+4+t}, s{T5}, s{sSl}")
            a(f"s_mul_i32 s{T5}, s{T5}, 5")
            a(f"s_sub_u32 s{T4}, s{T4}, s{T5}")
            a(f"s_lshl_b32 s{T4}, s{T4}, 10")
            a(f"s_add_u32 s{R+4+t}, s{R+4+t}, s{T4}")
            a(f"s_add_u32 s{R+4+t}, s{R+4+t}, s{sBase}")
        a(f"s_branch L_rl_common{u}")
        a.label(f"L_rl_w1{u}")
        a(f"s_sub_u32 s{sID}, s{sID}, 200")
        a(f"s_mul_i32 s{sKS}, s{sID}, 2428")
        a(f"s_lshr_b32 s{sKS}, s{sKS}, 16")
        a(f"s_mul_i32 s{sCB}, s{sKS}, 27")
        a(f"s_sub_u32 s{sCB}, s{sID}, s{sCB}")
        a(f"s_lshr_b32 s{T4}, s{sKS}, 1")
        a(f"s_mul_i32 s{T4}, s{T4}, 0x50")
        a(f"s_and_b32 s{T5}, s{sKS}, 1")
        a(f"s_lshl_b32 s{T5}, s{T5}, 5")
        a(f"s_add_u32 s{sD}, s{T4}, s{T5}")
        a(f"s_mul_i32 s{T4}, s{sKS}, 160")
        a(f"s_sub_u32 s{T4}, s{T4}, {160*16-64}")
        a(f"s_cmp_lt_u32 s{sKS}, 16")
        a(f"s_cselect_b32 s{sD}, s{sD}, s{T4}")
        a(f"s_cselect_b32 s{sA}, 16, 4")
        a(f"s_cselect_b32 s{sB}, 8, 0x50")
        a(f"s_cselect_b32 s{sCc}, 4, 8")
        a(f"s_mov_b32 s{SRD_RL}, s{S_PTR+8}")
        a(f"s_and_b32 s{SRD_RL+1}, s{S_PTR+9}, 0xffff")
        a(f"s_mov_b32 s{SRD_RL+2}, {640*3456}")
        a(f"s_mov_b32 s{sST}, 3456")
        a(f"s_mul_i32 s{sKsS}, s{sKS}, 7168")
        a(f"s_add_u32 s{sBase}, s{sKsS}, {WS_W1}")
        a(f"s_mul_i32 s{R+8}, s{sKS}, {1728*4}")
        a(f"s_lshl_b32 s{T4}, s{sCB}, 8")
        a(f"s_add_u32 s{R+8}, s{R+8}, s{T4}")
        a(f"s_add_u32 s{R+8}, s{R+8}, {WS_CS1}")
        for t in range(4):
            a(f"s_lshl_b32 s{T4}, s{sCB}, 2")
            a(f"s_add_u32 s{T4}, s{T4}, {t}")
            a(f"s_mul_i32 s{T5}, s{T4}, 43")
            a(f"s_lshr_b32 s{T5}, s{T5}, 8")
            a(f"s_mul_i32 s{sSl}, s{T5}, 6")
            a(f"s_sub_u32 s{sSl}, s{T4}, s{sSl}")
            a(f"s_sub_u32 s{sKsS}, s{T4}, 96")
            a(f"s_cmp_lt_u32 s{T4}, 96")
            a(f"s_cselect_b32 s{T5}, s{T5}, s{sKsS}")
            a(f"s_cselect_b32 s{sSl}, s{sSl}, 6")
            a(f"s_mul_i32 s{R+4+t}, s{T5}, {20*7168}")
            a(f"s_lshl_b32 s{sSl}, s{sSl}, 10")
            a(f"s_add_u32 s{R+4+t}, s{R+4+t}, s{sSl}")
            a(f"s_add_u32 s{R+4+t}, s{R+4+t}, s{sBase}")
        a.label(f"L_rl_common{u}")
        a(f"s_mul_i32 s{sD}, s{sD}, s{sST}")
        a(f"s_lshl_b32 s{T4}, s{sCB}, 7")
        a(f"s_add_u32 s{R}, s{sD}, s{T4}")
        a(f"s_mul_i32 s{sA}, s{sA}, s{sST}")
        a(f"s_mul_i32 s{sB}, s{sB}, s{sST}")
        a(f"s_add_u32 s{R+1}, s{R}, s{sB}")
        a(f"s_add_u32 s{R+2}, s{R}, s{sA}")
        a(f"s_add_u32 s{R+3}, s{R+2}, s{sB}")
        a("v_lshrrev_b32 v1, 5, v0")
        a(f"v_mul_u32_u24 v1, s{sCc}, v1")
        a("v_bfe_u32 v2, v0, 3, 2")
        a("v_add_u32 v1, v1, v2")
        a(f"v_mul_u32_u24 v1, s{sST}, v1")
        a("v_and_b32 v2, 7, v0")
        a(f"v_lshl_add_u32 v{self.RLV}, v2, 4, v1")
        a("v_lshrrev_b32 v1, 2, v0")
        a("v_lshlrev_b32 v1, 7, v1")
        a("v_and_b32 v2, 3, v0")
        a("v_lshl_add_u32 v1, v2, 3, v1")
        a(f"s_lshl_b32 s{T4}, s{S_W}, 12")
        a(f"s_add_u32 s{T4}, s{T4}, {self.RL_SCR-4096}")
        a(f"v_add_u32 v{self.RLA}, s{T4}, v1")

    def relayout_issue(self, drain_older=False):
        a = self.a
        L = a.newlabel("rlsk")
        a(f"s_sub_u32 s{T0}, s{S_W}, 1")
        a(f"s_cmp_ge_u32 s{T0}, {0 if self.o.get('norl') else 5}")
        a(f"s_cbranch_scc1 {L}")
        a(f"s_lshl_b32 s{T0}, s{S_W}, 12")
        a(f"s_add_u32 m0, s{T0}, {self.RL_SCR-4096}")
        for i in range(4):
            if i: a("s_add_u32 m0, m0, 1024")
            a("s_nop 0")
            self.dma(self.RLV, SRD_RL, f"s{self.sRL+i}")
        if drain_older:
            L2 = a.newlabel("rlw")
            a("s_waitcnt vmcnt(4)")
            a(f"s_branch {L2}")
            a.label(L)
            a("s_waitcnt vmcnt(0)")
            a.label(L2)
        else:
            a.label(L)

    def relayout_finish(self, younger=None):
        a = self.a
        L = a.newlabel("rlsk"); F = 168; t = 184
        a(f"s_sub_u32 s{T0}, s{S_W}, 1")
        a(f"s_cmp_ge_u32 s{T0}, 5")
        Lo = a.newlabel("rlo")
        a(f"s_cbranch_scc1 {Lo if younger is not None else L}")
        if younger is not None: a(f"s_waitcnt vmcnt({younger})")
        for q in range(4):
            for rd in range(2):
                a(f"ds_read_b64_tr_b16 v[{F+4*q+2*rd}:{F+4*q+2*rd+1}], v{self.RLA} offset:{rd*2048+q*32}")
        a(f"v_lshlrev_b32 v{t}, 4, v0")
        for q in range(4):
            a(f"s_waitcnt lgkmcnt({6-2*q})")
            a(f"buffer_store_dwordx4 v[{F+4*q}:{F+4*q+3}], v{t}, s[{SRD_WS}:{SRD_WS+3}], s{self.sRL+4+q} offen sc1")
        if younger is not None: a("s_waitcnt vmcnt(4)")
        a(f"s_cmp_eq_u32 s{self.sRL+8}, -1")
        a(f"s_cbranch_scc1 {L}")
        for q in range(4): a(f"v_mov_b32 v{t+2+q}, 0")
        a(f"v_mov_b32 v{t+6}, 0x3f803f80")
        for k in range(4):
            for q in range(4): a(f"v_dot2_f32_bf16 v{t+2+q}, v{F+4*q+k}, v{t+6}, v{t+2+q}")
        a(f"v_lshlrev_b32 v{t+1}, 2, v0")
        a("s_nop 1")
        a(f"v_permlane16_swap_b32 v{t+2}, v{t+3}")
        a(f"v_permlane16_swap_b32 v{t+4}, v{t+5}")
        a("s_nop 0")
        a(f"v_add_f32 v{t+2}, v{t+2}, v{t+3}")
        a(f"v_add_f32 v{t+4}, v{t+4}, v{t+5}")
        a("s_nop 1")
        a(f"v_permlane32_swap_b32 v{t+2}, v{t+4}")
        a("s_nop 0")
        a(f"v_add_f32 v{t+2}, v{t+2}, v{t+4}")
        a(f"buffer_store_dword v{t+2}, v{t+1}, s[{SRD_WS}:{SRD_WS+3}], s{self.sRL+8} offen sc1")
        if younger is not None:
            a(f"s_branch {L}")
            a.label(Lo)
            a("s_waitcnt vmcnt(0)")
        a.label(L)

    def p1_setup_b(self):
        a = self.a
        a(f"s_and_b32 s{self.sTG}, s{S_W}, 3")
        a(f"s_lshr_b32 s{self.sNH}, s{S_W}, 2")
        a(f"s_cmp_ge_u32 s{self.sCT}, 5")
        a(f"s_cselect_b32 s{T0}, 5, 0")
        a(f"s_sub_u32 s{T0}, s{self.sCT}, s{T0}")
        a(f"s_lshl_b32 s{T0}, s{T0}, 1")
        a(f"s_add_u32 s{T0}, s{T0}, s{self.sNH}")
        for idx in range(10):
            a(f"s_cmp_eq_u32 s{T0}, {idx}")
            a(f"s_cbranch_scc1 L_tab{idx}")
        a(f"s_mul_i32 s{T1}, s{self.sNH}, 0x10101010")
        for k in range(4): a(f"s_add_u32 s{self.sTAB+k}, s{T1}, 0x%08x" % (0x03020100 + 0x04040404 * k))
        a(f"s_mov_b32 s{self.sTAB+4}, 0")
        a(f"s_mov_b32 s{self.sTAB+5}, 0")
        a("s_branch L_tabdone")
        for idx in range(10):
            a.label(f"L_tab{idx}")
            for k, d in enumerate(p1_table(idx // 2, idx % 2)): a(f"s_mov_b32 s{self.sTAB+k}, 0x%08x" % d)
            if idx < 9: a("s_branch L_tabdone")
        a.label("L_tabdone")
        a("v_and_b32 v1, 31, v0")
        a(f"s_lshl_b32 s{T0}, s{self.sTG}, 5")
        a(f"v_add_u32 v2, s{T0}, v1")
        a("v_bfe_u32 v3, v2, 1, 3")
        a("v_lshrrev_b32 v4, 5, v0")
        a("v_xor_b32 v3, v3, v4")
        a("v_lshlrev_b32 v3, 4, v3")
        a(f"v_lshl_add_u32 v{self.XA}, v2, 7, v3")
        a(f"s_xor_b32 s{T3}, s{self.sTG}, s{self.sNH}")
        a(f"s_lshl_b32 s{T0}, s{T3}, 5")
        a(f"v_xor_b32 v{self.XA}, s{T0}, v{self.XA}")
        for ks in range(1, 4): a(f"v_xor_b32 v{self.XA+ks}, {ks<<5}, v{self.XA}")
        a("v_bfe_u32 v5, v0, 2, 2")
        a("v_lshl_add_u32 v6, v4, 3, v5")
        a("v_lshlrev_b32 v6, 8, v6")
        a("v_and_b32 v7, 3, v0")
        a("v_lshlrev_b32 v7, 3, v7")
        a("v_and_b32 v8, 16, v0")
        a("v_cmp_ne_u32 vcc, 0, v8")
        for i in range(2):
            a(f"v_mov_b32 v8, s{self.sTAB+2*i}")
            a(f"v_mov_b32 v9, s{self.sTAB+2*i+1}")
            a("v_cndmask_b32 v8, v8, v9, vcc")
            a("v_bfe_u32 v8, v8, v7, 8")
            a("v_lshlrev_b32 v8, 3, v8")
            a("v_lshlrev_b32 v9, 6, v5")
            a("v_xor_b32 v8, v8, v9")
            a(f"v_add_u32 v8, v6, v8")
            a(f"s_lshl_b32 s{T0}, s{T3}, 12")
            a(f"v_add_u32 v{self.WA+4*i}, s{T0}, v8")
            for j in range(1, 4): a(f"v_xor_b32 v{self.WA+4*i+j}, {j<<12}, v{self.WA+4*i}")
        a(f"s_lshl_b32 s{T0}, s{self.sRB}, 2")
        a(f"s_add_u32 s{T0}, s{T0}, s{self.sTG}")
        a(f"s_lshl_b32 s{T1}, s{T0}, 9")
        a(f"s_add_u32 s{T1}, s{T1}, {WS_RS}")
        a(f"v_lshl_add_u32 v{self.RSA}, v1, 4, s{T1}")
        a(f"s_cmp_ge_u32 s{self.sCT}, 10")
        a("s_cbranch_scc1 L_p1_vaddr")
        a(f"s_lshl_b32 s{T0}, s{T0}, 9")
        a(f"s_cmp_ge_u32 s{self.sCT}, 5")
        a(f"s_cselect_b32 s{T1}, {WS_K}, {WS_Q}")
        a(f"s_add_u32 s{T0}, s{T0}, s{T1}")
        a(f"v_lshl_add_u32 v2, v1, 4, s{T0}")
        a("v_lshlrev_b32 v3, 3, v4")
        a("v_add_u32 v5, 16, v3")
        for i in range(2):
            for qq in range(2):
                a(f"v_bfe_u32 v6, s{self.sTAB+4+i}, v{3 if qq == 0 else 5}, 8")
                a(f"v_lshl_add_u32 v{self.STA+2*i+qq}, v6, 15, v2")
        a("s_branch L_p1_addrdone")
        a.label("L_p1_vaddr")
        a(f"s_mul_i32 s{T0}, s{T0}, 1280")
        a(f"s_add_u32 s{T0}, s{T0}, {WS_V}")
        a(f"s_lshl_b32 s{T1}, s{self.sCT}, 7")
        a(f"s_lshl_b32 s{T2}, s{self.sNH}, 6")
        a(f"s_add_u32 s{T1}, s{T1}, s{T2}")
        a(f"s_sub_u32 s{T1}, s{T1}, 1280")
        a(f"v_mov_b32 v{self.STA+2}, 0")
        a(f"v_mov_b32 v{self.STA+3}, 0")
        a("v_mul_u32_u24 v3, 320, v4")
        a(f"v_add_u32 v3, s{T0}, v3")
        a(f"s_mov_b32 s{T2}, 81920")
        for i in range(2):
            a(f"v_add_u32 v5, s{T1}, v1")
            if i: a("v_add_u32 v5, 32, v5")
            a("v_mul_u32_u24 v6, 3277, v5")
            a("v_lshrrev_b32 v6, 16, v6")
            a("v_mul_u32_u24 v7, 20, v6")
            a("v_sub_u32 v5, v5, v7")
            a("v_lshl_add_u32 v5, v5, 4, v3")
            a(f"v_mad_u32_u24 v{self.STA+i}, v6, s{T2}, v5")
        a.label("L_p1_addrdone")
        for r in range(32): a(f"v_mov_b32 v{self.ACC+r}, 0")
        a(f"s_mul_i32 s{T0}, s{self.sCT}, 10240")
        a(f"s_lshl_b32 s{T1}, s{self.sNH}, 9")
        a(f"s_add_u32 s{T0}, s{T0}, s{T1}")
        a(f"s_add_u32 s{T0}, s{T0}, {WS_CQ}")
        a(f"v_lshl_add_u32 v{self.CQA}, v0, 3, s{T0}")
        a(f"s_lshl_b32 s{T0}, s{self.sNH}, 8")
        a(f"s_lshl_b32 s{T1}, s{self.sTG}, 9")
        a(f"s_add_u32 s{T0}, s{T0}, {self.P1_MISC}")
        a(f"s_add_u32 s{T1}, s{T1}, s{T0}")
        a(f"v_lshl_add_u32 v{self.CSW}, v0, 2, s{T1}")
        a(f"v_lshl_add_u32 v95, v0, 2, s{T0}")
        a(f"v_mov_b32 v{self.VXM}, 0x8000")
        a(f"s_lshl_b32 s{T0}, s{S_W}, 2")
        a(f"s_add_u32 s{T0}, s{T0}, {self.P1_MISC + 2304}")
        a(f"v_mov_b32 v{self.PGA}, s{T0}")
        a(f"v_mov_b32 v{self.PGV}, 0")
        a(f"v_and_b32 v{self.PGR}, 7, v0")
        a(f"v_lshlrev_b32 v{self.PGR}, 2, v{self.PGR}")
        a(f"v_add_u32 v{self.PGR}, {self.P1_MISC + 2304}, v{self.PGR}")
        a(f"ds_write_b32 v{self.PGA}, v{self.PGV}")
        a(f"s_mov_b32 s{self.sCNT}, -1")
        a(f"s_cmp_eq_u32 s{self.sTG}, 0")
        a(f"s_cselect_b32 s{self.sSIDE}, 2, 0")

    def p1_loop(self, vmode):
        a = self.a
        tag = "v" if vmode else "q"
        if self.o.get("p1soft"):
            self.p1_loop1(vmode, 0)
        else:
            a(f"s_cmp_lg_u32 s{self.sNH}, 0")
            a(f"s_cbranch_scc1 L_p1_B{tag}")
            self.p1_loop1(vmode, 0)
            a(f"s_branch L_p1_E{tag}")
            a.label(f"L_p1_B{tag}")
            self.p1_loop1(vmode, 1)
            a.label(f"L_p1_E{tag}")
        reads, xors, mf = self.p1_parts(vmode)
        def comp(ks, rd=True, xr=True):
            a(f"s_waitcnt lgkmcnt({5 if rd or ks == 2 else 0})")
            mf(ks, 0)
            if rd: reads((ks + 2) % 4)
            mf(ks, 1)
            if xr: xors((ks + 2) % 4)
        comp(0); self.p1_issue((2,))
        comp(1); self.p1_issue((3,))
        a(f"buffer_load_dwordx4 v[{self.RS}:{self.RS+3}], v{self.RSA}, s[{SRD_WS}:{SRD_WS+3}], 0 offen sc1")
        a(f"s_mul_i32 s{T0}, s{self.sCT}, 10240")
        a(f"s_lshl_b32 s{T1}, s{S_W}, 10")
        a(f"s_add_u32 s{T0}, s{T0}, s{T1}")
        a(f"s_add_u32 s{T0}, s{T0}, {WS_CQ}")
        a(f"s_add_u32 m0, s{T1}, {self.CQ_SCR}")
        a("v_lshlrev_b32 v1, 4, v0")
        self.dma(1, SRD_WS, f"s{T0}", "sc1")
        a(f"s_add_u32 s{T0}, s{T0}, 8192")
        a("s_add_u32 m0, m0, 8192")
        a(f"s_cmp_ge_u32 s{S_W}, 2")
        a(f"s_cselect_b32 s{T0}, 0x7f000000, s{T0}")
        self.dma(1, SRD_WS, f"s{T0}", "sc1")
        a("s_waitcnt vmcnt(7)")
        a("s_barrier")
        comp(2); comp(3)
        comp(0); comp(1)
        a("s_waitcnt vmcnt(3)")
        a("s_barrier")
        comp(2, xr=False); comp(3, xr=False)
        comp(0, xr=False); comp(1, xr=False)
        a("s_waitcnt vmcnt(0)")
        a("s_barrier")
        self.p1_epi_reads()
        a("s_waitcnt lgkmcnt(15)")
        mf(2, 0); mf(2, 1)
        a("s_waitcnt lgkmcnt(11)")
        mf(3, 0); mf(3, 1)

    def p1_parts(self, vmode):
        a = self.a
        def reads(ks):
            if self.o.get("nolds"): return
            a(f"ds_read_b128 v[{self.XF+4*ks}:{self.XF+4*ks+3}], v{self.XA+ks}")
            for i in range(2):
                for rd in range(2):
                    d = self.WF + 8 * ks + 4 * i + 2 * rd
                    a(f"ds_read_b64_tr_b16 v[{d}:{d+1}], v{self.WA+4*i+ks} offset:{16384+rd*1024}")
        def xors(ks):
            for r in (self.XA + ks, self.WA + ks, self.WA + 4 + ks): a(f"v_xor_b32 v{r}, v{self.VXM}, v{r}")
            if ks == 3: a(f"v_xor_b32 v{self.VXM}, 0x10000, v{self.VXM}")
        def mf(ks, i):
            x = vr(self.XF + 4 * ks, 4); wv = vr(self.WF + 8 * ks + 4 * i, 4); acc = vr(self.ACC + 16 * i, 16)
            if self.o.get("nomfma"): pass
            elif vmode: a(f"v_mfma_f32_32x32x16_bf16 {acc}, {x}, {wv}, {acc}")
            else: a(f"v_mfma_f32_32x32x16_bf16 {acc}, {wv}, {x}, {acc}")
        return reads, xors, mf

    def p1_loop1(self, vmode, B):
        a = self.a
        L = a.newlabel("p1loop")
        pos = self.o.get("barB" if B else "barA", "1" if B else "0")
        reads, xors, mf = self.p1_parts(vmode)
        def bar():
            a("s_waitcnt vmcnt(4)")
            if not self.o.get("nobar"): a("s_barrier")
            if self.o.get("its") == "1": self.stamp_dyn(54, self.sCNT)
        soft = self.o.get("p1soft")
        def comp(ks):
            n = (ks + 2) % 4
            if soft: return comp_soft(ks)
            if ks == 2 and pos == "0": bar()
            a("s_waitcnt lgkmcnt(5)")
            mf(ks, 0)
            if ks == 2 and pos == "1": bar()
            if ks == 2 and pos == "2":
                mf(ks, 1); bar(); reads(n)
            else:
                reads(n); mf(ks, 1)
            xors(n)
            self.p1_issue((n,))
        def comp_soft(ks):
            n = (ks + 2) % 4
            ar = int(soft) - 1
            extra = {0: 0, 1: (1 if ar == 0 else 0), 2: 0, 3: 0}[ks]
            a(f"s_waitcnt lgkmcnt({5 + extra})" if ks != 2 else "s_waitcnt lgkmcnt(0)" if self.o.get("p1g0") else "s_waitcnt lgkmcnt(6)")
            mf(ks, 0)
            if ks == ar:
                a(f"v_add_u32 v{self.PGV}, 1, v{self.PGV}")
                a(f"s_waitcnt vmcnt({2 + ks})")
                a(f"ds_write_b32 v{self.PGA}, v{self.PGV}")
            if ks == 2:
                Lw, Lb = a.newlabel("late"), a.newlabel("go")
                a("s_waitcnt lgkmcnt(0)")
                a(f"v_cmp_lt_u32 vcc, v{self.PGD}, v{self.PGV}")
                a(f"s_cbranch_vccnz {Lw}")
                a.label(Lb)
                self._late1.append((Lw, Lb))
            reads(n); mf(ks, 1)
            if ks == 1: a(f"ds_read_b32 v{self.PGD}, v{self.PGR}")
            xors(n)
            self.p1_issue((n,))
        a("s_waitcnt vmcnt(6) lgkmcnt(0)")
        a("s_barrier")
        self.stamp(3)
        reads(0); reads(1); xors(0); xors(1)
        a("v_mov_b32 v6, 0x3f803f80")
        a("v_mov_b32 v2, 0")
        a("v_mov_b32 v3, 0")
        a("s_waitcnt lgkmcnt(5)")
        for k in range(4):
            for i in range(2): a(f"v_dot2_f32_bf16 v{2+i}, v{self.WF+4*i+k}, v6, v{2+i}")
        a("s_nop 2")
        a("v_permlane32_swap_b32 v2, v3")
        a("s_nop 0")
        a("v_add_f32 v2, v2, v3")
        a(f"ds_write_b32 v{self.CSW}, v2")
        a.align(int(self.o.get("al1", 3)))
        a.label(L)
        comp(0); comp(1); comp(2)
        Lr = a.newlabel("back"); Ls = a.newlabel("side")
        a(f"s_add_u32 s{self.sCNT}, s{self.sCNT}, 1")
        a(f"s_cmp_lt_u32 s{self.sCNT}, s{self.sSIDE}")
        a(f"s_cbranch_scc1 {Ls}")
        a.label(Lr)
        comp(3)
        a(f"s_cmp_lt_u32 s{self.sCNT}, {int(self.o.get('p1n', 10)) - 4}")
        a(f"s_cbranch_scc1 {L}")
        self._sides.append((Ls, Lr))

    def p1_sides(self):
        a = self.a
        for Lw, Lb in self._late1:
            a.label(Lw)
            a(f"s_mov_b32 s{S_SPIN}, 0")
            L = a.newlabel("lsp")
            a.label(L)
            a(f"ds_read_b32 v{self.PGD}, v{self.PGR}")
            a(f"s_add_u32 s{S_SPIN}, s{S_SPIN}, 1")
            a(f"s_cmp_ge_u32 s{S_SPIN}, {SPIN_MAX * 16}")
            a(f"s_cbranch_scc1 {Lb}")
            a("s_waitcnt lgkmcnt(0)")
            a(f"v_cmp_lt_u32 vcc, v{self.PGD}, v{self.PGV}")
            a(f"s_cbranch_vccnz {L}")
            a(f"s_branch {Lb}")
        self._late1 = []
        for Ls, Lr in self._sides:
            a.label(Ls)
            L1 = a.newlabel("s1")
            a(f"s_cmp_lg_u32 s{self.sCNT}, 0")
            a(f"s_cbranch_scc1 {L1}")
            a("v_mov_b32 v1, 0")
            a(f"buffer_load_dwordx2 v[{self.VN}:{self.VN+1}], v1, s[{SRD_DBG}:{SRD_DBG+3}], 0 offen sc1")
            a(f"s_branch {Lr}")
            a.label(L1)
            a("s_waitcnt vmcnt(4)")
            self.nonce_get("nonce2")
            a(f"v_mov_b32 v1, {self.P1_MISC + 2048}")
            a(f"ds_write_b64 v1, v[{self.VN}:{self.VN+1}]")
            for k in range(4): a(f"ds_read_b32 v{2+k}, v95 offset:{512*k}")
            a(f"s_lshl_b32 s{T0}, s{self.sKC0}, 10")
            a("s_waitcnt lgkmcnt(0)")
            a("v_add_f32 v2, v2, v3")
            a("v_add_f32 v4, v4, v5")
            a(f"v_mov_b32 v3, s{S_NONCE}")
            a("v_add_f32 v2, v2, v4")
            a(f"buffer_store_dwordx2 v[2:3], v{self.CQA}, s[{SRD_WS}:{SRD_WS+3}], s{T0} offen sc1")
            a(f"s_branch {Lr}")

    def p1_gather(self):
        a = self.a
        a(f"buffer_load_dwordx4 v[{self.RS}:{self.RS+3}], v{self.RSA}, s[{SRD_WS}:{SRD_WS+3}], 0 offen sc1")
        a(f"s_movk_i32 s{T0}, 0x1000")
        a(f"s_movk_i32 s{T1}, 0x2000")
        for k in range(10):
            so = ("0", f"s{T0}", f"s{T1}")[k // 4]
            a(f"buffer_load_dwordx2 v[{self.CQ+2*k}:{self.CQ+2*k+1}], v{self.CQA}, s[{SRD_WS}:{SRD_WS+3}], {so} offen offset:{1024*(k%4)} sc1")

    def p1_epi_reads(self):
        a = self.a
        a(f"s_lshl_b32 s{T0}, s{self.sNH}, 9")
        a(f"s_add_u32 s{T0}, s{T0}, {self.CQ_SCR}")
        a(f"v_lshl_add_u32 v1, v0, 3, s{T0}")
        for k in range(10): a(f"ds_read_b64 v[{self.CQ+2*k}:{self.CQ+2*k+1}], v1 offset:{1024*k}")
        a(f"v_mov_b32 v1, {self.P1_MISC + 2048}")
        a(f"ds_read_b64 v[{self.VN}:{self.VN+1}], v1")
        a(f"s_lshl_b32 s{T2}, s{S_W}, 9")
        a(f"s_add_u32 s{T2}, s{T2}, {self.P1_MISC+4096}")
        a(f"v_lshl_add_u32 v6, v0, 2, s{T2}")
        a("v_and_b32 v5, 31, v0")
        a(f"s_mov_b32 s{S_SPIN}, 0")

    def p1_epi_common(self):
        a = self.a
        L = a.newlabel("rs"); Ld = a.newlabel("rsd")
        a("s_waitcnt lgkmcnt(0)")
        a(f"v_readfirstlane_b32 s{S_NONCE}, v{self.VN}")
        a(f"v_readfirstlane_b32 s{S_NONCE+1}, v{self.VN+1}")
        a("s_nop 0")
        a.label(L)
        a(f"v_xor_b32 v2, s{S_NONCE}, v{self.RS+1}")
        a(f"v_xor_b32 v3, s{S_NONCE}, v{self.RS+3}")
        for k in range(0, 10, 2):
            a(f"v_xor_b32 v4, s{S_NONCE}, v{self.CQ+2*k+1}")
            a(f"v_xor_b32 v7, s{S_NONCE}, v{self.CQ+2*k+3}")
            a("v_or3_b32 v2, v2, v4, v7")
        a("v_or_b32 v2, v2, v3")
        a("v_cmp_ne_u32 vcc, 0, v2")
        a(f"s_add_u32 s{S_SPIN}, s{S_SPIN}, 1")
        a("s_or_b64 vcc, vcc, vcc")
        a(f"s_cbranch_scc0 {Ld}")
        a(f"s_cmp_ge_u32 s{S_SPIN}, {SPIN_MAX}")
        a(f"s_cbranch_scc1 {Ld}")
        self.diag("gather")
        self.p1_gather()
        a("s_waitcnt vmcnt(0)")
        a(f"s_branch {L}")
        a.label(Ld)
        Q = self.CQ
        a(f"v_add_f32 v12, v{Q}, v{Q+2}")
        a(f"v_add_f32 v13, v{Q+4}, v{Q+6}")
        a(f"v_add_f32 v14, v{Q+8}, v{Q+10}")
        a(f"v_add_f32 v15, v{Q+12}, v{Q+14}")
        a(f"v_add_f32 v2, v{Q+16}, v{Q+18}")
        a("v_add_f32 v12, v12, v13")
        a("v_add_f32 v14, v14, v15")
        a("v_add_f32 v12, v12, v2")
        a("v_add_f32 v12, v12, v14")
        self.stamp(4)

    def rowstats(self):
        a = self.a
        X = 100
        a("v_lshrrev_b32 v1, 3, v0")
        a(f"s_lshl_b32 s{T0}, s{S_W}, 4")
        a(f"s_lshl_b32 s{T1}, s{self.sRB}, 7")
        a(f"s_add_u32 s{T0}, s{T0}, s{T1}")
        a(f"v_add_u32 v1, s{T0}, v1")
        a("v_mul_u32_u24 v2, 1280, v1")
        a("v_and_b32 v3, 7, v0")
        a("v_lshl_add_u32 v2, v3, 4, v2")
        a(f"s_mov_b32 s{T0}, 10240")
        for k in range(10):
            for hh in range(2):
                r = X + 8 * k + 4 * hh
                a(f"buffer_load_dwordx4 v[{r}:{r+3}], v2, s[{SRD_X}:{SRD_X+3}], {'s%d' % T0 if hh else '0'} offen offset:{128*k}")
        for r in range(4, 8): a(f"v_mov_b32 v{r}, 0")
        a("v_mov_b32 v8, 0x3f803f80")
        for k in range(10):
            a(f"s_waitcnt vmcnt({18-2*k if k < 9 else 1})")
            if k == 8:
                a("v_mov_b32 v3, 0")
                a(f"buffer_load_dwordx2 v[{self.VN}:{self.VN+1}], v3, s[{SRD_DBG}:{SRD_DBG+3}], 0 offen sc1")
            for e in range(4):
                for hh in range(2):
                    r = X + 8 * k + 4 * hh + e
                    a(f"v_dot2_f32_bf16 v{4+hh}, v{r}, v8, v{4+hh}")
                    a(f"v_dot2_f32_bf16 v{6+hh}, v{r}, v{r}, v{6+hh}")
        a("s_nop 2")
        for ctl in ("quad_perm:[1,0,3,2]", "quad_perm:[2,3,0,1]", "row_half_mirror"):
            for r in range(4, 8): a(f"v_add_f32_dpp v{r}, v{r}, v{r} {ctl} row_mask:0xf bank_mask:0xf")
        a("s_waitcnt vmcnt(0)")
        self.nonce_get()
        a("v_and_b32 v3, 1, v0")
        a("v_cmp_ne_u32 vcc, 0, v3")
        a("v_lshlrev_b32 v3, 3, v3")
        a("v_add_u32 v1, v1, v3")
        a("v_cndmask_b32 v4, v4, v5, vcc")
        a("v_cndmask_b32 v6, v6, v7, vcc")
        a(f"v_mul_f32 v4, 0x%08x, v4" % f2u(1.0 / 640))
        a("v_mul_f32 v5, v4, v4")
        a(f"v_mov_b32 v7, 0x%08x" % f2u(1.0 / 640))
        a("v_fma_f32 v5, v6, v7, -v5")
        a("v_max_f32 v5, 0, v5")
        a(f"v_add_f32 v5, 0x%08x, v5" % f2u(1e-5))
        a("v_rsq_f32 v8, v5")
        a(f"v_mov_b32 v9, s{S_NONCE}")
        a(f"v_mov_b32 v11, s{S_NONCE}")
        a("v_mul_f32 v10, v4, v8")
        a("v_lshlrev_b32 v1, 4, v1")
        a(f"s_mov_b32 s{T0}, {WS_RS}")
        a("s_mov_b32 exec_lo, 0x03030303")
        a("s_mov_b32 exec_hi, 0x03030303")
        a(f"buffer_store_dwordx4 v[8:11], v1, s[{SRD_WS}:{SRD_WS+3}], s{T0} offen sc1")
        a("s_mov_b64 exec, -1")

    def p1_epi_q(self):
        a = self.a
        self.p1_epi_common()
        qs = math.log2(math.e) / math.sqrt(20.0)
        a("ds_write_b32 v6, v12")
        a("v_lshrrev_b32 v1, 5, v0")
        a(f"v_lshl_add_u32 v1, v1, 4, s{T2}")
        C = 48
        for i in range(2):
            for q4 in range(4):
                a(f"ds_read_b128 v[{C+16*i+4*q4}:{C+16*i+4*q4+3}], v1 offset:{i*128+q4*32}")
        a(f"s_cmp_lt_u32 s{self.sCT}, 5")
        a(f"s_cselect_b32 s{T1}, 0x%08x, 1.0" % f2u(qs))
        a(f"v_mul_f32 v2, s{T1}, v{self.RS}")
        a(f"v_mul_f32 v3, s{T1}, v{self.RS+2}")
        for i in range(2):
            for qq in range(2):
                a(f"s_waitcnt lgkmcnt({6-4*i-2*qq})")
                b = 16 * i + 8 * qq
                for r in range(8): a(f"v_mul_f32 v{self.ACC+b+r}, v2, v{self.ACC+b+r}")
                for r in range(8): a(f"v_fma_f32 v{self.ACC+b+r}, -v3, v{C+b+r}, v{self.ACC+b+r}")
                o = 4 + 4 * ((2 * i + qq) % 2)
                for r in range(4): a(f"v_cvt_pk_bf16_f32 v{o+r}, v{self.ACC+b+2*r}, v{self.ACC+b+2*r+1}")
                a(f"buffer_store_dwordx4 v[{o}:{o+3}], v{self.STA+2*i+qq}, s[{SRD_WS}:{SRD_WS+3}], 0 offen sc1")

    def p1_epi_v(self):
        a = self.a
        self.p1_epi_common()
        a("v_mov_b32 v13, v12")
        a(f"v_lshl_add_u32 v6, v5, 2, s{T2}")
        a("v_lshrrev_b32 v1, 5, v0")
        a("v_permlane32_swap_b32 v12, v13")
        a(f"ds_write_b32 v6, v{self.RS}")
        a(f"ds_write_b32 v6, v{self.RS+2} offset:128")
        a(f"v_lshl_add_u32 v6, v1, 4, s{T2}")
        C = 48
        for q4 in range(4):
            a(f"ds_read_b128 v[{C+4*q4}:{C+4*q4+3}], v6 offset:{q4*32}")
            a(f"ds_read_b128 v[{C+16+4*q4}:{C+16+4*q4+3}], v6 offset:{128+q4*32}")
        for grp in range(2):
            a(f"s_waitcnt lgkmcnt({4-4*grp})")
            for i in range(2):
                b = 16 * i + 8 * grp
                for r in range(8): a(f"v_mul_f32 v{self.ACC+b+r}, v{C+8*grp+r}, v{self.ACC+b+r}")
                for r in range(8): a(f"v_fma_f32 v{self.ACC+b+r}, -v{C+16+8*grp+r}, v{12+i}, v{self.ACC+b+r}")
                o = 4 + 4 * i
                for r in range(4): a(f"v_cvt_pk_bf16_f32 v{o+r}, v{self.ACC+b+2*r}, v{self.ACC+b+2*r+1}")
                a(f"buffer_store_dwordx4 v[{o}:{o+3}], v{self.STA+i}, s[{SRD_WS}:{SRD_WS+3}], 0 offen offset:{640*grp} sc1")

    def nonce_get(self, where="nonce"):
        a = self.a
        a(f"s_mov_b32 s{S_SPIN}, 0")
        Lc = a.newlabel("nchk"); Lo = a.newlabel("nok")
        a.label(Lc)
        a(f"v_readfirstlane_b32 s{S_NONCE}, v{self.VN}")
        a(f"v_readfirstlane_b32 s{S_NONCE+1}, v{self.VN+1}")
        a(f"s_add_u32 s{S_SPIN}, s{S_SPIN}, 1")
        a(f"s_or_b32 s{T0}, s{S_NONCE}, s{S_NONCE+1}")
        a(f"s_cbranch_scc1 {Lo}")
        a(f"s_cmp_ge_u32 s{S_SPIN}, {SPIN_MAX}")
        a(f"s_cbranch_scc1 {Lo}")
        self.diag(where)
        a("v_mov_b32 v94, 0")
        a(f"buffer_load_dwordx2 v[{self.VN}:{self.VN+1}], v94, s[{SRD_DBG}:{SRD_DBG+3}], 0 offen sc1")
        a("s_waitcnt vmcnt(0)")
        a(f"s_branch {Lc}")
        a.label(Lo)

    def phase1(self):
        a = self.a
        self.p1_setup_a()
        a(f"s_cmp_eq_u32 s{self.sCT}, 15")
        a("s_cbranch_scc0 L_p1_go")
        self.rowstats()
        a("s_branch L_p1_done")
        a.label("L_nonce_pub")
        a("v_mov_b32 v3, 0")
        a(f"v_mov_b32 v4, s{S_NONCE}")
        a(f"v_mov_b32 v5, s{S_NONCE+1}")
        a("s_mov_b64 exec, 1")
        a(f"buffer_store_dwordx2 v[4:5], v3, s[{SRD_DBG}:{SRD_DBG+3}], 0 offen sc1")
        a("s_mov_b64 exec, -1")
        a("s_branch L_nonce_done")
        a.label("L_p1_go")
        self.p1_setup_b()
        self.p1_issue((1, 2, 3) if self.o.get("first5", "1") == "1" else (0, 1, 2, 3))
        self.p1_issue((0, 1))
        self.stamp(2)
        a(f"s_cmp_ge_u32 s{self.sCT}, 10")
        a("s_cbranch_scc1 L_p1_v")
        self.p1_loop(False)
        self.p1_epi_q()
        a("s_branch L_p1_done")
        self.p1_sides(); self._sides = []
        a.label("L_p1_v")
        self.p1_loop(True)
        self.p1_epi_v()
        a("s_branch L_p1_done")
        self.p1_sides()
        a.label("L_p1_done")
        self.stamp(5)
        a("s_waitcnt vmcnt(0)")
        self.stamp(6)
        a("s_barrier")
        a(f"s_lshl_b32 s{T0}, s{self.sCT}, 4")
        a(f"s_add_u32 s{T0}, s{T0}, s{self.sRB}")
        a(f"s_mul_i32 s{T0}, s{T0}, {FSP}")
        a(f"s_add_u32 s{T0}, s{T0}, {FL_1}")
        self.flag_store(T0, 2)
        self.stamp(7)
        a(f"s_cmp_eq_u32 s{S_W}, 0")
        a("s_cbranch_scc1 L_no_rls")
        self.relayout_setup()
        a.label("L_no_rls")
        if self.stop < 2:
            self.relayout_issue()
            a("s_waitcnt vmcnt(0)")
            self.relayout_finish()

    def build(self):
        a = self.a
        self.entry()
        self.phase1()
        if self.stop >= 2:
            from phases import phase2, phase3, phase4, phase5
            phase2(self)
            if self.stop >= 3: phase3(self)
            if self.stop >= 4: phase4(self)
            if self.stop >= 5: phase5(self)
        a("s_waitcnt vmcnt(0)")
        if self.o.get("fixend"):
            if self.o.get("diag"):
                a("s_cmp_eq_u32 s35, 0")
                a("s_cbranch_scc1 L_end")
            a.label("L_fixend")
            a("s_memrealtime s[100:101]")
            a("s_waitcnt lgkmcnt(0)")
            a(f"s_sub_u32 s100, s100, s{31 if self.o.get('fixown') else S_NONCE}")
            a(f"s_cmp_lt_u32 s100, {int(self.o['fixend'])*100}")
            a("s_cbranch_scc1 L_fixend")
        self.stamp(31)
        self.stamp_flush()
        a.label("L_end")
        a("s_endpgm")
        a.lines.append(f".fill {self.pad}, 4, 0xbf810000")
        body = a.text()
        errs = check(body)
        if errs:
            sys.stderr.write("\n".join(errs[:40]) + "\n%d hazards\n" % len(errs))
            raise SystemExit(1)
        head = f"""; Fused preLN -> MHA -> residual -> preLN -> SiLU FFN -> residual in one persistent launch
;      checks its sums and outputs; if the shift was unsafe (sum > 2^40, inf or NaN) the wave redoes its rows
; @launch grid=(256,1,1) block=(512,1,1) lds={LDS_BYTES}
.amdgcn_target "amdgcn-amd-amdhsa--gfx950"
.text
.globl {NAME}_kernel
.p2align 8
.type {NAME}_kernel,@function
{NAME}_kernel:
"""
        tail = f""".section .rodata,"a"
.p2align 6
.amdhsa_kernel {NAME}_kernel
  .amdhsa_next_free_vgpr 256
  .amdhsa_next_free_sgpr 102
  .amdhsa_accum_offset 256
  .amdhsa_group_segment_fixed_size 0
  .amdhsa_kernarg_size 72
  .amdhsa_user_sgpr_count 2
  .amdhsa_user_sgpr_kernarg_segment_ptr 1
  .amdhsa_system_sgpr_workgroup_id_x 1
.end_amdhsa_kernel
"""
        return head + body + tail

if __name__ == "__main__":
    stop = int(sys.argv[2]) if len(sys.argv) > 2 else 99
    opts = dict(kv.split("=") for kv in sys.argv[3:])
    import subprocess
    def asm_size(path):
        r = subprocess.run(["clang", "-x", "assembler", "-target", "amdgcn-amd-amdhsa", "-mcpu=gfx950", "-c", path, "-o", "_chk.o"], capture_output=True, text=True)
        if r.returncode: print(r.stderr[:1500]); raise SystemExit(1)
        r = subprocess.run(["llvm-readelf", "-S", "_chk.o"], capture_output=True, text=True)
        return int([l for l in r.stdout.split("\n") if ".text" in l][0].split()[6], 16)
    open(sys.argv[1], "w").write(K(stop, opts).build())
    n = asm_size(sys.argv[1])
    k = K(stop, opts)
    k.CPF_LINES = (n + 4095) // 4096
    k.pad = (k.CPF_LINES * 4096 - n) // 4 + 16
    open(sys.argv[1], "w").write(k.build())
    print(sys.argv[1], "code bytes:", n, "with pad:", asm_size(sys.argv[1]))
```

```python
import math
from asmlib import vr, sr, f2u
from tables import *
from gen import *

Qm, Qr, NEG, S0, S1, P, O, Km, Kr, V = 4, 8, 12, 28, 60, 92, 108, 124, 132, 136
AK, AKR, AV, DKM, DLIN = 152, 153, 154, 197, 196
XR = 198
PL = 184
SLOT = 22528
WO_LDS = 3 * SLOT
sH, sQB, sST, sK0, sK1, sK2, sS1, sDS, sKD, sVM, sRET, sWOo, sWOl = 64, 65, 66, 67, 68, 69, 70, 71, 72, 74, 76, 78, 79
sW10, sL1, sD1, sL2, sSD, sD2 = 73, 82, 83, 93, 94, 78
sTA, sW1, sSM = 95, 96, 98
WS = f"s[{SRD_WS}:{SRD_WS+3}]"
M32 = "v_mfma_f32_32x32x16_bf16"
M2B = "v_mfma_f32_32x32x4_2b_bf16"
M16 = "v_mfma_f32_16x16x32_bf16"

def kv_piece(k, i):
    a = k.a
    a(f"s_add_u32 m0, s{(sW10, sL1, sL2)[i]}, s{sDS}")
    a(f"s_add_u32 s{sK0+i}, s{sK0+i}, {('4096', f's{sS1}', '10240')[i]}")
    k.dma((DKM, DLIN, DLIN)[i], SRD_WS, f"s{sK0+i}", "sc1")

def wo_piece(k):
    a = k.a
    a(f"s_min_u32 m0, s{sWOl}, {WO_LDS + 90*1024}")
    a(f"s_add_u32 s{sWOl}, s{sWOl}, 8192")
    k.dma(DLIN, SRD_WQ, "m0", "sc1")

def touch_piece(k):
    a = k.a
    a(f"buffer_load_dwordx4 v[160:163], v{DLIN}, {WS}, s{sTA} offen sc1")
    a(f"s_add_u32 s{sTA}, s{sTA}, 1024")

def SG(i): return 172 + 4 * i if i < 6 else 204 + 4 * (i - 6)

def stage_load(k, vq, tag, i, s_src, off, valid=8):
    a = k.a
    a(f"s_add_u32 s{T0}, s{s_src}, {off}")
    if valid < 8:
        a(f"s_cmp_ge_u32 s{S_W}, {valid}")
        a(f"s_cselect_b32 s{T0}, 0x7f000000, s{T0}")
    a(f"buffer_load_dwordx4 {vr(SG(i),4)}, v{DLIN}, {WS}, s{T0} offen sc1")
    if vq is not None: vq.add(tag)

def qkm(a, t, d, c): a(f"{M32} {vr(d+16*t,16)}, {vr(Km+4*t,4)}, {vr(Qm,4)}, {c}")
def qkr(a, d): a(f"{M2B} {vr(d,32)}, {vr(Kr,2)}, {vr(Qr,2)}, {vr(d,32)}")
def pv(a, j): a(f"{M32} {vr(O,16)}, {vr(V+4*j,4)}, {vr(P+4*j,4)}, {vr(O,16)}")

PGA, PGV, PGR, PGD = 155, 156, 159, 164
PG_LDS = 157 * 1024
SCHED = {
 "a": "q0 e4 m p3 v e4 m q1 k0 c4 m e4 k1 m p0 e4 c2 m qr c2 kr e4 m e4 c2 m p1 c2 e2 m e3 m p2 e3 m c4",
 "b": "q0 e5 m p3 v e3 c2 m q1 k0 c2 e3 m k1 e2 m p0 e3 c2 m qr kr c2 e4 m e4 c2 m p1 c2 e3 m e2 m p2 e3 m c4",
 "c": "p3 v e4 m q0 e4 m c2 q1 k0 c2 m e4 k1 m p0 e4 c2 m qr c2 kr e4 m e4 c2 m p1 c2 e2 m e3 m p2 e3 m c4",
 "d": "q0 e4 m q1 k0 e4 m p3 v c4 k1 m e5 m qr kr e3 c2 m e4 c2 m p0 e4 m c2 p1 c2 e2 m e3 m p2 e3 m c4",
 "e": "q0 e6 m p3 v e2 c3 m q1 k0 c1 e4 m k1 m p0 e4 c2 m qr c2 kr e4 m e4 c2 m p1 c2 e3 m e3 m p2 e2 m c4",
 "f": "q0 e4 m p3 v e4 m q1 k0 c4 m e4 k1 m p0 e4 c4 m qr kr e4 m e4 m p1 c4 e2 m e2 m p2 e4 m c4",
}
def att_stage(k, young):
    a = k.a
    o = k.o
    soft = o.get("soft", "1") == "1"
    tag = "Y" if young else "O"
    barit, barpos = [int(x) for x in o.get("abar" + tag, "0.6" if young else "1.2").split(".")]
    pA = int(o.get("pA" + tag, o.get("pA", 4))); pC = int(o.get("pC" + tag, o.get("pC", 20)))
    plo = int(o.get("plo", 7)); ntouch = int(o.get("ntouch", 2))
    lq = LQ(a)
    def exps(b, n0, n):
        for i in range(n0, n0 + n): a(f"v_exp_f32 v{b+i}, v{b+i}")
    def cvts(b, n0, n):
        for i in range(n0, n0 + n): a(f"v_cvt_pk_bf16_f32 v{P+i}, v{b+2*i}, v{b+2*i+1}")
    def rdV(js, it):
        a(f"s_mov_b64 exec, s[{sVM}:{sVM+1}]")
        for j in js:
            a(f"ds_read_b128 {vr(V+4*j,4)}, v{AV} offset:{12288+(4*it+j)*640}"); lq.add(("V", j))
        a("s_mov_b64 exec, -1")
    for it in range(4):
        cur, nx = (S0, S1) if it % 2 == 0 else (S1, S0)
        i2 = (it + 2) % 4
        npos = [0]
        def mark():
            p = it * 11 + npos[0]
            if soft:
                if p == pA:
                    a(f"v_add_u32 v{PGV}, 1, v{PGV}")
                    a(f"s_waitcnt vmcnt({3 + ntouch})")
                    a(f"ds_write_b32 v{PGA}, v{PGV}"); lq.add("a")
                if p == pC - int(o.get("pR", 2)):
                    a(f"ds_read_b32 v{PGD}, v{PGR}"); lq.add("g")
                if p == pC:
                    lq.wait("g")
                    Lw, Lb = a.newlabel("late"), a.newlabel("go")
                    a(f"v_cmp_lt_u32 vcc, v{PGD}, v{PGV}")
                    a(f"s_cbranch_vccnz {Lw}")
                    a.label(Lb)
                    k._late.append((Lw, Lb))
                    if o.get("its") == "2": k.stamp_dyn(54, sST)
                g = p - pC; d0 = 1; dd = int(o.get("dd", 2))
            else:
                g = p - (barit * 11 + barpos)
                if g == 0:
                    a("s_waitcnt vmcnt(0)")
                    a("s_barrier")
                    if o.get("its") == "2": k.stamp_dyn(54, sST)
                d0 = int(o.get("d" + tag, 5 if young else 1)); dd = int(o.get("dd", 3))
            if g == d0 - 1:
                a(f"s_call_b64 s[{sRET}:{sRET+1}], L_att_side")
            if g in [d0 + (5 + 2 * i) * dd for i in range(ntouch)]: touch_piece(k); k._n += 1
            for i in range(3):
                if g == d0 + (1 + i) * dd: kv_piece(k, i); k._n += 1
            for i in range(3):
                if g == d0 + (4 + 2 * i) * dd: wo_piece(k); k._n += 1
            if young and npos[0] == 0: a("s_setprio 1")
            if young and npos[0] == plo:
                if it >= int(o.get("lastprio", 9)):
                    Ls = a.newlabel("kp")
                    a(f"s_cmp_eq_u32 s{sST}, 7")
                    a(f"s_cbranch_scc1 {Ls}")
                    a("s_setprio 0")
                    a.label(Ls)
                else: a("s_setprio 0")
            npos[0] += 1
        if it == 2:
            a(f"v_add_u32 v{AK}, s{sKD}, v{AK}")
            a(f"v_add_u32 v{AKR}, s{sKD}, v{AKR}")
        ne = [0]; nc = [0]
        def E(n): exps(cur, ne[0], n); ne[0] += n
        def C(n): cvts(cur, nc[0], n); nc[0] += n
        def rk(t): a(f"ds_read_b128 {vr(Km+4*t,4)}, v{AK} offset:{2048*i2+1024*t}"); lq.add("K")
        def rkr(): a(f"ds_read_b64 {vr(Kr,2)}, v{AKR} offset:{8192+1024*i2}"); lq.add("K")
        def PV(j):
            if j < 3: lq.wait(("V", max(j, int(o.get("vw", 3)))))
            pv(a, j)
        ops = dict(q0=lambda: qkm(a, 0, nx, vr(NEG, 16)), q1=lambda: qkm(a, 1, nx, vr(NEG, 16)), qr=lambda: qkr(a, nx),
                   p0=lambda: PV(0), p1=lambda: PV(1), p2=lambda: PV(2), p3=lambda: PV(3), v=lambda: rdV([0, 1, 2, 3], it),
                   k0=lambda: rk(0), k1=lambda: rk(1), kr=rkr, m=mark)
        sched = SCHED[o.get("sched", "a")].split()
        mark()
        a("s_waitcnt lgkmcnt(0)"); lq.q = []
        for x in sched:
            if x[0] == "e": E(int(x[1:]))
            elif x[0] == "c": C(int(x[1:]))
            else: ops[x]()
        assert ne[0] == 32 and nc[0] == 16 and npos[0] == 11
        if it == 3:
            a(f"v_add_u32 v{AV}, s{sKD}, v{AV}")
            a(f"s_add_u32 s{sST}, s{sST}, 1")
            a(f"s_add_u32 s{sDS}, s{sDS}, s{sD2}")
            a(f"s_mov_b32 s{T0}, s{sKD}")
            a(f"s_mov_b32 s{sKD}, s{sD1}")
            a(f"s_mov_b32 s{sD1}, s{sD2}")
            a(f"s_mov_b32 s{sD2}, s{T0}")

def att_late(k):
    a = k.a
    for Lw, Lb in k._late:
        a.label(Lw)
        a(f"s_mov_b32 s{S_SPIN}, 0")
        L = a.newlabel("lsp")
        a.label(L)
        a(f"ds_read_b32 v{PGD}, v{PGR}")
        a(f"s_add_u32 s{S_SPIN}, s{S_SPIN}, 1")
        a(f"s_cmp_ge_u32 s{S_SPIN}, {SPIN_MAX * 16}")
        a(f"s_cbranch_scc1 {Lb}")
        a("s_waitcnt lgkmcnt(0)")
        a(f"v_cmp_lt_u32 vcc, v{PGD}, v{PGV}")
        a(f"s_cbranch_vccnz {L}")
        a(f"s_branch {Lb}")

def att_side(k):
    a = k.a
    a.label("L_att_side")
    a(f"s_bitcmp1_b32 s{sST}, 2")
    a("s_cbranch_scc1 L_as_hi")
    a(f"s_cmp_lt_u32 s{sST}, 1")
    a("s_cbranch_scc1 L_as_0")
    a(f"s_cmp_lt_u32 s{sST}, 2")
    a("s_cbranch_scc1 L_as_1")
    a(f"s_cmp_lt_u32 s{sST}, 3")
    a("s_cbranch_scc1 L_as_2")
    a(f"s_mov_b32 s{T0}, {FL_R}")
    a(f"buffer_load_dwordx4 v[{PL}:{PL+3}], v{DLIN}, {WS}, s{T0} offen sc1")
    a(f"buffer_load_dwordx4 v[{PL+4}:{PL+7}], v{DLIN}, {WS}, s{T0} offen offset:1024 sc1")
    a(f"s_setpc_b64 s[{sRET}:{sRET+1}]")
    a.label("L_as_2")
    a(f"s_lshl_b32 s{T0}, s{S_G}, 3")
    a(f"s_add_u32 s{T0}, s{T0}, {FL_R}")
    k.flag_store(T0, PL)
    a(f"s_setpc_b64 s[{sRET}:{sRET+1}]")
    a.label("L_as_0")
    k.relayout_issue()
    a(f"s_setpc_b64 s[{sRET}:{sRET+1}]")
    a.label("L_as_1")
    k.relayout_finish()
    a("s_nop 1")
    a(f"s_setpc_b64 s[{sRET}:{sRET+1}]")
    a.label("L_as_hi")
    a(f"s_cmp_eq_u32 s{sST}, 7")
    a("s_cbranch_scc1 L_as_7")
    a(f"s_cmp_eq_u32 s{sST}, 6")
    a("s_cbranch_scc1 L_as_6")
    a(f"s_cmp_eq_u32 s{sST}, 5")
    a("s_cbranch_scc1 L_as_5")
    N = f"s[{S_NONCE}:{S_NONCE+1}]"
    a(f"v_cmp_ne_u64 vcc, {N}, v[{PL}:{PL+1}]")
    a(f"v_cmp_ne_u64 s[{S_M1}:{S_M1+1}], {N}, v[{PL+2}:{PL+3}]")
    a(f"s_and_b32 s{T1}, s{S_J}, 7")
    a(f"s_or_b64 s[{T4}:{T5}], vcc, s[{S_M1}:{S_M1+1}]")
    a(f"v_cmp_ne_u64 vcc, {N}, v[{PL+4}:{PL+5}]")
    a(f"v_cmp_ne_u64 s[{S_M1}:{S_M1+1}], {N}, v[{PL+6}:{PL+7}]")
    a(f"s_add_u32 s{sWOl}, s{sW10}, {WO_LDS}")
    a(f"s_lshl_b32 s{T2}, s{S_J}, 3")
    a(f"s_add_u32 s{T2}, s{T2}, s{S_W}")
    a(f"s_mul_i32 s{sTA}, s{T2}, 8640")
    a(f"s_add_u32 s{sTA}, s{sTA}, {WS_W2}")
    a(f"s_and_b32 s{T2}, s{S_J}, 15")
    a(f"s_mul_i32 s{sW1}, s{T2}, {20*7168}")
    a(f"s_add_u32 s{sW1}, s{sW1}, s{sW10}")
    a(f"s_add_u32 s{sW1}, s{sW1}, {WS_W1}")
    a(f"s_or_b64 s[{T4}:{T5}], s[{T4}:{T5}], vcc")
    a(f"s_or_b64 s[{T4}:{T5}], s[{T4}:{T5}], s[{S_M1}:{S_M1+1}]")
    a("s_cbranch_scc0 L_as_ret")
    a(f"s_mov_b32 s{T3}, {FL_R}")
    k.diag("fr")
    k.poll(256, T3, 8, PL, only_wave0=False)
    a.label("L_as_ret")
    grp = ((0, 4), (4, 9), (9, 14), (14, 18))
    for st in range(4, 8):
        if st > 4: a.label(f"L_as_{st}")
        if st == 6:
            for r in (sK0, sK1, sK2): a(f"s_mov_b32 s{r}, 0x7f000000")
        for i in range(*grp[st - 4]): stage_load(k, None, None, i, sW1, 8192 * i, 4 if i == 17 else 8)
        a(f"s_setpc_b64 s[{sRET}:{sRET+1}]")

def resid_x(k):
    a = k.a
    a(f"s_lshr_b32 s{T0}, s{S_J}, 3")
    a(f"s_lshl_b32 s{T1}, s{S_C}, 2")
    a(f"s_add_u32 s{T0}, s{T0}, s{T1}")
    a(f"s_lshl_b32 s{T0}, s{T0}, 2")
    a(f"s_and_b32 s{T1}, s{S_W}, 3")
    a(f"s_add_u32 s{T0}, s{T0}, s{T1}")
    a(f"s_mul_i32 s{T0}, s{T0}, {16*1280}")
    a(f"s_and_b32 s{T1}, s{S_J}, 7")
    a(f"s_mul_i32 s{T1}, s{T1}, 160")
    a(f"s_add_u32 s{T0}, s{T0}, s{T1}")
    a(f"s_lshr_b32 s{T1}, s{S_W}, 2")
    a(f"s_lshl_b32 s{T1}, s{T1}, 6")
    a(f"s_add_u32 s{T1}, s{T1}, s{T0}")
    a(f"v_lshrrev_b32 v{TM}, 2, v0")
    a(f"v_mul_u32_u24 v{TM}, 1280, v{TM}")
    a(f"v_and_b32 v{TM+1}, 3, v0")
    a(f"v_lshl_add_u32 v{TM}, v{TM+1}, 3, v{TM}")
    a(f"buffer_load_dwordx2 v[{XR}:{XR+1}], v{TM}, s[{SRD_X}:{SRD_X+3}], s{T1} offen")
    a(f"buffer_load_dwordx2 v[{XR+2}:{XR+3}], v{TM}, s[{SRD_X}:{SRD_X+3}], s{T1} offen offset:32")
    a(f"buffer_load_dwordx2 v[{XR+4}:{XR+5}], v{TM}, s[{SRD_X}:{SRD_X+3}], s{T0} offen offset:128")

def rowmax(a, b, n, dst, t):
    a(f"v_max3_f32 v{dst}, v{b}, v{b+1}, v{dst}")
    for i in range(2, n, 2): a(f"v_max3_f32 v{dst}, v{b+i}, v{b+i+1}, v{dst}")

def set_neg(a, m, t):
    a(f"v_mov_b32 v{t}, v{m}")
    a("s_nop 1")
    a(f"v_permlane32_swap_b32 v{m}, v{t}")
    a("s_nop 0")
    a(f"v_max_f32 v{m}, v{m}, v{t}")
    for r in range(16): a(f"v_sub_f32 v{NEG+r}, 0, v{m}")

def att_fallback(k):
    a = k.a
    FT = S1
    a.label("L_att_fb")
    sI, sA, sB, sC = T0, T1, T2, T3
    def init():
        a(f"s_lshl_b32 s{sA}, s{sH}, 16")
        a(f"s_add_u32 s{sA}, s{sA}, {WS_K}")
        a(f"s_lshr_b32 s{sB}, s{sH}, 1")
        a(f"s_lshl_b32 s{sB}, s{sB}, 15")
        a(f"s_add_u32 s{sB}, s{sB}, {WS_K + 64*32768}")
        a(f"s_mul_i32 s{sC}, s{sH}, 81920")
        a(f"s_add_u32 s{sC}, s{sC}, {WS_V}")
        a(f"s_mov_b32 s{sI}, 0")
    def ldk():
        a(f"buffer_load_dwordx4 {vr(Km,4)}, v{DKM}, {WS}, s{sA} offen sc1")
        a(f"buffer_load_dwordx4 {vr(Km+4,4)}, v{DKM}, {WS}, s{sA} offen offset:512 sc1")
        a(f"buffer_load_dwordx2 {vr(Kr,2)}, v{FT+1}, {WS}, s{sB} offen sc1")
    def step():
        a(f"s_add_u32 s{sA}, s{sA}, 1024")
        a(f"s_add_u32 s{sB}, s{sB}, 1024")
        a(f"s_add_u32 s{sC}, s{sC}, 2560")
        a(f"s_add_u32 s{sI}, s{sI}, 1")
        a(f"s_cmp_lt_u32 s{sI}, 32")
    a(f"s_and_b32 s{T0}, s{sH}, 1")
    a(f"s_lshl_b32 s{T0}, s{T0}, 3")
    a(f"v_add_u32 v{FT+1}, s{T0}, v{DLIN}")
    a(f"v_lshrrev_b32 v{FT+2}, 5, v0")
    a(f"v_mul_u32_u24 v{FT+2}, 20, v{FT+2}")
    a(f"v_and_b32 v{FT+3}, 31, v0")
    a(f"v_add_lshl_u32 v{FT+2}, v{FT+2}, v{FT+3}, 4")
    a(f"v_mov_b32 v{FT}, 0xff800000")
    init()
    a.label("L_fb_max")
    ldk()
    a("s_waitcnt vmcnt(0)")
    qkm(a, 0, S0, "0"); qkm(a, 1, S0, "0")
    a("s_nop 9")
    qkr(a, S0)
    a("s_nop 15"); a("s_nop 3")
    rowmax(a, S0, 32, FT, FT + 4)
    step()
    a("s_cbranch_scc1 L_fb_max")
    set_neg(a, FT, FT + 4)
    for r in range(16): a(f"v_mov_b32 v{O+r}, 0")
    init()
    a.label("L_fb_acc")
    ldk()
    a(f"s_mov_b64 exec, s[{sVM}:{sVM+1}]")
    for j in range(4): a(f"buffer_load_dwordx4 {vr(V+4*j,4)}, v{FT+2}, {WS}, s{sC} offen offset:{640*j} sc1")
    a("s_mov_b64 exec, -1")
    a("s_waitcnt vmcnt(0)")
    qkm(a, 0, S0, vr(NEG, 16)); qkm(a, 1, S0, vr(NEG, 16))
    a("s_nop 9")
    qkr(a, S0)
    a("s_nop 15"); a("s_nop 3")
    for i in range(32): a(f"v_exp_f32 v{S0+i}, v{S0+i}")
    a("s_nop 0")
    for i in range(16): a(f"v_cvt_pk_bf16_f32 v{P+i}, v{S0+2*i}, v{S0+2*i+1}")
    a("s_nop 1")
    for j in range(4): pv(a, j)
    step()
    a("s_cbranch_scc1 L_fb_acc")
    a("s_nop 11")
    a("s_branch L_att_norm")

def phase2(k):
    a = k.a
    a.c("================ phase 2: attention")
    a(f"s_lshl_b32 s{sH}, s{S_C}, 2")
    a(f"s_lshr_b32 s{T0}, s{S_J}, 3")
    a(f"s_add_u32 s{sH}, s{sH}, s{T0}")
    a(f"s_and_b32 s{sQB}, s{S_J}, 7")
    a(f"v_lshlrev_b32 v{DLIN}, 4, v0")
    a("v_lshrrev_b32 v1, 5, v0")
    a("v_and_b32 v2, 31, v0")
    a("v_lshlrev_b32 v3, 15, v1")
    a(f"v_lshl_add_u32 v{DKM}, v2, 4, v3")
    a(f"v_mov_b32 v{AK}, v{DLIN}")
    a(f"s_and_b32 s{T0}, s{sH}, 1")
    a(f"s_lshl_b32 s{T0}, s{T0}, 3")
    a(f"v_add_u32 v{AKR}, s{T0}, v{DLIN}")
    a("v_mul_u32_u24 v3, 20, v1")
    a(f"v_add_lshl_u32 v{AV}, v3, v2, 4")
    a(f"v_lshl_add_u32 v10, v2, 4, s{T0}")
    if k.o.get("dry", "0") == "1":
        a(f"s_cmp_lg_u32 s{S_W}, 7")
        a("s_cbranch_scc1 L_nodry")
        a(f"s_mov_b32 s{sW1}, 0x7f000000")
        for st in (3, 5, 6, 7):
            a(f"s_mov_b32 s{sST}, {st}")
            if st == 3: continue
            a(f"s_call_b64 s[{sRET}:{sRET+1}], L_att_side")
        a.label("L_nodry")
    a(f"s_lshl_b32 s{T0}, s{S_W}, 2")
    a(f"s_add_u32 s{T0}, s{T0}, {PG_LDS}")
    a(f"v_mov_b32 v{PGA}, s{T0}")
    a(f"v_mov_b32 v{PGV}, 0")
    a(f"v_and_b32 v{PGR}, 7, v0")
    a(f"v_lshlrev_b32 v{PGR}, 2, v{PGR}")
    a(f"v_add_u32 v{PGR}, {PG_LDS}, v{PGR}")
    a(f"ds_write_b32 v{PGA}, v{PGV}")
    k._late = []; k._n = 0
    a(f"s_mov_b32 s{sVM}, 0x000fffff")
    a(f"s_mov_b32 s{sVM+1}, 0x000fffff")
    a(f"s_lshl_b32 s{sK0}, s{sH}, 16")
    a(f"s_lshl_b32 s{T0}, s{S_W}, 9")
    a(f"s_add_u32 s{sK0}, s{sK0}, s{T0}")
    a(f"s_add_u32 s{sK0}, s{sK0}, {WS_K - 4096}")
    a(f"s_lshl_b32 s{T0}, s{S_W}, 10")
    a(f"s_mul_i32 s{sK2}, s{sH}, 81920")
    a(f"s_add_u32 s{sK2}, s{sK2}, s{T0}")
    a(f"s_add_u32 s{T1}, s{sK2}, {WS_V - 4096 - 10240}")
    a(f"s_cmp_ge_u32 s{S_W}, 6")
    a(f"s_cselect_b32 s{T2}, 2048, 0")
    a(f"s_sub_u32 s{sK2}, s{sK2}, s{T2}")
    a(f"s_add_u32 s{sK2}, s{sK2}, {WS_V + 4096 - 10240}")
    a(f"s_sub_u32 s{sL2}, s{T0}, s{T2}")
    a(f"s_add_u32 s{sL2}, s{sL2}, 16384")
    a(f"s_add_u32 s{sL1}, s{T0}, 8192")
    a(f"s_lshr_b32 s{T2}, s{sH}, 1")
    a(f"s_lshl_b32 s{T2}, s{T2}, 15")
    a(f"s_add_u32 s{sK1}, s{T2}, s{T0}")
    a(f"s_add_u32 s{sK1}, s{sK1}, {WS_K + 64*32768 - 4096}")
    a(f"s_mov_b32 s{sS1}, 10240")
    a(f"s_cmp_lt_u32 s{S_W}, 4")
    a(f"s_cselect_b32 s{sK1}, s{sK1}, s{T1}")
    a(f"s_cselect_b32 s{sS1}, 4096, s{sS1}")
    a(f"s_mov_b32 s{sDS}, 0")
    a(f"s_mov_b32 s{sST}, 0")
    a(f"s_mov_b32 s{sKD}, {SLOT}")
    a(f"s_mov_b32 s{sD1}, {SLOT}")
    a(f"s_mov_b32 s{sD2}, {-2*SLOT & 0xffffffff}")
    a(f"s_mov_b32 s{sW10}, s{T0}")
    a(f"s_mov_b32 s{sWOl}, 0x40000000")
    a(f"s_mov_b32 s{sTA}, 0x7f000000")
    a(f"s_and_b32 s{T1}, s{S_J}, 7")
    a(f"s_mul_i32 s{sSD}, s{T1}, {20*5120}")
    a(f"s_add_u32 s{sSD}, s{sSD}, {WS_WO}")
    a(f"s_sub_u32 s{T1}, s{sSD}, {WO_LDS}")
    a(f"s_add_u32 s{SRD_WQ}, s{SRD_WS}, s{T1}")
    a(f"s_addc_u32 s{SRD_WQ+1}, s{SRD_WS+1}, 0")
    a(f"s_mov_b32 s{SRD_WQ+2}, {WO_LDS + 90*1024}")
    a(f"s_lshl_b32 s{T0}, s{sQB}, 3")
    a(f"s_add_u32 s{T0}, s{T0}, s{S_W}")
    a(f"s_lshl_b32 s{T0}, s{T0}, 9")
    a(f"s_add_u32 s{T2}, s{T2}, s{T0}")
    a(f"s_add_u32 s80, s{T2}, {WS_Q + 64*32768}")
    a(f"s_lshl_b32 s{T3}, s{sH}, 16")
    a(f"s_add_u32 s{T3}, s{T3}, s{T0}")
    a(f"s_add_u32 s81, s{T3}, {WS_Q}")
    a("v_cmp_eq_u32 vcc, 20, v2")
    a("v_mov_b32 v3, 0x3f803f80")
    a("s_nop 0")
    a("v_cndmask_b32 v3, 0, v3, vcc")
    for r in range(16): a(f"v_mov_b32 v{V+r}, v3")
    for r in range(16): a(f"v_mov_b32 v{O+r}, 0")
    for r in range(12, 16): a(f"v_mov_b32 v{P+r}, 0")
    a(f"s_mul_i32 s{T0}, s{sH}, 20")
    a(f"s_add_u32 s{T1}, s{T0}, 19")
    a(f"s_lshr_b32 s{T0}, s{T0}, 7")
    a(f"s_lshr_b32 s{T1}, s{T1}, 7")
    a(f"s_sub_u32 s{T1}, s{T1}, s{T0}")
    a(f"s_lshl_b32 s{T1}, s{T1}, 4")
    a(f"v_and_b32 v{PL+4}, s{T1}, v0")
    a(f"v_and_b32 v{PL+5}, 15, v0")
    a(f"v_add_u32 v{PL+5}, v{PL+5}, v{PL+4}")
    a(f"v_mul_u32_u24 v{PL+6}, 0x50, v1")
    a(f"v_add3_u32 v{PL+5}, v{PL+5}, v{PL+6}, 64")
    a(f"v_add_u32 v{PL+5}, 16, v{PL+5}")
    a(f"v_lshlrev_b32 v{PL+5}, 7, v{PL+5}")
    a(f"s_lshl_b32 s{T2}, s{sQB}, 1")
    a(f"v_and_b32 v{PL+6}, 1, v0")
    a(f"v_add3_u32 v{PL+4}, v{PL+4}, v{PL+6}, s{T2}")
    a(f"v_lshlrev_b32 v{PL+4}, 7, v{PL+4}")
    a(f"s_lshl_b32 s{T0}, s{T0}, 11")
    a(f"s_add_u32 s{T3}, s{T0}, {FL_1}")
    def ldq():
        a(f"buffer_load_dwordx4 {vr(Qm,4)}, v{DKM}, {WS}, s81 offen sc1")
        a(f"buffer_load_dwordx2 {vr(Qr,2)}, v10, {WS}, s80 offen sc1")
    early_q = k.o.get("earlyq", "1") == "1"
    if early_q:
        def own_q():
            a(f"s_lshr_b32 s{T0}, s{S_W}, 2")
            a(f"s_add_u32 s{T0}, s{T0}, s{T2}")
            a(f"v_and_b32 v{PL+4}, s{T1}, v0")
            a(f"v_add_lshl_u32 v{PL+4}, v{PL+4}, s{T0}, 7")
            L = a.newlabel("qp"); Ld = a.newlabel("qpd")
            a(f"s_mov_b32 s{S_SPIN}, 0")
            a.label(L)
            a(f"buffer_load_dwordx2 v[{PL}:{PL+1}], v{PL+4}, {WS}, s{T3} offen sc1")
            a(f"s_add_u32 s{S_SPIN}, s{S_SPIN}, 1")
            a(f"s_cmp_ge_u32 s{S_SPIN}, {SPIN_MAX}")
            a(f"s_cbranch_scc1 {Ld}")
            a("s_waitcnt vmcnt(0)")
            a(f"v_cmp_ne_u64 vcc, s[{S_NONCE}:{S_NONCE+1}], v[{PL}:{PL+1}]")
            a(f"s_cbranch_vccnz {L}")
            a.label(Ld)
            ldq()
        not_wave0(k, own_q)
    k.poll2(PL + 5, PL + 4, T3, PL)
    a("s_waitcnt lgkmcnt(0)")
    a("s_barrier")
    k.stamp(8)
    if early_q:
        a(f"s_cmp_lg_u32 s{S_W}, 0")
        a("s_cbranch_scc1 L_noq")
    ldq()
    if early_q: a.label("L_noq")
    for i in range(3): kv_piece(k, i)
    a(f"s_mov_b32 s{sDS}, {SLOT}")
    a("s_waitcnt vmcnt(0)")
    for i in range(3): kv_piece(k, i)
    a(f"s_mov_b32 s{sDS}, {2*SLOT}")
    a("s_barrier")
    k.hold("fix9")
    k.stamp(9)
    def rdk(i):
        a(f"ds_read_b128 {vr(Km,4)}, v{AK} offset:{2048*i}")
        a(f"ds_read_b128 {vr(Km+4,4)}, v{AK} offset:{2048*i+1024}")
        a(f"ds_read_b64 {vr(Kr,2)}, v{AKR} offset:{8192+1024*i}")
    rdk(0)
    a(f"v_mov_b32 v{PL}, 0xff800000")
    a("s_waitcnt lgkmcnt(0)")
    qkm(a, 0, S0, "0"); qkm(a, 1, S0, "0")
    a("s_nop 9")
    qkr(a, S0)
    rdk(1)
    if k.o.get("soft", "1") == "1":
        for i in range(3): wo_piece(k)
        for i in range(int(k.o.get("ntouch", 2))): touch_piece(k)
    a("s_nop 3")
    rowmax(a, S0, 32, PL, PL + 4)
    set_neg(a, PL, PL + 4)
    for r in range(32): a(f"v_sub_f32 v{S0+r}, v{S0+r}, v{PL}")
    a(f"s_cmp_ge_u32 s{S_W}, 4")
    a("s_cbranch_scc1 L_att_young")
    for young in (0, 1):
        L = "L_att_young" if young else "L_att_old"
        a.align(int(k.o.get("al2", 3)))
        a.label(L)
        att_stage(k, young)
        a(f"s_cmp_lt_u32 s{sST}, 8")
        a(f"s_cbranch_scc1 {L}")
        if not young: a("s_branch L_att_done")
    a("s_setprio 0")
    a.label("L_att_done")
    a("s_waitcnt lgkmcnt(3)")
    pv(a, 3)
    k.stamp(10)
    a(f"s_lshl_b32 s{T0}, s{sQB}, 4")
    a(f"s_lshl_b32 s{T1}, s{S_W}, 1")
    a(f"s_add_u32 s{T0}, s{T0}, s{T1}")
    a(f"s_mul_i32 s{T0}, s{T0}, 20480")
    a(f"s_add_u32 s{T0}, s{T0}, {WS_O}")
    a(f"s_lshl_b32 s{T1}, s{sH}, 9")
    a(f"s_add_u32 s80, s{T0}, s{T1}")
    a(f"s_lshr_b32 s{T1}, s{sH}, 4")
    a(f"s_lshl_b32 s{T2}, s{T1}, 11")
    a(f"s_add_u32 s80, s80, s{T2}")
    a(f"s_lshl_b32 s{T1}, s{T1}, 13")
    a(f"s_add_u32 s{T0}, s{T0}, s{T1}")
    a(f"s_lshr_b32 s{T1}, s{sH}, 3")
    a(f"s_lshl_b32 s{T1}, s{T1}, 10")
    a(f"s_add_u32 s{T0}, s{T0}, s{T1}")
    a(f"s_bfe_u32 s{T1}, s{sH}, 0x20001")
    a(f"s_lshl_b32 s{T1}, s{T1}, 7")
    a(f"s_add_u32 s{T0}, s{T0}, s{T1}")
    a(f"s_and_b32 s{T1}, s{sH}, 1")
    a(f"s_lshl_b32 s{T1}, s{T1}, 9")
    a(f"s_add_u32 s{T0}, s{T0}, s{T1}")
    a(f"s_add_u32 s81, s{T0}, 8192")
    a("s_waitcnt lgkmcnt(0)")
    a(f"v_add_f32 v1, abs(v{O}), abs(v{O+1})")
    a(f"v_add_f32 v3, abs(v{O+2}), abs(v{O+3})")
    for r in range(4, 12, 2):
        a(f"v_add_f32 v1, abs(v{O+r}), v1")
        a(f"v_add_f32 v3, abs(v{O+r+1}), v3")
    a(f"v_mov_b32 v2, 0x{f2u(2.0**40):08x}")
    a("v_add_f32 v1, v1, v3")
    a("v_mov_b32 v3, 0x203")
    a(f"v_cmp_nle_f32 vcc, v{O+8}, v2")
    a(f"v_cmp_class_f32 s[{S_M1}:{S_M1+1}], v1, v3")
    a("s_and_b32 vcc_lo, vcc_lo, 0")
    a(f"s_or_b64 vcc, vcc, s[{S_M1}:{S_M1+1}]")
    a("s_cbranch_scc1 L_att_fb")
    a.label("L_att_norm")
    a(f"v_mov_b32 v1, v{O+8}")
    a(f"v_mov_b32 v2, v{O+8}")
    a("v_bfe_u32 v3, v0, 4, 1")
    a("v_mul_u32_u24 v3, 20480, v3")
    a("v_permlane32_swap_b32 v1, v2")
    a("s_nop 0")
    a("v_rcp_f32 v2, v2")
    a("v_and_b32 v10, 15, v0")
    a("v_lshl_add_u32 v11, v10, 4, v3")
    a("v_lshl_add_u32 v3, v10, 3, v3")
    a("v_lshrrev_b32 v10, 5, v0")
    a("v_lshl_add_u32 v10, v10, 8, v11")
    for r in range(12): a(f"v_mul_f32 v{O+r}, v2, v{O+r}")
    for r in range(6): a(f"v_cvt_pk_bf16_f32 v{P+r}, v{O+2*r}, v{O+2*r+1}")
    a(f"buffer_store_dwordx4 {vr(P,4)}, v10, {WS}, s80 offen sc1")
    a("s_mov_b64 exec, 0xffffffff")
    a(f"buffer_store_dwordx2 {vr(P+4,2)}, v3, {WS}, s81 offen sc1")
    a("s_mov_b64 exec, -1")
    a("s_branch L_att_end")
    assert k._n == 2 * (6 + int(k.o.get("ntouch", 2))), k._n
    att_side(k)
    att_late(k)
    att_fallback(k)
    a.label("L_att_end")
    if k.stop == 2:
        a("s_waitcnt vmcnt(0)")
        k.stamp(11)


class VQ:
    def __init__(self, a): self.a = a; self.q = []
    def add(self, tag): self.q.append(tag)
    def wait(self, tag):
        if tag not in self.q: return
        i = len(self.q) - 1 - self.q[::-1].index(tag)
        n = len(self.q) - 1 - i
        self.a(f"s_waitcnt vmcnt({n})")
        self.q = self.q[i + 1:]

def dma_ops(k, vq, tag, first, last, s_src, s_lds, lds0, nw=8):
    a = k.a
    def one(i):
        def f():
            a(f"s_add_u32 m0, s{s_lds}, {lds0 + nw * i * 1024}")
            a(f"s_add_u32 s{T0}, s{s_src}, {(first + nw * i) * 1024}")
            if first + nw * i + nw > last:
                a(f"s_cmp_ge_u32 s{S_W}, {last - first - nw*i + (1 if nw == 7 else 0)}")
                a(f"s_cselect_b32 m0, {k.DUMMY}, m0")
                a(f"s_cselect_b32 s{T0}, 0x7f000000, s{T0}")
            k.dma(DLIN, SRD_WS, f"s{T0}", "sc1")
            if vq is not None: vq.add(tag)
        return f
    return [one(i) for i in range((last - first + nw - 1) // nw)]

DL8 = 197
RA = 8
AF = 4
ST = 36
ACC = 44
BA = 72
XW, XRD = 78, 79
TM = 80
WB = 88
CSV = 148
SW = 1
TL = 252
HR = 198
sRG, sKH, sN8, sRB64, sA, sB = 64, 65, 66, 67, 68, 69
sW7 = 72
CS_LDS = 158 * 1024

def a_op(k, vq, j, ks, s_base, split):
    a = k.a
    reg = AF + 4 * (j % RA)
    pol = k.o.get("apol", "sc1")
    def f():
        if k.o.get("noa"): return
        a(f"s_add_u32 s{T0}, s{s_base}, {1024*ks}")
        if split:
            a(f"buffer_load_dwordx2 {vr(reg,2)}, v{DL8}, {WS}, s{T0} offen sc1")
            a(f"buffer_load_dwordx2 {vr(reg+2,2)}, v{DL8}, {WS}, s{T0} offen offset:512 sc1")
            vq.add(("a", j))
        else:
            a(f"buffer_load_dwordx4 {vr(reg,4)}, v{DLIN}, {WS}, s{T0} offen {pol}")
        vq.add(("A", j))
    return f

def coop_touch(k, vq, s_base, s_idx, stride, n):
    a = k.a
    if not k.o.get("coop"): return
    a(f"s_lshl_b32 s{T1}, s{s_idx}, 10")
    a(f"s_add_u32 s{T1}, s{T1}, s{s_base}")
    for i in range((n + stride - 1) // stride):
        a(f"s_add_u32 s{T0}, s{T1}, {1024*stride*i}")
        if stride * i + stride > n:
            a(f"s_cmp_ge_u32 s{s_idx}, {n - stride*i}")
            a(f"s_cselect_b32 s{T0}, s{T1}, s{T0}")
        a(f"buffer_load_dwordx4 {vr(TM+4,4)}, v{DLIN}, {WS}, s{T0} offen sc1")
        vq.add("t")

class LQ(VQ):
    def wait(self, tag):
        if tag not in self.q: return
        i = len(self.q) - 1 - self.q[::-1].index(tag)
        self.a(f"s_waitcnt lgkmcnt({min(15, len(self.q) - 1 - i)})")
        self.q = self.q[i + 1:]

def stage_write(k, lq, i, lds, tail=None):
    a = k.a
    if tail is not None: a(f"ds_write_b128 v{tail}, {vr(SG(i),4)}")
    else: a(f"ds_write_b128 v{SW + lds // 65536}, {vr(SG(i),4)} offset:{lds % 65536}")
    if lq is not None: lq.add("w")

def mm_steps(k, vq, n, nt, addr, extra, pre_hook=None):
    a = k.a
    NB = 3
    lq = k.lq = LQ(a)
    def rd(j, t):
        r, off = addr(j, t)
        a(f"ds_read_b128 {vr(WB + (j % NB) * 4 * nt + 4 * t, 4)}, v{r} offset:{off}")
        lq.add(("r", j))
    for j in range(2):
        for t in range(nt): rd(j, t)
    for j in range(n):
        b = WB + (j % NB) * 4 * nt
        ops = list(extra.get(j, []))
        slots = {}
        for i, f in enumerate(ops): slots.setdefault(1 + (i * (nt - 1)) // max(1, len(ops)), []).append(f)
        if pre_hook and j + 2 < n: pre_hook(j + 2)
        vq.wait(("A", j))
        lq.wait(("r", j))
        for t in range(nt):
            c = "0" if j == 0 else vr(ACC + 4 * t, 4)
            a(f"{M16} {vr(ACC+4*t,4)}, {vr(b+4*t,4)}, {vr(AF+4*(j%RA),4)}, {c}")
            if j + 2 < n: rd(j + 2, t)
            for f in slots.get(t, []): f()

def tile_addrs(k, base_expr_sgpr, dst):
    a = k.a
    a(f"s_lshl_b32 s{T1}, s{sKH}, 11")
    a(f"v_add_u32 v{dst+2}, s{base_expr_sgpr}, v{DLIN}")
    a(f"v_add_u32 v{dst}, s{T1}, v{dst+2}")
    a(f"v_subrev_u32 v{dst+1}, s{T1}, v{dst+2}")

def exch_addrs(k, scr):
    a = k.a
    a(f"s_mul_i32 s{T0}, s{sRG}, 5120")
    a(f"s_add_u32 s{T0}, s{T0}, {scr}")
    a(f"s_lshl_b32 s{T1}, s{sKH}, 11")
    a(f"s_add_u32 s{T2}, s{T0}, s{T1}")
    a(f"v_add_u32 v{XW}, s{T2}, v{DLIN}")
    a(f"s_sub_u32 s{T2}, s{T0}, s{T1}")
    a(f"s_add_u32 s{T2}, s{T2}, 2048")
    a(f"v_add_u32 v{XRD}, s{T2}, v{DLIN}")

def reduce_halves(k, resid, pad):
    a = k.a
    if pad: a(f"s_nop {pad-1}")
    a(f"ds_write_b128 v{XW}, {vr(ACC+8,4)}")
    a(f"ds_write_b128 v{XW}, {vr(ACC+12,4)} offset:1024")
    L = a.newlabel("rh")
    a(f"s_cmp_eq_u32 s{sKH}, 0")
    a(f"s_cbranch_scc1 {L}")
    a(f"ds_write_b128 v{XW}, {vr(ACC+16,4)} offset:2048")
    a.label(L)
    a("s_waitcnt lgkmcnt(2)")
    for i, t in enumerate((0, 1, 4)):
        for h in range(2):
            a(f"v_lshlrev_b32 v{TM+2}, 16, v{resid+2*i+h}")
            a(f"v_and_b32 v{TM+3}, 0xffff0000, v{resid+2*i+h}")
            a(f"v_add_f32 v{ACC+4*t+2*h}, v{ACC+4*t+2*h}, v{TM+2}")
            a(f"v_add_f32 v{ACC+4*t+2*h+1}, v{ACC+4*t+2*h+1}, v{TM+3}")
    a("s_waitcnt lgkmcnt(0)")
    a("s_barrier")
    if k.o.get("fine") == "3": k.stamp(20)
    for i in range(3): a(f"ds_read_b128 {vr(WB+4*i,4)}, v{XRD} offset:{1024*i}")
    for i, t in enumerate((0, 1, 4)):
        a(f"s_waitcnt lgkmcnt({2-i})")
        for r in range(4): a(f"v_add_f32 v{ACC+4*t+r}, v{ACC+4*t+r}, v{WB+4*i+r}")

DH = 254
def odd_tile_store(k, src, tmp, soff):
    a = k.a
    for i in range(4): a(f"v_mov_b32 v{tmp+i}, v{src+i%2}")
    a("s_nop 0")
    a(f"v_permlane16_swap_b32 v{tmp}, v{tmp+2}")
    a(f"v_permlane16_swap_b32 v{tmp+1}, v{tmp+3}")
    a("s_mov_b32 exec_lo, 0xffff")
    a("s_mov_b32 exec_hi, 0xffff")
    a(f"buffer_store_dwordx4 {vr(tmp,4)}, v{DH}, {WS}, s{soff} offen sc1")
    a("s_mov_b64 exec, -1")

def row_reduce(a, r, t):
    for sw in ("16", "32"):
        a(f"v_mov_b32 v{t}, v{r}")
        a(f"v_mov_b32 v{t+1}, v{r+1}")
        a("s_nop 0")
        a(f"v_permlane{sw}_swap_b32 v{r}, v{t}")
        a(f"v_permlane{sw}_swap_b32 v{r+1}, v{t+1}")
        a("s_nop 0")
        a(f"v_add_f32 v{r}, v{r}, v{t}")
        a(f"v_add_f32 v{r+1}, v{r+1}, v{t+1}")

def fpoll(k, n):
    d = int(k.o.get("pdepth", 1))
    if d == 1: k.poll(n, T3, FSP, TM)
    else: k.pollp(n, T3, FSP, TM, ST, d)

def not_wave0(k, fn):
    a = k.a
    L = a.newlabel("nw0")
    a(f"s_cmp_eq_u32 s{S_W}, 0")
    a(f"s_cbranch_scc1 {L}")
    fn()
    a.label(L)

NS5 = 16
HALF = NS5 * 5120
OUT_PITCH = 336
OUT_HALF = HALF
OUT_LDS = 11 * 5120
sW2 = 83
def w2_load(k, vq, tag, i, batch):
    h, q = divmod(i, 9)
    stage_load(k, vq, tag, i, sW2, (135 * h + (0, 5 * NS5)[batch] + 8 * q) * 1024)
def w2_write(k, lq, i):
    h, q = divmod(i, 9)
    stage_write(k, lq, i, HALF * h + 8192 * q)

P3_SCR, P3_LAST = 35 * 1024, 56 * 1024
sTT3 = 81
def phase3(k):
    a = k.a
    a.c("================ phase 3: output projection + residual")
    a(f"s_lshl_b32 s{T0}, s{sQB}, 5")
    a(f"s_add_u32 s{T0}, s{T0}, s{sH}")
    a(f"s_mul_i32 s{T3}, s{T0}, {FSP}")
    a(f"s_add_u32 s{T3}, s{T3}, {FL_2}")
    a(f"s_and_b32 s{sRG}, s{S_W}, 3")
    a(f"s_lshr_b32 s{sKH}, s{S_W}, 2")
    a(f"s_and_b32 s{sN8}, s{S_J}, 7")
    a(f"s_lshl_b32 s{sRB64}, s{S_C}, 2")
    a(f"s_lshr_b32 s{T0}, s{S_J}, 3")
    a(f"s_add_u32 s{sRB64}, s{sRB64}, s{T0}")
    a(f"s_sub_u32 s{sW7}, s{sW10}, 1024")
    a(f"s_add_u32 s{sA}, s{sSD}, s{sW7}")
    a(f"s_mul_i32 s{sW2}, s{sN8}, {54*5120}")
    a(f"s_add_u32 s{sW2}, s{sW2}, s{sW10}")
    a(f"s_add_u32 s{sW2}, s{sW2}, {WS_W2}")
    a(f"v_lshlrev_b32 v{DL8}, 3, v0")
    a(f"v_lshrrev_b32 v{DH}, 5, v0")
    a(f"v_and_b32 v{TM}, 15, v0")
    a(f"v_lshlrev_b32 v{TM}, 4, v{TM}")
    a(f"v_lshl_add_u32 v{DH}, v{DH}, 8, v{TM}")
    a(f"v_add_u32 v{SW}, s{sW10}, v{DLIN}")
    a(f"v_add_u32 v{SW+1}, 0x10000, v{SW}")
    a(f"v_add_u32 v{SW+2}, 0x20000, v{SW}")
    a("s_waitcnt vmcnt(0)")
    a("s_barrier")
    k.stamp(11)
    k.flag_store(T3, TM)
    def early():
        for f in dma_ops(k, None, None, 90, 100, sA, sW7, P3_LAST, 7): f()
        if not k.o.get("w0a", "1") == "1": resid_x(k)
    not_wave0(k, early)
    if k.o.get("w0a", "1") == "1": resid_x(k)
    for i in range(4): stage_write(k, None, i, 8192 * i)
    a(f"s_cmp_lt_u32 s{S_W}, 6")
    a("s_cbranch_scc1 L_p3_nocs")
    a(f"s_and_b32 s{T1}, s{S_J}, 15")
    a(f"s_sub_u32 s{T0}, s{S_W}, 6")
    a(f"s_lshl_b32 s{T0}, s{T0}, 6")
    a(f"v_add_u32 v{TM+4}, s{T0}, v0")
    a(f"s_mul_i32 s{T2}, s{T1}, 96")
    a(f"v_add_u32 v{TM+5}, s{T2}, v{TM+4}")
    a(f"s_min_u32 s{T2}, s{T1}, 11")
    a(f"s_lshl_b32 s{T2}, s{T2}, 4")
    a(f"s_add_u32 s{T2}, s{T2}, 1536")
    a(f"v_and_b32 v{TM+6}, 15, v0")
    a(f"v_add_u32 v{TM+6}, s{T2}, v{TM+6}")
    a(f"v_cmp_gt_u32 vcc, 96, v{TM+4}")
    a(f"s_mov_b32 s{T2}, {WS_CS1}")
    a("s_nop 0")
    a(f"v_cndmask_b32 v{TM+5}, v{TM+6}, v{TM+5}, vcc")
    a(f"v_lshlrev_b32 v{TM+5}, 2, v{TM+5}")
    for i in range(20):
        a(f"buffer_load_dword v{CSV+i}, v{TM+5}, {WS}, s{T2} offen sc1")
        if i < 19: a(f"s_add_u32 s{T2}, s{T2}, {1728*4}")
    a.label("L_p3_nocs")
    a(f"s_mul_i32 s{T0}, s{sKH}, {45*1024}")
    a(f"s_add_u32 s{T0}, s{T0}, {WO_LDS}")
    tile_addrs(k, T0, BA)
    a(f"s_mul_i32 s{T0}, s{sKH}, 5120")
    a(f"s_add_u32 s{T0}, s{T0}, {P3_LAST}")
    tile_addrs(k, T0, BA + 3)
    exch_addrs(k, P3_SCR)
    a(f"s_lshl_b32 s{T0}, s{sRB64}, 2")
    a(f"s_add_u32 s{sTT3}, s{T0}, s{sRG}")
    a(f"s_mul_i32 s{sA}, s{sTT3}, 20480")
    a(f"s_mul_i32 s{T1}, s{sKH}, 10240")
    a(f"s_add_u32 s{sA}, s{sA}, s{T1}")
    a(f"s_add_u32 s{sA}, s{sA}, {WS_O}")
    a(f"v_and_b32 v{TM+6}, 15, v0")
    a(f"v_lshrrev_b32 v{TM+7}, 4, v0")
    a(f"v_lshl_add_u32 v{TM+7}, v{TM+6}, 2, v{TM+7}")
    a(f"v_lshlrev_b32 v{TM+7}, 2, v{TM+7}")
    a(f"s_mul_i32 s70, s{sTT3}, 20480")
    a(f"s_add_u32 s70, s70, {WS_H}")
    a(f"s_lshl_b32 s{T0}, s{sN8}, 1")
    a(f"s_add_u32 s{T0}, s{T0}, s{sKH}")
    a(f"s_lshl_b32 s71, s{T0}, 10")
    a(f"s_add_u32 s71, s71, s70")
    a(f"s_lshl_b32 s{T1}, s{sRB64}, 4")
    a(f"s_add_u32 s{T0}, s{T0}, s{T1}")
    a(f"s_lshl_b32 s{T0}, s{T0}, 9")
    a(f"s_lshl_b32 s{T1}, s{sRG}, 7")
    a(f"s_add_u32 s{T0}, s{T0}, s{T1}")
    a(f"s_add_u32 s74, s{T0}, {WS_ST}")
    a(f"s_lshr_b32 s{T0}, s{sN8}, 1")
    a(f"s_lshl_b32 s{T0}, s{T0}, 10")
    a(f"s_and_b32 s{T1}, s{sN8}, 1")
    a(f"s_lshl_b32 s{T1}, s{T1}, 9")
    a(f"s_add_u32 s{T0}, s{T0}, s{T1}")
    a(f"s_add_u32 s70, s70, s{T0}")
    a(f"s_add_u32 s70, s70, 16384")
    a(f"s_lshl_b32 s{T0}, s{sRB64}, 3")
    a(f"s_add_u32 s{T0}, s{T0}, s{sN8}")
    a(f"s_mul_i32 s75, s{T0}, {FSP}")
    a(f"s_add_u32 s75, s75, {FL_3}")
    a(f"s_mul_i32 s{T3}, s{S_C}, {32*FSP}")
    a(f"s_add_u32 s{T3}, s{T3}, {FL_2}")
    fpoll(k, 32)
    if not k.o.get("w0a", "1") == "1":
        a(f"s_cmp_lg_u32 s{S_W}, 0")
        a("s_cbranch_scc1 L_p3_rx")
        resid_x(k)
        a.label("L_p3_rx")
    a("s_waitcnt vmcnt(3) lgkmcnt(0)")
    a("s_barrier")
    k.hold("fix12")
    k.stamp(12)
    vq = VQ(a)
    aop = [a_op(k, vq, j, j, sA, j >= 8) for j in range(10)]
    D = int(k.o.get("d3", 4))
    coop_touch(k, vq, sA, sN8, 8, 10)
    for j in range(D): aop[j]()
    def addr(j, t):
        r = (BA if j < 9 else BA + 3) + (0, 0, 1, 1, 2)[t]
        return r, (j * 5120 if j < 9 else 0) + t * 1024
    extra = {j: [aop[j + D]] for j in range(10 - D)}
    def perm(r):
        def f():
            a(f"ds_bpermute_b32 v{XR+r}, v{TM+7}, v{XR+r}")
            k.lq.add("p")
        return f
    for r in range(6): extra.setdefault(6 + r // 2, []).append(perm(r))
    mm_steps(k, vq, 10, 5, addr, extra)
    k.stamp(13)
    reduce_halves(k, XR, 6)
    for i, t in enumerate((0, 1, 4)):
        for h in range(2): a(f"v_cvt_pk_bf16_f32 v{HR+2*i+h}, v{ACC+4*t+2*h}, v{ACC+4*t+2*h+1}")
        if i == 1: a(f"buffer_store_dwordx4 {vr(HR,4)}, v{DLIN}, {WS}, s71 offen sc1")
    a(f"v_mov_b32 v{TM+6}, 0x3f803f80")
    a(f"v_mov_b32 v{TM+4}, 0")
    a(f"v_mov_b32 v{TM+5}, 0")
    def acc_stats(regs):
        for r in regs:
            a(f"v_dot2_f32_bf16 v{TM+4}, v{r}, v{TM+6}, v{TM+4}")
            a(f"v_dot2_f32_bf16 v{TM+5}, v{r}, v{r}, v{TM+5}")
    a(f"s_cmp_lg_u32 s{sKH}, 0")
    a("s_cbranch_scc1 L_p3_no4")
    odd_tile_store(k, HR + 4, WB, 70)
    acc_stats(range(HR + 4, HR + 6))
    a.label("L_p3_no4")
    acc_stats(range(HR, HR + 4))
    a("s_nop 1")
    row_reduce(a, TM + 4, TM + 6)
    a("s_mov_b64 exec, 0xffff")
    a(f"buffer_store_dwordx2 {vr(TM+4,2)}, v{DL8}, {WS}, s74 offen sc1")
    a("s_mov_b64 exec, -1")
    if k.o.get("fine") == "3": k.stamp(21)
    for i in range(4): w2_load(k, None, None, i, 0)
    NW3 = int(k.o.get("nw3", 8))
    for i in range(7, 7 + NW3): stage_write(k, None, i, 8192 * i)
    if k.o.get("fine") == "3": k.stamp(22)
    a("s_waitcnt vmcnt(4)")
    if k.o.get("fine") == "3": k.stamp(23)
    a("s_barrier")
    k.stamp(14)
    k.flag_store(75, TM)

def phase4(k):
    a = k.a
    a.c("================ phase 4: FFN up-projection + SiLU")
    sF, sRB, sTT = 70, 71, 74
    NW3 = int(k.o.get("nw3", 8)); NB4 = min(NW3, int(k.o.get("nb4", 4)))
    def rest_writes():
        for i in list(range(7 + NW3, 18)) + [4, 5, 6]: stage_write(k, None, i, 8192 * i)
    a("s_waitcnt lgkmcnt(0)")
    for i in range(7, 7 + NB4): w2_load(k, None, None, i, 0)
    if k.o.get("w0b", "1") == "1": rest_writes()
    else: not_wave0(k, rest_writes)
    a(f"s_cmp_lt_u32 s{S_W}, 6")
    a("s_cbranch_scc1 L_p4_nocs2")
    for w in (10, 5):
        for i in range(w): a(f"v_add_f32 v{CSV+i}, v{CSV+i}, v{CSV+w+i}")
    for i in range(1, 5): a(f"v_add_f32 v{CSV}, v{CSV}, v{CSV+i}")
    a(f"s_lshl_b32 s{T0}, s{S_W}, 8")
    a(f"s_add_u32 s{T0}, s{T0}, {CS_LDS - 6*256}")
    a(f"v_lshl_add_u32 v{TM+4}, v0, 2, s{T0}")
    a(f"ds_write_b32 v{TM+4}, v{CSV}")
    a.label("L_p4_nocs2")
    a(f"s_and_b32 s{sF}, s{S_J}, 15")
    a(f"s_lshl_b32 s{sRB}, s{S_C}, 1")
    a(f"s_lshr_b32 s{T0}, s{S_J}, 4")
    a(f"s_add_u32 s{sRB}, s{sRB}, s{T0}")
    a(f"v_mov_b32 v{BA}, v{DLIN}")
    a(f"v_add_u32 v{BA+1}, {9*7168}, v{DLIN}")
    a(f"v_add_u32 v{BA+2}, {18*7168}, v{DLIN}")
    a(f"s_lshl_b32 s{T0}, s{sRB}, 3")
    a(f"s_add_u32 s{sTT}, s{T0}, s{S_W}")
    a(f"s_mul_i32 s{sA}, s{sTT}, 20480")
    a(f"s_add_u32 s{sA}, s{sA}, {WS_H}")
    a(f"s_lshr_b32 s{T0}, s{sTT}, 2")
    a(f"s_lshl_b32 s{T0}, s{T0}, 13")
    a(f"s_and_b32 s{T1}, s{sTT}, 3")
    a(f"s_lshl_b32 s{T1}, s{T1}, 7")
    a(f"s_add_u32 s{T0}, s{T0}, s{T1}")
    a(f"s_add_u32 s{sB}, s{T0}, {WS_ST}")
    a(f"v_and_b32 v{TM}, 15, v0")
    a(f"v_lshrrev_b32 v{TM+1}, 4, v0")
    a(f"v_lshlrev_b32 v{BA+3}, 11, v{TM+1}")
    a(f"v_lshl_add_u32 v{BA+3}, v{TM}, 3, v{BA+3}")
    a(f"v_lshlrev_b32 v{BA+4}, 4, v{TM+1}")
    a(f"v_add_u32 v{BA+4}, {CS_LDS}, v{BA+4}")
    a(f"s_mul_i32 s{T3}, s{sRB}, {16*FSP}")
    a(f"s_add_u32 s{T3}, s{T3}, {FL_3}")
    fpoll(k, 16)
    if not k.o.get("w0b", "1") == "1":
        a(f"s_cmp_lg_u32 s{S_W}, 0")
        a("s_cbranch_scc1 L_p4_w0")
        rest_writes()
        a.label("L_p4_w0")
    a("s_waitcnt lgkmcnt(0)")
    a("s_barrier")
    k.stamp(15)
    vq = VQ(a)
    aop = [a_op(k, vq, j, j, sA, False) for j in range(20)]
    D = int(k.o.get("d4", 4))
    coop_touch(k, vq, sA, sF, 16, 20)
    for j in range(D): aop[j]()
    def st_op(i):
        def f():
            a(f"buffer_load_dwordx2 {vr(ST+2*i,2)}, v{BA+3}, {WS}, s{sB} offen offset:{512*i} sc1")
            vq.add("S")
        return f
    extra = {j: [aop[j + D]] for j in range(20 - D)}
    rest = list(range(7 + NB4, 18)) + [4, 5, 6]
    NE4 = int(k.o.get("ne4", 3))
    late4, rest = rest[len(rest) - NE4:], rest[:len(rest) - NE4]
    for n, i in enumerate(rest): extra.setdefault(1 + (n * 19) // len(rest), []).append(lambda i=i: w2_load(k, vq, "W", i, 0))
    for i in range(4): extra.setdefault(6 + i, []).insert(0, st_op(i))
    def stats_a():
        vq.wait("S")
        a(f"v_add_f32 v{ST}, v{ST}, v{ST+2}")
        a(f"v_add_f32 v{ST+1}, v{ST+1}, v{ST+3}")
        a(f"v_add_f32 v{ST+4}, v{ST+4}, v{ST+6}")
        a(f"v_add_f32 v{ST+5}, v{ST+5}, v{ST+7}")
        a(f"v_add_f32 v{ST}, v{ST}, v{ST+4}")
        a(f"v_add_f32 v{ST+1}, v{ST+1}, v{ST+5}")
    def stats_sw(sw):
        def f():
            a(f"v_mov_b32 v{ST+2}, v{ST}")
            a(f"v_mov_b32 v{ST+3}, v{ST+1}")
            a("s_nop 0")
            a(f"v_permlane{sw}_swap_b32 v{ST}, v{ST+2}")
            a(f"v_permlane{sw}_swap_b32 v{ST+1}, v{ST+3}")
            a("s_nop 0")
            a(f"v_add_f32 v{ST}, v{ST}, v{ST+2}")
            a(f"v_add_f32 v{ST+1}, v{ST+1}, v{ST+3}")
        return f
    def stats_b():
        a(f"v_mul_f32 v{ST}, 0x{f2u(1.0/640):08x}, v{ST}")
        a(f"v_mul_f32 v{ST+2}, v{ST}, v{ST}")
        a(f"v_mov_b32 v{ST+3}, 0x{f2u(1.0/640):08x}")
        a(f"v_fma_f32 v{ST+2}, v{ST+1}, v{ST+3}, -v{ST+2}")
        a(f"v_max_f32 v{ST+2}, 0, v{ST+2}")
        a(f"v_add_f32 v{ST+2}, 0x{f2u(1e-5):08x}, v{ST+2}")
        a(f"v_rsq_f32 v{ST+1}, v{ST+2}")
        a(f"v_mov_b32 v{ST+2}, 0x{f2u(-math.log2(math.e)):08x}")
        a(f"s_mul_i32 s76, s{sTT}, {54*1024}")
        a(f"v_mul_f32 v{ST+1}, v{ST+1}, v{ST+2}")
        a(f"s_add_u32 s76, s76, {WS_H1}")
        a(f"v_mul_f32 v{ST}, v{ST}, v{ST+1}")
        a(f"s_lshr_b32 s{T1}, s{sF}, 3")
        a(f"s_add_u32 s{T1}, s{T1}, s{sF}")
        a(f"s_mul_i32 s{T1}, s{T1}, 3072")
        a(f"s_add_u32 s77, s{T1}, s76")
    def stats_c():
        a(f"s_lshr_b32 s{T2}, s{sF}, 1")
        a(f"s_cmp_ge_u32 s{sF}, 6")
        a(f"s_cselect_b32 s{T1}, 48, 24")
        a(f"s_add_u32 s{T2}, s{T2}, s{T1}")
        a(f"s_lshl_b32 s{T2}, s{T2}, 10")
        a(f"s_and_b32 s{T1}, s{sF}, 1")
        a(f"s_lshl_b32 s{T1}, s{T1}, 9")
        a(f"s_add_u32 s{T2}, s{T2}, s{T1}")
        a(f"s_add_u32 s76, s76, s{T2}")
        a(f"s_lshl_b32 s{T1}, s{sRB}, 4")
        a(f"s_add_u32 s{T1}, s{T1}, s{sF}")
        a(f"s_mul_i32 s{T3}, s{T1}, {FSP}")
        a(f"s_add_u32 s{T3}, s{T3}, {FL_4}")
    for j, f in ((14, stats_a), (15, stats_sw(16)), (16, stats_sw(32)), (17, stats_b), (18, stats_c)): extra.setdefault(j, []).append(f)
    def addr(j, t): return BA + j // 9, (j % 9) * 7168 + t * 1024
    mm_steps(k, vq, 20, 7, addr, extra)
    k.stamp(16)
    CS = WB + 56
    for t in range(7): a(f"ds_read_b128 {vr(CS+4*t,4)}, v{BA+4} offset:{64*t}")
    for i in late4: w2_load(k, None, None, i, 0)
    a(f"s_cmp_lt_u32 s{S_W}, 4")
    a("s_cbranch_scc1 L_p4_nb")
    a("s_waitcnt lgkmcnt(0)")
    a("s_barrier")
    a.label("L_p4_nb")
    a("s_waitcnt lgkmcnt(0)")
    E = WB; OUT = AF
    def silu(tiles):
        rs = [4 * t + r for t in tiles for r in range(4)]
        for r in rs: a(f"v_mul_f32 v{ACC+r}, v{ST+1}, v{ACC+r}")
        for r in rs: a(f"v_fma_f32 v{ACC+r}, -v{ST}, v{CS+r}, v{ACC+r}")
        for r in rs: a(f"v_exp_f32 v{E+r}, v{ACC+r}")
        for r in rs: a(f"v_fma_f32 v{E+r}, v{E+r}, v{ST+2}, v{ST+2}")
        for r in rs: a(f"v_rcp_f32 v{E+r}, v{E+r}")
        for r in rs: a(f"v_mul_f32 v{ACC+r}, v{ACC+r}, v{E+r}")
        for r in rs[::2]: a(f"v_cvt_pk_bf16_f32 v{OUT+r//2}, v{ACC+r}, v{ACC+r+1}")
    a(f"s_cmp_ge_u32 s{sF}, 12")
    a("s_cbranch_scc1 L_p4_no6")
    silu((6,))
    odd_tile_store(k, OUT + 12, OUT + 16, 76)
    a.label("L_p4_no6")
    PB = int(k.o.get("pb4", 3))
    for p in range(3):
        if p == PB:
            a(f"s_cmp_ge_u32 s{S_W}, 4")
            a("s_cbranch_scc1 L_p4_nb2")
            a("s_barrier")
            a.label("L_p4_nb2")
        silu((2 * p, 2 * p + 1))
        a(f"buffer_store_dwordx4 {vr(OUT+4*p,4)}, v{DLIN}, {WS}, s77 offen offset:{1024*p} sc1")
    order = [x for q in range(9) for x in (q, 9 + q)]
    NB5 = 7
    def w2_swap():
        for h in range(2): dma_ops(k, None, None, 135 * h + 72, 135 * h + 80, sW2, sW10, HALF * h + 72 * 1024)[0]()
        for n in range(18):
            w2_write(k, None, n)
            if 4 <= n < 4 + NB5:
                a("s_waitcnt lgkmcnt(4)")
                w2_load(k, None, None, n - 4, 1)
    a(f"s_cmp_ge_u32 s{S_W}, 4")
    a("s_cbranch_scc1 L_p4_y")
    if PB == 3: a("s_barrier")
    a("s_waitcnt vmcnt(3)")
    w2_swap()
    a(f"s_waitcnt vmcnt({NB5 + 2})")
    a("s_barrier")
    k.stamp(17)
    k.flag_store(T3, TM)
    a("s_branch L_p4_e")
    a.label("L_p4_y")
    NY = int(k.o.get("ny", 18))
    a("s_waitcnt vmcnt(3)")
    for n in range(NY): w2_write(k, None, n)
    a("s_waitcnt vmcnt(0)")
    a("s_barrier")
    k.stamp(17)
    for n in range(NY, 18): w2_write(k, None, n)
    for h in range(2): dma_ops(k, None, None, 135 * h + 72, 135 * h + 80, sW2, sW10, HALF * h + 72 * 1024)[0]()
    a(f"s_waitcnt lgkmcnt({min(15, 18 - NB5)})")
    for n in range(NB5): w2_load(k, None, None, n, 1)
    a.label("L_p4_e")

def phase5(k):
    a = k.a
    a.c("================ phase 5: FFN down-projection + residual")
    a(f"s_mul_i32 s{T0}, s{sKH}, {HALF}")
    tile_addrs(k, T0, BA)
    for i in range(3): a(f"v_add_u32 v{BA+3+i}, {12*5120}, v{BA+i}")
    a(f"v_and_b32 v{TM+4}, 15, v0")
    a(f"s_lshl_b32 s{T0}, s{sRG}, 4")
    a(f"v_add_u32 v{TM+4}, s{T0}, v{TM+4}")
    a(f"v_mul_u32_u24 v{TM+4}, {OUT_PITCH}, v{TM+4}")
    a(f"v_lshrrev_b32 v{TM+5}, 4, v0")
    a(f"v_lshl_add_u32 v{TM+4}, v{TM+5}, 4, v{TM+4}")
    a(f"s_mul_i32 s{T0}, s{sKH}, {OUT_HALF}")
    a(f"s_add_u32 s{T0}, s{T0}, {OUT_LDS}")
    a(f"v_add_u32 v{TL}, s{T0}, v{TM+4}")
    a(f"s_lshl_b32 s{T0}, s{sKH}, 7")
    a(f"v_add_u32 v{XW}, s{T0}, v{TL}")
    a(f"v_subrev_u32 v{XRD}, s{T0}, v{TL}")
    for n in range(2):
        a(f"s_mul_i32 s{T0}, s{S_W}, 0x50")
        a(f"s_add_u32 s{T0}, s{T0}, {64*n}")
        a(f"v_add_u32 v{TM+2}, s{T0}, v0")
        a(f"v_mul_u32_u24 v{TM+3}, 6554, v{TM+2}")
        a(f"v_lshrrev_b32 v{TM+3}, 16, v{TM+3}")
        a(f"v_mul_u32_u24 v{TM+4+2*n}, 10, v{TM+3}")
        a(f"v_sub_u32 v{TM+2}, v{TM+2}, v{TM+4+2*n}")
        a(f"v_mul_u32_u24 v{TM+4+2*n}, {OUT_PITCH}, v{TM+3}")
        a(f"v_lshl_add_u32 v{TM+4+2*n}, v{TM+2}, 5, v{TM+4+2*n}")
        a(f"v_add_u32 v{TM+4+2*n}, {OUT_LDS}, v{TM+4+2*n}")
        a(f"v_mul_u32_u24 v{TM+5+2*n}, 1280, v{TM+3}")
        a(f"v_lshl_add_u32 v{TM+5+2*n}, v{TM+2}, 4, v{TM+5+2*n}")
    a(f"s_mul_i32 s{sA}, s{sRB64}, {64*1280}")
    a(f"s_mul_i32 s{T0}, s{sN8}, 160")
    a(f"s_add_u32 s{sA}, s{sA}, s{T0}")
    a(f"s_mul_i32 s{sB}, s{sTT3}, {54*1024}")
    a(f"s_mul_i32 s{T1}, s{sKH}, {27*1024}")
    a(f"s_add_u32 s{sB}, s{sB}, s{T1}")
    a(f"s_add_u32 s{sB}, s{sB}, {WS_H1}")
    if k.o.get("p5hot"): a(f"s_mov_b32 s{sB}, {WS_W2}")
    if k.o.get("p5oob"): a(f"s_mov_b32 s{sB}, 0x7f000000")
    a(f"s_lshr_b32 s{T3}, s{sRB64}, 1")
    a(f"s_mul_i32 s{T3}, s{T3}, {16*FSP}")
    a(f"s_add_u32 s{T3}, s{T3}, {FL_4}")
    fpoll(k, 16)
    a("s_waitcnt lgkmcnt(0)")
    a("s_barrier")
    k.stamp(18)
    vq = VQ(a)
    aop = [a_op(k, vq, j, j, sB, False) for j in range(27)]
    D = int(k.o.get("d5", 6))
    coop_touch(k, vq, sB, sN8, 8, 27)
    for j in range(D): aop[j]()
    extra = {j: [aop[j + D]] for j in range(27 - D)}
    bars = (5, 10, 14, 19)
    at = (5, 6, 7, 10, 11, 12, 14)
    dm = dma_ops(k, vq, None, 135 + 5 * NS5, 135 + 5 * NS5 + 56, sW2, sW10, HALF)
    for i in range(7):
        def both(i=i):
            if not k.o.get("p5nod"):
                dm[i](); vq.q[-1] = ("R", i)
            if not k.o.get("p5now"): stage_write(k, k.lq, i, 8192 * i)
        extra.setdefault(at[i], []).append(both)
    cover = {14: 3, 19: 6}
    slot = lambda j: j if j < NS5 else j - NS5
    def addr(j, t):
        s = slot(j)
        return BA + (3 if s >= 12 else 0) + (0, 0, 1, 1, 2)[t], (s % 12) * 5120 + t * 1024
    def pre(j):
        if j - 2 in bars:
            k.lq.wait("w")
            if j - 2 in cover: vq.wait(("R", cover[j - 2]))
            if not k.o.get("p5nob"): a("s_barrier")
    mm_steps(k, vq, 27, 5, addr, extra, pre)
    k.stamp(19)
    a("s_nop 1")
    for i, t in enumerate((0, 1, 4)):
        if i == 2:
            a(f"s_cmp_lg_u32 s{sKH}, 0")
            a("s_cbranch_scc1 L_p5_no4")
        for h in range(2):
            a(f"v_lshlrev_b32 v{TM+2}, 16, v{HR+2*i+h}")
            a(f"v_and_b32 v{TM+3}, 0xffff0000, v{HR+2*i+h}")
            a(f"v_add_f32 v{ACC+4*t+2*h}, v{ACC+4*t+2*h}, v{TM+2}")
            a(f"v_add_f32 v{ACC+4*t+2*h+1}, v{ACC+4*t+2*h+1}, v{TM+3}")
        if i < 2: a(f"ds_write_b128 v{XW}, {vr(ACC+4*t,4)} offset:{64*t}")
        if i == 1:
            a(f"ds_write_b128 v{XRD}, {vr(ACC+8,4)} offset:128")
            a(f"ds_write_b128 v{XRD}, {vr(ACC+12,4)} offset:192")
    a.label("L_p5_no4")
    a(f"ds_write_b128 v{TL}, {vr(ACC+16,4)} offset:256")
    a("s_waitcnt lgkmcnt(0)")
    a("s_barrier")
    OUTS = f"s[{SRD_OUT}:{SRD_OUT+3}]"
    def rd(ra, base):
        for h in range(2):
            for q in range(2): a(f"ds_read_b128 {vr(base+8*h+4*q,4)}, v{ra} offset:{16*q}")
            if h == 0: a(f"v_add_u32 v{ra}, {OUT_HALF}, v{ra}")
    def fin(ga, base):
        for r in range(8): a(f"v_add_f32 v{base+r}, v{base+r}, v{base+8+r}")
        for r in range(4): a(f"v_cvt_pk_bf16_f32 v{base+r}, v{base+2*r}, v{base+2*r+1}")
        a(f"buffer_store_dwordx4 {vr(base,4)}, v{ga}, {OUTS}, s{sA} offen {k.o.get('ost', '')}")
    rd(TM + 4, WB)
    a("s_mov_b64 exec, 0xffff")
    rd(TM + 6, WB + 16)
    a("s_mov_b64 exec, -1")
    a("s_waitcnt lgkmcnt(4)")
    fin(TM + 5, WB)
    a("s_mov_b64 exec, 0xffff")
    a("s_waitcnt lgkmcnt(0)")
    fin(TM + 7, WB + 16)
    a("s_mov_b64 exec, -1")
```

```python
import math
from asmlib import vr, sr, f2u
from tables import *
from gen import *

Qm, Qr, NEG, S0, S1, P, O, Km, Kr, V = 4, 8, 12, 28, 60, 92, 108, 124, 132, 136
AK, AKR, AV, DKM, DLIN = 152, 153, 154, 197, 196
XR = 198
PL = 184
SLOT = 22528
WO_LDS = 3 * SLOT
sH, sQB, sST, sK0, sK1, sK2, sS1, sDS, sKD, sVM, sRET, sWOo, sWOl = 64, 65, 66, 67, 68, 69, 70, 71, 72, 74, 76, 78, 79
sW10, sL1, sD1, sL2, sSD, sD2 = 73, 82, 83, 93, 94, 78
sTA, sW1, sSM = 95, 96, 98
WS = f"s[{SRD_WS}:{SRD_WS+3}]"
M32 = "v_mfma_f32_32x32x16_bf16"
M2B = "v_mfma_f32_32x32x4_2b_bf16"
M16 = "v_mfma_f32_16x16x32_bf16"

def kv_piece(k, i):
    a = k.a
    a(f"s_add_u32 m0, s{(sW10, sL1, sL2)[i]}, s{sDS}")
    a(f"s_add_u32 s{sK0+i}, s{sK0+i}, {('4096', f's{sS1}', '10240')[i]}")
    k.dma((DKM, DLIN, DLIN)[i], SRD_WS, f"s{sK0+i}", "sc1")

def wo_piece(k):
    a = k.a
    a(f"s_min_u32 m0, s{sWOl}, {WO_LDS + 90*1024}")
    a(f"s_add_u32 s{sWOl}, s{sWOl}, 8192")
    k.dma(DLIN, SRD_WQ, "m0", "sc1")

def touch_piece(k):
    a = k.a
    a(f"buffer_load_dwordx4 v[160:163], v{DLIN}, {WS}, s{sTA} offen sc1")
    a(f"s_add_u32 s{sTA}, s{sTA}, 1024")

def SG(i): return 172 + 4 * i if i < 6 else 204 + 4 * (i - 6)

def stage_load(k, vq, tag, i, s_src, off, valid=8):
    a = k.a
    a(f"s_add_u32 s{T0}, s{s_src}, {off}")
    if valid < 8:
        a(f"s_cmp_ge_u32 s{S_W}, {valid}")
        a(f"s_cselect_b32 s{T0}, 0x7f000000, s{T0}")
    a(f"buffer_load_dwordx4 {vr(SG(i),4)}, v{DLIN}, {WS}, s{T0} offen sc1")
    if vq is not None: vq.add(tag)

def qkm(a, t, d, c): a(f"{M32} {vr(d+16*t,16)}, {vr(Km+4*t,4)}, {vr(Qm,4)}, {c}")
def qkr(a, d): a(f"{M2B} {vr(d,32)}, {vr(Kr,2)}, {vr(Qr,2)}, {vr(d,32)}")
def pv(a, j): a(f"{M32} {vr(O,16)}, {vr(V+4*j,4)}, {vr(P+4*j,4)}, {vr(O,16)}")

OA = 165
PGA, PGV, PGR, PGD = 155, 156, 159, 164
PG_LDS = 157 * 1024
SCHED = {
 "a": "q0 e4 m p3 v e4 m q1 k0 c4 m e4 k1 m p0 e4 c2 m qr c2 kr e4 m e4 c2 m p1 c2 e2 m e3 m p2 e3 m c4",
 "b": "q0 e5 m p3 v e3 c2 m q1 k0 c2 e3 m k1 e2 m p0 e3 c2 m qr kr c2 e4 m e4 c2 m p1 c2 e3 m e2 m p2 e3 m c4",
 "c": "p3 v e4 m q0 e4 m c2 q1 k0 c2 m e4 k1 m p0 e4 c2 m qr c2 kr e4 m e4 c2 m p1 c2 e2 m e3 m p2 e3 m c4",
 "d": "q0 e4 m q1 k0 e4 m p3 v c4 k1 m e5 m qr kr e3 c2 m e4 c2 m p0 e4 m c2 p1 c2 e2 m e3 m p2 e3 m c4",
 "e": "q0 e6 m p3 v e2 c3 m q1 k0 c1 e4 m k1 m p0 e4 c2 m qr c2 kr e4 m e4 c2 m p1 c2 e3 m e3 m p2 e2 m c4",
 "f": "q0 e4 m p3 v e4 m q1 k0 c4 m e4 k1 m p0 e4 c4 m qr kr e4 m e4 m p1 c4 e2 m e2 m p2 e4 m c4",
}
def att_stage(k, young):
    a = k.a
    o = k.o
    soft = o.get("soft", "1") == "1"
    tag = "Y" if young else "O"
    barit, barpos = [int(x) for x in o.get("abar" + tag, "0.6" if young else "1.2").split(".")]
    pA = int(o.get("pA" + tag, o.get("pA", 4))); pC = int(o.get("pC" + tag, o.get("pC", 20)))
    plos = [int(c, 16) for c in (o.get("plo", "7") * 4)[:4]]; ntouch = int(o.get("ntouch", 2))
    lq = LQ(a)
    def exps(b, n0, n):
        for i in range(n0, n0 + n): a(f"v_exp_f32 v{b+i}, v{b+i}")
    def cvts(b, n0, n):
        for i in range(n0, n0 + n): a(f"v_cvt_pk_bf16_f32 v{P+i}, v{b+2*i}, v{b+2*i+1}")
    def rdV(js, it):
        a(f"s_mov_b64 exec, s[{sVM}:{sVM+1}]")
        for j in js:
            a(f"ds_read_b128 {vr(V+4*j,4)}, v{AV} offset:{12288+(4*it+j)*640}"); lq.add(("V", j))
        a("s_mov_b64 exec, -1")
    for it in range(4):
        cur, nx = (S0, S1) if it % 2 == 0 else (S1, S0)
        i2 = (it + 2) % 4
        npos = [0]
        def mark():
            p = it * 11 + npos[0]
            if soft:
                if p == pA:
                    a(f"v_add_u32 v{PGV}, 1, v{PGV}")
                    a(f"s_waitcnt vmcnt({3 + ntouch})")
                    a(f"ds_write_b32 v{PGA}, v{PGV}"); lq.add("a")
                if p == pC - int(o.get("pR", 2)):
                    a(f"ds_read_b32 v{PGD}, v{PGR}"); lq.add("g")
                if p == pC:
                    lq.wait("g")
                    Lw, Lb = a.newlabel("late"), a.newlabel("go")
                    a(f"v_cmp_lt_u32 vcc, v{PGD}, v{PGV}")
                    a(f"s_cbranch_vccnz {Lw}")
                    a.label(Lb)
                    k._late.append((Lw, Lb))
                    if o.get("its") == "2": k.stamp_dyn(54, sST)
                g = p - pC; d0 = 1; dd = int(o.get("dd", 2))
            else:
                g = p - (barit * 11 + barpos)
                if g == 0:
                    a("s_waitcnt vmcnt(0)")
                    a("s_barrier")
                    if o.get("its") == "2": k.stamp_dyn(54, sST)
                d0 = int(o.get("d" + tag, 5 if young else 1)); dd = int(o.get("dd", 3))
            if g == d0 - 1:
                a(f"s_call_b64 s[{sRET}:{sRET+1}], L_att_side")
            if g in [d0 + (5 + 2 * i) * dd for i in range(ntouch)]: touch_piece(k); k._n += 1
            for i in range(3):
                if g == d0 + (1 + i) * dd: kv_piece(k, i); k._n += 1
            for i in range(3):
                if g == d0 + (4 + 2 * i) * dd: wo_piece(k); k._n += 1
            if young and npos[0] == 0: a("s_setprio 1")
            if young and npos[0] == plos[it]:
                if it >= int(o.get("lastprio", 9)):
                    Ls = a.newlabel("kp")
                    a(f"s_cmp_eq_u32 s{sST}, 7")
                    a(f"s_cbranch_scc1 {Ls}")
                    a("s_setprio 0")
                    a.label(Ls)
                else: a("s_setprio 0")
            npos[0] += 1
        if it == 2:
            a(f"v_add_u32 v{AK}, s{sKD}, v{AK}")
            a(f"v_add_u32 v{AKR}, s{sKD}, v{AKR}")
        ne = [0]; nc = [0]
        def E(n): exps(cur, ne[0], n); ne[0] += n
        def C(n): cvts(cur, nc[0], n); nc[0] += n
        def rk(t): a(f"ds_read_b128 {vr(Km+4*t,4)}, v{AK} offset:{2048*i2+1024*t}"); lq.add("K")
        def rkr(): a(f"ds_read_b64 {vr(Kr,2)}, v{AKR} offset:{8192+1024*i2}"); lq.add("K")
        def PV(j):
            if j < 3: lq.wait(("V", max(j, int(o.get("vw", 3)))))
            pv(a, j)
        ops = dict(q0=lambda: qkm(a, 0, nx, vr(NEG, 16)), q1=lambda: qkm(a, 1, nx, vr(NEG, 16)), qr=lambda: qkr(a, nx),
                   p0=lambda: PV(0), p1=lambda: PV(1), p2=lambda: PV(2), p3=lambda: PV(3), v=lambda: rdV([0, 1, 2, 3], it),
                   k0=lambda: rk(0), k1=lambda: rk(1), kr=rkr, m=mark)
        sched = SCHED[o.get("sched", "a")].split()
        mark()
        a("s_waitcnt lgkmcnt(0)"); lq.q = []
        for x in sched:
            if x[0] == "e": E(int(x[1:]))
            elif x[0] == "c": C(int(x[1:]))
            else: ops[x]()
        assert ne[0] == 32 and nc[0] == 16 and npos[0] == 11
        if it == 3:
            a(f"v_add_u32 v{AV}, s{sKD}, v{AV}")
            a(f"s_add_u32 s{sST}, s{sST}, 1")
            a(f"s_add_u32 s{sDS}, s{sDS}, s{sD2}")
            a(f"s_mov_b32 s{T0}, s{sKD}")
            a(f"s_mov_b32 s{sKD}, s{sD1}")
            a(f"s_mov_b32 s{sD1}, s{sD2}")
            a(f"s_mov_b32 s{sD2}, s{T0}")

def att_late(k):
    a = k.a
    for Lw, Lb in k._late:
        a.label(Lw)
        a(f"s_mov_b32 s{S_SPIN}, 0")
        L = a.newlabel("lsp")
        a.label(L)
        a(f"ds_read_b32 v{PGD}, v{PGR}")
        a(f"s_add_u32 s{S_SPIN}, s{S_SPIN}, 1")
        a(f"s_cmp_ge_u32 s{S_SPIN}, {SPIN_MAX * 16}")
        a(f"s_cbranch_scc1 {Lb}")
        a("s_waitcnt lgkmcnt(0)")
        a(f"v_cmp_lt_u32 vcc, v{PGD}, v{PGV}")
        a(f"s_cbranch_vccnz {L}")
        a(f"s_branch {Lb}")

def att_side(k):
    a = k.a
    a.label("L_att_side")
    a(f"s_bitcmp1_b32 s{sST}, 2")
    a("s_cbranch_scc1 L_as_hi")
    a(f"s_cmp_lt_u32 s{sST}, 1")
    a("s_cbranch_scc1 L_as_0")
    a(f"s_cmp_lt_u32 s{sST}, 2")
    a("s_cbranch_scc1 L_as_1")
    a(f"s_cmp_lt_u32 s{sST}, 3")
    a("s_cbranch_scc1 L_as_2")
    a(f"s_mov_b32 s{T0}, {FL_R}")
    a(f"buffer_load_dwordx4 v[{PL}:{PL+3}], v{DLIN}, {WS}, s{T0} offen sc1")
    a(f"buffer_load_dwordx4 v[{PL+4}:{PL+7}], v{DLIN}, {WS}, s{T0} offen offset:1024 sc1")
    a(f"s_setpc_b64 s[{sRET}:{sRET+1}]")
    a.label("L_as_2")
    a(f"s_lshl_b32 s{T0}, s{S_G}, 3")
    a(f"s_add_u32 s{T0}, s{T0}, {FL_R}")
    k.flag_store(T0, PL)
    a(f"s_setpc_b64 s[{sRET}:{sRET+1}]")
    a.label("L_as_0")
    k.relayout_issue()
    a(f"s_setpc_b64 s[{sRET}:{sRET+1}]")
    a.label("L_as_1")
    k.relayout_finish()
    a("s_nop 1")
    a(f"s_setpc_b64 s[{sRET}:{sRET+1}]")
    a.label("L_as_hi")
    a(f"s_cmp_eq_u32 s{sST}, 7")
    a("s_cbranch_scc1 L_as_7")
    a(f"s_cmp_eq_u32 s{sST}, 6")
    a("s_cbranch_scc1 L_as_6")
    a(f"s_cmp_eq_u32 s{sST}, 5")
    a("s_cbranch_scc1 L_as_5")
    N = f"s[{S_NONCE}:{S_NONCE+1}]"
    a(f"v_cmp_ne_u64 vcc, {N}, v[{PL}:{PL+1}]")
    a(f"v_cmp_ne_u64 s[{S_M1}:{S_M1+1}], {N}, v[{PL+2}:{PL+3}]")
    a(f"s_and_b32 s{T1}, s{S_J}, 7")
    a(f"s_or_b64 s[{T4}:{T5}], vcc, s[{S_M1}:{S_M1+1}]")
    a(f"v_cmp_ne_u64 vcc, {N}, v[{PL+4}:{PL+5}]")
    a(f"v_cmp_ne_u64 s[{S_M1}:{S_M1+1}], {N}, v[{PL+6}:{PL+7}]")
    a(f"s_add_u32 s{sWOl}, s{sW10}, {WO_LDS}")
    a(f"s_lshl_b32 s{T2}, s{S_J}, 3")
    a(f"s_add_u32 s{T2}, s{T2}, s{S_W}")
    a(f"s_mul_i32 s{sTA}, s{T2}, 8640")
    a(f"s_add_u32 s{sTA}, s{sTA}, {WS_W2}")
    a(f"s_and_b32 s{T2}, s{S_J}, 15")
    a(f"s_mul_i32 s{sW1}, s{T2}, {20*7168}")
    a(f"s_add_u32 s{sW1}, s{sW1}, s{sW10}")
    a(f"s_add_u32 s{sW1}, s{sW1}, {WS_W1}")
    a(f"s_or_b64 s[{T4}:{T5}], s[{T4}:{T5}], vcc")
    a(f"s_or_b64 s[{T4}:{T5}], s[{T4}:{T5}], s[{S_M1}:{S_M1+1}]")
    a("s_cbranch_scc0 L_as_ret")
    a(f"s_mov_b32 s{T3}, {FL_R}")
    k.diag("fr")
    k.poll(256, T3, 8, PL, only_wave0=False)
    a.label("L_as_ret")
    grp = ((0, 4), (4, 9), (9, 14), (14, 18))
    for st in range(4, 8):
        if st > 4: a.label(f"L_as_{st}")
        if st == 6:
            for r in (sK0, sK1, sK2): a(f"s_mov_b32 s{r}, 0x7f000000")
        for i in range(*grp[st - 4]): stage_load(k, None, None, i, sW1, 8192 * i, 4 if i == 17 else 8)
        a(f"s_setpc_b64 s[{sRET}:{sRET+1}]")

def resid_x(k):
    a = k.a
    a(f"s_lshr_b32 s{T0}, s{S_J}, 3")
    a(f"s_lshl_b32 s{T1}, s{S_C}, 2")
    a(f"s_add_u32 s{T0}, s{T0}, s{T1}")
    a(f"s_lshl_b32 s{T0}, s{T0}, 2")
    a(f"s_and_b32 s{T1}, s{S_W}, 3")
    a(f"s_add_u32 s{T0}, s{T0}, s{T1}")
    a(f"s_mul_i32 s{T0}, s{T0}, {16*1280}")
    a(f"s_and_b32 s{T1}, s{S_J}, 7")
    a(f"s_mul_i32 s{T1}, s{T1}, 160")
    a(f"s_add_u32 s{T0}, s{T0}, s{T1}")
    a(f"s_lshr_b32 s{T1}, s{S_W}, 2")
    a(f"s_lshl_b32 s{T1}, s{T1}, 6")
    a(f"s_add_u32 s{T1}, s{T1}, s{T0}")
    a(f"v_lshrrev_b32 v{TM}, 2, v0")
    a(f"v_mul_u32_u24 v{TM}, 1280, v{TM}")
    a(f"v_and_b32 v{TM+1}, 3, v0")
    a(f"v_lshl_add_u32 v{TM}, v{TM+1}, 3, v{TM}")
    a(f"buffer_load_dwordx2 v[{XR}:{XR+1}], v{TM}, s[{SRD_X}:{SRD_X+3}], s{T1} offen")
    a(f"buffer_load_dwordx2 v[{XR+2}:{XR+3}], v{TM}, s[{SRD_X}:{SRD_X+3}], s{T1} offen offset:32")
    a(f"buffer_load_dwordx2 v[{XR+4}:{XR+5}], v{TM}, s[{SRD_X}:{SRD_X+3}], s{T0} offen offset:128")

def rowmax(a, b, n, dst, t):
    a(f"v_max3_f32 v{dst}, v{b}, v{b+1}, v{dst}")
    for i in range(2, n, 2): a(f"v_max3_f32 v{dst}, v{b+i}, v{b+i+1}, v{dst}")

def set_neg(a, m, t):
    a(f"v_mov_b32 v{t}, v{m}")
    a("s_nop 1")
    a(f"v_permlane32_swap_b32 v{m}, v{t}")
    a("s_nop 0")
    a(f"v_max_f32 v{m}, v{m}, v{t}")
    for r in range(16): a(f"v_sub_f32 v{NEG+r}, 0, v{m}")

def att_fallback(k):
    a = k.a
    FT = S1
    a.label("L_att_fb")
    sI, sA, sB, sC = T0, T1, T2, T3
    def init():
        a(f"s_lshl_b32 s{sA}, s{sH}, 16")
        a(f"s_add_u32 s{sA}, s{sA}, {WS_K}")
        a(f"s_lshr_b32 s{sB}, s{sH}, 1")
        a(f"s_lshl_b32 s{sB}, s{sB}, 15")
        a(f"s_add_u32 s{sB}, s{sB}, {WS_K + 64*32768}")
        a(f"s_mul_i32 s{sC}, s{sH}, 81920")
        a(f"s_add_u32 s{sC}, s{sC}, {WS_V}")
        a(f"s_mov_b32 s{sI}, 0")
    def ldk():
        a(f"buffer_load_dwordx4 {vr(Km,4)}, v{DKM}, {WS}, s{sA} offen sc1")
        a(f"buffer_load_dwordx4 {vr(Km+4,4)}, v{DKM}, {WS}, s{sA} offen offset:512 sc1")
        a(f"buffer_load_dwordx2 {vr(Kr,2)}, v{FT+1}, {WS}, s{sB} offen sc1")
    def step():
        a(f"s_add_u32 s{sA}, s{sA}, 1024")
        a(f"s_add_u32 s{sB}, s{sB}, 1024")
        a(f"s_add_u32 s{sC}, s{sC}, 2560")
        a(f"s_add_u32 s{sI}, s{sI}, 1")
        a(f"s_cmp_lt_u32 s{sI}, 32")
    a(f"s_and_b32 s{T0}, s{sH}, 1")
    a(f"s_lshl_b32 s{T0}, s{T0}, 3")
    a(f"v_add_u32 v{FT+1}, s{T0}, v{DLIN}")
    a(f"v_lshrrev_b32 v{FT+2}, 5, v0")
    a(f"v_mul_u32_u24 v{FT+2}, 20, v{FT+2}")
    a(f"v_and_b32 v{FT+3}, 31, v0")
    a(f"v_add_lshl_u32 v{FT+2}, v{FT+2}, v{FT+3}, 4")
    a(f"v_mov_b32 v{FT}, 0xff800000")
    init()
    a.label("L_fb_max")
    ldk()
    a("s_waitcnt vmcnt(0)")
    qkm(a, 0, S0, "0"); qkm(a, 1, S0, "0")
    a("s_nop 9")
    qkr(a, S0)
    a("s_nop 15"); a("s_nop 3")
    rowmax(a, S0, 32, FT, FT + 4)
    step()
    a("s_cbranch_scc1 L_fb_max")
    set_neg(a, FT, FT + 4)
    for r in range(16): a(f"v_mov_b32 v{O+r}, 0")
    init()
    a.label("L_fb_acc")
    ldk()
    a(f"s_mov_b64 exec, s[{sVM}:{sVM+1}]")
    for j in range(4): a(f"buffer_load_dwordx4 {vr(V+4*j,4)}, v{FT+2}, {WS}, s{sC} offen offset:{640*j} sc1")
    a("s_mov_b64 exec, -1")
    a("s_waitcnt vmcnt(0)")
    qkm(a, 0, S0, vr(NEG, 16)); qkm(a, 1, S0, vr(NEG, 16))
    a("s_nop 9")
    qkr(a, S0)
    a("s_nop 15"); a("s_nop 3")
    for i in range(32): a(f"v_exp_f32 v{S0+i}, v{S0+i}")
    a("s_nop 0")
    for i in range(16): a(f"v_cvt_pk_bf16_f32 v{P+i}, v{S0+2*i}, v{S0+2*i+1}")
    a("s_nop 1")
    for j in range(4): pv(a, j)
    step()
    a("s_cbranch_scc1 L_fb_acc")
    a(f"s_mov_b32 s{T3}, 1")
    a("s_nop 11")
    a("s_branch L_att_norm")

def phase2(k):
    a = k.a
    a.c("================ phase 2: attention")
    a(f"s_lshl_b32 s{sH}, s{S_C}, 2")
    a(f"s_lshr_b32 s{T0}, s{S_J}, 3")
    a(f"s_add_u32 s{sH}, s{sH}, s{T0}")
    a(f"s_and_b32 s{sQB}, s{S_J}, 7")
    a(f"v_lshlrev_b32 v{DLIN}, 4, v0")
    a("v_lshrrev_b32 v1, 5, v0")
    a("v_and_b32 v2, 31, v0")
    a("v_lshlrev_b32 v3, 15, v1")
    a(f"v_lshl_add_u32 v{DKM}, v2, 4, v3")
    a(f"v_mov_b32 v{AK}, v{DLIN}")
    a(f"s_and_b32 s{T0}, s{sH}, 1")
    a(f"s_lshl_b32 s{T0}, s{T0}, 3")
    a(f"v_add_u32 v{AKR}, s{T0}, v{DLIN}")
    a("v_mul_u32_u24 v3, 20, v1")
    a(f"v_add_lshl_u32 v{AV}, v3, v2, 4")
    a(f"v_lshl_add_u32 v10, v2, 4, s{T0}")
    if k.o.get("dry", "0") == "1":
        a(f"s_cmp_lg_u32 s{S_W}, 7")
        a("s_cbranch_scc1 L_nodry")
        a(f"s_mov_b32 s{sW1}, 0x7f000000")
        for st in (3, 5, 6, 7):
            a(f"s_mov_b32 s{sST}, {st}")
            if st == 3: continue
            a(f"s_call_b64 s[{sRET}:{sRET+1}], L_att_side")
        a.label("L_nodry")
    a(f"s_lshl_b32 s{T0}, s{S_W}, 2")
    a(f"s_add_u32 s{T0}, s{T0}, {PG_LDS}")
    a(f"v_mov_b32 v{PGA}, s{T0}")
    a(f"v_mov_b32 v{PGV}, 0")
    a(f"v_and_b32 v{PGR}, 7, v0")
    a(f"v_lshlrev_b32 v{PGR}, 2, v{PGR}")
    a(f"v_add_u32 v{PGR}, {PG_LDS}, v{PGR}")
    a(f"ds_write_b32 v{PGA}, v{PGV}")
    k._late = []; k._n = 0
    a(f"s_mov_b32 s{sVM}, 0x000fffff")
    a(f"s_mov_b32 s{sVM+1}, 0x000fffff")
    a(f"s_lshl_b32 s{sK0}, s{sH}, 16")
    a(f"s_lshl_b32 s{T0}, s{S_W}, 9")
    a(f"s_add_u32 s{sK0}, s{sK0}, s{T0}")
    a(f"s_add_u32 s{sK0}, s{sK0}, {WS_K - 4096}")
    a(f"s_lshl_b32 s{T0}, s{S_W}, 10")
    a(f"s_mul_i32 s{sK2}, s{sH}, 81920")
    a(f"s_add_u32 s{sK2}, s{sK2}, s{T0}")
    a(f"s_add_u32 s{T1}, s{sK2}, {WS_V - 4096 - 10240}")
    a(f"s_cmp_ge_u32 s{S_W}, 6")
    a(f"s_cselect_b32 s{T2}, 2048, 0")
    a(f"s_sub_u32 s{sK2}, s{sK2}, s{T2}")
    a(f"s_add_u32 s{sK2}, s{sK2}, {WS_V + 4096 - 10240}")
    a(f"s_sub_u32 s{sL2}, s{T0}, s{T2}")
    a(f"s_add_u32 s{sL2}, s{sL2}, 16384")
    a(f"s_add_u32 s{sL1}, s{T0}, 8192")
    a(f"s_lshr_b32 s{T2}, s{sH}, 1")
    a(f"s_lshl_b32 s{T2}, s{T2}, 15")
    a(f"s_add_u32 s{sK1}, s{T2}, s{T0}")
    a(f"s_add_u32 s{sK1}, s{sK1}, {WS_K + 64*32768 - 4096}")
    a(f"s_mov_b32 s{sS1}, 10240")
    a(f"s_cmp_lt_u32 s{S_W}, 4")
    a(f"s_cselect_b32 s{sK1}, s{sK1}, s{T1}")
    a(f"s_cselect_b32 s{sS1}, 4096, s{sS1}")
    a(f"s_mov_b32 s{sDS}, 0")
    a(f"s_mov_b32 s{sST}, 0")
    a(f"s_mov_b32 s{sKD}, {SLOT}")
    a(f"s_mov_b32 s{sD1}, {SLOT}")
    a(f"s_mov_b32 s{sD2}, {-2*SLOT & 0xffffffff}")
    a(f"s_mov_b32 s{sW10}, s{T0}")
    a(f"s_mov_b32 s{sWOl}, 0x40000000")
    a(f"s_mov_b32 s{sTA}, 0x7f000000")
    a(f"s_and_b32 s{T1}, s{S_J}, 7")
    a(f"s_mul_i32 s{sSD}, s{T1}, {20*5120}")
    a(f"s_add_u32 s{sSD}, s{sSD}, {WS_WO}")
    a(f"s_sub_u32 s{T1}, s{sSD}, {WO_LDS}")
    a(f"s_add_u32 s{SRD_WQ}, s{SRD_WS}, s{T1}")
    a(f"s_addc_u32 s{SRD_WQ+1}, s{SRD_WS+1}, 0")
    a(f"s_mov_b32 s{SRD_WQ+2}, {WO_LDS + 90*1024}")
    a(f"s_lshl_b32 s{T0}, s{sQB}, 3")
    a(f"s_add_u32 s{T0}, s{T0}, s{S_W}")
    a(f"s_lshl_b32 s{T0}, s{T0}, 9")
    a(f"s_add_u32 s{T2}, s{T2}, s{T0}")
    a(f"s_add_u32 s80, s{T2}, {WS_Q + 64*32768}")
    a(f"s_lshl_b32 s{T3}, s{sH}, 16")
    a(f"s_add_u32 s{T3}, s{T3}, s{T0}")
    a(f"s_add_u32 s81, s{T3}, {WS_Q}")
    a("v_cmp_eq_u32 vcc, 20, v2")
    a("v_mov_b32 v3, 0x3f803f80")
    a("s_nop 0")
    a("v_cndmask_b32 v3, 0, v3, vcc")
    for r in range(16): a(f"v_mov_b32 v{V+r}, v3")
    for r in range(16): a(f"v_mov_b32 v{O+r}, 0")
    for r in range(12, 16): a(f"v_mov_b32 v{P+r}, 0")
    a(f"s_mul_i32 s{T0}, s{sH}, 20")
    a(f"s_add_u32 s{T1}, s{T0}, 19")
    a(f"s_lshr_b32 s{T0}, s{T0}, 7")
    a(f"s_lshr_b32 s{T1}, s{T1}, 7")
    a(f"s_sub_u32 s{T1}, s{T1}, s{T0}")
    a(f"s_lshl_b32 s{T1}, s{T1}, 4")
    a(f"v_and_b32 v{PL+4}, s{T1}, v0")
    a(f"v_and_b32 v{PL+5}, 15, v0")
    a(f"v_add_u32 v{PL+5}, v{PL+5}, v{PL+4}")
    a(f"v_mul_u32_u24 v{PL+6}, 0x50, v1")
    a(f"v_add3_u32 v{PL+5}, v{PL+5}, v{PL+6}, 64")
    a(f"v_add_u32 v{PL+5}, 16, v{PL+5}")
    a(f"v_lshlrev_b32 v{PL+5}, 7, v{PL+5}")
    a(f"s_lshl_b32 s{T2}, s{sQB}, 1")
    a(f"v_and_b32 v{PL+6}, 1, v0")
    a(f"v_add3_u32 v{PL+4}, v{PL+4}, v{PL+6}, s{T2}")
    a(f"v_lshlrev_b32 v{PL+4}, 7, v{PL+4}")
    a(f"s_lshl_b32 s{T0}, s{T0}, 11")
    a(f"s_add_u32 s{T3}, s{T0}, {FL_1}")
    def ldq():
        a(f"buffer_load_dwordx4 {vr(Qm,4)}, v{DKM}, {WS}, s81 offen sc1")
        a(f"buffer_load_dwordx2 {vr(Qr,2)}, v10, {WS}, s80 offen sc1")
    early_q = k.o.get("earlyq", "1") == "1"
    if early_q:
        def own_q():
            a(f"s_lshr_b32 s{T0}, s{S_W}, 2")
            a(f"s_add_u32 s{T0}, s{T0}, s{T2}")
            a(f"v_and_b32 v{PL+4}, s{T1}, v0")
            a(f"v_add_lshl_u32 v{PL+4}, v{PL+4}, s{T0}, 7")
            L = a.newlabel("qp"); Ld = a.newlabel("qpd")
            a(f"s_mov_b32 s{S_SPIN}, 0")
            a.label(L)
            a(f"buffer_load_dwordx2 v[{PL}:{PL+1}], v{PL+4}, {WS}, s{T3} offen sc1")
            a(f"s_add_u32 s{S_SPIN}, s{S_SPIN}, 1")
            a(f"s_cmp_ge_u32 s{S_SPIN}, {SPIN_MAX}")
            a(f"s_cbranch_scc1 {Ld}")
            a("s_waitcnt vmcnt(0)")
            a(f"v_cmp_ne_u64 vcc, s[{S_NONCE}:{S_NONCE+1}], v[{PL}:{PL+1}]")
            a(f"s_cbranch_vccnz {L}")
            a.label(Ld)
            ldq()
        not_wave0(k, own_q)
    k.poll2(PL + 5, PL + 4, T3, PL)
    a("s_waitcnt lgkmcnt(0)")
    a("s_barrier")
    k.stamp(8)
    if early_q:
        a(f"s_cmp_lg_u32 s{S_W}, 0")
        a("s_cbranch_scc1 L_noq")
    ldq()
    if early_q: a.label("L_noq")
    for i in range(3): kv_piece(k, i)
    a(f"s_mov_b32 s{sDS}, {SLOT}")
    a(f"s_lshl_b32 s{T0}, s{sQB}, 4")
    a(f"s_lshl_b32 s{T1}, s{S_W}, 1")
    a(f"s_add_u32 s{T0}, s{T0}, s{T1}")
    a(f"s_mul_i32 s{T0}, s{T0}, 20480")
    a(f"s_add_u32 s{T0}, s{T0}, {WS_O}")
    a(f"s_lshl_b32 s{T1}, s{sH}, 9")
    a(f"s_add_u32 s80, s{T0}, s{T1}")
    a(f"s_lshr_b32 s{T1}, s{sH}, 4")
    a(f"s_lshl_b32 s{T2}, s{T1}, 11")
    a(f"s_add_u32 s80, s80, s{T2}")
    a(f"s_lshl_b32 s{T1}, s{T1}, 13")
    a(f"s_add_u32 s{T0}, s{T0}, s{T1}")
    a(f"s_lshr_b32 s{T1}, s{sH}, 3")
    a(f"s_lshl_b32 s{T1}, s{T1}, 10")
    a(f"s_add_u32 s{T0}, s{T0}, s{T1}")
    a(f"s_bfe_u32 s{T1}, s{sH}, 0x20001")
    a(f"s_lshl_b32 s{T1}, s{T1}, 7")
    a(f"s_add_u32 s{T0}, s{T0}, s{T1}")
    a(f"s_and_b32 s{T1}, s{sH}, 1")
    a(f"s_lshl_b32 s{T1}, s{T1}, 9")
    a(f"s_add_u32 s{T0}, s{T0}, s{T1}")
    a(f"s_add_u32 s81, s{T0}, 8192")
    a("v_bfe_u32 v3, v0, 4, 1")
    a("v_mul_u32_u24 v3, 20480, v3")
    a("v_and_b32 v10, 15, v0")
    a("v_lshl_add_u32 v11, v10, 4, v3")
    a(f"v_lshl_add_u32 v{OA+1}, v10, 3, v3")
    a("v_lshrrev_b32 v10, 5, v0")
    a(f"v_lshl_add_u32 v{OA}, v10, 8, v11")
    a("s_waitcnt vmcnt(0)")
    for i in range(3): kv_piece(k, i)
    a(f"s_mov_b32 s{sDS}, {2*SLOT}")
    a("s_barrier")
    k.hold("fix9")
    k.stamp(9)
    def rdk(i):
        a(f"ds_read_b128 {vr(Km,4)}, v{AK} offset:{2048*i}")
        a(f"ds_read_b128 {vr(Km+4,4)}, v{AK} offset:{2048*i+1024}")
        a(f"ds_read_b64 {vr(Kr,2)}, v{AKR} offset:{8192+1024*i}")
    rdk(0)
    a(f"v_mov_b32 v{PL}, 0xff800000")
    a("s_waitcnt lgkmcnt(0)")
    qkm(a, 0, S0, "0"); qkm(a, 1, S0, "0")
    a("s_nop 9")
    qkr(a, S0)
    rdk(1)
    if k.o.get("soft", "1") == "1":
        for i in range(3): wo_piece(k)
        for i in range(int(k.o.get("ntouch", 2))): touch_piece(k)
    a("s_nop 3")
    rowmax(a, S0, 32, PL, PL + 4)
    set_neg(a, PL, PL + 4)
    for r in range(32): a(f"v_sub_f32 v{S0+r}, v{S0+r}, v{PL}")
    a(f"s_cmp_ge_u32 s{S_W}, 4")
    a("s_cbranch_scc1 L_att_young")
    for young in (0, 1):
        L = "L_att_young" if young else "L_att_old"
        a.align(int(k.o.get("al2", 3)))
        a.label(L)
        att_stage(k, young)
        a(f"s_cmp_lt_u32 s{sST}, 8")
        a(f"s_cbranch_scc1 {L}")
        if not young: a("s_branch L_att_done")
    a("s_setprio 0")
    a.label("L_att_done")
    a("s_waitcnt lgkmcnt(3)")
    pv(a, 3)
    k.stamp(10)
    a("s_waitcnt lgkmcnt(0)")
    a(f"s_mov_b32 s{T3}, 0")
    a("s_nop 9")
    a.label("L_att_norm")
    a(f"v_mov_b32 v1, v{O+8}")
    a(f"v_mov_b32 v2, v{O+8}")
    a("v_mov_b32 v3, 0x203")
    a(f"v_mov_b32 v10, 0x{f2u(2.0**40):08x}")
    a("v_permlane32_swap_b32 v1, v2")
    a("s_nop 0")
    a("v_rcp_f32 v1, v2")
    a("v_cmp_nle_f32 vcc, v2, v10")
    for r in range(8): a(f"v_mul_f32 v{O+r}, v1, v{O+r}")
    for r in range(4): a(f"v_cvt_pk_bf16_f32 v{P+r}, v{O+2*r}, v{O+2*r+1}")
    a(f"buffer_store_dwordx4 {vr(P,4)}, v{OA}, {WS}, s80 offen sc1")
    for r in range(8, 12): a(f"v_mul_f32 v{O+r}, v1, v{O+r}")
    for r in range(4, 6): a(f"v_cvt_pk_bf16_f32 v{P+r}, v{O+2*r}, v{O+2*r+1}")
    a("s_mov_b64 exec, 0xffffffff")
    a(f"buffer_store_dwordx2 {vr(P+4,2)}, v{OA+1}, {WS}, s81 offen sc1")
    a("s_mov_b64 exec, -1")
    a(f"v_add_f32 v1, abs(v{O}), abs(v{O+1})")
    a(f"v_add_f32 v2, abs(v{O+2}), abs(v{O+3})")
    for r in range(4, 12, 2):
        a(f"v_add_f32 v1, abs(v{O+r}), v1")
        a(f"v_add_f32 v2, abs(v{O+r+1}), v2")
    a("v_add_f32 v1, v1, v2")
    a(f"v_cmp_class_f32 s[{S_M1}:{S_M1+1}], v1, v3")
    a(f"s_cmp_lg_u32 s{T3}, 0")
    a("s_cbranch_scc1 L_att_end")
    a(f"s_or_b64 vcc, vcc, s[{S_M1}:{S_M1+1}]")
    a("s_cbranch_scc1 L_att_fb")
    if k.o.get("fine") == "2": k.stamp(20)
    a("s_branch L_att_end")
    assert k._n == 2 * (6 + int(k.o.get("ntouch", 2))), k._n
    att_side(k)
    att_late(k)
    att_fallback(k)
    a.label("L_att_end")
    if k.stop == 2:
        a("s_waitcnt vmcnt(0)")
        k.stamp(11)


class VQ:
    def __init__(self, a): self.a = a; self.q = []
    def add(self, tag): self.q.append(tag)
    def wait(self, tag):
        if tag not in self.q: return
        i = len(self.q) - 1 - self.q[::-1].index(tag)
        n = len(self.q) - 1 - i
        self.a(f"s_waitcnt vmcnt({n})")
        self.q = self.q[i + 1:]

def dma_ops(k, vq, tag, first, last, s_src, s_lds, lds0, nw=8):
    a = k.a
    def one(i):
        def f():
            a(f"s_add_u32 m0, s{s_lds}, {lds0 + nw * i * 1024}")
            a(f"s_add_u32 s{T0}, s{s_src}, {(first + nw * i) * 1024}")
            if first + nw * i + nw > last:
                a(f"s_cmp_ge_u32 s{S_W}, {last - first - nw*i + (1 if nw == 7 else 0)}")
                a(f"s_cselect_b32 m0, {k.DUMMY}, m0")
                a(f"s_cselect_b32 s{T0}, 0x7f000000, s{T0}")
            k.dma(DLIN, SRD_WS, f"s{T0}", "sc1")
            if vq is not None: vq.add(tag)
        return f
    return [one(i) for i in range((last - first + nw - 1) // nw)]

DL8 = 197
RA = 8
AF = 4
ST = 36
ACC = 44
BA = 72
XW, XRD = 78, 79
TM = 80
WB = 88
CSV = 148
SW = 1
TL = 252
HR = 198
sRG, sKH, sN8, sRB64, sA, sB = 64, 65, 66, 67, 68, 69
sW7 = 72
CS_LDS = 158 * 1024

def a_op(k, vq, j, ks, s_base, split):
    a = k.a
    reg = AF + 4 * (j % RA)
    pol = k.o.get("apol", "sc1")
    def f():
        if k.o.get("noa"): return
        a(f"s_add_u32 s{T0}, s{s_base}, {1024*ks}")
        if split:
            a(f"buffer_load_dwordx2 {vr(reg,2)}, v{DL8}, {WS}, s{T0} offen sc1")
            a(f"buffer_load_dwordx2 {vr(reg+2,2)}, v{DL8}, {WS}, s{T0} offen offset:512 sc1")
            vq.add(("a", j))
        else:
            a(f"buffer_load_dwordx4 {vr(reg,4)}, v{DLIN}, {WS}, s{T0} offen {pol}")
        vq.add(("A", j))
    return f

def coop_touch(k, vq, s_base, s_idx, stride, n):
    a = k.a
    if not k.o.get("coop"): return
    a(f"s_lshl_b32 s{T1}, s{s_idx}, 10")
    a(f"s_add_u32 s{T1}, s{T1}, s{s_base}")
    for i in range((n + stride - 1) // stride):
        a(f"s_add_u32 s{T0}, s{T1}, {1024*stride*i}")
        if stride * i + stride > n:
            a(f"s_cmp_ge_u32 s{s_idx}, {n - stride*i}")
            a(f"s_cselect_b32 s{T0}, s{T1}, s{T0}")
        a(f"buffer_load_dwordx4 {vr(TM+4,4)}, v{DLIN}, {WS}, s{T0} offen sc1")
        vq.add("t")

class LQ(VQ):
    def wait(self, tag):
        if tag not in self.q: return
        i = len(self.q) - 1 - self.q[::-1].index(tag)
        self.a(f"s_waitcnt lgkmcnt({min(15, len(self.q) - 1 - i)})")
        self.q = self.q[i + 1:]

def stage_write(k, lq, i, lds, tail=None):
    a = k.a
    if tail is not None: a(f"ds_write_b128 v{tail}, {vr(SG(i),4)}")
    else: a(f"ds_write_b128 v{SW + lds // 65536}, {vr(SG(i),4)} offset:{lds % 65536}")
    if lq is not None: lq.add("w")

def acc_init(k, src):
    a = k.a
    a(f"s_sub_u32 s{T0}, s{sKH}, 1")
    for i, t in enumerate((0, 1, 4)):
        for h in range(2):
            r = src + 2 * i + h
            if i == 2:
                a(f"v_and_b32 v{TM+2}, s{T0}, v{r}"); r = TM + 2
            a(f"v_lshlrev_b32 v{ACC+4*t+2*h}, 16, v{r}")
            a(f"v_and_b32 v{ACC+4*t+2*h+1}, 0xffff0000, v{r}")
    for r in range(8, 16): a(f"v_mov_b32 v{ACC+r}, 0")

def mm_steps(k, vq, n, nt, addr, extra, pre_hook=None, init=False):
    a = k.a
    NB = 3
    lq = k.lq = LQ(a)
    def rd(j, t):
        r, off = addr(j, t)
        a(f"ds_read_b128 {vr(WB + (j % NB) * 4 * nt + 4 * t, 4)}, v{r} offset:{off}")
        lq.add(("r", j))
    for j in range(2):
        for t in range(nt): rd(j, t)
    for j in range(n):
        b = WB + (j % NB) * 4 * nt
        ops = list(extra.get(j, []))
        slots = {}
        for i, f in enumerate(ops): slots.setdefault(1 + (i * (nt - 1)) // max(1, len(ops)), []).append(f)
        if pre_hook and j + 2 < n: pre_hook(j + 2)
        vq.wait(("A", j))
        lq.wait(("r", j))
        for t in range(nt):
            c = "0" if j == 0 and not init else vr(ACC + 4 * t, 4)
            a(f"{M16} {vr(ACC+4*t,4)}, {vr(b+4*t,4)}, {vr(AF+4*(j%RA),4)}, {c}")
            if j + 2 < n: rd(j + 2, t)
            for f in slots.get(t, []): f()

def tile_addrs(k, base_expr_sgpr, dst):
    a = k.a
    a(f"s_lshl_b32 s{T1}, s{sKH}, 11")
    a(f"v_add_u32 v{dst+2}, s{base_expr_sgpr}, v{DLIN}")
    a(f"v_add_u32 v{dst}, s{T1}, v{dst+2}")
    a(f"v_subrev_u32 v{dst+1}, s{T1}, v{dst+2}")

def exch_addrs(k, scr):
    a = k.a
    a(f"s_mul_i32 s{T0}, s{sRG}, 5120")
    a(f"s_add_u32 s{T0}, s{T0}, {scr}")
    a(f"s_lshl_b32 s{T1}, s{sKH}, 11")
    a(f"s_add_u32 s{T2}, s{T0}, s{T1}")
    a(f"v_add_u32 v{XW}, s{T2}, v{DLIN}")
    a(f"s_sub_u32 s{T2}, s{T0}, s{T1}")
    a(f"s_add_u32 s{T2}, s{T2}, 2048")
    a(f"v_add_u32 v{XRD}, s{T2}, v{DLIN}")

def reduce_halves(k, resid, pad):
    a = k.a
    if pad: a(f"s_nop {pad-1}")
    a(f"ds_write_b128 v{XW}, {vr(ACC+8,4)}")
    a(f"ds_write_b128 v{XW}, {vr(ACC+12,4)} offset:1024")
    L = a.newlabel("rh")
    a(f"s_cmp_eq_u32 s{sKH}, 0")
    a(f"s_cbranch_scc1 {L}")
    a(f"ds_write_b128 v{XW}, {vr(ACC+16,4)} offset:2048")
    a.label(L)
    a("s_waitcnt lgkmcnt(0)")
    a("s_barrier")
    if k.o.get("fine") == "3": k.stamp(20)
    for i in range(3): a(f"ds_read_b128 {vr(WB+4*i,4)}, v{XRD} offset:{1024*i}")
    for i, t in enumerate((0, 1, 4)):
        a(f"s_waitcnt lgkmcnt({2-i})")
        for r in range(4): a(f"v_add_f32 v{ACC+4*t+r}, v{ACC+4*t+r}, v{WB+4*i+r}")

DH = 254
def odd_tile_store(k, src, tmp, soff):
    a = k.a
    for i in range(4): a(f"v_mov_b32 v{tmp+i}, v{src+i%2}")
    a("s_nop 0")
    a(f"v_permlane16_swap_b32 v{tmp}, v{tmp+2}")
    a(f"v_permlane16_swap_b32 v{tmp+1}, v{tmp+3}")
    a("s_mov_b32 exec_lo, 0xffff")
    a("s_mov_b32 exec_hi, 0xffff")
    a(f"buffer_store_dwordx4 {vr(tmp,4)}, v{DH}, {WS}, s{soff} offen sc1")
    a("s_mov_b64 exec, -1")

def row_reduce(a, r, t):
    for sw in ("16", "32"):
        a(f"v_mov_b32 v{t}, v{r}")
        a(f"v_mov_b32 v{t+1}, v{r+1}")
        a("s_nop 0")
        a(f"v_permlane{sw}_swap_b32 v{r}, v{t}")
        a(f"v_permlane{sw}_swap_b32 v{r+1}, v{t+1}")
        a("s_nop 0")
        a(f"v_add_f32 v{r}, v{r}, v{t}")
        a(f"v_add_f32 v{r+1}, v{r+1}, v{t+1}")

def fpoll(k, n):
    d = int(k.o.get("pdepth", 1))
    if d == 1: k.poll(n, T3, FSP, TM)
    else: k.pollp(n, T3, FSP, TM, ST, d)

def not_wave0(k, fn):
    a = k.a
    L = a.newlabel("nw0")
    a(f"s_cmp_eq_u32 s{S_W}, 0")
    a(f"s_cbranch_scc1 {L}")
    fn()
    a.label(L)

NS5 = 16
HALF = NS5 * 5120
OUT_PITCH = 336
OUT_HALF = HALF
OUT_LDS = 11 * 5120
sW2 = 83
def w2_load(k, vq, tag, i, batch):
    h, q = divmod(i, 9)
    stage_load(k, vq, tag, i, sW2, (135 * h + (0, 5 * NS5)[batch] + 8 * q) * 1024)
def w2_write(k, lq, i):
    h, q = divmod(i, 9)
    stage_write(k, lq, i, HALF * h + 8192 * q)

P3_SCR, P3_LAST = 35 * 1024, 56 * 1024
sTT3 = 81
def phase3(k):
    a = k.a
    a.c("================ phase 3: output projection + residual")
    a(f"s_lshl_b32 s{T0}, s{sQB}, 5")
    a(f"s_add_u32 s{T0}, s{T0}, s{sH}")
    a(f"s_mul_i32 s{T3}, s{T0}, {FSP}")
    a(f"s_add_u32 s{T3}, s{T3}, {FL_2}")
    a(f"s_and_b32 s{sRG}, s{S_W}, 3")
    a(f"s_lshr_b32 s{sKH}, s{S_W}, 2")
    a(f"s_and_b32 s{sN8}, s{S_J}, 7")
    a(f"s_lshl_b32 s{sRB64}, s{S_C}, 2")
    a(f"s_lshr_b32 s{T0}, s{S_J}, 3")
    a(f"s_add_u32 s{sRB64}, s{sRB64}, s{T0}")
    a(f"s_sub_u32 s{sW7}, s{sW10}, 1024")
    a(f"s_add_u32 s{sA}, s{sSD}, s{sW7}")
    a(f"s_mul_i32 s{sW2}, s{sN8}, {54*5120}")
    a(f"s_add_u32 s{sW2}, s{sW2}, s{sW10}")
    a(f"s_add_u32 s{sW2}, s{sW2}, {WS_W2}")
    a(f"v_lshlrev_b32 v{DL8}, 3, v0")
    a(f"v_lshrrev_b32 v{DH}, 5, v0")
    a(f"v_and_b32 v{TM}, 15, v0")
    a(f"v_lshlrev_b32 v{TM}, 4, v{TM}")
    a(f"v_lshl_add_u32 v{DH}, v{DH}, 8, v{TM}")
    a(f"v_add_u32 v{SW}, s{sW10}, v{DLIN}")
    a(f"v_add_u32 v{SW+1}, 0x10000, v{SW}")
    a(f"v_add_u32 v{SW+2}, 0x20000, v{SW}")
    k.flag_prep(TM + 4)
    if k.o.get("fine") == "2": k.stamp(21)
    a("s_waitcnt vmcnt(0)")
    if k.o.get("fine") == "2": k.stamp(22)
    a("s_barrier")
    k.stamp(11)
    k.flag_store(T3, TM + 4, prepped=True)
    def early():
        for f in dma_ops(k, None, None, 90, 100, sA, sW7, P3_LAST, 7): f()
        if not k.o.get("w0a", "1") == "1": resid_x(k)
    not_wave0(k, early)
    if k.o.get("w0a", "1") == "1": resid_x(k)
    for i in range(4): stage_write(k, None, i, 8192 * i)
    a(f"s_cmp_lt_u32 s{S_W}, 6")
    a("s_cbranch_scc1 L_p3_nocs")
    a(f"s_and_b32 s{T1}, s{S_J}, 15")
    a(f"s_sub_u32 s{T0}, s{S_W}, 6")
    a(f"s_lshl_b32 s{T0}, s{T0}, 6")
    a(f"v_add_u32 v{TM+4}, s{T0}, v0")
    a(f"s_mul_i32 s{T2}, s{T1}, 96")
    a(f"v_add_u32 v{TM+5}, s{T2}, v{TM+4}")
    a(f"s_min_u32 s{T2}, s{T1}, 11")
    a(f"s_lshl_b32 s{T2}, s{T2}, 4")
    a(f"s_add_u32 s{T2}, s{T2}, 1536")
    a(f"v_and_b32 v{TM+6}, 15, v0")
    a(f"v_add_u32 v{TM+6}, s{T2}, v{TM+6}")
    a(f"v_cmp_gt_u32 vcc, 96, v{TM+4}")
    a(f"s_mov_b32 s{T2}, {WS_CS1}")
    a("s_nop 0")
    a(f"v_cndmask_b32 v{TM+5}, v{TM+6}, v{TM+5}, vcc")
    a(f"v_lshlrev_b32 v{TM+5}, 2, v{TM+5}")
    for i in range(20):
        a(f"buffer_load_dword v{CSV+i}, v{TM+5}, {WS}, s{T2} offen sc1")
        if i < 19: a(f"s_add_u32 s{T2}, s{T2}, {1728*4}")
    a.label("L_p3_nocs")
    a(f"s_mul_i32 s{T0}, s{sKH}, {45*1024}")
    a(f"s_add_u32 s{T0}, s{T0}, {WO_LDS}")
    tile_addrs(k, T0, BA)
    a(f"s_mul_i32 s{T0}, s{sKH}, 5120")
    a(f"s_add_u32 s{T0}, s{T0}, {P3_LAST}")
    tile_addrs(k, T0, BA + 3)
    exch_addrs(k, P3_SCR)
    a(f"s_lshl_b32 s{T0}, s{sRB64}, 2")
    a(f"s_add_u32 s{sTT3}, s{T0}, s{sRG}")
    a(f"s_mul_i32 s{sA}, s{sTT3}, 20480")
    a(f"s_mul_i32 s{T1}, s{sKH}, 10240")
    a(f"s_add_u32 s{sA}, s{sA}, s{T1}")
    a(f"s_add_u32 s{sA}, s{sA}, {WS_O}")
    a(f"v_and_b32 v{TM+6}, 15, v0")
    a(f"v_lshrrev_b32 v{TM+7}, 4, v0")
    a(f"v_lshl_add_u32 v{TM+7}, v{TM+6}, 2, v{TM+7}")
    a(f"v_lshlrev_b32 v{TM+7}, 2, v{TM+7}")
    a(f"s_mul_i32 s70, s{sTT3}, 20480")
    a(f"s_add_u32 s70, s70, {WS_H}")
    a(f"s_lshl_b32 s{T0}, s{sN8}, 1")
    a(f"s_add_u32 s{T0}, s{T0}, s{sKH}")
    a(f"s_lshl_b32 s71, s{T0}, 10")
    a(f"s_add_u32 s71, s71, s70")
    a(f"s_lshl_b32 s{T1}, s{sRB64}, 4")
    a(f"s_add_u32 s{T0}, s{T0}, s{T1}")
    a(f"s_lshl_b32 s{T0}, s{T0}, 9")
    a(f"s_lshl_b32 s{T1}, s{sRG}, 7")
    a(f"s_add_u32 s{T0}, s{T0}, s{T1}")
    a(f"s_add_u32 s74, s{T0}, {WS_ST}")
    a(f"s_lshr_b32 s{T0}, s{sN8}, 1")
    a(f"s_lshl_b32 s{T0}, s{T0}, 10")
    a(f"s_and_b32 s{T1}, s{sN8}, 1")
    a(f"s_lshl_b32 s{T1}, s{T1}, 9")
    a(f"s_add_u32 s{T0}, s{T0}, s{T1}")
    a(f"s_add_u32 s70, s70, s{T0}")
    a(f"s_add_u32 s70, s70, 16384")
    a(f"s_lshl_b32 s{T0}, s{sRB64}, 3")
    a(f"s_add_u32 s{T0}, s{T0}, s{sN8}")
    a(f"s_mul_i32 s75, s{T0}, {FSP}")
    a(f"s_add_u32 s75, s75, {FL_3}")
    a(f"s_mul_i32 s{T3}, s{S_C}, {32*FSP}")
    a(f"s_add_u32 s{T3}, s{T3}, {FL_2}")
    a(f"s_cmp_ge_u32 s{S_W}, 6")
    a("s_cbranch_scc1 L_p3_w67")
    a("s_waitcnt vmcnt(0)")
    a.label("L_p3_w67")
    a("s_waitcnt vmcnt(20)")
    for r in range(6): a(f"ds_bpermute_b32 v{XR+r}, v{TM+7}, v{XR+r}")
    a("s_waitcnt lgkmcnt(0)")
    E2 = k.o.get("early2", "0") == "1"
    if E2:
        for i in range(4): w2_load(k, None, None, i, 0)
    acc_init(k, XR)
    fpoll(k, 32)
    a("s_barrier")
    k.hold("fix12")
    k.stamp(12)
    vq = VQ(a)
    aop = [a_op(k, vq, j, j, sA, j >= 8) for j in range(10)]
    D = int(k.o.get("d3", 4))
    coop_touch(k, vq, sA, sN8, 8, 10)
    for j in range(D): aop[j]()
    def addr(j, t):
        r = (BA if j < 9 else BA + 3) + (0, 0, 1, 1, 2)[t]
        return r, (j * 5120 if j < 9 else 0) + t * 1024
    extra = {j: [aop[j + D]] for j in range(10 - D)}
    mm_steps(k, vq, 10, 5, addr, extra, init=True)
    k.stamp(13)
    reduce_halves(k, XR, 6)
    for i, t in enumerate((0, 1, 4)):
        for h in range(2): a(f"v_cvt_pk_bf16_f32 v{HR+2*i+h}, v{ACC+4*t+2*h}, v{ACC+4*t+2*h+1}")
        if i == 1: a(f"buffer_store_dwordx4 {vr(HR,4)}, v{DLIN}, {WS}, s71 offen sc1")
    a(f"v_mov_b32 v{TM+6}, 0x3f803f80")
    for r in (2, 3, 4, 5): a(f"v_mov_b32 v{TM+r}, 0")
    def acc_stats(regs):
        for n, r in enumerate(regs):
            d = TM + 2 + 2 * (n % 2)
            a(f"v_dot2_f32_bf16 v{d}, v{r}, v{TM+6}, v{d}")
            a(f"v_dot2_f32_bf16 v{d+1}, v{r}, v{r}, v{d+1}")
    acc_stats(range(HR, HR + 4))
    a(f"s_cmp_lg_u32 s{sKH}, 0")
    a("s_cbranch_scc1 L_p3_no4")
    acc_stats(range(HR + 4, HR + 6))
    odd_tile_store(k, HR + 4, WB, 70)
    a.label("L_p3_no4")
    a("s_nop 0")
    a(f"v_add_f32 v{TM+4}, v{TM+4}, v{TM+2}")
    a(f"v_add_f32 v{TM+5}, v{TM+5}, v{TM+3}")
    row_reduce(a, TM + 4, TM + 6)
    a("s_mov_b64 exec, 0xffff")
    a(f"buffer_store_dwordx2 {vr(TM+4,2)}, v{DL8}, {WS}, s74 offen sc1")
    a("s_mov_b64 exec, -1")
    if k.o.get("fine") == "3": k.stamp(21)
    NW3 = int(k.o.get("nw3", 8))
    if not E2:
        for i in range(4): w2_load(k, None, None, i, 0)
    for i in range(7, 7 + NW3): stage_write(k, None, i, 8192 * i)
    if E2:
        a(f"s_waitcnt lgkmcnt({NW3 - 4})")
        for i in range(7, 11): w2_load(k, None, None, i, 0)
    k.flag_prep(TM)
    if k.o.get("fine") == "3": k.stamp(22)
    a("s_waitcnt vmcnt(4)")
    if k.o.get("fine") == "3": k.stamp(23)
    a("s_barrier")
    k.stamp(14)
    k.flag_store(75, TM, prepped=True)

def phase4(k):
    a = k.a
    a.c("================ phase 4: FFN up-projection + SiLU")
    sF, sRB, sTT = 70, 71, 74
    NW3 = int(k.o.get("nw3", 8)); F4 = 11 if k.o.get("early2", "0") == "1" else 7
    NB4 = min(NW3 + 7 - F4, int(k.o.get("nb4", 4)))
    def rest_writes():
        for i in list(range(7 + NW3, 18)) + [4, 5, 6]: stage_write(k, None, i, 8192 * i)
    a("s_waitcnt lgkmcnt(0)")
    for i in range(F4, F4 + NB4): w2_load(k, None, None, i, 0)
    if k.o.get("w0b", "1") == "1": rest_writes()
    else: not_wave0(k, rest_writes)
    a(f"s_cmp_lt_u32 s{S_W}, 6")
    a("s_cbranch_scc1 L_p4_nocs2")
    for w in (10, 5):
        for i in range(w): a(f"v_add_f32 v{CSV+i}, v{CSV+i}, v{CSV+w+i}")
    for i in range(1, 5): a(f"v_add_f32 v{CSV}, v{CSV}, v{CSV+i}")
    a(f"s_lshl_b32 s{T0}, s{S_W}, 8")
    a(f"s_add_u32 s{T0}, s{T0}, {CS_LDS - 6*256}")
    a(f"v_lshl_add_u32 v{TM+4}, v0, 2, s{T0}")
    a(f"ds_write_b32 v{TM+4}, v{CSV}")
    a.label("L_p4_nocs2")
    a(f"s_and_b32 s{sF}, s{S_J}, 15")
    a(f"s_lshl_b32 s{sRB}, s{S_C}, 1")
    a(f"s_lshr_b32 s{T0}, s{S_J}, 4")
    a(f"s_add_u32 s{sRB}, s{sRB}, s{T0}")
    a(f"v_mov_b32 v{BA}, v{DLIN}")
    a(f"v_add_u32 v{BA+1}, {9*7168}, v{DLIN}")
    a(f"v_add_u32 v{BA+2}, {18*7168}, v{DLIN}")
    a(f"s_lshl_b32 s{T0}, s{sRB}, 3")
    a(f"s_add_u32 s{sTT}, s{T0}, s{S_W}")
    a(f"s_mul_i32 s{sA}, s{sTT}, 20480")
    a(f"s_add_u32 s{sA}, s{sA}, {WS_H}")
    a(f"s_lshr_b32 s{T0}, s{sTT}, 2")
    a(f"s_lshl_b32 s{T0}, s{T0}, 13")
    a(f"s_and_b32 s{T1}, s{sTT}, 3")
    a(f"s_lshl_b32 s{T1}, s{T1}, 7")
    a(f"s_add_u32 s{T0}, s{T0}, s{T1}")
    a(f"s_add_u32 s{sB}, s{T0}, {WS_ST}")
    a(f"v_and_b32 v{TM}, 15, v0")
    a(f"v_lshrrev_b32 v{TM+1}, 4, v0")
    a(f"v_lshlrev_b32 v{BA+3}, 11, v{TM+1}")
    a(f"v_lshl_add_u32 v{BA+3}, v{TM}, 3, v{BA+3}")
    a(f"v_lshlrev_b32 v{BA+4}, 4, v{TM+1}")
    a(f"v_add_u32 v{BA+4}, {CS_LDS}, v{BA+4}")
    a(f"s_mul_i32 s{T3}, s{sRB}, {16*FSP}")
    a(f"s_add_u32 s{T3}, s{T3}, {FL_3}")
    fpoll(k, 16)
    if not k.o.get("w0b", "1") == "1":
        a(f"s_cmp_lg_u32 s{S_W}, 0")
        a("s_cbranch_scc1 L_p4_w0")
        rest_writes()
        a.label("L_p4_w0")
    a("s_waitcnt lgkmcnt(0)")
    a("s_barrier")
    k.stamp(15)
    vq = VQ(a)
    aop = [a_op(k, vq, j, j, sA, False) for j in range(20)]
    D = int(k.o.get("d4", 4))
    coop_touch(k, vq, sA, sF, 16, 20)
    for j in range(D): aop[j]()
    def st_op(i):
        def f():
            a(f"buffer_load_dwordx2 {vr(ST+2*i,2)}, v{BA+3}, {WS}, s{sB} offen offset:{512*i} sc1")
            vq.add("S")
        return f
    extra = {j: [aop[j + D]] for j in range(20 - D)}
    rest = list(range(F4 + NB4, 18)) + [4, 5, 6]
    NE4 = int(k.o.get("ne4", 3))
    late4, rest = rest[len(rest) - NE4:], rest[:len(rest) - NE4]
    for n, i in enumerate(rest): extra.setdefault(1 + (n * 19) // len(rest), []).append(lambda i=i: w2_load(k, vq, "W", i, 0))
    for i in range(4): extra.setdefault(6 + i, []).insert(0, st_op(i))
    def stats_a():
        vq.wait("S")
        a(f"v_add_f32 v{ST}, v{ST}, v{ST+2}")
        a(f"v_add_f32 v{ST+1}, v{ST+1}, v{ST+3}")
        a(f"v_add_f32 v{ST+4}, v{ST+4}, v{ST+6}")
        a(f"v_add_f32 v{ST+5}, v{ST+5}, v{ST+7}")
        a(f"v_add_f32 v{ST}, v{ST}, v{ST+4}")
        a(f"v_add_f32 v{ST+1}, v{ST+1}, v{ST+5}")
    def stats_sw(sw):
        def f():
            a(f"v_mov_b32 v{ST+2}, v{ST}")
            a(f"v_mov_b32 v{ST+3}, v{ST+1}")
            a("s_nop 0")
            a(f"v_permlane{sw}_swap_b32 v{ST}, v{ST+2}")
            a(f"v_permlane{sw}_swap_b32 v{ST+1}, v{ST+3}")
            a("s_nop 0")
            a(f"v_add_f32 v{ST}, v{ST}, v{ST+2}")
            a(f"v_add_f32 v{ST+1}, v{ST+1}, v{ST+3}")
        return f
    def stats_b():
        a(f"v_mul_f32 v{ST}, 0x{f2u(1.0/640):08x}, v{ST}")
        a(f"v_mul_f32 v{ST+2}, v{ST}, v{ST}")
        a(f"v_mov_b32 v{ST+3}, 0x{f2u(1.0/640):08x}")
        a(f"v_fma_f32 v{ST+2}, v{ST+1}, v{ST+3}, -v{ST+2}")
        a(f"v_max_f32 v{ST+2}, 0, v{ST+2}")
        a(f"v_add_f32 v{ST+2}, 0x{f2u(1e-5):08x}, v{ST+2}")
        a(f"v_rsq_f32 v{ST+1}, v{ST+2}")
        a(f"v_mov_b32 v{ST+2}, 0x{f2u(-math.log2(math.e)):08x}")
        a(f"s_mul_i32 s76, s{sTT}, {54*1024}")
        a(f"v_mul_f32 v{ST+1}, v{ST+1}, v{ST+2}")
        a(f"s_add_u32 s76, s76, {WS_H1}")
        a(f"v_mul_f32 v{ST}, v{ST}, v{ST+1}")
        a(f"s_lshr_b32 s{T1}, s{sF}, 3")
        a(f"s_add_u32 s{T1}, s{T1}, s{sF}")
        a(f"s_mul_i32 s{T1}, s{T1}, 3072")
        a(f"s_add_u32 s77, s{T1}, s76")
    def stats_c():
        a(f"s_lshr_b32 s{T2}, s{sF}, 1")
        a(f"s_cmp_ge_u32 s{sF}, 6")
        a(f"s_cselect_b32 s{T1}, 48, 24")
        a(f"s_add_u32 s{T2}, s{T2}, s{T1}")
        a(f"s_lshl_b32 s{T2}, s{T2}, 10")
        a(f"s_and_b32 s{T1}, s{sF}, 1")
        a(f"s_lshl_b32 s{T1}, s{T1}, 9")
        a(f"s_add_u32 s{T2}, s{T2}, s{T1}")
        a(f"s_add_u32 s76, s76, s{T2}")
        a(f"s_lshl_b32 s{T1}, s{sRB}, 4")
        a(f"s_add_u32 s{T1}, s{T1}, s{sF}")
        a(f"s_mul_i32 s{T3}, s{T1}, {FSP}")
        a(f"s_add_u32 s{T3}, s{T3}, {FL_4}")
    for j, f in ((14, stats_a), (15, stats_sw(16)), (16, stats_sw(32)), (17, stats_b), (18, stats_c)): extra.setdefault(j, []).append(f)
    def addr(j, t): return BA + j // 9, (j % 9) * 7168 + t * 1024
    mm_steps(k, vq, 20, 7, addr, extra)
    k.stamp(16)
    CS = WB + 56
    for t in range(7): a(f"ds_read_b128 {vr(CS+4*t,4)}, v{BA+4} offset:{64*t}")
    for i in late4: w2_load(k, None, None, i, 0)
    a(f"s_cmp_lt_u32 s{S_W}, 4")
    a("s_cbranch_scc1 L_p4_nb")
    a("s_waitcnt lgkmcnt(0)")
    a("s_barrier")
    a.label("L_p4_nb")
    a("s_waitcnt lgkmcnt(0)")
    E = WB; OUT = AF
    def silu(tiles):
        rs = [4 * t + r for t in tiles for r in range(4)]
        for r in rs: a(f"v_mul_f32 v{ACC+r}, v{ST+1}, v{ACC+r}")
        for r in rs: a(f"v_fma_f32 v{ACC+r}, -v{ST}, v{CS+r}, v{ACC+r}")
        for r in rs: a(f"v_exp_f32 v{E+r}, v{ACC+r}")
        for r in rs: a(f"v_fma_f32 v{E+r}, v{E+r}, v{ST+2}, v{ST+2}")
        for r in rs: a(f"v_rcp_f32 v{E+r}, v{E+r}")
        for r in rs: a(f"v_mul_f32 v{ACC+r}, v{ACC+r}, v{E+r}")
        for r in rs[::2]: a(f"v_cvt_pk_bf16_f32 v{OUT+r//2}, v{ACC+r}, v{ACC+r+1}")
    a(f"s_cmp_ge_u32 s{sF}, 12")
    a("s_cbranch_scc1 L_p4_no6")
    silu((6,))
    odd_tile_store(k, OUT + 12, OUT + 16, 76)
    a.label("L_p4_no6")
    PB = int(k.o.get("pb4", 3))
    for p in range(3):
        if p == PB:
            a(f"s_cmp_ge_u32 s{S_W}, 4")
            a("s_cbranch_scc1 L_p4_nb2")
            a("s_barrier")
            a.label("L_p4_nb2")
        silu((2 * p, 2 * p + 1))
        a(f"buffer_store_dwordx4 {vr(OUT+4*p,4)}, v{DLIN}, {WS}, s77 offen offset:{1024*p} sc1")
    order = [x for q in range(9) for x in (q, 9 + q)]
    NB5 = 7
    def w2_swap():
        for h in range(2): dma_ops(k, None, None, 135 * h + 72, 135 * h + 80, sW2, sW10, HALF * h + 72 * 1024)[0]()
        for n in range(18):
            w2_write(k, None, n)
            if 4 <= n < 4 + NB5:
                a("s_waitcnt lgkmcnt(4)")
                w2_load(k, None, None, n - 4, 1)
    a(f"s_cmp_ge_u32 s{S_W}, 4")
    a("s_cbranch_scc1 L_p4_y")
    if PB == 3: a("s_barrier")
    a("s_waitcnt vmcnt(3)")
    w2_swap()
    k.flag_prep(TM)
    a(f"s_waitcnt vmcnt({NB5 + 2})")
    a("s_barrier")
    k.stamp(17)
    k.flag_store(T3, TM, prepped=True)
    a("s_branch L_p4_e")
    a.label("L_p4_y")
    NY = int(k.o.get("ny", 18))
    a("s_waitcnt vmcnt(3)")
    for n in range(NY): w2_write(k, None, n)
    a("s_waitcnt vmcnt(0)")
    a("s_barrier")
    k.stamp(17)
    for n in range(NY, 18): w2_write(k, None, n)
    for h in range(2): dma_ops(k, None, None, 135 * h + 72, 135 * h + 80, sW2, sW10, HALF * h + 72 * 1024)[0]()
    a(f"s_waitcnt lgkmcnt({min(15, 18 - NB5)})")
    for n in range(NB5): w2_load(k, None, None, n, 1)
    a.label("L_p4_e")

def phase5(k):
    a = k.a
    a.c("================ phase 5: FFN down-projection + residual")
    a(f"s_mul_i32 s{T0}, s{sKH}, {HALF}")
    tile_addrs(k, T0, BA)
    for i in range(3): a(f"v_add_u32 v{BA+3+i}, {12*5120}, v{BA+i}")
    a(f"v_and_b32 v{TM+4}, 15, v0")
    a(f"s_lshl_b32 s{T0}, s{sRG}, 4")
    a(f"v_add_u32 v{TM+4}, s{T0}, v{TM+4}")
    a(f"v_mul_u32_u24 v{TM+4}, {OUT_PITCH}, v{TM+4}")
    a(f"v_lshrrev_b32 v{TM+5}, 4, v0")
    a(f"v_lshl_add_u32 v{TM+4}, v{TM+5}, 4, v{TM+4}")
    a(f"s_mul_i32 s{T0}, s{sKH}, {OUT_HALF}")
    a(f"s_add_u32 s{T0}, s{T0}, {OUT_LDS}")
    a(f"v_add_u32 v{TL}, s{T0}, v{TM+4}")
    a(f"s_lshl_b32 s{T0}, s{sKH}, 7")
    a(f"v_add_u32 v{XW}, s{T0}, v{TL}")
    a(f"v_subrev_u32 v{XRD}, s{T0}, v{TL}")
    for n in range(2):
        a(f"s_mul_i32 s{T0}, s{S_W}, 0x50")
        a(f"s_add_u32 s{T0}, s{T0}, {64*n}")
        a(f"v_add_u32 v{TM+2}, s{T0}, v0")
        a(f"v_mul_u32_u24 v{TM+3}, 6554, v{TM+2}")
        a(f"v_lshrrev_b32 v{TM+3}, 16, v{TM+3}")
        a(f"v_mul_u32_u24 v{TM+4+2*n}, 10, v{TM+3}")
        a(f"v_sub_u32 v{TM+2}, v{TM+2}, v{TM+4+2*n}")
        a(f"v_mul_u32_u24 v{TM+4+2*n}, {OUT_PITCH}, v{TM+3}")
        a(f"v_lshl_add_u32 v{TM+4+2*n}, v{TM+2}, 5, v{TM+4+2*n}")
        a(f"v_add_u32 v{TM+4+2*n}, {OUT_LDS}, v{TM+4+2*n}")
        a(f"v_mul_u32_u24 v{TM+5+2*n}, 1280, v{TM+3}")
        a(f"v_lshl_add_u32 v{TM+5+2*n}, v{TM+2}, 4, v{TM+5+2*n}")
    a(f"s_mul_i32 s{sA}, s{sRB64}, {64*1280}")
    a(f"s_mul_i32 s{T0}, s{sN8}, 160")
    a(f"s_add_u32 s{sA}, s{sA}, s{T0}")
    a(f"s_mul_i32 s{sB}, s{sTT3}, {54*1024}")
    a(f"s_mul_i32 s{T1}, s{sKH}, {27*1024}")
    a(f"s_add_u32 s{sB}, s{sB}, s{T1}")
    a(f"s_add_u32 s{sB}, s{sB}, {WS_H1}")
    if k.o.get("p5hot"): a(f"s_mov_b32 s{sB}, {WS_W2}")
    if k.o.get("p5oob"): a(f"s_mov_b32 s{sB}, 0x7f000000")
    acc_init(k, HR)
    a(f"s_lshr_b32 s{T3}, s{sRB64}, 1")
    a(f"s_mul_i32 s{T3}, s{T3}, {16*FSP}")
    a(f"s_add_u32 s{T3}, s{T3}, {FL_4}")
    fpoll(k, 16)
    a("s_waitcnt lgkmcnt(0)")
    a("s_barrier")
    k.stamp(18)
    vq = VQ(a)
    aop = [a_op(k, vq, j, j, sB, False) for j in range(27)]
    D = int(k.o.get("d5", 6))
    coop_touch(k, vq, sB, sN8, 8, 27)
    for j in range(D): aop[j]()
    extra = {j: [aop[j + D]] for j in range(27 - D)}
    bars = (5, 10, 14, 19)
    at = (5, 6, 7, 10, 11, 12, 14)
    dm = dma_ops(k, vq, None, 135 + 5 * NS5, 135 + 5 * NS5 + 56, sW2, sW10, HALF)
    for i in range(7):
        def both(i=i):
            if not k.o.get("p5nod"):
                dm[i](); vq.q[-1] = ("R", i)
            if not k.o.get("p5now"): stage_write(k, k.lq, i, 8192 * i)
        extra.setdefault(at[i], []).append(both)
    cover = {14: 3, 19: 6}
    slot = lambda j: j if j < NS5 else j - NS5
    def addr(j, t):
        s = slot(j)
        return BA + (3 if s >= 12 else 0) + (0, 0, 1, 1, 2)[t], (s % 12) * 5120 + t * 1024
    def pre(j):
        if j - 2 in bars:
            k.lq.wait("w")
            if j - 2 in cover: vq.wait(("R", cover[j - 2]))
            if not k.o.get("p5nob"): a("s_barrier")
    mm_steps(k, vq, 27, 5, addr, extra, pre, init=True)
    k.stamp(19)
    a("s_nop 3")
    for t in range(5): a(f"ds_write_b128 v{(XW, XW, XRD, XRD, TL)[t]}, {vr(ACC+4*t,4)} offset:{64*t}")
    a("s_waitcnt lgkmcnt(0)")
    a("s_barrier")
    OUTS = f"s[{SRD_OUT}:{SRD_OUT+3}]"
    def rd(ra, base):
        for h in range(2):
            for q in range(2): a(f"ds_read_b128 {vr(base+8*h+4*q,4)}, v{ra} offset:{16*q}")
            if h == 0: a(f"v_add_u32 v{ra}, {OUT_HALF}, v{ra}")
    def fin(ga, base):
        for r in range(8): a(f"v_add_f32 v{base+r}, v{base+r}, v{base+8+r}")
        for r in range(4): a(f"v_cvt_pk_bf16_f32 v{base+r}, v{base+2*r}, v{base+2*r+1}")
        a(f"buffer_store_dwordx4 {vr(base,4)}, v{ga}, {OUTS}, s{sA} offen {k.o.get('ost', '')}")
    rd(TM + 4, WB)
    a("s_mov_b64 exec, 0xffff")
    rd(TM + 6, WB + 16)
    a("s_mov_b64 exec, -1")
    a("s_waitcnt lgkmcnt(4)")
    fin(TM + 5, WB)
    a("s_mov_b64 exec, 0xffff")
    a("s_waitcnt lgkmcnt(0)")
    fin(TM + 7, WB + 16)
    a("s_mov_b64 exec, -1")
```

```python
import sys, math
from asmlib import Asm, vr, sr, f2u, check
from tables import *

NAME = "sequential_preLN__mha_block__dense_activation_silu__prompt"
LDS_BYTES = 163840
SPIN_MAX = 200000

S_G = 2
SRD_X, SRD_WQ, SRD_WS, SRD_OUT, SRD_DBG, SRD_RL = 4, 8, 12, 16, 20, 24
S_W, S_C, S_J = 28, 29, 30
S_NONCE = 32
S_PTR = 36
T0, T1, T2, T3, T4, T5 = 54, 55, 56, 57, 58, 59
S_M1 = 60
S_SPIN = 62

class K:
    def __init__(self, stop_after=99, opts=None):
        self.a = Asm()
        self.stop = stop_after
        self.o = opts or {}
        self.pad = 0
        self._sides = []; self._late1 = []

    def srd(self, d, ptr, nbytes):
        a = self.a
        a(f"s_mov_b32 s{d}, s{ptr}")
        a(f"s_and_b32 s{d+1}, s{ptr+1}, 0xffff")
        a(f"s_mov_b32 s{d+2}, {nbytes}")
        a(f"s_mov_b32 s{d+3}, 0x20000")

    def stamp(self, idx):
        if not self.o.get("stamps"): return
        if self.o["stamps"] == "min" and idx not in (0, 9, 10, 31): return
        a = self.a
        a("s_memrealtime s[100:101]")
        a("s_waitcnt lgkmcnt(0)")
        a(f"v_writelane_b32 v255, s100, {idx}")
        if idx < 22 and self.o["stamps"] != "min":
            a("s_memtime s[100:101]")
            a("s_waitcnt lgkmcnt(0)")
            a(f"v_writelane_b32 v255, s100, {idx+32}")

    def stamp_dyn(self, base, sreg):
        if not self.o.get("its"): return
        a = self.a
        a("s_memtime s[100:101]")
        a("s_mov_b32 s99, m0")
        a(f"s_add_u32 m0, s{sreg}, {base}")
        a("s_waitcnt lgkmcnt(0)")
        a("v_writelane_b32 v255, s100, m0")
        a("s_mov_b32 m0, s99")

    def stamp_flush(self):
        if not self.o.get("stamps"): return
        a = self.a
        if self.o.get("dbgwg"):
            L = a.newlabel("dbg")
            a(f"s_cmp_lg_u32 s{S_G}, {int(self.o['dbgwg'])}")
            a(f"s_cbranch_scc1 {L}")
            a(f"s_cmp_lg_u32 s{S_W}, 0")
            a(f"s_cbranch_scc1 {L}")
            a(f"v_readlane_b32 s{T1}, v255, 0")
            for n, i in enumerate((3, 4, 7, 8, 9, 10, 12, 13, 15, 16, 18, 19, 31)):
                a(f"v_readlane_b32 s{T0}, v255, {i}")
                a("s_nop 3")
                a(f"s_sub_u32 s{T0}, s{T0}, s{T1}")
                a(f"v_mov_b32 v1, s{T0}")
                a(f"v_mov_b32 v2, {8+4*n}")
                a(f"buffer_store_dword v1, v2, s[{SRD_DBG}:{SRD_DBG+3}], 0 offen")
            a.label(L)
            return
        a(f"s_lshl_b32 s{T0}, s{S_G}, 3")
        a(f"s_add_u32 s{T0}, s{T0}, s{S_W}")
        a(f"s_lshl_b32 s{T0}, s{T0}, 8")
        a(f"s_add_u32 s{T0}, s{T0}, {WS_SIZE}")
        a("v_lshlrev_b32 v1, 2, v0")
        a(f"buffer_store_dword v255, v1, s[{SRD_WS}:{SRD_WS+3}], s{T0} offen")
        a("s_mov_b64 exec, -1")

    def hold(self, key):
        if not self.o.get(key): return
        a = self.a
        L = a.newlabel("hold")
        a.label(L)
        a("s_memrealtime s[100:101]")
        a("s_waitcnt lgkmcnt(0)")
        a(f"s_sub_u32 s100, s100, s{S_NONCE}")
        a(f"s_cmp_lt_u32 s100, {int(float(self.o[key]) * 100)}")
        a(f"s_cbranch_scc1 {L}")

    def diag(self, what):
        if self.o.get("diag") == what: self.a("s_mov_b32 s35, 1")

    def dma(self, voff, srd, soff, flags=""):
        if self.o.get("nodma"): return
        self.a(f"buffer_load_dwordx4 v{voff}, s[{srd}:{srd+3}], {soff} offen {flags} lds".replace("  ", " "))

    def flag_prep(self, vt):
        a = self.a
        a(f"v_mov_b32 v{vt}, s{S_NONCE}")
        a(f"v_mov_b32 v{vt+1}, s{S_NONCE+1}")
        a(f"v_mov_b32 v{vt+2}, 0")

    def flag_store(self, s_off, vt, pol="sc1", prepped=False):
        a = self.a
        L = a.newlabel("nofl")
        a(f"s_cmp_lg_u32 s{S_W}, 0")
        a(f"s_cbranch_scc1 {L}")
        if not prepped: self.flag_prep(vt)
        a("s_mov_b64 exec, 1")
        a(f"buffer_store_dwordx2 v[{vt}:{vt+1}], v{vt+2}, s[{SRD_WS}:{SRD_WS+3}], s{s_off} offen {pol}")
        a("s_mov_b64 exec, -1")
        a.label(L)

    def poll(self, n, s_off, spacing, vt, only_wave0=True):
        a = self.a
        L = a.newlabel("poll"); Ld = a.newlabel("polld")
        if only_wave0:
            a(f"s_cmp_lg_u32 s{S_W}, 0")
            a(f"s_cbranch_scc1 {Ld}")
        a(f"s_mov_b32 s{S_SPIN}, 0")
        if n == 256:
            assert spacing == 8
            a(f"v_lshlrev_b32 v{vt+8}, 4, v0")
            a.label(L)
            a(f"buffer_load_dwordx4 v[{vt}:{vt+3}], v{vt+8}, s[{SRD_WS}:{SRD_WS+3}], s{s_off} offen sc1")
            a(f"buffer_load_dwordx4 v[{vt+4}:{vt+7}], v{vt+8}, s[{SRD_WS}:{SRD_WS+3}], s{s_off} offen offset:1024 sc1")
            a(f"s_add_u32 s{S_SPIN}, s{S_SPIN}, 1")
            a("s_waitcnt vmcnt(0)")
            a(f"v_cmp_ne_u64 vcc, s[{S_NONCE}:{S_NONCE+1}], v[{vt}:{vt+1}]")
            a(f"v_cmp_ne_u64 s[{S_M1}:{S_M1+1}], s[{S_NONCE}:{S_NONCE+1}], v[{vt+2}:{vt+3}]")
            a("s_nop 0")
            a(f"s_or_b64 s[{T4}:{T5}], vcc, s[{S_M1}:{S_M1+1}]")
            a(f"v_cmp_ne_u64 vcc, s[{S_NONCE}:{S_NONCE+1}], v[{vt+4}:{vt+5}]")
            a(f"v_cmp_ne_u64 s[{S_M1}:{S_M1+1}], s[{S_NONCE}:{S_NONCE+1}], v[{vt+6}:{vt+7}]")
            a("s_nop 0")
            a(f"s_or_b64 s[{T4}:{T5}], s[{T4}:{T5}], vcc")
            a(f"s_or_b64 s[{T4}:{T5}], s[{T4}:{T5}], s[{S_M1}:{S_M1+1}]")
        else:
            a(f"v_and_b32 v{vt+2}, {n-1}, v0")
            a(f"v_mul_u32_u24 v{vt+2}, {spacing}, v{vt+2}")
            a.label(L)
            a(f"buffer_load_dwordx2 v[{vt}:{vt+1}], v{vt+2}, s[{SRD_WS}:{SRD_WS+3}], s{s_off} offen sc1")
            a(f"s_add_u32 s{S_SPIN}, s{S_SPIN}, 1")
            a("s_waitcnt vmcnt(0)")
            a(f"v_cmp_ne_u64 vcc, s[{S_NONCE}:{S_NONCE+1}], v[{vt}:{vt+1}]")
            a("s_nop 0")
            a(f"s_or_b64 s[{T4}:{T5}], vcc, vcc")
        a(f"s_cbranch_scc0 {Ld}")
        if self.o.get("psleep"): a(f"s_sleep {int(self.o['psleep'])}")
        a(f"s_cmp_lt_u32 s{S_SPIN}, {SPIN_MAX}")
        a(f"s_cbranch_scc1 {L}")
        a.label(Ld)

    def pollp(self, n, s_off, spacing, va, vt, depth):
        a = self.a
        L = a.newlabel("poll"); Ld = a.newlabel("polld")
        N = f"s[{S_NONCE}:{S_NONCE+1}]"
        a(f"s_cmp_lg_u32 s{S_W}, 0")
        a(f"s_cbranch_scc1 {Ld}")
        a(f"s_mov_b32 s{S_SPIN}, 0")
        a(f"v_and_b32 v{va}, {n-1}, v0")
        a(f"v_mul_u32_u24 v{va}, {spacing}, v{va}")
        ld = lambda i: a(f"buffer_load_dwordx2 v[{vt+2*i}:{vt+2*i+1}], v{va}, s[{SRD_WS}:{SRD_WS+3}], s{s_off} offen sc1")
        for i in range(depth - 1):
            ld(i); a(f"s_sleep {int(self.o.get('psl', 2))}")
        a.label(L)
        for i in range(depth):
            ld((i + depth - 1) % depth)
            a(f"s_waitcnt vmcnt({depth-1})")
            a(f"v_cmp_ne_u64 vcc, {N}, v[{vt+2*i}:{vt+2*i+1}]")
            a(f"s_cbranch_vccz {Ld}")
        a(f"s_add_u32 s{S_SPIN}, s{S_SPIN}, 1")
        a(f"s_cmp_lt_u32 s{S_SPIN}, {SPIN_MAX}")
        a(f"s_cbranch_scc1 {L}")
        a.label(Ld)

    def poll2(self, va, vb, s_off, vt):
        a = self.a
        L = a.newlabel("poll"); Ld = a.newlabel("polld")
        N = f"s[{S_NONCE}:{S_NONCE+1}]"
        a(f"s_cmp_lg_u32 s{S_W}, 0")
        a(f"s_cbranch_scc1 {Ld}")
        a(f"s_mov_b32 s{S_SPIN}, 0")
        a.label(L)
        a(f"buffer_load_dwordx2 v[{vt}:{vt+1}], v{va}, s[{SRD_WS}:{SRD_WS+3}], s{s_off} offen sc1")
        a(f"buffer_load_dwordx2 v[{vt+2}:{vt+3}], v{vb}, s[{SRD_WS}:{SRD_WS+3}], s{s_off} offen sc1")
        a(f"s_add_u32 s{S_SPIN}, s{S_SPIN}, 1")
        a("s_waitcnt vmcnt(0)")
        a(f"v_cmp_ne_u64 vcc, {N}, v[{vt}:{vt+1}]")
        a(f"v_cmp_ne_u64 s[{S_M1}:{S_M1+1}], {N}, v[{vt+2}:{vt+3}]")
        a("s_nop 0")
        a(f"s_or_b64 vcc, vcc, s[{S_M1}:{S_M1+1}]")
        a(f"s_cbranch_scc0 {Ld}")
        if self.o.get("psleep"): a(f"s_sleep {int(self.o['psleep'])}")
        a(f"s_cmp_lt_u32 s{S_SPIN}, {SPIN_MAX}")
        a(f"s_cbranch_scc1 {L}")
        a.label(Ld)

    def entry(self):
        a = self.a
        a(f"s_cmp_ge_u32 s{S_G}, 256")
        a("s_cbranch_scc1 L_end")
        a(f"s_load_dwordx2 s[{SRD_X}:{SRD_X+1}], s[0:1], 0")
        a(f"s_load_dwordx2 s[{SRD_WQ}:{SRD_WQ+1}], s[0:1], 8")
        a(f"s_load_dwordx2 s[{SRD_DBG}:{SRD_DBG+1}], s[0:1], 56")
        a(f"s_load_dwordx16 s[{S_PTR}:{S_PTR+15}], s[0:1], 0")
        a(f"s_load_dwordx2 s[{S_PTR+16}:{S_PTR+17}], s[0:1], 64")
        a(f"s_memrealtime s[{S_NONCE}:{S_NONCE+1}]")
        if self.o.get("stamps"): a("v_mov_b32 v255, 0")
        self.stamp(0)
        a("v_lshrrev_b32 v1, 6, v0")
        a("v_and_b32 v0, 63, v0")
        a(f"v_readfirstlane_b32 s{S_W}, v1")
        a(f"s_and_b32 s{S_C}, s{S_G}, 7")
        a(f"s_lshr_b32 s{S_J}, s{S_G}, 3")

    ACC = 16; XF = 160; WF = 176; XA = 72; WA = 144; DXA, DXB, DW = 78, 79, 80; VXM = 76
    ONES = 82
    CQ = 96
    CQA = 81; CSW = 85
    PGA, PGV, PGR, PGD = 116, 117, 118, 119
    RSA, RS = 84, 128
    STA = 86
    RLV, RLA = 157, 158
    VN = 92
    sRB, sCT, sKC, sXO, sWO, sSLOT, sCNT, sXM, sTG, sNH = 64, 65, 66, 67, 68, 69, 70, 71, 72, 73
    sTAB = 74
    sM0X = 80; sWO2 = 81; sKC0 = 82; sSIDE = 83; sXB = 71; sWB = 69
    sRL = 84
    P1_MISC = 148 * 1024
    RL_SCR = 68 * 1024
    CQ_SCR = 128 * 1024
    DUMMY = 159 * 1024
    CPF_LINES = 8

    def p1_issue(self, pieces=(0, 1, 2, 3)):
        a = self.a
        if 0 in pieces:
            a(f"s_mov_b32 m0, s{self.sM0X}")
            a(f"s_add_u32 s{self.sM0X}, s{self.sM0X}, 32768")
            self.dma(self.DXA, SRD_X, f"s{self.sXO}")
        if 1 in pieces:
            a("s_add_u32 m0, m0, 16384")
            a(f"s_add_u32 s{self.sWO2}, s{self.sWO}, 15360")
            self.dma(self.DW, SRD_WQ, f"s{self.sWO}")
        if 2 in pieces:
            a("s_sub_u32 m0, m0, 15360")
            a(f"s_add_u32 s{self.sWO}, s{self.sWO}, 245760")
            self.dma(self.DXB, SRD_X, f"s{self.sXO}")
        if 3 in pieces:
            a("s_add_u32 m0, m0, 16384")
            a(f"s_add_u32 s{self.sXO}, s{self.sXO}, 128")
            self.dma(self.DW, SRD_WQ, f"s{self.sWO2}")
            a(f"s_and_b32 s{self.sM0X}, s{self.sM0X}, 0x1ffff")
            a(f"s_sub_u32 s{self.sKC}, s{self.sKC}, 1")
            a(f"s_cmov_b32 s{self.sXO}, s{self.sXB}")
            a(f"s_cmov_b32 s{self.sWO}, s{self.sWB}")

    def p1_setup_a(self):
        a = self.a
        a(f"s_lshr_b32 s{T0}, s{S_C}, 1")
        a(f"s_lshl_b32 s{T0}, s{T0}, 2")
        a(f"s_lshr_b32 s{T1}, s{S_J}, 3")
        a(f"s_add_u32 s{self.sRB}, s{T0}, s{T1}")
        a(f"s_and_b32 s{T0}, s{S_C}, 1")
        a(f"s_lshl_b32 s{T0}, s{T0}, 3")
        a(f"s_and_b32 s{T2}, s{S_J}, 7")
        a(f"s_add_u32 s{self.sCT}, s{T0}, s{T2}")
        g = int(self.o.get("rotg", 4))
        if g == 8:
            a(f"s_lshl_b32 s{T1}, s{T1}, 1")
            a(f"s_add_u32 s{self.sKC}, s{T2}, s{T1}")
            a(f"s_bfe_u32 s{T0}, s{S_C}, 0x10001")
            a(f"s_and_b32 s{T1}, s{S_C}, 4")
            a(f"s_lshl_b32 s{T1}, s{T1}, 1")
            a(f"s_add_u32 s{T0}, s{T0}, s{T1}")
            a(f"s_add_u32 s{self.sKC}, s{self.sKC}, s{T0}")
        else:
            bases, offs, shift = {3: ((0, 3, 7), (0, 1, 2, 6), 0), 4: ((0, 2, 5, 7), (0, 1, 2, 3), 0), 5: ((0, 2, 4, 6, 8), (0, 1, 0, 1), 1)}[g]
            a(f"s_add_u32 s{T1}, s{T1}, s{T2}")
            a(f"s_lshr_b32 s{T0}, s{S_C}, 1")
            if shift: a(f"s_add_u32 s{T1}, s{T1}, s{T0}")
            tab = sum(bases[i % g] << (4 * i) for i in range(16))
            a(f"s_lshl_b32 s{T1}, s{T1}, 2")
            a(f"s_mov_b32 s{T4}, 0x{tab & 0xffffffff:08x}")
            a(f"s_mov_b32 s{T5}, 0x{tab >> 32:08x}")
            a(f"s_lshr_b64 s[{T4}:{T5}], s[{T4}:{T5}], s{T1}")
            a(f"s_and_b32 s{self.sKC}, s{T4}, 15")
            a(f"s_lshl_b32 s{T0}, s{T0}, 2")
            a(f"s_lshr_b32 s{T0}, 0x{sum(o << (4 * i) for i, o in enumerate(offs)):04x}, s{T0}")
            a(f"s_and_b32 s{T0}, s{T0}, 15")
            a(f"s_add_u32 s{self.sKC}, s{self.sKC}, s{T0}")
            for ct in range(8):
                assert len({(bases[(ct + rl + shift * aa) % g] + offs[aa]) % 10 for aa in range(4) for rl in range(4)}) == 10
        a(f"s_mul_i32 s{T0}, s{self.sKC}, 26")
        a(f"s_lshr_b32 s{T0}, s{T0}, 8")
        a(f"s_mul_i32 s{T0}, s{T0}, 10")
        a(f"s_sub_u32 s{self.sKC}, s{self.sKC}, s{T0}")
        a(f"s_mov_b32 s{self.sKC0}, s{self.sKC}")
        a(f"s_mul_i32 s{self.sXB}, s{self.sRB}, 163840")
        a(f"s_lshl_b32 s{T0}, s{self.sKC}, 7")
        a(f"s_add_u32 s{self.sXO}, s{self.sXB}, s{T0}")
        a(f"s_mul_i32 s{self.sWO}, s{self.sKC}, 245760")
        a(f"s_lshl_b32 s{self.sWB}, s{self.sCT}, 8")
        a(f"s_add_u32 s{self.sWO}, s{self.sWO}, s{self.sWB}")
        a(f"s_lshl_b32 s{self.sM0X}, s{S_W}, 11")
        a(f"s_sub_u32 s{self.sKC}, 9, s{self.sKC}")
        a("v_lshrrev_b32 v1, 3, v0")
        a("v_lshrrev_b32 v2, 4, v0")
        a("v_and_b32 v3, 7, v0")
        a("v_xor_b32 v3, v3, v2")
        a(f"s_lshl_b32 s{T0}, s{S_W}, 4")
        a(f"v_add_u32 v4, s{T0}, v1")
        a("v_mul_u32_u24 v4, 1280, v4")
        a(f"v_lshl_add_u32 v{self.DXA}, v3, 4, v4")
        a(f"v_xor_b32 v{self.DXB}, 64, v{self.DXA}")
        a(f"v_add_u32 v{self.DXB}, 10240, v{self.DXB}")
        a("v_lshlrev_b32 v3, 2, v2")
        a("v_and_b32 v4, 15, v0")
        a("v_xor_b32 v3, v3, v4")
        a(f"s_lshl_b32 s{T0}, s{S_W}, 3")
        a(f"v_add_u32 v4, s{T0}, v2")
        a("v_mul_u32_u24 v4, 3840, v4")
        a(f"v_lshl_add_u32 v{self.DW}, v3, 4, v4")
        for d, n in ((SRD_X, 2048 * 1280), (SRD_WQ, 640 * 3840), (SRD_DBG, 256)):
            a(f"s_mov_b32 s{d+2}, {n}")
            a(f"s_mov_b32 s{d+3}, 0x20000")
        a("s_waitcnt lgkmcnt(0)")
        if self.o.get("fixown"): a(f"s_mov_b32 s31, s{S_NONCE}")
        if self.o.get("diag"): a("s_mov_b32 s35, 0")
        a(f"s_or_b32 s{T0}, s{S_G}, s{S_W}")
        a("s_cbranch_scc0 L_nonce_pub")
        a.label("L_nonce_done")
        a(f"s_cmp_eq_u32 s{self.sCT}, 15")
        a("s_cbranch_scc1 L_p1_noissue")
        self.p1_issue()
        if self.o.get("first5", "1") == "1": self.p1_issue((0,))
        a.label("L_p1_noissue")
        self.stamp(1)
        self.srd(SRD_WS, S_PTR + 16, WS_SIZE + ((1 << 20) if self.o.get("stamps") else 0))
        self.srd(SRD_OUT, S_PTR + 12, 2048 * 1280)
        a(f"s_mov_b64 s[{SRD_RL}:{SRD_RL+1}], 0")
        a(f"s_mov_b32 s{SRD_RL+2}, 0")
        a(f"s_mov_b32 s{SRD_RL+3}, 0x20000")
        a(f"v_mov_b32 v{self.RLV}, 0")
        if self.o.get("cpf", "1") == "1":
            Lc = a.newlabel("cpf")
            a(f"s_cmp_lg_u32 s{S_W}, 7")
            a(f"s_cbranch_scc1 {Lc}")
            a(f"s_getpc_b64 s[{T4}:{T5}]")
            a.label("L_pc_here")
            a(f"s_mul_i32 s{T0}, s{S_J}, {self.CPF_LINES*128}")
            a(f"s_sub_u32 s{T0}, s{T0}, L_pc_here-{NAME}_kernel")
            a(f"v_min_u32 v3, {self.CPF_LINES-1}, v0")
            a(f"v_lshl_add_u32 v3, v3, 7, s{T0}")
            a("v_ashrrev_i32 v5, 31, v3")
            a(f"v_mov_b32 v6, s{T5}")
            a(f"v_add_co_u32 v4, vcc, s{T4}, v3")
            a("s_nop 1")
            a("v_addc_co_u32 v5, vcc, v5, v6, vcc")
            a("global_load_dword v254, v[4:5], off")
            a.label(Lc)

    def relayout_setup(self):
        a = self.a
        R = self.sRL
        u = a.newlabel("u")
        sID, sKS, sCB, sST, sA, sB, sCc, sD = T0, T1, T2, T3, 93, 94, 95, 96
        sBase, sSl, sKsS = 97, 98, 99
        a(f"s_mul_i32 s{sID}, s{S_G}, 5")
        a(f"s_add_u32 s{sID}, s{sID}, s{S_W}")
        a(f"s_sub_u32 s{sID}, s{sID}, 1")
        a(f"s_min_u32 s{sID}, s{sID}, 1279")
        a(f"s_mov_b32 s{sA}, 16")
        a(f"s_mov_b32 s{sB}, 8")
        a(f"s_mov_b32 s{sCc}, 4")
        a(f"s_mov_b32 s{SRD_RL+3}, 0x20000")
        a(f"s_mov_b32 s{R+8}, -1")
        a(f"s_cmp_lt_u32 s{sID}, 200")
        a(f"s_cbranch_scc1 L_rl_wo{u}")
        a(f"s_cmp_lt_u32 s{sID}, 740")
        a(f"s_cbranch_scc1 L_rl_w1{u}")
        a(f"s_sub_u32 s{sID}, s{sID}, 740")
        a(f"s_mul_i32 s{sKS}, s{sID}, 6554")
        a(f"s_lshr_b32 s{sKS}, s{sKS}, 16")
        a(f"s_mul_i32 s{sCB}, s{sKS}, 10")
        a(f"s_sub_u32 s{sCB}, s{sID}, s{sCB}")
        a(f"s_lshl_b32 s{sD}, s{sKS}, 5")
        a(f"s_mov_b32 s{SRD_RL}, s{S_PTR+10}")
        a(f"s_and_b32 s{SRD_RL+1}, s{S_PTR+11}, 0xffff")
        a(f"s_mov_b32 s{SRD_RL+2}, {1728*1280}")
        a(f"s_mov_b32 s{sBase}, {WS_W2}")
        a(f"s_mov_b32 s{sSl}, {54*5120}")
        a(f"s_cmp_ge_u32 s{sKS}, 48")
        a(f"s_cselect_b32 s{sA}, 4, 16")
        a(f"s_cselect_b32 s{sB}, 16, 8")
        a(f"s_cselect_b32 s{sCc}, 8, 4")
        a(f"s_add_u32 s{T4}, s{sKS}, 3")
        a(f"s_cmp_ge_u32 s{sKS}, 24")
        a(f"s_cselect_b32 s{T4}, s{T4}, s{sKS}")
        a(f"s_sub_u32 s{T5}, s{sKS}, 24")
        a(f"s_cmp_ge_u32 s{sKS}, 48")
        a(f"s_cselect_b32 s{T4}, s{T5}, s{T4}")
        a(f"s_cmp_ge_u32 s{sKS}, 51")
        a(f"s_cselect_b32 s{sKS}, s{sKS}, s{T4}")
        a(f"s_branch L_rl_n640{u}")
        a.label(f"L_rl_wo{u}")
        a(f"s_mul_i32 s{sKS}, s{sID}, 6554")
        a(f"s_lshr_b32 s{sKS}, s{sKS}, 16")
        a(f"s_mul_i32 s{sCB}, s{sKS}, 10")
        a(f"s_sub_u32 s{sCB}, s{sID}, s{sCB}")
        a(f"s_mul_i32 s{sD}, s{sKS}, 40")
        a(f"s_mul_i32 s{sST}, s{sKS}, 160")
        a(f"s_sub_u32 s{sST}, s{sST}, {160*16-16}")
        a(f"s_cmp_lt_u32 s{sKS}, 16")
        a(f"s_cselect_b32 s{sD}, s{sD}, s{sST}")
        a(f"s_cselect_b32 s{sA}, 8, 20")
        a(f"s_cselect_b32 s{sB}, 20, 0x50")
        a(f"s_cselect_b32 s{sCc}, 4, 40")
        a(f"s_mov_b32 s{SRD_RL}, s{S_PTR+4}")
        a(f"s_and_b32 s{SRD_RL+1}, s{S_PTR+5}, 0xffff")
        a(f"s_mov_b32 s{SRD_RL+2}, {640*1280}")
        a(f"s_mov_b32 s{sBase}, {WS_WO}")
        a(f"s_mov_b32 s{sSl}, {20*5120}")
        a(f"s_add_u32 s{T4}, s{sKS}, 2")
        a(f"s_cmp_ge_u32 s{sKS}, 8")
        a(f"s_cselect_b32 s{T4}, s{T4}, s{sKS}")
        a(f"s_sub_u32 s{T5}, s{sKS}, 8")
        a(f"s_cmp_ge_u32 s{sKS}, 16")
        a(f"s_cselect_b32 s{T4}, s{T5}, s{T4}")
        a(f"s_cmp_ge_u32 s{sKS}, 18")
        a(f"s_cselect_b32 s{sKS}, s{sKS}, s{T4}")
        a(f"s_sub_u32 s{T4}, s{sKS}, 1")
        a(f"s_cmp_ge_u32 s{sKS}, 10")
        a(f"s_cselect_b32 s{T4}, s{T4}, s{sKS}")
        a(f"s_cmp_eq_u32 s{sKS}, 9")
        a(f"s_cselect_b32 s{T4}, 18, s{T4}")
        a(f"s_cmp_eq_u32 s{sKS}, 19")
        a(f"s_cselect_b32 s{sKS}, 19, s{T4}")
        a.label(f"L_rl_n640{u}")
        a(f"s_mov_b32 s{sST}, 1280")
        a(f"s_mul_i32 s{sKsS}, s{sKS}, 5120")
        a(f"s_add_u32 s{sBase}, s{sBase}, s{sKsS}")
        for t in range(4):
            a(f"s_lshl_b32 s{T4}, s{sCB}, 2")
            a(f"s_add_u32 s{T4}, s{T4}, {t}")
            a(f"s_mul_i32 s{T5}, s{T4}, 52")
            a(f"s_lshr_b32 s{T5}, s{T5}, 8")
            a(f"s_mul_i32 s{R+4+t}, s{T5}, s{sSl}")
            a(f"s_mul_i32 s{T5}, s{T5}, 5")
            a(f"s_sub_u32 s{T4}, s{T4}, s{T5}")
            a(f"s_lshl_b32 s{T4}, s{T4}, 10")
            a(f"s_add_u32 s{R+4+t}, s{R+4+t}, s{T4}")
            a(f"s_add_u32 s{R+4+t}, s{R+4+t}, s{sBase}")
        a(f"s_branch L_rl_common{u}")
        a.label(f"L_rl_w1{u}")
        a(f"s_sub_u32 s{sID}, s{sID}, 200")
        a(f"s_mul_i32 s{sKS}, s{sID}, 2428")
        a(f"s_lshr_b32 s{sKS}, s{sKS}, 16")
        a(f"s_mul_i32 s{sCB}, s{sKS}, 27")
        a(f"s_sub_u32 s{sCB}, s{sID}, s{sCB}")
        a(f"s_lshr_b32 s{T4}, s{sKS}, 1")
        a(f"s_mul_i32 s{T4}, s{T4}, 0x50")
        a(f"s_and_b32 s{T5}, s{sKS}, 1")
        a(f"s_lshl_b32 s{T5}, s{T5}, 5")
        a(f"s_add_u32 s{sD}, s{T4}, s{T5}")
        a(f"s_mul_i32 s{T4}, s{sKS}, 160")
        a(f"s_sub_u32 s{T4}, s{T4}, {160*16-64}")
        a(f"s_cmp_lt_u32 s{sKS}, 16")
        a(f"s_cselect_b32 s{sD}, s{sD}, s{T4}")
        a(f"s_cselect_b32 s{sA}, 16, 4")
        a(f"s_cselect_b32 s{sB}, 8, 0x50")
        a(f"s_cselect_b32 s{sCc}, 4, 8")
        a(f"s_mov_b32 s{SRD_RL}, s{S_PTR+8}")
        a(f"s_and_b32 s{SRD_RL+1}, s{S_PTR+9}, 0xffff")
        a(f"s_mov_b32 s{SRD_RL+2}, {640*3456}")
        a(f"s_mov_b32 s{sST}, 3456")
        a(f"s_mul_i32 s{sKsS}, s{sKS}, 7168")
        a(f"s_add_u32 s{sBase}, s{sKsS}, {WS_W1}")
        a(f"s_mul_i32 s{R+8}, s{sKS}, {1728*4}")
        a(f"s_lshl_b32 s{T4}, s{sCB}, 8")
        a(f"s_add_u32 s{R+8}, s{R+8}, s{T4}")
        a(f"s_add_u32 s{R+8}, s{R+8}, {WS_CS1}")
        for t in range(4):
            a(f"s_lshl_b32 s{T4}, s{sCB}, 2")
            a(f"s_add_u32 s{T4}, s{T4}, {t}")
            a(f"s_mul_i32 s{T5}, s{T4}, 43")
            a(f"s_lshr_b32 s{T5}, s{T5}, 8")
            a(f"s_mul_i32 s{sSl}, s{T5}, 6")
            a(f"s_sub_u32 s{sSl}, s{T4}, s{sSl}")
            a(f"s_sub_u32 s{sKsS}, s{T4}, 96")
            a(f"s_cmp_lt_u32 s{T4}, 96")
            a(f"s_cselect_b32 s{T5}, s{T5}, s{sKsS}")
            a(f"s_cselect_b32 s{sSl}, s{sSl}, 6")
            a(f"s_mul_i32 s{R+4+t}, s{T5}, {20*7168}")
            a(f"s_lshl_b32 s{sSl}, s{sSl}, 10")
            a(f"s_add_u32 s{R+4+t}, s{R+4+t}, s{sSl}")
            a(f"s_add_u32 s{R+4+t}, s{R+4+t}, s{sBase}")
        a.label(f"L_rl_common{u}")
        a(f"s_mul_i32 s{sD}, s{sD}, s{sST}")
        a(f"s_lshl_b32 s{T4}, s{sCB}, 7")
        a(f"s_add_u32 s{R}, s{sD}, s{T4}")
        a(f"s_mul_i32 s{sA}, s{sA}, s{sST}")
        a(f"s_mul_i32 s{sB}, s{sB}, s{sST}")
        a(f"s_add_u32 s{R+1}, s{R}, s{sB}")
        a(f"s_add_u32 s{R+2}, s{R}, s{sA}")
        a(f"s_add_u32 s{R+3}, s{R+2}, s{sB}")
        a("v_lshrrev_b32 v1, 5, v0")
        a(f"v_mul_u32_u24 v1, s{sCc}, v1")
        a("v_bfe_u32 v2, v0, 3, 2")
        a("v_add_u32 v1, v1, v2")
        a(f"v_mul_u32_u24 v1, s{sST}, v1")
        a("v_and_b32 v2, 7, v0")
        a(f"v_lshl_add_u32 v{self.RLV}, v2, 4, v1")
        a("v_lshrrev_b32 v1, 2, v0")
        a("v_lshlrev_b32 v1, 7, v1")
        a("v_and_b32 v2, 3, v0")
        a("v_lshl_add_u32 v1, v2, 3, v1")
        a(f"s_lshl_b32 s{T4}, s{S_W}, 12")
        a(f"s_add_u32 s{T4}, s{T4}, {self.RL_SCR-4096}")
        a(f"v_add_u32 v{self.RLA}, s{T4}, v1")

    def relayout_issue(self, drain_older=False):
        a = self.a
        L = a.newlabel("rlsk")
        a(f"s_sub_u32 s{T0}, s{S_W}, 1")
        a(f"s_cmp_ge_u32 s{T0}, {0 if self.o.get('norl') else 5}")
        a(f"s_cbranch_scc1 {L}")
        a(f"s_lshl_b32 s{T0}, s{S_W}, 12")
        a(f"s_add_u32 m0, s{T0}, {self.RL_SCR-4096}")
        for i in range(4):
            if i: a("s_add_u32 m0, m0, 1024")
            a("s_nop 0")
            self.dma(self.RLV, SRD_RL, f"s{self.sRL+i}")
        if drain_older:
            L2 = a.newlabel("rlw")
            a("s_waitcnt vmcnt(4)")
            a(f"s_branch {L2}")
            a.label(L)
            a("s_waitcnt vmcnt(0)")
            a.label(L2)
        else:
            a.label(L)

    def relayout_finish(self, younger=None):
        a = self.a
        L = a.newlabel("rlsk"); F = 168; t = 184
        a(f"s_sub_u32 s{T0}, s{S_W}, 1")
        a(f"s_cmp_ge_u32 s{T0}, 5")
        Lo = a.newlabel("rlo")
        a(f"s_cbranch_scc1 {Lo if younger is not None else L}")
        if younger is not None: a(f"s_waitcnt vmcnt({younger})")
        for q in range(4):
            for rd in range(2):
                a(f"ds_read_b64_tr_b16 v[{F+4*q+2*rd}:{F+4*q+2*rd+1}], v{self.RLA} offset:{rd*2048+q*32}")
        a(f"v_lshlrev_b32 v{t}, 4, v0")
        for q in range(4):
            a(f"s_waitcnt lgkmcnt({6-2*q})")
            a(f"buffer_store_dwordx4 v[{F+4*q}:{F+4*q+3}], v{t}, s[{SRD_WS}:{SRD_WS+3}], s{self.sRL+4+q} offen sc1")
        if younger is not None: a("s_waitcnt vmcnt(4)")
        a(f"s_cmp_eq_u32 s{self.sRL+8}, -1")
        a(f"s_cbranch_scc1 {L}")
        for q in range(4): a(f"v_mov_b32 v{t+2+q}, 0")
        a(f"v_mov_b32 v{t+6}, 0x3f803f80")
        for k in range(4):
            for q in range(4): a(f"v_dot2_f32_bf16 v{t+2+q}, v{F+4*q+k}, v{t+6}, v{t+2+q}")
        a(f"v_lshlrev_b32 v{t+1}, 2, v0")
        a("s_nop 1")
        a(f"v_permlane16_swap_b32 v{t+2}, v{t+3}")
        a(f"v_permlane16_swap_b32 v{t+4}, v{t+5}")
        a("s_nop 0")
        a(f"v_add_f32 v{t+2}, v{t+2}, v{t+3}")
        a(f"v_add_f32 v{t+4}, v{t+4}, v{t+5}")
        a("s_nop 1")
        a(f"v_permlane32_swap_b32 v{t+2}, v{t+4}")
        a("s_nop 0")
        a(f"v_add_f32 v{t+2}, v{t+2}, v{t+4}")
        a(f"buffer_store_dword v{t+2}, v{t+1}, s[{SRD_WS}:{SRD_WS+3}], s{self.sRL+8} offen sc1")
        if younger is not None:
            a(f"s_branch {L}")
            a.label(Lo)
            a("s_waitcnt vmcnt(0)")
        a.label(L)

    def p1_setup_b(self):
        a = self.a
        a(f"s_and_b32 s{self.sTG}, s{S_W}, 3")
        a(f"s_lshr_b32 s{self.sNH}, s{S_W}, 2")
        a(f"s_cmp_ge_u32 s{self.sCT}, 5")
        a(f"s_cselect_b32 s{T0}, 5, 0")
        a(f"s_sub_u32 s{T0}, s{self.sCT}, s{T0}")
        a(f"s_lshl_b32 s{T0}, s{T0}, 1")
        a(f"s_add_u32 s{T0}, s{T0}, s{self.sNH}")
        for idx in range(10):
            a(f"s_cmp_eq_u32 s{T0}, {idx}")
            a(f"s_cbranch_scc1 L_tab{idx}")
        a(f"s_mul_i32 s{T1}, s{self.sNH}, 0x10101010")
        for k in range(4): a(f"s_add_u32 s{self.sTAB+k}, s{T1}, 0x%08x" % (0x03020100 + 0x04040404 * k))
        a(f"s_mov_b32 s{self.sTAB+4}, 0")
        a(f"s_mov_b32 s{self.sTAB+5}, 0")
        a("s_branch L_tabdone")
        for idx in range(10):
            a.label(f"L_tab{idx}")
            for k, d in enumerate(p1_table(idx // 2, idx % 2)): a(f"s_mov_b32 s{self.sTAB+k}, 0x%08x" % d)
            if idx < 9: a("s_branch L_tabdone")
        a.label("L_tabdone")
        a("v_and_b32 v1, 31, v0")
        a(f"s_lshl_b32 s{T0}, s{self.sTG}, 5")
        a(f"v_add_u32 v2, s{T0}, v1")
        a("v_bfe_u32 v3, v2, 1, 3")
        a("v_lshrrev_b32 v4, 5, v0")
        a("v_xor_b32 v3, v3, v4")
        a("v_lshlrev_b32 v3, 4, v3")
        a(f"v_lshl_add_u32 v{self.XA}, v2, 7, v3")
        a(f"s_xor_b32 s{T3}, s{self.sTG}, s{self.sNH}")
        a(f"s_lshl_b32 s{T0}, s{T3}, 5")
        a(f"v_xor_b32 v{self.XA}, s{T0}, v{self.XA}")
        for ks in range(1, 4): a(f"v_xor_b32 v{self.XA+ks}, {ks<<5}, v{self.XA}")
        a("v_bfe_u32 v5, v0, 2, 2")
        a("v_lshl_add_u32 v6, v4, 3, v5")
        a("v_lshlrev_b32 v6, 8, v6")
        a("v_and_b32 v7, 3, v0")
        a("v_lshlrev_b32 v7, 3, v7")
        a("v_and_b32 v8, 16, v0")
        a("v_cmp_ne_u32 vcc, 0, v8")
        for i in range(2):
            a(f"v_mov_b32 v8, s{self.sTAB+2*i}")
            a(f"v_mov_b32 v9, s{self.sTAB+2*i+1}")
            a("v_cndmask_b32 v8, v8, v9, vcc")
            a("v_bfe_u32 v8, v8, v7, 8")
            a("v_lshlrev_b32 v8, 3, v8")
            a("v_lshlrev_b32 v9, 6, v5")
            a("v_xor_b32 v8, v8, v9")
            a(f"v_add_u32 v8, v6, v8")
            a(f"s_lshl_b32 s{T0}, s{T3}, 12")
            a(f"v_add_u32 v{self.WA+4*i}, s{T0}, v8")
            for j in range(1, 4): a(f"v_xor_b32 v{self.WA+4*i+j}, {j<<12}, v{self.WA+4*i}")
        a(f"s_lshl_b32 s{T0}, s{self.sRB}, 2")
        a(f"s_add_u32 s{T0}, s{T0}, s{self.sTG}")
        a(f"s_lshl_b32 s{T1}, s{T0}, 9")
        a(f"s_add_u32 s{T1}, s{T1}, {WS_RS}")
        a(f"v_lshl_add_u32 v{self.RSA}, v1, 4, s{T1}")
        a(f"s_cmp_ge_u32 s{self.sCT}, 10")
        a("s_cbranch_scc1 L_p1_vaddr")
        a(f"s_lshl_b32 s{T0}, s{T0}, 9")
        a(f"s_cmp_ge_u32 s{self.sCT}, 5")
        a(f"s_cselect_b32 s{T1}, {WS_K}, {WS_Q}")
        a(f"s_add_u32 s{T0}, s{T0}, s{T1}")
        a(f"v_lshl_add_u32 v2, v1, 4, s{T0}")
        a("v_lshlrev_b32 v3, 3, v4")
        a("v_add_u32 v5, 16, v3")
        for i in range(2):
            for qq in range(2):
                a(f"v_bfe_u32 v6, s{self.sTAB+4+i}, v{3 if qq == 0 else 5}, 8")
                a(f"v_lshl_add_u32 v{self.STA+2*i+qq}, v6, 15, v2")
        a("s_branch L_p1_addrdone")
        a.label("L_p1_vaddr")
        a(f"s_mul_i32 s{T0}, s{T0}, 1280")
        a(f"s_add_u32 s{T0}, s{T0}, {WS_V}")
        a(f"s_lshl_b32 s{T1}, s{self.sCT}, 7")
        a(f"s_lshl_b32 s{T2}, s{self.sNH}, 6")
        a(f"s_add_u32 s{T1}, s{T1}, s{T2}")
        a(f"s_sub_u32 s{T1}, s{T1}, 1280")
        a(f"v_mov_b32 v{self.STA+2}, 0")
        a(f"v_mov_b32 v{self.STA+3}, 0")
        a("v_mul_u32_u24 v3, 320, v4")
        a(f"v_add_u32 v3, s{T0}, v3")
        a(f"s_mov_b32 s{T2}, 81920")
        for i in range(2):
            a(f"v_add_u32 v5, s{T1}, v1")
            if i: a("v_add_u32 v5, 32, v5")
            a("v_mul_u32_u24 v6, 3277, v5")
            a("v_lshrrev_b32 v6, 16, v6")
            a("v_mul_u32_u24 v7, 20, v6")
            a("v_sub_u32 v5, v5, v7")
            a("v_lshl_add_u32 v5, v5, 4, v3")
            a(f"v_mad_u32_u24 v{self.STA+i}, v6, s{T2}, v5")
        a.label("L_p1_addrdone")
        for r in range(32): a(f"v_mov_b32 v{self.ACC+r}, 0")
        a(f"s_mul_i32 s{T0}, s{self.sCT}, 10240")
        a(f"s_lshl_b32 s{T1}, s{self.sNH}, 9")
        a(f"s_add_u32 s{T0}, s{T0}, s{T1}")
        a(f"s_add_u32 s{T0}, s{T0}, {WS_CQ}")
        a(f"v_lshl_add_u32 v{self.CQA}, v0, 3, s{T0}")
        a(f"s_lshl_b32 s{T0}, s{self.sNH}, 8")
        a(f"s_lshl_b32 s{T1}, s{self.sTG}, 9")
        a(f"s_add_u32 s{T0}, s{T0}, {self.P1_MISC}")
        a(f"s_add_u32 s{T1}, s{T1}, s{T0}")
        a(f"v_lshl_add_u32 v{self.CSW}, v0, 2, s{T1}")
        a(f"v_lshl_add_u32 v95, v0, 2, s{T0}")
        a(f"v_mov_b32 v{self.VXM}, 0x8000")
        a(f"s_lshl_b32 s{T0}, s{S_W}, 2")
        a(f"s_add_u32 s{T0}, s{T0}, {self.P1_MISC + 2304}")
        a(f"v_mov_b32 v{self.PGA}, s{T0}")
        a(f"v_mov_b32 v{self.PGV}, 0")
        a(f"v_and_b32 v{self.PGR}, 7, v0")
        a(f"v_lshlrev_b32 v{self.PGR}, 2, v{self.PGR}")
        a(f"v_add_u32 v{self.PGR}, {self.P1_MISC + 2304}, v{self.PGR}")
        a(f"ds_write_b32 v{self.PGA}, v{self.PGV}")
        a(f"s_mov_b32 s{self.sCNT}, -1")
        a(f"s_cmp_eq_u32 s{self.sTG}, 0")
        a(f"s_cselect_b32 s{self.sSIDE}, 2, 0")

    def p1_loop(self, vmode):
        a = self.a
        tag = "v" if vmode else "q"
        if self.o.get("p1soft"):
            self.p1_loop1(vmode, 0)
        else:
            a(f"s_cmp_lg_u32 s{self.sNH}, 0")
            a(f"s_cbranch_scc1 L_p1_B{tag}")
            self.p1_loop1(vmode, 0)
            a(f"s_branch L_p1_E{tag}")
            a.label(f"L_p1_B{tag}")
            self.p1_loop1(vmode, 1)
            a.label(f"L_p1_E{tag}")
        reads, xors, mf = self.p1_parts(vmode)
        def comp(ks, rd=True, xr=True):
            a(f"s_waitcnt lgkmcnt({5 if rd or ks == 2 else 0})")
            mf(ks, 0)
            if rd: reads((ks + 2) % 4)
            mf(ks, 1)
            if xr: xors((ks + 2) % 4)
        comp(0); self.p1_issue((2,))
        comp(1); self.p1_issue((3,))
        a(f"buffer_load_dwordx4 v[{self.RS}:{self.RS+3}], v{self.RSA}, s[{SRD_WS}:{SRD_WS+3}], 0 offen sc1")
        a(f"s_mul_i32 s{T0}, s{self.sCT}, 10240")
        a(f"s_lshl_b32 s{T1}, s{S_W}, 10")
        a(f"s_add_u32 s{T0}, s{T0}, s{T1}")
        a(f"s_add_u32 s{T0}, s{T0}, {WS_CQ}")
        a(f"s_add_u32 m0, s{T1}, {self.CQ_SCR}")
        a("v_lshlrev_b32 v1, 4, v0")
        self.dma(1, SRD_WS, f"s{T0}", "sc1")
        a(f"s_add_u32 s{T0}, s{T0}, 8192")
        a("s_add_u32 m0, m0, 8192")
        a(f"s_cmp_ge_u32 s{S_W}, 2")
        a(f"s_cselect_b32 s{T0}, 0x7f000000, s{T0}")
        self.dma(1, SRD_WS, f"s{T0}", "sc1")
        a("s_waitcnt vmcnt(7)")
        a("s_barrier")
        comp(2); comp(3)
        comp(0); comp(1)
        a("s_waitcnt vmcnt(3)")
        a("s_barrier")
        comp(2, xr=False); comp(3, xr=False)
        a("s_waitcnt vmcnt(0) lgkmcnt(5)")
        a("s_barrier")
        mf(0, 0)
        self.p1_epi_reads()
        mf(0, 1)
        a("s_waitcnt lgkmcnt(11)")
        mf(1, 0); reads(2); mf(1, 1); reads(3)
        self.p1_epi_common()
        (self.p1_prep_v if vmode else self.p1_prep_q)()
        a(f"s_waitcnt lgkmcnt({15 if vmode else 14})")
        mf(2, 0)
        a(f"s_waitcnt lgkmcnt({10 if vmode else 9})")
        mf(3, 0); mf(2, 1); mf(3, 1)
        self.stamp(4)

    def p1_parts(self, vmode):
        a = self.a
        def reads(ks):
            if self.o.get("nolds"): return
            a(f"ds_read_b128 v[{self.XF+4*ks}:{self.XF+4*ks+3}], v{self.XA+ks}")
            for i in range(2):
                for rd in range(2):
                    d = self.WF + 8 * ks + 4 * i + 2 * rd
                    a(f"ds_read_b64_tr_b16 v[{d}:{d+1}], v{self.WA+4*i+ks} offset:{16384+rd*1024}")
        def xors(ks):
            for r in (self.XA + ks, self.WA + ks, self.WA + 4 + ks): a(f"v_xor_b32 v{r}, v{self.VXM}, v{r}")
            if ks == 3: a(f"v_xor_b32 v{self.VXM}, 0x10000, v{self.VXM}")
        def mf(ks, i):
            x = vr(self.XF + 4 * ks, 4); wv = vr(self.WF + 8 * ks + 4 * i, 4); acc = vr(self.ACC + 16 * i, 16)
            if self.o.get("nomfma"): pass
            elif vmode: a(f"v_mfma_f32_32x32x16_bf16 {acc}, {x}, {wv}, {acc}")
            else: a(f"v_mfma_f32_32x32x16_bf16 {acc}, {wv}, {x}, {acc}")
        return reads, xors, mf

    def p1_loop1(self, vmode, B):
        a = self.a
        L = a.newlabel("p1loop")
        pos = self.o.get("barB" if B else "barA", "1" if B else "0")
        reads, xors, mf = self.p1_parts(vmode)
        def bar():
            a("s_waitcnt vmcnt(4)")
            if not self.o.get("nobar"): a("s_barrier")
            if self.o.get("its") == "1": self.stamp_dyn(54, self.sCNT)
        soft = self.o.get("p1soft")
        def comp(ks):
            n = (ks + 2) % 4
            if soft: return comp_soft(ks)
            if ks == 2 and pos == "0": bar()
            a("s_waitcnt lgkmcnt(5)")
            mf(ks, 0)
            if ks == 2 and pos == "1": bar()
            if ks == 2 and pos == "2":
                mf(ks, 1); bar(); reads(n)
            else:
                reads(n); mf(ks, 1)
            xors(n)
            self.p1_issue((n,))
        def comp_soft(ks):
            n = (ks + 2) % 4
            ar = int(soft) - 1
            extra = {0: 0, 1: (1 if ar == 0 else 0), 2: 0, 3: 0}[ks]
            a(f"s_waitcnt lgkmcnt({5 + extra})" if ks != 2 else "s_waitcnt lgkmcnt(0)" if self.o.get("p1g0") else "s_waitcnt lgkmcnt(6)")
            mf(ks, 0)
            if ks == ar:
                a(f"v_add_u32 v{self.PGV}, 1, v{self.PGV}")
                a(f"s_waitcnt vmcnt({2 + ks})")
                a(f"ds_write_b32 v{self.PGA}, v{self.PGV}")
            if ks == 2:
                Lw, Lb = a.newlabel("late"), a.newlabel("go")
                a("s_waitcnt lgkmcnt(0)")
                a(f"v_cmp_lt_u32 vcc, v{self.PGD}, v{self.PGV}")
                a(f"s_cbranch_vccnz {Lw}")
                a.label(Lb)
                self._late1.append((Lw, Lb))
            reads(n); mf(ks, 1)
            if ks == 1: a(f"ds_read_b32 v{self.PGD}, v{self.PGR}")
            xors(n)
            self.p1_issue((n,))
        a("s_waitcnt vmcnt(6) lgkmcnt(0)")
        a("s_barrier")
        self.stamp(3)
        reads(0); reads(1); xors(0); xors(1)
        a("v_mov_b32 v6, 0x3f803f80")
        a("v_mov_b32 v2, 0")
        a("v_mov_b32 v3, 0")
        a("s_waitcnt lgkmcnt(5)")
        for k in range(4):
            for i in range(2): a(f"v_dot2_f32_bf16 v{2+i}, v{self.WF+4*i+k}, v6, v{2+i}")
        a("s_nop 2")
        a("v_permlane32_swap_b32 v2, v3")
        a("s_nop 0")
        a("v_add_f32 v2, v2, v3")
        a(f"ds_write_b32 v{self.CSW}, v2")
        a.align(int(self.o.get("al1", 3)))
        a.label(L)
        comp(0); comp(1); comp(2)
        Lr = a.newlabel("back"); Ls = a.newlabel("side")
        a(f"s_add_u32 s{self.sCNT}, s{self.sCNT}, 1")
        a(f"s_cmp_lt_u32 s{self.sCNT}, s{self.sSIDE}")
        a(f"s_cbranch_scc1 {Ls}")
        a.label(Lr)
        comp(3)
        a(f"s_cmp_lt_u32 s{self.sCNT}, {int(self.o.get('p1n', 10)) - 4}")
        a(f"s_cbranch_scc1 {L}")
        self._sides.append((Ls, Lr))

    def p1_sides(self):
        a = self.a
        for Lw, Lb in self._late1:
            a.label(Lw)
            a(f"s_mov_b32 s{S_SPIN}, 0")
            L = a.newlabel("lsp")
            a.label(L)
            a(f"ds_read_b32 v{self.PGD}, v{self.PGR}")
            a(f"s_add_u32 s{S_SPIN}, s{S_SPIN}, 1")
            a(f"s_cmp_ge_u32 s{S_SPIN}, {SPIN_MAX * 16}")
            a(f"s_cbranch_scc1 {Lb}")
            a("s_waitcnt lgkmcnt(0)")
            a(f"v_cmp_lt_u32 vcc, v{self.PGD}, v{self.PGV}")
            a(f"s_cbranch_vccnz {L}")
            a(f"s_branch {Lb}")
        self._late1 = []
        for Ls, Lr in self._sides:
            a.label(Ls)
            L1 = a.newlabel("s1")
            a(f"s_cmp_lg_u32 s{self.sCNT}, 0")
            a(f"s_cbranch_scc1 {L1}")
            a("v_mov_b32 v1, 0")
            a(f"buffer_load_dwordx2 v[{self.VN}:{self.VN+1}], v1, s[{SRD_DBG}:{SRD_DBG+3}], 0 offen sc1")
            a(f"s_branch {Lr}")
            a.label(L1)
            a("s_waitcnt vmcnt(4)")
            self.nonce_get("nonce2")
            a(f"v_mov_b32 v1, {self.P1_MISC + 2048}")
            a(f"ds_write_b64 v1, v[{self.VN}:{self.VN+1}]")
            for k in range(4): a(f"ds_read_b32 v{2+k}, v95 offset:{512*k}")
            a(f"s_lshl_b32 s{T0}, s{self.sKC0}, 10")
            a("s_waitcnt lgkmcnt(0)")
            a("v_add_f32 v2, v2, v3")
            a("v_add_f32 v4, v4, v5")
            a(f"v_mov_b32 v3, s{S_NONCE}")
            a("v_add_f32 v2, v2, v4")
            a(f"buffer_store_dwordx2 v[2:3], v{self.CQA}, s[{SRD_WS}:{SRD_WS+3}], s{T0} offen sc1")
            a(f"s_branch {Lr}")

    def p1_gather(self):
        a = self.a
        a(f"buffer_load_dwordx4 v[{self.RS}:{self.RS+3}], v{self.RSA}, s[{SRD_WS}:{SRD_WS+3}], 0 offen sc1")
        a(f"s_movk_i32 s{T0}, 0x1000")
        a(f"s_movk_i32 s{T1}, 0x2000")
        for k in range(10):
            so = ("0", f"s{T0}", f"s{T1}")[k // 4]
            a(f"buffer_load_dwordx2 v[{self.CQ+2*k}:{self.CQ+2*k+1}], v{self.CQA}, s[{SRD_WS}:{SRD_WS+3}], {so} offen offset:{1024*(k%4)} sc1")

    def p1_epi_reads(self):
        a = self.a
        a(f"s_lshl_b32 s{T0}, s{self.sNH}, 9")
        a(f"s_add_u32 s{T0}, s{T0}, {self.CQ_SCR}")
        a(f"v_lshl_add_u32 v1, v0, 3, s{T0}")
        for k in range(10): a(f"ds_read_b64 v[{self.CQ+2*k}:{self.CQ+2*k+1}], v1 offset:{1024*k}")
        a(f"v_mov_b32 v1, {self.P1_MISC + 2048}")
        a(f"ds_read_b64 v[{self.VN}:{self.VN+1}], v1")
        a(f"s_lshl_b32 s{T2}, s{S_W}, 9")
        a(f"s_add_u32 s{T2}, s{T2}, {self.P1_MISC+4096}")
        a(f"v_lshl_add_u32 v6, v0, 2, s{T2}")
        a("v_and_b32 v5, 31, v0")
        a(f"s_mov_b32 s{S_SPIN}, 0")

    def p1_epi_common(self):
        a = self.a
        L = a.newlabel("rs"); Ld = a.newlabel("rsd")
        a("s_waitcnt lgkmcnt(10)")
        a(f"v_readfirstlane_b32 s{S_NONCE}, v{self.VN}")
        a(f"v_readfirstlane_b32 s{S_NONCE+1}, v{self.VN+1}")
        a("s_nop 0")
        a.label(L)
        a(f"v_xor_b32 v2, s{S_NONCE}, v{self.RS+1}")
        a(f"v_xor_b32 v3, s{S_NONCE}, v{self.RS+3}")
        for k in range(0, 10, 2):
            a(f"v_xor_b32 v4, s{S_NONCE}, v{self.CQ+2*k+1}")
            a(f"v_xor_b32 v7, s{S_NONCE}, v{self.CQ+2*k+3}")
            a("v_or3_b32 v2, v2, v4, v7")
        a("v_or_b32 v2, v2, v3")
        a("v_cmp_ne_u32 vcc, 0, v2")
        a(f"s_add_u32 s{S_SPIN}, s{S_SPIN}, 1")
        a("s_or_b64 vcc, vcc, vcc")
        a(f"s_cbranch_scc0 {Ld}")
        a(f"s_cmp_ge_u32 s{S_SPIN}, {SPIN_MAX}")
        a(f"s_cbranch_scc1 {Ld}")
        self.diag("gather")
        self.p1_gather()
        a("s_waitcnt vmcnt(0)")
        a(f"s_branch {L}")
        a.label(Ld)
        Q = self.CQ
        a(f"v_add_f32 v12, v{Q}, v{Q+2}")
        a(f"v_add_f32 v13, v{Q+4}, v{Q+6}")
        a(f"v_add_f32 v14, v{Q+8}, v{Q+10}")
        a(f"v_add_f32 v15, v{Q+12}, v{Q+14}")
        a(f"v_add_f32 v2, v{Q+16}, v{Q+18}")
        a("v_add_f32 v12, v12, v13")
        a("v_add_f32 v14, v14, v15")
        a("v_add_f32 v12, v12, v2")
        a("v_add_f32 v12, v12, v14")

    def rowstats(self):
        a = self.a
        X = 100
        a("v_lshrrev_b32 v1, 3, v0")
        a(f"s_lshl_b32 s{T0}, s{S_W}, 4")
        a(f"s_lshl_b32 s{T1}, s{self.sRB}, 7")
        a(f"s_add_u32 s{T0}, s{T0}, s{T1}")
        a(f"v_add_u32 v1, s{T0}, v1")
        a("v_mul_u32_u24 v2, 1280, v1")
        a("v_and_b32 v3, 7, v0")
        a("v_lshl_add_u32 v2, v3, 4, v2")
        a(f"s_mov_b32 s{T0}, 10240")
        for k in range(10):
            for hh in range(2):
                r = X + 8 * k + 4 * hh
                a(f"buffer_load_dwordx4 v[{r}:{r+3}], v2, s[{SRD_X}:{SRD_X+3}], {'s%d' % T0 if hh else '0'} offen offset:{128*k}")
        for r in range(4, 8): a(f"v_mov_b32 v{r}, 0")
        a("v_mov_b32 v8, 0x3f803f80")
        for k in range(10):
            a(f"s_waitcnt vmcnt({18-2*k if k < 9 else 1})")
            if k == 8:
                a("v_mov_b32 v3, 0")
                a(f"buffer_load_dwordx2 v[{self.VN}:{self.VN+1}], v3, s[{SRD_DBG}:{SRD_DBG+3}], 0 offen sc1")
            for e in range(4):
                for hh in range(2):
                    r = X + 8 * k + 4 * hh + e
                    a(f"v_dot2_f32_bf16 v{4+hh}, v{r}, v8, v{4+hh}")
                    a(f"v_dot2_f32_bf16 v{6+hh}, v{r}, v{r}, v{6+hh}")
        a("s_nop 2")
        for ctl in ("quad_perm:[1,0,3,2]", "quad_perm:[2,3,0,1]", "row_half_mirror"):
            for r in range(4, 8): a(f"v_add_f32_dpp v{r}, v{r}, v{r} {ctl} row_mask:0xf bank_mask:0xf")
        a("s_waitcnt vmcnt(0)")
        self.nonce_get()
        a("v_and_b32 v3, 1, v0")
        a("v_cmp_ne_u32 vcc, 0, v3")
        a("v_lshlrev_b32 v3, 3, v3")
        a("v_add_u32 v1, v1, v3")
        a("v_cndmask_b32 v4, v4, v5, vcc")
        a("v_cndmask_b32 v6, v6, v7, vcc")
        a(f"v_mul_f32 v4, 0x%08x, v4" % f2u(1.0 / 640))
        a("v_mul_f32 v5, v4, v4")
        a(f"v_mov_b32 v7, 0x%08x" % f2u(1.0 / 640))
        a("v_fma_f32 v5, v6, v7, -v5")
        a("v_max_f32 v5, 0, v5")
        a(f"v_add_f32 v5, 0x%08x, v5" % f2u(1e-5))
        a("v_rsq_f32 v8, v5")
        a(f"v_mov_b32 v9, s{S_NONCE}")
        a(f"v_mov_b32 v11, s{S_NONCE}")
        a("v_mul_f32 v10, v4, v8")
        a("v_lshlrev_b32 v1, 4, v1")
        a(f"s_mov_b32 s{T0}, {WS_RS}")
        a("s_mov_b32 exec_lo, 0x03030303")
        a("s_mov_b32 exec_hi, 0x03030303")
        a(f"buffer_store_dwordx4 v[8:11], v1, s[{SRD_WS}:{SRD_WS+3}], s{T0} offen sc1")
        a("s_mov_b64 exec, -1")

    def p1_prep_q(self):
        a = self.a
        qs = math.log2(math.e) / math.sqrt(20.0)
        a("ds_write_b32 v6, v12")
        a("v_lshrrev_b32 v1, 5, v0")
        a(f"v_lshl_add_u32 v1, v1, 4, s{T2}")
        C = 48
        for i in range(2):
            for q4 in range(4):
                a(f"ds_read_b128 v[{C+16*i+4*q4}:{C+16*i+4*q4+3}], v1 offset:{i*128+q4*32}")
        a(f"s_cmp_lt_u32 s{self.sCT}, 5")
        a(f"s_cselect_b32 s{T1}, 0x%08x, 1.0" % f2u(qs))
        a(f"v_mul_f32 v2, s{T1}, v{self.RS}")
        a(f"v_mul_f32 v3, s{T1}, v{self.RS+2}")

    def p1_epi_q(self):
        a = self.a
        C = 48
        a("s_nop 8")
        for i in range(2):
            for qq in range(2):
                a(f"s_waitcnt lgkmcnt({6-4*i-2*qq})")
                b = 16 * i + 8 * qq
                for r in range(8): a(f"v_mul_f32 v{self.ACC+b+r}, v2, v{self.ACC+b+r}")
                for r in range(8): a(f"v_fma_f32 v{self.ACC+b+r}, -v3, v{C+b+r}, v{self.ACC+b+r}")
                o = 4 + 4 * ((2 * i + qq) % 2)
                for r in range(4): a(f"v_cvt_pk_bf16_f32 v{o+r}, v{self.ACC+b+2*r}, v{self.ACC+b+2*r+1}")
                a(f"buffer_store_dwordx4 v[{o}:{o+3}], v{self.STA+2*i+qq}, s[{SRD_WS}:{SRD_WS+3}], 0 offen sc1")

    def p1_prep_v(self):
        a = self.a
        a("v_mov_b32 v13, v12")
        a(f"v_lshl_add_u32 v6, v5, 2, s{T2}")
        a("v_lshrrev_b32 v1, 5, v0")
        a("v_permlane32_swap_b32 v12, v13")
        a(f"ds_write_b32 v6, v{self.RS}")
        a(f"ds_write_b32 v6, v{self.RS+2} offset:128")
        a(f"v_lshl_add_u32 v6, v1, 4, s{T2}")
        C = 48
        for q4 in range(4):
            a(f"ds_read_b128 v[{C+4*q4}:{C+4*q4+3}], v6 offset:{q4*32}")
            a(f"ds_read_b128 v[{C+16+4*q4}:{C+16+4*q4+3}], v6 offset:{128+q4*32}")

    def p1_epi_v(self):
        a = self.a
        C = 48
        a("s_nop 8")
        for grp in range(2):
            a(f"s_waitcnt lgkmcnt({4-4*grp})")
            for i in range(2):
                b = 16 * i + 8 * grp
                for r in range(8): a(f"v_mul_f32 v{self.ACC+b+r}, v{C+8*grp+r}, v{self.ACC+b+r}")
                for r in range(8): a(f"v_fma_f32 v{self.ACC+b+r}, -v{C+16+8*grp+r}, v{12+i}, v{self.ACC+b+r}")
                o = 4 + 4 * i
                for r in range(4): a(f"v_cvt_pk_bf16_f32 v{o+r}, v{self.ACC+b+2*r}, v{self.ACC+b+2*r+1}")
                a(f"buffer_store_dwordx4 v[{o}:{o+3}], v{self.STA+i}, s[{SRD_WS}:{SRD_WS+3}], 0 offen offset:{640*grp} sc1")

    def nonce_get(self, where="nonce"):
        a = self.a
        a(f"s_mov_b32 s{S_SPIN}, 0")
        Lc = a.newlabel("nchk"); Lo = a.newlabel("nok")
        a.label(Lc)
        a(f"v_readfirstlane_b32 s{S_NONCE}, v{self.VN}")
        a(f"v_readfirstlane_b32 s{S_NONCE+1}, v{self.VN+1}")
        a(f"s_add_u32 s{S_SPIN}, s{S_SPIN}, 1")
        a(f"s_or_b32 s{T0}, s{S_NONCE}, s{S_NONCE+1}")
        a(f"s_cbranch_scc1 {Lo}")
        a(f"s_cmp_ge_u32 s{S_SPIN}, {SPIN_MAX}")
        a(f"s_cbranch_scc1 {Lo}")
        self.diag(where)
        a("v_mov_b32 v94, 0")
        a(f"buffer_load_dwordx2 v[{self.VN}:{self.VN+1}], v94, s[{SRD_DBG}:{SRD_DBG+3}], 0 offen sc1")
        a("s_waitcnt vmcnt(0)")
        a(f"s_branch {Lc}")
        a.label(Lo)

    def phase1(self):
        a = self.a
        self.p1_setup_a()
        a(f"s_cmp_eq_u32 s{self.sCT}, 15")
        a("s_cbranch_scc0 L_p1_go")
        self.rowstats()
        a("s_branch L_p1_done")
        a.label("L_nonce_pub")
        a("v_mov_b32 v3, 0")
        a(f"v_mov_b32 v4, s{S_NONCE}")
        a(f"v_mov_b32 v5, s{S_NONCE+1}")
        a("s_mov_b64 exec, 1")
        a(f"buffer_store_dwordx2 v[4:5], v3, s[{SRD_DBG}:{SRD_DBG+3}], 0 offen sc1")
        a("s_mov_b64 exec, -1")
        a("s_branch L_nonce_done")
        a.label("L_p1_go")
        self.p1_setup_b()
        self.p1_issue((1, 2, 3) if self.o.get("first5", "1") == "1" else (0, 1, 2, 3))
        self.p1_issue((0, 1))
        self.stamp(2)
        a(f"s_cmp_ge_u32 s{self.sCT}, 10")
        a("s_cbranch_scc1 L_p1_v")
        self.p1_loop(False)
        self.p1_epi_q()
        a("s_branch L_p1_done")
        self.p1_sides(); self._sides = []
        a.label("L_p1_v")
        self.p1_loop(True)
        self.p1_epi_v()
        a("s_branch L_p1_done")
        self.p1_sides()
        a.label("L_p1_done")
        self.stamp(5)
        a(f"s_lshl_b32 s{T0}, s{self.sCT}, 4")
        a(f"s_add_u32 s{T0}, s{T0}, s{self.sRB}")
        a(f"s_mul_i32 s{T0}, s{T0}, {FSP}")
        a(f"s_add_u32 s{T0}, s{T0}, {FL_1}")
        self.flag_prep(12)
        a("s_waitcnt vmcnt(0)")
        self.stamp(6)
        a("s_barrier")
        self.flag_store(T0, 12, prepped=True)
        self.stamp(7)
        a(f"s_cmp_eq_u32 s{S_W}, 0")
        a("s_cbranch_scc1 L_no_rls")
        self.relayout_setup()
        a.label("L_no_rls")
        if self.stop < 2:
            self.relayout_issue()
            a("s_waitcnt vmcnt(0)")
            self.relayout_finish()

    def build(self):
        a = self.a
        self.entry()
        self.phase1()
        if self.stop >= 2:
            from phases import phase2, phase3, phase4, phase5
            phase2(self)
            if self.stop >= 3: phase3(self)
            if self.stop >= 4: phase4(self)
            if self.stop >= 5: phase5(self)
        a("s_waitcnt vmcnt(0)")
        if self.o.get("fixend"):
            if self.o.get("diag"):
                a("s_cmp_eq_u32 s35, 0")
                a("s_cbranch_scc1 L_end")
            a.label("L_fixend")
            a("s_memrealtime s[100:101]")
            a("s_waitcnt lgkmcnt(0)")
            a(f"s_sub_u32 s100, s100, s{31 if self.o.get('fixown') else S_NONCE}")
            a(f"s_cmp_lt_u32 s100, {int(self.o['fixend'])*100}")
            a("s_cbranch_scc1 L_fixend")
        self.stamp(31)
        self.stamp_flush()
        a.label("L_end")
        a("s_endpgm")
        a.lines.append(f".fill {self.pad}, 4, 0xbf810000")
        body = a.text()
        errs = check(body)
        if errs:
            sys.stderr.write("\n".join(errs[:40]) + "\n%d hazards\n" % len(errs))
            raise SystemExit(1)
        head = f"""; Fused preLN -> MHA -> residual -> preLN -> SiLU FFN -> residual in one persistent launch
;      checks its sums and outputs; if the shift was unsafe (sum > 2^40, inf or NaN) the wave redoes its rows
; @launch grid=(256,1,1) block=(512,1,1) lds={LDS_BYTES}
.amdgcn_target "amdgcn-amd-amdhsa--gfx950"
.text
.globl {NAME}_kernel
.p2align 8
.type {NAME}_kernel,@function
{NAME}_kernel:
"""
        tail = f""".section .rodata,"a"
.p2align 6
.amdhsa_kernel {NAME}_kernel
  .amdhsa_next_free_vgpr 256
  .amdhsa_next_free_sgpr 102
  .amdhsa_accum_offset 256
  .amdhsa_group_segment_fixed_size 0
  .amdhsa_kernarg_size 72
  .amdhsa_user_sgpr_count 2
  .amdhsa_user_sgpr_kernarg_segment_ptr 1
  .amdhsa_system_sgpr_workgroup_id_x 1
.end_amdhsa_kernel
"""
        return head + body + tail

if __name__ == "__main__":
    stop = int(sys.argv[2]) if len(sys.argv) > 2 else 99
    opts = dict(kv.split("=") for kv in sys.argv[3:])
    import subprocess
    def asm_size(path):
        r = subprocess.run(["clang", "-x", "assembler", "-target", "amdgcn-amd-amdhsa", "-mcpu=gfx950", "-c", path, "-o", "_chk.o"], capture_output=True, text=True)
        if r.returncode: print(r.stderr[:1500]); raise SystemExit(1)
        r = subprocess.run(["llvm-readelf", "-S", "_chk.o"], capture_output=True, text=True)
        return int([l for l in r.stdout.split("\n") if ".text" in l][0].split()[6], 16)
    open(sys.argv[1], "w").write(K(stop, opts).build())
    n = asm_size(sys.argv[1])
    k = K(stop, opts)
    k.CPF_LINES = (n + 4095) // 4096
    k.pad = (k.CPF_LINES * 4096 - n) // 4 + 16
    open(sys.argv[1], "w").write(k.build())
    print(sys.argv[1], "code bytes:", n, "with pad:", asm_size(sys.argv[1]))
```

```python
import sys, math
from asmlib import Asm, vr, sr, f2u, check
from tables import *

NAME = "sequential_preLN__mha_block__dense_activation_silu__prompt"
LDS_BYTES = 163840
SPIN_MAX = 200000

S_G = 2
SRD_X, SRD_WQ, SRD_WS, SRD_OUT, SRD_DBG, SRD_RL = 4, 8, 12, 16, 20, 24
S_W, S_C, S_J = 28, 29, 30
S_NONCE = 32
S_PTR = 36
T0, T1, T2, T3, T4, T5 = 54, 55, 56, 57, 58, 59
S_M1 = 60
S_SPIN = 62

class K:
    def __init__(self, stop_after=99, opts=None):
        self.a = Asm()
        self.stop = stop_after
        self.o = opts or {}
        self.pad = 0
        self._sides = []; self._late1 = []

    def srd(self, d, ptr, nbytes):
        a = self.a
        a(f"s_mov_b32 s{d}, s{ptr}")
        a(f"s_and_b32 s{d+1}, s{ptr+1}, 0xffff")
        a(f"s_mov_b32 s{d+2}, {nbytes}")
        a(f"s_mov_b32 s{d+3}, 0x20000")

    def stamp(self, idx):
        if not self.o.get("stamps"): return
        if self.o["stamps"] == "min" and idx not in (0, 9, 10, 31): return
        a = self.a
        a("s_memrealtime s[100:101]")
        a("s_waitcnt lgkmcnt(0)")
        a(f"v_writelane_b32 v255, s100, {idx}")
        if idx < 22 and self.o["stamps"] != "min":
            a("s_memtime s[100:101]")
            a("s_waitcnt lgkmcnt(0)")
            a(f"v_writelane_b32 v255, s100, {idx+32}")

    def stamp_dyn(self, base, sreg):
        if not self.o.get("its"): return
        a = self.a
        a("s_memtime s[100:101]")
        a("s_mov_b32 s99, m0")
        a(f"s_add_u32 m0, s{sreg}, {base}")
        a("s_waitcnt lgkmcnt(0)")
        a("v_writelane_b32 v255, s100, m0")
        a("s_mov_b32 m0, s99")

    def stamp_flush(self):
        if not self.o.get("stamps"): return
        a = self.a
        if self.o.get("dbgwg"):
            L = a.newlabel("dbg")
            a(f"s_cmp_lg_u32 s{S_G}, {int(self.o['dbgwg'])}")
            a(f"s_cbranch_scc1 {L}")
            a(f"s_cmp_lg_u32 s{S_W}, 0")
            a(f"s_cbranch_scc1 {L}")
            a(f"v_readlane_b32 s{T1}, v255, 0")
            for n, i in enumerate((3, 4, 7, 8, 9, 10, 12, 13, 15, 16, 18, 19, 31)):
                a(f"v_readlane_b32 s{T0}, v255, {i}")
                a("s_nop 3")
                a(f"s_sub_u32 s{T0}, s{T0}, s{T1}")
                a(f"v_mov_b32 v1, s{T0}")
                a(f"v_mov_b32 v2, {8+4*n}")
                a(f"buffer_store_dword v1, v2, s[{SRD_DBG}:{SRD_DBG+3}], 0 offen")
            a.label(L)
            return
        a(f"s_lshl_b32 s{T0}, s{S_G}, 3")
        a(f"s_add_u32 s{T0}, s{T0}, s{S_W}")
        a(f"s_lshl_b32 s{T0}, s{T0}, 8")
        a(f"s_add_u32 s{T0}, s{T0}, {WS_SIZE}")
        a("v_lshlrev_b32 v1, 2, v0")
        a(f"buffer_store_dword v255, v1, s[{SRD_WS}:{SRD_WS+3}], s{T0} offen")
        a("s_mov_b64 exec, -1")

    def hold(self, key):
        if not self.o.get(key): return
        a = self.a
        L = a.newlabel("hold")
        a.label(L)
        a("s_memrealtime s[100:101]")
        a("s_waitcnt lgkmcnt(0)")
        a(f"s_sub_u32 s100, s100, s{S_NONCE}")
        a(f"s_cmp_lt_u32 s100, {int(float(self.o[key]) * 100)}")
        a(f"s_cbranch_scc1 {L}")

    def diag(self, what):
        if self.o.get("diag") == what: self.a("s_mov_b32 s35, 1")

    def dma(self, voff, srd, soff, flags=""):
        if self.o.get("nodma"): return
        self.a(f"buffer_load_dwordx4 v{voff}, s[{srd}:{srd+3}], {soff} offen {flags} lds".replace("  ", " "))

    def flag_prep(self, vt):
        a = self.a
        a(f"v_mov_b32 v{vt}, s{S_NONCE}")
        a(f"v_mov_b32 v{vt+1}, s{S_NONCE+1}")
        a(f"v_mov_b32 v{vt+2}, 0")

    def flag_store(self, s_off, vt, pol="sc1", prepped=False):
        a = self.a
        L = a.newlabel("nofl")
        a(f"s_cmp_lg_u32 s{S_W}, 0")
        a(f"s_cbranch_scc1 {L}")
        if not prepped: self.flag_prep(vt)
        a("s_mov_b64 exec, 1")
        a(f"buffer_store_dwordx2 v[{vt}:{vt+1}], v{vt+2}, s[{SRD_WS}:{SRD_WS+3}], s{s_off} offen {pol}")
        a("s_mov_b64 exec, -1")
        a.label(L)

    def poll(self, n, s_off, spacing, vt, only_wave0=True):
        a = self.a
        L = a.newlabel("poll"); Ld = a.newlabel("polld")
        if only_wave0:
            a(f"s_cmp_lg_u32 s{S_W}, 0")
            a(f"s_cbranch_scc1 {Ld}")
        a(f"s_mov_b32 s{S_SPIN}, 0")
        if n == 256:
            assert spacing == 8
            a(f"v_lshlrev_b32 v{vt+8}, 4, v0")
            a.label(L)
            a(f"buffer_load_dwordx4 v[{vt}:{vt+3}], v{vt+8}, s[{SRD_WS}:{SRD_WS+3}], s{s_off} offen sc1")
            a(f"buffer_load_dwordx4 v[{vt+4}:{vt+7}], v{vt+8}, s[{SRD_WS}:{SRD_WS+3}], s{s_off} offen offset:1024 sc1")
            a(f"s_add_u32 s{S_SPIN}, s{S_SPIN}, 1")
            a("s_waitcnt vmcnt(0)")
            a(f"v_cmp_ne_u64 vcc, s[{S_NONCE}:{S_NONCE+1}], v[{vt}:{vt+1}]")
            a(f"v_cmp_ne_u64 s[{S_M1}:{S_M1+1}], s[{S_NONCE}:{S_NONCE+1}], v[{vt+2}:{vt+3}]")
            a("s_nop 0")
            a(f"s_or_b64 s[{T4}:{T5}], vcc, s[{S_M1}:{S_M1+1}]")
            a(f"v_cmp_ne_u64 vcc, s[{S_NONCE}:{S_NONCE+1}], v[{vt+4}:{vt+5}]")
            a(f"v_cmp_ne_u64 s[{S_M1}:{S_M1+1}], s[{S_NONCE}:{S_NONCE+1}], v[{vt+6}:{vt+7}]")
            a("s_nop 0")
            a(f"s_or_b64 s[{T4}:{T5}], s[{T4}:{T5}], vcc")
            a(f"s_or_b64 s[{T4}:{T5}], s[{T4}:{T5}], s[{S_M1}:{S_M1+1}]")
        else:
            a(f"v_and_b32 v{vt+2}, {n-1}, v0")
            a(f"v_mul_u32_u24 v{vt+2}, {spacing}, v{vt+2}")
            a.label(L)
            a(f"buffer_load_dwordx2 v[{vt}:{vt+1}], v{vt+2}, s[{SRD_WS}:{SRD_WS+3}], s{s_off} offen sc1")
            a(f"s_add_u32 s{S_SPIN}, s{S_SPIN}, 1")
            a("s_waitcnt vmcnt(0)")
            a(f"v_cmp_ne_u64 vcc, s[{S_NONCE}:{S_NONCE+1}], v[{vt}:{vt+1}]")
            a("s_nop 0")
            a(f"s_or_b64 s[{T4}:{T5}], vcc, vcc")
        a(f"s_cbranch_scc0 {Ld}")
        if self.o.get("psleep"): a(f"s_sleep {int(self.o['psleep'])}")
        a(f"s_cmp_lt_u32 s{S_SPIN}, {SPIN_MAX}")
        a(f"s_cbranch_scc1 {L}")
        a.label(Ld)

    def pollp(self, n, s_off, spacing, va, vt, depth):
        a = self.a
        L = a.newlabel("poll"); Ld = a.newlabel("polld")
        N = f"s[{S_NONCE}:{S_NONCE+1}]"
        a(f"s_cmp_lg_u32 s{S_W}, 0")
        a(f"s_cbranch_scc1 {Ld}")
        a(f"s_mov_b32 s{S_SPIN}, 0")
        a(f"v_and_b32 v{va}, {n-1}, v0")
        a(f"v_mul_u32_u24 v{va}, {spacing}, v{va}")
        ld = lambda i: a(f"buffer_load_dwordx2 v[{vt+2*i}:{vt+2*i+1}], v{va}, s[{SRD_WS}:{SRD_WS+3}], s{s_off} offen sc1")
        for i in range(depth - 1):
            ld(i); a(f"s_sleep {int(self.o.get('psl', 2))}")
        a.label(L)
        for i in range(depth):
            ld((i + depth - 1) % depth)
            a(f"s_waitcnt vmcnt({depth-1})")
            a(f"v_cmp_ne_u64 vcc, {N}, v[{vt+2*i}:{vt+2*i+1}]")
            a(f"s_cbranch_vccz {Ld}")
        a(f"s_add_u32 s{S_SPIN}, s{S_SPIN}, 1")
        a(f"s_cmp_lt_u32 s{S_SPIN}, {SPIN_MAX}")
        a(f"s_cbranch_scc1 {L}")
        a.label(Ld)

    def poll2(self, va, vb, s_off, vt):
        a = self.a
        L = a.newlabel("poll"); Ld = a.newlabel("polld")
        N = f"s[{S_NONCE}:{S_NONCE+1}]"
        a(f"s_cmp_lg_u32 s{S_W}, 0")
        a(f"s_cbranch_scc1 {Ld}")
        a(f"s_mov_b32 s{S_SPIN}, 0")
        a.label(L)
        a(f"buffer_load_dwordx2 v[{vt}:{vt+1}], v{va}, s[{SRD_WS}:{SRD_WS+3}], s{s_off} offen sc1")
        a(f"buffer_load_dwordx2 v[{vt+2}:{vt+3}], v{vb}, s[{SRD_WS}:{SRD_WS+3}], s{s_off} offen sc1")
        a(f"s_add_u32 s{S_SPIN}, s{S_SPIN}, 1")
        a("s_waitcnt vmcnt(0)")
        a(f"v_cmp_ne_u64 vcc, {N}, v[{vt}:{vt+1}]")
        a(f"v_cmp_ne_u64 s[{S_M1}:{S_M1+1}], {N}, v[{vt+2}:{vt+3}]")
        a("s_nop 0")
        a(f"s_or_b64 vcc, vcc, s[{S_M1}:{S_M1+1}]")
        a(f"s_cbranch_scc0 {Ld}")
        if self.o.get("psleep"): a(f"s_sleep {int(self.o['psleep'])}")
        a(f"s_cmp_lt_u32 s{S_SPIN}, {SPIN_MAX}")
        a(f"s_cbranch_scc1 {L}")
        a.label(Ld)

    def entry(self):
        a = self.a
        a(f"s_cmp_ge_u32 s{S_G}, 256")
        a("s_cbranch_scc1 L_end")
        a(f"s_load_dwordx2 s[{SRD_X}:{SRD_X+1}], s[0:1], 0")
        a(f"s_load_dwordx2 s[{SRD_WQ}:{SRD_WQ+1}], s[0:1], 8")
        a(f"s_load_dwordx2 s[{SRD_DBG}:{SRD_DBG+1}], s[0:1], 56")
        a(f"s_load_dwordx16 s[{S_PTR}:{S_PTR+15}], s[0:1], 0")
        a(f"s_load_dwordx2 s[{S_PTR+16}:{S_PTR+17}], s[0:1], 64")
        a(f"s_memrealtime s[{S_NONCE}:{S_NONCE+1}]")
        if self.o.get("stamps"): a("v_mov_b32 v255, 0")
        self.stamp(0)
        a("v_lshrrev_b32 v1, 6, v0")
        a("v_and_b32 v0, 63, v0")
        a(f"v_readfirstlane_b32 s{S_W}, v1")
        a(f"s_and_b32 s{S_C}, s{S_G}, 7")
        a(f"s_lshr_b32 s{S_J}, s{S_G}, 3")
        if self.o.get("cpfe", "1") == "1": self.code_prefetch(int(self.o.get("cpfw", 1)))

    def code_prefetch(self, wave):
        a = self.a
        if self.o.get("cpf", "1") != "1": return
        Lc = a.newlabel("cpf")
        a(f"s_cmp_lg_u32 s{S_W}, {wave}")
        a(f"s_cbranch_scc1 {Lc}")
        a(f"s_getpc_b64 s[{T4}:{T5}]")
        a.label("L_pc_here")
        a(f"s_mul_i32 s{T0}, s{S_J}, {self.CPF_LINES*128}")
        a(f"s_sub_u32 s{T0}, s{T0}, L_pc_here-{NAME}_kernel")
        a(f"v_lshl_add_u32 v3, v0, 7, s{T0}")
        a("v_ashrrev_i32 v5, 31, v3")
        a(f"v_mov_b32 v6, s{T5}")
        a(f"v_add_co_u32 v4, vcc, s{T4}, v3")
        a(f"s_mov_b64 exec, {(1 << self.CPF_LINES) - 1}")
        a("s_nop 0")
        a("v_addc_co_u32 v5, vcc, v5, v6, vcc")
        a("global_load_dword v254, v[4:5], off")
        a("s_mov_b64 exec, -1")
        a.label(Lc)

    ACC = 16; XF = 160; WF = 176; XA = 72; WA = 144; DXA, DXB, DW = 78, 79, 80; VXM = 76
    ONES = 82
    CQ = 96
    CQA = 81; CSW = 85
    PGA, PGV, PGR, PGD = 116, 117, 118, 119
    RSA, RS = 84, 128
    STA = 86
    RLV, RLA = 157, 158
    VN = 92
    sRB, sCT, sKC, sXO, sWO, sSLOT, sCNT, sXM, sTG, sNH = 64, 65, 66, 67, 68, 69, 70, 71, 72, 73
    sTAB = 74
    sM0X = 80; sWO2 = 81; sKC0 = 82; sSIDE = 83; sXB = 71; sWB = 69
    sRL = 84
    P1_MISC = 148 * 1024
    RL_SCR = 68 * 1024
    CQ_SCR = 128 * 1024
    DUMMY = 159 * 1024
    CPF_LINES = 8

    def p1_issue(self, pieces=(0, 1, 2, 3)):
        a = self.a
        if 0 in pieces:
            a(f"s_mov_b32 m0, s{self.sM0X}")
            a(f"s_add_u32 s{self.sM0X}, s{self.sM0X}, 32768")
            self.dma(self.DXA, SRD_X, f"s{self.sXO}")
        if 1 in pieces:
            a("s_add_u32 m0, m0, 16384")
            a(f"s_add_u32 s{self.sWO2}, s{self.sWO}, 15360")
            self.dma(self.DW, SRD_WQ, f"s{self.sWO}")
        if 2 in pieces:
            a("s_sub_u32 m0, m0, 15360")
            a(f"s_add_u32 s{self.sWO}, s{self.sWO}, 245760")
            self.dma(self.DXB, SRD_X, f"s{self.sXO}")
        if 3 in pieces:
            a("s_add_u32 m0, m0, 16384")
            a(f"s_add_u32 s{self.sXO}, s{self.sXO}, 128")
            self.dma(self.DW, SRD_WQ, f"s{self.sWO2}")
            a(f"s_and_b32 s{self.sM0X}, s{self.sM0X}, 0x1ffff")
            a(f"s_sub_u32 s{self.sKC}, s{self.sKC}, 1")
            a(f"s_cmov_b32 s{self.sXO}, s{self.sXB}")
            a(f"s_cmov_b32 s{self.sWO}, s{self.sWB}")

    def p1_setup_a(self):
        a = self.a
        a(f"s_lshr_b32 s{T0}, s{S_C}, 1")
        a(f"s_lshl_b32 s{T0}, s{T0}, 2")
        a(f"s_lshr_b32 s{T1}, s{S_J}, 3")
        a(f"s_add_u32 s{self.sRB}, s{T0}, s{T1}")
        a(f"s_and_b32 s{T0}, s{S_C}, 1")
        a(f"s_lshl_b32 s{T0}, s{T0}, 3")
        a(f"s_and_b32 s{T2}, s{S_J}, 7")
        a(f"s_add_u32 s{self.sCT}, s{T0}, s{T2}")
        g = int(self.o.get("rotg", 4))
        if g == 8:
            a(f"s_lshl_b32 s{T1}, s{T1}, 1")
            a(f"s_add_u32 s{self.sKC}, s{T2}, s{T1}")
            a(f"s_bfe_u32 s{T0}, s{S_C}, 0x10001")
            a(f"s_and_b32 s{T1}, s{S_C}, 4")
            a(f"s_lshl_b32 s{T1}, s{T1}, 1")
            a(f"s_add_u32 s{T0}, s{T0}, s{T1}")
            a(f"s_add_u32 s{self.sKC}, s{self.sKC}, s{T0}")
        else:
            bases, offs, shift = {3: ((0, 3, 7), (0, 1, 2, 6), 0), 4: ((0, 2, 5, 7), (0, 1, 2, 3), 0), 5: ((0, 2, 4, 6, 8), (0, 1, 0, 1), 1)}[g]
            a(f"s_add_u32 s{T1}, s{T1}, s{T2}")
            a(f"s_lshr_b32 s{T0}, s{S_C}, 1")
            if shift: a(f"s_add_u32 s{T1}, s{T1}, s{T0}")
            tab = sum(bases[i % g] << (4 * i) for i in range(16))
            a(f"s_lshl_b32 s{T1}, s{T1}, 2")
            a(f"s_mov_b32 s{T4}, 0x{tab & 0xffffffff:08x}")
            a(f"s_mov_b32 s{T5}, 0x{tab >> 32:08x}")
            a(f"s_lshr_b64 s[{T4}:{T5}], s[{T4}:{T5}], s{T1}")
            a(f"s_and_b32 s{self.sKC}, s{T4}, 15")
            a(f"s_lshl_b32 s{T0}, s{T0}, 2")
            a(f"s_lshr_b32 s{T0}, 0x{sum(o << (4 * i) for i, o in enumerate(offs)):04x}, s{T0}")
            a(f"s_and_b32 s{T0}, s{T0}, 15")
            a(f"s_add_u32 s{self.sKC}, s{self.sKC}, s{T0}")
            for ct in range(8):
                assert len({(bases[(ct + rl + shift * aa) % g] + offs[aa]) % 10 for aa in range(4) for rl in range(4)}) == 10
        a(f"s_mul_i32 s{T0}, s{self.sKC}, 26")
        a(f"s_lshr_b32 s{T0}, s{T0}, 8")
        a(f"s_mul_i32 s{T0}, s{T0}, 10")
        a(f"s_sub_u32 s{self.sKC}, s{self.sKC}, s{T0}")
        a(f"s_mov_b32 s{self.sKC0}, s{self.sKC}")
        a(f"s_mul_i32 s{self.sXB}, s{self.sRB}, 163840")
        a(f"s_lshl_b32 s{T0}, s{self.sKC}, 7")
        a(f"s_add_u32 s{self.sXO}, s{self.sXB}, s{T0}")
        a(f"s_mul_i32 s{self.sWO}, s{self.sKC}, 245760")
        a(f"s_lshl_b32 s{self.sWB}, s{self.sCT}, 8")
        a(f"s_add_u32 s{self.sWO}, s{self.sWO}, s{self.sWB}")
        a(f"s_lshl_b32 s{self.sM0X}, s{S_W}, 11")
        a(f"s_sub_u32 s{self.sKC}, 9, s{self.sKC}")
        a("v_lshrrev_b32 v1, 3, v0")
        a("v_lshrrev_b32 v2, 4, v0")
        a("v_and_b32 v3, 7, v0")
        a("v_xor_b32 v3, v3, v2")
        a(f"s_lshl_b32 s{T0}, s{S_W}, 4")
        a(f"v_add_u32 v4, s{T0}, v1")
        a("v_mul_u32_u24 v4, 1280, v4")
        a(f"v_lshl_add_u32 v{self.DXA}, v3, 4, v4")
        a(f"v_xor_b32 v{self.DXB}, 64, v{self.DXA}")
        a(f"v_add_u32 v{self.DXB}, 10240, v{self.DXB}")
        a("v_lshlrev_b32 v3, 2, v2")
        a("v_and_b32 v4, 15, v0")
        a("v_xor_b32 v3, v3, v4")
        a(f"s_lshl_b32 s{T0}, s{S_W}, 3")
        a(f"v_add_u32 v4, s{T0}, v2")
        a("v_mul_u32_u24 v4, 3840, v4")
        a(f"v_lshl_add_u32 v{self.DW}, v3, 4, v4")
        for d, n in ((SRD_X, 2048 * 1280), (SRD_WQ, 640 * 3840), (SRD_DBG, 256)):
            a(f"s_mov_b32 s{d+2}, {n}")
            a(f"s_mov_b32 s{d+3}, 0x20000")
        a("s_waitcnt lgkmcnt(0)")
        if self.o.get("fixown"): a(f"s_mov_b32 s31, s{S_NONCE}")
        if self.o.get("diag"): a("s_mov_b32 s35, 0")
        a(f"s_or_b32 s{T0}, s{S_G}, s{S_W}")
        a("s_cbranch_scc0 L_nonce_pub")
        a.label("L_nonce_done")
        a(f"s_cmp_eq_u32 s{self.sCT}, 15")
        a("s_cbranch_scc1 L_p1_noissue")
        self.p1_issue()
        if self.o.get("first5", "1") == "1": self.p1_issue((0,))
        a.label("L_p1_noissue")
        self.stamp(1)
        self.srd(SRD_WS, S_PTR + 16, WS_SIZE + ((1 << 20) if self.o.get("stamps") else 0))
        self.srd(SRD_OUT, S_PTR + 12, 2048 * 1280)
        a(f"s_mov_b64 s[{SRD_RL}:{SRD_RL+1}], 0")
        a(f"s_mov_b32 s{SRD_RL+2}, 0")
        a(f"s_mov_b32 s{SRD_RL+3}, 0x20000")
        a(f"v_mov_b32 v{self.RLV}, 0")
        if self.o.get("cpfe", "1") != "1": self.code_prefetch(7)

    def relayout_setup(self):
        a = self.a
        R = self.sRL
        u = a.newlabel("u")
        sID, sKS, sCB, sST, sA, sB, sCc, sD = T0, T1, T2, T3, 93, 94, 95, 96
        sBase, sSl, sKsS = 97, 98, 99
        a(f"s_mul_i32 s{sID}, s{S_G}, 5")
        a(f"s_add_u32 s{sID}, s{sID}, s{S_W}")
        a(f"s_sub_u32 s{sID}, s{sID}, 1")
        a(f"s_min_u32 s{sID}, s{sID}, 1279")
        a(f"s_mov_b32 s{sA}, 16")
        a(f"s_mov_b32 s{sB}, 8")
        a(f"s_mov_b32 s{sCc}, 4")
        a(f"s_mov_b32 s{SRD_RL+3}, 0x20000")
        a(f"s_mov_b32 s{R+8}, -1")
        a(f"s_cmp_lt_u32 s{sID}, 200")
        a(f"s_cbranch_scc1 L_rl_wo{u}")
        a(f"s_cmp_lt_u32 s{sID}, 740")
        a(f"s_cbranch_scc1 L_rl_w1{u}")
        a(f"s_sub_u32 s{sID}, s{sID}, 740")
        a(f"s_mul_i32 s{sKS}, s{sID}, 6554")
        a(f"s_lshr_b32 s{sKS}, s{sKS}, 16")
        a(f"s_mul_i32 s{sCB}, s{sKS}, 10")
        a(f"s_sub_u32 s{sCB}, s{sID}, s{sCB}")
        a(f"s_lshl_b32 s{sD}, s{sKS}, 5")
        a(f"s_mov_b32 s{SRD_RL}, s{S_PTR+10}")
        a(f"s_and_b32 s{SRD_RL+1}, s{S_PTR+11}, 0xffff")
        a(f"s_mov_b32 s{SRD_RL+2}, {1728*1280}")
        a(f"s_mov_b32 s{sBase}, {WS_W2}")
        a(f"s_mov_b32 s{sSl}, {54*5120}")
        a(f"s_cmp_ge_u32 s{sKS}, 48")
        a(f"s_cselect_b32 s{sA}, 4, 16")
        a(f"s_cselect_b32 s{sB}, 16, 8")
        a(f"s_cselect_b32 s{sCc}, 8, 4")
        a(f"s_add_u32 s{T4}, s{sKS}, 3")
        a(f"s_cmp_ge_u32 s{sKS}, 24")
        a(f"s_cselect_b32 s{T4}, s{T4}, s{sKS}")
        a(f"s_sub_u32 s{T5}, s{sKS}, 24")
        a(f"s_cmp_ge_u32 s{sKS}, 48")
        a(f"s_cselect_b32 s{T4}, s{T5}, s{T4}")
        a(f"s_cmp_ge_u32 s{sKS}, 51")
        a(f"s_cselect_b32 s{sKS}, s{sKS}, s{T4}")
        a(f"s_branch L_rl_n640{u}")
        a.label(f"L_rl_wo{u}")
        a(f"s_mul_i32 s{sKS}, s{sID}, 6554")
        a(f"s_lshr_b32 s{sKS}, s{sKS}, 16")
        a(f"s_mul_i32 s{sCB}, s{sKS}, 10")
        a(f"s_sub_u32 s{sCB}, s{sID}, s{sCB}")
        a(f"s_mul_i32 s{sD}, s{sKS}, 40")
        a(f"s_mul_i32 s{sST}, s{sKS}, 160")
        a(f"s_sub_u32 s{sST}, s{sST}, {160*16-16}")
        a(f"s_cmp_lt_u32 s{sKS}, 16")
        a(f"s_cselect_b32 s{sD}, s{sD}, s{sST}")
        a(f"s_cselect_b32 s{sA}, 8, 20")
        a(f"s_cselect_b32 s{sB}, 20, 0x50")
        a(f"s_cselect_b32 s{sCc}, 4, 40")
        a(f"s_mov_b32 s{SRD_RL}, s{S_PTR+4}")
        a(f"s_and_b32 s{SRD_RL+1}, s{S_PTR+5}, 0xffff")
        a(f"s_mov_b32 s{SRD_RL+2}, {640*1280}")
        a(f"s_mov_b32 s{sBase}, {WS_WO}")
        a(f"s_mov_b32 s{sSl}, {20*5120}")
        a(f"s_add_u32 s{T4}, s{sKS}, 2")
        a(f"s_cmp_ge_u32 s{sKS}, 8")
        a(f"s_cselect_b32 s{T4}, s{T4}, s{sKS}")
        a(f"s_sub_u32 s{T5}, s{sKS}, 8")
        a(f"s_cmp_ge_u32 s{sKS}, 16")
        a(f"s_cselect_b32 s{T4}, s{T5}, s{T4}")
        a(f"s_cmp_ge_u32 s{sKS}, 18")
        a(f"s_cselect_b32 s{sKS}, s{sKS}, s{T4}")
        a(f"s_sub_u32 s{T4}, s{sKS}, 1")
        a(f"s_cmp_ge_u32 s{sKS}, 10")
        a(f"s_cselect_b32 s{T4}, s{T4}, s{sKS}")
        a(f"s_cmp_eq_u32 s{sKS}, 9")
        a(f"s_cselect_b32 s{T4}, 18, s{T4}")
        a(f"s_cmp_eq_u32 s{sKS}, 19")
        a(f"s_cselect_b32 s{sKS}, 19, s{T4}")
        a.label(f"L_rl_n640{u}")
        a(f"s_mov_b32 s{sST}, 1280")
        a(f"s_mul_i32 s{sKsS}, s{sKS}, 5120")
        a(f"s_add_u32 s{sBase}, s{sBase}, s{sKsS}")
        for t in range(4):
            a(f"s_lshl_b32 s{T4}, s{sCB}, 2")
            a(f"s_add_u32 s{T4}, s{T4}, {t}")
            a(f"s_mul_i32 s{T5}, s{T4}, 52")
            a(f"s_lshr_b32 s{T5}, s{T5}, 8")
            a(f"s_mul_i32 s{R+4+t}, s{T5}, s{sSl}")
            a(f"s_mul_i32 s{T5}, s{T5}, 5")
            a(f"s_sub_u32 s{T4}, s{T4}, s{T5}")
            a(f"s_lshl_b32 s{T4}, s{T4}, 10")
            a(f"s_add_u32 s{R+4+t}, s{R+4+t}, s{T4}")
            a(f"s_add_u32 s{R+4+t}, s{R+4+t}, s{sBase}")
        a(f"s_branch L_rl_common{u}")
        a.label(f"L_rl_w1{u}")
        a(f"s_sub_u32 s{sID}, s{sID}, 200")
        a(f"s_mul_i32 s{sKS}, s{sID}, 2428")
        a(f"s_lshr_b32 s{sKS}, s{sKS}, 16")
        a(f"s_mul_i32 s{sCB}, s{sKS}, 27")
        a(f"s_sub_u32 s{sCB}, s{sID}, s{sCB}")
        a(f"s_lshr_b32 s{T4}, s{sKS}, 1")
        a(f"s_mul_i32 s{T4}, s{T4}, 0x50")
        a(f"s_and_b32 s{T5}, s{sKS}, 1")
        a(f"s_lshl_b32 s{T5}, s{T5}, 5")
        a(f"s_add_u32 s{sD}, s{T4}, s{T5}")
        a(f"s_mul_i32 s{T4}, s{sKS}, 160")
        a(f"s_sub_u32 s{T4}, s{T4}, {160*16-64}")
        a(f"s_cmp_lt_u32 s{sKS}, 16")
        a(f"s_cselect_b32 s{sD}, s{sD}, s{T4}")
        a(f"s_cselect_b32 s{sA}, 16, 4")
        a(f"s_cselect_b32 s{sB}, 8, 0x50")
        a(f"s_cselect_b32 s{sCc}, 4, 8")
        a(f"s_mov_b32 s{SRD_RL}, s{S_PTR+8}")
        a(f"s_and_b32 s{SRD_RL+1}, s{S_PTR+9}, 0xffff")
        a(f"s_mov_b32 s{SRD_RL+2}, {640*3456}")
        a(f"s_mov_b32 s{sST}, 3456")
        a(f"s_mul_i32 s{sKsS}, s{sKS}, 7168")
        a(f"s_add_u32 s{sBase}, s{sKsS}, {WS_W1}")
        a(f"s_mul_i32 s{R+8}, s{sKS}, {1728*4}")
        a(f"s_lshl_b32 s{T4}, s{sCB}, 8")
        a(f"s_add_u32 s{R+8}, s{R+8}, s{T4}")
        a(f"s_add_u32 s{R+8}, s{R+8}, {WS_CS1}")
        for t in range(4):
            a(f"s_lshl_b32 s{T4}, s{sCB}, 2")
            a(f"s_add_u32 s{T4}, s{T4}, {t}")
            a(f"s_mul_i32 s{T5}, s{T4}, 43")
            a(f"s_lshr_b32 s{T5}, s{T5}, 8")
            a(f"s_mul_i32 s{sSl}, s{T5}, 6")
            a(f"s_sub_u32 s{sSl}, s{T4}, s{sSl}")
            a(f"s_sub_u32 s{sKsS}, s{T4}, 96")
            a(f"s_cmp_lt_u32 s{T4}, 96")
            a(f"s_cselect_b32 s{T5}, s{T5}, s{sKsS}")
            a(f"s_cselect_b32 s{sSl}, s{sSl}, 6")
            a(f"s_mul_i32 s{R+4+t}, s{T5}, {20*7168}")
            a(f"s_lshl_b32 s{sSl}, s{sSl}, 10")
            a(f"s_add_u32 s{R+4+t}, s{R+4+t}, s{sSl}")
            a(f"s_add_u32 s{R+4+t}, s{R+4+t}, s{sBase}")
        a.label(f"L_rl_common{u}")
        a(f"s_mul_i32 s{sD}, s{sD}, s{sST}")
        a(f"s_lshl_b32 s{T4}, s{sCB}, 7")
        a(f"s_add_u32 s{R}, s{sD}, s{T4}")
        a(f"s_mul_i32 s{sA}, s{sA}, s{sST}")
        a(f"s_mul_i32 s{sB}, s{sB}, s{sST}")
        a(f"s_add_u32 s{R+1}, s{R}, s{sB}")
        a(f"s_add_u32 s{R+2}, s{R}, s{sA}")
        a(f"s_add_u32 s{R+3}, s{R+2}, s{sB}")
        a("v_lshrrev_b32 v1, 5, v0")
        a(f"v_mul_u32_u24 v1, s{sCc}, v1")
        a("v_bfe_u32 v2, v0, 3, 2")
        a("v_add_u32 v1, v1, v2")
        a(f"v_mul_u32_u24 v1, s{sST}, v1")
        a("v_and_b32 v2, 7, v0")
        a(f"v_lshl_add_u32 v{self.RLV}, v2, 4, v1")
        a("v_lshrrev_b32 v1, 2, v0")
        a("v_lshlrev_b32 v1, 7, v1")
        a("v_and_b32 v2, 3, v0")
        a("v_lshl_add_u32 v1, v2, 3, v1")
        a(f"s_lshl_b32 s{T4}, s{S_W}, 12")
        a(f"s_add_u32 s{T4}, s{T4}, {self.RL_SCR-4096}")
        a(f"v_add_u32 v{self.RLA}, s{T4}, v1")

    def relayout_issue(self, drain_older=False):
        a = self.a
        L = a.newlabel("rlsk")
        a(f"s_sub_u32 s{T0}, s{S_W}, 1")
        a(f"s_cmp_ge_u32 s{T0}, {0 if self.o.get('norl') else 5}")
        a(f"s_cbranch_scc1 {L}")
        a(f"s_lshl_b32 s{T0}, s{S_W}, 12")
        a(f"s_add_u32 m0, s{T0}, {self.RL_SCR-4096}")
        for i in range(4):
            if i: a("s_add_u32 m0, m0, 1024")
            a("s_nop 0")
            self.dma(self.RLV, SRD_RL, f"s{self.sRL+i}")
        if drain_older:
            L2 = a.newlabel("rlw")
            a("s_waitcnt vmcnt(4)")
            a(f"s_branch {L2}")
            a.label(L)
            a("s_waitcnt vmcnt(0)")
            a.label(L2)
        else:
            a.label(L)

    def relayout_finish(self, younger=None):
        a = self.a
        L = a.newlabel("rlsk"); F = 168; t = 184
        a(f"s_sub_u32 s{T0}, s{S_W}, 1")
        a(f"s_cmp_ge_u32 s{T0}, 5")
        Lo = a.newlabel("rlo")
        a(f"s_cbranch_scc1 {Lo if younger is not None else L}")
        if younger is not None: a(f"s_waitcnt vmcnt({younger})")
        for q in range(4):
            for rd in range(2):
                a(f"ds_read_b64_tr_b16 v[{F+4*q+2*rd}:{F+4*q+2*rd+1}], v{self.RLA} offset:{rd*2048+q*32}")
        a(f"v_lshlrev_b32 v{t}, 4, v0")
        for q in range(4):
            a(f"s_waitcnt lgkmcnt({6-2*q})")
            a(f"buffer_store_dwordx4 v[{F+4*q}:{F+4*q+3}], v{t}, s[{SRD_WS}:{SRD_WS+3}], s{self.sRL+4+q} offen sc1")
        if younger is not None: a("s_waitcnt vmcnt(4)")
        a(f"s_cmp_eq_u32 s{self.sRL+8}, -1")
        a(f"s_cbranch_scc1 {L}")
        for q in range(4): a(f"v_mov_b32 v{t+2+q}, 0")
        a(f"v_mov_b32 v{t+6}, 0x3f803f80")
        for k in range(4):
            for q in range(4): a(f"v_dot2_f32_bf16 v{t+2+q}, v{F+4*q+k}, v{t+6}, v{t+2+q}")
        a(f"v_lshlrev_b32 v{t+1}, 2, v0")
        a("s_nop 1")
        a(f"v_permlane16_swap_b32 v{t+2}, v{t+3}")
        a(f"v_permlane16_swap_b32 v{t+4}, v{t+5}")
        a("s_nop 0")
        a(f"v_add_f32 v{t+2}, v{t+2}, v{t+3}")
        a(f"v_add_f32 v{t+4}, v{t+4}, v{t+5}")
        a("s_nop 1")
        a(f"v_permlane32_swap_b32 v{t+2}, v{t+4}")
        a("s_nop 0")
        a(f"v_add_f32 v{t+2}, v{t+2}, v{t+4}")
        a(f"buffer_store_dword v{t+2}, v{t+1}, s[{SRD_WS}:{SRD_WS+3}], s{self.sRL+8} offen sc1")
        if younger is not None:
            a(f"s_branch {L}")
            a.label(Lo)
            a("s_waitcnt vmcnt(0)")
        a.label(L)

    def p1_setup_b(self):
        a = self.a
        a(f"s_and_b32 s{self.sTG}, s{S_W}, 3")
        a(f"s_lshr_b32 s{self.sNH}, s{S_W}, 2")
        a(f"s_cmp_ge_u32 s{self.sCT}, 5")
        a(f"s_cselect_b32 s{T0}, 5, 0")
        a(f"s_sub_u32 s{T0}, s{self.sCT}, s{T0}")
        a(f"s_lshl_b32 s{T0}, s{T0}, 1")
        a(f"s_add_u32 s{T0}, s{T0}, s{self.sNH}")
        for idx in range(10):
            a(f"s_cmp_eq_u32 s{T0}, {idx}")
            a(f"s_cbranch_scc1 L_tab{idx}")
        a(f"s_mul_i32 s{T1}, s{self.sNH}, 0x10101010")
        for k in range(4): a(f"s_add_u32 s{self.sTAB+k}, s{T1}, 0x%08x" % (0x03020100 + 0x04040404 * k))
        a(f"s_mov_b32 s{self.sTAB+4}, 0")
        a(f"s_mov_b32 s{self.sTAB+5}, 0")
        a("s_branch L_tabdone")
        for idx in range(10):
            a.label(f"L_tab{idx}")
            for k, d in enumerate(p1_table(idx // 2, idx % 2)): a(f"s_mov_b32 s{self.sTAB+k}, 0x%08x" % d)
            if idx < 9: a("s_branch L_tabdone")
        a.label("L_tabdone")
        a("v_and_b32 v1, 31, v0")
        a(f"s_lshl_b32 s{T0}, s{self.sTG}, 5")
        a(f"v_add_u32 v2, s{T0}, v1")
        a("v_bfe_u32 v3, v2, 1, 3")
        a("v_lshrrev_b32 v4, 5, v0")
        a("v_xor_b32 v3, v3, v4")
        a("v_lshlrev_b32 v3, 4, v3")
        a(f"v_lshl_add_u32 v{self.XA}, v2, 7, v3")
        a(f"s_xor_b32 s{T3}, s{self.sTG}, s{self.sNH}")
        a(f"s_lshl_b32 s{T0}, s{T3}, 5")
        a(f"v_xor_b32 v{self.XA}, s{T0}, v{self.XA}")
        for ks in range(1, 4): a(f"v_xor_b32 v{self.XA+ks}, {ks<<5}, v{self.XA}")
        a("v_bfe_u32 v5, v0, 2, 2")
        a("v_lshl_add_u32 v6, v4, 3, v5")
        a("v_lshlrev_b32 v6, 8, v6")
        a("v_and_b32 v7, 3, v0")
        a("v_lshlrev_b32 v7, 3, v7")
        a("v_and_b32 v8, 16, v0")
        a("v_cmp_ne_u32 vcc, 0, v8")
        for i in range(2):
            a(f"v_mov_b32 v8, s{self.sTAB+2*i}")
            a(f"v_mov_b32 v9, s{self.sTAB+2*i+1}")
            a("v_cndmask_b32 v8, v8, v9, vcc")
            a("v_bfe_u32 v8, v8, v7, 8")
            a("v_lshlrev_b32 v8, 3, v8")
            a("v_lshlrev_b32 v9, 6, v5")
            a("v_xor_b32 v8, v8, v9")
            a(f"v_add_u32 v8, v6, v8")
            a(f"s_lshl_b32 s{T0}, s{T3}, 12")
            a(f"v_add_u32 v{self.WA+4*i}, s{T0}, v8")
            for j in range(1, 4): a(f"v_xor_b32 v{self.WA+4*i+j}, {j<<12}, v{self.WA+4*i}")
        a(f"s_lshl_b32 s{T0}, s{self.sRB}, 2")
        a(f"s_add_u32 s{T0}, s{T0}, s{self.sTG}")
        a(f"s_lshl_b32 s{T1}, s{T0}, 9")
        a(f"s_add_u32 s{T1}, s{T1}, {WS_RS}")
        a(f"v_lshl_add_u32 v{self.RSA}, v1, 4, s{T1}")
        a(f"s_cmp_ge_u32 s{self.sCT}, 10")
        a("s_cbranch_scc1 L_p1_vaddr")
        a(f"s_lshl_b32 s{T0}, s{T0}, 9")
        a(f"s_cmp_ge_u32 s{self.sCT}, 5")
        a(f"s_cselect_b32 s{T1}, {WS_K}, {WS_Q}")
        a(f"s_add_u32 s{T0}, s{T0}, s{T1}")
        a(f"v_lshl_add_u32 v2, v1, 4, s{T0}")
        a("v_lshlrev_b32 v3, 3, v4")
        a("v_add_u32 v5, 16, v3")
        for i in range(2):
            for qq in range(2):
                a(f"v_bfe_u32 v6, s{self.sTAB+4+i}, v{3 if qq == 0 else 5}, 8")
                a(f"v_lshl_add_u32 v{self.STA+2*i+qq}, v6, 15, v2")
        a("s_branch L_p1_addrdone")
        a.label("L_p1_vaddr")
        a(f"s_mul_i32 s{T0}, s{T0}, 1280")
        a(f"s_add_u32 s{T0}, s{T0}, {WS_V}")
        a(f"s_lshl_b32 s{T1}, s{self.sCT}, 7")
        a(f"s_lshl_b32 s{T2}, s{self.sNH}, 6")
        a(f"s_add_u32 s{T1}, s{T1}, s{T2}")
        a(f"s_sub_u32 s{T1}, s{T1}, 1280")
        a(f"v_mov_b32 v{self.STA+2}, 0")
        a(f"v_mov_b32 v{self.STA+3}, 0")
        a("v_mul_u32_u24 v3, 320, v4")
        a(f"v_add_u32 v3, s{T0}, v3")
        a(f"s_mov_b32 s{T2}, 81920")
        for i in range(2):
            a(f"v_add_u32 v5, s{T1}, v1")
            if i: a("v_add_u32 v5, 32, v5")
            a("v_mul_u32_u24 v6, 3277, v5")
            a("v_lshrrev_b32 v6, 16, v6")
            a("v_mul_u32_u24 v7, 20, v6")
            a("v_sub_u32 v5, v5, v7")
            a("v_lshl_add_u32 v5, v5, 4, v3")
            a(f"v_mad_u32_u24 v{self.STA+i}, v6, s{T2}, v5")
        a.label("L_p1_addrdone")
        for r in range(32): a(f"v_mov_b32 v{self.ACC+r}, 0")
        a(f"s_mul_i32 s{T0}, s{self.sCT}, 10240")
        a(f"s_lshl_b32 s{T1}, s{self.sNH}, 9")
        a(f"s_add_u32 s{T0}, s{T0}, s{T1}")
        a(f"s_add_u32 s{T0}, s{T0}, {WS_CQ}")
        a(f"v_lshl_add_u32 v{self.CQA}, v0, 3, s{T0}")
        a(f"s_lshl_b32 s{T0}, s{self.sNH}, 8")
        a(f"s_lshl_b32 s{T1}, s{self.sTG}, 9")
        a(f"s_add_u32 s{T0}, s{T0}, {self.P1_MISC}")
        a(f"s_add_u32 s{T1}, s{T1}, s{T0}")
        a(f"v_lshl_add_u32 v{self.CSW}, v0, 2, s{T1}")
        a(f"v_lshl_add_u32 v95, v0, 2, s{T0}")
        a(f"v_mov_b32 v{self.VXM}, 0x8000")
        a(f"s_lshl_b32 s{T0}, s{S_W}, 2")
        a(f"s_add_u32 s{T0}, s{T0}, {self.P1_MISC + 2304}")
        a(f"v_mov_b32 v{self.PGA}, s{T0}")
        a(f"v_mov_b32 v{self.PGV}, 0")
        a(f"v_and_b32 v{self.PGR}, 7, v0")
        a(f"v_lshlrev_b32 v{self.PGR}, 2, v{self.PGR}")
        a(f"v_add_u32 v{self.PGR}, {self.P1_MISC + 2304}, v{self.PGR}")
        a(f"ds_write_b32 v{self.PGA}, v{self.PGV}")
        a(f"s_mov_b32 s{self.sCNT}, -1")
        a(f"s_cmp_eq_u32 s{self.sTG}, 0")
        a(f"s_cselect_b32 s{self.sSIDE}, 2, 0")

    def p1_loop(self, vmode):
        a = self.a
        tag = "v" if vmode else "q"
        if self.o.get("p1soft"):
            self.p1_loop1(vmode, 0)
        else:
            a(f"s_cmp_lg_u32 s{self.sNH}, 0")
            a(f"s_cbranch_scc1 L_p1_B{tag}")
            self.p1_loop1(vmode, 0)
            a(f"s_branch L_p1_E{tag}")
            a.label(f"L_p1_B{tag}")
            self.p1_loop1(vmode, 1)
            a.label(f"L_p1_E{tag}")
        reads, xors, mf = self.p1_parts(vmode)
        def comp(ks, rd=True, xr=True):
            a(f"s_waitcnt lgkmcnt({5 if rd or ks == 2 else 0})")
            mf(ks, 0)
            if rd: reads((ks + 2) % 4)
            mf(ks, 1)
            if xr: xors((ks + 2) % 4)
        comp(0); self.p1_issue((2,))
        comp(1); self.p1_issue((3,))
        a(f"buffer_load_dwordx4 v[{self.RS}:{self.RS+3}], v{self.RSA}, s[{SRD_WS}:{SRD_WS+3}], 0 offen sc1")
        a(f"s_mul_i32 s{T0}, s{self.sCT}, 10240")
        a(f"s_lshl_b32 s{T1}, s{S_W}, 10")
        a(f"s_add_u32 s{T0}, s{T0}, s{T1}")
        a(f"s_add_u32 s{T0}, s{T0}, {WS_CQ}")
        a(f"s_add_u32 m0, s{T1}, {self.CQ_SCR}")
        a("v_lshlrev_b32 v1, 4, v0")
        self.dma(1, SRD_WS, f"s{T0}", "sc1")
        a(f"s_add_u32 s{T0}, s{T0}, 8192")
        a("s_add_u32 m0, m0, 8192")
        a(f"s_cmp_ge_u32 s{S_W}, 2")
        a(f"s_cselect_b32 s{T0}, 0x7f000000, s{T0}")
        self.dma(1, SRD_WS, f"s{T0}", "sc1")
        a("s_waitcnt vmcnt(7)")
        a("s_barrier")
        comp(2); comp(3)
        comp(0); comp(1)
        a("s_waitcnt vmcnt(3)")
        a("s_barrier")
        comp(2, xr=False); comp(3, xr=False)
        a("s_waitcnt vmcnt(0) lgkmcnt(5)")
        a("s_barrier")
        mf(0, 0)
        self.p1_epi_reads()
        mf(0, 1)
        a("s_waitcnt lgkmcnt(11)")
        mf(1, 0); reads(2); mf(1, 1); reads(3)
        self.p1_epi_common()
        (self.p1_prep_v if vmode else self.p1_prep_q)()
        a(f"s_waitcnt lgkmcnt({15 if vmode else 14})")
        mf(2, 0)
        a(f"s_waitcnt lgkmcnt({10 if vmode else 9})")
        mf(3, 0); mf(2, 1); mf(3, 1)
        self.stamp(4)

    def p1_parts(self, vmode):
        a = self.a
        def reads(ks):
            if self.o.get("nolds"): return
            a(f"ds_read_b128 v[{self.XF+4*ks}:{self.XF+4*ks+3}], v{self.XA+ks}")
            for i in range(2):
                for rd in range(2):
                    d = self.WF + 8 * ks + 4 * i + 2 * rd
                    a(f"ds_read_b64_tr_b16 v[{d}:{d+1}], v{self.WA+4*i+ks} offset:{16384+rd*1024}")
        def xors(ks):
            for r in (self.XA + ks, self.WA + ks, self.WA + 4 + ks): a(f"v_xor_b32 v{r}, v{self.VXM}, v{r}")
            if ks == 3: a(f"v_xor_b32 v{self.VXM}, 0x10000, v{self.VXM}")
        def mf(ks, i):
            x = vr(self.XF + 4 * ks, 4); wv = vr(self.WF + 8 * ks + 4 * i, 4); acc = vr(self.ACC + 16 * i, 16)
            if self.o.get("nomfma"): pass
            elif vmode: a(f"v_mfma_f32_32x32x16_bf16 {acc}, {x}, {wv}, {acc}")
            else: a(f"v_mfma_f32_32x32x16_bf16 {acc}, {wv}, {x}, {acc}")
        return reads, xors, mf

    def p1_loop1(self, vmode, B):
        a = self.a
        L = a.newlabel("p1loop")
        pos = self.o.get("barB" if B else "barA", "1" if B else "0")
        reads, xors, mf = self.p1_parts(vmode)
        def bar():
            a("s_waitcnt vmcnt(4)")
            if not self.o.get("nobar"): a("s_barrier")
            if self.o.get("its") == "1": self.stamp_dyn(54, self.sCNT)
        soft = self.o.get("p1soft")
        def comp(ks):
            n = (ks + 2) % 4
            if soft: return comp_soft(ks)
            if ks == 2 and pos == "0": bar()
            a("s_waitcnt lgkmcnt(5)")
            mf(ks, 0)
            if ks == 2 and pos == "1": bar()
            if ks == 2 and pos == "2":
                mf(ks, 1); bar(); reads(n)
            else:
                reads(n); mf(ks, 1)
            xors(n)
            self.p1_issue((n,))
        def comp_soft(ks):
            n = (ks + 2) % 4
            ar = int(soft) - 1
            extra = {0: 0, 1: (1 if ar == 0 else 0), 2: 0, 3: 0}[ks]
            a(f"s_waitcnt lgkmcnt({5 + extra})" if ks != 2 else "s_waitcnt lgkmcnt(0)" if self.o.get("p1g0") else "s_waitcnt lgkmcnt(6)")
            mf(ks, 0)
            if ks == ar:
                a(f"v_add_u32 v{self.PGV}, 1, v{self.PGV}")
                a(f"s_waitcnt vmcnt({2 + ks})")
                a(f"ds_write_b32 v{self.PGA}, v{self.PGV}")
            if ks == 2:
                Lw, Lb = a.newlabel("late"), a.newlabel("go")
                a("s_waitcnt lgkmcnt(0)")
                a(f"v_cmp_lt_u32 vcc, v{self.PGD}, v{self.PGV}")
                a(f"s_cbranch_vccnz {Lw}")
                a.label(Lb)
                self._late1.append((Lw, Lb))
            reads(n); mf(ks, 1)
            if ks == 1: a(f"ds_read_b32 v{self.PGD}, v{self.PGR}")
            xors(n)
            self.p1_issue((n,))
        a("s_waitcnt vmcnt(6) lgkmcnt(0)")
        a("s_barrier")
        self.stamp(3)
        reads(0); reads(1); xors(0); xors(1)
        a("v_mov_b32 v6, 0x3f803f80")
        a("v_mov_b32 v2, 0")
        a("v_mov_b32 v3, 0")
        a("s_waitcnt lgkmcnt(5)")
        for k in range(4):
            for i in range(2): a(f"v_dot2_f32_bf16 v{2+i}, v{self.WF+4*i+k}, v6, v{2+i}")
        a("s_nop 2")
        a("v_permlane32_swap_b32 v2, v3")
        a("s_nop 0")
        a("v_add_f32 v2, v2, v3")
        a(f"ds_write_b32 v{self.CSW}, v2")
        a.align(int(self.o.get("al1", 3)))
        a.label(L)
        comp(0); comp(1); comp(2)
        Lr = a.newlabel("back"); Ls = a.newlabel("side")
        a(f"s_add_u32 s{self.sCNT}, s{self.sCNT}, 1")
        a(f"s_cmp_lt_u32 s{self.sCNT}, s{self.sSIDE}")
        a(f"s_cbranch_scc1 {Ls}")
        a.label(Lr)
        comp(3)
        a(f"s_cmp_lt_u32 s{self.sCNT}, {int(self.o.get('p1n', 10)) - 4}")
        a(f"s_cbranch_scc1 {L}")
        self._sides.append((Ls, Lr))

    def p1_sides(self):
        a = self.a
        for Lw, Lb in self._late1:
            a.label(Lw)
            a(f"s_mov_b32 s{S_SPIN}, 0")
            L = a.newlabel("lsp")
            a.label(L)
            a(f"ds_read_b32 v{self.PGD}, v{self.PGR}")
            a(f"s_add_u32 s{S_SPIN}, s{S_SPIN}, 1")
            a(f"s_cmp_ge_u32 s{S_SPIN}, {SPIN_MAX * 16}")
            a(f"s_cbranch_scc1 {Lb}")
            a("s_waitcnt lgkmcnt(0)")
            a(f"v_cmp_lt_u32 vcc, v{self.PGD}, v{self.PGV}")
            a(f"s_cbranch_vccnz {L}")
            a(f"s_branch {Lb}")
        self._late1 = []
        for Ls, Lr in self._sides:
            a.label(Ls)
            L1 = a.newlabel("s1")
            a(f"s_cmp_lg_u32 s{self.sCNT}, 0")
            a(f"s_cbranch_scc1 {L1}")
            a("v_mov_b32 v1, 0")
            a(f"buffer_load_dwordx2 v[{self.VN}:{self.VN+1}], v1, s[{SRD_DBG}:{SRD_DBG+3}], 0 offen sc1")
            a(f"s_branch {Lr}")
            a.label(L1)
            a("s_waitcnt vmcnt(4)")
            self.nonce_get("nonce2")
            a(f"v_mov_b32 v1, {self.P1_MISC + 2048}")
            a(f"ds_write_b64 v1, v[{self.VN}:{self.VN+1}]")
            for k in range(4): a(f"ds_read_b32 v{2+k}, v95 offset:{512*k}")
            a(f"s_lshl_b32 s{T0}, s{self.sKC0}, 10")
            a("s_waitcnt lgkmcnt(0)")
            a("v_add_f32 v2, v2, v3")
            a("v_add_f32 v4, v4, v5")
            a(f"v_mov_b32 v3, s{S_NONCE}")
            a("v_add_f32 v2, v2, v4")
            a(f"buffer_store_dwordx2 v[2:3], v{self.CQA}, s[{SRD_WS}:{SRD_WS+3}], s{T0} offen sc1")
            a(f"s_branch {Lr}")

    def p1_gather(self):
        a = self.a
        a(f"buffer_load_dwordx4 v[{self.RS}:{self.RS+3}], v{self.RSA}, s[{SRD_WS}:{SRD_WS+3}], 0 offen sc1")
        a(f"s_movk_i32 s{T0}, 0x1000")
        a(f"s_movk_i32 s{T1}, 0x2000")
        for k in range(10):
            so = ("0", f"s{T0}", f"s{T1}")[k // 4]
            a(f"buffer_load_dwordx2 v[{self.CQ+2*k}:{self.CQ+2*k+1}], v{self.CQA}, s[{SRD_WS}:{SRD_WS+3}], {so} offen offset:{1024*(k%4)} sc1")

    def p1_epi_reads(self):
        a = self.a
        a(f"s_lshl_b32 s{T0}, s{self.sNH}, 9")
        a(f"s_add_u32 s{T0}, s{T0}, {self.CQ_SCR}")
        a(f"v_lshl_add_u32 v1, v0, 3, s{T0}")
        for k in range(10): a(f"ds_read_b64 v[{self.CQ+2*k}:{self.CQ+2*k+1}], v1 offset:{1024*k}")
        a(f"v_mov_b32 v1, {self.P1_MISC + 2048}")
        a(f"ds_read_b64 v[{self.VN}:{self.VN+1}], v1")
        a(f"s_lshl_b32 s{T2}, s{S_W}, 9")
        a(f"s_add_u32 s{T2}, s{T2}, {self.P1_MISC+4096}")
        a(f"v_lshl_add_u32 v6, v0, 2, s{T2}")
        a("v_and_b32 v5, 31, v0")
        a(f"s_mov_b32 s{S_SPIN}, 0")

    def p1_epi_common(self):
        a = self.a
        L = a.newlabel("rs"); Ld = a.newlabel("rsd")
        a("s_waitcnt lgkmcnt(10)")
        a(f"v_readfirstlane_b32 s{S_NONCE}, v{self.VN}")
        a(f"v_readfirstlane_b32 s{S_NONCE+1}, v{self.VN+1}")
        a("s_nop 0")
        a.label(L)
        a(f"v_xor_b32 v2, s{S_NONCE}, v{self.RS+1}")
        a(f"v_xor_b32 v3, s{S_NONCE}, v{self.RS+3}")
        for k in range(0, 10, 2):
            a(f"v_xor_b32 v4, s{S_NONCE}, v{self.CQ+2*k+1}")
            a(f"v_xor_b32 v7, s{S_NONCE}, v{self.CQ+2*k+3}")
            a("v_or3_b32 v2, v2, v4, v7")
        a("v_or_b32 v2, v2, v3")
        a("v_cmp_ne_u32 vcc, 0, v2")
        a(f"s_add_u32 s{S_SPIN}, s{S_SPIN}, 1")
        a("s_or_b64 vcc, vcc, vcc")
        a(f"s_cbranch_scc0 {Ld}")
        a(f"s_cmp_ge_u32 s{S_SPIN}, {SPIN_MAX}")
        a(f"s_cbranch_scc1 {Ld}")
        self.diag("gather")
        self.p1_gather()
        a("s_waitcnt vmcnt(0)")
        a(f"s_branch {L}")
        a.label(Ld)
        Q = self.CQ
        a(f"v_add_f32 v12, v{Q}, v{Q+2}")
        a(f"v_add_f32 v13, v{Q+4}, v{Q+6}")
        a(f"v_add_f32 v14, v{Q+8}, v{Q+10}")
        a(f"v_add_f32 v15, v{Q+12}, v{Q+14}")
        a(f"v_add_f32 v2, v{Q+16}, v{Q+18}")
        a("v_add_f32 v12, v12, v13")
        a("v_add_f32 v14, v14, v15")
        a("v_add_f32 v12, v12, v2")
        a("v_add_f32 v12, v12, v14")

    def rowstats(self):
        a = self.a
        X = 100
        a("v_lshrrev_b32 v1, 3, v0")
        a(f"s_lshl_b32 s{T0}, s{S_W}, 4")
        a(f"s_lshl_b32 s{T1}, s{self.sRB}, 7")
        a(f"s_add_u32 s{T0}, s{T0}, s{T1}")
        a(f"v_add_u32 v1, s{T0}, v1")
        a("v_mul_u32_u24 v2, 1280, v1")
        a("v_and_b32 v3, 7, v0")
        a("v_lshl_add_u32 v2, v3, 4, v2")
        a(f"s_mov_b32 s{T0}, 10240")
        for k in range(10):
            for hh in range(2):
                r = X + 8 * k + 4 * hh
                a(f"buffer_load_dwordx4 v[{r}:{r+3}], v2, s[{SRD_X}:{SRD_X+3}], {'s%d' % T0 if hh else '0'} offen offset:{128*k}")
        for r in range(4, 8): a(f"v_mov_b32 v{r}, 0")
        a("v_mov_b32 v8, 0x3f803f80")
        for k in range(10):
            a(f"s_waitcnt vmcnt({18-2*k if k < 9 else 1})")
            if k == 8:
                a("v_mov_b32 v3, 0")
                a(f"buffer_load_dwordx2 v[{self.VN}:{self.VN+1}], v3, s[{SRD_DBG}:{SRD_DBG+3}], 0 offen sc1")
            for e in range(4):
                for hh in range(2):
                    r = X + 8 * k + 4 * hh + e
                    a(f"v_dot2_f32_bf16 v{4+hh}, v{r}, v8, v{4+hh}")
                    a(f"v_dot2_f32_bf16 v{6+hh}, v{r}, v{r}, v{6+hh}")
        a("s_nop 2")
        for ctl in ("quad_perm:[1,0,3,2]", "quad_perm:[2,3,0,1]", "row_half_mirror"):
            for r in range(4, 8): a(f"v_add_f32_dpp v{r}, v{r}, v{r} {ctl} row_mask:0xf bank_mask:0xf")
        a("s_waitcnt vmcnt(0)")
        self.nonce_get()
        a("v_and_b32 v3, 1, v0")
        a("v_cmp_ne_u32 vcc, 0, v3")
        a("v_lshlrev_b32 v3, 3, v3")
        a("v_add_u32 v1, v1, v3")
        a("v_cndmask_b32 v4, v4, v5, vcc")
        a("v_cndmask_b32 v6, v6, v7, vcc")
        a(f"v_mul_f32 v4, 0x%08x, v4" % f2u(1.0 / 640))
        a("v_mul_f32 v5, v4, v4")
        a(f"v_mov_b32 v7, 0x%08x" % f2u(1.0 / 640))
        a("v_fma_f32 v5, v6, v7, -v5")
        a("v_max_f32 v5, 0, v5")
        a(f"v_add_f32 v5, 0x%08x, v5" % f2u(1e-5))
        a("v_rsq_f32 v8, v5")
        a(f"v_mov_b32 v9, s{S_NONCE}")
        a(f"v_mov_b32 v11, s{S_NONCE}")
        a("v_mul_f32 v10, v4, v8")
        a("v_lshlrev_b32 v1, 4, v1")
        a(f"s_mov_b32 s{T0}, {WS_RS}")
        a("s_mov_b32 exec_lo, 0x03030303")
        a("s_mov_b32 exec_hi, 0x03030303")
        a(f"buffer_store_dwordx4 v[8:11], v1, s[{SRD_WS}:{SRD_WS+3}], s{T0} offen sc1")
        a("s_mov_b64 exec, -1")

    def p1_prep_q(self):
        a = self.a
        qs = math.log2(math.e) / math.sqrt(20.0)
        a("ds_write_b32 v6, v12")
        a("v_lshrrev_b32 v1, 5, v0")
        a(f"v_lshl_add_u32 v1, v1, 4, s{T2}")
        C = 48
        for i in range(2):
            for q4 in range(4):
                a(f"ds_read_b128 v[{C+16*i+4*q4}:{C+16*i+4*q4+3}], v1 offset:{i*128+q4*32}")
        a(f"s_cmp_lt_u32 s{self.sCT}, 5")
        a(f"s_cselect_b32 s{T1}, 0x%08x, 1.0" % f2u(qs))
        a(f"v_mul_f32 v2, s{T1}, v{self.RS}")
        a(f"v_mul_f32 v3, s{T1}, v{self.RS+2}")

    def p1_epi_q(self):
        a = self.a
        C = 48
        a("s_nop 8")
        for i in range(2):
            for qq in range(2):
                a(f"s_waitcnt lgkmcnt({6-4*i-2*qq})")
                b = 16 * i + 8 * qq
                for r in range(8): a(f"v_mul_f32 v{self.ACC+b+r}, v2, v{self.ACC+b+r}")
                for r in range(8): a(f"v_fma_f32 v{self.ACC+b+r}, -v3, v{C+b+r}, v{self.ACC+b+r}")
                o = 4 + 4 * ((2 * i + qq) % 2)
                for r in range(4): a(f"v_cvt_pk_bf16_f32 v{o+r}, v{self.ACC+b+2*r}, v{self.ACC+b+2*r+1}")
                a(f"buffer_store_dwordx4 v[{o}:{o+3}], v{self.STA+2*i+qq}, s[{SRD_WS}:{SRD_WS+3}], 0 offen sc1")

    def p1_prep_v(self):
        a = self.a
        a("v_mov_b32 v13, v12")
        a(f"v_lshl_add_u32 v6, v5, 2, s{T2}")
        a("v_lshrrev_b32 v1, 5, v0")
        a("v_permlane32_swap_b32 v12, v13")
        a(f"ds_write_b32 v6, v{self.RS}")
        a(f"ds_write_b32 v6, v{self.RS+2} offset:128")
        a(f"v_lshl_add_u32 v6, v1, 4, s{T2}")
        C = 48
        for q4 in range(4):
            a(f"ds_read_b128 v[{C+4*q4}:{C+4*q4+3}], v6 offset:{q4*32}")
            a(f"ds_read_b128 v[{C+16+4*q4}:{C+16+4*q4+3}], v6 offset:{128+q4*32}")

    def p1_epi_v(self):
        a = self.a
        C = 48
        a("s_nop 8")
        for grp in range(2):
            a(f"s_waitcnt lgkmcnt({4-4*grp})")
            for i in range(2):
                b = 16 * i + 8 * grp
                for r in range(8): a(f"v_mul_f32 v{self.ACC+b+r}, v{C+8*grp+r}, v{self.ACC+b+r}")
                for r in range(8): a(f"v_fma_f32 v{self.ACC+b+r}, -v{C+16+8*grp+r}, v{12+i}, v{self.ACC+b+r}")
                o = 4 + 4 * i
                for r in range(4): a(f"v_cvt_pk_bf16_f32 v{o+r}, v{self.ACC+b+2*r}, v{self.ACC+b+2*r+1}")
                a(f"buffer_store_dwordx4 v[{o}:{o+3}], v{self.STA+i}, s[{SRD_WS}:{SRD_WS+3}], 0 offen offset:{640*grp} sc1")

    def nonce_get(self, where="nonce"):
        a = self.a
        a(f"s_mov_b32 s{S_SPIN}, 0")
        Lc = a.newlabel("nchk"); Lo = a.newlabel("nok")
        a.label(Lc)
        a(f"v_readfirstlane_b32 s{S_NONCE}, v{self.VN}")
        a(f"v_readfirstlane_b32 s{S_NONCE+1}, v{self.VN+1}")
        a(f"s_add_u32 s{S_SPIN}, s{S_SPIN}, 1")
        a(f"s_or_b32 s{T0}, s{S_NONCE}, s{S_NONCE+1}")
        a(f"s_cbranch_scc1 {Lo}")
        a(f"s_cmp_ge_u32 s{S_SPIN}, {SPIN_MAX}")
        a(f"s_cbranch_scc1 {Lo}")
        self.diag(where)
        a("v_mov_b32 v94, 0")
        a(f"buffer_load_dwordx2 v[{self.VN}:{self.VN+1}], v94, s[{SRD_DBG}:{SRD_DBG+3}], 0 offen sc1")
        a("s_waitcnt vmcnt(0)")
        a(f"s_branch {Lc}")
        a.label(Lo)

    def phase1(self):
        a = self.a
        self.p1_setup_a()
        a(f"s_cmp_eq_u32 s{self.sCT}, 15")
        a("s_cbranch_scc0 L_p1_go")
        self.rowstats()
        a("s_branch L_p1_done")
        a.label("L_nonce_pub")
        a("v_mov_b32 v3, 0")
        a(f"v_mov_b32 v4, s{S_NONCE}")
        a(f"v_mov_b32 v5, s{S_NONCE+1}")
        a("s_mov_b64 exec, 1")
        a(f"buffer_store_dwordx2 v[4:5], v3, s[{SRD_DBG}:{SRD_DBG+3}], 0 offen sc1")
        a("s_mov_b64 exec, -1")
        a("s_branch L_nonce_done")
        a.label("L_p1_go")
        self.p1_setup_b()
        self.p1_issue((1, 2, 3) if self.o.get("first5", "1") == "1" else (0, 1, 2, 3))
        self.p1_issue((0, 1))
        self.stamp(2)
        a(f"s_cmp_ge_u32 s{self.sCT}, 10")
        a("s_cbranch_scc1 L_p1_v")
        self.p1_loop(False)
        self.p1_epi_q()
        a("s_branch L_p1_done")
        self.p1_sides(); self._sides = []
        a.label("L_p1_v")
        self.p1_loop(True)
        self.p1_epi_v()
        a("s_branch L_p1_done")
        self.p1_sides()
        a.label("L_p1_done")
        self.stamp(5)
        a(f"s_lshl_b32 s{T0}, s{self.sCT}, 4")
        a(f"s_add_u32 s{T0}, s{T0}, s{self.sRB}")
        a(f"s_mul_i32 s{T0}, s{T0}, {FSP}")
        a(f"s_add_u32 s{T0}, s{T0}, {FL_1}")
        self.flag_prep(12)
        a("s_waitcnt vmcnt(0)")
        self.stamp(6)
        a("s_barrier")
        self.flag_store(T0, 12, prepped=True)
        self.stamp(7)
        a(f"s_cmp_eq_u32 s{S_W}, 0")
        a("s_cbranch_scc1 L_no_rls")
        self.relayout_setup()
        a.label("L_no_rls")
        if self.stop < 2:
            self.relayout_issue()
            a("s_waitcnt vmcnt(0)")
            self.relayout_finish()

    def build(self):
        a = self.a
        self.entry()
        self.phase1()
        if self.stop >= 2:
            from phases import phase2, phase3, phase4, phase5
            phase2(self)
            if self.stop >= 3: phase3(self)
            if self.stop >= 4: phase4(self)
            if self.stop >= 5: phase5(self)
        a("s_waitcnt vmcnt(0)")
        if self.o.get("fixend"):
            if self.o.get("diag"):
                a("s_cmp_eq_u32 s35, 0")
                a("s_cbranch_scc1 L_end")
            a.label("L_fixend")
            a("s_memrealtime s[100:101]")
            a("s_waitcnt lgkmcnt(0)")
            a(f"s_sub_u32 s100, s100, s{31 if self.o.get('fixown') else S_NONCE}")
            a(f"s_cmp_lt_u32 s100, {int(self.o['fixend'])*100}")
            a("s_cbranch_scc1 L_fixend")
        self.stamp(31)
        self.stamp_flush()
        a.label("L_end")
        a("s_endpgm")
        a.lines.append(f".fill {self.pad}, 4, 0xbf810000")
        body = a.text()
        errs = check(body)
        if errs:
            sys.stderr.write("\n".join(errs[:40]) + "\n%d hazards\n" % len(errs))
            raise SystemExit(1)
        head = f"""; Fused preLN -> MHA -> residual -> preLN -> SiLU FFN -> residual in one persistent launch
;      checks its sums and outputs; if the shift was unsafe (sum > 2^40, inf or NaN) the wave redoes its rows
; @launch grid=(256,1,1) block=(512,1,1) lds={LDS_BYTES}
.amdgcn_target "amdgcn-amd-amdhsa--gfx950"
.text
.globl {NAME}_kernel
.p2align 8
.type {NAME}_kernel,@function
{NAME}_kernel:
"""
        tail = f""".section .rodata,"a"
.p2align 6
.amdhsa_kernel {NAME}_kernel
  .amdhsa_next_free_vgpr 256
  .amdhsa_next_free_sgpr 102
  .amdhsa_accum_offset 256
  .amdhsa_group_segment_fixed_size 0
  .amdhsa_kernarg_size 72
  .amdhsa_user_sgpr_count 2
  .amdhsa_user_sgpr_kernarg_segment_ptr 1
  .amdhsa_system_sgpr_workgroup_id_x 1
.end_amdhsa_kernel
"""
        return head + body + tail

if __name__ == "__main__":
    stop = int(sys.argv[2]) if len(sys.argv) > 2 else 99
    opts = dict(kv.split("=") for kv in sys.argv[3:])
    import subprocess
    def asm_size(path):
        r = subprocess.run(["clang", "-x", "assembler", "-target", "amdgcn-amd-amdhsa", "-mcpu=gfx950", "-c", path, "-o", "_chk.o"], capture_output=True, text=True)
        if r.returncode: print(r.stderr[:1500]); raise SystemExit(1)
        r = subprocess.run(["llvm-readelf", "-S", "_chk.o"], capture_output=True, text=True)
        return int([l for l in r.stdout.split("\n") if ".text" in l][0].split()[6], 16)
    open(sys.argv[1], "w").write(K(stop, opts).build())
    n = asm_size(sys.argv[1])
    k = K(stop, opts)
    k.CPF_LINES = (n + 4095) // 4096
    k.pad = (k.CPF_LINES * 4096 - n) // 4 + 16
    open(sys.argv[1], "w").write(k.build())
    print(sys.argv[1], "code bytes:", n, "with pad:", asm_size(sys.argv[1]))
```

```python
import sys, math
from asmlib import Asm, vr, sr, f2u, check
from tables import *

NAME = "sequential_preLN__mha_block__dense_activation_silu__prompt"
LDS_BYTES = 163840
SPIN_MAX = 200000

S_G = 2
SRD_X, SRD_WQ, SRD_WS, SRD_OUT, SRD_DBG, SRD_RL = 4, 8, 12, 16, 20, 24
S_W, S_C, S_J = 28, 29, 30
S_NONCE = 32
S_PTR = 36
T0, T1, T2, T3, T4, T5 = 54, 55, 56, 57, 58, 59
S_M1 = 60
S_SPIN = 62

class K:
    def __init__(self, stop_after=99, opts=None):
        self.a = Asm()
        self.stop = stop_after
        self.o = opts or {}
        self.pad = 0
        self._sides = []; self._late1 = []; self._tail = []

    def srd(self, d, ptr, nbytes):
        a = self.a
        a(f"s_mov_b32 s{d}, s{ptr}")
        a(f"s_and_b32 s{d+1}, s{ptr+1}, 0xffff")
        a(f"s_mov_b32 s{d+2}, {nbytes}")
        a(f"s_mov_b32 s{d+3}, 0x20000")

    def stamp(self, idx):
        if idx: self.jit(4)
        if not self.o.get("stamps"): return
        if self.o["stamps"] == "min" and idx not in (0, 9, 10, 31): return
        a = self.a
        a("s_memrealtime s[100:101]")
        a("s_waitcnt lgkmcnt(0)")
        a(f"v_writelane_b32 v255, s100, {idx}")
        if idx < 22 and self.o["stamps"] != "min":
            a("s_memtime s[100:101]")
            a("s_waitcnt lgkmcnt(0)")
            a(f"v_writelane_b32 v255, s100, {idx+32}")

    def stamp_dyn(self, base, sreg):
        if not self.o.get("its"): return
        a = self.a
        a("s_memtime s[100:101]")
        a("s_mov_b32 s99, m0")
        a(f"s_add_u32 m0, s{sreg}, {base}")
        a("s_waitcnt lgkmcnt(0)")
        a("v_writelane_b32 v255, s100, m0")
        a("s_mov_b32 m0, s99")

    def stamp_flush(self):
        if not self.o.get("stamps"): return
        a = self.a
        if self.o.get("dbgwg"):
            L = a.newlabel("dbg")
            a(f"s_cmp_lg_u32 s{S_G}, {int(self.o['dbgwg'])}")
            a(f"s_cbranch_scc1 {L}")
            a(f"s_cmp_lg_u32 s{S_W}, 0")
            a(f"s_cbranch_scc1 {L}")
            a(f"v_readlane_b32 s{T1}, v255, 0")
            for n, i in enumerate((3, 4, 7, 8, 9, 10, 12, 13, 15, 16, 18, 19, 31)):
                a(f"v_readlane_b32 s{T0}, v255, {i}")
                a("s_nop 3")
                a(f"s_sub_u32 s{T0}, s{T0}, s{T1}")
                a(f"v_mov_b32 v1, s{T0}")
                a(f"v_mov_b32 v2, {8+4*n}")
                a(f"buffer_store_dword v1, v2, s[{SRD_DBG}:{SRD_DBG+3}], 0 offen")
            a.label(L)
            return
        a(f"s_lshl_b32 s{T0}, s{S_G}, 3")
        a(f"s_add_u32 s{T0}, s{T0}, s{S_W}")
        a(f"s_lshl_b32 s{T0}, s{T0}, 8")
        a(f"s_add_u32 s{T0}, s{T0}, {WS_SIZE}")
        a("v_lshlrev_b32 v1, 2, v0")
        a(f"buffer_store_dword v255, v1, s[{SRD_WS}:{SRD_WS+3}], s{T0} offen")
        a("s_mov_b64 exec, -1")

    def hold(self, key):
        if not self.o.get(key): return
        a = self.a
        L = a.newlabel("hold")
        a.label(L)
        a("s_memrealtime s[100:101]")
        a("s_waitcnt lgkmcnt(0)")
        a(f"s_sub_u32 s100, s100, s{S_NONCE}")
        a(f"s_cmp_lt_u32 s100, {int(float(self.o[key]) * 100)}")
        a(f"s_cbranch_scc1 {L}")

    def jit(self, bits=3):
        if not self.o.get("jit"): return
        a = self.a
        L = a.newlabel("jit"); Ld = a.newlabel("jitd")
        a("s_mul_i32 s35, s35, 1103515245")
        a("s_add_u32 s35, s35, 12345")
        a(f"s_bfe_u32 s34, s35, {0x10000 * (bits + 2) + 16}")
        a(f"s_sub_u32 s34, s34, {3 << bits}")
        a(f"s_cbranch_scc1 {Ld}")
        a.label(L)
        a("s_sleep 3")
        a("s_sub_u32 s34, s34, 1")
        a(f"s_cbranch_scc0 {L}")
        a.label(Ld)

    def diag(self, what):
        if self.o.get("diag") == what: self.a("s_mov_b32 s35, 1")

    def dma(self, voff, srd, soff, flags=""):
        if self.o.get("nodma"): return
        self.a(f"buffer_load_dwordx4 v{voff}, s[{srd}:{srd+3}], {soff} offen {flags} lds".replace("  ", " "))

    def flag_prep(self, vt):
        a = self.a
        a(f"v_mov_b32 v{vt}, s{S_NONCE}")
        a(f"v_mov_b32 v{vt+1}, s{S_NONCE+1}")
        a(f"v_mov_b32 v{vt+2}, 0")

    def flag_store(self, s_off, vt, pol="sc1", prepped=False):
        a = self.a
        L = a.newlabel("nofl")
        a(f"s_cmp_lg_u32 s{S_W}, 0")
        a(f"s_cbranch_scc1 {L}")
        if not prepped: self.flag_prep(vt)
        a("s_mov_b64 exec, 1")
        a(f"buffer_store_dwordx2 v[{vt}:{vt+1}], v{vt+2}, s[{SRD_WS}:{SRD_WS+3}], s{s_off} offen {pol}")
        a("s_mov_b64 exec, -1")
        a.label(L)

    def poll(self, n, s_off, spacing, vt, only_wave0=True):
        a = self.a
        L = a.newlabel("poll"); Ld = a.newlabel("polld")
        if only_wave0:
            a(f"s_cmp_lg_u32 s{S_W}, 0")
            a(f"s_cbranch_scc1 {Ld}")
        a(f"s_mov_b32 s{S_SPIN}, 0")
        if n == 256:
            assert spacing == 8
            a(f"v_lshlrev_b32 v{vt+8}, 4, v0")
            a.label(L)
            a(f"buffer_load_dwordx4 v[{vt}:{vt+3}], v{vt+8}, s[{SRD_WS}:{SRD_WS+3}], s{s_off} offen sc1")
            a(f"buffer_load_dwordx4 v[{vt+4}:{vt+7}], v{vt+8}, s[{SRD_WS}:{SRD_WS+3}], s{s_off} offen offset:1024 sc1")
            a(f"s_add_u32 s{S_SPIN}, s{S_SPIN}, 1")
            a("s_waitcnt vmcnt(0)")
            a(f"v_cmp_ne_u64 vcc, s[{S_NONCE}:{S_NONCE+1}], v[{vt}:{vt+1}]")
            a(f"v_cmp_ne_u64 s[{S_M1}:{S_M1+1}], s[{S_NONCE}:{S_NONCE+1}], v[{vt+2}:{vt+3}]")
            a("s_nop 0")
            a(f"s_or_b64 s[{T4}:{T5}], vcc, s[{S_M1}:{S_M1+1}]")
            a(f"v_cmp_ne_u64 vcc, s[{S_NONCE}:{S_NONCE+1}], v[{vt+4}:{vt+5}]")
            a(f"v_cmp_ne_u64 s[{S_M1}:{S_M1+1}], s[{S_NONCE}:{S_NONCE+1}], v[{vt+6}:{vt+7}]")
            a("s_nop 0")
            a(f"s_or_b64 s[{T4}:{T5}], s[{T4}:{T5}], vcc")
            a(f"s_or_b64 s[{T4}:{T5}], s[{T4}:{T5}], s[{S_M1}:{S_M1+1}]")
        else:
            a(f"v_and_b32 v{vt+2}, {n-1}, v0")
            a(f"v_mul_u32_u24 v{vt+2}, {spacing}, v{vt+2}")
            a.label(L)
            a(f"buffer_load_dwordx2 v[{vt}:{vt+1}], v{vt+2}, s[{SRD_WS}:{SRD_WS+3}], s{s_off} offen sc1")
            a(f"s_add_u32 s{S_SPIN}, s{S_SPIN}, 1")
            a("s_waitcnt vmcnt(0)")
            a(f"v_cmp_ne_u64 vcc, s[{S_NONCE}:{S_NONCE+1}], v[{vt}:{vt+1}]")
            a("s_nop 0")
            a(f"s_or_b64 s[{T4}:{T5}], vcc, vcc")
        a(f"s_cbranch_scc0 {Ld}")
        if self.o.get("psleep"): a(f"s_sleep {int(self.o['psleep'])}")
        a(f"s_cmp_lt_u32 s{S_SPIN}, {SPIN_MAX}")
        a(f"s_cbranch_scc1 {L}")
        a.label(Ld)

    def pollp(self, n, s_off, spacing, va, vt, depth):
        a = self.a
        L = a.newlabel("poll"); Ld = a.newlabel("polld")
        N = f"s[{S_NONCE}:{S_NONCE+1}]"
        a(f"s_cmp_lg_u32 s{S_W}, 0")
        a(f"s_cbranch_scc1 {Ld}")
        a(f"s_mov_b32 s{S_SPIN}, 0")
        a(f"v_and_b32 v{va}, {n-1}, v0")
        a(f"v_mul_u32_u24 v{va}, {spacing}, v{va}")
        ld = lambda i: a(f"buffer_load_dwordx2 v[{vt+2*i}:{vt+2*i+1}], v{va}, s[{SRD_WS}:{SRD_WS+3}], s{s_off} offen sc1")
        for i in range(depth - 1):
            ld(i); a(f"s_sleep {int(self.o.get('psl', 2))}")
        a.label(L)
        for i in range(depth):
            ld((i + depth - 1) % depth)
            a(f"s_waitcnt vmcnt({depth-1})")
            a(f"v_cmp_ne_u64 vcc, {N}, v[{vt+2*i}:{vt+2*i+1}]")
            a(f"s_cbranch_vccz {Ld}")
        a(f"s_add_u32 s{S_SPIN}, s{S_SPIN}, 1")
        a(f"s_cmp_lt_u32 s{S_SPIN}, {SPIN_MAX}")
        a(f"s_cbranch_scc1 {L}")
        a.label(Ld)

    def poll2(self, va, vb, s_off, vt):
        a = self.a
        L = a.newlabel("poll"); Ld = a.newlabel("polld")
        N = f"s[{S_NONCE}:{S_NONCE+1}]"
        a(f"s_cmp_lg_u32 s{S_W}, 0")
        a(f"s_cbranch_scc1 {Ld}")
        a(f"s_mov_b32 s{S_SPIN}, 0")
        a.label(L)
        a(f"buffer_load_dwordx2 v[{vt}:{vt+1}], v{va}, s[{SRD_WS}:{SRD_WS+3}], s{s_off} offen sc1")
        a(f"buffer_load_dwordx2 v[{vt+2}:{vt+3}], v{vb}, s[{SRD_WS}:{SRD_WS+3}], s{s_off} offen sc1")
        a(f"s_add_u32 s{S_SPIN}, s{S_SPIN}, 1")
        a("s_waitcnt vmcnt(0)")
        a(f"v_cmp_ne_u64 vcc, {N}, v[{vt}:{vt+1}]")
        a(f"v_cmp_ne_u64 s[{S_M1}:{S_M1+1}], {N}, v[{vt+2}:{vt+3}]")
        a("s_nop 0")
        a(f"s_or_b64 vcc, vcc, s[{S_M1}:{S_M1+1}]")
        a(f"s_cbranch_scc0 {Ld}")
        if self.o.get("psleep"): a(f"s_sleep {int(self.o['psleep'])}")
        a(f"s_cmp_lt_u32 s{S_SPIN}, {SPIN_MAX}")
        a(f"s_cbranch_scc1 {L}")
        a.label(Ld)

    def entry(self):
        a = self.a
        a(f"s_cmp_ge_u32 s{S_G}, 256")
        a("s_cbranch_scc1 L_end")
        a(f"s_load_dwordx2 s[{SRD_X}:{SRD_X+1}], s[0:1], 0")
        a(f"s_load_dwordx2 s[{SRD_WQ}:{SRD_WQ+1}], s[0:1], 8")
        a(f"s_load_dwordx2 s[{SRD_DBG}:{SRD_DBG+1}], s[0:1], 56")
        a(f"s_load_dwordx16 s[{S_PTR}:{S_PTR+15}], s[0:1], 0")
        a(f"s_load_dwordx2 s[{S_PTR+16}:{S_PTR+17}], s[0:1], 64")
        a(f"s_memrealtime s[{S_NONCE}:{S_NONCE+1}]")
        if self.o.get("stamps"): a("v_mov_b32 v255, 0")
        self.stamp(0)
        a("v_lshrrev_b32 v1, 6, v0")
        a("v_and_b32 v0, 63, v0")
        a(f"v_readfirstlane_b32 s{S_W}, v1")
        a(f"s_and_b32 s{S_C}, s{S_G}, 7")
        a(f"s_lshr_b32 s{S_J}, s{S_G}, 3")
        if self.o.get("cpfe", "1") == "1": self.code_prefetch(int(self.o.get("cpfw", 1)))

    def code_prefetch(self, wave):
        a = self.a
        if self.o.get("cpf", "1") != "1": return
        Lc = a.newlabel("cpf")
        a(f"s_cmp_lg_u32 s{S_W}, {wave}")
        a(f"s_cbranch_scc1 {Lc}")
        a(f"s_getpc_b64 s[{T4}:{T5}]")
        a.label("L_pc_here")
        a(f"s_mul_i32 s{T0}, s{S_J}, {self.CPF_LINES*128}")
        a(f"s_sub_u32 s{T0}, s{T0}, L_pc_here-{NAME}_kernel")
        a(f"v_lshl_add_u32 v3, v0, 7, s{T0}")
        a("v_ashrrev_i32 v5, 31, v3")
        a(f"v_mov_b32 v6, s{T5}")
        a(f"v_add_co_u32 v4, vcc, s{T4}, v3")
        a(f"s_mov_b64 exec, {(1 << self.CPF_LINES) - 1}")
        a("s_nop 0")
        a("v_addc_co_u32 v5, vcc, v5, v6, vcc")
        a("global_load_dword v254, v[4:5], off")
        a("s_mov_b64 exec, -1")
        a.label(Lc)

    ACC = 16; XF = 160; WF = 176; XA = 72; WA = 144; DXA, DXB, DW = 78, 79, 80; VXM = 76
    ONES = 82
    CQ = 96
    CQA = 81; CSW = 85
    PGA, PGV, PGR, PGD = 116, 117, 118, 119
    RSA, RS = 84, 128
    STA = 86
    RLV, RLA = 157, 158
    VN = 92
    sRB, sCT, sKC, sXO, sWO, sSLOT, sCNT, sXM, sTG, sNH = 64, 65, 66, 67, 68, 69, 70, 71, 72, 73
    sTAB = 74
    sM0X = 80; sWO2 = 81; sKC0 = 82; sSIDE = 83; sXB = 71; sWB = 69
    sRL = 84
    P1_MISC = 148 * 1024
    RL_SCR = 68 * 1024
    CQ_SCR = 128 * 1024
    DUMMY = 159 * 1024
    CPF_LINES = 8

    def p1_issue(self, pieces=(0, 1, 2, 3)):
        a = self.a
        if 0 in pieces:
            a(f"s_mov_b32 m0, s{self.sM0X}")
            a(f"s_add_u32 s{self.sM0X}, s{self.sM0X}, 32768")
            self.dma(self.DXA, SRD_X, f"s{self.sXO}")
        if 1 in pieces:
            a("s_add_u32 m0, m0, 16384")
            a(f"s_add_u32 s{self.sWO2}, s{self.sWO}, 15360")
            self.dma(self.DW, SRD_WQ, f"s{self.sWO}")
        if 2 in pieces:
            a("s_sub_u32 m0, m0, 15360")
            a(f"s_add_u32 s{self.sWO}, s{self.sWO}, 245760")
            self.dma(self.DXB, SRD_X, f"s{self.sXO}")
        if 3 in pieces:
            a("s_add_u32 m0, m0, 16384")
            a(f"s_add_u32 s{self.sXO}, s{self.sXO}, 128")
            self.dma(self.DW, SRD_WQ, f"s{self.sWO2}")
            a(f"s_and_b32 s{self.sM0X}, s{self.sM0X}, 0x1ffff")
            a(f"s_sub_u32 s{self.sKC}, s{self.sKC}, 1")
            a(f"s_cmov_b32 s{self.sXO}, s{self.sXB}")
            a(f"s_cmov_b32 s{self.sWO}, s{self.sWB}")

    def p1_setup_a(self):
        a = self.a
        a(f"s_lshr_b32 s{T0}, s{S_C}, 1")
        a(f"s_lshl_b32 s{T0}, s{T0}, 2")
        a(f"s_lshr_b32 s{T1}, s{S_J}, 3")
        a(f"s_add_u32 s{self.sRB}, s{T0}, s{T1}")
        a(f"s_and_b32 s{T0}, s{S_C}, 1")
        a(f"s_lshl_b32 s{T0}, s{T0}, 3")
        a(f"s_and_b32 s{T2}, s{S_J}, 7")
        a(f"s_add_u32 s{self.sCT}, s{T0}, s{T2}")
        g = int(self.o.get("rotg", 4))
        if g == 8:
            a(f"s_lshl_b32 s{T1}, s{T1}, 1")
            a(f"s_add_u32 s{self.sKC}, s{T2}, s{T1}")
            a(f"s_bfe_u32 s{T0}, s{S_C}, 0x10001")
            a(f"s_and_b32 s{T1}, s{S_C}, 4")
            a(f"s_lshl_b32 s{T1}, s{T1}, 1")
            a(f"s_add_u32 s{T0}, s{T0}, s{T1}")
            a(f"s_add_u32 s{self.sKC}, s{self.sKC}, s{T0}")
        else:
            bases, offs, shift = {3: ((0, 3, 7), (0, 1, 2, 6), 0), 4: ((0, 2, 5, 7), (0, 1, 2, 3), 0), 5: ((0, 2, 4, 6, 8), (0, 1, 0, 1), 1)}[g]
            a(f"s_add_u32 s{T1}, s{T1}, s{T2}")
            a(f"s_lshr_b32 s{T0}, s{S_C}, 1")
            if shift: a(f"s_add_u32 s{T1}, s{T1}, s{T0}")
            tab = sum(bases[i % g] << (4 * i) for i in range(16))
            a(f"s_lshl_b32 s{T1}, s{T1}, 2")
            a(f"s_mov_b32 s{T4}, 0x{tab & 0xffffffff:08x}")
            a(f"s_mov_b32 s{T5}, 0x{tab >> 32:08x}")
            a(f"s_lshr_b64 s[{T4}:{T5}], s[{T4}:{T5}], s{T1}")
            a(f"s_and_b32 s{self.sKC}, s{T4}, 15")
            a(f"s_lshl_b32 s{T0}, s{T0}, 2")
            a(f"s_lshr_b32 s{T0}, 0x{sum(o << (4 * i) for i, o in enumerate(offs)):04x}, s{T0}")
            a(f"s_and_b32 s{T0}, s{T0}, 15")
            a(f"s_add_u32 s{self.sKC}, s{self.sKC}, s{T0}")
            for ct in range(8):
                assert len({(bases[(ct + rl + shift * aa) % g] + offs[aa]) % 10 for aa in range(4) for rl in range(4)}) == 10
        a(f"s_mul_i32 s{T0}, s{self.sKC}, 26")
        a(f"s_lshr_b32 s{T0}, s{T0}, 8")
        a(f"s_mul_i32 s{T0}, s{T0}, 10")
        a(f"s_sub_u32 s{self.sKC}, s{self.sKC}, s{T0}")
        a(f"s_mov_b32 s{self.sKC0}, s{self.sKC}")
        a(f"s_mul_i32 s{self.sXB}, s{self.sRB}, 163840")
        a(f"s_lshl_b32 s{T0}, s{self.sKC}, 7")
        a(f"s_add_u32 s{self.sXO}, s{self.sXB}, s{T0}")
        a(f"s_mul_i32 s{self.sWO}, s{self.sKC}, 245760")
        a(f"s_lshl_b32 s{self.sWB}, s{self.sCT}, 8")
        a(f"s_add_u32 s{self.sWO}, s{self.sWO}, s{self.sWB}")
        a(f"s_lshl_b32 s{self.sM0X}, s{S_W}, 11")
        a(f"s_sub_u32 s{self.sKC}, 9, s{self.sKC}")
        a("v_lshrrev_b32 v1, 3, v0")
        a("v_lshrrev_b32 v2, 4, v0")
        a("v_and_b32 v3, 7, v0")
        a("v_xor_b32 v3, v3, v2")
        a(f"s_lshl_b32 s{T0}, s{S_W}, 4")
        a(f"v_add_u32 v4, s{T0}, v1")
        a("v_mul_u32_u24 v4, 1280, v4")
        a(f"v_lshl_add_u32 v{self.DXA}, v3, 4, v4")
        a(f"v_xor_b32 v{self.DXB}, 64, v{self.DXA}")
        a(f"v_add_u32 v{self.DXB}, 10240, v{self.DXB}")
        a("v_lshlrev_b32 v3, 2, v2")
        a("v_and_b32 v4, 15, v0")
        a("v_xor_b32 v3, v3, v4")
        a(f"s_lshl_b32 s{T0}, s{S_W}, 3")
        a(f"v_add_u32 v4, s{T0}, v2")
        a("v_mul_u32_u24 v4, 3840, v4")
        a(f"v_lshl_add_u32 v{self.DW}, v3, 4, v4")
        for d, n in ((SRD_X, 2048 * 1280), (SRD_WQ, 640 * 3840), (SRD_DBG, 256)):
            a(f"s_mov_b32 s{d+2}, {n}")
            a(f"s_mov_b32 s{d+3}, 0x20000")
        a("s_waitcnt lgkmcnt(0)")
        if self.o.get("jit"):
            a(f"s_mul_i32 s35, s{S_G}, 977")
            a(f"s_mul_i32 s34, s{S_W}, 7919")
            a("s_add_u32 s35, s35, s34")
            a(f"s_add_u32 s35, s35, s{S_NONCE}")
        if self.o.get("fixown"): a(f"s_mov_b32 s31, s{S_NONCE}")
        if self.o.get("diag"): a("s_mov_b32 s35, 0")
        a(f"s_or_b32 s{T0}, s{S_G}, s{S_W}")
        a("s_cbranch_scc0 L_nonce_pub")
        a.label("L_nonce_done")
        a(f"s_cmp_eq_u32 s{self.sCT}, 15")
        a("s_cbranch_scc1 L_p1_noissue")
        self.p1_issue()
        if self.o.get("first5", "1") == "1": self.p1_issue((0,))
        a.label("L_p1_noissue")
        self.stamp(1)
        self.srd(SRD_WS, S_PTR + 16, WS_SIZE + ((1 << 20) if self.o.get("stamps") else 0))
        self.srd(SRD_OUT, S_PTR + 12, 2048 * 1280)
        a(f"s_mov_b64 s[{SRD_RL}:{SRD_RL+1}], 0")
        a(f"s_mov_b32 s{SRD_RL+2}, 0")
        a(f"s_mov_b32 s{SRD_RL+3}, 0x20000")
        a(f"v_mov_b32 v{self.RLV}, 0")
        if self.o.get("cpfe", "1") != "1": self.code_prefetch(7)

    def relayout_setup(self):
        a = self.a
        R = self.sRL
        u = a.newlabel("u")
        sID, sKS, sCB, sST, sA, sB, sCc, sD = T0, T1, T2, T3, 93, 94, 95, 96
        sBase, sSl, sKsS = 97, 98, 99
        a(f"s_mul_i32 s{sID}, s{S_G}, 5")
        a(f"s_add_u32 s{sID}, s{sID}, s{S_W}")
        a(f"s_sub_u32 s{sID}, s{sID}, 1")
        a(f"s_min_u32 s{sID}, s{sID}, 1279")
        a(f"s_mov_b32 s{sA}, 16")
        a(f"s_mov_b32 s{sB}, 8")
        a(f"s_mov_b32 s{sCc}, 4")
        a(f"s_mov_b32 s{SRD_RL+3}, 0x20000")
        a(f"s_mov_b32 s{R+8}, -1")
        a(f"s_cmp_lt_u32 s{sID}, 200")
        a(f"s_cbranch_scc1 L_rl_wo{u}")
        a(f"s_cmp_lt_u32 s{sID}, 740")
        a(f"s_cbranch_scc1 L_rl_w1{u}")
        a(f"s_sub_u32 s{sID}, s{sID}, 740")
        a(f"s_mul_i32 s{sKS}, s{sID}, 6554")
        a(f"s_lshr_b32 s{sKS}, s{sKS}, 16")
        a(f"s_mul_i32 s{sCB}, s{sKS}, 10")
        a(f"s_sub_u32 s{sCB}, s{sID}, s{sCB}")
        a(f"s_lshl_b32 s{sD}, s{sKS}, 5")
        a(f"s_mov_b32 s{SRD_RL}, s{S_PTR+10}")
        a(f"s_and_b32 s{SRD_RL+1}, s{S_PTR+11}, 0xffff")
        a(f"s_mov_b32 s{SRD_RL+2}, {1728*1280}")
        a(f"s_mov_b32 s{sBase}, {WS_W2}")
        a(f"s_mov_b32 s{sSl}, {54*5120}")
        a(f"s_cmp_ge_u32 s{sKS}, 48")
        a(f"s_cselect_b32 s{sA}, 4, 16")
        a(f"s_cselect_b32 s{sB}, 16, 8")
        a(f"s_cselect_b32 s{sCc}, 8, 4")
        a(f"s_add_u32 s{T4}, s{sKS}, 3")
        a(f"s_cmp_ge_u32 s{sKS}, 24")
        a(f"s_cselect_b32 s{T4}, s{T4}, s{sKS}")
        a(f"s_sub_u32 s{T5}, s{sKS}, 24")
        a(f"s_cmp_ge_u32 s{sKS}, 48")
        a(f"s_cselect_b32 s{T4}, s{T5}, s{T4}")
        a(f"s_cmp_ge_u32 s{sKS}, 51")
        a(f"s_cselect_b32 s{sKS}, s{sKS}, s{T4}")
        a(f"s_branch L_rl_n640{u}")
        a.label(f"L_rl_wo{u}")
        a(f"s_mul_i32 s{sKS}, s{sID}, 6554")
        a(f"s_lshr_b32 s{sKS}, s{sKS}, 16")
        a(f"s_mul_i32 s{sCB}, s{sKS}, 10")
        a(f"s_sub_u32 s{sCB}, s{sID}, s{sCB}")
        a(f"s_mul_i32 s{sD}, s{sKS}, 40")
        a(f"s_mul_i32 s{sST}, s{sKS}, 160")
        a(f"s_sub_u32 s{sST}, s{sST}, {160*16-16}")
        a(f"s_cmp_lt_u32 s{sKS}, 16")
        a(f"s_cselect_b32 s{sD}, s{sD}, s{sST}")
        a(f"s_cselect_b32 s{sA}, 8, 20")
        a(f"s_cselect_b32 s{sB}, 20, 0x50")
        a(f"s_cselect_b32 s{sCc}, 4, 40")
        a(f"s_mov_b32 s{SRD_RL}, s{S_PTR+4}")
        a(f"s_and_b32 s{SRD_RL+1}, s{S_PTR+5}, 0xffff")
        a(f"s_mov_b32 s{SRD_RL+2}, {640*1280}")
        a(f"s_mov_b32 s{sBase}, {WS_WO}")
        a(f"s_mov_b32 s{sSl}, {20*5120}")
        a(f"s_add_u32 s{T4}, s{sKS}, 2")
        a(f"s_cmp_ge_u32 s{sKS}, 8")
        a(f"s_cselect_b32 s{T4}, s{T4}, s{sKS}")
        a(f"s_sub_u32 s{T5}, s{sKS}, 8")
        a(f"s_cmp_ge_u32 s{sKS}, 16")
        a(f"s_cselect_b32 s{T4}, s{T5}, s{T4}")
        a(f"s_cmp_ge_u32 s{sKS}, 18")
        a(f"s_cselect_b32 s{sKS}, s{sKS}, s{T4}")
        a(f"s_sub_u32 s{T4}, s{sKS}, 1")
        a(f"s_cmp_ge_u32 s{sKS}, 10")
        a(f"s_cselect_b32 s{T4}, s{T4}, s{sKS}")
        a(f"s_cmp_eq_u32 s{sKS}, 9")
        a(f"s_cselect_b32 s{T4}, 18, s{T4}")
        a(f"s_cmp_eq_u32 s{sKS}, 19")
        a(f"s_cselect_b32 s{sKS}, 19, s{T4}")
        a.label(f"L_rl_n640{u}")
        a(f"s_mov_b32 s{sST}, 1280")
        a(f"s_mul_i32 s{sKsS}, s{sKS}, 5120")
        a(f"s_add_u32 s{sBase}, s{sBase}, s{sKsS}")
        for t in range(4):
            a(f"s_lshl_b32 s{T4}, s{sCB}, 2")
            a(f"s_add_u32 s{T4}, s{T4}, {t}")
            a(f"s_mul_i32 s{T5}, s{T4}, 52")
            a(f"s_lshr_b32 s{T5}, s{T5}, 8")
            a(f"s_mul_i32 s{R+4+t}, s{T5}, s{sSl}")
            a(f"s_mul_i32 s{T5}, s{T5}, 5")
            a(f"s_sub_u32 s{T4}, s{T4}, s{T5}")
            a(f"s_lshl_b32 s{T4}, s{T4}, 10")
            a(f"s_add_u32 s{R+4+t}, s{R+4+t}, s{T4}")
            a(f"s_add_u32 s{R+4+t}, s{R+4+t}, s{sBase}")
        a(f"s_branch L_rl_common{u}")
        a.label(f"L_rl_w1{u}")
        a(f"s_sub_u32 s{sID}, s{sID}, 200")
        a(f"s_mul_i32 s{sKS}, s{sID}, 2428")
        a(f"s_lshr_b32 s{sKS}, s{sKS}, 16")
        a(f"s_mul_i32 s{sCB}, s{sKS}, 27")
        a(f"s_sub_u32 s{sCB}, s{sID}, s{sCB}")
        a(f"s_lshr_b32 s{T4}, s{sKS}, 1")
        a(f"s_mul_i32 s{T4}, s{T4}, 0x50")
        a(f"s_and_b32 s{T5}, s{sKS}, 1")
        a(f"s_lshl_b32 s{T5}, s{T5}, 5")
        a(f"s_add_u32 s{sD}, s{T4}, s{T5}")
        a(f"s_mul_i32 s{T4}, s{sKS}, 160")
        a(f"s_sub_u32 s{T4}, s{T4}, {160*16-64}")
        a(f"s_cmp_lt_u32 s{sKS}, 16")
        a(f"s_cselect_b32 s{sD}, s{sD}, s{T4}")
        a(f"s_cselect_b32 s{sA}, 16, 4")
        a(f"s_cselect_b32 s{sB}, 8, 0x50")
        a(f"s_cselect_b32 s{sCc}, 4, 8")
        a(f"s_mov_b32 s{SRD_RL}, s{S_PTR+8}")
        a(f"s_and_b32 s{SRD_RL+1}, s{S_PTR+9}, 0xffff")
        a(f"s_mov_b32 s{SRD_RL+2}, {640*3456}")
        a(f"s_mov_b32 s{sST}, 3456")
        a(f"s_mul_i32 s{sKsS}, s{sKS}, 7168")
        a(f"s_add_u32 s{sBase}, s{sKsS}, {WS_W1}")
        a(f"s_mul_i32 s{R+8}, s{sKS}, {1728*4}")
        a(f"s_lshl_b32 s{T4}, s{sCB}, 8")
        a(f"s_add_u32 s{R+8}, s{R+8}, s{T4}")
        a(f"s_add_u32 s{R+8}, s{R+8}, {WS_CS1}")
        for t in range(4):
            a(f"s_lshl_b32 s{T4}, s{sCB}, 2")
            a(f"s_add_u32 s{T4}, s{T4}, {t}")
            a(f"s_mul_i32 s{T5}, s{T4}, 43")
            a(f"s_lshr_b32 s{T5}, s{T5}, 8")
            a(f"s_mul_i32 s{sSl}, s{T5}, 6")
            a(f"s_sub_u32 s{sSl}, s{T4}, s{sSl}")
            a(f"s_sub_u32 s{sKsS}, s{T4}, 96")
            a(f"s_cmp_lt_u32 s{T4}, 96")
            a(f"s_cselect_b32 s{T5}, s{T5}, s{sKsS}")
            a(f"s_cselect_b32 s{sSl}, s{sSl}, 6")
            a(f"s_mul_i32 s{R+4+t}, s{T5}, {20*7168}")
            a(f"s_lshl_b32 s{sSl}, s{sSl}, 10")
            a(f"s_add_u32 s{R+4+t}, s{R+4+t}, s{sSl}")
            a(f"s_add_u32 s{R+4+t}, s{R+4+t}, s{sBase}")
        a.label(f"L_rl_common{u}")
        a(f"s_mul_i32 s{sD}, s{sD}, s{sST}")
        a(f"s_lshl_b32 s{T4}, s{sCB}, 7")
        a(f"s_add_u32 s{R}, s{sD}, s{T4}")
        a(f"s_mul_i32 s{sA}, s{sA}, s{sST}")
        a(f"s_mul_i32 s{sB}, s{sB}, s{sST}")
        a(f"s_add_u32 s{R+1}, s{R}, s{sB}")
        a(f"s_add_u32 s{R+2}, s{R}, s{sA}")
        a(f"s_add_u32 s{R+3}, s{R+2}, s{sB}")
        a("v_lshrrev_b32 v1, 5, v0")
        a(f"v_mul_u32_u24 v1, s{sCc}, v1")
        a("v_bfe_u32 v2, v0, 3, 2")
        a("v_add_u32 v1, v1, v2")
        a(f"v_mul_u32_u24 v1, s{sST}, v1")
        a("v_and_b32 v2, 7, v0")
        a(f"v_lshl_add_u32 v{self.RLV}, v2, 4, v1")
        a("v_lshrrev_b32 v1, 2, v0")
        a("v_lshlrev_b32 v1, 7, v1")
        a("v_and_b32 v2, 3, v0")
        a("v_lshl_add_u32 v1, v2, 3, v1")
        a(f"s_lshl_b32 s{T4}, s{S_W}, 12")
        a(f"s_add_u32 s{T4}, s{T4}, {self.RL_SCR-4096}")
        a(f"v_add_u32 v{self.RLA}, s{T4}, v1")

    def relayout_issue(self, drain_older=False):
        a = self.a
        L = a.newlabel("rlsk")
        a(f"s_sub_u32 s{T0}, s{S_W}, 1")
        a(f"s_cmp_ge_u32 s{T0}, {0 if self.o.get('norl') else 5}")
        a(f"s_cbranch_scc1 {L}")
        a(f"s_lshl_b32 s{T0}, s{S_W}, 12")
        a(f"s_add_u32 m0, s{T0}, {self.RL_SCR-4096}")
        for i in range(4):
            if i: a("s_add_u32 m0, m0, 1024")
            a("s_nop 0")
            self.dma(self.RLV, SRD_RL, f"s{self.sRL+i}")
        if drain_older:
            L2 = a.newlabel("rlw")
            a("s_waitcnt vmcnt(4)")
            a(f"s_branch {L2}")
            a.label(L)
            a("s_waitcnt vmcnt(0)")
            a.label(L2)
        else:
            a.label(L)

    def relayout_finish(self, younger=None):
        a = self.a
        L = a.newlabel("rlsk"); F = 168; t = 184
        a(f"s_sub_u32 s{T0}, s{S_W}, 1")
        a(f"s_cmp_ge_u32 s{T0}, 5")
        Lo = a.newlabel("rlo")
        a(f"s_cbranch_scc1 {Lo if younger is not None else L}")
        if younger is not None: a(f"s_waitcnt vmcnt({younger})")
        for q in range(4):
            for rd in range(2):
                a(f"ds_read_b64_tr_b16 v[{F+4*q+2*rd}:{F+4*q+2*rd+1}], v{self.RLA} offset:{rd*2048+q*32}")
        a(f"v_lshlrev_b32 v{t}, 4, v0")
        for q in range(4):
            a(f"s_waitcnt lgkmcnt({6-2*q})")
            a(f"buffer_store_dwordx4 v[{F+4*q}:{F+4*q+3}], v{t}, s[{SRD_WS}:{SRD_WS+3}], s{self.sRL+4+q} offen sc1")
        if younger is not None: a("s_waitcnt vmcnt(4)")
        a(f"s_cmp_eq_u32 s{self.sRL+8}, -1")
        a(f"s_cbranch_scc1 {L}")
        for q in range(4): a(f"v_mov_b32 v{t+2+q}, 0")
        a(f"v_mov_b32 v{t+6}, 0x3f803f80")
        for k in range(4):
            for q in range(4): a(f"v_dot2_f32_bf16 v{t+2+q}, v{F+4*q+k}, v{t+6}, v{t+2+q}")
        a(f"v_lshlrev_b32 v{t+1}, 2, v0")
        a("s_nop 1")
        a(f"v_permlane16_swap_b32 v{t+2}, v{t+3}")
        a(f"v_permlane16_swap_b32 v{t+4}, v{t+5}")
        a("s_nop 0")
        a(f"v_add_f32 v{t+2}, v{t+2}, v{t+3}")
        a(f"v_add_f32 v{t+4}, v{t+4}, v{t+5}")
        a("s_nop 1")
        a(f"v_permlane32_swap_b32 v{t+2}, v{t+4}")
        a("s_nop 0")
        a(f"v_add_f32 v{t+2}, v{t+2}, v{t+4}")
        a(f"buffer_store_dword v{t+2}, v{t+1}, s[{SRD_WS}:{SRD_WS+3}], s{self.sRL+8} offen sc1")
        if younger is not None:
            a(f"s_branch {L}")
            a.label(Lo)
            a("s_waitcnt vmcnt(0)")
        a.label(L)

    def p1_setup_b(self):
        a = self.a
        a(f"s_and_b32 s{self.sTG}, s{S_W}, 3")
        a(f"s_lshr_b32 s{self.sNH}, s{S_W}, 2")
        a(f"s_cmp_ge_u32 s{self.sCT}, 5")
        a(f"s_cselect_b32 s{T0}, 5, 0")
        a(f"s_sub_u32 s{T0}, s{self.sCT}, s{T0}")
        a(f"s_lshl_b32 s{T0}, s{T0}, 1")
        a(f"s_add_u32 s{T0}, s{T0}, s{self.sNH}")
        for idx in range(10):
            a(f"s_cmp_eq_u32 s{T0}, {idx}")
            a(f"s_cbranch_scc1 L_tab{idx}")
        a(f"s_mul_i32 s{T1}, s{self.sNH}, 0x10101010")
        for k in range(4): a(f"s_add_u32 s{self.sTAB+k}, s{T1}, 0x%08x" % (0x03020100 + 0x04040404 * k))
        a(f"s_mov_b32 s{self.sTAB+4}, 0")
        a(f"s_mov_b32 s{self.sTAB+5}, 0")
        a("s_branch L_tabdone")
        for idx in range(10):
            a.label(f"L_tab{idx}")
            for k, d in enumerate(p1_table(idx // 2, idx % 2)): a(f"s_mov_b32 s{self.sTAB+k}, 0x%08x" % d)
            if idx < 9: a("s_branch L_tabdone")
        a.label("L_tabdone")
        a("v_and_b32 v1, 31, v0")
        a(f"s_lshl_b32 s{T0}, s{self.sTG}, 5")
        a(f"v_add_u32 v2, s{T0}, v1")
        a("v_bfe_u32 v3, v2, 1, 3")
        a("v_lshrrev_b32 v4, 5, v0")
        a("v_xor_b32 v3, v3, v4")
        a("v_lshlrev_b32 v3, 4, v3")
        a(f"v_lshl_add_u32 v{self.XA}, v2, 7, v3")
        a(f"s_xor_b32 s{T3}, s{self.sTG}, s{self.sNH}")
        a(f"s_lshl_b32 s{T0}, s{T3}, 5")
        a(f"v_xor_b32 v{self.XA}, s{T0}, v{self.XA}")
        for ks in range(1, 4): a(f"v_xor_b32 v{self.XA+ks}, {ks<<5}, v{self.XA}")
        a("v_bfe_u32 v5, v0, 2, 2")
        a("v_lshl_add_u32 v6, v4, 3, v5")
        a("v_lshlrev_b32 v6, 8, v6")
        a("v_and_b32 v7, 3, v0")
        a("v_lshlrev_b32 v7, 3, v7")
        a("v_and_b32 v8, 16, v0")
        a("v_cmp_ne_u32 vcc, 0, v8")
        for i in range(2):
            a(f"v_mov_b32 v8, s{self.sTAB+2*i}")
            a(f"v_mov_b32 v9, s{self.sTAB+2*i+1}")
            a("v_cndmask_b32 v8, v8, v9, vcc")
            a("v_bfe_u32 v8, v8, v7, 8")
            a("v_lshlrev_b32 v8, 3, v8")
            a("v_lshlrev_b32 v9, 6, v5")
            a("v_xor_b32 v8, v8, v9")
            a(f"v_add_u32 v8, v6, v8")
            a(f"s_lshl_b32 s{T0}, s{T3}, 12")
            a(f"v_add_u32 v{self.WA+4*i}, s{T0}, v8")
            for j in range(1, 4): a(f"v_xor_b32 v{self.WA+4*i+j}, {j<<12}, v{self.WA+4*i}")
        a(f"s_lshl_b32 s{T0}, s{self.sRB}, 2")
        a(f"s_add_u32 s{T0}, s{T0}, s{self.sTG}")
        a(f"s_lshl_b32 s{T1}, s{T0}, 9")
        a(f"s_add_u32 s{T1}, s{T1}, {WS_RS}")
        a(f"v_lshl_add_u32 v{self.RSA}, v1, 4, s{T1}")
        a(f"s_cmp_ge_u32 s{self.sCT}, 10")
        a("s_cbranch_scc1 L_p1_vaddr")
        a(f"s_lshl_b32 s{T0}, s{T0}, 9")
        a(f"s_cmp_ge_u32 s{self.sCT}, 5")
        a(f"s_cselect_b32 s{T1}, {WS_K}, {WS_Q}")
        a(f"s_add_u32 s{T0}, s{T0}, s{T1}")
        a(f"v_lshl_add_u32 v2, v1, 4, s{T0}")
        a("v_lshlrev_b32 v3, 3, v4")
        a("v_add_u32 v5, 16, v3")
        for i in range(2):
            for qq in range(2):
                a(f"v_bfe_u32 v6, s{self.sTAB+4+i}, v{3 if qq == 0 else 5}, 8")
                a(f"v_lshl_add_u32 v{self.STA+2*i+qq}, v6, 15, v2")
        a("s_branch L_p1_addrdone")
        a.label("L_p1_vaddr")
        a(f"s_mul_i32 s{T0}, s{T0}, 1280")
        a(f"s_add_u32 s{T0}, s{T0}, {WS_V}")
        a(f"s_lshl_b32 s{T1}, s{self.sCT}, 7")
        a(f"s_lshl_b32 s{T2}, s{self.sNH}, 6")
        a(f"s_add_u32 s{T1}, s{T1}, s{T2}")
        a(f"s_sub_u32 s{T1}, s{T1}, 1280")
        a(f"v_mov_b32 v{self.STA+2}, 0")
        a(f"v_mov_b32 v{self.STA+3}, 0")
        a("v_mul_u32_u24 v3, 320, v4")
        a(f"v_add_u32 v3, s{T0}, v3")
        a(f"s_mov_b32 s{T2}, 81920")
        for i in range(2):
            a(f"v_add_u32 v5, s{T1}, v1")
            if i: a("v_add_u32 v5, 32, v5")
            a("v_mul_u32_u24 v6, 3277, v5")
            a("v_lshrrev_b32 v6, 16, v6")
            a("v_mul_u32_u24 v7, 20, v6")
            a("v_sub_u32 v5, v5, v7")
            a("v_lshl_add_u32 v5, v5, 4, v3")
            a(f"v_mad_u32_u24 v{self.STA+i}, v6, s{T2}, v5")
        a.label("L_p1_addrdone")
        for r in range(32): a(f"v_mov_b32 v{self.ACC+r}, 0")
        a(f"s_mul_i32 s{T0}, s{self.sCT}, 10240")
        a(f"s_lshl_b32 s{T1}, s{self.sNH}, 9")
        a(f"s_add_u32 s{T0}, s{T0}, s{T1}")
        a(f"s_add_u32 s{T0}, s{T0}, {WS_CQ}")
        a(f"v_lshl_add_u32 v{self.CQA}, v0, 3, s{T0}")
        a(f"s_lshl_b32 s{T0}, s{self.sNH}, 8")
        a(f"s_lshl_b32 s{T1}, s{self.sTG}, 9")
        a(f"s_add_u32 s{T0}, s{T0}, {self.P1_MISC}")
        a(f"s_add_u32 s{T1}, s{T1}, s{T0}")
        a(f"v_lshl_add_u32 v{self.CSW}, v0, 2, s{T1}")
        a(f"v_lshl_add_u32 v95, v0, 2, s{T0}")
        a(f"v_mov_b32 v{self.VXM}, 0x8000")
        a(f"s_lshl_b32 s{T0}, s{S_W}, 2")
        a(f"s_add_u32 s{T0}, s{T0}, {self.P1_MISC + 2304}")
        a(f"v_mov_b32 v{self.PGA}, s{T0}")
        a(f"v_mov_b32 v{self.PGV}, 0")
        a(f"v_and_b32 v{self.PGR}, 7, v0")
        a(f"v_lshlrev_b32 v{self.PGR}, 2, v{self.PGR}")
        a(f"v_add_u32 v{self.PGR}, {self.P1_MISC + 2304}, v{self.PGR}")
        a(f"ds_write_b32 v{self.PGA}, v{self.PGV}")
        a(f"s_mov_b32 s{self.sCNT}, -1")
        a(f"s_cmp_eq_u32 s{self.sTG}, 0")
        a(f"s_cselect_b32 s{self.sSIDE}, 2, 0")

    def p1_loop(self, vmode):
        a = self.a
        tag = "v" if vmode else "q"
        if self.o.get("p1soft"):
            self.p1_loop1(vmode, 0)
        else:
            a(f"s_cmp_lg_u32 s{self.sNH}, 0")
            a(f"s_cbranch_scc1 L_p1_B{tag}")
            self.p1_loop1(vmode, 0)
            a(f"s_branch L_p1_E{tag}")
            a.label(f"L_p1_B{tag}")
            self.p1_loop1(vmode, 1)
            a.label(f"L_p1_E{tag}")
        reads, xors, mf = self.p1_parts(vmode)
        def comp(ks, rd=True, xr=True):
            self.jit(2)
            a(f"s_waitcnt lgkmcnt({5 if rd or ks == 2 else 0})")
            mf(ks, 0)
            if rd: reads((ks + 2) % 4)
            mf(ks, 1)
            if xr: xors((ks + 2) % 4)
        comp(0); self.p1_issue((2,))
        comp(1); self.p1_issue((3,))
        a(f"buffer_load_dwordx4 v[{self.RS}:{self.RS+3}], v{self.RSA}, s[{SRD_WS}:{SRD_WS+3}], 0 offen sc1")
        a(f"s_mul_i32 s{T0}, s{self.sCT}, 10240")
        a(f"s_lshl_b32 s{T1}, s{S_W}, 10")
        a(f"s_add_u32 s{T0}, s{T0}, s{T1}")
        a(f"s_add_u32 s{T0}, s{T0}, {WS_CQ}")
        a(f"s_add_u32 m0, s{T1}, {self.CQ_SCR}")
        a("v_lshlrev_b32 v1, 4, v0")
        self.dma(1, SRD_WS, f"s{T0}", "sc1")
        a(f"s_add_u32 s{T0}, s{T0}, 8192")
        a("s_add_u32 m0, m0, 8192")
        a(f"s_cmp_ge_u32 s{S_W}, 2")
        a(f"s_cselect_b32 s{T0}, 0x7f000000, s{T0}")
        self.dma(1, SRD_WS, f"s{T0}", "sc1")
        a("s_waitcnt vmcnt(7)")
        a("s_barrier")
        comp(2); comp(3)
        comp(0); comp(1)
        a("s_waitcnt vmcnt(3)")
        a("s_barrier")
        comp(2, xr=False); comp(3, xr=False)
        a("s_waitcnt vmcnt(0) lgkmcnt(5)")
        a("s_barrier")
        mf(0, 0)
        self.p1_epi_reads()
        mf(0, 1)
        a("s_waitcnt lgkmcnt(11)")
        mf(1, 0); reads(2); mf(1, 1); reads(3)
        self.p1_epi_common()
        (self.p1_prep_v if vmode else self.p1_prep_q)()
        a(f"s_waitcnt lgkmcnt({15 if vmode else 14})")
        mf(2, 0)
        a(f"s_waitcnt lgkmcnt({10 if vmode else 9})")
        mf(3, 0); mf(2, 1); mf(3, 1)
        self.stamp(4)

    def p1_parts(self, vmode):
        a = self.a
        def reads(ks):
            if self.o.get("nolds"): return
            a(f"ds_read_b128 v[{self.XF+4*ks}:{self.XF+4*ks+3}], v{self.XA+ks}")
            for i in range(2):
                for rd in range(2):
                    d = self.WF + 8 * ks + 4 * i + 2 * rd
                    a(f"ds_read_b64_tr_b16 v[{d}:{d+1}], v{self.WA+4*i+ks} offset:{16384+rd*1024}")
        def xors(ks):
            for r in (self.XA + ks, self.WA + ks, self.WA + 4 + ks): a(f"v_xor_b32 v{r}, v{self.VXM}, v{r}")
            if ks == 3: a(f"v_xor_b32 v{self.VXM}, 0x10000, v{self.VXM}")
        def mf(ks, i):
            x = vr(self.XF + 4 * ks, 4); wv = vr(self.WF + 8 * ks + 4 * i, 4); acc = vr(self.ACC + 16 * i, 16)
            if self.o.get("nomfma"): pass
            elif vmode: a(f"v_mfma_f32_32x32x16_bf16 {acc}, {x}, {wv}, {acc}")
            else: a(f"v_mfma_f32_32x32x16_bf16 {acc}, {wv}, {x}, {acc}")
        return reads, xors, mf

    def p1_loop1(self, vmode, B):
        a = self.a
        L = a.newlabel("p1loop")
        pos = self.o.get("barB" if B else "barA", "1" if B else "0")
        reads, xors, mf = self.p1_parts(vmode)
        def bar():
            a("s_waitcnt vmcnt(4)")
            if not self.o.get("nobar"): a("s_barrier")
            if self.o.get("its") == "1": self.stamp_dyn(54, self.sCNT)
        soft = self.o.get("p1soft")
        def comp(ks):
            n = (ks + 2) % 4
            if soft: return comp_soft(ks)
            self.jit(2)
            if ks == 2 and pos == "0": bar()
            a("s_waitcnt lgkmcnt(5)")
            mf(ks, 0)
            if ks == 2 and pos == "1": bar()
            if ks == 2 and pos == "2":
                mf(ks, 1); bar(); reads(n)
            else:
                reads(n); mf(ks, 1)
            xors(n)
            self.p1_issue((n,))
        def comp_soft(ks):
            n = (ks + 2) % 4
            ar = int(soft) - 1
            extra = {0: 0, 1: (1 if ar == 0 else 0), 2: 0, 3: 0}[ks]
            a(f"s_waitcnt lgkmcnt({5 + extra})" if ks != 2 else "s_waitcnt lgkmcnt(0)" if self.o.get("p1g0") else "s_waitcnt lgkmcnt(6)")
            mf(ks, 0)
            if ks == ar:
                a(f"v_add_u32 v{self.PGV}, 1, v{self.PGV}")
                a(f"s_waitcnt vmcnt({2 + ks})")
                a(f"ds_write_b32 v{self.PGA}, v{self.PGV}")
            if ks == 2:
                Lw, Lb = a.newlabel("late"), a.newlabel("go")
                a("s_waitcnt lgkmcnt(0)")
                a(f"v_cmp_lt_u32 vcc, v{self.PGD}, v{self.PGV}")
                a(f"s_cbranch_vccnz {Lw}")
                a.label(Lb)
                self._late1.append((Lw, Lb))
            reads(n); mf(ks, 1)
            if ks == 1: a(f"ds_read_b32 v{self.PGD}, v{self.PGR}")
            xors(n)
            self.p1_issue((n,))
        a("s_waitcnt vmcnt(6) lgkmcnt(0)")
        a("s_barrier")
        self.stamp(3)
        reads(0); reads(1); xors(0); xors(1)
        a("v_mov_b32 v6, 0x3f803f80")
        a("v_mov_b32 v2, 0")
        a("v_mov_b32 v3, 0")
        a("s_waitcnt lgkmcnt(5)")
        for k in range(4):
            for i in range(2): a(f"v_dot2_f32_bf16 v{2+i}, v{self.WF+4*i+k}, v6, v{2+i}")
        a("s_nop 2")
        a("v_permlane32_swap_b32 v2, v3")
        a("s_nop 0")
        a("v_add_f32 v2, v2, v3")
        a(f"ds_write_b32 v{self.CSW}, v2")
        a.align(int(self.o.get("al1", 3)))
        a.label(L)
        comp(0); comp(1); comp(2)
        Lr = a.newlabel("back"); Ls = a.newlabel("side")
        a(f"s_add_u32 s{self.sCNT}, s{self.sCNT}, 1")
        a(f"s_cmp_lt_u32 s{self.sCNT}, s{self.sSIDE}")
        a(f"s_cbranch_scc1 {Ls}")
        a.label(Lr)
        comp(3)
        a(f"s_cmp_lt_u32 s{self.sCNT}, {int(self.o.get('p1n', 10)) - 4}")
        a(f"s_cbranch_scc1 {L}")
        self._sides.append((Ls, Lr))

    def p1_sides(self):
        a = self.a
        for Lw, Lb in self._late1:
            a.label(Lw)
            a(f"s_mov_b32 s{S_SPIN}, 0")
            L = a.newlabel("lsp")
            a.label(L)
            a(f"ds_read_b32 v{self.PGD}, v{self.PGR}")
            a(f"s_add_u32 s{S_SPIN}, s{S_SPIN}, 1")
            a(f"s_cmp_ge_u32 s{S_SPIN}, {SPIN_MAX * 16}")
            a(f"s_cbranch_scc1 {Lb}")
            a("s_waitcnt lgkmcnt(0)")
            a(f"v_cmp_lt_u32 vcc, v{self.PGD}, v{self.PGV}")
            a(f"s_cbranch_vccnz {L}")
            a(f"s_branch {Lb}")
        self._late1 = []
        for Ls, Lr in self._sides:
            a.label(Ls)
            L1 = a.newlabel("s1")
            a(f"s_cmp_lg_u32 s{self.sCNT}, 0")
            a(f"s_cbranch_scc1 {L1}")
            a("v_mov_b32 v1, 0")
            a(f"buffer_load_dwordx2 v[{self.VN}:{self.VN+1}], v1, s[{SRD_DBG}:{SRD_DBG+3}], 0 offen sc1")
            a(f"s_branch {Lr}")
            a.label(L1)
            a("s_waitcnt vmcnt(4)")
            self.nonce_get("nonce2")
            a(f"v_mov_b32 v1, {self.P1_MISC + 2048}")
            a(f"ds_write_b64 v1, v[{self.VN}:{self.VN+1}]")
            for k in range(4): a(f"ds_read_b32 v{2+k}, v95 offset:{512*k}")
            a(f"s_lshl_b32 s{T0}, s{self.sKC0}, 10")
            a("s_waitcnt lgkmcnt(0)")
            a("v_add_f32 v2, v2, v3")
            a("v_add_f32 v4, v4, v5")
            a(f"v_mov_b32 v3, s{S_NONCE}")
            a("v_add_f32 v2, v2, v4")
            a(f"buffer_store_dwordx2 v[2:3], v{self.CQA}, s[{SRD_WS}:{SRD_WS+3}], s{T0} offen sc1")
            a(f"s_branch {Lr}")

    def p1_gather(self):
        a = self.a
        a(f"buffer_load_dwordx4 v[{self.RS}:{self.RS+3}], v{self.RSA}, s[{SRD_WS}:{SRD_WS+3}], 0 offen sc1")
        a(f"s_movk_i32 s{T0}, 0x1000")
        a(f"s_movk_i32 s{T1}, 0x2000")
        for k in range(10):
            so = ("0", f"s{T0}", f"s{T1}")[k // 4]
            a(f"buffer_load_dwordx2 v[{self.CQ+2*k}:{self.CQ+2*k+1}], v{self.CQA}, s[{SRD_WS}:{SRD_WS+3}], {so} offen offset:{1024*(k%4)} sc1")

    def p1_epi_reads(self):
        a = self.a
        a(f"s_lshl_b32 s{T0}, s{self.sNH}, 9")
        a(f"s_add_u32 s{T0}, s{T0}, {self.CQ_SCR}")
        a(f"v_lshl_add_u32 v1, v0, 3, s{T0}")
        for k in range(10): a(f"ds_read_b64 v[{self.CQ+2*k}:{self.CQ+2*k+1}], v1 offset:{1024*k}")
        a(f"v_mov_b32 v1, {self.P1_MISC + 2048}")
        a(f"ds_read_b64 v[{self.VN}:{self.VN+1}], v1")
        a(f"s_lshl_b32 s{T2}, s{S_W}, 9")
        a(f"s_add_u32 s{T2}, s{T2}, {self.P1_MISC+4096}")
        a(f"v_lshl_add_u32 v6, v0, 2, s{T2}")
        a("v_and_b32 v5, 31, v0")
        a(f"s_mov_b32 s{S_SPIN}, 0")

    def p1_epi_common(self):
        a = self.a
        L = a.newlabel("rs"); Ld = a.newlabel("rsd")
        a("s_waitcnt lgkmcnt(10)")
        a(f"v_readfirstlane_b32 s{S_NONCE}, v{self.VN}")
        a(f"v_readfirstlane_b32 s{S_NONCE+1}, v{self.VN+1}")
        a("s_nop 0")
        a.label(L)
        a(f"v_xor_b32 v2, s{S_NONCE}, v{self.RS+1}")
        a(f"v_xor_b32 v3, s{S_NONCE}, v{self.RS+3}")
        for k in range(0, 10, 2):
            a(f"v_xor_b32 v4, s{S_NONCE}, v{self.CQ+2*k+1}")
            a(f"v_xor_b32 v7, s{S_NONCE}, v{self.CQ+2*k+3}")
            a("v_or3_b32 v2, v2, v4, v7")
        a("v_or_b32 v2, v2, v3")
        a("v_cmp_ne_u32 vcc, 0, v2")
        a(f"s_add_u32 s{S_SPIN}, s{S_SPIN}, 1")
        a("s_or_b64 vcc, vcc, vcc")
        a(f"s_cbranch_scc0 {Ld}")
        a(f"s_cmp_ge_u32 s{S_SPIN}, {SPIN_MAX}")
        a(f"s_cbranch_scc1 {Ld}")
        self.diag("gather")
        self.p1_gather()
        a("s_waitcnt vmcnt(0)")
        a(f"s_branch {L}")
        a.label(Ld)
        Q = self.CQ
        a(f"v_add_f32 v12, v{Q}, v{Q+2}")
        a(f"v_add_f32 v13, v{Q+4}, v{Q+6}")
        a(f"v_add_f32 v14, v{Q+8}, v{Q+10}")
        a(f"v_add_f32 v15, v{Q+12}, v{Q+14}")
        a(f"v_add_f32 v2, v{Q+16}, v{Q+18}")
        a("v_add_f32 v12, v12, v13")
        a("v_add_f32 v14, v14, v15")
        a("v_add_f32 v12, v12, v2")
        a("v_add_f32 v12, v12, v14")

    def rowstats(self):
        a = self.a
        X = 100
        a("v_lshrrev_b32 v1, 3, v0")
        a(f"s_lshl_b32 s{T0}, s{S_W}, 4")
        a(f"s_lshl_b32 s{T1}, s{self.sRB}, 7")
        a(f"s_add_u32 s{T0}, s{T0}, s{T1}")
        a(f"v_add_u32 v1, s{T0}, v1")
        a("v_mul_u32_u24 v2, 1280, v1")
        a("v_and_b32 v3, 7, v0")
        a("v_lshl_add_u32 v2, v3, 4, v2")
        a(f"s_mov_b32 s{T0}, 10240")
        for k in range(10):
            for hh in range(2):
                r = X + 8 * k + 4 * hh
                a(f"buffer_load_dwordx4 v[{r}:{r+3}], v2, s[{SRD_X}:{SRD_X+3}], {'s%d' % T0 if hh else '0'} offen offset:{128*k}")
        for r in range(4, 8): a(f"v_mov_b32 v{r}, 0")
        a("v_mov_b32 v8, 0x3f803f80")
        for k in range(10):
            a(f"s_waitcnt vmcnt({18-2*k if k < 9 else 1})")
            if k == 8:
                a("v_mov_b32 v3, 0")
                a(f"buffer_load_dwordx2 v[{self.VN}:{self.VN+1}], v3, s[{SRD_DBG}:{SRD_DBG+3}], 0 offen sc1")
            for e in range(4):
                for hh in range(2):
                    r = X + 8 * k + 4 * hh + e
                    a(f"v_dot2_f32_bf16 v{4+hh}, v{r}, v8, v{4+hh}")
                    a(f"v_dot2_f32_bf16 v{6+hh}, v{r}, v{r}, v{6+hh}")
        a("s_nop 2")
        for ctl in ("quad_perm:[1,0,3,2]", "quad_perm:[2,3,0,1]", "row_half_mirror"):
            for r in range(4, 8): a(f"v_add_f32_dpp v{r}, v{r}, v{r} {ctl} row_mask:0xf bank_mask:0xf")
        a("s_waitcnt vmcnt(0)")
        self.nonce_get()
        a("v_and_b32 v3, 1, v0")
        a("v_cmp_ne_u32 vcc, 0, v3")
        a("v_lshlrev_b32 v3, 3, v3")
        a("v_add_u32 v1, v1, v3")
        a("v_cndmask_b32 v4, v4, v5, vcc")
        a("v_cndmask_b32 v6, v6, v7, vcc")
        a(f"v_mul_f32 v4, 0x%08x, v4" % f2u(1.0 / 640))
        a("v_mul_f32 v5, v4, v4")
        a(f"v_mov_b32 v7, 0x%08x" % f2u(1.0 / 640))
        a("v_fma_f32 v5, v6, v7, -v5")
        a("v_max_f32 v5, 0, v5")
        a(f"v_add_f32 v5, 0x%08x, v5" % f2u(1e-5))
        a("v_rsq_f32 v8, v5")
        a(f"v_mov_b32 v9, s{S_NONCE}")
        a(f"v_mov_b32 v11, s{S_NONCE}")
        a("v_mul_f32 v10, v4, v8")
        a("v_lshlrev_b32 v1, 4, v1")
        a(f"s_mov_b32 s{T0}, {WS_RS}")
        a("s_mov_b32 exec_lo, 0x03030303")
        a("s_mov_b32 exec_hi, 0x03030303")
        a(f"buffer_store_dwordx4 v[8:11], v1, s[{SRD_WS}:{SRD_WS+3}], s{T0} offen sc1")
        a("s_mov_b64 exec, -1")

    def p1_prep_q(self):
        a = self.a
        qs = math.log2(math.e) / math.sqrt(20.0)
        a("ds_write_b32 v6, v12")
        a("v_lshrrev_b32 v1, 5, v0")
        a(f"v_lshl_add_u32 v1, v1, 4, s{T2}")
        C = 48
        for i in range(2):
            for q4 in range(4):
                a(f"ds_read_b128 v[{C+16*i+4*q4}:{C+16*i+4*q4+3}], v1 offset:{i*128+q4*32}")
        a(f"s_cmp_lt_u32 s{self.sCT}, 5")
        a(f"s_cselect_b32 s{T1}, 0x%08x, 1.0" % f2u(qs))
        a(f"v_mul_f32 v2, s{T1}, v{self.RS}")
        a(f"v_mul_f32 v3, s{T1}, v{self.RS+2}")

    def p1_epi_q(self):
        a = self.a
        C = 48
        a("s_nop 8")
        for i in range(2):
            for qq in range(2):
                a(f"s_waitcnt lgkmcnt({6-4*i-2*qq})")
                b = 16 * i + 8 * qq
                for r in range(8): a(f"v_mul_f32 v{self.ACC+b+r}, v2, v{self.ACC+b+r}")
                for r in range(8): a(f"v_fma_f32 v{self.ACC+b+r}, -v3, v{C+b+r}, v{self.ACC+b+r}")
                o = 4 + 4 * ((2 * i + qq) % 2)
                for r in range(4): a(f"v_cvt_pk_bf16_f32 v{o+r}, v{self.ACC+b+2*r}, v{self.ACC+b+2*r+1}")
                a(f"buffer_store_dwordx4 v[{o}:{o+3}], v{self.STA+2*i+qq}, s[{SRD_WS}:{SRD_WS+3}], 0 offen sc1")

    def p1_prep_v(self):
        a = self.a
        a("v_mov_b32 v13, v12")
        a(f"v_lshl_add_u32 v6, v5, 2, s{T2}")
        a("v_lshrrev_b32 v1, 5, v0")
        a("v_permlane32_swap_b32 v12, v13")
        a(f"ds_write_b32 v6, v{self.RS}")
        a(f"ds_write_b32 v6, v{self.RS+2} offset:128")
        a(f"v_lshl_add_u32 v6, v1, 4, s{T2}")
        C = 48
        for q4 in range(4):
            a(f"ds_read_b128 v[{C+4*q4}:{C+4*q4+3}], v6 offset:{q4*32}")
            a(f"ds_read_b128 v[{C+16+4*q4}:{C+16+4*q4+3}], v6 offset:{128+q4*32}")

    def p1_epi_v(self):
        a = self.a
        C = 48
        a("s_nop 8")
        for grp in range(2):
            a(f"s_waitcnt lgkmcnt({4-4*grp})")
            for i in range(2):
                b = 16 * i + 8 * grp
                for r in range(8): a(f"v_mul_f32 v{self.ACC+b+r}, v{C+8*grp+r}, v{self.ACC+b+r}")
                for r in range(8): a(f"v_fma_f32 v{self.ACC+b+r}, -v{C+16+8*grp+r}, v{12+i}, v{self.ACC+b+r}")
                o = 4 + 4 * i
                for r in range(4): a(f"v_cvt_pk_bf16_f32 v{o+r}, v{self.ACC+b+2*r}, v{self.ACC+b+2*r+1}")
                a(f"buffer_store_dwordx4 v[{o}:{o+3}], v{self.STA+i}, s[{SRD_WS}:{SRD_WS+3}], 0 offen offset:{640*grp} sc1")

    def nonce_get(self, where="nonce"):
        a = self.a
        a(f"s_mov_b32 s{S_SPIN}, 0")
        Lc = a.newlabel("nchk"); Lo = a.newlabel("nok")
        a.label(Lc)
        a(f"v_readfirstlane_b32 s{S_NONCE}, v{self.VN}")
        a(f"v_readfirstlane_b32 s{S_NONCE+1}, v{self.VN+1}")
        a(f"s_add_u32 s{S_SPIN}, s{S_SPIN}, 1")
        a(f"s_or_b32 s{T0}, s{S_NONCE}, s{S_NONCE+1}")
        a(f"s_cbranch_scc1 {Lo}")
        a(f"s_cmp_ge_u32 s{S_SPIN}, {SPIN_MAX}")
        a(f"s_cbranch_scc1 {Lo}")
        self.diag(where)
        a("v_mov_b32 v94, 0")
        a(f"buffer_load_dwordx2 v[{self.VN}:{self.VN+1}], v94, s[{SRD_DBG}:{SRD_DBG+3}], 0 offen sc1")
        a("s_waitcnt vmcnt(0)")
        a(f"s_branch {Lc}")
        a.label(Lo)

    def phase1(self):
        a = self.a
        self.p1_setup_a()
        a(f"s_cmp_eq_u32 s{self.sCT}, 15")
        a("s_cbranch_scc0 L_p1_go")
        self.rowstats()
        a("s_branch L_p1_done")
        a.label("L_nonce_pub")
        a("v_mov_b32 v3, 0")
        a(f"v_mov_b32 v4, s{S_NONCE}")
        a(f"v_mov_b32 v5, s{S_NONCE+1}")
        a("s_mov_b64 exec, 1")
        a(f"buffer_store_dwordx2 v[4:5], v3, s[{SRD_DBG}:{SRD_DBG+3}], 0 offen sc1")
        a("s_mov_b64 exec, -1")
        a("s_branch L_nonce_done")
        a.label("L_p1_go")
        self.p1_setup_b()
        self.p1_issue((1, 2, 3) if self.o.get("first5", "1") == "1" else (0, 1, 2, 3))
        self.p1_issue((0, 1))
        self.stamp(2)
        a(f"s_cmp_ge_u32 s{self.sCT}, 10")
        a("s_cbranch_scc1 L_p1_v")
        self.p1_loop(False)
        self.p1_epi_q()
        a("s_branch L_p1_done")
        self.p1_sides(); self._sides = []
        a.label("L_p1_v")
        self.p1_loop(True)
        self.p1_epi_v()
        a("s_branch L_p1_done")
        self.p1_sides()
        a.label("L_p1_done")
        self.stamp(5)
        a(f"s_lshl_b32 s{T0}, s{self.sCT}, 4")
        a(f"s_add_u32 s{T0}, s{T0}, s{self.sRB}")
        a(f"s_mul_i32 s{T0}, s{T0}, {FSP}")
        a(f"s_add_u32 s{T0}, s{T0}, {FL_1}")
        self.flag_prep(12)
        a("s_waitcnt vmcnt(0)")
        self.stamp(6)
        a("s_barrier")
        self.flag_store(T0, 12, prepped=True)
        self.stamp(7)
        a(f"s_cmp_eq_u32 s{S_W}, 0")
        a("s_cbranch_scc1 L_no_rls")
        self.relayout_setup()
        a.label("L_no_rls")
        if self.stop < 2:
            self.relayout_issue()
            a("s_waitcnt vmcnt(0)")
            self.relayout_finish()

    def build(self):
        a = self.a
        self.entry()
        self.phase1()
        if self.stop >= 2:
            from phases import phase2, phase3, phase4, phase5
            phase2(self)
            if self.stop >= 3: phase3(self)
            if self.stop >= 4: phase4(self)
            if self.stop >= 5: phase5(self)
        a("s_waitcnt vmcnt(0)")
        if self.o.get("fixend"):
            if self.o.get("diag"):
                a("s_cmp_eq_u32 s35, 0")
                a("s_cbranch_scc1 L_end")
            a.label("L_fixend")
            a("s_memrealtime s[100:101]")
            a("s_waitcnt lgkmcnt(0)")
            a(f"s_sub_u32 s100, s100, s{31 if self.o.get('fixown') else S_NONCE}")
            a(f"s_cmp_lt_u32 s100, {int(self.o['fixend'])*100}")
            a("s_cbranch_scc1 L_fixend")
        self.stamp(31)
        self.stamp_flush()
        a.label("L_end")
        a("s_endpgm")
        for f in self._tail: f()
        a.lines.append(f".fill {self.pad}, 4, 0xbf810000")
        body = a.text()
        errs = check(body)
        if errs:
            sys.stderr.write("\n".join(errs[:40]) + "\n%d hazards\n" % len(errs))
            raise SystemExit(1)
        head = f"""; Fused preLN -> MHA -> residual -> preLN -> SiLU FFN -> residual in one persistent launch
;      checks its sums and outputs; if the shift was unsafe (sum > 2^40, inf or NaN) the wave redoes its rows
; @launch grid=(256,1,1) block=(512,1,1) lds={LDS_BYTES}
.amdgcn_target "amdgcn-amd-amdhsa--gfx950"
.text
.globl {NAME}_kernel
.p2align 8
.type {NAME}_kernel,@function
{NAME}_kernel:
"""
        tail = f""".section .rodata,"a"
.p2align 6
.amdhsa_kernel {NAME}_kernel
  .amdhsa_next_free_vgpr 256
  .amdhsa_next_free_sgpr 102
  .amdhsa_accum_offset 256
  .amdhsa_group_segment_fixed_size 0
  .amdhsa_kernarg_size 72
  .amdhsa_user_sgpr_count 2
  .amdhsa_user_sgpr_kernarg_segment_ptr 1
  .amdhsa_system_sgpr_workgroup_id_x 1
.end_amdhsa_kernel
"""
        return head + body + tail

if __name__ == "__main__":
    stop = int(sys.argv[2]) if len(sys.argv) > 2 else 99
    opts = dict(kv.split("=") for kv in sys.argv[3:])
    import subprocess
    def asm_size(path):
        r = subprocess.run(["clang", "-x", "assembler", "-target", "amdgcn-amd-amdhsa", "-mcpu=gfx950", "-c", path, "-o", "_chk.o"], capture_output=True, text=True)
        if r.returncode: print(r.stderr[:1500]); raise SystemExit(1)
        r = subprocess.run(["llvm-readelf", "-S", "_chk.o"], capture_output=True, text=True)
        return int([l for l in r.stdout.split("\n") if ".text" in l][0].split()[6], 16)
    open(sys.argv[1], "w").write(K(stop, opts).build())
    n = asm_size(sys.argv[1])
    k = K(stop, opts)
    k.CPF_LINES = (n + 4095) // 4096
    k.pad = (k.CPF_LINES * 4096 - n) // 4 + 16
    open(sys.argv[1], "w").write(k.build())
    print(sys.argv[1], "code bytes:", n, "with pad:", asm_size(sys.argv[1]))
```

```python
import math
from asmlib import vr, sr, f2u
from tables import *
from gen import *

Qm, Qr, NEG, S0, S1, P, O, Km, Kr, V = 4, 8, 12, 28, 60, 92, 108, 124, 132, 136
AK, AKR, AV, DKM, DLIN = 152, 153, 154, 197, 196
XR = 198
PL = 184
SLOT = 22528
WO_LDS = 3 * SLOT
sH, sQB, sST, sK0, sK1, sK2, sS1, sDS, sKD, sVM, sRET, sWOo, sWOl = 64, 65, 66, 67, 68, 69, 70, 71, 72, 74, 76, 78, 79
sW10, sL1, sD1, sL2, sSD, sD2 = 73, 82, 83, 93, 94, 78
sTA, sW1, sSM = 95, 96, 98
WS = f"s[{SRD_WS}:{SRD_WS+3}]"
M32 = "v_mfma_f32_32x32x16_bf16"
M2B = "v_mfma_f32_32x32x4_2b_bf16"
M16 = "v_mfma_f32_16x16x32_bf16"

def kv_piece(k, i):
    a = k.a
    a(f"s_add_u32 m0, s{(sW10, sL1, sL2)[i]}, s{sDS}")
    a(f"s_add_u32 s{sK0+i}, s{sK0+i}, {('4096', f's{sS1}', '10240')[i]}")
    k.dma((DKM, DLIN, DLIN)[i], SRD_WS, f"s{sK0+i}", "sc1")

def wo_piece(k):
    a = k.a
    a(f"s_min_u32 m0, s{sWOl}, {WO_LDS + 90*1024}")
    a(f"s_add_u32 s{sWOl}, s{sWOl}, 8192")
    k.dma(DLIN, SRD_WQ, "m0", "sc1")

def touch_piece(k):
    a = k.a
    a(f"buffer_load_dwordx4 v[160:163], v{DLIN}, {WS}, s{sTA} offen sc1")
    a(f"s_add_u32 s{sTA}, s{sTA}, 1024")

def SG(i): return 172 + 4 * i if i < 6 else 204 + 4 * (i - 6)

def stage_load(k, vq, tag, i, s_src, off, valid=8):
    a = k.a
    a(f"s_add_u32 s{T0}, s{s_src}, {off}")
    if valid < 8:
        a(f"s_cmp_ge_u32 s{S_W}, {valid}")
        a(f"s_cselect_b32 s{T0}, 0x7f000000, s{T0}")
    a(f"buffer_load_dwordx4 {vr(SG(i),4)}, v{DLIN}, {WS}, s{T0} offen sc1")
    if vq is not None: vq.add(tag)

def qkm(a, t, d, c): a(f"{M32} {vr(d+16*t,16)}, {vr(Km+4*t,4)}, {vr(Qm,4)}, {c}")
def qkr(a, d): a(f"{M2B} {vr(d,32)}, {vr(Kr,2)}, {vr(Qr,2)}, {vr(d,32)}")
def pv(a, j): a(f"{M32} {vr(O,16)}, {vr(V+4*j,4)}, {vr(P+4*j,4)}, {vr(O,16)}")

OA = 165
PGA, PGV, PGR, PGD = 155, 156, 159, 164
PG_LDS = 157 * 1024
SCHED = {
 "a": "q0 e4 m p3 v e4 m q1 k0 c4 m e4 k1 m p0 e4 c2 m qr c2 kr e4 m e4 c2 m p1 c2 e2 m e3 m p2 e3 m c4",
 "b": "q0 e5 m p3 v e3 c2 m q1 k0 c2 e3 m k1 e2 m p0 e3 c2 m qr kr c2 e4 m e4 c2 m p1 c2 e3 m e2 m p2 e3 m c4",
 "c": "p3 v e4 m q0 e4 m c2 q1 k0 c2 m e4 k1 m p0 e4 c2 m qr c2 kr e4 m e4 c2 m p1 c2 e2 m e3 m p2 e3 m c4",
 "d": "q0 e4 m q1 k0 e4 m p3 v c4 k1 m e5 m qr kr e3 c2 m e4 c2 m p0 e4 m c2 p1 c2 e2 m e3 m p2 e3 m c4",
 "e": "q0 e6 m p3 v e2 c3 m q1 k0 c1 e4 m k1 m p0 e4 c2 m qr c2 kr e4 m e4 c2 m p1 c2 e3 m e3 m p2 e2 m c4",
 "f": "q0 e4 m p3 v e4 m q1 k0 c4 m e4 k1 m p0 e4 c4 m qr kr e4 m e4 m p1 c4 e2 m e2 m p2 e4 m c4",
}
def att_stage(k, young):
    a = k.a
    o = k.o
    soft = o.get("soft", "1") == "1"
    tag = "Y" if young else "O"
    barit, barpos = [int(x) for x in o.get("abar" + tag, "0.6" if young else "1.2").split(".")]
    pA = int(o.get("pA" + tag, o.get("pA", 4))); pC = int(o.get("pC" + tag, o.get("pC", 20)))
    plos = [int(c, 16) for c in (o.get("plo", "7") * 4)[:4]]; ntouch = int(o.get("ntouch", 2))
    lq = LQ(a)
    def exps(b, n0, n):
        for i in range(n0, n0 + n): a(f"v_exp_f32 v{b+i}, v{b+i}")
    def cvts(b, n0, n):
        for i in range(n0, n0 + n): a(f"v_cvt_pk_bf16_f32 v{P+i}, v{b+2*i}, v{b+2*i+1}")
    def rdV(js, it):
        a(f"s_mov_b64 exec, s[{sVM}:{sVM+1}]")
        for j in js:
            a(f"ds_read_b128 {vr(V+4*j,4)}, v{AV} offset:{12288+(4*it+j)*640}"); lq.add(("V", j))
        a("s_mov_b64 exec, -1")
    for it in range(4):
        cur, nx = (S0, S1) if it % 2 == 0 else (S1, S0)
        i2 = (it + 2) % 4
        npos = [0]
        def mark():
            p = it * 11 + npos[0]
            if p % 4 == 1: k.jit(3)
            if soft:
                if p == pA:
                    a(f"v_add_u32 v{PGV}, 1, v{PGV}")
                    a(f"s_waitcnt vmcnt({3 + ntouch})")
                    a(f"ds_write_b32 v{PGA}, v{PGV}"); lq.add("a")
                if p == pC - int(o.get("pR", 2)):
                    a(f"ds_read_b32 v{PGD}, v{PGR}"); lq.add("g")
                if p == pC:
                    lq.wait("g")
                    Lw, Lb = a.newlabel("late"), a.newlabel("go")
                    a(f"v_cmp_lt_u32 vcc, v{PGD}, v{PGV}")
                    a(f"s_cbranch_vccnz {Lw}")
                    a.label(Lb)
                    k._late.append((Lw, Lb))
                    if o.get("its") == "2": k.stamp_dyn(54, sST)
                g = p - pC; d0 = 1; dd = int(o.get("dd", 2))
            else:
                g = p - (barit * 11 + barpos)
                if g == 0:
                    a("s_waitcnt vmcnt(0)")
                    a("s_barrier")
                    if o.get("its") == "2": k.stamp_dyn(54, sST)
                d0 = int(o.get("d" + tag, 5 if young else 1)); dd = int(o.get("dd", 3))
            if g == d0 - 1:
                a(f"s_call_b64 s[{sRET}:{sRET+1}], L_att_side")
            if g in [d0 + (5 + 2 * i) * dd for i in range(ntouch)]: touch_piece(k); k._n += 1
            for i in range(3):
                if g == d0 + (1 + i) * dd: kv_piece(k, i); k._n += 1
            for i in range(3):
                if g == d0 + (4 + 2 * i) * dd: wo_piece(k); k._n += 1
            if young and npos[0] == 0: a("s_setprio 1")
            if young and npos[0] == plos[it]:
                if it >= int(o.get("lastprio", 9)):
                    Ls = a.newlabel("kp")
                    a(f"s_cmp_eq_u32 s{sST}, 7")
                    a(f"s_cbranch_scc1 {Ls}")
                    a("s_setprio 0")
                    a.label(Ls)
                else: a("s_setprio 0")
            npos[0] += 1
        if it == 2:
            a(f"v_add_u32 v{AK}, s{sKD}, v{AK}")
            a(f"v_add_u32 v{AKR}, s{sKD}, v{AKR}")
        ne = [0]; nc = [0]
        def E(n): exps(cur, ne[0], n); ne[0] += n
        def C(n): cvts(cur, nc[0], n); nc[0] += n
        def rk(t): a(f"ds_read_b128 {vr(Km+4*t,4)}, v{AK} offset:{2048*i2+1024*t}"); lq.add("K")
        def rkr(): a(f"ds_read_b64 {vr(Kr,2)}, v{AKR} offset:{8192+1024*i2}"); lq.add("K")
        def PV(j):
            if j < 3: lq.wait(("V", max(j, int(o.get("vw", 3)))))
            pv(a, j)
        ops = dict(q0=lambda: qkm(a, 0, nx, vr(NEG, 16)), q1=lambda: qkm(a, 1, nx, vr(NEG, 16)), qr=lambda: qkr(a, nx),
                   p0=lambda: PV(0), p1=lambda: PV(1), p2=lambda: PV(2), p3=lambda: PV(3), v=lambda: rdV([0, 1, 2, 3], it),
                   k0=lambda: rk(0), k1=lambda: rk(1), kr=rkr, m=mark)
        sched = SCHED[o.get("sched", "a")].split()
        mark()
        a("s_waitcnt lgkmcnt(0)"); lq.q = []
        for x in sched:
            if x[0] == "e": E(int(x[1:]))
            elif x[0] == "c": C(int(x[1:]))
            else: ops[x]()
        assert ne[0] == 32 and nc[0] == 16 and npos[0] == 11
        if it == 3:
            a(f"v_add_u32 v{AV}, s{sKD}, v{AV}")
            a(f"s_add_u32 s{sST}, s{sST}, 1")
            a(f"s_add_u32 s{sDS}, s{sDS}, s{sD2}")
            a(f"s_mov_b32 s{T0}, s{sKD}")
            a(f"s_mov_b32 s{sKD}, s{sD1}")
            a(f"s_mov_b32 s{sD1}, s{sD2}")
            a(f"s_mov_b32 s{sD2}, s{T0}")

def att_late(k):
    a = k.a
    for Lw, Lb in k._late:
        a.label(Lw)
        a(f"s_mov_b32 s{S_SPIN}, 0")
        L = a.newlabel("lsp")
        a.label(L)
        a(f"ds_read_b32 v{PGD}, v{PGR}")
        a(f"s_add_u32 s{S_SPIN}, s{S_SPIN}, 1")
        a(f"s_cmp_ge_u32 s{S_SPIN}, {SPIN_MAX * 16}")
        a(f"s_cbranch_scc1 {Lb}")
        a("s_waitcnt lgkmcnt(0)")
        a(f"v_cmp_lt_u32 vcc, v{PGD}, v{PGV}")
        a(f"s_cbranch_vccnz {L}")
        a(f"s_branch {Lb}")

def att_side(k):
    a = k.a
    a.label("L_att_side")
    a(f"s_bitcmp1_b32 s{sST}, 2")
    a("s_cbranch_scc1 L_as_hi")
    a(f"s_cmp_lt_u32 s{sST}, 1")
    a("s_cbranch_scc1 L_as_0")
    a(f"s_cmp_lt_u32 s{sST}, 2")
    a("s_cbranch_scc1 L_as_1")
    a(f"s_cmp_lt_u32 s{sST}, 3")
    a("s_cbranch_scc1 L_as_2")
    a(f"s_mov_b32 s{T0}, {FL_R}")
    a(f"buffer_load_dwordx4 v[{PL}:{PL+3}], v{DLIN}, {WS}, s{T0} offen sc1")
    a(f"buffer_load_dwordx4 v[{PL+4}:{PL+7}], v{DLIN}, {WS}, s{T0} offen offset:1024 sc1")
    a(f"s_setpc_b64 s[{sRET}:{sRET+1}]")
    a.label("L_as_2")
    a(f"s_lshl_b32 s{T0}, s{S_G}, 3")
    a(f"s_add_u32 s{T0}, s{T0}, {FL_R}")
    k.flag_store(T0, PL)
    a(f"s_setpc_b64 s[{sRET}:{sRET+1}]")
    a.label("L_as_0")
    k.relayout_issue()
    a(f"s_setpc_b64 s[{sRET}:{sRET+1}]")
    a.label("L_as_1")
    k.relayout_finish()
    a("s_nop 1")
    a(f"s_setpc_b64 s[{sRET}:{sRET+1}]")
    a.label("L_as_hi")
    a(f"s_cmp_eq_u32 s{sST}, 7")
    a("s_cbranch_scc1 L_as_7")
    a(f"s_cmp_eq_u32 s{sST}, 6")
    a("s_cbranch_scc1 L_as_6")
    a(f"s_cmp_eq_u32 s{sST}, 5")
    a("s_cbranch_scc1 L_as_5")
    N = f"s[{S_NONCE}:{S_NONCE+1}]"
    a(f"v_cmp_ne_u64 vcc, {N}, v[{PL}:{PL+1}]")
    a(f"v_cmp_ne_u64 s[{S_M1}:{S_M1+1}], {N}, v[{PL+2}:{PL+3}]")
    a(f"s_and_b32 s{T1}, s{S_J}, 7")
    a(f"s_or_b64 s[{T4}:{T5}], vcc, s[{S_M1}:{S_M1+1}]")
    a(f"v_cmp_ne_u64 vcc, {N}, v[{PL+4}:{PL+5}]")
    a(f"v_cmp_ne_u64 s[{S_M1}:{S_M1+1}], {N}, v[{PL+6}:{PL+7}]")
    a(f"s_add_u32 s{sWOl}, s{sW10}, {WO_LDS}")
    a(f"s_lshl_b32 s{T2}, s{S_J}, 3")
    a(f"s_add_u32 s{T2}, s{T2}, s{S_W}")
    a(f"s_mul_i32 s{sTA}, s{T2}, 8640")
    a(f"s_add_u32 s{sTA}, s{sTA}, {WS_W2}")
    a(f"s_and_b32 s{T2}, s{S_J}, 15")
    a(f"s_mul_i32 s{sW1}, s{T2}, {20*7168}")
    a(f"s_add_u32 s{sW1}, s{sW1}, s{sW10}")
    a(f"s_add_u32 s{sW1}, s{sW1}, {WS_W1}")
    a(f"s_or_b64 s[{T4}:{T5}], s[{T4}:{T5}], vcc")
    a(f"s_or_b64 s[{T4}:{T5}], s[{T4}:{T5}], s[{S_M1}:{S_M1+1}]")
    a("s_cbranch_scc0 L_as_ret")
    a(f"s_mov_b32 s{T3}, {FL_R}")
    k.diag("fr")
    k.poll(256, T3, 8, PL, only_wave0=False)
    a.label("L_as_ret")
    grp = ((0, 4), (4, 9), (9, 14), (14, 18))
    for st in range(4, 8):
        if st > 4: a.label(f"L_as_{st}")
        if st == 6:
            for r in (sK0, sK1, sK2): a(f"s_mov_b32 s{r}, 0x7f000000")
        for i in range(*grp[st - 4]): stage_load(k, None, None, i, sW1, 8192 * i, 4 if i == 17 else 8)
        a(f"s_setpc_b64 s[{sRET}:{sRET+1}]")

def resid_x(k):
    a = k.a
    a(f"s_lshr_b32 s{T0}, s{S_J}, 3")
    a(f"s_lshl_b32 s{T1}, s{S_C}, 2")
    a(f"s_add_u32 s{T0}, s{T0}, s{T1}")
    a(f"s_lshl_b32 s{T0}, s{T0}, 2")
    a(f"s_and_b32 s{T1}, s{S_W}, 3")
    a(f"s_add_u32 s{T0}, s{T0}, s{T1}")
    a(f"s_mul_i32 s{T0}, s{T0}, {16*1280}")
    a(f"s_and_b32 s{T1}, s{S_J}, 7")
    a(f"s_mul_i32 s{T1}, s{T1}, 160")
    a(f"s_add_u32 s{T0}, s{T0}, s{T1}")
    a(f"s_lshr_b32 s{T1}, s{S_W}, 2")
    a(f"s_lshl_b32 s{T1}, s{T1}, 6")
    a(f"s_add_u32 s{T1}, s{T1}, s{T0}")
    a(f"v_lshrrev_b32 v{TM}, 2, v0")
    a(f"v_mul_u32_u24 v{TM}, 1280, v{TM}")
    a(f"v_and_b32 v{TM+1}, 3, v0")
    a(f"v_lshl_add_u32 v{TM}, v{TM+1}, 3, v{TM}")
    a(f"buffer_load_dwordx2 v[{XR}:{XR+1}], v{TM}, s[{SRD_X}:{SRD_X+3}], s{T1} offen")
    a(f"buffer_load_dwordx2 v[{XR+2}:{XR+3}], v{TM}, s[{SRD_X}:{SRD_X+3}], s{T1} offen offset:32")
    a(f"buffer_load_dwordx2 v[{XR+4}:{XR+5}], v{TM}, s[{SRD_X}:{SRD_X+3}], s{T0} offen offset:128")

def rowmax(a, b, n, dst, t):
    a(f"v_max3_f32 v{dst}, v{b}, v{b+1}, v{dst}")
    for i in range(2, n, 2): a(f"v_max3_f32 v{dst}, v{b+i}, v{b+i+1}, v{dst}")

def set_neg(a, m, t):
    a(f"v_mov_b32 v{t}, v{m}")
    a("s_nop 1")
    a(f"v_permlane32_swap_b32 v{m}, v{t}")
    a("s_nop 0")
    a(f"v_max_f32 v{m}, v{m}, v{t}")
    for r in range(16): a(f"v_sub_f32 v{NEG+r}, 0, v{m}")

def att_fallback(k):
    a = k.a
    FT = S1
    a.label("L_att_fb")
    sI, sA, sB, sC = T0, T1, T2, T3
    def init():
        a(f"s_lshl_b32 s{sA}, s{sH}, 16")
        a(f"s_add_u32 s{sA}, s{sA}, {WS_K}")
        a(f"s_lshr_b32 s{sB}, s{sH}, 1")
        a(f"s_lshl_b32 s{sB}, s{sB}, 15")
        a(f"s_add_u32 s{sB}, s{sB}, {WS_K + 64*32768}")
        a(f"s_mul_i32 s{sC}, s{sH}, 81920")
        a(f"s_add_u32 s{sC}, s{sC}, {WS_V}")
        a(f"s_mov_b32 s{sI}, 0")
    def ldk():
        a(f"buffer_load_dwordx4 {vr(Km,4)}, v{DKM}, {WS}, s{sA} offen sc1")
        a(f"buffer_load_dwordx4 {vr(Km+4,4)}, v{DKM}, {WS}, s{sA} offen offset:512 sc1")
        a(f"buffer_load_dwordx2 {vr(Kr,2)}, v{FT+1}, {WS}, s{sB} offen sc1")
    def step():
        a(f"s_add_u32 s{sA}, s{sA}, 1024")
        a(f"s_add_u32 s{sB}, s{sB}, 1024")
        a(f"s_add_u32 s{sC}, s{sC}, 2560")
        a(f"s_add_u32 s{sI}, s{sI}, 1")
        a(f"s_cmp_lt_u32 s{sI}, 32")
    a(f"s_and_b32 s{T0}, s{sH}, 1")
    a(f"s_lshl_b32 s{T0}, s{T0}, 3")
    a(f"v_add_u32 v{FT+1}, s{T0}, v{DLIN}")
    a(f"v_lshrrev_b32 v{FT+2}, 5, v0")
    a(f"v_mul_u32_u24 v{FT+2}, 20, v{FT+2}")
    a(f"v_and_b32 v{FT+3}, 31, v0")
    a(f"v_add_lshl_u32 v{FT+2}, v{FT+2}, v{FT+3}, 4")
    a(f"v_mov_b32 v{FT}, 0xff800000")
    init()
    a.label("L_fb_max")
    ldk()
    a("s_waitcnt vmcnt(0)")
    qkm(a, 0, S0, "0"); qkm(a, 1, S0, "0")
    a("s_nop 9")
    qkr(a, S0)
    a("s_nop 15"); a("s_nop 3")
    rowmax(a, S0, 32, FT, FT + 4)
    step()
    a("s_cbranch_scc1 L_fb_max")
    set_neg(a, FT, FT + 4)
    for r in range(16): a(f"v_mov_b32 v{O+r}, 0")
    init()
    a.label("L_fb_acc")
    ldk()
    a(f"s_mov_b64 exec, s[{sVM}:{sVM+1}]")
    for j in range(4): a(f"buffer_load_dwordx4 {vr(V+4*j,4)}, v{FT+2}, {WS}, s{sC} offen offset:{640*j} sc1")
    a("s_mov_b64 exec, -1")
    a("s_waitcnt vmcnt(0)")
    qkm(a, 0, S0, vr(NEG, 16)); qkm(a, 1, S0, vr(NEG, 16))
    a("s_nop 9")
    qkr(a, S0)
    a("s_nop 15"); a("s_nop 3")
    for i in range(32): a(f"v_exp_f32 v{S0+i}, v{S0+i}")
    a("s_nop 0")
    for i in range(16): a(f"v_cvt_pk_bf16_f32 v{P+i}, v{S0+2*i}, v{S0+2*i+1}")
    a("s_nop 1")
    for j in range(4): pv(a, j)
    step()
    a("s_cbranch_scc1 L_fb_acc")
    a(f"s_mov_b32 s{T3}, 1")
    a("s_nop 11")
    a("s_branch L_att_norm")

def phase2(k):
    a = k.a
    a.c("================ phase 2: attention")
    a(f"s_lshl_b32 s{sH}, s{S_C}, 2")
    a(f"s_lshr_b32 s{T0}, s{S_J}, 3")
    a(f"s_add_u32 s{sH}, s{sH}, s{T0}")
    a(f"s_and_b32 s{sQB}, s{S_J}, 7")
    a(f"v_lshlrev_b32 v{DLIN}, 4, v0")
    a("v_lshrrev_b32 v1, 5, v0")
    a("v_and_b32 v2, 31, v0")
    a("v_lshlrev_b32 v3, 15, v1")
    a(f"v_lshl_add_u32 v{DKM}, v2, 4, v3")
    a(f"v_mov_b32 v{AK}, v{DLIN}")
    a(f"s_and_b32 s{T0}, s{sH}, 1")
    a(f"s_lshl_b32 s{T0}, s{T0}, 3")
    a(f"v_add_u32 v{AKR}, s{T0}, v{DLIN}")
    a("v_mul_u32_u24 v3, 20, v1")
    a(f"v_add_lshl_u32 v{AV}, v3, v2, 4")
    a(f"v_lshl_add_u32 v10, v2, 4, s{T0}")
    if k.o.get("dry", "0") == "1":
        a(f"s_cmp_lg_u32 s{S_W}, 7")
        a("s_cbranch_scc1 L_nodry")
        a(f"s_mov_b32 s{sW1}, 0x7f000000")
        for st in (3, 5, 6, 7):
            a(f"s_mov_b32 s{sST}, {st}")
            if st == 3: continue
            a(f"s_call_b64 s[{sRET}:{sRET+1}], L_att_side")
        a.label("L_nodry")
    a(f"s_lshl_b32 s{T0}, s{S_W}, 2")
    a(f"s_add_u32 s{T0}, s{T0}, {PG_LDS}")
    a(f"v_mov_b32 v{PGA}, s{T0}")
    a(f"v_mov_b32 v{PGV}, 0")
    a(f"v_and_b32 v{PGR}, 7, v0")
    a(f"v_lshlrev_b32 v{PGR}, 2, v{PGR}")
    a(f"v_add_u32 v{PGR}, {PG_LDS}, v{PGR}")
    a(f"ds_write_b32 v{PGA}, v{PGV}")
    k._late = []; k._n = 0
    a(f"s_mov_b32 s{sVM}, 0x000fffff")
    a(f"s_mov_b32 s{sVM+1}, 0x000fffff")
    a(f"s_lshl_b32 s{sK0}, s{sH}, 16")
    a(f"s_lshl_b32 s{T0}, s{S_W}, 9")
    a(f"s_add_u32 s{sK0}, s{sK0}, s{T0}")
    a(f"s_add_u32 s{sK0}, s{sK0}, {WS_K - 4096}")
    a(f"s_lshl_b32 s{T0}, s{S_W}, 10")
    a(f"s_mul_i32 s{sK2}, s{sH}, 81920")
    a(f"s_add_u32 s{sK2}, s{sK2}, s{T0}")
    a(f"s_add_u32 s{T1}, s{sK2}, {WS_V - 4096 - 10240}")
    a(f"s_cmp_ge_u32 s{S_W}, 6")
    a(f"s_cselect_b32 s{T2}, 2048, 0")
    a(f"s_sub_u32 s{sK2}, s{sK2}, s{T2}")
    a(f"s_add_u32 s{sK2}, s{sK2}, {WS_V + 4096 - 10240}")
    a(f"s_sub_u32 s{sL2}, s{T0}, s{T2}")
    a(f"s_add_u32 s{sL2}, s{sL2}, 16384")
    a(f"s_add_u32 s{sL1}, s{T0}, 8192")
    a(f"s_lshr_b32 s{T2}, s{sH}, 1")
    a(f"s_lshl_b32 s{T2}, s{T2}, 15")
    a(f"s_add_u32 s{sK1}, s{T2}, s{T0}")
    a(f"s_add_u32 s{sK1}, s{sK1}, {WS_K + 64*32768 - 4096}")
    a(f"s_mov_b32 s{sS1}, 10240")
    a(f"s_cmp_lt_u32 s{S_W}, 4")
    a(f"s_cselect_b32 s{sK1}, s{sK1}, s{T1}")
    a(f"s_cselect_b32 s{sS1}, 4096, s{sS1}")
    a(f"s_mov_b32 s{sDS}, 0")
    a(f"s_mov_b32 s{sST}, 0")
    a(f"s_mov_b32 s{sKD}, {SLOT}")
    a(f"s_mov_b32 s{sD1}, {SLOT}")
    a(f"s_mov_b32 s{sD2}, {-2*SLOT & 0xffffffff}")
    a(f"s_mov_b32 s{sW10}, s{T0}")
    a(f"s_mov_b32 s{sWOl}, 0x40000000")
    a(f"s_mov_b32 s{sTA}, 0x7f000000")
    a(f"s_and_b32 s{T1}, s{S_J}, 7")
    a(f"s_mul_i32 s{sSD}, s{T1}, {20*5120}")
    a(f"s_add_u32 s{sSD}, s{sSD}, {WS_WO}")
    a(f"s_sub_u32 s{T1}, s{sSD}, {WO_LDS}")
    a(f"s_add_u32 s{SRD_WQ}, s{SRD_WS}, s{T1}")
    a(f"s_addc_u32 s{SRD_WQ+1}, s{SRD_WS+1}, 0")
    a(f"s_mov_b32 s{SRD_WQ+2}, {WO_LDS + 90*1024}")
    a(f"s_lshl_b32 s{T0}, s{sQB}, 3")
    a(f"s_add_u32 s{T0}, s{T0}, s{S_W}")
    a(f"s_lshl_b32 s{T0}, s{T0}, 9")
    a(f"s_add_u32 s{T2}, s{T2}, s{T0}")
    a(f"s_add_u32 s80, s{T2}, {WS_Q + 64*32768}")
    a(f"s_lshl_b32 s{T3}, s{sH}, 16")
    a(f"s_add_u32 s{T3}, s{T3}, s{T0}")
    a(f"s_add_u32 s81, s{T3}, {WS_Q}")
    a("v_cmp_eq_u32 vcc, 20, v2")
    a("v_mov_b32 v3, 0x3f803f80")
    a("s_nop 0")
    a("v_cndmask_b32 v3, 0, v3, vcc")
    for r in range(16): a(f"v_mov_b32 v{V+r}, v3")
    for r in range(16): a(f"v_mov_b32 v{O+r}, 0")
    for r in range(12, 16): a(f"v_mov_b32 v{P+r}, 0")
    a(f"s_mul_i32 s{T0}, s{sH}, 20")
    a(f"s_add_u32 s{T1}, s{T0}, 19")
    a(f"s_lshr_b32 s{T0}, s{T0}, 7")
    a(f"s_lshr_b32 s{T1}, s{T1}, 7")
    a(f"s_sub_u32 s{T1}, s{T1}, s{T0}")
    a(f"s_lshl_b32 s{T1}, s{T1}, 4")
    a(f"v_and_b32 v{PL+4}, s{T1}, v0")
    a(f"v_and_b32 v{PL+5}, 15, v0")
    a(f"v_add_u32 v{PL+5}, v{PL+5}, v{PL+4}")
    a(f"v_mul_u32_u24 v{PL+6}, 0x50, v1")
    a(f"v_add3_u32 v{PL+5}, v{PL+5}, v{PL+6}, 64")
    a(f"v_add_u32 v{PL+5}, 16, v{PL+5}")
    a(f"v_lshlrev_b32 v{PL+5}, 7, v{PL+5}")
    a(f"s_lshl_b32 s{T2}, s{sQB}, 1")
    a(f"v_and_b32 v{PL+6}, 1, v0")
    a(f"v_add3_u32 v{PL+4}, v{PL+4}, v{PL+6}, s{T2}")
    a(f"v_lshlrev_b32 v{PL+4}, 7, v{PL+4}")
    a(f"s_lshl_b32 s{T0}, s{T0}, 11")
    a(f"s_add_u32 s{T3}, s{T0}, {FL_1}")
    def ldq():
        a(f"buffer_load_dwordx4 {vr(Qm,4)}, v{DKM}, {WS}, s81 offen sc1")
        a(f"buffer_load_dwordx2 {vr(Qr,2)}, v10, {WS}, s80 offen sc1")
    early_q = k.o.get("earlyq", "1") == "1"
    if early_q:
        def own_q():
            a(f"s_lshr_b32 s{T0}, s{S_W}, 2")
            a(f"s_add_u32 s{T0}, s{T0}, s{T2}")
            a(f"v_and_b32 v{PL+4}, s{T1}, v0")
            a(f"v_add_lshl_u32 v{PL+4}, v{PL+4}, s{T0}, 7")
            L = a.newlabel("qp"); Ld = a.newlabel("qpd")
            a(f"s_mov_b32 s{S_SPIN}, 0")
            a.label(L)
            a(f"buffer_load_dwordx2 v[{PL}:{PL+1}], v{PL+4}, {WS}, s{T3} offen sc1")
            a(f"s_add_u32 s{S_SPIN}, s{S_SPIN}, 1")
            a(f"s_cmp_ge_u32 s{S_SPIN}, {SPIN_MAX}")
            a(f"s_cbranch_scc1 {Ld}")
            a("s_waitcnt vmcnt(0)")
            a(f"v_cmp_ne_u64 vcc, s[{S_NONCE}:{S_NONCE+1}], v[{PL}:{PL+1}]")
            a(f"s_cbranch_vccnz {L}")
            a.label(Ld)
            ldq()
        not_wave0(k, own_q)
    k.poll2(PL + 5, PL + 4, T3, PL)
    a("s_waitcnt lgkmcnt(0)")
    a("s_barrier")
    k.stamp(8)
    if early_q:
        a(f"s_cmp_lg_u32 s{S_W}, 0")
        a("s_cbranch_scc1 L_noq")
    ldq()
    if early_q: a.label("L_noq")
    for i in range(3): kv_piece(k, i)
    a(f"s_mov_b32 s{sDS}, {SLOT}")
    a(f"s_lshl_b32 s{T0}, s{sQB}, 4")
    a(f"s_lshl_b32 s{T1}, s{S_W}, 1")
    a(f"s_add_u32 s{T0}, s{T0}, s{T1}")
    a(f"s_mul_i32 s{T0}, s{T0}, 20480")
    a(f"s_add_u32 s{T0}, s{T0}, {WS_O}")
    a(f"s_lshl_b32 s{T1}, s{sH}, 9")
    a(f"s_add_u32 s80, s{T0}, s{T1}")
    a(f"s_lshr_b32 s{T1}, s{sH}, 4")
    a(f"s_lshl_b32 s{T2}, s{T1}, 11")
    a(f"s_add_u32 s80, s80, s{T2}")
    a(f"s_lshl_b32 s{T1}, s{T1}, 13")
    a(f"s_add_u32 s{T0}, s{T0}, s{T1}")
    a(f"s_lshr_b32 s{T1}, s{sH}, 3")
    a(f"s_lshl_b32 s{T1}, s{T1}, 10")
    a(f"s_add_u32 s{T0}, s{T0}, s{T1}")
    a(f"s_bfe_u32 s{T1}, s{sH}, 0x20001")
    a(f"s_lshl_b32 s{T1}, s{T1}, 7")
    a(f"s_add_u32 s{T0}, s{T0}, s{T1}")
    a(f"s_and_b32 s{T1}, s{sH}, 1")
    a(f"s_lshl_b32 s{T1}, s{T1}, 9")
    a(f"s_add_u32 s{T0}, s{T0}, s{T1}")
    a(f"s_add_u32 s81, s{T0}, 8192")
    a("v_bfe_u32 v3, v0, 4, 1")
    a("v_mul_u32_u24 v3, 20480, v3")
    a("v_and_b32 v10, 15, v0")
    a("v_lshl_add_u32 v11, v10, 4, v3")
    a(f"v_lshl_add_u32 v{OA+1}, v10, 3, v3")
    a("v_lshrrev_b32 v10, 5, v0")
    a(f"v_lshl_add_u32 v{OA}, v10, 8, v11")
    a("s_waitcnt vmcnt(0)")
    for i in range(3): kv_piece(k, i)
    a(f"s_mov_b32 s{sDS}, {2*SLOT}")
    a("s_barrier")
    k.hold("fix9")
    k.stamp(9)
    def rdk(i):
        a(f"ds_read_b128 {vr(Km,4)}, v{AK} offset:{2048*i}")
        a(f"ds_read_b128 {vr(Km+4,4)}, v{AK} offset:{2048*i+1024}")
        a(f"ds_read_b64 {vr(Kr,2)}, v{AKR} offset:{8192+1024*i}")
    rdk(0)
    a(f"v_mov_b32 v{PL}, 0xff800000")
    a("s_waitcnt lgkmcnt(0)")
    qkm(a, 0, S0, "0"); qkm(a, 1, S0, "0")
    a("s_nop 9")
    qkr(a, S0)
    rdk(1)
    if k.o.get("soft", "1") == "1":
        for i in range(3): wo_piece(k)
        for i in range(int(k.o.get("ntouch", 2))): touch_piece(k)
    a("s_nop 3")
    rowmax(a, S0, 32, PL, PL + 4)
    set_neg(a, PL, PL + 4)
    for r in range(32): a(f"v_sub_f32 v{S0+r}, v{S0+r}, v{PL}")
    a(f"s_cmp_ge_u32 s{S_W}, 4")
    a("s_cbranch_scc1 L_att_young")
    for young in (0, 1):
        L = "L_att_young" if young else "L_att_old"
        a.align(int(k.o.get("al2", 3)))
        a.label(L)
        att_stage(k, young)
        a(f"s_cmp_lt_u32 s{sST}, 8")
        a(f"s_cbranch_scc1 {L}")
        if not young: a("s_branch L_att_done")
    a("s_setprio 0")
    a.label("L_att_done")
    a("s_waitcnt lgkmcnt(3)")
    pv(a, 3)
    k.stamp(10)
    a("s_waitcnt lgkmcnt(0)")
    a(f"s_mov_b32 s{T3}, 0")
    a("s_nop 9")
    a.label("L_att_norm")
    a(f"v_mov_b32 v1, v{O+8}")
    a(f"v_mov_b32 v2, v{O+8}")
    a("v_mov_b32 v3, 0x203")
    a(f"v_mov_b32 v10, 0x{f2u(2.0**40):08x}")
    a("v_permlane32_swap_b32 v1, v2")
    a("s_nop 0")
    a("v_rcp_f32 v1, v2")
    a("v_cmp_nle_f32 vcc, v2, v10")
    for r in range(8): a(f"v_mul_f32 v{O+r}, v1, v{O+r}")
    for r in range(4): a(f"v_cvt_pk_bf16_f32 v{P+r}, v{O+2*r}, v{O+2*r+1}")
    a(f"buffer_store_dwordx4 {vr(P,4)}, v{OA}, {WS}, s80 offen sc1")
    for r in range(8, 12): a(f"v_mul_f32 v{O+r}, v1, v{O+r}")
    for r in range(4, 6): a(f"v_cvt_pk_bf16_f32 v{P+r}, v{O+2*r}, v{O+2*r+1}")
    a("s_mov_b64 exec, 0xffffffff")
    a(f"buffer_store_dwordx2 {vr(P+4,2)}, v{OA+1}, {WS}, s81 offen sc1")
    a("s_mov_b64 exec, -1")
    a(f"v_add_f32 v1, abs(v{O}), abs(v{O+1})")
    a(f"v_add_f32 v2, abs(v{O+2}), abs(v{O+3})")
    for r in range(4, 12, 2):
        a(f"v_add_f32 v1, abs(v{O+r}), v1")
        a(f"v_add_f32 v2, abs(v{O+r+1}), v2")
    a("v_add_f32 v1, v1, v2")
    a(f"v_cmp_class_f32 s[{S_M1}:{S_M1+1}], v1, v3")
    a(f"s_cmp_lg_u32 s{T3}, 0")
    a("s_cbranch_scc1 L_att_end")
    a(f"s_or_b64 vcc, vcc, s[{S_M1}:{S_M1+1}]")
    a("s_cbranch_scc1 L_att_fb")
    if k.o.get("fine") == "2": k.stamp(20)
    a("s_branch L_att_end")
    assert k._n == 2 * (6 + int(k.o.get("ntouch", 2))), k._n
    att_side(k)
    att_late(k)
    att_fallback(k)
    a.label("L_att_end")
    if k.stop == 2:
        a("s_waitcnt vmcnt(0)")
        k.stamp(11)


class VQ:
    def __init__(self, a): self.a = a; self.q = []
    def add(self, tag): self.q.append(tag)
    def wait(self, tag):
        if tag not in self.q: return
        i = len(self.q) - 1 - self.q[::-1].index(tag)
        n = len(self.q) - 1 - i
        self.a(f"s_waitcnt vmcnt({n})")
        self.q = self.q[i + 1:]

def dma_ops(k, vq, tag, first, last, s_src, s_lds, lds0, nw=8):
    a = k.a
    def one(i):
        def f():
            a(f"s_add_u32 m0, s{s_lds}, {lds0 + nw * i * 1024}")
            a(f"s_add_u32 s{T0}, s{s_src}, {(first + nw * i) * 1024}")
            if first + nw * i + nw > last:
                a(f"s_cmp_ge_u32 s{S_W}, {last - first - nw*i + (1 if nw == 7 else 0)}")
                a(f"s_cselect_b32 m0, {k.DUMMY}, m0")
                a(f"s_cselect_b32 s{T0}, 0x7f000000, s{T0}")
            k.dma(DLIN, SRD_WS, f"s{T0}", "sc1")
            if vq is not None: vq.add(tag)
        return f
    return [one(i) for i in range((last - first + nw - 1) // nw)]

DL8 = 197
RA = 8
AF = 4
ST = 36
ACC = 44
BA = 72
XW, XRD = 78, 79
TM = 80
WB = 88
CSV = 148
SW = 1
TL = 252
HR = 198
sRG, sKH, sN8, sRB64, sA, sB = 64, 65, 66, 67, 68, 69
sW7 = 72
CS_LDS = 158 * 1024

def a_op(k, vq, j, ks, s_base, split):
    a = k.a
    reg = AF + 4 * (j % RA)
    pol = k.o.get("apol", "sc1")
    def f():
        if k.o.get("noa"): return
        a(f"s_add_u32 s{T0}, s{s_base}, {1024*ks}")
        if split:
            a(f"buffer_load_dwordx2 {vr(reg,2)}, v{DL8}, {WS}, s{T0} offen sc1")
            a(f"buffer_load_dwordx2 {vr(reg+2,2)}, v{DL8}, {WS}, s{T0} offen offset:512 sc1")
            vq.add(("a", j))
        else:
            a(f"buffer_load_dwordx4 {vr(reg,4)}, v{DLIN}, {WS}, s{T0} offen {pol}")
        vq.add(("A", j))
    return f

def coop_touch(k, vq, s_base, s_idx, stride, n):
    a = k.a
    if not k.o.get("coop"): return
    a(f"s_lshl_b32 s{T1}, s{s_idx}, 10")
    a(f"s_add_u32 s{T1}, s{T1}, s{s_base}")
    for i in range((n + stride - 1) // stride):
        a(f"s_add_u32 s{T0}, s{T1}, {1024*stride*i}")
        if stride * i + stride > n:
            a(f"s_cmp_ge_u32 s{s_idx}, {n - stride*i}")
            a(f"s_cselect_b32 s{T0}, s{T1}, s{T0}")
        a(f"buffer_load_dwordx4 {vr(TM+4,4)}, v{DLIN}, {WS}, s{T0} offen sc1")
        vq.add("t")

class LQ(VQ):
    def wait(self, tag):
        if tag not in self.q: return
        i = len(self.q) - 1 - self.q[::-1].index(tag)
        self.a(f"s_waitcnt lgkmcnt({min(15, len(self.q) - 1 - i)})")
        self.q = self.q[i + 1:]

def stage_write(k, lq, i, lds, tail=None):
    a = k.a
    if i % 4 == 0: k.jit(2)
    if tail is not None: a(f"ds_write_b128 v{tail}, {vr(SG(i),4)}")
    else: a(f"ds_write_b128 v{SW + lds // 65536}, {vr(SG(i),4)} offset:{lds % 65536}")
    if lq is not None: lq.add("w")

def acc_init(k, src):
    a = k.a
    a(f"s_sub_u32 s{T0}, s{sKH}, 1")
    for i, t in enumerate((0, 1, 4)):
        for h in range(2):
            r = src + 2 * i + h
            if i == 2:
                a(f"v_and_b32 v{TM+2}, s{T0}, v{r}"); r = TM + 2
            a(f"v_lshlrev_b32 v{ACC+4*t+2*h}, 16, v{r}")
            a(f"v_and_b32 v{ACC+4*t+2*h+1}, 0xffff0000, v{r}")
    for r in range(8, 16): a(f"v_mov_b32 v{ACC+r}, 0")

def mm_steps(k, vq, n, nt, addr, extra, pre_hook=None, init=False):
    a = k.a
    NB = 3
    lq = k.lq = LQ(a)
    def rd(j, t):
        r, off = addr(j, t)
        a(f"ds_read_b128 {vr(WB + (j % NB) * 4 * nt + 4 * t, 4)}, v{r} offset:{off}")
        lq.add(("r", j))
    for j in range(2):
        for t in range(nt): rd(j, t)
    for j in range(n):
        b = WB + (j % NB) * 4 * nt
        ops = list(extra.get(j, []))
        slots = {}
        for i, f in enumerate(ops): slots.setdefault(1 + (i * (nt - 1)) // max(1, len(ops)), []).append(f)
        k.jit(2)
        if pre_hook and j + 2 < n: pre_hook(j + 2)
        vq.wait(("A", j))
        lq.wait(("r", j))
        for t in range(nt):
            c = "0" if j == 0 and not init else vr(ACC + 4 * t, 4)
            a(f"{M16} {vr(ACC+4*t,4)}, {vr(b+4*t,4)}, {vr(AF+4*(j%RA),4)}, {c}")
            if j + 2 < n: rd(j + 2, t)
            for f in slots.get(t, []): f()

def tile_addrs(k, base_expr_sgpr, dst):
    a = k.a
    a(f"s_lshl_b32 s{T1}, s{sKH}, 11")
    a(f"v_add_u32 v{dst+2}, s{base_expr_sgpr}, v{DLIN}")
    a(f"v_add_u32 v{dst}, s{T1}, v{dst+2}")
    a(f"v_subrev_u32 v{dst+1}, s{T1}, v{dst+2}")

def exch_addrs(k, scr):
    a = k.a
    a(f"s_mul_i32 s{T0}, s{sRG}, 5120")
    a(f"s_add_u32 s{T0}, s{T0}, {scr}")
    a(f"s_lshl_b32 s{T1}, s{sKH}, 11")
    a(f"s_add_u32 s{T2}, s{T0}, s{T1}")
    a(f"v_add_u32 v{XW}, s{T2}, v{DLIN}")
    a(f"s_sub_u32 s{T2}, s{T0}, s{T1}")
    a(f"s_add_u32 s{T2}, s{T2}, 2048")
    a(f"v_add_u32 v{XRD}, s{T2}, v{DLIN}")

def reduce_halves(k, resid, pad):
    a = k.a
    if pad: a(f"s_nop {pad-1}")
    a(f"ds_write_b128 v{XW}, {vr(ACC+8,4)}")
    a(f"ds_write_b128 v{XW}, {vr(ACC+12,4)} offset:1024")
    L = a.newlabel("rh")
    a(f"s_cmp_eq_u32 s{sKH}, 0")
    a(f"s_cbranch_scc1 {L}")
    a(f"ds_write_b128 v{XW}, {vr(ACC+16,4)} offset:2048")
    a.label(L)
    a("s_waitcnt lgkmcnt(0)")
    a("s_barrier")
    if k.o.get("fine") == "3": k.stamp(20)
    for i in range(3): a(f"ds_read_b128 {vr(WB+4*i,4)}, v{XRD} offset:{1024*i}")
    for i, t in enumerate((0, 1, 4)):
        a(f"s_waitcnt lgkmcnt({2-i})")
        for r in range(4): a(f"v_add_f32 v{ACC+4*t+r}, v{ACC+4*t+r}, v{WB+4*i+r}")

DH = 254
def odd_tile_store(k, src, tmp, soff):
    a = k.a
    for i in range(4): a(f"v_mov_b32 v{tmp+i}, v{src+i%2}")
    a("s_nop 0")
    a(f"v_permlane16_swap_b32 v{tmp}, v{tmp+2}")
    a(f"v_permlane16_swap_b32 v{tmp+1}, v{tmp+3}")
    a("s_mov_b32 exec_lo, 0xffff")
    a("s_mov_b32 exec_hi, 0xffff")
    a(f"buffer_store_dwordx4 {vr(tmp,4)}, v{DH}, {WS}, s{soff} offen sc1")
    a("s_mov_b64 exec, -1")

def row_reduce(a, r, t):
    for sw in ("16", "32"):
        a(f"v_mov_b32 v{t}, v{r}")
        a(f"v_mov_b32 v{t+1}, v{r+1}")
        a("s_nop 0")
        a(f"v_permlane{sw}_swap_b32 v{r}, v{t}")
        a(f"v_permlane{sw}_swap_b32 v{r+1}, v{t+1}")
        a("s_nop 0")
        a(f"v_add_f32 v{r}, v{r}, v{t}")
        a(f"v_add_f32 v{r+1}, v{r+1}, v{t+1}")

def fpoll(k, n):
    d = int(k.o.get("pdepth", 1))
    if d == 1: k.poll(n, T3, FSP, TM)
    else: k.pollp(n, T3, FSP, TM, ST, d)

def not_wave0(k, fn):
    a = k.a
    L = a.newlabel("nw0")
    a(f"s_cmp_eq_u32 s{S_W}, 0")
    a(f"s_cbranch_scc1 {L}")
    fn()
    a.label(L)

NS5 = 16
HALF = NS5 * 5120
OUT_PITCH = 336
OUT_HALF = HALF
OUT_LDS = 11 * 5120
sW2 = 83
def w2_load(k, vq, tag, i, batch):
    h, q = divmod(i, 9)
    stage_load(k, vq, tag, i, sW2, (135 * h + (0, 5 * NS5)[batch] + 8 * q) * 1024)
def w2_write(k, lq, i):
    h, q = divmod(i, 9)
    stage_write(k, lq, i, HALF * h + 8192 * q)

P3_SCR, P3_LAST = 35 * 1024, 56 * 1024
sTT3 = 81
def phase3(k):
    a = k.a
    a.c("================ phase 3: output projection + residual")
    a(f"s_lshl_b32 s{T0}, s{sQB}, 5")
    a(f"s_add_u32 s{T0}, s{T0}, s{sH}")
    a(f"s_mul_i32 s{T3}, s{T0}, {FSP}")
    a(f"s_add_u32 s{T3}, s{T3}, {FL_2}")
    a(f"s_and_b32 s{sRG}, s{S_W}, 3")
    a(f"s_lshr_b32 s{sKH}, s{S_W}, 2")
    a(f"s_and_b32 s{sN8}, s{S_J}, 7")
    a(f"s_lshl_b32 s{sRB64}, s{S_C}, 2")
    a(f"s_lshr_b32 s{T0}, s{S_J}, 3")
    a(f"s_add_u32 s{sRB64}, s{sRB64}, s{T0}")
    a(f"s_sub_u32 s{sW7}, s{sW10}, 1024")
    a(f"s_add_u32 s{sA}, s{sSD}, s{sW7}")
    a(f"s_mul_i32 s{sW2}, s{sN8}, {54*5120}")
    a(f"s_add_u32 s{sW2}, s{sW2}, s{sW10}")
    a(f"s_add_u32 s{sW2}, s{sW2}, {WS_W2}")
    a(f"v_lshlrev_b32 v{DL8}, 3, v0")
    a(f"v_lshrrev_b32 v{DH}, 5, v0")
    a(f"v_and_b32 v{TM}, 15, v0")
    a(f"v_lshlrev_b32 v{TM}, 4, v{TM}")
    a(f"v_lshl_add_u32 v{DH}, v{DH}, 8, v{TM}")
    a(f"v_add_u32 v{SW}, s{sW10}, v{DLIN}")
    a(f"v_add_u32 v{SW+1}, 0x10000, v{SW}")
    a(f"v_add_u32 v{SW+2}, 0x20000, v{SW}")
    k.flag_prep(TM + 4)
    if k.o.get("fine") == "2": k.stamp(21)
    a("s_waitcnt vmcnt(0)")
    if k.o.get("fine") == "2": k.stamp(22)
    a("s_barrier")
    k.stamp(11)
    k.flag_store(T3, TM + 4, prepped=True)
    def early():
        for f in dma_ops(k, None, None, 90, 100, sA, sW7, P3_LAST, 7): f()
        if not k.o.get("w0a", "1") == "1": resid_x(k)
    not_wave0(k, early)
    if k.o.get("w0a", "1") == "1": resid_x(k)
    for i in range(4): stage_write(k, None, i, 8192 * i)
    a(f"s_cmp_lt_u32 s{S_W}, 6")
    a("s_cbranch_scc1 L_p3_nocs")
    a(f"s_and_b32 s{T1}, s{S_J}, 15")
    a(f"s_sub_u32 s{T0}, s{S_W}, 6")
    a(f"s_lshl_b32 s{T0}, s{T0}, 6")
    a(f"v_add_u32 v{TM+4}, s{T0}, v0")
    a(f"s_mul_i32 s{T2}, s{T1}, 96")
    a(f"v_add_u32 v{TM+5}, s{T2}, v{TM+4}")
    a(f"s_min_u32 s{T2}, s{T1}, 11")
    a(f"s_lshl_b32 s{T2}, s{T2}, 4")
    a(f"s_add_u32 s{T2}, s{T2}, 1536")
    a(f"v_and_b32 v{TM+6}, 15, v0")
    a(f"v_add_u32 v{TM+6}, s{T2}, v{TM+6}")
    a(f"v_cmp_gt_u32 vcc, 96, v{TM+4}")
    a(f"s_mov_b32 s{T2}, {WS_CS1}")
    a("s_nop 0")
    a(f"v_cndmask_b32 v{TM+5}, v{TM+6}, v{TM+5}, vcc")
    a(f"v_lshlrev_b32 v{TM+5}, 2, v{TM+5}")
    for i in range(20):
        a(f"buffer_load_dword v{CSV+i}, v{TM+5}, {WS}, s{T2} offen sc1")
        if i < 19: a(f"s_add_u32 s{T2}, s{T2}, {1728*4}")
    a.label("L_p3_nocs")
    a(f"s_mul_i32 s{T0}, s{sKH}, {45*1024}")
    a(f"s_add_u32 s{T0}, s{T0}, {WO_LDS}")
    tile_addrs(k, T0, BA)
    a(f"s_mul_i32 s{T0}, s{sKH}, 5120")
    a(f"s_add_u32 s{T0}, s{T0}, {P3_LAST}")
    tile_addrs(k, T0, BA + 3)
    exch_addrs(k, P3_SCR)
    a(f"s_lshl_b32 s{T0}, s{sRB64}, 2")
    a(f"s_add_u32 s{sTT3}, s{T0}, s{sRG}")
    a(f"s_mul_i32 s{sA}, s{sTT3}, 20480")
    a(f"s_mul_i32 s{T1}, s{sKH}, 10240")
    a(f"s_add_u32 s{sA}, s{sA}, s{T1}")
    a(f"s_add_u32 s{sA}, s{sA}, {WS_O}")
    a(f"v_and_b32 v{TM+6}, 15, v0")
    a(f"v_lshrrev_b32 v{TM+7}, 4, v0")
    a(f"v_lshl_add_u32 v{TM+7}, v{TM+6}, 2, v{TM+7}")
    a(f"v_lshlrev_b32 v{TM+7}, 2, v{TM+7}")
    a(f"s_mul_i32 s70, s{sTT3}, 20480")
    a(f"s_add_u32 s70, s70, {WS_H}")
    a(f"s_lshl_b32 s{T0}, s{sN8}, 1")
    a(f"s_add_u32 s{T0}, s{T0}, s{sKH}")
    a(f"s_lshl_b32 s71, s{T0}, 10")
    a(f"s_add_u32 s71, s71, s70")
    a(f"s_lshl_b32 s{T1}, s{sRB64}, 4")
    a(f"s_add_u32 s{T0}, s{T0}, s{T1}")
    a(f"s_lshl_b32 s{T0}, s{T0}, 9")
    a(f"s_lshl_b32 s{T1}, s{sRG}, 7")
    a(f"s_add_u32 s{T0}, s{T0}, s{T1}")
    a(f"s_add_u32 s74, s{T0}, {WS_ST}")
    a(f"s_lshr_b32 s{T0}, s{sN8}, 1")
    a(f"s_lshl_b32 s{T0}, s{T0}, 10")
    a(f"s_and_b32 s{T1}, s{sN8}, 1")
    a(f"s_lshl_b32 s{T1}, s{T1}, 9")
    a(f"s_add_u32 s{T0}, s{T0}, s{T1}")
    a(f"s_add_u32 s70, s70, s{T0}")
    a(f"s_add_u32 s70, s70, 16384")
    a(f"s_lshl_b32 s{T0}, s{sRB64}, 3")
    a(f"s_add_u32 s{T0}, s{T0}, s{sN8}")
    a(f"s_mul_i32 s75, s{T0}, {FSP}")
    a(f"s_add_u32 s75, s75, {FL_3}")
    a(f"s_mul_i32 s{T3}, s{S_C}, {32*FSP}")
    a(f"s_add_u32 s{T3}, s{T3}, {FL_2}")
    a(f"s_cmp_ge_u32 s{S_W}, 6")
    a("s_cbranch_scc1 L_p3_w67")
    a("s_waitcnt vmcnt(0)")
    a.label("L_p3_w67")
    a("s_waitcnt vmcnt(20)")
    for r in range(6): a(f"ds_bpermute_b32 v{XR+r}, v{TM+7}, v{XR+r}")
    a("s_waitcnt lgkmcnt(0)")
    E2 = k.o.get("early2", "0") == "1"
    if E2:
        for i in range(4): w2_load(k, None, None, i, 0)
    acc_init(k, XR)
    fpoll(k, 32)
    a("s_barrier")
    k.hold("fix12")
    k.stamp(12)
    vq = VQ(a)
    aop = [a_op(k, vq, j, j, sA, j >= 8) for j in range(10)]
    D = int(k.o.get("d3", 4))
    coop_touch(k, vq, sA, sN8, 8, 10)
    for j in range(D): aop[j]()
    def addr(j, t):
        r = (BA if j < 9 else BA + 3) + (0, 0, 1, 1, 2)[t]
        return r, (j * 5120 if j < 9 else 0) + t * 1024
    extra = {j: [aop[j + D]] for j in range(10 - D)}
    mm_steps(k, vq, 10, 5, addr, extra, init=True)
    k.stamp(13)
    reduce_halves(k, XR, 6)
    for i, t in enumerate((0, 1, 4)):
        for h in range(2): a(f"v_cvt_pk_bf16_f32 v{HR+2*i+h}, v{ACC+4*t+2*h}, v{ACC+4*t+2*h+1}")
        if i == 1: a(f"buffer_store_dwordx4 {vr(HR,4)}, v{DLIN}, {WS}, s71 offen sc1")
    a(f"v_mov_b32 v{TM+6}, 0x3f803f80")
    for r in (2, 3, 4, 5): a(f"v_mov_b32 v{TM+r}, 0")
    def acc_stats(regs):
        for n, r in enumerate(regs):
            d = TM + 2 + 2 * (n % 2)
            a(f"v_dot2_f32_bf16 v{d}, v{r}, v{TM+6}, v{d}")
            a(f"v_dot2_f32_bf16 v{d+1}, v{r}, v{r}, v{d+1}")
    acc_stats(range(HR, HR + 4))
    a(f"s_cmp_lg_u32 s{sKH}, 0")
    a("s_cbranch_scc1 L_p3_no4")
    acc_stats(range(HR + 4, HR + 6))
    odd_tile_store(k, HR + 4, WB, 70)
    a.label("L_p3_no4")
    a("s_nop 0")
    a(f"v_add_f32 v{TM+4}, v{TM+4}, v{TM+2}")
    a(f"v_add_f32 v{TM+5}, v{TM+5}, v{TM+3}")
    row_reduce(a, TM + 4, TM + 6)
    a("s_mov_b64 exec, 0xffff")
    a(f"buffer_store_dwordx2 {vr(TM+4,2)}, v{DL8}, {WS}, s74 offen sc1")
    a("s_mov_b64 exec, -1")
    if k.o.get("fine") == "3": k.stamp(21)
    NW3 = int(k.o.get("nw3", 8))
    if not E2:
        for i in range(4): w2_load(k, None, None, i, 0)
    for i in range(7, 7 + NW3): stage_write(k, None, i, 8192 * i)
    if E2:
        a(f"s_waitcnt lgkmcnt({NW3 - 4})")
        for i in range(7, 11): w2_load(k, None, None, i, 0)
    k.flag_prep(TM)
    if k.o.get("fine") == "3": k.stamp(22)
    a("s_waitcnt vmcnt(4)")
    if k.o.get("fine") == "3": k.stamp(23)
    a("s_barrier")
    k.stamp(14)
    k.flag_store(75, TM, prepped=True)

def phase4(k):
    a = k.a
    a.c("================ phase 4: FFN up-projection + SiLU")
    sF, sRB, sTT = 70, 71, 74
    NW3 = int(k.o.get("nw3", 8)); F4 = 11 if k.o.get("early2", "0") == "1" else 7
    NB4 = min(NW3 + 7 - F4, int(k.o.get("nb4", 4)))
    def rest_writes():
        for i in list(range(7 + NW3, 18)) + [4, 5, 6]: stage_write(k, None, i, 8192 * i)
    a("s_waitcnt lgkmcnt(0)")
    for i in range(F4, F4 + NB4): w2_load(k, None, None, i, 0)
    if k.o.get("w0b", "1") == "1": rest_writes()
    else: not_wave0(k, rest_writes)
    a(f"s_cmp_lt_u32 s{S_W}, 6")
    a("s_cbranch_scc1 L_p4_nocs2")
    for w in (10, 5):
        for i in range(w): a(f"v_add_f32 v{CSV+i}, v{CSV+i}, v{CSV+w+i}")
    for i in range(1, 5): a(f"v_add_f32 v{CSV}, v{CSV}, v{CSV+i}")
    a(f"s_lshl_b32 s{T0}, s{S_W}, 8")
    a(f"s_add_u32 s{T0}, s{T0}, {CS_LDS - 6*256}")
    a(f"v_lshl_add_u32 v{TM+4}, v0, 2, s{T0}")
    a(f"ds_write_b32 v{TM+4}, v{CSV}")
    a.label("L_p4_nocs2")
    a(f"s_and_b32 s{sF}, s{S_J}, 15")
    a(f"s_lshl_b32 s{sRB}, s{S_C}, 1")
    a(f"s_lshr_b32 s{T0}, s{S_J}, 4")
    a(f"s_add_u32 s{sRB}, s{sRB}, s{T0}")
    a(f"v_mov_b32 v{BA}, v{DLIN}")
    a(f"v_add_u32 v{BA+1}, {9*7168}, v{DLIN}")
    a(f"v_add_u32 v{BA+2}, {18*7168}, v{DLIN}")
    a(f"s_lshl_b32 s{T0}, s{sRB}, 3")
    a(f"s_add_u32 s{sTT}, s{T0}, s{S_W}")
    a(f"s_mul_i32 s{sA}, s{sTT}, 20480")
    a(f"s_add_u32 s{sA}, s{sA}, {WS_H}")
    a(f"s_lshr_b32 s{T0}, s{sTT}, 2")
    a(f"s_lshl_b32 s{T0}, s{T0}, 13")
    a(f"s_and_b32 s{T1}, s{sTT}, 3")
    a(f"s_lshl_b32 s{T1}, s{T1}, 7")
    a(f"s_add_u32 s{T0}, s{T0}, s{T1}")
    a(f"s_add_u32 s{sB}, s{T0}, {WS_ST}")
    a(f"v_and_b32 v{TM}, 15, v0")
    a(f"v_lshrrev_b32 v{TM+1}, 4, v0")
    a(f"v_lshlrev_b32 v{BA+3}, 11, v{TM+1}")
    a(f"v_lshl_add_u32 v{BA+3}, v{TM}, 3, v{BA+3}")
    a(f"v_lshlrev_b32 v{BA+4}, 4, v{TM+1}")
    a(f"v_add_u32 v{BA+4}, {CS_LDS}, v{BA+4}")
    a(f"s_mul_i32 s{T3}, s{sRB}, {16*FSP}")
    a(f"s_add_u32 s{T3}, s{T3}, {FL_3}")
    fpoll(k, 16)
    if not k.o.get("w0b", "1") == "1":
        a(f"s_cmp_lg_u32 s{S_W}, 0")
        a("s_cbranch_scc1 L_p4_w0")
        rest_writes()
        a.label("L_p4_w0")
    a("s_waitcnt lgkmcnt(0)")
    a("s_barrier")
    k.stamp(15)
    vq = VQ(a)
    aop = [a_op(k, vq, j, j, sA, False) for j in range(20)]
    D = int(k.o.get("d4", 4))
    coop_touch(k, vq, sA, sF, 16, 20)
    for j in range(D): aop[j]()
    def st_op(i):
        def f():
            a(f"buffer_load_dwordx2 {vr(ST+2*i,2)}, v{BA+3}, {WS}, s{sB} offen offset:{512*i} sc1")
            vq.add("S")
        return f
    extra = {j: [aop[j + D]] for j in range(20 - D)}
    rest = list(range(F4 + NB4, 18)) + [4, 5, 6]
    NE4 = int(k.o.get("ne4", 3))
    late4, rest = rest[len(rest) - NE4:], rest[:len(rest) - NE4]
    for n, i in enumerate(rest): extra.setdefault(1 + (n * 19) // len(rest), []).append(lambda i=i: w2_load(k, vq, "W", i, 0))
    for i in range(4): extra.setdefault(6 + i, []).insert(0, st_op(i))
    def stats_a():
        vq.wait("S")
        a(f"v_add_f32 v{ST}, v{ST}, v{ST+2}")
        a(f"v_add_f32 v{ST+1}, v{ST+1}, v{ST+3}")
        a(f"v_add_f32 v{ST+4}, v{ST+4}, v{ST+6}")
        a(f"v_add_f32 v{ST+5}, v{ST+5}, v{ST+7}")
        a(f"v_add_f32 v{ST}, v{ST}, v{ST+4}")
        a(f"v_add_f32 v{ST+1}, v{ST+1}, v{ST+5}")
    def stats_sw(sw):
        def f():
            a(f"v_mov_b32 v{ST+2}, v{ST}")
            a(f"v_mov_b32 v{ST+3}, v{ST+1}")
            a("s_nop 0")
            a(f"v_permlane{sw}_swap_b32 v{ST}, v{ST+2}")
            a(f"v_permlane{sw}_swap_b32 v{ST+1}, v{ST+3}")
            a("s_nop 0")
            a(f"v_add_f32 v{ST}, v{ST}, v{ST+2}")
            a(f"v_add_f32 v{ST+1}, v{ST+1}, v{ST+3}")
        return f
    def stats_b():
        a(f"v_mul_f32 v{ST}, 0x{f2u(1.0/640):08x}, v{ST}")
        a(f"v_mul_f32 v{ST+2}, v{ST}, v{ST}")
        a(f"v_mov_b32 v{ST+3}, 0x{f2u(1.0/640):08x}")
        a(f"v_fma_f32 v{ST+2}, v{ST+1}, v{ST+3}, -v{ST+2}")
        a(f"v_max_f32 v{ST+2}, 0, v{ST+2}")
        a(f"v_add_f32 v{ST+2}, 0x{f2u(1e-5):08x}, v{ST+2}")
        a(f"v_rsq_f32 v{ST+1}, v{ST+2}")
        a(f"v_mov_b32 v{ST+2}, 0x{f2u(-math.log2(math.e)):08x}")
        a(f"s_mul_i32 s76, s{sTT}, {54*1024}")
        a(f"v_mul_f32 v{ST+1}, v{ST+1}, v{ST+2}")
        a(f"s_add_u32 s76, s76, {WS_H1}")
        a(f"v_mul_f32 v{ST}, v{ST}, v{ST+1}")
        a(f"s_lshr_b32 s{T1}, s{sF}, 3")
        a(f"s_add_u32 s{T1}, s{T1}, s{sF}")
        a(f"s_mul_i32 s{T1}, s{T1}, 3072")
        a(f"s_add_u32 s77, s{T1}, s76")
    def stats_c():
        a(f"s_lshr_b32 s{T2}, s{sF}, 1")
        a(f"s_cmp_ge_u32 s{sF}, 6")
        a(f"s_cselect_b32 s{T1}, 48, 24")
        a(f"s_add_u32 s{T2}, s{T2}, s{T1}")
        a(f"s_lshl_b32 s{T2}, s{T2}, 10")
        a(f"s_and_b32 s{T1}, s{sF}, 1")
        a(f"s_lshl_b32 s{T1}, s{T1}, 9")
        a(f"s_add_u32 s{T2}, s{T2}, s{T1}")
        a(f"s_add_u32 s76, s76, s{T2}")
        a(f"s_lshl_b32 s{T1}, s{sRB}, 4")
        a(f"s_add_u32 s{T1}, s{T1}, s{sF}")
        a(f"s_mul_i32 s{T3}, s{T1}, {FSP}")
        a(f"s_add_u32 s{T3}, s{T3}, {FL_4}")
    for j, f in ((14, stats_a), (15, stats_sw(16)), (16, stats_sw(32)), (17, stats_b), (18, stats_c)): extra.setdefault(j, []).append(f)
    def addr(j, t): return BA + j // 9, (j % 9) * 7168 + t * 1024
    mm_steps(k, vq, 20, 7, addr, extra)
    k.stamp(16)
    CS = WB + 56
    for t in range(7): a(f"ds_read_b128 {vr(CS+4*t,4)}, v{BA+4} offset:{64*t}")
    for i in late4: w2_load(k, None, None, i, 0)
    a(f"s_cmp_lt_u32 s{S_W}, 4")
    a("s_cbranch_scc1 L_p4_nb")
    a("s_waitcnt lgkmcnt(0)")
    a("s_barrier")
    a.label("L_p4_nb")
    a("s_waitcnt lgkmcnt(0)")
    E = WB; OUT = AF
    def silu(tiles):
        rs = [4 * t + r for t in tiles for r in range(4)]
        for r in rs: a(f"v_mul_f32 v{ACC+r}, v{ST+1}, v{ACC+r}")
        for r in rs: a(f"v_fma_f32 v{ACC+r}, -v{ST}, v{CS+r}, v{ACC+r}")
        for r in rs: a(f"v_exp_f32 v{E+r}, v{ACC+r}")
        for r in rs: a(f"v_fma_f32 v{E+r}, v{E+r}, v{ST+2}, v{ST+2}")
        for r in rs: a(f"v_rcp_f32 v{E+r}, v{E+r}")
        for r in rs: a(f"v_mul_f32 v{ACC+r}, v{ACC+r}, v{E+r}")
        for r in rs[::2]: a(f"v_cvt_pk_bf16_f32 v{OUT+r//2}, v{ACC+r}, v{ACC+r+1}")
    a(f"s_cmp_ge_u32 s{sF}, 12")
    a("s_cbranch_scc1 L_p4_no6")
    silu((6,))
    odd_tile_store(k, OUT + 12, OUT + 16, 76)
    a.label("L_p4_no6")
    PB = int(k.o.get("pb4", 3))
    for p in range(3):
        if p == PB:
            a(f"s_cmp_ge_u32 s{S_W}, 4")
            a("s_cbranch_scc1 L_p4_nb2")
            a("s_barrier")
            a.label("L_p4_nb2")
        silu((2 * p, 2 * p + 1))
        a(f"buffer_store_dwordx4 {vr(OUT+4*p,4)}, v{DLIN}, {WS}, s77 offen offset:{1024*p} sc1")
    order = [x for q in range(9) for x in (q, 9 + q)]
    NB5 = 7
    def w2_swap():
        for h in range(2): dma_ops(k, None, None, 135 * h + 72, 135 * h + 80, sW2, sW10, HALF * h + 72 * 1024)[0]()
        for n in range(18):
            w2_write(k, None, n)
            if 4 <= n < 4 + NB5:
                a("s_waitcnt lgkmcnt(4)")
                w2_load(k, None, None, n - 4, 1)
    a(f"s_cmp_ge_u32 s{S_W}, 4")
    a("s_cbranch_scc1 L_p4_y")
    if PB == 3: a("s_barrier")
    a("s_waitcnt vmcnt(3)")
    w2_swap()
    k.flag_prep(TM)
    a(f"s_waitcnt vmcnt({NB5 + 2})")
    a("s_barrier")
    k.stamp(17)
    k.flag_store(T3, TM, prepped=True)
    a("s_branch L_p4_e")
    a.label("L_p4_y")
    NY = int(k.o.get("ny", 18))
    a("s_waitcnt vmcnt(3)")
    for n in range(NY): w2_write(k, None, n)
    a("s_waitcnt vmcnt(0)")
    a("s_barrier")
    k.stamp(17)
    for n in range(NY, 18): w2_write(k, None, n)
    for h in range(2): dma_ops(k, None, None, 135 * h + 72, 135 * h + 80, sW2, sW10, HALF * h + 72 * 1024)[0]()
    a(f"s_waitcnt lgkmcnt({min(15, 18 - NB5)})")
    for n in range(NB5): w2_load(k, None, None, n, 1)
    a.label("L_p4_e")

def phase5(k):
    a = k.a
    a.c("================ phase 5: FFN down-projection + residual")
    a(f"s_mul_i32 s{T0}, s{sKH}, {HALF}")
    tile_addrs(k, T0, BA)
    for i in range(3): a(f"v_add_u32 v{BA+3+i}, {12*5120}, v{BA+i}")
    a(f"v_and_b32 v{TM+4}, 15, v0")
    a(f"s_lshl_b32 s{T0}, s{sRG}, 4")
    a(f"v_add_u32 v{TM+4}, s{T0}, v{TM+4}")
    a(f"v_mul_u32_u24 v{TM+4}, {OUT_PITCH}, v{TM+4}")
    a(f"v_lshrrev_b32 v{TM+5}, 4, v0")
    a(f"v_lshl_add_u32 v{TM+4}, v{TM+5}, 4, v{TM+4}")
    a(f"s_mul_i32 s{T0}, s{sKH}, {OUT_HALF}")
    a(f"s_add_u32 s{T0}, s{T0}, {OUT_LDS}")
    a(f"v_add_u32 v{TL}, s{T0}, v{TM+4}")
    a(f"s_lshl_b32 s{T0}, s{sKH}, 7")
    a(f"v_add_u32 v{XW}, s{T0}, v{TL}")
    a(f"v_subrev_u32 v{XRD}, s{T0}, v{TL}")
    for n in range(2):
        a(f"s_mul_i32 s{T0}, s{S_W}, 0x50")
        a(f"s_add_u32 s{T0}, s{T0}, {64*n}")
        a(f"v_add_u32 v{TM+2}, s{T0}, v0")
        a(f"v_mul_u32_u24 v{TM+3}, 6554, v{TM+2}")
        a(f"v_lshrrev_b32 v{TM+3}, 16, v{TM+3}")
        a(f"v_mul_u32_u24 v{TM+4+2*n}, 10, v{TM+3}")
        a(f"v_sub_u32 v{TM+2}, v{TM+2}, v{TM+4+2*n}")
        a(f"v_mul_u32_u24 v{TM+4+2*n}, {OUT_PITCH}, v{TM+3}")
        a(f"v_lshl_add_u32 v{TM+4+2*n}, v{TM+2}, 5, v{TM+4+2*n}")
        a(f"v_add_u32 v{TM+4+2*n}, {OUT_LDS}, v{TM+4+2*n}")
        a(f"v_mul_u32_u24 v{TM+5+2*n}, 1280, v{TM+3}")
        a(f"v_lshl_add_u32 v{TM+5+2*n}, v{TM+2}, 4, v{TM+5+2*n}")
    a(f"s_mul_i32 s{sA}, s{sRB64}, {64*1280}")
    a(f"s_mul_i32 s{T0}, s{sN8}, 160")
    a(f"s_add_u32 s{sA}, s{sA}, s{T0}")
    a(f"s_mul_i32 s{sB}, s{sTT3}, {54*1024}")
    a(f"s_mul_i32 s{T1}, s{sKH}, {27*1024}")
    a(f"s_add_u32 s{sB}, s{sB}, s{T1}")
    a(f"s_add_u32 s{sB}, s{sB}, {WS_H1}")
    if k.o.get("p5hot"): a(f"s_mov_b32 s{sB}, {WS_W2}")
    if k.o.get("p5oob"): a(f"s_mov_b32 s{sB}, 0x7f000000")
    acc_init(k, HR)
    a(f"s_lshr_b32 s{T3}, s{sRB64}, 1")
    a(f"s_mul_i32 s{T3}, s{T3}, {16*FSP}")
    a(f"s_add_u32 s{T3}, s{T3}, {FL_4}")
    fpoll(k, 16)
    a("s_waitcnt lgkmcnt(0)")
    a("s_barrier")
    k.stamp(18)
    vq = VQ(a)
    aop = [a_op(k, vq, j, j, sB, False) for j in range(27)]
    D = int(k.o.get("d5", 6))
    coop_touch(k, vq, sB, sN8, 8, 27)
    for j in range(D): aop[j]()
    extra = {j: [aop[j + D]] for j in range(27 - D)}
    bars = (5, 10, 14, 19)
    at = (5, 6, 7, 10, 11, 12, 14)
    dm = dma_ops(k, vq, None, 135 + 5 * NS5, 135 + 5 * NS5 + 56, sW2, sW10, HALF)
    for i in range(7):
        def both(i=i):
            if not k.o.get("p5nod"):
                dm[i](); vq.q[-1] = ("R", i)
            if not k.o.get("p5now"): stage_write(k, k.lq, i, 8192 * i)
        extra.setdefault(at[i], []).append(both)
    cover = {14: 3, 19: 6}
    slot = lambda j: j if j < NS5 else j - NS5
    def addr(j, t):
        s = slot(j)
        return BA + (3 if s >= 12 else 0) + (0, 0, 1, 1, 2)[t], (s % 12) * 5120 + t * 1024
    def pre(j):
        if j - 2 in bars:
            k.lq.wait("w")
            if j - 2 in cover: vq.wait(("R", cover[j - 2]))
            if not k.o.get("p5nob"): a("s_barrier")
    mm_steps(k, vq, 27, 5, addr, extra, pre, init=True)
    k.stamp(19)
    a("s_nop 3")
    for t in range(5): a(f"ds_write_b128 v{(XW, XW, XRD, XRD, TL)[t]}, {vr(ACC+4*t,4)} offset:{64*t}")
    a("s_waitcnt lgkmcnt(0)")
    a("s_barrier")
    OUTS = f"s[{SRD_OUT}:{SRD_OUT+3}]"
    def rd(ra, base):
        for h in range(2):
            for q in range(2): a(f"ds_read_b128 {vr(base+8*h+4*q,4)}, v{ra} offset:{16*q}")
            if h == 0: a(f"v_add_u32 v{ra}, {OUT_HALF}, v{ra}")
    def fin(ga, base):
        for r in range(8): a(f"v_add_f32 v{base+r}, v{base+r}, v{base+8+r}")
        for r in range(4): a(f"v_cvt_pk_bf16_f32 v{base+r}, v{base+2*r}, v{base+2*r+1}")
        a(f"buffer_store_dwordx4 {vr(base,4)}, v{ga}, {OUTS}, s{sA} offen {k.o.get('ost', '')}")
    rd(TM + 4, WB)
    a("s_mov_b64 exec, 0xffff")
    rd(TM + 6, WB + 16)
    a("s_mov_b64 exec, -1")
    a("s_waitcnt lgkmcnt(4)")
    fin(TM + 5, WB)
    a("s_mov_b64 exec, 0xffff")
    a("s_waitcnt lgkmcnt(0)")
    fin(TM + 7, WB + 16)
    a("s_mov_b64 exec, -1")
```

```python
import math
from asmlib import vr, f2u
from tables import *
from gen import *

ACC, XF, WF, XA, WA, VXM, STA, CSA, EP = 16, 160, 192, 80, 84, 86, 88, 92, 96
WS = f"s[{SRD_WS}:{SRD_WS+3}]"
M32 = "v_mfma_f32_32x32x16_bf16"

def phase1_split(k):
    a = k.a
    MISC = k.P1_MISC
    PART, NON, CSF, STF = MISC, MISC + 2048, MISC + 2560, MISC + 3072
    STV = MISC + 4096
    a(f"s_cmp_ge_u32 s{S_W}, 4")
    a("s_cbranch_scc1 L_p1_c")
    def issue():
        a(f"s_mov_b32 m0, s{k.sM0X}")
        a(f"s_add_u32 s{T0}, s{k.sXO}, 81920")
        k.dma(k.DXA, SRD_X, f"s{k.sXO}")
        a("s_add_u32 m0, m0, 8192")
        a(f"s_add_u32 s{T1}, s{k.sWO}, 122880")
        k.dma(k.DXA, SRD_X, f"s{T0}")
        a("s_add_u32 m0, m0, 8192")
        a(f"s_add_u32 s{k.sM0X}, s{k.sM0X}, 32768")
        k.dma(k.DW, SRD_WQ, f"s{k.sWO}")
        a("s_add_u32 m0, m0, 8192")
        a(f"s_add_u32 s{k.sWO}, s{k.sWO}, 15360")
        k.dma(k.DW, SRD_WQ, f"s{T1}")
        a(f"s_sub_u32 m0, m0, {24576 - 1024}")
        a(f"s_add_u32 s{T1}, s{T1}, 15360")
        k.dma(k.DXB, SRD_X, f"s{k.sXO}")
        a("s_add_u32 m0, m0, 8192")
        a(f"s_add_u32 s{k.sXO}, s{k.sXO}, 128")
        k.dma(k.DXB, SRD_X, f"s{T0}")
        a("s_add_u32 m0, m0, 8192")
        a(f"s_and_b32 s{k.sM0X}, s{k.sM0X}, 0x1ffff")
        k.dma(k.DW, SRD_WQ, f"s{k.sWO}")
        a("s_add_u32 m0, m0, 8192")
        a(f"s_add_u32 s{k.sWO}, s{k.sWO}, {245760 - 15360}")
        k.dma(k.DW, SRD_WQ, f"s{T1}")
        a(f"s_sub_u32 s{k.sKC}, s{k.sKC}, 1")
        a(f"s_cmov_b32 s{k.sXO}, s{k.sXB}")
        a(f"s_cmov_b32 s{k.sWO}, s{k.sWB}")
    a("v_lshrrev_b32 v4, 5, v0")
    a("v_bfe_u32 v5, v0, 2, 2")
    a("v_lshl_add_u32 v6, v4, 3, v5")
    a("v_lshlrev_b32 v6, 8, v6")
    a("v_bfe_u32 v7, v0, 4, 1")
    a("v_and_b32 v8, 3, v0")
    a("v_lshl_add_u32 v7, v7, 2, v8")
    a("v_lshlrev_b32 v7, 3, v7")
    a("v_lshl_add_u32 v7, v5, 6, v7")
    a(f"s_lshl_b32 s{T0}, s{S_W}, 12")
    a(f"v_add3_u32 v20, v6, v7, s{T0}")
    for t in range(1, 4): a(f"v_xor_b32 v{20+t}, {t << 6}, v20")
    a(f"s_lshl_b32 s{T0}, s{S_W}, 9")
    a(f"s_add_u32 s{T0}, s{T0}, {PART}")
    a(f"v_lshl_add_u32 v24, v0, 2, s{T0}")
    a("v_and_b32 v1, 31, v0")
    a(f"s_mul_i32 s{T0}, s{k.sCT}, 10240")
    a(f"s_lshl_b32 s{T1}, s{S_W}, 8")
    a(f"s_add_u32 s{T0}, s{T0}, s{T1}")
    a(f"s_add_u32 s{T0}, s{T0}, {WS_CQ}")
    a(f"v_lshl_add_u32 v25, v1, 3, s{T0}")
    a("v_lshl_add_u32 v25, v4, 10, v25")
    a(f"s_lshl_b32 s{T0}, s{k.sRB}, 2")
    a(f"s_add_u32 s{T0}, s{T0}, s{S_W}")
    a(f"s_lshl_b32 s{T0}, s{T0}, 9")
    a(f"s_add_u32 s{T0}, s{T0}, {WS_RS}")
    a(f"v_lshl_add_u32 v26, v1, 4, s{T0}")
    a(f"s_lshl_b32 s{T0}, s{S_W}, 7")
    a(f"v_lshl_add_u32 v27, v1, 2, s{T0}")
    a("v_mov_b32 v28, 0x3f803f80")
    for t in range(4): a(f"v_mov_b32 v{30+t}, 0")
    issue()
    k.stamp(2)
    a("s_waitcnt vmcnt(8)")
    a("s_barrier")
    k.stamp(3)
    issue()
    for t in range(4):
        for rd in range(2): a(f"ds_read_b64_tr_b16 v[{36+4*t+2*rd}:{37+4*t+2*rd}], v{20+t} offset:{16384+rd*1024}")
    a("v_mov_b32 v29, 0")
    a(f"buffer_load_dwordx2 v[{k.VN}:{k.VN+1}], v29, s[{SRD_DBG}:{SRD_DBG+3}], 0 offen sc1")
    a("s_waitcnt lgkmcnt(0)")
    for e in range(4):
        for t in range(4): a(f"v_dot2_f32_bf16 v{30+t}, v{36+4*t+e}, v28, v{30+t}")
    a("s_nop 2")
    a("v_permlane32_swap_b32 v30, v31")
    a("v_permlane32_swap_b32 v32, v33")
    a("s_nop 0")
    a("v_add_f32 v30, v30, v31")
    a("v_add_f32 v32, v32, v33")
    a("ds_write_b32 v24, v30")
    a("ds_write_b32 v24, v32 offset:256")
    a("s_waitcnt vmcnt(9) lgkmcnt(0)")
    a("s_barrier")
    issue()
    a(f"v_add_u32 v1, {PART}, v27")
    for q in range(4): a(f"ds_read_b32 v{30+q}, v1 offset:{512*q}")
    a("s_waitcnt vmcnt(8)")
    k.nonce_get("nonce2")
    a(f"v_mov_b32 v1, {NON}")
    a(f"ds_write_b64 v1, v[{k.VN}:{k.VN+1}]")
    a(f"s_lshl_b32 s{T0}, s{k.sKC0}, 10")
    a("s_waitcnt lgkmcnt(1)")
    a("v_add_f32 v30, v30, v31")
    a("v_add_f32 v32, v32, v33")
    a(f"v_mov_b32 v31, s{S_NONCE}")
    a("v_add_f32 v30, v30, v32")
    a("s_mov_b64 exec, 0xffffffff")
    a(f"buffer_store_dwordx2 v[30:31], v25, {WS}, s{T0} offen sc1")
    a("s_mov_b64 exec, -1")
    a("s_waitcnt lgkmcnt(0)")
    a("s_barrier")
    issue()
    a("s_waitcnt vmcnt(9)")
    a(f"s_mov_b32 s{k.sCNT}, 2")
    a.label("L_p1_ld")
    a("s_barrier")
    issue()
    a(f"s_add_u32 s{k.sCNT}, s{k.sCNT}, 1")
    a(f"s_cmp_lt_u32 s{k.sCNT}, 7")
    a("s_cbranch_scc0 L_p1_ldx")
    a("s_waitcnt vmcnt(8)")
    a("s_branch L_p1_ld")
    a.label("L_p1_ldx")
    def gather():
        a(f"buffer_load_dwordx4 v[36:39], v26, {WS}, 0 offen sc1")
        a(f"s_movk_i32 s{T0}, 0x1000")
        a(f"s_movk_i32 s{T1}, 0x2000")
        for q in range(5):
            so = ("0", "0", f"s{T0}", f"s{T0}", f"s{T1}")[q]
            a(f"buffer_load_dwordx2 v[{40+2*q}:{41+2*q}], v25, {WS}, {so} offen offset:{2048*(q%2)} sc1")
    gather()
    a("s_waitcnt vmcnt(14)")
    a("s_barrier")
    a("s_waitcnt vmcnt(6)")
    a("s_barrier")
    a(f"s_mov_b32 s{S_SPIN}, 0")
    a.label("L_p1_gchk")
    a("s_waitcnt vmcnt(0)")
    a(f"v_xor_b32 v2, s{S_NONCE}, v37")
    a(f"v_xor_b32 v3, s{S_NONCE}, v39")
    for q in range(5):
        a(f"v_xor_b32 v4, s{S_NONCE}, v{41+2*q}")
        a("v_or3_b32 v2, v2, v3, v4")
    a("v_cmp_ne_u32 vcc, 0, v2")
    a("s_cbranch_vccz L_p1_gok")
    a(f"s_add_u32 s{S_SPIN}, s{S_SPIN}, 1")
    a(f"s_cmp_ge_u32 s{S_SPIN}, {SPIN_MAX}")
    a("s_cbranch_scc1 L_p1_gok")
    k.diag("gather")
    gather()
    a("s_branch L_p1_gchk")
    a.label("L_p1_gok")
    a("v_add_f32 v40, v40, v42")
    a("v_add_f32 v44, v44, v46")
    a("v_add_f32 v40, v40, v48")
    a("v_add_f32 v40, v40, v44")
    qs = math.log2(math.e) / math.sqrt(20.0)
    a(f"s_cmp_lt_u32 s{k.sCT}, 5")
    a(f"s_cselect_b32 s{T1}, 0x{f2u(qs):08x}, 1.0")
    a("v_mov_b32 v41, v40")
    a(f"v_mul_f32 v36, s{T1}, v36")
    a(f"v_mul_f32 v37, s{T1}, v38")
    a("v_permlane32_swap_b32 v40, v41")
    a("v_lshlrev_b32 v1, 1, v27")
    a("v_add_f32 v40, v40, v41")
    a(f"v_add_u32 v1, {STF}, v1")
    a(f"v_add_u32 v27, {CSF}, v27")
    a("ds_write_b32 v27, v40")
    a("ds_write_b64 v1, v[36:37]")
    a(f"ds_write_b32 v27, v36 offset:{STV - CSF}")
    a(f"ds_write_b32 v27, v37 offset:{STV - CSF + 512}")
    a("s_waitcnt lgkmcnt(0)")
    a("s_barrier")
    k.stamp(4)
    a("s_branch L_p1_done")
    a.label("L_p1_c")
    sTH, sNH = k.sTG, k.sNH
    a(f"s_and_b32 s{sTH}, s{S_W}, 1")
    a(f"s_bfe_u32 s{sNH}, s{S_W}, 0x10001")
    a(f"s_cmp_ge_u32 s{k.sCT}, 5")
    a(f"s_cselect_b32 s{T0}, 5, 0")
    a(f"s_sub_u32 s{T0}, s{k.sCT}, s{T0}")
    a(f"s_lshl_b32 s{T0}, s{T0}, 1")
    a(f"s_add_u32 s{T0}, s{T0}, s{sNH}")
    for idx in range(10):
        a(f"s_cmp_eq_u32 s{T0}, {idx}")
        a(f"s_cbranch_scc1 L_tab{idx}")
    a(f"s_mul_i32 s{T1}, s{sNH}, 0x10101010")
    for q in range(4): a(f"s_add_u32 s{k.sTAB+q}, s{T1}, 0x%08x" % (0x03020100 + 0x04040404 * q))
    a(f"s_mov_b32 s{k.sTAB+4}, 0")
    a(f"s_mov_b32 s{k.sTAB+5}, 0")
    a("s_branch L_tabdone")
    for idx in range(10):
        a.label(f"L_tab{idx}")
        for q, d in enumerate(p1_table(idx // 2, idx % 2)): a(f"s_mov_b32 s{k.sTAB+q}, 0x%08x" % d)
        if idx < 9: a("s_branch L_tabdone")
    a.label("L_tabdone")
    a("v_and_b32 v1, 31, v0")
    a(f"s_lshl_b32 s{T0}, s{sTH}, 6")
    a(f"v_add_u32 v2, s{T0}, v1")
    a("v_bfe_u32 v3, v2, 1, 3")
    a("v_lshrrev_b32 v4, 5, v0")
    a("v_xor_b32 v3, v3, v4")
    a("v_lshlrev_b32 v3, 4, v3")
    a(f"v_lshl_add_u32 v{XA}, v2, 7, v3")
    for ks in range(1, 4): a(f"v_xor_b32 v{XA+ks}, {ks<<5}, v{XA}")
    a(f"v_lshlrev_b32 v87, 3, v2")
    a(f"v_add_u32 v87, {STF}, v87")
    a("v_bfe_u32 v5, v0, 2, 2")
    a("v_lshl_add_u32 v6, v4, 3, v5")
    a("v_lshlrev_b32 v6, 8, v6")
    a("v_and_b32 v7, 3, v0")
    a("v_lshlrev_b32 v7, 3, v7")
    a("v_and_b32 v8, 16, v0")
    a("v_cmp_ne_u32 vcc, 0, v8")
    for i in range(2):
        a(f"v_mov_b32 v8, s{k.sTAB+2*i}")
        a(f"v_mov_b32 v9, s{k.sTAB+2*i+1}")
        a("v_cndmask_b32 v8, v8, v9, vcc")
        a("v_bfe_u32 v8, v8, v7, 8")
        a("v_lshlrev_b32 v8, 3, v8")
        a("v_lshlrev_b32 v9, 6, v5")
        a("v_xor_b32 v8, v8, v9")
        a(f"v_add_u32 v{WA+i}, v6, v8")
    a(f"s_lshl_b32 s{T0}, s{k.sRB}, 2")
    a(f"s_lshl_b32 s{T1}, s{sTH}, 1")
    a(f"s_add_u32 s{T0}, s{T0}, s{T1}")
    a(f"s_cmp_ge_u32 s{k.sCT}, 10")
    a("s_cbranch_scc1 L_p1_vaddr")
    a(f"s_lshl_b32 s{T0}, s{T0}, 9")
    a(f"s_cmp_ge_u32 s{k.sCT}, 5")
    a(f"s_cselect_b32 s{T1}, {WS_K}, {WS_Q}")
    a(f"s_add_u32 s{T0}, s{T0}, s{T1}")
    a(f"v_lshl_add_u32 v2, v1, 4, s{T0}")
    a("v_lshlrev_b32 v3, 3, v4")
    a("v_add_u32 v5, 16, v3")
    a(f"v_mov_b32 v7, {CSF}")
    for i in range(2):
        for qq in range(2):
            a(f"v_bfe_u32 v6, s{k.sTAB+4+i}, v{3 if qq == 0 else 5}, 8")
            a(f"v_lshl_add_u32 v{STA+2*i+qq}, v6, 15, v2")
        for q4 in range(4):
            a(f"v_bfe_u32 v6, s{k.sTAB+2*i+q4//2}, v{3 if q4 % 2 == 0 else 5}, 8")
            a(f"v_lshl_add_u32 v{CSA+4*i+q4}, v6, 4, v7")
    a("s_branch L_p1_addrdone")
    a.label("L_p1_vaddr")
    a(f"s_mul_i32 s{T0}, s{T0}, 1280")
    a(f"s_add_u32 s{T0}, s{T0}, {WS_V}")
    a(f"s_lshl_b32 s{T1}, s{k.sCT}, 7")
    a(f"s_lshl_b32 s{T2}, s{sNH}, 6")
    a(f"s_add_u32 s{T1}, s{T1}, s{T2}")
    a(f"s_sub_u32 s{T1}, s{T1}, 1280")
    a(f"v_mov_b32 v{STA+2}, 0")
    a(f"v_mov_b32 v{STA+3}, 0")
    a(f"s_lshl_b32 s{T2}, s{T2}, 2")
    a(f"s_add_u32 s{T2}, s{T2}, {CSF}")
    a(f"v_lshl_add_u32 v{CSA}, v1, 2, s{T2}")
    a(f"s_lshl_b32 s{T2}, s{sTH}, 8")
    a(f"s_add_u32 s{T2}, s{T2}, {STV}")
    a(f"v_lshl_add_u32 v{CSA+1}, v4, 4, s{T2}")
    a("v_mul_u32_u24 v3, 320, v4")
    a(f"v_add_u32 v3, s{T0}, v3")
    a(f"s_mov_b32 s{T2}, 81920")
    for i in range(2):
        a(f"v_add_u32 v5, s{T1}, v1")
        if i: a("v_add_u32 v5, 32, v5")
        a("v_mul_u32_u24 v6, 3277, v5")
        a("v_lshrrev_b32 v6, 16, v6")
        a("v_mul_u32_u24 v7, 20, v6")
        a("v_sub_u32 v5, v5, v7")
        a("v_lshl_add_u32 v5, v5, 4, v3")
        a(f"v_mad_u32_u24 v{STA+i}, v6, s{T2}, v5")
    a.label("L_p1_addrdone")
    for r in range(64): a(f"v_mov_b32 v{ACC+r}, 0")
    a(f"v_mov_b32 v{VXM}, 0x8000")
    a(f"s_mov_b32 s{k.sCNT}, 0")
    k.stamp(2)
    a("s_waitcnt vmcnt(0)")
    a("s_barrier")
    k.stamp(3)
    def rlist(ks):
        r = [f"ds_read_b128 {vr(XF+8*ks+4*t,4)}, v{XA+ks} offset:{4096*t}" for t in range(2)]
        for i in range(2):
            for rd in range(2): r.append(f"ds_read_b64_tr_b16 {vr(WF+8*ks+4*i+2*rd,2)}, v{WA+i} offset:{16384+ks*4096+rd*1024}")
        return r
    for ks in range(2):
        for x in rlist(ks): a(x)
    a(f"v_xor_b32 v{XA}, v{VXM}, v{XA}")
    a(f"v_xor_b32 v{XA+1}, v{VXM}, v{XA+1}")
    a(f"s_cmp_ge_u32 s{k.sCT}, 10")
    a("s_cbranch_scc1 L_p1_v")
    for vmode in (False, True):
        if vmode: a.label("L_p1_v")
        def mf(ks, i, t):
            x = vr(XF + 8 * ks + 4 * t, 4); w = vr(WF + 8 * ks + 4 * i, 4); acc = vr(ACC + 16 * (2 * i + t), 16)
            a(f"{M32} {acc}, {x}, {w}, {acc}" if vmode else f"{M32} {acc}, {w}, {x}, {acc}")
        def comp(ks, rd=True, bar=False, wait=6, mid=None):
            k.jit(2)
            n = (ks + 2) % 4
            r = rlist(n) if rd else []
            a(f"s_waitcnt lgkmcnt({wait})")
            for m, (i, t) in enumerate(((0, 0), (0, 1), (1, 0), (1, 1))):
                mf(ks, i, t)
                if m == 0 and bar: a("s_barrier")
                if m == 0 and mid: mid()
                for x in r[2 * m: 2 * m + 2]: a(x)
                if m == 3 and rd:
                    a(f"v_xor_b32 v{XA+n}, v{VXM}, v{XA+n}")
                    if n == 3:
                        for i2 in range(2): a(f"v_xor_b32 v{WA+i2}, v{VXM}, v{WA+i2}")
                        a(f"v_xor_b32 v{VXM}, 0x10000, v{VXM}")
        L = a.newlabel("p1loop")
        a.align(3)
        a.label(L)
        comp(0); comp(1); comp(2, bar=True); comp(3)
        a(f"s_add_u32 s{k.sCNT}, s{k.sCNT}, 1")
        a(f"s_cmp_lt_u32 s{k.sCNT}, 9")
        a(f"s_cbranch_scc1 {L}")
        comp(0); comp(1)
        def terms():
            a(f"v_mov_b32 v1, {NON}")
            a(f"ds_read_b64 v[{k.VN+116}:{k.VN+117}], v1".replace(f"{k.VN+116}:{k.VN+117}", "2:3"))
            if vmode:
                a(f"ds_read_b32 v12, v{CSA}")
                a(f"ds_read_b32 v13, v{CSA} offset:128")
                for t in range(2):
                    for q4 in range(4):
                        a(f"ds_read_b128 {vr(EP+32*t+4*q4,4)}, v{CSA+1} offset:{128*t+32*q4}")
                        a(f"ds_read_b128 {vr(EP+32*t+16+4*q4,4)}, v{CSA+1} offset:{512+128*t+32*q4}")
            else:
                a("ds_read_b64 v[12:13], v87")
                a("ds_read_b64 v[14:15], v87 offset:256")
                for i in range(2):
                    for q4 in range(4): a(f"ds_read_b128 {vr(EP+4+16*i+4*q4,4)}, v{CSA+4*i+q4}")
        comp(2, rd=False, bar=True, mid=terms)
        comp(3, rd=False, wait=min(15, 19 if vmode else 11))
        k.stamp(4)
        a("s_waitcnt lgkmcnt(0)")
        a(f"v_readfirstlane_b32 s{S_NONCE}, v2")
        a(f"v_readfirstlane_b32 s{S_NONCE+1}, v3")
        a("s_nop 5")
        n = 0
        for i in range(2):
            for t in range(2):
                b = ACC + 16 * (2 * i + t)
                for g in range(2):
                    o = 4 + 4 * (n % 2); n += 1
                    for r in range(8 * g, 8 * g + 8, 2):
                        if vmode: a(f"v_pk_mul_f32 {vr(b+r,2)}, {vr(EP+32*t+r,2)}, {vr(b+r,2)}")
                        else: a(f"v_pk_mul_f32 {vr(b+r,2)}, {vr(12+2*t,2)}, {vr(b+r,2)} op_sel_hi:[0,1]")
                    for r in range(8 * g, 8 * g + 8, 2):
                        if vmode: a(f"v_pk_fma_f32 {vr(b+r,2)}, {vr(EP+32*t+16+r,2)}, v[12:13], {vr(b+r,2)} op_sel:[0,{i},0] op_sel_hi:[1,{i},1] neg_lo:[1,0,0] neg_hi:[1,0,0]")
                        else: a(f"v_pk_fma_f32 {vr(b+r,2)}, {vr(12+2*t,2)}, {vr(EP+4+16*i+r,2)}, {vr(b+r,2)} op_sel:[1,0,0] op_sel_hi:[1,1,1] neg_lo:[1,0,0] neg_hi:[1,0,0]")
                    for r in range(4): a(f"v_cvt_pk_bf16_f32 v{o+r}, v{b+8*g+2*r}, v{b+8*g+2*r+1}")
                    if vmode: a(f"buffer_store_dwordx4 v[{o}:{o+3}], v{STA+i}, {WS}, 0 offen offset:{640*g+1280*t} sc1")
                    else: a(f"buffer_store_dwordx4 v[{o}:{o+3}], v{STA+2*i+g}, {WS}, 0 offen offset:{512*t} sc1")
        if not vmode: a("s_branch L_p1_done")
```

```python
import sys, math
from asmlib import Asm, vr, sr, f2u, check
from tables import *

NAME = "sequential_preLN__mha_block__dense_activation_silu__prompt"
LDS_BYTES = 163840
SPIN_MAX = 200000

S_G = 2
SRD_X, SRD_WQ, SRD_WS, SRD_OUT, SRD_DBG, SRD_RL = 4, 8, 12, 16, 20, 24
S_W, S_C, S_J = 28, 29, 30
S_NONCE = 32
S_PTR = 36
T0, T1, T2, T3, T4, T5 = 54, 55, 56, 57, 58, 59
S_M1 = 60
S_SPIN = 62

class K:
    def __init__(self, stop_after=99, opts=None):
        self.a = Asm()
        self.stop = stop_after
        self.o = opts or {}
        self.pad = 0
        self._sides = []; self._late1 = []; self._tail = []

    def srd(self, d, ptr, nbytes):
        a = self.a
        a(f"s_mov_b32 s{d}, s{ptr}")
        a(f"s_and_b32 s{d+1}, s{ptr+1}, 0xffff")
        a(f"s_mov_b32 s{d+2}, {nbytes}")
        a(f"s_mov_b32 s{d+3}, 0x20000")

    def stamp(self, idx):
        if idx: self.jit(4)
        if not self.o.get("stamps"): return
        if self.o["stamps"] == "min" and idx not in (0, 9, 10, 31): return
        a = self.a
        a("s_memrealtime s[100:101]")
        a("s_waitcnt lgkmcnt(0)")
        a(f"v_writelane_b32 v255, s100, {idx}")
        if idx < 22 and self.o["stamps"] != "min":
            a("s_memtime s[100:101]")
            a("s_waitcnt lgkmcnt(0)")
            a(f"v_writelane_b32 v255, s100, {idx+32}")

    def stamp_dyn(self, base, sreg):
        if not self.o.get("its"): return
        a = self.a
        a("s_memtime s[100:101]")
        a("s_mov_b32 s99, m0")
        a(f"s_add_u32 m0, s{sreg}, {base}")
        a("s_waitcnt lgkmcnt(0)")
        a("v_writelane_b32 v255, s100, m0")
        a("s_mov_b32 m0, s99")

    def stamp_flush(self):
        if not self.o.get("stamps"): return
        a = self.a
        if self.o.get("dbgwg"):
            L = a.newlabel("dbg")
            a(f"s_cmp_lg_u32 s{S_G}, {int(self.o['dbgwg'])}")
            a(f"s_cbranch_scc1 {L}")
            a(f"s_cmp_lg_u32 s{S_W}, 0")
            a(f"s_cbranch_scc1 {L}")
            a(f"v_readlane_b32 s{T1}, v255, 0")
            for n, i in enumerate((3, 4, 7, 8, 9, 10, 12, 13, 15, 16, 18, 19, 31)):
                a(f"v_readlane_b32 s{T0}, v255, {i}")
                a("s_nop 3")
                a(f"s_sub_u32 s{T0}, s{T0}, s{T1}")
                a(f"v_mov_b32 v1, s{T0}")
                a(f"v_mov_b32 v2, {8+4*n}")
                a(f"buffer_store_dword v1, v2, s[{SRD_DBG}:{SRD_DBG+3}], 0 offen")
            a.label(L)
            return
        a(f"s_lshl_b32 s{T0}, s{S_G}, 3")
        a(f"s_add_u32 s{T0}, s{T0}, s{S_W}")
        a(f"s_lshl_b32 s{T0}, s{T0}, 8")
        a(f"s_add_u32 s{T0}, s{T0}, {WS_SIZE}")
        a("v_lshlrev_b32 v1, 2, v0")
        a(f"buffer_store_dword v255, v1, s[{SRD_WS}:{SRD_WS+3}], s{T0} offen")
        a("s_mov_b64 exec, -1")

    def hold(self, key):
        if not self.o.get(key): return
        a = self.a
        L = a.newlabel("hold")
        a.label(L)
        a("s_memrealtime s[100:101]")
        a("s_waitcnt lgkmcnt(0)")
        a(f"s_sub_u32 s100, s100, s{S_NONCE}")
        a(f"s_cmp_lt_u32 s100, {int(float(self.o[key]) * 100)}")
        a(f"s_cbranch_scc1 {L}")

    def jit(self, bits=3):
        if not self.o.get("jit"): return
        a = self.a
        L = a.newlabel("jit"); Ld = a.newlabel("jitd")
        a("s_mul_i32 s35, s35, 1103515245")
        a("s_add_u32 s35, s35, 12345")
        a(f"s_bfe_u32 s34, s35, {0x10000 * (bits + 2) + 16}")
        a(f"s_sub_u32 s34, s34, {3 << bits}")
        a(f"s_cbranch_scc1 {Ld}")
        a.label(L)
        a("s_sleep 3")
        a("s_sub_u32 s34, s34, 1")
        a(f"s_cbranch_scc0 {L}")
        a.label(Ld)

    def diag(self, what):
        if self.o.get("diag") == what: self.a("s_mov_b32 s35, 1")

    def dma(self, voff, srd, soff, flags=""):
        if self.o.get("nodma"): return
        self.a(f"buffer_load_dwordx4 v{voff}, s[{srd}:{srd+3}], {soff} offen {flags} lds".replace("  ", " "))

    def flag_prep(self, vt):
        a = self.a
        a(f"v_mov_b32 v{vt}, s{S_NONCE}")
        a(f"v_mov_b32 v{vt+1}, s{S_NONCE+1}")
        a(f"v_mov_b32 v{vt+2}, 0")

    def flag_store(self, s_off, vt, pol="sc1", prepped=False, who=0):
        a = self.a
        L = a.newlabel("nofl")
        a(f"s_cmp_lg_u32 s{S_W}, {who}")
        a(f"s_cbranch_scc1 {L}")
        if not prepped: self.flag_prep(vt)
        a("s_mov_b64 exec, 1")
        a(f"buffer_store_dwordx2 v[{vt}:{vt+1}], v{vt+2}, s[{SRD_WS}:{SRD_WS+3}], s{s_off} offen {pol}")
        a("s_mov_b64 exec, -1")
        a.label(L)

    def poll(self, n, s_off, spacing, vt, only_wave0=True, who=0):
        a = self.a
        L = a.newlabel("poll"); Ld = a.newlabel("polld")
        if only_wave0:
            a(f"s_cmp_lg_u32 s{S_W}, {who}")
            a(f"s_cbranch_scc1 {Ld}")
        a(f"s_mov_b32 s{S_SPIN}, 0")
        if n == 256:
            assert spacing == 8
            a(f"v_lshlrev_b32 v{vt+8}, 4, v0")
            a.label(L)
            a(f"buffer_load_dwordx4 v[{vt}:{vt+3}], v{vt+8}, s[{SRD_WS}:{SRD_WS+3}], s{s_off} offen sc1")
            a(f"buffer_load_dwordx4 v[{vt+4}:{vt+7}], v{vt+8}, s[{SRD_WS}:{SRD_WS+3}], s{s_off} offen offset:1024 sc1")
            a(f"s_add_u32 s{S_SPIN}, s{S_SPIN}, 1")
            a("s_waitcnt vmcnt(0)")
            a(f"v_cmp_ne_u64 vcc, s[{S_NONCE}:{S_NONCE+1}], v[{vt}:{vt+1}]")
            a(f"v_cmp_ne_u64 s[{S_M1}:{S_M1+1}], s[{S_NONCE}:{S_NONCE+1}], v[{vt+2}:{vt+3}]")
            a("s_nop 0")
            a(f"s_or_b64 s[{T4}:{T5}], vcc, s[{S_M1}:{S_M1+1}]")
            a(f"v_cmp_ne_u64 vcc, s[{S_NONCE}:{S_NONCE+1}], v[{vt+4}:{vt+5}]")
            a(f"v_cmp_ne_u64 s[{S_M1}:{S_M1+1}], s[{S_NONCE}:{S_NONCE+1}], v[{vt+6}:{vt+7}]")
            a("s_nop 0")
            a(f"s_or_b64 s[{T4}:{T5}], s[{T4}:{T5}], vcc")
            a(f"s_or_b64 s[{T4}:{T5}], s[{T4}:{T5}], s[{S_M1}:{S_M1+1}]")
        else:
            a(f"v_and_b32 v{vt+2}, {n-1}, v0")
            a(f"v_mul_u32_u24 v{vt+2}, {spacing}, v{vt+2}")
            a.label(L)
            a(f"buffer_load_dwordx2 v[{vt}:{vt+1}], v{vt+2}, s[{SRD_WS}:{SRD_WS+3}], s{s_off} offen sc1")
            a(f"s_add_u32 s{S_SPIN}, s{S_SPIN}, 1")
            a("s_waitcnt vmcnt(0)")
            a(f"v_cmp_ne_u64 vcc, s[{S_NONCE}:{S_NONCE+1}], v[{vt}:{vt+1}]")
            a("s_nop 0")
            a(f"s_or_b64 s[{T4}:{T5}], vcc, vcc")
        a(f"s_cbranch_scc0 {Ld}")
        if self.o.get("psleep"): a(f"s_sleep {int(self.o['psleep'])}")
        a(f"s_cmp_lt_u32 s{S_SPIN}, {SPIN_MAX}")
        a(f"s_cbranch_scc1 {L}")
        a.label(Ld)

    def pollp(self, n, s_off, spacing, va, vt, depth):
        a = self.a
        L = a.newlabel("poll"); Ld = a.newlabel("polld")
        N = f"s[{S_NONCE}:{S_NONCE+1}]"
        a(f"s_cmp_lg_u32 s{S_W}, 0")
        a(f"s_cbranch_scc1 {Ld}")
        a(f"s_mov_b32 s{S_SPIN}, 0")
        a(f"v_and_b32 v{va}, {n-1}, v0")
        a(f"v_mul_u32_u24 v{va}, {spacing}, v{va}")
        ld = lambda i: a(f"buffer_load_dwordx2 v[{vt+2*i}:{vt+2*i+1}], v{va}, s[{SRD_WS}:{SRD_WS+3}], s{s_off} offen sc1")
        for i in range(depth - 1):
            ld(i); a(f"s_sleep {int(self.o.get('psl', 2))}")
        a.label(L)
        for i in range(depth):
            ld((i + depth - 1) % depth)
            a(f"s_waitcnt vmcnt({depth-1})")
            a(f"v_cmp_ne_u64 vcc, {N}, v[{vt+2*i}:{vt+2*i+1}]")
            a(f"s_cbranch_vccz {Ld}")
        a(f"s_add_u32 s{S_SPIN}, s{S_SPIN}, 1")
        a(f"s_cmp_lt_u32 s{S_SPIN}, {SPIN_MAX}")
        a(f"s_cbranch_scc1 {L}")
        a.label(Ld)

    def poll2(self, va, vb, s_off, vt):
        a = self.a
        L = a.newlabel("poll"); Ld = a.newlabel("polld")
        N = f"s[{S_NONCE}:{S_NONCE+1}]"
        a(f"s_cmp_lg_u32 s{S_W}, 0")
        a(f"s_cbranch_scc1 {Ld}")
        a(f"s_mov_b32 s{S_SPIN}, 0")
        a.label(L)
        a(f"buffer_load_dwordx2 v[{vt}:{vt+1}], v{va}, s[{SRD_WS}:{SRD_WS+3}], s{s_off} offen sc1")
        a(f"buffer_load_dwordx2 v[{vt+2}:{vt+3}], v{vb}, s[{SRD_WS}:{SRD_WS+3}], s{s_off} offen sc1")
        a(f"s_add_u32 s{S_SPIN}, s{S_SPIN}, 1")
        a("s_waitcnt vmcnt(0)")
        a(f"v_cmp_ne_u64 vcc, {N}, v[{vt}:{vt+1}]")
        a(f"v_cmp_ne_u64 s[{S_M1}:{S_M1+1}], {N}, v[{vt+2}:{vt+3}]")
        a("s_nop 0")
        a(f"s_or_b64 vcc, vcc, s[{S_M1}:{S_M1+1}]")
        a(f"s_cbranch_scc0 {Ld}")
        if self.o.get("psleep"): a(f"s_sleep {int(self.o['psleep'])}")
        a(f"s_cmp_lt_u32 s{S_SPIN}, {SPIN_MAX}")
        a(f"s_cbranch_scc1 {L}")
        a.label(Ld)

    def entry(self):
        a = self.a
        a(f"s_cmp_ge_u32 s{S_G}, 256")
        a("s_cbranch_scc1 L_end")
        a(f"s_load_dwordx2 s[{SRD_X}:{SRD_X+1}], s[0:1], 0")
        a(f"s_load_dwordx2 s[{SRD_WQ}:{SRD_WQ+1}], s[0:1], 8")
        a(f"s_load_dwordx2 s[{SRD_DBG}:{SRD_DBG+1}], s[0:1], 56")
        a(f"s_load_dwordx16 s[{S_PTR}:{S_PTR+15}], s[0:1], 0")
        a(f"s_load_dwordx2 s[{S_PTR+16}:{S_PTR+17}], s[0:1], 64")
        a(f"s_memrealtime s[{S_NONCE}:{S_NONCE+1}]")
        if self.o.get("stamps"): a("v_mov_b32 v255, 0")
        self.stamp(0)
        a("v_lshrrev_b32 v1, 6, v0")
        a("v_and_b32 v0, 63, v0")
        a(f"v_readfirstlane_b32 s{S_W}, v1")
        a(f"s_and_b32 s{S_C}, s{S_G}, 7")
        a(f"s_lshr_b32 s{S_J}, s{S_G}, 3")
        if self.o.get("cpfe", "1") == "1": self.code_prefetch(int(self.o.get("cpfw", 1)))

    def code_prefetch(self, wave):
        a = self.a
        if self.o.get("cpf", "1") != "1": return
        Lc = a.newlabel("cpf")
        a(f"s_cmp_lg_u32 s{S_W}, {wave}")
        a(f"s_cbranch_scc1 {Lc}")
        a(f"s_getpc_b64 s[{T4}:{T5}]")
        a.label("L_pc_here")
        a(f"s_mul_i32 s{T0}, s{S_J}, {self.CPF_LINES*128}")
        a(f"s_sub_u32 s{T0}, s{T0}, L_pc_here-{NAME}_kernel")
        a(f"v_lshl_add_u32 v3, v0, 7, s{T0}")
        a("v_ashrrev_i32 v5, 31, v3")
        a(f"v_mov_b32 v6, s{T5}")
        a(f"v_add_co_u32 v4, vcc, s{T4}, v3")
        a(f"s_mov_b64 exec, {(1 << self.CPF_LINES) - 1}")
        a("s_nop 0")
        a("v_addc_co_u32 v5, vcc, v5, v6, vcc")
        a("global_load_dword v254, v[4:5], off")
        a("s_mov_b64 exec, -1")
        a.label(Lc)

    ACC = 16; XF = 160; WF = 176; XA = 72; WA = 144; DXA, DXB, DW = 78, 79, 80; VXM = 76
    ONES = 82
    CQ = 96
    CQA = 81; CSW = 85
    PGA, PGV, PGR, PGD = 116, 117, 118, 119
    RSA, RS = 84, 128
    STA = 86
    RLV, RLA = 157, 158
    VN = 92
    sRB, sCT, sKC, sXO, sWO, sSLOT, sCNT, sXM, sTG, sNH = 64, 65, 66, 67, 68, 69, 70, 71, 72, 73
    sTAB = 74
    sM0X = 80; sWO2 = 81; sKC0 = 82; sSIDE = 83; sXB = 71; sWB = 69
    sRL = 84
    P1_MISC = 148 * 1024
    RL_SCR = 68 * 1024
    CQ_SCR = 128 * 1024
    DUMMY = 159 * 1024
    CPF_LINES = 8

    def p1_issue(self, pieces=(0, 1, 2, 3)):
        a = self.a
        if 0 in pieces:
            a(f"s_mov_b32 m0, s{self.sM0X}")
            a(f"s_add_u32 s{self.sM0X}, s{self.sM0X}, 32768")
            self.dma(self.DXA, SRD_X, f"s{self.sXO}")
        if 1 in pieces:
            a("s_add_u32 m0, m0, 16384")
            a(f"s_add_u32 s{self.sWO2}, s{self.sWO}, 15360")
            self.dma(self.DW, SRD_WQ, f"s{self.sWO}")
        if 2 in pieces:
            a("s_sub_u32 m0, m0, 15360")
            a(f"s_add_u32 s{self.sWO}, s{self.sWO}, 245760")
            self.dma(self.DXB, SRD_X, f"s{self.sXO}")
        if 3 in pieces:
            a("s_add_u32 m0, m0, 16384")
            a(f"s_add_u32 s{self.sXO}, s{self.sXO}, 128")
            self.dma(self.DW, SRD_WQ, f"s{self.sWO2}")
            a(f"s_and_b32 s{self.sM0X}, s{self.sM0X}, 0x1ffff")
            a(f"s_sub_u32 s{self.sKC}, s{self.sKC}, 1")
            a(f"s_cmov_b32 s{self.sXO}, s{self.sXB}")
            a(f"s_cmov_b32 s{self.sWO}, s{self.sWB}")

    def p1_setup_a(self):
        a = self.a
        a(f"s_lshr_b32 s{T0}, s{S_C}, 1")
        a(f"s_lshl_b32 s{T0}, s{T0}, 2")
        a(f"s_lshr_b32 s{T1}, s{S_J}, 3")
        a(f"s_add_u32 s{self.sRB}, s{T0}, s{T1}")
        a(f"s_and_b32 s{T0}, s{S_C}, 1")
        a(f"s_lshl_b32 s{T0}, s{T0}, 3")
        a(f"s_and_b32 s{T2}, s{S_J}, 7")
        a(f"s_add_u32 s{self.sCT}, s{T0}, s{T2}")
        g = int(self.o.get("rotg", 4))
        if g == 8:
            a(f"s_lshl_b32 s{T1}, s{T1}, 1")
            a(f"s_add_u32 s{self.sKC}, s{T2}, s{T1}")
            a(f"s_bfe_u32 s{T0}, s{S_C}, 0x10001")
            a(f"s_and_b32 s{T1}, s{S_C}, 4")
            a(f"s_lshl_b32 s{T1}, s{T1}, 1")
            a(f"s_add_u32 s{T0}, s{T0}, s{T1}")
            a(f"s_add_u32 s{self.sKC}, s{self.sKC}, s{T0}")
        else:
            bases, offs, shift = {3: ((0, 3, 7), (0, 1, 2, 6), 0), 4: ((0, 2, 5, 7), (0, 1, 2, 3), 0), 5: ((0, 2, 4, 6, 8), (0, 1, 0, 1), 1)}[g]
            a(f"s_add_u32 s{T1}, s{T1}, s{T2}")
            a(f"s_lshr_b32 s{T0}, s{S_C}, 1")
            if shift: a(f"s_add_u32 s{T1}, s{T1}, s{T0}")
            tab = sum(bases[i % g] << (4 * i) for i in range(16))
            a(f"s_lshl_b32 s{T1}, s{T1}, 2")
            a(f"s_mov_b32 s{T4}, 0x{tab & 0xffffffff:08x}")
            a(f"s_mov_b32 s{T5}, 0x{tab >> 32:08x}")
            a(f"s_lshr_b64 s[{T4}:{T5}], s[{T4}:{T5}], s{T1}")
            a(f"s_and_b32 s{self.sKC}, s{T4}, 15")
            a(f"s_lshl_b32 s{T0}, s{T0}, 2")
            a(f"s_lshr_b32 s{T0}, 0x{sum(o << (4 * i) for i, o in enumerate(offs)):04x}, s{T0}")
            a(f"s_and_b32 s{T0}, s{T0}, 15")
            a(f"s_add_u32 s{self.sKC}, s{self.sKC}, s{T0}")
            for ct in range(8):
                assert len({(bases[(ct + rl + shift * aa) % g] + offs[aa]) % 10 for aa in range(4) for rl in range(4)}) == 10
        a(f"s_mul_i32 s{T0}, s{self.sKC}, 26")
        a(f"s_lshr_b32 s{T0}, s{T0}, 8")
        a(f"s_mul_i32 s{T0}, s{T0}, 10")
        a(f"s_sub_u32 s{self.sKC}, s{self.sKC}, s{T0}")
        a(f"s_mov_b32 s{self.sKC0}, s{self.sKC}")
        a(f"s_mul_i32 s{self.sXB}, s{self.sRB}, 163840")
        a(f"s_lshl_b32 s{T0}, s{self.sKC}, 7")
        a(f"s_add_u32 s{self.sXO}, s{self.sXB}, s{T0}")
        a(f"s_mul_i32 s{self.sWO}, s{self.sKC}, 245760")
        a(f"s_lshl_b32 s{self.sWB}, s{self.sCT}, 8")
        a(f"s_add_u32 s{self.sWO}, s{self.sWO}, s{self.sWB}")
        a(f"s_lshl_b32 s{self.sM0X}, s{S_W}, 11")
        a(f"s_sub_u32 s{self.sKC}, 9, s{self.sKC}")
        a("v_lshrrev_b32 v1, 3, v0")
        a("v_lshrrev_b32 v2, 4, v0")
        a("v_and_b32 v3, 7, v0")
        a("v_xor_b32 v3, v3, v2")
        a(f"s_lshl_b32 s{T0}, s{S_W}, 4")
        a(f"v_add_u32 v4, s{T0}, v1")
        a("v_mul_u32_u24 v4, 1280, v4")
        a(f"v_lshl_add_u32 v{self.DXA}, v3, 4, v4")
        a(f"v_xor_b32 v{self.DXB}, 64, v{self.DXA}")
        a(f"v_add_u32 v{self.DXB}, 10240, v{self.DXB}")
        a("v_lshlrev_b32 v3, 2, v2")
        a("v_and_b32 v4, 15, v0")
        a("v_xor_b32 v3, v3, v4")
        a(f"s_lshl_b32 s{T0}, s{S_W}, 3")
        a(f"v_add_u32 v4, s{T0}, v2")
        a("v_mul_u32_u24 v4, 3840, v4")
        a(f"v_lshl_add_u32 v{self.DW}, v3, 4, v4")
        for d, n in ((SRD_X, 2048 * 1280), (SRD_WQ, 640 * 3840), (SRD_DBG, 256)):
            a(f"s_mov_b32 s{d+2}, {n}")
            a(f"s_mov_b32 s{d+3}, 0x20000")
        a("s_waitcnt lgkmcnt(0)")
        if self.o.get("jit"):
            a(f"s_mul_i32 s35, s{S_G}, 977")
            a(f"s_mul_i32 s34, s{S_W}, 7919")
            a("s_add_u32 s35, s35, s34")
            a(f"s_add_u32 s35, s35, s{S_NONCE}")
        if self.o.get("fixown"): a(f"s_mov_b32 s31, s{S_NONCE}")
        if self.o.get("diag"): a("s_mov_b32 s35, 0")
        a(f"s_or_b32 s{T0}, s{S_G}, s{S_W}")
        a("s_cbranch_scc0 L_nonce_pub")
        a.label("L_nonce_done")
        a(f"s_cmp_eq_u32 s{self.sCT}, 15")
        a("s_cbranch_scc1 L_p1_noissue")
        self.p1_issue()
        if self.o.get("first5", "1") == "1" and self.o.get("p1v", "2") != "2": self.p1_issue((0,))
        a.label("L_p1_noissue")
        self.stamp(1)
        self.srd(SRD_WS, S_PTR + 16, WS_SIZE + ((1 << 20) if self.o.get("stamps") else 0))
        self.srd(SRD_OUT, S_PTR + 12, 2048 * 1280)
        a(f"s_mov_b64 s[{SRD_RL}:{SRD_RL+1}], 0")
        a(f"s_mov_b32 s{SRD_RL+2}, 0")
        a(f"s_mov_b32 s{SRD_RL+3}, 0x20000")
        a(f"v_mov_b32 v{self.RLV}, 0")
        if self.o.get("cpfe", "1") != "1": self.code_prefetch(7)

    def relayout_setup(self):
        a = self.a
        R = self.sRL
        u = a.newlabel("u")
        sID, sKS, sCB, sST, sA, sB, sCc, sD = T0, T1, T2, T3, 93, 94, 95, 96
        sBase, sSl, sKsS = 97, 98, 99
        a(f"s_mul_i32 s{sID}, s{S_G}, 5")
        a(f"s_add_u32 s{sID}, s{sID}, s{S_W}")
        a(f"s_sub_u32 s{sID}, s{sID}, 1")
        a(f"s_min_u32 s{sID}, s{sID}, 1279")
        a(f"s_mov_b32 s{sA}, 16")
        a(f"s_mov_b32 s{sB}, 8")
        a(f"s_mov_b32 s{sCc}, 4")
        a(f"s_mov_b32 s{SRD_RL+3}, 0x20000")
        a(f"s_mov_b32 s{R+8}, -1")
        a(f"s_cmp_lt_u32 s{sID}, 200")
        a(f"s_cbranch_scc1 L_rl_wo{u}")
        a(f"s_cmp_lt_u32 s{sID}, 740")
        a(f"s_cbranch_scc1 L_rl_w1{u}")
        a(f"s_sub_u32 s{sID}, s{sID}, 740")
        a(f"s_mul_i32 s{sKS}, s{sID}, 6554")
        a(f"s_lshr_b32 s{sKS}, s{sKS}, 16")
        a(f"s_mul_i32 s{sCB}, s{sKS}, 10")
        a(f"s_sub_u32 s{sCB}, s{sID}, s{sCB}")
        a(f"s_lshl_b32 s{sD}, s{sKS}, 5")
        a(f"s_mov_b32 s{SRD_RL}, s{S_PTR+10}")
        a(f"s_and_b32 s{SRD_RL+1}, s{S_PTR+11}, 0xffff")
        a(f"s_mov_b32 s{SRD_RL+2}, {1728*1280}")
        a(f"s_mov_b32 s{sBase}, {WS_W2}")
        a(f"s_mov_b32 s{sSl}, {54*5120}")
        a(f"s_cmp_ge_u32 s{sKS}, 48")
        a(f"s_cselect_b32 s{sA}, 4, 16")
        a(f"s_cselect_b32 s{sB}, 16, 8")
        a(f"s_cselect_b32 s{sCc}, 8, 4")
        a(f"s_add_u32 s{T4}, s{sKS}, 3")
        a(f"s_cmp_ge_u32 s{sKS}, 24")
        a(f"s_cselect_b32 s{T4}, s{T4}, s{sKS}")
        a(f"s_sub_u32 s{T5}, s{sKS}, 24")
        a(f"s_cmp_ge_u32 s{sKS}, 48")
        a(f"s_cselect_b32 s{T4}, s{T5}, s{T4}")
        a(f"s_cmp_ge_u32 s{sKS}, 51")
        a(f"s_cselect_b32 s{sKS}, s{sKS}, s{T4}")
        a(f"s_branch L_rl_n640{u}")
        a.label(f"L_rl_wo{u}")
        a(f"s_mul_i32 s{sKS}, s{sID}, 6554")
        a(f"s_lshr_b32 s{sKS}, s{sKS}, 16")
        a(f"s_mul_i32 s{sCB}, s{sKS}, 10")
        a(f"s_sub_u32 s{sCB}, s{sID}, s{sCB}")
        a(f"s_mul_i32 s{sD}, s{sKS}, 40")
        a(f"s_mul_i32 s{sST}, s{sKS}, 160")
        a(f"s_sub_u32 s{sST}, s{sST}, {160*16-16}")
        a(f"s_cmp_lt_u32 s{sKS}, 16")
        a(f"s_cselect_b32 s{sD}, s{sD}, s{sST}")
        a(f"s_cselect_b32 s{sA}, 8, 20")
        a(f"s_cselect_b32 s{sB}, 20, 0x50")
        a(f"s_cselect_b32 s{sCc}, 4, 40")
        a(f"s_mov_b32 s{SRD_RL}, s{S_PTR+4}")
        a(f"s_and_b32 s{SRD_RL+1}, s{S_PTR+5}, 0xffff")
        a(f"s_mov_b32 s{SRD_RL+2}, {640*1280}")
        a(f"s_mov_b32 s{sBase}, {WS_WO}")
        a(f"s_mov_b32 s{sSl}, {20*5120}")
        a(f"s_add_u32 s{T4}, s{sKS}, 2")
        a(f"s_cmp_ge_u32 s{sKS}, 8")
        a(f"s_cselect_b32 s{T4}, s{T4}, s{sKS}")
        a(f"s_sub_u32 s{T5}, s{sKS}, 8")
        a(f"s_cmp_ge_u32 s{sKS}, 16")
        a(f"s_cselect_b32 s{T4}, s{T5}, s{T4}")
        a(f"s_cmp_ge_u32 s{sKS}, 18")
        a(f"s_cselect_b32 s{sKS}, s{sKS}, s{T4}")
        a(f"s_sub_u32 s{T4}, s{sKS}, 1")
        a(f"s_cmp_ge_u32 s{sKS}, 10")
        a(f"s_cselect_b32 s{T4}, s{T4}, s{sKS}")
        a(f"s_cmp_eq_u32 s{sKS}, 9")
        a(f"s_cselect_b32 s{T4}, 18, s{T4}")
        a(f"s_cmp_eq_u32 s{sKS}, 19")
        a(f"s_cselect_b32 s{sKS}, 19, s{T4}")
        a.label(f"L_rl_n640{u}")
        a(f"s_mov_b32 s{sST}, 1280")
        a(f"s_mul_i32 s{sKsS}, s{sKS}, 5120")
        a(f"s_add_u32 s{sBase}, s{sBase}, s{sKsS}")
        for t in range(4):
            a(f"s_lshl_b32 s{T4}, s{sCB}, 2")
            a(f"s_add_u32 s{T4}, s{T4}, {t}")
            a(f"s_mul_i32 s{T5}, s{T4}, 52")
            a(f"s_lshr_b32 s{T5}, s{T5}, 8")
            a(f"s_mul_i32 s{R+4+t}, s{T5}, s{sSl}")
            a(f"s_mul_i32 s{T5}, s{T5}, 5")
            a(f"s_sub_u32 s{T4}, s{T4}, s{T5}")
            a(f"s_lshl_b32 s{T4}, s{T4}, 10")
            a(f"s_add_u32 s{R+4+t}, s{R+4+t}, s{T4}")
            a(f"s_add_u32 s{R+4+t}, s{R+4+t}, s{sBase}")
        a(f"s_branch L_rl_common{u}")
        a.label(f"L_rl_w1{u}")
        a(f"s_sub_u32 s{sID}, s{sID}, 200")
        a(f"s_mul_i32 s{sKS}, s{sID}, 2428")
        a(f"s_lshr_b32 s{sKS}, s{sKS}, 16")
        a(f"s_mul_i32 s{sCB}, s{sKS}, 27")
        a(f"s_sub_u32 s{sCB}, s{sID}, s{sCB}")
        a(f"s_lshr_b32 s{T4}, s{sKS}, 1")
        a(f"s_mul_i32 s{T4}, s{T4}, 0x50")
        a(f"s_and_b32 s{T5}, s{sKS}, 1")
        a(f"s_lshl_b32 s{T5}, s{T5}, 5")
        a(f"s_add_u32 s{sD}, s{T4}, s{T5}")
        a(f"s_mul_i32 s{T4}, s{sKS}, 160")
        a(f"s_sub_u32 s{T4}, s{T4}, {160*16-64}")
        a(f"s_cmp_lt_u32 s{sKS}, 16")
        a(f"s_cselect_b32 s{sD}, s{sD}, s{T4}")
        a(f"s_cselect_b32 s{sA}, 16, 4")
        a(f"s_cselect_b32 s{sB}, 8, 0x50")
        a(f"s_cselect_b32 s{sCc}, 4, 8")
        a(f"s_mov_b32 s{SRD_RL}, s{S_PTR+8}")
        a(f"s_and_b32 s{SRD_RL+1}, s{S_PTR+9}, 0xffff")
        a(f"s_mov_b32 s{SRD_RL+2}, {640*3456}")
        a(f"s_mov_b32 s{sST}, 3456")
        a(f"s_mul_i32 s{sKsS}, s{sKS}, 7168")
        a(f"s_add_u32 s{sBase}, s{sKsS}, {WS_W1}")
        a(f"s_mul_i32 s{R+8}, s{sKS}, {1728*4}")
        a(f"s_lshl_b32 s{T4}, s{sCB}, 8")
        a(f"s_add_u32 s{R+8}, s{R+8}, s{T4}")
        a(f"s_add_u32 s{R+8}, s{R+8}, {WS_CS1}")
        for t in range(4):
            a(f"s_lshl_b32 s{T4}, s{sCB}, 2")
            a(f"s_add_u32 s{T4}, s{T4}, {t}")
            a(f"s_mul_i32 s{T5}, s{T4}, 43")
            a(f"s_lshr_b32 s{T5}, s{T5}, 8")
            a(f"s_mul_i32 s{sSl}, s{T5}, 6")
            a(f"s_sub_u32 s{sSl}, s{T4}, s{sSl}")
            a(f"s_sub_u32 s{sKsS}, s{T4}, 96")
            a(f"s_cmp_lt_u32 s{T4}, 96")
            a(f"s_cselect_b32 s{T5}, s{T5}, s{sKsS}")
            a(f"s_cselect_b32 s{sSl}, s{sSl}, 6")
            a(f"s_mul_i32 s{R+4+t}, s{T5}, {20*7168}")
            a(f"s_lshl_b32 s{sSl}, s{sSl}, 10")
            a(f"s_add_u32 s{R+4+t}, s{R+4+t}, s{sSl}")
            a(f"s_add_u32 s{R+4+t}, s{R+4+t}, s{sBase}")
        a.label(f"L_rl_common{u}")
        a(f"s_mul_i32 s{sD}, s{sD}, s{sST}")
        a(f"s_lshl_b32 s{T4}, s{sCB}, 7")
        a(f"s_add_u32 s{R}, s{sD}, s{T4}")
        a(f"s_mul_i32 s{sA}, s{sA}, s{sST}")
        a(f"s_mul_i32 s{sB}, s{sB}, s{sST}")
        a(f"s_add_u32 s{R+1}, s{R}, s{sB}")
        a(f"s_add_u32 s{R+2}, s{R}, s{sA}")
        a(f"s_add_u32 s{R+3}, s{R+2}, s{sB}")
        a("v_lshrrev_b32 v1, 5, v0")
        a(f"v_mul_u32_u24 v1, s{sCc}, v1")
        a("v_bfe_u32 v2, v0, 3, 2")
        a("v_add_u32 v1, v1, v2")
        a(f"v_mul_u32_u24 v1, s{sST}, v1")
        a("v_and_b32 v2, 7, v0")
        a(f"v_lshl_add_u32 v{self.RLV}, v2, 4, v1")
        a("v_lshrrev_b32 v1, 2, v0")
        a("v_lshlrev_b32 v1, 7, v1")
        a("v_and_b32 v2, 3, v0")
        a("v_lshl_add_u32 v1, v2, 3, v1")
        a(f"s_lshl_b32 s{T4}, s{S_W}, 12")
        a(f"s_add_u32 s{T4}, s{T4}, {self.RL_SCR-4096}")
        a(f"v_add_u32 v{self.RLA}, s{T4}, v1")

    def relayout_issue(self, drain_older=False):
        a = self.a
        L = a.newlabel("rlsk")
        a(f"s_sub_u32 s{T0}, s{S_W}, 1")
        a(f"s_cmp_ge_u32 s{T0}, {0 if self.o.get('norl') else 5}")
        a(f"s_cbranch_scc1 {L}")
        a(f"s_lshl_b32 s{T0}, s{S_W}, 12")
        a(f"s_add_u32 m0, s{T0}, {self.RL_SCR-4096}")
        for i in range(4):
            if i: a("s_add_u32 m0, m0, 1024")
            a("s_nop 0")
            self.dma(self.RLV, SRD_RL, f"s{self.sRL+i}")
        if drain_older:
            L2 = a.newlabel("rlw")
            a("s_waitcnt vmcnt(4)")
            a(f"s_branch {L2}")
            a.label(L)
            a("s_waitcnt vmcnt(0)")
            a.label(L2)
        else:
            a.label(L)

    def relayout_finish(self, younger=None):
        a = self.a
        L = a.newlabel("rlsk"); F = 168; t = 184
        a(f"s_sub_u32 s{T0}, s{S_W}, 1")
        a(f"s_cmp_ge_u32 s{T0}, 5")
        Lo = a.newlabel("rlo")
        a(f"s_cbranch_scc1 {Lo if younger is not None else L}")
        if younger is not None: a(f"s_waitcnt vmcnt({younger})")
        for q in range(4):
            for rd in range(2):
                a(f"ds_read_b64_tr_b16 v[{F+4*q+2*rd}:{F+4*q+2*rd+1}], v{self.RLA} offset:{rd*2048+q*32}")
        a(f"v_lshlrev_b32 v{t}, 4, v0")
        for q in range(4):
            a(f"s_waitcnt lgkmcnt({6-2*q})")
            a(f"buffer_store_dwordx4 v[{F+4*q}:{F+4*q+3}], v{t}, s[{SRD_WS}:{SRD_WS+3}], s{self.sRL+4+q} offen sc1")
        if younger is not None: a("s_waitcnt vmcnt(4)")
        a(f"s_cmp_eq_u32 s{self.sRL+8}, -1")
        a(f"s_cbranch_scc1 {L}")
        for q in range(4): a(f"v_mov_b32 v{t+2+q}, 0")
        a(f"v_mov_b32 v{t+6}, 0x3f803f80")
        for k in range(4):
            for q in range(4): a(f"v_dot2_f32_bf16 v{t+2+q}, v{F+4*q+k}, v{t+6}, v{t+2+q}")
        a(f"v_lshlrev_b32 v{t+1}, 2, v0")
        a("s_nop 1")
        a(f"v_permlane16_swap_b32 v{t+2}, v{t+3}")
        a(f"v_permlane16_swap_b32 v{t+4}, v{t+5}")
        a("s_nop 0")
        a(f"v_add_f32 v{t+2}, v{t+2}, v{t+3}")
        a(f"v_add_f32 v{t+4}, v{t+4}, v{t+5}")
        a("s_nop 1")
        a(f"v_permlane32_swap_b32 v{t+2}, v{t+4}")
        a("s_nop 0")
        a(f"v_add_f32 v{t+2}, v{t+2}, v{t+4}")
        a(f"buffer_store_dword v{t+2}, v{t+1}, s[{SRD_WS}:{SRD_WS+3}], s{self.sRL+8} offen sc1")
        if younger is not None:
            a(f"s_branch {L}")
            a.label(Lo)
            a("s_waitcnt vmcnt(0)")
        a.label(L)

    def p1_setup_b(self):
        a = self.a
        a(f"s_and_b32 s{self.sTG}, s{S_W}, 3")
        a(f"s_lshr_b32 s{self.sNH}, s{S_W}, 2")
        a(f"s_cmp_ge_u32 s{self.sCT}, 5")
        a(f"s_cselect_b32 s{T0}, 5, 0")
        a(f"s_sub_u32 s{T0}, s{self.sCT}, s{T0}")
        a(f"s_lshl_b32 s{T0}, s{T0}, 1")
        a(f"s_add_u32 s{T0}, s{T0}, s{self.sNH}")
        for idx in range(10):
            a(f"s_cmp_eq_u32 s{T0}, {idx}")
            a(f"s_cbranch_scc1 L_tab{idx}")
        a(f"s_mul_i32 s{T1}, s{self.sNH}, 0x10101010")
        for k in range(4): a(f"s_add_u32 s{self.sTAB+k}, s{T1}, 0x%08x" % (0x03020100 + 0x04040404 * k))
        a(f"s_mov_b32 s{self.sTAB+4}, 0")
        a(f"s_mov_b32 s{self.sTAB+5}, 0")
        a("s_branch L_tabdone")
        for idx in range(10):
            a.label(f"L_tab{idx}")
            for k, d in enumerate(p1_table(idx // 2, idx % 2)): a(f"s_mov_b32 s{self.sTAB+k}, 0x%08x" % d)
            if idx < 9: a("s_branch L_tabdone")
        a.label("L_tabdone")
        a("v_and_b32 v1, 31, v0")
        a(f"s_lshl_b32 s{T0}, s{self.sTG}, 5")
        a(f"v_add_u32 v2, s{T0}, v1")
        a("v_bfe_u32 v3, v2, 1, 3")
        a("v_lshrrev_b32 v4, 5, v0")
        a("v_xor_b32 v3, v3, v4")
        a("v_lshlrev_b32 v3, 4, v3")
        a(f"v_lshl_add_u32 v{self.XA}, v2, 7, v3")
        a(f"s_xor_b32 s{T3}, s{self.sTG}, s{self.sNH}")
        a(f"s_lshl_b32 s{T0}, s{T3}, 5")
        a(f"v_xor_b32 v{self.XA}, s{T0}, v{self.XA}")
        for ks in range(1, 4): a(f"v_xor_b32 v{self.XA+ks}, {ks<<5}, v{self.XA}")
        a("v_bfe_u32 v5, v0, 2, 2")
        a("v_lshl_add_u32 v6, v4, 3, v5")
        a("v_lshlrev_b32 v6, 8, v6")
        a("v_and_b32 v7, 3, v0")
        a("v_lshlrev_b32 v7, 3, v7")
        a("v_and_b32 v8, 16, v0")
        a("v_cmp_ne_u32 vcc, 0, v8")
        for i in range(2):
            a(f"v_mov_b32 v8, s{self.sTAB+2*i}")
            a(f"v_mov_b32 v9, s{self.sTAB+2*i+1}")
            a("v_cndmask_b32 v8, v8, v9, vcc")
            a("v_bfe_u32 v8, v8, v7, 8")
            a("v_lshlrev_b32 v8, 3, v8")
            a("v_lshlrev_b32 v9, 6, v5")
            a("v_xor_b32 v8, v8, v9")
            a(f"v_add_u32 v8, v6, v8")
            a(f"s_lshl_b32 s{T0}, s{T3}, 12")
            a(f"v_add_u32 v{self.WA+4*i}, s{T0}, v8")
            for j in range(1, 4): a(f"v_xor_b32 v{self.WA+4*i+j}, {j<<12}, v{self.WA+4*i}")
        a(f"s_lshl_b32 s{T0}, s{self.sRB}, 2")
        a(f"s_add_u32 s{T0}, s{T0}, s{self.sTG}")
        a(f"s_lshl_b32 s{T1}, s{T0}, 9")
        a(f"s_add_u32 s{T1}, s{T1}, {WS_RS}")
        a(f"v_lshl_add_u32 v{self.RSA}, v1, 4, s{T1}")
        a(f"s_cmp_ge_u32 s{self.sCT}, 10")
        a("s_cbranch_scc1 L_p1_vaddr")
        a(f"s_lshl_b32 s{T0}, s{T0}, 9")
        a(f"s_cmp_ge_u32 s{self.sCT}, 5")
        a(f"s_cselect_b32 s{T1}, {WS_K}, {WS_Q}")
        a(f"s_add_u32 s{T0}, s{T0}, s{T1}")
        a(f"v_lshl_add_u32 v2, v1, 4, s{T0}")
        a("v_lshlrev_b32 v3, 3, v4")
        a("v_add_u32 v5, 16, v3")
        for i in range(2):
            for qq in range(2):
                a(f"v_bfe_u32 v6, s{self.sTAB+4+i}, v{3 if qq == 0 else 5}, 8")
                a(f"v_lshl_add_u32 v{self.STA+2*i+qq}, v6, 15, v2")
        a("s_branch L_p1_addrdone")
        a.label("L_p1_vaddr")
        a(f"s_mul_i32 s{T0}, s{T0}, 1280")
        a(f"s_add_u32 s{T0}, s{T0}, {WS_V}")
        a(f"s_lshl_b32 s{T1}, s{self.sCT}, 7")
        a(f"s_lshl_b32 s{T2}, s{self.sNH}, 6")
        a(f"s_add_u32 s{T1}, s{T1}, s{T2}")
        a(f"s_sub_u32 s{T1}, s{T1}, 1280")
        a(f"v_mov_b32 v{self.STA+2}, 0")
        a(f"v_mov_b32 v{self.STA+3}, 0")
        a("v_mul_u32_u24 v3, 320, v4")
        a(f"v_add_u32 v3, s{T0}, v3")
        a(f"s_mov_b32 s{T2}, 81920")
        for i in range(2):
            a(f"v_add_u32 v5, s{T1}, v1")
            if i: a("v_add_u32 v5, 32, v5")
            a("v_mul_u32_u24 v6, 3277, v5")
            a("v_lshrrev_b32 v6, 16, v6")
            a("v_mul_u32_u24 v7, 20, v6")
            a("v_sub_u32 v5, v5, v7")
            a("v_lshl_add_u32 v5, v5, 4, v3")
            a(f"v_mad_u32_u24 v{self.STA+i}, v6, s{T2}, v5")
        a.label("L_p1_addrdone")
        for r in range(32): a(f"v_mov_b32 v{self.ACC+r}, 0")
        a(f"s_mul_i32 s{T0}, s{self.sCT}, 10240")
        a(f"s_lshl_b32 s{T1}, s{self.sNH}, 9")
        a(f"s_add_u32 s{T0}, s{T0}, s{T1}")
        a(f"s_add_u32 s{T0}, s{T0}, {WS_CQ}")
        a(f"v_lshl_add_u32 v{self.CQA}, v0, 3, s{T0}")
        a(f"s_lshl_b32 s{T0}, s{self.sNH}, 8")
        a(f"s_lshl_b32 s{T1}, s{self.sTG}, 9")
        a(f"s_add_u32 s{T0}, s{T0}, {self.P1_MISC}")
        a(f"s_add_u32 s{T1}, s{T1}, s{T0}")
        a(f"v_lshl_add_u32 v{self.CSW}, v0, 2, s{T1}")
        a(f"v_lshl_add_u32 v95, v0, 2, s{T0}")
        a(f"v_mov_b32 v{self.VXM}, 0x8000")
        a(f"s_lshl_b32 s{T0}, s{S_W}, 2")
        a(f"s_add_u32 s{T0}, s{T0}, {self.P1_MISC + 2304}")
        a(f"v_mov_b32 v{self.PGA}, s{T0}")
        a(f"v_mov_b32 v{self.PGV}, 0")
        a(f"v_and_b32 v{self.PGR}, 7, v0")
        a(f"v_lshlrev_b32 v{self.PGR}, 2, v{self.PGR}")
        a(f"v_add_u32 v{self.PGR}, {self.P1_MISC + 2304}, v{self.PGR}")
        a(f"ds_write_b32 v{self.PGA}, v{self.PGV}")
        a(f"s_mov_b32 s{self.sCNT}, -1")
        a(f"s_cmp_eq_u32 s{self.sTG}, 0")
        a(f"s_cselect_b32 s{self.sSIDE}, 2, 0")

    def p1_loop(self, vmode):
        a = self.a
        tag = "v" if vmode else "q"
        if self.o.get("p1soft"):
            self.p1_loop1(vmode, 0)
        else:
            a(f"s_cmp_lg_u32 s{self.sNH}, 0")
            a(f"s_cbranch_scc1 L_p1_B{tag}")
            self.p1_loop1(vmode, 0)
            a(f"s_branch L_p1_E{tag}")
            a.label(f"L_p1_B{tag}")
            self.p1_loop1(vmode, 1)
            a.label(f"L_p1_E{tag}")
        reads, xors, mf = self.p1_parts(vmode)
        def comp(ks, rd=True, xr=True):
            self.jit(2)
            a(f"s_waitcnt lgkmcnt({5 if rd or ks == 2 else 0})")
            mf(ks, 0)
            if rd: reads((ks + 2) % 4)
            mf(ks, 1)
            if xr: xors((ks + 2) % 4)
        comp(0); self.p1_issue((2,))
        comp(1); self.p1_issue((3,))
        a(f"buffer_load_dwordx4 v[{self.RS}:{self.RS+3}], v{self.RSA}, s[{SRD_WS}:{SRD_WS+3}], 0 offen sc1")
        a(f"s_mul_i32 s{T0}, s{self.sCT}, 10240")
        a(f"s_lshl_b32 s{T1}, s{S_W}, 10")
        a(f"s_add_u32 s{T0}, s{T0}, s{T1}")
        a(f"s_add_u32 s{T0}, s{T0}, {WS_CQ}")
        a(f"s_add_u32 m0, s{T1}, {self.CQ_SCR}")
        a("v_lshlrev_b32 v1, 4, v0")
        self.dma(1, SRD_WS, f"s{T0}", "sc1")
        a(f"s_add_u32 s{T0}, s{T0}, 8192")
        a("s_add_u32 m0, m0, 8192")
        a(f"s_cmp_ge_u32 s{S_W}, 2")
        a(f"s_cselect_b32 s{T0}, 0x7f000000, s{T0}")
        self.dma(1, SRD_WS, f"s{T0}", "sc1")
        a("s_waitcnt vmcnt(7)")
        a("s_barrier")
        comp(2); comp(3)
        comp(0); comp(1)
        a("s_waitcnt vmcnt(3)")
        a("s_barrier")
        comp(2, xr=False); comp(3, xr=False)
        a("s_waitcnt vmcnt(0) lgkmcnt(5)")
        a("s_barrier")
        mf(0, 0)
        self.p1_epi_reads()
        mf(0, 1)
        a("s_waitcnt lgkmcnt(11)")
        mf(1, 0); reads(2); mf(1, 1); reads(3)
        self.p1_epi_common()
        (self.p1_prep_v if vmode else self.p1_prep_q)()
        a(f"s_waitcnt lgkmcnt({15 if vmode else 14})")
        mf(2, 0)
        a(f"s_waitcnt lgkmcnt({10 if vmode else 9})")
        mf(3, 0); mf(2, 1); mf(3, 1)
        self.stamp(4)

    def p1_parts(self, vmode):
        a = self.a
        def reads(ks):
            if self.o.get("nolds"): return
            a(f"ds_read_b128 v[{self.XF+4*ks}:{self.XF+4*ks+3}], v{self.XA+ks}")
            for i in range(2):
                for rd in range(2):
                    d = self.WF + 8 * ks + 4 * i + 2 * rd
                    a(f"ds_read_b64_tr_b16 v[{d}:{d+1}], v{self.WA+4*i+ks} offset:{16384+rd*1024}")
        def xors(ks):
            for r in (self.XA + ks, self.WA + ks, self.WA + 4 + ks): a(f"v_xor_b32 v{r}, v{self.VXM}, v{r}")
            if ks == 3: a(f"v_xor_b32 v{self.VXM}, 0x10000, v{self.VXM}")
        def mf(ks, i):
            x = vr(self.XF + 4 * ks, 4); wv = vr(self.WF + 8 * ks + 4 * i, 4); acc = vr(self.ACC + 16 * i, 16)
            if self.o.get("nomfma"): pass
            elif vmode: a(f"v_mfma_f32_32x32x16_bf16 {acc}, {x}, {wv}, {acc}")
            else: a(f"v_mfma_f32_32x32x16_bf16 {acc}, {wv}, {x}, {acc}")
        return reads, xors, mf

    def p1_loop1(self, vmode, B):
        a = self.a
        L = a.newlabel("p1loop")
        pos = self.o.get("barB" if B else "barA", "1" if B else "0")
        reads, xors, mf = self.p1_parts(vmode)
        def bar():
            a("s_waitcnt vmcnt(4)")
            if not self.o.get("nobar"): a("s_barrier")
            if self.o.get("its") == "1": self.stamp_dyn(54, self.sCNT)
        soft = self.o.get("p1soft")
        def comp(ks):
            n = (ks + 2) % 4
            if soft: return comp_soft(ks)
            self.jit(2)
            if ks == 2 and pos == "0": bar()
            a("s_waitcnt lgkmcnt(5)")
            mf(ks, 0)
            if ks == 2 and pos == "1": bar()
            if ks == 2 and pos == "2":
                mf(ks, 1); bar(); reads(n)
            else:
                reads(n); mf(ks, 1)
            xors(n)
            self.p1_issue((n,))
        def comp_soft(ks):
            n = (ks + 2) % 4
            ar = int(soft) - 1
            extra = {0: 0, 1: (1 if ar == 0 else 0), 2: 0, 3: 0}[ks]
            a(f"s_waitcnt lgkmcnt({5 + extra})" if ks != 2 else "s_waitcnt lgkmcnt(0)" if self.o.get("p1g0") else "s_waitcnt lgkmcnt(6)")
            mf(ks, 0)
            if ks == ar:
                a(f"v_add_u32 v{self.PGV}, 1, v{self.PGV}")
                a(f"s_waitcnt vmcnt({2 + ks})")
                a(f"ds_write_b32 v{self.PGA}, v{self.PGV}")
            if ks == 2:
                Lw, Lb = a.newlabel("late"), a.newlabel("go")
                a("s_waitcnt lgkmcnt(0)")
                a(f"v_cmp_lt_u32 vcc, v{self.PGD}, v{self.PGV}")
                a(f"s_cbranch_vccnz {Lw}")
                a.label(Lb)
                self._late1.append((Lw, Lb))
            reads(n); mf(ks, 1)
            if ks == 1: a(f"ds_read_b32 v{self.PGD}, v{self.PGR}")
            xors(n)
            self.p1_issue((n,))
        a("s_waitcnt vmcnt(6) lgkmcnt(0)")
        a("s_barrier")
        self.stamp(3)
        reads(0); reads(1); xors(0); xors(1)
        a("v_mov_b32 v6, 0x3f803f80")
        a("v_mov_b32 v2, 0")
        a("v_mov_b32 v3, 0")
        a("s_waitcnt lgkmcnt(5)")
        for k in range(4):
            for i in range(2): a(f"v_dot2_f32_bf16 v{2+i}, v{self.WF+4*i+k}, v6, v{2+i}")
        a("s_nop 2")
        a("v_permlane32_swap_b32 v2, v3")
        a("s_nop 0")
        a("v_add_f32 v2, v2, v3")
        a(f"ds_write_b32 v{self.CSW}, v2")
        a.align(int(self.o.get("al1", 3)))
        a.label(L)
        comp(0); comp(1); comp(2)
        Lr = a.newlabel("back"); Ls = a.newlabel("side")
        a(f"s_add_u32 s{self.sCNT}, s{self.sCNT}, 1")
        a(f"s_cmp_lt_u32 s{self.sCNT}, s{self.sSIDE}")
        a(f"s_cbranch_scc1 {Ls}")
        a.label(Lr)
        comp(3)
        a(f"s_cmp_lt_u32 s{self.sCNT}, {int(self.o.get('p1n', 10)) - 4}")
        a(f"s_cbranch_scc1 {L}")
        self._sides.append((Ls, Lr))

    def p1_sides(self):
        a = self.a
        for Lw, Lb in self._late1:
            a.label(Lw)
            a(f"s_mov_b32 s{S_SPIN}, 0")
            L = a.newlabel("lsp")
            a.label(L)
            a(f"ds_read_b32 v{self.PGD}, v{self.PGR}")
            a(f"s_add_u32 s{S_SPIN}, s{S_SPIN}, 1")
            a(f"s_cmp_ge_u32 s{S_SPIN}, {SPIN_MAX * 16}")
            a(f"s_cbranch_scc1 {Lb}")
            a("s_waitcnt lgkmcnt(0)")
            a(f"v_cmp_lt_u32 vcc, v{self.PGD}, v{self.PGV}")
            a(f"s_cbranch_vccnz {L}")
            a(f"s_branch {Lb}")
        self._late1 = []
        for Ls, Lr in self._sides:
            a.label(Ls)
            L1 = a.newlabel("s1")
            a(f"s_cmp_lg_u32 s{self.sCNT}, 0")
            a(f"s_cbranch_scc1 {L1}")
            a("v_mov_b32 v1, 0")
            a(f"buffer_load_dwordx2 v[{self.VN}:{self.VN+1}], v1, s[{SRD_DBG}:{SRD_DBG+3}], 0 offen sc1")
            a(f"s_branch {Lr}")
            a.label(L1)
            a("s_waitcnt vmcnt(4)")
            self.nonce_get("nonce2")
            a(f"v_mov_b32 v1, {self.P1_MISC + 2048}")
            a(f"ds_write_b64 v1, v[{self.VN}:{self.VN+1}]")
            for k in range(4): a(f"ds_read_b32 v{2+k}, v95 offset:{512*k}")
            a(f"s_lshl_b32 s{T0}, s{self.sKC0}, 10")
            a("s_waitcnt lgkmcnt(0)")
            a("v_add_f32 v2, v2, v3")
            a("v_add_f32 v4, v4, v5")
            a(f"v_mov_b32 v3, s{S_NONCE}")
            a("v_add_f32 v2, v2, v4")
            a(f"buffer_store_dwordx2 v[2:3], v{self.CQA}, s[{SRD_WS}:{SRD_WS+3}], s{T0} offen sc1")
            a(f"s_branch {Lr}")

    def p1_gather(self):
        a = self.a
        a(f"buffer_load_dwordx4 v[{self.RS}:{self.RS+3}], v{self.RSA}, s[{SRD_WS}:{SRD_WS+3}], 0 offen sc1")
        a(f"s_movk_i32 s{T0}, 0x1000")
        a(f"s_movk_i32 s{T1}, 0x2000")
        for k in range(10):
            so = ("0", f"s{T0}", f"s{T1}")[k // 4]
            a(f"buffer_load_dwordx2 v[{self.CQ+2*k}:{self.CQ+2*k+1}], v{self.CQA}, s[{SRD_WS}:{SRD_WS+3}], {so} offen offset:{1024*(k%4)} sc1")

    def p1_epi_reads(self):
        a = self.a
        a(f"s_lshl_b32 s{T0}, s{self.sNH}, 9")
        a(f"s_add_u32 s{T0}, s{T0}, {self.CQ_SCR}")
        a(f"v_lshl_add_u32 v1, v0, 3, s{T0}")
        for k in range(10): a(f"ds_read_b64 v[{self.CQ+2*k}:{self.CQ+2*k+1}], v1 offset:{1024*k}")
        a(f"v_mov_b32 v1, {self.P1_MISC + 2048}")
        a(f"ds_read_b64 v[{self.VN}:{self.VN+1}], v1")
        a(f"s_lshl_b32 s{T2}, s{S_W}, 9")
        a(f"s_add_u32 s{T2}, s{T2}, {self.P1_MISC+4096}")
        a(f"v_lshl_add_u32 v6, v0, 2, s{T2}")
        a("v_and_b32 v5, 31, v0")
        a(f"s_mov_b32 s{S_SPIN}, 0")

    def p1_epi_common(self):
        a = self.a
        L = a.newlabel("rs"); Ld = a.newlabel("rsd")
        a("s_waitcnt lgkmcnt(10)")
        a(f"v_readfirstlane_b32 s{S_NONCE}, v{self.VN}")
        a(f"v_readfirstlane_b32 s{S_NONCE+1}, v{self.VN+1}")
        a("s_nop 0")
        a.label(L)
        a(f"v_xor_b32 v2, s{S_NONCE}, v{self.RS+1}")
        a(f"v_xor_b32 v3, s{S_NONCE}, v{self.RS+3}")
        for k in range(0, 10, 2):
            a(f"v_xor_b32 v4, s{S_NONCE}, v{self.CQ+2*k+1}")
            a(f"v_xor_b32 v7, s{S_NONCE}, v{self.CQ+2*k+3}")
            a("v_or3_b32 v2, v2, v4, v7")
        a("v_or_b32 v2, v2, v3")
        a("v_cmp_ne_u32 vcc, 0, v2")
        a(f"s_add_u32 s{S_SPIN}, s{S_SPIN}, 1")
        a("s_or_b64 vcc, vcc, vcc")
        a(f"s_cbranch_scc0 {Ld}")
        a(f"s_cmp_ge_u32 s{S_SPIN}, {SPIN_MAX}")
        a(f"s_cbranch_scc1 {Ld}")
        self.diag("gather")
        self.p1_gather()
        a("s_waitcnt vmcnt(0)")
        a(f"s_branch {L}")
        a.label(Ld)
        Q = self.CQ
        a(f"v_add_f32 v12, v{Q}, v{Q+2}")
        a(f"v_add_f32 v13, v{Q+4}, v{Q+6}")
        a(f"v_add_f32 v14, v{Q+8}, v{Q+10}")
        a(f"v_add_f32 v15, v{Q+12}, v{Q+14}")
        a(f"v_add_f32 v2, v{Q+16}, v{Q+18}")
        a("v_add_f32 v12, v12, v13")
        a("v_add_f32 v14, v14, v15")
        a("v_add_f32 v12, v12, v2")
        a("v_add_f32 v12, v12, v14")

    def rowstats(self):
        a = self.a
        X = 100
        a("v_lshrrev_b32 v1, 3, v0")
        a(f"s_lshl_b32 s{T0}, s{S_W}, 4")
        a(f"s_lshl_b32 s{T1}, s{self.sRB}, 7")
        a(f"s_add_u32 s{T0}, s{T0}, s{T1}")
        a(f"v_add_u32 v1, s{T0}, v1")
        a("v_mul_u32_u24 v2, 1280, v1")
        a("v_and_b32 v3, 7, v0")
        a("v_lshl_add_u32 v2, v3, 4, v2")
        a(f"s_mov_b32 s{T0}, 10240")
        for k in range(10):
            for hh in range(2):
                r = X + 8 * k + 4 * hh
                a(f"buffer_load_dwordx4 v[{r}:{r+3}], v2, s[{SRD_X}:{SRD_X+3}], {'s%d' % T0 if hh else '0'} offen offset:{128*k}")
        for r in range(4, 8): a(f"v_mov_b32 v{r}, 0")
        a("v_mov_b32 v8, 0x3f803f80")
        for k in range(10):
            a(f"s_waitcnt vmcnt({18-2*k if k < 9 else 1})")
            if k == 8:
                a("v_mov_b32 v3, 0")
                a(f"buffer_load_dwordx2 v[{self.VN}:{self.VN+1}], v3, s[{SRD_DBG}:{SRD_DBG+3}], 0 offen sc1")
            for e in range(4):
                for hh in range(2):
                    r = X + 8 * k + 4 * hh + e
                    a(f"v_dot2_f32_bf16 v{4+hh}, v{r}, v8, v{4+hh}")
                    a(f"v_dot2_f32_bf16 v{6+hh}, v{r}, v{r}, v{6+hh}")
        a("s_nop 2")
        for ctl in ("quad_perm:[1,0,3,2]", "quad_perm:[2,3,0,1]", "row_half_mirror"):
            for r in range(4, 8): a(f"v_add_f32_dpp v{r}, v{r}, v{r} {ctl} row_mask:0xf bank_mask:0xf")
        a("s_waitcnt vmcnt(0)")
        self.nonce_get()
        a("v_and_b32 v3, 1, v0")
        a("v_cmp_ne_u32 vcc, 0, v3")
        a("v_lshlrev_b32 v3, 3, v3")
        a("v_add_u32 v1, v1, v3")
        a("v_cndmask_b32 v4, v4, v5, vcc")
        a("v_cndmask_b32 v6, v6, v7, vcc")
        a(f"v_mul_f32 v4, 0x%08x, v4" % f2u(1.0 / 640))
        a("v_mul_f32 v5, v4, v4")
        a(f"v_mov_b32 v7, 0x%08x" % f2u(1.0 / 640))
        a("v_fma_f32 v5, v6, v7, -v5")
        a("v_max_f32 v5, 0, v5")
        a(f"v_add_f32 v5, 0x%08x, v5" % f2u(1e-5))
        a("v_rsq_f32 v8, v5")
        a(f"v_mov_b32 v9, s{S_NONCE}")
        a(f"v_mov_b32 v11, s{S_NONCE}")
        a("v_mul_f32 v10, v4, v8")
        a("v_lshlrev_b32 v1, 4, v1")
        a(f"s_mov_b32 s{T0}, {WS_RS}")
        a("s_mov_b32 exec_lo, 0x03030303")
        a("s_mov_b32 exec_hi, 0x03030303")
        a(f"buffer_store_dwordx4 v[8:11], v1, s[{SRD_WS}:{SRD_WS+3}], s{T0} offen sc1")
        a("s_mov_b64 exec, -1")

    def p1_prep_q(self):
        a = self.a
        qs = math.log2(math.e) / math.sqrt(20.0)
        a("ds_write_b32 v6, v12")
        a("v_lshrrev_b32 v1, 5, v0")
        a(f"v_lshl_add_u32 v1, v1, 4, s{T2}")
        C = 48
        for i in range(2):
            for q4 in range(4):
                a(f"ds_read_b128 v[{C+16*i+4*q4}:{C+16*i+4*q4+3}], v1 offset:{i*128+q4*32}")
        a(f"s_cmp_lt_u32 s{self.sCT}, 5")
        a(f"s_cselect_b32 s{T1}, 0x%08x, 1.0" % f2u(qs))
        a(f"v_mul_f32 v2, s{T1}, v{self.RS}")
        a(f"v_mul_f32 v3, s{T1}, v{self.RS+2}")

    def p1_epi_q(self):
        a = self.a
        C = 48
        a("s_nop 8")
        for i in range(2):
            for qq in range(2):
                a(f"s_waitcnt lgkmcnt({6-4*i-2*qq})")
                b = 16 * i + 8 * qq
                for r in range(8): a(f"v_mul_f32 v{self.ACC+b+r}, v2, v{self.ACC+b+r}")
                for r in range(8): a(f"v_fma_f32 v{self.ACC+b+r}, -v3, v{C+b+r}, v{self.ACC+b+r}")
                o = 4 + 4 * ((2 * i + qq) % 2)
                for r in range(4): a(f"v_cvt_pk_bf16_f32 v{o+r}, v{self.ACC+b+2*r}, v{self.ACC+b+2*r+1}")
                a(f"buffer_store_dwordx4 v[{o}:{o+3}], v{self.STA+2*i+qq}, s[{SRD_WS}:{SRD_WS+3}], 0 offen sc1")

    def p1_prep_v(self):
        a = self.a
        a("v_mov_b32 v13, v12")
        a(f"v_lshl_add_u32 v6, v5, 2, s{T2}")
        a("v_lshrrev_b32 v1, 5, v0")
        a("v_permlane32_swap_b32 v12, v13")
        a(f"ds_write_b32 v6, v{self.RS}")
        a(f"ds_write_b32 v6, v{self.RS+2} offset:128")
        a(f"v_lshl_add_u32 v6, v1, 4, s{T2}")
        C = 48
        for q4 in range(4):
            a(f"ds_read_b128 v[{C+4*q4}:{C+4*q4+3}], v6 offset:{q4*32}")
            a(f"ds_read_b128 v[{C+16+4*q4}:{C+16+4*q4+3}], v6 offset:{128+q4*32}")

    def p1_epi_v(self):
        a = self.a
        C = 48
        a("s_nop 8")
        for grp in range(2):
            a(f"s_waitcnt lgkmcnt({4-4*grp})")
            for i in range(2):
                b = 16 * i + 8 * grp
                for r in range(8): a(f"v_mul_f32 v{self.ACC+b+r}, v{C+8*grp+r}, v{self.ACC+b+r}")
                for r in range(8): a(f"v_fma_f32 v{self.ACC+b+r}, -v{C+16+8*grp+r}, v{12+i}, v{self.ACC+b+r}")
                o = 4 + 4 * i
                for r in range(4): a(f"v_cvt_pk_bf16_f32 v{o+r}, v{self.ACC+b+2*r}, v{self.ACC+b+2*r+1}")
                a(f"buffer_store_dwordx4 v[{o}:{o+3}], v{self.STA+i}, s[{SRD_WS}:{SRD_WS+3}], 0 offen offset:{640*grp} sc1")

    def nonce_get(self, where="nonce"):
        a = self.a
        a(f"s_mov_b32 s{S_SPIN}, 0")
        Lc = a.newlabel("nchk"); Lo = a.newlabel("nok")
        a.label(Lc)
        a(f"v_readfirstlane_b32 s{S_NONCE}, v{self.VN}")
        a(f"v_readfirstlane_b32 s{S_NONCE+1}, v{self.VN+1}")
        a(f"s_add_u32 s{S_SPIN}, s{S_SPIN}, 1")
        a(f"s_or_b32 s{T0}, s{S_NONCE}, s{S_NONCE+1}")
        a(f"s_cbranch_scc1 {Lo}")
        a(f"s_cmp_ge_u32 s{S_SPIN}, {SPIN_MAX}")
        a(f"s_cbranch_scc1 {Lo}")
        self.diag(where)
        a("v_mov_b32 v94, 0")
        a(f"buffer_load_dwordx2 v[{self.VN}:{self.VN+1}], v94, s[{SRD_DBG}:{SRD_DBG+3}], 0 offen sc1")
        a("s_waitcnt vmcnt(0)")
        a(f"s_branch {Lc}")
        a.label(Lo)

    def phase1(self):
        a = self.a
        self.p1_setup_a()
        a(f"s_cmp_eq_u32 s{self.sCT}, 15")
        a("s_cbranch_scc0 L_p1_go")
        self.rowstats()
        a("s_branch L_p1_done")
        a.label("L_nonce_pub")
        a("v_mov_b32 v3, 0")
        a(f"v_mov_b32 v4, s{S_NONCE}")
        a(f"v_mov_b32 v5, s{S_NONCE+1}")
        a("s_mov_b64 exec, 1")
        a(f"buffer_store_dwordx2 v[4:5], v3, s[{SRD_DBG}:{SRD_DBG+3}], 0 offen sc1")
        a("s_mov_b64 exec, -1")
        a("s_branch L_nonce_done")
        a.label("L_p1_go")
        if self.o.get("p1v", "2") == "2":
            from p1v2 import phase1_split
            phase1_split(self)
        else:
            self.p1_setup_b()
            self.p1_issue((1, 2, 3) if self.o.get("first5", "1") == "1" else (0, 1, 2, 3))
            self.p1_issue((0, 1))
            self.stamp(2)
            a(f"s_cmp_ge_u32 s{self.sCT}, 10")
            a("s_cbranch_scc1 L_p1_v")
            self.p1_loop(False)
            self.p1_epi_q()
            a("s_branch L_p1_done")
            self.p1_sides(); self._sides = []
            a.label("L_p1_v")
            self.p1_loop(True)
            self.p1_epi_v()
            a("s_branch L_p1_done")
            self.p1_sides()
        a.label("L_p1_done")
        self.stamp(5)
        a(f"s_lshl_b32 s{T0}, s{self.sCT}, 4")
        a(f"s_add_u32 s{T0}, s{T0}, s{self.sRB}")
        a(f"s_mul_i32 s{T0}, s{T0}, {FSP}")
        a(f"s_add_u32 s{T0}, s{T0}, {FL_1}")
        self.flag_prep(12)
        a("s_waitcnt vmcnt(0)")
        self.stamp(6)
        a("s_barrier")
        self.flag_store(T0, 12, prepped=True)
        self.stamp(7)
        a(f"s_cmp_eq_u32 s{S_W}, 0")
        a("s_cbranch_scc1 L_no_rls")
        self.relayout_setup()
        a.label("L_no_rls")
        if self.stop < 2:
            self.relayout_issue()
            a("s_waitcnt vmcnt(0)")
            self.relayout_finish()

    def build(self):
        a = self.a
        self.entry()
        self.phase1()
        if self.stop >= 2:
            from phases import phase2, phase3, phase4, phase5
            phase2(self)
            if self.stop >= 3: phase3(self)
            if self.stop >= 4: phase4(self)
            if self.stop >= 5: phase5(self)
        a("s_waitcnt vmcnt(0)")
        if self.o.get("fixend"):
            if self.o.get("diag"):
                a("s_cmp_eq_u32 s35, 0")
                a("s_cbranch_scc1 L_end")
            a.label("L_fixend")
            a("s_memrealtime s[100:101]")
            a("s_waitcnt lgkmcnt(0)")
            a(f"s_sub_u32 s100, s100, s{31 if self.o.get('fixown') else S_NONCE}")
            a(f"s_cmp_lt_u32 s100, {int(self.o['fixend'])*100}")
            a("s_cbranch_scc1 L_fixend")
        self.stamp(31)
        self.stamp_flush()
        a.label("L_end")
        a("s_endpgm")
        for f in self._tail: f()
        a.lines.append(f".fill {self.pad}, 4, 0xbf810000")
        body = a.text()
        errs = check(body)
        if errs:
            sys.stderr.write("\n".join(errs[:40]) + "\n%d hazards\n" % len(errs))
            raise SystemExit(1)
        head = f"""; Fused preLN -> MHA -> residual -> preLN -> SiLU FFN -> residual in one persistent launch
;      checks its sums and outputs; if the shift was unsafe (sum > 2^40, inf or NaN) the wave redoes its rows
; @launch grid=(256,1,1) block=(512,1,1) lds={LDS_BYTES}
.amdgcn_target "amdgcn-amd-amdhsa--gfx950"
.text
.globl {NAME}_kernel
.p2align 8
.type {NAME}_kernel,@function
{NAME}_kernel:
"""
        tail = f""".section .rodata,"a"
.p2align 6
.amdhsa_kernel {NAME}_kernel
  .amdhsa_next_free_vgpr 256
  .amdhsa_next_free_sgpr 102
  .amdhsa_accum_offset 256
  .amdhsa_group_segment_fixed_size 0
  .amdhsa_kernarg_size 72
  .amdhsa_user_sgpr_count 2
  .amdhsa_user_sgpr_kernarg_segment_ptr 1
  .amdhsa_system_sgpr_workgroup_id_x 1
.end_amdhsa_kernel
"""
        return head + body + tail

if __name__ == "__main__":
    stop = int(sys.argv[2]) if len(sys.argv) > 2 else 99
    opts = dict(kv.split("=") for kv in sys.argv[3:])
    import subprocess
    def asm_size(path):
        r = subprocess.run(["clang", "-x", "assembler", "-target", "amdgcn-amd-amdhsa", "-mcpu=gfx950", "-c", path, "-o", "_chk.o"], capture_output=True, text=True)
        if r.returncode: print(r.stderr[:1500]); raise SystemExit(1)
        r = subprocess.run(["llvm-readelf", "-S", "_chk.o"], capture_output=True, text=True)
        return int([l for l in r.stdout.split("\n") if ".text" in l][0].split()[6], 16)
    open(sys.argv[1], "w").write(K(stop, opts).build())
    n = asm_size(sys.argv[1])
    k = K(stop, opts)
    k.CPF_LINES = (n + 4095) // 4096
    k.pad = (k.CPF_LINES * 4096 - n) // 4 + 16
    open(sys.argv[1], "w").write(k.build())
    print(sys.argv[1], "code bytes:", n, "with pad:", asm_size(sys.argv[1]))
```

```python
import math
from asmlib import vr, f2u
from tables import *
from gen import *

ACC, XF, WF, XA, WA, VXM, STA, CSA, EP = 16, 160, 192, 80, 84, 86, 88, 92, 96
WS = f"s[{SRD_WS}:{SRD_WS+3}]"
M32 = "v_mfma_f32_32x32x16_bf16"

def phase1_split(k):
    a = k.a
    MISC = k.P1_MISC
    PART, NON, CSF, STF = MISC, MISC + 2048, MISC + 2560, MISC + 3072
    STV = MISC + 4096
    a(f"s_cmp_ge_u32 s{S_W}, 4")
    a("s_cbranch_scc1 L_p1_c")
    def issue():
        a(f"s_mov_b32 m0, s{k.sM0X}")
        a(f"s_add_u32 s{T0}, s{k.sXO}, 81920")
        k.dma(k.DXA, SRD_X, f"s{k.sXO}")
        a("s_add_u32 m0, m0, 8192")
        a(f"s_add_u32 s{T1}, s{k.sWO}, 122880")
        k.dma(k.DXA, SRD_X, f"s{T0}")
        a("s_add_u32 m0, m0, 8192")
        a(f"s_add_u32 s{k.sM0X}, s{k.sM0X}, 32768")
        k.dma(k.DW, SRD_WQ, f"s{k.sWO}")
        a("s_add_u32 m0, m0, 8192")
        a(f"s_add_u32 s{k.sWO}, s{k.sWO}, 15360")
        k.dma(k.DW, SRD_WQ, f"s{T1}")
        a(f"s_sub_u32 m0, m0, {24576 - 1024}")
        a(f"s_add_u32 s{T1}, s{T1}, 15360")
        k.dma(k.DXB, SRD_X, f"s{k.sXO}")
        a("s_add_u32 m0, m0, 8192")
        a(f"s_add_u32 s{k.sXO}, s{k.sXO}, 128")
        k.dma(k.DXB, SRD_X, f"s{T0}")
        a("s_add_u32 m0, m0, 8192")
        a(f"s_and_b32 s{k.sM0X}, s{k.sM0X}, 0x1ffff")
        k.dma(k.DW, SRD_WQ, f"s{k.sWO}")
        a("s_add_u32 m0, m0, 8192")
        a(f"s_add_u32 s{k.sWO}, s{k.sWO}, {245760 - 15360}")
        k.dma(k.DW, SRD_WQ, f"s{T1}")
        a(f"s_sub_u32 s{k.sKC}, s{k.sKC}, 1")
        a(f"s_cmov_b32 s{k.sXO}, s{k.sXB}")
        a(f"s_cmov_b32 s{k.sWO}, s{k.sWB}")
    a("v_lshrrev_b32 v4, 5, v0")
    a("v_bfe_u32 v5, v0, 2, 2")
    a("v_lshl_add_u32 v6, v4, 3, v5")
    a("v_lshlrev_b32 v6, 8, v6")
    a("v_bfe_u32 v7, v0, 4, 1")
    a("v_and_b32 v8, 3, v0")
    a("v_lshl_add_u32 v7, v7, 2, v8")
    a("v_lshlrev_b32 v7, 3, v7")
    a("v_lshl_add_u32 v7, v5, 6, v7")
    a(f"s_lshl_b32 s{T0}, s{S_W}, 12")
    a(f"v_add3_u32 v20, v6, v7, s{T0}")
    for t in range(1, 4): a(f"v_xor_b32 v{20+t}, {t << 6}, v20")
    a(f"s_lshl_b32 s{T0}, s{S_W}, 9")
    a(f"s_add_u32 s{T0}, s{T0}, {PART}")
    a(f"v_lshl_add_u32 v24, v0, 2, s{T0}")
    a("v_and_b32 v1, 31, v0")
    a(f"s_mul_i32 s{T0}, s{k.sCT}, 10240")
    a(f"s_lshl_b32 s{T1}, s{S_W}, 8")
    a(f"s_add_u32 s{T0}, s{T0}, s{T1}")
    a(f"s_add_u32 s{T0}, s{T0}, {WS_CQ}")
    a(f"v_lshl_add_u32 v25, v1, 3, s{T0}")
    a("v_lshl_add_u32 v25, v4, 10, v25")
    a(f"s_lshl_b32 s{T0}, s{k.sRB}, 2")
    a(f"s_add_u32 s{T0}, s{T0}, s{S_W}")
    a(f"s_lshl_b32 s{T0}, s{T0}, 9")
    a(f"s_add_u32 s{T0}, s{T0}, {WS_RS}")
    a(f"v_lshl_add_u32 v26, v1, 4, s{T0}")
    a(f"s_lshl_b32 s{T0}, s{S_W}, 7")
    a(f"v_lshl_add_u32 v27, v1, 2, s{T0}")
    a("v_mov_b32 v28, 0x3f803f80")
    for t in range(4): a(f"v_mov_b32 v{30+t}, 0")
    issue()
    k.stamp(2)
    a("s_waitcnt vmcnt(8)")
    a("s_barrier")
    k.stamp(3)
    issue()
    for t in range(4):
        for rd in range(2): a(f"ds_read_b64_tr_b16 v[{36+4*t+2*rd}:{37+4*t+2*rd}], v{20+t} offset:{16384+rd*1024}")
    a("v_mov_b32 v29, 0")
    a(f"buffer_load_dwordx2 v[{k.VN}:{k.VN+1}], v29, s[{SRD_DBG}:{SRD_DBG+3}], 0 offen sc1")
    a("s_waitcnt lgkmcnt(0)")
    for e in range(4):
        for t in range(4): a(f"v_dot2_f32_bf16 v{30+t}, v{36+4*t+e}, v28, v{30+t}")
    a("s_nop 2")
    a("v_permlane32_swap_b32 v30, v31")
    a("v_permlane32_swap_b32 v32, v33")
    a("s_nop 0")
    a("v_add_f32 v30, v30, v31")
    a("v_add_f32 v32, v32, v33")
    a("ds_write_b32 v24, v30")
    a("ds_write_b32 v24, v32 offset:256")
    a("s_waitcnt vmcnt(9) lgkmcnt(0)")
    a("s_barrier")
    issue()
    a(f"v_add_u32 v1, {PART}, v27")
    for q in range(4): a(f"ds_read_b32 v{30+q}, v1 offset:{512*q}")
    a("s_waitcnt vmcnt(8)")
    k.nonce_get("nonce2")
    a(f"v_mov_b32 v1, {NON}")
    a(f"ds_write_b64 v1, v[{k.VN}:{k.VN+1}]")
    a(f"s_lshl_b32 s{T0}, s{k.sKC0}, 10")
    a("s_waitcnt lgkmcnt(1)")
    a("v_add_f32 v30, v30, v31")
    a("v_add_f32 v32, v32, v33")
    a(f"v_mov_b32 v31, s{S_NONCE}")
    a("v_add_f32 v30, v30, v32")
    a("s_mov_b64 exec, 0xffffffff")
    a(f"buffer_store_dwordx2 v[30:31], v25, {WS}, s{T0} offen sc1")
    a("s_mov_b64 exec, -1")
    a("s_waitcnt lgkmcnt(0)")
    a("s_barrier")
    issue()
    a("s_waitcnt vmcnt(9)")
    a(f"s_mov_b32 s{k.sCNT}, 2")
    a.label("L_p1_ld")
    a("s_barrier")
    issue()
    a(f"s_add_u32 s{k.sCNT}, s{k.sCNT}, 1")
    a(f"s_cmp_lt_u32 s{k.sCNT}, 7")
    a("s_cbranch_scc0 L_p1_ldx")
    a("s_waitcnt vmcnt(8)")
    a("s_branch L_p1_ld")
    a.label("L_p1_ldx")
    def gather():
        a(f"buffer_load_dwordx4 v[36:39], v26, {WS}, 0 offen sc1")
        a(f"s_movk_i32 s{T0}, 0x1000")
        a(f"s_movk_i32 s{T1}, 0x2000")
        for q in range(5):
            so = ("0", "0", f"s{T0}", f"s{T0}", f"s{T1}")[q]
            a(f"buffer_load_dwordx2 v[{40+2*q}:{41+2*q}], v25, {WS}, {so} offen offset:{2048*(q%2)} sc1")
    GL = k.o.get("gl", "1") == "1"
    if not GL: gather()
    a(f"s_waitcnt vmcnt({8 if GL else 14})")
    a("s_barrier")
    if GL: gather()
    a("s_waitcnt vmcnt(6)")
    a("s_barrier")
    a(f"s_mov_b32 s{S_SPIN}, 0")
    a.label("L_p1_gchk")
    a("s_waitcnt vmcnt(0)")
    a(f"v_xor_b32 v2, s{S_NONCE}, v37")
    a(f"v_xor_b32 v3, s{S_NONCE}, v39")
    for q in range(5):
        a(f"v_xor_b32 v4, s{S_NONCE}, v{41+2*q}")
        a("v_or3_b32 v2, v2, v3, v4")
    a("v_cmp_ne_u32 vcc, 0, v2")
    a("s_cbranch_vccz L_p1_gok")
    a(f"s_add_u32 s{S_SPIN}, s{S_SPIN}, 1")
    a(f"s_cmp_ge_u32 s{S_SPIN}, {SPIN_MAX}")
    a("s_cbranch_scc1 L_p1_gok")
    k.diag("gather")
    gather()
    a("s_branch L_p1_gchk")
    a.label("L_p1_gok")
    a("v_add_f32 v40, v40, v42")
    a("v_add_f32 v44, v44, v46")
    a("v_add_f32 v40, v40, v48")
    a("v_add_f32 v40, v40, v44")
    qs = math.log2(math.e) / math.sqrt(20.0)
    a(f"s_cmp_lt_u32 s{k.sCT}, 5")
    a(f"s_cselect_b32 s{T1}, 0x{f2u(qs):08x}, 1.0")
    a("v_mov_b32 v41, v40")
    a(f"v_mul_f32 v36, s{T1}, v36")
    a(f"v_mul_f32 v37, s{T1}, v38")
    a("v_permlane32_swap_b32 v40, v41")
    a("v_lshlrev_b32 v1, 1, v27")
    a("v_add_f32 v40, v40, v41")
    a(f"v_add_u32 v1, {STF}, v1")
    a(f"v_add_u32 v27, {CSF}, v27")
    a("ds_write_b32 v27, v40")
    a("ds_write_b64 v1, v[36:37]")
    a(f"ds_write_b32 v27, v36 offset:{STV - CSF}")
    a(f"ds_write_b32 v27, v37 offset:{STV - CSF + 512}")
    a("s_waitcnt lgkmcnt(0)")
    a("s_barrier")
    k.stamp(4)
    a("s_branch L_p1_done")
    a.label("L_p1_c")
    sTH, sNH = k.sTG, k.sNH
    a(f"s_and_b32 s{sTH}, s{S_W}, 1")
    a(f"s_bfe_u32 s{sNH}, s{S_W}, 0x10001")
    a(f"s_cmp_ge_u32 s{k.sCT}, 5")
    a(f"s_cselect_b32 s{T0}, 5, 0")
    a(f"s_sub_u32 s{T0}, s{k.sCT}, s{T0}")
    a(f"s_lshl_b32 s{T0}, s{T0}, 1")
    a(f"s_add_u32 s{T0}, s{T0}, s{sNH}")
    for idx in range(10):
        a(f"s_cmp_eq_u32 s{T0}, {idx}")
        a(f"s_cbranch_scc1 L_tab{idx}")
    a(f"s_mul_i32 s{T1}, s{sNH}, 0x10101010")
    for q in range(4): a(f"s_add_u32 s{k.sTAB+q}, s{T1}, 0x%08x" % (0x03020100 + 0x04040404 * q))
    a(f"s_mov_b32 s{k.sTAB+4}, 0")
    a(f"s_mov_b32 s{k.sTAB+5}, 0")
    a("s_branch L_tabdone")
    for idx in range(10):
        a.label(f"L_tab{idx}")
        for q, d in enumerate(p1_table(idx // 2, idx % 2)): a(f"s_mov_b32 s{k.sTAB+q}, 0x%08x" % d)
        if idx < 9: a("s_branch L_tabdone")
    a.label("L_tabdone")
    a("v_and_b32 v1, 31, v0")
    a(f"s_lshl_b32 s{T0}, s{sTH}, 6")
    a(f"v_add_u32 v2, s{T0}, v1")
    a("v_bfe_u32 v3, v2, 1, 3")
    a("v_lshrrev_b32 v4, 5, v0")
    a("v_xor_b32 v3, v3, v4")
    a("v_lshlrev_b32 v3, 4, v3")
    a(f"v_lshl_add_u32 v{XA}, v2, 7, v3")
    for ks in range(1, 4): a(f"v_xor_b32 v{XA+ks}, {ks<<5}, v{XA}")
    a(f"v_lshlrev_b32 v87, 3, v2")
    a(f"v_add_u32 v87, {STF}, v87")
    a("v_bfe_u32 v5, v0, 2, 2")
    a("v_lshl_add_u32 v6, v4, 3, v5")
    a("v_lshlrev_b32 v6, 8, v6")
    a("v_and_b32 v7, 3, v0")
    a("v_lshlrev_b32 v7, 3, v7")
    a("v_and_b32 v8, 16, v0")
    a("v_cmp_ne_u32 vcc, 0, v8")
    for i in range(2):
        a(f"v_mov_b32 v8, s{k.sTAB+2*i}")
        a(f"v_mov_b32 v9, s{k.sTAB+2*i+1}")
        a("v_cndmask_b32 v8, v8, v9, vcc")
        a("v_bfe_u32 v8, v8, v7, 8")
        a("v_lshlrev_b32 v8, 3, v8")
        a("v_lshlrev_b32 v9, 6, v5")
        a("v_xor_b32 v8, v8, v9")
        a(f"v_add_u32 v{WA+i}, v6, v8")
    a(f"s_lshl_b32 s{T0}, s{k.sRB}, 2")
    a(f"s_lshl_b32 s{T1}, s{sTH}, 1")
    a(f"s_add_u32 s{T0}, s{T0}, s{T1}")
    a(f"s_cmp_ge_u32 s{k.sCT}, 10")
    a("s_cbranch_scc1 L_p1_vaddr")
    a(f"s_lshl_b32 s{T0}, s{T0}, 9")
    a(f"s_cmp_ge_u32 s{k.sCT}, 5")
    a(f"s_cselect_b32 s{T1}, {WS_K}, {WS_Q}")
    a(f"s_add_u32 s{T0}, s{T0}, s{T1}")
    a(f"v_lshl_add_u32 v2, v1, 4, s{T0}")
    a("v_lshlrev_b32 v3, 3, v4")
    a("v_add_u32 v5, 16, v3")
    a(f"v_mov_b32 v7, {CSF}")
    for i in range(2):
        for qq in range(2):
            a(f"v_bfe_u32 v6, s{k.sTAB+4+i}, v{3 if qq == 0 else 5}, 8")
            a(f"v_lshl_add_u32 v{STA+2*i+qq}, v6, 15, v2")
        for q4 in range(4):
            a(f"v_bfe_u32 v6, s{k.sTAB+2*i+q4//2}, v{3 if q4 % 2 == 0 else 5}, 8")
            a(f"v_lshl_add_u32 v{CSA+4*i+q4}, v6, 4, v7")
    a("s_branch L_p1_addrdone")
    a.label("L_p1_vaddr")
    a(f"s_mul_i32 s{T0}, s{T0}, 1280")
    a(f"s_add_u32 s{T0}, s{T0}, {WS_V}")
    a(f"s_lshl_b32 s{T1}, s{k.sCT}, 7")
    a(f"s_lshl_b32 s{T2}, s{sNH}, 6")
    a(f"s_add_u32 s{T1}, s{T1}, s{T2}")
    a(f"s_sub_u32 s{T1}, s{T1}, 1280")
    a(f"v_mov_b32 v{STA+2}, 0")
    a(f"v_mov_b32 v{STA+3}, 0")
    a(f"s_lshl_b32 s{T2}, s{T2}, 2")
    a(f"s_add_u32 s{T2}, s{T2}, {CSF}")
    a(f"v_lshl_add_u32 v{CSA}, v1, 2, s{T2}")
    a(f"s_lshl_b32 s{T2}, s{sTH}, 8")
    a(f"s_add_u32 s{T2}, s{T2}, {STV}")
    a(f"v_lshl_add_u32 v{CSA+1}, v4, 4, s{T2}")
    a("v_mul_u32_u24 v3, 320, v4")
    a(f"v_add_u32 v3, s{T0}, v3")
    a(f"s_mov_b32 s{T2}, 81920")
    for i in range(2):
        a(f"v_add_u32 v5, s{T1}, v1")
        if i: a("v_add_u32 v5, 32, v5")
        a("v_mul_u32_u24 v6, 3277, v5")
        a("v_lshrrev_b32 v6, 16, v6")
        a("v_mul_u32_u24 v7, 20, v6")
        a("v_sub_u32 v5, v5, v7")
        a("v_lshl_add_u32 v5, v5, 4, v3")
        a(f"v_mad_u32_u24 v{STA+i}, v6, s{T2}, v5")
    a.label("L_p1_addrdone")
    for r in range(64): a(f"v_mov_b32 v{ACC+r}, 0")
    a(f"v_mov_b32 v{VXM}, 0x8000")
    a(f"s_mov_b32 s{k.sCNT}, 0")
    k.stamp(2)
    a("s_waitcnt vmcnt(0)")
    a("s_barrier")
    k.stamp(3)
    def rlist(ks):
        r = [f"ds_read_b128 {vr(XF+8*ks+4*t,4)}, v{XA+ks} offset:{4096*t}" for t in range(2)]
        for i in range(2):
            for rd in range(2): r.append(f"ds_read_b64_tr_b16 {vr(WF+8*ks+4*i+2*rd,2)}, v{WA+i} offset:{16384+ks*4096+rd*1024}")
        return r
    for ks in range(2):
        for x in rlist(ks): a(x)
    a(f"v_xor_b32 v{XA}, v{VXM}, v{XA}")
    a(f"v_xor_b32 v{XA+1}, v{VXM}, v{XA+1}")
    a(f"s_cmp_ge_u32 s{k.sCT}, 10")
    a("s_cbranch_scc1 L_p1_v")
    for vmode in (False, True):
        if vmode: a.label("L_p1_v")
        def mf(ks, i, t):
            x = vr(XF + 8 * ks + 4 * t, 4); w = vr(WF + 8 * ks + 4 * i, 4); acc = vr(ACC + 16 * (2 * i + t), 16)
            a(f"{M32} {acc}, {x}, {w}, {acc}" if vmode else f"{M32} {acc}, {w}, {x}, {acc}")
        def comp(ks, rd=True, bar=False, wait=6, mid=None):
            k.jit(2)
            n = (ks + 2) % 4
            r = rlist(n) if rd else []
            a(f"s_waitcnt lgkmcnt({wait})")
            for m, (i, t) in enumerate(((0, 0), (0, 1), (1, 0), (1, 1))):
                mf(ks, i, t)
                if m == 0 and bar:
                    a("s_barrier")
                    if k.o.get("its") == "1": k.stamp_dyn(54, k.sCNT)
                if m == 0 and mid: mid()
                for x in r[2 * m: 2 * m + 2]: a(x)
                if m == 3 and rd:
                    a(f"v_xor_b32 v{XA+n}, v{VXM}, v{XA+n}")
                    if n == 3:
                        for i2 in range(2): a(f"v_xor_b32 v{WA+i2}, v{VXM}, v{WA+i2}")
                        a(f"v_xor_b32 v{VXM}, 0x10000, v{VXM}")
        L = a.newlabel("p1loop")
        a.align(3)
        a.label(L)
        comp(0); comp(1); comp(2, bar=True); comp(3)
        a(f"s_add_u32 s{k.sCNT}, s{k.sCNT}, 1")
        a(f"s_cmp_lt_u32 s{k.sCNT}, 9")
        a(f"s_cbranch_scc1 {L}")
        comp(0); comp(1)
        def terms():
            a(f"v_mov_b32 v1, {NON}")
            a(f"ds_read_b64 v[{k.VN+116}:{k.VN+117}], v1".replace(f"{k.VN+116}:{k.VN+117}", "2:3"))
            if vmode:
                a(f"ds_read_b32 v12, v{CSA}")
                a(f"ds_read_b32 v13, v{CSA} offset:128")
                for t in range(2):
                    for q4 in range(4):
                        a(f"ds_read_b128 {vr(EP+32*t+4*q4,4)}, v{CSA+1} offset:{128*t+32*q4}")
                        a(f"ds_read_b128 {vr(EP+32*t+16+4*q4,4)}, v{CSA+1} offset:{512+128*t+32*q4}")
            else:
                a("ds_read_b64 v[12:13], v87")
                a("ds_read_b64 v[14:15], v87 offset:256")
                for i in range(2):
                    for q4 in range(4): a(f"ds_read_b128 {vr(EP+4+16*i+4*q4,4)}, v{CSA+4*i+q4}")
        if k.o.get("gl", "1") == "1":
            comp(2, rd=False)
            comp(3, rd=False, bar=True, mid=terms, wait=0)
        else:
            comp(2, rd=False, bar=True, mid=terms)
            comp(3, rd=False, wait=min(15, 19 if vmode else 11))
        k.stamp(4)
        a("s_waitcnt lgkmcnt(0)")
        a(f"v_readfirstlane_b32 s{S_NONCE}, v2")
        a(f"v_readfirstlane_b32 s{S_NONCE+1}, v3")
        a("s_nop 5")
        n = 0
        for i in range(2):
            for t in range(2):
                b = ACC + 16 * (2 * i + t)
                for g in range(2):
                    o = 4 + 4 * (n % 2); n += 1
                    for r in range(8 * g, 8 * g + 8, 2):
                        if vmode: a(f"v_pk_mul_f32 {vr(b+r,2)}, {vr(EP+32*t+r,2)}, {vr(b+r,2)}")
                        else: a(f"v_pk_mul_f32 {vr(b+r,2)}, {vr(12+2*t,2)}, {vr(b+r,2)} op_sel_hi:[0,1]")
                    for r in range(8 * g, 8 * g + 8, 2):
                        if vmode: a(f"v_pk_fma_f32 {vr(b+r,2)}, {vr(EP+32*t+16+r,2)}, v[12:13], {vr(b+r,2)} op_sel:[0,{i},0] op_sel_hi:[1,{i},1] neg_lo:[1,0,0] neg_hi:[1,0,0]")
                        else: a(f"v_pk_fma_f32 {vr(b+r,2)}, {vr(12+2*t,2)}, {vr(EP+4+16*i+r,2)}, {vr(b+r,2)} op_sel:[1,0,0] op_sel_hi:[1,1,1] neg_lo:[1,0,0] neg_hi:[1,0,0]")
                    for r in range(4): a(f"v_cvt_pk_bf16_f32 v{o+r}, v{b+8*g+2*r}, v{b+8*g+2*r+1}")
                    if vmode: a(f"buffer_store_dwordx4 v[{o}:{o+3}], v{STA+i}, {WS}, 0 offen offset:{640*g+1280*t} sc1")
                    else: a(f"buffer_store_dwordx4 v[{o}:{o+3}], v{STA+2*i+g}, {WS}, 0 offen offset:{512*t} sc1")
        if not vmode: a("s_branch L_p1_done")
```

```python
import sys, math
from asmlib import Asm, vr, sr, f2u, check
from tables import *

NAME = "sequential_preLN__mha_block__dense_activation_silu__prompt"
LDS_BYTES = 163840
SPIN_MAX = 200000

S_G = 2
SRD_X, SRD_WQ, SRD_WS, SRD_OUT, SRD_DBG, SRD_RL = 4, 8, 12, 16, 20, 24
S_W, S_C, S_J = 28, 29, 30
S_NONCE = 32
S_PTR = 36
T0, T1, T2, T3, T4, T5 = 54, 55, 56, 57, 58, 59
S_M1 = 60
S_SPIN = 62

class K:
    def __init__(self, stop_after=99, opts=None):
        self.a = Asm()
        self.stop = stop_after
        self.o = opts or {}
        self.pad = 0
        self._sides = []; self._late1 = []; self._tail = []

    def srd(self, d, ptr, nbytes):
        a = self.a
        a(f"s_mov_b32 s{d}, s{ptr}")
        a(f"s_and_b32 s{d+1}, s{ptr+1}, 0xffff")
        a(f"s_mov_b32 s{d+2}, {nbytes}")
        a(f"s_mov_b32 s{d+3}, 0x20000")

    def stamp(self, idx):
        if idx: self.jit(4)
        if not self.o.get("stamps"): return
        if self.o["stamps"] == "min" and idx not in (0, 9, 10, 31) + tuple(int(z) for z in self.o.get("ms", "").split(".") if z): return
        a = self.a
        a("s_memrealtime s[100:101]")
        a("s_waitcnt lgkmcnt(0)")
        a(f"v_writelane_b32 v255, s100, {idx}")
        if idx < 22 and self.o["stamps"] != "min":
            a("s_memtime s[100:101]")
            a("s_waitcnt lgkmcnt(0)")
            a(f"v_writelane_b32 v255, s100, {idx+32}")

    def stamp_dyn(self, base, sreg):
        if not self.o.get("its"): return
        a = self.a
        a("s_memtime s[100:101]")
        a("s_mov_b32 s99, m0")
        a(f"s_add_u32 m0, s{sreg}, {base}")
        a("s_waitcnt lgkmcnt(0)")
        a("v_writelane_b32 v255, s100, m0")
        a("s_mov_b32 m0, s99")

    def stamp_flush(self):
        if not self.o.get("stamps"): return
        a = self.a
        if self.o.get("dbgwg"):
            L = a.newlabel("dbg")
            a(f"s_cmp_lg_u32 s{S_G}, {int(self.o['dbgwg'])}")
            a(f"s_cbranch_scc1 {L}")
            a(f"s_cmp_lg_u32 s{S_W}, 0")
            a(f"s_cbranch_scc1 {L}")
            a(f"v_readlane_b32 s{T1}, v255, 0")
            for n, i in enumerate((3, 4, 7, 8, 9, 10, 12, 13, 15, 16, 18, 19, 31)):
                a(f"v_readlane_b32 s{T0}, v255, {i}")
                a("s_nop 3")
                a(f"s_sub_u32 s{T0}, s{T0}, s{T1}")
                a(f"v_mov_b32 v1, s{T0}")
                a(f"v_mov_b32 v2, {8+4*n}")
                a(f"buffer_store_dword v1, v2, s[{SRD_DBG}:{SRD_DBG+3}], 0 offen")
            a.label(L)
            return
        a(f"s_lshl_b32 s{T0}, s{S_G}, 3")
        a(f"s_add_u32 s{T0}, s{T0}, s{S_W}")
        a(f"s_lshl_b32 s{T0}, s{T0}, 8")
        a(f"s_add_u32 s{T0}, s{T0}, {WS_SIZE}")
        a("v_lshlrev_b32 v1, 2, v0")
        a(f"buffer_store_dword v255, v1, s[{SRD_WS}:{SRD_WS+3}], s{T0} offen")
        a("s_mov_b64 exec, -1")

    def hold(self, key):
        if not self.o.get(key): return
        a = self.a
        L = a.newlabel("hold")
        a.label(L)
        a("s_memrealtime s[100:101]")
        a("s_waitcnt lgkmcnt(0)")
        a(f"s_sub_u32 s100, s100, s{S_NONCE}")
        a(f"s_cmp_lt_u32 s100, {int(float(self.o[key]) * 100)}")
        a(f"s_cbranch_scc1 {L}")

    def jit(self, bits=3):
        if not self.o.get("jit"): return
        a = self.a
        L = a.newlabel("jit"); Ld = a.newlabel("jitd")
        a("s_mul_i32 s35, s35, 1103515245")
        a("s_add_u32 s35, s35, 12345")
        a(f"s_bfe_u32 s34, s35, {0x10000 * (bits + 2) + 16}")
        a(f"s_sub_u32 s34, s34, {3 << bits}")
        a(f"s_cbranch_scc1 {Ld}")
        a.label(L)
        a("s_sleep 3")
        a("s_sub_u32 s34, s34, 1")
        a(f"s_cbranch_scc0 {L}")
        a.label(Ld)

    def diag(self, what):
        if self.o.get("diag") == what: self.a("s_mov_b32 s35, 1")

    def dma(self, voff, srd, soff, flags=""):
        if self.o.get("nodma"): return
        self.a(f"buffer_load_dwordx4 v{voff}, s[{srd}:{srd+3}], {soff} offen {flags} lds".replace("  ", " "))

    def flag_prep(self, vt):
        a = self.a
        a(f"v_mov_b32 v{vt}, s{S_NONCE}")
        a(f"v_mov_b32 v{vt+1}, s{S_NONCE+1}")
        a(f"v_mov_b32 v{vt+2}, 0")

    def flag_store(self, s_off, vt, pol="sc1", prepped=False, who=0):
        a = self.a
        L = a.newlabel("nofl")
        a(f"s_cmp_lg_u32 s{S_W}, {who}")
        a(f"s_cbranch_scc1 {L}")
        if not prepped: self.flag_prep(vt)
        a("s_mov_b64 exec, 1")
        a(f"buffer_store_dwordx2 v[{vt}:{vt+1}], v{vt+2}, s[{SRD_WS}:{SRD_WS+3}], s{s_off} offen {pol}")
        a("s_mov_b64 exec, -1")
        a.label(L)

    def poll(self, n, s_off, spacing, vt, only_wave0=True, who=0):
        a = self.a
        L = a.newlabel("poll"); Ld = a.newlabel("polld")
        if only_wave0:
            a(f"s_cmp_lg_u32 s{S_W}, {who}")
            a(f"s_cbranch_scc1 {Ld}")
        a(f"s_mov_b32 s{S_SPIN}, 0")
        if n == 256:
            assert spacing == 8
            a(f"v_lshlrev_b32 v{vt+8}, 4, v0")
            a.label(L)
            a(f"buffer_load_dwordx4 v[{vt}:{vt+3}], v{vt+8}, s[{SRD_WS}:{SRD_WS+3}], s{s_off} offen sc1")
            a(f"buffer_load_dwordx4 v[{vt+4}:{vt+7}], v{vt+8}, s[{SRD_WS}:{SRD_WS+3}], s{s_off} offen offset:1024 sc1")
            a(f"s_add_u32 s{S_SPIN}, s{S_SPIN}, 1")
            a("s_waitcnt vmcnt(0)")
            a(f"v_cmp_ne_u64 vcc, s[{S_NONCE}:{S_NONCE+1}], v[{vt}:{vt+1}]")
            a(f"v_cmp_ne_u64 s[{S_M1}:{S_M1+1}], s[{S_NONCE}:{S_NONCE+1}], v[{vt+2}:{vt+3}]")
            a("s_nop 0")
            a(f"s_or_b64 s[{T4}:{T5}], vcc, s[{S_M1}:{S_M1+1}]")
            a(f"v_cmp_ne_u64 vcc, s[{S_NONCE}:{S_NONCE+1}], v[{vt+4}:{vt+5}]")
            a(f"v_cmp_ne_u64 s[{S_M1}:{S_M1+1}], s[{S_NONCE}:{S_NONCE+1}], v[{vt+6}:{vt+7}]")
            a("s_nop 0")
            a(f"s_or_b64 s[{T4}:{T5}], s[{T4}:{T5}], vcc")
            a(f"s_or_b64 s[{T4}:{T5}], s[{T4}:{T5}], s[{S_M1}:{S_M1+1}]")
        else:
            a(f"v_and_b32 v{vt+2}, {n-1}, v0")
            a(f"v_mul_u32_u24 v{vt+2}, {spacing}, v{vt+2}")
            a.label(L)
            a(f"buffer_load_dwordx2 v[{vt}:{vt+1}], v{vt+2}, s[{SRD_WS}:{SRD_WS+3}], s{s_off} offen sc1")
            a(f"s_add_u32 s{S_SPIN}, s{S_SPIN}, 1")
            a("s_waitcnt vmcnt(0)")
            a(f"v_cmp_ne_u64 vcc, s[{S_NONCE}:{S_NONCE+1}], v[{vt}:{vt+1}]")
            a("s_nop 0")
            a(f"s_or_b64 s[{T4}:{T5}], vcc, vcc")
        a(f"s_cbranch_scc0 {Ld}")
        if self.o.get("psleep"): a(f"s_sleep {int(self.o['psleep'])}")
        a(f"s_cmp_lt_u32 s{S_SPIN}, {SPIN_MAX}")
        a(f"s_cbranch_scc1 {L}")
        a.label(Ld)

    def pollp(self, n, s_off, spacing, va, vt, depth):
        a = self.a
        L = a.newlabel("poll"); Ld = a.newlabel("polld")
        N = f"s[{S_NONCE}:{S_NONCE+1}]"
        a(f"s_cmp_lg_u32 s{S_W}, 0")
        a(f"s_cbranch_scc1 {Ld}")
        a(f"s_mov_b32 s{S_SPIN}, 0")
        a(f"v_and_b32 v{va}, {n-1}, v0")
        a(f"v_mul_u32_u24 v{va}, {spacing}, v{va}")
        ld = lambda i: a(f"buffer_load_dwordx2 v[{vt+2*i}:{vt+2*i+1}], v{va}, s[{SRD_WS}:{SRD_WS+3}], s{s_off} offen sc1")
        for i in range(depth - 1):
            ld(i); a(f"s_sleep {int(self.o.get('psl', 2))}")
        a.label(L)
        for i in range(depth):
            ld((i + depth - 1) % depth)
            a(f"s_waitcnt vmcnt({depth-1})")
            a(f"v_cmp_ne_u64 vcc, {N}, v[{vt+2*i}:{vt+2*i+1}]")
            a(f"s_cbranch_vccz {Ld}")
        a(f"s_add_u32 s{S_SPIN}, s{S_SPIN}, 1")
        a(f"s_cmp_lt_u32 s{S_SPIN}, {SPIN_MAX}")
        a(f"s_cbranch_scc1 {L}")
        a.label(Ld)

    def poll2(self, va, vb, s_off, vt):
        a = self.a
        L = a.newlabel("poll"); Ld = a.newlabel("polld")
        N = f"s[{S_NONCE}:{S_NONCE+1}]"
        a(f"s_cmp_lg_u32 s{S_W}, 0")
        a(f"s_cbranch_scc1 {Ld}")
        a(f"s_mov_b32 s{S_SPIN}, 0")
        a.label(L)
        a(f"buffer_load_dwordx2 v[{vt}:{vt+1}], v{va}, s[{SRD_WS}:{SRD_WS+3}], s{s_off} offen sc1")
        a(f"buffer_load_dwordx2 v[{vt+2}:{vt+3}], v{vb}, s[{SRD_WS}:{SRD_WS+3}], s{s_off} offen sc1")
        a(f"s_add_u32 s{S_SPIN}, s{S_SPIN}, 1")
        a("s_waitcnt vmcnt(0)")
        a(f"v_cmp_ne_u64 vcc, {N}, v[{vt}:{vt+1}]")
        a(f"v_cmp_ne_u64 s[{S_M1}:{S_M1+1}], {N}, v[{vt+2}:{vt+3}]")
        a("s_nop 0")
        a(f"s_or_b64 vcc, vcc, s[{S_M1}:{S_M1+1}]")
        a(f"s_cbranch_scc0 {Ld}")
        if self.o.get("psleep"): a(f"s_sleep {int(self.o['psleep'])}")
        a(f"s_cmp_lt_u32 s{S_SPIN}, {SPIN_MAX}")
        a(f"s_cbranch_scc1 {L}")
        a.label(Ld)

    def entry(self):
        a = self.a
        a(f"s_cmp_ge_u32 s{S_G}, 256")
        a("s_cbranch_scc1 L_end")
        a(f"s_load_dwordx2 s[{SRD_X}:{SRD_X+1}], s[0:1], 0")
        a(f"s_load_dwordx2 s[{SRD_WQ}:{SRD_WQ+1}], s[0:1], 8")
        a(f"s_load_dwordx2 s[{SRD_DBG}:{SRD_DBG+1}], s[0:1], 56")
        a(f"s_load_dwordx16 s[{S_PTR}:{S_PTR+15}], s[0:1], 0")
        a(f"s_load_dwordx2 s[{S_PTR+16}:{S_PTR+17}], s[0:1], 64")
        a(f"s_memrealtime s[{S_NONCE}:{S_NONCE+1}]")
        if self.o.get("stamps"): a("v_mov_b32 v255, 0")
        self.stamp(0)
        a("v_lshrrev_b32 v1, 6, v0")
        a("v_and_b32 v0, 63, v0")
        a(f"v_readfirstlane_b32 s{S_W}, v1")
        a(f"s_and_b32 s{S_C}, s{S_G}, 7")
        a(f"s_lshr_b32 s{S_J}, s{S_G}, 3")
        if self.o.get("cpfe", "1") == "1": self.code_prefetch(int(self.o.get("cpfw", 1)))

    def code_prefetch(self, wave):
        a = self.a
        if self.o.get("cpf", "1") != "1": return
        Lc = a.newlabel("cpf")
        a(f"s_cmp_lg_u32 s{S_W}, {wave}")
        a(f"s_cbranch_scc1 {Lc}")
        a(f"s_getpc_b64 s[{T4}:{T5}]")
        a.label("L_pc_here")
        a(f"s_mul_i32 s{T0}, s{S_J}, {self.CPF_LINES*128}")
        a(f"s_sub_u32 s{T0}, s{T0}, L_pc_here-{NAME}_kernel")
        a(f"v_lshl_add_u32 v3, v0, 7, s{T0}")
        a("v_ashrrev_i32 v5, 31, v3")
        a(f"v_mov_b32 v6, s{T5}")
        a(f"v_add_co_u32 v4, vcc, s{T4}, v3")
        a(f"s_mov_b64 exec, {(1 << self.CPF_LINES) - 1}")
        a("s_nop 0")
        a("v_addc_co_u32 v5, vcc, v5, v6, vcc")
        a("global_load_dword v254, v[4:5], off")
        a("s_mov_b64 exec, -1")
        a.label(Lc)

    ACC = 16; XF = 160; WF = 176; XA = 72; WA = 144; DXA, DXB, DW = 78, 79, 80; VXM = 76
    ONES = 82
    CQ = 96
    CQA = 81; CSW = 85
    PGA, PGV, PGR, PGD = 116, 117, 118, 119
    RSA, RS = 84, 128
    STA = 86
    RLV, RLA = 157, 158
    VN = 92
    sRB, sCT, sKC, sXO, sWO, sSLOT, sCNT, sXM, sTG, sNH = 64, 65, 66, 67, 68, 69, 70, 71, 72, 73
    sTAB = 74
    sM0X = 80; sWO2 = 81; sKC0 = 82; sSIDE = 83; sXB = 71; sWB = 69
    sRL = 84
    P1_MISC = 148 * 1024
    RL_SCR = 68 * 1024
    CQ_SCR = 128 * 1024
    DUMMY = 159 * 1024
    CPF_LINES = 8

    def p1_issue(self, pieces=(0, 1, 2, 3)):
        a = self.a
        if 0 in pieces:
            a(f"s_mov_b32 m0, s{self.sM0X}")
            a(f"s_add_u32 s{self.sM0X}, s{self.sM0X}, 32768")
            self.dma(self.DXA, SRD_X, f"s{self.sXO}")
        if 1 in pieces:
            a("s_add_u32 m0, m0, 16384")
            a(f"s_add_u32 s{self.sWO2}, s{self.sWO}, 15360")
            self.dma(self.DW, SRD_WQ, f"s{self.sWO}")
        if 2 in pieces:
            a("s_sub_u32 m0, m0, 15360")
            a(f"s_add_u32 s{self.sWO}, s{self.sWO}, 245760")
            self.dma(self.DXB, SRD_X, f"s{self.sXO}")
        if 3 in pieces:
            a("s_add_u32 m0, m0, 16384")
            a(f"s_add_u32 s{self.sXO}, s{self.sXO}, 128")
            self.dma(self.DW, SRD_WQ, f"s{self.sWO2}")
            a(f"s_and_b32 s{self.sM0X}, s{self.sM0X}, 0x1ffff")
            a(f"s_sub_u32 s{self.sKC}, s{self.sKC}, 1")
            a(f"s_cmov_b32 s{self.sXO}, s{self.sXB}")
            a(f"s_cmov_b32 s{self.sWO}, s{self.sWB}")

    def p1_setup_a(self):
        a = self.a
        a(f"s_lshr_b32 s{T0}, s{S_C}, 1")
        a(f"s_lshl_b32 s{T0}, s{T0}, 2")
        a(f"s_lshr_b32 s{T1}, s{S_J}, 3")
        a(f"s_add_u32 s{self.sRB}, s{T0}, s{T1}")
        a(f"s_and_b32 s{T0}, s{S_C}, 1")
        a(f"s_lshl_b32 s{T0}, s{T0}, 3")
        a(f"s_and_b32 s{T2}, s{S_J}, 7")
        a(f"s_add_u32 s{self.sCT}, s{T0}, s{T2}")
        g = int(self.o.get("rotg", 3))
        if g == 8:
            a(f"s_lshl_b32 s{T1}, s{T1}, 1")
            a(f"s_add_u32 s{self.sKC}, s{T2}, s{T1}")
            a(f"s_bfe_u32 s{T0}, s{S_C}, 0x10001")
            a(f"s_and_b32 s{T1}, s{S_C}, 4")
            a(f"s_lshl_b32 s{T1}, s{T1}, 1")
            a(f"s_add_u32 s{T0}, s{T0}, s{T1}")
            a(f"s_add_u32 s{self.sKC}, s{self.sKC}, s{T0}")
        else:
            bases, offs, shift = {3: ((0, 3, 7), (0, 1, 2, 6), 0), 4: ((0, 2, 5, 7), (0, 1, 2, 3), 0), 5: ((0, 2, 4, 6, 8), (0, 1, 0, 1), 1)}[g]
            a(f"s_add_u32 s{T1}, s{T1}, s{T2}")
            a(f"s_lshr_b32 s{T0}, s{S_C}, 1")
            if shift: a(f"s_add_u32 s{T1}, s{T1}, s{T0}")
            tab = sum(bases[i % g] << (4 * i) for i in range(16))
            a(f"s_lshl_b32 s{T1}, s{T1}, 2")
            a(f"s_mov_b32 s{T4}, 0x{tab & 0xffffffff:08x}")
            a(f"s_mov_b32 s{T5}, 0x{tab >> 32:08x}")
            a(f"s_lshr_b64 s[{T4}:{T5}], s[{T4}:{T5}], s{T1}")
            a(f"s_and_b32 s{self.sKC}, s{T4}, 15")
            a(f"s_lshl_b32 s{T0}, s{T0}, 2")
            a(f"s_lshr_b32 s{T0}, 0x{sum(o << (4 * i) for i, o in enumerate(offs)):04x}, s{T0}")
            a(f"s_and_b32 s{T0}, s{T0}, 15")
            a(f"s_add_u32 s{self.sKC}, s{self.sKC}, s{T0}")
            for ct in range(8):
                assert len({(bases[(ct + rl + shift * aa) % g] + offs[aa]) % 10 for aa in range(4) for rl in range(4)}) == 10
        a(f"s_mul_i32 s{T0}, s{self.sKC}, 26")
        a(f"s_lshr_b32 s{T0}, s{T0}, 8")
        a(f"s_mul_i32 s{T0}, s{T0}, 10")
        a(f"s_sub_u32 s{self.sKC}, s{self.sKC}, s{T0}")
        a(f"s_mov_b32 s{self.sKC0}, s{self.sKC}")
        a(f"s_mul_i32 s{self.sXB}, s{self.sRB}, 163840")
        a(f"s_lshl_b32 s{T0}, s{self.sKC}, 7")
        a(f"s_add_u32 s{self.sXO}, s{self.sXB}, s{T0}")
        a(f"s_mul_i32 s{self.sWO}, s{self.sKC}, 245760")
        a(f"s_lshl_b32 s{self.sWB}, s{self.sCT}, 8")
        a(f"s_add_u32 s{self.sWO}, s{self.sWO}, s{self.sWB}")
        a(f"s_lshl_b32 s{self.sM0X}, s{S_W}, 11")
        a(f"s_sub_u32 s{self.sKC}, 9, s{self.sKC}")
        a("v_lshrrev_b32 v1, 3, v0")
        a("v_lshrrev_b32 v2, 4, v0")
        a("v_and_b32 v3, 7, v0")
        a("v_xor_b32 v3, v3, v2")
        a(f"s_lshl_b32 s{T0}, s{S_W}, 4")
        a(f"v_add_u32 v4, s{T0}, v1")
        a("v_mul_u32_u24 v4, 1280, v4")
        a(f"v_lshl_add_u32 v{self.DXA}, v3, 4, v4")
        a(f"v_xor_b32 v{self.DXB}, 64, v{self.DXA}")
        a(f"v_add_u32 v{self.DXB}, 10240, v{self.DXB}")
        a("v_lshlrev_b32 v3, 2, v2")
        a("v_and_b32 v4, 15, v0")
        a("v_xor_b32 v3, v3, v4")
        a(f"s_lshl_b32 s{T0}, s{S_W}, 3")
        a(f"v_add_u32 v4, s{T0}, v2")
        a("v_mul_u32_u24 v4, 3840, v4")
        a(f"v_lshl_add_u32 v{self.DW}, v3, 4, v4")
        for d, n in ((SRD_X, 2048 * 1280), (SRD_WQ, 640 * 3840), (SRD_DBG, 256)):
            a(f"s_mov_b32 s{d+2}, {n}")
            a(f"s_mov_b32 s{d+3}, 0x20000")
        a("s_waitcnt lgkmcnt(0)")
        if self.o.get("jit"):
            a(f"s_mul_i32 s35, s{S_G}, 977")
            a(f"s_mul_i32 s34, s{S_W}, 7919")
            a("s_add_u32 s35, s35, s34")
            a(f"s_add_u32 s35, s35, s{S_NONCE}")
        if self.o.get("fixown"): a(f"s_mov_b32 s31, s{S_NONCE}")
        if self.o.get("diag"): a("s_mov_b32 s35, 0")
        a(f"s_or_b32 s{T0}, s{S_G}, s{S_W}")
        a("s_cbranch_scc0 L_nonce_pub")
        a.label("L_nonce_done")
        a(f"s_cmp_eq_u32 s{self.sCT}, 15")
        a("s_cbranch_scc1 L_p1_noissue")
        self.p1_issue()
        if self.o.get("first5", "1") == "1" and self.o.get("p1v", "2") != "2": self.p1_issue((0,))
        a.label("L_p1_noissue")
        self.stamp(1)
        self.srd(SRD_WS, S_PTR + 16, WS_SIZE + ((1 << 20) if self.o.get("stamps") else 0))
        self.srd(SRD_OUT, S_PTR + 12, 2048 * 1280)
        a(f"s_mov_b64 s[{SRD_RL}:{SRD_RL+1}], 0")
        a(f"s_mov_b32 s{SRD_RL+2}, 0")
        a(f"s_mov_b32 s{SRD_RL+3}, 0x20000")
        a(f"v_mov_b32 v{self.RLV}, 0")
        if self.o.get("cpfe", "1") != "1": self.code_prefetch(7)

    def relayout_setup(self):
        a = self.a
        R = self.sRL
        u = a.newlabel("u")
        sID, sKS, sCB, sST, sA, sB, sCc, sD = T0, T1, T2, T3, 93, 94, 95, 96
        sBase, sSl, sKsS = 97, 98, 99
        a(f"s_mul_i32 s{sID}, s{S_G}, 5")
        a(f"s_add_u32 s{sID}, s{sID}, s{S_W}")
        a(f"s_sub_u32 s{sID}, s{sID}, 1")
        a(f"s_min_u32 s{sID}, s{sID}, 1279")
        a(f"s_mov_b32 s{sA}, 16")
        a(f"s_mov_b32 s{sB}, 8")
        a(f"s_mov_b32 s{sCc}, 4")
        a(f"s_mov_b32 s{SRD_RL+3}, 0x20000")
        a(f"s_mov_b32 s{R+8}, -1")
        a(f"s_cmp_lt_u32 s{sID}, 200")
        a(f"s_cbranch_scc1 L_rl_wo{u}")
        a(f"s_cmp_lt_u32 s{sID}, 740")
        a(f"s_cbranch_scc1 L_rl_w1{u}")
        a(f"s_sub_u32 s{sID}, s{sID}, 740")
        a(f"s_mul_i32 s{sKS}, s{sID}, 6554")
        a(f"s_lshr_b32 s{sKS}, s{sKS}, 16")
        a(f"s_mul_i32 s{sCB}, s{sKS}, 10")
        a(f"s_sub_u32 s{sCB}, s{sID}, s{sCB}")
        a(f"s_lshl_b32 s{sD}, s{sKS}, 5")
        a(f"s_mov_b32 s{SRD_RL}, s{S_PTR+10}")
        a(f"s_and_b32 s{SRD_RL+1}, s{S_PTR+11}, 0xffff")
        a(f"s_mov_b32 s{SRD_RL+2}, {1728*1280}")
        a(f"s_mov_b32 s{sBase}, {WS_W2}")
        a(f"s_mov_b32 s{sSl}, {54*5120}")
        a(f"s_cmp_ge_u32 s{sKS}, 48")
        a(f"s_cselect_b32 s{sA}, 4, 16")
        a(f"s_cselect_b32 s{sB}, 16, 8")
        a(f"s_cselect_b32 s{sCc}, 8, 4")
        a(f"s_add_u32 s{T4}, s{sKS}, 3")
        a(f"s_cmp_ge_u32 s{sKS}, 24")
        a(f"s_cselect_b32 s{T4}, s{T4}, s{sKS}")
        a(f"s_sub_u32 s{T5}, s{sKS}, 24")
        a(f"s_cmp_ge_u32 s{sKS}, 48")
        a(f"s_cselect_b32 s{T4}, s{T5}, s{T4}")
        a(f"s_cmp_ge_u32 s{sKS}, 51")
        a(f"s_cselect_b32 s{sKS}, s{sKS}, s{T4}")
        a(f"s_branch L_rl_n640{u}")
        a.label(f"L_rl_wo{u}")
        a(f"s_mul_i32 s{sKS}, s{sID}, 6554")
        a(f"s_lshr_b32 s{sKS}, s{sKS}, 16")
        a(f"s_mul_i32 s{sCB}, s{sKS}, 10")
        a(f"s_sub_u32 s{sCB}, s{sID}, s{sCB}")
        a(f"s_mul_i32 s{sD}, s{sKS}, 40")
        a(f"s_mul_i32 s{sST}, s{sKS}, 160")
        a(f"s_sub_u32 s{sST}, s{sST}, {160*16-16}")
        a(f"s_cmp_lt_u32 s{sKS}, 16")
        a(f"s_cselect_b32 s{sD}, s{sD}, s{sST}")
        a(f"s_cselect_b32 s{sA}, 8, 20")
        a(f"s_cselect_b32 s{sB}, 20, 0x50")
        a(f"s_cselect_b32 s{sCc}, 4, 40")
        a(f"s_mov_b32 s{SRD_RL}, s{S_PTR+4}")
        a(f"s_and_b32 s{SRD_RL+1}, s{S_PTR+5}, 0xffff")
        a(f"s_mov_b32 s{SRD_RL+2}, {640*1280}")
        a(f"s_mov_b32 s{sBase}, {WS_WO}")
        a(f"s_mov_b32 s{sSl}, {20*5120}")
        a(f"s_add_u32 s{T4}, s{sKS}, 2")
        a(f"s_cmp_ge_u32 s{sKS}, 8")
        a(f"s_cselect_b32 s{T4}, s{T4}, s{sKS}")
        a(f"s_sub_u32 s{T5}, s{sKS}, 8")
        a(f"s_cmp_ge_u32 s{sKS}, 16")
        a(f"s_cselect_b32 s{T4}, s{T5}, s{T4}")
        a(f"s_cmp_ge_u32 s{sKS}, 18")
        a(f"s_cselect_b32 s{sKS}, s{sKS}, s{T4}")
        a(f"s_sub_u32 s{T4}, s{sKS}, 1")
        a(f"s_cmp_ge_u32 s{sKS}, 10")
        a(f"s_cselect_b32 s{T4}, s{T4}, s{sKS}")
        a(f"s_cmp_eq_u32 s{sKS}, 9")
        a(f"s_cselect_b32 s{T4}, 18, s{T4}")
        a(f"s_cmp_eq_u32 s{sKS}, 19")
        a(f"s_cselect_b32 s{sKS}, 19, s{T4}")
        a.label(f"L_rl_n640{u}")
        a(f"s_mov_b32 s{sST}, 1280")
        a(f"s_mul_i32 s{sKsS}, s{sKS}, 5120")
        a(f"s_add_u32 s{sBase}, s{sBase}, s{sKsS}")
        for t in range(4):
            a(f"s_lshl_b32 s{T4}, s{sCB}, 2")
            a(f"s_add_u32 s{T4}, s{T4}, {t}")
            a(f"s_mul_i32 s{T5}, s{T4}, 52")
            a(f"s_lshr_b32 s{T5}, s{T5}, 8")
            a(f"s_mul_i32 s{R+4+t}, s{T5}, s{sSl}")
            a(f"s_mul_i32 s{T5}, s{T5}, 5")
            a(f"s_sub_u32 s{T4}, s{T4}, s{T5}")
            a(f"s_lshl_b32 s{T4}, s{T4}, 10")
            a(f"s_add_u32 s{R+4+t}, s{R+4+t}, s{T4}")
            a(f"s_add_u32 s{R+4+t}, s{R+4+t}, s{sBase}")
        a(f"s_branch L_rl_common{u}")
        a.label(f"L_rl_w1{u}")
        a(f"s_sub_u32 s{sID}, s{sID}, 200")
        a(f"s_mul_i32 s{sKS}, s{sID}, 2428")
        a(f"s_lshr_b32 s{sKS}, s{sKS}, 16")
        a(f"s_mul_i32 s{sCB}, s{sKS}, 27")
        a(f"s_sub_u32 s{sCB}, s{sID}, s{sCB}")
        a(f"s_lshr_b32 s{T4}, s{sKS}, 1")
        a(f"s_mul_i32 s{T4}, s{T4}, 0x50")
        a(f"s_and_b32 s{T5}, s{sKS}, 1")
        a(f"s_lshl_b32 s{T5}, s{T5}, 5")
        a(f"s_add_u32 s{sD}, s{T4}, s{T5}")
        a(f"s_mul_i32 s{T4}, s{sKS}, 160")
        a(f"s_sub_u32 s{T4}, s{T4}, {160*16-64}")
        a(f"s_cmp_lt_u32 s{sKS}, 16")
        a(f"s_cselect_b32 s{sD}, s{sD}, s{T4}")
        a(f"s_cselect_b32 s{sA}, 16, 4")
        a(f"s_cselect_b32 s{sB}, 8, 0x50")
        a(f"s_cselect_b32 s{sCc}, 4, 8")
        a(f"s_mov_b32 s{SRD_RL}, s{S_PTR+8}")
        a(f"s_and_b32 s{SRD_RL+1}, s{S_PTR+9}, 0xffff")
        a(f"s_mov_b32 s{SRD_RL+2}, {640*3456}")
        a(f"s_mov_b32 s{sST}, 3456")
        a(f"s_mul_i32 s{sKsS}, s{sKS}, 7168")
        a(f"s_add_u32 s{sBase}, s{sKsS}, {WS_W1}")
        a(f"s_mul_i32 s{R+8}, s{sKS}, {1728*4}")
        a(f"s_lshl_b32 s{T4}, s{sCB}, 8")
        a(f"s_add_u32 s{R+8}, s{R+8}, s{T4}")
        a(f"s_add_u32 s{R+8}, s{R+8}, {WS_CS1}")
        for t in range(4):
            a(f"s_lshl_b32 s{T4}, s{sCB}, 2")
            a(f"s_add_u32 s{T4}, s{T4}, {t}")
            a(f"s_mul_i32 s{T5}, s{T4}, 43")
            a(f"s_lshr_b32 s{T5}, s{T5}, 8")
            a(f"s_mul_i32 s{sSl}, s{T5}, 6")
            a(f"s_sub_u32 s{sSl}, s{T4}, s{sSl}")
            a(f"s_sub_u32 s{sKsS}, s{T4}, 96")
            a(f"s_cmp_lt_u32 s{T4}, 96")
            a(f"s_cselect_b32 s{T5}, s{T5}, s{sKsS}")
            a(f"s_cselect_b32 s{sSl}, s{sSl}, 6")
            a(f"s_mul_i32 s{R+4+t}, s{T5}, {20*7168}")
            a(f"s_lshl_b32 s{sSl}, s{sSl}, 10")
            a(f"s_add_u32 s{R+4+t}, s{R+4+t}, s{sSl}")
            a(f"s_add_u32 s{R+4+t}, s{R+4+t}, s{sBase}")
        a.label(f"L_rl_common{u}")
        a(f"s_mul_i32 s{sD}, s{sD}, s{sST}")
        a(f"s_lshl_b32 s{T4}, s{sCB}, 7")
        a(f"s_add_u32 s{R}, s{sD}, s{T4}")
        a(f"s_mul_i32 s{sA}, s{sA}, s{sST}")
        a(f"s_mul_i32 s{sB}, s{sB}, s{sST}")
        a(f"s_add_u32 s{R+1}, s{R}, s{sB}")
        a(f"s_add_u32 s{R+2}, s{R}, s{sA}")
        a(f"s_add_u32 s{R+3}, s{R+2}, s{sB}")
        a("v_lshrrev_b32 v1, 5, v0")
        a(f"v_mul_u32_u24 v1, s{sCc}, v1")
        a("v_bfe_u32 v2, v0, 3, 2")
        a("v_add_u32 v1, v1, v2")
        a(f"v_mul_u32_u24 v1, s{sST}, v1")
        a("v_and_b32 v2, 7, v0")
        a(f"v_lshl_add_u32 v{self.RLV}, v2, 4, v1")
        a("v_lshrrev_b32 v1, 2, v0")
        a("v_lshlrev_b32 v1, 7, v1")
        a("v_and_b32 v2, 3, v0")
        a("v_lshl_add_u32 v1, v2, 3, v1")
        a(f"s_lshl_b32 s{T4}, s{S_W}, 12")
        a(f"s_add_u32 s{T4}, s{T4}, {self.RL_SCR-4096}")
        a(f"v_add_u32 v{self.RLA}, s{T4}, v1")

    def relayout_issue(self, drain_older=False):
        a = self.a
        L = a.newlabel("rlsk")
        a(f"s_sub_u32 s{T0}, s{S_W}, 1")
        a(f"s_cmp_ge_u32 s{T0}, {0 if self.o.get('norl') else 5}")
        a(f"s_cbranch_scc1 {L}")
        a(f"s_lshl_b32 s{T0}, s{S_W}, 12")
        a(f"s_add_u32 m0, s{T0}, {self.RL_SCR-4096}")
        for i in range(4):
            if i: a("s_add_u32 m0, m0, 1024")
            a("s_nop 0")
            self.dma(self.RLV, SRD_RL, f"s{self.sRL+i}")
        if drain_older:
            L2 = a.newlabel("rlw")
            a("s_waitcnt vmcnt(4)")
            a(f"s_branch {L2}")
            a.label(L)
            a("s_waitcnt vmcnt(0)")
            a.label(L2)
        else:
            a.label(L)

    def relayout_finish(self, younger=None):
        a = self.a
        L = a.newlabel("rlsk"); F = 168; t = 184
        a(f"s_sub_u32 s{T0}, s{S_W}, 1")
        a(f"s_cmp_ge_u32 s{T0}, 5")
        Lo = a.newlabel("rlo")
        a(f"s_cbranch_scc1 {Lo if younger is not None else L}")
        if younger is not None: a(f"s_waitcnt vmcnt({younger})")
        for q in range(4):
            for rd in range(2):
                a(f"ds_read_b64_tr_b16 v[{F+4*q+2*rd}:{F+4*q+2*rd+1}], v{self.RLA} offset:{rd*2048+q*32}")
        a(f"v_lshlrev_b32 v{t}, 4, v0")
        for q in range(4):
            a(f"s_waitcnt lgkmcnt({6-2*q})")
            a(f"buffer_store_dwordx4 v[{F+4*q}:{F+4*q+3}], v{t}, s[{SRD_WS}:{SRD_WS+3}], s{self.sRL+4+q} offen sc1")
        if younger is not None: a("s_waitcnt vmcnt(4)")
        a(f"s_cmp_eq_u32 s{self.sRL+8}, -1")
        a(f"s_cbranch_scc1 {L}")
        for q in range(4): a(f"v_mov_b32 v{t+2+q}, 0")
        a(f"v_mov_b32 v{t+6}, 0x3f803f80")
        for k in range(4):
            for q in range(4): a(f"v_dot2_f32_bf16 v{t+2+q}, v{F+4*q+k}, v{t+6}, v{t+2+q}")
        a(f"v_lshlrev_b32 v{t+1}, 2, v0")
        a("s_nop 1")
        a(f"v_permlane16_swap_b32 v{t+2}, v{t+3}")
        a(f"v_permlane16_swap_b32 v{t+4}, v{t+5}")
        a("s_nop 0")
        a(f"v_add_f32 v{t+2}, v{t+2}, v{t+3}")
        a(f"v_add_f32 v{t+4}, v{t+4}, v{t+5}")
        a("s_nop 1")
        a(f"v_permlane32_swap_b32 v{t+2}, v{t+4}")
        a("s_nop 0")
        a(f"v_add_f32 v{t+2}, v{t+2}, v{t+4}")
        a(f"buffer_store_dword v{t+2}, v{t+1}, s[{SRD_WS}:{SRD_WS+3}], s{self.sRL+8} offen sc1")
        if younger is not None:
            a(f"s_branch {L}")
            a.label(Lo)
            a("s_waitcnt vmcnt(0)")
        a.label(L)

    def p1_setup_b(self):
        a = self.a
        a(f"s_and_b32 s{self.sTG}, s{S_W}, 3")
        a(f"s_lshr_b32 s{self.sNH}, s{S_W}, 2")
        a(f"s_cmp_ge_u32 s{self.sCT}, 5")
        a(f"s_cselect_b32 s{T0}, 5, 0")
        a(f"s_sub_u32 s{T0}, s{self.sCT}, s{T0}")
        a(f"s_lshl_b32 s{T0}, s{T0}, 1")
        a(f"s_add_u32 s{T0}, s{T0}, s{self.sNH}")
        for idx in range(10):
            a(f"s_cmp_eq_u32 s{T0}, {idx}")
            a(f"s_cbranch_scc1 L_tab{idx}")
        a(f"s_mul_i32 s{T1}, s{self.sNH}, 0x10101010")
        for k in range(4): a(f"s_add_u32 s{self.sTAB+k}, s{T1}, 0x%08x" % (0x03020100 + 0x04040404 * k))
        a(f"s_mov_b32 s{self.sTAB+4}, 0")
        a(f"s_mov_b32 s{self.sTAB+5}, 0")
        a("s_branch L_tabdone")
        for idx in range(10):
            a.label(f"L_tab{idx}")
            for k, d in enumerate(p1_table(idx // 2, idx % 2)): a(f"s_mov_b32 s{self.sTAB+k}, 0x%08x" % d)
            if idx < 9: a("s_branch L_tabdone")
        a.label("L_tabdone")
        a("v_and_b32 v1, 31, v0")
        a(f"s_lshl_b32 s{T0}, s{self.sTG}, 5")
        a(f"v_add_u32 v2, s{T0}, v1")
        a("v_bfe_u32 v3, v2, 1, 3")
        a("v_lshrrev_b32 v4, 5, v0")
        a("v_xor_b32 v3, v3, v4")
        a("v_lshlrev_b32 v3, 4, v3")
        a(f"v_lshl_add_u32 v{self.XA}, v2, 7, v3")
        a(f"s_xor_b32 s{T3}, s{self.sTG}, s{self.sNH}")
        a(f"s_lshl_b32 s{T0}, s{T3}, 5")
        a(f"v_xor_b32 v{self.XA}, s{T0}, v{self.XA}")
        for ks in range(1, 4): a(f"v_xor_b32 v{self.XA+ks}, {ks<<5}, v{self.XA}")
        a("v_bfe_u32 v5, v0, 2, 2")
        a("v_lshl_add_u32 v6, v4, 3, v5")
        a("v_lshlrev_b32 v6, 8, v6")
        a("v_and_b32 v7, 3, v0")
        a("v_lshlrev_b32 v7, 3, v7")
        a("v_and_b32 v8, 16, v0")
        a("v_cmp_ne_u32 vcc, 0, v8")
        for i in range(2):
            a(f"v_mov_b32 v8, s{self.sTAB+2*i}")
            a(f"v_mov_b32 v9, s{self.sTAB+2*i+1}")
            a("v_cndmask_b32 v8, v8, v9, vcc")
            a("v_bfe_u32 v8, v8, v7, 8")
            a("v_lshlrev_b32 v8, 3, v8")
            a("v_lshlrev_b32 v9, 6, v5")
            a("v_xor_b32 v8, v8, v9")
            a(f"v_add_u32 v8, v6, v8")
            a(f"s_lshl_b32 s{T0}, s{T3}, 12")
            a(f"v_add_u32 v{self.WA+4*i}, s{T0}, v8")
            for j in range(1, 4): a(f"v_xor_b32 v{self.WA+4*i+j}, {j<<12}, v{self.WA+4*i}")
        a(f"s_lshl_b32 s{T0}, s{self.sRB}, 2")
        a(f"s_add_u32 s{T0}, s{T0}, s{self.sTG}")
        a(f"s_lshl_b32 s{T1}, s{T0}, 9")
        a(f"s_add_u32 s{T1}, s{T1}, {WS_RS}")
        a(f"v_lshl_add_u32 v{self.RSA}, v1, 4, s{T1}")
        a(f"s_cmp_ge_u32 s{self.sCT}, 10")
        a("s_cbranch_scc1 L_p1_vaddr")
        a(f"s_lshl_b32 s{T0}, s{T0}, 9")
        a(f"s_cmp_ge_u32 s{self.sCT}, 5")
        a(f"s_cselect_b32 s{T1}, {WS_K}, {WS_Q}")
        a(f"s_add_u32 s{T0}, s{T0}, s{T1}")
        a(f"v_lshl_add_u32 v2, v1, 4, s{T0}")
        a("v_lshlrev_b32 v3, 3, v4")
        a("v_add_u32 v5, 16, v3")
        for i in range(2):
            for qq in range(2):
                a(f"v_bfe_u32 v6, s{self.sTAB+4+i}, v{3 if qq == 0 else 5}, 8")
                a(f"v_lshl_add_u32 v{self.STA+2*i+qq}, v6, 15, v2")
        a("s_branch L_p1_addrdone")
        a.label("L_p1_vaddr")
        a(f"s_mul_i32 s{T0}, s{T0}, 1280")
        a(f"s_add_u32 s{T0}, s{T0}, {WS_V}")
        a(f"s_lshl_b32 s{T1}, s{self.sCT}, 7")
        a(f"s_lshl_b32 s{T2}, s{self.sNH}, 6")
        a(f"s_add_u32 s{T1}, s{T1}, s{T2}")
        a(f"s_sub_u32 s{T1}, s{T1}, 1280")
        a(f"v_mov_b32 v{self.STA+2}, 0")
        a(f"v_mov_b32 v{self.STA+3}, 0")
        a("v_mul_u32_u24 v3, 320, v4")
        a(f"v_add_u32 v3, s{T0}, v3")
        a(f"s_mov_b32 s{T2}, 81920")
        for i in range(2):
            a(f"v_add_u32 v5, s{T1}, v1")
            if i: a("v_add_u32 v5, 32, v5")
            a("v_mul_u32_u24 v6, 3277, v5")
            a("v_lshrrev_b32 v6, 16, v6")
            a("v_mul_u32_u24 v7, 20, v6")
            a("v_sub_u32 v5, v5, v7")
            a("v_lshl_add_u32 v5, v5, 4, v3")
            a(f"v_mad_u32_u24 v{self.STA+i}, v6, s{T2}, v5")
        a.label("L_p1_addrdone")
        for r in range(32): a(f"v_mov_b32 v{self.ACC+r}, 0")
        a(f"s_mul_i32 s{T0}, s{self.sCT}, 10240")
        a(f"s_lshl_b32 s{T1}, s{self.sNH}, 9")
        a(f"s_add_u32 s{T0}, s{T0}, s{T1}")
        a(f"s_add_u32 s{T0}, s{T0}, {WS_CQ}")
        a(f"v_lshl_add_u32 v{self.CQA}, v0, 3, s{T0}")
        a(f"s_lshl_b32 s{T0}, s{self.sNH}, 8")
        a(f"s_lshl_b32 s{T1}, s{self.sTG}, 9")
        a(f"s_add_u32 s{T0}, s{T0}, {self.P1_MISC}")
        a(f"s_add_u32 s{T1}, s{T1}, s{T0}")
        a(f"v_lshl_add_u32 v{self.CSW}, v0, 2, s{T1}")
        a(f"v_lshl_add_u32 v95, v0, 2, s{T0}")
        a(f"v_mov_b32 v{self.VXM}, 0x8000")
        a(f"s_lshl_b32 s{T0}, s{S_W}, 2")
        a(f"s_add_u32 s{T0}, s{T0}, {self.P1_MISC + 2304}")
        a(f"v_mov_b32 v{self.PGA}, s{T0}")
        a(f"v_mov_b32 v{self.PGV}, 0")
        a(f"v_and_b32 v{self.PGR}, 7, v0")
        a(f"v_lshlrev_b32 v{self.PGR}, 2, v{self.PGR}")
        a(f"v_add_u32 v{self.PGR}, {self.P1_MISC + 2304}, v{self.PGR}")
        a(f"ds_write_b32 v{self.PGA}, v{self.PGV}")
        a(f"s_mov_b32 s{self.sCNT}, -1")
        a(f"s_cmp_eq_u32 s{self.sTG}, 0")
        a(f"s_cselect_b32 s{self.sSIDE}, 2, 0")

    def p1_loop(self, vmode):
        a = self.a
        tag = "v" if vmode else "q"
        if self.o.get("p1soft"):
            self.p1_loop1(vmode, 0)
        else:
            a(f"s_cmp_lg_u32 s{self.sNH}, 0")
            a(f"s_cbranch_scc1 L_p1_B{tag}")
            self.p1_loop1(vmode, 0)
            a(f"s_branch L_p1_E{tag}")
            a.label(f"L_p1_B{tag}")
            self.p1_loop1(vmode, 1)
            a.label(f"L_p1_E{tag}")
        reads, xors, mf = self.p1_parts(vmode)
        def comp(ks, rd=True, xr=True):
            self.jit(2)
            a(f"s_waitcnt lgkmcnt({5 if rd or ks == 2 else 0})")
            mf(ks, 0)
            if rd: reads((ks + 2) % 4)
            mf(ks, 1)
            if xr: xors((ks + 2) % 4)
        comp(0); self.p1_issue((2,))
        comp(1); self.p1_issue((3,))
        a(f"buffer_load_dwordx4 v[{self.RS}:{self.RS+3}], v{self.RSA}, s[{SRD_WS}:{SRD_WS+3}], 0 offen sc1")
        a(f"s_mul_i32 s{T0}, s{self.sCT}, 10240")
        a(f"s_lshl_b32 s{T1}, s{S_W}, 10")
        a(f"s_add_u32 s{T0}, s{T0}, s{T1}")
        a(f"s_add_u32 s{T0}, s{T0}, {WS_CQ}")
        a(f"s_add_u32 m0, s{T1}, {self.CQ_SCR}")
        a("v_lshlrev_b32 v1, 4, v0")
        self.dma(1, SRD_WS, f"s{T0}", "sc1")
        a(f"s_add_u32 s{T0}, s{T0}, 8192")
        a("s_add_u32 m0, m0, 8192")
        a(f"s_cmp_ge_u32 s{S_W}, 2")
        a(f"s_cselect_b32 s{T0}, 0x7f000000, s{T0}")
        self.dma(1, SRD_WS, f"s{T0}", "sc1")
        a("s_waitcnt vmcnt(7)")
        a("s_barrier")
        comp(2); comp(3)
        comp(0); comp(1)
        a("s_waitcnt vmcnt(3)")
        a("s_barrier")
        comp(2, xr=False); comp(3, xr=False)
        a("s_waitcnt vmcnt(0) lgkmcnt(5)")
        a("s_barrier")
        mf(0, 0)
        self.p1_epi_reads()
        mf(0, 1)
        a("s_waitcnt lgkmcnt(11)")
        mf(1, 0); reads(2); mf(1, 1); reads(3)
        self.p1_epi_common()
        (self.p1_prep_v if vmode else self.p1_prep_q)()
        a(f"s_waitcnt lgkmcnt({15 if vmode else 14})")
        mf(2, 0)
        a(f"s_waitcnt lgkmcnt({10 if vmode else 9})")
        mf(3, 0); mf(2, 1); mf(3, 1)
        self.stamp(4)

    def p1_parts(self, vmode):
        a = self.a
        def reads(ks):
            if self.o.get("nolds"): return
            a(f"ds_read_b128 v[{self.XF+4*ks}:{self.XF+4*ks+3}], v{self.XA+ks}")
            for i in range(2):
                for rd in range(2):
                    d = self.WF + 8 * ks + 4 * i + 2 * rd
                    a(f"ds_read_b64_tr_b16 v[{d}:{d+1}], v{self.WA+4*i+ks} offset:{16384+rd*1024}")
        def xors(ks):
            for r in (self.XA + ks, self.WA + ks, self.WA + 4 + ks): a(f"v_xor_b32 v{r}, v{self.VXM}, v{r}")
            if ks == 3: a(f"v_xor_b32 v{self.VXM}, 0x10000, v{self.VXM}")
        def mf(ks, i):
            x = vr(self.XF + 4 * ks, 4); wv = vr(self.WF + 8 * ks + 4 * i, 4); acc = vr(self.ACC + 16 * i, 16)
            if self.o.get("nomfma"): pass
            elif vmode: a(f"v_mfma_f32_32x32x16_bf16 {acc}, {x}, {wv}, {acc}")
            else: a(f"v_mfma_f32_32x32x16_bf16 {acc}, {wv}, {x}, {acc}")
        return reads, xors, mf

    def p1_loop1(self, vmode, B):
        a = self.a
        L = a.newlabel("p1loop")
        pos = self.o.get("barB" if B else "barA", "1" if B else "0")
        reads, xors, mf = self.p1_parts(vmode)
        def bar():
            a("s_waitcnt vmcnt(4)")
            if not self.o.get("nobar"): a("s_barrier")
            if self.o.get("its") == "1": self.stamp_dyn(54, self.sCNT)
        soft = self.o.get("p1soft")
        def comp(ks):
            n = (ks + 2) % 4
            if soft: return comp_soft(ks)
            self.jit(2)
            if ks == 2 and pos == "0": bar()
            a("s_waitcnt lgkmcnt(5)")
            mf(ks, 0)
            if ks == 2 and pos == "1": bar()
            if ks == 2 and pos == "2":
                mf(ks, 1); bar(); reads(n)
            else:
                reads(n); mf(ks, 1)
            xors(n)
            self.p1_issue((n,))
        def comp_soft(ks):
            n = (ks + 2) % 4
            ar = int(soft) - 1
            extra = {0: 0, 1: (1 if ar == 0 else 0), 2: 0, 3: 0}[ks]
            a(f"s_waitcnt lgkmcnt({5 + extra})" if ks != 2 else "s_waitcnt lgkmcnt(0)" if self.o.get("p1g0") else "s_waitcnt lgkmcnt(6)")
            mf(ks, 0)
            if ks == ar:
                a(f"v_add_u32 v{self.PGV}, 1, v{self.PGV}")
                a(f"s_waitcnt vmcnt({2 + ks})")
                a(f"ds_write_b32 v{self.PGA}, v{self.PGV}")
            if ks == 2:
                Lw, Lb = a.newlabel("late"), a.newlabel("go")
                a("s_waitcnt lgkmcnt(0)")
                a(f"v_cmp_lt_u32 vcc, v{self.PGD}, v{self.PGV}")
                a(f"s_cbranch_vccnz {Lw}")
                a.label(Lb)
                self._late1.append((Lw, Lb))
            reads(n); mf(ks, 1)
            if ks == 1: a(f"ds_read_b32 v{self.PGD}, v{self.PGR}")
            xors(n)
            self.p1_issue((n,))
        a("s_waitcnt vmcnt(6) lgkmcnt(0)")
        a("s_barrier")
        self.stamp(3)
        reads(0); reads(1); xors(0); xors(1)
        a("v_mov_b32 v6, 0x3f803f80")
        a("v_mov_b32 v2, 0")
        a("v_mov_b32 v3, 0")
        a("s_waitcnt lgkmcnt(5)")
        for k in range(4):
            for i in range(2): a(f"v_dot2_f32_bf16 v{2+i}, v{self.WF+4*i+k}, v6, v{2+i}")
        a("s_nop 2")
        a("v_permlane32_swap_b32 v2, v3")
        a("s_nop 0")
        a("v_add_f32 v2, v2, v3")
        a(f"ds_write_b32 v{self.CSW}, v2")
        a.align(int(self.o.get("al1", 3)))
        a.label(L)
        comp(0); comp(1); comp(2)
        Lr = a.newlabel("back"); Ls = a.newlabel("side")
        a(f"s_add_u32 s{self.sCNT}, s{self.sCNT}, 1")
        a(f"s_cmp_lt_u32 s{self.sCNT}, s{self.sSIDE}")
        a(f"s_cbranch_scc1 {Ls}")
        a.label(Lr)
        comp(3)
        a(f"s_cmp_lt_u32 s{self.sCNT}, {int(self.o.get('p1n', 10)) - 4}")
        a(f"s_cbranch_scc1 {L}")
        self._sides.append((Ls, Lr))

    def p1_sides(self):
        a = self.a
        for Lw, Lb in self._late1:
            a.label(Lw)
            a(f"s_mov_b32 s{S_SPIN}, 0")
            L = a.newlabel("lsp")
            a.label(L)
            a(f"ds_read_b32 v{self.PGD}, v{self.PGR}")
            a(f"s_add_u32 s{S_SPIN}, s{S_SPIN}, 1")
            a(f"s_cmp_ge_u32 s{S_SPIN}, {SPIN_MAX * 16}")
            a(f"s_cbranch_scc1 {Lb}")
            a("s_waitcnt lgkmcnt(0)")
            a(f"v_cmp_lt_u32 vcc, v{self.PGD}, v{self.PGV}")
            a(f"s_cbranch_vccnz {L}")
            a(f"s_branch {Lb}")
        self._late1 = []
        for Ls, Lr in self._sides:
            a.label(Ls)
            L1 = a.newlabel("s1")
            a(f"s_cmp_lg_u32 s{self.sCNT}, 0")
            a(f"s_cbranch_scc1 {L1}")
            a("v_mov_b32 v1, 0")
            a(f"buffer_load_dwordx2 v[{self.VN}:{self.VN+1}], v1, s[{SRD_DBG}:{SRD_DBG+3}], 0 offen sc1")
            a(f"s_branch {Lr}")
            a.label(L1)
            a("s_waitcnt vmcnt(4)")
            self.nonce_get("nonce2")
            a(f"v_mov_b32 v1, {self.P1_MISC + 2048}")
            a(f"ds_write_b64 v1, v[{self.VN}:{self.VN+1}]")
            for k in range(4): a(f"ds_read_b32 v{2+k}, v95 offset:{512*k}")
            a(f"s_lshl_b32 s{T0}, s{self.sKC0}, 10")
            a("s_waitcnt lgkmcnt(0)")
            a("v_add_f32 v2, v2, v3")
            a("v_add_f32 v4, v4, v5")
            a(f"v_mov_b32 v3, s{S_NONCE}")
            a("v_add_f32 v2, v2, v4")
            a(f"buffer_store_dwordx2 v[2:3], v{self.CQA}, s[{SRD_WS}:{SRD_WS+3}], s{T0} offen sc1")
            a(f"s_branch {Lr}")

    def p1_gather(self):
        a = self.a
        a(f"buffer_load_dwordx4 v[{self.RS}:{self.RS+3}], v{self.RSA}, s[{SRD_WS}:{SRD_WS+3}], 0 offen sc1")
        a(f"s_movk_i32 s{T0}, 0x1000")
        a(f"s_movk_i32 s{T1}, 0x2000")
        for k in range(10):
            so = ("0", f"s{T0}", f"s{T1}")[k // 4]
            a(f"buffer_load_dwordx2 v[{self.CQ+2*k}:{self.CQ+2*k+1}], v{self.CQA}, s[{SRD_WS}:{SRD_WS+3}], {so} offen offset:{1024*(k%4)} sc1")

    def p1_epi_reads(self):
        a = self.a
        a(f"s_lshl_b32 s{T0}, s{self.sNH}, 9")
        a(f"s_add_u32 s{T0}, s{T0}, {self.CQ_SCR}")
        a(f"v_lshl_add_u32 v1, v0, 3, s{T0}")
        for k in range(10): a(f"ds_read_b64 v[{self.CQ+2*k}:{self.CQ+2*k+1}], v1 offset:{1024*k}")
        a(f"v_mov_b32 v1, {self.P1_MISC + 2048}")
        a(f"ds_read_b64 v[{self.VN}:{self.VN+1}], v1")
        a(f"s_lshl_b32 s{T2}, s{S_W}, 9")
        a(f"s_add_u32 s{T2}, s{T2}, {self.P1_MISC+4096}")
        a(f"v_lshl_add_u32 v6, v0, 2, s{T2}")
        a("v_and_b32 v5, 31, v0")
        a(f"s_mov_b32 s{S_SPIN}, 0")

    def p1_epi_common(self):
        a = self.a
        L = a.newlabel("rs"); Ld = a.newlabel("rsd")
        a("s_waitcnt lgkmcnt(10)")
        a(f"v_readfirstlane_b32 s{S_NONCE}, v{self.VN}")
        a(f"v_readfirstlane_b32 s{S_NONCE+1}, v{self.VN+1}")
        a("s_nop 0")
        a.label(L)
        a(f"v_xor_b32 v2, s{S_NONCE}, v{self.RS+1}")
        a(f"v_xor_b32 v3, s{S_NONCE}, v{self.RS+3}")
        for k in range(0, 10, 2):
            a(f"v_xor_b32 v4, s{S_NONCE}, v{self.CQ+2*k+1}")
            a(f"v_xor_b32 v7, s{S_NONCE}, v{self.CQ+2*k+3}")
            a("v_or3_b32 v2, v2, v4, v7")
        a("v_or_b32 v2, v2, v3")
        a("v_cmp_ne_u32 vcc, 0, v2")
        a(f"s_add_u32 s{S_SPIN}, s{S_SPIN}, 1")
        a("s_or_b64 vcc, vcc, vcc")
        a(f"s_cbranch_scc0 {Ld}")
        a(f"s_cmp_ge_u32 s{S_SPIN}, {SPIN_MAX}")
        a(f"s_cbranch_scc1 {Ld}")
        self.diag("gather")
        self.p1_gather()
        a("s_waitcnt vmcnt(0)")
        a(f"s_branch {L}")
        a.label(Ld)
        Q = self.CQ
        a(f"v_add_f32 v12, v{Q}, v{Q+2}")
        a(f"v_add_f32 v13, v{Q+4}, v{Q+6}")
        a(f"v_add_f32 v14, v{Q+8}, v{Q+10}")
        a(f"v_add_f32 v15, v{Q+12}, v{Q+14}")
        a(f"v_add_f32 v2, v{Q+16}, v{Q+18}")
        a("v_add_f32 v12, v12, v13")
        a("v_add_f32 v14, v14, v15")
        a("v_add_f32 v12, v12, v2")
        a("v_add_f32 v12, v12, v14")

    def rowstats(self):
        a = self.a
        X = 100
        a("v_lshrrev_b32 v1, 3, v0")
        a(f"s_lshl_b32 s{T0}, s{S_W}, 4")
        a(f"s_lshl_b32 s{T1}, s{self.sRB}, 7")
        a(f"s_add_u32 s{T0}, s{T0}, s{T1}")
        a(f"v_add_u32 v1, s{T0}, v1")
        a("v_mul_u32_u24 v2, 1280, v1")
        a("v_and_b32 v3, 7, v0")
        a("v_lshl_add_u32 v2, v3, 4, v2")
        a(f"s_mov_b32 s{T0}, 10240")
        for k in range(10):
            for hh in range(2):
                r = X + 8 * k + 4 * hh
                a(f"buffer_load_dwordx4 v[{r}:{r+3}], v2, s[{SRD_X}:{SRD_X+3}], {'s%d' % T0 if hh else '0'} offen offset:{128*k}")
        for r in range(4, 8): a(f"v_mov_b32 v{r}, 0")
        a("v_mov_b32 v8, 0x3f803f80")
        for k in range(10):
            a(f"s_waitcnt vmcnt({18-2*k if k < 9 else 1})")
            if k == 8:
                a("v_mov_b32 v3, 0")
                a(f"buffer_load_dwordx2 v[{self.VN}:{self.VN+1}], v3, s[{SRD_DBG}:{SRD_DBG+3}], 0 offen sc1")
            for e in range(4):
                for hh in range(2):
                    r = X + 8 * k + 4 * hh + e
                    a(f"v_dot2_f32_bf16 v{4+hh}, v{r}, v8, v{4+hh}")
                    a(f"v_dot2_f32_bf16 v{6+hh}, v{r}, v{r}, v{6+hh}")
        a("s_nop 2")
        for ctl in ("quad_perm:[1,0,3,2]", "quad_perm:[2,3,0,1]", "row_half_mirror"):
            for r in range(4, 8): a(f"v_add_f32_dpp v{r}, v{r}, v{r} {ctl} row_mask:0xf bank_mask:0xf")
        a("s_waitcnt vmcnt(0)")
        self.nonce_get()
        a("v_and_b32 v3, 1, v0")
        a("v_cmp_ne_u32 vcc, 0, v3")
        a("v_lshlrev_b32 v3, 3, v3")
        a("v_add_u32 v1, v1, v3")
        a("v_cndmask_b32 v4, v4, v5, vcc")
        a("v_cndmask_b32 v6, v6, v7, vcc")
        a(f"v_mul_f32 v4, 0x%08x, v4" % f2u(1.0 / 640))
        a("v_mul_f32 v5, v4, v4")
        a(f"v_mov_b32 v7, 0x%08x" % f2u(1.0 / 640))
        a("v_fma_f32 v5, v6, v7, -v5")
        a("v_max_f32 v5, 0, v5")
        a(f"v_add_f32 v5, 0x%08x, v5" % f2u(1e-5))
        a("v_rsq_f32 v8, v5")
        a(f"v_mov_b32 v9, s{S_NONCE}")
        a(f"v_mov_b32 v11, s{S_NONCE}")
        a("v_mul_f32 v10, v4, v8")
        a("v_lshlrev_b32 v1, 4, v1")
        a(f"s_mov_b32 s{T0}, {WS_RS}")
        a("s_mov_b32 exec_lo, 0x03030303")
        a("s_mov_b32 exec_hi, 0x03030303")
        a(f"buffer_store_dwordx4 v[8:11], v1, s[{SRD_WS}:{SRD_WS+3}], s{T0} offen sc1")
        a("s_mov_b64 exec, -1")

    def p1_prep_q(self):
        a = self.a
        qs = math.log2(math.e) / math.sqrt(20.0)
        a("ds_write_b32 v6, v12")
        a("v_lshrrev_b32 v1, 5, v0")
        a(f"v_lshl_add_u32 v1, v1, 4, s{T2}")
        C = 48
        for i in range(2):
            for q4 in range(4):
                a(f"ds_read_b128 v[{C+16*i+4*q4}:{C+16*i+4*q4+3}], v1 offset:{i*128+q4*32}")
        a(f"s_cmp_lt_u32 s{self.sCT}, 5")
        a(f"s_cselect_b32 s{T1}, 0x%08x, 1.0" % f2u(qs))
        a(f"v_mul_f32 v2, s{T1}, v{self.RS}")
        a(f"v_mul_f32 v3, s{T1}, v{self.RS+2}")

    def p1_epi_q(self):
        a = self.a
        C = 48
        a("s_nop 8")
        for i in range(2):
            for qq in range(2):
                a(f"s_waitcnt lgkmcnt({6-4*i-2*qq})")
                b = 16 * i + 8 * qq
                for r in range(8): a(f"v_mul_f32 v{self.ACC+b+r}, v2, v{self.ACC+b+r}")
                for r in range(8): a(f"v_fma_f32 v{self.ACC+b+r}, -v3, v{C+b+r}, v{self.ACC+b+r}")
                o = 4 + 4 * ((2 * i + qq) % 2)
                for r in range(4): a(f"v_cvt_pk_bf16_f32 v{o+r}, v{self.ACC+b+2*r}, v{self.ACC+b+2*r+1}")
                a(f"buffer_store_dwordx4 v[{o}:{o+3}], v{self.STA+2*i+qq}, s[{SRD_WS}:{SRD_WS+3}], 0 offen sc1")

    def p1_prep_v(self):
        a = self.a
        a("v_mov_b32 v13, v12")
        a(f"v_lshl_add_u32 v6, v5, 2, s{T2}")
        a("v_lshrrev_b32 v1, 5, v0")
        a("v_permlane32_swap_b32 v12, v13")
        a(f"ds_write_b32 v6, v{self.RS}")
        a(f"ds_write_b32 v6, v{self.RS+2} offset:128")
        a(f"v_lshl_add_u32 v6, v1, 4, s{T2}")
        C = 48
        for q4 in range(4):
            a(f"ds_read_b128 v[{C+4*q4}:{C+4*q4+3}], v6 offset:{q4*32}")
            a(f"ds_read_b128 v[{C+16+4*q4}:{C+16+4*q4+3}], v6 offset:{128+q4*32}")

    def p1_epi_v(self):
        a = self.a
        C = 48
        a("s_nop 8")
        for grp in range(2):
            a(f"s_waitcnt lgkmcnt({4-4*grp})")
            for i in range(2):
                b = 16 * i + 8 * grp
                for r in range(8): a(f"v_mul_f32 v{self.ACC+b+r}, v{C+8*grp+r}, v{self.ACC+b+r}")
                for r in range(8): a(f"v_fma_f32 v{self.ACC+b+r}, -v{C+16+8*grp+r}, v{12+i}, v{self.ACC+b+r}")
                o = 4 + 4 * i
                for r in range(4): a(f"v_cvt_pk_bf16_f32 v{o+r}, v{self.ACC+b+2*r}, v{self.ACC+b+2*r+1}")
                a(f"buffer_store_dwordx4 v[{o}:{o+3}], v{self.STA+i}, s[{SRD_WS}:{SRD_WS+3}], 0 offen offset:{640*grp} sc1")

    def nonce_get(self, where="nonce"):
        a = self.a
        a(f"s_mov_b32 s{S_SPIN}, 0")
        Lc = a.newlabel("nchk"); Lo = a.newlabel("nok")
        a.label(Lc)
        a(f"v_readfirstlane_b32 s{S_NONCE}, v{self.VN}")
        a(f"v_readfirstlane_b32 s{S_NONCE+1}, v{self.VN+1}")
        a(f"s_add_u32 s{S_SPIN}, s{S_SPIN}, 1")
        a(f"s_or_b32 s{T0}, s{S_NONCE}, s{S_NONCE+1}")
        a(f"s_cbranch_scc1 {Lo}")
        a(f"s_cmp_ge_u32 s{S_SPIN}, {SPIN_MAX}")
        a(f"s_cbranch_scc1 {Lo}")
        self.diag(where)
        a("v_mov_b32 v94, 0")
        a(f"buffer_load_dwordx2 v[{self.VN}:{self.VN+1}], v94, s[{SRD_DBG}:{SRD_DBG+3}], 0 offen sc1")
        a("s_waitcnt vmcnt(0)")
        a(f"s_branch {Lc}")
        a.label(Lo)

    def phase1(self):
        a = self.a
        self.p1_setup_a()
        a(f"s_cmp_eq_u32 s{self.sCT}, 15")
        a("s_cbranch_scc0 L_p1_go")
        self.rowstats()
        a("s_branch L_p1_done")
        a.label("L_nonce_pub")
        a("v_mov_b32 v3, 0")
        a(f"v_mov_b32 v4, s{S_NONCE}")
        a(f"v_mov_b32 v5, s{S_NONCE+1}")
        a("s_mov_b64 exec, 1")
        a(f"buffer_store_dwordx2 v[4:5], v3, s[{SRD_DBG}:{SRD_DBG+3}], 0 offen sc1")
        a("s_mov_b64 exec, -1")
        a("s_branch L_nonce_done")
        a.label("L_p1_go")
        if self.o.get("p1v", "2") == "2":
            from p1v2 import phase1_split
            phase1_split(self)
        else:
            self.p1_setup_b()
            self.p1_issue((1, 2, 3) if self.o.get("first5", "1") == "1" else (0, 1, 2, 3))
            self.p1_issue((0, 1))
            self.stamp(2)
            a(f"s_cmp_ge_u32 s{self.sCT}, 10")
            a("s_cbranch_scc1 L_p1_v")
            self.p1_loop(False)
            self.p1_epi_q()
            a("s_branch L_p1_done")
            self.p1_sides(); self._sides = []
            a.label("L_p1_v")
            self.p1_loop(True)
            self.p1_epi_v()
            a("s_branch L_p1_done")
            self.p1_sides()
        a.label("L_p1_done")
        self.stamp(5)
        a(f"s_lshl_b32 s{T0}, s{self.sCT}, 4")
        a(f"s_add_u32 s{T0}, s{T0}, s{self.sRB}")
        a(f"s_mul_i32 s{T0}, s{T0}, {FSP}")
        a(f"s_add_u32 s{T0}, s{T0}, {FL_1}")
        self.flag_prep(12)
        a("s_waitcnt vmcnt(0)")
        self.stamp(6)
        a("s_barrier")
        self.flag_store(T0, 12, prepped=True)
        self.stamp(7)
        a(f"s_cmp_eq_u32 s{S_W}, 0")
        a("s_cbranch_scc1 L_no_rls")
        self.relayout_setup()
        a.label("L_no_rls")
        if self.stop < 2:
            self.relayout_issue()
            a("s_waitcnt vmcnt(0)")
            self.relayout_finish()

    def build(self):
        a = self.a
        self.entry()
        self.phase1()
        if self.stop >= 2:
            from phases import phase2, phase3, phase4, phase5
            phase2(self)
            if self.stop >= 3: phase3(self)
            if self.stop >= 4: phase4(self)
            if self.stop >= 5: phase5(self)
        a("s_waitcnt vmcnt(0)")
        if self.o.get("fixend"):
            if self.o.get("diag"):
                a("s_cmp_eq_u32 s35, 0")
                a("s_cbranch_scc1 L_nofix")
            a.label("L_fixend")
            a("s_memrealtime s[100:101]")
            a("s_waitcnt lgkmcnt(0)")
            a(f"s_sub_u32 s100, s100, s{31 if self.o.get('fixown') else S_NONCE}")
            a(f"s_cmp_lt_u32 s100, {int(self.o['fixend'])*100}")
            a("s_cbranch_scc1 L_fixend")
            a.label("L_nofix")
        self.stamp(31)
        self.stamp_flush()
        a.label("L_end")
        a("s_endpgm")
        for f in self._tail: f()
        a.lines.append(f".fill {self.pad}, 4, 0xbf810000")
        body = a.text()
        errs = check(body)
        if errs:
            sys.stderr.write("\n".join(errs[:40]) + "\n%d hazards\n" % len(errs))
            raise SystemExit(1)
        head = f"""; Fused preLN -> MHA -> residual -> preLN -> SiLU FFN -> residual in one persistent launch
;      keys, applied through the MFMA C operand; row sums come from a ones row of V.  At the end every wave
;      checks its sums and outputs; if the shift was unsafe (sum > 2^40, inf or NaN) the wave redoes its rows
; @launch grid=(256,1,1) block=(512,1,1) lds={LDS_BYTES}
.amdgcn_target "amdgcn-amd-amdhsa--gfx950"
.text
.globl {NAME}_kernel
.p2align 8
.type {NAME}_kernel,@function
{NAME}_kernel:
"""
        tail = f""".section .rodata,"a"
.p2align 6
.amdhsa_kernel {NAME}_kernel
  .amdhsa_next_free_vgpr 256
  .amdhsa_next_free_sgpr 102
  .amdhsa_accum_offset 256
  .amdhsa_group_segment_fixed_size 0
  .amdhsa_kernarg_size 72
  .amdhsa_user_sgpr_count 2
  .amdhsa_user_sgpr_kernarg_segment_ptr 1
  .amdhsa_system_sgpr_workgroup_id_x 1
.end_amdhsa_kernel
"""
        return head + body + tail

if __name__ == "__main__":
    stop = int(sys.argv[2]) if len(sys.argv) > 2 else 99
    opts = dict(kv.split("=") for kv in sys.argv[3:])
    import subprocess
    def asm_size(path):
        r = subprocess.run(["clang", "-x", "assembler", "-target", "amdgcn-amd-amdhsa", "-mcpu=gfx950", "-c", path, "-o", "_chk.o"], capture_output=True, text=True)
        if r.returncode: print(r.stderr[:1500]); raise SystemExit(1)
        r = subprocess.run(["llvm-readelf", "-S", "_chk.o"], capture_output=True, text=True)
        return int([l for l in r.stdout.split("\n") if ".text" in l][0].split()[6], 16)
    open(sys.argv[1], "w").write(K(stop, opts).build())
    n = asm_size(sys.argv[1])
    k = K(stop, opts)
    k.CPF_LINES = (n + 4095) // 4096
    k.pad = (k.CPF_LINES * 4096 - n) // 4 + 16
    open(sys.argv[1], "w").write(k.build())
    print(sys.argv[1], "code bytes:", n, "with pad:", asm_size(sys.argv[1]))
```

```python
import math
from asmlib import vr, f2u
from tables import *
from gen import *

ACC, XF, WF, XA, WA, VXM, STA, CSA, EP = 16, 160, 192, 80, 84, 86, 88, 92, 96
WS = f"s[{SRD_WS}:{SRD_WS+3}]"
M32 = "v_mfma_f32_32x32x16_bf16"

def phase1_split(k):
    a = k.a
    MISC = k.P1_MISC
    PART, NON, CSF, STF = MISC, MISC + 2048, MISC + 2560, MISC + 3072
    STV = MISC + 4096
    a(f"s_cmp_ge_u32 s{S_W}, 4")
    a("s_cbranch_scc1 L_p1_c")
    def issue():
        a(f"s_mov_b32 m0, s{k.sM0X}")
        a(f"s_add_u32 s{T0}, s{k.sXO}, 81920")
        k.dma(k.DXA, SRD_X, f"s{k.sXO}")
        a("s_add_u32 m0, m0, 8192")
        a(f"s_add_u32 s{T1}, s{k.sWO}, 122880")
        k.dma(k.DXA, SRD_X, f"s{T0}")
        a("s_add_u32 m0, m0, 8192")
        a(f"s_add_u32 s{k.sM0X}, s{k.sM0X}, 32768")
        k.dma(k.DW, SRD_WQ, f"s{k.sWO}")
        a("s_add_u32 m0, m0, 8192")
        a(f"s_add_u32 s{k.sWO}, s{k.sWO}, 15360")
        k.dma(k.DW, SRD_WQ, f"s{T1}")
        a(f"s_sub_u32 m0, m0, {24576 - 1024}")
        a(f"s_add_u32 s{T1}, s{T1}, 15360")
        k.dma(k.DXB, SRD_X, f"s{k.sXO}")
        a("s_add_u32 m0, m0, 8192")
        a(f"s_add_u32 s{k.sXO}, s{k.sXO}, 128")
        k.dma(k.DXB, SRD_X, f"s{T0}")
        a("s_add_u32 m0, m0, 8192")
        a(f"s_and_b32 s{k.sM0X}, s{k.sM0X}, 0x1ffff")
        k.dma(k.DW, SRD_WQ, f"s{k.sWO}")
        a("s_add_u32 m0, m0, 8192")
        a(f"s_add_u32 s{k.sWO}, s{k.sWO}, {245760 - 15360}")
        k.dma(k.DW, SRD_WQ, f"s{T1}")
        a(f"s_sub_u32 s{k.sKC}, s{k.sKC}, 1")
        a(f"s_cmov_b32 s{k.sXO}, s{k.sXB}")
        a(f"s_cmov_b32 s{k.sWO}, s{k.sWB}")
    a("v_lshrrev_b32 v4, 5, v0")
    a("v_bfe_u32 v5, v0, 2, 2")
    a("v_lshl_add_u32 v6, v4, 3, v5")
    a("v_lshlrev_b32 v6, 8, v6")
    a("v_bfe_u32 v7, v0, 4, 1")
    a("v_and_b32 v8, 3, v0")
    a("v_lshl_add_u32 v7, v7, 2, v8")
    a("v_lshlrev_b32 v7, 3, v7")
    a("v_lshl_add_u32 v7, v5, 6, v7")
    a(f"s_lshl_b32 s{T0}, s{S_W}, 12")
    a(f"v_add3_u32 v20, v6, v7, s{T0}")
    for t in range(1, 4): a(f"v_xor_b32 v{20+t}, {t << 6}, v20")
    a(f"s_lshl_b32 s{T0}, s{S_W}, 9")
    a(f"s_add_u32 s{T0}, s{T0}, {PART}")
    a(f"v_lshl_add_u32 v24, v0, 2, s{T0}")
    a("v_and_b32 v1, 31, v0")
    a(f"s_mul_i32 s{T0}, s{k.sCT}, 10240")
    a(f"s_lshl_b32 s{T1}, s{S_W}, 8")
    a(f"s_add_u32 s{T0}, s{T0}, s{T1}")
    a(f"s_add_u32 s{T0}, s{T0}, {WS_CQ}")
    a(f"v_lshl_add_u32 v25, v1, 3, s{T0}")
    a("v_lshl_add_u32 v25, v4, 10, v25")
    a(f"s_lshl_b32 s{T0}, s{k.sRB}, 2")
    a(f"s_add_u32 s{T0}, s{T0}, s{S_W}")
    a(f"s_lshl_b32 s{T0}, s{T0}, 9")
    a(f"s_add_u32 s{T0}, s{T0}, {WS_RS}")
    a(f"v_lshl_add_u32 v26, v1, 4, s{T0}")
    a(f"s_lshl_b32 s{T0}, s{S_W}, 7")
    a(f"v_lshl_add_u32 v27, v1, 2, s{T0}")
    a("v_mov_b32 v28, 0x3f803f80")
    issue()
    k.stamp(2)
    a("s_waitcnt vmcnt(8)")
    a("s_barrier")
    k.stamp(3)
    issue()
    NCS = {1: 3, 2: 2}.get(int(k.o.get("rotg", 3)), 1)
    def cs_partial(c):
        for t in range(4):
            a(f"v_mov_b32 v{30+t}, 0")
            for rd in range(2): a(f"ds_read_b64_tr_b16 v[{36+4*t+2*rd}:{37+4*t+2*rd}], v{20+t} offset:{16384+rd*1024+32768*(c%2)}")
        if c == 1:
            for t in range(4): a(f"v_add_u32 v{20+t}, 0x10000, v{20+t}")
        a("s_waitcnt lgkmcnt(0)")
        for e in range(4):
            for t in range(4): a(f"v_dot2_f32_bf16 v{30+t}, v{36+4*t+e}, v28, v{30+t}")
        a("s_nop 2")
        a("v_permlane32_swap_b32 v30, v31")
        a("v_permlane32_swap_b32 v32, v33")
        a("s_nop 0")
        a("v_add_f32 v30, v30, v31")
        a("v_add_f32 v32, v32, v33")
        a(f"ds_write_b32 v24, v30 offset:{6144*(c%2)}")
        a(f"ds_write_b32 v24, v32 offset:{256+6144*(c%2)}")
    def cs_publish(c):
        a(f"v_add_u32 v1, {PART}, v27")
        for q in range(4): a(f"ds_read_b32 v{52+q}, v1 offset:{512*q+6144*(c%2)}")
        a(f"s_add_u32 s{T0}, s{k.sKC0}, {c}")
        a(f"s_sub_u32 s{T1}, s{T0}, 10")
        a(f"s_min_u32 s{T0}, s{T0}, s{T1}")
        a(f"s_lshl_b32 s{T0}, s{T0}, 10")
        a("s_waitcnt lgkmcnt(0)")
        a("v_add_f32 v52, v52, v53")
        a("v_add_f32 v54, v54, v55")
        a(f"v_mov_b32 v53, s{S_NONCE}")
        a("v_add_f32 v52, v52, v54")
        a("s_mov_b64 exec, 0xffffffff")
        a(f"buffer_store_dwordx2 v[52:53], v25, {WS}, s{T0} offen sc1")
        a("s_mov_b64 exec, -1")
    a("v_mov_b32 v29, 0")
    a(f"buffer_load_dwordx2 v[{k.VN}:{k.VN+1}], v29, s[{SRD_DBG}:{SRD_DBG+3}], 0 offen sc1")
    cs_partial(0)
    a("s_waitcnt vmcnt(9) lgkmcnt(0)")
    a("s_barrier")
    issue()
    if NCS > 1: cs_partial(1)
    a("s_waitcnt vmcnt(8)")
    k.nonce_get("nonce2")
    a(f"v_mov_b32 v1, {NON}")
    a(f"ds_write_b64 v1, v[{k.VN}:{k.VN+1}]")
    cs_publish(0)
    a("s_barrier")
    issue()
    first = 2
    for c in range(1, NCS):
        if c + 1 < NCS: cs_partial(c + 1)
        cs_publish(c)
        a("s_waitcnt vmcnt(10)" if c == 1 else "s_waitcnt vmcnt(10)")
        a("s_barrier")
        issue()
        first += 1
    a("s_waitcnt vmcnt(9)")
    a(f"s_mov_b32 s{k.sCNT}, {first}")
    a.label("L_p1_ld")
    a("s_barrier")
    issue()
    a(f"s_add_u32 s{k.sCNT}, s{k.sCNT}, 1")
    a(f"s_cmp_lt_u32 s{k.sCNT}, 7")
    a("s_cbranch_scc0 L_p1_ldx")
    a("s_waitcnt vmcnt(8)")
    a("s_branch L_p1_ld")
    a.label("L_p1_ldx")
    def gather():
        a(f"buffer_load_dwordx4 v[36:39], v26, {WS}, 0 offen sc1")
        a(f"s_movk_i32 s{T0}, 0x1000")
        a(f"s_movk_i32 s{T1}, 0x2000")
        for q in range(5):
            so = ("0", "0", f"s{T0}", f"s{T0}", f"s{T1}")[q]
            a(f"buffer_load_dwordx2 v[{40+2*q}:{41+2*q}], v25, {WS}, {so} offen offset:{2048*(q%2)} sc1")
    GL = k.o.get("gl", "1") == "1"
    if not GL: gather()
    a(f"s_waitcnt vmcnt({8 if GL else 14})")
    a("s_barrier")
    if GL: gather()
    a("s_waitcnt vmcnt(6)")
    a("s_barrier")
    a(f"s_mov_b32 s{S_SPIN}, 0")
    a.label("L_p1_gchk")
    a("s_waitcnt vmcnt(0)")
    a(f"v_xor_b32 v2, s{S_NONCE}, v37")
    a(f"v_xor_b32 v3, s{S_NONCE}, v39")
    for q in range(5):
        a(f"v_xor_b32 v4, s{S_NONCE}, v{41+2*q}")
        a("v_or3_b32 v2, v2, v3, v4")
    a("v_cmp_ne_u32 vcc, 0, v2")
    a("s_cbranch_vccz L_p1_gok")
    a(f"s_add_u32 s{S_SPIN}, s{S_SPIN}, 1")
    a(f"s_cmp_ge_u32 s{S_SPIN}, {SPIN_MAX}")
    a("s_cbranch_scc1 L_p1_gok")
    k.diag("gather")
    gather()
    a("s_branch L_p1_gchk")
    a.label("L_p1_gok")
    a("v_add_f32 v40, v40, v42")
    a("v_add_f32 v44, v44, v46")
    a("v_add_f32 v40, v40, v48")
    a("v_add_f32 v40, v40, v44")
    qs = math.log2(math.e) / math.sqrt(20.0)
    a(f"s_cmp_lt_u32 s{k.sCT}, 5")
    a(f"s_cselect_b32 s{T1}, 0x{f2u(qs):08x}, 1.0")
    a("v_mov_b32 v41, v40")
    a(f"v_mul_f32 v36, s{T1}, v36")
    a(f"v_mul_f32 v37, s{T1}, v38")
    a("v_permlane32_swap_b32 v40, v41")
    a("v_lshlrev_b32 v1, 1, v27")
    a("v_add_f32 v40, v40, v41")
    a(f"v_add_u32 v1, {STF}, v1")
    a(f"v_add_u32 v27, {CSF}, v27")
    a("ds_write_b32 v27, v40")
    a("ds_write_b64 v1, v[36:37]")
    a(f"ds_write_b32 v27, v36 offset:{STV - CSF}")
    a(f"ds_write_b32 v27, v37 offset:{STV - CSF + 512}")
    a("s_waitcnt lgkmcnt(0)")
    a("s_barrier")
    k.stamp(4)
    a("s_branch L_p1_done")
    a.label("L_p1_c")
    if k.o.get("cprio"): a("s_setprio 1")
    sTH, sNH = k.sTG, k.sNH
    a(f"s_and_b32 s{sTH}, s{S_W}, 1")
    a(f"s_bfe_u32 s{sNH}, s{S_W}, 0x10001")
    a(f"s_cmp_ge_u32 s{k.sCT}, 5")
    a(f"s_cselect_b32 s{T0}, 5, 0")
    a(f"s_sub_u32 s{T0}, s{k.sCT}, s{T0}")
    a(f"s_lshl_b32 s{T0}, s{T0}, 1")
    a(f"s_add_u32 s{T0}, s{T0}, s{sNH}")
    for idx in range(10):
        a(f"s_cmp_eq_u32 s{T0}, {idx}")
        a(f"s_cbranch_scc1 L_tab{idx}")
    a(f"s_mul_i32 s{T1}, s{sNH}, 0x10101010")
    for q in range(4): a(f"s_add_u32 s{k.sTAB+q}, s{T1}, 0x%08x" % (0x03020100 + 0x04040404 * q))
    a(f"s_mov_b32 s{k.sTAB+4}, 0")
    a(f"s_mov_b32 s{k.sTAB+5}, 0")
    a("s_branch L_tabdone")
    for idx in range(10):
        a.label(f"L_tab{idx}")
        for q, d in enumerate(p1_table(idx // 2, idx % 2)): a(f"s_mov_b32 s{k.sTAB+q}, 0x%08x" % d)
        if idx < 9: a("s_branch L_tabdone")
    a.label("L_tabdone")
    a("v_and_b32 v1, 31, v0")
    a(f"s_lshl_b32 s{T0}, s{sTH}, 6")
    a(f"v_add_u32 v2, s{T0}, v1")
    a("v_bfe_u32 v3, v2, 1, 3")
    a("v_lshrrev_b32 v4, 5, v0")
    a("v_xor_b32 v3, v3, v4")
    a("v_lshlrev_b32 v3, 4, v3")
    a(f"v_lshl_add_u32 v{XA}, v2, 7, v3")
    for ks in range(1, 4): a(f"v_xor_b32 v{XA+ks}, {ks<<5}, v{XA}")
    a(f"v_lshlrev_b32 v87, 3, v2")
    a(f"v_add_u32 v87, {STF}, v87")
    a("v_bfe_u32 v5, v0, 2, 2")
    a("v_lshl_add_u32 v6, v4, 3, v5")
    a("v_lshlrev_b32 v6, 8, v6")
    a("v_and_b32 v7, 3, v0")
    a("v_lshlrev_b32 v7, 3, v7")
    a("v_and_b32 v8, 16, v0")
    a("v_cmp_ne_u32 vcc, 0, v8")
    for i in range(2):
        a(f"v_mov_b32 v8, s{k.sTAB+2*i}")
        a(f"v_mov_b32 v9, s{k.sTAB+2*i+1}")
        a("v_cndmask_b32 v8, v8, v9, vcc")
        a("v_bfe_u32 v8, v8, v7, 8")
        a("v_lshlrev_b32 v8, 3, v8")
        a("v_lshlrev_b32 v9, 6, v5")
        a("v_xor_b32 v8, v8, v9")
        a(f"v_add_u32 v{WA+i}, v6, v8")
    a(f"s_lshl_b32 s{T0}, s{k.sRB}, 2")
    a(f"s_lshl_b32 s{T1}, s{sTH}, 1")
    a(f"s_add_u32 s{T0}, s{T0}, s{T1}")
    a(f"s_cmp_ge_u32 s{k.sCT}, 10")
    a("s_cbranch_scc1 L_p1_vaddr")
    a(f"s_lshl_b32 s{T0}, s{T0}, 9")
    a(f"s_cmp_ge_u32 s{k.sCT}, 5")
    a(f"s_cselect_b32 s{T1}, {WS_K}, {WS_Q}")
    a(f"s_add_u32 s{T0}, s{T0}, s{T1}")
    a(f"v_lshl_add_u32 v2, v1, 4, s{T0}")
    a("v_lshlrev_b32 v3, 3, v4")
    a("v_add_u32 v5, 16, v3")
    a(f"v_mov_b32 v7, {CSF}")
    for i in range(2):
        for qq in range(2):
            a(f"v_bfe_u32 v6, s{k.sTAB+4+i}, v{3 if qq == 0 else 5}, 8")
            a(f"v_lshl_add_u32 v{STA+2*i+qq}, v6, 15, v2")
        for q4 in range(4):
            a(f"v_bfe_u32 v6, s{k.sTAB+2*i+q4//2}, v{3 if q4 % 2 == 0 else 5}, 8")
            a(f"v_lshl_add_u32 v{CSA+4*i+q4}, v6, 4, v7")
    a("s_branch L_p1_addrdone")
    a.label("L_p1_vaddr")
    a(f"s_mul_i32 s{T0}, s{T0}, 1280")
    a(f"s_add_u32 s{T0}, s{T0}, {WS_V}")
    a(f"s_lshl_b32 s{T1}, s{k.sCT}, 7")
    a(f"s_lshl_b32 s{T2}, s{sNH}, 6")
    a(f"s_add_u32 s{T1}, s{T1}, s{T2}")
    a(f"s_sub_u32 s{T1}, s{T1}, 1280")
    a(f"v_mov_b32 v{STA+2}, 0")
    a(f"v_mov_b32 v{STA+3}, 0")
    a(f"s_lshl_b32 s{T2}, s{T2}, 2")
    a(f"s_add_u32 s{T2}, s{T2}, {CSF}")
    a(f"v_lshl_add_u32 v{CSA}, v1, 2, s{T2}")
    a(f"s_lshl_b32 s{T2}, s{sTH}, 8")
    a(f"s_add_u32 s{T2}, s{T2}, {STV}")
    a(f"v_lshl_add_u32 v{CSA+1}, v4, 4, s{T2}")
    a("v_mul_u32_u24 v3, 320, v4")
    a(f"v_add_u32 v3, s{T0}, v3")
    a(f"s_mov_b32 s{T2}, 81920")
    for i in range(2):
        a(f"v_add_u32 v5, s{T1}, v1")
        if i: a("v_add_u32 v5, 32, v5")
        a("v_mul_u32_u24 v6, 3277, v5")
        a("v_lshrrev_b32 v6, 16, v6")
        a("v_mul_u32_u24 v7, 20, v6")
        a("v_sub_u32 v5, v5, v7")
        a("v_lshl_add_u32 v5, v5, 4, v3")
        a(f"v_mad_u32_u24 v{STA+i}, v6, s{T2}, v5")
    a.label("L_p1_addrdone")
    for r in range(64): a(f"v_mov_b32 v{ACC+r}, 0")
    a(f"v_mov_b32 v{VXM}, 0x8000")
    a(f"s_mov_b32 s{k.sCNT}, 0")
    k.stamp(2)
    a("s_waitcnt vmcnt(0)")
    a("s_barrier")
    k.stamp(3)
    def rlist(ks):
        r = [f"ds_read_b128 {vr(XF+8*ks+4*t,4)}, v{XA+ks} offset:{4096*t}" for t in range(2)]
        for i in range(2):
            for rd in range(2): r.append(f"ds_read_b64_tr_b16 {vr(WF+8*ks+4*i+2*rd,2)}, v{WA+i} offset:{16384+ks*4096+rd*1024}")
        return r
    for ks in range(2):
        for x in rlist(ks): a(x)
    a(f"v_xor_b32 v{XA}, v{VXM}, v{XA}")
    a(f"v_xor_b32 v{XA+1}, v{VXM}, v{XA+1}")
    a(f"s_cmp_ge_u32 s{k.sCT}, 10")
    a("s_cbranch_scc1 L_p1_v")
    for vmode in (False, True):
        if vmode: a.label("L_p1_v")
        def mf(ks, i, t):
            x = vr(XF + 8 * ks + 4 * t, 4); w = vr(WF + 8 * ks + 4 * i, 4); acc = vr(ACC + 16 * (2 * i + t), 16)
            a(f"{M32} {acc}, {x}, {w}, {acc}" if vmode else f"{M32} {acc}, {w}, {x}, {acc}")
        def comp(ks, rd=True, bar=False, wait=6, mid=None):
            k.jit(2)
            n = (ks + 2) % 4
            r = rlist(n) if rd else []
            a(f"s_waitcnt lgkmcnt({wait})")
            for m, (i, t) in enumerate(((0, 0), (0, 1), (1, 0), (1, 1))):
                mf(ks, i, t)
                if m == 0 and bar:
                    a("s_barrier")
                    if k.o.get("its") == "1": k.stamp_dyn(54, k.sCNT)
                if m == 0 and mid: mid()
                for x in r[2 * m: 2 * m + 2]: a(x)
                if m == 3 and rd:
                    a(f"v_xor_b32 v{XA+n}, v{VXM}, v{XA+n}")
                    if n == 3:
                        for i2 in range(2): a(f"v_xor_b32 v{WA+i2}, v{VXM}, v{WA+i2}")
                        a(f"v_xor_b32 v{VXM}, 0x10000, v{VXM}")
        L = a.newlabel("p1loop")
        a.align(3)
        a.label(L)
        comp(0); comp(1); comp(2, bar=True); comp(3)
        a(f"s_add_u32 s{k.sCNT}, s{k.sCNT}, 1")
        a(f"s_cmp_lt_u32 s{k.sCNT}, 9")
        a(f"s_cbranch_scc1 {L}")
        comp(0); comp(1)
        def terms():
            a(f"v_mov_b32 v1, {NON}")
            a(f"ds_read_b64 v[{k.VN+116}:{k.VN+117}], v1".replace(f"{k.VN+116}:{k.VN+117}", "2:3"))
            if vmode:
                a(f"ds_read_b32 v12, v{CSA}")
                a(f"ds_read_b32 v13, v{CSA} offset:128")
                for t in range(2):
                    for q4 in range(4):
                        a(f"ds_read_b128 {vr(EP+32*t+4*q4,4)}, v{CSA+1} offset:{128*t+32*q4}")
                        a(f"ds_read_b128 {vr(EP+32*t+16+4*q4,4)}, v{CSA+1} offset:{512+128*t+32*q4}")
            else:
                a("ds_read_b64 v[12:13], v87")
                a("ds_read_b64 v[14:15], v87 offset:256")
                for i in range(2):
                    for q4 in range(4): a(f"ds_read_b128 {vr(EP+4+16*i+4*q4,4)}, v{CSA+4*i+q4}")
        if k.o.get("gl", "1") == "1":
            comp(2, rd=False)
            comp(3, rd=False, bar=True, mid=terms, wait=0)
        else:
            comp(2, rd=False, bar=True, mid=terms)
            comp(3, rd=False, wait=min(15, 19 if vmode else 11))
        k.stamp(4)
        a("s_waitcnt lgkmcnt(0)")
        a(f"v_readfirstlane_b32 s{S_NONCE}, v2")
        a(f"v_readfirstlane_b32 s{S_NONCE+1}, v3")
        a("s_nop 5")
        n = 0
        for i in range(2):
            for t in range(2):
                b = ACC + 16 * (2 * i + t)
                for g in range(2):
                    o = 4 + 4 * (n % 2); n += 1
                    if k.o.get("epk") == "0":
                        for r in range(8 * g, 8 * g + 8):
                            a(f"v_mul_f32 v{b+r}, v{EP+32*t+r if vmode else 12+2*t}, v{b+r}")
                        for r in range(8 * g, 8 * g + 8):
                            a(f"v_fma_f32 v{b+r}, -v{EP+32*t+16+r if vmode else 13+2*t}, v{12+i if vmode else EP+4+16*i+r}, v{b+r}")
                    for r in range(8 * g, (8 * g + 8) * (k.o.get("epk") != "0"), 2):
                        if vmode: a(f"v_pk_mul_f32 {vr(b+r,2)}, {vr(EP+32*t+r,2)}, {vr(b+r,2)}")
                        else: a(f"v_pk_mul_f32 {vr(b+r,2)}, {vr(12+2*t,2)}, {vr(b+r,2)} op_sel_hi:[0,1]")
                    for r in range(8 * g, (8 * g + 8) * (k.o.get("epk") != "0"), 2):
                        if vmode: a(f"v_pk_fma_f32 {vr(b+r,2)}, {vr(EP+32*t+16+r,2)}, v[12:13], {vr(b+r,2)} op_sel:[0,{i},0] op_sel_hi:[1,{i},1] neg_lo:[1,0,0] neg_hi:[1,0,0]")
                        else: a(f"v_pk_fma_f32 {vr(b+r,2)}, {vr(12+2*t,2)}, {vr(EP+4+16*i+r,2)}, {vr(b+r,2)} op_sel:[1,0,0] op_sel_hi:[1,1,1] neg_lo:[1,0,0] neg_hi:[1,0,0]")
                    for r in range(4): a(f"v_cvt_pk_bf16_f32 v{o+r}, v{b+8*g+2*r}, v{b+8*g+2*r+1}")
                    if vmode: a(f"buffer_store_dwordx4 v[{o}:{o+3}], v{STA+i}, {WS}, 0 offen offset:{640*g+1280*t} sc1")
                    else: a(f"buffer_store_dwordx4 v[{o}:{o+3}], v{STA+2*i+g}, {WS}, 0 offen offset:{512*t} sc1")
        if k.o.get("cprio"): a("s_setprio 0")
        if not vmode: a("s_branch L_p1_done")
```

```python
import math
from asmlib import vr, sr, f2u
from tables import *
from gen import *

Qm, Qr, NEG, S0, S1, P, O, Km, Kr, V = 4, 8, 12, 28, 60, 92, 108, 124, 132, 136
AK, AKR, AV, DKM, DLIN = 152, 153, 154, 197, 196
XR = 198
PL = 184
SLOT = 22528
WO_LDS = 3 * SLOT
sH, sQB, sST, sK0, sK1, sK2, sS1, sDS, sKD, sVM, sRET, sWOo, sWOl = 64, 65, 66, 67, 68, 69, 70, 71, 72, 74, 76, 78, 79
sW10, sL1, sD1, sL2, sSD, sD2 = 73, 82, 83, 93, 94, 78
sTA, sW1, sSM = 95, 96, 98
WS = f"s[{SRD_WS}:{SRD_WS+3}]"
M32 = "v_mfma_f32_32x32x16_bf16"
M2B = "v_mfma_f32_32x32x4_2b_bf16"
M16 = "v_mfma_f32_16x16x32_bf16"

def kv_piece(k, i):
    a = k.a
    a(f"s_add_u32 m0, s{(sW10, sL1, sL2)[i]}, s{sDS}")
    a(f"s_add_u32 s{sK0+i}, s{sK0+i}, {('4096', f's{sS1}', '10240')[i]}")
    k.dma((DKM, DLIN, DLIN)[i], SRD_WS, f"s{sK0+i}", "sc1")

def wo_piece(k):
    a = k.a
    a(f"s_min_u32 m0, s{sWOl}, {WO_LDS + 90*1024}")
    a(f"s_add_u32 s{sWOl}, s{sWOl}, 8192")
    k.dma(DLIN, SRD_WQ, "m0", "sc1")

def touch_piece(k):
    a = k.a
    a(f"buffer_load_dwordx4 v[160:163], v{DLIN}, {WS}, s{sTA} offen sc1")
    a(f"s_add_u32 s{sTA}, s{sTA}, 1024")

def SG(i): return 172 + 4 * i if i < 6 else 204 + 4 * (i - 6)

def stage_load(k, vq, tag, i, s_src, off, valid=8):
    a = k.a
    a(f"s_add_u32 s{T0}, s{s_src}, {off}")
    if valid < 8:
        a(f"s_cmp_ge_u32 s{S_W}, {valid}")
        a(f"s_cselect_b32 s{T0}, 0x7f000000, s{T0}")
    a(f"buffer_load_dwordx4 {vr(SG(i),4)}, v{DLIN}, {WS}, s{T0} offen sc1")
    if vq is not None: vq.add(tag)

def qkm(a, t, d, c): a(f"{M32} {vr(d+16*t,16)}, {vr(Km+4*t,4)}, {vr(Qm,4)}, {c}")
def qkr(a, d): a(f"{M2B} {vr(d,32)}, {vr(Kr,2)}, {vr(Qr,2)}, {vr(d,32)}")
def pv(a, j): a(f"{M32} {vr(O,16)}, {vr(V+4*j,4)}, {vr(P+4*j,4)}, {vr(O,16)}")

OA = 165
PGA, PGV, PGR, PGD = 155, 156, 159, 164
PG_LDS = 157 * 1024
SCHED = {
 "a": "q0 e4 m p3 v e4 m q1 k0 c4 m e4 k1 m p0 e4 c2 m qr c2 kr e4 m e4 c2 m p1 c2 e2 m e3 m p2 e3 m c4",
 "b": "q0 e5 m p3 v e3 c2 m q1 k0 c2 e3 m k1 e2 m p0 e3 c2 m qr kr c2 e4 m e4 c2 m p1 c2 e3 m e2 m p2 e3 m c4",
 "c": "p3 v e4 m q0 e4 m c2 q1 k0 c2 m e4 k1 m p0 e4 c2 m qr c2 kr e4 m e4 c2 m p1 c2 e2 m e3 m p2 e3 m c4",
 "d": "q0 e4 m q1 k0 e4 m p3 v c4 k1 m e5 m qr kr e3 c2 m e4 c2 m p0 e4 m c2 p1 c2 e2 m e3 m p2 e3 m c4",
 "e": "q0 e6 m p3 v e2 c3 m q1 k0 c1 e4 m k1 m p0 e4 c2 m qr c2 kr e4 m e4 c2 m p1 c2 e3 m e3 m p2 e2 m c4",
 "f": "q0 e4 m p3 v e4 m q1 k0 c4 m e4 k1 m p0 e4 c4 m qr kr e4 m e4 m p1 c4 e2 m e2 m p2 e4 m c4",
}
def att_stage(k, young):
    a = k.a
    o = k.o
    soft = o.get("soft", "1") == "1"
    tag = "Y" if young else "O"
    barit, barpos = [int(x) for x in o.get("abar" + tag, "0.6" if young else "1.2").split(".")]
    pA = int(o.get("pA" + tag, o.get("pA", 4))); pC = int(o.get("pC" + tag, o.get("pC", 20)))
    plos = [int(c, 16) for c in (o.get("plo", "7") * 4)[:4]]; ntouch = int(o.get("ntouch", 2))
    lq = LQ(a)
    def exps(b, n0, n):
        for i in range(n0, n0 + n): a(f"v_exp_f32 v{b+i}, v{b+i}")
    def cvts(b, n0, n):
        for i in range(n0, n0 + n): a(f"v_cvt_pk_bf16_f32 v{P+i}, v{b+2*i}, v{b+2*i+1}")
    def rdV(js, it):
        a(f"s_mov_b64 exec, s[{sVM}:{sVM+1}]")
        for j in js:
            a(f"ds_read_b128 {vr(V+4*j,4)}, v{AV} offset:{12288+(4*it+j)*640}"); lq.add(("V", j))
        a("s_mov_b64 exec, -1")
    for it in range(4):
        cur, nx = (S0, S1) if it % 2 == 0 else (S1, S0)
        i2 = (it + 2) % 4
        npos = [0]
        def mark():
            p = it * 11 + npos[0]
            if p % 4 == 1: k.jit(3)
            if soft:
                if p == pA:
                    a(f"v_add_u32 v{PGV}, 1, v{PGV}")
                    a(f"s_waitcnt vmcnt({3 + ntouch})")
                    a(f"ds_write_b32 v{PGA}, v{PGV}"); lq.add("a")
                if p == pC - int(o.get("pR", 2)):
                    a(f"ds_read_b32 v{PGD}, v{PGR}"); lq.add("g")
                if p == pC:
                    lq.wait("g")
                    Lw, Lb = a.newlabel("late"), a.newlabel("go")
                    a(f"v_cmp_lt_u32 vcc, v{PGD}, v{PGV}")
                    a(f"s_cbranch_vccnz {Lw}")
                    a.label(Lb)
                    k._late.append((Lw, Lb))
                    if o.get("its") == "2": k.stamp_dyn(54, sST)
                g = p - pC; d0 = 1; dd = int(o.get("dd", 2))
            else:
                g = p - (barit * 11 + barpos)
                if g == 0:
                    a("s_waitcnt vmcnt(0)")
                    a("s_barrier")
                    if o.get("its") == "2": k.stamp_dyn(54, sST)
                d0 = int(o.get("d" + tag, 5 if young else 1)); dd = int(o.get("dd", 3))
            if g == d0 - 1:
                a(f"s_call_b64 s[{sRET}:{sRET+1}], L_att_side")
            if g in [d0 + (5 + 2 * i) * dd for i in range(ntouch)]: touch_piece(k); k._n += 1
            for i in range(3):
                if g == d0 + (1 + i) * dd: kv_piece(k, i); k._n += 1
            for i in range(3):
                if g == d0 + (4 + 2 * i) * dd: wo_piece(k); k._n += 1
            if o.get("rle", "1") == "1" and p == int(o.get("pF", 41)):
                Lb = a.newlabel("nf")
                a(f"s_cmp_lg_u32 s{sST}, 0")
                a(f"s_cbranch_scc1 {Lb}")
                a(f"s_call_b64 s[{sRET}:{sRET+1}], L_as_fin")
                a.label(Lb)
            if young and npos[0] == 0: a("s_setprio 1")
            if young and npos[0] == plos[it]:
                if it >= int(o.get("lastprio", 9)):
                    Ls = a.newlabel("kp")
                    a(f"s_cmp_eq_u32 s{sST}, 7")
                    a(f"s_cbranch_scc1 {Ls}")
                    a("s_setprio 0")
                    a.label(Ls)
                else: a("s_setprio 0")
            npos[0] += 1
        if it == 2:
            a(f"v_add_u32 v{AK}, s{sKD}, v{AK}")
            a(f"v_add_u32 v{AKR}, s{sKD}, v{AKR}")
        ne = [0]; nc = [0]
        def E(n): exps(cur, ne[0], n); ne[0] += n
        def C(n): cvts(cur, nc[0], n); nc[0] += n
        def rk(t): a(f"ds_read_b128 {vr(Km+4*t,4)}, v{AK} offset:{2048*i2+1024*t}"); lq.add("K")
        def rkr(): a(f"ds_read_b64 {vr(Kr,2)}, v{AKR} offset:{8192+1024*i2}"); lq.add("K")
        def PV(j):
            if j < 3: lq.wait(("V", max(j, int(o.get("vw", 3)))))
            pv(a, j)
        ops = dict(q0=lambda: qkm(a, 0, nx, vr(NEG, 16)), q1=lambda: qkm(a, 1, nx, vr(NEG, 16)), qr=lambda: qkr(a, nx),
                   p0=lambda: PV(0), p1=lambda: PV(1), p2=lambda: PV(2), p3=lambda: PV(3), v=lambda: rdV([0, 1, 2, 3], it),
                   k0=lambda: rk(0), k1=lambda: rk(1), kr=rkr, m=mark)
        sched = SCHED[o.get("sched", "a")].split()
        mark()
        a("s_waitcnt lgkmcnt(0)"); lq.q = []
        for x in sched:
            if x[0] == "e": E(int(x[1:]))
            elif x[0] == "c": C(int(x[1:]))
            else: ops[x]()
        assert ne[0] == 32 and nc[0] == 16 and npos[0] == 11
        if it == 3:
            a(f"v_add_u32 v{AV}, s{sKD}, v{AV}")
            a(f"s_add_u32 s{sST}, s{sST}, 1")
            a(f"s_add_u32 s{sDS}, s{sDS}, s{sD2}")
            a(f"s_mov_b32 s{T0}, s{sKD}")
            a(f"s_mov_b32 s{sKD}, s{sD1}")
            a(f"s_mov_b32 s{sD1}, s{sD2}")
            a(f"s_mov_b32 s{sD2}, s{T0}")

def att_late(k):
    a = k.a
    for Lw, Lb in k._late:
        a.label(Lw)
        a(f"s_mov_b32 s{S_SPIN}, 0")
        L = a.newlabel("lsp")
        a.label(L)
        a(f"ds_read_b32 v{PGD}, v{PGR}")
        a(f"s_add_u32 s{S_SPIN}, s{S_SPIN}, 1")
        a(f"s_cmp_ge_u32 s{S_SPIN}, {SPIN_MAX * 16}")
        a(f"s_cbranch_scc1 {Lb}")
        a("s_waitcnt lgkmcnt(0)")
        a(f"v_cmp_lt_u32 vcc, v{PGD}, v{PGV}")
        a(f"s_cbranch_vccnz {L}")
        a(f"s_branch {Lb}")

def att_side(k):
    a = k.a
    a.label("L_att_side")
    a(f"s_bitcmp1_b32 s{sST}, 2")
    a("s_cbranch_scc1 L_as_hi")
    a(f"s_cmp_lt_u32 s{sST}, 1")
    a("s_cbranch_scc1 L_as_0")
    a(f"s_cmp_lt_u32 s{sST}, 2")
    a("s_cbranch_scc1 L_as_1")
    a(f"s_cmp_lt_u32 s{sST}, 3")
    a("s_cbranch_scc1 L_as_2")
    a(f"s_mov_b32 s{T0}, {FL_R}")
    a(f"buffer_load_dwordx4 v[{PL}:{PL+3}], v{DLIN}, {WS}, s{T0} offen sc1")
    a(f"buffer_load_dwordx4 v[{PL+4}:{PL+7}], v{DLIN}, {WS}, s{T0} offen offset:1024 sc1")
    a(f"s_setpc_b64 s[{sRET}:{sRET+1}]")
    a.label("L_as_2")
    a(f"s_lshl_b32 s{T0}, s{S_G}, 3")
    a(f"s_add_u32 s{T0}, s{T0}, {FL_R}")
    k.flag_store(T0, PL)
    a(f"s_setpc_b64 s[{sRET}:{sRET+1}]")
    if k.o.get("rle", "1") == "1":
        a.label("L_as_fin")
        a("s_waitcnt vmcnt(8)")
        k.relayout_finish()
        a("s_nop 1")
        a.label("L_as_0")
        a.label("L_as_1")
        a(f"s_setpc_b64 s[{sRET}:{sRET+1}]")
    else:
        a.label("L_as_0")
        k.relayout_issue()
        a(f"s_setpc_b64 s[{sRET}:{sRET+1}]")
        a.label("L_as_1")
        k.relayout_finish()
        a("s_nop 1")
        a(f"s_setpc_b64 s[{sRET}:{sRET+1}]")
    a.label("L_as_hi")
    a(f"s_cmp_eq_u32 s{sST}, 7")
    a("s_cbranch_scc1 L_as_7")
    a(f"s_cmp_eq_u32 s{sST}, 6")
    a("s_cbranch_scc1 L_as_6")
    a(f"s_cmp_eq_u32 s{sST}, 5")
    a("s_cbranch_scc1 L_as_5")
    N = f"s[{S_NONCE}:{S_NONCE+1}]"
    a(f"v_cmp_ne_u64 vcc, {N}, v[{PL}:{PL+1}]")
    a(f"v_cmp_ne_u64 s[{S_M1}:{S_M1+1}], {N}, v[{PL+2}:{PL+3}]")
    a(f"s_and_b32 s{T1}, s{S_J}, 7")
    a(f"s_or_b64 s[{T4}:{T5}], vcc, s[{S_M1}:{S_M1+1}]")
    a(f"v_cmp_ne_u64 vcc, {N}, v[{PL+4}:{PL+5}]")
    a(f"v_cmp_ne_u64 s[{S_M1}:{S_M1+1}], {N}, v[{PL+6}:{PL+7}]")
    a(f"s_add_u32 s{sWOl}, s{sW10}, {WO_LDS}")
    a(f"s_lshl_b32 s{T2}, s{S_J}, 3")
    a(f"s_add_u32 s{T2}, s{T2}, s{S_W}")
    a(f"s_mul_i32 s{sTA}, s{T2}, 8640")
    a(f"s_add_u32 s{sTA}, s{sTA}, {WS_W2}")
    a(f"s_and_b32 s{T2}, s{S_J}, 15")
    a(f"s_mul_i32 s{sW1}, s{T2}, {20*7168}")
    a(f"s_add_u32 s{sW1}, s{sW1}, s{sW10}")
    a(f"s_add_u32 s{sW1}, s{sW1}, {WS_W1}")
    a(f"s_or_b64 s[{T4}:{T5}], s[{T4}:{T5}], vcc")
    a(f"s_or_b64 s[{T4}:{T5}], s[{T4}:{T5}], s[{S_M1}:{S_M1+1}]")
    a("s_cbranch_scc0 L_as_ret")
    a(f"s_mov_b32 s{T3}, {FL_R}")
    k.diag("fr")
    k.poll(256, T3, 8, PL, only_wave0=False)
    a.label("L_as_ret")
    grp = ((0, 4), (4, 9), (9, 14), (14, 18))
    for st in range(4, 8):
        if st > 4: a.label(f"L_as_{st}")
        if st == 6:
            for r in (sK0, sK1, sK2): a(f"s_mov_b32 s{r}, 0x7f000000")
        for i in range(*grp[st - 4]): stage_load(k, None, None, i, sW1, 8192 * i, 4 if i == 17 else 8)
        a(f"s_setpc_b64 s[{sRET}:{sRET+1}]")

def resid_x(k):
    a = k.a
    a(f"s_lshr_b32 s{T0}, s{S_J}, 3")
    a(f"s_lshl_b32 s{T1}, s{S_C}, 2")
    a(f"s_add_u32 s{T0}, s{T0}, s{T1}")
    a(f"s_lshl_b32 s{T0}, s{T0}, 2")
    a(f"s_and_b32 s{T1}, s{S_W}, 3")
    a(f"s_add_u32 s{T0}, s{T0}, s{T1}")
    a(f"s_mul_i32 s{T0}, s{T0}, {16*1280}")
    a(f"s_and_b32 s{T1}, s{S_J}, 7")
    a(f"s_mul_i32 s{T1}, s{T1}, 160")
    a(f"s_add_u32 s{T0}, s{T0}, s{T1}")
    a(f"s_lshr_b32 s{T1}, s{S_W}, 2")
    a(f"s_lshl_b32 s{T1}, s{T1}, 6")
    a(f"s_add_u32 s{T1}, s{T1}, s{T0}")
    a(f"v_lshrrev_b32 v{TM}, 2, v0")
    a(f"v_mul_u32_u24 v{TM}, 1280, v{TM}")
    a(f"v_and_b32 v{TM+1}, 3, v0")
    a(f"v_lshl_add_u32 v{TM}, v{TM+1}, 3, v{TM}")
    a(f"buffer_load_dwordx2 v[{XR}:{XR+1}], v{TM}, s[{SRD_X}:{SRD_X+3}], s{T1} offen")
    a(f"buffer_load_dwordx2 v[{XR+2}:{XR+3}], v{TM}, s[{SRD_X}:{SRD_X+3}], s{T1} offen offset:32")
    a(f"buffer_load_dwordx2 v[{XR+4}:{XR+5}], v{TM}, s[{SRD_X}:{SRD_X+3}], s{T0} offen offset:128")

def rowmax(a, b, n, dst, t):
    a(f"v_max3_f32 v{dst}, v{b}, v{b+1}, v{dst}")
    for i in range(2, n, 2): a(f"v_max3_f32 v{dst}, v{b+i}, v{b+i+1}, v{dst}")

def set_neg(a, m, t):
    a(f"v_mov_b32 v{t}, v{m}")
    a("s_nop 1")
    a(f"v_permlane32_swap_b32 v{m}, v{t}")
    a("s_nop 0")
    a(f"v_max_f32 v{m}, v{m}, v{t}")
    for r in range(16): a(f"v_sub_f32 v{NEG+r}, 0, v{m}")

def att_fallback(k):
    a = k.a
    FT = S1
    a.label("L_att_fb")
    sI, sA, sB, sC = T0, T1, T2, T3
    def init():
        a(f"s_lshl_b32 s{sA}, s{sH}, 16")
        a(f"s_add_u32 s{sA}, s{sA}, {WS_K}")
        a(f"s_lshr_b32 s{sB}, s{sH}, 1")
        a(f"s_lshl_b32 s{sB}, s{sB}, 15")
        a(f"s_add_u32 s{sB}, s{sB}, {WS_K + 64*32768}")
        a(f"s_mul_i32 s{sC}, s{sH}, 81920")
        a(f"s_add_u32 s{sC}, s{sC}, {WS_V}")
        a(f"s_mov_b32 s{sI}, 0")
    def ldk():
        a(f"buffer_load_dwordx4 {vr(Km,4)}, v{DKM}, {WS}, s{sA} offen sc1")
        a(f"buffer_load_dwordx4 {vr(Km+4,4)}, v{DKM}, {WS}, s{sA} offen offset:512 sc1")
        a(f"buffer_load_dwordx2 {vr(Kr,2)}, v{FT+1}, {WS}, s{sB} offen sc1")
    def step():
        a(f"s_add_u32 s{sA}, s{sA}, 1024")
        a(f"s_add_u32 s{sB}, s{sB}, 1024")
        a(f"s_add_u32 s{sC}, s{sC}, 2560")
        a(f"s_add_u32 s{sI}, s{sI}, 1")
        a(f"s_cmp_lt_u32 s{sI}, 32")
    a(f"s_and_b32 s{T0}, s{sH}, 1")
    a(f"s_lshl_b32 s{T0}, s{T0}, 3")
    a(f"v_add_u32 v{FT+1}, s{T0}, v{DLIN}")
    a(f"v_lshrrev_b32 v{FT+2}, 5, v0")
    a(f"v_mul_u32_u24 v{FT+2}, 20, v{FT+2}")
    a(f"v_and_b32 v{FT+3}, 31, v0")
    a(f"v_add_lshl_u32 v{FT+2}, v{FT+2}, v{FT+3}, 4")
    a(f"v_mov_b32 v{FT}, 0xff800000")
    init()
    a.label("L_fb_max")
    ldk()
    a("s_waitcnt vmcnt(0)")
    qkm(a, 0, S0, "0"); qkm(a, 1, S0, "0")
    a("s_nop 9")
    qkr(a, S0)
    a("s_nop 15"); a("s_nop 3")
    rowmax(a, S0, 32, FT, FT + 4)
    step()
    a("s_cbranch_scc1 L_fb_max")
    set_neg(a, FT, FT + 4)
    for r in range(16): a(f"v_mov_b32 v{O+r}, 0")
    init()
    a.label("L_fb_acc")
    ldk()
    a(f"s_mov_b64 exec, s[{sVM}:{sVM+1}]")
    for j in range(4): a(f"buffer_load_dwordx4 {vr(V+4*j,4)}, v{FT+2}, {WS}, s{sC} offen offset:{640*j} sc1")
    a("s_mov_b64 exec, -1")
    a("s_waitcnt vmcnt(0)")
    qkm(a, 0, S0, vr(NEG, 16)); qkm(a, 1, S0, vr(NEG, 16))
    a("s_nop 9")
    qkr(a, S0)
    a("s_nop 15"); a("s_nop 3")
    for i in range(32): a(f"v_exp_f32 v{S0+i}, v{S0+i}")
    a("s_nop 0")
    for i in range(16): a(f"v_cvt_pk_bf16_f32 v{P+i}, v{S0+2*i}, v{S0+2*i+1}")
    a("s_nop 1")
    for j in range(4): pv(a, j)
    step()
    a("s_cbranch_scc1 L_fb_acc")
    a(f"s_mov_b32 s{T3}, 1")
    a("s_nop 11")
    a("s_branch L_att_norm")

def phase2(k):
    a = k.a
    a.c("================ phase 2: attention")
    a(f"s_lshl_b32 s{sH}, s{S_C}, 2")
    a(f"s_lshr_b32 s{T0}, s{S_J}, 3")
    a(f"s_add_u32 s{sH}, s{sH}, s{T0}")
    a(f"s_and_b32 s{sQB}, s{S_J}, 7")
    a(f"v_lshlrev_b32 v{DLIN}, 4, v0")
    a("v_lshrrev_b32 v1, 5, v0")
    a("v_and_b32 v2, 31, v0")
    a("v_lshlrev_b32 v3, 15, v1")
    a(f"v_lshl_add_u32 v{DKM}, v2, 4, v3")
    a(f"v_mov_b32 v{AK}, v{DLIN}")
    a(f"s_and_b32 s{T0}, s{sH}, 1")
    a(f"s_lshl_b32 s{T0}, s{T0}, 3")
    a(f"v_add_u32 v{AKR}, s{T0}, v{DLIN}")
    a("v_mul_u32_u24 v3, 20, v1")
    a(f"v_add_lshl_u32 v{AV}, v3, v2, 4")
    a(f"v_lshl_add_u32 v10, v2, 4, s{T0}")
    if k.o.get("dry", "0") == "1":
        a(f"s_cmp_lg_u32 s{S_W}, 7")
        a("s_cbranch_scc1 L_nodry")
        a(f"s_mov_b32 s{sW1}, 0x7f000000")
        for st in (3, 5, 6, 7):
            a(f"s_mov_b32 s{sST}, {st}")
            if st == 3: continue
            a(f"s_call_b64 s[{sRET}:{sRET+1}], L_att_side")
        a.label("L_nodry")
    a(f"s_lshl_b32 s{T0}, s{S_W}, 2")
    a(f"s_add_u32 s{T0}, s{T0}, {PG_LDS}")
    a(f"v_mov_b32 v{PGA}, s{T0}")
    a(f"v_mov_b32 v{PGV}, 0")
    a(f"v_and_b32 v{PGR}, 7, v0")
    a(f"v_lshlrev_b32 v{PGR}, 2, v{PGR}")
    a(f"v_add_u32 v{PGR}, {PG_LDS}, v{PGR}")
    a(f"ds_write_b32 v{PGA}, v{PGV}")
    k._late = []; k._n = 0
    a(f"s_mov_b32 s{sVM}, 0x000fffff")
    a(f"s_mov_b32 s{sVM+1}, 0x000fffff")
    a(f"s_lshl_b32 s{sK0}, s{sH}, 16")
    a(f"s_lshl_b32 s{T0}, s{S_W}, 9")
    a(f"s_add_u32 s{sK0}, s{sK0}, s{T0}")
    a(f"s_add_u32 s{sK0}, s{sK0}, {WS_K - 4096}")
    a(f"s_lshl_b32 s{T0}, s{S_W}, 10")
    a(f"s_mul_i32 s{sK2}, s{sH}, 81920")
    a(f"s_add_u32 s{sK2}, s{sK2}, s{T0}")
    a(f"s_add_u32 s{T1}, s{sK2}, {WS_V - 4096 - 10240}")
    a(f"s_cmp_ge_u32 s{S_W}, 6")
    a(f"s_cselect_b32 s{T2}, 2048, 0")
    a(f"s_sub_u32 s{sK2}, s{sK2}, s{T2}")
    a(f"s_add_u32 s{sK2}, s{sK2}, {WS_V + 4096 - 10240}")
    a(f"s_sub_u32 s{sL2}, s{T0}, s{T2}")
    a(f"s_add_u32 s{sL2}, s{sL2}, 16384")
    a(f"s_add_u32 s{sL1}, s{T0}, 8192")
    a(f"s_lshr_b32 s{T2}, s{sH}, 1")
    a(f"s_lshl_b32 s{T2}, s{T2}, 15")
    a(f"s_add_u32 s{sK1}, s{T2}, s{T0}")
    a(f"s_add_u32 s{sK1}, s{sK1}, {WS_K + 64*32768 - 4096}")
    a(f"s_mov_b32 s{sS1}, 10240")
    a(f"s_cmp_lt_u32 s{S_W}, 4")
    a(f"s_cselect_b32 s{sK1}, s{sK1}, s{T1}")
    a(f"s_cselect_b32 s{sS1}, 4096, s{sS1}")
    a(f"s_mov_b32 s{sDS}, 0")
    a(f"s_mov_b32 s{sST}, 0")
    a(f"s_mov_b32 s{sKD}, {SLOT}")
    a(f"s_mov_b32 s{sD1}, {SLOT}")
    a(f"s_mov_b32 s{sD2}, {-2*SLOT & 0xffffffff}")
    a(f"s_mov_b32 s{sW10}, s{T0}")
    a(f"s_mov_b32 s{sWOl}, 0x40000000")
    a(f"s_mov_b32 s{sTA}, 0x7f000000")
    a(f"s_and_b32 s{T1}, s{S_J}, 7")
    a(f"s_mul_i32 s{sSD}, s{T1}, {20*5120}")
    a(f"s_add_u32 s{sSD}, s{sSD}, {WS_WO}")
    a(f"s_sub_u32 s{T1}, s{sSD}, {WO_LDS}")
    a(f"s_add_u32 s{SRD_WQ}, s{SRD_WS}, s{T1}")
    a(f"s_addc_u32 s{SRD_WQ+1}, s{SRD_WS+1}, 0")
    a(f"s_mov_b32 s{SRD_WQ+2}, {WO_LDS + 90*1024}")
    a(f"s_lshl_b32 s{T0}, s{sQB}, 3")
    a(f"s_add_u32 s{T0}, s{T0}, s{S_W}")
    a(f"s_lshl_b32 s{T0}, s{T0}, 9")
    a(f"s_add_u32 s{T2}, s{T2}, s{T0}")
    a(f"s_add_u32 s80, s{T2}, {WS_Q + 64*32768}")
    a(f"s_lshl_b32 s{T3}, s{sH}, 16")
    a(f"s_add_u32 s{T3}, s{T3}, s{T0}")
    a(f"s_add_u32 s81, s{T3}, {WS_Q}")
    a("v_cmp_eq_u32 vcc, 20, v2")
    a("v_mov_b32 v3, 0x3f803f80")
    a("s_nop 0")
    a("v_cndmask_b32 v3, 0, v3, vcc")
    for r in range(16): a(f"v_mov_b32 v{V+r}, v3")
    for r in range(16): a(f"v_mov_b32 v{O+r}, 0")
    for r in range(12, 16): a(f"v_mov_b32 v{P+r}, 0")
    a(f"s_mul_i32 s{T0}, s{sH}, 20")
    a(f"s_add_u32 s{T1}, s{T0}, 19")
    a(f"s_lshr_b32 s{T0}, s{T0}, 7")
    a(f"s_lshr_b32 s{T1}, s{T1}, 7")
    a(f"s_sub_u32 s{T1}, s{T1}, s{T0}")
    a(f"s_lshl_b32 s{T1}, s{T1}, 4")
    a(f"v_and_b32 v{PL+4}, s{T1}, v0")
    a(f"v_and_b32 v{PL+5}, 15, v0")
    a(f"v_add_u32 v{PL+5}, v{PL+5}, v{PL+4}")
    a(f"v_mul_u32_u24 v{PL+6}, 0x50, v1")
    a(f"v_add3_u32 v{PL+5}, v{PL+5}, v{PL+6}, 64")
    a(f"v_add_u32 v{PL+5}, 16, v{PL+5}")
    a(f"v_lshlrev_b32 v{PL+5}, 7, v{PL+5}")
    a(f"s_lshl_b32 s{T2}, s{sQB}, 1")
    a(f"v_and_b32 v{PL+6}, 1, v0")
    a(f"v_add3_u32 v{PL+4}, v{PL+4}, v{PL+6}, s{T2}")
    a(f"v_lshlrev_b32 v{PL+4}, 7, v{PL+4}")
    a(f"s_lshl_b32 s{T0}, s{T0}, 11")
    a(f"s_add_u32 s{T3}, s{T0}, {FL_1}")
    def ldq():
        a(f"buffer_load_dwordx4 {vr(Qm,4)}, v{DKM}, {WS}, s81 offen sc1")
        a(f"buffer_load_dwordx2 {vr(Qr,2)}, v10, {WS}, s80 offen sc1")
    early_q = k.o.get("earlyq", "1") == "1"
    if early_q:
        def own_q():
            a(f"s_lshr_b32 s{T0}, s{S_W}, 2")
            a(f"s_add_u32 s{T0}, s{T0}, s{T2}")
            a(f"v_and_b32 v{PL+4}, s{T1}, v0")
            a(f"v_add_lshl_u32 v{PL+4}, v{PL+4}, s{T0}, 7")
            L = a.newlabel("qp"); Ld = a.newlabel("qpd")
            a(f"s_mov_b32 s{S_SPIN}, 0")
            a.label(L)
            a(f"buffer_load_dwordx2 v[{PL}:{PL+1}], v{PL+4}, {WS}, s{T3} offen sc1")
            a(f"s_add_u32 s{S_SPIN}, s{S_SPIN}, 1")
            a(f"s_cmp_ge_u32 s{S_SPIN}, {SPIN_MAX}")
            a(f"s_cbranch_scc1 {Ld}")
            a("s_waitcnt vmcnt(0)")
            a(f"v_cmp_ne_u64 vcc, s[{S_NONCE}:{S_NONCE+1}], v[{PL}:{PL+1}]")
            a(f"s_cbranch_vccnz {L}")
            a.label(Ld)
            ldq()
        not_wave0(k, own_q)
    k.poll2(PL + 5, PL + 4, T3, PL)
    a("s_waitcnt lgkmcnt(0)")
    a("s_barrier")
    k.stamp(8)
    if early_q:
        a(f"s_cmp_lg_u32 s{S_W}, 0")
        a("s_cbranch_scc1 L_noq")
    ldq()
    if early_q: a.label("L_noq")
    for i in range(3): kv_piece(k, i)
    a(f"s_mov_b32 s{sDS}, {SLOT}")
    a(f"s_lshl_b32 s{T0}, s{sQB}, 4")
    a(f"s_lshl_b32 s{T1}, s{S_W}, 1")
    a(f"s_add_u32 s{T0}, s{T0}, s{T1}")
    a(f"s_mul_i32 s{T0}, s{T0}, 20480")
    a(f"s_add_u32 s{T0}, s{T0}, {WS_O}")
    a(f"s_lshl_b32 s{T1}, s{sH}, 9")
    a(f"s_add_u32 s80, s{T0}, s{T1}")
    a(f"s_lshr_b32 s{T1}, s{sH}, 4")
    a(f"s_lshl_b32 s{T2}, s{T1}, 11")
    a(f"s_add_u32 s80, s80, s{T2}")
    a(f"s_lshl_b32 s{T1}, s{T1}, 13")
    a(f"s_add_u32 s{T0}, s{T0}, s{T1}")
    a(f"s_lshr_b32 s{T1}, s{sH}, 3")
    a(f"s_lshl_b32 s{T1}, s{T1}, 10")
    a(f"s_add_u32 s{T0}, s{T0}, s{T1}")
    a(f"s_bfe_u32 s{T1}, s{sH}, 0x20001")
    a(f"s_lshl_b32 s{T1}, s{T1}, 7")
    a(f"s_add_u32 s{T0}, s{T0}, s{T1}")
    a(f"s_and_b32 s{T1}, s{sH}, 1")
    a(f"s_lshl_b32 s{T1}, s{T1}, 9")
    a(f"s_add_u32 s{T0}, s{T0}, s{T1}")
    a(f"s_add_u32 s81, s{T0}, 8192")
    a("v_bfe_u32 v3, v0, 4, 1")
    a("v_mul_u32_u24 v3, 20480, v3")
    a("v_and_b32 v10, 15, v0")
    a("v_lshl_add_u32 v11, v10, 4, v3")
    a(f"v_lshl_add_u32 v{OA+1}, v10, 3, v3")
    a("v_lshrrev_b32 v10, 5, v0")
    a(f"v_lshl_add_u32 v{OA}, v10, 8, v11")
    a("s_waitcnt vmcnt(0)")
    for i in range(3): kv_piece(k, i)
    a(f"s_mov_b32 s{sDS}, {2*SLOT}")
    a("s_barrier")
    k.hold("fix9")
    k.stamp(9)
    def rdk(i):
        a(f"ds_read_b128 {vr(Km,4)}, v{AK} offset:{2048*i}")
        a(f"ds_read_b128 {vr(Km+4,4)}, v{AK} offset:{2048*i+1024}")
        a(f"ds_read_b64 {vr(Kr,2)}, v{AKR} offset:{8192+1024*i}")
    rdk(0)
    a(f"v_mov_b32 v{PL}, 0xff800000")
    a("s_waitcnt lgkmcnt(0)")
    qkm(a, 0, S0, "0"); qkm(a, 1, S0, "0")
    a("s_nop 9")
    qkr(a, S0)
    rdk(1)
    touch_piece(k)
    if k.o.get("rle", "1") == "1":
        k.relayout_issue(other=lambda: [wo_piece(k), wo_piece(k), wo_piece(k), touch_piece(k)])
    else:
        for i in range(3): wo_piece(k)
        touch_piece(k)
    a("s_nop 9")
    a("s_nop 3")
    rowmax(a, S0, 32, PL, PL + 4)
    set_neg(a, PL, PL + 4)
    for r in range(32): a(f"v_sub_f32 v{S0+r}, v{S0+r}, v{PL}")
    a(f"s_cmp_ge_u32 s{S_W}, 4")
    a("s_cbranch_scc1 L_att_young")
    for young in (0, 1):
        L = "L_att_young" if young else "L_att_old"
        a.align(int(k.o.get("al2", 3)))
        a.label(L)
        att_stage(k, young)
        a(f"s_cmp_lt_u32 s{sST}, 8")
        a(f"s_cbranch_scc1 {L}")
        if not young: a("s_branch L_att_done")
    a("s_setprio 0")
    a.label("L_att_done")
    a("s_waitcnt lgkmcnt(3)")
    pv(a, 3)
    k.stamp(10)
    a("s_waitcnt lgkmcnt(0)")
    a(f"s_mov_b32 s{T3}, 0")
    a("s_nop 9")
    a.label("L_att_norm")
    a(f"v_mov_b32 v1, v{O+8}")
    a(f"v_mov_b32 v2, v{O+8}")
    a("v_mov_b32 v3, 0x203")
    a(f"v_mov_b32 v10, 0x{f2u(2.0**40):08x}")
    a("v_permlane32_swap_b32 v1, v2")
    a("s_nop 0")
    a("v_rcp_f32 v1, v2")
    a("v_cmp_nle_f32 vcc, v2, v10")
    for r in range(8): a(f"v_mul_f32 v{O+r}, v1, v{O+r}")
    for r in range(4): a(f"v_cvt_pk_bf16_f32 v{P+r}, v{O+2*r}, v{O+2*r+1}")
    a(f"buffer_store_dwordx4 {vr(P,4)}, v{OA}, {WS}, s80 offen sc1")
    for r in range(8, 12): a(f"v_mul_f32 v{O+r}, v1, v{O+r}")
    for r in range(4, 6): a(f"v_cvt_pk_bf16_f32 v{P+r}, v{O+2*r}, v{O+2*r+1}")
    a("s_mov_b64 exec, 0xffffffff")
    a(f"buffer_store_dwordx2 {vr(P+4,2)}, v{OA+1}, {WS}, s81 offen sc1")
    a("s_mov_b64 exec, -1")
    a(f"v_add_f32 v1, abs(v{O}), abs(v{O+1})")
    a(f"v_add_f32 v2, abs(v{O+2}), abs(v{O+3})")
    for r in range(4, 12, 2):
        a(f"v_add_f32 v1, abs(v{O+r}), v1")
        a(f"v_add_f32 v2, abs(v{O+r+1}), v2")
    a("v_add_f32 v1, v1, v2")
    a(f"v_cmp_class_f32 s[{S_M1}:{S_M1+1}], v1, v3")
    a(f"s_cmp_lg_u32 s{T3}, 0")
    a("s_cbranch_scc1 L_att_end")
    a(f"s_or_b64 vcc, vcc, s[{S_M1}:{S_M1+1}]")
    a("s_cbranch_scc1 L_att_fb")
    if k.o.get("fine") == "2": k.stamp(20)
    a("s_branch L_att_end")
    assert k._n == 2 * (6 + int(k.o.get("ntouch", 2))), k._n
    att_side(k)
    att_late(k)
    att_fallback(k)
    a.label("L_att_end")
    if k.stop == 2:
        a("s_waitcnt vmcnt(0)")
        k.stamp(11)


class VQ:
    def __init__(self, a): self.a = a; self.q = []
    def add(self, tag): self.q.append(tag)
    def wait(self, tag):
        if tag not in self.q: return
        i = len(self.q) - 1 - self.q[::-1].index(tag)
        n = len(self.q) - 1 - i
        self.a(f"s_waitcnt vmcnt({n})")
        self.q = self.q[i + 1:]

def dma_ops(k, vq, tag, first, last, s_src, s_lds, lds0, nw=8):
    a = k.a
    def one(i):
        def f():
            a(f"s_add_u32 m0, s{s_lds}, {lds0 + nw * i * 1024}")
            a(f"s_add_u32 s{T0}, s{s_src}, {(first + nw * i) * 1024}")
            if first + nw * i + nw > last:
                a(f"s_cmp_ge_u32 s{S_W}, {last - first - nw*i + (1 if nw == 7 else 0)}")
                a(f"s_cselect_b32 m0, {k.DUMMY}, m0")
                a(f"s_cselect_b32 s{T0}, 0x7f000000, s{T0}")
            k.dma(DLIN, SRD_WS, f"s{T0}", "sc1")
            if vq is not None: vq.add(tag)
        return f
    return [one(i) for i in range((last - first + nw - 1) // nw)]

DL8 = 197
RA = 8
AF = 4
ST = 36
ACC = 44
BA = 72
XW, XRD = 78, 79
TM = 80
WB = 88
CSV = 148
SW = 1
TL = 252
HR = 198
sRG, sKH, sN8, sRB64, sA, sB = 64, 65, 66, 67, 68, 69
sW7 = 72
CS_LDS = 158 * 1024

def a_op(k, vq, j, ks, s_base, split):
    a = k.a
    reg = AF + 4 * (j % RA)
    pol = k.o.get("apol", "sc1")
    def f():
        if k.o.get("noa"): return
        a(f"s_add_u32 s{T0}, s{s_base}, {1024*ks}")
        if split:
            a(f"buffer_load_dwordx2 {vr(reg,2)}, v{DL8}, {WS}, s{T0} offen sc1")
            a(f"buffer_load_dwordx2 {vr(reg+2,2)}, v{DL8}, {WS}, s{T0} offen offset:512 sc1")
            vq.add(("a", j))
        else:
            a(f"buffer_load_dwordx4 {vr(reg,4)}, v{DLIN}, {WS}, s{T0} offen {pol}")
        vq.add(("A", j))
    return f

def coop_touch(k, vq, s_base, s_idx, stride, n):
    a = k.a
    if not k.o.get("coop"): return
    a(f"s_lshl_b32 s{T1}, s{s_idx}, 10")
    a(f"s_add_u32 s{T1}, s{T1}, s{s_base}")
    for i in range((n + stride - 1) // stride):
        a(f"s_add_u32 s{T0}, s{T1}, {1024*stride*i}")
        if stride * i + stride > n:
            a(f"s_cmp_ge_u32 s{s_idx}, {n - stride*i}")
            a(f"s_cselect_b32 s{T0}, s{T1}, s{T0}")
        a(f"buffer_load_dwordx4 {vr(TM+4,4)}, v{DLIN}, {WS}, s{T0} offen sc1")
        vq.add("t")

class LQ(VQ):
    def wait(self, tag):
        if tag not in self.q: return
        i = len(self.q) - 1 - self.q[::-1].index(tag)
        self.a(f"s_waitcnt lgkmcnt({min(15, len(self.q) - 1 - i)})")
        self.q = self.q[i + 1:]

def stage_write(k, lq, i, lds, tail=None):
    a = k.a
    if i % 4 == 0: k.jit(2)
    if tail is not None: a(f"ds_write_b128 v{tail}, {vr(SG(i),4)}")
    else: a(f"ds_write_b128 v{SW + lds // 65536}, {vr(SG(i),4)} offset:{lds % 65536}")
    if lq is not None: lq.add("w")

def acc_init(k, src):
    a = k.a
    a(f"s_sub_u32 s{T0}, s{sKH}, 1")
    for i, t in enumerate((0, 1, 4)):
        for h in range(2):
            r = src + 2 * i + h
            if i == 2:
                a(f"v_and_b32 v{TM+2}, s{T0}, v{r}"); r = TM + 2
            a(f"v_lshlrev_b32 v{ACC+4*t+2*h}, 16, v{r}")
            a(f"v_and_b32 v{ACC+4*t+2*h+1}, 0xffff0000, v{r}")
    for r in range(8, 16): a(f"v_mov_b32 v{ACC+r}, 0")

def mm_steps(k, vq, n, nt, addr, extra, pre_hook=None, init=False):
    a = k.a
    NB = 3
    lq = k.lq = LQ(a)
    def rd(j, t):
        r, off = addr(j, t)
        a(f"ds_read_b128 {vr(WB + (j % NB) * 4 * nt + 4 * t, 4)}, v{r} offset:{off}")
        lq.add(("r", j))
    for j in range(2):
        for t in range(nt): rd(j, t)
    for j in range(n):
        b = WB + (j % NB) * 4 * nt
        ops = list(extra.get(j, []))
        slots = {}
        for i, f in enumerate(ops): slots.setdefault(1 + (i * (nt - 1)) // max(1, len(ops)), []).append(f)
        k.jit(2)
        if pre_hook and j + 2 < n: pre_hook(j + 2)
        vq.wait(("A", j))
        lq.wait(("r", j))
        for t in range(nt):
            c = "0" if j == 0 and not init else vr(ACC + 4 * t, 4)
            a(f"{M16} {vr(ACC+4*t,4)}, {vr(b+4*t,4)}, {vr(AF+4*(j%RA),4)}, {c}")
            if j + 2 < n: rd(j + 2, t)
            for f in slots.get(t, []): f()

def tile_addrs(k, base_expr_sgpr, dst):
    a = k.a
    a(f"s_lshl_b32 s{T1}, s{sKH}, 11")
    a(f"v_add_u32 v{dst+2}, s{base_expr_sgpr}, v{DLIN}")
    a(f"v_add_u32 v{dst}, s{T1}, v{dst+2}")
    a(f"v_subrev_u32 v{dst+1}, s{T1}, v{dst+2}")

def exch_addrs(k, scr):
    a = k.a
    a(f"s_mul_i32 s{T0}, s{sRG}, 5120")
    a(f"s_add_u32 s{T0}, s{T0}, {scr}")
    a(f"s_lshl_b32 s{T1}, s{sKH}, 11")
    a(f"s_add_u32 s{T2}, s{T0}, s{T1}")
    a(f"v_add_u32 v{XW}, s{T2}, v{DLIN}")
    a(f"s_sub_u32 s{T2}, s{T0}, s{T1}")
    a(f"s_add_u32 s{T2}, s{T2}, 2048")
    a(f"v_add_u32 v{XRD}, s{T2}, v{DLIN}")

def reduce_halves(k, resid, pad):
    a = k.a
    if pad: a(f"s_nop {pad-1}")
    a(f"ds_write_b128 v{XW}, {vr(ACC+8,4)}")
    a(f"ds_write_b128 v{XW}, {vr(ACC+12,4)} offset:1024")
    L = a.newlabel("rh")
    a(f"s_cmp_eq_u32 s{sKH}, 0")
    a(f"s_cbranch_scc1 {L}")
    a(f"ds_write_b128 v{XW}, {vr(ACC+16,4)} offset:2048")
    a.label(L)
    a("s_waitcnt lgkmcnt(0)")
    a("s_barrier")
    if k.o.get("fine") == "3": k.stamp(20)
    for i in range(3): a(f"ds_read_b128 {vr(WB+4*i,4)}, v{XRD} offset:{1024*i}")
    for i, t in enumerate((0, 1, 4)):
        a(f"s_waitcnt lgkmcnt({2-i})")
        for r in range(4): a(f"v_add_f32 v{ACC+4*t+r}, v{ACC+4*t+r}, v{WB+4*i+r}")

DH = 254
def odd_tile_store(k, src, tmp, soff):
    a = k.a
    for i in range(4): a(f"v_mov_b32 v{tmp+i}, v{src+i%2}")
    a("s_nop 0")
    a(f"v_permlane16_swap_b32 v{tmp}, v{tmp+2}")
    a(f"v_permlane16_swap_b32 v{tmp+1}, v{tmp+3}")
    a("s_mov_b32 exec_lo, 0xffff")
    a("s_mov_b32 exec_hi, 0xffff")
    a(f"buffer_store_dwordx4 {vr(tmp,4)}, v{DH}, {WS}, s{soff} offen sc1")
    a("s_mov_b64 exec, -1")

def row_reduce(a, r, t):
    for sw in ("16", "32"):
        a(f"v_mov_b32 v{t}, v{r}")
        a(f"v_mov_b32 v{t+1}, v{r+1}")
        a("s_nop 0")
        a(f"v_permlane{sw}_swap_b32 v{r}, v{t}")
        a(f"v_permlane{sw}_swap_b32 v{r+1}, v{t+1}")
        a("s_nop 0")
        a(f"v_add_f32 v{r}, v{r}, v{t}")
        a(f"v_add_f32 v{r+1}, v{r+1}, v{t+1}")

def fpoll(k, n):
    d = int(k.o.get("pdepth", 1))
    if d == 1: k.poll(n, T3, FSP, TM)
    else: k.pollp(n, T3, FSP, TM, ST, d)

def not_wave0(k, fn):
    a = k.a
    L = a.newlabel("nw0")
    a(f"s_cmp_eq_u32 s{S_W}, 0")
    a(f"s_cbranch_scc1 {L}")
    fn()
    a.label(L)

NS5 = 16
HALF = NS5 * 5120
OUT_PITCH = 336
OUT_HALF = HALF
OUT_LDS = 11 * 5120
sW2 = 83
def w2_load(k, vq, tag, i, batch):
    h, q = divmod(i, 9)
    stage_load(k, vq, tag, i, sW2, (135 * h + (0, 5 * NS5)[batch] + 8 * q) * 1024)
def w2_write(k, lq, i):
    h, q = divmod(i, 9)
    stage_write(k, lq, i, HALF * h + 8192 * q)

P3_SCR, P3_LAST = 35 * 1024, 56 * 1024
sTT3 = 81
def phase3(k):
    a = k.a
    a.c("================ phase 3: output projection + residual")
    a(f"s_lshl_b32 s{T0}, s{sQB}, 5")
    a(f"s_add_u32 s{T0}, s{T0}, s{sH}")
    a(f"s_mul_i32 s{T3}, s{T0}, {FSP}")
    a(f"s_add_u32 s{T3}, s{T3}, {FL_2}")
    a(f"s_and_b32 s{sRG}, s{S_W}, 3")
    a(f"s_lshr_b32 s{sKH}, s{S_W}, 2")
    a(f"s_and_b32 s{sN8}, s{S_J}, 7")
    a(f"s_lshl_b32 s{sRB64}, s{S_C}, 2")
    a(f"s_lshr_b32 s{T0}, s{S_J}, 3")
    a(f"s_add_u32 s{sRB64}, s{sRB64}, s{T0}")
    a(f"s_sub_u32 s{sW7}, s{sW10}, 1024")
    a(f"s_add_u32 s{sA}, s{sSD}, s{sW7}")
    a(f"s_mul_i32 s{sW2}, s{sN8}, {54*5120}")
    a(f"s_add_u32 s{sW2}, s{sW2}, s{sW10}")
    a(f"s_add_u32 s{sW2}, s{sW2}, {WS_W2}")
    a(f"v_lshlrev_b32 v{DL8}, 3, v0")
    a(f"v_lshrrev_b32 v{DH}, 5, v0")
    a(f"v_and_b32 v{TM}, 15, v0")
    a(f"v_lshlrev_b32 v{TM}, 4, v{TM}")
    a(f"v_lshl_add_u32 v{DH}, v{DH}, 8, v{TM}")
    a(f"v_add_u32 v{SW}, s{sW10}, v{DLIN}")
    a(f"v_add_u32 v{SW+1}, 0x10000, v{SW}")
    a(f"v_add_u32 v{SW+2}, 0x20000, v{SW}")
    k.flag_prep(TM + 4)
    if k.o.get("fine") == "2": k.stamp(21)
    a("s_waitcnt vmcnt(0)")
    if k.o.get("fine") == "2": k.stamp(22)
    a("s_barrier")
    k.stamp(11)
    k.flag_store(T3, TM + 4, prepped=True)
    def early():
        for f in dma_ops(k, None, None, 90, 100, sA, sW7, P3_LAST, 7): f()
        if not k.o.get("w0a", "1") == "1": resid_x(k)
    not_wave0(k, early)
    if k.o.get("w0a", "1") == "1": resid_x(k)
    for i in range(4): stage_write(k, None, i, 8192 * i)
    a(f"s_cmp_lt_u32 s{S_W}, 6")
    a("s_cbranch_scc1 L_p3_nocs")
    a(f"s_and_b32 s{T1}, s{S_J}, 15")
    a(f"s_sub_u32 s{T0}, s{S_W}, 6")
    a(f"s_lshl_b32 s{T0}, s{T0}, 6")
    a(f"v_add_u32 v{TM+4}, s{T0}, v0")
    a(f"s_mul_i32 s{T2}, s{T1}, 96")
    a(f"v_add_u32 v{TM+5}, s{T2}, v{TM+4}")
    a(f"s_min_u32 s{T2}, s{T1}, 11")
    a(f"s_lshl_b32 s{T2}, s{T2}, 4")
    a(f"s_add_u32 s{T2}, s{T2}, 1536")
    a(f"v_and_b32 v{TM+6}, 15, v0")
    a(f"v_add_u32 v{TM+6}, s{T2}, v{TM+6}")
    a(f"v_cmp_gt_u32 vcc, 96, v{TM+4}")
    a(f"s_mov_b32 s{T2}, {WS_CS1}")
    a("s_nop 0")
    a(f"v_cndmask_b32 v{TM+5}, v{TM+6}, v{TM+5}, vcc")
    a(f"v_lshlrev_b32 v{TM+5}, 2, v{TM+5}")
    for i in range(20):
        a(f"buffer_load_dword v{CSV+i}, v{TM+5}, {WS}, s{T2} offen sc1")
        if i < 19: a(f"s_add_u32 s{T2}, s{T2}, {1728*4}")
    a.label("L_p3_nocs")
    a(f"s_mul_i32 s{T0}, s{sKH}, {45*1024}")
    a(f"s_add_u32 s{T0}, s{T0}, {WO_LDS}")
    tile_addrs(k, T0, BA)
    a(f"s_mul_i32 s{T0}, s{sKH}, 5120")
    a(f"s_add_u32 s{T0}, s{T0}, {P3_LAST}")
    tile_addrs(k, T0, BA + 3)
    exch_addrs(k, P3_SCR)
    a(f"s_lshl_b32 s{T0}, s{sRB64}, 2")
    a(f"s_add_u32 s{sTT3}, s{T0}, s{sRG}")
    a(f"s_mul_i32 s{sA}, s{sTT3}, 20480")
    a(f"s_mul_i32 s{T1}, s{sKH}, 10240")
    a(f"s_add_u32 s{sA}, s{sA}, s{T1}")
    a(f"s_add_u32 s{sA}, s{sA}, {WS_O}")
    a(f"v_and_b32 v{TM+6}, 15, v0")
    a(f"v_lshrrev_b32 v{TM+7}, 4, v0")
    a(f"v_lshl_add_u32 v{TM+7}, v{TM+6}, 2, v{TM+7}")
    a(f"v_lshlrev_b32 v{TM+7}, 2, v{TM+7}")
    a(f"s_mul_i32 s70, s{sTT3}, 20480")
    a(f"s_add_u32 s70, s70, {WS_H}")
    a(f"s_lshl_b32 s{T0}, s{sN8}, 1")
    a(f"s_add_u32 s{T0}, s{T0}, s{sKH}")
    a(f"s_lshl_b32 s71, s{T0}, 10")
    a(f"s_add_u32 s71, s71, s70")
    a(f"s_lshl_b32 s{T1}, s{sRB64}, 4")
    a(f"s_add_u32 s{T0}, s{T0}, s{T1}")
    a(f"s_lshl_b32 s{T0}, s{T0}, 9")
    a(f"s_lshl_b32 s{T1}, s{sRG}, 7")
    a(f"s_add_u32 s{T0}, s{T0}, s{T1}")
    a(f"s_add_u32 s74, s{T0}, {WS_ST}")
    a(f"s_lshr_b32 s{T0}, s{sN8}, 1")
    a(f"s_lshl_b32 s{T0}, s{T0}, 10")
    a(f"s_and_b32 s{T1}, s{sN8}, 1")
    a(f"s_lshl_b32 s{T1}, s{T1}, 9")
    a(f"s_add_u32 s{T0}, s{T0}, s{T1}")
    a(f"s_add_u32 s70, s70, s{T0}")
    a(f"s_add_u32 s70, s70, 16384")
    a(f"s_lshl_b32 s{T0}, s{sRB64}, 3")
    a(f"s_add_u32 s{T0}, s{T0}, s{sN8}")
    a(f"s_mul_i32 s75, s{T0}, {FSP}")
    a(f"s_add_u32 s75, s75, {FL_3}")
    a(f"s_mul_i32 s{T3}, s{S_C}, {32*FSP}")
    a(f"s_add_u32 s{T3}, s{T3}, {FL_2}")
    a(f"s_cmp_ge_u32 s{S_W}, 6")
    a("s_cbranch_scc1 L_p3_w67")
    a("s_waitcnt vmcnt(0)")
    a.label("L_p3_w67")
    a("s_waitcnt vmcnt(20)")
    for r in range(6): a(f"ds_bpermute_b32 v{XR+r}, v{TM+7}, v{XR+r}")
    a("s_waitcnt lgkmcnt(0)")
    E2 = k.o.get("early2", "0") == "1"
    if E2:
        for i in range(4): w2_load(k, None, None, i, 0)
    acc_init(k, XR)
    fpoll(k, 32)
    a("s_barrier")
    k.hold("fix12")
    k.stamp(12)
    vq = VQ(a)
    aop = [a_op(k, vq, j, j, sA, j >= 8) for j in range(10)]
    D = int(k.o.get("d3", 4))
    coop_touch(k, vq, sA, sN8, 8, 10)
    for j in range(D): aop[j]()
    def addr(j, t):
        r = (BA if j < 9 else BA + 3) + (0, 0, 1, 1, 2)[t]
        return r, (j * 5120 if j < 9 else 0) + t * 1024
    extra = {j: [aop[j + D]] for j in range(10 - D)}
    mm_steps(k, vq, 10, 5, addr, extra, init=True)
    k.stamp(13)
    reduce_halves(k, XR, 6)
    for i, t in enumerate((0, 1, 4)):
        for h in range(2): a(f"v_cvt_pk_bf16_f32 v{HR+2*i+h}, v{ACC+4*t+2*h}, v{ACC+4*t+2*h+1}")
        if i == 1: a(f"buffer_store_dwordx4 {vr(HR,4)}, v{DLIN}, {WS}, s71 offen sc1")
    a(f"v_mov_b32 v{TM+6}, 0x3f803f80")
    for r in (2, 3, 4, 5): a(f"v_mov_b32 v{TM+r}, 0")
    def acc_stats(regs):
        for n, r in enumerate(regs):
            d = TM + 2 + 2 * (n % 2)
            a(f"v_dot2_f32_bf16 v{d}, v{r}, v{TM+6}, v{d}")
            a(f"v_dot2_f32_bf16 v{d+1}, v{r}, v{r}, v{d+1}")
    acc_stats(range(HR, HR + 4))
    a(f"s_cmp_lg_u32 s{sKH}, 0")
    a("s_cbranch_scc1 L_p3_no4")
    acc_stats(range(HR + 4, HR + 6))
    odd_tile_store(k, HR + 4, WB, 70)
    a.label("L_p3_no4")
    a("s_nop 0")
    a(f"v_add_f32 v{TM+4}, v{TM+4}, v{TM+2}")
    a(f"v_add_f32 v{TM+5}, v{TM+5}, v{TM+3}")
    row_reduce(a, TM + 4, TM + 6)
    a("s_mov_b64 exec, 0xffff")
    a(f"buffer_store_dwordx2 {vr(TM+4,2)}, v{DL8}, {WS}, s74 offen sc1")
    a("s_mov_b64 exec, -1")
    if k.o.get("fine") == "3": k.stamp(21)
    NW3 = int(k.o.get("nw3", 8))
    if not E2:
        for i in range(4): w2_load(k, None, None, i, 0)
    for i in range(7, 7 + NW3): stage_write(k, None, i, 8192 * i)
    if E2:
        a(f"s_waitcnt lgkmcnt({NW3 - 4})")
        for i in range(7, 11): w2_load(k, None, None, i, 0)
    k.flag_prep(TM)
    if k.o.get("fine") == "3": k.stamp(22)
    a("s_waitcnt vmcnt(4)")
    if k.o.get("fine") == "3": k.stamp(23)
    a("s_barrier")
    k.stamp(14)
    k.flag_store(75, TM, prepped=True)

def phase4(k):
    a = k.a
    a.c("================ phase 4: FFN up-projection + SiLU")
    sF, sRB, sTT = 70, 71, 74
    NW3 = int(k.o.get("nw3", 8)); F4 = 11 if k.o.get("early2", "0") == "1" else 7
    NB4 = min(NW3 + 7 - F4, int(k.o.get("nb4", 4)))
    def rest_writes():
        for i in list(range(7 + NW3, 18)) + [4, 5, 6]: stage_write(k, None, i, 8192 * i)
    a("s_waitcnt lgkmcnt(0)")
    for i in range(F4, F4 + NB4): w2_load(k, None, None, i, 0)
    if k.o.get("w0b", "1") == "1": rest_writes()
    else: not_wave0(k, rest_writes)
    a(f"s_cmp_lt_u32 s{S_W}, 6")
    a("s_cbranch_scc1 L_p4_nocs2")
    for w in (10, 5):
        for i in range(w): a(f"v_add_f32 v{CSV+i}, v{CSV+i}, v{CSV+w+i}")
    for i in range(1, 5): a(f"v_add_f32 v{CSV}, v{CSV}, v{CSV+i}")
    a(f"s_lshl_b32 s{T0}, s{S_W}, 8")
    a(f"s_add_u32 s{T0}, s{T0}, {CS_LDS - 6*256}")
    a(f"v_lshl_add_u32 v{TM+4}, v0, 2, s{T0}")
    a(f"ds_write_b32 v{TM+4}, v{CSV}")
    a.label("L_p4_nocs2")
    a(f"s_and_b32 s{sF}, s{S_J}, 15")
    a(f"s_lshl_b32 s{sRB}, s{S_C}, 1")
    a(f"s_lshr_b32 s{T0}, s{S_J}, 4")
    a(f"s_add_u32 s{sRB}, s{sRB}, s{T0}")
    a(f"v_mov_b32 v{BA}, v{DLIN}")
    a(f"v_add_u32 v{BA+1}, {9*7168}, v{DLIN}")
    a(f"v_add_u32 v{BA+2}, {18*7168}, v{DLIN}")
    a(f"s_lshl_b32 s{T0}, s{sRB}, 3")
    a(f"s_add_u32 s{sTT}, s{T0}, s{S_W}")
    a(f"s_mul_i32 s{sA}, s{sTT}, 20480")
    a(f"s_add_u32 s{sA}, s{sA}, {WS_H}")
    a(f"s_lshr_b32 s{T0}, s{sTT}, 2")
    a(f"s_lshl_b32 s{T0}, s{T0}, 13")
    a(f"s_and_b32 s{T1}, s{sTT}, 3")
    a(f"s_lshl_b32 s{T1}, s{T1}, 7")
    a(f"s_add_u32 s{T0}, s{T0}, s{T1}")
    a(f"s_add_u32 s{sB}, s{T0}, {WS_ST}")
    a(f"v_and_b32 v{TM}, 15, v0")
    a(f"v_lshrrev_b32 v{TM+1}, 4, v0")
    a(f"v_lshlrev_b32 v{BA+3}, 11, v{TM+1}")
    a(f"v_lshl_add_u32 v{BA+3}, v{TM}, 3, v{BA+3}")
    a(f"v_lshlrev_b32 v{BA+4}, 4, v{TM+1}")
    a(f"v_add_u32 v{BA+4}, {CS_LDS}, v{BA+4}")
    a(f"s_mul_i32 s{T3}, s{sRB}, {16*FSP}")
    a(f"s_add_u32 s{T3}, s{T3}, {FL_3}")
    fpoll(k, 16)
    if not k.o.get("w0b", "1") == "1":
        a(f"s_cmp_lg_u32 s{S_W}, 0")
        a("s_cbranch_scc1 L_p4_w0")
        rest_writes()
        a.label("L_p4_w0")
    a("s_waitcnt lgkmcnt(0)")
    a("s_barrier")
    k.stamp(15)
    vq = VQ(a)
    aop = [a_op(k, vq, j, j, sA, False) for j in range(20)]
    D = int(k.o.get("d4", 4))
    coop_touch(k, vq, sA, sF, 16, 20)
    for j in range(D): aop[j]()
    def st_op(i):
        def f():
            a(f"buffer_load_dwordx2 {vr(ST+2*i,2)}, v{BA+3}, {WS}, s{sB} offen offset:{512*i} sc1")
            vq.add("S")
        return f
    extra = {j: [aop[j + D]] for j in range(20 - D)}
    rest = list(range(F4 + NB4, 18)) + [4, 5, 6]
    NE4 = int(k.o.get("ne4", 3))
    late4, rest = rest[len(rest) - NE4:], rest[:len(rest) - NE4]
    for n, i in enumerate(rest): extra.setdefault(1 + (n * 19) // len(rest), []).append(lambda i=i: w2_load(k, vq, "W", i, 0))
    for i in range(4): extra.setdefault(6 + i, []).insert(0, st_op(i))
    def stats_a():
        vq.wait("S")
        a(f"v_add_f32 v{ST}, v{ST}, v{ST+2}")
        a(f"v_add_f32 v{ST+1}, v{ST+1}, v{ST+3}")
        a(f"v_add_f32 v{ST+4}, v{ST+4}, v{ST+6}")
        a(f"v_add_f32 v{ST+5}, v{ST+5}, v{ST+7}")
        a(f"v_add_f32 v{ST}, v{ST}, v{ST+4}")
        a(f"v_add_f32 v{ST+1}, v{ST+1}, v{ST+5}")
    def stats_sw(sw):
        def f():
            a(f"v_mov_b32 v{ST+2}, v{ST}")
            a(f"v_mov_b32 v{ST+3}, v{ST+1}")
            a("s_nop 0")
            a(f"v_permlane{sw}_swap_b32 v{ST}, v{ST+2}")
            a(f"v_permlane{sw}_swap_b32 v{ST+1}, v{ST+3}")
            a("s_nop 0")
            a(f"v_add_f32 v{ST}, v{ST}, v{ST+2}")
            a(f"v_add_f32 v{ST+1}, v{ST+1}, v{ST+3}")
        return f
    def stats_b():
        a(f"v_mul_f32 v{ST}, 0x{f2u(1.0/640):08x}, v{ST}")
        a(f"v_mul_f32 v{ST+2}, v{ST}, v{ST}")
        a(f"v_mov_b32 v{ST+3}, 0x{f2u(1.0/640):08x}")
        a(f"v_fma_f32 v{ST+2}, v{ST+1}, v{ST+3}, -v{ST+2}")
        a(f"v_max_f32 v{ST+2}, 0, v{ST+2}")
        a(f"v_add_f32 v{ST+2}, 0x{f2u(1e-5):08x}, v{ST+2}")
        a(f"v_rsq_f32 v{ST+1}, v{ST+2}")
        a(f"v_mov_b32 v{ST+2}, 0x{f2u(-math.log2(math.e)):08x}")
        a(f"s_mul_i32 s76, s{sTT}, {54*1024}")
        a(f"v_mul_f32 v{ST+1}, v{ST+1}, v{ST+2}")
        a(f"s_add_u32 s76, s76, {WS_H1}")
        a(f"v_mul_f32 v{ST}, v{ST}, v{ST+1}")
        a(f"s_lshr_b32 s{T1}, s{sF}, 3")
        a(f"s_add_u32 s{T1}, s{T1}, s{sF}")
        a(f"s_mul_i32 s{T1}, s{T1}, 3072")
        a(f"s_add_u32 s77, s{T1}, s76")
    def stats_c():
        a(f"s_lshr_b32 s{T2}, s{sF}, 1")
        a(f"s_cmp_ge_u32 s{sF}, 6")
        a(f"s_cselect_b32 s{T1}, 48, 24")
        a(f"s_add_u32 s{T2}, s{T2}, s{T1}")
        a(f"s_lshl_b32 s{T2}, s{T2}, 10")
        a(f"s_and_b32 s{T1}, s{sF}, 1")
        a(f"s_lshl_b32 s{T1}, s{T1}, 9")
        a(f"s_add_u32 s{T2}, s{T2}, s{T1}")
        a(f"s_add_u32 s76, s76, s{T2}")
        a(f"s_lshl_b32 s{T1}, s{sRB}, 4")
        a(f"s_add_u32 s{T1}, s{T1}, s{sF}")
        a(f"s_mul_i32 s{T3}, s{T1}, {FSP}")
        a(f"s_add_u32 s{T3}, s{T3}, {FL_4}")
    for j, f in ((14, stats_a), (15, stats_sw(16)), (16, stats_sw(32)), (17, stats_b), (18, stats_c)): extra.setdefault(j, []).append(f)
    def addr(j, t): return BA + j // 9, (j % 9) * 7168 + t * 1024
    mm_steps(k, vq, 20, 7, addr, extra)
    k.stamp(16)
    CS = WB + 56
    for t in range(7): a(f"ds_read_b128 {vr(CS+4*t,4)}, v{BA+4} offset:{64*t}")
    for i in late4: w2_load(k, None, None, i, 0)
    a(f"s_cmp_lt_u32 s{S_W}, 4")
    a("s_cbranch_scc1 L_p4_nb")
    a("s_waitcnt lgkmcnt(0)")
    a("s_barrier")
    a.label("L_p4_nb")
    a("s_waitcnt lgkmcnt(0)")
    E = WB; OUT = AF
    def silu(tiles):
        rs = [4 * t + r for t in tiles for r in range(4)]
        for r in rs: a(f"v_mul_f32 v{ACC+r}, v{ST+1}, v{ACC+r}")
        for r in rs: a(f"v_fma_f32 v{ACC+r}, -v{ST}, v{CS+r}, v{ACC+r}")
        for r in rs: a(f"v_exp_f32 v{E+r}, v{ACC+r}")
        for r in rs: a(f"v_fma_f32 v{E+r}, v{E+r}, v{ST+2}, v{ST+2}")
        for r in rs: a(f"v_rcp_f32 v{E+r}, v{E+r}")
        for r in rs: a(f"v_mul_f32 v{ACC+r}, v{ACC+r}, v{E+r}")
        for r in rs[::2]: a(f"v_cvt_pk_bf16_f32 v{OUT+r//2}, v{ACC+r}, v{ACC+r+1}")
    a(f"s_cmp_ge_u32 s{sF}, 12")
    a("s_cbranch_scc1 L_p4_no6")
    silu((6,))
    odd_tile_store(k, OUT + 12, OUT + 16, 76)
    a.label("L_p4_no6")
    PB = int(k.o.get("pb4", 3))
    for p in range(3):
        if p == PB:
            a(f"s_cmp_ge_u32 s{S_W}, 4")
            a("s_cbranch_scc1 L_p4_nb2")
            a("s_barrier")
            a.label("L_p4_nb2")
        silu((2 * p, 2 * p + 1))
        a(f"buffer_store_dwordx4 {vr(OUT+4*p,4)}, v{DLIN}, {WS}, s77 offen offset:{1024*p} sc1")
    order = [x for q in range(9) for x in (q, 9 + q)]
    NB5 = 7
    def w2_swap():
        for h in range(2): dma_ops(k, None, None, 135 * h + 72, 135 * h + 80, sW2, sW10, HALF * h + 72 * 1024)[0]()
        for n in range(18):
            w2_write(k, None, n)
            if 4 <= n < 4 + NB5:
                a("s_waitcnt lgkmcnt(4)")
                w2_load(k, None, None, n - 4, 1)
    a(f"s_cmp_ge_u32 s{S_W}, 4")
    a("s_cbranch_scc1 L_p4_y")
    if PB == 3: a("s_barrier")
    a("s_waitcnt vmcnt(3)")
    w2_swap()
    k.flag_prep(TM)
    a(f"s_waitcnt vmcnt({NB5 + 2})")
    a("s_barrier")
    k.stamp(17)
    k.flag_store(T3, TM, prepped=True)
    a("s_branch L_p4_e")
    a.label("L_p4_y")
    NY = int(k.o.get("ny", 18))
    a("s_waitcnt vmcnt(3)")
    for n in range(NY): w2_write(k, None, n)
    a("s_waitcnt vmcnt(0)")
    a("s_barrier")
    k.stamp(17)
    for n in range(NY, 18): w2_write(k, None, n)
    for h in range(2): dma_ops(k, None, None, 135 * h + 72, 135 * h + 80, sW2, sW10, HALF * h + 72 * 1024)[0]()
    a(f"s_waitcnt lgkmcnt({min(15, 18 - NB5)})")
    for n in range(NB5): w2_load(k, None, None, n, 1)
    a.label("L_p4_e")

def phase5(k):
    a = k.a
    a.c("================ phase 5: FFN down-projection + residual")
    a(f"s_mul_i32 s{T0}, s{sKH}, {HALF}")
    tile_addrs(k, T0, BA)
    for i in range(3): a(f"v_add_u32 v{BA+3+i}, {12*5120}, v{BA+i}")
    a(f"v_and_b32 v{TM+4}, 15, v0")
    a(f"s_lshl_b32 s{T0}, s{sRG}, 4")
    a(f"v_add_u32 v{TM+4}, s{T0}, v{TM+4}")
    a(f"v_mul_u32_u24 v{TM+4}, {OUT_PITCH}, v{TM+4}")
    a(f"v_lshrrev_b32 v{TM+5}, 4, v0")
    a(f"v_lshl_add_u32 v{TM+4}, v{TM+5}, 4, v{TM+4}")
    a(f"s_mul_i32 s{T0}, s{sKH}, {OUT_HALF}")
    a(f"s_add_u32 s{T0}, s{T0}, {OUT_LDS}")
    a(f"v_add_u32 v{TL}, s{T0}, v{TM+4}")
    a(f"s_lshl_b32 s{T0}, s{sKH}, 7")
    a(f"v_add_u32 v{XW}, s{T0}, v{TL}")
    a(f"v_subrev_u32 v{XRD}, s{T0}, v{TL}")
    for n in range(2):
        a(f"s_mul_i32 s{T0}, s{S_W}, 0x50")
        a(f"s_add_u32 s{T0}, s{T0}, {64*n}")
        a(f"v_add_u32 v{TM+2}, s{T0}, v0")
        a(f"v_mul_u32_u24 v{TM+3}, 6554, v{TM+2}")
        a(f"v_lshrrev_b32 v{TM+3}, 16, v{TM+3}")
        a(f"v_mul_u32_u24 v{TM+4+2*n}, 10, v{TM+3}")
        a(f"v_sub_u32 v{TM+2}, v{TM+2}, v{TM+4+2*n}")
        a(f"v_mul_u32_u24 v{TM+4+2*n}, {OUT_PITCH}, v{TM+3}")
        a(f"v_lshl_add_u32 v{TM+4+2*n}, v{TM+2}, 5, v{TM+4+2*n}")
        a(f"v_add_u32 v{TM+4+2*n}, {OUT_LDS}, v{TM+4+2*n}")
        a(f"v_mul_u32_u24 v{TM+5+2*n}, 1280, v{TM+3}")
        a(f"v_lshl_add_u32 v{TM+5+2*n}, v{TM+2}, 4, v{TM+5+2*n}")
    a(f"s_mul_i32 s{sA}, s{sRB64}, {64*1280}")
    a(f"s_mul_i32 s{T0}, s{sN8}, 160")
    a(f"s_add_u32 s{sA}, s{sA}, s{T0}")
    a(f"s_mul_i32 s{sB}, s{sTT3}, {54*1024}")
    a(f"s_mul_i32 s{T1}, s{sKH}, {27*1024}")
    a(f"s_add_u32 s{sB}, s{sB}, s{T1}")
    a(f"s_add_u32 s{sB}, s{sB}, {WS_H1}")
    if k.o.get("p5hot"): a(f"s_mov_b32 s{sB}, {WS_W2}")
    if k.o.get("p5oob"): a(f"s_mov_b32 s{sB}, 0x7f000000")
    acc_init(k, HR)
    a(f"s_lshr_b32 s{T3}, s{sRB64}, 1")
    a(f"s_mul_i32 s{T3}, s{T3}, {16*FSP}")
    a(f"s_add_u32 s{T3}, s{T3}, {FL_4}")
    fpoll(k, 16)
    a("s_waitcnt lgkmcnt(0)")
    a("s_barrier")
    k.stamp(18)
    vq = VQ(a)
    aop = [a_op(k, vq, j, j, sB, False) for j in range(27)]
    D = int(k.o.get("d5", 6))
    coop_touch(k, vq, sB, sN8, 8, 27)
    for j in range(D): aop[j]()
    extra = {j: [aop[j + D]] for j in range(27 - D)}
    bars = (5, 10, 14, 19)
    at = (5, 6, 7, 10, 11, 12, 14)
    dm = dma_ops(k, vq, None, 135 + 5 * NS5, 135 + 5 * NS5 + 56, sW2, sW10, HALF)
    for i in range(7):
        def both(i=i):
            if not k.o.get("p5nod"):
                dm[i](); vq.q[-1] = ("R", i)
            if not k.o.get("p5now"): stage_write(k, k.lq, i, 8192 * i)
        extra.setdefault(at[i], []).append(both)
    cover = {14: 3, 19: 6}
    slot = lambda j: j if j < NS5 else j - NS5
    def addr(j, t):
        s = slot(j)
        return BA + (3 if s >= 12 else 0) + (0, 0, 1, 1, 2)[t], (s % 12) * 5120 + t * 1024
    def pre(j):
        if j - 2 in bars:
            k.lq.wait("w")
            if j - 2 in cover: vq.wait(("R", cover[j - 2]))
            if not k.o.get("p5nob"): a("s_barrier")
    mm_steps(k, vq, 27, 5, addr, extra, pre, init=True)
    k.stamp(19)
    a("s_nop 3")
    for t in range(5): a(f"ds_write_b128 v{(XW, XW, XRD, XRD, TL)[t]}, {vr(ACC+4*t,4)} offset:{64*t}")
    a("s_waitcnt lgkmcnt(0)")
    a("s_barrier")
    OUTS = f"s[{SRD_OUT}:{SRD_OUT+3}]"
    def rd(ra, base):
        for h in range(2):
            for q in range(2): a(f"ds_read_b128 {vr(base+8*h+4*q,4)}, v{ra} offset:{16*q}")
            if h == 0: a(f"v_add_u32 v{ra}, {OUT_HALF}, v{ra}")
    def fin(ga, base):
        for r in range(8): a(f"v_add_f32 v{base+r}, v{base+r}, v{base+8+r}")
        for r in range(4): a(f"v_cvt_pk_bf16_f32 v{base+r}, v{base+2*r}, v{base+2*r+1}")
        a(f"buffer_store_dwordx4 {vr(base,4)}, v{ga}, {OUTS}, s{sA} offen {k.o.get('ost', '')}")
    rd(TM + 4, WB)
    a("s_mov_b64 exec, 0xffff")
    rd(TM + 6, WB + 16)
    a("s_mov_b64 exec, -1")
    a("s_waitcnt lgkmcnt(4)")
    fin(TM + 5, WB)
    a("s_mov_b64 exec, 0xffff")
    a("s_waitcnt lgkmcnt(0)")
    fin(TM + 7, WB + 16)
    a("s_mov_b64 exec, -1")
```

```python
import sys, math
from asmlib import Asm, vr, sr, f2u, check
from tables import *

NAME = "sequential_preLN__mha_block__dense_activation_silu__prompt"
LDS_BYTES = 163840
SPIN_MAX = 200000

S_G = 2
SRD_X, SRD_WQ, SRD_WS, SRD_OUT, SRD_DBG, SRD_RL = 4, 8, 12, 16, 20, 24
S_W, S_C, S_J = 28, 29, 30
S_NONCE = 32
S_PTR = 36
T0, T1, T2, T3, T4, T5 = 54, 55, 56, 57, 58, 59
S_M1 = 60
S_SPIN = 62

class K:
    def __init__(self, stop_after=99, opts=None):
        self.a = Asm()
        self.stop = stop_after
        self.o = opts or {}
        self.pad = 0
        self._sides = []; self._late1 = []; self._tail = []

    def srd(self, d, ptr, nbytes):
        a = self.a
        a(f"s_mov_b32 s{d}, s{ptr}")
        a(f"s_and_b32 s{d+1}, s{ptr+1}, 0xffff")
        a(f"s_mov_b32 s{d+2}, {nbytes}")
        a(f"s_mov_b32 s{d+3}, 0x20000")

    def stamp(self, idx):
        if idx: self.jit(4)
        if not self.o.get("stamps"): return
        if self.o["stamps"] == "min" and idx not in (0, 9, 10, 31) + tuple(int(z) for z in self.o.get("ms", "").split(".") if z): return
        a = self.a
        a("s_memrealtime s[100:101]")
        a("s_waitcnt lgkmcnt(0)")
        a(f"v_writelane_b32 v255, s100, {idx}")
        if idx < 22 and self.o["stamps"] != "min":
            a("s_memtime s[100:101]")
            a("s_waitcnt lgkmcnt(0)")
            a(f"v_writelane_b32 v255, s100, {idx+32}")

    def stamp_dyn(self, base, sreg):
        if not self.o.get("its"): return
        a = self.a
        a("s_memtime s[100:101]")
        a("s_mov_b32 s99, m0")
        a(f"s_add_u32 m0, s{sreg}, {base}")
        a("s_waitcnt lgkmcnt(0)")
        a("v_writelane_b32 v255, s100, m0")
        a("s_mov_b32 m0, s99")

    def stamp_flush(self):
        if not self.o.get("stamps"): return
        a = self.a
        if self.o.get("dbgwg"):
            L = a.newlabel("dbg")
            a(f"s_cmp_lg_u32 s{S_G}, {int(self.o['dbgwg'])}")
            a(f"s_cbranch_scc1 {L}")
            a(f"s_cmp_lg_u32 s{S_W}, 0")
            a(f"s_cbranch_scc1 {L}")
            a(f"v_readlane_b32 s{T1}, v255, 0")
            for n, i in enumerate((3, 4, 7, 8, 9, 10, 12, 13, 15, 16, 18, 19, 31)):
                a(f"v_readlane_b32 s{T0}, v255, {i}")
                a("s_nop 3")
                a(f"s_sub_u32 s{T0}, s{T0}, s{T1}")
                a(f"v_mov_b32 v1, s{T0}")
                a(f"v_mov_b32 v2, {8+4*n}")
                a(f"buffer_store_dword v1, v2, s[{SRD_DBG}:{SRD_DBG+3}], 0 offen")
            a.label(L)
            return
        a(f"s_lshl_b32 s{T0}, s{S_G}, 3")
        a(f"s_add_u32 s{T0}, s{T0}, s{S_W}")
        a(f"s_lshl_b32 s{T0}, s{T0}, 8")
        a(f"s_add_u32 s{T0}, s{T0}, {WS_SIZE}")
        a("v_lshlrev_b32 v1, 2, v0")
        a(f"buffer_store_dword v255, v1, s[{SRD_WS}:{SRD_WS+3}], s{T0} offen")
        a("s_mov_b64 exec, -1")

    def hold(self, key):
        if not self.o.get(key): return
        a = self.a
        L = a.newlabel("hold")
        a.label(L)
        a("s_memrealtime s[100:101]")
        a("s_waitcnt lgkmcnt(0)")
        a(f"s_sub_u32 s100, s100, s{S_NONCE}")
        a(f"s_cmp_lt_u32 s100, {int(float(self.o[key]) * 100)}")
        a(f"s_cbranch_scc1 {L}")

    def jit(self, bits=3):
        if not self.o.get("jit"): return
        a = self.a
        L = a.newlabel("jit"); Ld = a.newlabel("jitd")
        a("s_mul_i32 s35, s35, 1103515245")
        a("s_add_u32 s35, s35, 12345")
        a(f"s_bfe_u32 s34, s35, {0x10000 * (bits + 2) + 16}")
        a(f"s_sub_u32 s34, s34, {3 << bits}")
        a(f"s_cbranch_scc1 {Ld}")
        a.label(L)
        a("s_sleep 3")
        a("s_sub_u32 s34, s34, 1")
        a(f"s_cbranch_scc0 {L}")
        a.label(Ld)

    def diag(self, what):
        if self.o.get("diag") == what: self.a("s_mov_b32 s35, 1")

    def dma(self, voff, srd, soff, flags=""):
        if self.o.get("nodma"): return
        self.a(f"buffer_load_dwordx4 v{voff}, s[{srd}:{srd+3}], {soff} offen {flags} lds".replace("  ", " "))

    def flag_prep(self, vt):
        a = self.a
        a(f"v_mov_b32 v{vt}, s{S_NONCE}")
        a(f"v_mov_b32 v{vt+1}, s{S_NONCE+1}")
        a(f"v_mov_b32 v{vt+2}, 0")

    def flag_store(self, s_off, vt, pol="sc1", prepped=False, who=0):
        a = self.a
        L = a.newlabel("nofl")
        a(f"s_cmp_lg_u32 s{S_W}, {who}")
        a(f"s_cbranch_scc1 {L}")
        if not prepped: self.flag_prep(vt)
        a("s_mov_b64 exec, 1")
        a(f"buffer_store_dwordx2 v[{vt}:{vt+1}], v{vt+2}, s[{SRD_WS}:{SRD_WS+3}], s{s_off} offen {pol}")
        a("s_mov_b64 exec, -1")
        a.label(L)

    def poll(self, n, s_off, spacing, vt, only_wave0=True, who=0):
        a = self.a
        L = a.newlabel("poll"); Ld = a.newlabel("polld")
        if only_wave0:
            a(f"s_cmp_lg_u32 s{S_W}, {who}")
            a(f"s_cbranch_scc1 {Ld}")
        a(f"s_mov_b32 s{S_SPIN}, 0")
        if n == 256:
            assert spacing == 8
            a(f"v_lshlrev_b32 v{vt+8}, 4, v0")
            a.label(L)
            a(f"buffer_load_dwordx4 v[{vt}:{vt+3}], v{vt+8}, s[{SRD_WS}:{SRD_WS+3}], s{s_off} offen sc1")
            a(f"buffer_load_dwordx4 v[{vt+4}:{vt+7}], v{vt+8}, s[{SRD_WS}:{SRD_WS+3}], s{s_off} offen offset:1024 sc1")
            a(f"s_add_u32 s{S_SPIN}, s{S_SPIN}, 1")
            a("s_waitcnt vmcnt(0)")
            a(f"v_cmp_ne_u64 vcc, s[{S_NONCE}:{S_NONCE+1}], v[{vt}:{vt+1}]")
            a(f"v_cmp_ne_u64 s[{S_M1}:{S_M1+1}], s[{S_NONCE}:{S_NONCE+1}], v[{vt+2}:{vt+3}]")
            a("s_nop 0")
            a(f"s_or_b64 s[{T4}:{T5}], vcc, s[{S_M1}:{S_M1+1}]")
            a(f"v_cmp_ne_u64 vcc, s[{S_NONCE}:{S_NONCE+1}], v[{vt+4}:{vt+5}]")
            a(f"v_cmp_ne_u64 s[{S_M1}:{S_M1+1}], s[{S_NONCE}:{S_NONCE+1}], v[{vt+6}:{vt+7}]")
            a("s_nop 0")
            a(f"s_or_b64 s[{T4}:{T5}], s[{T4}:{T5}], vcc")
            a(f"s_or_b64 s[{T4}:{T5}], s[{T4}:{T5}], s[{S_M1}:{S_M1+1}]")
        else:
            a(f"v_and_b32 v{vt+2}, {n-1}, v0")
            a(f"v_mul_u32_u24 v{vt+2}, {spacing}, v{vt+2}")
            a.label(L)
            a(f"buffer_load_dwordx2 v[{vt}:{vt+1}], v{vt+2}, s[{SRD_WS}:{SRD_WS+3}], s{s_off} offen sc1")
            a(f"s_add_u32 s{S_SPIN}, s{S_SPIN}, 1")
            a("s_waitcnt vmcnt(0)")
            a(f"v_cmp_ne_u64 vcc, s[{S_NONCE}:{S_NONCE+1}], v[{vt}:{vt+1}]")
            a("s_nop 0")
            a(f"s_or_b64 s[{T4}:{T5}], vcc, vcc")
        a(f"s_cbranch_scc0 {Ld}")
        if self.o.get("psleep"): a(f"s_sleep {int(self.o['psleep'])}")
        a(f"s_cmp_lt_u32 s{S_SPIN}, {SPIN_MAX}")
        a(f"s_cbranch_scc1 {L}")
        a.label(Ld)

    def pollp(self, n, s_off, spacing, va, vt, depth):
        a = self.a
        L = a.newlabel("poll"); Ld = a.newlabel("polld")
        N = f"s[{S_NONCE}:{S_NONCE+1}]"
        a(f"s_cmp_lg_u32 s{S_W}, 0")
        a(f"s_cbranch_scc1 {Ld}")
        a(f"s_mov_b32 s{S_SPIN}, 0")
        a(f"v_and_b32 v{va}, {n-1}, v0")
        a(f"v_mul_u32_u24 v{va}, {spacing}, v{va}")
        ld = lambda i: a(f"buffer_load_dwordx2 v[{vt+2*i}:{vt+2*i+1}], v{va}, s[{SRD_WS}:{SRD_WS+3}], s{s_off} offen sc1")
        for i in range(depth - 1):
            ld(i); a(f"s_sleep {int(self.o.get('psl', 2))}")
        a.label(L)
        for i in range(depth):
            ld((i + depth - 1) % depth)
            a(f"s_waitcnt vmcnt({depth-1})")
            a(f"v_cmp_ne_u64 vcc, {N}, v[{vt+2*i}:{vt+2*i+1}]")
            a(f"s_cbranch_vccz {Ld}")
        a(f"s_add_u32 s{S_SPIN}, s{S_SPIN}, 1")
        a(f"s_cmp_lt_u32 s{S_SPIN}, {SPIN_MAX}")
        a(f"s_cbranch_scc1 {L}")
        a.label(Ld)

    def poll2(self, va, vb, s_off, vt):
        a = self.a
        L = a.newlabel("poll"); Ld = a.newlabel("polld")
        N = f"s[{S_NONCE}:{S_NONCE+1}]"
        a(f"s_cmp_lg_u32 s{S_W}, 0")
        a(f"s_cbranch_scc1 {Ld}")
        a(f"s_mov_b32 s{S_SPIN}, 0")
        a.label(L)
        a(f"buffer_load_dwordx2 v[{vt}:{vt+1}], v{va}, s[{SRD_WS}:{SRD_WS+3}], s{s_off} offen sc1")
        a(f"buffer_load_dwordx2 v[{vt+2}:{vt+3}], v{vb}, s[{SRD_WS}:{SRD_WS+3}], s{s_off} offen sc1")
        a(f"s_add_u32 s{S_SPIN}, s{S_SPIN}, 1")
        a("s_waitcnt vmcnt(0)")
        a(f"v_cmp_ne_u64 vcc, {N}, v[{vt}:{vt+1}]")
        a(f"v_cmp_ne_u64 s[{S_M1}:{S_M1+1}], {N}, v[{vt+2}:{vt+3}]")
        a("s_nop 0")
        a(f"s_or_b64 vcc, vcc, s[{S_M1}:{S_M1+1}]")
        a(f"s_cbranch_scc0 {Ld}")
        if self.o.get("psleep"): a(f"s_sleep {int(self.o['psleep'])}")
        a(f"s_cmp_lt_u32 s{S_SPIN}, {SPIN_MAX}")
        a(f"s_cbranch_scc1 {L}")
        a.label(Ld)

    def entry(self):
        a = self.a
        a(f"s_cmp_ge_u32 s{S_G}, 256")
        a("s_cbranch_scc1 L_end")
        a(f"s_load_dwordx2 s[{SRD_X}:{SRD_X+1}], s[0:1], 0")
        a(f"s_load_dwordx2 s[{SRD_WQ}:{SRD_WQ+1}], s[0:1], 8")
        a(f"s_load_dwordx2 s[{SRD_DBG}:{SRD_DBG+1}], s[0:1], 56")
        a(f"s_load_dwordx16 s[{S_PTR}:{S_PTR+15}], s[0:1], 0")
        a(f"s_load_dwordx2 s[{S_PTR+16}:{S_PTR+17}], s[0:1], 64")
        a(f"s_memrealtime s[{S_NONCE}:{S_NONCE+1}]")
        if self.o.get("stamps"): a("v_mov_b32 v255, 0")
        self.stamp(0)
        a("v_lshrrev_b32 v1, 6, v0")
        a("v_and_b32 v0, 63, v0")
        a(f"v_readfirstlane_b32 s{S_W}, v1")
        a(f"s_and_b32 s{S_C}, s{S_G}, 7")
        a(f"s_lshr_b32 s{S_J}, s{S_G}, 3")
        if self.o.get("cpfe", "1") == "1": self.code_prefetch(int(self.o.get("cpfw", 1)))

    def code_prefetch(self, wave):
        a = self.a
        if self.o.get("cpf", "1") != "1": return
        Lc = a.newlabel("cpf")
        a(f"s_cmp_lg_u32 s{S_W}, {wave}")
        a(f"s_cbranch_scc1 {Lc}")
        a(f"s_getpc_b64 s[{T4}:{T5}]")
        a.label("L_pc_here")
        a(f"s_mul_i32 s{T0}, s{S_J}, {self.CPF_LINES*128}")
        a(f"s_sub_u32 s{T0}, s{T0}, L_pc_here-{NAME}_kernel")
        a(f"v_lshl_add_u32 v3, v0, 7, s{T0}")
        a("v_ashrrev_i32 v5, 31, v3")
        a(f"v_mov_b32 v6, s{T5}")
        a(f"v_add_co_u32 v4, vcc, s{T4}, v3")
        a(f"s_mov_b64 exec, {(1 << self.CPF_LINES) - 1}")
        a("s_nop 0")
        a("v_addc_co_u32 v5, vcc, v5, v6, vcc")
        a("global_load_dword v254, v[4:5], off")
        a("s_mov_b64 exec, -1")
        a.label(Lc)

    ACC = 16; XF = 160; WF = 176; XA = 72; WA = 144; DXA, DXB, DW = 78, 79, 80; VXM = 76
    ONES = 82
    CQ = 96
    CQA = 81; CSW = 85
    PGA, PGV, PGR, PGD = 116, 117, 118, 119
    RSA, RS = 84, 128
    STA = 86
    RLV, RLA = 157, 158
    VN = 92
    sRB, sCT, sKC, sXO, sWO, sSLOT, sCNT, sXM, sTG, sNH = 64, 65, 66, 67, 68, 69, 70, 71, 72, 73
    sTAB = 74
    sM0X = 80; sWO2 = 81; sKC0 = 82; sSIDE = 83; sXB = 71; sWB = 69
    sRL = 84
    P1_MISC = 148 * 1024
    RL_SCR = 68 * 1024
    CQ_SCR = 128 * 1024
    DUMMY = 159 * 1024
    CPF_LINES = 8

    def p1_issue(self, pieces=(0, 1, 2, 3)):
        a = self.a
        if 0 in pieces:
            a(f"s_mov_b32 m0, s{self.sM0X}")
            a(f"s_add_u32 s{self.sM0X}, s{self.sM0X}, 32768")
            self.dma(self.DXA, SRD_X, f"s{self.sXO}")
        if 1 in pieces:
            a("s_add_u32 m0, m0, 16384")
            a(f"s_add_u32 s{self.sWO2}, s{self.sWO}, 15360")
            self.dma(self.DW, SRD_WQ, f"s{self.sWO}")
        if 2 in pieces:
            a("s_sub_u32 m0, m0, 15360")
            a(f"s_add_u32 s{self.sWO}, s{self.sWO}, 245760")
            self.dma(self.DXB, SRD_X, f"s{self.sXO}")
        if 3 in pieces:
            a("s_add_u32 m0, m0, 16384")
            a(f"s_add_u32 s{self.sXO}, s{self.sXO}, 128")
            self.dma(self.DW, SRD_WQ, f"s{self.sWO2}")
            a(f"s_and_b32 s{self.sM0X}, s{self.sM0X}, 0x1ffff")
            a(f"s_sub_u32 s{self.sKC}, s{self.sKC}, 1")
            a(f"s_cmov_b32 s{self.sXO}, s{self.sXB}")
            a(f"s_cmov_b32 s{self.sWO}, s{self.sWB}")

    def p1_setup_a(self):
        a = self.a
        a(f"s_lshr_b32 s{T0}, s{S_C}, 1")
        a(f"s_lshl_b32 s{T0}, s{T0}, 2")
        a(f"s_lshr_b32 s{T1}, s{S_J}, 3")
        a(f"s_add_u32 s{self.sRB}, s{T0}, s{T1}")
        a(f"s_and_b32 s{T0}, s{S_C}, 1")
        a(f"s_lshl_b32 s{T0}, s{T0}, 3")
        a(f"s_and_b32 s{T2}, s{S_J}, 7")
        a(f"s_add_u32 s{self.sCT}, s{T0}, s{T2}")
        g = int(self.o.get("rotg", 3))
        if g == 8:
            a(f"s_lshl_b32 s{T1}, s{T1}, 1")
            a(f"s_add_u32 s{self.sKC}, s{T2}, s{T1}")
            a(f"s_bfe_u32 s{T0}, s{S_C}, 0x10001")
            a(f"s_and_b32 s{T1}, s{S_C}, 4")
            a(f"s_lshl_b32 s{T1}, s{T1}, 1")
            a(f"s_add_u32 s{T0}, s{T0}, s{T1}")
            a(f"s_add_u32 s{self.sKC}, s{self.sKC}, s{T0}")
        else:
            bases, offs, shift = {2: ((0, 5), (0, 2, 4, 1), 0), 1: ((0,), (0, 3, 6, 8), 0), 3: ((0, 3, 7), (0, 1, 2, 6), 0), 4: ((0, 2, 5, 7), (0, 1, 2, 3), 0), 5: ((0, 2, 4, 6, 8), (0, 1, 0, 1), 1)}[g]
            a(f"s_add_u32 s{T1}, s{T1}, s{T2}")
            a(f"s_lshr_b32 s{T0}, s{S_C}, 1")
            if shift: a(f"s_add_u32 s{T1}, s{T1}, s{T0}")
            tab = sum(bases[i % g] << (4 * i) for i in range(16))
            a(f"s_lshl_b32 s{T1}, s{T1}, 2")
            a(f"s_mov_b32 s{T4}, 0x{tab & 0xffffffff:08x}")
            a(f"s_mov_b32 s{T5}, 0x{tab >> 32:08x}")
            a(f"s_lshr_b64 s[{T4}:{T5}], s[{T4}:{T5}], s{T1}")
            a(f"s_and_b32 s{self.sKC}, s{T4}, 15")
            a(f"s_lshl_b32 s{T0}, s{T0}, 2")
            a(f"s_lshr_b32 s{T0}, 0x{sum(o << (4 * i) for i, o in enumerate(offs)):04x}, s{T0}")
            a(f"s_and_b32 s{T0}, s{T0}, 15")
            a(f"s_add_u32 s{self.sKC}, s{self.sKC}, s{T0}")
            for ct in range(8):
                assert len({(bases[(ct + rl + shift * aa) % g] + offs[aa] + e) % 10 for aa in range(4) for rl in range(4) for e in range({1: 3, 2: 2}.get(g, 1))}) == 10
        a(f"s_mul_i32 s{T0}, s{self.sKC}, 26")
        a(f"s_lshr_b32 s{T0}, s{T0}, 8")
        a(f"s_mul_i32 s{T0}, s{T0}, 10")
        a(f"s_sub_u32 s{self.sKC}, s{self.sKC}, s{T0}")
        a(f"s_mov_b32 s{self.sKC0}, s{self.sKC}")
        a(f"s_mul_i32 s{self.sXB}, s{self.sRB}, 163840")
        a(f"s_lshl_b32 s{T0}, s{self.sKC}, 7")
        a(f"s_add_u32 s{self.sXO}, s{self.sXB}, s{T0}")
        a(f"s_mul_i32 s{self.sWO}, s{self.sKC}, 245760")
        a(f"s_lshl_b32 s{self.sWB}, s{self.sCT}, 8")
        a(f"s_add_u32 s{self.sWO}, s{self.sWO}, s{self.sWB}")
        a(f"s_lshl_b32 s{self.sM0X}, s{S_W}, 11")
        a(f"s_sub_u32 s{self.sKC}, 9, s{self.sKC}")
        a("v_lshrrev_b32 v1, 3, v0")
        a("v_lshrrev_b32 v2, 4, v0")
        a("v_and_b32 v3, 7, v0")
        a("v_xor_b32 v3, v3, v2")
        a(f"s_lshl_b32 s{T0}, s{S_W}, 4")
        a(f"v_add_u32 v4, s{T0}, v1")
        a("v_mul_u32_u24 v4, 1280, v4")
        a(f"v_lshl_add_u32 v{self.DXA}, v3, 4, v4")
        a(f"v_xor_b32 v{self.DXB}, 64, v{self.DXA}")
        a(f"v_add_u32 v{self.DXB}, 10240, v{self.DXB}")
        a("v_lshlrev_b32 v3, 2, v2")
        a("v_and_b32 v4, 15, v0")
        a("v_xor_b32 v3, v3, v4")
        a(f"s_lshl_b32 s{T0}, s{S_W}, 3")
        a(f"v_add_u32 v4, s{T0}, v2")
        a("v_mul_u32_u24 v4, 3840, v4")
        a(f"v_lshl_add_u32 v{self.DW}, v3, 4, v4")
        for d, n in ((SRD_X, 2048 * 1280), (SRD_WQ, 640 * 3840), (SRD_DBG, 256)):
            a(f"s_mov_b32 s{d+2}, {n}")
            a(f"s_mov_b32 s{d+3}, 0x20000")
        a("s_waitcnt lgkmcnt(0)")
        if self.o.get("jit"):
            a(f"s_mul_i32 s35, s{S_G}, 977")
            a(f"s_mul_i32 s34, s{S_W}, 7919")
            a("s_add_u32 s35, s35, s34")
            a(f"s_add_u32 s35, s35, s{S_NONCE}")
        if self.o.get("fixown"): a(f"s_mov_b32 s31, s{S_NONCE}")
        if self.o.get("diag"): a("s_mov_b32 s35, 0")
        a(f"s_or_b32 s{T0}, s{S_G}, s{S_W}")
        a("s_cbranch_scc0 L_nonce_pub")
        a.label("L_nonce_done")
        a(f"s_cmp_eq_u32 s{self.sCT}, 15")
        a("s_cbranch_scc1 L_p1_noissue")
        self.p1_issue()
        if self.o.get("first5", "1") == "1" and self.o.get("p1v", "2") != "2": self.p1_issue((0,))
        a.label("L_p1_noissue")
        self.stamp(1)
        if int(self.o.get("wsoff", 0)):
            a(f"s_add_u32 s{S_PTR+16}, s{S_PTR+16}, {int(self.o['wsoff']) << 20}")
            a(f"s_addc_u32 s{S_PTR+17}, s{S_PTR+17}, 0")
        self.srd(SRD_WS, S_PTR + 16, WS_SIZE + ((1 << 20) if self.o.get("stamps") else 0))
        self.srd(SRD_OUT, S_PTR + 12, 2048 * 1280)
        a(f"s_mov_b64 s[{SRD_RL}:{SRD_RL+1}], 0")
        a(f"s_mov_b32 s{SRD_RL+2}, 0")
        a(f"s_mov_b32 s{SRD_RL+3}, 0x20000")
        a(f"v_mov_b32 v{self.RLV}, 0")
        if self.o.get("cpfe", "1") != "1": self.code_prefetch(7)

    def relayout_setup(self):
        a = self.a
        R = self.sRL
        u = a.newlabel("u")
        sID, sKS, sCB, sST, sA, sB, sCc, sD = T0, T1, T2, T3, 93, 94, 95, 96
        sBase, sSl, sKsS = 97, 98, 99
        a(f"s_mul_i32 s{sID}, s{S_G}, 5")
        a(f"s_add_u32 s{sID}, s{sID}, s{S_W}")
        a(f"s_sub_u32 s{sID}, s{sID}, 1")
        a(f"s_min_u32 s{sID}, s{sID}, 1279")
        a(f"s_mov_b32 s{sA}, 16")
        a(f"s_mov_b32 s{sB}, 8")
        a(f"s_mov_b32 s{sCc}, 4")
        a(f"s_mov_b32 s{SRD_RL+3}, 0x20000")
        a(f"s_mov_b32 s{R+8}, -1")
        a(f"s_cmp_lt_u32 s{sID}, 200")
        a(f"s_cbranch_scc1 L_rl_wo{u}")
        a(f"s_cmp_lt_u32 s{sID}, 740")
        a(f"s_cbranch_scc1 L_rl_w1{u}")
        a(f"s_sub_u32 s{sID}, s{sID}, 740")
        a(f"s_mul_i32 s{sKS}, s{sID}, 6554")
        a(f"s_lshr_b32 s{sKS}, s{sKS}, 16")
        a(f"s_mul_i32 s{sCB}, s{sKS}, 10")
        a(f"s_sub_u32 s{sCB}, s{sID}, s{sCB}")
        a(f"s_lshl_b32 s{sD}, s{sKS}, 5")
        a(f"s_mov_b32 s{SRD_RL}, s{S_PTR+10}")
        a(f"s_and_b32 s{SRD_RL+1}, s{S_PTR+11}, 0xffff")
        a(f"s_mov_b32 s{SRD_RL+2}, {1728*1280}")
        a(f"s_mov_b32 s{sBase}, {WS_W2}")
        a(f"s_mov_b32 s{sSl}, {54*5120}")
        a(f"s_cmp_ge_u32 s{sKS}, 48")
        a(f"s_cselect_b32 s{sA}, 4, 16")
        a(f"s_cselect_b32 s{sB}, 16, 8")
        a(f"s_cselect_b32 s{sCc}, 8, 4")
        a(f"s_add_u32 s{T4}, s{sKS}, 3")
        a(f"s_cmp_ge_u32 s{sKS}, 24")
        a(f"s_cselect_b32 s{T4}, s{T4}, s{sKS}")
        a(f"s_sub_u32 s{T5}, s{sKS}, 24")
        a(f"s_cmp_ge_u32 s{sKS}, 48")
        a(f"s_cselect_b32 s{T4}, s{T5}, s{T4}")
        a(f"s_cmp_ge_u32 s{sKS}, 51")
        a(f"s_cselect_b32 s{sKS}, s{sKS}, s{T4}")
        a(f"s_branch L_rl_n640{u}")
        a.label(f"L_rl_wo{u}")
        a(f"s_mul_i32 s{sKS}, s{sID}, 6554")
        a(f"s_lshr_b32 s{sKS}, s{sKS}, 16")
        a(f"s_mul_i32 s{sCB}, s{sKS}, 10")
        a(f"s_sub_u32 s{sCB}, s{sID}, s{sCB}")
        a(f"s_mul_i32 s{sD}, s{sKS}, 40")
        a(f"s_mul_i32 s{sST}, s{sKS}, 160")
        a(f"s_sub_u32 s{sST}, s{sST}, {160*16-16}")
        a(f"s_cmp_lt_u32 s{sKS}, 16")
        a(f"s_cselect_b32 s{sD}, s{sD}, s{sST}")
        a(f"s_cselect_b32 s{sA}, 8, 20")
        a(f"s_cselect_b32 s{sB}, 20, 0x50")
        a(f"s_cselect_b32 s{sCc}, 4, 40")
        a(f"s_mov_b32 s{SRD_RL}, s{S_PTR+4}")
        a(f"s_and_b32 s{SRD_RL+1}, s{S_PTR+5}, 0xffff")
        a(f"s_mov_b32 s{SRD_RL+2}, {640*1280}")
        a(f"s_mov_b32 s{sBase}, {WS_WO}")
        a(f"s_mov_b32 s{sSl}, {20*5120}")
        a(f"s_add_u32 s{T4}, s{sKS}, 2")
        a(f"s_cmp_ge_u32 s{sKS}, 8")
        a(f"s_cselect_b32 s{T4}, s{T4}, s{sKS}")
        a(f"s_sub_u32 s{T5}, s{sKS}, 8")
        a(f"s_cmp_ge_u32 s{sKS}, 16")
        a(f"s_cselect_b32 s{T4}, s{T5}, s{T4}")
        a(f"s_cmp_ge_u32 s{sKS}, 18")
        a(f"s_cselect_b32 s{sKS}, s{sKS}, s{T4}")
        a(f"s_sub_u32 s{T4}, s{sKS}, 1")
        a(f"s_cmp_ge_u32 s{sKS}, 10")
        a(f"s_cselect_b32 s{T4}, s{T4}, s{sKS}")
        a(f"s_cmp_eq_u32 s{sKS}, 9")
        a(f"s_cselect_b32 s{T4}, 18, s{T4}")
        a(f"s_cmp_eq_u32 s{sKS}, 19")
        a(f"s_cselect_b32 s{sKS}, 19, s{T4}")
        a.label(f"L_rl_n640{u}")
        a(f"s_mov_b32 s{sST}, 1280")
        a(f"s_mul_i32 s{sKsS}, s{sKS}, 5120")
        a(f"s_add_u32 s{sBase}, s{sBase}, s{sKsS}")
        for t in range(4):
            a(f"s_lshl_b32 s{T4}, s{sCB}, 2")
            a(f"s_add_u32 s{T4}, s{T4}, {t}")
            a(f"s_mul_i32 s{T5}, s{T4}, 52")
            a(f"s_lshr_b32 s{T5}, s{T5}, 8")
            a(f"s_mul_i32 s{R+4+t}, s{T5}, s{sSl}")
            a(f"s_mul_i32 s{T5}, s{T5}, 5")
            a(f"s_sub_u32 s{T4}, s{T4}, s{T5}")
            a(f"s_lshl_b32 s{T4}, s{T4}, 10")
            a(f"s_add_u32 s{R+4+t}, s{R+4+t}, s{T4}")
            a(f"s_add_u32 s{R+4+t}, s{R+4+t}, s{sBase}")
        a(f"s_branch L_rl_common{u}")
        a.label(f"L_rl_w1{u}")
        a(f"s_sub_u32 s{sID}, s{sID}, 200")
        a(f"s_mul_i32 s{sKS}, s{sID}, 2428")
        a(f"s_lshr_b32 s{sKS}, s{sKS}, 16")
        a(f"s_mul_i32 s{sCB}, s{sKS}, 27")
        a(f"s_sub_u32 s{sCB}, s{sID}, s{sCB}")
        a(f"s_lshr_b32 s{T4}, s{sKS}, 1")
        a(f"s_mul_i32 s{T4}, s{T4}, 0x50")
        a(f"s_and_b32 s{T5}, s{sKS}, 1")
        a(f"s_lshl_b32 s{T5}, s{T5}, 5")
        a(f"s_add_u32 s{sD}, s{T4}, s{T5}")
        a(f"s_mul_i32 s{T4}, s{sKS}, 160")
        a(f"s_sub_u32 s{T4}, s{T4}, {160*16-64}")
        a(f"s_cmp_lt_u32 s{sKS}, 16")
        a(f"s_cselect_b32 s{sD}, s{sD}, s{T4}")
        a(f"s_cselect_b32 s{sA}, 16, 4")
        a(f"s_cselect_b32 s{sB}, 8, 0x50")
        a(f"s_cselect_b32 s{sCc}, 4, 8")
        a(f"s_mov_b32 s{SRD_RL}, s{S_PTR+8}")
        a(f"s_and_b32 s{SRD_RL+1}, s{S_PTR+9}, 0xffff")
        a(f"s_mov_b32 s{SRD_RL+2}, {640*3456}")
        a(f"s_mov_b32 s{sST}, 3456")
        a(f"s_mul_i32 s{sKsS}, s{sKS}, 7168")
        a(f"s_add_u32 s{sBase}, s{sKsS}, {WS_W1}")
        a(f"s_mul_i32 s{R+8}, s{sKS}, {1728*4}")
        a(f"s_lshl_b32 s{T4}, s{sCB}, 8")
        a(f"s_add_u32 s{R+8}, s{R+8}, s{T4}")
        a(f"s_add_u32 s{R+8}, s{R+8}, {WS_CS1}")
        for t in range(4):
            a(f"s_lshl_b32 s{T4}, s{sCB}, 2")
            a(f"s_add_u32 s{T4}, s{T4}, {t}")
            a(f"s_mul_i32 s{T5}, s{T4}, 43")
            a(f"s_lshr_b32 s{T5}, s{T5}, 8")
            a(f"s_mul_i32 s{sSl}, s{T5}, 6")
            a(f"s_sub_u32 s{sSl}, s{T4}, s{sSl}")
            a(f"s_sub_u32 s{sKsS}, s{T4}, 96")
            a(f"s_cmp_lt_u32 s{T4}, 96")
            a(f"s_cselect_b32 s{T5}, s{T5}, s{sKsS}")
            a(f"s_cselect_b32 s{sSl}, s{sSl}, 6")
            a(f"s_mul_i32 s{R+4+t}, s{T5}, {20*7168}")
            a(f"s_lshl_b32 s{sSl}, s{sSl}, 10")
            a(f"s_add_u32 s{R+4+t}, s{R+4+t}, s{sSl}")
            a(f"s_add_u32 s{R+4+t}, s{R+4+t}, s{sBase}")
        a.label(f"L_rl_common{u}")
        a(f"s_mul_i32 s{sD}, s{sD}, s{sST}")
        a(f"s_lshl_b32 s{T4}, s{sCB}, 7")
        a(f"s_add_u32 s{R}, s{sD}, s{T4}")
        a(f"s_mul_i32 s{sA}, s{sA}, s{sST}")
        a(f"s_mul_i32 s{sB}, s{sB}, s{sST}")
        a(f"s_add_u32 s{R+1}, s{R}, s{sB}")
        a(f"s_add_u32 s{R+2}, s{R}, s{sA}")
        a(f"s_add_u32 s{R+3}, s{R+2}, s{sB}")
        a("v_lshrrev_b32 v1, 5, v0")
        a(f"v_mul_u32_u24 v1, s{sCc}, v1")
        a("v_bfe_u32 v2, v0, 3, 2")
        a("v_add_u32 v1, v1, v2")
        a(f"v_mul_u32_u24 v1, s{sST}, v1")
        a("v_and_b32 v2, 7, v0")
        a(f"v_lshl_add_u32 v{self.RLV}, v2, 4, v1")
        a("v_lshrrev_b32 v1, 2, v0")
        a("v_lshlrev_b32 v1, 7, v1")
        a("v_and_b32 v2, 3, v0")
        a("v_lshl_add_u32 v1, v2, 3, v1")
        a(f"s_lshl_b32 s{T4}, s{S_W}, 12")
        a(f"s_add_u32 s{T4}, s{T4}, {self.RL_SCR-4096}")
        a(f"v_add_u32 v{self.RLA}, s{T4}, v1")

    def relayout_issue(self, drain_older=False, other=None):
        a = self.a
        L = a.newlabel("rlsk")
        a(f"s_sub_u32 s{T0}, s{S_W}, 1")
        a(f"s_cmp_ge_u32 s{T0}, {0 if self.o.get('norl') else 5}")
        a(f"s_cbranch_scc1 {L}")
        a(f"s_lshl_b32 s{T0}, s{S_W}, 12")
        a(f"s_add_u32 m0, s{T0}, {self.RL_SCR-4096}")
        for i in range(4):
            if i: a("s_add_u32 m0, m0, 1024")
            a("s_nop 0")
            self.dma(self.RLV, SRD_RL, f"s{self.sRL+i}")
        if other:
            L2 = a.newlabel("rlw")
            a(f"s_branch {L2}")
            a.label(L)
            other()
            a.label(L2)
        elif drain_older:
            L2 = a.newlabel("rlw")
            a("s_waitcnt vmcnt(4)")
            a(f"s_branch {L2}")
            a.label(L)
            a("s_waitcnt vmcnt(0)")
            a.label(L2)
        else:
            a.label(L)

    def relayout_finish(self, younger=None):
        a = self.a
        L = a.newlabel("rlsk"); F = 168; t = 184
        a(f"s_sub_u32 s{T0}, s{S_W}, 1")
        a(f"s_cmp_ge_u32 s{T0}, 5")
        Lo = a.newlabel("rlo")
        a(f"s_cbranch_scc1 {Lo if younger is not None else L}")
        if younger is not None: a(f"s_waitcnt vmcnt({younger})")
        for q in range(4):
            for rd in range(2):
                a(f"ds_read_b64_tr_b16 v[{F+4*q+2*rd}:{F+4*q+2*rd+1}], v{self.RLA} offset:{rd*2048+q*32}")
        a(f"v_lshlrev_b32 v{t}, 4, v0")
        for q in range(4):
            a(f"s_waitcnt lgkmcnt({6-2*q})")
            a(f"buffer_store_dwordx4 v[{F+4*q}:{F+4*q+3}], v{t}, s[{SRD_WS}:{SRD_WS+3}], s{self.sRL+4+q} offen sc1")
        if younger is not None: a("s_waitcnt vmcnt(4)")
        a(f"s_cmp_eq_u32 s{self.sRL+8}, -1")
        a(f"s_cbranch_scc1 {L}")
        for q in range(4): a(f"v_mov_b32 v{t+2+q}, 0")
        a(f"v_mov_b32 v{t+6}, 0x3f803f80")
        for k in range(4):
            for q in range(4): a(f"v_dot2_f32_bf16 v{t+2+q}, v{F+4*q+k}, v{t+6}, v{t+2+q}")
        a(f"v_lshlrev_b32 v{t+1}, 2, v0")
        a("s_nop 1")
        a(f"v_permlane16_swap_b32 v{t+2}, v{t+3}")
        a(f"v_permlane16_swap_b32 v{t+4}, v{t+5}")
        a("s_nop 0")
        a(f"v_add_f32 v{t+2}, v{t+2}, v{t+3}")
        a(f"v_add_f32 v{t+4}, v{t+4}, v{t+5}")
        a("s_nop 1")
        a(f"v_permlane32_swap_b32 v{t+2}, v{t+4}")
        a("s_nop 0")
        a(f"v_add_f32 v{t+2}, v{t+2}, v{t+4}")
        a(f"buffer_store_dword v{t+2}, v{t+1}, s[{SRD_WS}:{SRD_WS+3}], s{self.sRL+8} offen sc1")
        if younger is not None:
            a(f"s_branch {L}")
            a.label(Lo)
            a("s_waitcnt vmcnt(0)")
        a.label(L)

    def p1_setup_b(self):
        a = self.a
        a(f"s_and_b32 s{self.sTG}, s{S_W}, 3")
        a(f"s_lshr_b32 s{self.sNH}, s{S_W}, 2")
        a(f"s_cmp_ge_u32 s{self.sCT}, 5")
        a(f"s_cselect_b32 s{T0}, 5, 0")
        a(f"s_sub_u32 s{T0}, s{self.sCT}, s{T0}")
        a(f"s_lshl_b32 s{T0}, s{T0}, 1")
        a(f"s_add_u32 s{T0}, s{T0}, s{self.sNH}")
        for idx in range(10):
            a(f"s_cmp_eq_u32 s{T0}, {idx}")
            a(f"s_cbranch_scc1 L_tab{idx}")
        a(f"s_mul_i32 s{T1}, s{self.sNH}, 0x10101010")
        for k in range(4): a(f"s_add_u32 s{self.sTAB+k}, s{T1}, 0x%08x" % (0x03020100 + 0x04040404 * k))
        a(f"s_mov_b32 s{self.sTAB+4}, 0")
        a(f"s_mov_b32 s{self.sTAB+5}, 0")
        a("s_branch L_tabdone")
        for idx in range(10):
            a.label(f"L_tab{idx}")
            for k, d in enumerate(p1_table(idx // 2, idx % 2)): a(f"s_mov_b32 s{self.sTAB+k}, 0x%08x" % d)
            if idx < 9: a("s_branch L_tabdone")
        a.label("L_tabdone")
        a("v_and_b32 v1, 31, v0")
        a(f"s_lshl_b32 s{T0}, s{self.sTG}, 5")
        a(f"v_add_u32 v2, s{T0}, v1")
        a("v_bfe_u32 v3, v2, 1, 3")
        a("v_lshrrev_b32 v4, 5, v0")
        a("v_xor_b32 v3, v3, v4")
        a("v_lshlrev_b32 v3, 4, v3")
        a(f"v_lshl_add_u32 v{self.XA}, v2, 7, v3")
        a(f"s_xor_b32 s{T3}, s{self.sTG}, s{self.sNH}")
        a(f"s_lshl_b32 s{T0}, s{T3}, 5")
        a(f"v_xor_b32 v{self.XA}, s{T0}, v{self.XA}")
        for ks in range(1, 4): a(f"v_xor_b32 v{self.XA+ks}, {ks<<5}, v{self.XA}")
        a("v_bfe_u32 v5, v0, 2, 2")
        a("v_lshl_add_u32 v6, v4, 3, v5")
        a("v_lshlrev_b32 v6, 8, v6")
        a("v_and_b32 v7, 3, v0")
        a("v_lshlrev_b32 v7, 3, v7")
        a("v_and_b32 v8, 16, v0")
        a("v_cmp_ne_u32 vcc, 0, v8")
        for i in range(2):
            a(f"v_mov_b32 v8, s{self.sTAB+2*i}")
            a(f"v_mov_b32 v9, s{self.sTAB+2*i+1}")
            a("v_cndmask_b32 v8, v8, v9, vcc")
            a("v_bfe_u32 v8, v8, v7, 8")
            a("v_lshlrev_b32 v8, 3, v8")
            a("v_lshlrev_b32 v9, 6, v5")
            a("v_xor_b32 v8, v8, v9")
            a(f"v_add_u32 v8, v6, v8")
            a(f"s_lshl_b32 s{T0}, s{T3}, 12")
            a(f"v_add_u32 v{self.WA+4*i}, s{T0}, v8")
            for j in range(1, 4): a(f"v_xor_b32 v{self.WA+4*i+j}, {j<<12}, v{self.WA+4*i}")
        a(f"s_lshl_b32 s{T0}, s{self.sRB}, 2")
        a(f"s_add_u32 s{T0}, s{T0}, s{self.sTG}")
        a(f"s_lshl_b32 s{T1}, s{T0}, 9")
        a(f"s_add_u32 s{T1}, s{T1}, {WS_RS}")
        a(f"v_lshl_add_u32 v{self.RSA}, v1, 4, s{T1}")
        a(f"s_cmp_ge_u32 s{self.sCT}, 10")
        a("s_cbranch_scc1 L_p1_vaddr")
        a(f"s_lshl_b32 s{T0}, s{T0}, 9")
        a(f"s_cmp_ge_u32 s{self.sCT}, 5")
        a(f"s_cselect_b32 s{T1}, {WS_K}, {WS_Q}")
        a(f"s_add_u32 s{T0}, s{T0}, s{T1}")
        a(f"v_lshl_add_u32 v2, v1, 4, s{T0}")
        a("v_lshlrev_b32 v3, 3, v4")
        a("v_add_u32 v5, 16, v3")
        for i in range(2):
            for qq in range(2):
                a(f"v_bfe_u32 v6, s{self.sTAB+4+i}, v{3 if qq == 0 else 5}, 8")
                a(f"v_lshl_add_u32 v{self.STA+2*i+qq}, v6, 15, v2")
        a("s_branch L_p1_addrdone")
        a.label("L_p1_vaddr")
        a(f"s_mul_i32 s{T0}, s{T0}, 1280")
        a(f"s_add_u32 s{T0}, s{T0}, {WS_V}")
        a(f"s_lshl_b32 s{T1}, s{self.sCT}, 7")
        a(f"s_lshl_b32 s{T2}, s{self.sNH}, 6")
        a(f"s_add_u32 s{T1}, s{T1}, s{T2}")
        a(f"s_sub_u32 s{T1}, s{T1}, 1280")
        a(f"v_mov_b32 v{self.STA+2}, 0")
        a(f"v_mov_b32 v{self.STA+3}, 0")
        a("v_mul_u32_u24 v3, 320, v4")
        a(f"v_add_u32 v3, s{T0}, v3")
        a(f"s_mov_b32 s{T2}, 81920")
        for i in range(2):
            a(f"v_add_u32 v5, s{T1}, v1")
            if i: a("v_add_u32 v5, 32, v5")
            a("v_mul_u32_u24 v6, 3277, v5")
            a("v_lshrrev_b32 v6, 16, v6")
            a("v_mul_u32_u24 v7, 20, v6")
            a("v_sub_u32 v5, v5, v7")
            a("v_lshl_add_u32 v5, v5, 4, v3")
            a(f"v_mad_u32_u24 v{self.STA+i}, v6, s{T2}, v5")
        a.label("L_p1_addrdone")
        for r in range(32): a(f"v_mov_b32 v{self.ACC+r}, 0")
        a(f"s_mul_i32 s{T0}, s{self.sCT}, 10240")
        a(f"s_lshl_b32 s{T1}, s{self.sNH}, 9")
        a(f"s_add_u32 s{T0}, s{T0}, s{T1}")
        a(f"s_add_u32 s{T0}, s{T0}, {WS_CQ}")
        a(f"v_lshl_add_u32 v{self.CQA}, v0, 3, s{T0}")
        a(f"s_lshl_b32 s{T0}, s{self.sNH}, 8")
        a(f"s_lshl_b32 s{T1}, s{self.sTG}, 9")
        a(f"s_add_u32 s{T0}, s{T0}, {self.P1_MISC}")
        a(f"s_add_u32 s{T1}, s{T1}, s{T0}")
        a(f"v_lshl_add_u32 v{self.CSW}, v0, 2, s{T1}")
        a(f"v_lshl_add_u32 v95, v0, 2, s{T0}")
        a(f"v_mov_b32 v{self.VXM}, 0x8000")
        a(f"s_lshl_b32 s{T0}, s{S_W}, 2")
        a(f"s_add_u32 s{T0}, s{T0}, {self.P1_MISC + 2304}")
        a(f"v_mov_b32 v{self.PGA}, s{T0}")
        a(f"v_mov_b32 v{self.PGV}, 0")
        a(f"v_and_b32 v{self.PGR}, 7, v0")
        a(f"v_lshlrev_b32 v{self.PGR}, 2, v{self.PGR}")
        a(f"v_add_u32 v{self.PGR}, {self.P1_MISC + 2304}, v{self.PGR}")
        a(f"ds_write_b32 v{self.PGA}, v{self.PGV}")
        a(f"s_mov_b32 s{self.sCNT}, -1")
        a(f"s_cmp_eq_u32 s{self.sTG}, 0")
        a(f"s_cselect_b32 s{self.sSIDE}, 2, 0")

    def p1_loop(self, vmode):
        a = self.a
        tag = "v" if vmode else "q"
        if self.o.get("p1soft"):
            self.p1_loop1(vmode, 0)
        else:
            a(f"s_cmp_lg_u32 s{self.sNH}, 0")
            a(f"s_cbranch_scc1 L_p1_B{tag}")
            self.p1_loop1(vmode, 0)
            a(f"s_branch L_p1_E{tag}")
            a.label(f"L_p1_B{tag}")
            self.p1_loop1(vmode, 1)
            a.label(f"L_p1_E{tag}")
        reads, xors, mf = self.p1_parts(vmode)
        def comp(ks, rd=True, xr=True):
            self.jit(2)
            a(f"s_waitcnt lgkmcnt({5 if rd or ks == 2 else 0})")
            mf(ks, 0)
            if rd: reads((ks + 2) % 4)
            mf(ks, 1)
            if xr: xors((ks + 2) % 4)
        comp(0); self.p1_issue((2,))
        comp(1); self.p1_issue((3,))
        a(f"buffer_load_dwordx4 v[{self.RS}:{self.RS+3}], v{self.RSA}, s[{SRD_WS}:{SRD_WS+3}], 0 offen sc1")
        a(f"s_mul_i32 s{T0}, s{self.sCT}, 10240")
        a(f"s_lshl_b32 s{T1}, s{S_W}, 10")
        a(f"s_add_u32 s{T0}, s{T0}, s{T1}")
        a(f"s_add_u32 s{T0}, s{T0}, {WS_CQ}")
        a(f"s_add_u32 m0, s{T1}, {self.CQ_SCR}")
        a("v_lshlrev_b32 v1, 4, v0")
        self.dma(1, SRD_WS, f"s{T0}", "sc1")
        a(f"s_add_u32 s{T0}, s{T0}, 8192")
        a("s_add_u32 m0, m0, 8192")
        a(f"s_cmp_ge_u32 s{S_W}, 2")
        a(f"s_cselect_b32 s{T0}, 0x7f000000, s{T0}")
        self.dma(1, SRD_WS, f"s{T0}", "sc1")
        a("s_waitcnt vmcnt(7)")
        a("s_barrier")
        comp(2); comp(3)
        comp(0); comp(1)
        a("s_waitcnt vmcnt(3)")
        a("s_barrier")
        comp(2, xr=False); comp(3, xr=False)
        a("s_waitcnt vmcnt(0) lgkmcnt(5)")
        a("s_barrier")
        mf(0, 0)
        self.p1_epi_reads()
        mf(0, 1)
        a("s_waitcnt lgkmcnt(11)")
        mf(1, 0); reads(2); mf(1, 1); reads(3)
        self.p1_epi_common()
        (self.p1_prep_v if vmode else self.p1_prep_q)()
        a(f"s_waitcnt lgkmcnt({15 if vmode else 14})")
        mf(2, 0)
        a(f"s_waitcnt lgkmcnt({10 if vmode else 9})")
        mf(3, 0); mf(2, 1); mf(3, 1)
        self.stamp(4)

    def p1_parts(self, vmode):
        a = self.a
        def reads(ks):
            if self.o.get("nolds"): return
            a(f"ds_read_b128 v[{self.XF+4*ks}:{self.XF+4*ks+3}], v{self.XA+ks}")
            for i in range(2):
                for rd in range(2):
                    d = self.WF + 8 * ks + 4 * i + 2 * rd
                    a(f"ds_read_b64_tr_b16 v[{d}:{d+1}], v{self.WA+4*i+ks} offset:{16384+rd*1024}")
        def xors(ks):
            for r in (self.XA + ks, self.WA + ks, self.WA + 4 + ks): a(f"v_xor_b32 v{r}, v{self.VXM}, v{r}")
            if ks == 3: a(f"v_xor_b32 v{self.VXM}, 0x10000, v{self.VXM}")
        def mf(ks, i):
            x = vr(self.XF + 4 * ks, 4); wv = vr(self.WF + 8 * ks + 4 * i, 4); acc = vr(self.ACC + 16 * i, 16)
            if self.o.get("nomfma"): pass
            elif vmode: a(f"v_mfma_f32_32x32x16_bf16 {acc}, {x}, {wv}, {acc}")
            else: a(f"v_mfma_f32_32x32x16_bf16 {acc}, {wv}, {x}, {acc}")
        return reads, xors, mf

    def p1_loop1(self, vmode, B):
        a = self.a
        L = a.newlabel("p1loop")
        pos = self.o.get("barB" if B else "barA", "1" if B else "0")
        reads, xors, mf = self.p1_parts(vmode)
        def bar():
            a("s_waitcnt vmcnt(4)")
            if not self.o.get("nobar"): a("s_barrier")
            if self.o.get("its") == "1": self.stamp_dyn(54, self.sCNT)
        soft = self.o.get("p1soft")
        def comp(ks):
            n = (ks + 2) % 4
            if soft: return comp_soft(ks)
            self.jit(2)
            if ks == 2 and pos == "0": bar()
            a("s_waitcnt lgkmcnt(5)")
            mf(ks, 0)
            if ks == 2 and pos == "1": bar()
            if ks == 2 and pos == "2":
                mf(ks, 1); bar(); reads(n)
            else:
                reads(n); mf(ks, 1)
            xors(n)
            self.p1_issue((n,))
        def comp_soft(ks):
            n = (ks + 2) % 4
            ar = int(soft) - 1
            extra = {0: 0, 1: (1 if ar == 0 else 0), 2: 0, 3: 0}[ks]
            a(f"s_waitcnt lgkmcnt({5 + extra})" if ks != 2 else "s_waitcnt lgkmcnt(0)" if self.o.get("p1g0") else "s_waitcnt lgkmcnt(6)")
            mf(ks, 0)
            if ks == ar:
                a(f"v_add_u32 v{self.PGV}, 1, v{self.PGV}")
                a(f"s_waitcnt vmcnt({2 + ks})")
                a(f"ds_write_b32 v{self.PGA}, v{self.PGV}")
            if ks == 2:
                Lw, Lb = a.newlabel("late"), a.newlabel("go")
                a("s_waitcnt lgkmcnt(0)")
                a(f"v_cmp_lt_u32 vcc, v{self.PGD}, v{self.PGV}")
                a(f"s_cbranch_vccnz {Lw}")
                a.label(Lb)
                self._late1.append((Lw, Lb))
            reads(n); mf(ks, 1)
            if ks == 1: a(f"ds_read_b32 v{self.PGD}, v{self.PGR}")
            xors(n)
            self.p1_issue((n,))
        a("s_waitcnt vmcnt(6) lgkmcnt(0)")
        a("s_barrier")
        self.stamp(3)
        reads(0); reads(1); xors(0); xors(1)
        a("v_mov_b32 v6, 0x3f803f80")
        a("v_mov_b32 v2, 0")
        a("v_mov_b32 v3, 0")
        a("s_waitcnt lgkmcnt(5)")
        for k in range(4):
            for i in range(2): a(f"v_dot2_f32_bf16 v{2+i}, v{self.WF+4*i+k}, v6, v{2+i}")
        a("s_nop 2")
        a("v_permlane32_swap_b32 v2, v3")
        a("s_nop 0")
        a("v_add_f32 v2, v2, v3")
        a(f"ds_write_b32 v{self.CSW}, v2")
        a.align(int(self.o.get("al1", 3)))
        a.label(L)
        comp(0); comp(1); comp(2)
        Lr = a.newlabel("back"); Ls = a.newlabel("side")
        a(f"s_add_u32 s{self.sCNT}, s{self.sCNT}, 1")
        a(f"s_cmp_lt_u32 s{self.sCNT}, s{self.sSIDE}")
        a(f"s_cbranch_scc1 {Ls}")
        a.label(Lr)
        comp(3)
        a(f"s_cmp_lt_u32 s{self.sCNT}, {int(self.o.get('p1n', 10)) - 4}")
        a(f"s_cbranch_scc1 {L}")
        self._sides.append((Ls, Lr))

    def p1_sides(self):
        a = self.a
        for Lw, Lb in self._late1:
            a.label(Lw)
            a(f"s_mov_b32 s{S_SPIN}, 0")
            L = a.newlabel("lsp")
            a.label(L)
            a(f"ds_read_b32 v{self.PGD}, v{self.PGR}")
            a(f"s_add_u32 s{S_SPIN}, s{S_SPIN}, 1")
            a(f"s_cmp_ge_u32 s{S_SPIN}, {SPIN_MAX * 16}")
            a(f"s_cbranch_scc1 {Lb}")
            a("s_waitcnt lgkmcnt(0)")
            a(f"v_cmp_lt_u32 vcc, v{self.PGD}, v{self.PGV}")
            a(f"s_cbranch_vccnz {L}")
            a(f"s_branch {Lb}")
        self._late1 = []
        for Ls, Lr in self._sides:
            a.label(Ls)
            L1 = a.newlabel("s1")
            a(f"s_cmp_lg_u32 s{self.sCNT}, 0")
            a(f"s_cbranch_scc1 {L1}")
            a("v_mov_b32 v1, 0")
            a(f"buffer_load_dwordx2 v[{self.VN}:{self.VN+1}], v1, s[{SRD_DBG}:{SRD_DBG+3}], 0 offen sc1")
            a(f"s_branch {Lr}")
            a.label(L1)
            a("s_waitcnt vmcnt(4)")
            self.nonce_get("nonce2")
            a(f"v_mov_b32 v1, {self.P1_MISC + 2048}")
            a(f"ds_write_b64 v1, v[{self.VN}:{self.VN+1}]")
            for k in range(4): a(f"ds_read_b32 v{2+k}, v95 offset:{512*k}")
            a(f"s_lshl_b32 s{T0}, s{self.sKC0}, 10")
            a("s_waitcnt lgkmcnt(0)")
            a("v_add_f32 v2, v2, v3")
            a("v_add_f32 v4, v4, v5")
            a(f"v_mov_b32 v3, s{S_NONCE}")
            a("v_add_f32 v2, v2, v4")
            a(f"buffer_store_dwordx2 v[2:3], v{self.CQA}, s[{SRD_WS}:{SRD_WS+3}], s{T0} offen sc1")
            a(f"s_branch {Lr}")

    def p1_gather(self):
        a = self.a
        a(f"buffer_load_dwordx4 v[{self.RS}:{self.RS+3}], v{self.RSA}, s[{SRD_WS}:{SRD_WS+3}], 0 offen sc1")
        a(f"s_movk_i32 s{T0}, 0x1000")
        a(f"s_movk_i32 s{T1}, 0x2000")
        for k in range(10):
            so = ("0", f"s{T0}", f"s{T1}")[k // 4]
            a(f"buffer_load_dwordx2 v[{self.CQ+2*k}:{self.CQ+2*k+1}], v{self.CQA}, s[{SRD_WS}:{SRD_WS+3}], {so} offen offset:{1024*(k%4)} sc1")

    def p1_epi_reads(self):
        a = self.a
        a(f"s_lshl_b32 s{T0}, s{self.sNH}, 9")
        a(f"s_add_u32 s{T0}, s{T0}, {self.CQ_SCR}")
        a(f"v_lshl_add_u32 v1, v0, 3, s{T0}")
        for k in range(10): a(f"ds_read_b64 v[{self.CQ+2*k}:{self.CQ+2*k+1}], v1 offset:{1024*k}")
        a(f"v_mov_b32 v1, {self.P1_MISC + 2048}")
        a(f"ds_read_b64 v[{self.VN}:{self.VN+1}], v1")
        a(f"s_lshl_b32 s{T2}, s{S_W}, 9")
        a(f"s_add_u32 s{T2}, s{T2}, {self.P1_MISC+4096}")
        a(f"v_lshl_add_u32 v6, v0, 2, s{T2}")
        a("v_and_b32 v5, 31, v0")
        a(f"s_mov_b32 s{S_SPIN}, 0")

    def p1_epi_common(self):
        a = self.a
        L = a.newlabel("rs"); Ld = a.newlabel("rsd")
        a("s_waitcnt lgkmcnt(10)")
        a(f"v_readfirstlane_b32 s{S_NONCE}, v{self.VN}")
        a(f"v_readfirstlane_b32 s{S_NONCE+1}, v{self.VN+1}")
        a("s_nop 0")
        a.label(L)
        a(f"v_xor_b32 v2, s{S_NONCE}, v{self.RS+1}")
        a(f"v_xor_b32 v3, s{S_NONCE}, v{self.RS+3}")
        for k in range(0, 10, 2):
            a(f"v_xor_b32 v4, s{S_NONCE}, v{self.CQ+2*k+1}")
            a(f"v_xor_b32 v7, s{S_NONCE}, v{self.CQ+2*k+3}")
            a("v_or3_b32 v2, v2, v4, v7")
        a("v_or_b32 v2, v2, v3")
        a("v_cmp_ne_u32 vcc, 0, v2")
        a(f"s_add_u32 s{S_SPIN}, s{S_SPIN}, 1")
        a("s_or_b64 vcc, vcc, vcc")
        a(f"s_cbranch_scc0 {Ld}")
        a(f"s_cmp_ge_u32 s{S_SPIN}, {SPIN_MAX}")
        a(f"s_cbranch_scc1 {Ld}")
        self.diag("gather")
        self.p1_gather()
        a("s_waitcnt vmcnt(0)")
        a(f"s_branch {L}")
        a.label(Ld)
        Q = self.CQ
        a(f"v_add_f32 v12, v{Q}, v{Q+2}")
        a(f"v_add_f32 v13, v{Q+4}, v{Q+6}")
        a(f"v_add_f32 v14, v{Q+8}, v{Q+10}")
        a(f"v_add_f32 v15, v{Q+12}, v{Q+14}")
        a(f"v_add_f32 v2, v{Q+16}, v{Q+18}")
        a("v_add_f32 v12, v12, v13")
        a("v_add_f32 v14, v14, v15")
        a("v_add_f32 v12, v12, v2")
        a("v_add_f32 v12, v12, v14")

    def rowstats(self):
        a = self.a
        X = 100
        a("v_lshrrev_b32 v1, 3, v0")
        a(f"s_lshl_b32 s{T0}, s{S_W}, 4")
        a(f"s_lshl_b32 s{T1}, s{self.sRB}, 7")
        a(f"s_add_u32 s{T0}, s{T0}, s{T1}")
        a(f"v_add_u32 v1, s{T0}, v1")
        a("v_mul_u32_u24 v2, 1280, v1")
        a("v_and_b32 v3, 7, v0")
        a("v_lshl_add_u32 v2, v3, 4, v2")
        a(f"s_mov_b32 s{T0}, 10240")
        for k in range(10):
            for hh in range(2):
                r = X + 8 * k + 4 * hh
                a(f"buffer_load_dwordx4 v[{r}:{r+3}], v2, s[{SRD_X}:{SRD_X+3}], {'s%d' % T0 if hh else '0'} offen offset:{128*k}")
        for r in range(4, 8): a(f"v_mov_b32 v{r}, 0")
        a("v_mov_b32 v8, 0x3f803f80")
        for k in range(10):
            a(f"s_waitcnt vmcnt({18-2*k if k < 9 else 1})")
            if k == 8:
                a("v_mov_b32 v3, 0")
                a(f"buffer_load_dwordx2 v[{self.VN}:{self.VN+1}], v3, s[{SRD_DBG}:{SRD_DBG+3}], 0 offen sc1")
            for e in range(4):
                for hh in range(2):
                    r = X + 8 * k + 4 * hh + e
                    a(f"v_dot2_f32_bf16 v{4+hh}, v{r}, v8, v{4+hh}")
                    a(f"v_dot2_f32_bf16 v{6+hh}, v{r}, v{r}, v{6+hh}")
        a("s_nop 2")
        for ctl in ("quad_perm:[1,0,3,2]", "quad_perm:[2,3,0,1]", "row_half_mirror"):
            for r in range(4, 8): a(f"v_add_f32_dpp v{r}, v{r}, v{r} {ctl} row_mask:0xf bank_mask:0xf")
        a("s_waitcnt vmcnt(0)")
        self.nonce_get()
        a("v_and_b32 v3, 1, v0")
        a("v_cmp_ne_u32 vcc, 0, v3")
        a("v_lshlrev_b32 v3, 3, v3")
        a("v_add_u32 v1, v1, v3")
        a("v_cndmask_b32 v4, v4, v5, vcc")
        a("v_cndmask_b32 v6, v6, v7, vcc")
        a(f"v_mul_f32 v4, 0x%08x, v4" % f2u(1.0 / 640))
        a("v_mul_f32 v5, v4, v4")
        a(f"v_mov_b32 v7, 0x%08x" % f2u(1.0 / 640))
        a("v_fma_f32 v5, v6, v7, -v5")
        a("v_max_f32 v5, 0, v5")
        a(f"v_add_f32 v5, 0x%08x, v5" % f2u(1e-5))
        a("v_rsq_f32 v8, v5")
        a(f"v_mov_b32 v9, s{S_NONCE}")
        a(f"v_mov_b32 v11, s{S_NONCE}")
        a("v_mul_f32 v10, v4, v8")
        a("v_lshlrev_b32 v1, 4, v1")
        a(f"s_mov_b32 s{T0}, {WS_RS}")
        a("s_mov_b32 exec_lo, 0x03030303")
        a("s_mov_b32 exec_hi, 0x03030303")
        a(f"buffer_store_dwordx4 v[8:11], v1, s[{SRD_WS}:{SRD_WS+3}], s{T0} offen sc1")
        a("s_mov_b64 exec, -1")

    def p1_prep_q(self):
        a = self.a
        qs = math.log2(math.e) / math.sqrt(20.0)
        a("ds_write_b32 v6, v12")
        a("v_lshrrev_b32 v1, 5, v0")
        a(f"v_lshl_add_u32 v1, v1, 4, s{T2}")
        C = 48
        for i in range(2):
            for q4 in range(4):
                a(f"ds_read_b128 v[{C+16*i+4*q4}:{C+16*i+4*q4+3}], v1 offset:{i*128+q4*32}")
        a(f"s_cmp_lt_u32 s{self.sCT}, 5")
        a(f"s_cselect_b32 s{T1}, 0x%08x, 1.0" % f2u(qs))
        a(f"v_mul_f32 v2, s{T1}, v{self.RS}")
        a(f"v_mul_f32 v3, s{T1}, v{self.RS+2}")

    def p1_epi_q(self):
        a = self.a
        C = 48
        a("s_nop 8")
        for i in range(2):
            for qq in range(2):
                a(f"s_waitcnt lgkmcnt({6-4*i-2*qq})")
                b = 16 * i + 8 * qq
                for r in range(8): a(f"v_mul_f32 v{self.ACC+b+r}, v2, v{self.ACC+b+r}")
                for r in range(8): a(f"v_fma_f32 v{self.ACC+b+r}, -v3, v{C+b+r}, v{self.ACC+b+r}")
                o = 4 + 4 * ((2 * i + qq) % 2)
                for r in range(4): a(f"v_cvt_pk_bf16_f32 v{o+r}, v{self.ACC+b+2*r}, v{self.ACC+b+2*r+1}")
                a(f"buffer_store_dwordx4 v[{o}:{o+3}], v{self.STA+2*i+qq}, s[{SRD_WS}:{SRD_WS+3}], 0 offen sc1")

    def p1_prep_v(self):
        a = self.a
        a("v_mov_b32 v13, v12")
        a(f"v_lshl_add_u32 v6, v5, 2, s{T2}")
        a("v_lshrrev_b32 v1, 5, v0")
        a("v_permlane32_swap_b32 v12, v13")
        a(f"ds_write_b32 v6, v{self.RS}")
        a(f"ds_write_b32 v6, v{self.RS+2} offset:128")
        a(f"v_lshl_add_u32 v6, v1, 4, s{T2}")
        C = 48
        for q4 in range(4):
            a(f"ds_read_b128 v[{C+4*q4}:{C+4*q4+3}], v6 offset:{q4*32}")
            a(f"ds_read_b128 v[{C+16+4*q4}:{C+16+4*q4+3}], v6 offset:{128+q4*32}")

    def p1_epi_v(self):
        a = self.a
        C = 48
        a("s_nop 8")
        for grp in range(2):
            a(f"s_waitcnt lgkmcnt({4-4*grp})")
            for i in range(2):
                b = 16 * i + 8 * grp
                for r in range(8): a(f"v_mul_f32 v{self.ACC+b+r}, v{C+8*grp+r}, v{self.ACC+b+r}")
                for r in range(8): a(f"v_fma_f32 v{self.ACC+b+r}, -v{C+16+8*grp+r}, v{12+i}, v{self.ACC+b+r}")
                o = 4 + 4 * i
                for r in range(4): a(f"v_cvt_pk_bf16_f32 v{o+r}, v{self.ACC+b+2*r}, v{self.ACC+b+2*r+1}")
                a(f"buffer_store_dwordx4 v[{o}:{o+3}], v{self.STA+i}, s[{SRD_WS}:{SRD_WS+3}], 0 offen offset:{640*grp} sc1")

    def nonce_get(self, where="nonce"):
        a = self.a
        a(f"s_mov_b32 s{S_SPIN}, 0")
        Lc = a.newlabel("nchk"); Lo = a.newlabel("nok")
        a.label(Lc)
        a(f"v_readfirstlane_b32 s{S_NONCE}, v{self.VN}")
        a(f"v_readfirstlane_b32 s{S_NONCE+1}, v{self.VN+1}")
        a(f"s_add_u32 s{S_SPIN}, s{S_SPIN}, 1")
        a(f"s_or_b32 s{T0}, s{S_NONCE}, s{S_NONCE+1}")
        a(f"s_cbranch_scc1 {Lo}")
        a(f"s_cmp_ge_u32 s{S_SPIN}, {SPIN_MAX}")
        a(f"s_cbranch_scc1 {Lo}")
        self.diag(where)
        a("v_mov_b32 v94, 0")
        a(f"buffer_load_dwordx2 v[{self.VN}:{self.VN+1}], v94, s[{SRD_DBG}:{SRD_DBG+3}], 0 offen sc1")
        a("s_waitcnt vmcnt(0)")
        a(f"s_branch {Lc}")
        a.label(Lo)

    def phase1(self):
        a = self.a
        self.p1_setup_a()
        a(f"s_cmp_eq_u32 s{self.sCT}, 15")
        a("s_cbranch_scc0 L_p1_go")
        self.rowstats()
        a("s_branch L_p1_done")
        a.label("L_nonce_pub")
        a("v_mov_b32 v3, 0")
        a(f"v_mov_b32 v4, s{S_NONCE}")
        a(f"v_mov_b32 v5, s{S_NONCE+1}")
        a("s_mov_b64 exec, 1")
        a(f"buffer_store_dwordx2 v[4:5], v3, s[{SRD_DBG}:{SRD_DBG+3}], 0 offen sc1")
        a("s_mov_b64 exec, -1")
        a("s_branch L_nonce_done")
        a.label("L_p1_go")
        if self.o.get("p1v", "2") == "2":
            from p1v2 import phase1_split
            phase1_split(self)
        else:
            self.p1_setup_b()
            self.p1_issue((1, 2, 3) if self.o.get("first5", "1") == "1" else (0, 1, 2, 3))
            self.p1_issue((0, 1))
            self.stamp(2)
            a(f"s_cmp_ge_u32 s{self.sCT}, 10")
            a("s_cbranch_scc1 L_p1_v")
            self.p1_loop(False)
            self.p1_epi_q()
            a("s_branch L_p1_done")
            self.p1_sides(); self._sides = []
            a.label("L_p1_v")
            self.p1_loop(True)
            self.p1_epi_v()
            a("s_branch L_p1_done")
            self.p1_sides()
        a.label("L_p1_done")
        self.stamp(5)
        a(f"s_lshl_b32 s{T0}, s{self.sCT}, 4")
        a(f"s_add_u32 s{T0}, s{T0}, s{self.sRB}")
        a(f"s_mul_i32 s{T0}, s{T0}, {FSP}")
        a(f"s_add_u32 s{T0}, s{T0}, {FL_1}")
        self.flag_prep(12)
        a("s_waitcnt vmcnt(0)")
        self.stamp(6)
        a("s_barrier")
        self.flag_store(T0, 12, prepped=True)
        self.stamp(7)
        a(f"s_cmp_eq_u32 s{S_W}, 0")
        a("s_cbranch_scc1 L_no_rls")
        self.relayout_setup()
        a.label("L_no_rls")
        if self.stop < 2:
            self.relayout_issue()
            a("s_waitcnt vmcnt(0)")
            self.relayout_finish()

    def build(self):
        a = self.a
        self.entry()
        self.phase1()
        if self.stop >= 2:
            from phases import phase2, phase3, phase4, phase5
            phase2(self)
            if self.stop >= 3: phase3(self)
            if self.stop >= 4: phase4(self)
            if self.stop >= 5: phase5(self)
        a("s_waitcnt vmcnt(0)")
        if self.o.get("fixend"):
            if self.o.get("diag"):
                a("s_cmp_eq_u32 s35, 0")
                a("s_cbranch_scc1 L_nofix")
            a.label("L_fixend")
            a("s_memrealtime s[100:101]")
            a("s_waitcnt lgkmcnt(0)")
            a(f"s_sub_u32 s100, s100, s{31 if self.o.get('fixown') else S_NONCE}")
            a(f"s_cmp_lt_u32 s100, {int(self.o['fixend'])*100}")
            a("s_cbranch_scc1 L_fixend")
            a.label("L_nofix")
        self.stamp(31)
        self.stamp_flush()
        a.label("L_end")
        a("s_endpgm")
        for f in self._tail: f()
        a.lines.append(f".fill {self.pad}, 4, 0xbf810000")
        body = a.text()
        errs = check(body)
        if errs:
            sys.stderr.write("\n".join(errs[:40]) + "\n%d hazards\n" % len(errs))
            raise SystemExit(1)
        head = f"""; Fused preLN -> MHA -> residual -> preLN -> SiLU FFN -> residual in one persistent launch
;      keys, applied through the MFMA C operand; row sums come from a ones row of V.  At the end every wave
;      checks its sums and outputs; if the shift was unsafe (sum > 2^40, inf or NaN) the wave redoes its rows
; @launch grid=(256,1,1) block=(512,1,1) lds={LDS_BYTES}
.amdgcn_target "amdgcn-amd-amdhsa--gfx950"
.text
.globl {NAME}_kernel
.p2align 8
.type {NAME}_kernel,@function
{NAME}_kernel:
"""
        tail = f""".section .rodata,"a"
.p2align 6
.amdhsa_kernel {NAME}_kernel
  .amdhsa_next_free_vgpr 256
  .amdhsa_next_free_sgpr 102
  .amdhsa_accum_offset 256
  .amdhsa_group_segment_fixed_size 0
  .amdhsa_kernarg_size 72
  .amdhsa_user_sgpr_count 2
  .amdhsa_user_sgpr_kernarg_segment_ptr 1
  .amdhsa_system_sgpr_workgroup_id_x 1
.end_amdhsa_kernel
"""
        return head + body + tail

if __name__ == "__main__":
    stop = int(sys.argv[2]) if len(sys.argv) > 2 else 99
    opts = dict(kv.split("=") for kv in sys.argv[3:])
    import subprocess
    def asm_size(path):
        r = subprocess.run(["clang", "-x", "assembler", "-target", "amdgcn-amd-amdhsa", "-mcpu=gfx950", "-c", path, "-o", "_chk.o"], capture_output=True, text=True)
        if r.returncode: print(r.stderr[:1500]); raise SystemExit(1)
        r = subprocess.run(["llvm-readelf", "-S", "_chk.o"], capture_output=True, text=True)
        return int([l for l in r.stdout.split("\n") if ".text" in l][0].split()[6], 16)
    open(sys.argv[1], "w").write(K(stop, opts).build())
    n = asm_size(sys.argv[1])
    k = K(stop, opts)
    k.CPF_LINES = (n + 4095) // 4096
    k.pad = (k.CPF_LINES * 4096 - n) // 4 + 16
    open(sys.argv[1], "w").write(k.build())
    print(sys.argv[1], "code bytes:", n, "with pad:", asm_size(sys.argv[1]))
```

```python
import sys, math
from asmlib import Asm, vr, sr, f2u, check
from tables import *

NAME = "sequential_preLN__mha_block__dense_activation_silu__prompt"
LDS_BYTES = 163840
SPIN_MAX = 200000

S_G = 2
SRD_X, SRD_WQ, SRD_WS, SRD_OUT, SRD_DBG, SRD_RL = 4, 8, 12, 16, 20, 24
S_W, S_C, S_J = 28, 29, 30
S_NONCE = 32
S_PTR = 36
T0, T1, T2, T3, T4, T5 = 54, 55, 56, 57, 58, 59
S_M1 = 60
S_SPIN = 62

class K:
    def __init__(self, stop_after=99, opts=None):
        self.a = Asm()
        self.stop = stop_after
        self.o = opts or {}
        self.pad = 0
        self._sides = []; self._late1 = []; self._tail = []

    def srd(self, d, ptr, nbytes):
        a = self.a
        a(f"s_mov_b32 s{d}, s{ptr}")
        a(f"s_and_b32 s{d+1}, s{ptr+1}, 0xffff")
        a(f"s_mov_b32 s{d+2}, {nbytes}")
        a(f"s_mov_b32 s{d+3}, 0x20000")

    def stamp(self, idx):
        if idx: self.jit(4)
        if not self.o.get("stamps"): return
        if self.o["stamps"] == "min" and idx not in (0, 9, 10, 31) + tuple(int(z) for z in self.o.get("ms", "").split(".") if z): return
        a = self.a
        a("s_memrealtime s[100:101]")
        a("s_waitcnt lgkmcnt(0)")
        a(f"v_writelane_b32 v255, s100, {idx}")
        if idx < 22 and self.o["stamps"] != "min":
            a("s_memtime s[100:101]")
            a("s_waitcnt lgkmcnt(0)")
            a(f"v_writelane_b32 v255, s100, {idx+32}")

    def stamp_dyn(self, base, sreg):
        if not self.o.get("its"): return
        a = self.a
        a("s_memtime s[100:101]")
        a("s_mov_b32 s99, m0")
        a(f"s_add_u32 m0, s{sreg}, {base}")
        a("s_waitcnt lgkmcnt(0)")
        a("v_writelane_b32 v255, s100, m0")
        a("s_mov_b32 m0, s99")

    def stamp_flush(self):
        if not self.o.get("stamps"): return
        a = self.a
        if self.o.get("dbgwg"):
            L = a.newlabel("dbg")
            a(f"s_cmp_lg_u32 s{S_G}, {int(self.o['dbgwg'])}")
            a(f"s_cbranch_scc1 {L}")
            a(f"s_cmp_lg_u32 s{S_W}, 0")
            a(f"s_cbranch_scc1 {L}")
            a(f"v_readlane_b32 s{T1}, v255, 0")
            for n, i in enumerate((3, 4, 7, 8, 9, 10, 12, 13, 15, 16, 18, 19, 31)):
                a(f"v_readlane_b32 s{T0}, v255, {i}")
                a("s_nop 3")
                a(f"s_sub_u32 s{T0}, s{T0}, s{T1}")
                a(f"v_mov_b32 v1, s{T0}")
                a(f"v_mov_b32 v2, {8+4*n}")
                a(f"buffer_store_dword v1, v2, s[{SRD_DBG}:{SRD_DBG+3}], 0 offen")
            a.label(L)
            return
        a(f"s_lshl_b32 s{T0}, s{S_G}, 3")
        a(f"s_add_u32 s{T0}, s{T0}, s{S_W}")
        a(f"s_lshl_b32 s{T0}, s{T0}, 8")
        a(f"s_add_u32 s{T0}, s{T0}, {WS_SIZE}")
        a("v_lshlrev_b32 v1, 2, v0")
        a(f"buffer_store_dword v255, v1, s[{SRD_WS}:{SRD_WS+3}], s{T0} offen")
        a("s_mov_b64 exec, -1")

    def hold(self, key):
        if not self.o.get(key): return
        a = self.a
        L = a.newlabel("hold")
        a.label(L)
        a("s_memrealtime s[100:101]")
        a("s_waitcnt lgkmcnt(0)")
        a(f"s_sub_u32 s100, s100, s{S_NONCE}")
        a(f"s_cmp_lt_u32 s100, {int(float(self.o[key]) * 100)}")
        a(f"s_cbranch_scc1 {L}")

    def jit(self, bits=3):
        if not self.o.get("jit"): return
        a = self.a
        L = a.newlabel("jit"); Ld = a.newlabel("jitd")
        a("s_mul_i32 s35, s35, 1103515245")
        a("s_add_u32 s35, s35, 12345")
        a(f"s_bfe_u32 s34, s35, {0x10000 * (bits + 2) + 16}")
        a(f"s_sub_u32 s34, s34, {3 << bits}")
        a(f"s_cbranch_scc1 {Ld}")
        a.label(L)
        a("s_sleep 3")
        a("s_sub_u32 s34, s34, 1")
        a(f"s_cbranch_scc0 {L}")
        a.label(Ld)

    def diag(self, what):
        if self.o.get("diag") == what: self.a("s_mov_b32 s35, 1")

    def dma(self, voff, srd, soff, flags=""):
        if self.o.get("nodma"): return
        self.a(f"buffer_load_dwordx4 v{voff}, s[{srd}:{srd+3}], {soff} offen {flags} lds".replace("  ", " "))

    def flag_prep(self, vt):
        a = self.a
        a(f"v_mov_b32 v{vt}, s{S_NONCE}")
        a(f"v_mov_b32 v{vt+1}, s{S_NONCE+1}")
        a(f"v_mov_b32 v{vt+2}, 0")

    def flag_store(self, s_off, vt, pol="sc1", prepped=False, who=0):
        a = self.a
        L = a.newlabel("nofl")
        a(f"s_cmp_lg_u32 s{S_W}, {who}")
        a(f"s_cbranch_scc1 {L}")
        if not prepped: self.flag_prep(vt)
        a("s_mov_b64 exec, 1")
        a(f"buffer_store_dwordx2 v[{vt}:{vt+1}], v{vt+2}, s[{SRD_WS}:{SRD_WS+3}], s{s_off} offen {pol}")
        a("s_mov_b64 exec, -1")
        a.label(L)

    def poll(self, n, s_off, spacing, vt, only_wave0=True, who=0):
        a = self.a
        L = a.newlabel("poll"); Ld = a.newlabel("polld")
        if only_wave0:
            a(f"s_cmp_lg_u32 s{S_W}, {who}")
            a(f"s_cbranch_scc1 {Ld}")
        a(f"s_mov_b32 s{S_SPIN}, 0")
        if n == 256:
            assert spacing == 8
            a(f"v_lshlrev_b32 v{vt+8}, 4, v0")
            a.label(L)
            a(f"buffer_load_dwordx4 v[{vt}:{vt+3}], v{vt+8}, s[{SRD_WS}:{SRD_WS+3}], s{s_off} offen sc1")
            a(f"buffer_load_dwordx4 v[{vt+4}:{vt+7}], v{vt+8}, s[{SRD_WS}:{SRD_WS+3}], s{s_off} offen offset:1024 sc1")
            a(f"s_add_u32 s{S_SPIN}, s{S_SPIN}, 1")
            a("s_waitcnt vmcnt(0)")
            a(f"v_cmp_ne_u64 vcc, s[{S_NONCE}:{S_NONCE+1}], v[{vt}:{vt+1}]")
            a(f"v_cmp_ne_u64 s[{S_M1}:{S_M1+1}], s[{S_NONCE}:{S_NONCE+1}], v[{vt+2}:{vt+3}]")
            a("s_nop 0")
            a(f"s_or_b64 s[{T4}:{T5}], vcc, s[{S_M1}:{S_M1+1}]")
            a(f"v_cmp_ne_u64 vcc, s[{S_NONCE}:{S_NONCE+1}], v[{vt+4}:{vt+5}]")
            a(f"v_cmp_ne_u64 s[{S_M1}:{S_M1+1}], s[{S_NONCE}:{S_NONCE+1}], v[{vt+6}:{vt+7}]")
            a("s_nop 0")
            a(f"s_or_b64 s[{T4}:{T5}], s[{T4}:{T5}], vcc")
            a(f"s_or_b64 s[{T4}:{T5}], s[{T4}:{T5}], s[{S_M1}:{S_M1+1}]")
        else:
            a(f"v_and_b32 v{vt+2}, {n-1}, v0")
            a(f"v_mul_u32_u24 v{vt+2}, {spacing}, v{vt+2}")
            a.label(L)
            a(f"buffer_load_dwordx2 v[{vt}:{vt+1}], v{vt+2}, s[{SRD_WS}:{SRD_WS+3}], s{s_off} offen sc1")
            a(f"s_add_u32 s{S_SPIN}, s{S_SPIN}, 1")
            a("s_waitcnt vmcnt(0)")
            a(f"v_cmp_ne_u64 vcc, s[{S_NONCE}:{S_NONCE+1}], v[{vt}:{vt+1}]")
            a("s_nop 0")
            a(f"s_or_b64 s[{T4}:{T5}], vcc, vcc")
        a(f"s_cbranch_scc0 {Ld}")
        if self.o.get("psleep"): a(f"s_sleep {int(self.o['psleep'])}")
        a(f"s_cmp_lt_u32 s{S_SPIN}, {SPIN_MAX}")
        a(f"s_cbranch_scc1 {L}")
        a.label(Ld)

    def pollp(self, n, s_off, spacing, va, vt, depth):
        a = self.a
        L = a.newlabel("poll"); Ld = a.newlabel("polld")
        N = f"s[{S_NONCE}:{S_NONCE+1}]"
        a(f"s_cmp_lg_u32 s{S_W}, 0")
        a(f"s_cbranch_scc1 {Ld}")
        a(f"s_mov_b32 s{S_SPIN}, 0")
        a(f"v_and_b32 v{va}, {n-1}, v0")
        a(f"v_mul_u32_u24 v{va}, {spacing}, v{va}")
        ld = lambda i: a(f"buffer_load_dwordx2 v[{vt+2*i}:{vt+2*i+1}], v{va}, s[{SRD_WS}:{SRD_WS+3}], s{s_off} offen sc1")
        for i in range(depth - 1):
            ld(i); a(f"s_sleep {int(self.o.get('psl', 2))}")
        a.label(L)
        for i in range(depth):
            ld((i + depth - 1) % depth)
            a(f"s_waitcnt vmcnt({depth-1})")
            a(f"v_cmp_ne_u64 vcc, {N}, v[{vt+2*i}:{vt+2*i+1}]")
            a(f"s_cbranch_vccz {Ld}")
        a(f"s_add_u32 s{S_SPIN}, s{S_SPIN}, 1")
        a(f"s_cmp_lt_u32 s{S_SPIN}, {SPIN_MAX}")
        a(f"s_cbranch_scc1 {L}")
        a.label(Ld)

    def poll2(self, va, vb, s_off, vt):
        a = self.a
        L = a.newlabel("poll"); Ld = a.newlabel("polld")
        N = f"s[{S_NONCE}:{S_NONCE+1}]"
        a(f"s_cmp_lg_u32 s{S_W}, 0")
        a(f"s_cbranch_scc1 {Ld}")
        a(f"s_mov_b32 s{S_SPIN}, 0")
        a.label(L)
        a(f"buffer_load_dwordx2 v[{vt}:{vt+1}], v{va}, s[{SRD_WS}:{SRD_WS+3}], s{s_off} offen sc1")
        a(f"buffer_load_dwordx2 v[{vt+2}:{vt+3}], v{vb}, s[{SRD_WS}:{SRD_WS+3}], s{s_off} offen sc1")
        a(f"s_add_u32 s{S_SPIN}, s{S_SPIN}, 1")
        a("s_waitcnt vmcnt(0)")
        a(f"v_cmp_ne_u64 vcc, {N}, v[{vt}:{vt+1}]")
        a(f"v_cmp_ne_u64 s[{S_M1}:{S_M1+1}], {N}, v[{vt+2}:{vt+3}]")
        a("s_nop 0")
        a(f"s_or_b64 vcc, vcc, s[{S_M1}:{S_M1+1}]")
        a(f"s_cbranch_scc0 {Ld}")
        if self.o.get("psleep"): a(f"s_sleep {int(self.o['psleep'])}")
        a(f"s_cmp_lt_u32 s{S_SPIN}, {SPIN_MAX}")
        a(f"s_cbranch_scc1 {L}")
        a.label(Ld)

    def entry(self):
        a = self.a
        a(f"s_cmp_ge_u32 s{S_G}, 256")
        a("s_cbranch_scc1 L_end")
        a(f"s_load_dwordx2 s[{SRD_X}:{SRD_X+1}], s[0:1], 0")
        a(f"s_load_dwordx2 s[{SRD_WQ}:{SRD_WQ+1}], s[0:1], 8")
        a(f"s_load_dwordx2 s[{SRD_DBG}:{SRD_DBG+1}], s[0:1], 56")
        a(f"s_load_dwordx16 s[{S_PTR}:{S_PTR+15}], s[0:1], 0")
        a(f"s_load_dwordx2 s[{S_PTR+16}:{S_PTR+17}], s[0:1], 64")
        a(f"s_memrealtime s[{S_NONCE}:{S_NONCE+1}]")
        if self.o.get("stamps"): a("v_mov_b32 v255, 0")
        self.stamp(0)
        a("v_lshrrev_b32 v1, 6, v0")
        a("v_and_b32 v0, 63, v0")
        a(f"v_readfirstlane_b32 s{S_W}, v1")
        a(f"s_and_b32 s{S_C}, s{S_G}, 7")
        a(f"s_lshr_b32 s{S_J}, s{S_G}, 3")
        if self.o.get("cpfe", "1") == "1": self.code_prefetch(int(self.o.get("cpfw", 1)))

    def code_prefetch(self, wave):
        a = self.a
        if self.o.get("cpf", "1") != "1": return
        Lc = a.newlabel("cpf")
        a(f"s_cmp_lg_u32 s{S_W}, {wave}")
        a(f"s_cbranch_scc1 {Lc}")
        a(f"s_getpc_b64 s[{T4}:{T5}]")
        a.label("L_pc_here")
        a(f"s_mul_i32 s{T0}, s{S_J}, {self.CPF_LINES*128}")
        a(f"s_sub_u32 s{T0}, s{T0}, L_pc_here-{NAME}_kernel")
        a(f"v_lshl_add_u32 v3, v0, 7, s{T0}")
        a("v_ashrrev_i32 v5, 31, v3")
        a(f"v_mov_b32 v6, s{T5}")
        a(f"v_add_co_u32 v4, vcc, s{T4}, v3")
        a(f"s_mov_b64 exec, {(1 << self.CPF_LINES) - 1}")
        a("s_nop 0")
        a("v_addc_co_u32 v5, vcc, v5, v6, vcc")
        a("global_load_dword v254, v[4:5], off")
        a("s_mov_b64 exec, -1")
        a.label(Lc)

    ACC = 16; XF = 160; WF = 176; XA = 72; WA = 144; DXA, DXB, DW = 78, 79, 80; VXM = 76
    ONES = 82
    CQ = 96
    CQA = 81; CSW = 85
    PGA, PGV, PGR, PGD = 116, 117, 118, 119
    RSA, RS = 84, 128
    STA = 86
    RLV, RLA = 157, 158
    VN = 92
    sRB, sCT, sKC, sXO, sWO, sSLOT, sCNT, sXM, sTG, sNH = 64, 65, 66, 67, 68, 69, 70, 71, 72, 73
    sTAB = 74
    sM0X = 80; sWO2 = 81; sKC0 = 82; sSIDE = 83; sXB = 71; sWB = 69
    sRL = 84
    P1_MISC = 148 * 1024
    RL_SCR = 68 * 1024
    CQ_SCR = 128 * 1024
    DUMMY = 159 * 1024
    CPF_LINES = 8

    def p1_issue(self, pieces=(0, 1, 2, 3)):
        a = self.a
        if 0 in pieces:
            a(f"s_mov_b32 m0, s{self.sM0X}")
            a(f"s_add_u32 s{self.sM0X}, s{self.sM0X}, 32768")
            self.dma(self.DXA, SRD_X, f"s{self.sXO}")
        if 1 in pieces:
            a("s_add_u32 m0, m0, 16384")
            a(f"s_add_u32 s{self.sWO2}, s{self.sWO}, 15360")
            self.dma(self.DW, SRD_WQ, f"s{self.sWO}")
        if 2 in pieces:
            a("s_sub_u32 m0, m0, 15360")
            a(f"s_add_u32 s{self.sWO}, s{self.sWO}, 245760")
            self.dma(self.DXB, SRD_X, f"s{self.sXO}")
        if 3 in pieces:
            a("s_add_u32 m0, m0, 16384")
            a(f"s_add_u32 s{self.sXO}, s{self.sXO}, 128")
            self.dma(self.DW, SRD_WQ, f"s{self.sWO2}")
            a(f"s_and_b32 s{self.sM0X}, s{self.sM0X}, 0x1ffff")
            a(f"s_sub_u32 s{self.sKC}, s{self.sKC}, 1")
            a(f"s_cmov_b32 s{self.sXO}, s{self.sXB}")
            a(f"s_cmov_b32 s{self.sWO}, s{self.sWB}")

    def p1_setup_a(self):
        a = self.a
        a(f"s_lshr_b32 s{T0}, s{S_C}, 1")
        a(f"s_lshl_b32 s{T0}, s{T0}, 2")
        a(f"s_lshr_b32 s{T1}, s{S_J}, 3")
        a(f"s_add_u32 s{self.sRB}, s{T0}, s{T1}")
        a(f"s_and_b32 s{T0}, s{S_C}, 1")
        a(f"s_lshl_b32 s{T0}, s{T0}, 3")
        a(f"s_and_b32 s{T2}, s{S_J}, 7")
        a(f"s_add_u32 s{self.sCT}, s{T0}, s{T2}")
        g = int(self.o.get("rotg", 1))
        if g == 8:
            a(f"s_lshl_b32 s{T1}, s{T1}, 1")
            a(f"s_add_u32 s{self.sKC}, s{T2}, s{T1}")
            a(f"s_bfe_u32 s{T0}, s{S_C}, 0x10001")
            a(f"s_and_b32 s{T1}, s{S_C}, 4")
            a(f"s_lshl_b32 s{T1}, s{T1}, 1")
            a(f"s_add_u32 s{T0}, s{T0}, s{T1}")
            a(f"s_add_u32 s{self.sKC}, s{self.sKC}, s{T0}")
        else:
            bases, offs, shift = {2: ((0, 5), (0, 2, 4, 1), 0), 1: ((0,), (0, 3, 6, 8), 0), 3: ((0, 3, 7), (0, 1, 2, 6), 0), 4: ((0, 2, 5, 7), (0, 1, 2, 3), 0), 5: ((0, 2, 4, 6, 8), (0, 1, 0, 1), 1)}[g]
            a(f"s_add_u32 s{T1}, s{T1}, s{T2}")
            a(f"s_lshr_b32 s{T0}, s{S_C}, 1")
            if shift: a(f"s_add_u32 s{T1}, s{T1}, s{T0}")
            tab = sum(bases[i % g] << (4 * i) for i in range(16))
            a(f"s_lshl_b32 s{T1}, s{T1}, 2")
            a(f"s_mov_b32 s{T4}, 0x{tab & 0xffffffff:08x}")
            a(f"s_mov_b32 s{T5}, 0x{tab >> 32:08x}")
            a(f"s_lshr_b64 s[{T4}:{T5}], s[{T4}:{T5}], s{T1}")
            a(f"s_and_b32 s{self.sKC}, s{T4}, 15")
            a(f"s_lshl_b32 s{T0}, s{T0}, 2")
            a(f"s_lshr_b32 s{T0}, 0x{sum(o << (4 * i) for i, o in enumerate(offs)):04x}, s{T0}")
            a(f"s_and_b32 s{T0}, s{T0}, 15")
            a(f"s_add_u32 s{self.sKC}, s{self.sKC}, s{T0}")
            for ct in range(8):
                assert len({(bases[(ct + rl + shift * aa) % g] + offs[aa] + e) % 10 for aa in range(4) for rl in range(4) for e in range({1: 3, 2: 2}.get(g, 1))}) == 10
        a(f"s_mul_i32 s{T0}, s{self.sKC}, 26")
        a(f"s_lshr_b32 s{T0}, s{T0}, 8")
        a(f"s_mul_i32 s{T0}, s{T0}, 10")
        a(f"s_sub_u32 s{self.sKC}, s{self.sKC}, s{T0}")
        a(f"s_mov_b32 s{self.sKC0}, s{self.sKC}")
        a(f"s_mul_i32 s{self.sXB}, s{self.sRB}, 163840")
        a(f"s_lshl_b32 s{T0}, s{self.sKC}, 7")
        a(f"s_add_u32 s{self.sXO}, s{self.sXB}, s{T0}")
        a(f"s_mul_i32 s{self.sWO}, s{self.sKC}, 245760")
        a(f"s_lshl_b32 s{self.sWB}, s{self.sCT}, 8")
        a(f"s_add_u32 s{self.sWO}, s{self.sWO}, s{self.sWB}")
        a(f"s_lshl_b32 s{self.sM0X}, s{S_W}, 11")
        a(f"s_sub_u32 s{self.sKC}, 9, s{self.sKC}")
        a("v_lshrrev_b32 v1, 3, v0")
        a("v_lshrrev_b32 v2, 4, v0")
        a("v_and_b32 v3, 7, v0")
        a("v_xor_b32 v3, v3, v2")
        a(f"s_lshl_b32 s{T0}, s{S_W}, 4")
        a(f"v_add_u32 v4, s{T0}, v1")
        a("v_mul_u32_u24 v4, 1280, v4")
        a(f"v_lshl_add_u32 v{self.DXA}, v3, 4, v4")
        a(f"v_xor_b32 v{self.DXB}, 64, v{self.DXA}")
        a(f"v_add_u32 v{self.DXB}, 10240, v{self.DXB}")
        a("v_lshlrev_b32 v3, 2, v2")
        a("v_and_b32 v4, 15, v0")
        a("v_xor_b32 v3, v3, v4")
        a(f"s_lshl_b32 s{T0}, s{S_W}, 3")
        a(f"v_add_u32 v4, s{T0}, v2")
        a("v_mul_u32_u24 v4, 3840, v4")
        a(f"v_lshl_add_u32 v{self.DW}, v3, 4, v4")
        for d, n in ((SRD_X, 2048 * 1280), (SRD_WQ, 640 * 3840), (SRD_DBG, 256)):
            a(f"s_mov_b32 s{d+2}, {n}")
            a(f"s_mov_b32 s{d+3}, 0x20000")
        a("s_waitcnt lgkmcnt(0)")
        if self.o.get("jit"):
            a(f"s_mul_i32 s35, s{S_G}, 977")
            a(f"s_mul_i32 s34, s{S_W}, 7919")
            a("s_add_u32 s35, s35, s34")
            a(f"s_add_u32 s35, s35, s{S_NONCE}")
        if self.o.get("fixown"): a(f"s_mov_b32 s31, s{S_NONCE}")
        if self.o.get("diag"): a("s_mov_b32 s35, 0")
        a(f"s_or_b32 s{T0}, s{S_G}, s{S_W}")
        a("s_cbranch_scc0 L_nonce_pub")
        a.label("L_nonce_done")
        a(f"s_cmp_eq_u32 s{self.sCT}, 15")
        a("s_cbranch_scc1 L_p1_noissue")
        self.p1_issue()
        if self.o.get("first5", "1") == "1" and self.o.get("p1v", "2") != "2": self.p1_issue((0,))
        a.label("L_p1_noissue")
        self.stamp(1)
        if int(self.o.get("wsoff", 0)):
            a(f"s_add_u32 s{S_PTR+16}, s{S_PTR+16}, {int(self.o['wsoff']) << 20}")
            a(f"s_addc_u32 s{S_PTR+17}, s{S_PTR+17}, 0")
        self.srd(SRD_WS, S_PTR + 16, WS_SIZE + ((1 << 20) if self.o.get("stamps") else 0))
        self.srd(SRD_OUT, S_PTR + 12, 2048 * 1280)
        a(f"s_mov_b64 s[{SRD_RL}:{SRD_RL+1}], 0")
        a(f"s_mov_b32 s{SRD_RL+2}, 0")
        a(f"s_mov_b32 s{SRD_RL+3}, 0x20000")
        a(f"v_mov_b32 v{self.RLV}, 0")
        if self.o.get("cpfe", "1") != "1": self.code_prefetch(7)

    def relayout_setup(self):
        a = self.a
        R = self.sRL
        u = a.newlabel("u")
        sID, sKS, sCB, sST, sA, sB, sCc, sD = T0, T1, T2, T3, 93, 94, 95, 96
        sBase, sSl, sKsS = 97, 98, 99
        a(f"s_mul_i32 s{sID}, s{S_G}, 5")
        a(f"s_add_u32 s{sID}, s{sID}, s{S_W}")
        a(f"s_sub_u32 s{sID}, s{sID}, 1")
        a(f"s_min_u32 s{sID}, s{sID}, 1279")
        a(f"s_mov_b32 s{sA}, 16")
        a(f"s_mov_b32 s{sB}, 8")
        a(f"s_mov_b32 s{sCc}, 4")
        a(f"s_mov_b32 s{SRD_RL+3}, 0x20000")
        a(f"s_mov_b32 s{R+8}, -1")
        a(f"s_cmp_lt_u32 s{sID}, 200")
        a(f"s_cbranch_scc1 L_rl_wo{u}")
        a(f"s_cmp_lt_u32 s{sID}, 740")
        a(f"s_cbranch_scc1 L_rl_w1{u}")
        a(f"s_sub_u32 s{sID}, s{sID}, 740")
        a(f"s_mul_i32 s{sKS}, s{sID}, 6554")
        a(f"s_lshr_b32 s{sKS}, s{sKS}, 16")
        a(f"s_mul_i32 s{sCB}, s{sKS}, 10")
        a(f"s_sub_u32 s{sCB}, s{sID}, s{sCB}")
        a(f"s_lshl_b32 s{sD}, s{sKS}, 5")
        a(f"s_mov_b32 s{SRD_RL}, s{S_PTR+10}")
        a(f"s_and_b32 s{SRD_RL+1}, s{S_PTR+11}, 0xffff")
        a(f"s_mov_b32 s{SRD_RL+2}, {1728*1280}")
        a(f"s_mov_b32 s{sBase}, {WS_W2}")
        a(f"s_mov_b32 s{sSl}, {54*5120}")
        a(f"s_cmp_ge_u32 s{sKS}, 48")
        a(f"s_cselect_b32 s{sA}, 4, 16")
        a(f"s_cselect_b32 s{sB}, 16, 8")
        a(f"s_cselect_b32 s{sCc}, 8, 4")
        a(f"s_add_u32 s{T4}, s{sKS}, 3")
        a(f"s_cmp_ge_u32 s{sKS}, 24")
        a(f"s_cselect_b32 s{T4}, s{T4}, s{sKS}")
        a(f"s_sub_u32 s{T5}, s{sKS}, 24")
        a(f"s_cmp_ge_u32 s{sKS}, 48")
        a(f"s_cselect_b32 s{T4}, s{T5}, s{T4}")
        a(f"s_cmp_ge_u32 s{sKS}, 51")
        a(f"s_cselect_b32 s{sKS}, s{sKS}, s{T4}")
        a(f"s_branch L_rl_n640{u}")
        a.label(f"L_rl_wo{u}")
        a(f"s_mul_i32 s{sKS}, s{sID}, 6554")
        a(f"s_lshr_b32 s{sKS}, s{sKS}, 16")
        a(f"s_mul_i32 s{sCB}, s{sKS}, 10")
        a(f"s_sub_u32 s{sCB}, s{sID}, s{sCB}")
        a(f"s_mul_i32 s{sD}, s{sKS}, 40")
        a(f"s_mul_i32 s{sST}, s{sKS}, 160")
        a(f"s_sub_u32 s{sST}, s{sST}, {160*16-16}")
        a(f"s_cmp_lt_u32 s{sKS}, 16")
        a(f"s_cselect_b32 s{sD}, s{sD}, s{sST}")
        a(f"s_cselect_b32 s{sA}, 8, 20")
        a(f"s_cselect_b32 s{sB}, 20, 0x50")
        a(f"s_cselect_b32 s{sCc}, 4, 40")
        a(f"s_mov_b32 s{SRD_RL}, s{S_PTR+4}")
        a(f"s_and_b32 s{SRD_RL+1}, s{S_PTR+5}, 0xffff")
        a(f"s_mov_b32 s{SRD_RL+2}, {640*1280}")
        a(f"s_mov_b32 s{sBase}, {WS_WO}")
        a(f"s_mov_b32 s{sSl}, {20*5120}")
        a(f"s_add_u32 s{T4}, s{sKS}, 2")
        a(f"s_cmp_ge_u32 s{sKS}, 8")
        a(f"s_cselect_b32 s{T4}, s{T4}, s{sKS}")
        a(f"s_sub_u32 s{T5}, s{sKS}, 8")
        a(f"s_cmp_ge_u32 s{sKS}, 16")
        a(f"s_cselect_b32 s{T4}, s{T5}, s{T4}")
        a(f"s_cmp_ge_u32 s{sKS}, 18")
        a(f"s_cselect_b32 s{sKS}, s{sKS}, s{T4}")
        a(f"s_sub_u32 s{T4}, s{sKS}, 1")
        a(f"s_cmp_ge_u32 s{sKS}, 10")
        a(f"s_cselect_b32 s{T4}, s{T4}, s{sKS}")
        a(f"s_cmp_eq_u32 s{sKS}, 9")
        a(f"s_cselect_b32 s{T4}, 18, s{T4}")
        a(f"s_cmp_eq_u32 s{sKS}, 19")
        a(f"s_cselect_b32 s{sKS}, 19, s{T4}")
        a.label(f"L_rl_n640{u}")
        a(f"s_mov_b32 s{sST}, 1280")
        a(f"s_mul_i32 s{sKsS}, s{sKS}, 5120")
        a(f"s_add_u32 s{sBase}, s{sBase}, s{sKsS}")
        for t in range(4):
            a(f"s_lshl_b32 s{T4}, s{sCB}, 2")
            a(f"s_add_u32 s{T4}, s{T4}, {t}")
            a(f"s_mul_i32 s{T5}, s{T4}, 52")
            a(f"s_lshr_b32 s{T5}, s{T5}, 8")
            a(f"s_mul_i32 s{R+4+t}, s{T5}, s{sSl}")
            a(f"s_mul_i32 s{T5}, s{T5}, 5")
            a(f"s_sub_u32 s{T4}, s{T4}, s{T5}")
            a(f"s_lshl_b32 s{T4}, s{T4}, 10")
            a(f"s_add_u32 s{R+4+t}, s{R+4+t}, s{T4}")
            a(f"s_add_u32 s{R+4+t}, s{R+4+t}, s{sBase}")
        a(f"s_branch L_rl_common{u}")
        a.label(f"L_rl_w1{u}")
        a(f"s_sub_u32 s{sID}, s{sID}, 200")
        a(f"s_mul_i32 s{sKS}, s{sID}, 2428")
        a(f"s_lshr_b32 s{sKS}, s{sKS}, 16")
        a(f"s_mul_i32 s{sCB}, s{sKS}, 27")
        a(f"s_sub_u32 s{sCB}, s{sID}, s{sCB}")
        a(f"s_lshr_b32 s{T4}, s{sKS}, 1")
        a(f"s_mul_i32 s{T4}, s{T4}, 0x50")
        a(f"s_and_b32 s{T5}, s{sKS}, 1")
        a(f"s_lshl_b32 s{T5}, s{T5}, 5")
        a(f"s_add_u32 s{sD}, s{T4}, s{T5}")
        a(f"s_mul_i32 s{T4}, s{sKS}, 160")
        a(f"s_sub_u32 s{T4}, s{T4}, {160*16-64}")
        a(f"s_cmp_lt_u32 s{sKS}, 16")
        a(f"s_cselect_b32 s{sD}, s{sD}, s{T4}")
        a(f"s_cselect_b32 s{sA}, 16, 4")
        a(f"s_cselect_b32 s{sB}, 8, 0x50")
        a(f"s_cselect_b32 s{sCc}, 4, 8")
        a(f"s_mov_b32 s{SRD_RL}, s{S_PTR+8}")
        a(f"s_and_b32 s{SRD_RL+1}, s{S_PTR+9}, 0xffff")
        a(f"s_mov_b32 s{SRD_RL+2}, {640*3456}")
        a(f"s_mov_b32 s{sST}, 3456")
        a(f"s_mul_i32 s{sKsS}, s{sKS}, 7168")
        a(f"s_add_u32 s{sBase}, s{sKsS}, {WS_W1}")
        a(f"s_mul_i32 s{R+8}, s{sKS}, {1728*4}")
        a(f"s_lshl_b32 s{T4}, s{sCB}, 8")
        a(f"s_add_u32 s{R+8}, s{R+8}, s{T4}")
        a(f"s_add_u32 s{R+8}, s{R+8}, {WS_CS1}")
        for t in range(4):
            a(f"s_lshl_b32 s{T4}, s{sCB}, 2")
            a(f"s_add_u32 s{T4}, s{T4}, {t}")
            a(f"s_mul_i32 s{T5}, s{T4}, 43")
            a(f"s_lshr_b32 s{T5}, s{T5}, 8")
            a(f"s_mul_i32 s{sSl}, s{T5}, 6")
            a(f"s_sub_u32 s{sSl}, s{T4}, s{sSl}")
            a(f"s_sub_u32 s{sKsS}, s{T4}, 96")
            a(f"s_cmp_lt_u32 s{T4}, 96")
            a(f"s_cselect_b32 s{T5}, s{T5}, s{sKsS}")
            a(f"s_cselect_b32 s{sSl}, s{sSl}, 6")
            a(f"s_mul_i32 s{R+4+t}, s{T5}, {20*7168}")
            a(f"s_lshl_b32 s{sSl}, s{sSl}, 10")
            a(f"s_add_u32 s{R+4+t}, s{R+4+t}, s{sSl}")
            a(f"s_add_u32 s{R+4+t}, s{R+4+t}, s{sBase}")
        a.label(f"L_rl_common{u}")
        a(f"s_mul_i32 s{sD}, s{sD}, s{sST}")
        a(f"s_lshl_b32 s{T4}, s{sCB}, 7")
        a(f"s_add_u32 s{R}, s{sD}, s{T4}")
        a(f"s_mul_i32 s{sA}, s{sA}, s{sST}")
        a(f"s_mul_i32 s{sB}, s{sB}, s{sST}")
        a(f"s_add_u32 s{R+1}, s{R}, s{sB}")
        a(f"s_add_u32 s{R+2}, s{R}, s{sA}")
        a(f"s_add_u32 s{R+3}, s{R+2}, s{sB}")
        a("v_lshrrev_b32 v1, 5, v0")
        a(f"v_mul_u32_u24 v1, s{sCc}, v1")
        a("v_bfe_u32 v2, v0, 3, 2")
        a("v_add_u32 v1, v1, v2")
        a(f"v_mul_u32_u24 v1, s{sST}, v1")
        a("v_and_b32 v2, 7, v0")
        a(f"v_lshl_add_u32 v{self.RLV}, v2, 4, v1")
        a("v_lshrrev_b32 v1, 2, v0")
        a("v_lshlrev_b32 v1, 7, v1")
        a("v_and_b32 v2, 3, v0")
        a("v_lshl_add_u32 v1, v2, 3, v1")
        a(f"s_lshl_b32 s{T4}, s{S_W}, 12")
        a(f"s_add_u32 s{T4}, s{T4}, {self.RL_SCR-4096}")
        a(f"v_add_u32 v{self.RLA}, s{T4}, v1")

    def relayout_issue(self, drain_older=False, other=None):
        a = self.a
        L = a.newlabel("rlsk")
        a(f"s_sub_u32 s{T0}, s{S_W}, 1")
        a(f"s_cmp_ge_u32 s{T0}, {0 if self.o.get('norl') else 5}")
        a(f"s_cbranch_scc1 {L}")
        a(f"s_lshl_b32 s{T0}, s{S_W}, 12")
        a(f"s_add_u32 m0, s{T0}, {self.RL_SCR-4096}")
        for i in range(4):
            if i: a("s_add_u32 m0, m0, 1024")
            a("s_nop 0")
            self.dma(self.RLV, SRD_RL, f"s{self.sRL+i}")
        if other:
            L2 = a.newlabel("rlw")
            a(f"s_branch {L2}")
            a.label(L)
            other()
            a.label(L2)
        elif drain_older:
            L2 = a.newlabel("rlw")
            a("s_waitcnt vmcnt(4)")
            a(f"s_branch {L2}")
            a.label(L)
            a("s_waitcnt vmcnt(0)")
            a.label(L2)
        else:
            a.label(L)

    def relayout_finish(self, younger=None):
        a = self.a
        L = a.newlabel("rlsk"); F = 168; t = 184
        a(f"s_sub_u32 s{T0}, s{S_W}, 1")
        a(f"s_cmp_ge_u32 s{T0}, 5")
        Lo = a.newlabel("rlo")
        a(f"s_cbranch_scc1 {Lo if younger is not None else L}")
        if younger is not None: a(f"s_waitcnt vmcnt({younger})")
        for q in range(4):
            for rd in range(2):
                a(f"ds_read_b64_tr_b16 v[{F+4*q+2*rd}:{F+4*q+2*rd+1}], v{self.RLA} offset:{rd*2048+q*32}")
        a(f"v_lshlrev_b32 v{t}, 4, v0")
        for q in range(4):
            a(f"s_waitcnt lgkmcnt({6-2*q})")
            a(f"buffer_store_dwordx4 v[{F+4*q}:{F+4*q+3}], v{t}, s[{SRD_WS}:{SRD_WS+3}], s{self.sRL+4+q} offen sc1")
        if younger is not None: a("s_waitcnt vmcnt(4)")
        a(f"s_cmp_eq_u32 s{self.sRL+8}, -1")
        a(f"s_cbranch_scc1 {L}")
        for q in range(4): a(f"v_mov_b32 v{t+2+q}, 0")
        a(f"v_mov_b32 v{t+6}, 0x3f803f80")
        for k in range(4):
            for q in range(4): a(f"v_dot2_f32_bf16 v{t+2+q}, v{F+4*q+k}, v{t+6}, v{t+2+q}")
        a(f"v_lshlrev_b32 v{t+1}, 2, v0")
        a("s_nop 1")
        a(f"v_permlane16_swap_b32 v{t+2}, v{t+3}")
        a(f"v_permlane16_swap_b32 v{t+4}, v{t+5}")
        a("s_nop 0")
        a(f"v_add_f32 v{t+2}, v{t+2}, v{t+3}")
        a(f"v_add_f32 v{t+4}, v{t+4}, v{t+5}")
        a("s_nop 1")
        a(f"v_permlane32_swap_b32 v{t+2}, v{t+4}")
        a("s_nop 0")
        a(f"v_add_f32 v{t+2}, v{t+2}, v{t+4}")
        a(f"buffer_store_dword v{t+2}, v{t+1}, s[{SRD_WS}:{SRD_WS+3}], s{self.sRL+8} offen sc1")
        if younger is not None:
            a(f"s_branch {L}")
            a.label(Lo)
            a("s_waitcnt vmcnt(0)")
        a.label(L)

    def p1_setup_b(self):
        a = self.a
        a(f"s_and_b32 s{self.sTG}, s{S_W}, 3")
        a(f"s_lshr_b32 s{self.sNH}, s{S_W}, 2")
        a(f"s_cmp_ge_u32 s{self.sCT}, 5")
        a(f"s_cselect_b32 s{T0}, 5, 0")
        a(f"s_sub_u32 s{T0}, s{self.sCT}, s{T0}")
        a(f"s_lshl_b32 s{T0}, s{T0}, 1")
        a(f"s_add_u32 s{T0}, s{T0}, s{self.sNH}")
        for idx in range(10):
            a(f"s_cmp_eq_u32 s{T0}, {idx}")
            a(f"s_cbranch_scc1 L_tab{idx}")
        a(f"s_mul_i32 s{T1}, s{self.sNH}, 0x10101010")
        for k in range(4): a(f"s_add_u32 s{self.sTAB+k}, s{T1}, 0x%08x" % (0x03020100 + 0x04040404 * k))
        a(f"s_mov_b32 s{self.sTAB+4}, 0")
        a(f"s_mov_b32 s{self.sTAB+5}, 0")
        a("s_branch L_tabdone")
        for idx in range(10):
            a.label(f"L_tab{idx}")
            for k, d in enumerate(p1_table(idx // 2, idx % 2)): a(f"s_mov_b32 s{self.sTAB+k}, 0x%08x" % d)
            if idx < 9: a("s_branch L_tabdone")
        a.label("L_tabdone")
        a("v_and_b32 v1, 31, v0")
        a(f"s_lshl_b32 s{T0}, s{self.sTG}, 5")
        a(f"v_add_u32 v2, s{T0}, v1")
        a("v_bfe_u32 v3, v2, 1, 3")
        a("v_lshrrev_b32 v4, 5, v0")
        a("v_xor_b32 v3, v3, v4")
        a("v_lshlrev_b32 v3, 4, v3")
        a(f"v_lshl_add_u32 v{self.XA}, v2, 7, v3")
        a(f"s_xor_b32 s{T3}, s{self.sTG}, s{self.sNH}")
        a(f"s_lshl_b32 s{T0}, s{T3}, 5")
        a(f"v_xor_b32 v{self.XA}, s{T0}, v{self.XA}")
        for ks in range(1, 4): a(f"v_xor_b32 v{self.XA+ks}, {ks<<5}, v{self.XA}")
        a("v_bfe_u32 v5, v0, 2, 2")
        a("v_lshl_add_u32 v6, v4, 3, v5")
        a("v_lshlrev_b32 v6, 8, v6")
        a("v_and_b32 v7, 3, v0")
        a("v_lshlrev_b32 v7, 3, v7")
        a("v_and_b32 v8, 16, v0")
        a("v_cmp_ne_u32 vcc, 0, v8")
        for i in range(2):
            a(f"v_mov_b32 v8, s{self.sTAB+2*i}")
            a(f"v_mov_b32 v9, s{self.sTAB+2*i+1}")
            a("v_cndmask_b32 v8, v8, v9, vcc")
            a("v_bfe_u32 v8, v8, v7, 8")
            a("v_lshlrev_b32 v8, 3, v8")
            a("v_lshlrev_b32 v9, 6, v5")
            a("v_xor_b32 v8, v8, v9")
            a(f"v_add_u32 v8, v6, v8")
            a(f"s_lshl_b32 s{T0}, s{T3}, 12")
            a(f"v_add_u32 v{self.WA+4*i}, s{T0}, v8")
            for j in range(1, 4): a(f"v_xor_b32 v{self.WA+4*i+j}, {j<<12}, v{self.WA+4*i}")
        a(f"s_lshl_b32 s{T0}, s{self.sRB}, 2")
        a(f"s_add_u32 s{T0}, s{T0}, s{self.sTG}")
        a(f"s_lshl_b32 s{T1}, s{T0}, 9")
        a(f"s_add_u32 s{T1}, s{T1}, {WS_RS}")
        a(f"v_lshl_add_u32 v{self.RSA}, v1, 4, s{T1}")
        a(f"s_cmp_ge_u32 s{self.sCT}, 10")
        a("s_cbranch_scc1 L_p1_vaddr")
        a(f"s_lshl_b32 s{T0}, s{T0}, 9")
        a(f"s_cmp_ge_u32 s{self.sCT}, 5")
        a(f"s_cselect_b32 s{T1}, {WS_K}, {WS_Q}")
        a(f"s_add_u32 s{T0}, s{T0}, s{T1}")
        a(f"v_lshl_add_u32 v2, v1, 4, s{T0}")
        a("v_lshlrev_b32 v3, 3, v4")
        a("v_add_u32 v5, 16, v3")
        for i in range(2):
            for qq in range(2):
                a(f"v_bfe_u32 v6, s{self.sTAB+4+i}, v{3 if qq == 0 else 5}, 8")
                a(f"v_lshl_add_u32 v{self.STA+2*i+qq}, v6, 15, v2")
        a("s_branch L_p1_addrdone")
        a.label("L_p1_vaddr")
        a(f"s_mul_i32 s{T0}, s{T0}, 1280")
        a(f"s_add_u32 s{T0}, s{T0}, {WS_V}")
        a(f"s_lshl_b32 s{T1}, s{self.sCT}, 7")
        a(f"s_lshl_b32 s{T2}, s{self.sNH}, 6")
        a(f"s_add_u32 s{T1}, s{T1}, s{T2}")
        a(f"s_sub_u32 s{T1}, s{T1}, 1280")
        a(f"v_mov_b32 v{self.STA+2}, 0")
        a(f"v_mov_b32 v{self.STA+3}, 0")
        a("v_mul_u32_u24 v3, 320, v4")
        a(f"v_add_u32 v3, s{T0}, v3")
        a(f"s_mov_b32 s{T2}, 81920")
        for i in range(2):
            a(f"v_add_u32 v5, s{T1}, v1")
            if i: a("v_add_u32 v5, 32, v5")
            a("v_mul_u32_u24 v6, 3277, v5")
            a("v_lshrrev_b32 v6, 16, v6")
            a("v_mul_u32_u24 v7, 20, v6")
            a("v_sub_u32 v5, v5, v7")
            a("v_lshl_add_u32 v5, v5, 4, v3")
            a(f"v_mad_u32_u24 v{self.STA+i}, v6, s{T2}, v5")
        a.label("L_p1_addrdone")
        for r in range(32): a(f"v_mov_b32 v{self.ACC+r}, 0")
        a(f"s_mul_i32 s{T0}, s{self.sCT}, 10240")
        a(f"s_lshl_b32 s{T1}, s{self.sNH}, 9")
        a(f"s_add_u32 s{T0}, s{T0}, s{T1}")
        a(f"s_add_u32 s{T0}, s{T0}, {WS_CQ}")
        a(f"v_lshl_add_u32 v{self.CQA}, v0, 3, s{T0}")
        a(f"s_lshl_b32 s{T0}, s{self.sNH}, 8")
        a(f"s_lshl_b32 s{T1}, s{self.sTG}, 9")
        a(f"s_add_u32 s{T0}, s{T0}, {self.P1_MISC}")
        a(f"s_add_u32 s{T1}, s{T1}, s{T0}")
        a(f"v_lshl_add_u32 v{self.CSW}, v0, 2, s{T1}")
        a(f"v_lshl_add_u32 v95, v0, 2, s{T0}")
        a(f"v_mov_b32 v{self.VXM}, 0x8000")
        a(f"s_lshl_b32 s{T0}, s{S_W}, 2")
        a(f"s_add_u32 s{T0}, s{T0}, {self.P1_MISC + 2304}")
        a(f"v_mov_b32 v{self.PGA}, s{T0}")
        a(f"v_mov_b32 v{self.PGV}, 0")
        a(f"v_and_b32 v{self.PGR}, 7, v0")
        a(f"v_lshlrev_b32 v{self.PGR}, 2, v{self.PGR}")
        a(f"v_add_u32 v{self.PGR}, {self.P1_MISC + 2304}, v{self.PGR}")
        a(f"ds_write_b32 v{self.PGA}, v{self.PGV}")
        a(f"s_mov_b32 s{self.sCNT}, -1")
        a(f"s_cmp_eq_u32 s{self.sTG}, 0")
        a(f"s_cselect_b32 s{self.sSIDE}, 2, 0")

    def p1_loop(self, vmode):
        a = self.a
        tag = "v" if vmode else "q"
        if self.o.get("p1soft"):
            self.p1_loop1(vmode, 0)
        else:
            a(f"s_cmp_lg_u32 s{self.sNH}, 0")
            a(f"s_cbranch_scc1 L_p1_B{tag}")
            self.p1_loop1(vmode, 0)
            a(f"s_branch L_p1_E{tag}")
            a.label(f"L_p1_B{tag}")
            self.p1_loop1(vmode, 1)
            a.label(f"L_p1_E{tag}")
        reads, xors, mf = self.p1_parts(vmode)
        def comp(ks, rd=True, xr=True):
            self.jit(2)
            a(f"s_waitcnt lgkmcnt({5 if rd or ks == 2 else 0})")
            mf(ks, 0)
            if rd: reads((ks + 2) % 4)
            mf(ks, 1)
            if xr: xors((ks + 2) % 4)
        comp(0); self.p1_issue((2,))
        comp(1); self.p1_issue((3,))
        a(f"buffer_load_dwordx4 v[{self.RS}:{self.RS+3}], v{self.RSA}, s[{SRD_WS}:{SRD_WS+3}], 0 offen sc1")
        a(f"s_mul_i32 s{T0}, s{self.sCT}, 10240")
        a(f"s_lshl_b32 s{T1}, s{S_W}, 10")
        a(f"s_add_u32 s{T0}, s{T0}, s{T1}")
        a(f"s_add_u32 s{T0}, s{T0}, {WS_CQ}")
        a(f"s_add_u32 m0, s{T1}, {self.CQ_SCR}")
        a("v_lshlrev_b32 v1, 4, v0")
        self.dma(1, SRD_WS, f"s{T0}", "sc1")
        a(f"s_add_u32 s{T0}, s{T0}, 8192")
        a("s_add_u32 m0, m0, 8192")
        a(f"s_cmp_ge_u32 s{S_W}, 2")
        a(f"s_cselect_b32 s{T0}, 0x7f000000, s{T0}")
        self.dma(1, SRD_WS, f"s{T0}", "sc1")
        a("s_waitcnt vmcnt(7)")
        a("s_barrier")
        comp(2); comp(3)
        comp(0); comp(1)
        a("s_waitcnt vmcnt(3)")
        a("s_barrier")
        comp(2, xr=False); comp(3, xr=False)
        a("s_waitcnt vmcnt(0) lgkmcnt(5)")
        a("s_barrier")
        mf(0, 0)
        self.p1_epi_reads()
        mf(0, 1)
        a("s_waitcnt lgkmcnt(11)")
        mf(1, 0); reads(2); mf(1, 1); reads(3)
        self.p1_epi_common()
        (self.p1_prep_v if vmode else self.p1_prep_q)()
        a(f"s_waitcnt lgkmcnt({15 if vmode else 14})")
        mf(2, 0)
        a(f"s_waitcnt lgkmcnt({10 if vmode else 9})")
        mf(3, 0); mf(2, 1); mf(3, 1)
        self.stamp(4)

    def p1_parts(self, vmode):
        a = self.a
        def reads(ks):
            if self.o.get("nolds"): return
            a(f"ds_read_b128 v[{self.XF+4*ks}:{self.XF+4*ks+3}], v{self.XA+ks}")
            for i in range(2):
                for rd in range(2):
                    d = self.WF + 8 * ks + 4 * i + 2 * rd
                    a(f"ds_read_b64_tr_b16 v[{d}:{d+1}], v{self.WA+4*i+ks} offset:{16384+rd*1024}")
        def xors(ks):
            for r in (self.XA + ks, self.WA + ks, self.WA + 4 + ks): a(f"v_xor_b32 v{r}, v{self.VXM}, v{r}")
            if ks == 3: a(f"v_xor_b32 v{self.VXM}, 0x10000, v{self.VXM}")
        def mf(ks, i):
            x = vr(self.XF + 4 * ks, 4); wv = vr(self.WF + 8 * ks + 4 * i, 4); acc = vr(self.ACC + 16 * i, 16)
            if self.o.get("nomfma"): pass
            elif vmode: a(f"v_mfma_f32_32x32x16_bf16 {acc}, {x}, {wv}, {acc}")
            else: a(f"v_mfma_f32_32x32x16_bf16 {acc}, {wv}, {x}, {acc}")
        return reads, xors, mf

    def p1_loop1(self, vmode, B):
        a = self.a
        L = a.newlabel("p1loop")
        pos = self.o.get("barB" if B else "barA", "1" if B else "0")
        reads, xors, mf = self.p1_parts(vmode)
        def bar():
            a("s_waitcnt vmcnt(4)")
            if not self.o.get("nobar"): a("s_barrier")
            if self.o.get("its") == "1": self.stamp_dyn(54, self.sCNT)
        soft = self.o.get("p1soft")
        def comp(ks):
            n = (ks + 2) % 4
            if soft: return comp_soft(ks)
            self.jit(2)
            if ks == 2 and pos == "0": bar()
            a("s_waitcnt lgkmcnt(5)")
            mf(ks, 0)
            if ks == 2 and pos == "1": bar()
            if ks == 2 and pos == "2":
                mf(ks, 1); bar(); reads(n)
            else:
                reads(n); mf(ks, 1)
            xors(n)
            self.p1_issue((n,))
        def comp_soft(ks):
            n = (ks + 2) % 4
            ar = int(soft) - 1
            extra = {0: 0, 1: (1 if ar == 0 else 0), 2: 0, 3: 0}[ks]
            a(f"s_waitcnt lgkmcnt({5 + extra})" if ks != 2 else "s_waitcnt lgkmcnt(0)" if self.o.get("p1g0") else "s_waitcnt lgkmcnt(6)")
            mf(ks, 0)
            if ks == ar:
                a(f"v_add_u32 v{self.PGV}, 1, v{self.PGV}")
                a(f"s_waitcnt vmcnt({2 + ks})")
                a(f"ds_write_b32 v{self.PGA}, v{self.PGV}")
            if ks == 2:
                Lw, Lb = a.newlabel("late"), a.newlabel("go")
                a("s_waitcnt lgkmcnt(0)")
                a(f"v_cmp_lt_u32 vcc, v{self.PGD}, v{self.PGV}")
                a(f"s_cbranch_vccnz {Lw}")
                a.label(Lb)
                self._late1.append((Lw, Lb))
            reads(n); mf(ks, 1)
            if ks == 1: a(f"ds_read_b32 v{self.PGD}, v{self.PGR}")
            xors(n)
            self.p1_issue((n,))
        a("s_waitcnt vmcnt(6) lgkmcnt(0)")
        a("s_barrier")
        self.stamp(3)
        reads(0); reads(1); xors(0); xors(1)
        a("v_mov_b32 v6, 0x3f803f80")
        a("v_mov_b32 v2, 0")
        a("v_mov_b32 v3, 0")
        a("s_waitcnt lgkmcnt(5)")
        for k in range(4):
            for i in range(2): a(f"v_dot2_f32_bf16 v{2+i}, v{self.WF+4*i+k}, v6, v{2+i}")
        a("s_nop 2")
        a("v_permlane32_swap_b32 v2, v3")
        a("s_nop 0")
        a("v_add_f32 v2, v2, v3")
        a(f"ds_write_b32 v{self.CSW}, v2")
        a.align(int(self.o.get("al1", 3)))
        a.label(L)
        comp(0); comp(1); comp(2)
        Lr = a.newlabel("back"); Ls = a.newlabel("side")
        a(f"s_add_u32 s{self.sCNT}, s{self.sCNT}, 1")
        a(f"s_cmp_lt_u32 s{self.sCNT}, s{self.sSIDE}")
        a(f"s_cbranch_scc1 {Ls}")
        a.label(Lr)
        comp(3)
        a(f"s_cmp_lt_u32 s{self.sCNT}, {int(self.o.get('p1n', 10)) - 4}")
        a(f"s_cbranch_scc1 {L}")
        self._sides.append((Ls, Lr))

    def p1_sides(self):
        a = self.a
        for Lw, Lb in self._late1:
            a.label(Lw)
            a(f"s_mov_b32 s{S_SPIN}, 0")
            L = a.newlabel("lsp")
            a.label(L)
            a(f"ds_read_b32 v{self.PGD}, v{self.PGR}")
            a(f"s_add_u32 s{S_SPIN}, s{S_SPIN}, 1")
            a(f"s_cmp_ge_u32 s{S_SPIN}, {SPIN_MAX * 16}")
            a(f"s_cbranch_scc1 {Lb}")
            a("s_waitcnt lgkmcnt(0)")
            a(f"v_cmp_lt_u32 vcc, v{self.PGD}, v{self.PGV}")
            a(f"s_cbranch_vccnz {L}")
            a(f"s_branch {Lb}")
        self._late1 = []
        for Ls, Lr in self._sides:
            a.label(Ls)
            L1 = a.newlabel("s1")
            a(f"s_cmp_lg_u32 s{self.sCNT}, 0")
            a(f"s_cbranch_scc1 {L1}")
            a("v_mov_b32 v1, 0")
            a(f"buffer_load_dwordx2 v[{self.VN}:{self.VN+1}], v1, s[{SRD_DBG}:{SRD_DBG+3}], 0 offen sc1")
            a(f"s_branch {Lr}")
            a.label(L1)
            a("s_waitcnt vmcnt(4)")
            self.nonce_get("nonce2")
            a(f"v_mov_b32 v1, {self.P1_MISC + 2048}")
            a(f"ds_write_b64 v1, v[{self.VN}:{self.VN+1}]")
            for k in range(4): a(f"ds_read_b32 v{2+k}, v95 offset:{512*k}")
            a(f"s_lshl_b32 s{T0}, s{self.sKC0}, 10")
            a("s_waitcnt lgkmcnt(0)")
            a("v_add_f32 v2, v2, v3")
            a("v_add_f32 v4, v4, v5")
            a(f"v_mov_b32 v3, s{S_NONCE}")
            a("v_add_f32 v2, v2, v4")
            a(f"buffer_store_dwordx2 v[2:3], v{self.CQA}, s[{SRD_WS}:{SRD_WS+3}], s{T0} offen sc1")
            a(f"s_branch {Lr}")

    def p1_gather(self):
        a = self.a
        a(f"buffer_load_dwordx4 v[{self.RS}:{self.RS+3}], v{self.RSA}, s[{SRD_WS}:{SRD_WS+3}], 0 offen sc1")
        a(f"s_movk_i32 s{T0}, 0x1000")
        a(f"s_movk_i32 s{T1}, 0x2000")
        for k in range(10):
            so = ("0", f"s{T0}", f"s{T1}")[k // 4]
            a(f"buffer_load_dwordx2 v[{self.CQ+2*k}:{self.CQ+2*k+1}], v{self.CQA}, s[{SRD_WS}:{SRD_WS+3}], {so} offen offset:{1024*(k%4)} sc1")

    def p1_epi_reads(self):
        a = self.a
        a(f"s_lshl_b32 s{T0}, s{self.sNH}, 9")
        a(f"s_add_u32 s{T0}, s{T0}, {self.CQ_SCR}")
        a(f"v_lshl_add_u32 v1, v0, 3, s{T0}")
        for k in range(10): a(f"ds_read_b64 v[{self.CQ+2*k}:{self.CQ+2*k+1}], v1 offset:{1024*k}")
        a(f"v_mov_b32 v1, {self.P1_MISC + 2048}")
        a(f"ds_read_b64 v[{self.VN}:{self.VN+1}], v1")
        a(f"s_lshl_b32 s{T2}, s{S_W}, 9")
        a(f"s_add_u32 s{T2}, s{T2}, {self.P1_MISC+4096}")
        a(f"v_lshl_add_u32 v6, v0, 2, s{T2}")
        a("v_and_b32 v5, 31, v0")
        a(f"s_mov_b32 s{S_SPIN}, 0")

    def p1_epi_common(self):
        a = self.a
        L = a.newlabel("rs"); Ld = a.newlabel("rsd")
        a("s_waitcnt lgkmcnt(10)")
        a(f"v_readfirstlane_b32 s{S_NONCE}, v{self.VN}")
        a(f"v_readfirstlane_b32 s{S_NONCE+1}, v{self.VN+1}")
        a("s_nop 0")
        a.label(L)
        a(f"v_xor_b32 v2, s{S_NONCE}, v{self.RS+1}")
        a(f"v_xor_b32 v3, s{S_NONCE}, v{self.RS+3}")
        for k in range(0, 10, 2):
            a(f"v_xor_b32 v4, s{S_NONCE}, v{self.CQ+2*k+1}")
            a(f"v_xor_b32 v7, s{S_NONCE}, v{self.CQ+2*k+3}")
            a("v_or3_b32 v2, v2, v4, v7")
        a("v_or_b32 v2, v2, v3")
        a("v_cmp_ne_u32 vcc, 0, v2")
        a(f"s_add_u32 s{S_SPIN}, s{S_SPIN}, 1")
        a("s_or_b64 vcc, vcc, vcc")
        a(f"s_cbranch_scc0 {Ld}")
        a(f"s_cmp_ge_u32 s{S_SPIN}, {SPIN_MAX}")
        a(f"s_cbranch_scc1 {Ld}")
        self.diag("gather")
        self.p1_gather()
        a("s_waitcnt vmcnt(0)")
        a(f"s_branch {L}")
        a.label(Ld)
        Q = self.CQ
        a(f"v_add_f32 v12, v{Q}, v{Q+2}")
        a(f"v_add_f32 v13, v{Q+4}, v{Q+6}")
        a(f"v_add_f32 v14, v{Q+8}, v{Q+10}")
        a(f"v_add_f32 v15, v{Q+12}, v{Q+14}")
        a(f"v_add_f32 v2, v{Q+16}, v{Q+18}")
        a("v_add_f32 v12, v12, v13")
        a("v_add_f32 v14, v14, v15")
        a("v_add_f32 v12, v12, v2")
        a("v_add_f32 v12, v12, v14")

    def rowstats(self):
        a = self.a
        X = 100
        a("v_lshrrev_b32 v1, 3, v0")
        a(f"s_lshl_b32 s{T0}, s{S_W}, 4")
        a(f"s_lshl_b32 s{T1}, s{self.sRB}, 7")
        a(f"s_add_u32 s{T0}, s{T0}, s{T1}")
        a(f"v_add_u32 v1, s{T0}, v1")
        a("v_mul_u32_u24 v2, 1280, v1")
        a("v_and_b32 v3, 7, v0")
        a("v_lshl_add_u32 v2, v3, 4, v2")
        a(f"s_mov_b32 s{T0}, 10240")
        for k in range(10):
            for hh in range(2):
                r = X + 8 * k + 4 * hh
                a(f"buffer_load_dwordx4 v[{r}:{r+3}], v2, s[{SRD_X}:{SRD_X+3}], {'s%d' % T0 if hh else '0'} offen offset:{128*k}")
        for r in range(4, 8): a(f"v_mov_b32 v{r}, 0")
        a("v_mov_b32 v8, 0x3f803f80")
        for k in range(10):
            a(f"s_waitcnt vmcnt({18-2*k if k < 9 else 1})")
            if k == 8:
                a("v_mov_b32 v3, 0")
                a(f"buffer_load_dwordx2 v[{self.VN}:{self.VN+1}], v3, s[{SRD_DBG}:{SRD_DBG+3}], 0 offen sc1")
            for e in range(4):
                for hh in range(2):
                    r = X + 8 * k + 4 * hh + e
                    a(f"v_dot2_f32_bf16 v{4+hh}, v{r}, v8, v{4+hh}")
                    a(f"v_dot2_f32_bf16 v{6+hh}, v{r}, v{r}, v{6+hh}")
        a("s_nop 2")
        for ctl in ("quad_perm:[1,0,3,2]", "quad_perm:[2,3,0,1]", "row_half_mirror"):
            for r in range(4, 8): a(f"v_add_f32_dpp v{r}, v{r}, v{r} {ctl} row_mask:0xf bank_mask:0xf")
        a("s_waitcnt vmcnt(0)")
        self.nonce_get()
        a("v_and_b32 v3, 1, v0")
        a("v_cmp_ne_u32 vcc, 0, v3")
        a("v_lshlrev_b32 v3, 3, v3")
        a("v_add_u32 v1, v1, v3")
        a("v_cndmask_b32 v4, v4, v5, vcc")
        a("v_cndmask_b32 v6, v6, v7, vcc")
        a(f"v_mul_f32 v4, 0x%08x, v4" % f2u(1.0 / 640))
        a("v_mul_f32 v5, v4, v4")
        a(f"v_mov_b32 v7, 0x%08x" % f2u(1.0 / 640))
        a("v_fma_f32 v5, v6, v7, -v5")
        a("v_max_f32 v5, 0, v5")
        a(f"v_add_f32 v5, 0x%08x, v5" % f2u(1e-5))
        a("v_rsq_f32 v8, v5")
        a(f"v_mov_b32 v9, s{S_NONCE}")
        a(f"v_mov_b32 v11, s{S_NONCE}")
        a("v_mul_f32 v10, v4, v8")
        a("v_lshlrev_b32 v1, 4, v1")
        a(f"s_mov_b32 s{T0}, {WS_RS}")
        a("s_mov_b32 exec_lo, 0x03030303")
        a("s_mov_b32 exec_hi, 0x03030303")
        a(f"buffer_store_dwordx4 v[8:11], v1, s[{SRD_WS}:{SRD_WS+3}], s{T0} offen sc1")
        a("s_mov_b64 exec, -1")

    def p1_prep_q(self):
        a = self.a
        qs = math.log2(math.e) / math.sqrt(20.0)
        a("ds_write_b32 v6, v12")
        a("v_lshrrev_b32 v1, 5, v0")
        a(f"v_lshl_add_u32 v1, v1, 4, s{T2}")
        C = 48
        for i in range(2):
            for q4 in range(4):
                a(f"ds_read_b128 v[{C+16*i+4*q4}:{C+16*i+4*q4+3}], v1 offset:{i*128+q4*32}")
        a(f"s_cmp_lt_u32 s{self.sCT}, 5")
        a(f"s_cselect_b32 s{T1}, 0x%08x, 1.0" % f2u(qs))
        a(f"v_mul_f32 v2, s{T1}, v{self.RS}")
        a(f"v_mul_f32 v3, s{T1}, v{self.RS+2}")

    def p1_epi_q(self):
        a = self.a
        C = 48
        a("s_nop 8")
        for i in range(2):
            for qq in range(2):
                a(f"s_waitcnt lgkmcnt({6-4*i-2*qq})")
                b = 16 * i + 8 * qq
                for r in range(8): a(f"v_mul_f32 v{self.ACC+b+r}, v2, v{self.ACC+b+r}")
                for r in range(8): a(f"v_fma_f32 v{self.ACC+b+r}, -v3, v{C+b+r}, v{self.ACC+b+r}")
                o = 4 + 4 * ((2 * i + qq) % 2)
                for r in range(4): a(f"v_cvt_pk_bf16_f32 v{o+r}, v{self.ACC+b+2*r}, v{self.ACC+b+2*r+1}")
                a(f"buffer_store_dwordx4 v[{o}:{o+3}], v{self.STA+2*i+qq}, s[{SRD_WS}:{SRD_WS+3}], 0 offen sc1")

    def p1_prep_v(self):
        a = self.a
        a("v_mov_b32 v13, v12")
        a(f"v_lshl_add_u32 v6, v5, 2, s{T2}")
        a("v_lshrrev_b32 v1, 5, v0")
        a("v_permlane32_swap_b32 v12, v13")
        a(f"ds_write_b32 v6, v{self.RS}")
        a(f"ds_write_b32 v6, v{self.RS+2} offset:128")
        a(f"v_lshl_add_u32 v6, v1, 4, s{T2}")
        C = 48
        for q4 in range(4):
            a(f"ds_read_b128 v[{C+4*q4}:{C+4*q4+3}], v6 offset:{q4*32}")
            a(f"ds_read_b128 v[{C+16+4*q4}:{C+16+4*q4+3}], v6 offset:{128+q4*32}")

    def p1_epi_v(self):
        a = self.a
        C = 48
        a("s_nop 8")
        for grp in range(2):
            a(f"s_waitcnt lgkmcnt({4-4*grp})")
            for i in range(2):
                b = 16 * i + 8 * grp
                for r in range(8): a(f"v_mul_f32 v{self.ACC+b+r}, v{C+8*grp+r}, v{self.ACC+b+r}")
                for r in range(8): a(f"v_fma_f32 v{self.ACC+b+r}, -v{C+16+8*grp+r}, v{12+i}, v{self.ACC+b+r}")
                o = 4 + 4 * i
                for r in range(4): a(f"v_cvt_pk_bf16_f32 v{o+r}, v{self.ACC+b+2*r}, v{self.ACC+b+2*r+1}")
                a(f"buffer_store_dwordx4 v[{o}:{o+3}], v{self.STA+i}, s[{SRD_WS}:{SRD_WS+3}], 0 offen offset:{640*grp} sc1")

    def nonce_get(self, where="nonce"):
        a = self.a
        a(f"s_mov_b32 s{S_SPIN}, 0")
        Lc = a.newlabel("nchk"); Lo = a.newlabel("nok")
        a.label(Lc)
        a(f"v_readfirstlane_b32 s{S_NONCE}, v{self.VN}")
        a(f"v_readfirstlane_b32 s{S_NONCE+1}, v{self.VN+1}")
        a(f"s_add_u32 s{S_SPIN}, s{S_SPIN}, 1")
        a(f"s_or_b32 s{T0}, s{S_NONCE}, s{S_NONCE+1}")
        a(f"s_cbranch_scc1 {Lo}")
        a(f"s_cmp_ge_u32 s{S_SPIN}, {SPIN_MAX}")
        a(f"s_cbranch_scc1 {Lo}")
        self.diag(where)
        a("v_mov_b32 v94, 0")
        a(f"buffer_load_dwordx2 v[{self.VN}:{self.VN+1}], v94, s[{SRD_DBG}:{SRD_DBG+3}], 0 offen sc1")
        a("s_waitcnt vmcnt(0)")
        a(f"s_branch {Lc}")
        a.label(Lo)

    def phase1(self):
        a = self.a
        self.p1_setup_a()
        a(f"s_cmp_eq_u32 s{self.sCT}, 15")
        a("s_cbranch_scc0 L_p1_go")
        self.rowstats()
        a("s_branch L_p1_done")
        a.label("L_nonce_pub")
        a("v_mov_b32 v3, 0")
        a(f"v_mov_b32 v4, s{S_NONCE}")
        a(f"v_mov_b32 v5, s{S_NONCE+1}")
        a("s_mov_b64 exec, 1")
        a(f"buffer_store_dwordx2 v[4:5], v3, s[{SRD_DBG}:{SRD_DBG+3}], 0 offen sc1")
        a("s_mov_b64 exec, -1")
        a("s_branch L_nonce_done")
        a.label("L_p1_go")
        if self.o.get("p1v", "2") == "2":
            from p1v2 import phase1_split
            phase1_split(self)
        else:
            self.p1_setup_b()
            self.p1_issue((1, 2, 3) if self.o.get("first5", "1") == "1" else (0, 1, 2, 3))
            self.p1_issue((0, 1))
            self.stamp(2)
            a(f"s_cmp_ge_u32 s{self.sCT}, 10")
            a("s_cbranch_scc1 L_p1_v")
            self.p1_loop(False)
            self.p1_epi_q()
            a("s_branch L_p1_done")
            self.p1_sides(); self._sides = []
            a.label("L_p1_v")
            self.p1_loop(True)
            self.p1_epi_v()
            a("s_branch L_p1_done")
            self.p1_sides()
        a.label("L_p1_done")
        self.stamp(5)
        a(f"s_lshl_b32 s{T0}, s{self.sCT}, 4")
        a(f"s_add_u32 s{T0}, s{T0}, s{self.sRB}")
        a(f"s_mul_i32 s{T0}, s{T0}, {FSP}")
        a(f"s_add_u32 s{T0}, s{T0}, {FL_1}")
        self.flag_prep(12)
        a("s_waitcnt vmcnt(0)")
        self.stamp(6)
        a("s_barrier")
        self.flag_store(T0, 12, prepped=True)
        self.stamp(7)
        a(f"s_cmp_eq_u32 s{S_W}, 0")
        a("s_cbranch_scc1 L_no_rls")
        self.relayout_setup()
        a.label("L_no_rls")
        if self.stop < 2:
            self.relayout_issue()
            a("s_waitcnt vmcnt(0)")
            self.relayout_finish()

    def build(self):
        a = self.a
        self.entry()
        self.phase1()
        if self.stop >= 2:
            from phases import phase2, phase3, phase4, phase5
            phase2(self)
            if self.stop >= 3: phase3(self)
            if self.stop >= 4: phase4(self)
            if self.stop >= 5: phase5(self)
        a("s_waitcnt vmcnt(0)")
        if self.o.get("fixend"):
            if self.o.get("diag"):
                a("s_cmp_eq_u32 s35, 0")
                a("s_cbranch_scc1 L_nofix")
            a.label("L_fixend")
            a("s_memrealtime s[100:101]")
            a("s_waitcnt lgkmcnt(0)")
            a(f"s_sub_u32 s100, s100, s{31 if self.o.get('fixown') else S_NONCE}")
            a(f"s_cmp_lt_u32 s100, {int(self.o['fixend'])*100}")
            a("s_cbranch_scc1 L_fixend")
            a.label("L_nofix")
        self.stamp(31)
        self.stamp_flush()
        a.label("L_end")
        a("s_endpgm")
        for f in self._tail: f()
        a.lines.append(f".fill {self.pad}, 4, 0xbf810000")
        body = a.text()
        errs = check(body)
        if errs:
            sys.stderr.write("\n".join(errs[:40]) + "\n%d hazards\n" % len(errs))
            raise SystemExit(1)
        head = f"""; Fused preLN -> MHA -> residual -> preLN -> SiLU FFN -> residual in one persistent launch
;      keys, applied through the MFMA C operand; row sums come from a ones row of V.  At the end every wave
;      checks its sums and outputs; if the shift was unsafe (sum > 2^40, inf or NaN) the wave redoes its rows
; @launch grid=(256,1,1) block=(512,1,1) lds={LDS_BYTES}
.amdgcn_target "amdgcn-amd-amdhsa--gfx950"
.text
.globl {NAME}_kernel
.p2align 8
.type {NAME}_kernel,@function
{NAME}_kernel:
"""
        tail = f""".section .rodata,"a"
.p2align 6
.amdhsa_kernel {NAME}_kernel
  .amdhsa_next_free_vgpr 256
  .amdhsa_next_free_sgpr 102
  .amdhsa_accum_offset 256
  .amdhsa_group_segment_fixed_size 0
  .amdhsa_kernarg_size 72
  .amdhsa_user_sgpr_count 2
  .amdhsa_user_sgpr_kernarg_segment_ptr 1
  .amdhsa_system_sgpr_workgroup_id_x 1
.end_amdhsa_kernel
"""
        return head + body + tail

if __name__ == "__main__":
    stop = int(sys.argv[2]) if len(sys.argv) > 2 else 99
    opts = dict(kv.split("=") for kv in sys.argv[3:])
    import subprocess
    def asm_size(path):
        r = subprocess.run(["clang", "-x", "assembler", "-target", "amdgcn-amd-amdhsa", "-mcpu=gfx950", "-c", path, "-o", "_chk.o"], capture_output=True, text=True)
        if r.returncode: print(r.stderr[:1500]); raise SystemExit(1)
        r = subprocess.run(["llvm-readelf", "-S", "_chk.o"], capture_output=True, text=True)
        return int([l for l in r.stdout.split("\n") if ".text" in l][0].split()[6], 16)
    open(sys.argv[1], "w").write(K(stop, opts).build())
    n = asm_size(sys.argv[1])
    k = K(stop, opts)
    k.CPF_LINES = (n + 4095) // 4096
    k.pad = (k.CPF_LINES * 4096 - n) // 4 + 16
    open(sys.argv[1], "w").write(k.build())
    print(sys.argv[1], "code bytes:", n, "with pad:", asm_size(sys.argv[1]))
```

```python
import math
from asmlib import vr, f2u
from tables import *
from gen import *

ACC, XF, WF, XA, WA, VXM, STA, CSA, EP = 16, 160, 192, 80, 84, 86, 88, 92, 96
WS = f"s[{SRD_WS}:{SRD_WS+3}]"
M32 = "v_mfma_f32_32x32x16_bf16"

def phase1_split(k):
    a = k.a
    MISC = k.P1_MISC
    PART, NON, CSF, STF = MISC, MISC + 2048, MISC + 2560, MISC + 3072
    STV = MISC + 4096
    a(f"s_cmp_ge_u32 s{S_W}, 4")
    a("s_cbranch_scc1 L_p1_c")
    def issue():
        a(f"s_mov_b32 m0, s{k.sM0X}")
        a(f"s_add_u32 s{T0}, s{k.sXO}, 81920")
        k.dma(k.DXA, SRD_X, f"s{k.sXO}")
        a("s_add_u32 m0, m0, 8192")
        a(f"s_add_u32 s{T1}, s{k.sWO}, 122880")
        k.dma(k.DXA, SRD_X, f"s{T0}")
        a("s_add_u32 m0, m0, 8192")
        a(f"s_add_u32 s{k.sM0X}, s{k.sM0X}, 32768")
        k.dma(k.DW, SRD_WQ, f"s{k.sWO}")
        a("s_add_u32 m0, m0, 8192")
        a(f"s_add_u32 s{k.sWO}, s{k.sWO}, 15360")
        k.dma(k.DW, SRD_WQ, f"s{T1}")
        a(f"s_sub_u32 m0, m0, {24576 - 1024}")
        a(f"s_add_u32 s{T1}, s{T1}, 15360")
        k.dma(k.DXB, SRD_X, f"s{k.sXO}")
        a("s_add_u32 m0, m0, 8192")
        a(f"s_add_u32 s{k.sXO}, s{k.sXO}, 128")
        k.dma(k.DXB, SRD_X, f"s{T0}")
        a("s_add_u32 m0, m0, 8192")
        a(f"s_and_b32 s{k.sM0X}, s{k.sM0X}, 0x1ffff")
        k.dma(k.DW, SRD_WQ, f"s{k.sWO}")
        a("s_add_u32 m0, m0, 8192")
        a(f"s_add_u32 s{k.sWO}, s{k.sWO}, {245760 - 15360}")
        k.dma(k.DW, SRD_WQ, f"s{T1}")
        a(f"s_sub_u32 s{k.sKC}, s{k.sKC}, 1")
        a(f"s_cmov_b32 s{k.sXO}, s{k.sXB}")
        a(f"s_cmov_b32 s{k.sWO}, s{k.sWB}")
    a("v_lshrrev_b32 v4, 5, v0")
    a("v_bfe_u32 v5, v0, 2, 2")
    a("v_lshl_add_u32 v6, v4, 3, v5")
    a("v_lshlrev_b32 v6, 8, v6")
    a("v_bfe_u32 v7, v0, 4, 1")
    a("v_and_b32 v8, 3, v0")
    a("v_lshl_add_u32 v7, v7, 2, v8")
    a("v_lshlrev_b32 v7, 3, v7")
    a("v_lshl_add_u32 v7, v5, 6, v7")
    a(f"s_lshl_b32 s{T0}, s{S_W}, 12")
    a(f"v_add3_u32 v20, v6, v7, s{T0}")
    for t in range(1, 4): a(f"v_xor_b32 v{20+t}, {t << 6}, v20")
    a(f"s_lshl_b32 s{T0}, s{S_W}, 9")
    a(f"s_add_u32 s{T0}, s{T0}, {PART}")
    a(f"v_lshl_add_u32 v24, v0, 2, s{T0}")
    a("v_and_b32 v1, 31, v0")
    a(f"s_mul_i32 s{T0}, s{k.sCT}, 10240")
    a(f"s_lshl_b32 s{T1}, s{S_W}, 8")
    a(f"s_add_u32 s{T0}, s{T0}, s{T1}")
    a(f"s_add_u32 s{T0}, s{T0}, {WS_CQ}")
    a(f"v_lshl_add_u32 v25, v1, 3, s{T0}")
    a("v_lshl_add_u32 v25, v4, 10, v25")
    a(f"s_lshl_b32 s{T0}, s{k.sRB}, 2")
    a(f"s_add_u32 s{T0}, s{T0}, s{S_W}")
    a(f"s_lshl_b32 s{T0}, s{T0}, 9")
    a(f"s_add_u32 s{T0}, s{T0}, {WS_RS}")
    a(f"v_lshl_add_u32 v26, v1, 4, s{T0}")
    a(f"s_lshl_b32 s{T0}, s{S_W}, 7")
    a(f"v_lshl_add_u32 v27, v1, 2, s{T0}")
    a("v_mov_b32 v28, 0x3f803f80")
    issue()
    k.stamp(2)
    a("s_waitcnt vmcnt(8)")
    a("s_barrier")
    k.stamp(3)
    issue()
    NCS = {1: 3, 2: 2}.get(int(k.o.get("rotg", 1)), 1)
    def cs_partial(c):
        for t in range(4):
            a(f"v_mov_b32 v{30+t}, 0")
            for rd in range(2): a(f"ds_read_b64_tr_b16 v[{36+4*t+2*rd}:{37+4*t+2*rd}], v{20+t} offset:{16384+rd*1024+32768*(c%2)}")
        if c == 1:
            for t in range(4): a(f"v_add_u32 v{20+t}, 0x10000, v{20+t}")
        a("s_waitcnt lgkmcnt(0)")
        for e in range(4):
            for t in range(4): a(f"v_dot2_f32_bf16 v{30+t}, v{36+4*t+e}, v28, v{30+t}")
        a("s_nop 2")
        a("v_permlane32_swap_b32 v30, v31")
        a("v_permlane32_swap_b32 v32, v33")
        a("s_nop 0")
        a("v_add_f32 v30, v30, v31")
        a("v_add_f32 v32, v32, v33")
        a(f"ds_write_b32 v24, v30 offset:{6144*(c%2)}")
        a(f"ds_write_b32 v24, v32 offset:{256+6144*(c%2)}")
    def cs_publish(c):
        a(f"v_add_u32 v1, {PART}, v27")
        for q in range(4): a(f"ds_read_b32 v{52+q}, v1 offset:{512*q+6144*(c%2)}")
        a(f"s_add_u32 s{T0}, s{k.sKC0}, {c}")
        a(f"s_sub_u32 s{T1}, s{T0}, 10")
        a(f"s_min_u32 s{T0}, s{T0}, s{T1}")
        a(f"s_lshl_b32 s{T0}, s{T0}, 10")
        a("s_waitcnt lgkmcnt(0)")
        a("v_add_f32 v52, v52, v53")
        a("v_add_f32 v54, v54, v55")
        a(f"v_mov_b32 v53, s{S_NONCE}")
        a("v_add_f32 v52, v52, v54")
        a("s_mov_b64 exec, 0xffffffff")
        a(f"buffer_store_dwordx2 v[52:53], v25, {WS}, s{T0} offen sc1")
        a("s_mov_b64 exec, -1")
    a("v_mov_b32 v29, 0")
    a(f"buffer_load_dwordx2 v[{k.VN}:{k.VN+1}], v29, s[{SRD_DBG}:{SRD_DBG+3}], 0 offen sc1")
    cs_partial(0)
    a("s_waitcnt vmcnt(9) lgkmcnt(0)")
    a("s_barrier")
    issue()
    if NCS > 1: cs_partial(1)
    a("s_waitcnt vmcnt(8)")
    k.nonce_get("nonce2")
    a(f"v_mov_b32 v1, {NON}")
    a(f"ds_write_b64 v1, v[{k.VN}:{k.VN+1}]")
    cs_publish(0)
    a("s_barrier")
    issue()
    first = 2
    for c in range(1, NCS):
        if c + 1 < NCS: cs_partial(c + 1)
        cs_publish(c)
        a("s_waitcnt vmcnt(10)" if c == 1 else "s_waitcnt vmcnt(10)")
        a("s_barrier")
        issue()
        first += 1
    a("s_waitcnt vmcnt(9)")
    a(f"s_mov_b32 s{k.sCNT}, {first}")
    a.label("L_p1_ld")
    a("s_barrier")
    issue()
    a(f"s_add_u32 s{k.sCNT}, s{k.sCNT}, 1")
    a(f"s_cmp_lt_u32 s{k.sCNT}, 7")
    a("s_cbranch_scc0 L_p1_ldx")
    a("s_waitcnt vmcnt(8)")
    a("s_branch L_p1_ld")
    a.label("L_p1_ldx")
    def gather():
        a(f"buffer_load_dwordx4 v[36:39], v26, {WS}, 0 offen sc1")
        a(f"s_movk_i32 s{T0}, 0x1000")
        a(f"s_movk_i32 s{T1}, 0x2000")
        for q in range(5):
            so = ("0", "0", f"s{T0}", f"s{T0}", f"s{T1}")[q]
            a(f"buffer_load_dwordx2 v[{40+2*q}:{41+2*q}], v25, {WS}, {so} offen offset:{2048*(q%2)} sc1")
    GL = k.o.get("gl", "1") == "1"
    if not GL: gather()
    a(f"s_waitcnt vmcnt({8 if GL else 14})")
    a("s_barrier")
    if GL: gather()
    a("s_waitcnt vmcnt(6)")
    a("s_barrier")
    a(f"s_mov_b32 s{S_SPIN}, 0")
    a.label("L_p1_gchk")
    a("s_waitcnt vmcnt(0)")
    a(f"v_xor_b32 v2, s{S_NONCE}, v37")
    a(f"v_xor_b32 v3, s{S_NONCE}, v39")
    for q in range(5):
        a(f"v_xor_b32 v4, s{S_NONCE}, v{41+2*q}")
        a("v_or3_b32 v2, v2, v3, v4")
    a("v_cmp_ne_u32 vcc, 0, v2")
    a("s_cbranch_vccz L_p1_gok")
    a(f"s_add_u32 s{S_SPIN}, s{S_SPIN}, 1")
    a(f"s_cmp_ge_u32 s{S_SPIN}, {SPIN_MAX}")
    a("s_cbranch_scc1 L_p1_gok")
    k.diag("gather")
    gather()
    a("s_branch L_p1_gchk")
    a.label("L_p1_gok")
    a("v_add_f32 v40, v40, v42")
    a("v_add_f32 v44, v44, v46")
    a("v_add_f32 v40, v40, v48")
    a("v_add_f32 v40, v40, v44")
    qs = math.log2(math.e) / math.sqrt(20.0)
    a(f"s_cmp_lt_u32 s{k.sCT}, 5")
    a(f"s_cselect_b32 s{T1}, 0x{f2u(qs):08x}, 1.0")
    a("v_mov_b32 v41, v40")
    a(f"v_mul_f32 v36, s{T1}, v36")
    a(f"v_mul_f32 v37, s{T1}, v38")
    a("v_permlane32_swap_b32 v40, v41")
    a("v_lshlrev_b32 v1, 1, v27")
    a("v_add_f32 v40, v40, v41")
    a(f"v_add_u32 v1, {STF}, v1")
    a(f"v_add_u32 v27, {CSF}, v27")
    a("ds_write_b32 v27, v40")
    a("ds_write_b64 v1, v[36:37]")
    a(f"ds_write_b32 v27, v36 offset:{STV - CSF}")
    a(f"ds_write_b32 v27, v37 offset:{STV - CSF + 512}")
    a("s_waitcnt lgkmcnt(0)")
    a("s_barrier")
    k.stamp(4)
    a("s_branch L_p1_done")
    a.label("L_p1_c")
    if k.o.get("cprio"): a("s_setprio 1")
    sTH, sNH = k.sTG, k.sNH
    a(f"s_and_b32 s{sTH}, s{S_W}, 1")
    a(f"s_bfe_u32 s{sNH}, s{S_W}, 0x10001")
    a(f"s_cmp_ge_u32 s{k.sCT}, 5")
    a(f"s_cselect_b32 s{T0}, 5, 0")
    a(f"s_sub_u32 s{T0}, s{k.sCT}, s{T0}")
    a(f"s_lshl_b32 s{T0}, s{T0}, 1")
    a(f"s_add_u32 s{T0}, s{T0}, s{sNH}")
    for idx in range(10):
        a(f"s_cmp_eq_u32 s{T0}, {idx}")
        a(f"s_cbranch_scc1 L_tab{idx}")
    a(f"s_mul_i32 s{T1}, s{sNH}, 0x10101010")
    for q in range(4): a(f"s_add_u32 s{k.sTAB+q}, s{T1}, 0x%08x" % (0x03020100 + 0x04040404 * q))
    a(f"s_mov_b32 s{k.sTAB+4}, 0")
    a(f"s_mov_b32 s{k.sTAB+5}, 0")
    a("s_branch L_tabdone")
    for idx in range(10):
        a.label(f"L_tab{idx}")
        for q, d in enumerate(p1_table(idx // 2, idx % 2)): a(f"s_mov_b32 s{k.sTAB+q}, 0x%08x" % d)
        if idx < 9: a("s_branch L_tabdone")
    a.label("L_tabdone")
    a("v_and_b32 v1, 31, v0")
    a(f"s_lshl_b32 s{T0}, s{sTH}, 6")
    a(f"v_add_u32 v2, s{T0}, v1")
    a("v_bfe_u32 v3, v2, 1, 3")
    a("v_lshrrev_b32 v4, 5, v0")
    a("v_xor_b32 v3, v3, v4")
    a("v_lshlrev_b32 v3, 4, v3")
    a(f"v_lshl_add_u32 v{XA}, v2, 7, v3")
    for ks in range(1, 4): a(f"v_xor_b32 v{XA+ks}, {ks<<5}, v{XA}")
    a(f"v_lshlrev_b32 v87, 3, v2")
    a(f"v_add_u32 v87, {STF}, v87")
    a("v_bfe_u32 v5, v0, 2, 2")
    a("v_lshl_add_u32 v6, v4, 3, v5")
    a("v_lshlrev_b32 v6, 8, v6")
    a("v_and_b32 v7, 3, v0")
    a("v_lshlrev_b32 v7, 3, v7")
    a("v_and_b32 v8, 16, v0")
    a("v_cmp_ne_u32 vcc, 0, v8")
    for i in range(2):
        a(f"v_mov_b32 v8, s{k.sTAB+2*i}")
        a(f"v_mov_b32 v9, s{k.sTAB+2*i+1}")
        a("v_cndmask_b32 v8, v8, v9, vcc")
        a("v_bfe_u32 v8, v8, v7, 8")
        a("v_lshlrev_b32 v8, 3, v8")
        a("v_lshlrev_b32 v9, 6, v5")
        a("v_xor_b32 v8, v8, v9")
        a(f"v_add_u32 v{WA+i}, v6, v8")
    a(f"s_lshl_b32 s{T0}, s{k.sRB}, 2")
    a(f"s_lshl_b32 s{T1}, s{sTH}, 1")
    a(f"s_add_u32 s{T0}, s{T0}, s{T1}")
    a(f"s_cmp_ge_u32 s{k.sCT}, 10")
    a("s_cbranch_scc1 L_p1_vaddr")
    a(f"s_lshl_b32 s{T0}, s{T0}, 9")
    a(f"s_cmp_ge_u32 s{k.sCT}, 5")
    a(f"s_cselect_b32 s{T1}, {WS_K}, {WS_Q}")
    a(f"s_add_u32 s{T0}, s{T0}, s{T1}")
    a(f"v_lshl_add_u32 v2, v1, 4, s{T0}")
    a("v_lshlrev_b32 v3, 3, v4")
    a("v_add_u32 v5, 16, v3")
    a(f"v_mov_b32 v7, {CSF}")
    for i in range(2):
        for qq in range(2):
            a(f"v_bfe_u32 v6, s{k.sTAB+4+i}, v{3 if qq == 0 else 5}, 8")
            a(f"v_lshl_add_u32 v{STA+2*i+qq}, v6, 15, v2")
        for q4 in range(4):
            a(f"v_bfe_u32 v6, s{k.sTAB+2*i+q4//2}, v{3 if q4 % 2 == 0 else 5}, 8")
            a(f"v_lshl_add_u32 v{CSA+4*i+q4}, v6, 4, v7")
    a("s_branch L_p1_addrdone")
    a.label("L_p1_vaddr")
    a(f"s_mul_i32 s{T0}, s{T0}, 1280")
    a(f"s_add_u32 s{T0}, s{T0}, {WS_V}")
    a(f"s_lshl_b32 s{T1}, s{k.sCT}, 7")
    a(f"s_lshl_b32 s{T2}, s{sNH}, 6")
    a(f"s_add_u32 s{T1}, s{T1}, s{T2}")
    a(f"s_sub_u32 s{T1}, s{T1}, 1280")
    a(f"v_mov_b32 v{STA+2}, 0")
    a(f"v_mov_b32 v{STA+3}, 0")
    a(f"s_lshl_b32 s{T2}, s{T2}, 2")
    a(f"s_add_u32 s{T2}, s{T2}, {CSF}")
    a(f"v_lshl_add_u32 v{CSA}, v1, 2, s{T2}")
    a(f"s_lshl_b32 s{T2}, s{sTH}, 8")
    a(f"s_add_u32 s{T2}, s{T2}, {STV}")
    a(f"v_lshl_add_u32 v{CSA+1}, v4, 4, s{T2}")
    a("v_mul_u32_u24 v3, 320, v4")
    a(f"v_add_u32 v3, s{T0}, v3")
    a(f"s_mov_b32 s{T2}, 81920")
    for i in range(2):
        a(f"v_add_u32 v5, s{T1}, v1")
        if i: a("v_add_u32 v5, 32, v5")
        a("v_mul_u32_u24 v6, 3277, v5")
        a("v_lshrrev_b32 v6, 16, v6")
        a("v_mul_u32_u24 v7, 20, v6")
        a("v_sub_u32 v5, v5, v7")
        a("v_lshl_add_u32 v5, v5, 4, v3")
        a(f"v_mad_u32_u24 v{STA+i}, v6, s{T2}, v5")
    a.label("L_p1_addrdone")
    for r in range(64): a(f"v_mov_b32 v{ACC+r}, 0")
    a(f"v_mov_b32 v{VXM}, 0x8000")
    a(f"s_mov_b32 s{k.sCNT}, 0")
    k.stamp(2)
    a("s_waitcnt vmcnt(0)")
    a("s_barrier")
    k.stamp(3)
    def rlist(ks):
        r = [f"ds_read_b128 {vr(XF+8*ks+4*t,4)}, v{XA+ks} offset:{4096*t}" for t in range(2)]
        for i in range(2):
            for rd in range(2): r.append(f"ds_read_b64_tr_b16 {vr(WF+8*ks+4*i+2*rd,2)}, v{WA+i} offset:{16384+ks*4096+rd*1024}")
        return r
    for ks in range(2):
        for x in rlist(ks): a(x)
    a(f"v_xor_b32 v{XA}, v{VXM}, v{XA}")
    a(f"v_xor_b32 v{XA+1}, v{VXM}, v{XA+1}")
    a(f"s_cmp_ge_u32 s{k.sCT}, 10")
    a("s_cbranch_scc1 L_p1_v")
    for vmode in (False, True):
        if vmode: a.label("L_p1_v")
        def mf(ks, i, t):
            x = vr(XF + 8 * ks + 4 * t, 4); w = vr(WF + 8 * ks + 4 * i, 4); acc = vr(ACC + 16 * (2 * i + t), 16)
            a(f"{M32} {acc}, {x}, {w}, {acc}" if vmode else f"{M32} {acc}, {w}, {x}, {acc}")
        def comp(ks, rd=True, bar=False, wait=6, mid=None):
            k.jit(2)
            n = (ks + 2) % 4
            r = rlist(n) if rd else []
            a(f"s_waitcnt lgkmcnt({wait})")
            for m, (i, t) in enumerate(((0, 0), (0, 1), (1, 0), (1, 1))):
                mf(ks, i, t)
                if m == 0 and bar:
                    a("s_barrier")
                    if k.o.get("its") == "1": k.stamp_dyn(54, k.sCNT)
                if m == 0 and mid: mid()
                for x in r[2 * m: 2 * m + 2]: a(x)
                if m == 3 and rd:
                    a(f"v_xor_b32 v{XA+n}, v{VXM}, v{XA+n}")
                    if n == 3:
                        for i2 in range(2): a(f"v_xor_b32 v{WA+i2}, v{VXM}, v{WA+i2}")
                        a(f"v_xor_b32 v{VXM}, 0x10000, v{VXM}")
        L = a.newlabel("p1loop")
        a.align(3)
        a.label(L)
        comp(0); comp(1); comp(2, bar=True); comp(3)
        a(f"s_add_u32 s{k.sCNT}, s{k.sCNT}, 1")
        a(f"s_cmp_lt_u32 s{k.sCNT}, 9")
        a(f"s_cbranch_scc1 {L}")
        comp(0); comp(1)
        def terms():
            a(f"v_mov_b32 v1, {NON}")
            a(f"ds_read_b64 v[{k.VN+116}:{k.VN+117}], v1".replace(f"{k.VN+116}:{k.VN+117}", "2:3"))
            if vmode:
                a(f"ds_read_b32 v12, v{CSA}")
                a(f"ds_read_b32 v13, v{CSA} offset:128")
                for t in range(2):
                    for q4 in range(4):
                        a(f"ds_read_b128 {vr(EP+32*t+4*q4,4)}, v{CSA+1} offset:{128*t+32*q4}")
                        a(f"ds_read_b128 {vr(EP+32*t+16+4*q4,4)}, v{CSA+1} offset:{512+128*t+32*q4}")
            else:
                a("ds_read_b64 v[12:13], v87")
                a("ds_read_b64 v[14:15], v87 offset:256")
                for i in range(2):
                    for q4 in range(4): a(f"ds_read_b128 {vr(EP+4+16*i+4*q4,4)}, v{CSA+4*i+q4}")
        if k.o.get("gl", "1") == "1":
            comp(2, rd=False)
            comp(3, rd=False, bar=True, mid=terms, wait=0)
        else:
            comp(2, rd=False, bar=True, mid=terms)
            comp(3, rd=False, wait=min(15, 19 if vmode else 11))
        k.stamp(4)
        a("s_waitcnt lgkmcnt(0)")
        a(f"v_readfirstlane_b32 s{S_NONCE}, v2")
        a(f"v_readfirstlane_b32 s{S_NONCE+1}, v3")
        a("s_nop 5")
        n = 0
        for i in range(2):
            for t in range(2):
                b = ACC + 16 * (2 * i + t)
                for g in range(2):
                    o = 4 + 4 * (n % 2); n += 1
                    if k.o.get("epk") == "0":
                        for r in range(8 * g, 8 * g + 8):
                            a(f"v_mul_f32 v{b+r}, v{EP+32*t+r if vmode else 12+2*t}, v{b+r}")
                        for r in range(8 * g, 8 * g + 8):
                            a(f"v_fma_f32 v{b+r}, -v{EP+32*t+16+r if vmode else 13+2*t}, v{12+i if vmode else EP+4+16*i+r}, v{b+r}")
                    for r in range(8 * g, (8 * g + 8) * (k.o.get("epk") != "0"), 2):
                        if vmode: a(f"v_pk_mul_f32 {vr(b+r,2)}, {vr(EP+32*t+r,2)}, {vr(b+r,2)}")
                        else: a(f"v_pk_mul_f32 {vr(b+r,2)}, {vr(12+2*t,2)}, {vr(b+r,2)} op_sel_hi:[0,1]")
                    for r in range(8 * g, (8 * g + 8) * (k.o.get("epk") != "0"), 2):
                        if vmode: a(f"v_pk_fma_f32 {vr(b+r,2)}, {vr(EP+32*t+16+r,2)}, v[12:13], {vr(b+r,2)} op_sel:[0,{i},0] op_sel_hi:[1,{i},1] neg_lo:[1,0,0] neg_hi:[1,0,0]")
                        else: a(f"v_pk_fma_f32 {vr(b+r,2)}, {vr(12+2*t,2)}, {vr(EP+4+16*i+r,2)}, {vr(b+r,2)} op_sel:[1,0,0] op_sel_hi:[1,1,1] neg_lo:[1,0,0] neg_hi:[1,0,0]")
                    for r in range(4): a(f"v_cvt_pk_bf16_f32 v{o+r}, v{b+8*g+2*r}, v{b+8*g+2*r+1}")
                    if vmode: a(f"buffer_store_dwordx4 v[{o}:{o+3}], v{STA+i}, {WS}, 0 offen offset:{640*g+1280*t} sc1")
                    else: a(f"buffer_store_dwordx4 v[{o}:{o+3}], v{STA+2*i+g}, {WS}, 0 offen offset:{512*t} sc1")
        if k.o.get("cprio"): a("s_setprio 0")
        if not vmode: a("s_branch L_p1_done")
```
